```python
import torch

def _softmax(x, axis=-1):
    return torch.softmax(x, dim=axis)
def _gelu(x):
    return torch.nn.functional.gelu(x, approximate="tanh")
def _silu(x):
    return torch.nn.functional.silu(x)
def _sigmoid(x):
    return torch.sigmoid(x)
def _layernorm(x, axis=-1, eps=1e-5):
    m = x.mean(dim=axis, keepdim=True)
    v = x.var(dim=axis, keepdim=True, unbiased=False)
    return (x - m) / torch.sqrt(v + eps)
def _scatter_add(tgt, idx, src, axis=0):
    return tgt.clone().index_add_(axis, idx, src)
def _segment_sum(src, seg, n):
    out = torch.zeros((n,) + src.shape[1:], dtype=src.dtype)
    return out.index_add_(0, seg, src)
def _pad(x, pw):
    flat = tuple(v for pair in reversed(pw) for v in pair)
    return torch.nn.functional.pad(x, flat)

kernel_name = 'gated_mix__sliding_local_dilated__dense_activation_relu__prompt'

def setup_inputs():

    _w = (lambda a: (lambda t: t.to(torch.bfloat16) if t.is_floating_point() else t)(torch.as_tensor(a)))
    def _A_setup():
        B, S, D = 1, 2048, 512
        return {
            "x": _w((lambda *s: torch.randn(*s, dtype=torch.bfloat16) * 0.05)(B, S, D)),
            "wqkv": _w((lambda *s: torch.randn(*s, dtype=torch.bfloat16) * 1.6)(D, 3 * D)),
            "wo": _w((lambda *s: torch.randn(*s, dtype=torch.bfloat16) * 0.05)(D, D)),
        }
    _A_in = _A_setup()

    def _B_setup():
        B, S, D, Dff = 1, 2048, 512, 1792
        return {
            "x": _w((lambda *s: torch.randn(*s, dtype=torch.bfloat16) * 0.05)(B, S, D)),
            "w1": _w((lambda *s: torch.randn(*s, dtype=torch.bfloat16) * 0.2)(D, Dff)),
            "w2": _w((lambda *s: torch.randn(*s, dtype=torch.bfloat16) * 0.2)(Dff, D)),
        }
    _B_in = _B_setup()

    return {
        "A_x": _A_in["x"],
        "A_wqkv": _A_in["wqkv"],
        "A_wo": _A_in["wo"],
        "B_x": _B_in["x"],
        "B_w1": _B_in["w1"],
        "B_w2": _B_in["w2"],
        "gate_w": _w((lambda *s: torch.randn(*s, dtype=torch.bfloat16) * 0.05)(512) * 16.0),
    }

def reference(A_x, A_wqkv, A_wo, B_x, B_w1, B_w2, gate_w):
    def _A_ref(x, wqkv, wo):
        B, S, D = x.shape
        H = 32; Dh = D // H
        W, dil = 8, 2
        qkv = (lambda x, *d: x.permute(*d))((x @ wqkv).reshape(B, S, 3, H, Dh), 2, 0, 3, 1, 4)
        q, k, v = qkv[0], qkv[1], qkv[2]
        scale = Dh ** -0.5
        pos = torch.arange(S)
        off = torch.arange(W) * dil
        idx = pos[:, None] - off[None, :]
        mask = idx >= 0
        idx_c = torch.where(mask, idx, 0).reshape(-1)
        kg = k[:, :, idx_c, :].reshape(B, H, S, W, Dh)
        vg = v[:, :, idx_c, :].reshape(B, H, S, W, Dh)
        logits = torch.einsum("bhsd,bhswd->bhsw", q, kg) * scale
        logits = torch.where(mask[None, None, :, :], logits, -1e9)
        attn = _softmax(logits, axis=-1)
        o = torch.einsum("bhsw,bhswd->bhsd", attn, vg)
        return (lambda x, *d: x.permute(*d))(o, 0, 2, 1, 3).reshape(B, S, D) @ wo

    def _B_ref(x, w1, w2):
        h = torch.einsum("bsd,df->bsf", x, w1)
        zero = torch.zeros_like(h)
        h = torch.maximum(h, zero)
        return torch.einsum("bsf,fd->bsd", h, w2)

    x = A_x
    g = _sigmoid((x * gate_w).sum(-1, keepdims=True))
    a = _A_ref(x, A_wqkv, A_wo)
    b = _B_ref(x, B_w1, B_w2)
    return g * a + (1 - g) * b
```

```python
import re

TRANS = ("v_exp_f32", "v_log_f32", "v_rcp_f32", "v_rsq_f32", "v_sqrt_f32", "v_sin_f32", "v_cos_f32")

def regs_of(tok):
    tok = tok.strip()
    tok = tok.lstrip("-")
    m = re.fullmatch(r"abs\((.*)\)", tok)
    if m: tok = m.group(1)
    m = re.fullmatch(r"([vas])(\d+)", tok)
    if m: return {(m.group(1), int(m.group(2)))}
    m = re.fullmatch(r"([vas])\[(\d+):(\d+)\]", tok)
    if m: return {(m.group(1), i) for i in range(int(m.group(2)), int(m.group(3)) + 1)}
    if tok in ("vcc", "vcc_lo", "vcc_hi"): return {("s", "vcc")}
    if tok in ("exec", "exec_lo", "exec_hi"): return {("s", "exec")}
    if tok == "m0": return {("s", "m0")}
    return set()

def split_ops(s):
    out, depth, cur = [], 0, ""
    for ch in s:
        if ch == "[": depth += 1
        if ch == "]": depth -= 1
        if ch == "," and depth == 0:
            out.append(cur.strip()); cur = ""
        else:
            cur += ch
    if cur.strip(): out.append(cur.strip())
    return out

class Ins:
    __slots__ = ("pos", "kind", "w", "r", "A", "B", "C", "mn", "wide")

class Em:
    def __init__(self):
        self.lines = []
        self.hist = []
        self.pos = 0
        self.vmq = [[[], 0]]
        self.lgq = [[[], 0]]
        self.nops = 0
        self.count_mem = True
        self.nins = 0

    def raw(self, s):
        self.lines.append(s)

    def comment(self, s):
        self.lines.append("    ; " + s)

    def label(self, name):
        self.lines.append(name + ":")

    def parse(self, text):
        t = text.split(";")[0].strip()
        sp = t.split(None, 1)
        mn = sp[0]
        rest = sp[1] if len(sp) > 1 else ""
        ops = split_ops(rest)
        mods = ""
        if ops:
            parts = ops[-1].split(None, 1)
            ops[-1] = parts[0]
            if len(parts) > 1: mods = parts[1]
        i = Ins(); i.mn = mn; i.w = set(); i.r = set(); i.A = i.B = i.C = set(); i.wide = False
        R = [regs_of(o) for o in ops]
        if mn.startswith("v_mfma"):
            i.kind = "mfma"; i.w = R[0]; i.A = R[1]; i.B = R[2]; i.C = R[3]; i.r = R[1] | R[2] | R[3]
        elif mn.startswith("v_"):
            i.kind = "valu"
            if mn.startswith(("v_swap", "v_permlane16_swap", "v_permlane32_swap")):
                i.w = R[0] | R[1]; i.r = R[0] | R[1]
            else:
                i.w = R[0]
                for x in R[1:]: i.r |= x
                if mn.startswith(("v_fmac", "v_dot2c")): i.r |= R[0]
                if mn.startswith("v_cndmask") and len(ops) == 3: i.r |= {("s", "vcc")}
        elif mn.startswith(("buffer_load", "global_load")):
            i.kind = "vmem"
            if "lds" in mods.split():
                for x in R: i.r |= x
                i.r |= {("s", "m0")}
                i.kind = "dma"
            else:
                i.w = R[0]
                for x in R[1:]: i.r |= x
        elif mn.startswith(("buffer_store", "buffer_atomic", "global_store")):
            i.kind = "vmem"
            for x in R: i.r |= x
            i.wide = True
            i.A = R[0]
        elif mn.startswith("ds_read"):
            i.kind = "ds"; i.w = R[0]
            for x in R[1:]: i.r |= x
        elif mn.startswith("ds_write"):
            i.kind = "ds"
            for x in R: i.r |= x
        elif mn.startswith("s_"):
            i.kind = "salu"
            if mn.startswith(("s_cmp", "s_cbranch", "s_branch", "s_waitcnt", "s_barrier", "s_nop", "s_endpgm", "s_sleep", "s_setprio", "s_bitcmp")):
                for x in R: i.r |= x
            else:
                if R: i.w = R[0]
                for x in R[1:]: i.r |= x
        else:
            raise ValueError("unknown " + text)
        return i

    def need(self, p, c):
        n = 0
        vw = {x for x in p.w if x[0] in "va"}
        sw = {x for x in p.w if x[0] == "s"}
        if p.kind == "valu":
            if c.kind == "mfma" and vw & c.r: n = max(n, 2)
            if c.kind == "valu":
                if p.mn.startswith(TRANS) and vw & c.r and not c.mn.startswith(TRANS): n = max(n, 1)
                if p.mn.startswith(TRANS) and vw & c.r: n = max(n, 1)
                if c.mn.startswith("v_permlane") and vw & c.r: n = max(n, 2)
                if c.mn.startswith(("v_readfirstlane", "v_readlane")) and vw & c.r: n = max(n, 1)
                if sw & c.r: n = max(n, 2)
                if p.mn.startswith("v_dot2c") and vw & (c.r | c.w) and c.mn != p.mn: n = max(n, 3)
                if "dpp" in c.mn and vw & c.r and not (p.mn == c.mn and vw == c.w): n = max(n, 2)
            if c.kind in ("vmem", "dma") and sw & c.r: n = max(n, 5)
            if c.kind == "salu" and sw & c.r: n = max(n, 1)
        if p.kind == "mfma":
            if c.kind == "mfma":
                if p.w & (c.A | c.B): n = max(n, 8)
                if p.w & c.C and not (p.w == c.C and p.mn == c.mn): n = max(n, 6)
            elif c.kind in ("valu", "vmem", "dma", "ds"):
                if p.w & (c.r | c.w): n = max(n, 8)
            if c.kind == "valu" and p.C & c.w: n = max(n, 3)
        if p.kind == "salu" and ("s", "m0") in p.w and c.kind == "dma": n = max(n, 1)
        if p.kind == "vmem" and p.wide and p.A & c.w: n = max(n, 2)
        return n

    def I(self, text, tag=None):
        i = self.parse(text)
        req = 0
        for p in reversed(self.hist):
            d = self.pos - p.pos - 1
            if d >= 8: break
            n = self.need(p, i)
            if n - d > req: req = n - d
        if req > 0:
            self.lines.append(f"    s_nop {req-1}")
            self.pos += req
            self.nops += req
            self.nins += 1
        i.pos = self.pos
        if i.mn == "s_nop":
            self.pos += int(text.split()[1]) + 1
        else:
            self.pos += 1
        self.hist.append(i)
        if len(self.hist) > 64: self.hist = self.hist[-32:]
        self.lines.append("    " + text)
        self.nins += 1
        if self.count_mem:
            if i.kind in ("vmem", "dma"):
                for q in self.vmq: q[0].append(tag)
            if i.kind == "ds":
                for q in self.lgq: q[0].append(tag)
        return i

    def cond_begin(self):
        self._cstart = self.pos
        self._chist = len(self.hist)
        self._cpre = list(self.hist)
        self.count_mem = False
    def cond_end(self):
        ln = self.pos - self._cstart
        for p in self._cpre:
            p.pos += ln
        self.hist.sort(key=lambda p: p.pos)
        self.count_mem = True

    def _n(self, qs, tags, cap):
        best = None
        for q in qs:
            lst = q[0]
            if tags == "all":
                best = 0
                continue
            idx = -1
            for k, t in enumerate(lst):
                if t in tags: idx = k
            for t in tags: assert t in lst, ("tag missing", t)
            if idx + 1 > q[1]:
                n = min(len(lst) - 1 - idx, cap)
                best = n if best is None else min(best, n)
        if best is not None:
            for q in qs:
                q[1] = max(q[1], len(q[0]) - best)
        return best

    def wait(self, vm=None, lg=None):
        parts = []
        if vm is not None:
            if vm != "all" and isinstance(vm, str): vm = [vm]
            n = self._n(self.vmq, vm if vm == "all" else set(vm), 63)
            if n is not None: parts.append(f"vmcnt({n})")
        if lg is not None:
            if lg != "all" and isinstance(lg, str): lg = [lg]
            n = self._n(self.lgq, lg if lg == "all" else set(lg), 15)
            if n is not None: parts.append(f"lgkmcnt({n})")
        if parts:
            self.I("s_waitcnt " + " ".join(parts))

    def snapshot(self):
        import copy
        return copy.deepcopy((self.vmq, self.lgq))
    def restore(self, s):
        import copy
        self.vmq, self.lgq = copy.deepcopy(s)
    def join(self, snaps):
        import copy
        self.vmq = []; self.lgq = []
        for s in snaps:
            s = copy.deepcopy(s)
            self.vmq += s[0]; self.lgq += s[1]
    def flush_hazards(self):
        self.I("s_nop 7")
        self.hist = []

    def text(self):
        return "\n".join(self.lines) + "\n"
```

```python
import sys, struct
from emit import Em

NAME = "gated_mix__sliding_local_dilated__dense_activation_relu__prompt"
OPT = dict(stamp=0, rot=1, D=4, codepf=1, side=2, spin=200000)
for a in sys.argv[1:]:
    k, v = a.split("="); OPT[k] = int(v)
STAMP = OPT["stamp"]; D = OPT["D"]

def f2u(x): return struct.unpack("<I", struct.pack("<f", x))[0]

A2_BYTES = 32 * 72 * 4096
FLAG_OFF = 16 << 20
STAMP_OFF = 32 << 20
HALO_LDS = 131072
EXCH_LDS = 147456
GBUF_LDS = 131072
NEG = f2u(-1e30)

e = Em()
I = e.I
def vr(b, n=4): return f"v[{b}:{b+n-1}]"
def ar(b, n=4): return f"a[{b}:{b+n-1}]"

V_XOFF = 2
V_WD = 4
V_BD = 8
V_WR = 12
V_WR3 = 96
V_XR = 100
V_HALO2 = 107
V_GWF = 120
V_BR = 20
V_L16 = 28
V_HALO = 29
V_EXW = 30
V_EXR = 31
V_RING = 32
NRING = 6
V_RINV = 56
V_ACC = 64
V_HACC = 96
V_HX = 100
V_PACK = 108
V_BIAS = 108
V_MASK = 124
V_GW = 128
V_K = 192; V_Q = 208; V_S = 224
A_KP = 224; A_ONES = 240; A_HX = 244
V_ACCB = 128; V_ACCA = 192
A_A2 = 128
V_G = 108
V_A2OFF = 116

S_X, S_W, S_WS, S_OUT, S_W2, S_WO, S_GW, S_FL, S_DBG = 24, 28, 32, 36, 40, 44, 48, 52, 56
S_w, S_r, S_jj, S_rot, S_n2, S_r2, S_hb, S_m0b, S_q = 60, 61, 62, 63, 64, 65, 66, 67, 68
S_t0, S_t1 = 3, 69
S_FLA = 70; S_NOA = 72; S_NONCE = 74; S_NONCE1 = 75; S_POLL = 76; S_CNT = 80; S_SOFF = 81; S_EX3 = 82
S_KG = 84
S_WK = 88
S_COL = 92; S_ST = 93; S_B2 = 94; S_CEXP = 95; S_THR = 96; S_A2 = 97; S_BO = 98
S_STAMP = 4
def srd(b): return f"s[{b}:{b+3}]"

nstamp = [0]
def stamp(idx):
    if STAMP:
        I(f"s_memtime s[{S_STAMP+2*idx}:{S_STAMP+2*idx+1}]")

e.raw(f"; @launch grid=(256,1,1) block=(256,1,1) lds=163840")
e.raw('.amdgcn_target "amdgcn-amd-amdhsa--gfx950"')
e.raw(".text")
e.raw(f".globl {NAME}_kernel")
e.raw(".p2align 8")
e.raw(f".type {NAME}_kernel,@function")
e.label(f"{NAME}_kernel")
I("s_cmp_ge_u32 s2, 256")
I("s_cbranch_scc1 L_end")
I("s_load_dwordx16 s[4:19], s[0:1], 0")
I("s_load_dwordx4 s[20:23], s[0:1], 64")
if STAMP:
    I("s_memrealtime s[78:79]")
    I("s_memtime s[76:77]")
I("v_lshrrev_b32 v1, 6, v0")
I("v_and_b32 v0, 63, v0")
I(f"v_readfirstlane_b32 s{S_w}, v1")
I(f"s_and_b32 s{S_t0}, s2, 7")
I(f"s_lshr_b32 s{S_jj}, s2, 3")
I(f"s_lshr_b32 s{S_q}, s{S_t0}, 1")
I(f"s_and_b32 s{S_t0}, s{S_t0}, 1")
I(f"s_lshl_b32 s{S_t0}, s{S_t0}, 3")
I(f"s_and_b32 s{S_r}, s{S_jj}, 7")
I(f"s_or_b32 s{S_r}, s{S_r}, s{S_t0}")
I(f"s_lshr_b32 s{S_jj}, s{S_jj}, 3")
if OPT["rot"]:
    I(f"s_add_u32 s{S_rot}, s{S_r}, s{S_jj}")
else:
    I(f"s_mov_b32 s{S_rot}, 0")
I(f"s_lshl_b32 s{S_m0b}, s{S_w}, 12")
I(f"v_lshlrev_b32 v{V_L16}, 4, v0")
if OPT["codepf"]:
    I("s_cmp_lt_u32 s2, 8")
    I("s_cbranch_scc0 L_nopf")
    e.cond_begin()
    I("s_getpc_b64 s[98:99]")
    e.label("L_pc")
    I(f"v_lshlrev_b32 v2, 7, v0")
    I(f"v_lshl_add_u32 v2, v1, 13, v2")
    I(f"v_min_u32 v2, L_end-L_pc, v2")
    I("global_load_dword v127, v2, s[98:99]")
    e.cond_end()
    e.label("L_nopf")
I("v_lshrrev_b32 v32, 4, v0")
I("v_and_b32 v33, 15, v0")
I("v_bfe_u32 v34, v0, 2, 2")
I("v_and_b32 v35, 3, v0")
I("v_lshrrev_b32 v36, 3, v0")
I("v_and_b32 v37, 7, v0")
I("v_lshlrev_b32 v38, 11, v36")
I("v_xor_b32 v39, v37, v32")
I(f"v_lshl_add_u32 v{V_XOFF}, v39, 4, v38")
I("v_xor_b32 v39, 4, v39")
I("v_lshl_add_u32 v38, v39, 4, v38")
I(f"v_add_u32 v{V_XOFF+1}, {14*1024}, v38")
I(f"s_lshl_b32 s{S_t0}, s{S_r}, 17")
I(f"s_lshl_b32 s{S_t1}, s{S_w}, 15")
I(f"s_add_u32 s{S_t0}, s{S_t0}, s{S_t1}")
for g4 in range(4):
    I(f"s_add_u32 s{S_WK+g4}, s{S_rot}, {g4}")
    I(f"s_and_b32 s{S_WK+g4}, s{S_WK+g4}, 3")
    I(f"s_lshl_b32 s{S_KG+g4}, s{S_WK+g4}, 8")
    I(f"s_add_u32 s{S_KG+g4}, s{S_KG+g4}, s{S_t0}")
I("s_waitcnt lgkmcnt(0)")
if STAMP:
    I("s_memtime s[100:101]")
    I("s_mov_b32 s72, s76")
    I("s_mov_b32 s73, s78")
def mk_srd(b, p, nbytes):
    I(f"s_mov_b32 s{b}, s{p}")
    I(f"s_and_b32 s{b+1}, s{p+1}, 0xffff")
    I(f"s_mov_b32 s{b+2}, {nbytes}")
    I(f"s_mov_b32 s{b+3}, 0x20000")
mk_srd(S_X, 4, 2048 * 1024)

def x_items(g4, slots):
    items = []
    for kh in range(2):
        def setup(kh=kh):
            I(f"s_add_u32 m0, s{S_m0b}, {slots[kh]*16384}")
            I(f"s_add_u32 s{S_SOFF}, s{S_KG+g4}, {kh*128}")
        items.append(("setup", setup))
        for i in range(4):
            items.append(("dma", lambda i=i: I(f"buffer_load_dwordx4 v{V_XOFF+(i>>1)}, {srd(S_X)}, s{S_SOFF} offen offset:{i*1024} lds", tag=f"x{g4}")))
    return items
def x_reads(g4, slots):
    for kh in range(2):
        base = slots[kh] * 16384
        for p in range(2):
            for sp in range(2):
                a = V_XR + 2 * p + sp
                if base >= 65536:
                    I(f"v_add_u32 v{V_RINV+2*p+sp}, {base & ~0xffff}, v{a}")
                    a = V_RINV + 2 * p + sp
                I(f"ds_read_b128 {ar((p*16+4*g4+2*kh+sp)*4)}, v{a} offset:{base & 0xffff}", tag=f"xr{g4}")
def run(items):
    for _, f in items: f()
X0 = (3, 4)
run(x_items(0, X0))
I(f"s_add_u32 s{S_FLA}, s22, {FLAG_OFF}")
I(f"s_addc_u32 s{S_FLA+1}, s23, 0")
mk_srd(S_FL, S_FLA, 8192)
mk_srd(S_WS, 22, A2_BYTES)
mk_srd(S_OUT, 18, 2048 * 1024)
mk_srd(S_W2, 14, 1792 * 1024)
mk_srd(S_WO, 8, 512 * 1024)
mk_srd(S_GW, 16, 1024)
mk_srd(S_DBG, 20, 256)
I(f"s_cmp_ge_u32 s{S_jj}, 2")
I(f"s_cselect_b32 s{S_W}, s6, s12")
I(f"s_cselect_b32 s{S_W+1}, s7, s13")
I(f"s_and_b32 s{S_W+1}, s{S_W+1}, 0xffff")
I(f"s_cmp_ge_u32 s{S_jj}, 2")
I(f"s_mov_b32 s{S_W+2}, {512*3584}")
I(f"s_cmov_b32 s{S_W+2}, {512*3072}")
I(f"s_mov_b32 s{S_W+3}, 0x20000")
I(f"s_mov_b32 s{S_t1}, 3584")
I(f"s_cmov_b32 s{S_t1}, 3072")
I(f"s_lshl_b32 s{S_t0}, s{S_w}, 5")
I(f"v_add_u32 v38, s{S_t0}, v36")
I(f"v_mul_lo_u32 v38, v38, s{S_t1}")
I("v_bfe_u32 v39, v36, 1, 1")
I("v_lshrrev_b32 v40, 1, v37")
I("v_xor_b32 v40, v40, v39")
I("v_and_b32 v41, 1, v37")
I("v_lshl_add_u32 v38, v41, 4, v38")
I(f"v_lshl_add_u32 v{V_WD}, v40, 5, v38")
I("v_xor_b32 v42, 2, v40")
I(f"v_lshl_add_u32 v{V_WD+1}, v42, 5, v38")
I(f"s_lshl_b32 s{S_t0}, s{S_t1}, 3")
I(f"s_sub_u32 s{S_t0}, s{S_t0}, 1024")
I(f"v_add_u32 v{V_WD+1}, s{S_t0}, v{V_WD+1}")
I(f"s_lshl_b32 s{S_t0}, s{S_t0}, 1")
I(f"v_add_u32 v{V_WD+2}, s{S_t0}, v{V_WD}")
I(f"v_add_u32 v{V_WD+3}, s{S_t0}, v{V_WD+1}")
I(f"s_lshl_b32 s{S_t1}, s{S_t1}, 7")
for g4 in range(4):
    I(f"s_mul_i32 s{S_WK+g4}, s{S_WK+g4}, s{S_t1}")
I(f"s_and_b32 s{S_hb}, s{S_q}, 1")
I(f"s_lshr_b32 s{S_n2}, s{S_q}, 1")
I(f"s_lshl_b32 s{S_n2}, s{S_n2}, 2")
I(f"s_add_u32 s{S_n2}, s{S_n2}, s{S_jj}")
I(f"s_lshl_b32 s{S_r2}, s{S_r}, 1")
I(f"s_add_u32 s{S_r2}, s{S_r2}, s{S_hb}")

def dma_items(voff, srdb, soff_fn, slot, tag):
    def setup():
        I(f"s_add_u32 m0, s{S_m0b}, {slot*16384}")
        soff_fn()
    items = [("setup", setup)]
    for i in range(4):
        items.append(("dma", lambda i=i: I(f"buffer_load_dwordx4 v{voff+i}, {srd(srdb)}, s{S_SOFF} offen offset:{i*1024} lds", tag=tag)))
    return items

def rest_setup(att):
    for p in range(2):
        I(f"v_xor_b32 v38, {8 if p == 0 else 0}, v33")
        I("v_and_b32 v39, 8, v38")
        I("v_add_u32 v39, v39, v38")
        I("v_lshlrev_b32 v39, 7, v39")
        I("v_lshrrev_b32 v38, 1, v38")
        I("v_xor_b32 v38, v38, v32")
        I("v_lshl_add_u32 v39, v38, 4, v39")
        I(f"v_add_u32 v39, s{S_m0b}, v39")
        I(f"v_add_u32 v{V_XR+2*p}, {p*1024}, v39")
        I(f"v_xor_b32 v{V_XR+2*p+1}, 64, v{V_XR+2*p}")
    I("v_lshl_add_u32 v38, v32, 3, v34")
    I("v_lshlrev_b32 v38, 7, v38")
    I("v_lshl_add_u32 v38, v35, 3, v38")
    I("v_lshrrev_b32 v39, 1, v34")
    I("v_and_b32 v40, 1, v32")
    I("v_lshl_or_b32 v39, v40, 1, v39")
    if att:
        I(f"v_xor_b32 v41, s{S_w}, v39")
    for t in range(4):
        I(f"v_xor_b32 v40, {t}, v{41 if att else 39}")
        I(f"v_lshl_add_u32 v{V_WR+t}, v40, 5, v38")
        I(f"v_add_u32 v{V_WR+4+t}, 0x10000, v{V_WR+t}")
        if not att: I(f"v_add_u32 v{V_WR3+t}, 0x20000, v{V_WR+t}")
    I("v_lshl_add_u32 v38, v32, 2, v34")
    I("v_lshlrev_b32 v38, 7, v38")
    I("v_lshl_add_u32 v38, v35, 3, v38")
    I(f"v_add_u32 v38, s{S_m0b}, v38")
    for t in range(4):
        I(f"v_xor_b32 v40, {t}, v39")
        I(f"v_lshl_add_u32 v{V_BR+t}, v40, 5, v38")
        I(f"v_add_u32 v{V_BR+4+t}, 0x10000, v{V_BR+t}")
    I("v_lshrrev_b32 v38, 1, v36")
    I("v_lshrrev_b32 v40, 1, v37")
    I("v_xor_b32 v40, v40, v38")
    I("v_lshlrev_b32 v38, 10, v36")
    I("v_lshl_add_u32 v38, v40, 5, v38")
    I("v_and_b32 v40, 1, v37")
    I(f"v_lshl_add_u32 v{V_BD}, v40, 4, v38")
    for i in range(1, 4):
        I(f"v_add_u32 v{V_BD+i}, {i*7168}, v{V_BD}")
    I(f"s_mul_i32 s{S_B2}, s{S_w}, {14*32768}")
    I(f"s_lshl_b32 s{S_t0}, s{S_n2}, 7")
    I(f"s_add_u32 s{S_B2}, s{S_B2}, s{S_t0}")
    I(f"s_lshl_b32 s{S_BO}, s{S_w}, 17")
    I(f"s_add_u32 s{S_BO}, s{S_BO}, s{S_t0}")
    I(f"s_mul_i32 s{S_A2}, s{S_r2}, {72*4096}")
    I(f"s_mul_i32 s{S_t0}, s{S_w}, {18*4096}")
    I(f"s_add_u32 s{S_A2}, s{S_A2}, s{S_t0}")
    I(f"s_lshr_b32 s{S_t0}, s{S_w}, 1")
    I(f"s_lshl_b32 s{S_ST}, s{S_r}, 1")
    I(f"s_add_u32 s{S_ST}, s{S_ST}, s{S_t0}")
    I(f"s_mul_i32 s{S_ST}, s{S_ST}, 72")
    I(f"s_mul_i32 s{S_t0}, s{S_q}, 18")
    I(f"s_add_u32 s{S_ST}, s{S_ST}, s{S_t0}")
    I(f"s_and_b32 s{S_t0}, s{S_jj}, 1")
    I(f"s_lshl_b32 s{S_t0}, s{S_t0}, 1")
    I(f"s_add_u32 s{S_ST}, s{S_ST}, s{S_t0}")
    I(f"s_lshl_b32 s{S_ST}, s{S_ST}, 12")
    I(f"s_and_b32 s{S_t0}, s{S_w}, 1")
    I(f"s_lshl_b32 s{S_t0}, s{S_t0}, 11")
    I(f"s_add_u32 s{S_ST}, s{S_ST}, s{S_t0}")
    I(f"s_lshl_b32 s{S_t0}, s{S_r}, 2")
    I(f"s_add_u32 s{S_t0}, s{S_t0}, s{S_w}")
    I(f"s_lshl_b32 s{S_t0}, s{S_t0}, 7")
    I(f"s_add_u32 s{S_FLA}, s{S_FLA}, s{S_t0}")
    I(f"s_addc_u32 s{S_FLA+1}, s{S_FLA+1}, 0")

def stale_flag_load():
    I("v_lshlrev_b32 v38, 7, v34")
    I("v_lshl_add_u32 v38, v35, 2, v38")
    I(f"s_lshl_b32 s{S_t0}, s{S_r}, 9")
    I(f"buffer_load_dword v104, v38, {srd(S_FL)}, s{S_t0} offen sc1", tag="stale")

V_NT = 104
def nonce_propose(lbl):
    e.wait(vm="stale")
    I(f"s_cmp_eq_u32 s{S_w}, 0")
    I(f"s_cbranch_scc0 {lbl}")
    e.cond_begin()
    I(f"v_and_b32 v{V_NT+1}, 15, v0")
    I(f"v_add_u32 v{V_NT+1}, 1, v{V_NT+1}")
    I(f"v_lshrrev_b32 v{V_NT}, v{V_NT+1}, v{V_NT}")
    I(f"v_and_b32 v{V_NT}, 1, v{V_NT}")
    I(f"v_cmp_eq_u32 vcc, 0, v{V_NT}")
    I(f"s_and_b32 s{S_NONCE}, vcc_lo, 0xffff")
    I(f"s_lshl_b32 s{S_NONCE}, s{S_NONCE}, 1")
    I(f"s_or_b32 s{S_NONCE}, s{S_NONCE}, 0x80000000")
    I(f"v_mov_b32 v{V_NT}, s{S_NONCE}")
    I(f"v_mov_b32 v{V_NT+1}, 0")
    I(f"s_lshl_b32 s{S_t0}, s{S_r}, 4")
    I(f"v_mov_b32 v{V_NT+2}, s{S_t0}")
    I("s_mov_b64 exec, 1")
    I(f"buffer_atomic_cmpswap {vr(V_NT,2)}, v{V_NT+2}, {srd(S_DBG)}, 0 offen sc0 sc1")
    I("s_mov_b64 exec, -1")
    e.cond_end()
    e.label(lbl)

def nonce_publish(lbl, lds_addr):
    I(f"s_cmp_eq_u32 s{S_w}, 0")
    I(f"s_cbranch_scc0 {lbl}")
    e.cond_begin()
    I(f"v_readfirstlane_b32 s{S_t0}, v{V_NT}")
    I(f"s_cmp_eq_u32 s{S_t0}, 0")
    I(f"s_cselect_b32 s{S_NONCE}, s{S_NONCE}, s{S_t0}")
    I(f"v_mov_b32 v{V_NT}, s{S_NONCE}")
    I(f"v_mov_b32 v{V_NT+1}, {lds_addr}")
    I(f"ds_write_b32 v{V_NT+1}, v{V_NT}")
    I("s_waitcnt lgkmcnt(0)")
    e.cond_end()
    e.label(lbl)
def nonce_fetch(lds_addr):
    I(f"v_mov_b32 v{V_NT+1}, {lds_addr}")
    I(f"ds_read_b32 v{V_NT}, v{V_NT+1}", tag="nonce")
def nonce_get():
    e.wait(lg="nonce")
    I(f"v_readfirstlane_b32 s{S_NONCE}, v{V_NT}")
    I(f"s_or_b32 s{S_NONCE1}, s{S_NONCE}, 1")

def gw_load():
    I(f"s_lshl_b32 s{S_t0}, s{S_rot}, 2")
    I(f"v_add_u32 v38, s{S_t0}, v33")
    I("v_and_b32 v38, 15, v38")
    I("v_lshlrev_b32 v38, 6, v38")
    I("v_lshl_add_u32 v38, v32, 4, v38")
    I(f"buffer_load_dwordx4 {vr(V_GW)}, v38, {srd(S_GW)}, 0 offen", tag="gw")

uid = [0]
def poll_load():
    I(f"s_load_dwordx4 s[{S_POLL}:{S_POLL+3}], s[{S_FLA}:{S_FLA+1}], 0 glc")
def poll_check(w0, final):
    uid[0] += 1; u = uid[0]
    I(f"s_mov_b32 s{S_CNT}, 0")
    e.label(f"L_pw{u}")
    e.wait(lg="all")
    I(f"s_xor_b32 s{S_t0}, s{S_POLL+w0}, s{S_NONCE1}")
    I(f"s_xor_b32 s{S_t1}, s{S_POLL+w0+1}, s{S_NONCE1}")
    I(f"s_or_b32 s{S_t0}, s{S_t0}, s{S_t1}")
    I(f"s_cmp_le_u32 s{S_t0}, {0 if final else 1}")
    I(f"s_cbranch_scc1 L_pd{u}")
    poll_load()
    I(f"s_add_u32 s{S_CNT}, s{S_CNT}, 1")
    I(f"s_cmp_lt_u32 s{S_CNT}, {OPT['spin']}")
    I(f"s_cbranch_scc1 L_pw{u}")
    I("s_waitcnt lgkmcnt(0)")
    e.label(f"L_pd{u}")
def flag_store(sval, lbl, pre=None):
    I(f"s_cmp_eq_u32 s{S_w}, 0")
    I(f"s_cbranch_scc0 {lbl}")
    e.cond_begin()
    snap = e.snapshot()
    if pre: pre()
    I(f"s_lshl_b32 s{S_t0}, s{S_r}, 2")
    I(f"s_add_u32 s{S_t0}, s{S_t0}, s{S_q}")
    I(f"s_lshl_b32 s{S_t0}, s{S_t0}, 5")
    I(f"s_add_u32 s{S_t0}, s{S_t0}, s{S_jj}")
    I(f"s_lshl_b32 s{S_t0}, s{S_t0}, 2")
    I(f"v_mov_b32 v2, s{S_t0}")
    I(f"v_mov_b32 v3, s{sval}")
    I("s_mov_b64 exec, 1")
    I(f"buffer_store_dword v3, v2, {srd(S_FL)}, 0 offen sc1")
    I("s_mov_b64 exec, -1")
    e.restore(snap)
    e.cond_end()
    e.label(lbl)

def b2_group(n):
    slot = n % 6
    if n < 14:
        return dma_items(V_BD, S_W2, lambda: I(f"s_add_u32 s{S_SOFF}, s{S_B2}, {n*32768}"), slot, f"b2_{n}")
    return dma_items(V_BD, S_WO, lambda: I(f"s_add_u32 s{S_SOFF}, s{S_BO}, {(n-14)*32768}"), slot, f"b2_{n}")

MF = "v_mfma_f32_16x16x32_bf16"
MF16 = "v_mfma_f32_16x16x16_bf16"
def acc(t, p): return V_ACC + (t * 2 + p) * 4
def xfr(p, s): return ar((p * 16 + s) * 4)

class Stream:
    def __init__(self, steps, plan, xslots, bar_hooks):
        self.steps = steps; self.plan = plan; self.bar_hooks = bar_hooks; self.xslots = xslots
        self.side = []
        self.dma = []
        self.after = {}
        self.nh = 0
        self.per = 1; self.acc = 0
    def add(self, ready, deadline, fns):
        for f in fns: self.side.append([ready, deadline, f])
    def pop_dma(self):
        while self.dma:
            kind, f = self.dma.pop(0)
            f()
            if kind == "dma": return
    def issue_reads(self, k):
        st = self.steps[k]
        if st["first"]:
            i = st["sub"]
            pre, post = self.bar_hooks.get(i, (None, None))
            while self.dma: self.pop_dma()
            e.wait(vm=st["need"])
            if i < 4: x_reads(i, self.xslots[i])
            if pre: pre()
            I("s_barrier")
            if post: post()
            self.dma = list(self.plan(i))
            n = sum(1 for kind, _ in self.dma if kind == "dma")
            self.per = n / 13.0; self.acc = 0.0
        slot = st["slot"]
        a = (V_WR, V_WR + 4, V_WR3)[slot >> 2] + st["T"]
        off = (slot & 3) * 16384 + st["ks"] * 4096
        b = V_RING + (k % NRING) * 4
        I(f"ds_read_b64_tr_b16 {vr(b,2)}, v{a} offset:{off}", tag=f"w{k}")
        I(f"ds_read_b64_tr_b16 {vr(b+2,2)}, v{a} offset:{off+512}", tag=f"w{k}")
        if st.get("halo") is not None:
            hb = A_HX + (self.nh % 3) * 4; self.nh += 1
            st["hreg"] = hb
            s_ = st["halo"]
            I(f"ds_read_b128 {ar(hb)}, v{V_HALO2 if s_ & 1 else V_HALO} offset:{(s_>>1)*2048}", tag=f"w{k}")
    def pump(self, k, n):
        c = 0
        while self.side and c < n and self.side[0][0] <= k:
            self.side.pop(0)[2](); c += 1
    def run(self, rate):
        n = len(self.steps)
        for k in range(min(D, n)): self.issue_reads(k)
        for k in range(n):
            st = self.steps[k]
            while any(s[1] <= k for s in self.side):
                self.side.pop(0)[2]()
            e.wait(lg=f"w{k}")
            W = vr(V_RING + (k % NRING) * 4)
            mfs = st["mf"](W, st)
            I(mfs[0])
            if k + D < n: self.issue_reads(k + D)
            r = rate(k)
            for m in mfs[1:]:
                I(m)
                self.pump(k, r)
            self.acc += self.per
            while self.dma and self.acc >= 1.0:
                self.pop_dma(); self.acc -= 1.0
            if k in self.after: self.after[k]()
        while self.dma: self.pop_dma()
    def drain(self):
        while self.side: self.side.pop(0)[2]()
def xfree(g4):
    return [("setup", lambda: e.wait(lg=f"xr{g4}"))]

I(f"s_cmp_ge_u32 s{S_jj}, 2")
I("s_cbranch_scc1 L_att")
snap0 = e.snapshot()
hist0 = list(e.hist); pos0 = e.pos

def ffn():
    e.comment("---- FFN tile ----")
    XS = [X0, (0, 1), (8, 9), X0]
    GS = [2, 5, 6, 7, 0, 1, 2, 8, 9, 5, 3, 4, 6, 7]
    I(f"s_mul_i32 s{S_COL}, s{S_q}, 896")
    I(f"s_lshl_b32 s{S_t0}, s{S_jj}, 7")
    I(f"s_add_u32 s{S_COL}, s{S_COL}, s{S_t0}")
    def grp(i):
        if i < 12:
            c, u = divmod(i, 4)
            def so():
                I(f"s_add_u32 s{S_SOFF}, s{S_WK+u}, s{S_COL}")
                if c: I(f"s_add_u32 s{S_SOFF}, s{S_SOFF}, {c*256}")
            return dma_items(V_WD, S_W, so, GS[i], f"g{i}")
        if i < 14:
            v = i - 12
            def so():
                if v == 0:
                    I("v_lshrrev_b32 v2, 2, v0")
                    I("v_and_b32 v2, 1, v2")
                    I(f"v_mul_u32_u24 v3, {256*3584-64}, v2")
                    I(f"v_add_u32 v{V_WD}, v{V_WD}, v3")
                    I(f"v_add_u32 v{V_WD+2}, v{V_WD+2}, v3")
                    I(f"v_sub_u32 v3, {256*3584-64}, v3")
                    I(f"v_add_u32 v{V_WD+1}, v{V_WD+1}, v3")
                    I(f"v_add_u32 v{V_WD+3}, v{V_WD+3}, v3")
                    I(f"v_mul_u32_u24 v2, {2*256*3584}, v2")
                    I(f"v_sub_u32 v2, {256*3584}, v2")
                    I(f"s_cmp_ge_u32 s{S_WK}, {256*3584}")
                    I(f"s_cselect_b32 s{S_t0}, 1, 0")
                else:
                    I(f"s_cmp_ge_u32 s{S_WK}, {256*3584}")
                    I(f"s_cselect_b32 s{S_t1}, 1, 0")
                    I(f"s_cmp_ge_u32 s{S_WK+1}, {256*3584}")
                    I(f"s_cselect_b32 s{S_t0}, 1, 0")
                    I(f"s_sub_u32 s{S_t0}, s{S_t0}, s{S_t1}")
                I(f"s_sub_u32 s{S_t1}, 0, s{S_t0}")
                I(f"v_mad_i32_i24 v{V_WD}, v2, s{S_t0}, v{V_WD}")
                I(f"v_mad_i32_i24 v{V_WD+2}, v2, s{S_t0}, v{V_WD+2}")
                I(f"v_mad_i32_i24 v{V_WD+1}, v2, s{S_t1}, v{V_WD+1}")
                I(f"v_mad_i32_i24 v{V_WD+3}, v2, s{S_t1}, v{V_WD+3}")
                I(f"s_min_u32 s{S_SOFF}, s{S_WK+v}, s{S_WK+v+2}")
                I(f"s_mul_i32 s{S_t0}, s{S_q}, 896")
                I(f"s_add_u32 s{S_SOFF}, s{S_SOFF}, s{S_t0}")
                I(f"s_lshl_b32 s{S_t0}, s{S_jj}, 6")
                I(f"s_add_u32 s{S_SOFF}, s{S_SOFF}, s{S_t0}")
                I(f"s_add_u32 s{S_SOFF}, s{S_SOFF}, 768")
            return dma_items(V_WD, S_W, so, GS[i], f"g{i}")
    def plan(i):
        if i == 0: return xfree(0) + x_items(3, XS[3])
        if i == 1: return xfree(1) + grp(4) + grp(5)
        if i == 2: return grp(6) + xfree(2) + grp(7) + grp(8)
        if i == 3: return grp(9) + xfree(3) + grp(10) + grp(11)
        if i == 4: return grp(12)
        if i == 5: return grp(13)
        return {6: 0, 7: 1, 8: 2, 11: 5, 12: 3, 13: 4}.get(i) is not None and b2_group({6: 0, 7: 1, 8: 2, 11: 5, 12: 3, 13: 4}[i]) or []
    run(grp(0))
    stale_flag_load()
    run(x_items(1, XS[1])); run(grp(1)); run(x_items(2, XS[2])); run(grp(2)); run(grp(3))
    gw_load()
    rest_setup(False)
    stamp(0)
    nonce_propose("L_np_f")
    steps = []
    for i in range(14):
        c, u = divmod(i, 4)
        for h in range(2):
            for ks in range(4):
                for tt in range(2):
                    T = 2 * h + tt
                    if i < 12:
                        s = 4 * u + ks; ta = T; zero = (u == 0 and ks == 0)
                    else:
                        s = 4 * (u + 2 * h) + ks; ta = tt; zero = (u == 0 and h == 0 and ks == 0)
                    def mf(W, st, s=s, ta=ta, zero=zero):
                        return [f"{MF} {vr(acc(ta,p))}, {W}, {xfr(p,s)}, {'0' if zero else vr(acc(ta,p))}" for p in range(2)]
                    need = [f"g{i}"] + ([f"x{u}"] if i < 4 else [])
                    steps.append(dict(sub=i, slot=GS[i], T=T, ks=ks, mf=mf, first=(h == 0 and ks == 0 and tt == 0), need=need))
    def l1_pre():
        e.wait(vm="st1_1")
    def l1_post():
        flag_store(S_NONCE, "L_fl1")
    hooks = {11: (l1_pre, l1_post), 9: (None, lambda: nonce_publish("L_npub_f", GBUF_LDS + 2048)), 10: (None, lambda: nonce_fetch(GBUF_LDS + 2048)), 12: (nonce_get, None), 1: (None, lambda: stamp(1)), 4: (None, lambda: stamp(2))}
    S = Stream(steps, plan, XS, hooks)
    def epi(t0, n, tag, setno):
        fns = []
        for p in range(2):
            pk = V_PACK + setno * 8 + p * 4
            for tt in range(2):
                for hh in range(2):
                    a = acc(t0 + tt, p) + 2 * hh
                    fns.append(lambda pk=pk, tt=tt, hh=hh, a=a: I(f"v_cvt_pk_bf16_f32 v{pk+2*tt+hh}, v{a}, v{a+1}"))
        late = []
        for p in range(2):
            pk = V_PACK + setno * 8 + p * 4
            for k in range(4):
                late.append(lambda pk=pk, k=k: I(f"v_pk_max_i16 v{pk+k}, v{pk+k}, 0"))
            def st(pk=pk, p=p):
                I(f"s_add_u32 s{S_t0}, s{S_ST}, {n*4096}") if n >= 0 else None
                I(f"buffer_store_dwordx4 {vr(pk)}, v{V_L16}, {srd(S_WS)}, s{S_t0} offen offset:{p*1024} sc1", tag=tag)
            late.append(st)
        return fns, late
    for c in range(3):
        for h in range(2):
            k = (4 * c + 3) * 16 + 8 * h + 7
            def aft(k=k, c=c, h=h):
                a, b = epi(2 * h, 4 * c + h, f"st{c}_{h}", h)
                S.add(k + 2, k + 9, a)
                S.add(k + 2, k + 17, b)
            S.after[k] = aft
    S.run(lambda k: OPT["side"])
    S.drain()
    stamp(3)
    poll_load()
    I(f"s_lshl_b32 s{S_t1}, s{S_jj}, 12")
    I(f"s_sub_u32 s{S_ST}, s{S_ST}, s{S_t1}")
    a, b = epi(0, 12, "stL", 0)
    for f in a + b: f()

ffn()
I("s_branch L_join")
snap_f = e.snapshot()

e.label("L_att")
e.restore(snap0); e.hist = []
def att():
    e.comment("---- attention tile ----")
    I(f"s_lshl_b32 s{S_COL}, s{S_q}, 1")
    I(f"s_add_u32 s{S_COL}, s{S_COL}, s{S_jj}")
    I(f"s_sub_u32 s{S_COL}, s{S_COL}, 2")
    I(f"s_lshl_b32 s{S_COL}, s{S_COL}, 7")
    CH = [1024, 0, 2048]
    XS = [X0, (7, 0), (2, 9), X0]
    GS = [1, 5, 6, 7, 0, 1, 2, 5, 3, 4, 6, 7]
    def grp(i):
        if i < 12:
            c, u = divmod(i, 4)
            def so():
                I(f"s_add_u32 s{S_SOFF}, s{S_WK+u}, s{S_COL}")
                if CH[c]: I(f"s_add_u32 s{S_SOFF}, s{S_SOFF}, {CH[c]}")
            return dma_items(V_WD, S_W, so, GS[i], f"g{i}")
    def plan(i):
        if i == 0: return xfree(0) + x_items(3, XS[3])
        if i == 1: return xfree(1) + grp(3) + grp(4)
        if i == 2: return grp(5) + xfree(2) + grp(6)
        if i == 3: return grp(7) + xfree(3) + grp(8) + grp(9)
        if i == 4: return grp(10)
        if i == 5: return grp(11)
        return b2_group({6: 0, 7: 1, 8: 2, 9: 5, 10: 3, 11: 4}[i])
    run(grp(0))
    I(f"s_lshl_b32 s{S_t0}, s{S_r}, 17")
    I(f"s_sub_u32 s{S_t0}, s{S_t0}, 16384")
    I(f"v_add_u32 v38, s{S_t0}, v{V_XOFF}")
    I(f"s_sub_u32 s{S_t0}, s{S_t0}, {13*1024}")
    I(f"v_add_u32 v39, s{S_t0}, v{V_XOFF+1}")
    I("v_max_i32 v38, 0, v38")
    I("v_max_i32 v39, 0, v39")
    I(f"s_add_u32 s{S_t0}, s{S_rot}, s{S_w}")
    I(f"s_and_b32 s{S_t0}, s{S_t0}, 3")
    I(f"s_lshl_b32 s{S_t0}, s{S_t0}, 8")
    for i in range(4):
        kh, rh = divmod(i, 2)
        I(f"s_add_u32 m0, s{S_m0b}, {HALO_LDS + i*1024 - kh*128}")
        I(f"buffer_load_dwordx4 v{38+rh}, {srd(S_X)}, s{S_t0} offen offset:{kh*128} lds", tag="hx")
    stale_flag_load()
    run(x_items(1, XS[1])); run(grp(1)); run(x_items(2, XS[2])); run(grp(2))
    gw_load()
    rest_setup(True)
    I("v_lshrrev_b32 v38, 1, v33")
    I("v_xor_b32 v38, v38, v32")
    I("v_lshlrev_b32 v38, 4, v38")
    I("v_lshl_add_u32 v38, v33, 7, v38")
    I(f"v_add_u32 v{V_HALO}, {HALO_LDS}, v38")
    I(f"v_xor_b32 v{V_HALO2}, 64, v{V_HALO}")
    I(f"s_mul_i32 s{S_t0}, s{S_w}, 5120")
    I(f"s_add_u32 s{S_t0}, s{S_t0}, {EXCH_LDS}")
    I(f"v_add_u32 v{V_EXR}, s{S_t0}, v{V_L16}")
    I(f"v_add_u32 v{V_EXW}, 4096, v{V_EXR}")
    I(f"s_cmp_eq_u32 s{S_w}, 3")
    I(f"s_cselect_b64 s[{S_EX3}:{S_EX3+1}], 0, -1")
    I(f"s_mov_b32 s{S_CEXP}, {f2u(0.25*1.4426950408889634)}")
    I(f"s_or_b32 s{S_t0}, s{S_r}, s{S_w}")
    I(f"s_cmp_eq_u32 s{S_t0}, 0")
    I(f"s_cselect_b32 s{S_THR}, -16, -9")
    I(f"v_mov_b32 v40, {NEG}")
    for p in range(2):
        x8 = 8 if p == 0 else 0
        I(f"v_xor_b32 v38, {x8}, v33")
        I("v_lshlrev_b32 v39, 2, v32")
        I(f"v_xor_b32 v39, {x8}, v39")
        I("v_sub_u32 v38, v38, v39")
        for r in range(4):
            I(f"v_subrev_u32 v39, {r}, v38")
            I("v_cmp_lt_u32 vcc, 7, v39")
            I(f"v_cndmask_b32 v{V_BIAS+p*8+r}, 0, v40, vcc")
            I(f"v_cmp_lt_i32 vcc, s{S_THR}, v39")
            I(f"v_cndmask_b32 v{V_BIAS+p*8+4+r}, 0, v40, vcc")
            I("v_ashrrev_i32 v41, 31, v39")
            if r % 2 == 0:
                I("v_and_b32 v42, 0xffff, v41")
            else:
                I("v_and_b32 v41, 0xffff0000, v41")
                I("v_or_b32 v42, v42, v41")
                I(f"v_not_b32 v{V_MASK+2*p+r//2}, v42")
    I("v_mov_b32 v40, 0x3f803f80")
    for k in range(4):
        I(f"v_accvgpr_write_b32 a{A_ONES+k}, v40")
    stamp(0)
    nonce_propose("L_np_a")
    steps = []
    for i in range(12):
        c, u = divmod(i, 4)
        for h in range(2):
            for ks in range(4):
                for tt in range(2):
                    T = 2 * h + tt
                    s = 4 * u + ks; zero = (u == 0 and ks == 0)
                    halo = s if (T == 0 and c != 1) else None
                    def mf(W, st, s=s, T=T, zero=zero, c=c):
                        out = []
                        for p in range(2):
                            a, b = (W, xfr(p, s)) if c != 2 else (xfr(p, s), W)
                            out.append(f"{MF} {vr(acc(T,p))}, {a}, {b}, {'0' if zero else vr(acc(T,p))}")
                        if st.get("halo") is not None:
                            a, b = (W, ar(st["hreg"])) if c != 2 else (ar(st["hreg"]), W)
                            out.append(f"{MF} {vr(V_HACC)}, {a}, {b}, {'0' if zero else vr(V_HACC)}")
                        return out
                    need = [f"g{i}"] + ([f"x{u}"] if i < 4 else []) + (["hx"] if i == 0 else [])
                    steps.append(dict(sub=i, slot=GS[i], T=T, ks=ks, mf=mf, halo=halo, first=(h == 0 and ks == 0 and tt == 0), need=need))
    def kp_reads():
        for t in range(4):
            I(f"v_xor_b32 v{2+t%2}, {t*1024}, v{V_EXR}")
            I(f"ds_read_b128 {ar(A_KP+4*t)}, v{2+t%2}", tag="kp")
    hooks = {6: (lambda: e.wait(lg="kw"), kp_reads), 8: (lambda: e.wait(lg="kp"), None),
             9: (lambda: nonce_publish("L_npub_a", EXCH_LDS), lambda: nonce_fetch(EXCH_LDS)), 10: (nonce_get, None), 1: (None, lambda: stamp(1)), 4: (None, lambda: stamp(2))}
    S = Stream(steps, plan, XS, hooks)
    def cvt2(d, a):
        return [lambda: I(f"v_cvt_pk_bf16_f32 v{d}, v{a}, v{a+1}"), lambda: I(f"v_cvt_pk_bf16_f32 v{d+1}, v{a+2}, v{a+3}")]
    def exw(t, txt, tag):
        def f():
            I(f"v_xor_b32 v2, {t*1024}, v{V_EXW}")
            I(f"s_mov_b64 exec, s[{S_EX3}:{S_EX3+1}]")
            I(txt, tag=tag)
            I("s_mov_b64 exec, -1")
        return f
    def halo_w(tag):
        def f():
            I(f"v_cvt_pk_bf16_f32 v{V_HACC}, v{V_HACC}, v{V_HACC+1}")
            I(f"v_cvt_pk_bf16_f32 v{V_HACC+1}, v{V_HACC+2}, v{V_HACC+3}")
            I(f"v_subrev_u32 v3, s{S_m0b}, v{V_EXR}")
            I(f"ds_write2_b64 v3, {vr(V_HACC,2)}, {vr(V_HACC,2)} offset0:0 offset1:1", tag=tag)
        return f
    def VV(t): return V_S + 8 * t
    def epi(c, h):
        fns = []
        for t in (2 * h, 2 * h + 1):
            for p in range(2):
                if c == 0: d = V_K + 4 * t + 2 * p
                elif c == 1: d = V_Q + 4 * t + 2 * p
                else: d = VV(t) + 6 * p
                fns += cvt2(d, acc(t, p))
        late = []
        for t in (2 * h, 2 * h + 1):
            if c == 0: late.append(exw(t, f"ds_write_b128 v2, {vr(V_K+4*t)}", "kw"))
            if c == 2: late.append(exw(t, f"ds_write2_b64 v2, {vr(VV(t),2)}, {vr(VV(t)+6,2)} offset0:0 offset1:1", "vw"))
        if h == 0 and c != 1: late.append(halo_w("kw" if c == 0 else "vw"))
        return fns, late
    def Preg(t, p): return (V_K if p == 0 else V_Q) + 4 * t
    def softmax(b):
        F = []
        A = lambda s: F.append(lambda: I(s))
        units = [(2 * b + (i >> 1), i & 1) for i in range(4)]
        Sc = lambda i: V_S + 8 * i
        Sp = lambda i: V_S + 8 * i + 4
        if b == 0: F.append(lambda: e.wait(lg="kp"))
        for i, (t, p) in enumerate(units):
            A(f"{MF16} {vr(Sc(i))}, {vr(V_K+4*t+2*p,2)}, {vr(V_Q+4*t+2*p,2)}, {vr(V_BIAS+8*p)}")
            A(f"{MF16} {vr(Sp(i))}, {ar(A_KP+4*t+2*p,2)}, {vr(V_Q+4*t+2*p,2)}, {vr(V_BIAS+8*p+4)}")
        for i in range(4):
            for r in range(4): A(f"v_max_f32 v{Sc(i)+r}, v{Sc(i)+r}, v{Sp(i)+r}")
        for i in range(4):
            A(f"v_cvt_pk_bf16_f32 v{Sp(i)}, v{Sc(i)}, v{Sc(i)+1}")
            A(f"v_cvt_pk_bf16_f32 v{Sp(i)+1}, v{Sc(i)+2}, v{Sc(i)+3}")
            A(f"v_lshlrev_b32 v{Sc(i)}, 16, v{Sp(i)}")
            A(f"v_and_b32 v{Sc(i)+1}, 0xffff0000, v{Sp(i)}")
            A(f"v_lshlrev_b32 v{Sc(i)+2}, 16, v{Sp(i)+1}")
            A(f"v_and_b32 v{Sc(i)+3}, 0xffff0000, v{Sp(i)+1}")
            A(f"v_max3_f32 v{Sp(i)+2}, v{Sc(i)}, v{Sc(i)+1}, v{Sc(i)+2}")
            A(f"v_max_f32 v{Sp(i)+2}, v{Sp(i)+2}, v{Sc(i)+3}")
        m = [Sp(i) + 2 for i in range(4)]
        A(f"v_permlane32_swap_b32 v{m[0]}, v{m[1]}")
        A(f"v_permlane32_swap_b32 v{m[2]}, v{m[3]}")
        A(f"v_max_f32 v{m[0]}, v{m[0]}, v{m[1]}")
        A(f"v_max_f32 v{m[2]}, v{m[2]}, v{m[3]}")
        A(f"v_permlane16_swap_b32 v{m[0]}, v{m[2]}")
        A(f"v_max_f32 v{m[0]}, v{m[0]}, v{m[2]}")
        A(f"v_mul_f32 v{m[2]}, s{S_CEXP}, v{m[0]}")
        A(f"v_mul_f32 v{m[0]}, s{S_CEXP}, v{m[0]}")
        A(f"v_permlane16_swap_b32 v{m[0]}, v{m[2]}")
        A(f"v_mov_b32 v{m[1]}, v{m[0]}")
        A(f"v_mov_b32 v{m[3]}, v{m[2]}")
        A(f"v_permlane32_swap_b32 v{m[0]}, v{m[1]}")
        A(f"v_permlane32_swap_b32 v{m[2]}, v{m[3]}")
        for i in range(4):
            for r in range(4): A(f"v_fma_f32 v{Sc(i)+r}, v{Sc(i)+r}, s{S_CEXP}, -v{m[i]}")
            for r in range(4): A(f"v_exp_f32 v{Sc(i)+r}, v{Sc(i)+r}")
        for i, (t, p) in enumerate(units):
            P = Preg(t, p)
            cur, prv = (P, P + 2) if p == 0 else (P + 2, P)
            A(f"v_cvt_pk_bf16_f32 v{prv}, v{Sc(i)}, v{Sc(i)+1}")
            A(f"v_cvt_pk_bf16_f32 v{prv+1}, v{Sc(i)+2}, v{Sc(i)+3}")
            A(f"v_and_b32 v{cur}, v{prv}, v{V_MASK+2*p}")
            A(f"v_and_b32 v{cur+1}, v{prv+1}, v{V_MASK+2*p+1}")
            A(f"v_xor_b32 v{prv}, v{prv}, v{cur}")
            A(f"v_xor_b32 v{prv+1}, v{prv+1}, v{cur+1}")
        for i, (t, p) in enumerate(units):
            A(f"{MF} {vr(Sp(i))}, {ar(A_ONES)}, {vr(Preg(t,p))}, 0")
        for i, (t, p) in enumerate(units):
            A(f"v_rcp_f32 v{V_RINV+2*t+p}, v{Sp(i)}")
        return F
    for c in range(3):
        for h in range(2):
            k = (4 * c + 3) * 16 + 8 * h + 7
            if c == 2 and h == 1: continue
            def aft(k=k, c=c, h=h):
                a, b = epi(c, h)
                S.add(k + 2, k + 9, a)
                S.add(k + 2, k + 9 if (h == 0) else k + 17, b)
                if c == 1 and h == 1:
                    S.add(k + 2, 128 + 56, softmax(0) + softmax(1))
            S.after[k] = aft
    S.run(lambda k: OPT["side"] if k < 128 else 5)
    S.drain()
    stamp(3)
    poll_load()
    a, b = epi(2, 1)
    for f in a + b: f()
    e.wait(lg="vw")
    I("s_barrier")
    for t in range(4):
        I(f"v_xor_b32 v{2+t%2}, {t*1024}, v{V_EXR}")
        I(f"ds_read_b128 {vr(VV(t)+2)}, v{2+t%2}", tag=f"vp{t}")
    for t in range(4):
        e.wait(lg=f"vp{t}")
        for p in range(2):
            I(f"{MF} {vr(acc(t,p))}, {vr(VV(t)+4*p)}, {vr(Preg(t,p))}, 0")
    I(f"s_lshr_b32 s{S_t0}, s{S_w}, 1")
    I(f"s_lshl_b32 s{S_t0}, s{S_t0}, 12")
    I(f"s_add_u32 s{S_ST}, s{S_ST}, {14*4096}")
    I(f"s_xor_b32 s{S_t1}, s{S_t0}, 4096")
    I(f"s_add_u32 s{S_t0}, s{S_t0}, s{S_ST}")
    I(f"s_add_u32 s{S_t1}, s{S_t1}, s{S_ST}")
    for t in range(4):
        for p in range(2):
            for r in range(4):
                I(f"v_mul_f32 v{acc(t,p)+r}, v{V_RINV+2*t+p}, v{acc(t,p)+r}")
            pk = V_RING + (t >> 1) * 8 + p * 4 + (t & 1) * 2
            for f in cvt2(pk, acc(t, p)): f()
    I(f"s_bitcmp1_b32 s{S_w}, 0")
    I("s_cbranch_scc0 L_noswap")
    e.cond_begin()
    for k in range(4):
        I(f"v_swap_b32 v{V_RING+4*k}, v{V_RING+4*k+2}")
        I(f"v_swap_b32 v{V_RING+4*k+1}, v{V_RING+4*k+3}")
    e.cond_end()
    e.label("L_noswap")
    for pair in range(2):
        for p in range(2):
            I(f"buffer_store_dwordx4 {vr(V_RING+pair*8+p*4)}, v{V_L16}, {srd(S_WS)}, s{S_t0 if pair == 0 else S_t1} offen offset:{p*1024} sc1", tag="stL")
att()
snap_a = e.snapshot()

e.label("L_join")
e.join([snap_f, snap_a])
e.hist = []
I("s_nop 1")
stamp(4)
poll_check(0, False)
for mu in range(4):
    I(f"s_lshl_b32 s{S_t0}, s{S_w}, 10")
    I(f"s_xor_b32 s{S_t0}, s{S_t0}, {mu*1024}")
    I(f"v_add_u32 v{V_A2OFF+mu}, s{S_t0}, v{V_L16}")
def a2_loads(n):
    out = [lambda: I(f"s_add_u32 s{S_COL}, s{S_A2}, {n*4096}")]
    for mu in range(4):
        out.append(lambda mu=mu: I(f"buffer_load_dwordx4 {ar(A_A2+(n%6)*16+mu*4)}, v{V_A2OFF+mu}, {srd(S_WS)}, s{S_COL} offen sc1", tag=f"a2_{n}"))
    return out
for n in range(6):
    for f in a2_loads(n): f()
e.wait(vm="gw")
def gwb(s, k):
    I(f"v_mov_b32_dpp v{V_GW+4+4*(s&1)+k}, v{V_GW+k} row_newbcast:{s} row_mask:0xf bank_mask:0xf")
for k in range(4): gwb(0, k)
for s in range(16):
    for p in range(2):
        I(f"{MF} {vr(V_ACC+4*p)}, {vr(V_GW+4+4*(s&1))}, {xfr(p,s)}, {'0' if s == 0 else vr(V_ACC+4*p)}")
        if s < 15 and p == 0:
            for k in range(4): gwb(s + 1, k)
Z = V_ACC + 8
I(f"v_cvt_pk_bf16_f32 v{Z}, v{V_ACC}, v{V_ACC+4}")
I(f"v_lshlrev_b32 v{Z+2}, 16, v{Z}")
I(f"v_and_b32 v{Z+4}, 0xffff0000, v{Z}")
for p in range(2):
    I(f"v_mul_f32 v{Z+2+2*p}, {f2u(-1.4426950408889634)}, v{Z+2+2*p}")
for p in range(2):
    I(f"v_exp_f32 v{Z+2+2*p}, v{Z+2+2*p}")
for p in range(2):
    I(f"v_add_f32 v{Z+2+2*p}, 1.0, v{Z+2+2*p}")
for p in range(2):
    I(f"v_rcp_f32 v{Z+2+2*p}, v{Z+2+2*p}")
I(f"v_cvt_pk_bf16_f32 v{Z}, v{Z+2}, v{Z+4}")
I(f"v_lshlrev_b32 v{Z+2}, 16, v{Z}")
I(f"v_and_b32 v{Z+4}, 0xffff0000, v{Z}")
for p in range(2):
    I(f"v_sub_f32 v{Z+3+2*p}, 1.0, v{Z+2+2*p}")
I(f"v_cvt_pk_bf16_f32 v{Z}, v{Z+3}, v{Z+5}")
I(f"v_lshlrev_b32 v{Z+3}, 16, v{Z}")
I(f"v_and_b32 v{Z+5}, 0xffff0000, v{Z}")
I(f"s_lshl_b32 s{S_t0}, s{S_w}, 8")
I(f"s_add_u32 s{S_t0}, s{S_t0}, {GBUF_LDS}")
I(f"v_lshl_add_u32 v2, v0, 3, s{S_t0}")
I("s_mov_b64 exec, 0xffff")
I(f"ds_write_b64 v2, {vr(Z+2,2)}", tag="gwr")
I(f"ds_write_b64 v2, {vr(Z+4,2)} offset:128", tag="gwr")
I("s_mov_b64 exec, -1")
e.wait(vm="stL", lg="gwr")
I("s_barrier")
flag_store(S_NONCE1, "L_fl2")
stamp(5)
I("v_and_b32 v2, 15, v0")
I(f"s_lshl_b32 s{S_t0}, s{S_hb}, 2")
I(f"s_add_u32 s{S_t0}, s{S_t0}, s{S_w}")
I(f"s_lshl_b32 s{S_t0}, s{S_t0}, 7")
I(f"s_add_u32 s{S_t0}, s{S_t0}, {GBUF_LDS}")
I(f"v_lshl_add_u32 v2, v2, 3, s{S_t0}")
for mu in range(4):
    I(f"v_xor_b32 v3, {mu*128}, v2")
    I(f"ds_read_b64 {vr(V_G+2*mu,2)}, v3", tag="g")

def b2_reads(n):
    slot = n % 6
    out = []
    for t in range(4):
        a = V_BR + (4 if slot >= 4 else 0) + t
        off = (slot & 3) * 16384
        b = V_RING + (n & 1) * 16 + t * 4
        out.append(lambda a=a, off=off, b=b, t=t: I(f"ds_read_b64_tr_b16 {vr(b,2)}, v{a} offset:{off}", tag=f"f{n}_{t}"))
        out.append(lambda a=a, off=off, b=b, t=t: I(f"ds_read_b64_tr_b16 {vr(b+2,2)}, v{a} offset:{off+2048}", tag=f"f{n}_{t}"))
    return out
def acc2(n, mu, t): return (V_ACCB if n < 14 else V_ACCA) + (mu * 4 + t) * 4
e.wait(vm="b2_0")
for f in b2_reads(0): f()
poll_load()
bscale = []
for mu in range(4):
    for k in range(16):
        r = V_ACCB + mu * 16 + k
        bscale.append(lambda r=r, mu=mu: I(f"v_mul_f32 v{r}, v{V_G+2*mu+1}, v{r}"))
for n in range(18):
    nxt = []
    if n + 1 < 18:
        e.wait(vm=f"b2_{n+1}")
        nxt = b2_reads(n + 1)
    e.wait(vm=f"a2_{n}")
    zero = n in (0, 14)
    for t in range(4):
        e.wait(lg=f"f{n}_{t}")
        for mu in range(4):
            d = vr(acc2(n, mu, t))
            I(f"{MF} {d}, {vr(V_RING+(n&1)*16+t*4)}, {ar(A_A2+(n%6)*16+mu*4)}, {'0' if zero else d}")
            if nxt and mu % 2 == 0: nxt.pop(0)()
            if n >= 15 and bscale:
                if n == 15 and t == 0 and mu == 0: e.wait(lg="g")
                bscale.pop(0)()
                if bscale: bscale.pop(0)()
    if n + 6 < 18:
        run(b2_group(n + 6))
        if n == 2: poll_check(0, True)
        if n == 8: poll_check(2, True)
        for f in a2_loads(n + 6): f()
        if n == 6: poll_load()
    if n == 5: stamp(6)
while bscale: bscale.pop(0)()
stamp(7)
REG = [None, 98304, 114688, EXCH_LDS]
for mu in (1, 2, 3, 0):
    if mu:
        I(f"s_xor_b32 s{S_t0}, s{S_m0b}, {mu*4096}")
        I(f"s_add_u32 s{S_t0}, s{S_t0}, {REG[mu]}")
        I(f"v_add_u32 v2, s{S_t0}, v{V_L16}")
    for t in range(4):
        for k in range(2):
            rb = V_ACCB + (mu * 4 + t) * 4 + 2 * k; ra = V_ACCA + (mu * 4 + t) * 4 + 2 * k
            I(f"v_pk_fma_f32 {vr(rb,2)}, {vr(ra,2)}, {vr(V_G+2*mu,2)}, {vr(rb,2)} op_sel_hi:[1,0,1]")
        if mu:
            I(f"ds_write_b128 v2, {vr(V_ACCB+(mu*4+t)*4)} offset:{t*1024}", tag="rw")
I(f"s_and_b32 s{S_t0}, s{S_w}, 1")
I(f"s_xor_b32 s{S_t1}, s{S_t0}, 1")
I(f"s_lshl_b32 s{S_t1}, s{S_t1}, 3")
I("v_and_b32 v4, 15, v0")
I(f"v_xor_b32 v4, s{S_t1}, v4")
I(f"v_lshl_add_u32 v4, v4, 1, s{S_t0}")
I("v_lshlrev_b32 v4, 10, v4")
I("v_lshrrev_b32 v5, 4, v0")
I("v_lshl_add_u32 v4, v5, 3, v4")
I(f"s_lshl_b32 s{S_t0}, s{S_r2}, 16")
I(f"s_lshr_b32 s{S_t1}, s{S_w}, 1")
I(f"s_lshl_b32 s{S_t1}, s{S_t1}, 15")
I(f"s_add_u32 s{S_t0}, s{S_t0}, s{S_t1}")
I(f"s_lshl_b32 s{S_t1}, s{S_n2}, 7")
I(f"s_add_u32 s{S_SOFF}, s{S_t0}, s{S_t1}")
I(f"v_add_u32 v2, s{S_m0b}, v{V_L16}")
I(f"v_add_u32 v3, {EXCH_LDS}, v2")
I(f"v_add_u32 v2, 98304, v2")
e.wait(lg="rw")
I("s_barrier")
for t in range(4):
    for mu in (1, 2, 3):
        a, off = (2, (mu - 1) * 16384) if mu < 3 else (3, 0)
        I(f"ds_read_b128 {vr(V_ACCA+(mu*4+t)*4)}, v{a} offset:{off+t*1024}", tag=f"rr{t}")
for t in range(4):
    e.wait(lg=f"rr{t}")
    o = V_ACCB + t * 4
    for k in range(2):
        I(f"v_pk_add_f32 {vr(V_ACCA+(4+t)*4+2*k,2)}, {vr(V_ACCA+(4+t)*4+2*k,2)}, {vr(V_ACCA+(8+t)*4+2*k,2)}")
        I(f"v_pk_add_f32 {vr(o+2*k,2)}, {vr(o+2*k,2)}, {vr(V_ACCA+(12+t)*4+2*k,2)}")
    for k in range(2):
        I(f"v_pk_add_f32 {vr(o+2*k,2)}, {vr(o+2*k,2)}, {vr(V_ACCA+(4+t)*4+2*k,2)}")
    I(f"v_cvt_pk_bf16_f32 v{o}, v{o}, v{o+1}")
    I(f"v_cvt_pk_bf16_f32 v{o+1}, v{o+2}, v{o+3}")
    I(f"buffer_store_dwordx2 {vr(o,2)}, v4, {srd(S_OUT)}, s{S_SOFF} offen offset:{t*32}")
if STAMP:
    I("s_waitcnt vmcnt(0)")
    stamp(8)
    I("s_memrealtime s[22:23]")
    I(f"s_add_u32 s{S_FL}, s{S_FL}, {STAMP_OFF-FLAG_OFF}")
    I(f"s_addc_u32 s{S_FL+1}, s{S_FL+1}, 0")
    I(f"s_mov_b32 s{S_FL+2}, 0x100000")
    I("s_waitcnt lgkmcnt(0)")
    I(f"s_lshl_b32 s{S_t0}, s2, 2")
    I(f"s_add_u32 s{S_t0}, s{S_t0}, s{S_w}")
    I(f"s_lshl_b32 s{S_t0}, s{S_t0}, 6")
    I(f"v_mov_b32 v2, s{S_t0}")
    for k in range(9):
        I(f"v_mov_b32 v{8+k}, s{S_STAMP+2*k}")
    I("v_mov_b32 v17, s73")
    I("v_mov_b32 v18, s22")
    I("v_mov_b32 v19, s72")
    I("v_mov_b32 v20, s100")
    I("s_mov_b64 exec, 1")
    for k in range(4):
        I(f"buffer_store_dwordx4 {vr(8+4*k)}, v2, {srd(S_FL)}, 0 offen offset:{16*k}")
e.label("L_end")
I("s_endpgm")
e.raw('.section .rodata,"a"')
e.raw(".p2align 6")
e.raw(f".amdhsa_kernel {NAME}_kernel")
e.raw("  .amdhsa_next_free_vgpr 512")
e.raw("  .amdhsa_next_free_sgpr 102")
e.raw("  .amdhsa_accum_offset 256")
e.raw("  .amdhsa_group_segment_fixed_size 0")
e.raw("  .amdhsa_kernarg_size 80")
e.raw("  .amdhsa_user_sgpr_count 2")
e.raw("  .amdhsa_user_sgpr_kernarg_segment_ptr 1")
e.raw("  .amdhsa_system_sgpr_workgroup_id_x 1")
e.raw(".end_amdhsa_kernel")
sys.stdout.write(e.text())
sys.stderr.write(f"instructions {e.nins} nop-states {e.nops}\n")
```

```python
import sys, struct
from emit import Em

NAME = "gated_mix__sliding_local_dilated__dense_activation_relu__prompt"
OPT = dict(stamp=0, rot=1, D=4, codepf=1, side=2, spin=200000)
for a in sys.argv[1:]:
    k, v = a.split("="); OPT[k] = int(v)
STAMP = OPT["stamp"]; D = OPT["D"]

def f2u(x): return struct.unpack("<I", struct.pack("<f", x))[0]

A2_BYTES = 32 * 72 * 4096
FLAG_OFF = 16 << 20
STAMP_OFF = 32 << 20
HALO_LDS = 131072
EXCH_LDS = 147456
GBUF_LDS = 131072
NEG = f2u(-1e30)

e = Em()
I = e.I
def vr(b, n=4): return f"v[{b}:{b+n-1}]"
def ar(b, n=4): return f"a[{b}:{b+n-1}]"

V_XOFF = 2
V_WD = 4
V_BD = 8
V_WR = 12
V_WR3 = 96
V_XR = 100
V_HALO2 = 107
V_GWF = 120
V_BR = 20
V_L16 = 28
V_HALO = 29
V_EXW = 30
V_EXR = 31
V_RING = 32
NRING = 6
V_RINV = 56
V_ACC = 64
V_HACC = 96
V_HX = 100
V_PACK = 108
V_BIAS = 108
V_MASK = 124
V_GW = 128
V_K = 192; V_Q = 208; V_S = 224
A_KP = 224; A_ONES = 240; A_HX = 244
V_ACCB = 128; V_ACCA = 192
A_A2 = 128
V_G = 108
V_A2OFF = 116

S_X, S_W, S_WS, S_OUT, S_W2, S_WO, S_GW, S_FL, S_DBG = 24, 28, 32, 36, 40, 44, 48, 52, 56
S_w, S_r, S_jj, S_rot, S_n2, S_r2, S_hb, S_m0b, S_q = 60, 61, 62, 63, 64, 65, 66, 67, 68
S_t0, S_t1 = 3, 69
S_FLA = 70; S_NOA = 72; S_NONCE = 74; S_NONCE1 = 75; S_POLL = 76; S_CNT = 80; S_SOFF = 81; S_EX3 = 82
S_KG = 84
S_WK = 88
S_COL = 92; S_ST = 93; S_B2 = 94; S_CEXP = 95; S_THR = 96; S_A2 = 97; S_BO = 98
S_STAMP = 4
def srd(b): return f"s[{b}:{b+3}]"

nstamp = [0]
def stamp(idx):
    if STAMP:
        I(f"s_memtime s[{S_STAMP+2*idx}:{S_STAMP+2*idx+1}]")

e.raw(f"; @launch grid=(256,1,1) block=(256,1,1) lds=163840")
e.raw('.amdgcn_target "amdgcn-amd-amdhsa--gfx950"')
e.raw(".text")
e.raw(f".globl {NAME}_kernel")
e.raw(".p2align 8")
e.raw(f".type {NAME}_kernel,@function")
e.label(f"{NAME}_kernel")
I("s_cmp_ge_u32 s2, 256")
I("s_cbranch_scc1 L_end")
I("s_load_dwordx16 s[4:19], s[0:1], 0")
I("s_load_dwordx4 s[20:23], s[0:1], 64")
if STAMP:
    I("s_memrealtime s[78:79]")
    I("s_memtime s[76:77]")
I("v_lshrrev_b32 v1, 6, v0")
I("v_and_b32 v0, 63, v0")
I(f"v_readfirstlane_b32 s{S_w}, v1")
I(f"s_and_b32 s{S_t0}, s2, 7")
I(f"s_lshr_b32 s{S_jj}, s2, 3")
I(f"s_lshr_b32 s{S_q}, s{S_t0}, 1")
I(f"s_and_b32 s{S_t0}, s{S_t0}, 1")
I(f"s_lshl_b32 s{S_t0}, s{S_t0}, 3")
I(f"s_and_b32 s{S_r}, s{S_jj}, 7")
I(f"s_or_b32 s{S_r}, s{S_r}, s{S_t0}")
I(f"s_lshr_b32 s{S_jj}, s{S_jj}, 3")
if OPT["rot"]:
    I(f"s_add_u32 s{S_rot}, s{S_r}, s{S_jj}")
else:
    I(f"s_mov_b32 s{S_rot}, 0")
I(f"s_lshl_b32 s{S_m0b}, s{S_w}, 12")
I(f"v_lshlrev_b32 v{V_L16}, 4, v0")
if OPT["codepf"]:
    I("s_cmp_lt_u32 s2, 8")
    I("s_cbranch_scc0 L_nopf")
    e.cond_begin()
    I("s_getpc_b64 s[98:99]")
    e.label("L_pc")
    I(f"v_lshlrev_b32 v2, 7, v0")
    I(f"v_lshl_add_u32 v2, v1, 13, v2")
    I(f"v_min_u32 v2, L_end-L_pc, v2")
    I("global_load_dword v127, v2, s[98:99]")
    e.cond_end()
    e.label("L_nopf")
I("v_lshrrev_b32 v32, 4, v0")
I("v_and_b32 v33, 15, v0")
I("v_bfe_u32 v34, v0, 2, 2")
I("v_and_b32 v35, 3, v0")
I("v_lshrrev_b32 v36, 3, v0")
I("v_and_b32 v37, 7, v0")
I("v_lshlrev_b32 v38, 11, v36")
I("v_xor_b32 v39, v37, v32")
I(f"v_lshl_add_u32 v{V_XOFF}, v39, 4, v38")
I("v_xor_b32 v39, 4, v39")
I("v_lshl_add_u32 v38, v39, 4, v38")
I(f"v_add_u32 v{V_XOFF+1}, {14*1024}, v38")
I(f"s_lshl_b32 s{S_t0}, s{S_r}, 17")
I(f"s_lshl_b32 s{S_t1}, s{S_w}, 15")
I(f"s_add_u32 s{S_t0}, s{S_t0}, s{S_t1}")
for g4 in range(4):
    I(f"s_add_u32 s{S_WK+g4}, s{S_rot}, {g4}")
    I(f"s_and_b32 s{S_WK+g4}, s{S_WK+g4}, 3")
    I(f"s_lshl_b32 s{S_KG+g4}, s{S_WK+g4}, 8")
    I(f"s_add_u32 s{S_KG+g4}, s{S_KG+g4}, s{S_t0}")
I("s_waitcnt lgkmcnt(0)")
if STAMP:
    I("s_memtime s[100:101]")
    I("s_mov_b32 s72, s76")
    I("s_mov_b32 s73, s78")
def mk_srd(b, p, nbytes):
    I(f"s_mov_b32 s{b}, s{p}")
    I(f"s_and_b32 s{b+1}, s{p+1}, 0xffff")
    I(f"s_mov_b32 s{b+2}, {nbytes}")
    I(f"s_mov_b32 s{b+3}, 0x20000")
mk_srd(S_X, 4, 2048 * 1024)

def x_items(g4, slots):
    items = []
    for kh in range(2):
        def setup(kh=kh):
            I(f"s_add_u32 m0, s{S_m0b}, {slots[kh]*16384}")
            I(f"s_add_u32 s{S_SOFF}, s{S_KG+g4}, {kh*128}")
        items.append(("setup", setup))
        for i in range(4):
            items.append(("dma", lambda i=i: I(f"buffer_load_dwordx4 v{V_XOFF+(i>>1)}, {srd(S_X)}, s{S_SOFF} offen offset:{i*1024} lds", tag=f"x{g4}")))
    return items
def x_reads(g4, slots):
    for kh in range(2):
        base = slots[kh] * 16384
        for p in range(2):
            for sp in range(2):
                a = V_XR + 2 * p + sp
                if base >= 65536:
                    I(f"v_add_u32 v{V_RINV+2*p+sp}, {base & ~0xffff}, v{a}")
                    a = V_RINV + 2 * p + sp
                I(f"ds_read_b128 {ar((p*16+4*g4+2*kh+sp)*4)}, v{a} offset:{base & 0xffff}", tag=f"xr{g4}")
def run(items):
    for _, f in items: f()
X0 = (3, 4)
run(x_items(0, X0))
I(f"s_add_u32 s{S_FLA}, s22, {FLAG_OFF}")
I(f"s_addc_u32 s{S_FLA+1}, s23, 0")
mk_srd(S_FL, S_FLA, 8192)
mk_srd(S_WS, 22, A2_BYTES)
mk_srd(S_OUT, 18, 2048 * 1024)
mk_srd(S_W2, 14, 1792 * 1024)
mk_srd(S_WO, 8, 512 * 1024)
mk_srd(S_GW, 16, 1024)
mk_srd(S_DBG, 20, 256)
I(f"s_cmp_ge_u32 s{S_jj}, 2")
I(f"s_cselect_b32 s{S_W}, s6, s12")
I(f"s_cselect_b32 s{S_W+1}, s7, s13")
I(f"s_and_b32 s{S_W+1}, s{S_W+1}, 0xffff")
I(f"s_cmp_ge_u32 s{S_jj}, 2")
I(f"s_mov_b32 s{S_W+2}, {512*3584}")
I(f"s_cmov_b32 s{S_W+2}, {512*3072}")
I(f"s_mov_b32 s{S_W+3}, 0x20000")
I(f"s_mov_b32 s{S_t1}, 3584")
I(f"s_cmov_b32 s{S_t1}, 3072")
I(f"s_lshl_b32 s{S_t0}, s{S_w}, 5")
I(f"v_add_u32 v38, s{S_t0}, v36")
I(f"v_mul_lo_u32 v38, v38, s{S_t1}")
I("v_bfe_u32 v39, v36, 1, 1")
I("v_lshrrev_b32 v40, 1, v37")
I("v_xor_b32 v40, v40, v39")
I("v_and_b32 v41, 1, v37")
I("v_lshl_add_u32 v38, v41, 4, v38")
I(f"v_lshl_add_u32 v{V_WD}, v40, 5, v38")
I("v_xor_b32 v42, 2, v40")
I(f"v_lshl_add_u32 v{V_WD+1}, v42, 5, v38")
I(f"s_lshl_b32 s{S_t0}, s{S_t1}, 3")
I(f"s_sub_u32 s{S_t0}, s{S_t0}, 1024")
I(f"v_add_u32 v{V_WD+1}, s{S_t0}, v{V_WD+1}")
I(f"s_lshl_b32 s{S_t0}, s{S_t0}, 1")
I(f"v_add_u32 v{V_WD+2}, s{S_t0}, v{V_WD}")
I(f"v_add_u32 v{V_WD+3}, s{S_t0}, v{V_WD+1}")
I(f"s_lshl_b32 s{S_t1}, s{S_t1}, 7")
for g4 in range(4):
    I(f"s_mul_i32 s{S_WK+g4}, s{S_WK+g4}, s{S_t1}")
I(f"s_and_b32 s{S_hb}, s{S_q}, 1")
I(f"s_lshr_b32 s{S_n2}, s{S_q}, 1")
I(f"s_lshl_b32 s{S_n2}, s{S_n2}, 2")
I(f"s_add_u32 s{S_n2}, s{S_n2}, s{S_jj}")
I(f"s_lshl_b32 s{S_r2}, s{S_r}, 1")
I(f"s_add_u32 s{S_r2}, s{S_r2}, s{S_hb}")

def dma_items(voff, srdb, soff_fn, slot, tag):
    def setup():
        I(f"s_add_u32 m0, s{S_m0b}, {slot*16384}")
        soff_fn()
    items = [("setup", setup)]
    for i in range(4):
        items.append(("dma", lambda i=i: I(f"buffer_load_dwordx4 v{voff+i}, {srd(srdb)}, s{S_SOFF} offen offset:{i*1024} lds", tag=tag)))
    return items

def rest_setup(att):
    for p in range(2):
        I(f"v_xor_b32 v38, {8 if p == 0 else 0}, v33")
        I("v_and_b32 v39, 8, v38")
        I("v_add_u32 v39, v39, v38")
        I("v_lshlrev_b32 v39, 7, v39")
        I("v_lshrrev_b32 v38, 1, v38")
        I("v_xor_b32 v38, v38, v32")
        I("v_lshl_add_u32 v39, v38, 4, v39")
        I(f"v_add_u32 v39, s{S_m0b}, v39")
        I(f"v_add_u32 v{V_XR+2*p}, {p*1024}, v39")
        I(f"v_xor_b32 v{V_XR+2*p+1}, 64, v{V_XR+2*p}")
    I("v_lshl_add_u32 v38, v32, 3, v34")
    I("v_lshlrev_b32 v38, 7, v38")
    I("v_lshl_add_u32 v38, v35, 3, v38")
    I("v_lshrrev_b32 v39, 1, v34")
    I("v_and_b32 v40, 1, v32")
    I("v_lshl_or_b32 v39, v40, 1, v39")
    if att:
        I(f"v_xor_b32 v41, s{S_w}, v39")
    for t in range(4):
        I(f"v_xor_b32 v40, {t}, v{41 if att else 39}")
        I(f"v_lshl_add_u32 v{V_WR+t}, v40, 5, v38")
        I(f"v_add_u32 v{V_WR+4+t}, 0x10000, v{V_WR+t}")
        if not att: I(f"v_add_u32 v{V_WR3+t}, 0x20000, v{V_WR+t}")
    I("v_lshl_add_u32 v38, v32, 2, v34")
    I("v_lshlrev_b32 v38, 7, v38")
    I("v_lshl_add_u32 v38, v35, 3, v38")
    I(f"v_add_u32 v38, s{S_m0b}, v38")
    for t in range(4):
        I(f"v_xor_b32 v40, {t}, v39")
        I(f"v_lshl_add_u32 v{V_BR+t}, v40, 5, v38")
        I(f"v_add_u32 v{V_BR+4+t}, 0x10000, v{V_BR+t}")
    I("v_lshrrev_b32 v38, 1, v36")
    I("v_lshrrev_b32 v40, 1, v37")
    I("v_xor_b32 v40, v40, v38")
    I("v_lshlrev_b32 v38, 10, v36")
    I("v_lshl_add_u32 v38, v40, 5, v38")
    I("v_and_b32 v40, 1, v37")
    I(f"v_lshl_add_u32 v{V_BD}, v40, 4, v38")
    for i in range(1, 4):
        I(f"v_add_u32 v{V_BD+i}, {i*7168}, v{V_BD}")
    I(f"s_mul_i32 s{S_B2}, s{S_w}, {14*32768}")
    I(f"s_lshl_b32 s{S_t0}, s{S_n2}, 7")
    I(f"s_add_u32 s{S_B2}, s{S_B2}, s{S_t0}")
    I(f"s_lshl_b32 s{S_BO}, s{S_w}, 17")
    I(f"s_add_u32 s{S_BO}, s{S_BO}, s{S_t0}")
    I(f"s_mul_i32 s{S_A2}, s{S_r2}, {72*4096}")
    I(f"s_mul_i32 s{S_t0}, s{S_w}, {18*4096}")
    I(f"s_add_u32 s{S_A2}, s{S_A2}, s{S_t0}")
    I(f"s_lshr_b32 s{S_t0}, s{S_w}, 1")
    I(f"s_lshl_b32 s{S_ST}, s{S_r}, 1")
    I(f"s_add_u32 s{S_ST}, s{S_ST}, s{S_t0}")
    I(f"s_mul_i32 s{S_ST}, s{S_ST}, 72")
    I(f"s_mul_i32 s{S_t0}, s{S_q}, 18")
    I(f"s_add_u32 s{S_ST}, s{S_ST}, s{S_t0}")
    I(f"s_and_b32 s{S_t0}, s{S_jj}, 1")
    I(f"s_lshl_b32 s{S_t0}, s{S_t0}, 1")
    I(f"s_add_u32 s{S_ST}, s{S_ST}, s{S_t0}")
    I(f"s_lshl_b32 s{S_ST}, s{S_ST}, 12")
    I(f"s_and_b32 s{S_t0}, s{S_w}, 1")
    I(f"s_lshl_b32 s{S_t0}, s{S_t0}, 11")
    I(f"s_add_u32 s{S_ST}, s{S_ST}, s{S_t0}")
    I(f"s_lshl_b32 s{S_t0}, s{S_r}, 2")
    I(f"s_add_u32 s{S_t0}, s{S_t0}, s{S_w}")
    I(f"s_lshl_b32 s{S_t0}, s{S_t0}, 7")
    I(f"s_add_u32 s{S_FLA}, s{S_FLA}, s{S_t0}")
    I(f"s_addc_u32 s{S_FLA+1}, s{S_FLA+1}, 0")

def stale_flag_load():
    I("v_lshlrev_b32 v38, 7, v34")
    I("v_lshl_add_u32 v38, v35, 2, v38")
    I(f"s_lshl_b32 s{S_t0}, s{S_r}, 9")
    I(f"buffer_load_dword v104, v38, {srd(S_FL)}, s{S_t0} offen sc1", tag="stale")

V_NT = 104
def nonce_propose(lbl):
    e.wait(vm="stale")
    I(f"s_cmp_eq_u32 s{S_w}, 0")
    I(f"s_cbranch_scc0 {lbl}")
    e.cond_begin()
    I(f"v_and_b32 v{V_NT+1}, 15, v0")
    I(f"v_add_u32 v{V_NT+1}, 1, v{V_NT+1}")
    I(f"v_lshrrev_b32 v{V_NT}, v{V_NT+1}, v{V_NT}")
    I(f"v_and_b32 v{V_NT}, 1, v{V_NT}")
    I(f"v_cmp_eq_u32 vcc, 0, v{V_NT}")
    I(f"s_and_b32 s{S_NONCE}, vcc_lo, 0xffff")
    I(f"s_lshl_b32 s{S_NONCE}, s{S_NONCE}, 1")
    I(f"s_or_b32 s{S_NONCE}, s{S_NONCE}, 0x80000000")
    I(f"v_mov_b32 v{V_NT}, s{S_NONCE}")
    I(f"v_mov_b32 v{V_NT+1}, 0")
    I(f"s_lshl_b32 s{S_t0}, s{S_r}, 4")
    I(f"v_mov_b32 v{V_NT+2}, s{S_t0}")
    I("s_mov_b64 exec, 1")
    I(f"buffer_atomic_cmpswap {vr(V_NT,2)}, v{V_NT+2}, {srd(S_DBG)}, 0 offen sc0 sc1")
    I("s_mov_b64 exec, -1")
    e.cond_end()
    e.label(lbl)

def nonce_publish(lbl, lds_addr):
    I(f"s_cmp_eq_u32 s{S_w}, 0")
    I(f"s_cbranch_scc0 {lbl}")
    e.cond_begin()
    I(f"v_readfirstlane_b32 s{S_t0}, v{V_NT}")
    I(f"s_cmp_eq_u32 s{S_t0}, 0")
    I(f"s_cselect_b32 s{S_NONCE}, s{S_NONCE}, s{S_t0}")
    I(f"v_mov_b32 v{V_NT}, s{S_NONCE}")
    I(f"v_mov_b32 v{V_NT+1}, {lds_addr}")
    I(f"ds_write_b32 v{V_NT+1}, v{V_NT}")
    I("s_waitcnt lgkmcnt(0)")
    e.cond_end()
    e.label(lbl)
def nonce_fetch(lds_addr):
    I(f"v_mov_b32 v{V_NT+1}, {lds_addr}")
    I(f"ds_read_b32 v{V_NT}, v{V_NT+1}", tag="nonce")
def nonce_get():
    e.wait(lg="nonce")
    I(f"v_readfirstlane_b32 s{S_NONCE}, v{V_NT}")
    I(f"s_or_b32 s{S_NONCE1}, s{S_NONCE}, 1")

def gw_load():
    I(f"s_lshl_b32 s{S_t0}, s{S_rot}, 2")
    I(f"v_add_u32 v38, s{S_t0}, v33")
    I("v_and_b32 v38, 15, v38")
    I("v_lshlrev_b32 v38, 6, v38")
    I("v_lshl_add_u32 v38, v32, 4, v38")
    I(f"buffer_load_dwordx4 {vr(V_GW)}, v38, {srd(S_GW)}, 0 offen", tag="gw")

uid = [0]
def poll_load():
    I(f"s_load_dwordx4 s[{S_POLL}:{S_POLL+3}], s[{S_FLA}:{S_FLA+1}], 0 glc")
def poll_check(w0, final):
    uid[0] += 1; u = uid[0]
    I(f"s_mov_b32 s{S_CNT}, 0")
    e.label(f"L_pw{u}")
    e.wait(lg="all")
    I(f"s_xor_b32 s{S_t0}, s{S_POLL+w0}, s{S_NONCE1}")
    I(f"s_xor_b32 s{S_t1}, s{S_POLL+w0+1}, s{S_NONCE1}")
    I(f"s_or_b32 s{S_t0}, s{S_t0}, s{S_t1}")
    I(f"s_cmp_le_u32 s{S_t0}, {0 if final else 1}")
    I(f"s_cbranch_scc1 L_pd{u}")
    poll_load()
    I(f"s_add_u32 s{S_CNT}, s{S_CNT}, 1")
    I(f"s_cmp_lt_u32 s{S_CNT}, {OPT['spin']}")
    I(f"s_cbranch_scc1 L_pw{u}")
    I("s_waitcnt lgkmcnt(0)")
    e.label(f"L_pd{u}")
def flag_store(sval, lbl, pre=None):
    I(f"s_cmp_eq_u32 s{S_w}, 0")
    I(f"s_cbranch_scc0 {lbl}")
    e.cond_begin()
    snap = e.snapshot()
    if pre: pre()
    I(f"s_lshl_b32 s{S_t0}, s{S_r}, 2")
    I(f"s_add_u32 s{S_t0}, s{S_t0}, s{S_q}")
    I(f"s_lshl_b32 s{S_t0}, s{S_t0}, 5")
    I(f"s_add_u32 s{S_t0}, s{S_t0}, s{S_jj}")
    I(f"s_lshl_b32 s{S_t0}, s{S_t0}, 2")
    I(f"v_mov_b32 v2, s{S_t0}")
    I(f"v_mov_b32 v3, s{sval}")
    I("s_mov_b64 exec, 1")
    I(f"buffer_store_dword v3, v2, {srd(S_FL)}, 0 offen sc1")
    I("s_mov_b64 exec, -1")
    e.restore(snap)
    e.cond_end()
    e.label(lbl)

def b2_group(n):
    slot = n % 6
    if n < 14:
        return dma_items(V_BD, S_W2, lambda: I(f"s_add_u32 s{S_SOFF}, s{S_B2}, {n*32768}"), slot, f"b2_{n}")
    return dma_items(V_BD, S_WO, lambda: I(f"s_add_u32 s{S_SOFF}, s{S_BO}, {(n-14)*32768}"), slot, f"b2_{n}")

MF = "v_mfma_f32_16x16x32_bf16"
MF16 = "v_mfma_f32_16x16x16_bf16"
def acc(t, p): return V_ACC + (t * 2 + p) * 4
def xfr(p, s): return ar((p * 16 + s) * 4)

class Stream:
    def __init__(self, steps, plan, xslots, bar_hooks):
        self.steps = steps; self.plan = plan; self.bar_hooks = bar_hooks; self.xslots = xslots
        self.side = []
        self.dma = []
        self.after = {}
        self.nh = 0
        self.per = 1; self.acc = 0
    def add(self, ready, deadline, fns):
        for f in fns: self.side.append([ready, deadline, f])
    def pop_dma(self):
        while self.dma:
            kind, f = self.dma.pop(0)
            f()
            if kind == "dma": return
    def issue_reads(self, k):
        st = self.steps[k]
        if st["first"]:
            i = st["sub"]
            pre, post = self.bar_hooks.get(i, (None, None))
            while self.dma: self.pop_dma()
            e.wait(vm=st["need"])
            if i < 4: x_reads(i, self.xslots[i])
            if pre: pre()
            I("s_barrier")
            if post: post()
            self.dma = list(self.plan(i))
            n = sum(1 for kind, _ in self.dma if kind == "dma")
            self.per = n / 13.0; self.acc = 0.0
        slot = st["slot"]
        a = (V_WR, V_WR + 4, V_WR3)[slot >> 2] + st["T"]
        off = (slot & 3) * 16384 + st["ks"] * 4096
        b = V_RING + (k % NRING) * 4
        I(f"ds_read_b64_tr_b16 {vr(b,2)}, v{a} offset:{off}", tag=f"w{k}")
        I(f"ds_read_b64_tr_b16 {vr(b+2,2)}, v{a} offset:{off+512}", tag=f"w{k}")
        if st.get("halo") is not None:
            hb = A_HX + (self.nh % 3) * 4; self.nh += 1
            st["hreg"] = hb
            s_ = st["halo"]
            I(f"ds_read_b128 {ar(hb)}, v{V_HALO2 if s_ & 1 else V_HALO} offset:{(s_>>1)*2048}", tag=f"w{k}")
    def pump(self, k, n):
        c = 0
        while self.side and c < n and self.side[0][0] <= k:
            self.side.pop(0)[2](); c += 1
    def run(self, rate):
        n = len(self.steps)
        for k in range(min(D, n)): self.issue_reads(k)
        for k in range(n):
            st = self.steps[k]
            while any(s[1] <= k for s in self.side):
                self.side.pop(0)[2]()
            e.wait(lg=f"w{k}")
            W = vr(V_RING + (k % NRING) * 4)
            mfs = st["mf"](W, st)
            I(mfs[0])
            if k + D < n: self.issue_reads(k + D)
            r = rate(k)
            for m in mfs[1:]:
                I(m)
                self.pump(k, r)
            self.acc += self.per
            while self.dma and self.acc >= 1.0:
                self.pop_dma(); self.acc -= 1.0
            if k in self.after: self.after[k]()
        while self.dma: self.pop_dma()
    def drain(self):
        while self.side: self.side.pop(0)[2]()
def xfree(g4):
    return [("setup", lambda: e.wait(lg=f"xr{g4}"))]

I(f"s_cmp_ge_u32 s{S_jj}, 2")
I("s_cbranch_scc1 L_att")
snap0 = e.snapshot()
hist0 = list(e.hist); pos0 = e.pos

def ffn():
    e.comment("---- FFN tile ----")
    XS = [X0, (0, 1), (8, 9), X0]
    GS = [2, 5, 6, 7, 0, 1, 2, 8, 9, 5, 3, 4, 6, 7]
    I(f"s_mul_i32 s{S_COL}, s{S_q}, 896")
    I(f"s_lshl_b32 s{S_t0}, s{S_jj}, 7")
    I(f"s_add_u32 s{S_COL}, s{S_COL}, s{S_t0}")
    def grp(i):
        if i < 12:
            c, u = divmod(i, 4)
            def so():
                I(f"s_add_u32 s{S_SOFF}, s{S_WK+u}, s{S_COL}")
                if c: I(f"s_add_u32 s{S_SOFF}, s{S_SOFF}, {c*256}")
            return dma_items(V_WD, S_W, so, GS[i], f"g{i}")
        if i < 14:
            v = i - 12
            def so():
                if v == 0:
                    I("v_lshrrev_b32 v2, 2, v0")
                    I("v_and_b32 v2, 1, v2")
                    I(f"v_mul_u32_u24 v3, {256*3584-64}, v2")
                    I(f"v_add_u32 v{V_WD}, v{V_WD}, v3")
                    I(f"v_add_u32 v{V_WD+2}, v{V_WD+2}, v3")
                    I(f"v_sub_u32 v3, {256*3584-64}, v3")
                    I(f"v_add_u32 v{V_WD+1}, v{V_WD+1}, v3")
                    I(f"v_add_u32 v{V_WD+3}, v{V_WD+3}, v3")
                    I(f"v_mul_u32_u24 v2, {2*256*3584}, v2")
                    I(f"v_sub_u32 v2, {256*3584}, v2")
                    I(f"s_cmp_ge_u32 s{S_WK}, {256*3584}")
                    I(f"s_cselect_b32 s{S_t0}, 1, 0")
                else:
                    I(f"s_cmp_ge_u32 s{S_WK}, {256*3584}")
                    I(f"s_cselect_b32 s{S_t1}, 1, 0")
                    I(f"s_cmp_ge_u32 s{S_WK+1}, {256*3584}")
                    I(f"s_cselect_b32 s{S_t0}, 1, 0")
                    I(f"s_sub_u32 s{S_t0}, s{S_t0}, s{S_t1}")
                I(f"s_sub_u32 s{S_t1}, 0, s{S_t0}")
                I(f"v_mad_i32_i24 v{V_WD}, v2, s{S_t0}, v{V_WD}")
                I(f"v_mad_i32_i24 v{V_WD+2}, v2, s{S_t0}, v{V_WD+2}")
                I(f"v_mad_i32_i24 v{V_WD+1}, v2, s{S_t1}, v{V_WD+1}")
                I(f"v_mad_i32_i24 v{V_WD+3}, v2, s{S_t1}, v{V_WD+3}")
                I(f"s_min_u32 s{S_SOFF}, s{S_WK+v}, s{S_WK+v+2}")
                I(f"s_mul_i32 s{S_t0}, s{S_q}, 896")
                I(f"s_add_u32 s{S_SOFF}, s{S_SOFF}, s{S_t0}")
                I(f"s_lshl_b32 s{S_t0}, s{S_jj}, 6")
                I(f"s_add_u32 s{S_SOFF}, s{S_SOFF}, s{S_t0}")
                I(f"s_add_u32 s{S_SOFF}, s{S_SOFF}, 768")
            return dma_items(V_WD, S_W, so, GS[i], f"g{i}")
    def plan(i):
        if i == 0: return xfree(0) + x_items(3, XS[3])
        if i == 1: return xfree(1) + grp(4) + grp(5)
        if i == 2: return grp(6) + xfree(2) + grp(7) + grp(8)
        if i == 3: return grp(9) + xfree(3) + grp(10) + grp(11)
        if i == 4: return grp(12)
        if i == 5: return grp(13)
        return {6: 0, 7: 1, 8: 2, 11: 5, 12: 3, 13: 4}.get(i) is not None and b2_group({6: 0, 7: 1, 8: 2, 11: 5, 12: 3, 13: 4}[i]) or []
    run(grp(0))
    stale_flag_load()
    run(x_items(1, XS[1])); run(grp(1)); run(x_items(2, XS[2])); run(grp(2)); run(grp(3))
    gw_load()
    rest_setup(False)
    stamp(0)
    nonce_propose("L_np_f")
    steps = []
    for i in range(14):
        c, u = divmod(i, 4)
        for h in range(2):
            for ks in range(4):
                for tt in range(2):
                    T = 2 * h + tt
                    if i < 12:
                        s = 4 * u + ks; ta = T; zero = (u == 0 and ks == 0)
                    else:
                        s = 4 * (u + 2 * h) + ks; ta = tt; zero = (u == 0 and h == 0 and ks == 0)
                    def mf(W, st, s=s, ta=ta, zero=zero):
                        return [f"{MF} {vr(acc(ta,p))}, {W}, {xfr(p,s)}, {'0' if zero else vr(acc(ta,p))}" for p in range(2)]
                    need = [f"g{i}"] + ([f"x{u}"] if i < 4 else [])
                    steps.append(dict(sub=i, slot=GS[i], T=T, ks=ks, mf=mf, first=(h == 0 and ks == 0 and tt == 0), need=need))
    def l1_pre():
        e.wait(vm="st1_1")
    def l1_post():
        flag_store(S_NONCE, "L_fl1")
    hooks = {11: (l1_pre, l1_post), 9: (None, lambda: nonce_publish("L_npub_f", GBUF_LDS + 2048)), 10: (None, lambda: nonce_fetch(GBUF_LDS + 2048)), 12: (nonce_get, None), 1: (None, lambda: stamp(1)), 4: (None, lambda: stamp(2))}
    S = Stream(steps, plan, XS, hooks)
    def epi(t0, n, tag, setno):
        fns = []
        for p in range(2):
            pk = V_PACK + setno * 8 + p * 4
            for tt in range(2):
                for hh in range(2):
                    a = acc(t0 + tt, p) + 2 * hh
                    fns.append(lambda pk=pk, tt=tt, hh=hh, a=a: I(f"v_cvt_pk_bf16_f32 v{pk+2*tt+hh}, v{a}, v{a+1}"))
        late = []
        for p in range(2):
            pk = V_PACK + setno * 8 + p * 4
            for k in range(4):
                late.append(lambda pk=pk, k=k: I(f"v_pk_max_i16 v{pk+k}, v{pk+k}, 0"))
            def st(pk=pk, p=p):
                I(f"s_add_u32 s{S_t0}, s{S_ST}, {n*4096}") if n >= 0 else None
                I(f"buffer_store_dwordx4 {vr(pk)}, v{V_L16}, {srd(S_WS)}, s{S_t0} offen offset:{p*1024} sc1", tag=tag)
            late.append(st)
        return fns, late
    for c in range(3):
        for h in range(2):
            k = (4 * c + 3) * 16 + 8 * h + 7
            def aft(k=k, c=c, h=h):
                a, b = epi(2 * h, 4 * c + h, f"st{c}_{h}", h)
                S.add(k + 2, k + 9, a)
                S.add(k + 2, k + 17, b)
            S.after[k] = aft
    S.run(lambda k: OPT["side"])
    S.drain()
    stamp(3)
    poll_load()
    I(f"s_lshl_b32 s{S_t1}, s{S_jj}, 12")
    I(f"s_sub_u32 s{S_ST}, s{S_ST}, s{S_t1}")
    a, b = epi(0, 12, "stL", 0)
    for f in a + b: f()

ffn()
I("s_branch L_join")
snap_f = e.snapshot()

e.label("L_att")
e.restore(snap0); e.hist = []
def att():
    e.comment("---- attention tile ----")
    I(f"s_lshl_b32 s{S_COL}, s{S_q}, 1")
    I(f"s_add_u32 s{S_COL}, s{S_COL}, s{S_jj}")
    I(f"s_sub_u32 s{S_COL}, s{S_COL}, 2")
    I(f"s_lshl_b32 s{S_COL}, s{S_COL}, 7")
    CH = [1024, 0, 2048]
    XS = [X0, (7, 0), (2, 9), X0]
    GS = [1, 5, 6, 7, 0, 1, 2, 5, 3, 4, 6, 7]
    def grp(i):
        if i < 12:
            c, u = divmod(i, 4)
            def so():
                I(f"s_add_u32 s{S_SOFF}, s{S_WK+u}, s{S_COL}")
                if CH[c]: I(f"s_add_u32 s{S_SOFF}, s{S_SOFF}, {CH[c]}")
            return dma_items(V_WD, S_W, so, GS[i], f"g{i}")
    def plan(i):
        if i == 0: return xfree(0) + x_items(3, XS[3])
        if i == 1: return xfree(1) + grp(3) + grp(4)
        if i == 2: return grp(5) + xfree(2) + grp(6)
        if i == 3: return grp(7) + xfree(3) + grp(8) + grp(9)
        if i == 4: return grp(10)
        if i == 5: return grp(11)
        return b2_group({6: 0, 7: 1, 8: 2, 9: 5, 10: 3, 11: 4}[i])
    run(grp(0))
    I(f"s_lshl_b32 s{S_t0}, s{S_r}, 17")
    I(f"s_sub_u32 s{S_t0}, s{S_t0}, 16384")
    I(f"v_add_u32 v38, s{S_t0}, v{V_XOFF}")
    I(f"s_sub_u32 s{S_t0}, s{S_t0}, {13*1024}")
    I(f"v_add_u32 v39, s{S_t0}, v{V_XOFF+1}")
    I("v_max_i32 v38, 0, v38")
    I("v_max_i32 v39, 0, v39")
    I(f"s_add_u32 s{S_t0}, s{S_rot}, s{S_w}")
    I(f"s_and_b32 s{S_t0}, s{S_t0}, 3")
    I(f"s_lshl_b32 s{S_t0}, s{S_t0}, 8")
    for i in range(4):
        kh, rh = divmod(i, 2)
        I(f"s_add_u32 m0, s{S_m0b}, {HALO_LDS + i*1024 - kh*128}")
        I(f"buffer_load_dwordx4 v{38+rh}, {srd(S_X)}, s{S_t0} offen offset:{kh*128} lds", tag="hx")
    stale_flag_load()
    run(x_items(1, XS[1])); run(grp(1)); run(x_items(2, XS[2])); run(grp(2))
    gw_load()
    rest_setup(True)
    I("v_lshrrev_b32 v38, 1, v33")
    I("v_xor_b32 v38, v38, v32")
    I("v_lshlrev_b32 v38, 4, v38")
    I("v_lshl_add_u32 v38, v33, 7, v38")
    I(f"v_add_u32 v{V_HALO}, {HALO_LDS}, v38")
    I(f"v_xor_b32 v{V_HALO2}, 64, v{V_HALO}")
    I(f"s_mul_i32 s{S_t0}, s{S_w}, 5120")
    I(f"s_add_u32 s{S_t0}, s{S_t0}, {EXCH_LDS}")
    I(f"v_add_u32 v{V_EXR}, s{S_t0}, v{V_L16}")
    I(f"v_add_u32 v{V_EXW}, 4096, v{V_EXR}")
    I(f"s_cmp_eq_u32 s{S_w}, 3")
    I(f"s_cselect_b64 s[{S_EX3}:{S_EX3+1}], 0, -1")
    I(f"s_mov_b32 s{S_CEXP}, {f2u(0.25*1.4426950408889634)}")
    I(f"s_or_b32 s{S_t0}, s{S_r}, s{S_w}")
    I(f"s_cmp_eq_u32 s{S_t0}, 0")
    I(f"s_cselect_b32 s{S_THR}, -16, -9")
    I(f"v_mov_b32 v40, {NEG}")
    for p in range(2):
        x8 = 8 if p == 0 else 0
        I(f"v_xor_b32 v38, {x8}, v33")
        I("v_lshlrev_b32 v39, 2, v32")
        I(f"v_xor_b32 v39, {x8}, v39")
        I("v_sub_u32 v38, v38, v39")
        for r in range(4):
            I(f"v_subrev_u32 v39, {r}, v38")
            I("v_cmp_lt_u32 vcc, 7, v39")
            I(f"v_cndmask_b32 v{V_BIAS+p*8+r}, 0, v40, vcc")
            I(f"v_cmp_lt_i32 vcc, s{S_THR}, v39")
            I(f"v_cndmask_b32 v{V_BIAS+p*8+4+r}, 0, v40, vcc")
            I("v_ashrrev_i32 v41, 31, v39")
            if r % 2 == 0:
                I("v_and_b32 v42, 0xffff, v41")
            else:
                I("v_and_b32 v41, 0xffff0000, v41")
                I("v_or_b32 v42, v42, v41")
                I(f"v_not_b32 v{V_MASK+2*p+r//2}, v42")
    I("v_mov_b32 v40, 0x3f803f80")
    for k in range(4):
        I(f"v_accvgpr_write_b32 a{A_ONES+k}, v40")
    stamp(0)
    nonce_propose("L_np_a")
    steps = []
    for i in range(12):
        c, u = divmod(i, 4)
        for h in range(2):
            for ks in range(4):
                for tt in range(2):
                    T = 2 * h + tt
                    s = 4 * u + ks; zero = (u == 0 and ks == 0)
                    halo = s if (T == 0 and c != 1) else None
                    def mf(W, st, s=s, T=T, zero=zero, c=c):
                        out = []
                        for p in range(2):
                            a, b = (W, xfr(p, s)) if c != 2 else (xfr(p, s), W)
                            out.append(f"{MF} {vr(acc(T,p))}, {a}, {b}, {'0' if zero else vr(acc(T,p))}")
                        if st.get("halo") is not None:
                            a, b = (W, ar(st["hreg"])) if c != 2 else (ar(st["hreg"]), W)
                            out.append(f"{MF} {vr(V_HACC)}, {a}, {b}, {'0' if zero else vr(V_HACC)}")
                        return out
                    need = [f"g{i}"] + ([f"x{u}"] if i < 4 else []) + (["hx"] if i == 0 else [])
                    steps.append(dict(sub=i, slot=GS[i], T=T, ks=ks, mf=mf, halo=halo, first=(h == 0 and ks == 0 and tt == 0), need=need))
    def kp_reads():
        for t in range(4):
            I(f"v_xor_b32 v{2+t%2}, {t*1024}, v{V_EXR}")
            I(f"ds_read_b128 {ar(A_KP+4*t)}, v{2+t%2}", tag="kp")
    hooks = {6: (lambda: e.wait(lg="kw"), kp_reads), 8: (lambda: e.wait(lg="kp"), None),
             9: (lambda: nonce_publish("L_npub_a", EXCH_LDS), lambda: nonce_fetch(EXCH_LDS)), 10: (nonce_get, None), 1: (None, lambda: stamp(1)), 4: (None, lambda: stamp(2))}
    S = Stream(steps, plan, XS, hooks)
    def cvt2(d, a):
        return [lambda: I(f"v_cvt_pk_bf16_f32 v{d}, v{a}, v{a+1}"), lambda: I(f"v_cvt_pk_bf16_f32 v{d+1}, v{a+2}, v{a+3}")]
    def exw(t, txt, tag):
        def f():
            I(f"v_xor_b32 v2, {t*1024}, v{V_EXW}")
            I(f"s_mov_b64 exec, s[{S_EX3}:{S_EX3+1}]")
            I(txt, tag=tag)
            I("s_mov_b64 exec, -1")
        return f
    def halo_w(tag):
        def f():
            I(f"v_cvt_pk_bf16_f32 v{V_HACC}, v{V_HACC}, v{V_HACC+1}")
            I(f"v_cvt_pk_bf16_f32 v{V_HACC+1}, v{V_HACC+2}, v{V_HACC+3}")
            I(f"v_subrev_u32 v3, s{S_m0b}, v{V_EXR}")
            I(f"ds_write2_b64 v3, {vr(V_HACC,2)}, {vr(V_HACC,2)} offset0:0 offset1:1", tag=tag)
        return f
    def VV(t): return V_S + 8 * t
    def epi(c, h):
        fns = []
        for t in (2 * h, 2 * h + 1):
            for p in range(2):
                if c == 0: d = V_K + 4 * t + 2 * p
                elif c == 1: d = V_Q + 4 * t + 2 * p
                else: d = VV(t) + 6 * p
                fns += cvt2(d, acc(t, p))
        late = []
        for t in (2 * h, 2 * h + 1):
            if c == 0: late.append(exw(t, f"ds_write_b128 v2, {vr(V_K+4*t)}", "kw"))
            if c == 2: late.append(exw(t, f"ds_write2_b64 v2, {vr(VV(t),2)}, {vr(VV(t)+6,2)} offset0:0 offset1:1", "vw"))
        if h == 0 and c != 1: late.append(halo_w("kw" if c == 0 else "vw"))
        return fns, late
    def Preg(t, p): return (V_K if p == 0 else V_Q) + 4 * t
    def softmax(b):
        F = []
        A = lambda s: F.append(lambda: I(s))
        units = [(2 * b + (i >> 1), i & 1) for i in range(4)]
        Sc = lambda i: V_S + 8 * i
        Sp = lambda i: V_S + 8 * i + 4
        if b == 0: F.append(lambda: e.wait(lg="kp"))
        for i, (t, p) in enumerate(units):
            A(f"{MF16} {vr(Sc(i))}, {vr(V_K+4*t+2*p,2)}, {vr(V_Q+4*t+2*p,2)}, {vr(V_BIAS+8*p)}")
            A(f"{MF16} {vr(Sp(i))}, {ar(A_KP+4*t+2*p,2)}, {vr(V_Q+4*t+2*p,2)}, {vr(V_BIAS+8*p+4)}")
        for i in range(4):
            for r in range(4): A(f"v_max_f32 v{Sc(i)+r}, v{Sc(i)+r}, v{Sp(i)+r}")
        for i in range(4):
            A(f"v_cvt_pk_bf16_f32 v{Sp(i)}, v{Sc(i)}, v{Sc(i)+1}")
            A(f"v_cvt_pk_bf16_f32 v{Sp(i)+1}, v{Sc(i)+2}, v{Sc(i)+3}")
            A(f"v_lshlrev_b32 v{Sc(i)}, 16, v{Sp(i)}")
            A(f"v_and_b32 v{Sc(i)+1}, 0xffff0000, v{Sp(i)}")
            A(f"v_lshlrev_b32 v{Sc(i)+2}, 16, v{Sp(i)+1}")
            A(f"v_and_b32 v{Sc(i)+3}, 0xffff0000, v{Sp(i)+1}")
            A(f"v_max3_f32 v{Sp(i)+2}, v{Sc(i)}, v{Sc(i)+1}, v{Sc(i)+2}")
            A(f"v_max_f32 v{Sp(i)+2}, v{Sp(i)+2}, v{Sc(i)+3}")
        m = [Sp(i) + 2 for i in range(4)]
        A(f"v_permlane32_swap_b32 v{m[0]}, v{m[1]}")
        A(f"v_permlane32_swap_b32 v{m[2]}, v{m[3]}")
        A(f"v_max_f32 v{m[0]}, v{m[0]}, v{m[1]}")
        A(f"v_max_f32 v{m[2]}, v{m[2]}, v{m[3]}")
        A(f"v_permlane16_swap_b32 v{m[0]}, v{m[2]}")
        A(f"v_max_f32 v{m[0]}, v{m[0]}, v{m[2]}")
        A(f"v_mul_f32 v{m[2]}, s{S_CEXP}, v{m[0]}")
        A(f"v_mul_f32 v{m[0]}, s{S_CEXP}, v{m[0]}")
        A(f"v_permlane16_swap_b32 v{m[0]}, v{m[2]}")
        A(f"v_mov_b32 v{m[1]}, v{m[0]}")
        A(f"v_mov_b32 v{m[3]}, v{m[2]}")
        A(f"v_permlane32_swap_b32 v{m[0]}, v{m[1]}")
        A(f"v_permlane32_swap_b32 v{m[2]}, v{m[3]}")
        for i in range(4):
            for r in range(4): A(f"v_fma_f32 v{Sc(i)+r}, v{Sc(i)+r}, s{S_CEXP}, -v{m[i]}")
            for r in range(4): A(f"v_exp_f32 v{Sc(i)+r}, v{Sc(i)+r}")
        for i, (t, p) in enumerate(units):
            P = Preg(t, p)
            cur, prv = (P, P + 2) if p == 0 else (P + 2, P)
            A(f"v_cvt_pk_bf16_f32 v{prv}, v{Sc(i)}, v{Sc(i)+1}")
            A(f"v_cvt_pk_bf16_f32 v{prv+1}, v{Sc(i)+2}, v{Sc(i)+3}")
            A(f"v_and_b32 v{cur}, v{prv}, v{V_MASK+2*p}")
            A(f"v_and_b32 v{cur+1}, v{prv+1}, v{V_MASK+2*p+1}")
            A(f"v_xor_b32 v{prv}, v{prv}, v{cur}")
            A(f"v_xor_b32 v{prv+1}, v{prv+1}, v{cur+1}")
        for i, (t, p) in enumerate(units):
            A(f"{MF} {vr(Sp(i))}, {ar(A_ONES)}, {vr(Preg(t,p))}, 0")
        for i, (t, p) in enumerate(units):
            A(f"v_rcp_f32 v{V_RINV+2*t+p}, v{Sp(i)}")
        return F
    for c in range(3):
        for h in range(2):
            k = (4 * c + 3) * 16 + 8 * h + 7
            if c == 2 and h == 1: continue
            def aft(k=k, c=c, h=h):
                a, b = epi(c, h)
                S.add(k + 2, k + 9, a)
                S.add(k + 2, k + 9 if (h == 0) else k + 17, b)
                if c == 1 and h == 1:
                    S.add(k + 2, 128 + 56, softmax(0) + softmax(1))
            S.after[k] = aft
    S.run(lambda k: OPT["side"] if k < 128 else 5)
    S.drain()
    stamp(3)
    poll_load()
    a, b = epi(2, 1)
    for f in a + b: f()
    e.wait(lg="vw")
    I("s_barrier")
    for t in range(4):
        I(f"v_xor_b32 v{2+t%2}, {t*1024}, v{V_EXR}")
        I(f"ds_read_b128 {vr(VV(t)+2)}, v{2+t%2}", tag=f"vp{t}")
    for t in range(4):
        e.wait(lg=f"vp{t}")
        for p in range(2):
            I(f"{MF} {vr(acc(t,p))}, {vr(VV(t)+4*p)}, {vr(Preg(t,p))}, 0")
    I(f"s_lshr_b32 s{S_t0}, s{S_w}, 1")
    I(f"s_lshl_b32 s{S_t0}, s{S_t0}, 12")
    I(f"s_add_u32 s{S_ST}, s{S_ST}, {14*4096}")
    I(f"s_xor_b32 s{S_t1}, s{S_t0}, 4096")
    I(f"s_add_u32 s{S_t0}, s{S_t0}, s{S_ST}")
    I(f"s_add_u32 s{S_t1}, s{S_t1}, s{S_ST}")
    for t in range(4):
        for p in range(2):
            for r in range(4):
                I(f"v_mul_f32 v{acc(t,p)+r}, v{V_RINV+2*t+p}, v{acc(t,p)+r}")
            pk = V_RING + (t >> 1) * 8 + p * 4 + (t & 1) * 2
            for f in cvt2(pk, acc(t, p)): f()
    I(f"s_bitcmp1_b32 s{S_w}, 0")
    I("s_cbranch_scc0 L_noswap")
    e.cond_begin()
    for k in range(4):
        I(f"v_swap_b32 v{V_RING+4*k}, v{V_RING+4*k+2}")
        I(f"v_swap_b32 v{V_RING+4*k+1}, v{V_RING+4*k+3}")
    e.cond_end()
    e.label("L_noswap")
    for pair in range(2):
        for p in range(2):
            I(f"buffer_store_dwordx4 {vr(V_RING+pair*8+p*4)}, v{V_L16}, {srd(S_WS)}, s{S_t0 if pair == 0 else S_t1} offen offset:{p*1024} sc1", tag="stL")
att()
snap_a = e.snapshot()

e.label("L_join")
e.join([snap_f, snap_a])
e.hist = []
I("s_nop 1")
stamp(4)
poll_check(0, False)
for mu in range(4):
    I(f"s_lshl_b32 s{S_t0}, s{S_w}, 10")
    I(f"s_xor_b32 s{S_t0}, s{S_t0}, {mu*1024}")
    I(f"v_add_u32 v{V_A2OFF+mu}, s{S_t0}, v{V_L16}")
def a2_loads(n):
    out = [lambda: I(f"s_add_u32 s{S_COL}, s{S_A2}, {n*4096}")]
    for mu in range(4):
        out.append(lambda mu=mu: I(f"buffer_load_dwordx4 {ar(A_A2+(n%6)*16+mu*4)}, v{V_A2OFF+mu}, {srd(S_WS)}, s{S_COL} offen sc1", tag=f"a2_{n}"))
    return out
for n in range(6):
    for f in a2_loads(n): f()
e.wait(vm="gw")
def gwb(s, k):
    I(f"v_mov_b32_dpp v{V_GW+4+4*(s&1)+k}, v{V_GW+k} row_newbcast:{s} row_mask:0xf bank_mask:0xf")
for k in range(4): gwb(0, k)
for s in range(16):
    for p in range(2):
        I(f"{MF} {vr(V_ACC+4*p)}, {vr(V_GW+4+4*(s&1))}, {xfr(p,s)}, {'0' if s == 0 else vr(V_ACC+4*p)}")
        if s < 15 and p == 0:
            for k in range(4): gwb(s + 1, k)
Z = V_ACC + 8
I(f"v_cvt_pk_bf16_f32 v{Z}, v{V_ACC}, v{V_ACC+4}")
I(f"v_lshlrev_b32 v{Z+2}, 16, v{Z}")
I(f"v_and_b32 v{Z+4}, 0xffff0000, v{Z}")
for p in range(2):
    I(f"v_mul_f32 v{Z+2+2*p}, {f2u(-1.4426950408889634)}, v{Z+2+2*p}")
for p in range(2):
    I(f"v_exp_f32 v{Z+2+2*p}, v{Z+2+2*p}")
for p in range(2):
    I(f"v_add_f32 v{Z+2+2*p}, 1.0, v{Z+2+2*p}")
for p in range(2):
    I(f"v_rcp_f32 v{Z+2+2*p}, v{Z+2+2*p}")
I(f"v_cvt_pk_bf16_f32 v{Z}, v{Z+2}, v{Z+4}")
I(f"v_lshlrev_b32 v{Z+2}, 16, v{Z}")
I(f"v_and_b32 v{Z+4}, 0xffff0000, v{Z}")
for p in range(2):
    I(f"v_sub_f32 v{Z+3+2*p}, 1.0, v{Z+2+2*p}")
I(f"v_cvt_pk_bf16_f32 v{Z}, v{Z+3}, v{Z+5}")
I(f"v_lshlrev_b32 v{Z+3}, 16, v{Z}")
I(f"v_and_b32 v{Z+5}, 0xffff0000, v{Z}")
I(f"s_lshl_b32 s{S_t0}, s{S_w}, 8")
I(f"s_add_u32 s{S_t0}, s{S_t0}, {GBUF_LDS}")
I(f"v_lshl_add_u32 v2, v0, 3, s{S_t0}")
I("s_mov_b64 exec, 0xffff")
I(f"ds_write_b64 v2, {vr(Z+2,2)}", tag="gwr")
I(f"ds_write_b64 v2, {vr(Z+4,2)} offset:128", tag="gwr")
I("s_mov_b64 exec, -1")
e.wait(vm="stL", lg="gwr")
I("s_barrier")
flag_store(S_NONCE1, "L_fl2")
stamp(5)
I("v_and_b32 v2, 15, v0")
I(f"s_lshl_b32 s{S_t0}, s{S_hb}, 2")
I(f"s_add_u32 s{S_t0}, s{S_t0}, s{S_w}")
I(f"s_lshl_b32 s{S_t0}, s{S_t0}, 7")
I(f"s_add_u32 s{S_t0}, s{S_t0}, {GBUF_LDS}")
I(f"v_lshl_add_u32 v2, v2, 3, s{S_t0}")
for mu in range(4):
    I(f"v_xor_b32 v3, {mu*128}, v2")
    I(f"ds_read_b64 {vr(V_G+2*mu,2)}, v3", tag="g")

def b2_reads(n):
    slot = n % 6
    out = []
    for t in range(4):
        a = V_BR + (4 if slot >= 4 else 0) + t
        off = (slot & 3) * 16384
        b = V_RING + (n & 1) * 16 + t * 4
        out.append(lambda a=a, off=off, b=b, t=t: I(f"ds_read_b64_tr_b16 {vr(b,2)}, v{a} offset:{off}", tag=f"f{n}_{t}"))
        out.append(lambda a=a, off=off, b=b, t=t: I(f"ds_read_b64_tr_b16 {vr(b+2,2)}, v{a} offset:{off+2048}", tag=f"f{n}_{t}"))
    return out
def acc2(n, mu, t): return (V_ACCB if n < 14 else V_ACCA) + (mu * 4 + t) * 4
e.wait(vm="b2_0")
for f in b2_reads(0): f()
poll_load()
bscale = []
for mu in range(4):
    for k in range(16):
        r = V_ACCB + mu * 16 + k
        bscale.append(lambda r=r, mu=mu: I(f"v_mul_f32 v{r}, v{V_G+2*mu+1}, v{r}"))
for n in range(18):
    nxt = []
    if n + 1 < 18:
        e.wait(vm=f"b2_{n+1}")
        nxt = b2_reads(n + 1)
    e.wait(vm=f"a2_{n}")
    zero = n in (0, 14)
    for t in range(4):
        e.wait(lg=f"f{n}_{t}")
        for mu in range(4):
            d = vr(acc2(n, mu, t))
            I(f"{MF} {d}, {vr(V_RING+(n&1)*16+t*4)}, {ar(A_A2+(n%6)*16+mu*4)}, {'0' if zero else d}")
            if nxt and mu % 2 == 0: nxt.pop(0)()
            if n >= 15 and bscale:
                if n == 15 and t == 0 and mu == 0: e.wait(lg="g")
                bscale.pop(0)()
                if bscale: bscale.pop(0)()
    if n + 6 < 18:
        run(b2_group(n + 6))
        if n == 2: poll_check(0, True)
        if n == 8: poll_check(2, True)
        for f in a2_loads(n + 6): f()
        if n == 6: poll_load()
    if n == 5: stamp(6)
while bscale: bscale.pop(0)()
stamp(7)
REG = [None, 98304, 114688, EXCH_LDS]
for mu in (1, 2, 3, 0):
    if mu:
        I(f"s_xor_b32 s{S_t0}, s{S_m0b}, {mu*4096}")
        I(f"s_add_u32 s{S_t0}, s{S_t0}, {REG[mu]}")
        I(f"v_add_u32 v2, s{S_t0}, v{V_L16}")
    for t in range(4):
        for k in range(2):
            rb = V_ACCB + (mu * 4 + t) * 4 + 2 * k; ra = V_ACCA + (mu * 4 + t) * 4 + 2 * k
            I(f"v_pk_fma_f32 {vr(rb,2)}, {vr(ra,2)}, {vr(V_G+2*mu,2)}, {vr(rb,2)} op_sel_hi:[1,0,1]")
        if mu:
            I(f"ds_write_b128 v2, {vr(V_ACCB+(mu*4+t)*4)} offset:{t*1024}", tag="rw")
I(f"s_and_b32 s{S_t0}, s{S_w}, 1")
I(f"s_xor_b32 s{S_t1}, s{S_t0}, 1")
I(f"s_lshl_b32 s{S_t1}, s{S_t1}, 3")
I("v_and_b32 v4, 15, v0")
I(f"v_xor_b32 v4, s{S_t1}, v4")
I(f"v_lshl_add_u32 v4, v4, 1, s{S_t0}")
I("v_lshlrev_b32 v4, 10, v4")
I("v_lshrrev_b32 v5, 4, v0")
I("v_lshl_add_u32 v4, v5, 3, v4")
I(f"s_lshl_b32 s{S_t0}, s{S_r2}, 16")
I(f"s_lshr_b32 s{S_t1}, s{S_w}, 1")
I(f"s_lshl_b32 s{S_t1}, s{S_t1}, 15")
I(f"s_add_u32 s{S_t0}, s{S_t0}, s{S_t1}")
I(f"s_lshl_b32 s{S_t1}, s{S_n2}, 7")
I(f"s_add_u32 s{S_SOFF}, s{S_t0}, s{S_t1}")
I(f"v_add_u32 v2, s{S_m0b}, v{V_L16}")
I(f"v_add_u32 v3, {EXCH_LDS}, v2")
I(f"v_add_u32 v2, 98304, v2")
e.wait(lg="rw")
I("s_barrier")
for t in range(4):
    for mu in (1, 2, 3):
        a, off = (2, (mu - 1) * 16384) if mu < 3 else (3, 0)
        I(f"ds_read_b128 {vr(V_ACCA+(mu*4+t)*4)}, v{a} offset:{off+t*1024}", tag=f"rr{t}")
for t in range(4):
    e.wait(lg=f"rr{t}")
    o = V_ACCB + t * 4
    for k in range(2):
        I(f"v_pk_add_f32 {vr(V_ACCA+(4+t)*4+2*k,2)}, {vr(V_ACCA+(4+t)*4+2*k,2)}, {vr(V_ACCA+(8+t)*4+2*k,2)}")
        I(f"v_pk_add_f32 {vr(o+2*k,2)}, {vr(o+2*k,2)}, {vr(V_ACCA+(12+t)*4+2*k,2)}")
    for k in range(2):
        I(f"v_pk_add_f32 {vr(o+2*k,2)}, {vr(o+2*k,2)}, {vr(V_ACCA+(4+t)*4+2*k,2)}")
    I(f"v_cvt_pk_bf16_f32 v{o}, v{o}, v{o+1}")
    I(f"v_cvt_pk_bf16_f32 v{o+1}, v{o+2}, v{o+3}")
    I(f"buffer_store_dwordx2 {vr(o,2)}, v4, {srd(S_OUT)}, s{S_SOFF} offen offset:{t*32}")
if STAMP:
    I("s_waitcnt vmcnt(0)")
    stamp(8)
    I("s_memrealtime s[22:23]")
    I(f"s_add_u32 s{S_FL}, s{S_FL}, {STAMP_OFF-FLAG_OFF}")
    I(f"s_addc_u32 s{S_FL+1}, s{S_FL+1}, 0")
    I(f"s_mov_b32 s{S_FL+2}, 0x100000")
    I("s_waitcnt lgkmcnt(0)")
    I(f"s_lshl_b32 s{S_t0}, s2, 2")
    I(f"s_add_u32 s{S_t0}, s{S_t0}, s{S_w}")
    I(f"s_lshl_b32 s{S_t0}, s{S_t0}, 6")
    I(f"v_mov_b32 v2, s{S_t0}")
    for k in range(9):
        I(f"v_mov_b32 v{8+k}, s{S_STAMP+2*k}")
    I("v_mov_b32 v17, s73")
    I("v_mov_b32 v18, s22")
    I("v_mov_b32 v19, s72")
    I("v_mov_b32 v20, s100")
    I("s_mov_b64 exec, 1")
    for k in range(4):
        I(f"buffer_store_dwordx4 {vr(8+4*k)}, v2, {srd(S_FL)}, 0 offen offset:{16*k}")
if STAMP == 2:
    I("s_cmp_eq_u32 s2, 16")
    I("s_cbranch_scc0 L_end")
    I(f"s_cmp_eq_u32 s{S_w}, 0")
    I("s_cbranch_scc0 L_end")
    srcs = [20, 8, 9, 10, 11, 12, 13, 14, 15, 16]
    words = [1, 2, 3, 5, 6, 7, 9, 10, 11, 13]
    I("v_mov_b32 v2, 0")
    for sr, wd in zip(srcs, words):
        I(f"v_sub_u32 v3, v{sr}, v19")
        I(f"buffer_store_dword v3, v2, {srd(S_DBG)}, 0 offen offset:{4*wd}")
    I("v_sub_u32 v3, v18, v17")
    I(f"buffer_store_dword v3, v2, {srd(S_DBG)}, 0 offen offset:{4*14}")
e.label("L_end")
I("s_endpgm")
e.raw('.section .rodata,"a"')
e.raw(".p2align 6")
e.raw(f".amdhsa_kernel {NAME}_kernel")
e.raw("  .amdhsa_next_free_vgpr 512")
e.raw("  .amdhsa_next_free_sgpr 102")
e.raw("  .amdhsa_accum_offset 256")
e.raw("  .amdhsa_group_segment_fixed_size 0")
e.raw("  .amdhsa_kernarg_size 80")
e.raw("  .amdhsa_user_sgpr_count 2")
e.raw("  .amdhsa_user_sgpr_kernarg_segment_ptr 1")
e.raw("  .amdhsa_system_sgpr_workgroup_id_x 1")
e.raw(".end_amdhsa_kernel")
sys.stdout.write(e.text())
sys.stderr.write(f"instructions {e.nins} nop-states {e.nops}\n")
```

```python
import sys, struct
from emit import Em

NAME = "gated_mix__sliding_local_dilated__dense_activation_relu__prompt"
OPT = dict(padk=-1, stamp=0, rot=1, D=4, codepf=1, side=2, spin=200000)
for a in sys.argv[1:]:
    k, v = a.split("="); OPT[k] = int(v)
STAMP = OPT["stamp"]; D = OPT["D"]

def f2u(x): return struct.unpack("<I", struct.pack("<f", x))[0]

A2_BYTES = 32 * 72 * 4096
FLAG_OFF = 16 << 20
STAMP_OFF = 32 << 20
HALO_LDS = 131072
EXCH_LDS = 147456
GBUF_LDS = 131072
NEG = f2u(-1e30)

e = Em()
I = e.I
def vr(b, n=4): return f"v[{b}:{b+n-1}]"
def ar(b, n=4): return f"a[{b}:{b+n-1}]"

V_XOFF = 2
V_WD = 4
V_BD = 8
V_WR = 12
V_WR3 = 96
V_XR = 100
V_HALO2 = 107
V_GWF = 120
V_BR = 20
V_L16 = 28
V_HALO = 29
V_EXW = 30
V_EXR = 31
V_RING = 32
NRING = 6
V_RINV = 56
V_ACC = 64
V_HACC = 96
V_HX = 100
V_PACK = 108
V_BIAS = 108
V_MASK = 124
V_GW = 128
V_K = 192; V_Q = 208; V_S = 224
A_KP = 224; A_ONES = 240; A_HX = 244
V_ACCB = 128; V_ACCA = 192
A_A2 = 128
V_G = 108
V_A2OFF = 116

S_X, S_W, S_WS, S_OUT, S_W2, S_WO, S_GW, S_FL, S_DBG = 24, 28, 32, 36, 40, 44, 48, 52, 56
S_w, S_r, S_jj, S_rot, S_n2, S_r2, S_hb, S_m0b, S_q = 60, 61, 62, 63, 64, 65, 66, 67, 68
S_t0, S_t1 = 3, 69
S_FLA = 70; S_NOA = 72; S_NONCE = 74; S_NONCE1 = 75; S_POLL = 76; S_CNT = 80; S_SOFF = 81; S_EX3 = 82
S_KG = 84
S_WK = 88
S_COL = 92; S_ST = 93; S_B2 = 94; S_CEXP = 95; S_THR = 96; S_A2 = 97; S_BO = 98
S_STAMP = 4
def srd(b): return f"s[{b}:{b+3}]"

nstamp = [0]
def stamp(idx):
    if STAMP == 3:
        I(f"s_memrealtime s[{S_STAMP+2*idx}:{S_STAMP+2*idx+1}]")
    elif STAMP:
        I(f"s_memtime s[{S_STAMP+2*idx}:{S_STAMP+2*idx+1}]")

e.raw(f"; @launch grid=(256,1,1) block=(256,1,1) lds=163840")
e.raw('.amdgcn_target "amdgcn-amd-amdhsa--gfx950"')
e.raw(".text")
e.raw(f".globl {NAME}_kernel")
e.raw(".p2align 8")
e.raw(f".type {NAME}_kernel,@function")
e.label(f"{NAME}_kernel")
I("s_cmp_ge_u32 s2, 256")
I("s_cbranch_scc1 L_end")
I("s_load_dwordx16 s[4:19], s[0:1], 0")
I("s_load_dwordx4 s[20:23], s[0:1], 64")
if STAMP:
    I("s_memrealtime s[78:79]")
    I("s_memtime s[76:77]")
I("v_lshrrev_b32 v1, 6, v0")
I("v_and_b32 v0, 63, v0")
I(f"v_readfirstlane_b32 s{S_w}, v1")
I(f"s_and_b32 s{S_t0}, s2, 7")
I(f"s_lshr_b32 s{S_jj}, s2, 3")
I(f"s_lshr_b32 s{S_q}, s{S_t0}, 1")
I(f"s_and_b32 s{S_t0}, s{S_t0}, 1")
I(f"s_lshl_b32 s{S_t0}, s{S_t0}, 3")
I(f"s_and_b32 s{S_r}, s{S_jj}, 7")
I(f"s_or_b32 s{S_r}, s{S_r}, s{S_t0}")
I(f"s_lshr_b32 s{S_jj}, s{S_jj}, 3")
if OPT["rot"]:
    I(f"s_add_u32 s{S_rot}, s{S_r}, s{S_jj}")
else:
    I(f"s_mov_b32 s{S_rot}, 0")
I(f"s_lshl_b32 s{S_m0b}, s{S_w}, 12")
I(f"v_lshlrev_b32 v{V_L16}, 4, v0")
if OPT["codepf"]:
    I("s_cmp_lt_u32 s2, 8")
    I("s_cbranch_scc0 L_nopf")
    e.cond_begin()
    I("s_getpc_b64 s[98:99]")
    e.label("L_pc")
    I(f"v_lshlrev_b32 v2, 7, v0")
    I(f"v_lshl_add_u32 v2, v1, 13, v2")
    I(f"v_min_u32 v2, L_end-L_pc, v2")
    I("global_load_dword v127, v2, s[98:99]")
    e.cond_end()
    e.label("L_nopf")
I("v_lshrrev_b32 v32, 4, v0")
I("v_and_b32 v33, 15, v0")
I("v_bfe_u32 v34, v0, 2, 2")
I("v_and_b32 v35, 3, v0")
I("v_lshrrev_b32 v36, 3, v0")
I("v_and_b32 v37, 7, v0")
I("v_lshlrev_b32 v38, 11, v36")
I("v_xor_b32 v39, v37, v32")
I(f"v_lshl_add_u32 v{V_XOFF}, v39, 4, v38")
I("v_xor_b32 v39, 4, v39")
I("v_lshl_add_u32 v38, v39, 4, v38")
I(f"v_add_u32 v{V_XOFF+1}, {14*1024}, v38")
I(f"s_lshl_b32 s{S_t0}, s{S_r}, 17")
I(f"s_lshl_b32 s{S_t1}, s{S_w}, 15")
I(f"s_add_u32 s{S_t0}, s{S_t0}, s{S_t1}")
for g4 in range(4):
    I(f"s_add_u32 s{S_WK+g4}, s{S_rot}, {g4}")
    I(f"s_and_b32 s{S_WK+g4}, s{S_WK+g4}, 3")
    I(f"s_lshl_b32 s{S_KG+g4}, s{S_WK+g4}, 8")
    I(f"s_add_u32 s{S_KG+g4}, s{S_KG+g4}, s{S_t0}")
I("s_waitcnt lgkmcnt(0)")
if STAMP:
    I("s_memtime s[100:101]")
    I("s_mov_b32 s72, s76")
    I("s_mov_b32 s73, s78")
def mk_srd(b, p, nbytes):
    I(f"s_mov_b32 s{b}, s{p}")
    I(f"s_and_b32 s{b+1}, s{p+1}, 0xffff")
    I(f"s_mov_b32 s{b+2}, {nbytes}")
    I(f"s_mov_b32 s{b+3}, 0x20000")
mk_srd(S_X, 4, 2048 * 1024)

def x_items(g4, slots):
    items = []
    for kh in range(2):
        def setup(kh=kh):
            I(f"s_add_u32 m0, s{S_m0b}, {slots[kh]*16384}")
            I(f"s_add_u32 s{S_SOFF}, s{S_KG+g4}, {kh*128}")
        items.append(("setup", setup))
        for i in range(4):
            items.append(("dma", lambda i=i: I(f"buffer_load_dwordx4 v{V_XOFF+(i>>1)}, {srd(S_X)}, s{S_SOFF} offen offset:{i*1024} lds", tag=f"x{g4}")))
    return items
def x_reads(g4, slots):
    for kh in range(2):
        base = slots[kh] * 16384
        for p in range(2):
            for sp in range(2):
                a = V_XR + 2 * p + sp
                if base >= 65536:
                    I(f"v_add_u32 v{V_RINV+2*p+sp}, {base & ~0xffff}, v{a}")
                    a = V_RINV + 2 * p + sp
                I(f"ds_read_b128 {ar((p*16+4*g4+2*kh+sp)*4)}, v{a} offset:{base & 0xffff}", tag=f"xr{g4}")
def run(items):
    for _, f in items: f()
X0 = (3, 4)
run(x_items(0, X0))
I(f"s_add_u32 s{S_FLA}, s22, {FLAG_OFF}")
I(f"s_addc_u32 s{S_FLA+1}, s23, 0")
mk_srd(S_FL, S_FLA, 8192)
mk_srd(S_WS, 22, A2_BYTES)
mk_srd(S_OUT, 18, 2048 * 1024)
mk_srd(S_W2, 14, 1792 * 1024)
mk_srd(S_WO, 8, 512 * 1024)
mk_srd(S_GW, 16, 1024)
mk_srd(S_DBG, 20, 256)
I(f"s_cmp_ge_u32 s{S_jj}, 2")
I(f"s_cselect_b32 s{S_W}, s6, s12")
I(f"s_cselect_b32 s{S_W+1}, s7, s13")
I(f"s_and_b32 s{S_W+1}, s{S_W+1}, 0xffff")
I(f"s_cmp_ge_u32 s{S_jj}, 2")
I(f"s_mov_b32 s{S_W+2}, {512*3584}")
I(f"s_cmov_b32 s{S_W+2}, {512*3072}")
I(f"s_mov_b32 s{S_W+3}, 0x20000")
I(f"s_mov_b32 s{S_t1}, 3584")
I(f"s_cmov_b32 s{S_t1}, 3072")
I(f"s_lshl_b32 s{S_t0}, s{S_w}, 5")
I(f"v_add_u32 v38, s{S_t0}, v36")
I(f"v_mul_lo_u32 v38, v38, s{S_t1}")
I("v_bfe_u32 v39, v36, 1, 1")
I("v_lshrrev_b32 v40, 1, v37")
I("v_xor_b32 v40, v40, v39")
I("v_and_b32 v41, 1, v37")
I("v_lshl_add_u32 v38, v41, 4, v38")
I(f"v_lshl_add_u32 v{V_WD}, v40, 5, v38")
I("v_xor_b32 v42, 2, v40")
I(f"v_lshl_add_u32 v{V_WD+1}, v42, 5, v38")
I(f"s_lshl_b32 s{S_t0}, s{S_t1}, 3")
I(f"s_sub_u32 s{S_t0}, s{S_t0}, 1024")
I(f"v_add_u32 v{V_WD+1}, s{S_t0}, v{V_WD+1}")
I(f"s_lshl_b32 s{S_t0}, s{S_t0}, 1")
I(f"v_add_u32 v{V_WD+2}, s{S_t0}, v{V_WD}")
I(f"v_add_u32 v{V_WD+3}, s{S_t0}, v{V_WD+1}")
I(f"s_lshl_b32 s{S_t1}, s{S_t1}, 7")
for g4 in range(4):
    I(f"s_mul_i32 s{S_WK+g4}, s{S_WK+g4}, s{S_t1}")
I(f"s_and_b32 s{S_hb}, s{S_q}, 1")
I(f"s_lshr_b32 s{S_n2}, s{S_q}, 1")
I(f"s_lshl_b32 s{S_n2}, s{S_n2}, 2")
I(f"s_add_u32 s{S_n2}, s{S_n2}, s{S_jj}")
I(f"s_lshl_b32 s{S_r2}, s{S_r}, 1")
I(f"s_add_u32 s{S_r2}, s{S_r2}, s{S_hb}")

def dma_items(voff, srdb, soff_fn, slot, tag):
    def setup():
        I(f"s_add_u32 m0, s{S_m0b}, {slot*16384}")
        soff_fn()
    items = [("setup", setup)]
    for i in range(4):
        items.append(("dma", lambda i=i: I(f"buffer_load_dwordx4 v{voff+i}, {srd(srdb)}, s{S_SOFF} offen offset:{i*1024} lds", tag=tag)))
    return items

def rest_setup(att):
    for p in range(2):
        I(f"v_xor_b32 v38, {8 if p == 0 else 0}, v33")
        I("v_and_b32 v39, 8, v38")
        I("v_add_u32 v39, v39, v38")
        I("v_lshlrev_b32 v39, 7, v39")
        I("v_lshrrev_b32 v38, 1, v38")
        I("v_xor_b32 v38, v38, v32")
        I("v_lshl_add_u32 v39, v38, 4, v39")
        I(f"v_add_u32 v39, s{S_m0b}, v39")
        I(f"v_add_u32 v{V_XR+2*p}, {p*1024}, v39")
        I(f"v_xor_b32 v{V_XR+2*p+1}, 64, v{V_XR+2*p}")
    I("v_lshl_add_u32 v38, v32, 3, v34")
    I("v_lshlrev_b32 v38, 7, v38")
    I("v_lshl_add_u32 v38, v35, 3, v38")
    I("v_lshrrev_b32 v39, 1, v34")
    I("v_and_b32 v40, 1, v32")
    I("v_lshl_or_b32 v39, v40, 1, v39")
    if att:
        I(f"v_xor_b32 v41, s{S_w}, v39")
    for t in range(4):
        I(f"v_xor_b32 v40, {t}, v{41 if att else 39}")
        I(f"v_lshl_add_u32 v{V_WR+t}, v40, 5, v38")
        I(f"v_add_u32 v{V_WR+4+t}, 0x10000, v{V_WR+t}")
        if not att: I(f"v_add_u32 v{V_WR3+t}, 0x20000, v{V_WR+t}")
    I("v_lshl_add_u32 v38, v32, 2, v34")
    I("v_lshlrev_b32 v38, 7, v38")
    I("v_lshl_add_u32 v38, v35, 3, v38")
    I(f"v_add_u32 v38, s{S_m0b}, v38")
    for t in range(4):
        I(f"v_xor_b32 v40, {t}, v39")
        I(f"v_lshl_add_u32 v{V_BR+t}, v40, 5, v38")
        I(f"v_add_u32 v{V_BR+4+t}, 0x10000, v{V_BR+t}")
    I("v_lshrrev_b32 v38, 1, v36")
    I("v_lshrrev_b32 v40, 1, v37")
    I("v_xor_b32 v40, v40, v38")
    I("v_lshlrev_b32 v38, 10, v36")
    I("v_lshl_add_u32 v38, v40, 5, v38")
    I("v_and_b32 v40, 1, v37")
    I(f"v_lshl_add_u32 v{V_BD}, v40, 4, v38")
    for i in range(1, 4):
        I(f"v_add_u32 v{V_BD+i}, {i*7168}, v{V_BD}")
    I(f"s_mul_i32 s{S_B2}, s{S_w}, {14*32768}")
    I(f"s_lshl_b32 s{S_t0}, s{S_n2}, 7")
    I(f"s_add_u32 s{S_B2}, s{S_B2}, s{S_t0}")
    I(f"s_lshl_b32 s{S_BO}, s{S_w}, 17")
    I(f"s_add_u32 s{S_BO}, s{S_BO}, s{S_t0}")
    I(f"s_mul_i32 s{S_A2}, s{S_r2}, {72*4096}")
    I(f"s_mul_i32 s{S_t0}, s{S_w}, {18*4096}")
    I(f"s_add_u32 s{S_A2}, s{S_A2}, s{S_t0}")
    I(f"s_lshr_b32 s{S_t0}, s{S_w}, 1")
    I(f"s_lshl_b32 s{S_ST}, s{S_r}, 1")
    I(f"s_add_u32 s{S_ST}, s{S_ST}, s{S_t0}")
    I(f"s_mul_i32 s{S_ST}, s{S_ST}, 72")
    I(f"s_mul_i32 s{S_t0}, s{S_q}, 18")
    I(f"s_add_u32 s{S_ST}, s{S_ST}, s{S_t0}")
    I(f"s_and_b32 s{S_t0}, s{S_jj}, 1")
    I(f"s_lshl_b32 s{S_t0}, s{S_t0}, 1")
    I(f"s_add_u32 s{S_ST}, s{S_ST}, s{S_t0}")
    I(f"s_lshl_b32 s{S_ST}, s{S_ST}, 12")
    I(f"s_and_b32 s{S_t0}, s{S_w}, 1")
    I(f"s_lshl_b32 s{S_t0}, s{S_t0}, 11")
    I(f"s_add_u32 s{S_ST}, s{S_ST}, s{S_t0}")
    I(f"s_lshl_b32 s{S_t0}, s{S_r}, 2")
    I(f"s_add_u32 s{S_t0}, s{S_t0}, s{S_w}")
    I(f"s_lshl_b32 s{S_t0}, s{S_t0}, 7")
    I(f"s_add_u32 s{S_FLA}, s{S_FLA}, s{S_t0}")
    I(f"s_addc_u32 s{S_FLA+1}, s{S_FLA+1}, 0")

def stale_flag_load():
    I("v_lshlrev_b32 v38, 7, v34")
    I("v_lshl_add_u32 v38, v35, 2, v38")
    I(f"s_lshl_b32 s{S_t0}, s{S_r}, 9")
    I(f"buffer_load_dword v104, v38, {srd(S_FL)}, s{S_t0} offen sc1", tag="stale")

V_NT = 104
def nonce_propose(lbl):
    e.wait(vm="stale")
    I(f"s_cmp_eq_u32 s{S_w}, 0")
    I(f"s_cbranch_scc0 {lbl}")
    e.cond_begin()
    I(f"v_and_b32 v{V_NT+1}, 15, v0")
    I(f"v_add_u32 v{V_NT+1}, 1, v{V_NT+1}")
    I(f"v_lshrrev_b32 v{V_NT}, v{V_NT+1}, v{V_NT}")
    I(f"v_and_b32 v{V_NT}, 1, v{V_NT}")
    I(f"v_cmp_eq_u32 vcc, 0, v{V_NT}")
    I(f"s_and_b32 s{S_NONCE}, vcc_lo, 0xffff")
    I(f"s_lshl_b32 s{S_NONCE}, s{S_NONCE}, 1")
    I(f"s_or_b32 s{S_NONCE}, s{S_NONCE}, 0x80000000")
    I(f"v_mov_b32 v{V_NT}, s{S_NONCE}")
    I(f"v_mov_b32 v{V_NT+1}, 0")
    I(f"s_lshl_b32 s{S_t0}, s{S_r}, 4")
    I(f"v_mov_b32 v{V_NT+2}, s{S_t0}")
    I("s_mov_b64 exec, 1")
    I(f"buffer_atomic_cmpswap {vr(V_NT,2)}, v{V_NT+2}, {srd(S_DBG)}, 0 offen sc0 sc1")
    I("s_mov_b64 exec, -1")
    e.cond_end()
    e.label(lbl)

def nonce_publish(lbl, lds_addr):
    I(f"s_cmp_eq_u32 s{S_w}, 0")
    I(f"s_cbranch_scc0 {lbl}")
    e.cond_begin()
    I(f"v_readfirstlane_b32 s{S_t0}, v{V_NT}")
    I(f"s_cmp_eq_u32 s{S_t0}, 0")
    I(f"s_cselect_b32 s{S_NONCE}, s{S_NONCE}, s{S_t0}")
    I(f"v_mov_b32 v{V_NT}, s{S_NONCE}")
    I(f"v_mov_b32 v{V_NT+1}, {lds_addr}")
    I(f"ds_write_b32 v{V_NT+1}, v{V_NT}")
    I("s_waitcnt lgkmcnt(0)")
    e.cond_end()
    e.label(lbl)
def nonce_fetch(lds_addr):
    I(f"v_mov_b32 v{V_NT+1}, {lds_addr}")
    I(f"ds_read_b32 v{V_NT}, v{V_NT+1}", tag="nonce")
def nonce_get():
    e.wait(lg="nonce")
    I(f"v_readfirstlane_b32 s{S_NONCE}, v{V_NT}")
    I(f"s_or_b32 s{S_NONCE1}, s{S_NONCE}, 1")

def gw_load():
    I(f"s_lshl_b32 s{S_t0}, s{S_rot}, 2")
    I(f"v_add_u32 v38, s{S_t0}, v33")
    I("v_and_b32 v38, 15, v38")
    I("v_lshlrev_b32 v38, 6, v38")
    I("v_lshl_add_u32 v38, v32, 4, v38")
    I(f"buffer_load_dwordx4 {vr(V_GW)}, v38, {srd(S_GW)}, 0 offen", tag="gw")

uid = [0]
def poll_load():
    I(f"s_load_dwordx4 s[{S_POLL}:{S_POLL+3}], s[{S_FLA}:{S_FLA+1}], 0 glc")
def poll_check(w0, final):
    uid[0] += 1; u = uid[0]
    I(f"s_mov_b32 s{S_CNT}, 0")
    e.label(f"L_pw{u}")
    e.wait(lg="all")
    I(f"s_xor_b32 s{S_t0}, s{S_POLL+w0}, s{S_NONCE1}")
    I(f"s_xor_b32 s{S_t1}, s{S_POLL+w0+1}, s{S_NONCE1}")
    I(f"s_or_b32 s{S_t0}, s{S_t0}, s{S_t1}")
    I(f"s_cmp_le_u32 s{S_t0}, {0 if final else 1}")
    I(f"s_cbranch_scc1 L_pd{u}")
    poll_load()
    I(f"s_add_u32 s{S_CNT}, s{S_CNT}, 1")
    I(f"s_cmp_lt_u32 s{S_CNT}, {OPT['spin']}")
    I(f"s_cbranch_scc1 L_pw{u}")
    I("s_waitcnt lgkmcnt(0)")
    e.label(f"L_pd{u}")
def flag_store(sval, lbl, pre=None):
    I(f"s_cmp_eq_u32 s{S_w}, 0")
    I(f"s_cbranch_scc0 {lbl}")
    e.cond_begin()
    snap = e.snapshot()
    if pre: pre()
    I(f"s_lshl_b32 s{S_t0}, s{S_r}, 2")
    I(f"s_add_u32 s{S_t0}, s{S_t0}, s{S_q}")
    I(f"s_lshl_b32 s{S_t0}, s{S_t0}, 5")
    I(f"s_add_u32 s{S_t0}, s{S_t0}, s{S_jj}")
    I(f"s_lshl_b32 s{S_t0}, s{S_t0}, 2")
    I(f"v_mov_b32 v2, s{S_t0}")
    I(f"v_mov_b32 v3, s{sval}")
    I("s_mov_b64 exec, 1")
    I(f"buffer_store_dword v3, v2, {srd(S_FL)}, 0 offen sc1")
    I("s_mov_b64 exec, -1")
    e.restore(snap)
    e.cond_end()
    e.label(lbl)

def b2_group(n):
    slot = n % 6
    if n < 14:
        return dma_items(V_BD, S_W2, lambda: I(f"s_add_u32 s{S_SOFF}, s{S_B2}, {n*32768}"), slot, f"b2_{n}")
    return dma_items(V_BD, S_WO, lambda: I(f"s_add_u32 s{S_SOFF}, s{S_BO}, {(n-14)*32768}"), slot, f"b2_{n}")

MF = "v_mfma_f32_16x16x32_bf16"
MF16 = "v_mfma_f32_16x16x16_bf16"
def acc(t, p): return V_ACC + (t * 2 + p) * 4
def xfr(p, s): return ar((p * 16 + s) * 4)

class Stream:
    def __init__(self, steps, plan, xslots, bar_hooks):
        self.steps = steps; self.plan = plan; self.bar_hooks = bar_hooks; self.xslots = xslots
        self.side = []
        self.dma = []
        self.after = {}
        self.nh = 0
        self.per = 1; self.acc = 0
    def add(self, ready, deadline, fns):
        for f in fns: self.side.append([ready, deadline, f])
    def pop_dma(self):
        while self.dma:
            kind, f = self.dma.pop(0)
            f()
            if kind == "dma": return
    def issue_reads(self, k):
        st = self.steps[k]
        if st["first"]:
            i = st["sub"]
            pre, post = self.bar_hooks.get(i, (None, None))
            while self.dma: self.pop_dma()
            e.wait(vm=st["need"])
            if i < 4: x_reads(i, self.xslots[i])
            if pre: pre()
            I("s_barrier")
            if post: post()
            self.dma = list(self.plan(i))
            n = sum(1 for kind, _ in self.dma if kind == "dma")
            self.per = n / 13.0; self.acc = 0.0
        slot = st["slot"]
        a = (V_WR, V_WR + 4, V_WR3)[slot >> 2] + st["T"]
        off = (slot & 3) * 16384 + st["ks"] * 4096
        b = V_RING + (k % NRING) * 4
        I(f"ds_read_b64_tr_b16 {vr(b,2)}, v{a} offset:{off}", tag=f"w{k}")
        I(f"ds_read_b64_tr_b16 {vr(b+2,2)}, v{a} offset:{off+512}", tag=f"w{k}")
        if st.get("halo") is not None:
            hb = A_HX + (self.nh % 3) * 4; self.nh += 1
            st["hreg"] = hb
            s_ = st["halo"]
            I(f"ds_read_b128 {ar(hb)}, v{V_HALO2 if s_ & 1 else V_HALO} offset:{(s_>>1)*2048}", tag=f"w{k}")
    def pump(self, k, n):
        c = 0
        while self.side and c < n and self.side[0][0] <= k:
            self.side.pop(0)[2](); c += 1
    def run(self, rate):
        n = len(self.steps)
        for k in range(min(D, n)): self.issue_reads(k)
        for k in range(n):
            st = self.steps[k]
            while any(s[1] <= k for s in self.side):
                self.side.pop(0)[2]()
            e.wait(lg=f"w{k}")
            W = vr(V_RING + (k % NRING) * 4)
            mfs = st["mf"](W, st)
            I(mfs[0])
            if k + D < n: self.issue_reads(k + D)
            r = rate(k)
            for m in mfs[1:]:
                I(m)
                self.pump(k, r)
            self.acc += self.per
            while self.dma and self.acc >= 1.0:
                self.pop_dma(); self.acc -= 1.0
            if k in self.after: self.after[k]()
        while self.dma: self.pop_dma()
    def drain(self):
        while self.side: self.side.pop(0)[2]()
def xfree(g4):
    return [("setup", lambda: e.wait(lg=f"xr{g4}"))]

I(f"s_cmp_ge_u32 s{S_jj}, 2")
I("s_cbranch_scc1 L_att")
snap0 = e.snapshot()
hist0 = list(e.hist); pos0 = e.pos

def ffn():
    e.comment("---- FFN tile ----")
    XS = [X0, (0, 1), (8, 9), X0]
    GS = [2, 5, 6, 7, 0, 1, 2, 8, 9, 5, 3, 4, 6, 7]
    I(f"s_mul_i32 s{S_COL}, s{S_q}, 896")
    I(f"s_lshl_b32 s{S_t0}, s{S_jj}, 7")
    I(f"s_add_u32 s{S_COL}, s{S_COL}, s{S_t0}")
    def grp(i):
        if i < 12:
            c, u = divmod(i, 4)
            def so():
                I(f"s_add_u32 s{S_SOFF}, s{S_WK+u}, s{S_COL}")
                if c: I(f"s_add_u32 s{S_SOFF}, s{S_SOFF}, {c*256}")
            return dma_items(V_WD, S_W, so, GS[i], f"g{i}")
        if i < 14:
            v = i - 12
            def so():
                if v == 0:
                    I("v_lshrrev_b32 v2, 2, v0")
                    I("v_and_b32 v2, 1, v2")
                    I(f"v_mul_u32_u24 v3, {256*3584-64}, v2")
                    I(f"v_add_u32 v{V_WD}, v{V_WD}, v3")
                    I(f"v_add_u32 v{V_WD+2}, v{V_WD+2}, v3")
                    I(f"v_sub_u32 v3, {256*3584-64}, v3")
                    I(f"v_add_u32 v{V_WD+1}, v{V_WD+1}, v3")
                    I(f"v_add_u32 v{V_WD+3}, v{V_WD+3}, v3")
                    I(f"v_mul_u32_u24 v2, {2*256*3584}, v2")
                    I(f"v_sub_u32 v2, {256*3584}, v2")
                    I(f"s_cmp_ge_u32 s{S_WK}, {256*3584}")
                    I(f"s_cselect_b32 s{S_t0}, 1, 0")
                else:
                    I(f"s_cmp_ge_u32 s{S_WK}, {256*3584}")
                    I(f"s_cselect_b32 s{S_t1}, 1, 0")
                    I(f"s_cmp_ge_u32 s{S_WK+1}, {256*3584}")
                    I(f"s_cselect_b32 s{S_t0}, 1, 0")
                    I(f"s_sub_u32 s{S_t0}, s{S_t0}, s{S_t1}")
                I(f"s_sub_u32 s{S_t1}, 0, s{S_t0}")
                I(f"v_mad_i32_i24 v{V_WD}, v2, s{S_t0}, v{V_WD}")
                I(f"v_mad_i32_i24 v{V_WD+2}, v2, s{S_t0}, v{V_WD+2}")
                I(f"v_mad_i32_i24 v{V_WD+1}, v2, s{S_t1}, v{V_WD+1}")
                I(f"v_mad_i32_i24 v{V_WD+3}, v2, s{S_t1}, v{V_WD+3}")
                I(f"s_min_u32 s{S_SOFF}, s{S_WK+v}, s{S_WK+v+2}")
                I(f"s_mul_i32 s{S_t0}, s{S_q}, 896")
                I(f"s_add_u32 s{S_SOFF}, s{S_SOFF}, s{S_t0}")
                I(f"s_lshl_b32 s{S_t0}, s{S_jj}, 6")
                I(f"s_add_u32 s{S_SOFF}, s{S_SOFF}, s{S_t0}")
                I(f"s_add_u32 s{S_SOFF}, s{S_SOFF}, 768")
            return dma_items(V_WD, S_W, so, GS[i], f"g{i}")
    def plan(i):
        if i == 0: return xfree(0) + x_items(3, XS[3])
        if i == 1: return xfree(1) + grp(4) + grp(5)
        if i == 2: return grp(6) + xfree(2) + grp(7) + grp(8)
        if i == 3: return grp(9) + xfree(3) + grp(10) + grp(11)
        if i == 4: return grp(12)
        if i == 5: return grp(13)
        return {6: 0, 7: 1, 8: 2, 11: 5, 12: 3, 13: 4}.get(i) is not None and b2_group({6: 0, 7: 1, 8: 2, 11: 5, 12: 3, 13: 4}[i]) or []
    run(grp(0))
    stale_flag_load()
    run(x_items(1, XS[1])); run(grp(1)); run(x_items(2, XS[2])); run(grp(2)); run(grp(3))
    gw_load()
    rest_setup(False)
    stamp(0)
    nonce_propose("L_np_f")
    steps = []
    for i in range(14):
        c, u = divmod(i, 4)
        for h in range(2):
            for ks in range(4):
                for tt in range(2):
                    T = 2 * h + tt
                    if i < 12:
                        s = 4 * u + ks; ta = T; zero = (u == 0 and ks == 0)
                    else:
                        s = 4 * (u + 2 * h) + ks; ta = tt; zero = (u == 0 and h == 0 and ks == 0)
                    def mf(W, st, s=s, ta=ta, zero=zero):
                        return [f"{MF} {vr(acc(ta,p))}, {W}, {xfr(p,s)}, {'0' if zero else vr(acc(ta,p))}" for p in range(2)]
                    need = [f"g{i}"] + ([f"x{u}"] if i < 4 else [])
                    steps.append(dict(sub=i, slot=GS[i], T=T, ks=ks, mf=mf, first=(h == 0 and ks == 0 and tt == 0), need=need))
    def l1_pre():
        e.wait(vm="st1_1")
    def l1_post():
        flag_store(S_NONCE, "L_fl1")
    hooks = {11: (l1_pre, l1_post), 9: (None, lambda: nonce_publish("L_npub_f", GBUF_LDS + 2048)), 10: (None, lambda: nonce_fetch(GBUF_LDS + 2048)), 12: (nonce_get, None), 1: (None, lambda: stamp(1)), 4: (None, lambda: stamp(2))}
    S = Stream(steps, plan, XS, hooks)
    def epi(t0, n, tag, setno):
        fns = []
        for p in range(2):
            pk = V_PACK + setno * 8 + p * 4
            for tt in range(2):
                for hh in range(2):
                    a = acc(t0 + tt, p) + 2 * hh
                    fns.append(lambda pk=pk, tt=tt, hh=hh, a=a: I(f"v_cvt_pk_bf16_f32 v{pk+2*tt+hh}, v{a}, v{a+1}"))
        late = []
        for p in range(2):
            pk = V_PACK + setno * 8 + p * 4
            for k in range(4):
                late.append(lambda pk=pk, k=k: I(f"v_pk_max_i16 v{pk+k}, v{pk+k}, 0"))
            def st(pk=pk, p=p):
                I(f"s_add_u32 s{S_t0}, s{S_ST}, {n*4096}") if n >= 0 else None
                I(f"buffer_store_dwordx4 {vr(pk)}, v{V_L16}, {srd(S_WS)}, s{S_t0} offen offset:{p*1024} sc1", tag=tag)
            late.append(st)
        return fns, late
    for c in range(3):
        for h in range(2):
            k = (4 * c + 3) * 16 + 8 * h + 7
            def aft(k=k, c=c, h=h):
                a, b = epi(2 * h, 4 * c + h, f"st{c}_{h}", h)
                S.add(k + 2, k + 9, a)
                S.add(k + 2, k + 17, b)
            S.after[k] = aft
    S.run(lambda k: OPT["side"])
    S.drain()
    stamp(3)
    poll_load()
    I(f"s_lshl_b32 s{S_t1}, s{S_jj}, 12")
    I(f"s_sub_u32 s{S_ST}, s{S_ST}, s{S_t1}")
    a, b = epi(0, 12, "stL", 0)
    for f in a + b: f()

ffn()
I("s_branch L_join")
snap_f = e.snapshot()

e.label("L_att")
e.restore(snap0); e.hist = []
def att():
    e.comment("---- attention tile ----")
    I(f"s_lshl_b32 s{S_COL}, s{S_q}, 1")
    I(f"s_add_u32 s{S_COL}, s{S_COL}, s{S_jj}")
    I(f"s_sub_u32 s{S_COL}, s{S_COL}, 2")
    I(f"s_lshl_b32 s{S_COL}, s{S_COL}, 7")
    CH = [1024, 0, 2048]
    XS = [X0, (7, 0), (2, 9), X0]
    GS = [1, 5, 6, 7, 0, 1, 2, 5, 3, 4, 6, 7]
    def grp(i):
        if i < 12:
            c, u = divmod(i, 4)
            def so():
                I(f"s_add_u32 s{S_SOFF}, s{S_WK+u}, s{S_COL}")
                if CH[c]: I(f"s_add_u32 s{S_SOFF}, s{S_SOFF}, {CH[c]}")
            return dma_items(V_WD, S_W, so, GS[i], f"g{i}")
    def plan(i):
        if i == 0: return xfree(0) + x_items(3, XS[3])
        if i == 1: return xfree(1) + grp(3) + grp(4)
        if i == 2: return grp(5) + xfree(2) + grp(6)
        if i == 3: return grp(7) + xfree(3) + grp(8) + grp(9)
        if i == 4: return grp(10)
        if i == 5: return grp(11)
        return b2_group({6: 0, 7: 1, 8: 2, 9: 5, 10: 3, 11: 4}[i])
    run(grp(0))
    I(f"s_lshl_b32 s{S_t0}, s{S_r}, 17")
    I(f"s_sub_u32 s{S_t0}, s{S_t0}, 16384")
    I(f"v_add_u32 v38, s{S_t0}, v{V_XOFF}")
    I(f"s_sub_u32 s{S_t0}, s{S_t0}, {13*1024}")
    I(f"v_add_u32 v39, s{S_t0}, v{V_XOFF+1}")
    I("v_max_i32 v38, 0, v38")
    I("v_max_i32 v39, 0, v39")
    I(f"s_add_u32 s{S_t0}, s{S_rot}, s{S_w}")
    I(f"s_and_b32 s{S_t0}, s{S_t0}, 3")
    I(f"s_lshl_b32 s{S_t0}, s{S_t0}, 8")
    for i in range(4):
        kh, rh = divmod(i, 2)
        I(f"s_add_u32 m0, s{S_m0b}, {HALO_LDS + i*1024 - kh*128}")
        I(f"buffer_load_dwordx4 v{38+rh}, {srd(S_X)}, s{S_t0} offen offset:{kh*128} lds", tag="hx")
    stale_flag_load()
    run(x_items(1, XS[1])); run(grp(1)); run(x_items(2, XS[2])); run(grp(2))
    gw_load()
    rest_setup(True)
    I("v_lshrrev_b32 v38, 1, v33")
    I("v_xor_b32 v38, v38, v32")
    I("v_lshlrev_b32 v38, 4, v38")
    I("v_lshl_add_u32 v38, v33, 7, v38")
    I(f"v_add_u32 v{V_HALO}, {HALO_LDS}, v38")
    I(f"v_xor_b32 v{V_HALO2}, 64, v{V_HALO}")
    I(f"s_mul_i32 s{S_t0}, s{S_w}, 5120")
    I(f"s_add_u32 s{S_t0}, s{S_t0}, {EXCH_LDS}")
    I(f"v_add_u32 v{V_EXR}, s{S_t0}, v{V_L16}")
    I(f"v_add_u32 v{V_EXW}, 4096, v{V_EXR}")
    I(f"s_cmp_eq_u32 s{S_w}, 3")
    I(f"s_cselect_b64 s[{S_EX3}:{S_EX3+1}], 0, -1")
    I(f"s_mov_b32 s{S_CEXP}, {f2u(0.25*1.4426950408889634)}")
    I(f"s_or_b32 s{S_t0}, s{S_r}, s{S_w}")
    I(f"s_cmp_eq_u32 s{S_t0}, 0")
    I(f"s_cselect_b32 s{S_THR}, -16, -9")
    I(f"v_mov_b32 v40, {NEG}")
    for p in range(2):
        x8 = 8 if p == 0 else 0
        I(f"v_xor_b32 v38, {x8}, v33")
        I("v_lshlrev_b32 v39, 2, v32")
        I(f"v_xor_b32 v39, {x8}, v39")
        I("v_sub_u32 v38, v38, v39")
        for r in range(4):
            I(f"v_subrev_u32 v39, {r}, v38")
            I("v_cmp_lt_u32 vcc, 7, v39")
            I(f"v_cndmask_b32 v{V_BIAS+p*8+r}, 0, v40, vcc")
            I(f"v_cmp_lt_i32 vcc, s{S_THR}, v39")
            I(f"v_cndmask_b32 v{V_BIAS+p*8+4+r}, 0, v40, vcc")
            I("v_ashrrev_i32 v41, 31, v39")
            if r % 2 == 0:
                I("v_and_b32 v42, 0xffff, v41")
            else:
                I("v_and_b32 v41, 0xffff0000, v41")
                I("v_or_b32 v42, v42, v41")
                I(f"v_not_b32 v{V_MASK+2*p+r//2}, v42")
    I("v_mov_b32 v40, 0x3f803f80")
    for k in range(4):
        I(f"v_accvgpr_write_b32 a{A_ONES+k}, v40")
    stamp(0)
    nonce_propose("L_np_a")
    steps = []
    for i in range(12):
        c, u = divmod(i, 4)
        for h in range(2):
            for ks in range(4):
                for tt in range(2):
                    T = 2 * h + tt
                    s = 4 * u + ks; zero = (u == 0 and ks == 0)
                    halo = s if (T == 0 and c != 1) else None
                    def mf(W, st, s=s, T=T, zero=zero, c=c):
                        out = []
                        for p in range(2):
                            a, b = (W, xfr(p, s)) if c != 2 else (xfr(p, s), W)
                            out.append(f"{MF} {vr(acc(T,p))}, {a}, {b}, {'0' if zero else vr(acc(T,p))}")
                        if st.get("halo") is not None:
                            a, b = (W, ar(st["hreg"])) if c != 2 else (ar(st["hreg"]), W)
                            out.append(f"{MF} {vr(V_HACC)}, {a}, {b}, {'0' if zero else vr(V_HACC)}")
                        return out
                    need = [f"g{i}"] + ([f"x{u}"] if i < 4 else []) + (["hx"] if i == 0 else [])
                    steps.append(dict(sub=i, slot=GS[i], T=T, ks=ks, mf=mf, halo=halo, first=(h == 0 and ks == 0 and tt == 0), need=need))
    def kp_reads():
        for t in range(4):
            I(f"v_xor_b32 v{2+t%2}, {t*1024}, v{V_EXR}")
            I(f"ds_read_b128 {ar(A_KP+4*t)}, v{2+t%2}", tag="kp")
    hooks = {6: (lambda: e.wait(lg="kw"), kp_reads), 8: (lambda: e.wait(lg="kp"), None),
             9: (lambda: nonce_publish("L_npub_a", EXCH_LDS), lambda: nonce_fetch(EXCH_LDS)), 10: (nonce_get, None), 1: (None, lambda: stamp(1)), 4: (None, lambda: stamp(2))}
    S = Stream(steps, plan, XS, hooks)
    def cvt2(d, a):
        return [lambda: I(f"v_cvt_pk_bf16_f32 v{d}, v{a}, v{a+1}"), lambda: I(f"v_cvt_pk_bf16_f32 v{d+1}, v{a+2}, v{a+3}")]
    def exw(t, txt, tag):
        def f():
            I(f"v_xor_b32 v2, {t*1024}, v{V_EXW}")
            I(f"s_mov_b64 exec, s[{S_EX3}:{S_EX3+1}]")
            I(txt, tag=tag)
            I("s_mov_b64 exec, -1")
        return f
    def halo_w(tag):
        def f():
            I(f"v_cvt_pk_bf16_f32 v{V_HACC}, v{V_HACC}, v{V_HACC+1}")
            I(f"v_cvt_pk_bf16_f32 v{V_HACC+1}, v{V_HACC+2}, v{V_HACC+3}")
            I(f"v_subrev_u32 v3, s{S_m0b}, v{V_EXR}")
            I(f"ds_write2_b64 v3, {vr(V_HACC,2)}, {vr(V_HACC,2)} offset0:0 offset1:1", tag=tag)
        return f
    def VV(t): return V_S + 8 * t
    def epi(c, h):
        fns = []
        for t in (2 * h, 2 * h + 1):
            for p in range(2):
                if c == 0: d = V_K + 4 * t + 2 * p
                elif c == 1: d = V_Q + 4 * t + 2 * p
                else: d = VV(t) + 6 * p
                fns += cvt2(d, acc(t, p))
        late = []
        for t in (2 * h, 2 * h + 1):
            if c == 0: late.append(exw(t, f"ds_write_b128 v2, {vr(V_K+4*t)}", "kw"))
            if c == 2: late.append(exw(t, f"ds_write2_b64 v2, {vr(VV(t),2)}, {vr(VV(t)+6,2)} offset0:0 offset1:1", "vw"))
        if h == 0 and c != 1: late.append(halo_w("kw" if c == 0 else "vw"))
        return fns, late
    def Preg(t, p): return (V_K if p == 0 else V_Q) + 4 * t
    def softmax(b):
        F = []
        A = lambda s: F.append(lambda: I(s))
        units = [(2 * b + (i >> 1), i & 1) for i in range(4)]
        Sc = lambda i: V_S + 8 * i
        Sp = lambda i: V_S + 8 * i + 4
        if b == 0: F.append(lambda: e.wait(lg="kp"))
        for i, (t, p) in enumerate(units):
            A(f"{MF16} {vr(Sc(i))}, {vr(V_K+4*t+2*p,2)}, {vr(V_Q+4*t+2*p,2)}, {vr(V_BIAS+8*p)}")
            A(f"{MF16} {vr(Sp(i))}, {ar(A_KP+4*t+2*p,2)}, {vr(V_Q+4*t+2*p,2)}, {vr(V_BIAS+8*p+4)}")
        for i in range(4):
            for r in range(4): A(f"v_max_f32 v{Sc(i)+r}, v{Sc(i)+r}, v{Sp(i)+r}")
        for i in range(4):
            A(f"v_cvt_pk_bf16_f32 v{Sp(i)}, v{Sc(i)}, v{Sc(i)+1}")
            A(f"v_cvt_pk_bf16_f32 v{Sp(i)+1}, v{Sc(i)+2}, v{Sc(i)+3}")
            A(f"v_lshlrev_b32 v{Sc(i)}, 16, v{Sp(i)}")
            A(f"v_and_b32 v{Sc(i)+1}, 0xffff0000, v{Sp(i)}")
            A(f"v_lshlrev_b32 v{Sc(i)+2}, 16, v{Sp(i)+1}")
            A(f"v_and_b32 v{Sc(i)+3}, 0xffff0000, v{Sp(i)+1}")
            A(f"v_max3_f32 v{Sp(i)+2}, v{Sc(i)}, v{Sc(i)+1}, v{Sc(i)+2}")
            A(f"v_max_f32 v{Sp(i)+2}, v{Sp(i)+2}, v{Sc(i)+3}")
        m = [Sp(i) + 2 for i in range(4)]
        A(f"v_permlane32_swap_b32 v{m[0]}, v{m[1]}")
        A(f"v_permlane32_swap_b32 v{m[2]}, v{m[3]}")
        A(f"v_max_f32 v{m[0]}, v{m[0]}, v{m[1]}")
        A(f"v_max_f32 v{m[2]}, v{m[2]}, v{m[3]}")
        A(f"v_permlane16_swap_b32 v{m[0]}, v{m[2]}")
        A(f"v_max_f32 v{m[0]}, v{m[0]}, v{m[2]}")
        A(f"v_mul_f32 v{m[2]}, s{S_CEXP}, v{m[0]}")
        A(f"v_mul_f32 v{m[0]}, s{S_CEXP}, v{m[0]}")
        A(f"v_permlane16_swap_b32 v{m[0]}, v{m[2]}")
        A(f"v_mov_b32 v{m[1]}, v{m[0]}")
        A(f"v_mov_b32 v{m[3]}, v{m[2]}")
        A(f"v_permlane32_swap_b32 v{m[0]}, v{m[1]}")
        A(f"v_permlane32_swap_b32 v{m[2]}, v{m[3]}")
        for i in range(4):
            for r in range(4): A(f"v_fma_f32 v{Sc(i)+r}, v{Sc(i)+r}, s{S_CEXP}, -v{m[i]}")
            for r in range(4): A(f"v_exp_f32 v{Sc(i)+r}, v{Sc(i)+r}")
        for i, (t, p) in enumerate(units):
            P = Preg(t, p)
            cur, prv = (P, P + 2) if p == 0 else (P + 2, P)
            A(f"v_cvt_pk_bf16_f32 v{prv}, v{Sc(i)}, v{Sc(i)+1}")
            A(f"v_cvt_pk_bf16_f32 v{prv+1}, v{Sc(i)+2}, v{Sc(i)+3}")
            A(f"v_and_b32 v{cur}, v{prv}, v{V_MASK+2*p}")
            A(f"v_and_b32 v{cur+1}, v{prv+1}, v{V_MASK+2*p+1}")
            A(f"v_xor_b32 v{prv}, v{prv}, v{cur}")
            A(f"v_xor_b32 v{prv+1}, v{prv+1}, v{cur+1}")
        for i, (t, p) in enumerate(units):
            A(f"{MF} {vr(Sp(i))}, {ar(A_ONES)}, {vr(Preg(t,p))}, 0")
        for i, (t, p) in enumerate(units):
            A(f"v_rcp_f32 v{V_RINV+2*t+p}, v{Sp(i)}")
        return F
    for c in range(3):
        for h in range(2):
            k = (4 * c + 3) * 16 + 8 * h + 7
            if c == 2 and h == 1: continue
            def aft(k=k, c=c, h=h):
                a, b = epi(c, h)
                S.add(k + 2, k + 9, a)
                S.add(k + 2, k + 9 if (h == 0) else k + 17, b)
                if c == 1 and h == 1:
                    S.add(k + 2, 128 + 56, softmax(0) + softmax(1))
            S.after[k] = aft
    S.run(lambda k: OPT["side"] if k < 128 else 5)
    S.drain()
    stamp(3)
    poll_load()
    a, b = epi(2, 1)
    for f in a + b: f()
    e.wait(lg="vw")
    I("s_barrier")
    for t in range(4):
        I(f"v_xor_b32 v{2+t%2}, {t*1024}, v{V_EXR}")
        I(f"ds_read_b128 {vr(VV(t)+2)}, v{2+t%2}", tag=f"vp{t}")
    for t in range(4):
        e.wait(lg=f"vp{t}")
        for p in range(2):
            I(f"{MF} {vr(acc(t,p))}, {vr(VV(t)+4*p)}, {vr(Preg(t,p))}, 0")
    I(f"s_lshr_b32 s{S_t0}, s{S_w}, 1")
    I(f"s_lshl_b32 s{S_t0}, s{S_t0}, 12")
    I(f"s_add_u32 s{S_ST}, s{S_ST}, {14*4096}")
    I(f"s_xor_b32 s{S_t1}, s{S_t0}, 4096")
    I(f"s_add_u32 s{S_t0}, s{S_t0}, s{S_ST}")
    I(f"s_add_u32 s{S_t1}, s{S_t1}, s{S_ST}")
    for t in range(4):
        for p in range(2):
            for r in range(4):
                I(f"v_mul_f32 v{acc(t,p)+r}, v{V_RINV+2*t+p}, v{acc(t,p)+r}")
            pk = V_RING + (t >> 1) * 8 + p * 4 + (t & 1) * 2
            for f in cvt2(pk, acc(t, p)): f()
    I(f"s_bitcmp1_b32 s{S_w}, 0")
    I("s_cbranch_scc0 L_noswap")
    e.cond_begin()
    for k in range(4):
        I(f"v_swap_b32 v{V_RING+4*k}, v{V_RING+4*k+2}")
        I(f"v_swap_b32 v{V_RING+4*k+1}, v{V_RING+4*k+3}")
    e.cond_end()
    e.label("L_noswap")
    for pair in range(2):
        for p in range(2):
            I(f"buffer_store_dwordx4 {vr(V_RING+pair*8+p*4)}, v{V_L16}, {srd(S_WS)}, s{S_t0 if pair == 0 else S_t1} offen offset:{p*1024} sc1", tag="stL")
att()
snap_a = e.snapshot()

e.label("L_join")
e.join([snap_f, snap_a])
e.hist = []
I("s_nop 1")
stamp(4)
poll_check(0, False)
for mu in range(4):
    I(f"s_lshl_b32 s{S_t0}, s{S_w}, 10")
    I(f"s_xor_b32 s{S_t0}, s{S_t0}, {mu*1024}")
    I(f"v_add_u32 v{V_A2OFF+mu}, s{S_t0}, v{V_L16}")
def a2_loads(n):
    out = [lambda: I(f"s_add_u32 s{S_COL}, s{S_A2}, {n*4096}")]
    for mu in range(4):
        out.append(lambda mu=mu: I(f"buffer_load_dwordx4 {ar(A_A2+(n%6)*16+mu*4)}, v{V_A2OFF+mu}, {srd(S_WS)}, s{S_COL} offen sc1", tag=f"a2_{n}"))
    return out
for n in range(6):
    for f in a2_loads(n): f()
e.wait(vm="gw")
def gwb(s, k):
    I(f"v_mov_b32_dpp v{V_GW+4+4*(s&1)+k}, v{V_GW+k} row_newbcast:{s} row_mask:0xf bank_mask:0xf")
for k in range(4): gwb(0, k)
for s in range(16):
    for p in range(2):
        I(f"{MF} {vr(V_ACC+4*p)}, {vr(V_GW+4+4*(s&1))}, {xfr(p,s)}, {'0' if s == 0 else vr(V_ACC+4*p)}")
        if s < 15 and p == 0:
            for k in range(4): gwb(s + 1, k)
Z = V_ACC + 8
I(f"v_cvt_pk_bf16_f32 v{Z}, v{V_ACC}, v{V_ACC+4}")
I(f"v_lshlrev_b32 v{Z+2}, 16, v{Z}")
I(f"v_and_b32 v{Z+4}, 0xffff0000, v{Z}")
for p in range(2):
    I(f"v_mul_f32 v{Z+2+2*p}, {f2u(-1.4426950408889634)}, v{Z+2+2*p}")
for p in range(2):
    I(f"v_exp_f32 v{Z+2+2*p}, v{Z+2+2*p}")
for p in range(2):
    I(f"v_add_f32 v{Z+2+2*p}, 1.0, v{Z+2+2*p}")
for p in range(2):
    I(f"v_rcp_f32 v{Z+2+2*p}, v{Z+2+2*p}")
I(f"v_cvt_pk_bf16_f32 v{Z}, v{Z+2}, v{Z+4}")
I(f"v_lshlrev_b32 v{Z+2}, 16, v{Z}")
I(f"v_and_b32 v{Z+4}, 0xffff0000, v{Z}")
for p in range(2):
    I(f"v_sub_f32 v{Z+3+2*p}, 1.0, v{Z+2+2*p}")
I(f"v_cvt_pk_bf16_f32 v{Z}, v{Z+3}, v{Z+5}")
I(f"v_lshlrev_b32 v{Z+3}, 16, v{Z}")
I(f"v_and_b32 v{Z+5}, 0xffff0000, v{Z}")
I(f"s_lshl_b32 s{S_t0}, s{S_w}, 8")
I(f"s_add_u32 s{S_t0}, s{S_t0}, {GBUF_LDS}")
I(f"v_lshl_add_u32 v2, v0, 3, s{S_t0}")
I("s_mov_b64 exec, 0xffff")
I(f"ds_write_b64 v2, {vr(Z+2,2)}", tag="gwr")
I(f"ds_write_b64 v2, {vr(Z+4,2)} offset:128", tag="gwr")
I("s_mov_b64 exec, -1")
e.wait(vm="stL", lg="gwr")
I("s_barrier")
flag_store(S_NONCE1, "L_fl2")
stamp(5)
I("v_and_b32 v2, 15, v0")
I(f"s_lshl_b32 s{S_t0}, s{S_hb}, 2")
I(f"s_add_u32 s{S_t0}, s{S_t0}, s{S_w}")
I(f"s_lshl_b32 s{S_t0}, s{S_t0}, 7")
I(f"s_add_u32 s{S_t0}, s{S_t0}, {GBUF_LDS}")
I(f"v_lshl_add_u32 v2, v2, 3, s{S_t0}")
for mu in range(4):
    I(f"v_xor_b32 v3, {mu*128}, v2")
    I(f"ds_read_b64 {vr(V_G+2*mu,2)}, v3", tag="g")

def b2_reads(n):
    slot = n % 6
    out = []
    for t in range(4):
        a = V_BR + (4 if slot >= 4 else 0) + t
        off = (slot & 3) * 16384
        b = V_RING + (n & 1) * 16 + t * 4
        out.append(lambda a=a, off=off, b=b, t=t: I(f"ds_read_b64_tr_b16 {vr(b,2)}, v{a} offset:{off}", tag=f"f{n}_{t}"))
        out.append(lambda a=a, off=off, b=b, t=t: I(f"ds_read_b64_tr_b16 {vr(b+2,2)}, v{a} offset:{off+2048}", tag=f"f{n}_{t}"))
    return out
def acc2(n, mu, t): return (V_ACCB if n < 14 else V_ACCA) + (mu * 4 + t) * 4
e.wait(vm="b2_0")
for f in b2_reads(0): f()
poll_load()
bscale = []
for mu in range(4):
    for k in range(16):
        r = V_ACCB + mu * 16 + k
        bscale.append(lambda r=r, mu=mu: I(f"v_mul_f32 v{r}, v{V_G+2*mu+1}, v{r}"))
for n in range(18):
    nxt = []
    if n + 1 < 18:
        e.wait(vm=f"b2_{n+1}")
        nxt = b2_reads(n + 1)
    e.wait(vm=f"a2_{n}")
    zero = n in (0, 14)
    for t in range(4):
        e.wait(lg=f"f{n}_{t}")
        for mu in range(4):
            d = vr(acc2(n, mu, t))
            I(f"{MF} {d}, {vr(V_RING+(n&1)*16+t*4)}, {ar(A_A2+(n%6)*16+mu*4)}, {'0' if zero else d}")
            if nxt and mu % 2 == 0: nxt.pop(0)()
            if n >= 15 and bscale:
                if n == 15 and t == 0 and mu == 0: e.wait(lg="g")
                bscale.pop(0)()
                if bscale: bscale.pop(0)()
    if n + 6 < 18:
        run(b2_group(n + 6))
        if n == 2: poll_check(0, True)
        if n == 8: poll_check(2, True)
        for f in a2_loads(n + 6): f()
        if n == 6: poll_load()
    if n == 5: stamp(6)
while bscale: bscale.pop(0)()
stamp(7)
REG = [None, 98304, 114688, EXCH_LDS]
for mu in (1, 2, 3, 0):
    if mu:
        I(f"s_xor_b32 s{S_t0}, s{S_m0b}, {mu*4096}")
        I(f"s_add_u32 s{S_t0}, s{S_t0}, {REG[mu]}")
        I(f"v_add_u32 v2, s{S_t0}, v{V_L16}")
    for t in range(4):
        for k in range(2):
            rb = V_ACCB + (mu * 4 + t) * 4 + 2 * k; ra = V_ACCA + (mu * 4 + t) * 4 + 2 * k
            I(f"v_pk_fma_f32 {vr(rb,2)}, {vr(ra,2)}, {vr(V_G+2*mu,2)}, {vr(rb,2)} op_sel_hi:[1,0,1]")
        if mu:
            I(f"ds_write_b128 v2, {vr(V_ACCB+(mu*4+t)*4)} offset:{t*1024}", tag="rw")
I(f"s_and_b32 s{S_t0}, s{S_w}, 1")
I(f"s_xor_b32 s{S_t1}, s{S_t0}, 1")
I(f"s_lshl_b32 s{S_t1}, s{S_t1}, 3")
I("v_and_b32 v4, 15, v0")
I(f"v_xor_b32 v4, s{S_t1}, v4")
I(f"v_lshl_add_u32 v4, v4, 1, s{S_t0}")
I("v_lshlrev_b32 v4, 10, v4")
I("v_lshrrev_b32 v5, 4, v0")
I("v_lshl_add_u32 v4, v5, 3, v4")
I(f"s_lshl_b32 s{S_t0}, s{S_r2}, 16")
I(f"s_lshr_b32 s{S_t1}, s{S_w}, 1")
I(f"s_lshl_b32 s{S_t1}, s{S_t1}, 15")
I(f"s_add_u32 s{S_t0}, s{S_t0}, s{S_t1}")
I(f"s_lshl_b32 s{S_t1}, s{S_n2}, 7")
I(f"s_add_u32 s{S_SOFF}, s{S_t0}, s{S_t1}")
I(f"v_add_u32 v2, s{S_m0b}, v{V_L16}")
I(f"v_add_u32 v3, {EXCH_LDS}, v2")
I(f"v_add_u32 v2, 98304, v2")
e.wait(lg="rw")
I("s_barrier")
for t in range(4):
    for mu in (1, 2, 3):
        a, off = (2, (mu - 1) * 16384) if mu < 3 else (3, 0)
        I(f"ds_read_b128 {vr(V_ACCA+(mu*4+t)*4)}, v{a} offset:{off+t*1024}", tag=f"rr{t}")
for t in range(4):
    e.wait(lg=f"rr{t}")
    o = V_ACCB + t * 4
    for k in range(2):
        I(f"v_pk_add_f32 {vr(V_ACCA+(4+t)*4+2*k,2)}, {vr(V_ACCA+(4+t)*4+2*k,2)}, {vr(V_ACCA+(8+t)*4+2*k,2)}")
        I(f"v_pk_add_f32 {vr(o+2*k,2)}, {vr(o+2*k,2)}, {vr(V_ACCA+(12+t)*4+2*k,2)}")
    for k in range(2):
        I(f"v_pk_add_f32 {vr(o+2*k,2)}, {vr(o+2*k,2)}, {vr(V_ACCA+(4+t)*4+2*k,2)}")
    I(f"v_cvt_pk_bf16_f32 v{o}, v{o}, v{o+1}")
    I(f"v_cvt_pk_bf16_f32 v{o+1}, v{o+2}, v{o+3}")
    I(f"buffer_store_dwordx2 {vr(o,2)}, v4, {srd(S_OUT)}, s{S_SOFF} offen offset:{t*32}")
if STAMP:
    I("s_waitcnt vmcnt(0)")
    stamp(8)
    I("s_memrealtime s[22:23]")
    I(f"s_add_u32 s{S_FL}, s{S_FL}, {STAMP_OFF-FLAG_OFF}")
    I(f"s_addc_u32 s{S_FL+1}, s{S_FL+1}, 0")
    I(f"s_mov_b32 s{S_FL+2}, 0x100000")
    I("s_waitcnt lgkmcnt(0)")
    I(f"s_lshl_b32 s{S_t0}, s2, 2")
    I(f"s_add_u32 s{S_t0}, s{S_t0}, s{S_w}")
    I(f"s_lshl_b32 s{S_t0}, s{S_t0}, 6")
    I(f"v_mov_b32 v2, s{S_t0}")
    for k in range(9):
        I(f"v_mov_b32 v{8+k}, s{S_STAMP+2*k}")
    I("v_mov_b32 v17, s73")
    I("v_mov_b32 v18, s22")
    I("v_mov_b32 v19, s72")
    I("v_mov_b32 v20, s100")
    I("s_mov_b64 exec, 1")
    for k in range(4):
        I(f"buffer_store_dwordx4 {vr(8+4*k)}, v2, {srd(S_FL)}, 0 offen offset:{16*k}")
if STAMP == 3:
    if OPT["padk"] >= 0:
        I(f"s_sub_u32 s24, s{S_STAMP+2*OPT['padk']}, s73")
    else:
        I("s_mov_b32 s24, 0")
    I("s_add_u32 s24, s24, 6000")
    e.label("L_pad")
    I("s_memrealtime s[26:27]")
    I("s_waitcnt lgkmcnt(0)")
    I("s_sub_u32 s25, s26, s73")
    I("s_cmp_lt_u32 s25, s24")
    I("s_cbranch_scc1 L_pad")
if STAMP == 2:
    I("s_cmp_eq_u32 s2, 16")
    I("s_cbranch_scc0 L_end")
    I(f"s_cmp_eq_u32 s{S_w}, 0")
    I("s_cbranch_scc0 L_end")
    srcs = [20, 8, 9, 10, 11, 12, 13, 14, 15, 16]
    words = [1, 2, 3, 5, 6, 7, 9, 10, 11, 13]
    I("v_mov_b32 v2, 0")
    for sr, wd in zip(srcs, words):
        I(f"v_sub_u32 v3, v{sr}, v19")
        I(f"buffer_store_dword v3, v2, {srd(S_DBG)}, 0 offen offset:{4*wd}")
    I("v_sub_u32 v3, v18, v17")
    I(f"buffer_store_dword v3, v2, {srd(S_DBG)}, 0 offen offset:{4*14}")
e.label("L_end")
I("s_endpgm")
e.raw('.section .rodata,"a"')
e.raw(".p2align 6")
e.raw(f".amdhsa_kernel {NAME}_kernel")
e.raw("  .amdhsa_next_free_vgpr 512")
e.raw("  .amdhsa_next_free_sgpr 102")
e.raw("  .amdhsa_accum_offset 256")
e.raw("  .amdhsa_group_segment_fixed_size 0")
e.raw("  .amdhsa_kernarg_size 80")
e.raw("  .amdhsa_user_sgpr_count 2")
e.raw("  .amdhsa_user_sgpr_kernarg_segment_ptr 1")
e.raw("  .amdhsa_system_sgpr_workgroup_id_x 1")
e.raw(".end_amdhsa_kernel")
sys.stdout.write(e.text())
sys.stderr.write(f"instructions {e.nins} nop-states {e.nops}\n")
```

```python
import sys, struct
from emit import Em

NAME = "gated_mix__sliding_local_dilated__dense_activation_relu__prompt"
OPT = dict(diag=0, tlb=1, padk=-1, stamp=0, rot=2, D=4, codepf=1, side=2, sidev=5, spin=200000, touch=1, touchw=0, tb=4, r0=13, r1=13, r2=13, rn=8, rv=14, p2r=3, lround=1, x1pre=8)
STAMPS = ["b0", "b4", "b8", "p1end", "p2bar", "n3", "n11", "p2end"]
for a in sys.argv[1:]:
    k, v = a.split("=")
    if k == "pts": STAMPS = v.split(",")
    else: OPT[k] = int(v)
STAMP = OPT["stamp"]; D = OPT["D"]

def f2u(x): return struct.unpack("<I", struct.pack("<f", x))[0]

A2_BYTES = 32 * 72 * 4096
FLAG_OFF = 16 << 20
STAMP_OFF = 32 << 20
SLOT = 16384
HALO_LDS = 8 * SLOT
EXCH_LDS = 9 * SLOT
GBUF_LDS = 8 * SLOT
NEG = f2u(-1e30)

e = Em()
I = e.I
def vr(b, n=4): return f"v[{b}:{b+n-1}]"
def ar(b, n=4): return f"a[{b}:{b+n-1}]"

V_XOFF = 2
V_WD = 4
V_BD = 8
V_WR = 12
V_BR = 20
V_L16 = 28
V_HALO = 29
V_EXW = 30
V_EXR = 31
V_RING = 32
NRING = 6
V_RINV = 56
V_ACC = 64
V_HACC = 96
V_WR3 = 96
V_XR = 100
V_A2OFF = 100
V_NT = 104
V_HALO2 = 107
V_PACK = 108
V_BIAS = 108
V_MASK = 124
V_GW = 128
V_DUMMY = 140
V_KP = 144; V_ONES = 160; V_HX = 164
V_GACC = 176
V_GZ = 184
V_K = 192; V_Q = 208; V_S = 224
V_ACCB = 128; V_ACCA = 192
V_G = 108
A_PK = 192
def a2reg(n):
    if n < 4: return 128 + 16 * n
    if n < 12: return 16 * (n - 4)
    if n < 16: return 128 + 16 * (n - 12)
    return 192 + 16 * (n - 16)
B2SLOT = {4: 0, 5: 1, 6: 2, 7: 5, 8: 3, 9: 4, 10: 6, 11: 7, 12: 9, 13: 0, 14: 1, 15: 2, 16: 5, 17: 3}

S_X, S_W, S_WS, S_OUT, S_W2, S_WO, S_GW, S_FL, S_DBG = 24, 28, 32, 36, 40, 44, 48, 52, 56
S_w, S_r, S_jj, S_rot, S_n2, S_r2, S_hb, S_m0b, S_q = 60, 61, 62, 63, 64, 65, 66, 67, 68
S_t0, S_t1 = 3, 69
S_FLA = 70; S_NOA = 0; S_CAS = 58; S_NONCE = 74; S_NONCE3 = 75; S_POLL = 76; S_CNT = 80; S_SOFF = 81; S_EX3 = 82
S_KG = 84
S_WK = 88
S_COL = 92; S_ST = 93; S_B2 = 94; S_CEXP = 95; S_THR = 96; S_A2 = 97; S_BO = 98; S_FOFF = 99
S_STAMP = 4
def srd(b): return f"s[{b}:{b+3}]"

def stamp(name):
    if name == "end": idx = 8
    elif name in STAMPS: idx = STAMPS.index(name)
    else: return
    if STAMP == 3:
        I(f"s_memrealtime s[{S_STAMP+2*idx}:{S_STAMP+2*idx+1}]")
    elif STAMP:
        I(f"s_memtime s[{S_STAMP+2*idx}:{S_STAMP+2*idx+1}]")

e.raw(f"; @launch grid=(256,1,1) block=(256,1,1) lds=163840")
e.raw('.amdgcn_target "amdgcn-amd-amdhsa--gfx950"')
e.raw(".text")
e.raw(f".globl {NAME}_kernel")
e.raw(".p2align 8")
e.raw(f".type {NAME}_kernel,@function")
e.label(f"{NAME}_kernel")
I("s_cmp_ge_u32 s2, 256")
I("s_cbranch_scc1 L_end")
I("s_load_dwordx16 s[4:19], s[0:1], 0")
I("s_load_dwordx4 s[20:23], s[0:1], 64")
if STAMP:
    I("s_memrealtime s[78:79]")
    I("s_memtime s[76:77]")
I("v_lshrrev_b32 v1, 6, v0")
I("v_and_b32 v0, 63, v0")
if OPT["codepf"]:
    I("s_cmp_lt_u32 s2, 8")
    I("s_cbranch_scc0 L_nopf")
    e.cond_begin()
    I("s_getpc_b64 s[82:83]")
    e.label("L_pc")
    I(f"v_lshlrev_b32 v2, 7, v0")
    I(f"v_lshl_add_u32 v2, v1, 13, v2")
    I(f"v_min_u32 v3, L_end-L_pc, v2")
    I(f"global_load_dword v{V_DUMMY}, v3, s[82:83]")
    I(f"v_add_u32 v2, 0x8000, v2")
    I(f"v_min_u32 v3, L_end-L_pc, v2")
    I(f"global_load_dword v{V_DUMMY+1}, v3, s[82:83]")
    e.cond_end()
    e.label("L_nopf")
I(f"v_readfirstlane_b32 s{S_w}, v1")
I(f"s_and_b32 s{S_t0}, s2, 7")
I(f"s_lshr_b32 s{S_jj}, s2, 3")
I(f"s_lshr_b32 s{S_q}, s{S_t0}, 1")
I(f"s_and_b32 s{S_t0}, s{S_t0}, 1")
I(f"s_lshl_b32 s{S_t0}, s{S_t0}, 3")
I(f"s_and_b32 s{S_r}, s{S_jj}, 7")
I(f"s_or_b32 s{S_r}, s{S_r}, s{S_t0}")
I(f"s_lshr_b32 s{S_jj}, s{S_jj}, 3")
if OPT["rot"] == 2:
    I(f"s_mov_b32 s{S_rot}, s{S_r}")
elif OPT["rot"] == 3:
    I(f"s_lshr_b32 s{S_rot}, s{S_jj}, 1")
    I(f"s_lshl_b32 s{S_rot}, s{S_rot}, 1")
    I(f"s_add_u32 s{S_rot}, s{S_rot}, s{S_r}")
elif OPT["rot"]:
    I(f"s_add_u32 s{S_rot}, s{S_r}, s{S_jj}")
else:
    I(f"s_mov_b32 s{S_rot}, 0")
I(f"s_lshl_b32 s{S_m0b}, s{S_w}, 12")
I(f"v_lshlrev_b32 v{V_L16}, 4, v0")
I("v_lshrrev_b32 v32, 4, v0")
I("v_and_b32 v33, 15, v0")
I("v_bfe_u32 v34, v0, 2, 2")
I("v_and_b32 v35, 3, v0")
I("v_lshrrev_b32 v36, 3, v0")
I("v_and_b32 v37, 7, v0")
I("v_lshlrev_b32 v38, 11, v36")
I("v_xor_b32 v39, v37, v32")
I(f"v_lshl_add_u32 v{V_XOFF}, v39, 4, v38")
I("v_xor_b32 v39, 4, v39")
I("v_lshl_add_u32 v38, v39, 4, v38")
I(f"v_add_u32 v{V_XOFF+1}, {14*1024}, v38")
I(f"s_lshl_b32 s{S_t0}, s{S_r}, 17")
I(f"s_lshl_b32 s{S_t1}, s{S_w}, 15")
I(f"s_add_u32 s{S_t0}, s{S_t0}, s{S_t1}")
for g4 in range(4):
    I(f"s_add_u32 s{S_WK+g4}, s{S_rot}, {g4}")
    I(f"s_and_b32 s{S_WK+g4}, s{S_WK+g4}, 3")
    I(f"s_lshl_b32 s{S_KG+g4}, s{S_WK+g4}, 8")
    I(f"s_add_u32 s{S_KG+g4}, s{S_KG+g4}, s{S_t0}")
I(f"s_mul_i32 s{S_COL}, s{S_q}, 896")
I(f"s_lshl_b32 s{S_t0}, s{S_q}, 8")
I(f"s_sub_u32 s{S_t0}, s{S_t0}, 256")
I(f"s_cmp_ge_u32 s{S_jj}, 2")
I(f"s_cselect_b32 s{S_COL}, s{S_t0}, s{S_COL}")
I(f"s_mov_b32 s{S_W+2}, {512*3584}")
I(f"s_cmov_b32 s{S_W+2}, {512*3072}")
I(f"s_mov_b32 s{S_t1}, 3584")
I(f"s_cmov_b32 s{S_t1}, 3072")
I(f"s_lshl_b32 s{S_t0}, s{S_jj}, 7")
I(f"s_add_u32 s{S_COL}, s{S_COL}, s{S_t0}")
I(f"s_lshl_b32 s{S_t0}, s{S_w}, 5")
I(f"v_add_u32 v38, s{S_t0}, v36")
I(f"v_mul_lo_u32 v38, v38, s{S_t1}")
I("v_bfe_u32 v39, v36, 1, 1")
I("v_lshrrev_b32 v40, 1, v37")
I("v_xor_b32 v40, v40, v39")
I("v_and_b32 v41, 1, v37")
I("v_lshl_add_u32 v38, v41, 4, v38")
I(f"v_lshl_add_u32 v{V_WD}, v40, 5, v38")
I("v_xor_b32 v42, 2, v40")
I(f"v_lshl_add_u32 v{V_WD+1}, v42, 5, v38")
I(f"s_lshl_b32 s{S_t0}, s{S_t1}, 3")
I(f"s_sub_u32 s{S_t0}, s{S_t0}, 1024")
I(f"v_add_u32 v{V_WD+1}, s{S_t0}, v{V_WD+1}")
I(f"s_lshl_b32 s{S_t0}, s{S_t0}, 1")
I(f"v_add_u32 v{V_WD+2}, s{S_t0}, v{V_WD}")
I(f"v_add_u32 v{V_WD+3}, s{S_t0}, v{V_WD+1}")
I(f"s_lshl_b32 s{S_t1}, s{S_t1}, 7")
for g4 in range(4):
    I(f"s_mul_i32 s{S_WK+g4}, s{S_WK+g4}, s{S_t1}")
I(f"s_mov_b32 s{S_X+2}, {2048*1024}")
I(f"s_mov_b32 s{S_X+3}, 0x20000")
I(f"s_mov_b32 s{S_W+3}, 0x20000")
I(f"s_lshl_b32 s{S_t0}, s{S_rot}, 2")
I(f"v_add_u32 v43, s{S_t0}, v33")
I("v_and_b32 v43, 15, v43")
I("v_lshlrev_b32 v43, 6, v43")
I("v_lshl_add_u32 v43, v32, 4, v43")

if OPT["touchw"]:
    I(f"s_lshl_b32 s{S_t0}, s{S_r}, 5")
    I(f"s_lshl_b32 s{S_POLL+0 if not STAMP else S_CNT}, s{S_w}, 3")
    I(f"s_add_u32 s{S_t0}, s{S_t0}, s{S_POLL+0 if not STAMP else S_CNT}")
    I("v_lshrrev_b32 v45, 2, v0")
    I("v_and_b32 v45, 7, v45")
    I(f"v_add_u32 v45, s{S_t0}, v45")
    I(f"s_lshr_b32 s{S_t0}, s{S_t1}, 7")
    I(f"v_mul_lo_u32 v45, v45, s{S_t0}")
    I(f"s_cmp_ge_u32 s{S_jj}, 2")
    I(f"s_cselect_b32 s{S_t0}, 11, 8")
    I(f"v_lshlrev_b32 v46, s{S_t0}, v35")
    I(f"s_cselect_b32 s{S_t0}, 0, 256")
    I(f"v_add3_u32 v45, v45, v46, s{S_t0}")

def x_items(g4, slots, mb=-1):
    items = []
    for kh in range(2):
        def setup(kh=kh):
            I(f"s_add_u32 m0, s{S_m0b}, {slots[kh]*SLOT}")
            I(f"s_add_u32 s{S_SOFF}, s{S_KG+g4}, {kh*128}")
        items.append(("s", setup, mb))
        for i in range(4):
            items.append(("v", lambda i=i: I(f"buffer_load_dwordx4 v{V_XOFF+(i>>1)}, {srd(S_X)}, s{S_SOFF} offen offset:{i*1024} lds", tag=f"x{g4}"), mb))
    return items
def x_reads(g4, slots):
    for kh in range(2):
        base = slots[kh] * SLOT
        for p in range(2):
            for sp in range(2):
                a = V_XR + 2 * p + sp
                if base >= 65536:
                    I(f"v_add_u32 v{V_RINV+2*p+sp}, {base & ~0xffff}, v{a}")
                    a = V_RINV + 2 * p + sp
                I(f"ds_read_b128 {ar((p*16+4*g4+2*kh+sp)*4)}, v{a} offset:{base & 0xffff}", tag=f"xr{g4}")
def run(items):
    for it in items: it[1]()
def dma_items(voff, srdb, soff_fn, slot, tag, mb=-1):
    def setup():
        I(f"s_add_u32 m0, s{S_m0b}, {slot*SLOT}")
        soff_fn()
    items = [("s", setup, mb)]
    for i in range(4):
        items.append(("v", lambda i=i: I(f"buffer_load_dwordx4 v{voff+i}, {srd(srdb)}, s{S_SOFF} offen offset:{i*1024} lds", tag=tag), mb))
    return items
def wgrp(i, slot, coff, mb=-1):
    u = i % 4
    def so():
        I(f"s_add_u32 s{S_SOFF}, s{S_WK+u}, s{S_COL}")
        if coff: I(f"s_add_u32 s{S_SOFF}, s{S_SOFF}, {coff}")
    return dma_items(V_WD, S_W, so, slot, f"g{i}", mb)
def lgw(tag, mb=-1): return [("s", lambda: e.wait(lg=tag), mb)]

I("s_waitcnt lgkmcnt(0)")
if STAMP:
    I("s_memtime s[100:101]")
    I("s_mov_b32 s72, s76")
    I("s_mov_b32 s73, s78")
def mk_srd(b, p, nbytes):
    I(f"s_mov_b32 s{b}, s{p}")
    I(f"s_and_b32 s{b+1}, s{p+1}, 0xffff")
    I(f"s_mov_b32 s{b+2}, {nbytes}")
    I(f"s_mov_b32 s{b+3}, 0x20000")
I(f"s_mov_b32 s{S_X}, s4")
I(f"s_and_b32 s{S_X+1}, s5, 0xffff")
if OPT["tlb"]:
    I(f"s_mul_i32 s{S_t0}, s{S_r}, {2*72*4096}")
    for p in (6, 12, 16, 14, 8, 18):
        I(f"s_load_dword s{S_CNT}, s[{p}:{p+1}], 0")
    I(f"s_lshl_b32 s{S_SOFF}, s2, 9")
    I(f"s_add_u32 s{S_t0}, s{S_t0}, s{S_SOFF}")
    I(f"s_lshl_b32 s{S_SOFF}, s{S_w}, 7")
    I(f"s_add_u32 s{S_t0}, s{S_t0}, s{S_SOFF}")
    I(f"s_load_dword s{S_CNT}, s[22:23], s{S_t0} glc")
X0 = (3, 4)
X1 = (7, 0)
G0, G1 = 1, 5
I(f"s_cmp_ge_u32 s{S_jj}, 2")
I(f"s_cselect_b32 s{S_W}, s6, s12")
I(f"s_cselect_b32 s{S_W+1}, s7, s13")
I(f"s_cselect_b32 s{S_t1}, 1024, 0")
if OPT["touchw"]:
    I("s_mov_b32 exec_lo, 0x77777777")
    I("s_cmov_b32 exec_lo, 0x33333333")
    I("s_mov_b32 exec_hi, 0")
I(f"s_and_b32 s{S_W+1}, s{S_W+1}, 0xffff")
if OPT["touchw"]:
    I(f"buffer_load_dword v{V_DUMMY+2}, v45, {srd(S_W)}, s{S_COL} offen", tag="touchw")
    I("s_mov_b64 exec, -1")
if OPT["diag"]:
    mk_srd(S_GW, 16, 1024); mk_srd(S_WS, 22, A2_BYTES); mk_srd(S_OUT, 18, 2048 * 1024); mk_srd(S_W2, 14, 1792 * 1024); mk_srd(S_WO, 8, 512 * 1024)
    _mk = mk_srd
    def mk_srd(b, p, n):
        if b == S_FL: _mk(b, p, n)
    stamp("d0")
run(x_items(0, X0))
if OPT["diag"] == 1:
    stamp("d1"); I("s_waitcnt vmcnt(7)"); stamp("d2"); I("s_waitcnt vmcnt(0)"); stamp("d3")
def g_first(i, slot):
    def so():
        I(f"s_add_u32 s{S_SOFF}, s{S_WK+i}, s{S_COL}")
        I(f"s_add_u32 s{S_SOFF}, s{S_SOFF}, s{S_t1}")
    return dma_items(V_WD, S_W, so, slot, f"g{i}")
run(g_first(0, G0))
if OPT["diag"] == 1:
    I("s_waitcnt vmcnt(0)"); stamp("d4")
if OPT["diag"] == 2:
    stamp("d1"); I("s_waitcnt vmcnt(11)"); stamp("d2"); I("s_waitcnt vmcnt(4)"); stamp("d3"); I("s_waitcnt vmcnt(0)"); stamp("d4")
I(f"s_cmp_ge_u32 s{S_jj}, 2")
I("s_cbranch_scc0 L_nohalo")
e.cond_begin()
I(f"s_lshl_b32 s{S_t0}, s{S_r}, 17")
I(f"s_sub_u32 s{S_t0}, s{S_t0}, 16384")
I(f"v_add_u32 v38, s{S_t0}, v{V_XOFF}")
I(f"s_sub_u32 s{S_t0}, s{S_t0}, {13*1024}")
I(f"v_add_u32 v39, s{S_t0}, v{V_XOFF+1}")
I("v_max_i32 v38, 0, v38")
I("v_max_i32 v39, 0, v39")
I(f"s_add_u32 s{S_t0}, s{S_rot}, s{S_w}")
I(f"s_and_b32 s{S_t0}, s{S_t0}, 3")
I(f"s_lshl_b32 s{S_t0}, s{S_t0}, 8")
for i in range(4):
    kh, rh = divmod(i, 2)
    I(f"s_add_u32 m0, s{S_m0b}, {HALO_LDS + i*1024 - kh*128}")
    I(f"buffer_load_dwordx4 v{38+rh}, {srd(S_X)}, s{S_t0} offen offset:{kh*128} lds")
e.cond_end()
e.label("L_nohalo")
mk_srd(S_GW, 16, 1024)
I(f"buffer_load_dwordx4 {vr(V_GW)}, v43, {srd(S_GW)}, 0 offen", tag="gw")
if OPT["diag"]:
    I("s_waitcnt vmcnt(0)"); stamp("d5")
I(f"s_add_u32 s{S_FLA}, s22, {FLAG_OFF}")
I(f"s_addc_u32 s{S_FLA+1}, s23, 0")
mk_srd(S_FL, S_FLA, 8192)
mk_srd(S_WS, 22, A2_BYTES)
mk_srd(S_OUT, 18, 2048 * 1024)
mk_srd(S_W2, 14, 1792 * 1024)
mk_srd(S_WO, 8, 512 * 1024)
I(f"s_lshl_b32 s{S_t0}, s{S_r}, 4")
I(f"s_add_u32 s{S_NOA}, s20, s{S_t0}")
I(f"s_addc_u32 s{S_NOA+1}, s21, 0")
STALE = [S_POLL, S_GW, 56, 20]
I(f"s_cmp_eq_u32 s{S_w}, 0")
I("s_cbranch_scc0 L_nostale")
e.cond_begin()
I(f"s_lshl_b32 s{S_t0}, s{S_r}, 9")
for k in range(4):
    I(f"s_load_dwordx4 s[{STALE[k]}:{STALE[k]+3}], s[{S_FLA}:{S_FLA+1}], s{S_t0} glc")
    if k < 3: I(f"s_add_u32 s{S_t0}, s{S_t0}, 128")
e.cond_end()
e.label("L_nostale")
stamp("issued")
I(f"s_and_b32 s{S_hb}, s{S_q}, 1")
I(f"s_lshr_b32 s{S_n2}, s{S_q}, 1")
I(f"s_lshl_b32 s{S_n2}, s{S_n2}, 2")
I(f"s_add_u32 s{S_n2}, s{S_n2}, s{S_jj}")
I(f"s_lshl_b32 s{S_r2}, s{S_r}, 1")
I(f"s_add_u32 s{S_r2}, s{S_r2}, s{S_hb}")
for p in range(2):
    I(f"v_xor_b32 v38, {8 if p == 0 else 0}, v33")
    I("v_and_b32 v39, 8, v38")
    I("v_add_u32 v39, v39, v38")
    I("v_lshlrev_b32 v39, 7, v39")
    I("v_lshrrev_b32 v38, 1, v38")
    I("v_xor_b32 v38, v38, v32")
    I("v_lshl_add_u32 v39, v38, 4, v39")
    I(f"v_add_u32 v39, s{S_m0b}, v39")
    I(f"v_add_u32 v{V_XR+2*p}, {p*1024}, v39")
    I(f"v_xor_b32 v{V_XR+2*p+1}, 64, v{V_XR+2*p}")
I("v_lshl_add_u32 v38, v32, 3, v34")
I("v_lshlrev_b32 v38, 7, v38")
I("v_lshl_add_u32 v38, v35, 3, v38")
I("v_lshrrev_b32 v39, 1, v34")
I("v_and_b32 v40, 1, v32")
I("v_lshl_or_b32 v39, v40, 1, v39")
I(f"s_cmp_ge_u32 s{S_jj}, 2")
I(f"s_cselect_b32 s{S_t0}, s{S_w}, 0")
I(f"v_xor_b32 v41, s{S_t0}, v39")
for t in range(4):
    I(f"v_xor_b32 v40, {t}, v41")
    I(f"v_lshl_add_u32 v{V_WR+t}, v40, 5, v38")
    I(f"v_add_u32 v{V_WR+4+t}, 0x10000, v{V_WR+t}")
    I(f"v_add_u32 v{V_WR3+t}, 0x20000, v{V_WR+t}")
I("v_lshl_add_u32 v38, v32, 2, v34")
I("v_lshlrev_b32 v38, 7, v38")
I("v_lshl_add_u32 v38, v35, 3, v38")
I(f"v_add_u32 v38, s{S_m0b}, v38")
for t in range(4):
    I(f"v_xor_b32 v40, {t}, v39")
    I(f"v_lshl_add_u32 v{V_BR+t}, v40, 5, v38")
    I(f"v_add_u32 v{V_BR+4+t}, 0x10000, v{V_BR+t}")
I("v_lshrrev_b32 v38, 1, v36")
I("v_lshrrev_b32 v40, 1, v37")
I("v_xor_b32 v40, v40, v38")
I("v_lshlrev_b32 v38, 10, v36")
I("v_lshl_add_u32 v38, v40, 5, v38")
I("v_and_b32 v40, 1, v37")
I(f"v_lshl_add_u32 v{V_BD}, v40, 4, v38")
for i in range(1, 4):
    I(f"v_add_u32 v{V_BD+i}, {i*7168}, v{V_BD}")
I(f"s_mul_i32 s{S_B2}, s{S_w}, {14*32768}")
I(f"s_lshl_b32 s{S_t0}, s{S_n2}, 7")
I(f"s_add_u32 s{S_B2}, s{S_B2}, s{S_t0}")
I(f"s_lshl_b32 s{S_BO}, s{S_w}, 17")
I(f"s_add_u32 s{S_BO}, s{S_BO}, s{S_t0}")
I(f"s_mul_i32 s{S_A2}, s{S_r2}, {72*4096}")
I(f"s_mul_i32 s{S_t0}, s{S_w}, {18*4096}")
I(f"s_add_u32 s{S_A2}, s{S_A2}, s{S_t0}")
I(f"s_lshr_b32 s{S_t0}, s{S_w}, 1")
I(f"s_lshl_b32 s{S_ST}, s{S_r}, 1")
I(f"s_add_u32 s{S_ST}, s{S_ST}, s{S_t0}")
I(f"s_mul_i32 s{S_ST}, s{S_ST}, 72")
I(f"s_mul_i32 s{S_t0}, s{S_q}, 18")
I(f"s_add_u32 s{S_ST}, s{S_ST}, s{S_t0}")
I(f"s_and_b32 s{S_t0}, s{S_jj}, 1")
I(f"s_lshl_b32 s{S_t0}, s{S_t0}, 1")
I(f"s_add_u32 s{S_ST}, s{S_ST}, s{S_t0}")
I(f"s_lshl_b32 s{S_ST}, s{S_ST}, 12")
I(f"s_and_b32 s{S_t0}, s{S_w}, 1")
I(f"s_lshl_b32 s{S_t0}, s{S_t0}, 11")
I(f"s_add_u32 s{S_ST}, s{S_ST}, s{S_t0}")
I(f"s_lshl_b32 s{S_t0}, s{S_r}, 2")
I(f"s_add_u32 s{S_FOFF}, s{S_t0}, s{S_q}")
I(f"s_lshl_b32 s{S_FOFF}, s{S_FOFF}, 5")
I(f"s_add_u32 s{S_FOFF}, s{S_FOFF}, s{S_jj}")
I(f"s_lshl_b32 s{S_FOFF}, s{S_FOFF}, 2")
I(f"s_add_u32 s{S_t0}, s{S_t0}, s{S_w}")
I(f"s_lshl_b32 s{S_t0}, s{S_t0}, 7")
I(f"s_add_u32 s{S_FLA}, s{S_FLA}, s{S_t0}")
I(f"s_addc_u32 s{S_FLA+1}, s{S_FLA+1}, 0")

def nonce_propose(lbl):
    I("s_waitcnt lgkmcnt(0)")
    I(f"s_cmp_eq_u32 s{S_w}, 0")
    I(f"s_cbranch_scc0 {lbl}")
    e.cond_begin()
    I(f"s_mov_b32 s{S_NONCE}, 0x80000000")
    for i in range(16):
        I(f"s_andn2_b32 s{S_t0}, {4 << i}, s{STALE[i>>2]+(i&3)}")
        I(f"s_or_b32 s{S_NONCE}, s{S_NONCE}, s{S_t0}")
    I(f"s_mov_b32 s{S_CAS}, s{S_NONCE}")
    I(f"s_mov_b32 s{S_CAS+1}, 0")
    I(f"s_atomic_cmpswap s[{S_CAS}:{S_CAS+1}], s[{S_NOA}:{S_NOA+1}], 0 glc")
    e.cond_end()
    e.label(lbl)
def nonce_pick():
    I("s_waitcnt lgkmcnt(0)")
    I(f"s_cmp_eq_u32 s{S_CAS}, 0")
    I(f"s_cselect_b32 s{S_NONCE}, s{S_NONCE}, s{S_CAS}")
def nonce_publish(lbl, lds_addr):
    I(f"s_cmp_eq_u32 s{S_w}, 0")
    I(f"s_cbranch_scc0 {lbl}")
    e.cond_begin()
    nonce_pick()
    I(f"v_mov_b32 v{V_NT}, s{S_NONCE}")
    I(f"v_mov_b32 v{V_NT+1}, {lds_addr}")
    I(f"ds_write_b32 v{V_NT+1}, v{V_NT}")
    e.cond_end()
    e.label(lbl)
def nonce_fetch(lds_addr):
    I(f"v_mov_b32 v{V_NT+1}, {lds_addr}")
    I(f"ds_read_b32 v{V_NT}, v{V_NT+1}", tag="nonce")
def nonce_get():
    e.wait(lg="nonce")
    I(f"v_readfirstlane_b32 s{S_NONCE}, v{V_NT}")
    I(f"s_or_b32 s{S_NONCE3}, s{S_NONCE}, 3")
uid = [0]
def poll_load():
    I(f"s_load_dwordx4 s[{S_POLL}:{S_POLL+3}], s[{S_FLA}:{S_FLA+1}], 0 glc")
def poll_check(w0, level):
    uid[0] += 1; u = uid[0]
    I(f"s_mov_b32 s{S_CNT}, 0")
    e.label(f"L_pw{u}")
    e.wait(lg="all")
    I(f"s_xor_b32 s{S_t0}, s{S_POLL+w0}, s{S_NONCE3}")
    I(f"s_xor_b32 s{S_t1}, s{S_POLL+w0+1}, s{S_NONCE3}")
    I(f"s_max_u32 s{S_t0}, s{S_t0}, s{S_t1}")
    I(f"s_cmp_le_u32 s{S_t0}, {3-level}")
    I(f"s_cbranch_scc1 L_pd{u}")
    e.cond_begin()
    poll_load()
    I(f"s_add_u32 s{S_CNT}, s{S_CNT}, 1")
    I(f"s_cmp_lt_u32 s{S_CNT}, {OPT['spin']}")
    I(f"s_cbranch_scc1 L_pw{u}")
    I("s_waitcnt lgkmcnt(0)")
    e.cond_end()
    e.label(f"L_pd{u}")
def flag_store(level, lbl, pre=None):
    I(f"s_cmp_eq_u32 s{S_w}, 0")
    I(f"s_cbranch_scc0 {lbl}")
    e.cond_begin()
    if pre: pre()
    I(f"s_or_b32 s{S_t0}, s{S_NONCE}, {level}")
    I(f"v_mov_b32 v{V_NT+2}, s{S_FOFF}")
    I(f"v_mov_b32 v1, s{S_t0}")
    I("s_mov_b64 exec, 1")
    I(f"buffer_store_dword v1, v{V_NT+2}, {srd(S_FL)}, 0 offen sc1")
    I("s_mov_b64 exec, -1")
    e.cond_end()
    e.label(lbl)

def b2_group(n, slot=None, mb=-1):
    if slot is None: slot = B2SLOT[n]
    if n < 14:
        return dma_items(V_BD, S_W2, lambda: I(f"s_add_u32 s{S_SOFF}, s{S_B2}, {n*32768}"), slot, f"b2_{n}", mb)
    return dma_items(V_BD, S_WO, lambda: I(f"s_add_u32 s{S_SOFF}, s{S_BO}, {(n-14)*32768}"), slot, f"b2_{n}", mb)
def park(n, slot, mb=-1):
    its = [("s", lambda: e.wait(vm=f"b2_{n}"), mb)]
    for t in range(4):
        a = V_BR + (4 if slot >= 4 else 0) + t
        off = (slot & 3) * SLOT
        b = A_PK + 16 * n + 4 * t
        def rd(a=a, off=off, b=b):
            I(f"ds_read_b64_tr_b16 {ar(b,2)}, v{a} offset:{off}", tag=f"pk{n}")
            I(f"ds_read_b64_tr_b16 {ar(b+2,2)}, v{a} offset:{off+2048}", tag=f"pk{n}")
        its.append(("h", rd, mb))
    return its
def a2_setup():
    for mu in range(4):
        I(f"s_lshl_b32 s{S_t0}, s{S_w}, 10")
        I(f"s_xor_b32 s{S_t0}, s{S_t0}, {mu*1024}")
        I(f"v_add_u32 v{V_A2OFF+mu}, s{S_t0}, v{V_L16}")
def a2_group(n, mb=-1):
    out = [("s", lambda: I(f"s_add_u32 s{S_SOFF}, s{S_A2}, {n*4096}"), mb)]
    for mu in range(4):
        out.append(("v", lambda mu=mu: I(f"buffer_load_dwordx4 {ar(a2reg(n)+mu*4)}, v{V_A2OFF+mu}, {srd(S_WS)}, s{S_SOFF} offen sc1", tag=f"a2_{n}"), mb))
    return out
def touch(mb=-1):
    if not OPT["touch"]: return []
    def f1():
        I(f"s_lshr_b32 s{S_t0}, s2, 3")
        I(f"s_lshl_b32 s{S_t0}, s{S_t0}, 2")
        I(f"s_and_b32 s{S_t1}, s2, 3")
        I(f"s_add_u32 s{S_t0}, s{S_t0}, s{S_t1}")
        I(f"s_lshl_b32 s{S_t0}, s{S_t0}, 2")
        I(f"s_add_u32 s{S_t0}, s{S_t0}, s{S_w}")
        I(f"v_lshrrev_b32 v{V_RINV+4}, 2, v0")
        I(f"v_and_b32 v{V_RINV+5}, 3, v0")
        I(f"v_lshlrev_b32 v{V_RINV+5}, 7, v{V_RINV+5}")
        I(f"v_lshl_add_u32 v{V_RINV+4}, v{V_RINV+4}, 10, v{V_RINV+5}")
        I(f"s_lshr_b32 s{S_t1}, s{S_q}, 1")
        I(f"s_lshl_b32 s{S_t1}, s{S_t1}, 9")
        I(f"v_add_u32 v{V_RINV+4}, s{S_t1}, v{V_RINV+4}")
        I(f"s_lshl_b32 s{S_t1}, s{S_t0}, 12")
        I("s_mov_b64 exec, 0xffff")
        I(f"buffer_load_dword v{V_DUMMY}, v{V_RINV+4}, {srd(S_W2)}, s{S_t1} offen", tag="touch")
        I(f"s_lshl_b32 s{S_t1}, s{S_t0}, 10")
        I("s_mov_b64 exec, 15")
        I(f"buffer_load_dword v{V_DUMMY+1}, v{V_RINV+4}, {srd(S_WO)}, s{S_t1} offen", tag="touch")
        I("s_mov_b64 exec, -1")
    return [("v", f1, mb)]

MF = "v_mfma_f32_16x16x32_bf16"
MF16 = "v_mfma_f32_16x16x16_bf16"
def acc(t, p): return V_ACC + (t * 2 + p) * 4
def xfr(p, s): return ar((p * 16 + s) * 4)

def gate_items(u):
    F = []
    if u == 0: F.append(lambda: e.wait(vm="gw"))
    for s in range(4 * u, 4 * u + 4):
        for k in range(4):
            F.append(lambda s=s, k=k: I(f"v_mov_b32_dpp v{V_GW+4+4*(s&1)+k}, v{V_GW+k} row_newbcast:{s} row_mask:0xf bank_mask:0xf"))
        if s > 4 * u:
            pass
        for p in range(2):
            F.append(lambda s=s, p=p: I(f"{MF} {vr(V_GACC+4*p)}, {vr(V_GW+4+4*(s&1))}, {xfr(p,s)}, {'0' if s == 0 else vr(V_GACC+4*p)}"))
    return F
def gate_finish():
    Z = V_GZ
    T = [f"v_cvt_pk_bf16_f32 v{Z}, v{V_GACC}, v{V_GACC+4}",
         f"v_lshlrev_b32 v{Z+2}, 16, v{Z}", f"v_and_b32 v{Z+4}, 0xffff0000, v{Z}"]
    T += [f"v_mul_f32 v{Z+2+2*p}, {f2u(-1.4426950408889634)}, v{Z+2+2*p}" for p in range(2)]
    T += [f"v_exp_f32 v{Z+2+2*p}, v{Z+2+2*p}" for p in range(2)]
    T += [f"v_add_f32 v{Z+2+2*p}, 1.0, v{Z+2+2*p}" for p in range(2)]
    T += [f"v_rcp_f32 v{Z+2+2*p}, v{Z+2+2*p}" for p in range(2)]
    T += [f"v_cvt_pk_bf16_f32 v{Z}, v{Z+2}, v{Z+4}", f"v_lshlrev_b32 v{Z+2}, 16, v{Z}", f"v_and_b32 v{Z+4}, 0xffff0000, v{Z}"]
    T += [f"v_sub_f32 v{Z+3+2*p}, 1.0, v{Z+2+2*p}" for p in range(2)]
    T += [f"v_cvt_pk_bf16_f32 v{Z}, v{Z+3}, v{Z+5}", f"v_lshlrev_b32 v{Z+3}, 16, v{Z}", f"v_and_b32 v{Z+5}, 0xffff0000, v{Z}"]
    return [lambda t=t: I(t) for t in T]

class Fifo:
    def __init__(self, items): self.q = list(items); self.bar = -1
    def pop(self):
        while self.q and self.q[0][2] <= self.bar:
            kind, f, _ = self.q.pop(0)
            f()
            if kind == "v": return 1.0
            if kind == "h": return 0.34
        return None
    def flush_until(self, tags):
        def have():
            return all(all(t in q[0] for t in tags) for q in e.vmq)
        cnt = lambda t: min(q[0].count(t) for q in e.vmq)
        def full():
            return all(cnt(t) >= (8 if t[0] == "x" else 4 if t[0] in "gab" and t != "gw" else 1) for t in tags)
        while not full():
            assert self.pop() is not None, ("fifo blocked", tags)

class Stream:
    def __init__(self, steps, fifo, xslots, hooks, rates):
        self.steps = steps; self.fifo = fifo; self.hooks = hooks; self.xslots = xslots; self.rates = rates
        self.side = []; self.after = {}; self.nh = 0; self.per = 1; self.acc = 0
    def add(self, ready, deadline, fns):
        for f in fns: self.side.append([ready, deadline, f])
    def issue_reads(self, k):
        st = self.steps[k]
        if st["first"]:
            i = st["sub"]
            pre, post = self.hooks.get(i, (None, None))
            self.fifo.flush_until(st["need"])
            stamp(f"a{i}")
            e.wait(vm=st["need"])
            if i < 4: x_reads(i, self.xslots[i])
            if pre: pre()
            I("s_barrier")
            stamp(f"b{i}")
            if post: post()
            self.fifo.bar = i
            self.per = self.rates(i) / 16.0; self.acc = 0.0
        slot = st["slot"]
        a = (V_WR, V_WR + 4, V_WR3)[slot >> 2] + st["T"]
        off = (slot & 3) * SLOT + st["ks"] * 4096
        b = V_RING + (k % NRING) * 4
        I(f"ds_read_b64_tr_b16 {vr(b,2)}, v{a} offset:{off}", tag=f"w{k}")
        I(f"ds_read_b64_tr_b16 {vr(b+2,2)}, v{a} offset:{off+512}", tag=f"w{k}")
        if st.get("halo") is not None:
            hb = V_HX + (self.nh % 3) * 4; self.nh += 1
            st["hreg"] = hb
            s_ = st["halo"]
            I(f"ds_read_b128 {vr(hb)}, v{V_HALO2 if s_ & 1 else V_HALO} offset:{(s_>>1)*2048}", tag=f"w{k}")
    def pump(self, k, n):
        c = 0
        while self.side and c < n and self.side[0][0] <= k:
            self.side.pop(0)[2](); c += 1
    def run(self, rate):
        n = len(self.steps)
        for k in range(min(D, n)): self.issue_reads(k)
        for k in range(n):
            st = self.steps[k]
            while any(s[1] <= k for s in self.side):
                self.side.pop(0)[2]()
            e.wait(lg=f"w{k}")
            W = vr(V_RING + (k % NRING) * 4)
            mfs = st["mf"](W, st)
            I(mfs[0])
            if k + D < n: self.issue_reads(k + D)
            r = rate(k)
            for m in mfs[1:]:
                I(m)
            self.pump(k, r)
            self.acc += self.per
            while self.acc >= 1.0:
                c = self.fifo.pop()
                if c is None:
                    self.acc = min(self.acc, 1.0); break
                self.acc -= c
            if k in self.after: self.after[k]()
        while self.fifo.pop() is not None: pass
        assert not self.fifo.q
    def drain(self):
        while self.side: self.side.pop(0)[2]()
def rates(i): return [OPT["r0"], OPT["r1"], OPT["r2"]][i] if i < 3 else OPT["rn"]
def add_gate(S):
    for u in range(4):
        S.add(16 * u, 16 * u + 15, gate_items(u))

stamp("setup")
for tg in ("touchw", "x0", "g0", "gw"):
    if "w_" + tg in STAMPS:
        e.wait(vm=tg); stamp("w_" + tg)
I(f"s_cmp_ge_u32 s{S_jj}, 2")
I("s_cbranch_scc1 L_att")
snap0 = e.snapshot()

def ffn():
    e.comment("---- FFN tile ----")
    XS = [X0, X1, (8, 9), X0]
    GS = [G0, G1, 6, 2, 7, 0, 1, 8, 9, 5, 3, 4, 6, 7]
    def grp(i, mb=-1):
        if i < 12: return wgrp(i, GS[i], (i // 4) * 256, mb)
        v = i - 12
        def so():
            if v == 0:
                I("v_lshrrev_b32 v2, 2, v0")
                I("v_and_b32 v2, 1, v2")
                I(f"v_mul_u32_u24 v3, {256*3584-64}, v2")
                I(f"v_add_u32 v{V_WD}, v{V_WD}, v3")
                I(f"v_add_u32 v{V_WD+2}, v{V_WD+2}, v3")
                I(f"v_sub_u32 v3, {256*3584-64}, v3")
                I(f"v_add_u32 v{V_WD+1}, v{V_WD+1}, v3")
                I(f"v_add_u32 v{V_WD+3}, v{V_WD+3}, v3")
                I(f"v_mul_u32_u24 v2, {2*256*3584}, v2")
                I(f"v_sub_u32 v2, {256*3584}, v2")
                I(f"s_cmp_ge_u32 s{S_WK}, {256*3584}")
                I(f"s_cselect_b32 s{S_t0}, 1, 0")
            else:
                I(f"s_cmp_ge_u32 s{S_WK}, {256*3584}")
                I(f"s_cselect_b32 s{S_t1}, 1, 0")
                I(f"s_cmp_ge_u32 s{S_WK+1}, {256*3584}")
                I(f"s_cselect_b32 s{S_t0}, 1, 0")
                I(f"s_sub_u32 s{S_t0}, s{S_t0}, s{S_t1}")
            I(f"s_sub_u32 s{S_t1}, 0, s{S_t0}")
            I(f"v_mad_i32_i24 v{V_WD}, v2, s{S_t0}, v{V_WD}")
            I(f"v_mad_i32_i24 v{V_WD+2}, v2, s{S_t0}, v{V_WD+2}")
            I(f"v_mad_i32_i24 v{V_WD+1}, v2, s{S_t1}, v{V_WD+1}")
            I(f"v_mad_i32_i24 v{V_WD+3}, v2, s{S_t1}, v{V_WD+3}")
            I(f"s_min_u32 s{S_SOFF}, s{S_WK+v}, s{S_WK+v+2}")
            I(f"s_add_u32 s{S_SOFF}, s{S_SOFF}, s{S_COL}")
            I(f"s_lshl_b32 s{S_t0}, s{S_jj}, 6")
            I(f"s_sub_u32 s{S_SOFF}, s{S_SOFF}, s{S_t0}")
            I(f"s_add_u32 s{S_SOFF}, s{S_SOFF}, 768")
        return dma_items(V_WD, S_W, so, GS[i], f"g{i}", mb)
    NL = GBUF_LDS + 2048
    q = (x_items(1, XS[1]) + grp(1) + x_items(2, XS[2]) + grp(2) + lgw("xr0", 0) + x_items(3, XS[3], 0) + grp(3)
         + lgw("xr1", 1) + grp(4, 1) + grp(5, 1) + grp(6, 2) + lgw("xr2", 2) + grp(7, 2) + grp(8, 2)
         + grp(9, 3) + touch(OPT["tb"]) + lgw("xr3", 3) + grp(10, 3) + grp(11, 3) + grp(12, 4) + b2_group(0, 2, 5) + grp(13, 6)
         + park(0, 2, 7) + b2_group(1, 0, 7) + lgw("pk0", 7) + b2_group(2, 2, 7) + b2_group(3, 1, 8)
         + park(1, 0, 9) + park(2, 2, 9) + lgw("pk1", 9) + b2_group(4, None, 9) + lgw("pk2", 9) + b2_group(6, None, 9)
         + park(3, 1, 10) + [("s", a2_setup, 10)] + lgw("pk3", 10) + b2_group(5, None, 10)
         + b2_group(7, None, 11) + [("s", lambda: poll_check(0, 1), 11)] + a2_group(0, 11) + a2_group(1, 11)
         + b2_group(8, None, 12) + a2_group(2, 12) + a2_group(3, 12) + b2_group(9, None, 13))
    fifo = Fifo(q)
    for _ in range(OPT["x1pre"]): fifo.pop()
    nonce_propose("L_np_f")
    steps = []
    for i in range(14):
        c, u = divmod(i, 4)
        for h in range(2):
            for ks in range(4):
                for tt in range(2):
                    T = 2 * h + tt
                    if i < 12:
                        s = 4 * u + ks; ta = T; zero = (u == 0 and ks == 0)
                    else:
                        s = 4 * (u + 2 * h) + ks; ta = tt; zero = (u == 0 and h == 0 and ks == 0)
                    def mf(W, st, s=s, ta=ta, zero=zero):
                        return [f"{MF} {vr(acc(ta,p))}, {W}, {xfr(p,s)}, {'0' if zero else vr(acc(ta,p))}" for p in range(2)]
                    need = [f"g{i}"] + ([f"x{u}"] if i < 4 else [])
                    steps.append(dict(sub=i, slot=GS[i], T=T, ks=ks, mf=mf, first=(h == 0 and ks == 0 and tt == 0), need=need))
    def p11():
        flag_store(2, "L_fl1")
    hooks = {7: (lambda: e.wait(vm="st0_1"), lambda: flag_store(1, "L_fl0", pre=nonce_pick)),
             9: (None, lambda: nonce_publish("L_npub_f", NL)), 10: (None, lambda: (nonce_fetch(NL), poll_load())),
             11: (lambda: (e.wait(vm="st1_1"), nonce_get()), p11)}
    S = Stream(steps, fifo, XS, hooks, rates)
    add_gate(S)
    def epi(t0, n, tag, setno):
        fns = []
        for p in range(2):
            pk = V_PACK + setno * 8 + p * 4
            for tt in range(2):
                for hh in range(2):
                    a = acc(t0 + tt, p) + 2 * hh
                    fns.append(lambda pk=pk, tt=tt, hh=hh, a=a: I(f"v_cvt_pk_bf16_f32 v{pk+2*tt+hh}, v{a}, v{a+1}"))
        late = []
        for p in range(2):
            pk = V_PACK + setno * 8 + p * 4
            for k in range(4):
                late.append(lambda pk=pk, k=k: I(f"v_pk_max_i16 v{pk+k}, v{pk+k}, 0"))
            def st(pk=pk, p=p):
                I(f"s_add_u32 s{S_t0}, s{S_ST}, {n*4096}")
                I(f"buffer_store_dwordx4 {vr(pk)}, v{V_L16}, {srd(S_WS)}, s{S_t0} offen offset:{p*1024} sc1", tag=tag)
            late.append(st)
        return fns, late
    for c in range(3):
        for h in range(2):
            k = (4 * c + 3) * 16 + 8 * h + 7
            def aft(k=k, c=c, h=h):
                a, b = epi(2 * h, 4 * c + h, f"st{c}_{h}", h)
                S.add(k + 2, k + 9, a)
                S.add(k + 2, k + 17, b)
                if c == 0 and h == 1: S.add(k + 2, k + 40, gate_finish())
            S.after[k] = aft
    S.after[13 * 16 + 8] = poll_load
    S.run(lambda k: 3 if k < 64 else OPT["side"])
    S.drain()
    stamp("p1end")
    I(f"s_lshl_b32 s{S_t1}, s{S_jj}, 12")
    I(f"s_sub_u32 s{S_ST}, s{S_ST}, s{S_t1}")
    a, b = epi(0, 12, "stL", 0)
    for f in a + b: f()

ffn()
I("s_branch L_join")
snap_f = e.snapshot()

e.label("L_att")
e.restore(snap0); e.hist = []
def att():
    e.comment("---- attention tile ----")
    CH = [1024, 0, 2048]
    XS = [X0, X1, (2, 9), X0]
    GS = [G0, G1, 6, 7, 0, 1, 2, 5, 3, 4, 6, 7]
    def grp(i, mb=-1): return wgrp(i, GS[i], CH[i // 4], mb)
    q = (x_items(1, XS[1]) + grp(1) + x_items(2, XS[2]) + grp(2) + lgw("xr0", 0) + x_items(3, XS[3], 0)
         + lgw("xr1", 1) + grp(3, 1) + grp(4, 1) + grp(5, 2) + lgw("xr2", 2) + grp(6, 2)
         + grp(7, 3) + lgw("xr3", 3) + grp(8, 3) + grp(9, 3) + touch(OPT["tb"]) + grp(10, 4) + grp(11, 5)
         + b2_group(0, 0, 6) + b2_group(1, 1, 7)
         + park(0, 0, 8) + b2_group(2, 2, 8) + lgw("pk0", 8) + b2_group(3, 0, 8)
         + park(1, 1, 9) + b2_group(7, None, 9) + lgw("pk1", 9) + b2_group(5, None, 9) + [("s", a2_setup, 9)]
         + park(2, 2, 10) + park(3, 0, 10) + b2_group(8, None, 10) + lgw("pk3", 10) + b2_group(4, None, 10) + b2_group(6, None, 10)
         + [("s", lambda: poll_check(0, 1), 10)] + a2_group(0, 10) + a2_group(1, 10)
         + a2_group(2, 11) + a2_group(3, 11) + b2_group(9, None, 11))
    fifo = Fifo(q)
    I("v_lshrrev_b32 v38, 1, v33")
    I("v_xor_b32 v38, v38, v32")
    I("v_lshlrev_b32 v38, 4, v38")
    I("v_lshl_add_u32 v38, v33, 7, v38")
    I(f"v_add_u32 v{V_HALO}, {HALO_LDS}, v38")
    I(f"v_xor_b32 v{V_HALO2}, 64, v{V_HALO}")
    I(f"s_mul_i32 s{S_t0}, s{S_w}, 5120")
    I(f"s_add_u32 s{S_t0}, s{S_t0}, {EXCH_LDS}")
    I(f"v_add_u32 v{V_EXR}, s{S_t0}, v{V_L16}")
    I(f"v_add_u32 v{V_EXW}, 4096, v{V_EXR}")
    I(f"s_cmp_eq_u32 s{S_w}, 3")
    I(f"s_cselect_b64 s[{S_EX3}:{S_EX3+1}], 0, -1")
    I(f"s_mov_b32 s{S_CEXP}, {f2u(0.25*1.4426950408889634)}")
    I(f"s_or_b32 s{S_t0}, s{S_r}, s{S_w}")
    I(f"s_cmp_eq_u32 s{S_t0}, 0")
    I(f"s_cselect_b32 s{S_THR}, -16, -9")
    I(f"v_mov_b32 v40, {NEG}")
    for p in range(2):
        x8 = 8 if p == 0 else 0
        I(f"v_xor_b32 v38, {x8}, v33")
        I("v_lshlrev_b32 v39, 2, v32")
        I(f"v_xor_b32 v39, {x8}, v39")
        I("v_sub_u32 v38, v38, v39")
        for r in range(4):
            I(f"v_subrev_u32 v39, {r}, v38")
            I("v_cmp_lt_u32 vcc, 7, v39")
            I(f"v_cmp_lt_i32 s[{S_NONCE}:{S_NONCE+1}], s{S_THR}, v39")
            I("v_ashrrev_i32 v41, 31, v39")
            I(f"v_cndmask_b32 v{V_BIAS+p*8+r}, 0, v40, vcc")
            I(f"v_cndmask_b32 v{V_BIAS+p*8+4+r}, 0, v40, s[{S_NONCE}:{S_NONCE+1}]")
            if r % 2 == 0:
                I("v_and_b32 v42, 0xffff, v41")
            else:
                I("v_and_b32 v41, 0xffff0000, v41")
                I("v_or_b32 v42, v42, v41")
                I(f"v_not_b32 v{V_MASK+2*p+r//2}, v42")
    for k in range(4):
        I(f"v_mov_b32 v{V_ONES+k}, 0x3f803f80")
    for _ in range(OPT["x1pre"]): fifo.pop()
    nonce_propose("L_np_a")
    steps = []
    for i in range(12):
        c, u = divmod(i, 4)
        for h in range(2):
            for ks in range(4):
                for tt in range(2):
                    T = 2 * h + tt
                    s = 4 * u + ks; zero = (u == 0 and ks == 0)
                    halo = s if (T == 0 and c != 1) else None
                    def mf(W, st, s=s, T=T, zero=zero, c=c):
                        out = []
                        for p in range(2):
                            a, b = (W, xfr(p, s)) if c != 2 else (xfr(p, s), W)
                            out.append(f"{MF} {vr(acc(T,p))}, {a}, {b}, {'0' if zero else vr(acc(T,p))}")
                        if st.get("halo") is not None:
                            a, b = (W, vr(st["hreg"])) if c != 2 else (vr(st["hreg"]), W)
                            out.append(f"{MF} {vr(V_HACC)}, {a}, {b}, {'0' if zero else vr(V_HACC)}")
                        return out
                    need = [f"g{i}"] + ([f"x{u}"] if i < 4 else []) + (["gw"] if i == 0 else [])
                    steps.append(dict(sub=i, slot=GS[i], T=T, ks=ks, mf=mf, halo=halo, first=(h == 0 and ks == 0 and tt == 0), need=need))
    def kp_reads():
        for t in range(4):
            I(f"v_xor_b32 v{2+t%2}, {t*1024}, v{V_EXR}")
            I(f"ds_read_b128 {vr(V_KP+4*t)}, v{2+t%2}", tag="kp")
    hooks = {6: (lambda: e.wait(lg="kw"), kp_reads), 7: (lambda: e.wait(lg="kp"), lambda: nonce_publish("L_npub_a", EXCH_LDS)),
             8: (None, lambda: nonce_fetch(EXCH_LDS)), 9: (nonce_get, None), 10: (None, poll_load)}
    S = Stream(steps, fifo, XS, hooks, lambda i: rates(i) if i < 8 else OPT["rv"])
    add_gate(S)
    def cvt2(d, a):
        return [lambda: I(f"v_cvt_pk_bf16_f32 v{d}, v{a}, v{a+1}"), lambda: I(f"v_cvt_pk_bf16_f32 v{d+1}, v{a+2}, v{a+3}")]
    def exw(t, txt, tag):
        def f():
            I(f"v_xor_b32 v2, {t*1024}, v{V_EXW}")
            I(f"s_mov_b64 exec, s[{S_EX3}:{S_EX3+1}]")
            I(txt, tag=tag)
            I("s_mov_b64 exec, -1")
        return f
    def halo_w(tag):
        def f():
            I(f"v_cvt_pk_bf16_f32 v{V_HACC}, v{V_HACC}, v{V_HACC+1}")
            I(f"v_cvt_pk_bf16_f32 v{V_HACC+1}, v{V_HACC+2}, v{V_HACC+3}")
            I(f"v_subrev_u32 v3, s{S_m0b}, v{V_EXR}")
            I(f"ds_write2_b64 v3, {vr(V_HACC,2)}, {vr(V_HACC,2)} offset0:0 offset1:1", tag=tag)
        return f
    def VV(t): return V_S + 8 * t
    def epi(c, h):
        fns = []
        for t in (2 * h, 2 * h + 1):
            for p in range(2):
                if c == 0: d = V_K + 4 * t + 2 * p
                elif c == 1: d = V_Q + 4 * t + 2 * p
                else: d = VV(t) + 6 * p
                fns += cvt2(d, acc(t, p))
        late = []
        for t in (2 * h, 2 * h + 1):
            if c == 0: late.append(exw(t, f"ds_write_b128 v2, {vr(V_K+4*t)}", "kw"))
            if c == 2: late.append(exw(t, f"ds_write2_b64 v2, {vr(VV(t),2)}, {vr(VV(t)+6,2)} offset0:0 offset1:1", "vw"))
        if h == 0 and c != 1: late.append(halo_w("kw" if c == 0 else "vw"))
        return fns, late
    def Preg(t, p): return (V_K if p == 0 else V_Q) + 4 * t
    def softmax(b):
        F = []
        A = lambda s: F.append(lambda: I(s))
        units = [(2 * b + (i >> 1), i & 1) for i in range(4)]
        Sc = lambda i: V_S + 8 * i
        Sp = lambda i: V_S + 8 * i + 4
        for i, (t, p) in enumerate(units):
            A(f"{MF16} {vr(Sc(i))}, {vr(V_K+4*t+2*p,2)}, {vr(V_Q+4*t+2*p,2)}, {vr(V_BIAS+8*p)}")
            A(f"{MF16} {vr(Sp(i))}, {vr(V_KP+4*t+2*p,2)}, {vr(V_Q+4*t+2*p,2)}, {vr(V_BIAS+8*p+4)}")
        for i in range(4):
            for r in range(4): A(f"v_max_f32 v{Sc(i)+r}, v{Sc(i)+r}, v{Sp(i)+r}")
        for i in range(4):
            if OPT["lround"]:
                A(f"v_cvt_pk_bf16_f32 v{Sp(i)}, v{Sc(i)}, v{Sc(i)+1}")
                A(f"v_cvt_pk_bf16_f32 v{Sp(i)+1}, v{Sc(i)+2}, v{Sc(i)+3}")
                A(f"v_lshlrev_b32 v{Sc(i)}, 16, v{Sp(i)}")
                A(f"v_and_b32 v{Sc(i)+1}, 0xffff0000, v{Sp(i)}")
                A(f"v_lshlrev_b32 v{Sc(i)+2}, 16, v{Sp(i)+1}")
                A(f"v_and_b32 v{Sc(i)+3}, 0xffff0000, v{Sp(i)+1}")
            A(f"v_max3_f32 v{Sp(i)+2}, v{Sc(i)}, v{Sc(i)+1}, v{Sc(i)+2}")
            A(f"v_max_f32 v{Sp(i)+2}, v{Sp(i)+2}, v{Sc(i)+3}")
        m = [Sp(i) + 2 for i in range(4)]
        A(f"v_permlane32_swap_b32 v{m[0]}, v{m[1]}")
        A(f"v_permlane32_swap_b32 v{m[2]}, v{m[3]}")
        A(f"v_max_f32 v{m[0]}, v{m[0]}, v{m[1]}")
        A(f"v_max_f32 v{m[2]}, v{m[2]}, v{m[3]}")
        A(f"v_permlane16_swap_b32 v{m[0]}, v{m[2]}")
        A(f"v_max_f32 v{m[0]}, v{m[0]}, v{m[2]}")
        A(f"v_mul_f32 v{m[2]}, s{S_CEXP}, v{m[0]}")
        A(f"v_mul_f32 v{m[0]}, s{S_CEXP}, v{m[0]}")
        A(f"v_permlane16_swap_b32 v{m[0]}, v{m[2]}")
        A(f"v_mov_b32 v{m[1]}, v{m[0]}")
        A(f"v_mov_b32 v{m[3]}, v{m[2]}")
        A(f"v_permlane32_swap_b32 v{m[0]}, v{m[1]}")
        A(f"v_permlane32_swap_b32 v{m[2]}, v{m[3]}")
        for i in range(4):
            for r in range(4): A(f"v_fma_f32 v{Sc(i)+r}, v{Sc(i)+r}, s{S_CEXP}, -v{m[i]}")
            for r in range(4): A(f"v_exp_f32 v{Sc(i)+r}, v{Sc(i)+r}")
        for i, (t, p) in enumerate(units):
            P = Preg(t, p)
            cur, prv = (P, P + 2) if p == 0 else (P + 2, P)
            A(f"v_cvt_pk_bf16_f32 v{prv}, v{Sc(i)}, v{Sc(i)+1}")
            A(f"v_cvt_pk_bf16_f32 v{prv+1}, v{Sc(i)+2}, v{Sc(i)+3}")
            A(f"v_and_b32 v{cur}, v{prv}, v{V_MASK+2*p}")
            A(f"v_and_b32 v{cur+1}, v{prv+1}, v{V_MASK+2*p+1}")
            A(f"v_xor_b32 v{prv}, v{prv}, v{cur}")
            A(f"v_xor_b32 v{prv+1}, v{prv+1}, v{cur+1}")
        for i, (t, p) in enumerate(units):
            A(f"{MF} {vr(Sp(i))}, {vr(V_ONES)}, {vr(Preg(t,p))}, 0")
        for i, (t, p) in enumerate(units):
            A(f"v_rcp_f32 v{V_RINV+2*t+p}, v{Sp(i)}")
        return F
    for c in range(3):
        for h in range(2):
            k = (4 * c + 3) * 16 + 8 * h + 7
            if c == 2 and h == 1: continue
            def aft(k=k, c=c, h=h):
                a, b = epi(c, h)
                S.add(k + 2, k + 9, a)
                S.add(k + 2, k + 9 if (h == 0) else k + 17, b)
                if c == 0 and h == 1: S.add(k + 2, k + 40, gate_finish())
                if c == 1 and h == 1:
                    S.add(k + 2, 128 + 56, softmax(0) + softmax(1))
            S.after[k] = aft
    S.run(lambda k: 3 if k < 64 else OPT["side"] if k < 128 else OPT["sidev"])
    S.drain()
    stamp("p1end")
    a, b = epi(2, 1)
    for f in a + b: f()
    e.wait(lg="vw")
    I("s_barrier")
    for t in range(4):
        I(f"v_xor_b32 v{2+t%2}, {t*1024}, v{V_EXR}")
        I(f"ds_read_b128 {vr(VV(t)+2)}, v{2+t%2}", tag=f"vp{t}")
    I(f"s_lshr_b32 s{S_t0}, s{S_w}, 1")
    I(f"s_lshl_b32 s{S_t0}, s{S_t0}, 12")
    I(f"s_add_u32 s{S_ST}, s{S_ST}, {14*4096}")
    I(f"s_xor_b32 s{S_t1}, s{S_t0}, 4096")
    I(f"s_add_u32 s{S_t0}, s{S_t0}, s{S_ST}")
    I(f"s_add_u32 s{S_t1}, s{S_t1}, s{S_ST}")
    for t in range(4):
        e.wait(lg=f"vp{t}")
        if t == 3: poll_load()
        for p in range(2):
            I(f"{MF} {vr(acc(t,p))}, {vr(VV(t)+4*p)}, {vr(Preg(t,p))}, 0")
    for t in range(4):
        for p in range(2):
            for r in range(4):
                I(f"v_mul_f32 v{acc(t,p)+r}, v{V_RINV+2*t+p}, v{acc(t,p)+r}")
            pk = V_PACK + (t >> 1) * 8 + p * 4 + (t & 1) * 2
            for f in cvt2(pk, acc(t, p)): f()
    I(f"s_bitcmp1_b32 s{S_w}, 0")
    I("s_cbranch_scc0 L_noswap")
    e.cond_begin()
    for k in range(4):
        I(f"v_swap_b32 v{V_PACK+4*k}, v{V_PACK+4*k+2}")
        I(f"v_swap_b32 v{V_PACK+4*k+1}, v{V_PACK+4*k+3}")
    e.cond_end()
    e.label("L_noswap")
    for pair in range(2):
        for p in range(2):
            I(f"buffer_store_dwordx4 {vr(V_PACK+pair*8+p*4)}, v{V_L16}, {srd(S_WS)}, s{S_t0 if pair == 0 else S_t1} offen offset:{p*1024} sc1", tag="stL")
att()
snap_a = e.snapshot()

e.label("L_join")
e.join([snap_f, snap_a])
e.hist = []
stamp("join")
I(f"s_lshl_b32 s{S_t0}, s{S_w}, 8")
I(f"s_add_u32 s{S_t0}, s{S_t0}, {GBUF_LDS}")
I(f"v_lshl_add_u32 v2, v0, 3, s{S_t0}")
I("s_mov_b64 exec, 0xffff")
I(f"ds_write_b64 v2, {vr(V_GZ+2,2)}", tag="gwr")
I(f"ds_write_b64 v2, {vr(V_GZ+4,2)} offset:128", tag="gwr")
I("s_mov_b64 exec, -1")
poll_check(0, 2)
stamp("poll1")
for t in range(4):
    I(f"v_add_u32 v{V_WR+t}, 0x20000, v{V_BR+t}")
def b2_reads(n):
    slot = B2SLOT[n]
    out = []
    for t in range(4):
        a = (V_BR, V_BR + 4, V_WR)[slot >> 2] + t
        off = (slot & 3) * SLOT
        b = V_RING + (n & 1) * 16 + t * 4
        out.append(lambda a=a, off=off, b=b, t=t: I(f"ds_read_b64_tr_b16 {vr(b,2)}, v{a} offset:{off}", tag=f"f{n}_{t}"))
        out.append(lambda a=a, off=off, b=b, t=t: I(f"ds_read_b64_tr_b16 {vr(b+2,2)}, v{a} offset:{off+2048}", tag=f"f{n}_{t}"))
    return out
def acc2(n, mu, t): return (V_ACCB if n < 14 else V_ACCA) + (mu * 4 + t) * 4
def join_barrier():
    e.wait(vm="stL", lg="gwr")
    I("s_barrier")
    flag_store(3, "L_fl2")
    stamp("p2bar")
    I("v_and_b32 v2, 15, v0")
    I(f"s_lshl_b32 s{S_t0}, s{S_hb}, 2")
    I(f"s_add_u32 s{S_t0}, s{S_t0}, s{S_w}")
    I(f"s_lshl_b32 s{S_t0}, s{S_t0}, 7")
    I(f"s_add_u32 s{S_t0}, s{S_t0}, {GBUF_LDS}")
    I(f"v_lshl_add_u32 v2, v2, 3, s{S_t0}")
    for mu in range(4):
        I(f"v_xor_b32 v3, {mu*128}, v2")
        I(f"ds_read_b64 {vr(V_G+2*mu,2)}, v3", tag="g")
sp = lambda f, mb=-1: [("s", f, mb)]
q2 = (a2_group(4) + a2_group(5) + sp(join_barrier) + a2_group(6) + a2_group(7) + b2_group(10) + b2_group(11) + sp(poll_load) + b2_group(12)
      + sp(lambda: poll_check(0, 3)) + a2_group(8) + a2_group(9) + a2_group(10) + a2_group(11)
      + a2_group(12, 0) + a2_group(13, 1) + b2_group(13, None, 4) + sp(poll_load, 4) + b2_group(14, None, 5)
      + sp(lambda: poll_check(2, 3), 5) + a2_group(14, 5) + a2_group(15, 5) + b2_group(15, None, 6) + a2_group(16, 6) + b2_group(16, None, 7)
      + a2_group(17, 7) + b2_group(17, None, 8))
F2 = Fifo(q2)
bscale = []
for mu in range(4):
    for k in range(16):
        r = V_ACCB + mu * 16 + k
        bscale.append(lambda r=r, mu=mu: I(f"v_mul_f32 v{r}, v{V_G+2*mu+1}, v{r}"))
RS = [None, 4, 6, 7]
def combine(mu):
    out = []
    for t in range(4):
        for k in range(4):
            rb = V_ACCB + (mu * 4 + t) * 4 + k; ra = V_ACCA + (mu * 4 + t) * 4 + k
            out.append(lambda rb=rb, ra=ra: I(f"v_fmac_f32 v{rb}, v{V_G+2*mu}, v{ra}"))
        if mu:
            out.append(lambda t=t: I(f"ds_write_b128 v2, {vr(V_ACCB+(mu*4+t)*4)} offset:{(RS[mu]-4)*SLOT+t*1024}", tag="rw"))
    return out
cnt = 0
for n in range(18):
    nxt = []
    if 4 <= n + 1 < 18:
        F2.flush_until([f"b2_{n+1}"])
        e.wait(vm=f"b2_{n+1}")
        nxt = b2_reads(n + 1)
    F2.flush_until([f"a2_{n}"])
    e.wait(vm=f"a2_{n}")
    if n < 4: e.wait(lg=f"pk{n}")
    zero = n in (0, 14)
    order = [(t, mu) for t in range(4) for mu in range(4)] if n < 17 else [(t, mu) for mu in (1, 2, 3, 0) for t in range(4)]
    if n == 17:
        while bscale: bscale.pop(0)()
        I(f"v_add_u32 v2, s{S_m0b}, v{V_L16}")
        I(f"v_add_u32 v2, {4*SLOT}, v2")
        tailq = []
    for j, (t, mu) in enumerate(order):
        if n >= 4: e.wait(lg=f"f{n}_{t}")
        d = vr(acc2(n, mu, t))
        bf = ar(A_PK + 16 * n + 4 * t) if n < 4 else vr(V_RING + (n & 1) * 16 + t * 4)
        I(f"{MF} {d}, {bf}, {ar(a2reg(n)+mu*4)}, {'0' if zero else d}")
        if nxt and j % 2 == 0: nxt.pop(0)()
        cnt += 1
        if cnt % OPT["p2r"] == 0: F2.pop()
        if n >= 15 and bscale:
            if n == 15 and j == 0: e.wait(lg="g")
            bscale.pop(0)(); bscale.pop(0)()
        if n == 17:
            if j % 4 == 3 and j >= 7: tailq += combine(order[j - 4][1])
            for _ in range(3):
                if tailq: tailq.pop(0)()
    F2.bar = n
    stamp(f"n{n}")
assert not F2.q
stamp("p2end")
for f in tailq: f()
I(f"s_and_b32 s{S_t0}, s{S_w}, 1")
I(f"s_xor_b32 s{S_t1}, s{S_t0}, 1")
I(f"s_lshl_b32 s{S_t1}, s{S_t1}, 3")
I("v_and_b32 v4, 15, v0")
I(f"v_xor_b32 v4, s{S_t1}, v4")
I(f"v_lshl_add_u32 v4, v4, 1, s{S_t0}")
I("v_lshlrev_b32 v4, 10, v4")
I("v_bfe_u32 v5, v0, 4, 1")
I("v_lshl_add_u32 v4, v5, 5, v4")
I("v_lshrrev_b32 v5, 5, v0")
I("v_lshl_add_u32 v4, v5, 4, v4")
I(f"s_lshl_b32 s{S_t0}, s{S_r2}, 16")
I(f"s_lshr_b32 s{S_t1}, s{S_w}, 1")
I(f"s_lshl_b32 s{S_t1}, s{S_t1}, 15")
I(f"s_add_u32 s{S_t0}, s{S_t0}, s{S_t1}")
I(f"s_lshl_b32 s{S_t1}, s{S_n2}, 7")
I(f"s_add_u32 s{S_SOFF}, s{S_t0}, s{S_t1}")
for mu in (1, 2, 3):
    I(f"v_xor_b32 v{5+mu}, {mu*4096}, v2")
for f in combine(0): f()
stamp("redw")
e.wait(lg="rw")
I("s_barrier")
stamp("redb")
for t in range(4):
    for mu in (1, 2, 3):
        I(f"ds_read_b128 {vr(V_ACCA+(mu*4+t)*4)}, v{5+mu} offset:{(RS[mu]-4)*SLOT+t*1024}", tag=f"rr{t}")
for t in range(4):
    e.wait(lg=f"rr{t}")
    o = V_ACCB + t * 4
    for k in range(2):
        I(f"v_pk_add_f32 {vr(V_ACCA+(4+t)*4+2*k,2)}, {vr(V_ACCA+(4+t)*4+2*k,2)}, {vr(V_ACCA+(8+t)*4+2*k,2)}")
        I(f"v_pk_add_f32 {vr(o+2*k,2)}, {vr(o+2*k,2)}, {vr(V_ACCA+(12+t)*4+2*k,2)}")
    for k in range(2):
        I(f"v_pk_add_f32 {vr(o+2*k,2)}, {vr(o+2*k,2)}, {vr(V_ACCA+(4+t)*4+2*k,2)}")
    pk = V_RING + 2 * t
    I(f"v_cvt_pk_bf16_f32 v{pk}, v{o}, v{o+1}")
    I(f"v_cvt_pk_bf16_f32 v{pk+1}, v{o+2}, v{o+3}")
    if t & 1:
        I(f"v_permlane16_swap_b32 v{pk-2}, v{pk}")
        I(f"v_permlane16_swap_b32 v{pk-1}, v{pk+1}")
        I(f"buffer_store_dwordx4 {vr(pk-2)}, v4, {srd(S_OUT)}, s{S_SOFF} offen offset:{(t>>1)*64}")
if STAMP:
    stamp("sti")
    I("s_waitcnt vmcnt(0)")
    stamp("end")
    I("s_memrealtime s[22:23]")
    I(f"s_add_u32 s{S_FL}, s{S_FL}, {STAMP_OFF-FLAG_OFF}")
    I(f"s_addc_u32 s{S_FL+1}, s{S_FL+1}, 0")
    I(f"s_mov_b32 s{S_FL+2}, 0x100000")
    I("s_waitcnt lgkmcnt(0)")
    I(f"s_lshl_b32 s{S_t0}, s2, 2")
    I(f"s_add_u32 s{S_t0}, s{S_t0}, s{S_w}")
    I(f"s_lshl_b32 s{S_t0}, s{S_t0}, 6")
    I(f"v_mov_b32 v2, s{S_t0}")
    for k in range(9):
        I(f"v_mov_b32 v{8+k}, s{S_STAMP+2*k}")
    I("v_mov_b32 v17, s73")
    I("v_mov_b32 v18, s22")
    I("v_mov_b32 v19, s72")
    I("v_mov_b32 v20, s100")
    I("s_mov_b64 exec, 1")
    for k in range(4):
        I(f"buffer_store_dwordx4 {vr(8+4*k)}, v2, {srd(S_FL)}, 0 offen offset:{16*k}")
if STAMP == 3:
    if OPT["padk"] >= 0:
        I(f"s_sub_u32 s24, s{S_STAMP+2*OPT['padk']}, s73")
    else:
        I("s_mov_b32 s24, 0")
    I("s_add_u32 s24, s24, 6000")
    e.label("L_pad")
    I("s_memrealtime s[26:27]")
    I("s_waitcnt lgkmcnt(0)")
    I("s_sub_u32 s25, s26, s73")
    I("s_cmp_lt_u32 s25, s24")
    I("s_cbranch_scc1 L_pad")
e.label("L_end")
I("s_endpgm")
e.raw('.section .rodata,"a"')
e.raw(".p2align 6")
e.raw(f".amdhsa_kernel {NAME}_kernel")
e.raw("  .amdhsa_next_free_vgpr 512")
e.raw("  .amdhsa_next_free_sgpr 102")
e.raw("  .amdhsa_accum_offset 256")
e.raw("  .amdhsa_group_segment_fixed_size 0")
e.raw("  .amdhsa_kernarg_size 80")
e.raw("  .amdhsa_user_sgpr_count 2")
e.raw("  .amdhsa_user_sgpr_kernarg_segment_ptr 1")
e.raw("  .amdhsa_system_sgpr_workgroup_id_x 1")
e.raw(".end_amdhsa_kernel")
sys.stdout.write(e.text())
sys.stderr.write(f"instructions {e.nins} nop-states {e.nops}\n")
```

```python
import sys, struct
from emit import Em

NAME = "gated_mix__sliding_local_dilated__dense_activation_relu__prompt"
OPT = dict(padk=-1, padr=0, stamp=0, rot=2, D=4, codepf=1, spin=400000, lround=0, lag=3, prio=2, spf=0, side=2, pair=1, m1=1, fast=1, outsc=1, ld=6, kl1=152, thr=5)
CST = ["c_go", "s0", "s2", "s4", "s6", "s8", "s11", "c_end"]
HST = ["h_b0", "h_wend", "h_p2", "h_late", "h_o", "h_own", "h_rcv", "h_sum"]
for a in sys.argv[1:]:
    k, v = a.split("=")
    if k == "cst": CST = v.split(",")
    elif k == "hst": HST = v.split(",")
    else: OPT[k] = int(v)
STAMP = OPT["stamp"]; D = OPT["D"]
def f2u(x): return struct.unpack("<I", struct.pack("<f", x))[0]

PART_OFF = 16 << 20
INB_OFF = 32 << 20
STAMP_OFF = 33 << 20
WS_BYTES = 36 << 20
SLOT = 16384
HALO_LDS = 7 * SLOT
EXCH_LDS = 8 * SLOT
EV_LDS = EXCH_LDS + 24576
NEG = f2u(-1e30)
FULL = 0x01010101

e = Em()
I = e.I
def vr(b, n=4): return f"v[{b}:{b+n-1}]"
def ar(b, n=4): return f"a[{b}:{b+n-1}]"
def srd(b): return f"s[{b}:{b+3}]"
MF = "v_mfma_f32_16x16x32_bf16"
MF16 = "v_mfma_f32_16x16x16_bf16"

S_X, S_W, S_WS, S_OUT, S_W2, S_WO, S_GW = 24, 28, 32, 36, 40, 44, 48
S_INB = 52
S_DBG = 54
S_w, S_r, S_jj, S_rot, S_q, S_m0b, S_j1 = 60, 61, 62, 63, 64, 65, 66
S_t0, S_t1, S_t2 = 3, 67, 68
S_BUD = 69; S_EV = 70; S_SOFF = 71
S_POLL = 74; S_MYIN = 75; S_CEXP = 76; S_THR = 77
S_KG = 80; S_WK = 84
S_COL = 88; S_A2 = 89; S_B2 = 90; S_BO = 91; S_PB = 92; S_J32 = 93
S_GIN = 94
S_TOK = 95; S_FAST = 78; S_W4 = 79
S_STAMP = 4
EV = {}
def ev(name):
    if name not in EV: EV[name] = len(EV)
    assert EV[name] < 64
    return EV[name] * 4

EVD = {}
def evd(name):
    if name not in EVD: EVD[name] = len(EVD)
    assert EVD[name] < 16
    return 256 + EVD[name] * 16
role = ["C"]
def stamp(name):
    L = CST if role[0] == "C" else HST
    if name == "end": idx = 8
    elif name in L: idx = L.index(name)
    else: return
    if STAMP == 3: I(f"s_memrealtime s[{S_STAMP+2*idx}:{S_STAMP+2*idx+1}]")
    elif STAMP: I(f"s_memtime s[{S_STAMP+2*idx}:{S_STAMP+2*idx+1}]")
uid = [0]
def U(p):
    uid[0] += 1
    return f"L_{p}{uid[0]}"
def reset():
    e.vmq = [[[], 0]]; e.lgq = [[[], 0]]; e.hist = []

V_L16 = 16; V_EVB = 17; V_ONE = 18; V_EVW = 19; V_CHK = 3
V_RING = 32; NRING = 6

def signal(name):
    I(f"ds_write_b8 v{V_EVB}, v{V_ONE} offset:{ev(name)}", tag="sig")
def ev_read(name, own, tag, reg=V_CHK):
    if own: I(f"ds_read_u8 v{reg}, v{V_EVB} offset:{ev(name)}", tag=tag)
    else: I(f"ds_read_b32 v{reg}, v{V_EVW} offset:{ev(name)}", tag=tag)
def ev_read2(name, own, tag): ev_read(name, own, tag, reg=2)
SLOW = []
def ev_check(name, own, tag, sleep=1, reg=V_CHK):
    ok = U("ok"); lp = U("sp")
    e.wait(lg=tag)
    I(f"v_readfirstlane_b32 s{S_EV}, v{reg}")
    I(f"s_cmp_eq_u32 s{S_EV}, {1 if own else FULL}")
    I(f"s_cbranch_scc0 {lp}")
    e.label(ok)
    rd = f"ds_read_u8 v{reg}, v{V_EVB} offset:{ev(name)}" if own else f"ds_read_b32 v{reg}, v{V_EVW} offset:{ev(name)}"
    SLOW.extend([f"{lp}:", f"    {rd}", "    s_waitcnt lgkmcnt(0)", f"    v_readfirstlane_b32 s{S_EV}, v{reg}", "    s_nop 0",
                 f"    s_cmp_eq_u32 s{S_EV}, {1 if own else FULL}", f"    s_cbranch_scc1 {ok}"]
                + ([f"    s_sleep {sleep}"] if sleep else [])
                + [f"    s_sub_u32 s{S_BUD}, s{S_BUD}, 1", f"    s_cbranch_scc0 {lp}", f"    s_mov_b32 s{S_BUD}, 0", f"    s_branch {ok}"])
def flush_slow():
    for l in SLOW: e.raw(l)
    SLOW.clear()
def ev_wait(name, own=False, sleep=1):
    t = U("t")
    ev_read(name, own, t)
    ev_check(name, own, t, sleep)
def dsig(name):
    I(f"s_add_u32 m0, s{S_W4}, {EV_LDS + evd(name)}")
    I("s_mov_b64 exec, 1")
    I(f"buffer_load_dword v{V_L16}, {srd(S_WO)}, s{S_WO+2} offen lds", tag="dsig")
    I("s_mov_b64 exec, -1")
def d_read(name, tag): I(f"ds_read_b32 v{V_CHK}, v{V_EVW} offset:{evd(name)}", tag=tag)
def d_check(name, tag):
    ok = U("ok"); lp = U("sp")
    e.wait(lg=tag)
    I(f"v_cmp_ne_u32 vcc, 0, v{V_CHK}")
    I(f"s_cbranch_vccnz {lp}")
    e.label(ok)
    SLOW.extend([f"{lp}:", f"    ds_read_b32 v{V_CHK}, v{V_EVW} offset:{evd(name)}", "    s_waitcnt lgkmcnt(0)", f"    v_cmp_ne_u32 vcc, 0, v{V_CHK}",
                 f"    s_cbranch_vccz {ok}", "    s_sleep 1",
                 f"    s_sub_u32 s{S_BUD}, s{S_BUD}, 1", f"    s_cbranch_scc0 {lp}", f"    s_mov_b32 s{S_BUD}, 0", f"    s_branch {ok}"])
def throttle():
    n = OPT["thr"]
    I(f"s_waitcnt vmcnt({n})")
    for q in e.vmq: q[1] = max(q[1], len(q[0]) - n)
def peer_read(tag, reg=V_CHK):
    I(f"ds_read_b32 v{reg}, v{V_EVW} offset:{ev('PEER')}", tag=tag)
def peer_check(tag, reg=V_CHK):
    ok = U("ok"); lp = U("sp")
    e.wait(lg=tag)
    I(f"v_readfirstlane_b32 s{S_FAST}, v{reg}")
    I(f"s_cmp_lg_u32 s{S_FAST}, 0")
    I(f"s_cbranch_scc0 {lp}")
    e.label(ok)
    SLOW.extend([f"{lp}:", f"    ds_read_b32 v{reg}, v{V_EVW} offset:{ev('PEER')}", "    s_waitcnt lgkmcnt(0)", f"    v_readfirstlane_b32 s{S_FAST}, v{reg}", "    s_nop 0",
                 f"    s_cmp_lg_u32 s{S_FAST}, 0", f"    s_cbranch_scc1 {ok}", "    s_sleep 1",
                 f"    s_sub_u32 s{S_BUD}, s{S_BUD}, 1", f"    s_cbranch_scc0 {lp}", f"    s_mov_b32 s{S_BUD}, 0", f"    s_branch {ok}"])
def peer_wait():
    t = U("t"); peer_read(t); peer_check(t)
def hstore(texts, tag):
    sl = U("ws"); bk = U("wb")
    I(f"s_cmp_eq_u32 s{S_FAST}, 2")
    I(f"s_cbranch_scc0 {sl}")
    for t in texts: I(t, tag=tag)
    e.label(bk)
    SLOW.extend([f"{sl}:", "    s_nop 7"] + [f"    {t} sc1" for t in texts] + [f"    s_branch {bk}"])
def poll_load():
    I(f"s_load_dword s{S_POLL}, s[{S_INB}:{S_INB+1}], s{S_MYIN} glc")
def poll_check(mask_sgpr=None, mask=None):
    ok = U("pk"); lp = U("pl")
    e.wait(lg="all")
    m = f"s{mask_sgpr}" if mask_sgpr is not None else str(mask)
    I(f"s_andn2_b32 s{S_EV}, {m}, s{S_POLL}")
    I(f"s_cbranch_scc1 {lp}")
    e.label(ok)
    SLOW.extend([f"{lp}:", f"    s_load_dword s{S_POLL}, s[{S_INB}:{S_INB+1}], s{S_MYIN} glc", "    s_waitcnt lgkmcnt(0)",
                 f"    s_andn2_b32 s{S_EV}, {m}, s{S_POLL}", f"    s_cbranch_scc0 {ok}",
                 f"    s_sub_u32 s{S_BUD}, s{S_BUD}, 1", f"    s_cbranch_scc0 {lp}", f"    s_mov_b32 s{S_BUD}, 0", f"    s_branch {ok}"])
def push_group(bit_fn, ds=(1, 2, 3)):
    bit_fn()
    for d in ds:
        I(f"s_xor_b32 s{S_t0}, s{S_MYIN}, {d*512}")
        I(f"s_atomic_or s{S_t2}, s[{S_INB}:{S_INB+1}], s{S_t0}")
def mk_srd(b, p, nbytes):
    I(f"s_mov_b32 s{b}, s{p}")
    I(f"s_and_b32 s{b+1}, s{p+1}, 0xffff")
    I(f"s_mov_b32 s{b+2}, {nbytes}")
    I(f"s_mov_b32 s{b+3}, 0x20000")
def lane_fields():
    I("v_lshrrev_b32 v32, 4, v0")
    I("v_and_b32 v33, 15, v0")
    I("v_bfe_u32 v34, v0, 2, 2")
    I("v_and_b32 v35, 3, v0")
    I("v_lshrrev_b32 v36, 3, v0")
    I("v_and_b32 v37, 7, v0")
def x_read_addrs(dst):
    for p in range(2):
        I(f"v_xor_b32 v38, {8 if p == 0 else 0}, v33")
        I("v_and_b32 v39, 8, v38")
        I("v_add_u32 v39, v39, v38")
        I("v_lshlrev_b32 v39, 7, v39")
        I("v_lshrrev_b32 v38, 1, v38")
        I("v_xor_b32 v38, v38, v32")
        I("v_lshl_add_u32 v39, v38, 4, v39")
        I(f"v_add_u32 v39, s{S_m0b}, v39")
        I(f"v_add_u32 v{dst+2*p}, {p*1024}, v39")
        I(f"v_xor_b32 v{dst+2*p+1}, 64, v{dst+2*p}")
def x_reads(areg, slots, dstf, tag):
    for kh in range(2):
        base = slots[kh] * SLOT
        for p in range(2):
            for sp in range(2):
                a = areg + 2 * p + sp
                if base >= 65536:
                    I(f"v_add_u32 v{1+sp}, {base & ~0xffff}, v{a}")
                    a = 1 + sp
                I(f"ds_read_b128 {dstf(p, 2*kh+sp)}, v{a} offset:{base & 0xffff}", tag=tag)
def b2_voffs(dst):
    I("v_lshrrev_b32 v38, 1, v36")
    I("v_lshrrev_b32 v40, 1, v37")
    I("v_xor_b32 v40, v40, v38")
    I("v_lshlrev_b32 v38, 10, v36")
    I("v_lshl_add_u32 v38, v40, 5, v38")
    I("v_and_b32 v40, 1, v37")
    I(f"v_lshl_add_u32 v{dst}, v40, 4, v38")
    for i in range(1, 4):
        I(f"v_add_u32 v{dst+i}, {i*7168}, v{dst}")
def b2_scalars():
    I(f"s_lshl_b32 s{S_t0}, s{S_jj}, 8")
    I(f"s_lshr_b32 s{S_t1}, s{S_w}, 1")
    I(f"s_lshl_b32 s{S_t1}, s{S_t1}, 7")
    I(f"s_add_u32 s{S_t0}, s{S_t0}, s{S_t1}")
    I(f"s_and_b32 s{S_t1}, s{S_w}, 1")
    I(f"s_lshl_b32 s{S_t1}, s{S_t1}, 15")
    I(f"s_add_u32 s{S_t0}, s{S_t0}, s{S_t1}")
    I(f"s_mul_i32 s{S_B2}, s{S_q}, {14*32768}")
    I(f"s_add_u32 s{S_B2}, s{S_B2}, s{S_t0}")
    I(f"s_lshl_b32 s{S_BO}, s{S_q}, 17")
    I(f"s_add_u32 s{S_BO}, s{S_BO}, s{S_t0}")
    I(f"s_lshl_b32 s{S_J32}, s{S_j1}, 16")
def dma4(voff, srdb, slot_addr, tag):
    for i in range(4):
        I(f"buffer_load_dwordx4 v{voff+i}, {srd(srdb)}, s{S_SOFF} offen offset:{i*1024} lds", tag=tag)
def b2_unit(g, voff):
    I(f"s_add_u32 m0, s{S_m0b}, {g*SLOT}")
    if g < 6:
        I(f"s_xor_b32 s{S_SOFF}, s{S_J32}, {g*65536}")
        I(f"s_add_u32 s{S_SOFF}, s{S_SOFF}, s{S_B2}")
    elif g == 6:
        I(f"s_lshl_b32 s{S_SOFF}, s{S_j1}, 15")
        I(f"s_xor_b32 s{S_SOFF}, s{S_SOFF}, s{S_B2}")
        I(f"s_add_u32 s{S_SOFF}, s{S_SOFF}, {6*65536}")
    else:
        I(f"s_xor_b32 s{S_SOFF}, s{S_J32}, {((g-7)^1)*65536}")
        I(f"s_add_u32 s{S_SOFF}, s{S_SOFF}, s{S_BO}")
    dma4(voff, S_W2 if g < 7 else S_WO, None, f"b{g}")
    dsig(f"Lb{g}")
def a2_soff(lam, dst):
    if lam < 12:
        I(f"s_lshl_b32 s{dst}, s{S_j1}, 14"); I(f"s_xor_b32 s{dst}, s{dst}, {lam*8192}")
    elif lam < 14:
        I(f"s_lshl_b32 s{dst}, s{S_j1}, 13"); I(f"s_xor_b32 s{dst}, s{dst}, {lam*8192}")
    else:
        I(f"s_lshl_b32 s{dst}, s{S_j1}, 14"); I(f"s_xor_b32 s{dst}, s{dst}, {((lam-14)^2)*8192}"); I(f"s_add_u32 s{dst}, s{dst}, {14*8192}")
    I(f"s_add_u32 s{dst}, s{dst}, s{S_A2}")

e.raw(f"; @launch grid=(256,1,1) block=(512,1,1) lds=163840")
e.raw('.amdgcn_target "amdgcn-amd-amdhsa--gfx950"')
e.raw(".text")
e.raw(f".globl {NAME}_kernel")
e.raw(".p2align 8")
e.raw(f".type {NAME}_kernel,@function")
e.label(f"{NAME}_kernel")
I("s_cmp_ge_u32 s2, 256")
I("s_cbranch_scc1 L_end")
I("s_load_dwordx16 s[4:19], s[0:1], 0")
I("s_load_dwordx4 s[20:23], s[0:1], 64")
if STAMP:
    I("s_memrealtime s[98:99]")
    I("s_memtime s[96:97]")
I("v_lshrrev_b32 v1, 6, v0")
I("v_and_b32 v0, 63, v0")
if OPT["codepf"]:
    I("s_cmp_lt_u32 s2, 8")
    I("s_cbranch_scc0 L_nopf")
    e.cond_begin()
    I("s_getpc_b64 s[56:57]")
    e.label("L_pc")
    I(f"v_lshlrev_b32 v2, 7, v0")
    I(f"v_lshl_add_u32 v2, v1, 13, v2")
    I(f"v_min_u32 v2, L_end-L_pc, v2")
    I(f"global_load_dword v31, v2, s[56:57]")
    e.cond_end()
    e.label("L_nopf")
I(f"v_readfirstlane_b32 s{S_t2}, v1")
if OPT["m1"]:
    I(f"s_and_b32 s{S_r}, s2, 7")
    I(f"s_lshl_b32 s{S_r}, s{S_r}, 1")
    I(f"s_bfe_u32 s{S_t0}, s2, 0x10003")
    I(f"s_or_b32 s{S_r}, s{S_r}, s{S_t0}")
    I(f"s_bfe_u32 s{S_q}, s2, 0x20004")
    I(f"s_lshr_b32 s{S_jj}, s2, 6")
else:
    I(f"s_and_b32 s{S_t0}, s2, 7")
    I(f"s_lshr_b32 s{S_jj}, s2, 3")
    I(f"s_lshr_b32 s{S_q}, s{S_t0}, 1")
    I(f"s_and_b32 s{S_t0}, s{S_t0}, 1")
    I(f"s_lshl_b32 s{S_t0}, s{S_t0}, 3")
    I(f"s_and_b32 s{S_r}, s{S_jj}, 7")
    I(f"s_or_b32 s{S_r}, s{S_r}, s{S_t0}")
    I(f"s_lshr_b32 s{S_jj}, s{S_jj}, 3")
I(f"s_getreg_b32 s{S_t0}, hwreg(HW_REG_XCC_ID, 0, 4)")
I(f"s_mul_i32 s{S_TOK}, s{S_t0}, s{S_t0}")
I(f"s_lshl_b32 s{S_TOK}, s{S_TOK}, 8")
I(f"s_add_u32 s{S_TOK}, s{S_TOK}, s{S_t0}")
I(f"s_lshl_b32 s{S_TOK}, s{S_TOK}, 8")
I(f"s_add_u32 s{S_TOK}, s{S_TOK}, 1")
I(f"s_and_b32 s{S_j1}, s{S_jj}, 1")
I(f"s_and_b32 s{S_w}, s{S_t2}, 3")
I(f"s_lshl_b32 s{S_m0b}, s{S_w}, 12")
I(f"s_mov_b32 s{S_BUD}, {OPT['spin']}")
I(f"v_lshlrev_b32 v{V_L16}, 4, v0")
I(f"s_lshl_b32 s{S_W4}, s{S_w}, 2")
I(f"v_mov_b32 v{V_EVW}, {EV_LDS}")
I(f"v_add_u32 v{V_EVB}, s{S_w}, v{V_EVW}")
I(f"v_mov_b32 v{V_ONE}, 1")
lane_fields()
I(f"v_lshl_add_u32 v2, v0, 2, v{V_EVW}")
I(f"v_lshl_add_u32 v{V_EVW}, v35, 2, v{V_EVW}")
I(f"s_lshl_b32 s{S_t0}, s{S_r}, 2")
I(f"s_add_u32 s{S_t0}, s{S_t0}, s{S_q}")
I(f"s_mul_i32 s{S_A2}, s{S_t0}, {18*8192}")
I(f"s_lshl_b32 s{S_t1}, s{S_w}, 11")
I(f"s_add_u32 s{S_A2}, s{S_A2}, s{S_t1}")
I(f"s_lshl_b32 s{S_MYIN}, s{S_t0}, 2")
I(f"s_add_u32 s{S_MYIN}, s{S_MYIN}, s{S_jj}")
I(f"s_lshl_b32 s{S_MYIN}, s{S_MYIN}, 2")
I(f"s_add_u32 s{S_MYIN}, s{S_MYIN}, s{S_w}")
I(f"s_lshl_b32 s{S_MYIN}, s{S_MYIN}, 7")
I(f"s_cmp_ge_u32 s{S_t2}, 4")
I("s_cbranch_scc1 L_H")

def after_karg():
    I("s_waitcnt lgkmcnt(0)")
    if STAMP:
        I("s_memtime s[100:101]")
        I("s_mov_b32 s72, s96")
        I("s_mov_b32 s73, s98")
def common_ptrs():
    I(f"s_add_u32 s{S_INB}, s22, {INB_OFF}")
    I(f"s_addc_u32 s{S_INB+1}, s23, 0")
    I(f"s_lshl_b32 s{S_t0}, s{S_r}, 4")
    I(f"s_add_u32 s{S_DBG}, s20, s{S_t0}")
    I(f"s_addc_u32 s{S_DBG+1}, s21, 0")
    mk_srd(S_WS, 22, WS_BYTES)
    mk_srd(S_W2, 14, 1792 * 1024)
    mk_srd(S_WO, 8, 512 * 1024)
def finish():
    if STAMP:
        I("s_waitcnt vmcnt(0)")
        stamp("end")
        I("s_memrealtime s[22:23]")
        I("s_waitcnt lgkmcnt(0)")
        I(f"s_lshl_b32 s{S_t0}, s2, 3")
        I(f"s_add_u32 s{S_t0}, s{S_t0}, s{S_w}")
        if role[0] == "H": I(f"s_add_u32 s{S_t0}, s{S_t0}, 4")
        I(f"s_lshl_b32 s{S_t0}, s{S_t0}, 6")
        I(f"s_add_u32 s{S_t0}, s{S_t0}, {STAMP_OFF}")
        I(f"v_mov_b32 v2, s{S_t0}")
        for k in range(9): I(f"v_mov_b32 v{32+k}, s{S_STAMP+2*k}")
        I("v_mov_b32 v41, s73"); I("v_mov_b32 v42, s22"); I("v_mov_b32 v43, s72"); I("v_mov_b32 v44, s100")
        I(f"v_mov_b32 v45, s{S_BUD}")
        I(f"s_getreg_b32 s{S_t1}, hwreg(HW_REG_HW_ID)")
        I(f"v_mov_b32 v46, s{S_t1}")
        I("s_mov_b64 exec, 1")
        for k in range(4): I(f"buffer_store_dwordx4 {vr(32+4*k)}, v2, {srd(S_WS)}, 0 offen offset:{16*k}")
    if STAMP == 3:
        if OPT["padk"] >= 0 and (OPT["padr"] == 1) == (role[0] == "H"):
            I(f"s_sub_u32 s24, s{S_STAMP+2*OPT['padk']}, s73")
        else:
            I("s_mov_b32 s24, 0")
        I("s_add_u32 s24, s24, 6000")
        l = U("pad")
        e.label(l)
        I("s_memrealtime s[26:27]"); I("s_waitcnt lgkmcnt(0)"); I("s_sub_u32 s25, s26, s73"); I("s_cmp_lt_u32 s25, s24"); I(f"s_cbranch_scc1 {l}")
    I("s_endpgm")
    flush_slow()

def units(att):
    L = []
    for u in range(4): L += [("x", u, 0), ("x", u, 1), ("g", 0, u), ("g", 1, u)]
    L += [("g", 2, u) for u in range(4)]
    if not att: L += [("g", 3, 0), ("g", 3, 1)]
    return L
def phys(att, k):
    if not att: return (k - 14) % 9
    i = (k - 13) % 8
    return 8 if i == 7 else i
LCHK = {10: "Lg22", 11: "Lg23", 12: "Lg30", 13: "Lg31"}
NBAR = 8
def uname(un): return f"x{un[1]}" if un[0] == "x" else f"g{un[1]}{un[2]}"

class Stream:
    def __init__(self, steps):
        self.steps = steps; self.side = []; self.after = {}; self.nh = 0
    def add(self, ready, deadline, fns):
        for f in fns: self.side.append([ready, deadline, f])
    def issue(self, k, half):
        st = self.steps[k]
        b = V_RING + (k % NRING) * 4
        a, off, d2 = st["rd"]
        if half == 0:
            if "pre" in st: st["pre"]()
            I(f"ds_read_b64_tr_b16 {vr(b,2)}, v{a} offset:{off}", tag=f"w{k}")
        else:
            I(f"ds_read_b64_tr_b16 {vr(b+2,2)}, v{a} offset:{off+d2}", tag=f"w{k}")
            if "post" in st: st["post"](k)
    def pump(self, k, n):
        c = 0
        while self.side and c < n and self.side[0][0] <= k:
            self.side.pop(0)[2](); c += 1
    def run(self, rate):
        n = len(self.steps)
        for k in range(min(D, n)):
            self.issue(k, 0); self.issue(k, 1)
        for k in range(n):
            st = self.steps[k]
            while any(s[1] <= k for s in self.side): self.side.pop(0)[2]()
            if "need" in st: st["need"]()
            if OPT["pair"] and k % 2 == 0 and k + 1 < n: e.wait(lg=f"w{k+1}")
            e.wait(lg=f"w{k}")
            mfs = st["mf"](vr(V_RING + (k % NRING) * 4), st)
            r = rate(k)
            I(mfs[0])
            if k + D < n: self.issue(k + D, 0)
            self.pump(k, (r + 1) // 2)
            I(mfs[1])
            if k + D < n: self.issue(k + D, 1)
            for m in mfs[2:]: I(m)
            self.pump(k, r // 2)
            if k in self.after: self.after[k]()
            stamp(f"k{k}")
        while self.side: self.side.pop(0)[2]()

C_WR = 4; C_XR = 12; C_EXW = 20; C_HA = 21; C_HX = (24, 56, 60); C_HACC = 28; C_ACC = 64
role[0] = "C"
if OPT["prio"]: I("s_setprio 2")
I("v_mov_b32 v1, 0")
I("ds_write_b32 v2, v1")
I(f"ds_write_b32 v2, v{V_ONE} offset:256")
x_read_addrs(C_XR)
I("v_lshl_add_u32 v38, v32, 3, v34")
I("v_lshlrev_b32 v38, 7, v38")
I("v_lshl_add_u32 v38, v35, 3, v38")
I("v_lshrrev_b32 v39, 1, v34")
I("v_and_b32 v40, 1, v32")
I("v_lshl_or_b32 v39, v40, 1, v39")
I(f"s_cmp_ge_u32 s{S_jj}, 2")
I(f"s_cselect_b32 s{S_t0}, s{S_w}, 0")
I(f"v_xor_b32 v41, s{S_t0}, v39")
for t in range(4):
    I(f"v_xor_b32 v40, {t}, v41")
    I(f"v_lshl_add_u32 v{C_WR+t}, v40, 5, v38")
    I(f"v_add_u32 v{C_WR+4+t}, 0x10000, v{C_WR+t}")
I("v_lshrrev_b32 v38, 1, v33")
I("v_xor_b32 v38, v38, v32")
I("v_lshlrev_b32 v38, 4, v38")
I("v_lshl_add_u32 v38, v33, 7, v38")
I(f"v_add_u32 v{C_HA}, {HALO_LDS}, v38")
I(f"v_xor_b32 v{C_HA+1}, 64, v{C_HA}")
b2_scalars()
after_karg()
common_ptrs()
I(f"s_cmp_eq_u32 s{S_w}, 0")
I("s_cbranch_scc0 L_c_noinit")
e.cond_begin()
for k in range(4):
    I(f"s_mov_b32 s{S_KG+k}, 0")
    I(f"s_add_u32 s{S_t0}, s{S_MYIN}, {k*128}")
    I(f"s_atomic_swap s{S_KG+k}, s[{S_INB}:{S_INB+1}], s{S_t0} glc")
I("s_waitcnt lgkmcnt(0)")
I(f"s_atomic_add s{S_TOK}, s[{S_DBG}:{S_DBG+1}], 0")
e.cond_end()
e.label("L_c_noinit")
stamp("c_go")
I(f"s_cmp_ge_u32 s{S_jj}, 2")
I("s_cbranch_scc1 L_c_att")

def xfr(p, s): return ar((p * 16 + s) * 4)
def c_prog(att):
    reset()
    UL = units(att)
    slot_of = {uname(un) + (str(un[2]) if un[0] == "x" else ""): phys(att, k) for k, un in enumerate(UL)}
    subs = [un for un in UL if un[0] == "g"]
    def acc(c, T, p):
        base = C_ACC + 32 * (c & 1)
        if att: return base + (T * 2 + p) * 4
        return base + (((T >> 1) * 2 + p) * 2 + (T & 1)) * 4
    if att:
        I(f"s_mul_i32 s{S_t0}, s{S_w}, 5120")
        I(f"s_add_u32 s{S_t0}, s{S_t0}, {EXCH_LDS+4096}")
        I(f"v_add_u32 v{C_EXW}, s{S_t0}, v{V_L16}")
    steps = []
    nh = [0]
    for i, (_, c, u) in enumerate(subs):
        nm = f"g{c}{u}"; slot = slot_of[nm]
        for h in range(2):
            for ks in range(4):
                for tt in range(2):
                    T = 2 * h + tt; j = h * 8 + ks * 2 + tt
                    if c < 3: s = 4 * u + ks; ta = T; zero = (u == 0 and ks == 0)
                    else: s = 4 * (u + 2 * h) + ks; ta = tt; zero = (u == 0 and h == 0 and ks == 0)
                    halo = att and T == 0 and c != 1
                    st = dict(rd=(C_WR + (4 if slot >= 4 else 0) + T, (slot & 3) * SLOT + ks * 4096, 512))
                    def mf(W, st, s=s, ta=ta, zero=zero, c=c, halo=halo):
                        out = []
                        sw = att and c == 2
                        for p in range(2):
                            a, b = (xfr(p, s), W) if sw else (W, xfr(p, s))
                            d = vr(acc(c, ta, p))
                            out.append(f"{MF} {d}, {a}, {b}, {'0' if zero else d}")
                        if halo:
                            a, b = (vr(st["hreg"]), W) if sw else (W, vr(st["hreg"]))
                            out.append(f"{MF} {vr(C_HACC)}, {a}, {b}, {'0' if zero else vr(C_HACC)}")
                        return out
                    st["mf"] = mf
                    def post(k, st=st, s=s, halo=halo, j=j, i=i, nm=nm):
                        if halo:
                            st["hreg"] = C_HX[nh[0] % 3]; nh[0] += 1
                            I(f"ds_read_b128 {vr(st['hreg'])}, v{C_HA+(s&1)} offset:{(s>>1)*2048}", tag=f"w{k}")
                        if j == 15 and i >= NBAR - 2: signal("R" + nm)
                        if j == 11 and i + 1 in LCHK and i + 1 < len(subs):
                            d_read(LCHK[i + 1], f"chk{i+1}")
                    st["post"] = post
                    if j == 0:
                        def pre(i=i, nm=nm, c=c, u=u):
                            stamp(f"t{i}")
                            if i < NBAR: I("s_barrier")
                            elif i in LCHK: d_check(LCHK[i], f"chk{i}")
                            stamp(f"s{i}")
                            if c == 0:
                                x_reads(C_XR, (slot_of[f"x{u}0"], slot_of[f"x{u}1"]), lambda p, k4: xfr(p, 4 * u + k4), f"xr{u}")
                        st["pre"] = pre
                    steps.append(st)
    S = Stream(steps)
    def pack8(a):
        return [lambda k=k: I(f"v_cvt_pk_bf16_f32 v{a+k}, v{a+2*k}, v{a+2*k+1}") for k in range(4)]
    def relu4(a):
        return [lambda k=k: I(f"v_pk_max_i16 v{a+k}, v{a+k}, 0") for k in range(4)]
    QSLOT = phys(True, 13)
    def epi(c, h):
        F = []
        if att:
            for t in (2 * h, 2 * h + 1):
                a = acc(c, t, 0)
                F += pack8(a)
                def wr(t=t, a=a):
                    I(f"v_xor_b32 v1, {t*1024}, v{C_EXW}")
                    if c == 1: I(f"v_add_u32 v1, {(QSLOT*SLOT - EXCH_LDS - 4096) & 0xffffffff}, v1")
                    I(f"ds_write_b128 v1, {vr(a)}", tag="exw")
                F.append(wr)
            if h == 0 and c != 1:
                def hw():
                    I(f"v_cvt_pk_bf16_f32 v{C_HACC}, v{C_HACC}, v{C_HACC+1}")
                    I(f"v_cvt_pk_bf16_f32 v{C_HACC+1}, v{C_HACC+2}, v{C_HACC+3}")
                    I(f"s_add_u32 s{S_t0}, s{S_m0b}, 4096")
                    I(f"v_subrev_u32 v1, s{S_t0}, v{C_EXW}")
                    I(f"ds_write2_b64 v1, {vr(C_HACC,2)}, {vr(C_HACC,2)} offset0:0 offset1:1", tag="exw")
                F.append(hw)
            if h == 1: F.append(lambda: signal(f"E{c}"))
        else:
            lam = 4 * c + h
            for p in range(2):
                a = acc(c, 2 * h, p)
                F += pack8(a) + relu4(a)
                def st(a=a, p=p):
                    if p == 0: a2_soff(lam, S_GIN)
                    hstore([f"buffer_store_dwordx4 {vr(a)}, v{V_L16}, {srd(S_WS)}, s{S_GIN} offen offset:{p*1024}"], f"st{c}")
                F.append(st)
        return F
    n = len(steps)
    for c, i, reuse in ((0, 6, 8), (1, 7, 12), (2, 11, 99)):
        for h in range(2):
            k = 16 * i + 8 * h + 7
            if k == n - 1: continue
            dl = min(16 * reuse + (8 * h if reuse == 8 else 0), n)
            pre = []
            if att and c == 2:
                t = U("t")
                pre = [lambda t=t: ev_read2("D0", False, t), lambda t=t: ev_check("D0", False, t, reg=2)]
            S.after[k] = lambda k=k, c=c, h=h, dl=dl, pre=pre: S.add(max(k + 2, 16 * 7 - 3 if att else 0), dl, pre + epi(c, h))
    def ownbit(b):
        def f():
            I(f"s_mul_i32 s{S_t2}, s{S_jj}, 3"); I(f"s_lshl_b32 s{S_t2}, {1<<b}, s{S_t2}")
        return f
    def cnt4(tag): assert e.vmq[0][0].count(tag) == 4, tag
    if not att:
        t = U("t")
        S.after[96] = lambda: peer_read(t, 2)
        S.after[101] = lambda: peer_check(t, 2)
        S.after[OPT["kl1"]] = lambda: (cnt4("st1"), e.wait(vm="st1"), push_group(ownbit(0), (0, 1, 2, 3)), stamp("c_l1"))
        S.after[n - 2] = lambda: (cnt4("st2"), e.wait(vm="st2"), push_group(ownbit(1), (0, 1, 2, 3)))
    S.run(lambda k: OPT["side"])
    stamp("c_end")
    for f in (epi(2, 1) if att else epi(3, 0)): f()
    if OPT["prio"]: I("s_setprio 0")
    lane_fields()
    b2_voffs(4)
    names = [uname(un) for un in UL]
    if not att:
        e.wait(vm="st3")
        push_group(ownbit(2), (0, 1, 2, 3))
        ev_wait("R" + names[-2]); b2_unit(6, 4)
        ev_wait("R" + names[-1]); b2_unit(7, 4)
    else:
        ev_wait("R" + names[-1])
        b2_unit(4, 4); b2_unit(5, 4); throttle(); b2_unit(6, 4)
        ev_wait("D2", own=False); throttle(); b2_unit(8, 4); throttle(); b2_unit(7, 4)
    I("s_waitcnt vmcnt(0)")
    I("s_waitcnt lgkmcnt(0)")
    finish()

c_prog(False)
e.label("L_c_att")
c_prog(True)

H_XD = 4; H_WD = 6; H_BD = 12; H_G = 20; H_BR = 24; H_ACC = 64
def a2r(lam, p):
    if lam < 16: return ar(lam * 8 + p * 4)
    return vr((56 if lam == 16 else 4) + p * 4)
e.label("L_H")
role[0] = "H"
reset()
if OPT["prio"]: I("s_setprio 3")
if OPT["rot"] == 2: I(f"s_mov_b32 s{S_rot}, s{S_r}")
elif OPT["rot"] == 1: I(f"s_add_u32 s{S_rot}, s{S_r}, s{S_jj}")
else: I(f"s_mov_b32 s{S_rot}, 0")
I("v_lshlrev_b32 v38, 11, v36")
I("v_xor_b32 v39, v37, v32")
I(f"v_lshl_add_u32 v{H_XD}, v39, 4, v38")
I("v_xor_b32 v39, 4, v39")
I("v_lshl_add_u32 v38, v39, 4, v38")
I(f"v_add_u32 v{H_XD+1}, {14*1024}, v38")
I(f"s_lshl_b32 s{S_t0}, s{S_r}, 17")
I(f"s_lshl_b32 s{S_t1}, s{S_w}, 15")
I(f"s_add_u32 s{S_t0}, s{S_t0}, s{S_t1}")
for g4 in range(4):
    I(f"s_add_u32 s{S_WK+g4}, s{S_rot}, {g4}")
    I(f"s_and_b32 s{S_WK+g4}, s{S_WK+g4}, 3")
    I(f"s_lshl_b32 s{S_KG+g4}, s{S_WK+g4}, 8")
    I(f"s_add_u32 s{S_KG+g4}, s{S_KG+g4}, s{S_t0}")
I(f"s_mul_i32 s{S_COL}, s{S_q}, 896")
I(f"s_lshl_b32 s{S_t0}, s{S_q}, 8")
I(f"s_sub_u32 s{S_t0}, s{S_t0}, 256")
I(f"s_cmp_ge_u32 s{S_jj}, 2")
I(f"s_cselect_b32 s{S_COL}, s{S_t0}, s{S_COL}")
I(f"s_mov_b32 s{S_W+2}, {512*3584}")
I(f"s_cmov_b32 s{S_W+2}, {512*3072}")
I(f"s_mov_b32 s{S_t1}, 3584")
I(f"s_cmov_b32 s{S_t1}, 3072")
I(f"s_lshl_b32 s{S_t0}, s{S_jj}, 7")
I(f"s_add_u32 s{S_COL}, s{S_COL}, s{S_t0}")
I(f"s_lshl_b32 s{S_t0}, s{S_w}, 5")
I(f"v_add_u32 v38, s{S_t0}, v36")
I(f"v_mul_lo_u32 v38, v38, s{S_t1}")
I("v_bfe_u32 v39, v36, 1, 1")
I("v_lshrrev_b32 v40, 1, v37")
I("v_xor_b32 v40, v40, v39")
I("v_and_b32 v41, 1, v37")
I("v_lshl_add_u32 v38, v41, 4, v38")
I(f"v_lshl_add_u32 v{H_WD}, v40, 5, v38")
I("v_xor_b32 v42, 2, v40")
I(f"v_lshl_add_u32 v{H_WD+1}, v42, 5, v38")
I(f"s_lshl_b32 s{S_t0}, s{S_t1}, 3")
I(f"s_sub_u32 s{S_t0}, s{S_t0}, 1024")
I(f"v_add_u32 v{H_WD+1}, s{S_t0}, v{H_WD+1}")
I(f"s_lshl_b32 s{S_t0}, s{S_t0}, 1")
I(f"v_add_u32 v{H_WD+2}, s{S_t0}, v{H_WD}")
I(f"v_add_u32 v{H_WD+3}, s{S_t0}, v{H_WD+1}")
I(f"s_lshl_b32 s{S_t1}, s{S_t1}, 7")
for g4 in range(4): I(f"s_mul_i32 s{S_WK+g4}, s{S_WK+g4}, s{S_t1}")
I(f"s_mov_b32 s{S_X+2}, {2048*1024}")
I(f"s_mov_b32 s{S_X+3}, 0x20000")
I(f"s_mov_b32 s{S_W+3}, 0x20000")
I(f"s_lshl_b32 s{S_t0}, s{S_rot}, 2")
I(f"v_add_u32 v43, s{S_t0}, v33")
I("v_and_b32 v43, 15, v43")
I("v_lshlrev_b32 v43, 6, v43")
I("v_lshl_add_u32 v43, v32, 4, v43")
after_karg()
I(f"s_mov_b32 s{S_X}, s4")
I(f"s_and_b32 s{S_X+1}, s5, 0xffff")
I(f"s_cmp_ge_u32 s{S_jj}, 2")
I(f"s_cselect_b32 s{S_W}, s6, s12")
I(f"s_cselect_b32 s{S_W+1}, s7, s13")
I(f"s_and_b32 s{S_W+1}, s{S_W+1}, 0xffff")
I(f"s_cmp_ge_u32 s{S_jj}, 2")
I("s_cbranch_scc1 L_h_att")

G_GW = 96; G_ACC = 112; G_XR = 120
def h_prog(att):
    reset()
    UL = units(att); NS = 7 if att else 8
    CH = [1024, 0, 2048] if att else [0, 256, 512]
    def issue(k):
        un = UL[k]
        I(f"s_add_u32 m0, s{S_m0b}, {phys(att,k)*SLOT}")
        if un[0] == "x":
            I(f"s_add_u32 s{S_SOFF}, s{S_KG+un[1]}, {un[2]*128}")
            for i in range(4):
                I(f"buffer_load_dwordx4 v{H_XD+(i>>1)}, {srd(S_X)}, s{S_SOFF} offen offset:{i*1024} lds", tag=f"u{k}")
            return
        _, c, u = un
        if c < 3:
            I(f"s_add_u32 s{S_SOFF}, s{S_WK+u}, s{S_COL}")
            if CH[c]: I(f"s_add_u32 s{S_SOFF}, s{S_SOFF}, {CH[c]}")
        else:
            v = u
            if v == 0:
                I("v_lshrrev_b32 v10, 2, v0")
                I("v_and_b32 v10, 1, v10")
                I(f"v_mul_u32_u24 v11, {256*3584-64}, v10")
                I(f"v_add_u32 v{H_WD}, v{H_WD}, v11")
                I(f"v_add_u32 v{H_WD+2}, v{H_WD+2}, v11")
                I(f"v_sub_u32 v11, {256*3584-64}, v11")
                I(f"v_add_u32 v{H_WD+1}, v{H_WD+1}, v11")
                I(f"v_add_u32 v{H_WD+3}, v{H_WD+3}, v11")
                I(f"v_mul_u32_u24 v10, {2*256*3584}, v10")
                I(f"v_sub_u32 v10, {256*3584}, v10")
                I(f"s_cmp_ge_u32 s{S_WK}, {256*3584}")
                I(f"s_cselect_b32 s{S_t0}, 1, 0")
            else:
                I(f"s_cmp_ge_u32 s{S_WK}, {256*3584}")
                I(f"s_cselect_b32 s{S_t1}, 1, 0")
                I(f"s_cmp_ge_u32 s{S_WK+1}, {256*3584}")
                I(f"s_cselect_b32 s{S_t0}, 1, 0")
                I(f"s_sub_u32 s{S_t0}, s{S_t0}, s{S_t1}")
            I(f"s_sub_u32 s{S_t1}, 0, s{S_t0}")
            I(f"v_mad_i32_i24 v{H_WD}, v10, s{S_t0}, v{H_WD}")
            I(f"v_mad_i32_i24 v{H_WD+2}, v10, s{S_t0}, v{H_WD+2}")
            I(f"v_mad_i32_i24 v{H_WD+1}, v10, s{S_t1}, v{H_WD+1}")
            I(f"v_mad_i32_i24 v{H_WD+3}, v10, s{S_t1}, v{H_WD+3}")
            I(f"s_min_u32 s{S_SOFF}, s{S_WK+v}, s{S_WK+v+2}")
            I(f"s_add_u32 s{S_SOFF}, s{S_SOFF}, s{S_COL}")
            I(f"s_lshl_b32 s{S_t0}, s{S_jj}, 6")
            I(f"s_sub_u32 s{S_SOFF}, s{S_SOFF}, s{S_t0}")
            I(f"s_add_u32 s{S_SOFF}, s{S_SOFF}, 768")
        dma4(H_WD, S_W, None, f"u{k}")
        if k >= 18: dsig("L" + uname(un))
    def gate_copy(u):
        sl = (phys(att, 4 * u), phys(att, 4 * u + 1))
        x_reads(G_XR, sl, lambda p, k4: ar((p * 4 + k4) * 4), f"gx{u}")
    def gate_dots(u, half):
        e.wait(vm="gw")
        for k4 in (2 * half, 2 * half + 1):
            for k in range(4):
                I(f"v_mov_b32_dpp v{G_GW+4+4*(k4&1)+k}, v{G_GW+k} row_newbcast:{4*u+k4} row_mask:0xf bank_mask:0xf")
        e.wait(lg=f"gx{u}")
        for k4 in (2 * half, 2 * half + 1):
            for p in range(2):
                d = vr(G_ACC + 4 * p)
                I(f"{MF} {d}, {vr(G_GW+4+4*(k4&1))}, {ar((p*4+k4)*4)}, {'0' if u == 0 and k4 == 0 else d}")
    def gate(): gate_finish()
    def gate_finish():
        Z = 1; G = H_G
        T = [f"v_cvt_pk_bf16_f32 v{Z}, v{G_ACC}, v{G_ACC+4}", f"v_lshlrev_b32 v{G}, 16, v{Z}", f"v_and_b32 v{G+2}, 0xffff0000, v{Z}"]
        T += [f"v_mul_f32 v{G+2*p}, {f2u(-1.4426950408889634)}, v{G+2*p}" for p in range(2)]
        T += [f"v_exp_f32 v{G+2*p}, v{G+2*p}" for p in range(2)]
        T += [f"v_add_f32 v{G+2*p}, 1.0, v{G+2*p}" for p in range(2)]
        T += [f"v_rcp_f32 v{G+2*p}, v{G+2*p}" for p in range(2)]
        T += [f"v_cvt_pk_bf16_f32 v{Z}, v{G}, v{G+2}", f"v_lshlrev_b32 v{G}, 16, v{Z}", f"v_and_b32 v{G+2}, 0xffff0000, v{Z}"]
        T += [f"v_sub_f32 v{G+1+2*p}, 1.0, v{G+2*p}" for p in range(2)]
        T += [f"v_cvt_pk_bf16_f32 v{Z}, v{G+1}, v{G+3}", f"v_lshlrev_b32 v{G+1}, 16, v{Z}", f"v_and_b32 v{G+3}, 0xffff0000, v{Z}"]
        for t in T: I(t)
    def landed(k):
        e.wait(vm=f"u{k}"); signal("L" + uname(UL[k]))
    relw = set(); relp = {}
    def rel_pre(k):
        nm = uname(UL[k])
        if nm in relw or nm in relp: return
        relp[nm] = U("t")
        ev_read("R" + nm, UL[k][0] == "x", relp[nm])
    def released(k):
        nm = uname(UL[k])
        if nm in relw: return
        rel_pre(k)
        relw.add(nm)
        ev_check("R" + nm, UL[k][0] == "x", relp[nm])

    V_Q = 64; V_S = 96; V_BIAS = 32; V_RINV = 40; V_T = 48; A_KV = 64; A_ONES = 96; V_AD = 24
    QSLOT = phys(True, 13)
    def att_setup():
        I(f"s_add_u32 s{S_t0}, s{S_m0b}, {EXCH_LDS+4096}")
        I(f"v_add_u32 v{V_AD}, s{S_t0}, v{V_L16}")
        I("v_bfe_u32 v1, v0, 3, 1")
        I("v_lshlrev_b32 v1, 12, v1")
        I(f"v_sub_u32 v{V_AD+2}, v{V_AD}, v1")
        I("v_xor_b32 v1, 4096, v1")
        I(f"v_sub_u32 v{V_AD+1}, v{V_AD}, v1")
        I("v_lshrrev_b32 v1, 5, v0")
        I("v_lshlrev_b32 v1, 12, v1")
        I(f"v_sub_u32 v{V_AD+4}, v{V_AD}, v1")
        I("v_xor_b32 v1, 4096, v1")
        I(f"v_sub_u32 v{V_AD+3}, v{V_AD}, v1")
        I(f"v_add_u32 v{V_AD+5}, {(QSLOT*SLOT - EXCH_LDS - 4096) & 0xffffffff}, v{V_AD}")
        I(f"s_mov_b32 s{S_CEXP}, {f2u(0.25*1.4426950408889634)}")
        I(f"s_or_b32 s{S_t0}, s{S_r}, s{S_w}")
        I(f"s_cmp_eq_u32 s{S_t0}, 0")
        I(f"s_cselect_b32 s{S_THR}, -16, -9")
        I(f"v_mov_b32 v{V_T}, {NEG}")
        I(f"v_and_b32 v{V_T+1}, 15, v0")
        I(f"v_lshrrev_b32 v{V_T+2}, 4, v0")
        I(f"v_lshlrev_b32 v{V_T+2}, 2, v{V_T+2}")
        for p in range(2):
            x8 = 8 if p == 0 else 0
            I(f"v_xor_b32 v{V_T+3}, {x8}, v{V_T+1}")
            I(f"v_xor_b32 v{V_T+4}, {x8}, v{V_T+2}")
            I(f"v_sub_u32 v{V_T+3}, v{V_T+3}, v{V_T+4}")
            for r in range(4):
                I(f"v_subrev_u32 v{V_T+4}, {r}, v{V_T+3}")
                I(f"v_cmp_lt_u32 vcc, 7, v{V_T+4}")
                I(f"v_cmp_lt_i32 s[56:57], s{S_THR}, v{V_T+4}")
                I("s_and_b64 vcc, vcc, s[56:57]")
                I(f"v_cndmask_b32 v{V_BIAS+p*4+r}, 0, v{V_T}, vcc")
        I(f"v_mov_b32 v{V_T}, 0x3f803f80")
        for k in range(4): I(f"v_accvgpr_write_b32 a{A_ONES+k}, v{V_T}")
        for k in range(32): I(f"v_mov_b32 v{V_Q+k}, 0")
        I("s_mov_b32 s56, 0xff00ff00"); I("s_mov_b32 s57, 0xff00ff00")
        I("s_not_b64 s[58:59], s[56:57]")
    def peer_issue():
        l = U("pi")
        I(f"s_cmp_eq_u32 s{S_w}, 0")
        I(f"s_cbranch_scc0 {l}")
        e.cond_begin()
        I(f"s_load_dword s{S_POLL}, s[{S_DBG}:{S_DBG+1}], 0 glc")
        e.cond_end()
        e.label(l)
    def peer():
        l = U("pe")
        I(f"s_cmp_eq_u32 s{S_w}, 0")
        I(f"s_cbranch_scc0 {l}")
        e.cond_begin()
        lp = U("pp"); ok = U("po")
        e.label(lp)
        I("s_waitcnt lgkmcnt(0)")
        I(f"s_bitcmp1_b32 s{S_POLL}, 4")
        I(f"s_cbranch_scc1 {ok}")
        I("s_sleep 8")
        I(f"s_load_dword s{S_POLL}, s[{S_DBG}:{S_DBG+1}], 0 glc")
        I(f"s_sub_u32 s{S_BUD}, s{S_BUD}, 1")
        I(f"s_cbranch_scc0 {lp}")
        I(f"s_mov_b32 s{S_BUD}, 0")
        I("s_waitcnt lgkmcnt(0)")
        e.label(ok)
        I(f"s_lshl_b32 s{S_t0}, s{S_TOK}, 4")
        I(f"s_cmp_eq_u32 s{S_t0}, s{S_POLL}")
        I(f"s_cselect_b32 s{S_t0}, {2 if OPT['fast'] else 1}, 1")
        I(f"v_mov_b32 v1, s{S_t0}")
        I(f"ds_write_b32 v{V_EVB}, v1 offset:{ev('PEER')}")
        e.cond_end()
        e.label(l)
    issue(0); issue(1)
    if att:
        I(f"s_lshl_b32 s{S_t0}, s{S_r}, 17")
        I(f"s_sub_u32 s{S_t0}, s{S_t0}, 16384")
        I(f"v_add_u32 v38, s{S_t0}, v{H_XD}")
        I(f"s_sub_u32 s{S_t0}, s{S_t0}, {13*1024}")
        I(f"v_add_u32 v39, s{S_t0}, v{H_XD+1}")
        I("v_max_i32 v38, 0, v38")
        I("v_max_i32 v39, 0, v39")
        I(f"s_add_u32 s{S_t0}, s{S_rot}, s{S_w}")
        I(f"s_and_b32 s{S_t0}, s{S_t0}, 3")
        I(f"s_lshl_b32 s{S_t0}, s{S_t0}, 8")
        for i in range(4):
            kh, rh = divmod(i, 2)
            I(f"s_add_u32 m0, s{S_m0b}, {HALO_LDS + i*1024 - kh*128}")
            I(f"buffer_load_dwordx4 v{38+rh}, {srd(S_X)}, s{S_t0} offen offset:{kh*128} lds", tag="hx")
    issue(2)
    mk_srd(S_GW, 16, 1024)
    I(f"buffer_load_dwordx4 {vr(G_GW)}, v43, {srd(S_GW)}, 0 offen", tag="gw")
    common_ptrs()
    mk_srd(S_OUT, 18, 2048 * 1024)
    x_read_addrs(G_XR)
    b2_voffs(H_BD)
    b2_scalars()
    if att: att_setup()
    for k in (3, 4, 5): issue(k)
    if att: sched = [[6, 7], [8, 9], [10], [11, 12, 13], [14], [15, 16, 17], [18], []]
    else: sched = [[6, 7], [8, 9], [10, 11], [12, 13], [14, 15], [16, 17], [18], []]
    gk = [k for k, un in enumerate(UL) if un[0] == "g"]
    for i in range(NBAR):
        stamp(f"h_a{i}")
        e.wait(vm=f"u{gk[i] if i < NBAR - 1 else 17}")
        I("s_barrier")
        if i == 3: peer_issue()
        if i == 5: peer()
        stamp(f"h_b{i}")
        if i % 2 == 0: gate_copy(i // 2)
        for j, k in enumerate(sched[i]):
            issue(k)
            if j == 0: gate_dots(i // 2, i % 2)
        if not sched[i]: gate_dots(i // 2, i % 2)
    if OPT["prio"] == 1: I("s_setprio 0")
    stamp("h_wend")
    nU = len(UL)
    def B(g):
        released(nU + g - NS)
        b2_unit(g, H_BD)
    def Bsig(g):
        e.wait(vm=f"b{g}"); signal(f"Lb{g}")
    def a2_load(lam):
        a2_soff(lam, S_t1)
        for p in range(2):
            I(f"buffer_load_dwordx4 {a2r(lam,p)}, v{V_L16}, {srd(S_WS)}, s{S_t1} offen offset:{p*1024} sc1", tag=f"a{lam}")
    def a2_store(lam, tag):
        a2_soff(lam, S_t1)
        hstore([f"buffer_store_dwordx4 {a2r(lam,p)}, v{V_L16}, {srd(S_WS)}, s{S_t1} offen offset:{p*1024}" for p in range(2)], tag)
    def br_setup():
        I("v_lshrrev_b32 v1, 2, v0")
        I("v_bfe_u32 v2, v0, 3, 2")
        I("v_lshlrev_b32 v1, 7, v1")
        I("v_lshl_add_u32 v1, v2, 5, v1")
        I("v_and_b32 v2, 3, v0")
        I("v_lshl_add_u32 v1, v2, 3, v1")
        I(f"s_lshr_b32 s{S_t0}, s{S_q}, 1")
        I(f"s_lshl_b32 s{S_t0}, s{S_t0}, 13")
        I(f"s_and_b32 s{S_t1}, s{S_q}, 1")
        I(f"s_lshl_b32 s{S_t1}, s{S_t1}, 6")
        I(f"s_or_b32 s{S_t0}, s{S_t0}, s{S_t1}")
        I(f"v_xor_b32 v1, s{S_t0}, v1")
        for tau in range(4):
            cb = 3 - tau
            for tt in range(2):
                I(f"v_xor_b32 v{H_BR+2*tau+tt}, {(cb>>1)*8192 + (cb&1)*64 + tt*32}, v1")
    S_PM = S_CEXP
    if not att:
        issue(19)
        gate()
        br_setup()
        peer_wait()
        stamp("h_gate")
        throttle(); issue(20)
        throttle(); issue(21)
        for g in (0, 1, 2):
            throttle(); B(g)
        poll_load()
        throttle(); B(3)
        poll_check(mask=0x9)
        stamp("h_l1")
        for lam in range(8): a2_load(lam)
        B(4); throttle(); B(5); throttle(); b2_unit(8, H_BD)
        def f_c():
            poll_check(mask=0x12)
            for lam in (8, 9, 10, 11): a2_load(lam)
        def f_h():
            poll_check(mask=0x24); a2_load(12); a2_load(13)
        def f_o():
            poll_check(mask=0xc0)
            for lam in (16, 17, 14, 15): a2_load(lam)
        side = {(8, -40): poll_load, (8, -24): f_c, (12, -36): poll_load, (12, -22): f_h, (14, -34): poll_load, (14, -20): f_o}
        lg_need = {}
        early = list(range(8))
    else:
        issue(19)
        gate()
        stamp("h_gate")
        def kv_reads(m0, tag):
            for t in range(4):
                I(f"ds_read_b64 {ar(A_KV+8*t,2)}, v{m0} offset:{t*1024}", tag=f"{tag}{t}")
                I(f"ds_read_b128 {ar(A_KV+8*t+2)}, v{V_AD} offset:{t*1024}", tag=f"{tag}{t}")
                I(f"ds_read_b64 {ar(A_KV+8*t+6,2)}, v{m0+1} offset:{t*1024+8}", tag=f"{tag}{t}")
        B(1)
        peer_wait()
        ev_wait("E0")
        kv_reads(V_AD + 1, "k")
        signal("D0")
        B(2)
        ev_wait("E1", own=True)
        def Preg(t, p): return V_Q + 8 * t + 4 * p
        for half, m in enumerate(("s[56:57]", "s[58:59]")):
            I(f"s_mov_b64 exec, {m}")
            for t in range(4):
                for p in range(2):
                    I(f"ds_read_b64 {vr(Preg(t,p)+2*half,2)}, v{V_AD+5} offset:{t*1024+p*8}", tag="q")
        I("s_mov_b64 exec, -1")
        stamp("h_q")
        e.wait(lg="q")
        un = [(i >> 1, i & 1) for i in range(8)]
        Sc = lambda i: V_S + 4 * i
        for i, (t, p) in enumerate(un):
            I(f"{MF} {vr(Sc(i))}, {ar(A_KV+8*t+4*p)}, {vr(Preg(t,p))}, {vr(V_BIAS+4*p)}")
        b2_unit(0, H_BD)
        m = [V_T + i for i in range(8)]
        for i in range(8):
            if OPT["lround"]:
                I(f"v_cvt_pk_bf16_f32 v1, v{Sc(i)}, v{Sc(i)+1}")
                I(f"v_cvt_pk_bf16_f32 v2, v{Sc(i)+2}, v{Sc(i)+3}")
                I(f"v_lshlrev_b32 v{Sc(i)}, 16, v1")
                I(f"v_and_b32 v{Sc(i)+1}, 0xffff0000, v1")
                I(f"v_lshlrev_b32 v{Sc(i)+2}, 16, v2")
                I(f"v_and_b32 v{Sc(i)+3}, 0xffff0000, v2")
            I(f"v_max3_f32 v{m[i]}, v{Sc(i)}, v{Sc(i)+1}, v{Sc(i)+2}")
            I(f"v_max_f32 v{m[i]}, v{m[i]}, v{Sc(i)+3}")
        for k in range(4): I(f"v_permlane32_swap_b32 v{m[2*k]}, v{m[2*k+1]}")
        for k in range(4): I(f"v_max_f32 v{m[2*k]}, v{m[2*k]}, v{m[2*k+1]}")
        for k in range(2): I(f"v_permlane16_swap_b32 v{m[4*k]}, v{m[4*k+2]}")
        for k in range(2): I(f"v_max_f32 v{m[4*k]}, v{m[4*k]}, v{m[4*k+2]}")
        for k in range(2): I(f"v_mul_f32 v{m[4*k+2]}, s{S_CEXP}, v{m[4*k]}")
        for k in range(2): I(f"v_mul_f32 v{m[4*k]}, s{S_CEXP}, v{m[4*k]}")
        for k in range(2): I(f"v_permlane16_swap_b32 v{m[4*k]}, v{m[4*k+2]}")
        for k in range(4): I(f"v_mov_b32 v{m[2*k+1]}, v{m[2*k]}")
        for k in range(4): I(f"v_permlane32_swap_b32 v{m[2*k]}, v{m[2*k+1]}")
        rel_pre(nU + 3 - NS)
        for i in range(8):
            for r in range(4): I(f"v_fma_f32 v{Sc(i)+r}, v{Sc(i)+r}, s{S_CEXP}, -v{m[i]}")
            for r in range(4): I(f"v_exp_f32 v{Sc(i)+r}, v{Sc(i)+r}")
        B(3)
        for half, mk in enumerate(("s[56:57]", "s[58:59]")):
            I(f"s_mov_b64 exec, {mk}")
            for i, (t, p) in enumerate(un):
                I(f"v_cvt_pk_bf16_f32 v{Preg(t,p)+2*half}, v{Sc(i)}, v{Sc(i)+1}")
                I(f"v_cvt_pk_bf16_f32 v{Preg(t,p)+2*half+1}, v{Sc(i)+2}, v{Sc(i)+3}")
        I("s_mov_b64 exec, -1")
        for i, (t, p) in enumerate(un): I(f"{MF} {vr(Sc(i))}, {ar(A_ONES)}, {vr(Preg(t,p))}, 0")
        for i in range(8): I(f"v_rcp_f32 v{V_RINV+i}, v{Sc(i)}")
        for i, (t, p) in enumerate(un): I(f"v_mul_f32 v{V_RINV+i}, v{H_G+2*p}, v{V_RINV+i}")
        stamp("h_sm")
        poll_load()
        ev_wait("E2")
        kv_reads(V_AD + 3, "v")
        signal("D2")
        for i, (t, p) in enumerate(un):
            e.wait(lg=f"v{t}")
            I(f"{MF} {vr(Sc(i))}, {ar(A_KV+8*t+4*p)}, {vr(Preg(t,p))}, 0")
        for b in range(2):
            ob = 56 if b == 0 else 4
            for i in range(4 * b, 4 * b + 4):
                t, p = un[i]; o = Sc(i)
                for r in range(4): I(f"v_mul_f32 v{o+r}, v{V_RINV+i}, v{o+r}")
                I(f"v_cvt_pk_bf16_f32 v{ob+p*4+(t&1)*2}, v{o}, v{o+1}")
                I(f"v_cvt_pk_bf16_f32 v{ob+p*4+(t&1)*2+1}, v{o+2}, v{o+3}")
            a2_store(16 + b, "so")
        stamp("h_so")
        poll_check(mask=0x9)
        for lam in range(8): a2_load(lam)
        br_setup()
        e.wait(vm="so")
        push_group(lambda: I(f"s_lshl_b32 s{S_t2}, 16, s{S_jj}"))
        def f_c():
            poll_check(mask=0x12)
            for lam in (8, 9, 10, 11): a2_load(lam)
        def f_h():
            poll_check(mask=0x24); a2_load(12); a2_load(13)
        def f_o():
            I(f"s_xor_b32 s{S_t2}, s{S_jj}, 1"); I(f"s_lshl_b32 s{S_t2}, 16, s{S_t2}")
            poll_check(mask_sgpr=S_t2); a2_load(14); a2_load(15)
        side = {(8, -40): poll_load, (8, -24): f_c, (12, -36): poll_load, (12, -22): f_h, (14, -34): poll_load, (14, -20): f_o}
        lg_need = {}
        early = list(range(8))
    if OPT["prio"] == 2: I("s_setprio 1")
    stamp("h_p2")
    own_lams = ([16, 17] if att else [])
    def acc2(tau, tt, p): return H_ACC + ((tau * 2 + tt) * 2 + p) * 4
    LD = OPT["ld"]
    seq = [(lam, tau) for lam in range(14) for tau in range(4 if lam < LD else 3)]
    oo = [16, 17, 14, 15] if att else [16, 17, 14, 15]
    seq += [(lam, tau) for tau in range(3) for lam in oo]
    seq += [(lam, 3) for lam in list(range(LD, 14)) + oo]
    steps = []
    rng = {}
    seen_g = set(); seen_l = set(); first = set()
    for (lam, tau) in seq:
        g = lam >> 1
        for tt in range(2):
            a = H_BR + 2 * tau + tt
            off = g * SLOT + (lam & 1) * 4096
            hi = off >> 16
            st = dict(rd=(a, off & 0xffff, 2048))
            pres = []
            if g not in seen_g:
                seen_g.add(g)
                t = U("t")
                if len(steps) >= 3: steps[-3]["post"] = lambda k, g=g, t=t: d_read(f"Lb{g}", t)
                else: pres.append(lambda g=g, t=t: d_read(f"Lb{g}", t))
                pres.append(lambda g=g, t=t: d_check(f"Lb{g}", t))
            if rng.get(a, 0) != hi:
                dlt = (hi - rng.get(a, 0)) * 65536; rng[a] = hi
                pres.append(lambda a=a, dlt=dlt: I(f"v_add_u32 v{a}, {dlt & 0xffffffff}, v{a}"))
            if pres: st["pre"] = lambda pres=pres: [f() for f in pres]
            zero = (tau, tt) not in first; first.add((tau, tt))
            def mf(W, st, lam=lam, tau=tau, tt=tt, zero=zero):
                return [f"{MF} {vr(acc2(tau,tt,p))}, {W}, {a2r(lam,p)}, {'0' if zero else vr(acc2(tau,tt,p))}" for p in range(2)]
            st["mf"] = mf
            if lam not in seen_l:
                seen_l.add(lam)
                if lam not in own_lams: st["need"] = lambda lam=lam: e.wait(vm=f"a{lam}")
                elif lam in lg_need: st["need"] = lambda lam=lam: e.wait(lg=lg_need[lam])
            st["id"] = (lam, tau, tt)
            steps.append(st)
    S = Stream(steps)
    idx = {st["id"]: k for k, st in enumerate(steps)}
    def aft(k, f):
        prev = S.after.get(k)
        S.after[k] = (lambda: (prev(), f())) if prev else f
    for (lam, d), f in side.items(): aft(idx[(oo[0] if (lam == 14 and not att) else lam, 0, 0)] + d, f)
    def scale(tau):
        return [lambda r=r, p=p: I(f"v_mul_f32 v{r}, v{H_G+2*p+1}, v{r}") for tt in range(2) for p in range(2) for r in range(acc2(tau, tt, p), acc2(tau, tt, p) + 4)]
    def pbase():
        I(f"s_lshl_b32 s{S_PB}, s{S_r}, 2"); I(f"s_add_u32 s{S_PB}, s{S_PB}, s{S_jj}")
        I(f"s_mul_i32 s{S_PB}, s{S_PB}, {12*16384}")
        I(f"s_add_u32 s{S_PB}, s{S_PB}, s{S_m0b}"); I(f"s_add_u32 s{S_PB}, s{S_PB}, {PART_OFF}")
    pbase()
    def send(tau):
        F = []
        def so():
            I(f"s_xor_b32 s{S_GIN}, s{S_q}, {3-tau}"); I(f"s_mul_i32 s{S_GIN}, s{S_GIN}, {3*16384}")
            I(f"s_add_u32 s{S_GIN}, s{S_GIN}, s{S_PB}"); I(f"s_add_u32 s{S_GIN}, s{S_GIN}, {tau*16384}")
        F.append(so)
        for j in range(4):
            F.append(lambda j=j: hstore([f"buffer_store_dwordx4 {vr(H_ACC+tau*16+j*4)}, v{V_L16}, {srd(S_WS)}, s{S_GIN} offen offset:{j*1024}"], f"p{tau}"))
        return F
    def pflag(tau):
        assert e.vmq[0][0].count(f"p{tau}") == 4
        e.wait(vm=f"p{tau}")
        I(f"s_xor_b32 s{S_t0}, s{S_MYIN}, {(3-tau)*2048}")
        I(f"s_mov_b32 s{S_t2}, {256<<tau}")
        I(f"s_atomic_or s{S_t2}, s[{S_INB}:{S_INB+1}], s{S_t0}")
    for tau in range(4):
        k = idx[(13, tau, 1)]
        aft(k, lambda k=k, tau=tau: S.add(k + 2, idx[(oo[0], tau, 0)], scale(tau)))
    k_own = idx[(LD, 3, 0)]; n = len(steps)
    for tau in range(3):
        k = idx[(oo[-1], tau, 1)]
        aft(k, lambda k=k, tau=tau: S.add(k + 2, k + 6, send(tau)))
        aft(min(k + 20, n - 1), lambda tau=tau: pflag(tau))
    aft(n - 1, poll_load)
    aft(idx[(8, 0, 0)], lambda: stamp("h_late"))
    aft(idx[(oo[0], 0, 0)], lambda: stamp("h_o"))
    aft(k_own, lambda: stamp("h_own"))
    S.run(lambda k: 3)
    I(f"s_mul_i32 s{S_GIN}, s{S_q}, {3*16384}")
    I(f"s_add_u32 s{S_GIN}, s{S_GIN}, s{S_PB}")
    poll_check(mask=0x700)
    stamp("h_rcv")
    for tau in range(3):
        for j in range(4):
            I(f"buffer_load_dwordx4 {vr(H_ACC+tau*16+j*4)}, v{V_L16}, {srd(S_WS)}, s{S_GIN} offen offset:{j*1024} sc1", tag=f"r{tau}")
        if tau < 2: I(f"s_add_u32 s{S_GIN}, s{S_GIN}, 16384")
    I("v_and_b32 v4, 15, v0")
    I("v_bfe_u32 v6, v0, 4, 1")
    I("v_lshlrev_b32 v6, 5, v6")
    I("v_lshrrev_b32 v7, 5, v0")
    I("v_lshl_add_u32 v6, v7, 4, v6")
    I("v_lshl_add_u32 v5, v4, 11, v6")
    I("v_xor_b32 v4, 0x4000, v5")
    I(f"s_lshl_b32 s{S_t0}, s{S_r}, 17"); I(f"s_lshl_b32 s{S_t1}, s{S_w}, 15"); I(f"s_add_u32 s{S_t0}, s{S_t0}, s{S_t1}")
    I(f"s_lshl_b32 s{S_t1}, s{S_jj}, 8"); I(f"s_add_u32 s{S_t0}, s{S_t0}, s{S_t1}")
    I(f"s_lshl_b32 s{S_t1}, s{S_q}, 6"); I(f"s_add_u32 s{S_t0}, s{S_t0}, s{S_t1}")
    O = H_ACC + 48
    for tau in range(3):
        e.wait(vm=f"r{tau}")
        for k in range(8):
            I(f"v_pk_add_f32 {vr(O+2*k,2)}, {vr(O+2*k,2)}, {vr(H_ACC+tau*16+2*k,2)}")
    stamp("h_sum")
    for p in range(2):
        pk = V_RING + 4 * p
        for tt in range(2):
            a = acc2(3, tt, p)
            I(f"v_cvt_pk_bf16_f32 v{pk+2*tt}, v{a}, v{a+1}")
            I(f"v_cvt_pk_bf16_f32 v{pk+2*tt+1}, v{a+2}, v{a+3}")
        I(f"v_permlane16_swap_b32 v{pk}, v{pk+2}")
        I(f"v_permlane16_swap_b32 v{pk+1}, v{pk+3}")
        I(f"buffer_store_dwordx4 {vr(pk)}, v{4+p}, {srd(S_OUT)}, s{S_t0} offen offset:{p*1024}" + (" sc1" if OPT["outsc"] else ""))
    finish()

h_prog(False)
e.label("L_h_att")
h_prog(True)

e.label("L_end")
I("s_endpgm")
e.raw('.section .rodata,"a"')
e.raw(".p2align 6")
e.raw(f".amdhsa_kernel {NAME}_kernel")
e.raw("  .amdhsa_next_free_vgpr 256")
e.raw("  .amdhsa_next_free_sgpr 102")
e.raw("  .amdhsa_accum_offset 128")
e.raw("  .amdhsa_group_segment_fixed_size 0")
e.raw("  .amdhsa_kernarg_size 80")
e.raw("  .amdhsa_user_sgpr_count 2")
e.raw("  .amdhsa_user_sgpr_kernarg_segment_ptr 1")
e.raw("  .amdhsa_system_sgpr_workgroup_id_x 1")
e.raw(".end_amdhsa_kernel")
sys.stdout.write(e.text())
sys.stderr.write(f"instructions {e.nins} nop-states {e.nops} events {len(EV)}\n")
```

```python
import sys, struct
from emit import Em

NAME = "gated_mix__sliding_local_dilated__dense_activation_relu__prompt"
OPT = dict(padk=-1, padr=0, stamp=0, rot=2, D=4, codepf=1, spin=400000, lround=0, lag=3, prio=2, spf=0, side=2, pair=1, m1=0, fast=0, pbf=1, outsc=1, ld=6, kl0=140, kl1=158, thr=5, tlb=0, D2=5, cgate=1, dst=0)
CST = ["c_go", "s0", "s2", "s4", "s6", "s8", "s11", "c_end"]
HST = ["h_b0", "h_wend", "h_p2", "h_late", "h_o", "h_own", "h_rcv", "h_sum"]
for a in sys.argv[1:]:
    k, v = a.split("=")
    if k == "cst": CST = v.split(",")
    elif k == "hst": HST = v.split(",")
    else: OPT[k] = int(v)
STAMP = OPT["stamp"]; D = OPT["D"]
def f2u(x): return struct.unpack("<I", struct.pack("<f", x))[0]

PART_OFF = 10 << 20
INB_OFF = 32 << 20
SCR_OFF = (9 << 20) + (512 << 10)
STAMP_OFF = 33 << 20
WS_BYTES = 36 << 20
SLOT = 16384
HALO_LDS = 7 * SLOT
EXCH_LDS = 8 * SLOT
EV_LDS = EXCH_LDS + 24576
NEG = f2u(-1e30)
FULL = 0x01010101

e = Em()
I = e.I
def vr(b, n=4): return f"v[{b}:{b+n-1}]"
def ar(b, n=4): return f"a[{b}:{b+n-1}]"
def srd(b): return f"s[{b}:{b+3}]"
MF = "v_mfma_f32_16x16x32_bf16"
MF16 = "v_mfma_f32_16x16x16_bf16"

S_X, S_W, S_WS, S_OUT, S_W2, S_WO, S_GW = 24, 28, 32, 36, 40, 44, 48
S_INB = 52
S_DBG = 54
S_w, S_r, S_jj, S_rot, S_q, S_m0b, S_j1 = 60, 61, 62, 63, 64, 65, 66
S_t0, S_t1, S_t2 = 3, 67, 68
S_BUD = 69; S_EV = 70; S_SOFF = 71
S_POLL = 74; S_MYIN = 75; S_CEXP = 76; S_THR = 77
S_KG = 80; S_WK = 84
S_COL = 88; S_A2 = 89; S_B2 = 90; S_BO = 91; S_PB = 92; S_J32 = 93
S_GIN = 94
S_TOK = 95; S_FAST = 78; S_W4 = 79
S_STAMP = 4
EV = {}
def ev(name):
    if name not in EV: EV[name] = len(EV)
    assert EV[name] < 64
    return EV[name] * 4

EVD = {}
def evd(name):
    if name not in EVD: EVD[name] = len(EVD)
    assert EVD[name] < 16
    return 256 + EVD[name] * 16
role = ["C"]
def stamp(name):
    L = CST if role[0] == "C" else HST
    if name == "end": idx = 8
    elif name in L: idx = L.index(name)
    else: return
    if STAMP == 3: I(f"s_memrealtime s[{S_STAMP+2*idx}:{S_STAMP+2*idx+1}]")
    elif STAMP: I(f"s_memtime s[{S_STAMP+2*idx}:{S_STAMP+2*idx+1}]")
uid = [0]
def U(p):
    uid[0] += 1
    return f"L_{p}{uid[0]}"
def reset():
    e.vmq = [[[], 0]]; e.lgq = [[[], 0]]; e.hist = []

V_L16 = 16; V_EVB = 17; V_ONE = 18; V_EVW = 19; V_CHK = 3
V_RING = 32; NRING = 6

def signal(name):
    I(f"ds_write_b8 v{V_EVB}, v{V_ONE} offset:{ev(name)}", tag="sig")
def ev_read(name, own, tag, reg=V_CHK):
    if own: I(f"ds_read_u8 v{reg}, v{V_EVB} offset:{ev(name)}", tag=tag)
    else: I(f"ds_read_b32 v{reg}, v{V_EVW} offset:{ev(name)}", tag=tag)
def ev_read2(name, own, tag): ev_read(name, own, tag, reg=2)
SLOW = []
def ev_check(name, own, tag, sleep=1, reg=V_CHK):
    ok = U("ok"); lp = U("sp")
    e.wait(lg=tag)
    I(f"v_readfirstlane_b32 s{S_EV}, v{reg}")
    I(f"s_cmp_eq_u32 s{S_EV}, {1 if own else FULL}")
    I(f"s_cbranch_scc0 {lp}")
    e.label(ok)
    rd = f"ds_read_u8 v{reg}, v{V_EVB} offset:{ev(name)}" if own else f"ds_read_b32 v{reg}, v{V_EVW} offset:{ev(name)}"
    SLOW.extend([f"{lp}:", f"    {rd}", "    s_waitcnt lgkmcnt(0)", f"    v_readfirstlane_b32 s{S_EV}, v{reg}", "    s_nop 0",
                 f"    s_cmp_eq_u32 s{S_EV}, {1 if own else FULL}", f"    s_cbranch_scc1 {ok}"]
                + ([f"    s_sleep {sleep}"] if sleep else [])
                + [f"    s_sub_u32 s{S_BUD}, s{S_BUD}, 1", f"    s_cbranch_scc0 {lp}", f"    s_mov_b32 s{S_BUD}, 0", f"    s_branch {ok}"])
def flush_slow():
    for l in SLOW: e.raw(l)
    SLOW.clear()
def ev_wait(name, own=False, sleep=1):
    t = U("t")
    ev_read(name, own, t)
    ev_check(name, own, t, sleep)
def dsig(name):
    I(f"s_add_u32 m0, s{S_W4}, {EV_LDS + evd(name)}")
    I("s_mov_b64 exec, 1")
    I(f"buffer_load_dword v{V_L16}, {srd(S_WO)}, s{S_WO+2} offen lds", tag="dsig")
    I("s_mov_b64 exec, -1")
def d_read(name, tag): I(f"ds_read_b32 v{V_CHK}, v{V_EVW} offset:{evd(name)}", tag=tag)
def d_check(name, tag):
    ok = U("ok"); lp = U("sp")
    e.wait(lg=tag)
    I(f"v_cmp_ne_u32 vcc, 0, v{V_CHK}")
    I(f"s_cbranch_vccnz {lp}")
    e.label(ok)
    SLOW.extend([f"{lp}:", f"    ds_read_b32 v{V_CHK}, v{V_EVW} offset:{evd(name)}", "    s_waitcnt lgkmcnt(0)", f"    v_cmp_ne_u32 vcc, 0, v{V_CHK}",
                 f"    s_cbranch_vccz {ok}", "    s_sleep 1",
                 f"    s_sub_u32 s{S_BUD}, s{S_BUD}, 1", f"    s_cbranch_scc0 {lp}", f"    s_mov_b32 s{S_BUD}, 0", f"    s_branch {ok}"])
def throttle():
    n = OPT["thr"]
    I(f"s_waitcnt vmcnt({n})")
    for q in e.vmq: q[1] = max(q[1], len(q[0]) - n)
def peer_read(tag, reg=V_CHK):
    I(f"ds_read_b32 v{reg}, v{V_EVW} offset:{ev('PEER')}", tag=tag)
def peer_check(tag, reg=V_CHK):
    ok = U("ok"); lp = U("sp")
    e.wait(lg=tag)
    I(f"v_readfirstlane_b32 s{S_FAST}, v{reg}")
    I(f"s_cmp_lg_u32 s{S_FAST}, 0")
    I(f"s_cbranch_scc0 {lp}")
    e.label(ok)
    SLOW.extend([f"{lp}:", f"    ds_read_b32 v{reg}, v{V_EVW} offset:{ev('PEER')}", "    s_waitcnt lgkmcnt(0)", f"    v_readfirstlane_b32 s{S_FAST}, v{reg}", "    s_nop 0",
                 f"    s_cmp_lg_u32 s{S_FAST}, 0", f"    s_cbranch_scc1 {ok}", "    s_sleep 1",
                 f"    s_sub_u32 s{S_BUD}, s{S_BUD}, 1", f"    s_cbranch_scc0 {lp}", f"    s_mov_b32 s{S_BUD}, 0", f"    s_branch {ok}"])
def peer_wait():
    t = U("t"); peer_read(t); peer_check(t)
def hstore(texts, tag):
    if not OPT["fast"]:
        for t in texts: I(t + " sc1", tag=tag)
        return
    sl = U("ws"); bk = U("wb")
    I(f"s_cmp_eq_u32 s{S_FAST}, 2")
    I(f"s_cbranch_scc0 {sl}")
    for t in texts: I(t, tag=tag)
    e.label(bk)
    SLOW.extend([f"{sl}:", "    s_nop 7"] + [f"    {t} sc1" for t in texts] + [f"    s_branch {bk}"])
def poll_load():
    I(f"s_load_dword s{S_POLL}, s[{S_INB}:{S_INB+1}], s{S_MYIN} glc")
def poll_check(mask_sgpr=None, mask=None):
    ok = U("pk"); lp = U("pl")
    e.wait(lg="all")
    m = f"s{mask_sgpr}" if mask_sgpr is not None else str(mask)
    I(f"s_andn2_b32 s{S_EV}, {m}, s{S_POLL}")
    I(f"s_cbranch_scc1 {lp}")
    e.label(ok)
    SLOW.extend([f"{lp}:", f"    s_load_dword s{S_POLL}, s[{S_INB}:{S_INB+1}], s{S_MYIN} glc", "    s_waitcnt lgkmcnt(0)",
                 f"    s_andn2_b32 s{S_EV}, {m}, s{S_POLL}", f"    s_cbranch_scc0 {ok}",
                 f"    s_sub_u32 s{S_BUD}, s{S_BUD}, 1", f"    s_cbranch_scc0 {lp}", f"    s_mov_b32 s{S_BUD}, 0", f"    s_branch {ok}"])
def push_group(bit_fn, ds=(1, 2, 3)):
    bit_fn()
    for d in ds:
        I(f"s_xor_b32 s{S_t0}, s{S_MYIN}, {d*512}")
        I(f"s_atomic_or s{S_t2}, s[{S_INB}:{S_INB+1}], s{S_t0}")
def mk_srd(b, p, nbytes):
    I(f"s_mov_b32 s{b}, s{p}")
    I(f"s_and_b32 s{b+1}, s{p+1}, 0xffff")
    I(f"s_mov_b32 s{b+2}, {nbytes}")
    I(f"s_mov_b32 s{b+3}, 0x20000")
def lane_fields():
    I("v_lshrrev_b32 v32, 4, v0")
    I("v_and_b32 v33, 15, v0")
    I("v_bfe_u32 v34, v0, 2, 2")
    I("v_and_b32 v35, 3, v0")
    I("v_lshrrev_b32 v36, 3, v0")
    I("v_and_b32 v37, 7, v0")
def x_read_addrs(dst):
    for p in range(2):
        I(f"v_xor_b32 v38, {8 if p == 0 else 0}, v33")
        I("v_and_b32 v39, 8, v38")
        I("v_add_u32 v39, v39, v38")
        I("v_lshlrev_b32 v39, 7, v39")
        I("v_lshrrev_b32 v38, 1, v38")
        I("v_xor_b32 v38, v38, v32")
        I("v_lshl_add_u32 v39, v38, 4, v39")
        I(f"v_add_u32 v39, s{S_m0b}, v39")
        I(f"v_add_u32 v{dst+2*p}, {p*1024}, v39")
        I(f"v_xor_b32 v{dst+2*p+1}, 64, v{dst+2*p}")
def x_reads(areg, slots, dstf, tag):
    for kh in range(2):
        base = slots[kh] * SLOT
        for p in range(2):
            for sp in range(2):
                a = areg + 2 * p + sp
                if base >= 65536:
                    I(f"v_add_u32 v{1+sp}, {base & ~0xffff}, v{a}")
                    a = 1 + sp
                I(f"ds_read_b128 {dstf(p, 2*kh+sp)}, v{a} offset:{base & 0xffff}", tag=tag)
def b2_voffs(dst):
    I("v_lshrrev_b32 v38, 1, v36")
    I("v_lshrrev_b32 v40, 1, v37")
    I("v_xor_b32 v40, v40, v38")
    I("v_lshlrev_b32 v38, 10, v36")
    I("v_lshl_add_u32 v38, v40, 5, v38")
    I("v_and_b32 v40, 1, v37")
    I(f"v_lshl_add_u32 v{dst}, v40, 4, v38")
    for i in range(1, 4):
        I(f"v_add_u32 v{dst+i}, {i*7168}, v{dst}")
def b2_scalars():
    I(f"s_lshl_b32 s{S_t0}, s{S_jj}, 8")
    I(f"s_lshr_b32 s{S_t1}, s{S_w}, 1")
    I(f"s_lshl_b32 s{S_t1}, s{S_t1}, 7")
    I(f"s_add_u32 s{S_t0}, s{S_t0}, s{S_t1}")
    I(f"s_and_b32 s{S_t1}, s{S_w}, 1")
    I(f"s_lshl_b32 s{S_t1}, s{S_t1}, 15")
    I(f"s_add_u32 s{S_t0}, s{S_t0}, s{S_t1}")
    I(f"s_mul_i32 s{S_B2}, s{S_q}, {14*32768}")
    I(f"s_add_u32 s{S_B2}, s{S_B2}, s{S_t0}")
    I(f"s_lshl_b32 s{S_BO}, s{S_q}, 17")
    I(f"s_add_u32 s{S_BO}, s{S_BO}, s{S_t0}")
    I(f"s_lshl_b32 s{S_J32}, s{S_j1}, 16")
def dma4(voff, srdb, slot_addr, tag):
    for i in range(4):
        I(f"buffer_load_dwordx4 v{voff+i}, {srd(srdb)}, s{S_SOFF} offen offset:{i*1024} lds", tag=tag)
def b2_unit(g, voff):
    I(f"s_add_u32 m0, s{S_m0b}, {g*SLOT}")
    if g < 6:
        I(f"s_xor_b32 s{S_SOFF}, s{S_J32}, {g*65536}")
        I(f"s_add_u32 s{S_SOFF}, s{S_SOFF}, s{S_B2}")
    elif g == 6:
        I(f"s_lshl_b32 s{S_SOFF}, s{S_j1}, 15")
        I(f"s_xor_b32 s{S_SOFF}, s{S_SOFF}, s{S_B2}")
        I(f"s_add_u32 s{S_SOFF}, s{S_SOFF}, {6*65536}")
    else:
        I(f"s_xor_b32 s{S_SOFF}, s{S_J32}, {((g-7)^1)*65536}")
        I(f"s_add_u32 s{S_SOFF}, s{S_SOFF}, s{S_BO}")
    dma4(voff, S_W2 if g < 7 else S_WO, None, f"b{g}")
    dsig(f"Lb{g}")
def a2_soff(lam, dst):
    if lam < 12:
        I(f"s_lshl_b32 s{dst}, s{S_j1}, 14"); I(f"s_xor_b32 s{dst}, s{dst}, {lam*8192}")
    elif lam < 14:
        I(f"s_lshl_b32 s{dst}, s{S_j1}, 13"); I(f"s_xor_b32 s{dst}, s{dst}, {lam*8192}")
    else:
        I(f"s_lshl_b32 s{dst}, s{S_j1}, 14"); I(f"s_xor_b32 s{dst}, s{dst}, {((lam-14)^2)*8192}"); I(f"s_add_u32 s{dst}, s{dst}, {14*8192}")
    I(f"s_add_u32 s{dst}, s{dst}, s{S_A2}")

e.raw(f"; @launch grid=(256,1,1) block=(512,1,1) lds=163840")
e.raw('.amdgcn_target "amdgcn-amd-amdhsa--gfx950"')
e.raw(".text")
e.raw(f".globl {NAME}_kernel")
e.raw(".p2align 8")
e.raw(f".type {NAME}_kernel,@function")
e.label(f"{NAME}_kernel")
I("s_cmp_ge_u32 s2, 256")
I("s_cbranch_scc1 L_end")
I("s_load_dwordx16 s[4:19], s[0:1], 0")
I("s_load_dwordx4 s[20:23], s[0:1], 64")
if STAMP:
    I("s_memrealtime s[98:99]")
    I("s_memtime s[96:97]")
I("v_lshrrev_b32 v1, 6, v0")
I("v_and_b32 v0, 63, v0")
if OPT["codepf"]:
    I("s_cmp_lt_u32 s2, 8")
    I("s_cbranch_scc0 L_nopf")
    e.cond_begin()
    I("s_getpc_b64 s[56:57]")
    e.label("L_pc")
    I(f"v_lshlrev_b32 v2, 7, v0")
    I(f"v_lshl_add_u32 v2, v1, 13, v2")
    I(f"v_min_u32 v2, L_end-L_pc, v2")
    I(f"global_load_dword v31, v2, s[56:57]")
    e.cond_end()
    e.label("L_nopf")
I(f"v_readfirstlane_b32 s{S_t2}, v1")
if OPT["m1"]:
    I(f"s_and_b32 s{S_r}, s2, 7")
    I(f"s_lshl_b32 s{S_r}, s{S_r}, 1")
    I(f"s_bfe_u32 s{S_t0}, s2, 0x10003")
    I(f"s_or_b32 s{S_r}, s{S_r}, s{S_t0}")
    I(f"s_bfe_u32 s{S_q}, s2, 0x20004")
    I(f"s_lshr_b32 s{S_jj}, s2, 6")
else:
    I(f"s_and_b32 s{S_t0}, s2, 7")
    I(f"s_lshr_b32 s{S_jj}, s2, 3")
    I(f"s_lshr_b32 s{S_q}, s{S_t0}, 1")
    I(f"s_and_b32 s{S_t0}, s{S_t0}, 1")
    I(f"s_lshl_b32 s{S_t0}, s{S_t0}, 3")
    I(f"s_and_b32 s{S_r}, s{S_jj}, 7")
    I(f"s_or_b32 s{S_r}, s{S_r}, s{S_t0}")
    I(f"s_lshr_b32 s{S_jj}, s{S_jj}, 3")
I(f"s_getreg_b32 s{S_t0}, hwreg(HW_REG_XCC_ID, 0, 4)")
I(f"s_mul_i32 s{S_TOK}, s{S_t0}, s{S_t0}")
I(f"s_lshl_b32 s{S_TOK}, s{S_TOK}, 8")
I(f"s_add_u32 s{S_TOK}, s{S_TOK}, s{S_t0}")
I(f"s_lshl_b32 s{S_TOK}, s{S_TOK}, 8")
I(f"s_add_u32 s{S_TOK}, s{S_TOK}, 1")
I(f"s_and_b32 s{S_j1}, s{S_jj}, 1")
I(f"s_and_b32 s{S_w}, s{S_t2}, 3")
I(f"s_lshl_b32 s{S_m0b}, s{S_w}, 12")
I(f"s_mov_b32 s{S_BUD}, {OPT['spin']}")
I(f"v_lshlrev_b32 v{V_L16}, 4, v0")
I(f"s_lshl_b32 s{S_W4}, s{S_w}, 2")
I(f"v_mov_b32 v{V_EVW}, {EV_LDS}")
I(f"v_add_u32 v{V_EVB}, s{S_w}, v{V_EVW}")
I(f"v_mov_b32 v{V_ONE}, 1")
lane_fields()
I(f"v_lshl_add_u32 v2, v0, 2, v{V_EVW}")
I(f"v_lshl_add_u32 v{V_EVW}, v35, 2, v{V_EVW}")
I(f"s_lshl_b32 s{S_t0}, s{S_r}, 2")
I(f"s_add_u32 s{S_t0}, s{S_t0}, s{S_q}")
I(f"s_mul_i32 s{S_A2}, s{S_t0}, {18*8192}")
I(f"s_lshl_b32 s{S_t1}, s{S_w}, 11")
I(f"s_add_u32 s{S_A2}, s{S_A2}, s{S_t1}")
I(f"s_lshl_b32 s{S_MYIN}, s{S_t0}, 2")
I(f"s_add_u32 s{S_MYIN}, s{S_MYIN}, s{S_jj}")
I(f"s_lshl_b32 s{S_MYIN}, s{S_MYIN}, 2")
I(f"s_add_u32 s{S_MYIN}, s{S_MYIN}, s{S_w}")
I(f"s_lshl_b32 s{S_MYIN}, s{S_MYIN}, 7")
I(f"s_cmp_ge_u32 s{S_t2}, 4")
I("s_cbranch_scc1 L_H")

def after_karg():
    I("s_waitcnt lgkmcnt(0)")
    if STAMP:
        I("s_memtime s[100:101]")
        I("s_mov_b32 s72, s96")
        I("s_mov_b32 s73, s98")
def common_ptrs():
    I(f"s_add_u32 s{S_INB}, s22, {INB_OFF}")
    I(f"s_addc_u32 s{S_INB+1}, s23, 0")
    I(f"s_lshl_b32 s{S_t0}, s{S_r}, 4")
    I(f"s_add_u32 s{S_DBG}, s20, s{S_t0}")
    I(f"s_addc_u32 s{S_DBG+1}, s21, 0")
    mk_srd(S_WS, 22, WS_BYTES)
    mk_srd(S_W2, 14, 1792 * 1024)
    mk_srd(S_WO, 8, 512 * 1024)
def finish():
    if STAMP:
        I("s_waitcnt vmcnt(0)")
        stamp("end")
        I("s_memrealtime s[22:23]")
        I("s_waitcnt lgkmcnt(0)")
        I(f"s_lshl_b32 s{S_t0}, s2, 3")
        I(f"s_add_u32 s{S_t0}, s{S_t0}, s{S_w}")
        if role[0] == "H": I(f"s_add_u32 s{S_t0}, s{S_t0}, 4")
        I(f"s_lshl_b32 s{S_t0}, s{S_t0}, 6")
        I(f"s_add_u32 s{S_t0}, s{S_t0}, {STAMP_OFF}")
        I(f"v_mov_b32 v2, s{S_t0}")
        for k in range(9): I(f"v_mov_b32 v{32+k}, s{S_STAMP+2*k}")
        I("v_mov_b32 v41, s73"); I("v_mov_b32 v42, s22"); I("v_mov_b32 v43, s72"); I("v_mov_b32 v44, s100")
        I(f"v_mov_b32 v45, s{S_BUD}")
        I(f"s_getreg_b32 s{S_t1}, hwreg(HW_REG_HW_ID)")
        I(f"v_mov_b32 v46, s{S_t1}")
        I("s_mov_b64 exec, 1")
        for k in range(4): I(f"buffer_store_dwordx4 {vr(32+4*k)}, v2, {srd(S_WS)}, 0 offen offset:{16*k}")
    if STAMP == 3:
        if OPT["padk"] >= 0 and (OPT["padr"] == 1) == (role[0] == "H"):
            I(f"s_sub_u32 s24, s{S_STAMP+2*OPT['padk']}, s73")
        else:
            I("s_mov_b32 s24, 0")
        I("s_add_u32 s24, s24, 6000")
        l = U("pad")
        e.label(l)
        I("s_memrealtime s[26:27]"); I("s_waitcnt lgkmcnt(0)"); I("s_sub_u32 s25, s26, s73"); I("s_cmp_lt_u32 s25, s24"); I(f"s_cbranch_scc1 {l}")
    I("s_endpgm")
    flush_slow()

def gate_math(G_ACC, G):
    Z = 1
    T = [f"v_cvt_pk_bf16_f32 v{Z}, v{G_ACC}, v{G_ACC+4}", f"v_lshlrev_b32 v{G}, 16, v{Z}", f"v_and_b32 v{G+2}, 0xffff0000, v{Z}"]
    T += [f"v_mul_f32 v{G+2*p}, {f2u(-1.4426950408889634)}, v{G+2*p}" for p in range(2)]
    T += [f"v_exp_f32 v{G+2*p}, v{G+2*p}" for p in range(2)]
    T += [f"v_add_f32 v{G+2*p}, 1.0, v{G+2*p}" for p in range(2)]
    T += [f"v_rcp_f32 v{G+2*p}, v{G+2*p}" for p in range(2)]
    T += [f"v_cvt_pk_bf16_f32 v{Z}, v{G}, v{G+2}", f"v_lshlrev_b32 v{G}, 16, v{Z}", f"v_and_b32 v{G+2}, 0xffff0000, v{Z}"]
    T += [f"v_sub_f32 v{G+1+2*p}, 1.0, v{G+2*p}" for p in range(2)]
    T += [f"v_cvt_pk_bf16_f32 v{Z}, v{G+1}, v{G+3}", f"v_lshlrev_b32 v{G+1}, 16, v{Z}", f"v_and_b32 v{G+3}, 0xffff0000, v{Z}"]
    for t in T: I(t)
def gw_voff(dst, rot):
    I(f"s_lshl_b32 s{S_t0}, s{rot}, 2")
    I(f"v_add_u32 v{dst}, s{S_t0}, v33")
    I(f"v_and_b32 v{dst}, 15, v{dst}")
    I(f"v_lshlrev_b32 v{dst}, 6, v{dst}")
    I(f"v_lshl_add_u32 v{dst}, v32, 4, v{dst}")
GB_LDS = EV_LDS + 1024
def units(att):
    L = []
    for u in range(4): L += [("x", u, 0), ("x", u, 1), ("g", 0, u), ("g", 1, u)]
    L += [("g", 2, u) for u in range(4)]
    if not att: L += [("g", 3, 0), ("g", 3, 1)]
    return L
def phys(att, k):
    if not att: return (k - 14) % 9
    i = (k - 13) % 8
    return 8 if i == 7 else i
LCHK = {10: "Lg22", 11: "Lg23", 12: "Lg30", 13: "Lg31"}
NBAR = 8
def uname(un): return f"x{un[1]}" if un[0] == "x" else f"g{un[1]}{un[2]}"

class Stream:
    def __init__(self, steps, depth=None, ring=None):
        self.steps = steps; self.side = []; self.after = {}; self.nh = 0
        self.D = depth or D; self.ring = ring or [V_RING + 4 * i for i in range(NRING)]
        assert len(self.ring) >= self.D + 2
    def add(self, ready, deadline, fns):
        for f in fns: self.side.append([ready, deadline, f])
    def issue(self, k, half):
        st = self.steps[k]
        b = self.ring[k % len(self.ring)]
        a, off, d2 = st["rd"]
        if half == 0:
            if "pre" in st: st["pre"]()
            I(f"ds_read_b64_tr_b16 {vr(b,2)}, v{a} offset:{off}", tag=f"w{k}")
        else:
            I(f"ds_read_b64_tr_b16 {vr(b+2,2)}, v{a} offset:{off+d2}", tag=f"w{k}")
            if "post" in st: st["post"](k)
    def pump(self, k, n):
        c = 0
        while self.side and c < n and self.side[0][0] <= k:
            self.side.pop(0)[2](); c += 1
    def run(self, rate):
        n = len(self.steps); D = self.D
        for k in range(min(D, n)):
            self.issue(k, 0); self.issue(k, 1)
        for k in range(n):
            st = self.steps[k]
            while any(s[1] <= k for s in self.side): self.side.pop(0)[2]()
            if "need" in st: st["need"]()
            if OPT["pair"] and k % 2 == 0 and k + 1 < n: e.wait(lg=f"w{k+1}")
            e.wait(lg=f"w{k}")
            mfs = st["mf"](vr(self.ring[k % len(self.ring)]), st)
            r = rate(k)
            I(mfs[0])
            if k + D < n: self.issue(k + D, 0)
            self.pump(k, (r + 1) // 2)
            I(mfs[1])
            if k + D < n: self.issue(k + D, 1)
            for m in mfs[2:]: I(m)
            self.pump(k, r // 2)
            if k in self.after: self.after[k]()
            stamp(f"k{k}")
        while self.side: self.side.pop(0)[2]()

C_WR = 4; C_XR = 12; C_EXW = 20; C_HA = 21; C_HX = (24, 56, 60); C_HACC = 28; C_ACC = 64
role[0] = "C"
if OPT["prio"]: I("s_setprio 2")
I("v_mov_b32 v1, 0")
I("ds_write_b32 v2, v1")
I(f"ds_write_b32 v2, v{V_ONE} offset:256")
x_read_addrs(C_XR)
I("v_lshl_add_u32 v38, v32, 3, v34")
I("v_lshlrev_b32 v38, 7, v38")
I("v_lshl_add_u32 v38, v35, 3, v38")
I("v_lshrrev_b32 v39, 1, v34")
I("v_and_b32 v40, 1, v32")
I("v_lshl_or_b32 v39, v40, 1, v39")
I(f"s_cmp_ge_u32 s{S_jj}, 2")
I(f"s_cselect_b32 s{S_t0}, s{S_w}, 0")
I(f"v_xor_b32 v41, s{S_t0}, v39")
for t in range(4):
    I(f"v_xor_b32 v40, {t}, v41")
    I(f"v_lshl_add_u32 v{C_WR+t}, v40, 5, v38")
    I(f"v_add_u32 v{C_WR+4+t}, 0x10000, v{C_WR+t}")
I("v_lshrrev_b32 v38, 1, v33")
I("v_xor_b32 v38, v38, v32")
I("v_lshlrev_b32 v38, 4, v38")
I("v_lshl_add_u32 v38, v33, 7, v38")
I(f"v_add_u32 v{C_HA}, {HALO_LDS}, v38")
I(f"v_xor_b32 v{C_HA+1}, 64, v{C_HA}")
b2_scalars()
after_karg()
common_ptrs()
I(f"s_cmp_eq_u32 s{S_w}, 0")
I("s_cbranch_scc0 L_c_noinit")
e.cond_begin()
for k in range(4):
    I(f"s_mov_b32 s{S_KG+k}, 0")
    I(f"s_add_u32 s{S_t0}, s{S_MYIN}, {k*128}")
    I(f"s_atomic_swap s{S_KG+k}, s[{S_INB}:{S_INB+1}], s{S_t0} glc")
I("s_waitcnt lgkmcnt(0)")
I(f"s_atomic_add s{S_TOK}, s[{S_DBG}:{S_DBG+1}], 0")
e.cond_end()
e.label("L_c_noinit")
if OPT["tlb"]:
    mk_srd(S_OUT, 18, 2048 * 1024)
    I(f"s_cmp_eq_u32 s{S_w}, 0")
    I("s_cbranch_scc1 L_c_notlb")
    e.cond_begin()
    I(f"s_lshl_b32 s{S_t0}, s2, 12")
    I(f"s_load_dword s{S_t1}, s[14:15], 0")
    I(f"s_load_dword s{S_t1}, s[8:9], 0")
    I(f"s_load_dword s{S_t1}, s[18:19], s{S_t0} glc")
    I(f"s_load_dword s{S_t1}, s[22:23], s{S_A2} glc")
    I("s_waitcnt lgkmcnt(0)")
    I("s_mov_b64 exec, 1")
    I(f"s_cmp_eq_u32 s{S_w}, 1")
    I("s_cbranch_scc0 L_c_t2")
    I(f"buffer_load_dword v1, v{V_L16}, {srd(S_W2)}, 0 offen")
    I(f"buffer_load_dword v1, v{V_L16}, {srd(S_WO)}, 0 offen")
    e.label("L_c_t2")
    I(f"s_cmp_eq_u32 s{S_w}, 2")
    I("s_cbranch_scc0 L_c_t3")
    I(f"s_add_u32 s{S_t0}, s{S_MYIN}, {SCR_OFF}")
    I(f"buffer_store_dword v1, v{V_L16}, {srd(S_WS)}, s{S_t0} offen sc1")
    e.label("L_c_t3")
    I("s_mov_b64 exec, -1")
    I("s_waitcnt vmcnt(0)")
    e.cond_end()
    e.label("L_c_notlb")
if OPT["cgate"]:
    assert OPT["rot"] == 2
    mk_srd(S_GW, 16, 1024)
    gw_voff(43, S_r)
stamp("c_go")
I(f"s_cmp_ge_u32 s{S_jj}, 2")
I("s_cbranch_scc1 L_c_att")

def xfr(p, s): return ar((p * 16 + s) * 4)
def c_prog(att):
    reset()
    UL = units(att)
    slot_of = {uname(un) + (str(un[2]) if un[0] == "x" else ""): phys(att, k) for k, un in enumerate(UL)}
    subs = [un for un in UL if un[0] == "g"]
    def acc(c, T, p):
        base = C_ACC + 32 * (c & 1)
        if att: return base + (T * 2 + p) * 4
        return base + (((T >> 1) * 2 + p) * 2 + (T & 1)) * 4
    if att:
        I(f"s_mul_i32 s{S_t0}, s{S_w}, 5120")
        I(f"s_add_u32 s{S_t0}, s{S_t0}, {EXCH_LDS+4096}")
        I(f"v_add_u32 v{C_EXW}, s{S_t0}, v{V_L16}")
    if not att and OPT["cgate"]:
        I(f"buffer_load_dwordx4 {vr(24)}, v43, {srd(S_GW)}, 0 offen", tag="gw")
    steps = []
    nh = [0]
    for i, (_, c, u) in enumerate(subs):
        nm = f"g{c}{u}"; slot = slot_of[nm]
        for h in range(2):
            for ks in range(4):
                for tt in range(2):
                    T = 2 * h + tt; j = h * 8 + ks * 2 + tt
                    if c < 3: s = 4 * u + ks; ta = T; zero = (u == 0 and ks == 0)
                    else: s = 4 * (u + 2 * h) + ks; ta = tt; zero = (u == 0 and h == 0 and ks == 0)
                    halo = att and T == 0 and c != 1
                    st = dict(rd=(C_WR + (4 if slot >= 4 else 0) + T, (slot & 3) * SLOT + ks * 4096, 512))
                    def mf(W, st, s=s, ta=ta, zero=zero, c=c, halo=halo):
                        out = []
                        sw = att and c == 2
                        for p in range(2):
                            a, b = (xfr(p, s), W) if sw else (W, xfr(p, s))
                            d = vr(acc(c, ta, p))
                            out.append(f"{MF} {d}, {a}, {b}, {'0' if zero else d}")
                        if halo:
                            a, b = (vr(st["hreg"]), W) if sw else (W, vr(st["hreg"]))
                            out.append(f"{MF} {vr(C_HACC)}, {a}, {b}, {'0' if zero else vr(C_HACC)}")
                        return out
                    st["mf"] = mf
                    def post(k, st=st, s=s, halo=halo, j=j, i=i, nm=nm, c=c, u=u, ks=ks):
                        if c == 0 and j < 8 and j % 2 == 0:
                            base = slot_of[f"x{u}{ks>>1}"] * SLOT
                            for p in range(2):
                                a = C_XR + 2 * p + (ks & 1)
                                if base >= 65536:
                                    I(f"v_add_u32 v{1+p}, {base & ~0xffff}, v{a}"); a = 1 + p
                                I(f"ds_read_b128 {xfr(p, s)}, v{a} offset:{base & 0xffff}", tag=f"w{k}")
                        if halo:
                            st["hreg"] = C_HX[nh[0] % 3]; nh[0] += 1
                            I(f"ds_read_b128 {vr(st['hreg'])}, v{C_HA+(s&1)} offset:{(s>>1)*2048}", tag=f"w{k}")

                    st["post"] = post
                    if j == 0:
                        def pre(i=i, nm=nm, c=c, u=u):
                            stamp(f"t{i}")
                            if att and i in (8, 9):
                                assert e.lgq[0][0].count(f"exw{i-8}") == (5 if i == 8 else 4), e.lgq[0][0].count(f"exw{i-8}")
                                e.wait(lg=f"exw{i-8}")
                            if not att and i in (9, 10):
                                assert e.vmq[0][0].count(f"st{i-9}") == 4
                                e.wait(vm=f"st{i-9}")
                            if i < (10 if att else 14): I("s_barrier")
                            stamp(f"s{i}")
                        st["pre"] = pre
                    steps.append(st)
    S = Stream(steps)
    def pack8(a):
        return [lambda k=k: I(f"v_cvt_pk_bf16_f32 v{a+k}, v{a+2*k}, v{a+2*k+1}") for k in range(4)]
    def relu4(a):
        return [lambda k=k: I(f"v_pk_max_i16 v{a+k}, v{a+k}, 0") for k in range(4)]
    QSLOT = phys(True, 13)
    def epi(c, h):
        F = []
        if att:
            for t in (2 * h, 2 * h + 1):
                a = acc(c, t, 0)
                F += pack8(a)
                def wr(t=t, a=a):
                    I(f"v_xor_b32 v1, {t*1024}, v{C_EXW}")
                    if c == 1: I(f"v_add_u32 v1, {(QSLOT*SLOT - EXCH_LDS - 4096) & 0xffffffff}, v1")
                    I(f"ds_write_b128 v1, {vr(a)}", tag=f"exw{c}")
                F.append(wr)
            if h == 0 and c != 1:
                def hw():
                    I(f"v_cvt_pk_bf16_f32 v{C_HACC}, v{C_HACC}, v{C_HACC+1}")
                    I(f"v_cvt_pk_bf16_f32 v{C_HACC+1}, v{C_HACC+2}, v{C_HACC+3}")
                    I(f"s_add_u32 s{S_t0}, s{S_m0b}, 4096")
                    I(f"v_subrev_u32 v1, s{S_t0}, v{C_EXW}")
                    I(f"ds_write2_b64 v1, {vr(C_HACC,2)}, {vr(C_HACC,2)} offset0:0 offset1:1", tag=f"exw{c}")
                F.append(hw)
        else:
            lam = 4 * c + h
            for p in range(2):
                a = acc(c, 2 * h, p)
                F += pack8(a) + relu4(a)
                def st(a=a, p=p):
                    if p == 0: a2_soff(lam, S_GIN)
                    if OPT["dst"] == 1: I(f"buffer_store_dwordx4 {vr(a)}, v{V_L16}, {srd(S_WS)}, s{S_GIN} offen offset:{p*1024}", tag=f"st{c}")
                    elif OPT["dst"] == 2: I(f"buffer_store_dwordx4 {vr(a)}, v{V_L16}, {srd(S_WS)}, s{S_WS+2} offen offset:{p*1024}", tag=f"st{c}")
                    elif OPT["dst"] == 3:
                        for q in e.vmq: q[0].append(f"st{c}")
                    else: hstore([f"buffer_store_dwordx4 {vr(a)}, v{V_L16}, {srd(S_WS)}, s{S_GIN} offen offset:{p*1024}"], f"st{c}")
                F.append(st)
        return F
    n = len(steps)
    for c, i, reuse in ((0, 6, 8), (1, 7, 12), (2, 11, 99)):
        for h in range(2):
            k = 16 * i + 8 * h + 7
            if k == n - 1: continue
            dl = min(16 * reuse + (8 * h if reuse == 8 else 0), n)
            pre = []
            if att and c < 2: dl = 16 * (8 + c) - 7
            S.after[k] = lambda k=k, c=c, h=h, dl=dl, pre=pre: S.add(max(k + 2, 16 * 7 - 3 if att else 0), dl, pre + epi(c, h))
    def ownbit(b):
        def f():
            I(f"s_lshl_b32 s{S_t2}, s{S_jj}, 2"); I(f"s_lshl_b32 s{S_t2}, {1<<b}, s{S_t2}")
        return f
    def cnt4(tag): assert e.vmq[0][0].count(tag) == 4, tag
    if not att:
        pass
    S.run(lambda k: OPT["side"])
    stamp("c_end")
    if not att:
        I("s_barrier")
        cnt4("st2"); e.wait(vm="st2"); push_group(ownbit(2), (0, 1, 2, 3))
    for f in (epi(2, 1) if att else epi(3, 0)): f()
    if att:
        e.wait(lg="exw2")
        I("s_barrier")
    if OPT["prio"]: I("s_setprio 0")
    lane_fields()
    b2_voffs(4)
    if not att:
        b2_unit(5, 4); b2_unit(6, 4)
        e.wait(vm="st3")
        push_group(ownbit(3), (0, 1, 2, 3))
        if OPT["cgate"]:
            def bc(s_):
                for k in range(4): I(f"v_mov_b32_dpp v{56+4*(s_&1)+k}, v{24+k} row_newbcast:{s_} row_mask:0xf bank_mask:0xf")
            bc(0)
            for s_ in range(16):
                if s_ < 15: bc(s_ + 1)
                for p in range(2):
                    I(f"{MF} {vr(64+4*p)}, {vr(56+4*(s_&1))}, {xfr(p,s_)}, {'0' if s_ == 0 else vr(64+4*p)}")
            gate_math(64, 72)
            I(f"s_lshl_b32 s{S_t0}, s{S_w}, 10"); I(f"s_add_u32 s{S_t0}, s{S_t0}, {GB_LDS}")
            I(f"v_add_u32 v1, s{S_t0}, v{V_L16}")
            I(f"ds_write_b128 v1, {vr(72)}", tag="gz")
            e.wait(lg="gz")
        for g in (8, 7):
            throttle(); b2_unit(g, 4)
    else:
        I("s_barrier")
        b2_unit(2, 4); b2_unit(3, 4)
        for g in (4, 5, 6, 8, 7):
            throttle(); b2_unit(g, 4)
    I("s_waitcnt vmcnt(0)")
    I("s_waitcnt lgkmcnt(0)")
    finish()

c_prog(False)
e.label("L_c_att")
c_prog(True)

H_XD = 4; H_WD = 6; H_BD = 12; H_G = 20; H_BR = 24; H_ACC = 64
def a2r(lam, p):
    if lam < 16: return ar(lam * 8 + p * 4)
    return vr((56 if lam == 16 else 4) + p * 4)
e.label("L_H")
role[0] = "H"
reset()
if OPT["prio"]: I("s_setprio 3")
if OPT["rot"] == 2: I(f"s_mov_b32 s{S_rot}, s{S_r}")
elif OPT["rot"] == 1: I(f"s_add_u32 s{S_rot}, s{S_r}, s{S_jj}")
else: I(f"s_mov_b32 s{S_rot}, 0")
I("v_lshlrev_b32 v38, 11, v36")
I("v_xor_b32 v39, v37, v32")
I(f"v_lshl_add_u32 v{H_XD}, v39, 4, v38")
I("v_xor_b32 v39, 4, v39")
I("v_lshl_add_u32 v38, v39, 4, v38")
I(f"v_add_u32 v{H_XD+1}, {14*1024}, v38")
I(f"s_lshl_b32 s{S_t0}, s{S_r}, 17")
I(f"s_lshl_b32 s{S_t1}, s{S_w}, 15")
I(f"s_add_u32 s{S_t0}, s{S_t0}, s{S_t1}")
for g4 in range(4):
    I(f"s_add_u32 s{S_WK+g4}, s{S_rot}, {g4}")
    I(f"s_and_b32 s{S_WK+g4}, s{S_WK+g4}, 3")
    I(f"s_lshl_b32 s{S_KG+g4}, s{S_WK+g4}, 8")
    I(f"s_add_u32 s{S_KG+g4}, s{S_KG+g4}, s{S_t0}")
I(f"s_mul_i32 s{S_COL}, s{S_q}, 896")
I(f"s_lshl_b32 s{S_t0}, s{S_q}, 8")
I(f"s_sub_u32 s{S_t0}, s{S_t0}, 256")
I(f"s_cmp_ge_u32 s{S_jj}, 2")
I(f"s_cselect_b32 s{S_COL}, s{S_t0}, s{S_COL}")
I(f"s_mov_b32 s{S_W+2}, {512*3584}")
I(f"s_cmov_b32 s{S_W+2}, {512*3072}")
I(f"s_mov_b32 s{S_t1}, 3584")
I(f"s_cmov_b32 s{S_t1}, 3072")
I(f"s_lshl_b32 s{S_t0}, s{S_jj}, 7")
I(f"s_add_u32 s{S_COL}, s{S_COL}, s{S_t0}")
I(f"s_lshl_b32 s{S_t0}, s{S_w}, 5")
I(f"v_add_u32 v38, s{S_t0}, v36")
I(f"v_mul_lo_u32 v38, v38, s{S_t1}")
I("v_bfe_u32 v39, v36, 1, 1")
I("v_lshrrev_b32 v40, 1, v37")
I("v_xor_b32 v40, v40, v39")
I("v_and_b32 v41, 1, v37")
I("v_lshl_add_u32 v38, v41, 4, v38")
I(f"v_lshl_add_u32 v{H_WD}, v40, 5, v38")
I("v_xor_b32 v42, 2, v40")
I(f"v_lshl_add_u32 v{H_WD+1}, v42, 5, v38")
I(f"s_lshl_b32 s{S_t0}, s{S_t1}, 3")
I(f"s_sub_u32 s{S_t0}, s{S_t0}, 1024")
I(f"v_add_u32 v{H_WD+1}, s{S_t0}, v{H_WD+1}")
I(f"s_lshl_b32 s{S_t0}, s{S_t0}, 1")
I(f"v_add_u32 v{H_WD+2}, s{S_t0}, v{H_WD}")
I(f"v_add_u32 v{H_WD+3}, s{S_t0}, v{H_WD+1}")
I(f"s_lshl_b32 s{S_t1}, s{S_t1}, 7")
for g4 in range(4): I(f"s_mul_i32 s{S_WK+g4}, s{S_WK+g4}, s{S_t1}")
I(f"s_mov_b32 s{S_X+2}, {2048*1024}")
I(f"s_mov_b32 s{S_X+3}, 0x20000")
I(f"s_mov_b32 s{S_W+3}, 0x20000")
I(f"s_lshl_b32 s{S_t0}, s{S_rot}, 2")
I(f"v_add_u32 v43, s{S_t0}, v33")
I("v_and_b32 v43, 15, v43")
I("v_lshlrev_b32 v43, 6, v43")
I("v_lshl_add_u32 v43, v32, 4, v43")
after_karg()
I(f"s_mov_b32 s{S_X}, s4")
I(f"s_and_b32 s{S_X+1}, s5, 0xffff")
I(f"s_cmp_ge_u32 s{S_jj}, 2")
I(f"s_cselect_b32 s{S_W}, s6, s12")
I(f"s_cselect_b32 s{S_W+1}, s7, s13")
I(f"s_and_b32 s{S_W+1}, s{S_W+1}, 0xffff")
I(f"s_cmp_ge_u32 s{S_jj}, 2")
I("s_cbranch_scc1 L_h_att")

G_GW = 96; G_ACC = 112; G_XR = 120
def h_prog(att):
    reset()
    UL = units(att); NS = 7 if att else 8
    CH = [1024, 0, 2048] if att else [0, 256, 512]
    def issue(k):
        un = UL[k]
        I(f"s_add_u32 m0, s{S_m0b}, {phys(att,k)*SLOT}")
        if un[0] == "x":
            I(f"s_add_u32 s{S_SOFF}, s{S_KG+un[1]}, {un[2]*128}")
            for i in range(4):
                I(f"buffer_load_dwordx4 v{H_XD+(i>>1)}, {srd(S_X)}, s{S_SOFF} offen offset:{i*1024} lds", tag=f"u{k}")
            return
        _, c, u = un
        if c < 3:
            I(f"s_add_u32 s{S_SOFF}, s{S_WK+u}, s{S_COL}")
            if CH[c]: I(f"s_add_u32 s{S_SOFF}, s{S_SOFF}, {CH[c]}")
        else:
            v = u
            if v == 0:
                I("v_lshrrev_b32 v10, 2, v0")
                I("v_and_b32 v10, 1, v10")
                I(f"v_mul_u32_u24 v11, {256*3584-64}, v10")
                I(f"v_add_u32 v{H_WD}, v{H_WD}, v11")
                I(f"v_add_u32 v{H_WD+2}, v{H_WD+2}, v11")
                I(f"v_sub_u32 v11, {256*3584-64}, v11")
                I(f"v_add_u32 v{H_WD+1}, v{H_WD+1}, v11")
                I(f"v_add_u32 v{H_WD+3}, v{H_WD+3}, v11")
                I(f"v_mul_u32_u24 v10, {2*256*3584}, v10")
                I(f"v_sub_u32 v10, {256*3584}, v10")
                I(f"s_cmp_ge_u32 s{S_WK}, {256*3584}")
                I(f"s_cselect_b32 s{S_t0}, 1, 0")
            else:
                I(f"s_cmp_ge_u32 s{S_WK}, {256*3584}")
                I(f"s_cselect_b32 s{S_t1}, 1, 0")
                I(f"s_cmp_ge_u32 s{S_WK+1}, {256*3584}")
                I(f"s_cselect_b32 s{S_t0}, 1, 0")
                I(f"s_sub_u32 s{S_t0}, s{S_t0}, s{S_t1}")
            I(f"s_sub_u32 s{S_t1}, 0, s{S_t0}")
            I(f"v_mad_i32_i24 v{H_WD}, v10, s{S_t0}, v{H_WD}")
            I(f"v_mad_i32_i24 v{H_WD+2}, v10, s{S_t0}, v{H_WD+2}")
            I(f"v_mad_i32_i24 v{H_WD+1}, v10, s{S_t1}, v{H_WD+1}")
            I(f"v_mad_i32_i24 v{H_WD+3}, v10, s{S_t1}, v{H_WD+3}")
            I(f"s_min_u32 s{S_SOFF}, s{S_WK+v}, s{S_WK+v+2}")
            I(f"s_add_u32 s{S_SOFF}, s{S_SOFF}, s{S_COL}")
            I(f"s_lshl_b32 s{S_t0}, s{S_jj}, 6")
            I(f"s_sub_u32 s{S_SOFF}, s{S_SOFF}, s{S_t0}")
            I(f"s_add_u32 s{S_SOFF}, s{S_SOFF}, 768")
        dma4(H_WD, S_W, None, f"u{k}")

    def gate_copy(u):
        sl = (phys(att, 4 * u), phys(att, 4 * u + 1))
        x_reads(G_XR, sl, lambda p, k4: ar((p * 4 + k4) * 4), f"gx{u}")
    def gate_dots(u, half):
        e.wait(vm="gw")
        for k4 in (2 * half, 2 * half + 1):
            for k in range(4):
                I(f"v_mov_b32_dpp v{G_GW+4+4*(k4&1)+k}, v{G_GW+k} row_newbcast:{4*u+k4} row_mask:0xf bank_mask:0xf")
        e.wait(lg=f"gx{u}")
        for k4 in (2 * half, 2 * half + 1):
            for p in range(2):
                d = vr(G_ACC + 4 * p)
                I(f"{MF} {d}, {vr(G_GW+4+4*(k4&1))}, {ar((p*4+k4)*4)}, {'0' if u == 0 and k4 == 0 else d}")
    def gate(): gate_finish()
    def gate_finish(): gate_math(G_ACC, H_G)
    def landed(k):
        e.wait(vm=f"u{k}"); signal("L" + uname(UL[k]))
    relw = set(); relp = {}
    def rel_pre(k):
        nm = uname(UL[k])
        if nm in relw or nm in relp: return
        relp[nm] = U("t")
        ev_read("R" + nm, UL[k][0] == "x", relp[nm])
    def released(k):
        nm = uname(UL[k])
        if nm in relw: return
        rel_pre(k)
        relw.add(nm)
        ev_check("R" + nm, UL[k][0] == "x", relp[nm])

    V_Q = 64; V_S = 96; V_BIAS = 32; V_RINV = 40; V_T = 48; A_KV = 64; A_ONES = 96; V_AD = 24
    QSLOT = phys(True, 13)
    def att_setup():
        I(f"s_add_u32 s{S_t0}, s{S_m0b}, {EXCH_LDS+4096}")
        I(f"v_add_u32 v{V_AD}, s{S_t0}, v{V_L16}")
        I("v_bfe_u32 v1, v0, 3, 1")
        I("v_lshlrev_b32 v1, 12, v1")
        I(f"v_sub_u32 v{V_AD+2}, v{V_AD}, v1")
        I("v_xor_b32 v1, 4096, v1")
        I(f"v_sub_u32 v{V_AD+1}, v{V_AD}, v1")
        I("v_lshrrev_b32 v1, 5, v0")
        I("v_lshlrev_b32 v1, 12, v1")
        I(f"v_sub_u32 v{V_AD+4}, v{V_AD}, v1")
        I("v_xor_b32 v1, 4096, v1")
        I(f"v_sub_u32 v{V_AD+3}, v{V_AD}, v1")
        I(f"v_add_u32 v{V_AD+5}, {(QSLOT*SLOT - EXCH_LDS - 4096) & 0xffffffff}, v{V_AD}")
        I(f"s_mov_b32 s{S_CEXP}, {f2u(0.25*1.4426950408889634)}")
        I(f"s_or_b32 s{S_t0}, s{S_r}, s{S_w}")
        I(f"s_cmp_eq_u32 s{S_t0}, 0")
        I(f"s_cselect_b32 s{S_THR}, -16, -9")
        I(f"v_mov_b32 v{V_T}, {NEG}")
        I(f"v_and_b32 v{V_T+1}, 15, v0")
        I(f"v_lshrrev_b32 v{V_T+2}, 4, v0")
        I(f"v_lshlrev_b32 v{V_T+2}, 2, v{V_T+2}")
        for p in range(2):
            x8 = 8 if p == 0 else 0
            I(f"v_xor_b32 v{V_T+3}, {x8}, v{V_T+1}")
            I(f"v_xor_b32 v{V_T+4}, {x8}, v{V_T+2}")
            I(f"v_sub_u32 v{V_T+3}, v{V_T+3}, v{V_T+4}")
            for r in range(4):
                I(f"v_subrev_u32 v{V_T+4}, {r}, v{V_T+3}")
                I(f"v_cmp_lt_u32 vcc, 7, v{V_T+4}")
                I(f"v_cmp_lt_i32 s[56:57], s{S_THR}, v{V_T+4}")
                I("s_and_b64 vcc, vcc, s[56:57]")
                I(f"v_cndmask_b32 v{V_BIAS+p*4+r}, 0, v{V_T}, vcc")
        I(f"v_mov_b32 v{V_T}, 0x3f803f80")
        for k in range(4): I(f"v_accvgpr_write_b32 a{A_ONES+k}, v{V_T}")
        for k in range(32): I(f"v_mov_b32 v{V_Q+k}, 0")
        I("s_mov_b32 s56, 0xff00ff00"); I("s_mov_b32 s57, 0xff00ff00")
        I("s_not_b64 s[58:59], s[56:57]")
    def peer_issue():
        l = U("pi")
        I(f"s_cmp_eq_u32 s{S_w}, 0")
        I(f"s_cbranch_scc0 {l}")
        e.cond_begin()
        I(f"s_load_dword s{S_POLL}, s[{S_DBG}:{S_DBG+1}], 0 glc")
        e.cond_end()
        e.label(l)
    def peer():
        l = U("pe")
        I(f"s_cmp_eq_u32 s{S_w}, 0")
        I(f"s_cbranch_scc0 {l}")
        e.cond_begin()
        lp = U("pp"); ok = U("po")
        e.label(lp)
        I("s_waitcnt lgkmcnt(0)")
        I(f"s_bitcmp1_b32 s{S_POLL}, 4")
        I(f"s_cbranch_scc1 {ok}")
        I("s_sleep 8")
        I(f"s_load_dword s{S_POLL}, s[{S_DBG}:{S_DBG+1}], 0 glc")
        I(f"s_sub_u32 s{S_BUD}, s{S_BUD}, 1")
        I(f"s_cbranch_scc0 {lp}")
        I(f"s_mov_b32 s{S_BUD}, 0")
        I("s_waitcnt lgkmcnt(0)")
        e.label(ok)
        e.cond_end()
        e.label(l)
    issue(0); issue(1)
    if att:
        I(f"s_lshl_b32 s{S_t0}, s{S_r}, 17")
        I(f"s_sub_u32 s{S_t0}, s{S_t0}, 16384")
        I(f"v_add_u32 v38, s{S_t0}, v{H_XD}")
        I(f"s_sub_u32 s{S_t0}, s{S_t0}, {13*1024}")
        I(f"v_add_u32 v39, s{S_t0}, v{H_XD+1}")
        I("v_max_i32 v38, 0, v38")
        I("v_max_i32 v39, 0, v39")
        I(f"s_add_u32 s{S_t0}, s{S_rot}, s{S_w}")
        I(f"s_and_b32 s{S_t0}, s{S_t0}, 3")
        I(f"s_lshl_b32 s{S_t0}, s{S_t0}, 8")
        for i in range(4):
            kh, rh = divmod(i, 2)
            I(f"s_add_u32 m0, s{S_m0b}, {HALO_LDS + i*1024 - kh*128}")
            I(f"buffer_load_dwordx4 v{38+rh}, {srd(S_X)}, s{S_t0} offen offset:{kh*128} lds", tag="hx")
    issue(2)
    hgate = att or not OPT["cgate"]
    if hgate:
        mk_srd(S_GW, 16, 1024)
        I(f"buffer_load_dwordx4 {vr(G_GW)}, v43, {srd(S_GW)}, 0 offen", tag="gw")
    common_ptrs()
    mk_srd(S_OUT, 18, 2048 * 1024)
    if hgate: x_read_addrs(G_XR)
    b2_voffs(H_BD)
    b2_scalars()
    if att: att_setup()
    for k in (3, 4, 5): issue(k)
    if att: sched = [[6, 7], [8, 9], [10], [11, 12, 13], [14], [15, 16, 17], [18], [19]]
    else: sched = [[6, 7], [8, 9], [10, 11], [12, 13], [14, 15], [16, 17], [18], [19]]
    gk = [k for k, un in enumerate(UL) if un[0] == "g"]
    for i in range(NBAR):
        stamp(f"h_a{i}")
        e.wait(vm=f"u{gk[i]}")
        if i == 6: peer()
        I("s_barrier")
        if i == 4: peer_issue()
        stamp(f"h_b{i}")
        if i % 2 == 0 and hgate: gate_copy(i // 2)
        for j, k in enumerate(sched[i]):
            issue(k)
            if j == 0 and hgate: gate_dots(i // 2, i % 2)
    if OPT["prio"] == 1: I("s_setprio 0")
    stamp("h_wend")
    nU = len(UL)
    def B(g):
        released(nU + g - NS)
        b2_unit(g, H_BD)
    def Bsig(g):
        e.wait(vm=f"b{g}"); signal(f"Lb{g}")
    def a2_load(lam):
        a2_soff(lam, S_t1)
        for p in range(2):
            I(f"buffer_load_dwordx4 {a2r(lam,p)}, v{V_L16}, {srd(S_WS)}, s{S_t1} offen offset:{p*1024} sc1", tag=f"a{lam}")
    def a2_store(lam, tag):
        a2_soff(lam, S_t1)
        hstore([f"buffer_store_dwordx4 {a2r(lam,p)}, v{V_L16}, {srd(S_WS)}, s{S_t1} offen offset:{p*1024}" for p in range(2)], tag)
    def br_setup():
        I("v_lshrrev_b32 v1, 2, v0")
        I("v_bfe_u32 v2, v0, 3, 2")
        I("v_lshlrev_b32 v1, 7, v1")
        I("v_lshl_add_u32 v1, v2, 5, v1")
        I("v_and_b32 v2, 3, v0")
        I("v_lshl_add_u32 v1, v2, 3, v1")
        I(f"s_lshr_b32 s{S_t0}, s{S_q}, 1")
        I(f"s_lshl_b32 s{S_t0}, s{S_t0}, 13")
        I(f"s_and_b32 s{S_t1}, s{S_q}, 1")
        I(f"s_lshl_b32 s{S_t1}, s{S_t1}, 6")
        I(f"s_or_b32 s{S_t0}, s{S_t0}, s{S_t1}")
        I(f"v_xor_b32 v1, s{S_t0}, v1")
        for tau in range(4):
            cb = 3 - tau
            for tt in range(2):
                I(f"v_xor_b32 v{H_BR+2*tau+tt}, {(cb>>1)*8192 + (cb&1)*64 + tt*32}, v1")
    S_PM = S_CEXP
    if not att:
        def bar(i):
            stamp(f"h_a{i}")
            if i < 14: e.wait(vm=f"u{gk[i]}")
            I("s_barrier"); stamp(f"h_b{i}")
        Bu = lambda g: b2_unit(g, H_BD)
        bar(8); issue(20); (gate() if hgate else None)
        def ownbit(b):
            def f():
                I(f"s_lshl_b32 s{S_t2}, s{S_jj}, 2"); I(f"s_lshl_b32 s{S_t2}, {1<<b}, s{S_t2}")
            return f
        bar(9); push_group(ownbit(0), (0, 1, 2, 3)); issue(21); br_setup()
        bar(10); push_group(ownbit(1), (0, 1, 2, 3)); Bu(0); Bu(1); poll_load()
        bar(11); poll_check(mask=0x11)
        for lam in range(4): a2_load(lam)
        Bu(2); poll_load()
        bar(12); poll_check(mask=0x22)
        for lam in range(4, 8): a2_load(lam)
        bar(13); Bu(3); Bu(4)
        bar(14)
        def f_c():
            poll_check(mask=0x44)
            for lam in (8, 9, 10, 11): a2_load(lam)
        def f_h():
            poll_check(mask=0x88); a2_load(12); a2_load(13)
        def f_o():
            poll_check(mask=0x300)
            for lam in (16, 17, 14, 15): a2_load(lam)
        side = {(8, -40): poll_load, (8, -24): f_c, (12, -36): poll_load, (12, -22): f_h, (14, -34): poll_load, (14, -20): f_o}
        lg_need = {}
        early = list(range(8))
    else:
        gate()
        stamp("h_gate")
        def kv_reads(m0, tag):
            for t in range(4):
                I(f"ds_read_b64 {ar(A_KV+8*t,2)}, v{m0} offset:{t*1024}", tag=f"{tag}{t}")
                I(f"ds_read_b128 {ar(A_KV+8*t+2)}, v{V_AD} offset:{t*1024}", tag=f"{tag}{t}")
                I(f"ds_read_b64 {ar(A_KV+8*t+6,2)}, v{m0+1} offset:{t*1024+8}", tag=f"{tag}{t}")
        e.wait(vm="u16")
        I("s_barrier")
        kv_reads(V_AD + 1, "k")
        e.wait(vm="u19", lg="k3")
        poll_load()
        I("s_barrier")
        def Preg(t, p): return V_Q + 8 * t + 4 * p
        for half, m in enumerate(("s[56:57]", "s[58:59]")):
            I(f"s_mov_b64 exec, {m}")
            for t in range(4):
                for p in range(2):
                    I(f"ds_read_b64 {vr(Preg(t,p)+2*half,2)}, v{V_AD+5} offset:{t*1024+p*8}", tag="q")
        I("s_mov_b64 exec, -1")
        stamp("h_q")
        e.wait(lg="q")
        un = [(i >> 1, i & 1) for i in range(8)]
        Sc = lambda i: V_S + 4 * i
        for i, (t, p) in enumerate(un):
            I(f"{MF} {vr(Sc(i))}, {ar(A_KV+8*t+4*p)}, {vr(Preg(t,p))}, {vr(V_BIAS+4*p)}")
        b2_unit(0, H_BD)
        m = [V_T + i for i in range(8)]
        for i in range(8):
            if OPT["lround"]:
                I(f"v_cvt_pk_bf16_f32 v1, v{Sc(i)}, v{Sc(i)+1}")
                I(f"v_cvt_pk_bf16_f32 v2, v{Sc(i)+2}, v{Sc(i)+3}")
                I(f"v_lshlrev_b32 v{Sc(i)}, 16, v1")
                I(f"v_and_b32 v{Sc(i)+1}, 0xffff0000, v1")
                I(f"v_lshlrev_b32 v{Sc(i)+2}, 16, v2")
                I(f"v_and_b32 v{Sc(i)+3}, 0xffff0000, v2")
            I(f"v_max3_f32 v{m[i]}, v{Sc(i)}, v{Sc(i)+1}, v{Sc(i)+2}")
            I(f"v_max_f32 v{m[i]}, v{m[i]}, v{Sc(i)+3}")
        for k in range(4): I(f"v_permlane32_swap_b32 v{m[2*k]}, v{m[2*k+1]}")
        for k in range(4): I(f"v_max_f32 v{m[2*k]}, v{m[2*k]}, v{m[2*k+1]}")
        for k in range(2): I(f"v_permlane16_swap_b32 v{m[4*k]}, v{m[4*k+2]}")
        for k in range(2): I(f"v_max_f32 v{m[4*k]}, v{m[4*k]}, v{m[4*k+2]}")
        for k in range(2): I(f"v_mul_f32 v{m[4*k+2]}, s{S_CEXP}, v{m[4*k]}")
        for k in range(2): I(f"v_mul_f32 v{m[4*k]}, s{S_CEXP}, v{m[4*k]}")
        for k in range(2): I(f"v_permlane16_swap_b32 v{m[4*k]}, v{m[4*k+2]}")
        for k in range(4): I(f"v_mov_b32 v{m[2*k+1]}, v{m[2*k]}")
        for k in range(4): I(f"v_permlane32_swap_b32 v{m[2*k]}, v{m[2*k+1]}")
        b2_unit(1, H_BD)
        poll_check(mask=0x33)
        for i in range(8):
            for r in range(4): I(f"v_fma_f32 v{Sc(i)+r}, v{Sc(i)+r}, s{S_CEXP}, -v{m[i]}")
            for r in range(4): I(f"v_exp_f32 v{Sc(i)+r}, v{Sc(i)+r}")
            a2_load(i)
        for half, mk in enumerate(("s[56:57]", "s[58:59]")):
            I(f"s_mov_b64 exec, {mk}")
            for i, (t, p) in enumerate(un):
                I(f"v_cvt_pk_bf16_f32 v{Preg(t,p)+2*half}, v{Sc(i)}, v{Sc(i)+1}")
                I(f"v_cvt_pk_bf16_f32 v{Preg(t,p)+2*half+1}, v{Sc(i)+2}, v{Sc(i)+3}")
        I("s_mov_b64 exec, -1")
        for i, (t, p) in enumerate(un): I(f"{MF} {vr(Sc(i))}, {ar(A_ONES)}, {vr(Preg(t,p))}, 0")
        for i in range(8): I(f"v_rcp_f32 v{V_RINV+i}, v{Sc(i)}")
        for i, (t, p) in enumerate(un): I(f"v_mul_f32 v{V_RINV+i}, v{H_G+2*p}, v{V_RINV+i}")
        stamp("h_sm")
        I("s_barrier")
        stamp("h_vb")
        kv_reads(V_AD + 3, "v")
        e.wait(lg="v3")
        I("s_barrier")
        stamp("h_vb2")
        for i, (t, p) in enumerate(un):
            e.wait(lg=f"v{t}")
            I(f"{MF} {vr(Sc(i))}, {ar(A_KV+8*t+4*p)}, {vr(Preg(t,p))}, 0")
        for b in range(2):
            ob = 56 if b == 0 else 4
            for i in range(4 * b, 4 * b + 4):
                t, p = un[i]; o = Sc(i)
                for r in range(4): I(f"v_mul_f32 v{o+r}, v{V_RINV+i}, v{o+r}")
                I(f"v_cvt_pk_bf16_f32 v{ob+p*4+(t&1)*2}, v{o}, v{o+1}")
                I(f"v_cvt_pk_bf16_f32 v{ob+p*4+(t&1)*2+1}, v{o+2}, v{o+3}")
            a2_store(16 + b, "so")
        stamp("h_so")
        br_setup()
        def f_push():
            e.wait(vm="so")
            push_group(lambda: I(f"s_lshl_b32 s{S_t2}, 64, s{S_jj}"))
        def f_c():
            poll_check(mask=0x44)
            for lam in (8, 9, 10, 11): a2_load(lam)
        def f_h():
            poll_check(mask=0x88); a2_load(12); a2_load(13)
        def f_o():
            I(f"s_xor_b32 s{S_t2}, s{S_jj}, 1"); I(f"s_lshl_b32 s{S_t2}, 64, s{S_t2}")
            poll_check(mask_sgpr=S_t2); a2_load(14); a2_load(15)
        side = {(0, 14): f_push, (8, -40): poll_load, (8, -24): f_c, (12, -36): poll_load, (12, -22): f_h, (14, -34): poll_load, (14, -20): f_o}
        lg_need = {}
        early = list(range(8))
    if OPT["prio"] == 2: I("s_setprio 1")
    stamp("h_p2")
    own_lams = ([16, 17] if att else [])
    def acc2(tau, tt, p): return H_ACC + ((tau * 2 + tt) * 2 + p) * 4
    LD = OPT["ld"]
    seq = [(lam, tau) for lam in range(14) for tau in range(4 if lam < LD else 3)]
    oo = [16, 17, 14, 15] if att else [16, 17, 14, 15]
    seq += [(lam, tau) for tau in range(3) for lam in oo]
    seq += [(lam, 3) for lam in list(range(LD, 14)) + oo]
    steps = []
    rng = {}
    seen_g = set(); seen_l = set(); first = set()
    for (lam, tau) in seq:
        g = lam >> 1
        for tt in range(2):
            a = H_BR + 2 * tau + tt
            off = g * SLOT + (lam & 1) * 4096
            hi = off >> 16
            st = dict(rd=(a, off & 0xffff, 2048))
            pres = []
            if g not in seen_g:
                seen_g.add(g)
                t = U("t")
                if len(steps) >= 3: steps[-3]["post"] = lambda k, g=g, t=t: d_read(f"Lb{g}", t)
                else: pres.append(lambda g=g, t=t: d_read(f"Lb{g}", t))
                pres.append(lambda g=g, t=t: d_check(f"Lb{g}", t))
            if rng.get(a, 0) != hi:
                dlt = (hi - rng.get(a, 0)) * 65536; rng[a] = hi
                pres.append(lambda a=a, dlt=dlt: I(f"v_add_u32 v{a}, {dlt & 0xffffffff}, v{a}"))
            if pres: st["pre"] = lambda pres=pres: [f() for f in pres]
            zero = (tau, tt) not in first; first.add((tau, tt))
            def mf(W, st, lam=lam, tau=tau, tt=tt, zero=zero):
                return [f"{MF} {vr(acc2(tau,tt,p))}, {W}, {a2r(lam,p)}, {'0' if zero else vr(acc2(tau,tt,p))}" for p in range(2)]
            st["mf"] = mf
            if lam not in seen_l:
                seen_l.add(lam)
                if lam not in own_lams: st["need"] = lambda lam=lam: e.wait(vm=f"a{lam}")
                elif lam in lg_need: st["need"] = lambda lam=lam: e.wait(lg=lg_need[lam])
            st["id"] = (lam, tau, tt)
            steps.append(st)
    S = Stream(steps, OPT["D2"], [V_RING + 4 * i for i in range(NRING)] + [H_BD])
    idx = {st["id"]: k for k, st in enumerate(steps)}
    def aft(k, f):
        prev = S.after.get(k)
        S.after[k] = (lambda: (prev(), f())) if prev else f
    for (lam, d), f in side.items(): aft(idx[(oo[0] if (lam == 14 and not att) else lam, 0, 0)] + d, f)
    def scale(tau):
        return [lambda r=r, p=p: I(f"v_mul_f32 v{r}, v{H_G+2*p+1}, v{r}") for tt in range(2) for p in range(2) for r in range(acc2(tau, tt, p), acc2(tau, tt, p) + 4)]
    def pbase():
        I(f"s_lshl_b32 s{S_PB}, s{S_r}, 2"); I(f"s_add_u32 s{S_PB}, s{S_PB}, s{S_jj}")
        I(f"s_mul_i32 s{S_PB}, s{S_PB}, {12*16384}")
        I(f"s_add_u32 s{S_PB}, s{S_PB}, s{S_m0b}"); I(f"s_add_u32 s{S_PB}, s{S_PB}, {PART_OFF}")
    pbase()
    NPJ = 2 if OPT["pbf"] else 4
    def send(tau):
        F = []
        def so():
            I(f"s_xor_b32 s{S_GIN}, s{S_q}, {3-tau}"); I(f"s_mul_i32 s{S_GIN}, s{S_GIN}, {3*16384}")
            I(f"s_add_u32 s{S_GIN}, s{S_GIN}, s{S_PB}"); I(f"s_add_u32 s{S_GIN}, s{S_GIN}, {tau*16384}")
        F.append(so)
        if OPT["pbf"]:
            b = H_ACC + tau * 16
            for k in range(8):
                F.append(lambda k=k: I(f"v_cvt_pk_bf16_f32 v{b+k}, v{b+2*k}, v{b+2*k+1}"))
        for j in range(NPJ):
            F.append(lambda j=j: hstore([f"buffer_store_dwordx4 {vr(H_ACC+tau*16+j*4)}, v{V_L16}, {srd(S_WS)}, s{S_GIN} offen offset:{j*1024}"], f"p{tau}"))
        return F
    def pflag(tau):
        assert e.vmq[0][0].count(f"p{tau}") == NPJ
        e.wait(vm=f"p{tau}")
        I(f"s_xor_b32 s{S_t0}, s{S_MYIN}, {(3-tau)*2048}")
        I(f"s_mov_b32 s{S_t2}, {1024<<tau}")
        I(f"s_atomic_or s{S_t2}, s[{S_INB}:{S_INB+1}], s{S_t0}")
    for tau in range(4):
        k = idx[(13, tau, 1)]
        aft(k, lambda k=k, tau=tau: S.add(k + 2, idx[(oo[0], tau, 0)], scale(tau)))
    if not hgate:
        def gget():
            t = U("t"); d_read("Lb8", t); d_check("Lb8", t)
            I(f"s_lshl_b32 s{S_t0}, s{S_w}, 10"); I(f"s_add_u32 s{S_t0}, s{S_t0}, {GB_LDS}")
            I(f"v_add_u32 v1, s{S_t0}, v{V_L16}")
            I(f"ds_read_b128 {vr(H_G)}, v1", tag="gz")
        aft(idx[(12, 0, 1)], gget)
        aft(idx[(13, 0, 1)], lambda: e.wait(lg="gz"))
    k_own = idx[(LD, 3, 0)]; n = len(steps)
    for tau in range(3):
        k = idx[(oo[-1], tau, 1)]
        aft(k, lambda k=k, tau=tau: S.add(k + 2, k + 8, send(tau)))
        aft(min(k + 20, n - 1), lambda tau=tau: pflag(tau))
    aft(n - 1, poll_load)
    aft(idx[(8, 0, 0)], lambda: stamp("h_late"))
    aft(idx[(oo[0], 0, 0)], lambda: stamp("h_o"))
    aft(k_own, lambda: stamp("h_own"))
    S.run(lambda k: 3)
    I(f"s_mul_i32 s{S_GIN}, s{S_q}, {3*16384}")
    I(f"s_add_u32 s{S_GIN}, s{S_GIN}, s{S_PB}")
    poll_check(mask=0x1c00)
    stamp("h_rcv")
    for tau in range(3):
        for j in range(NPJ):
            I(f"buffer_load_dwordx4 {vr(H_ACC+tau*16+j*4)}, v{V_L16}, {srd(S_WS)}, s{S_GIN} offen offset:{j*1024} sc1", tag=f"r{tau}")
        if tau < 2: I(f"s_add_u32 s{S_GIN}, s{S_GIN}, 16384")
    I("v_and_b32 v4, 15, v0")
    I("v_bfe_u32 v6, v0, 4, 1")
    I("v_lshlrev_b32 v6, 5, v6")
    I("v_lshrrev_b32 v7, 5, v0")
    I("v_lshl_add_u32 v6, v7, 4, v6")
    I("v_lshl_add_u32 v5, v4, 11, v6")
    I("v_xor_b32 v4, 0x4000, v5")
    I(f"s_lshl_b32 s{S_t0}, s{S_r}, 17"); I(f"s_lshl_b32 s{S_t1}, s{S_w}, 15"); I(f"s_add_u32 s{S_t0}, s{S_t0}, s{S_t1}")
    I(f"s_lshl_b32 s{S_t1}, s{S_jj}, 8"); I(f"s_add_u32 s{S_t0}, s{S_t0}, s{S_t1}")
    I(f"s_lshl_b32 s{S_t1}, s{S_q}, 6"); I(f"s_add_u32 s{S_t0}, s{S_t0}, s{S_t1}")
    O = H_ACC + 48
    for tau in range(3):
        e.wait(vm=f"r{tau}")
        if OPT["pbf"]:
            b = H_ACC + tau * 16
            for k in range(7, -1, -1):
                I(f"v_and_b32 v{b+2*k+1}, 0xffff0000, v{b+k}")
                I(f"v_lshlrev_b32 v{b+2*k}, 16, v{b+k}")
        for k in range(8):
            I(f"v_pk_add_f32 {vr(O+2*k,2)}, {vr(O+2*k,2)}, {vr(H_ACC+tau*16+2*k,2)}")
    stamp("h_sum")
    for p in range(2):
        pk = V_RING + 4 * p
        for tt in range(2):
            a = acc2(3, tt, p)
            I(f"v_cvt_pk_bf16_f32 v{pk+2*tt}, v{a}, v{a+1}")
            I(f"v_cvt_pk_bf16_f32 v{pk+2*tt+1}, v{a+2}, v{a+3}")
        I(f"v_permlane16_swap_b32 v{pk}, v{pk+2}")
        I(f"v_permlane16_swap_b32 v{pk+1}, v{pk+3}")
        I(f"buffer_store_dwordx4 {vr(pk)}, v{4+p}, {srd(S_OUT)}, s{S_t0} offen offset:{p*1024}" + (" sc1" if OPT["outsc"] else ""))
    finish()

h_prog(False)
e.label("L_h_att")
h_prog(True)

e.label("L_end")
I("s_endpgm")
e.raw('.section .rodata,"a"')
e.raw(".p2align 6")
e.raw(f".amdhsa_kernel {NAME}_kernel")
e.raw("  .amdhsa_next_free_vgpr 256")
e.raw("  .amdhsa_next_free_sgpr 102")
e.raw("  .amdhsa_accum_offset 128")
e.raw("  .amdhsa_group_segment_fixed_size 0")
e.raw("  .amdhsa_kernarg_size 80")
e.raw("  .amdhsa_user_sgpr_count 2")
e.raw("  .amdhsa_user_sgpr_kernarg_segment_ptr 1")
e.raw("  .amdhsa_system_sgpr_workgroup_id_x 1")
e.raw(".end_amdhsa_kernel")
sys.stdout.write(e.text())
sys.stderr.write(f"instructions {e.nins} nop-states {e.nops} events {len(EV)}\n")
```

```python
import re

TRANS = ("v_exp_f32", "v_log_f32", "v_rcp_f32", "v_rsq_f32", "v_sqrt_f32", "v_sin_f32", "v_cos_f32")

def regs_of(tok):
    tok = tok.strip()
    tok = tok.lstrip("-")
    m = re.fullmatch(r"abs\((.*)\)", tok)
    if m: tok = m.group(1)
    m = re.fullmatch(r"([vas])(\d+)", tok)
    if m: return {(m.group(1), int(m.group(2)))}
    m = re.fullmatch(r"([vas])\[(\d+):(\d+)\]", tok)
    if m: return {(m.group(1), i) for i in range(int(m.group(2)), int(m.group(3)) + 1)}
    if tok in ("vcc", "vcc_lo", "vcc_hi"): return {("s", "vcc")}
    if tok in ("exec", "exec_lo", "exec_hi"): return {("s", "exec")}
    if tok == "m0": return {("s", "m0")}
    return set()

def split_ops(s):
    out, depth, cur = [], 0, ""
    for ch in s:
        if ch == "[": depth += 1
        if ch == "]": depth -= 1
        if ch == "," and depth == 0:
            out.append(cur.strip()); cur = ""
        else:
            cur += ch
    if cur.strip(): out.append(cur.strip())
    return out

class Ins:
    __slots__ = ("pos", "kind", "w", "r", "A", "B", "C", "mn", "wide")

class Em:
    def __init__(self):
        self.lines = []
        self.hist = []
        self.pos = 0
        self.vmq = [[[], 0]]
        self.lgq = [[[], 0]]
        self.nops = 0
        self.count_mem = True
        self.nins = 0

    def raw(self, s):
        self.lines.append(s)

    def comment(self, s):
        self.lines.append("    ; " + s)

    def label(self, name):
        self.lines.append(name + ":")

    def parse(self, text):
        t = text.split(";")[0].strip()
        sp = t.split(None, 1)
        mn = sp[0]
        rest = sp[1] if len(sp) > 1 else ""
        ops = split_ops(rest)
        mods = ""
        if ops:
            parts = ops[-1].split(None, 1)
            ops[-1] = parts[0]
            if len(parts) > 1: mods = parts[1]
        i = Ins(); i.mn = mn; i.w = set(); i.r = set(); i.A = i.B = i.C = set(); i.wide = False
        R = [regs_of(o) for o in ops]
        if mn.startswith("v_mfma"):
            i.kind = "mfma"; i.w = R[0]; i.A = R[1]; i.B = R[2]; i.C = R[3]; i.r = R[1] | R[2] | R[3]
        elif mn.startswith("v_"):
            i.kind = "valu"
            if mn.startswith(("v_swap", "v_permlane16_swap", "v_permlane32_swap")):
                i.w = R[0] | R[1]; i.r = R[0] | R[1]
            else:
                i.w = R[0]
                for x in R[1:]: i.r |= x
                if mn.startswith(("v_fmac", "v_dot2c")): i.r |= R[0]
                if mn.startswith("v_cndmask") and len(ops) == 3: i.r |= {("s", "vcc")}
        elif mn.startswith(("buffer_load", "global_load")):
            i.kind = "vmem"
            if "lds" in mods.split():
                for x in R: i.r |= x
                i.r |= {("s", "m0")}
                i.kind = "dma"
            else:
                i.w = R[0]
                for x in R[1:]: i.r |= x
        elif mn.startswith(("buffer_store", "buffer_atomic", "global_store")):
            i.kind = "vmem"
            for x in R: i.r |= x
            i.wide = True
            i.A = R[0]
        elif mn.startswith("ds_read"):
            i.kind = "ds"; i.w = R[0]
            for x in R[1:]: i.r |= x
        elif mn.startswith("ds_write"):
            i.kind = "ds"
            for x in R: i.r |= x
        elif mn.startswith("s_"):
            i.kind = "salu"
            if mn.startswith(("s_cmp", "s_cbranch", "s_branch", "s_waitcnt", "s_barrier", "s_nop", "s_endpgm", "s_sleep", "s_setprio", "s_bitcmp")):
                for x in R: i.r |= x
            else:
                if R: i.w = R[0]
                for x in R[1:]: i.r |= x
        else:
            raise ValueError("unknown " + text)
        return i

    def need(self, p, c):
        n = 0
        vw = {x for x in p.w if x[0] in "va"}
        sw = {x for x in p.w if x[0] == "s"}
        if p.kind == "valu":
            if c.kind == "mfma" and vw & c.r: n = max(n, 2)
            if c.kind == "valu":
                if p.mn.startswith(TRANS) and vw & c.r and not c.mn.startswith(TRANS): n = max(n, 1)
                if p.mn.startswith(TRANS) and vw & c.r: n = max(n, 1)
                if c.mn.startswith("v_permlane") and vw & c.r: n = max(n, 2)
                if c.mn.startswith(("v_readfirstlane", "v_readlane")) and vw & c.r: n = max(n, 1)
                if sw & c.r: n = max(n, 2)
                if p.mn.startswith("v_dot2c") and vw & (c.r | c.w) and c.mn != p.mn: n = max(n, 3)
                if "dpp" in c.mn and vw & c.r and not (p.mn == c.mn and vw == c.w): n = max(n, 2)
            if c.kind in ("vmem", "dma") and sw & c.r: n = max(n, 5)
            if c.kind == "salu" and sw & c.r: n = max(n, 1)
        if p.kind == "mfma":
            x = 4 if "32x32" in p.mn else 0
            if c.kind == "mfma":
                if p.w & (c.A | c.B): n = max(n, 8 + x)
                if p.w & c.C and not (p.w == c.C and p.mn == c.mn): n = max(n, 6 + x)
                if p.w & c.w and p.mn != c.mn: n = max(n, 8 + x)
            elif c.kind in ("valu", "vmem", "dma", "ds"):
                if p.w & (c.r | c.w): n = max(n, 8 + x)
            if c.kind == "valu" and p.C & c.w: n = max(n, 3 + x)
        if p.kind == "salu" and ("s", "m0") in p.w and c.kind == "dma": n = max(n, 1)
        if p.kind == "vmem" and p.wide and p.A & c.w: n = max(n, 2)
        return n

    def I(self, text, tag=None):
        i = self.parse(text)
        req = 0
        for p in reversed(self.hist):
            d = self.pos - p.pos - 1
            if d >= 12: break
            n = self.need(p, i)
            if n - d > req: req = n - d
        if req > 0:
            self.lines.append(f"    s_nop {req-1}")
            self.pos += req
            self.nops += req
            self.nins += 1
        i.pos = self.pos
        if i.mn == "s_nop":
            self.pos += int(text.split()[1]) + 1
        else:
            self.pos += 1
        self.hist.append(i)
        if len(self.hist) > 64: self.hist = self.hist[-32:]
        self.lines.append("    " + text)
        self.nins += 1
        if self.count_mem:
            if i.kind in ("vmem", "dma"):
                for q in self.vmq: q[0].append(tag)
            if i.kind == "ds":
                for q in self.lgq: q[0].append(tag)
        return i

    def cond_begin(self):
        self._cstart = self.pos
        self._chist = len(self.hist)
        self._cpre = list(self.hist)
        self.count_mem = False
    def cond_end(self):
        ln = self.pos - self._cstart
        for p in self._cpre:
            p.pos += ln
        self.hist.sort(key=lambda p: p.pos)
        self.count_mem = True

    def _n(self, qs, tags, cap):
        best = None
        for q in qs:
            lst = q[0]
            if tags == "all":
                best = 0
                continue
            idx = -1
            for k, t in enumerate(lst):
                if t in tags: idx = k
            for t in tags: assert t in lst, ("tag missing", t)
            if idx + 1 > q[1]:
                n = min(len(lst) - 1 - idx, cap)
                best = n if best is None else min(best, n)
        if best is not None:
            for q in qs:
                q[1] = max(q[1], len(q[0]) - best)
        return best

    def wait(self, vm=None, lg=None):
        parts = []
        if vm is not None:
            if vm != "all" and isinstance(vm, str): vm = [vm]
            n = self._n(self.vmq, vm if vm == "all" else set(vm), 63)
            if n is not None: parts.append(f"vmcnt({n})")
        if lg is not None:
            if lg != "all" and isinstance(lg, str): lg = [lg]
            n = self._n(self.lgq, lg if lg == "all" else set(lg), 15)
            if n is not None: parts.append(f"lgkmcnt({n})")
        if parts:
            self.I("s_waitcnt " + " ".join(parts))

    def snapshot(self):
        import copy
        return copy.deepcopy((self.vmq, self.lgq))
    def restore(self, s):
        import copy
        self.vmq, self.lgq = copy.deepcopy(s)
    def join(self, snaps):
        import copy
        self.vmq = []; self.lgq = []
        for s in snaps:
            s = copy.deepcopy(s)
            self.vmq += s[0]; self.lgq += s[1]
    def flush_hazards(self):
        self.I("s_nop 7")
        self.hist = []

    def text(self):
        return "\n".join(self.lines) + "\n"
```

```python
import sys, struct
from emit import Em

NAME = "gated_mix__sliding_local_dilated__dense_activation_relu__prompt"
OPT = dict(padk=-1, padr=0, stamp=0, D=4, DF=5, D2=5, codepf=1, spin=400000, lround=0, side=2, sidef=2, side2=3,
           ld=6, thr=5, pre=4, pfd=18, ackb=10, cprio=2, dummy=0, sch=1, tm=0, qb=0)
CST = ["s0", "s2", "s4", "s6", "s8", "s10", "s12", "c_end"]
HST = ["h_b0", "h_b7", "h_p2", "h_late", "h_o", "h_own", "h_rcv", "h_sum"]
for a in sys.argv[1:]:
    k, v = a.split("=")
    if k == "cst": CST = v.split(",")
    elif k == "hst": HST = v.split(",")
    else:
        assert k in OPT, k
        OPT[k] = int(v)
STAMP = OPT["stamp"]
def f2u(x): return struct.unpack("<I", struct.pack("<f", x))[0]

PART_OFF = 10 << 20
INB_OFF = 32 << 20
STAMP_OFF = 33 << 20
WS_BYTES = 36 << 20
SLOT = 16384
HALO_LDS = 7 * SLOT
EXCH_LDS = 8 * SLOT
EV_LDS = EXCH_LDS + 20480
ZERO_LDS = EV_LDS + 256
GW_LDS = EV_LDS + 1024
GB_LDS = EV_LDS + 2048
NEG = f2u(-1e30)

e = Em()
I = e.I
def vr(b, n=4): return f"v[{b}:{b+n-1}]"
def ar(b, n=4): return f"a[{b}:{b+n-1}]"
def srd(b): return f"s[{b}:{b+3}]"
MF = "v_mfma_f32_16x16x32_bf16"
M32 = "v_mfma_f32_32x32x16_bf16"

S_X, S_W, S_WS, S_OUT, S_W2, S_WO, S_GW = 24, 28, 32, 36, 40, 44, 48
S_INB = 52; S_DBG = 54
S_w, S_r, S_jj, S_q, S_m0b, S_j1 = 60, 61, 62, 64, 65, 66
S_t0, S_t1, S_t2 = 3, 67, 68
S_BUD = 69; S_EV = 70; S_SOFF = 71
S_POLL = 74; S_MYIN = 75; S_CEXP = 76; S_THR = 77; S_W4 = 79
S_KG = 80; S_WK = 84
S_COL = 88; S_A2 = 89; S_B2 = 90; S_BO = 91; S_PB = 92; S_J32 = 93; S_GIN = 94; S_P = 95
S_STAMP = 4
EVD = {}
def evd(name):
    if name not in EVD: EVD[name] = len(EVD)
    assert EVD[name] < 16
    return EVD[name] * 16
role = ["H"]
def stamp(name):
    L = CST if role[0] == "C" else HST
    if name == "end": idx = 8
    elif name in L: idx = L.index(name)
    else: return
    if STAMP == 3: I(f"s_memrealtime s[{S_STAMP+2*idx}:{S_STAMP+2*idx+1}]")
    elif STAMP: I(f"s_memtime s[{S_STAMP+2*idx}:{S_STAMP+2*idx+1}]")
uid = [0]
def U(p):
    uid[0] += 1
    return f"L_{p}{uid[0]}"
def reset():
    e.vmq = [[[], 0]]; e.lgq = [[[], 0]]; e.hist = []
V_L16 = 16; V_EVW = 17; V_CHK = 3
SLOW = []
def flush_slow():
    for l in SLOW: e.raw(l)
    SLOW.clear()
def spin_tail(lp, ok):
    return [f"    s_sub_u32 s{S_BUD}, s{S_BUD}, 1", f"    s_cbranch_scc0 {lp}", f"    s_mov_b32 s{S_BUD}, 0", f"    s_branch {ok}"]
def dsig(name):
    I(f"s_add_u32 m0, s{S_W4}, {EV_LDS + evd(name)}")
    I("s_mov_b64 exec, 1")
    I(f"buffer_load_dword v{V_L16}, {srd(S_WO)}, s{S_WO+2} offen lds", tag="dsig")
    I("s_mov_b64 exec, -1")
def d_read(name, tag): I(f"ds_read_b32 v{V_CHK}, v{V_EVW} offset:{evd(name)}", tag=tag)
def d_check(name, tag):
    ok = U("ok"); lp = U("sp")
    e.wait(lg=tag)
    I(f"v_cmp_ne_u32 vcc, 0, v{V_CHK}")
    I(f"s_cbranch_vccnz {lp}")
    e.label(ok)
    SLOW.extend([f"{lp}:", f"    ds_read_b32 v{V_CHK}, v{V_EVW} offset:{evd(name)}", "    s_waitcnt lgkmcnt(0)", f"    v_cmp_ne_u32 vcc, 0, v{V_CHK}",
                 f"    s_cbranch_vccz {ok}", "    s_sleep 1"] + spin_tail(lp, ok))
def throttle():
    n = OPT["thr"]
    I(f"s_waitcnt vmcnt({n})")
    for q in e.vmq: q[1] = max(q[1], len(q[0]) - n)
def poll_load():
    I(f"s_load_dword s{S_POLL}, s[{S_INB}:{S_INB+1}], s{S_MYIN} glc")
def poll_check(mask):
    ok = U("pk"); lp = U("pl")
    I(f"s_andn2_b32 s{S_EV}, {mask}, s{S_POLL}")
    I(f"s_cbranch_scc1 {lp}")
    e.label(ok)
    SLOW.extend([f"{lp}:", "    s_waitcnt lgkmcnt(0)", f"    s_andn2_b32 s{S_EV}, {mask}, s{S_POLL}", f"    s_cbranch_scc0 {ok}",
                 f"    s_load_dword s{S_POLL}, s[{S_INB}:{S_INB+1}], s{S_MYIN} glc"] + spin_tail(lp, ok))
def push_group(bit_fn, ds):
    bit_fn()
    for d in ds:
        I(f"s_xor_b32 s{S_t0}, s{S_MYIN}, {d*512}")
        I(f"s_atomic_or s{S_t2}, s[{S_INB}:{S_INB+1}], s{S_t0}")
def ownbit(b):
    def f():
        I(f"s_lshl_b32 s{S_t2}, s{S_jj}, 2"); I(f"s_lshl_b32 s{S_t2}, {1<<b}, s{S_t2}")
    return f
def mk_srd(b, p, nbytes):
    I(f"s_mov_b32 s{b}, s{p}")
    I(f"s_and_b32 s{b+1}, s{p+1}, 0xffff")
    I(f"s_mov_b32 s{b+2}, {nbytes}")
    I(f"s_mov_b32 s{b+3}, 0x20000")
def b2_voffs(dst):
    I("v_lshrrev_b32 v1, 3, v0")
    I("v_bfe_u32 v2, v0, 4, 1")
    I("v_lshlrev_b32 v2, 2, v2")
    I(f"v_and_b32 v{dst}, 7, v0")
    I(f"v_xor_b32 v{dst}, v{dst}, v2")
    I(f"v_lshlrev_b32 v{dst}, 4, v{dst}")
    I(f"v_lshl_add_u32 v{dst}, v1, 10, v{dst}")
    for i in range(1, 4): I(f"v_add_u32 v{dst+i}, {i*7168}, v{dst}")
def late_scalars():
    I(f"s_lshl_b32 s{S_W4}, s{S_w}, 2")
    I(f"s_mov_b32 s{S_BUD}, {OPT['spin']}")
    I(f"s_and_b32 s{S_j1}, s{S_jj}, 1")
    I(f"s_lshl_b32 s{S_t0}, s{S_jj}, 8")
    I(f"s_lshr_b32 s{S_t1}, s{S_w}, 1")
    I(f"s_lshl_b32 s{S_t1}, s{S_t1}, 7")
    I(f"s_add_u32 s{S_t0}, s{S_t0}, s{S_t1}")
    I(f"s_and_b32 s{S_t1}, s{S_w}, 1")
    I(f"s_lshl_b32 s{S_t1}, s{S_t1}, 15")
    I(f"s_add_u32 s{S_t0}, s{S_t0}, s{S_t1}")
    I(f"s_mul_i32 s{S_B2}, s{S_q}, {14*32768}")
    I(f"s_add_u32 s{S_B2}, s{S_B2}, s{S_t0}")
    I(f"s_lshl_b32 s{S_BO}, s{S_q}, 17")
    I(f"s_add_u32 s{S_BO}, s{S_BO}, s{S_t0}")
    I(f"s_lshl_b32 s{S_J32}, s{S_j1}, 16")
    I(f"s_lshl_b32 s{S_t0}, s{S_r}, 2")
    I(f"s_add_u32 s{S_t0}, s{S_t0}, s{S_q}")
    I(f"s_mul_i32 s{S_A2}, s{S_t0}, {18*8192}")
    I(f"s_lshl_b32 s{S_t1}, s{S_w}, 11")
    I(f"s_add_u32 s{S_A2}, s{S_A2}, s{S_t1}")
    I(f"s_lshl_b32 s{S_MYIN}, s{S_t0}, 2")
    I(f"s_add_u32 s{S_MYIN}, s{S_MYIN}, s{S_jj}")
    I(f"s_lshl_b32 s{S_MYIN}, s{S_MYIN}, 2")
    I(f"s_add_u32 s{S_MYIN}, s{S_MYIN}, s{S_w}")
    I(f"s_lshl_b32 s{S_MYIN}, s{S_MYIN}, 7")
    I(f"v_lshlrev_b32 v{V_L16}, 4, v0")
    I(f"v_and_b32 v{V_EVW}, 3, v0")
    I(f"v_lshlrev_b32 v{V_EVW}, 2, v{V_EVW}")
    I(f"v_add_u32 v{V_EVW}, {EV_LDS}, v{V_EVW}")
def common_ptrs():
    I(f"s_add_u32 s{S_INB}, s22, {INB_OFF}")
    I(f"s_addc_u32 s{S_INB+1}, s23, 0")
    I(f"s_lshl_b32 s{S_t0}, s{S_r}, 4")
    I(f"s_add_u32 s{S_DBG}, s20, s{S_t0}")
    I(f"s_addc_u32 s{S_DBG+1}, s21, 0")
    mk_srd(S_WS, 22, WS_BYTES)
    mk_srd(S_W2, 14, 1792 * 1024)
    mk_srd(S_WO, 8, 512 * 1024)
def dma4(voff, srdb, tag):
    for i in range(4):
        I(f"buffer_load_dwordx4 v{voff+i}, {srd(srdb)}, s{S_SOFF} offen offset:{i*1024} lds", tag=tag)
def b2_unit(g, voff):
    I(f"s_add_u32 m0, s{S_m0b}, {g*SLOT}")
    if g < 7: I(f"s_add_u32 s{S_SOFF}, s{S_B2}, {g*65536}")
    else:
        I(f"s_xor_b32 s{S_SOFF}, s{S_J32}, {((g-7)^1)*65536}")
        I(f"s_add_u32 s{S_SOFF}, s{S_SOFF}, s{S_BO}")
    dma4(voff, S_W2 if g < 7 else S_WO, f"b{g}")
    dsig(f"Lb{g}")
def a2_soff(lam, dst):
    if lam < 14: I(f"s_add_u32 s{dst}, s{S_A2}, {lam*8192}")
    else:
        I(f"s_lshr_b32 s{dst}, s{S_J32}, 2"); I(f"s_xor_b32 s{dst}, s{dst}, {((lam-14)^2)*8192}")
        I(f"s_add_u32 s{dst}, s{dst}, s{S_A2}"); I(f"s_add_u32 s{dst}, s{dst}, {14*8192}")
def after_karg():
    I("s_waitcnt lgkmcnt(0)")
    if STAMP:
        I("s_memtime s[100:101]")
        I("s_mov_b32 s72, s96")
        I("s_mov_b32 s73, s98")
def finish():
    if STAMP:
        I("s_waitcnt vmcnt(0)")
        stamp("end")
        I("s_memrealtime s[22:23]")
        I("s_waitcnt lgkmcnt(0)")
        I(f"s_lshl_b32 s{S_t0}, s2, 3")
        I(f"s_add_u32 s{S_t0}, s{S_t0}, s{S_w}")
        if role[0] == "H": I(f"s_add_u32 s{S_t0}, s{S_t0}, 4")
        I(f"s_lshl_b32 s{S_t0}, s{S_t0}, 6")
        I(f"s_add_u32 s{S_t0}, s{S_t0}, {STAMP_OFF}")
        I(f"v_mov_b32 v2, s{S_t0}")
        for k in range(9): I(f"v_mov_b32 v{32+k}, s{S_STAMP+2*k}")
        I("v_mov_b32 v41, s73"); I("v_mov_b32 v42, s22"); I("v_mov_b32 v43, s72"); I("v_mov_b32 v44, s100")
        I(f"v_mov_b32 v45, s{S_BUD}"); I("v_mov_b32 v46, 0")
        I("s_mov_b64 exec, 1")
        for k in range(4): I(f"buffer_store_dwordx4 {vr(32+4*k)}, v2, {srd(S_WS)}, 0 offen offset:{16*k}")
    if STAMP == 3:
        if OPT["padk"] >= 0 and (OPT["padr"] == 1) == (role[0] == "H"): I(f"s_sub_u32 s24, s{S_STAMP+2*OPT['padk']}, s73")
        else: I("s_mov_b32 s24, 0")
        I("s_add_u32 s24, s24, 6000")
        l = U("pad")
        e.label(l)
        I("s_memrealtime s[26:27]"); I("s_waitcnt lgkmcnt(0)"); I("s_sub_u32 s25, s26, s73"); I("s_cmp_lt_u32 s25, s24"); I(f"s_cbranch_scc1 {l}")
    I("s_endpgm")
    flush_slow()
def units(att):
    L = []
    for u in range(4): L += [("x", u, 0), ("x", u, 1), ("g", 0, u), ("g", 1, u)]
    L += [("g", 2, u) for u in range(4)]
    if not att: L += [("g", 3, 0), ("g", 3, 1)]
    return L
def phys(att, k):
    if not att: return (k - 14) % 9
    i = (k - 13) % 8
    return 8 if i == 7 else i
QSLOT = phys(True, 13)

class Stream:
    def __init__(self, steps, depth, ring):
        self.steps = steps; self.side = []; self.after = {}; self.D = depth; self.ring = ring
        assert len(ring) >= depth + 2
    def add(self, ready, deadline, fns):
        for f in fns: self.side.append([ready, deadline, f])
    def aft(self, k, f):
        prev = self.after.get(k)
        self.after[k] = (lambda: (prev(), f())) if prev else f
    def issue(self, k, half):
        st = self.steps[k]
        b = self.ring[k % len(self.ring)]
        a, off, d2 = st["rd"]
        if half == 0:
            if "pre" in st: st["pre"]()
            I(f"ds_read_b64_tr_b16 {vr(b,2)}, v{a} offset:{off}", tag=f"w{k}")
        else:
            I(f"ds_read_b64_tr_b16 {vr(b+2,2)}, v{a} offset:{off+d2}", tag=f"w{k}")
            if "post" in st: st["post"](k)
    def pump(self, k, n):
        c = 0
        while self.side and c < n and self.side[0][0] <= k:
            r = self.side.pop(0)[2]()
            c += r if isinstance(r, int) else 1
    def run(self, rate):
        n = len(self.steps); D = self.D
        for k in range(min(D, n)):
            self.issue(k, 0); self.issue(k, 1)
        for k in range(n):
            st = self.steps[k]
            while any(s[1] <= k for s in self.side): self.side.pop(0)[2]()
            if "need" in st: st["need"]()
            if k % 2 == 0 and k + 1 < n: e.wait(lg=f"w{k+1}")
            e.wait(lg=f"w{k}")
            mfs = st["mf"](vr(self.ring[k % len(self.ring)]), st)
            I(mfs[0])
            if k + D < n: self.issue(k + D, 0)
            if len(mfs) > 1:
                self.pump(k, (rate + 1) // 2)
                I(mfs[1])
            if k + D < n: self.issue(k + D, 1)
            for m in mfs[2:]: I(m)
            self.pump(k, rate // 2 if len(mfs) > 1 else rate)
            if k in self.after: self.after[k]()
            stamp(f"k{k}")
        while self.side: self.side.pop(0)[2]()
def cost(n, f):
    def g():
        f(); return n
    return g

e.raw(f"; @launch grid=(256,1,1) block=(512,1,1) lds=163840")
e.raw('.amdgcn_target "amdgcn-amd-amdhsa--gfx950"')
e.raw(".text")
e.raw(f".globl {NAME}_kernel")
e.raw(".p2align 8")
e.raw(f".type {NAME}_kernel,@function")
e.label(f"{NAME}_kernel")
I("s_load_dwordx16 s[4:19], s[0:1], 0")
I("s_load_dwordx4 s[20:23], s[0:1], 64")
if STAMP:
    I("s_memrealtime s[98:99]")
    I("s_memtime s[96:97]")
I("v_lshrrev_b32 v1, 6, v0")
I("s_cmp_ge_u32 s2, 256")
I("s_cbranch_scc1 L_end")
I(f"v_readfirstlane_b32 s{S_t2}, v1")
I("v_and_b32 v0, 63, v0")
I(f"s_bfe_u32 s{S_q}, s2, 0x20001")
I(f"s_and_b32 s{S_t0}, s2, 1")
I(f"s_lshl_b32 s{S_t0}, s{S_t0}, 3")
I(f"s_bfe_u32 s{S_r}, s2, 0x30003")
I(f"s_or_b32 s{S_r}, s{S_r}, s{S_t0}")
I(f"s_lshr_b32 s{S_jj}, s2, 6")
I(f"s_and_b32 s{S_w}, s{S_t2}, 3")
I(f"s_lshl_b32 s{S_m0b}, s{S_w}, 12")
I(f"s_cmp_lt_u32 s{S_t2}, 4")
I("s_cbranch_scc1 L_C")

H_XD = 4; H_WD = 8; H_BD = 12; H_G = 18; H_BR = 20; H_ACC = 64
H_RING = [32, 36, 40, 44, 48, 52, 24, 28]
def a2r(lam, p):
    if lam < 16: return ar(lam * 8 + p * 4)
    return vr((56 if lam == 16 else 4) + p * 4)
I("s_setprio 3")
I("v_lshrrev_b32 v32, 4, v0")
I("v_lshrrev_b32 v36, 3, v0")
I("v_and_b32 v37, 7, v0")
I("v_xor_b32 v39, v37, v32")
I("v_lshlrev_b32 v39, 4, v39")
I(f"v_lshl_add_u32 v{H_XD}, v36, 11, v39")
I(f"v_xor_b32 v{H_XD+1}, 64, v{H_XD}")
I(f"v_add_u32 v{H_XD+2}, {14*1024}, v{H_XD+1}")
I(f"v_add_u32 v{H_XD+3}, {14*1024}, v{H_XD}")
I(f"s_lshl_b32 s{S_t0}, s{S_r}, 17")
I(f"s_lshl_b32 s{S_t1}, s{S_w}, 15")
I(f"s_add_u32 s{S_t0}, s{S_t0}, s{S_t1}")
for g4 in range(4):
    I(f"s_add_u32 s{S_WK+g4}, s{S_r}, {g4}")
    I(f"s_and_b32 s{S_WK+g4}, s{S_WK+g4}, 3")
    I(f"s_lshl_b32 s{S_KG+g4}, s{S_WK+g4}, 8")
    I(f"s_add_u32 s{S_KG+g4}, s{S_KG+g4}, s{S_t0}")
I(f"s_mov_b32 s{S_X+2}, {2048*1024}")
I(f"s_mov_b32 s{S_X+3}, 0x20000")
assert phys(False, 0) == 4 and phys(False, 1) == 5 and phys(True, 0) == 3 and phys(True, 1) == 4 and phys(False, 2) == 6 and phys(True, 2) == 5
I(f"s_cmp_ge_u32 s{S_jj}, 2")
I(f"s_cselect_b32 s{S_t2}, 3, 4")
I(f"s_mov_b32 s{S_W+2}, {512*3584}")
I(f"s_cmov_b32 s{S_W+2}, {512*3072}")
I(f"s_mov_b32 s{S_P}, 3584")
I(f"s_cmov_b32 s{S_P}, 3072")
I(f"s_lshl_b32 s{S_t2}, s{S_t2}, 14")
I(f"s_add_u32 s{S_t2}, s{S_t2}, s{S_m0b}")
I(f"s_mov_b32 m0, s{S_t2}")
I(f"s_add_u32 s{S_SOFF}, s{S_KG}, 128")
after_karg()
I(f"s_mov_b32 s{S_X}, s4")
I(f"s_and_b32 s{S_X+1}, s5, 0xffff")
for i in range(4): I(f"buffer_load_dwordx4 v{H_XD+i}, {srd(S_X)}, s{S_KG} offen offset:{i*1024} lds", tag="u0")
I(f"s_add_u32 m0, s{S_t2}, {SLOT}")
I(f"s_mov_b32 s{S_W+3}, 0x20000")
dma4(H_XD, S_X, "u1")
I(f"s_lshl_b32 s{S_t0}, s{S_w}, 5")
I(f"v_add_u32 v38, s{S_t0}, v36")
I(f"v_mul_lo_u32 v38, v38, s{S_P}")
I(f"s_mul_i32 s{S_COL}, s{S_q}, 896")
I(f"s_lshl_b32 s{S_t0}, s{S_q}, 8")
I(f"s_add_u32 s{S_t0}, s{S_t0}, {1024-256}")
I(f"s_cmp_ge_u32 s{S_jj}, 2")
I(f"s_cselect_b32 s{S_W}, s6, s12")
I(f"s_cselect_b32 s{S_W+1}, s7, s13")
I(f"s_cselect_b32 s{S_COL}, s{S_t0}, s{S_COL}")
I(f"s_cselect_b32 s{S_t0}, 1, 2")
I(f"s_cselect_b32 s{S_t1}, 64, 0")
I(f"s_and_b32 s{S_W+1}, s{S_W+1}, 0xffff")
I("v_and_b32 v39, 1, v32")
I(f"v_lshlrev_b32 v39, s{S_t0}, v39")
I("v_xor_b32 v39, v39, v37")
I("v_lshlrev_b32 v39, 4, v39")
I(f"v_add_u32 v{H_WD}, v38, v39")
I(f"v_xor_b32 v39, s{S_t1}, v39")
I(f"s_lshl_b32 s{S_t0}, s{S_P}, 3")
I(f"s_sub_u32 s{S_t0}, s{S_t0}, 1024")
I(f"v_add3_u32 v{H_WD+1}, v38, v39, s{S_t0}")
I(f"s_lshl_b32 s{S_t0}, s{S_t0}, 1")
I(f"v_add_u32 v{H_WD+2}, s{S_t0}, v{H_WD}")
I(f"v_add_u32 v{H_WD+3}, s{S_t0}, v{H_WD+1}")
I(f"s_lshl_b32 s{S_t0}, s{S_jj}, 7")
I(f"s_add_u32 s{S_COL}, s{S_COL}, s{S_t0}")
I(f"s_lshl_b32 s{S_t1}, s{S_P}, 7")
for g4 in range(4): I(f"s_mul_i32 s{S_WK+g4}, s{S_WK+g4}, s{S_t1}")
I(f"s_add_u32 m0, s{S_t2}, {2*SLOT}")
I(f"s_add_u32 s{S_SOFF}, s{S_WK}, s{S_COL}")
dma4(H_WD, S_W, "u2")
common_ptrs()
mk_srd(S_OUT, 18, 2048 * 1024)
mk_srd(S_GW, 16, 1024)
I(f"s_cmp_ge_u32 s{S_jj}, 2")
I("s_cbranch_scc1 L_h_att")
snapH = e.snapshot()

def h_prog(att):
    e.restore(snapH); e.hist = []
    UL = units(att)
    CH = [0, -1024, 1024] if att else [0, 256, 512]
    def issue(k):
        un = UL[k]
        I(f"s_add_u32 m0, s{S_m0b}, {phys(att,k)*SLOT}")
        if un[0] == "x":
            I(f"s_add_u32 s{S_SOFF}, s{S_KG+un[1]}, {un[2]*128}")
            dma4(H_XD, S_X, f"u{k}")
            return
        _, c, u = un
        if c < 3:
            I(f"s_add_u32 s{S_SOFF}, s{S_WK+u}, s{S_COL}")
            if CH[c]: I(f"s_add_i32 s{S_SOFF}, s{S_SOFF}, {CH[c]}")
        else:
            KH = 256 * 3584
            if u == 0:
                I("v_lshrrev_b32 v2, 2, v0")
                I("v_lshrrev_b32 v1, 4, v0")
                I("v_xor_b32 v2, v2, v1")
                I("v_and_b32 v2, 1, v2")
                I(f"v_mul_u32_u24 v1, {KH-64}, v2")
                for i in range(4): I(f"v_add_u32 v{H_WD+i}, v{H_WD+i}, v1")
                I(f"v_mul_u32_u24 v2, {2*KH}, v2")
                I(f"v_sub_u32 v{H_XD}, {KH}, v2")
                I(f"s_cmp_ge_u32 s{S_WK}, {KH}")
                I(f"s_cselect_b32 s{S_t0}, 1, 0")
            else:
                I(f"s_cmp_ge_u32 s{S_WK}, {KH}")
                I(f"s_cselect_b32 s{S_t1}, 1, 0")
                I(f"s_cmp_ge_u32 s{S_WK+1}, {KH}")
                I(f"s_cselect_b32 s{S_t0}, 1, 0")
                I(f"s_sub_u32 s{S_t0}, s{S_t0}, s{S_t1}")
            for i in range(4): I(f"v_mad_i32_i24 v{H_WD+i}, v{H_XD}, s{S_t0}, v{H_WD+i}")
            I(f"s_min_u32 s{S_SOFF}, s{S_WK+u}, s{S_WK+u+2}")
            I(f"s_add_u32 s{S_SOFF}, s{S_SOFF}, s{S_COL}")
            I(f"s_lshl_b32 s{S_t0}, s{S_jj}, 6")
            I(f"s_sub_u32 s{S_SOFF}, s{S_SOFF}, s{S_t0}")
            I(f"s_add_u32 s{S_SOFF}, s{S_SOFF}, 768")
        dma4(H_WD, S_W, f"u{k}")
    def w0(f):
        l = U("w0")
        I(f"s_cmp_eq_u32 s{S_w}, 0"); I(f"s_cbranch_scc0 {l}")
        e.cond_begin(); f(); e.cond_end(); e.label(l)
    def peer_issue(): w0(lambda: I(f"s_load_dword s{S_POLL}, s[{S_DBG}:{S_DBG+1}], 0 glc"))
    def peer():
        def f():
            lp = U("pp"); ok = U("po")
            I("s_waitcnt lgkmcnt(0)")
            I(f"s_cmp_ge_u32 s{S_POLL}, 16")
            I(f"s_cbranch_scc0 {lp}")
            e.label(ok)
            SLOW.extend([f"{lp}:", "    s_sleep 8", f"    s_load_dword s{S_POLL}, s[{S_DBG}:{S_DBG+1}], 0 glc", "    s_waitcnt lgkmcnt(0)",
                         f"    s_cmp_ge_u32 s{S_POLL}, 16", f"    s_cbranch_scc1 {ok}"] + spin_tail(lp, ok))
        w0(f)
        I(f"s_mov_b32 s{S_POLL}, 0")
    V_Q = 64; V_S = 96; V_BIAS = 32; V_RINV = 40; V_T = 48; A_KV = 64; A_ONES = 96; V_AD = 24
    def att_setup(part):
        if part == 0:
            I(f"s_add_u32 s{S_t0}, s{S_m0b}, {EXCH_LDS+4096}")
            I(f"v_add_u32 v{V_AD}, s{S_t0}, v{V_L16}")
            I("v_bfe_u32 v1, v0, 3, 1")
            I("v_lshlrev_b32 v1, 12, v1")
            I(f"v_sub_u32 v{V_AD+2}, v{V_AD}, v1")
            I("v_xor_b32 v1, 4096, v1")
            I(f"v_sub_u32 v{V_AD+1}, v{V_AD}, v1")
            I("v_lshrrev_b32 v1, 5, v0")
            I("v_lshlrev_b32 v1, 12, v1")
            I(f"v_sub_u32 v{V_AD+4}, v{V_AD}, v1")
            I("v_xor_b32 v1, 4096, v1")
            I(f"v_sub_u32 v{V_AD+3}, v{V_AD}, v1")
            I(f"v_add_u32 v{V_AD+5}, {(QSLOT*SLOT - EXCH_LDS - 4096) & 0xffffffff}, v{V_AD}")
            I(f"s_mov_b32 s{S_CEXP}, {f2u(0.25*1.4426950408889634)}")
            I(f"s_or_b32 s{S_t0}, s{S_r}, s{S_w}")
            I(f"s_cmp_eq_u32 s{S_t0}, 0")
            I(f"s_cselect_b32 s{S_THR}, -16, -9")
            I(f"v_mov_b32 v{V_T}, 0x3f803f80")
            for k in range(4): I(f"v_accvgpr_write_b32 a{A_ONES+k}, v{V_T}")
            I(f"v_mov_b32 v{V_T}, {NEG}")
            I(f"v_and_b32 v{V_T+1}, 15, v0")
            I(f"v_lshrrev_b32 v{V_T+2}, 4, v0")
            I(f"v_lshlrev_b32 v{V_T+2}, 2, v{V_T+2}")
        elif part in (1, 2):
            p = part - 1; x8 = 8 if p == 0 else 0
            I(f"v_xor_b32 v{V_T+3}, {x8}, v{V_T+1}")
            I(f"v_xor_b32 v{V_T+4}, {x8}, v{V_T+2}")
            I(f"v_sub_u32 v{V_T+3}, v{V_T+3}, v{V_T+4}")
            for r in range(4):
                I(f"v_subrev_u32 v{V_T+4}, {r}, v{V_T+3}")
                I(f"v_cmp_lt_u32 vcc, 7, v{V_T+4}")
                I(f"v_cmp_lt_i32 s[56:57], s{S_THR}, v{V_T+4}")
                I("s_and_b64 vcc, vcc, s[56:57]")
                I(f"v_cndmask_b32 v{V_BIAS+p*4+r}, 0, v{V_T}, vcc")
        else:
            for k in range(16): I(f"v_mov_b32 v{V_Q+16*(part-3)+k}, 0")
            I("s_mov_b32 s56, 0xff00ff00"); I("s_mov_b32 s57, 0xff00ff00")
            I("s_not_b64 s[58:59], s[56:57]")
    def br_setup():
        I("v_bfe_u32 v1, v0, 2, 2")
        I("v_lshrrev_b32 v2, 5, v0")
        I("v_lshl_add_u32 v1, v2, 2, v1")
        I("v_lshlrev_b32 v1, 7, v1")
        I("v_bfe_u32 v2, v0, 4, 1")
        I("v_lshl_add_u32 v1, v2, 5, v1")
        I("v_bfe_u32 v2, v0, 3, 1")
        I("v_lshl_add_u32 v1, v2, 6, v1")
        I("v_and_b32 v2, 3, v0")
        I("v_lshl_add_u32 v1, v2, 3, v1")
        I(f"s_lshr_b32 s{S_t0}, s{S_q}, 1")
        I(f"s_lshl_b32 s{S_t0}, s{S_t0}, 13")
        I(f"s_and_b32 s{S_t1}, s{S_q}, 1")
        I(f"s_lshl_b32 s{S_t1}, s{S_t1}, 6")
        I(f"s_or_b32 s{S_t0}, s{S_t0}, s{S_t1}")
        I(f"v_xor_b32 v1, s{S_t0}, v1")
        for tau in range(4):
            cb = 3 - tau
            I(f"v_xor_b32 v{H_BR+tau}, {(cb>>1)*8192 + (cb&1)*64}, v1")
        I(f"s_lshl_b32 s{S_PB}, s{S_r}, 2"); I(f"s_add_u32 s{S_PB}, s{S_PB}, s{S_jj}")
        I(f"s_mul_i32 s{S_PB}, s{S_PB}, {12*8192}")
        I(f"s_lshl_b32 s{S_t0}, s{S_w}, 11"); I(f"s_add_u32 s{S_PB}, s{S_PB}, s{S_t0}"); I(f"s_add_u32 s{S_PB}, s{S_PB}, {PART_OFF}")
    if att:
        I(f"s_lshl_b32 s{S_t0}, s{S_r}, 17")
        I(f"s_sub_u32 s{S_t0}, s{S_t0}, 16384")
        I(f"v_add_u32 v38, s{S_t0}, v{H_XD}")
        I(f"s_add_u32 s{S_t0}, s{S_t0}, 1024")
        I(f"v_add_u32 v39, s{S_t0}, v{H_XD+1}")
        I("v_max_i32 v38, 0, v38")
        I("v_max_i32 v39, 0, v39")
        I(f"s_add_u32 s{S_t0}, s{S_r}, s{S_w}")
        I(f"s_and_b32 s{S_t0}, s{S_t0}, 3")
        I(f"s_lshl_b32 s{S_t0}, s{S_t0}, 8")
        for i in range(4):
            kh, rh = divmod(i, 2)
            I(f"s_add_u32 m0, s{S_m0b}, {HALO_LDS + i*1024 - kh*128}")
            I(f"buffer_load_dwordx4 v{38+rh}, {srd(S_X)}, s{S_t0} offen offset:{kh*128} lds", tag="u2")
    PRE = OPT["pre"] - (1 if att else 0)
    for k in range(3, PRE + 1): issue(k)
    first = list(range(PRE + 1, 8))
    if att: sched = [first, [8, 9], [10], [11, 12, 13], [14], [15, 16, 17], [18], [19]]
    else: sched = [first, [8, 9], [10, 11], [12, 13], [14, 15], [16, 17], [18, 19], []]
    def gw_dma():
        I(f"s_mov_b32 m0, {GW_LDS}")
        w0(lambda: I(f"buffer_load_dwordx4 v{V_L16}, {srd(S_GW)}, 0 offen lds"))
    extra = {1: lambda: (late_scalars(), b2_voffs(H_BD)), 3: gw_dma, 7: (br_setup if att or OPT["sch"] else lambda: (b2_unit(8, H_BD), br_setup()))}
    if att: extra.update({2: lambda: (att_setup(0), att_setup(1)), 4: lambda: (att_setup(2), att_setup(3)), 6: lambda: att_setup(4)})
    gk = [k for k, un in enumerate(UL) if un[0] == "g"]
    def bar(i, need=None):
        stamp(f"h_a{i}")
        if need is None and i < len(gk): need = gk[i]
        if need is not None: e.wait(vm=f"u{need}")
        if i == 6: peer()
        I("s_barrier"); stamp(f"h_b{i}")
    for i in range(8):
        bar(i)
        if i == 4: peer_issue()
        for k in sched[i]: issue(k)
        if i in extra: extra[i]()
    def a2_load(lam):
        a2_soff(lam, S_t1)
        for p in range(2):
            I(f"buffer_load_dwordx4 {a2r(lam,p)}, v{V_L16}, {srd(S_WS)}, s{S_t1} offen offset:{p*1024} sc1", tag=f"a{lam}")
    def a2_items(lams, gap=1):
        F = []
        for lam in lams:
            F.append(cost(9, lambda lam=lam: (a2_soff(lam, S_COL), I(f"buffer_load_dwordx4 {a2r(lam,0)}, v{V_L16}, {srd(S_WS)}, s{S_COL} offen sc1", tag=f"a{lam}x"))))
            F += [cost(9, lambda: None)] * (gap - 1)
            F.append(cost(9, lambda lam=lam: I(f"buffer_load_dwordx4 {a2r(lam,1)}, v{V_L16}, {srd(S_WS)}, s{S_COL} offen offset:1024 sc1", tag=f"a{lam}")))
            F += [cost(9, lambda: None)] * (gap - 1)
        return F
    Bu = lambda g: b2_unit(g, H_BD)
    SS = []
    ALL = (0, 1, 2, 3)
    side = {}
    if not att:
        if OPT["sch"] == 0:
            bar(8); Bu(0)
            bar(9); issue(20); Bu(1)
            bar(10); push_group(ownbit(0), ALL); issue(21); Bu(2)
            bar(11); push_group(ownbit(1), ALL); Bu(3); poll_load()
            bar(12); poll_check(0x11)
            for lam in range(4): a2_load(lam)
            Bu(4); poll_load()
            bar(13); poll_check(0x22)
            for lam in range(4, 8): a2_load(lam)
            Bu(5)
            bar(14)
        else:
            bar(8)
            bar(9); issue(20)
            bar(10); push_group(ownbit(0), ALL); issue(21)
            bar(11); push_group(ownbit(1), ALL); Bu(0); Bu(1); poll_load()
            bar(12); poll_check(0x11); a2_load(0); a2_load(1); poll_load()
            bar(13); a2_load(2); a2_load(3); Bu(2)
            bar(14); poll_check(0x22)
            side[(0, 0)] = lambda: SS[0].add(0, 999, a2_items((4, 5, 6, 7), 2))
        def f_o(): poll_check(0x300); SS[0].add(0, 999, a2_items((16, 17, 14, 15)))
    else:
        def kv_reads(m0, tag):
            for t in range(4):
                I(f"ds_read_b64 {ar(A_KV+8*t,2)}, v{m0} offset:{t*1024}", tag=f"{tag}{t}")
                I(f"ds_read_b128 {ar(A_KV+8*t+2)}, v{V_AD} offset:{t*1024}", tag=f"{tag}{t}")
                I(f"ds_read_b64 {ar(A_KV+8*t+6,2)}, v{m0+1} offset:{t*1024+8}", tag=f"{tag}{t}")
        bar(8)
        kv_reads(V_AD + 1, "k")
        e.wait(lg="k3")
        poll_load()
        bar(9, 19)
        def Preg(t, p): return V_Q + 8 * t + 4 * p
        for half, m in enumerate(("s[56:57]", "s[58:59]")):
            I(f"s_mov_b64 exec, {m}")
            for t in range(4):
                for p in range(2):
                    I(f"ds_read_b64 {vr(Preg(t,p)+2*half,2)}, v{V_AD+5} offset:{t*1024+p*8}", tag="q")
        I("s_mov_b64 exec, -1")
        stamp("h_q")
        e.wait(lg="q")
        un = [(i >> 1, i & 1) for i in range(8)]
        Sc = lambda i: V_S + 4 * i
        for i, (t, p) in enumerate(un): I(f"{MF} {vr(Sc(i))}, {ar(A_KV+8*t+4*p)}, {vr(Preg(t,p))}, {vr(V_BIAS+4*p)}")
        Bu(0)
        m = [V_T + i for i in range(8)]
        for i in range(8):
            if OPT["lround"]:
                I(f"v_cvt_pk_bf16_f32 v1, v{Sc(i)}, v{Sc(i)+1}")
                I(f"v_cvt_pk_bf16_f32 v2, v{Sc(i)+2}, v{Sc(i)+3}")
                I(f"v_lshlrev_b32 v{Sc(i)}, 16, v1")
                I(f"v_and_b32 v{Sc(i)+1}, 0xffff0000, v1")
                I(f"v_lshlrev_b32 v{Sc(i)+2}, 16, v2")
                I(f"v_and_b32 v{Sc(i)+3}, 0xffff0000, v2")
            I(f"v_max3_f32 v{m[i]}, v{Sc(i)}, v{Sc(i)+1}, v{Sc(i)+2}")
            I(f"v_max_f32 v{m[i]}, v{m[i]}, v{Sc(i)+3}")
        for k in range(4): I(f"v_permlane32_swap_b32 v{m[2*k]}, v{m[2*k+1]}")
        for k in range(4): I(f"v_max_f32 v{m[2*k]}, v{m[2*k]}, v{m[2*k+1]}")
        for k in range(2): I(f"v_permlane16_swap_b32 v{m[4*k]}, v{m[4*k+2]}")
        for k in range(2): I(f"v_max_f32 v{m[4*k]}, v{m[4*k]}, v{m[4*k+2]}")
        for k in range(2): I(f"v_mul_f32 v{m[4*k+2]}, s{S_CEXP}, v{m[4*k]}")
        for k in range(2): I(f"v_mul_f32 v{m[4*k]}, s{S_CEXP}, v{m[4*k]}")
        for k in range(2): I(f"v_permlane16_swap_b32 v{m[4*k]}, v{m[4*k+2]}")
        for k in range(4): I(f"v_mov_b32 v{m[2*k+1]}, v{m[2*k]}")
        for k in range(4): I(f"v_permlane32_swap_b32 v{m[2*k]}, v{m[2*k+1]}")
        Bu(1)
        poll_check(0x33)
        for i in range(8):
            for r in range(4): I(f"v_fma_f32 v{Sc(i)+r}, v{Sc(i)+r}, s{S_CEXP}, -v{m[i]}")
            for r in range(4): I(f"v_exp_f32 v{Sc(i)+r}, v{Sc(i)+r}")
            a2_load(i)
        for half, mk in enumerate(("s[56:57]", "s[58:59]")):
            I(f"s_mov_b64 exec, {mk}")
            for i, (t, p) in enumerate(un):
                I(f"v_cvt_pk_bf16_f32 v{Preg(t,p)+2*half}, v{Sc(i)}, v{Sc(i)+1}")
                I(f"v_cvt_pk_bf16_f32 v{Preg(t,p)+2*half+1}, v{Sc(i)+2}, v{Sc(i)+3}")
        I("s_mov_b64 exec, -1")
        for i, (t, p) in enumerate(un): I(f"{MF} {vr(Sc(i))}, {ar(A_ONES)}, {vr(Preg(t,p))}, 0")
        for i in range(8): I(f"v_rcp_f32 v{V_RINV+i}, v{Sc(i)}")
        stamp("h_sm")
        I("s_barrier")
        kv_reads(V_AD + 3, "v")
        e.wait(lg="v3")
        I("s_barrier")
        for i, (t, p) in enumerate(un): I(f"{MF} {vr(Sc(i))}, {ar(A_KV+8*t+4*p)}, {vr(Preg(t,p))}, 0")
        for b in range(2):
            for t in (2 * b, 2 * b + 1):
                ob = (56 if b == 0 else 4) + (t & 1) * 4
                for p in range(2):
                    o = Sc(2 * t + p)
                    for r in range(4): I(f"v_mul_f32 v{o+r}, v{V_RINV+2*t+p}, v{o+r}")
                    I(f"v_cvt_pk_bf16_f32 v{ob+2*p}, v{o}, v{o+1}")
                    I(f"v_cvt_pk_bf16_f32 v{ob+2*p+1}, v{o+2}, v{o+3}")
            a2_soff(16 + b, S_t1)
            for t1 in range(2):
                ob = (56 if b == 0 else 4) + t1 * 4
                I(f"v_permlane16_swap_b32 v{ob}, v{ob+2}")
                I(f"v_permlane16_swap_b32 v{ob+1}, v{ob+3}")
            for p in range(2):
                I(f"buffer_store_dwordx4 {a2r(16+b,p)}, v{V_L16}, {srd(S_WS)}, s{S_t1} offen offset:{p*1024} sc1", tag="so")
        stamp("h_so")
        def f_push():
            e.wait(vm="so")
            push_group(lambda: I(f"s_lshl_b32 s{S_t2}, 64, s{S_jj}"), (1, 2, 3))
        side[(0, 14)] = f_push
        def f_o():
            I(f"s_xor_b32 s{S_THR}, s{S_jj}, 1"); I(f"s_lshl_b32 s{S_THR}, 64, s{S_THR}")
            poll_check(f"s{S_THR}"); SS[0].add(0, 999, a2_items((14, 15)))
    def f_c(): poll_check(0x44); SS[0].add(0, 999, a2_items((8, 9, 10, 11)))
    def f_h(): poll_check(0x88); SS[0].add(0, 999, a2_items((12, 13)))
    side.update({(8, -46): poll_load, (8, -28): f_c, (12, -42): poll_load, (12, -26): f_h, (16, -40): poll_load, (16, -24): f_o})
    I("s_setprio 1")
    stamp("h_p2")
    own = [16, 17] if att else []
    LD = OPT["ld"]
    oo = [16, 17, 14, 15]
    TM = 14 - OPT["tm"]
    seq = [(lam, tau) for lam in range(TM) for tau in range(4 if lam < LD else 3)]
    seq += [(lam, tau) for tau in range(3) for lam in list(range(TM, 14)) + oo]
    seq += [(lam, 3) for lam in list(range(LD, 14)) + oo]
    steps = []; rng = {}; seen_g = set(); seen_l = set(); first_ = set()
    for (lam, tau) in seq:
        g = lam >> 1
        for kh in range(2):
            a = H_BR + tau
            off = g * SLOT + (lam & 1) * 4096 + kh * 2048
            hi = off >> 16
            st = dict(rd=(a, off & 0xffff, 1024))
            pres = []
            if g not in seen_g:
                seen_g.add(g); t = U("t")
                if len(steps) >= 3: steps[-3]["post"] = lambda k, g=g, t=t: d_read(f"Lb{g}", t)
                else: pres.append(lambda g=g, t=t: d_read(f"Lb{g}", t))
                pres.append(lambda g=g, t=t: d_check(f"Lb{g}", t))
            if rng.get(a, 0) != hi:
                dlt = (hi - rng.get(a, 0)) * 65536; rng[a] = hi
                pres.append(lambda a=a, dlt=dlt: I(f"v_add_u32 v{a}, {dlt & 0xffffffff}, v{a}"))
            if pres: st["pre"] = lambda pres=pres: [f() for f in pres]
            at = 4 if (tau == 3 and lam >= 14) else tau
            zero = at not in first_; first_.add(at)
            d = vr(H_ACC + 16 * (at & 3 if at < 4 else 0), 16)
            st["mf"] = lambda W, st, lam=lam, kh=kh, d=d, zero=zero: [f"{M32} {d}, {W}, {a2r(lam,kh)}, {'0' if zero else d}"]
            if lam not in seen_l:
                seen_l.add(lam)
                if lam not in own: st["need"] = lambda lam=lam: e.wait(vm=f"a{lam}")
            st["id"] = (lam, tau, kh)
            steps.append(st)
    S = Stream(steps, OPT["D2"], H_RING)
    SS.append(S)
    idx = {st["id"]: k for k, st in enumerate(steps)}
    n = len(steps)
    for (lam, d), f in side.items(): S.aft(idx[(lam, 0, 0)] + d, f)
    def scale(tau, greg): return [lambda r=r: I(f"v_mul_f32 v{r}, v{greg}, v{r}") for r in range(H_ACC + 16 * tau, H_ACC + 16 * tau + 16)]
    def pack(tau):
        b = H_ACC + tau * 16
        return [lambda k=k: I(f"v_cvt_pk_bf16_f32 v{b+k}, v{b+2*k}, v{b+2*k+1}") for k in range(8)]
    def send(tau):
        def so():
            I(f"s_xor_b32 s{S_GIN}, s{S_q}, {3-tau}"); I(f"s_mul_i32 s{S_GIN}, s{S_GIN}, {3*8192}")
            I(f"s_add_u32 s{S_GIN}, s{S_GIN}, s{S_PB}"); I(f"s_add_u32 s{S_GIN}, s{S_GIN}, {tau*8192}")
        return [so] + pack(tau) + [cost(3, lambda j=j: I(f"buffer_store_dwordx4 {vr(H_ACC+tau*16+j*4)}, v{V_L16}, {srd(S_WS)}, s{S_GIN} offen offset:{j*1024} sc1", tag=f"p{tau}")) for j in range(2)]
    def pflag(tau):
        assert e.vmq[0][0].count(f"p{tau}") == 2
        stamp(f"h_pa{tau}")
        e.wait(vm=f"p{tau}")
        stamp(f"h_pb{tau}")
        I(f"s_xor_b32 s{S_t0}, s{S_MYIN}, {(3-tau)*2048}")
        I(f"s_mov_b32 s{S_KG+tau}, {1024<<tau}")
        I(f"s_atomic_or s{S_KG+tau}, s[{S_INB}:{S_INB+1}], s{S_t0}")
    def gget():
        I(f"s_lshl_b32 s{S_t0}, s{S_w}, 8"); I(f"s_add_u32 s{S_t0}, s{S_t0}, {GB_LDS}")
        I("v_and_b32 v1, 31, v0")
        I(f"v_lshl_add_u32 v1, v1, 3, s{S_t0}")
        I(f"ds_read_b64 {vr(H_G,2)}, v1", tag="gz")
    S.aft(idx[(12, 0, 0)] - 3, gget)
    S.aft(idx[(13, 0, 1)], lambda: e.wait(lg="gz"))
    for tau in range(4):
        k = idx[(13, tau, 1)]
        S.aft(k, lambda k=k, tau=tau: S.add(k + 3, idx[(oo[0], tau, 0)] if tau < 3 else n, scale(tau, H_G + 1)))
    late_flags = []
    for tau in range(3):
        k = idx[(oo[-1], tau, 1)]
        S.aft(k, lambda k=k, tau=tau: S.add(k + 3, k + 8, send(tau)))
        kf = k + 7 + OPT["pfd"]
        if kf <= n - OPT["D2"] - 14: S.aft(kf, lambda tau=tau: pflag(tau))
        else: late_flags.append(tau)
    S.aft(n - OPT["D2"], lambda: (e.wait(lg=f"w{n-1}"), [pflag(t) for t in late_flags[:-1]], poll_load()))
    S.aft(idx[(8, 0, 0)], lambda: stamp("h_late"))
    S.aft(idx[(oo[0], 0, 0)], lambda: stamp("h_o"))
    S.aft(idx[(LD, 3, 0)], lambda: stamp("h_own"))
    S.run(OPT["side2"])
    I(f"s_mul_i32 s{S_GIN}, s{S_q}, {3*8192}")
    I(f"s_add_u32 s{S_GIN}, s{S_GIN}, s{S_PB}")
    I("v_bfe_u32 v5, v0, 4, 1")
    I("v_lshlrev_b32 v6, 3, v5")
    I("v_xor_b32 v6, 8, v6")
    I("v_and_b32 v4, 15, v0")
    I("v_xor_b32 v4, v4, v6")
    I("v_lshl_add_u32 v4, v4, 1, v5")
    I("v_lshrrev_b32 v5, 5, v0")
    I("v_lshlrev_b32 v5, 4, v5")
    I("v_lshl_add_u32 v4, v4, 10, v5")
    I(f"s_lshl_b32 s{S_COL}, s{S_r}, 17"); I(f"s_lshl_b32 s{S_t1}, s{S_w}, 15"); I(f"s_add_u32 s{S_COL}, s{S_COL}, s{S_t1}")
    I(f"s_lshl_b32 s{S_t1}, s{S_jj}, 8"); I(f"s_add_u32 s{S_COL}, s{S_COL}, s{S_t1}")
    I(f"s_lshl_b32 s{S_t1}, s{S_q}, 6"); I(f"s_add_u32 s{S_COL}, s{S_COL}, s{S_t1}")
    for t in late_flags[-1:]: pflag(t)
    O = H_ACC + 48
    for k in range(8): I(f"v_pk_add_f32 {vr(O+2*k,2)}, {vr(O+2*k,2)}, {vr(H_ACC+2*k,2)}")
    for tau in range(3):
        poll_check(1024 << tau)
        stamp(f"h_r{tau}")
        if tau == 2: stamp("h_rcv")
        for j in range(2):
            I(f"buffer_load_dwordx4 {vr(24+tau*8+j*4)}, v{V_L16}, {srd(S_WS)}, s{S_GIN} offen offset:{j*1024} sc1", tag=f"r{tau}")
        if tau < 2: I(f"s_add_u32 s{S_GIN}, s{S_GIN}, 8192")
    for tau in range(3):
        e.wait(vm=f"r{tau}")
        b = H_ACC + 16
        for k in range(8):
            I(f"v_lshlrev_b32 v{b+2*k}, 16, v{24+tau*8+k}")
            I(f"v_and_b32 v{b+2*k+1}, 0xffff0000, v{24+tau*8+k}")
        for k in range(8): I(f"v_pk_add_f32 {vr(O+2*k,2)}, {vr(O+2*k,2)}, {vr(b+2*k,2)}")
    for k in range(8): I(f"v_pk_mul_f32 {vr(O+2*k,2)}, {vr(O+2*k,2)}, {vr(H_G,2)} op_sel_hi:[1,0]")
    stamp("h_sum")
    for f in pack(3): f()
    for j in range(2):
        I(f"v_permlane32_swap_b32 v{O+4*j}, v{O+4*j+2}")
        I(f"v_permlane32_swap_b32 v{O+4*j+1}, v{O+4*j+3}")
        I(f"buffer_store_dwordx4 {vr(O+4*j)}, v4, {srd(S_OUT)}, s{S_COL} offen offset:{j*32}")
    finish()

h_prog(False)
e.label("L_h_att")
h_prog(True)

e.label("L_C")
role[0] = "C"
reset()
C_WR = 4; C_XR = 12; C_EXW = 18; C_HA = 20; C_HX = (24, 56, 60); C_HACC = 28; C_ACC = 64
I("s_setprio 2")
if OPT["codepf"]:
    I("s_cmp_lt_u32 s2, 16")
    I("s_cbranch_scc0 L_nopf")
    e.cond_begin()
    I("s_getpc_b64 s[56:57]")
    e.label("L_pc")
    I(f"s_sub_u32 s56, s56, L_pc-{NAME}_kernel")
    I("s_subb_u32 s57, s57, 0")
    I(f"s_lshr_b32 s{S_t0}, s2, 3")
    I(f"s_lshl_b32 s{S_t0}, s{S_t0}, 15")
    I(f"v_lshlrev_b32 v2, 7, v0")
    I(f"v_lshl_add_u32 v2, v1, 13, v2")
    I(f"v_add_u32 v2, s{S_t0}, v2")
    I(f"v_min_u32 v2, L_end-{NAME}_kernel, v2")
    I(f"global_load_dword v23, v2, s[56:57]")
    e.cond_end()
    e.label("L_nopf")
late_scalars()
I("v_lshlrev_b32 v2, 2, v0")
I(f"v_add_u32 v2, {EV_LDS}, v2")
I("v_mov_b32 v1, 1")
I("ds_write_b32 v2, v1")
I("v_mov_b32 v1, 0")
I("ds_write_b32 v2, v1 offset:256")
I("v_lshrrev_b32 v32, 4, v0")
I("v_and_b32 v33, 15, v0")
I("v_bfe_u32 v34, v0, 2, 2")
I("v_and_b32 v35, 3, v0")
after_karg()
common_ptrs()
I(f"s_cmp_eq_u32 s{S_w}, 0")
I("s_cbranch_scc0 L_c_noinit")
e.cond_begin()
for k in range(4):
    I(f"s_mov_b32 s{S_KG+k}, 0")
    I(f"s_add_u32 s{S_t0}, s{S_MYIN}, {k*128}")
    I(f"s_atomic_swap s{S_KG+k}, s[{S_INB}:{S_INB+1}], s{S_t0} glc")
e.cond_end()
e.label("L_c_noinit")
I(f"s_cmp_ge_u32 s{S_jj}, 2")
I("s_cbranch_scc1 L_c_att")

def c_prog(att):
    reset()
    UL = units(att)
    slot_of = {un: phys(att, k) for k, un in enumerate(UL)}
    subs = [un for un in UL if un[0] == "g"]
    if att:
        for p in range(2):
            I(f"v_xor_b32 v38, {8 if p == 0 else 0}, v33")
            I("v_and_b32 v39, 8, v38")
            I("v_add_u32 v39, v39, v38")
            I("v_lshlrev_b32 v39, 7, v39")
            I("v_lshrrev_b32 v38, 1, v38")
            I("v_xor_b32 v38, v38, v32")
            I("v_lshl_add_u32 v39, v38, 4, v39")
            I(f"v_add_u32 v39, s{S_m0b}, v39")
            I(f"v_add_u32 v{C_XR+2*p+p}, {p*1024}, v39")
            I(f"v_xor_b32 v{C_XR+2*p+1-p}, 64, v{C_XR+2*p+p}")
        I("v_lshl_add_u32 v38, v32, 3, v34")
        I("v_lshlrev_b32 v38, 7, v38")
        I("v_lshl_add_u32 v38, v35, 3, v38")
        I("v_lshrrev_b32 v39, 1, v34")
        I("v_and_b32 v40, 1, v32")
        I("v_lshl_or_b32 v39, v40, 1, v39")
        I(f"v_xor_b32 v41, s{S_w}, v39")
        for t in range(4):
            I(f"v_xor_b32 v40, {t}, v41")
            I(f"v_lshl_add_u32 v{C_WR+t}, v40, 5, v38")
            I(f"v_add_u32 v{C_WR+4+t}, 0x10000, v{C_WR+t}")
        I("v_lshrrev_b32 v38, 1, v33")
        I("v_xor_b32 v38, v38, v32")
        I("v_lshlrev_b32 v38, 4, v38")
        I("v_lshl_add_u32 v38, v33, 7, v38")
        I(f"v_add_u32 v{C_HA}, {HALO_LDS}, v38")
        I(f"v_xor_b32 v{C_HA+1}, 64, v{C_HA}")
        I(f"s_mul_i32 s{S_t0}, s{S_w}, 5120")
        I(f"s_add_u32 s{S_t0}, s{S_t0}, {EXCH_LDS+4096}")
        I(f"v_add_u32 v{C_EXW}, s{S_t0}, v{V_L16}")
        I("v_add_u32 v19, 1, v35")
        I("v_bfe_u32 v19, v19, 1, 1")
        I("v_mul_u32_u24 v19, 24, v19")
    else:
        I("v_and_b32 v40, 1, v32")
        I("v_lshlrev_b32 v38, 3, v40")
        I("v_xor_b32 v38, 8, v38")
        I("v_xor_b32 v38, v38, v33")
        I("v_and_b32 v39, 8, v38")
        I("v_add_u32 v39, v39, v38")
        I("v_lshl_add_u32 v39, v40, 3, v39")
        I("v_lshlrev_b32 v39, 7, v39")
        I("v_lshrrev_b32 v38, 1, v38")
        I("v_lshlrev_b32 v41, 2, v40")
        I("v_xor_b32 v38, v38, v41")
        I("v_lshrrev_b32 v41, 1, v32")
        I("v_xor_b32 v38, v38, v41")
        I("v_lshl_add_u32 v39, v38, 4, v39")
        I(f"v_add_u32 v{C_XR}, s{S_m0b}, v39")
        for k in range(1, 4): I(f"v_xor_b32 v{C_XR+k}, {32*k}, v{C_XR}")
        I("v_lshl_add_u32 v38, v41, 3, v34")
        I("v_lshlrev_b32 v38, 7, v38")
        I("v_lshl_add_u32 v38, v35, 3, v38")
        I("v_lshl_add_u32 v38, v40, 5, v38")
        I("v_lshrrev_b32 v39, 1, v34")
        I(f"v_lshl_add_u32 v{C_WR}, v39, 6, v38")
        I(f"v_xor_b32 v{C_WR+1}, 64, v{C_WR}")
        for t in range(2): I(f"v_add_u32 v{C_WR+4+t}, 0x10000, v{C_WR+t}")
    l = U("ci")
    I(f"s_cmp_eq_u32 s{S_w}, 0"); I(f"s_cbranch_scc0 {l}")
    e.cond_begin()
    I(f"s_mov_b32 s{S_t1}, 1")
    I("s_waitcnt lgkmcnt(0)")
    I(f"s_atomic_add s{S_t1}, s[{S_DBG}:{S_DBG+1}], 0")
    e.cond_end(); e.label(l)
    stamp("c_go")
    def xfr(p, s): return ar((p * 16 + s) * 4)
    def xf32(s16): return ar(s16 * 4)
    def acc(c, T, p=0):
        base = C_ACC + 32 * (c & 1)
        return base + (T * 2 + p) * 4 if att else base + T * 16
    def xread(dst, areg, slot, tmp, k):
        base = slot * SLOT
        if base >= 65536:
            I(f"v_add_u32 v{tmp}, {base & ~0xffff}, v{areg}"); areg = tmp
        I(f"ds_read_b128 {dst}, v{areg} offset:{base & 0xffff}", tag=f"w{k}")
    steps = []; nh = [0]
    for i, un in enumerate(subs):
        _, c, u = un; slot = slot_of[un]
        for j in range(16):
            h = j >> 3
            if att:
                ks = (j >> 1) & 3; T = 2 * h + (j & 1); s = 4 * u + ks; zero = (u == 0 and ks == 0)
                halo = T == 0 and c != 1
                st = dict(rd=(C_WR + (4 if slot >= 4 else 0) + T, (slot & 3) * SLOT + ks * 4096, 512))
                def mf(W, st, s=s, T=T, zero=zero, c=c, halo=halo):
                    out = []
                    for p in range(2):
                        a, b = (xfr(p, s), W) if c == 2 else (W, xfr(p, s))
                        d = vr(acc(c, T, p))
                        out.append(f"{MF} {d}, {a}, {b}, {'0' if zero else d}")
                    if halo:
                        a, b = (vr(st["hreg"]), W) if c == 2 else (W, vr(st["hreg"]))
                        out.append(f"{MF} {vr(C_HACC)}, {a}, {b}, {'0' if zero else vr(C_HACC)}")
                    return out
                def post(k, st=st, s=s, halo=halo, j=j, c=c, u=u, ks=ks):
                    if c == 0 and j < 8 and j % 2 == 0:
                        for p in range(2): xread(xfr(p, s), C_XR + 2 * p + (ks & 1), slot_of[("x", u, ks >> 1)], 1 + p, k)
                    if halo:
                        st["hreg"] = C_HX[nh[0] % 3]; nh[0] += 1
                        I(f"ds_read_b128 {vr(st['hreg'])}, v{C_HA+(s&1)} offset:{(s>>1)*2048}", tag=f"w{k}")
            else:
                kk = j & 7
                if c < 3: s16 = 8 * u + kk; ta = h; zero = (u == 0 and kk == 0)
                else: s16 = 8 * (u + 2 * h) + kk; ta = 0; zero = (u == 0 and j == 0)
                st = dict(rd=(C_WR + (4 if slot >= 4 else 0) + h, (slot & 3) * SLOT + kk * 2048, 512))
                d = vr(acc(c, ta), 16)
                def mf(W, st, s16=s16, d=d, zero=zero): return [f"{M32} {d}, {W}, {xf32(s16)}, {'0' if zero else d}"]
                def post(k, s16=s16, j=j, c=c, u=u, kk=kk):
                    if c == 0 and j < 8: xread(xf32(s16), C_XR + (kk & 3), slot_of[("x", u, kk >> 2)], 1 + (kk & 1), k)
            st["mf"] = mf; st["post"] = post
            if j == 0:
                def pre(i=i):
                    stamp(f"t{i}")
                    if att and i in (8, 9):
                        assert e.lgq[0][0].count(f"exw{i-8}") == (5 if i == 8 else 4)
                        e.wait(lg=f"exw{i-8}")
                    if not att and i - OPT["ackb"] in (0, 1):
                        assert e.vmq[0][0].count(f"st{i-OPT['ackb']}") == 4
                        e.wait(vm=f"st{i-OPT['ackb']}")
                    if i < (10 if att else 14): I("s_barrier")
                    stamp(f"s{i}")
                    if att and i == 8:
                        for t in range(8): I(f"v_xor_b32 v{C_WR+t}, v19, v{C_WR+t}")
                st["pre"] = pre
            steps.append(st)
    if att: S = Stream(steps, OPT["D"], [32, 36, 40, 44, 48, 52])
    else: S = Stream(steps, OPT["DF"], [32, 36, 40, 44, 48, 52, 56, 60])
    DD = S.D
    def packn(a, n_): return [lambda k=k: I(f"v_cvt_pk_bf16_f32 v{a+k}, v{a+2*k}, v{a+2*k+1}") for k in range(n_)]
    def epi(c, h):
        F = []
        if att:
            for t in (2 * h, 2 * h + 1):
                a = acc(c, t, 0)
                F += packn(a, 4)
                def wr(t=t, a=a):
                    I(f"v_xor_b32 v1, {t*1024}, v{C_EXW}")
                    if c == 1: I(f"v_add_u32 v1, {(QSLOT*SLOT - EXCH_LDS - 4096) & 0xffffffff}, v1")
                    I(f"ds_write_b128 v1, {vr(a)}", tag=f"exw{c}")
                F.append(wr)
            if h == 0 and c != 1:
                def hw():
                    I(f"v_cvt_pk_bf16_f32 v{C_HACC}, v{C_HACC}, v{C_HACC+1}")
                    I(f"v_cvt_pk_bf16_f32 v{C_HACC+1}, v{C_HACC+2}, v{C_HACC+3}")
                    I(f"s_add_u32 s{S_t0}, s{S_m0b}, 4096")
                    I(f"v_subrev_u32 v1, s{S_t0}, v{C_EXW}")
                    I(f"ds_write2_b64 v1, {vr(C_HACC,2)}, {vr(C_HACC,2)} offset0:0 offset1:1", tag=f"exw{c}")
                F.append(hw)
        else:
            a = acc(c, h)
            F += packn(a, 8)
            def so():
                I(f"s_lshr_b32 s{S_GIN}, s{S_J32}, {2 if c < 3 else 3}")
                I(f"s_add_u32 s{S_GIN}, s{S_GIN}, s{S_A2}"); I(f"s_add_u32 s{S_GIN}, s{S_GIN}, {(4*c+h)*8192}")
            F.append(so)
            for p in range(2):
                F += [lambda k=k: I(f"v_pk_max_i16 v{k}, v{k}, 0") for k in range(a + 4 * p, a + 4 * p + 4)]
                F.append(cost(9, lambda p=p: I(f"buffer_store_dwordx4 {vr(a+4*p)}, v{V_L16}, {srd(S_WS)}, s{S_GIN} offen offset:{p*1024} sc1", tag=f"st{c}")))
        return F
    n = len(steps)
    for c, i, reuse in ((0, 6, 8), (1, 7, 12), (2, 11, 99)):
        for h in range(2):
            k = 16 * i + 8 * h + 7
            if k == n - 1: continue
            dl = min(16 * reuse + (8 * h if reuse == 8 else 0), n)
            if att and c < 2: dl = 16 * (8 + c) - DD - 3
            S.aft(k, lambda k=k, c=c, h=h, dl=dl: S.add(max(k + (2 if att else 4), 16 * 7 - DD + 1 if att else 0), dl, epi(c, h)))
    S.run(OPT["side"] if att else OPT["sidef"])
    stamp("c_end")
    if not att: I("s_barrier")
    for f in (epi(2, 1) if att else epi(3, 0)): f()
    if att:
        e.wait(lg="exw2")
        I("s_barrier")
    if OPT["cprio"] != 2: I(f"s_setprio {OPT['cprio']}")
    b2_voffs(4)
    if att: I("s_barrier")
    rest = [2, 3, 4, 5, 6, 8, 7] if att else [3, 4, 5, 6, 8, 7]
    b2_unit(rest.pop(0), 4); b2_unit(rest.pop(0), 4)
    stamp("c_g0")
    I("v_lshrrev_b32 v9, 4, v0")
    if att:
        I("v_lshlrev_b32 v8, 4, v9")
    else:
        I("v_lshrrev_b32 v8, 5, v0"); I("v_lshlrev_b32 v8, 4, v8")
        I("v_xor_b32 v9, v9, v0"); I("v_and_b32 v9, 1, v9")
        I("v_cmp_eq_u32 vcc, 0, v9")
    NG = 16 if att else 32; per = NG // 4
    RB = [32 + 4 * k for k in range(8)]
    def gread(s_):
        if s_ % per == 0:
            I(f"s_add_u32 s{S_t0}, s{S_r}, {s_//per}"); I(f"s_and_b32 s{S_t0}, s{S_t0}, 3"); I(f"s_lshl_b32 s{S_t0}, s{S_t0}, 8")
            I(f"s_add_u32 s{S_t0}, s{S_t0}, {GW_LDS}")
            I(f"v_add_u32 v10, s{S_t0}, v8")
            if not att:
                I(f"v_mov_b32 v11, {ZERO_LDS}"); I("v_cndmask_b32 v10, v11, v10, vcc")
        I(f"ds_read_b128 {vr(RB[s_%8])}, v10 offset:{(s_%per)*(64 if att else 32)}", tag=f"g{s_}")
    for s_ in range(6): gread(s_)
    for s_ in range(NG):
        e.wait(lg=f"g{s_}")
        if att:
            for p in range(2): I(f"{MF} {vr(64+4*p)}, {vr(RB[s_%8])}, {xfr(p,s_)}, {'0' if s_ == 0 else vr(64+4*p)}")
        else:
            I(f"{MF} {vr(64)}, {vr(RB[s_%8])}, {xf32(s_)}, {'0' if s_ == 0 else vr(64)}")
        if s_ + 6 < NG: gread(s_ + 6)
        if s_ == NG // 2: b2_unit(rest.pop(0), 4)
    if not att:
        assert e.vmq[0][0].count("st2") == 4
        e.wait(vm="st3")
        push_group(lambda: (I(f"s_lshl_b32 s{S_t2}, s{S_jj}, 2"), I(f"s_lshl_b32 s{S_t2}, 12, s{S_t2}")), (0, 1, 2, 3))
    z1 = 68 if att else 65; G = 72
    T = [f"v_cvt_pk_bf16_f32 v1, v64, v{z1}", f"v_lshlrev_b32 v{G}, 16, v1", f"v_and_b32 v{G+2}, 0xffff0000, v1"]
    T += [f"v_mul_f32 v{G+2*p}, {f2u(-1.4426950408889634)}, v{G+2*p}" for p in range(2)]
    T += [f"v_exp_f32 v{G+2*p}, v{G+2*p}" for p in range(2)]
    T += [f"v_add_f32 v{G+2*p}, 1.0, v{G+2*p}" for p in range(2)]
    T += [f"v_rcp_f32 v{G+2*p}, v{G+2*p}" for p in range(2)]
    T += [f"v_cvt_pk_bf16_f32 v1, v{G}, v{G+2}", f"v_lshlrev_b32 v{G}, 16, v1", f"v_and_b32 v{G+2}, 0xffff0000, v1"]
    T += [f"v_sub_f32 v{G+1+2*p}, 1.0, v{G+2*p}" for p in range(2)]
    T += [f"v_cvt_pk_bf16_f32 v1, v{G+1}, v{G+3}", f"v_lshlrev_b32 v{G+1}, 16, v1", f"v_and_b32 v{G+3}, 0xffff0000, v1"]
    T += [f"v_max_f32 v{G+2*p}, {f2u(2.0**-60)}, v{G+2*p}" for p in range(2)]
    T += [f"v_rcp_f32 v{G+4+p}, v{G+2*p}" for p in range(2)]
    T += [f"v_mul_f32 v{G+1+2*p}, v{G+4+p}, v{G+1+2*p}" for p in range(2)]
    for t in T: I(t)
    I(f"s_lshl_b32 s{S_t0}, s{S_w}, 8"); I(f"s_add_u32 s{S_t0}, s{S_t0}, {GB_LDS}")
    I(f"v_lshl_add_u32 v1, v0, 3, s{S_t0}")
    I("s_mov_b64 exec, 0xffff")
    I(f"ds_write_b64 v1, {vr(G,2)}", tag="gz")
    I(f"ds_write_b64 v1, {vr(G+2,2)} offset:128", tag="gz")
    I("s_mov_b64 exec, -1")
    e.wait(lg="gz")
    stamp("c_g1")
    for g in rest:
        throttle(); b2_unit(g, 4)
    if OPT["dummy"]:
        I(f"s_lshl_b32 s{S_t0}, s2, 2"); I(f"s_add_u32 s{S_t0}, s{S_t0}, s{S_w}"); I(f"s_mul_i32 s{S_t0}, s{S_t0}, 9216"); I(f"s_add_u32 s{S_t0}, s{S_t0}, {20<<20}")
        for k in range(9):
            I(f"buffer_store_dwordx4 {vr(64)}, v{V_L16}, {srd(S_WS)}, s{S_t0 if OPT['dummy'] == 1 else S_WS+2} offen")
            I(f"s_add_u32 s{S_t0}, s{S_t0}, 1024")
    I("s_waitcnt vmcnt(0) lgkmcnt(0)")
    finish()

c_prog(False)
e.label("L_c_att")
c_prog(True)

e.label("L_end")
I("s_endpgm")
e.raw('.section .rodata,"a"')
e.raw(".p2align 6")
e.raw(f".amdhsa_kernel {NAME}_kernel")
e.raw("  .amdhsa_next_free_vgpr 256")
e.raw("  .amdhsa_next_free_sgpr 102")
e.raw("  .amdhsa_accum_offset 128")
e.raw("  .amdhsa_group_segment_fixed_size 0")
e.raw("  .amdhsa_kernarg_size 80")
e.raw("  .amdhsa_user_sgpr_count 2")
e.raw("  .amdhsa_user_sgpr_kernarg_segment_ptr 1")
e.raw("  .amdhsa_system_sgpr_workgroup_id_x 1")
e.raw(".end_amdhsa_kernel")
sys.stdout.write(e.text())
sys.stderr.write(f"instructions {e.nins} nop-states {e.nops}\n")
```

```python
import sys, struct
from emit import Em

NAME = "gated_mix__sliding_local_dilated__dense_activation_relu__prompt"
OPT = dict(padt=6000, padk=-1, padr=0, stamp=0, D=4, DF=5, D2=5, codepf=1, spin=400000, lround=0, side=2, sidef=2, side2=3,
           ld=6, thr=5, pre=4, pfd=18, ackb=10, cprio=2, dummy=0, sch=1, tm=0, qb=0)
CST = ["s0", "s2", "s4", "s6", "s8", "s10", "s12", "c_end"]
HST = ["h_b0", "h_b7", "h_p2", "h_late", "h_o", "h_own", "h_rcv", "h_sum"]
for a in sys.argv[1:]:
    k, v = a.split("=")
    if k == "cst": CST = v.split(",")
    elif k == "hst": HST = v.split(",")
    else:
        assert k in OPT, k
        OPT[k] = int(v)
STAMP = OPT["stamp"]
def f2u(x): return struct.unpack("<I", struct.pack("<f", x))[0]

PART_OFF = 10 << 20
INB_OFF = 32 << 20
STAMP_OFF = 33 << 20
WS_BYTES = 36 << 20
SLOT = 16384
HALO_LDS = 7 * SLOT
EXCH_LDS = 8 * SLOT
EV_LDS = EXCH_LDS + 20480
ZERO_LDS = EV_LDS + 256
GW_LDS = EV_LDS + 1024
GB_LDS = EV_LDS + 2048
NEG = f2u(-1e30)

e = Em()
I = e.I
def vr(b, n=4): return f"v[{b}:{b+n-1}]"
def ar(b, n=4): return f"a[{b}:{b+n-1}]"
def srd(b): return f"s[{b}:{b+3}]"
MF = "v_mfma_f32_16x16x32_bf16"
M32 = "v_mfma_f32_32x32x16_bf16"

S_X, S_W, S_WS, S_OUT, S_W2, S_WO, S_GW = 24, 28, 32, 36, 40, 44, 48
S_INB = 52; S_DBG = 54
S_w, S_r, S_jj, S_q, S_m0b, S_j1 = 60, 61, 62, 64, 65, 66
S_t0, S_t1, S_t2 = 3, 67, 68
S_BUD = 69; S_EV = 70; S_SOFF = 71
S_POLL = 74; S_MYIN = 75; S_CEXP = 76; S_THR = 77; S_W4 = 79
S_KG = 80; S_WK = 84
S_COL = 88; S_A2 = 89; S_B2 = 90; S_BO = 91; S_PB = 92; S_J32 = 93; S_GIN = 94; S_P = 95
S_STAMP = 4
EVD = {}
def evd(name):
    if name not in EVD: EVD[name] = len(EVD)
    assert EVD[name] < 16
    return EVD[name] * 16
role = ["H"]
def stamp(name):
    L = CST if role[0] == "C" else HST
    if name == "end": idx = 8
    elif name in L: idx = L.index(name)
    else: return
    if STAMP == 3: I(f"s_memrealtime s[{S_STAMP+2*idx}:{S_STAMP+2*idx+1}]")
    elif STAMP: I(f"s_memtime s[{S_STAMP+2*idx}:{S_STAMP+2*idx+1}]")
uid = [0]
def U(p):
    uid[0] += 1
    return f"L_{p}{uid[0]}"
def reset():
    e.vmq = [[[], 0]]; e.lgq = [[[], 0]]; e.hist = []
V_L16 = 16; V_EVW = 17; V_CHK = 3
SLOW = []
def flush_slow():
    for l in SLOW: e.raw(l)
    SLOW.clear()
def spin_tail(lp, ok):
    return [f"    s_sub_u32 s{S_BUD}, s{S_BUD}, 1", f"    s_cbranch_scc0 {lp}", f"    s_mov_b32 s{S_BUD}, 0", f"    s_branch {ok}"]
def dsig(name):
    I(f"s_add_u32 m0, s{S_W4}, {EV_LDS + evd(name)}")
    I("s_mov_b64 exec, 1")
    I(f"buffer_load_dword v{V_L16}, {srd(S_WO)}, s{S_WO+2} offen lds", tag="dsig")
    I("s_mov_b64 exec, -1")
def d_read(name, tag): I(f"ds_read_b32 v{V_CHK}, v{V_EVW} offset:{evd(name)}", tag=tag)
def d_check(name, tag):
    ok = U("ok"); lp = U("sp")
    e.wait(lg=tag)
    I(f"v_cmp_ne_u32 vcc, 0, v{V_CHK}")
    I(f"s_cbranch_vccnz {lp}")
    e.label(ok)
    SLOW.extend([f"{lp}:", f"    ds_read_b32 v{V_CHK}, v{V_EVW} offset:{evd(name)}", "    s_waitcnt lgkmcnt(0)", f"    v_cmp_ne_u32 vcc, 0, v{V_CHK}",
                 f"    s_cbranch_vccz {ok}", "    s_sleep 1"] + spin_tail(lp, ok))
def throttle():
    n = OPT["thr"]
    I(f"s_waitcnt vmcnt({n})")
    for q in e.vmq: q[1] = max(q[1], len(q[0]) - n)
def poll_load():
    I(f"s_load_dword s{S_POLL}, s[{S_INB}:{S_INB+1}], s{S_MYIN} glc")
def poll_check(mask):
    ok = U("pk"); lp = U("pl")
    I(f"s_andn2_b32 s{S_EV}, {mask}, s{S_POLL}")
    I(f"s_cbranch_scc1 {lp}")
    e.label(ok)
    SLOW.extend([f"{lp}:", "    s_waitcnt lgkmcnt(0)", f"    s_andn2_b32 s{S_EV}, {mask}, s{S_POLL}", f"    s_cbranch_scc0 {ok}",
                 f"    s_load_dword s{S_POLL}, s[{S_INB}:{S_INB+1}], s{S_MYIN} glc"] + spin_tail(lp, ok))
def push_group(bit_fn, ds):
    bit_fn()
    for d in ds:
        I(f"s_xor_b32 s{S_t0}, s{S_MYIN}, {d*512}")
        I(f"s_atomic_or s{S_t2}, s[{S_INB}:{S_INB+1}], s{S_t0}")
def ownbit(b):
    def f():
        I(f"s_lshl_b32 s{S_t2}, s{S_jj}, 2"); I(f"s_lshl_b32 s{S_t2}, {1<<b}, s{S_t2}")
    return f
def mk_srd(b, p, nbytes):
    I(f"s_mov_b32 s{b}, s{p}")
    I(f"s_and_b32 s{b+1}, s{p+1}, 0xffff")
    I(f"s_mov_b32 s{b+2}, {nbytes}")
    I(f"s_mov_b32 s{b+3}, 0x20000")
def b2_voffs(dst):
    I("v_lshrrev_b32 v1, 3, v0")
    I("v_bfe_u32 v2, v0, 4, 1")
    I("v_lshlrev_b32 v2, 2, v2")
    I(f"v_and_b32 v{dst}, 7, v0")
    I(f"v_xor_b32 v{dst}, v{dst}, v2")
    I(f"v_lshlrev_b32 v{dst}, 4, v{dst}")
    I(f"v_lshl_add_u32 v{dst}, v1, 10, v{dst}")
    for i in range(1, 4): I(f"v_add_u32 v{dst+i}, {i*7168}, v{dst}")
def late_scalars():
    I(f"s_lshl_b32 s{S_W4}, s{S_w}, 2")
    I(f"s_mov_b32 s{S_BUD}, {OPT['spin']}")
    I(f"s_and_b32 s{S_j1}, s{S_jj}, 1")
    I(f"s_lshl_b32 s{S_t0}, s{S_jj}, 8")
    I(f"s_lshr_b32 s{S_t1}, s{S_w}, 1")
    I(f"s_lshl_b32 s{S_t1}, s{S_t1}, 7")
    I(f"s_add_u32 s{S_t0}, s{S_t0}, s{S_t1}")
    I(f"s_and_b32 s{S_t1}, s{S_w}, 1")
    I(f"s_lshl_b32 s{S_t1}, s{S_t1}, 15")
    I(f"s_add_u32 s{S_t0}, s{S_t0}, s{S_t1}")
    I(f"s_mul_i32 s{S_B2}, s{S_q}, {14*32768}")
    I(f"s_add_u32 s{S_B2}, s{S_B2}, s{S_t0}")
    I(f"s_lshl_b32 s{S_BO}, s{S_q}, 17")
    I(f"s_add_u32 s{S_BO}, s{S_BO}, s{S_t0}")
    I(f"s_lshl_b32 s{S_J32}, s{S_j1}, 16")
    I(f"s_lshl_b32 s{S_t0}, s{S_r}, 2")
    I(f"s_add_u32 s{S_t0}, s{S_t0}, s{S_q}")
    I(f"s_mul_i32 s{S_A2}, s{S_t0}, {18*8192}")
    I(f"s_lshl_b32 s{S_t1}, s{S_w}, 11")
    I(f"s_add_u32 s{S_A2}, s{S_A2}, s{S_t1}")
    I(f"s_lshl_b32 s{S_MYIN}, s{S_t0}, 2")
    I(f"s_add_u32 s{S_MYIN}, s{S_MYIN}, s{S_jj}")
    I(f"s_lshl_b32 s{S_MYIN}, s{S_MYIN}, 2")
    I(f"s_add_u32 s{S_MYIN}, s{S_MYIN}, s{S_w}")
    I(f"s_lshl_b32 s{S_MYIN}, s{S_MYIN}, 7")
    I(f"v_lshlrev_b32 v{V_L16}, 4, v0")
    I(f"v_and_b32 v{V_EVW}, 3, v0")
    I(f"v_lshlrev_b32 v{V_EVW}, 2, v{V_EVW}")
    I(f"v_add_u32 v{V_EVW}, {EV_LDS}, v{V_EVW}")
def common_ptrs():
    I(f"s_add_u32 s{S_INB}, s22, {INB_OFF}")
    I(f"s_addc_u32 s{S_INB+1}, s23, 0")
    I(f"s_lshl_b32 s{S_t0}, s{S_r}, 4")
    I(f"s_add_u32 s{S_DBG}, s20, s{S_t0}")
    I(f"s_addc_u32 s{S_DBG+1}, s21, 0")
    mk_srd(S_WS, 22, WS_BYTES)
    mk_srd(S_W2, 14, 1792 * 1024)
    mk_srd(S_WO, 8, 512 * 1024)
def dma4(voff, srdb, tag):
    for i in range(4):
        I(f"buffer_load_dwordx4 v{voff+i}, {srd(srdb)}, s{S_SOFF} offen offset:{i*1024} lds", tag=tag)
def b2_unit(g, voff):
    I(f"s_add_u32 m0, s{S_m0b}, {g*SLOT}")
    if g < 7: I(f"s_add_u32 s{S_SOFF}, s{S_B2}, {g*65536}")
    else:
        I(f"s_xor_b32 s{S_SOFF}, s{S_J32}, {((g-7)^1)*65536}")
        I(f"s_add_u32 s{S_SOFF}, s{S_SOFF}, s{S_BO}")
    dma4(voff, S_W2 if g < 7 else S_WO, f"b{g}")
    dsig(f"Lb{g}")
def a2_soff(lam, dst):
    if lam < 14: I(f"s_add_u32 s{dst}, s{S_A2}, {lam*8192}")
    else:
        I(f"s_lshr_b32 s{dst}, s{S_J32}, 2"); I(f"s_xor_b32 s{dst}, s{dst}, {((lam-14)^2)*8192}")
        I(f"s_add_u32 s{dst}, s{dst}, s{S_A2}"); I(f"s_add_u32 s{dst}, s{dst}, {14*8192}")
def after_karg():
    I("s_waitcnt lgkmcnt(0)")
    if STAMP:
        I("s_memtime s[100:101]")
        I("s_mov_b32 s72, s96")
        I("s_mov_b32 s73, s98")
def finish():
    if STAMP:
        I("s_waitcnt vmcnt(0)")
        stamp("end")
        I("s_memrealtime s[22:23]")
        I("s_waitcnt lgkmcnt(0)")
        I(f"s_lshl_b32 s{S_t0}, s2, 3")
        I(f"s_add_u32 s{S_t0}, s{S_t0}, s{S_w}")
        if role[0] == "H": I(f"s_add_u32 s{S_t0}, s{S_t0}, 4")
        I(f"s_lshl_b32 s{S_t0}, s{S_t0}, 6")
        I(f"s_add_u32 s{S_t0}, s{S_t0}, {STAMP_OFF}")
        I(f"v_mov_b32 v2, s{S_t0}")
        for k in range(9): I(f"v_mov_b32 v{32+k}, s{S_STAMP+2*k}")
        I("v_mov_b32 v41, s73"); I("v_mov_b32 v42, s22"); I("v_mov_b32 v43, s72"); I("v_mov_b32 v44, s100")
        I(f"v_mov_b32 v45, s{S_BUD}"); I("v_mov_b32 v46, 0")
        I("s_mov_b64 exec, 1")
        for k in range(4): I(f"buffer_store_dwordx4 {vr(32+4*k)}, v2, {srd(S_WS)}, 0 offen offset:{16*k}")
    if STAMP >= 3:
        if OPT["padk"] >= 0 and (OPT["padr"] == 1) == (role[0] == "H"):
            I(f"s_sub_u32 s24, s{S_STAMP+2*OPT['padk']}, s{73 if STAMP == 3 else 72}")
            if STAMP == 4: I("s_lshr_b32 s24, s24, 4")
        else: I("s_mov_b32 s24, 0")
        I(f"s_add_u32 s24, s24, {OPT['padt']}")
        l = U("pad")
        e.label(l)
        I("s_memrealtime s[26:27]"); I("s_waitcnt lgkmcnt(0)"); I("s_sub_u32 s25, s26, s73"); I("s_cmp_lt_u32 s25, s24"); I(f"s_cbranch_scc1 {l}")
    I("s_endpgm")
    flush_slow()
def units(att):
    L = []
    for u in range(4): L += [("x", u, 0), ("x", u, 1), ("g", 0, u), ("g", 1, u)]
    L += [("g", 2, u) for u in range(4)]
    if not att: L += [("g", 3, 0), ("g", 3, 1)]
    return L
def phys(att, k):
    if not att: return (k - 14) % 9
    i = (k - 13) % 8
    return 8 if i == 7 else i
QSLOT = phys(True, 13)

class Stream:
    def __init__(self, steps, depth, ring):
        self.steps = steps; self.side = []; self.after = {}; self.D = depth; self.ring = ring
        assert len(ring) >= depth + 2
    def add(self, ready, deadline, fns):
        for f in fns: self.side.append([ready, deadline, f])
    def aft(self, k, f):
        prev = self.after.get(k)
        self.after[k] = (lambda: (prev(), f())) if prev else f
    def issue(self, k, half):
        st = self.steps[k]
        b = self.ring[k % len(self.ring)]
        a, off, d2 = st["rd"]
        if half == 0:
            if "pre" in st: st["pre"]()
            I(f"ds_read_b64_tr_b16 {vr(b,2)}, v{a} offset:{off}", tag=f"w{k}")
        else:
            I(f"ds_read_b64_tr_b16 {vr(b+2,2)}, v{a} offset:{off+d2}", tag=f"w{k}")
            if "post" in st: st["post"](k)
    def pump(self, k, n):
        c = 0
        while self.side and c < n and self.side[0][0] <= k:
            r = self.side.pop(0)[2]()
            c += r if isinstance(r, int) else 1
    def run(self, rate):
        n = len(self.steps); D = self.D
        for k in range(min(D, n)):
            self.issue(k, 0); self.issue(k, 1)
        for k in range(n):
            st = self.steps[k]
            while any(s[1] <= k for s in self.side): self.side.pop(0)[2]()
            if "need" in st: st["need"]()
            if k % 2 == 0 and k + 1 < n: e.wait(lg=f"w{k+1}")
            e.wait(lg=f"w{k}")
            mfs = st["mf"](vr(self.ring[k % len(self.ring)]), st)
            I(mfs[0])
            if k + D < n: self.issue(k + D, 0)
            if len(mfs) > 1:
                self.pump(k, (rate + 1) // 2)
                I(mfs[1])
            if k + D < n: self.issue(k + D, 1)
            for m in mfs[2:]: I(m)
            self.pump(k, rate // 2 if len(mfs) > 1 else rate)
            if k in self.after: self.after[k]()
            stamp(f"k{k}")
        while self.side: self.side.pop(0)[2]()
def cost(n, f):
    def g():
        f(); return n
    return g

e.raw(f"; @launch grid=(256,1,1) block=(512,1,1) lds=163840")
e.raw('.amdgcn_target "amdgcn-amd-amdhsa--gfx950"')
e.raw(".text")
e.raw(f".globl {NAME}_kernel")
e.raw(".p2align 8")
e.raw(f".type {NAME}_kernel,@function")
e.label(f"{NAME}_kernel")
I("s_load_dwordx16 s[4:19], s[0:1], 0")
I("s_load_dwordx4 s[20:23], s[0:1], 64")
if STAMP:
    I("s_memrealtime s[98:99]")
    I("s_memtime s[96:97]")
I("v_lshrrev_b32 v1, 6, v0")
I("s_cmp_ge_u32 s2, 256")
I("s_cbranch_scc1 L_end")
I(f"v_readfirstlane_b32 s{S_t2}, v1")
I("v_and_b32 v0, 63, v0")
I(f"s_bfe_u32 s{S_q}, s2, 0x20001")
I(f"s_and_b32 s{S_t0}, s2, 1")
I(f"s_lshl_b32 s{S_t0}, s{S_t0}, 3")
I(f"s_bfe_u32 s{S_r}, s2, 0x30003")
I(f"s_or_b32 s{S_r}, s{S_r}, s{S_t0}")
I(f"s_lshr_b32 s{S_jj}, s2, 6")
I(f"s_and_b32 s{S_w}, s{S_t2}, 3")
I(f"s_lshl_b32 s{S_m0b}, s{S_w}, 12")
I(f"s_cmp_lt_u32 s{S_t2}, 4")
I("s_cbranch_scc1 L_C")

H_XD = 4; H_WD = 8; H_BD = 12; H_G = 18; H_BR = 20; H_ACC = 64
H_RING = [32, 36, 40, 44, 48, 52, 24, 28]
def a2r(lam, p):
    if lam < 16: return ar(lam * 8 + p * 4)
    return vr((56 if lam == 16 else 4) + p * 4)
I("s_setprio 3")
I("v_lshrrev_b32 v32, 4, v0")
I("v_lshrrev_b32 v36, 3, v0")
I("v_and_b32 v37, 7, v0")
I("v_xor_b32 v39, v37, v32")
I("v_lshlrev_b32 v39, 4, v39")
I(f"v_lshl_add_u32 v{H_XD}, v36, 11, v39")
I(f"v_xor_b32 v{H_XD+1}, 64, v{H_XD}")
I(f"v_add_u32 v{H_XD+2}, {14*1024}, v{H_XD+1}")
I(f"v_add_u32 v{H_XD+3}, {14*1024}, v{H_XD}")
I(f"s_lshl_b32 s{S_t0}, s{S_r}, 17")
I(f"s_lshl_b32 s{S_t1}, s{S_w}, 15")
I(f"s_add_u32 s{S_t0}, s{S_t0}, s{S_t1}")
for g4 in range(4):
    I(f"s_add_u32 s{S_WK+g4}, s{S_r}, {g4}")
    I(f"s_and_b32 s{S_WK+g4}, s{S_WK+g4}, 3")
    I(f"s_lshl_b32 s{S_KG+g4}, s{S_WK+g4}, 8")
    I(f"s_add_u32 s{S_KG+g4}, s{S_KG+g4}, s{S_t0}")
I(f"s_mov_b32 s{S_X+2}, {2048*1024}")
I(f"s_mov_b32 s{S_X+3}, 0x20000")
assert phys(False, 0) == 4 and phys(False, 1) == 5 and phys(True, 0) == 3 and phys(True, 1) == 4 and phys(False, 2) == 6 and phys(True, 2) == 5
I(f"s_cmp_ge_u32 s{S_jj}, 2")
I(f"s_cselect_b32 s{S_t2}, 3, 4")
I(f"s_mov_b32 s{S_W+2}, {512*3584}")
I(f"s_cmov_b32 s{S_W+2}, {512*3072}")
I(f"s_mov_b32 s{S_P}, 3584")
I(f"s_cmov_b32 s{S_P}, 3072")
I(f"s_lshl_b32 s{S_t2}, s{S_t2}, 14")
I(f"s_add_u32 s{S_t2}, s{S_t2}, s{S_m0b}")
I(f"s_mov_b32 m0, s{S_t2}")
I(f"s_add_u32 s{S_SOFF}, s{S_KG}, 128")
after_karg()
I(f"s_mov_b32 s{S_X}, s4")
I(f"s_and_b32 s{S_X+1}, s5, 0xffff")
for i in range(4): I(f"buffer_load_dwordx4 v{H_XD+i}, {srd(S_X)}, s{S_KG} offen offset:{i*1024} lds", tag="u0")
I(f"s_add_u32 m0, s{S_t2}, {SLOT}")
I(f"s_mov_b32 s{S_W+3}, 0x20000")
dma4(H_XD, S_X, "u1")
I(f"s_lshl_b32 s{S_t0}, s{S_w}, 5")
I(f"v_add_u32 v38, s{S_t0}, v36")
I(f"v_mul_lo_u32 v38, v38, s{S_P}")
I(f"s_mul_i32 s{S_COL}, s{S_q}, 896")
I(f"s_lshl_b32 s{S_t0}, s{S_q}, 8")
I(f"s_add_u32 s{S_t0}, s{S_t0}, {1024-256}")
I(f"s_cmp_ge_u32 s{S_jj}, 2")
I(f"s_cselect_b32 s{S_W}, s6, s12")
I(f"s_cselect_b32 s{S_W+1}, s7, s13")
I(f"s_cselect_b32 s{S_COL}, s{S_t0}, s{S_COL}")
I(f"s_cselect_b32 s{S_t0}, 1, 2")
I(f"s_cselect_b32 s{S_t1}, 64, 0")
I(f"s_and_b32 s{S_W+1}, s{S_W+1}, 0xffff")
I("v_and_b32 v39, 1, v32")
I(f"v_lshlrev_b32 v39, s{S_t0}, v39")
I("v_xor_b32 v39, v39, v37")
I("v_lshlrev_b32 v39, 4, v39")
I(f"v_add_u32 v{H_WD}, v38, v39")
I(f"v_xor_b32 v39, s{S_t1}, v39")
I(f"s_lshl_b32 s{S_t0}, s{S_P}, 3")
I(f"s_sub_u32 s{S_t0}, s{S_t0}, 1024")
I(f"v_add3_u32 v{H_WD+1}, v38, v39, s{S_t0}")
I(f"s_lshl_b32 s{S_t0}, s{S_t0}, 1")
I(f"v_add_u32 v{H_WD+2}, s{S_t0}, v{H_WD}")
I(f"v_add_u32 v{H_WD+3}, s{S_t0}, v{H_WD+1}")
I(f"s_lshl_b32 s{S_t0}, s{S_jj}, 7")
I(f"s_add_u32 s{S_COL}, s{S_COL}, s{S_t0}")
I(f"s_lshl_b32 s{S_t1}, s{S_P}, 7")
for g4 in range(4): I(f"s_mul_i32 s{S_WK+g4}, s{S_WK+g4}, s{S_t1}")
I(f"s_add_u32 m0, s{S_t2}, {2*SLOT}")
I(f"s_add_u32 s{S_SOFF}, s{S_WK}, s{S_COL}")
dma4(H_WD, S_W, "u2")
common_ptrs()
mk_srd(S_OUT, 18, 2048 * 1024)
mk_srd(S_GW, 16, 1024)
I(f"s_cmp_ge_u32 s{S_jj}, 2")
I("s_cbranch_scc1 L_h_att")
snapH = e.snapshot()

def h_prog(att):
    e.restore(snapH); e.hist = []
    UL = units(att)
    CH = [0, -1024, 1024] if att else [0, 256, 512]
    def issue(k):
        un = UL[k]
        I(f"s_add_u32 m0, s{S_m0b}, {phys(att,k)*SLOT}")
        if un[0] == "x":
            I(f"s_add_u32 s{S_SOFF}, s{S_KG+un[1]}, {un[2]*128}")
            dma4(H_XD, S_X, f"u{k}")
            return
        _, c, u = un
        if c < 3:
            I(f"s_add_u32 s{S_SOFF}, s{S_WK+u}, s{S_COL}")
            if CH[c]: I(f"s_add_i32 s{S_SOFF}, s{S_SOFF}, {CH[c]}")
        else:
            KH = 256 * 3584
            if u == 0:
                I("v_lshrrev_b32 v2, 2, v0")
                I("v_lshrrev_b32 v1, 4, v0")
                I("v_xor_b32 v2, v2, v1")
                I("v_and_b32 v2, 1, v2")
                I(f"v_mul_u32_u24 v1, {KH-64}, v2")
                for i in range(4): I(f"v_add_u32 v{H_WD+i}, v{H_WD+i}, v1")
                I(f"v_mul_u32_u24 v2, {2*KH}, v2")
                I(f"v_sub_u32 v{H_XD}, {KH}, v2")
                I(f"s_cmp_ge_u32 s{S_WK}, {KH}")
                I(f"s_cselect_b32 s{S_t0}, 1, 0")
            else:
                I(f"s_cmp_ge_u32 s{S_WK}, {KH}")
                I(f"s_cselect_b32 s{S_t1}, 1, 0")
                I(f"s_cmp_ge_u32 s{S_WK+1}, {KH}")
                I(f"s_cselect_b32 s{S_t0}, 1, 0")
                I(f"s_sub_u32 s{S_t0}, s{S_t0}, s{S_t1}")
            for i in range(4): I(f"v_mad_i32_i24 v{H_WD+i}, v{H_XD}, s{S_t0}, v{H_WD+i}")
            I(f"s_min_u32 s{S_SOFF}, s{S_WK+u}, s{S_WK+u+2}")
            I(f"s_add_u32 s{S_SOFF}, s{S_SOFF}, s{S_COL}")
            I(f"s_lshl_b32 s{S_t0}, s{S_jj}, 6")
            I(f"s_sub_u32 s{S_SOFF}, s{S_SOFF}, s{S_t0}")
            I(f"s_add_u32 s{S_SOFF}, s{S_SOFF}, 768")
        dma4(H_WD, S_W, f"u{k}")
    def w0(f):
        l = U("w0")
        I(f"s_cmp_eq_u32 s{S_w}, 0"); I(f"s_cbranch_scc0 {l}")
        e.cond_begin(); f(); e.cond_end(); e.label(l)
    def peer_issue(): w0(lambda: I(f"s_load_dword s{S_POLL}, s[{S_DBG}:{S_DBG+1}], 0 glc"))
    def peer():
        def f():
            lp = U("pp"); ok = U("po")
            I("s_waitcnt lgkmcnt(0)")
            I(f"s_cmp_ge_u32 s{S_POLL}, 16")
            I(f"s_cbranch_scc0 {lp}")
            e.label(ok)
            SLOW.extend([f"{lp}:", "    s_sleep 8", f"    s_load_dword s{S_POLL}, s[{S_DBG}:{S_DBG+1}], 0 glc", "    s_waitcnt lgkmcnt(0)",
                         f"    s_cmp_ge_u32 s{S_POLL}, 16", f"    s_cbranch_scc1 {ok}"] + spin_tail(lp, ok))
        w0(f)
        I(f"s_mov_b32 s{S_POLL}, 0")
    V_Q = 64; V_S = 96; V_BIAS = 32; V_RINV = 40; V_T = 48; A_KV = 64; A_ONES = 96; V_AD = 24
    def att_setup(part):
        if part == 0:
            I(f"s_add_u32 s{S_t0}, s{S_m0b}, {EXCH_LDS+4096}")
            I(f"v_add_u32 v{V_AD}, s{S_t0}, v{V_L16}")
            I("v_bfe_u32 v1, v0, 3, 1")
            I("v_lshlrev_b32 v1, 12, v1")
            I(f"v_sub_u32 v{V_AD+2}, v{V_AD}, v1")
            I("v_xor_b32 v1, 4096, v1")
            I(f"v_sub_u32 v{V_AD+1}, v{V_AD}, v1")
            I("v_lshrrev_b32 v1, 5, v0")
            I("v_lshlrev_b32 v1, 12, v1")
            I(f"v_sub_u32 v{V_AD+4}, v{V_AD}, v1")
            I("v_xor_b32 v1, 4096, v1")
            I(f"v_sub_u32 v{V_AD+3}, v{V_AD}, v1")
            I(f"v_add_u32 v{V_AD+5}, {(QSLOT*SLOT - EXCH_LDS - 4096) & 0xffffffff}, v{V_AD}")
            I(f"s_mov_b32 s{S_CEXP}, {f2u(0.25*1.4426950408889634)}")
            I(f"s_or_b32 s{S_t0}, s{S_r}, s{S_w}")
            I(f"s_cmp_eq_u32 s{S_t0}, 0")
            I(f"s_cselect_b32 s{S_THR}, -16, -9")
            I(f"v_mov_b32 v{V_T}, 0x3f803f80")
            for k in range(4): I(f"v_accvgpr_write_b32 a{A_ONES+k}, v{V_T}")
            I(f"v_mov_b32 v{V_T}, {NEG}")
            I(f"v_and_b32 v{V_T+1}, 15, v0")
            I(f"v_lshrrev_b32 v{V_T+2}, 4, v0")
            I(f"v_lshlrev_b32 v{V_T+2}, 2, v{V_T+2}")
        elif part in (1, 2):
            p = part - 1; x8 = 8 if p == 0 else 0
            I(f"v_xor_b32 v{V_T+3}, {x8}, v{V_T+1}")
            I(f"v_xor_b32 v{V_T+4}, {x8}, v{V_T+2}")
            I(f"v_sub_u32 v{V_T+3}, v{V_T+3}, v{V_T+4}")
            for r in range(4):
                I(f"v_subrev_u32 v{V_T+4}, {r}, v{V_T+3}")
                I(f"v_cmp_lt_u32 vcc, 7, v{V_T+4}")
                I(f"v_cmp_lt_i32 s[56:57], s{S_THR}, v{V_T+4}")
                I("s_and_b64 vcc, vcc, s[56:57]")
                I(f"v_cndmask_b32 v{V_BIAS+p*4+r}, 0, v{V_T}, vcc")
        else:
            for k in range(16): I(f"v_mov_b32 v{V_Q+16*(part-3)+k}, 0")
            I("s_mov_b32 s56, 0xff00ff00"); I("s_mov_b32 s57, 0xff00ff00")
            I("s_not_b64 s[58:59], s[56:57]")
    def br_setup():
        I("v_bfe_u32 v1, v0, 2, 2")
        I("v_lshrrev_b32 v2, 5, v0")
        I("v_lshl_add_u32 v1, v2, 2, v1")
        I("v_lshlrev_b32 v1, 7, v1")
        I("v_bfe_u32 v2, v0, 4, 1")
        I("v_lshl_add_u32 v1, v2, 5, v1")
        I("v_bfe_u32 v2, v0, 3, 1")
        I("v_lshl_add_u32 v1, v2, 6, v1")
        I("v_and_b32 v2, 3, v0")
        I("v_lshl_add_u32 v1, v2, 3, v1")
        I(f"s_lshr_b32 s{S_t0}, s{S_q}, 1")
        I(f"s_lshl_b32 s{S_t0}, s{S_t0}, 13")
        I(f"s_and_b32 s{S_t1}, s{S_q}, 1")
        I(f"s_lshl_b32 s{S_t1}, s{S_t1}, 6")
        I(f"s_or_b32 s{S_t0}, s{S_t0}, s{S_t1}")
        I(f"v_xor_b32 v1, s{S_t0}, v1")
        for tau in range(4):
            cb = 3 - tau
            I(f"v_xor_b32 v{H_BR+tau}, {(cb>>1)*8192 + (cb&1)*64}, v1")
        I(f"s_lshl_b32 s{S_PB}, s{S_r}, 2"); I(f"s_add_u32 s{S_PB}, s{S_PB}, s{S_jj}")
        I(f"s_mul_i32 s{S_PB}, s{S_PB}, {12*8192}")
        I(f"s_lshl_b32 s{S_t0}, s{S_w}, 11"); I(f"s_add_u32 s{S_PB}, s{S_PB}, s{S_t0}"); I(f"s_add_u32 s{S_PB}, s{S_PB}, {PART_OFF}")
    if att:
        I(f"s_lshl_b32 s{S_t0}, s{S_r}, 17")
        I(f"s_sub_u32 s{S_t0}, s{S_t0}, 16384")
        I(f"v_add_u32 v38, s{S_t0}, v{H_XD}")
        I(f"s_add_u32 s{S_t0}, s{S_t0}, 1024")
        I(f"v_add_u32 v39, s{S_t0}, v{H_XD+1}")
        I("v_max_i32 v38, 0, v38")
        I("v_max_i32 v39, 0, v39")
        I(f"s_add_u32 s{S_t0}, s{S_r}, s{S_w}")
        I(f"s_and_b32 s{S_t0}, s{S_t0}, 3")
        I(f"s_lshl_b32 s{S_t0}, s{S_t0}, 8")
        for i in range(4):
            kh, rh = divmod(i, 2)
            I(f"s_add_u32 m0, s{S_m0b}, {HALO_LDS + i*1024 - kh*128}")
            I(f"buffer_load_dwordx4 v{38+rh}, {srd(S_X)}, s{S_t0} offen offset:{kh*128} lds", tag="u2")
    PRE = OPT["pre"] - (1 if att else 0)
    for k in range(3, PRE + 1): issue(k)
    first = list(range(PRE + 1, 8))
    if att: sched = [first, [8, 9], [10], [11, 12, 13], [14], [15, 16, 17], [18], [19]]
    else: sched = [first, [8, 9], [10, 11], [12, 13], [14, 15], [16, 17], [18, 19], []]
    def gw_dma():
        I(f"s_mov_b32 m0, {GW_LDS}")
        w0(lambda: I(f"buffer_load_dwordx4 v{V_L16}, {srd(S_GW)}, 0 offen lds"))
    extra = {1: lambda: (late_scalars(), b2_voffs(H_BD)), 3: gw_dma, 7: (br_setup if att or OPT["sch"] else lambda: (b2_unit(8, H_BD), br_setup()))}
    if att: extra.update({2: lambda: (att_setup(0), att_setup(1)), 4: lambda: (att_setup(2), att_setup(3)), 6: lambda: att_setup(4)})
    gk = [k for k, un in enumerate(UL) if un[0] == "g"]
    def bar(i, need=None):
        stamp(f"h_a{i}")
        if need is None and i < len(gk): need = gk[i]
        if need is not None: e.wait(vm=f"u{need}")
        if i == 6: peer()
        I("s_barrier"); stamp(f"h_b{i}")
    for i in range(8):
        bar(i)
        if i == 4: peer_issue()
        for k in sched[i]: issue(k)
        if i in extra: extra[i]()
    def a2_load(lam):
        a2_soff(lam, S_t1)
        for p in range(2):
            I(f"buffer_load_dwordx4 {a2r(lam,p)}, v{V_L16}, {srd(S_WS)}, s{S_t1} offen offset:{p*1024} sc1", tag=f"a{lam}")
    def a2_items(lams, gap=1):
        F = []
        for lam in lams:
            F.append(cost(9, lambda lam=lam: (a2_soff(lam, S_COL), I(f"buffer_load_dwordx4 {a2r(lam,0)}, v{V_L16}, {srd(S_WS)}, s{S_COL} offen sc1", tag=f"a{lam}x"))))
            F += [cost(9, lambda: None)] * (gap - 1)
            F.append(cost(9, lambda lam=lam: I(f"buffer_load_dwordx4 {a2r(lam,1)}, v{V_L16}, {srd(S_WS)}, s{S_COL} offen offset:1024 sc1", tag=f"a{lam}")))
            F += [cost(9, lambda: None)] * (gap - 1)
        return F
    Bu = lambda g: b2_unit(g, H_BD)
    SS = []
    ALL = (0, 1, 2, 3)
    side = {}
    if not att:
        if OPT["sch"] == 0:
            bar(8); Bu(0)
            bar(9); issue(20); Bu(1)
            bar(10); push_group(ownbit(0), ALL); issue(21); Bu(2)
            bar(11); push_group(ownbit(1), ALL); Bu(3); poll_load()
            bar(12); poll_check(0x11)
            for lam in range(4): a2_load(lam)
            Bu(4); poll_load()
            bar(13); poll_check(0x22)
            for lam in range(4, 8): a2_load(lam)
            Bu(5)
            bar(14)
        else:
            bar(8)
            bar(9); issue(20)
            bar(10); push_group(ownbit(0), ALL); issue(21)
            bar(11); push_group(ownbit(1), ALL); Bu(0); Bu(1); poll_load()
            bar(12); poll_check(0x11); a2_load(0); a2_load(1); poll_load()
            bar(13); a2_load(2); a2_load(3); Bu(2)
            bar(14); poll_check(0x22)
            side[(0, 0)] = lambda: SS[0].add(0, 999, a2_items((4, 5, 6, 7), 2))
        def f_o(): poll_check(0x300); SS[0].add(0, 999, a2_items((16, 17, 14, 15)))
    else:
        def kv_reads(m0, tag):
            for t in range(4):
                I(f"ds_read_b64 {ar(A_KV+8*t,2)}, v{m0} offset:{t*1024}", tag=f"{tag}{t}")
                I(f"ds_read_b128 {ar(A_KV+8*t+2)}, v{V_AD} offset:{t*1024}", tag=f"{tag}{t}")
                I(f"ds_read_b64 {ar(A_KV+8*t+6,2)}, v{m0+1} offset:{t*1024+8}", tag=f"{tag}{t}")
        bar(8)
        kv_reads(V_AD + 1, "k")
        e.wait(lg="k3")
        poll_load()
        bar(9, 19)
        def Preg(t, p): return V_Q + 8 * t + 4 * p
        for half, m in enumerate(("s[56:57]", "s[58:59]")):
            I(f"s_mov_b64 exec, {m}")
            for t in range(4):
                for p in range(2):
                    I(f"ds_read_b64 {vr(Preg(t,p)+2*half,2)}, v{V_AD+5} offset:{t*1024+p*8}", tag="q")
        I("s_mov_b64 exec, -1")
        stamp("h_q")
        e.wait(lg="q")
        un = [(i >> 1, i & 1) for i in range(8)]
        Sc = lambda i: V_S + 4 * i
        for i, (t, p) in enumerate(un): I(f"{MF} {vr(Sc(i))}, {ar(A_KV+8*t+4*p)}, {vr(Preg(t,p))}, {vr(V_BIAS+4*p)}")
        Bu(0)
        m = [V_T + i for i in range(8)]
        for i in range(8):
            if OPT["lround"]:
                I(f"v_cvt_pk_bf16_f32 v1, v{Sc(i)}, v{Sc(i)+1}")
                I(f"v_cvt_pk_bf16_f32 v2, v{Sc(i)+2}, v{Sc(i)+3}")
                I(f"v_lshlrev_b32 v{Sc(i)}, 16, v1")
                I(f"v_and_b32 v{Sc(i)+1}, 0xffff0000, v1")
                I(f"v_lshlrev_b32 v{Sc(i)+2}, 16, v2")
                I(f"v_and_b32 v{Sc(i)+3}, 0xffff0000, v2")
            I(f"v_max3_f32 v{m[i]}, v{Sc(i)}, v{Sc(i)+1}, v{Sc(i)+2}")
            I(f"v_max_f32 v{m[i]}, v{m[i]}, v{Sc(i)+3}")
        for k in range(4): I(f"v_permlane32_swap_b32 v{m[2*k]}, v{m[2*k+1]}")
        for k in range(4): I(f"v_max_f32 v{m[2*k]}, v{m[2*k]}, v{m[2*k+1]}")
        for k in range(2): I(f"v_permlane16_swap_b32 v{m[4*k]}, v{m[4*k+2]}")
        for k in range(2): I(f"v_max_f32 v{m[4*k]}, v{m[4*k]}, v{m[4*k+2]}")
        for k in range(2): I(f"v_mul_f32 v{m[4*k+2]}, s{S_CEXP}, v{m[4*k]}")
        for k in range(2): I(f"v_mul_f32 v{m[4*k]}, s{S_CEXP}, v{m[4*k]}")
        for k in range(2): I(f"v_permlane16_swap_b32 v{m[4*k]}, v{m[4*k+2]}")
        for k in range(4): I(f"v_mov_b32 v{m[2*k+1]}, v{m[2*k]}")
        for k in range(4): I(f"v_permlane32_swap_b32 v{m[2*k]}, v{m[2*k+1]}")
        Bu(1)
        poll_check(0x33)
        for i in range(8):
            for r in range(4): I(f"v_fma_f32 v{Sc(i)+r}, v{Sc(i)+r}, s{S_CEXP}, -v{m[i]}")
            for r in range(4): I(f"v_exp_f32 v{Sc(i)+r}, v{Sc(i)+r}")
            a2_load(i)
        for half, mk in enumerate(("s[56:57]", "s[58:59]")):
            I(f"s_mov_b64 exec, {mk}")
            for i, (t, p) in enumerate(un):
                I(f"v_cvt_pk_bf16_f32 v{Preg(t,p)+2*half}, v{Sc(i)}, v{Sc(i)+1}")
                I(f"v_cvt_pk_bf16_f32 v{Preg(t,p)+2*half+1}, v{Sc(i)+2}, v{Sc(i)+3}")
        I("s_mov_b64 exec, -1")
        for i, (t, p) in enumerate(un): I(f"{MF} {vr(Sc(i))}, {ar(A_ONES)}, {vr(Preg(t,p))}, 0")
        for i in range(8): I(f"v_rcp_f32 v{V_RINV+i}, v{Sc(i)}")
        stamp("h_sm")
        I("s_barrier")
        kv_reads(V_AD + 3, "v")
        e.wait(lg="v3")
        I("s_barrier")
        for i, (t, p) in enumerate(un): I(f"{MF} {vr(Sc(i))}, {ar(A_KV+8*t+4*p)}, {vr(Preg(t,p))}, 0")
        for b in range(2):
            for t in (2 * b, 2 * b + 1):
                ob = (56 if b == 0 else 4) + (t & 1) * 4
                for p in range(2):
                    o = Sc(2 * t + p)
                    for r in range(4): I(f"v_mul_f32 v{o+r}, v{V_RINV+2*t+p}, v{o+r}")
                    I(f"v_cvt_pk_bf16_f32 v{ob+2*p}, v{o}, v{o+1}")
                    I(f"v_cvt_pk_bf16_f32 v{ob+2*p+1}, v{o+2}, v{o+3}")
            a2_soff(16 + b, S_t1)
            for t1 in range(2):
                ob = (56 if b == 0 else 4) + t1 * 4
                I(f"v_permlane16_swap_b32 v{ob}, v{ob+2}")
                I(f"v_permlane16_swap_b32 v{ob+1}, v{ob+3}")
            for p in range(2):
                I(f"buffer_store_dwordx4 {a2r(16+b,p)}, v{V_L16}, {srd(S_WS)}, s{S_t1} offen offset:{p*1024} sc1", tag="so")
        stamp("h_so")
        def f_push():
            e.wait(vm="so")
            push_group(lambda: I(f"s_lshl_b32 s{S_t2}, 64, s{S_jj}"), (1, 2, 3))
        side[(0, 14)] = f_push
        def f_o():
            I(f"s_xor_b32 s{S_THR}, s{S_jj}, 1"); I(f"s_lshl_b32 s{S_THR}, 64, s{S_THR}")
            poll_check(f"s{S_THR}"); SS[0].add(0, 999, a2_items((14, 15)))
    def f_c(): poll_check(0x44); SS[0].add(0, 999, a2_items((8, 9, 10, 11)))
    def f_h(): poll_check(0x88); SS[0].add(0, 999, a2_items((12, 13)))
    side.update({(8, -46): poll_load, (8, -28): f_c, (12, -42): poll_load, (12, -26): f_h, (16, -40): poll_load, (16, -24): f_o})
    I("s_setprio 1")
    stamp("h_p2")
    own = [16, 17] if att else []
    LD = OPT["ld"]
    oo = [16, 17, 14, 15]
    TM = 14 - OPT["tm"]
    seq = [(lam, tau) for lam in range(TM) for tau in range(4 if lam < LD else 3)]
    seq += [(lam, tau) for tau in range(3) for lam in list(range(TM, 14)) + oo]
    seq += [(lam, 3) for lam in list(range(LD, 14)) + oo]
    steps = []; rng = {}; seen_g = set(); seen_l = set(); first_ = set()
    for (lam, tau) in seq:
        g = lam >> 1
        for kh in range(2):
            a = H_BR + tau
            off = g * SLOT + (lam & 1) * 4096 + kh * 2048
            hi = off >> 16
            st = dict(rd=(a, off & 0xffff, 1024))
            pres = []
            if g not in seen_g:
                seen_g.add(g); t = U("t")
                if len(steps) >= 3: steps[-3]["post"] = lambda k, g=g, t=t: d_read(f"Lb{g}", t)
                else: pres.append(lambda g=g, t=t: d_read(f"Lb{g}", t))
                pres.append(lambda g=g, t=t: d_check(f"Lb{g}", t))
            if rng.get(a, 0) != hi:
                dlt = (hi - rng.get(a, 0)) * 65536; rng[a] = hi
                pres.append(lambda a=a, dlt=dlt: I(f"v_add_u32 v{a}, {dlt & 0xffffffff}, v{a}"))
            if pres: st["pre"] = lambda pres=pres: [f() for f in pres]
            at = 4 if (tau == 3 and lam >= 14) else tau
            zero = at not in first_; first_.add(at)
            d = vr(H_ACC + 16 * (at & 3 if at < 4 else 0), 16)
            st["mf"] = lambda W, st, lam=lam, kh=kh, d=d, zero=zero: [f"{M32} {d}, {W}, {a2r(lam,kh)}, {'0' if zero else d}"]
            if lam not in seen_l:
                seen_l.add(lam)
                if lam not in own: st["need"] = lambda lam=lam: e.wait(vm=f"a{lam}")
            st["id"] = (lam, tau, kh)
            steps.append(st)
    S = Stream(steps, OPT["D2"], H_RING)
    SS.append(S)
    idx = {st["id"]: k for k, st in enumerate(steps)}
    n = len(steps)
    for (lam, d), f in side.items(): S.aft(idx[(lam, 0, 0)] + d, f)
    def scale(tau, greg): return [lambda r=r: I(f"v_mul_f32 v{r}, v{greg}, v{r}") for r in range(H_ACC + 16 * tau, H_ACC + 16 * tau + 16)]
    def pack(tau):
        b = H_ACC + tau * 16
        return [lambda k=k: I(f"v_cvt_pk_bf16_f32 v{b+k}, v{b+2*k}, v{b+2*k+1}") for k in range(8)]
    def send(tau):
        def so():
            I(f"s_xor_b32 s{S_GIN}, s{S_q}, {3-tau}"); I(f"s_mul_i32 s{S_GIN}, s{S_GIN}, {3*8192}")
            I(f"s_add_u32 s{S_GIN}, s{S_GIN}, s{S_PB}"); I(f"s_add_u32 s{S_GIN}, s{S_GIN}, {tau*8192}")
        return [so] + pack(tau) + [cost(3, lambda j=j: I(f"buffer_store_dwordx4 {vr(H_ACC+tau*16+j*4)}, v{V_L16}, {srd(S_WS)}, s{S_GIN} offen offset:{j*1024} sc1", tag=f"p{tau}")) for j in range(2)]
    def pflag(tau):
        assert e.vmq[0][0].count(f"p{tau}") == 2
        stamp(f"h_pa{tau}")
        e.wait(vm=f"p{tau}")
        stamp(f"h_pb{tau}")
        I(f"s_xor_b32 s{S_t0}, s{S_MYIN}, {(3-tau)*2048}")
        I(f"s_mov_b32 s{S_KG+tau}, {1024<<tau}")
        I(f"s_atomic_or s{S_KG+tau}, s[{S_INB}:{S_INB+1}], s{S_t0}")
    def gget():
        I(f"s_lshl_b32 s{S_t0}, s{S_w}, 8"); I(f"s_add_u32 s{S_t0}, s{S_t0}, {GB_LDS}")
        I("v_and_b32 v1, 31, v0")
        I(f"v_lshl_add_u32 v1, v1, 3, s{S_t0}")
        I(f"ds_read_b64 {vr(H_G,2)}, v1", tag="gz")
    S.aft(idx[(12, 0, 0)] - 3, gget)
    S.aft(idx[(13, 0, 1)], lambda: e.wait(lg="gz"))
    for tau in range(4):
        k = idx[(13, tau, 1)]
        S.aft(k, lambda k=k, tau=tau: S.add(k + 3, idx[(oo[0], tau, 0)] if tau < 3 else n, scale(tau, H_G + 1)))
    late_flags = []
    for tau in range(3):
        k = idx[(oo[-1], tau, 1)]
        S.aft(k, lambda k=k, tau=tau: S.add(k + 3, k + 8, send(tau)))
        kf = k + 7 + OPT["pfd"]
        if kf <= n - OPT["D2"] - 14: S.aft(kf, lambda tau=tau: pflag(tau))
        else: late_flags.append(tau)
    S.aft(n - OPT["D2"], lambda: (e.wait(lg=f"w{n-1}"), [pflag(t) for t in late_flags[:-1]], poll_load()))
    S.aft(idx[(8, 0, 0)], lambda: stamp("h_late"))
    S.aft(idx[(oo[0], 0, 0)], lambda: stamp("h_o"))
    S.aft(idx[(LD, 3, 0)], lambda: stamp("h_own"))
    S.run(OPT["side2"])
    I(f"s_mul_i32 s{S_GIN}, s{S_q}, {3*8192}")
    I(f"s_add_u32 s{S_GIN}, s{S_GIN}, s{S_PB}")
    I("v_bfe_u32 v5, v0, 4, 1")
    I("v_lshlrev_b32 v6, 3, v5")
    I("v_xor_b32 v6, 8, v6")
    I("v_and_b32 v4, 15, v0")
    I("v_xor_b32 v4, v4, v6")
    I("v_lshl_add_u32 v4, v4, 1, v5")
    I("v_lshrrev_b32 v5, 5, v0")
    I("v_lshlrev_b32 v5, 4, v5")
    I("v_lshl_add_u32 v4, v4, 10, v5")
    I(f"s_lshl_b32 s{S_COL}, s{S_r}, 17"); I(f"s_lshl_b32 s{S_t1}, s{S_w}, 15"); I(f"s_add_u32 s{S_COL}, s{S_COL}, s{S_t1}")
    I(f"s_lshl_b32 s{S_t1}, s{S_jj}, 8"); I(f"s_add_u32 s{S_COL}, s{S_COL}, s{S_t1}")
    I(f"s_lshl_b32 s{S_t1}, s{S_q}, 6"); I(f"s_add_u32 s{S_COL}, s{S_COL}, s{S_t1}")
    for t in late_flags[-1:]: pflag(t)
    O = H_ACC + 48
    for k in range(8): I(f"v_pk_add_f32 {vr(O+2*k,2)}, {vr(O+2*k,2)}, {vr(H_ACC+2*k,2)}")
    for tau in range(3):
        poll_check(1024 << tau)
        stamp(f"h_r{tau}")
        if tau == 2: stamp("h_rcv")
        for j in range(2):
            I(f"buffer_load_dwordx4 {vr(24+tau*8+j*4)}, v{V_L16}, {srd(S_WS)}, s{S_GIN} offen offset:{j*1024} sc1", tag=f"r{tau}")
        if tau < 2: I(f"s_add_u32 s{S_GIN}, s{S_GIN}, 8192")
    for tau in range(3):
        e.wait(vm=f"r{tau}")
        b = H_ACC + 16
        for k in range(8):
            I(f"v_lshlrev_b32 v{b+2*k}, 16, v{24+tau*8+k}")
            I(f"v_and_b32 v{b+2*k+1}, 0xffff0000, v{24+tau*8+k}")
        for k in range(8): I(f"v_pk_add_f32 {vr(O+2*k,2)}, {vr(O+2*k,2)}, {vr(b+2*k,2)}")
    for k in range(8): I(f"v_pk_mul_f32 {vr(O+2*k,2)}, {vr(O+2*k,2)}, {vr(H_G,2)} op_sel_hi:[1,0]")
    stamp("h_sum")
    for f in pack(3): f()
    for j in range(2):
        I(f"v_permlane32_swap_b32 v{O+4*j}, v{O+4*j+2}")
        I(f"v_permlane32_swap_b32 v{O+4*j+1}, v{O+4*j+3}")
        I(f"buffer_store_dwordx4 {vr(O+4*j)}, v4, {srd(S_OUT)}, s{S_COL} offen offset:{j*32}")
    finish()

h_prog(False)
e.label("L_h_att")
h_prog(True)

e.label("L_C")
role[0] = "C"
reset()
C_WR = 4; C_XR = 12; C_EXW = 18; C_HA = 20; C_HX = (24, 56, 60); C_HACC = 28; C_ACC = 64
I("s_setprio 2")
if OPT["codepf"]:
    I("s_cmp_lt_u32 s2, 16")
    I("s_cbranch_scc0 L_nopf")
    e.cond_begin()
    I("s_getpc_b64 s[56:57]")
    e.label("L_pc")
    I(f"s_sub_u32 s56, s56, L_pc-{NAME}_kernel")
    I("s_subb_u32 s57, s57, 0")
    I(f"s_lshr_b32 s{S_t0}, s2, 3")
    I(f"s_lshl_b32 s{S_t0}, s{S_t0}, 15")
    I(f"v_lshlrev_b32 v2, 7, v0")
    I(f"v_lshl_add_u32 v2, v1, 13, v2")
    I(f"v_add_u32 v2, s{S_t0}, v2")
    I(f"v_min_u32 v2, L_end-{NAME}_kernel, v2")
    I(f"global_load_dword v23, v2, s[56:57]")
    e.cond_end()
    e.label("L_nopf")
late_scalars()
I("v_lshlrev_b32 v2, 2, v0")
I(f"v_add_u32 v2, {EV_LDS}, v2")
I("v_mov_b32 v1, 1")
I("ds_write_b32 v2, v1")
I("v_mov_b32 v1, 0")
I("ds_write_b32 v2, v1 offset:256")
I("v_lshrrev_b32 v32, 4, v0")
I("v_and_b32 v33, 15, v0")
I("v_bfe_u32 v34, v0, 2, 2")
I("v_and_b32 v35, 3, v0")
after_karg()
common_ptrs()
I(f"s_cmp_eq_u32 s{S_w}, 0")
I("s_cbranch_scc0 L_c_noinit")
e.cond_begin()
for k in range(4):
    I(f"s_mov_b32 s{S_KG+k}, 0")
    I(f"s_add_u32 s{S_t0}, s{S_MYIN}, {k*128}")
    I(f"s_atomic_swap s{S_KG+k}, s[{S_INB}:{S_INB+1}], s{S_t0} glc")
e.cond_end()
e.label("L_c_noinit")
I(f"s_cmp_ge_u32 s{S_jj}, 2")
I("s_cbranch_scc1 L_c_att")

def c_prog(att):
    reset()
    UL = units(att)
    slot_of = {un: phys(att, k) for k, un in enumerate(UL)}
    subs = [un for un in UL if un[0] == "g"]
    if att:
        for p in range(2):
            I(f"v_xor_b32 v38, {8 if p == 0 else 0}, v33")
            I("v_and_b32 v39, 8, v38")
            I("v_add_u32 v39, v39, v38")
            I("v_lshlrev_b32 v39, 7, v39")
            I("v_lshrrev_b32 v38, 1, v38")
            I("v_xor_b32 v38, v38, v32")
            I("v_lshl_add_u32 v39, v38, 4, v39")
            I(f"v_add_u32 v39, s{S_m0b}, v39")
            I(f"v_add_u32 v{C_XR+2*p+p}, {p*1024}, v39")
            I(f"v_xor_b32 v{C_XR+2*p+1-p}, 64, v{C_XR+2*p+p}")
        I("v_lshl_add_u32 v38, v32, 3, v34")
        I("v_lshlrev_b32 v38, 7, v38")
        I("v_lshl_add_u32 v38, v35, 3, v38")
        I("v_lshrrev_b32 v39, 1, v34")
        I("v_and_b32 v40, 1, v32")
        I("v_lshl_or_b32 v39, v40, 1, v39")
        I(f"v_xor_b32 v41, s{S_w}, v39")
        for t in range(4):
            I(f"v_xor_b32 v40, {t}, v41")
            I(f"v_lshl_add_u32 v{C_WR+t}, v40, 5, v38")
            I(f"v_add_u32 v{C_WR+4+t}, 0x10000, v{C_WR+t}")
        I("v_lshrrev_b32 v38, 1, v33")
        I("v_xor_b32 v38, v38, v32")
        I("v_lshlrev_b32 v38, 4, v38")
        I("v_lshl_add_u32 v38, v33, 7, v38")
        I(f"v_add_u32 v{C_HA}, {HALO_LDS}, v38")
        I(f"v_xor_b32 v{C_HA+1}, 64, v{C_HA}")
        I(f"s_mul_i32 s{S_t0}, s{S_w}, 5120")
        I(f"s_add_u32 s{S_t0}, s{S_t0}, {EXCH_LDS+4096}")
        I(f"v_add_u32 v{C_EXW}, s{S_t0}, v{V_L16}")
        I("v_add_u32 v19, 1, v35")
        I("v_bfe_u32 v19, v19, 1, 1")
        I("v_mul_u32_u24 v19, 24, v19")
    else:
        I("v_and_b32 v40, 1, v32")
        I("v_lshlrev_b32 v38, 3, v40")
        I("v_xor_b32 v38, 8, v38")
        I("v_xor_b32 v38, v38, v33")
        I("v_and_b32 v39, 8, v38")
        I("v_add_u32 v39, v39, v38")
        I("v_lshl_add_u32 v39, v40, 3, v39")
        I("v_lshlrev_b32 v39, 7, v39")
        I("v_lshrrev_b32 v38, 1, v38")
        I("v_lshlrev_b32 v41, 2, v40")
        I("v_xor_b32 v38, v38, v41")
        I("v_lshrrev_b32 v41, 1, v32")
        I("v_xor_b32 v38, v38, v41")
        I("v_lshl_add_u32 v39, v38, 4, v39")
        I(f"v_add_u32 v{C_XR}, s{S_m0b}, v39")
        for k in range(1, 4): I(f"v_xor_b32 v{C_XR+k}, {32*k}, v{C_XR}")
        I("v_lshl_add_u32 v38, v41, 3, v34")
        I("v_lshlrev_b32 v38, 7, v38")
        I("v_lshl_add_u32 v38, v35, 3, v38")
        I("v_lshl_add_u32 v38, v40, 5, v38")
        I("v_lshrrev_b32 v39, 1, v34")
        I(f"v_lshl_add_u32 v{C_WR}, v39, 6, v38")
        I(f"v_xor_b32 v{C_WR+1}, 64, v{C_WR}")
        for t in range(2): I(f"v_add_u32 v{C_WR+4+t}, 0x10000, v{C_WR+t}")
    l = U("ci")
    I(f"s_cmp_eq_u32 s{S_w}, 0"); I(f"s_cbranch_scc0 {l}")
    e.cond_begin()
    I(f"s_mov_b32 s{S_t1}, 1")
    I("s_waitcnt lgkmcnt(0)")
    I(f"s_atomic_add s{S_t1}, s[{S_DBG}:{S_DBG+1}], 0")
    e.cond_end(); e.label(l)
    stamp("c_go")
    def xfr(p, s): return ar((p * 16 + s) * 4)
    def xf32(s16): return ar(s16 * 4)
    def acc(c, T, p=0):
        base = C_ACC + 32 * (c & 1)
        return base + (T * 2 + p) * 4 if att else base + T * 16
    def xread(dst, areg, slot, tmp, k):
        base = slot * SLOT
        if base >= 65536:
            I(f"v_add_u32 v{tmp}, {base & ~0xffff}, v{areg}"); areg = tmp
        I(f"ds_read_b128 {dst}, v{areg} offset:{base & 0xffff}", tag=f"w{k}")
    steps = []; nh = [0]
    for i, un in enumerate(subs):
        _, c, u = un; slot = slot_of[un]
        for j in range(16):
            h = j >> 3
            if att:
                ks = (j >> 1) & 3; T = 2 * h + (j & 1); s = 4 * u + ks; zero = (u == 0 and ks == 0)
                halo = T == 0 and c != 1
                st = dict(rd=(C_WR + (4 if slot >= 4 else 0) + T, (slot & 3) * SLOT + ks * 4096, 512))
                def mf(W, st, s=s, T=T, zero=zero, c=c, halo=halo):
                    out = []
                    for p in range(2):
                        a, b = (xfr(p, s), W) if c == 2 else (W, xfr(p, s))
                        d = vr(acc(c, T, p))
                        out.append(f"{MF} {d}, {a}, {b}, {'0' if zero else d}")
                    if halo:
                        a, b = (vr(st["hreg"]), W) if c == 2 else (W, vr(st["hreg"]))
                        out.append(f"{MF} {vr(C_HACC)}, {a}, {b}, {'0' if zero else vr(C_HACC)}")
                    return out
                def post(k, st=st, s=s, halo=halo, j=j, c=c, u=u, ks=ks):
                    if c == 0 and j < 8 and j % 2 == 0:
                        for p in range(2): xread(xfr(p, s), C_XR + 2 * p + (ks & 1), slot_of[("x", u, ks >> 1)], 1 + p, k)
                    if halo:
                        st["hreg"] = C_HX[nh[0] % 3]; nh[0] += 1
                        I(f"ds_read_b128 {vr(st['hreg'])}, v{C_HA+(s&1)} offset:{(s>>1)*2048}", tag=f"w{k}")
            else:
                kk = j & 7
                if c < 3: s16 = 8 * u + kk; ta = h; zero = (u == 0 and kk == 0)
                else: s16 = 8 * (u + 2 * h) + kk; ta = 0; zero = (u == 0 and j == 0)
                st = dict(rd=(C_WR + (4 if slot >= 4 else 0) + h, (slot & 3) * SLOT + kk * 2048, 512))
                d = vr(acc(c, ta), 16)
                def mf(W, st, s16=s16, d=d, zero=zero): return [f"{M32} {d}, {W}, {xf32(s16)}, {'0' if zero else d}"]
                def post(k, s16=s16, j=j, c=c, u=u, kk=kk):
                    if c == 0 and j < 8: xread(xf32(s16), C_XR + (kk & 3), slot_of[("x", u, kk >> 2)], 1 + (kk & 1), k)
            st["mf"] = mf; st["post"] = post
            if j == 0:
                def pre(i=i):
                    stamp(f"t{i}")
                    if att and i in (8, 9):
                        assert e.lgq[0][0].count(f"exw{i-8}") == (5 if i == 8 else 4)
                        e.wait(lg=f"exw{i-8}")
                    if not att and i - OPT["ackb"] in (0, 1):
                        assert e.vmq[0][0].count(f"st{i-OPT['ackb']}") == 4
                        e.wait(vm=f"st{i-OPT['ackb']}")
                    if i < (10 if att else 14): I("s_barrier")
                    stamp(f"s{i}")
                    if att and i == 8:
                        for t in range(8): I(f"v_xor_b32 v{C_WR+t}, v19, v{C_WR+t}")
                st["pre"] = pre
            steps.append(st)
    if att: S = Stream(steps, OPT["D"], [32, 36, 40, 44, 48, 52])
    else: S = Stream(steps, OPT["DF"], [32, 36, 40, 44, 48, 52, 56, 60])
    DD = S.D
    def packn(a, n_): return [lambda k=k: I(f"v_cvt_pk_bf16_f32 v{a+k}, v{a+2*k}, v{a+2*k+1}") for k in range(n_)]
    def epi(c, h):
        F = []
        if att:
            for t in (2 * h, 2 * h + 1):
                a = acc(c, t, 0)
                F += packn(a, 4)
                def wr(t=t, a=a):
                    I(f"v_xor_b32 v1, {t*1024}, v{C_EXW}")
                    if c == 1: I(f"v_add_u32 v1, {(QSLOT*SLOT - EXCH_LDS - 4096) & 0xffffffff}, v1")
                    I(f"ds_write_b128 v1, {vr(a)}", tag=f"exw{c}")
                F.append(wr)
            if h == 0 and c != 1:
                def hw():
                    I(f"v_cvt_pk_bf16_f32 v{C_HACC}, v{C_HACC}, v{C_HACC+1}")
                    I(f"v_cvt_pk_bf16_f32 v{C_HACC+1}, v{C_HACC+2}, v{C_HACC+3}")
                    I(f"s_add_u32 s{S_t0}, s{S_m0b}, 4096")
                    I(f"v_subrev_u32 v1, s{S_t0}, v{C_EXW}")
                    I(f"ds_write2_b64 v1, {vr(C_HACC,2)}, {vr(C_HACC,2)} offset0:0 offset1:1", tag=f"exw{c}")
                F.append(hw)
        else:
            a = acc(c, h)
            F += packn(a, 8)
            def so():
                I(f"s_lshr_b32 s{S_GIN}, s{S_J32}, {2 if c < 3 else 3}")
                I(f"s_add_u32 s{S_GIN}, s{S_GIN}, s{S_A2}"); I(f"s_add_u32 s{S_GIN}, s{S_GIN}, {(4*c+h)*8192}")
            F.append(so)
            for p in range(2):
                F += [lambda k=k: I(f"v_pk_max_i16 v{k}, v{k}, 0") for k in range(a + 4 * p, a + 4 * p + 4)]
                F.append(cost(9, lambda p=p: I(f"buffer_store_dwordx4 {vr(a+4*p)}, v{V_L16}, {srd(S_WS)}, s{S_GIN} offen offset:{p*1024} sc1", tag=f"st{c}")))
        return F
    n = len(steps)
    for c, i, reuse in ((0, 6, 8), (1, 7, 12), (2, 11, 99)):
        for h in range(2):
            k = 16 * i + 8 * h + 7
            if k == n - 1: continue
            dl = min(16 * reuse + (8 * h if reuse == 8 else 0), n)
            if att and c < 2: dl = 16 * (8 + c) - DD - 3
            S.aft(k, lambda k=k, c=c, h=h, dl=dl: S.add(max(k + (2 if att else 4), 16 * 7 - DD + 1 if att else 0), dl, epi(c, h)))
    S.run(OPT["side"] if att else OPT["sidef"])
    stamp("c_end")
    if not att: I("s_barrier")
    for f in (epi(2, 1) if att else epi(3, 0)): f()
    if att:
        e.wait(lg="exw2")
        I("s_barrier")
    if OPT["cprio"] != 2: I(f"s_setprio {OPT['cprio']}")
    b2_voffs(4)
    if att: I("s_barrier")
    rest = [2, 3, 4, 5, 6, 8, 7] if att else [3, 4, 5, 6, 8, 7]
    b2_unit(rest.pop(0), 4); b2_unit(rest.pop(0), 4)
    stamp("c_g0")
    I("v_lshrrev_b32 v9, 4, v0")
    if att:
        I("v_lshlrev_b32 v8, 4, v9")
    else:
        I("v_lshrrev_b32 v8, 5, v0"); I("v_lshlrev_b32 v8, 4, v8")
        I("v_xor_b32 v9, v9, v0"); I("v_and_b32 v9, 1, v9")
        I("v_cmp_eq_u32 vcc, 0, v9")
    NG = 16 if att else 32; per = NG // 4
    RB = [32 + 4 * k for k in range(8)]
    def gread(s_):
        if s_ % per == 0:
            I(f"s_add_u32 s{S_t0}, s{S_r}, {s_//per}"); I(f"s_and_b32 s{S_t0}, s{S_t0}, 3"); I(f"s_lshl_b32 s{S_t0}, s{S_t0}, 8")
            I(f"s_add_u32 s{S_t0}, s{S_t0}, {GW_LDS}")
            I(f"v_add_u32 v10, s{S_t0}, v8")
            if not att:
                I(f"v_mov_b32 v11, {ZERO_LDS}"); I("v_cndmask_b32 v10, v11, v10, vcc")
        I(f"ds_read_b128 {vr(RB[s_%8])}, v10 offset:{(s_%per)*(64 if att else 32)}", tag=f"g{s_}")
    for s_ in range(6): gread(s_)
    for s_ in range(NG):
        e.wait(lg=f"g{s_}")
        if att:
            for p in range(2): I(f"{MF} {vr(64+4*p)}, {vr(RB[s_%8])}, {xfr(p,s_)}, {'0' if s_ == 0 else vr(64+4*p)}")
        else:
            I(f"{MF} {vr(64)}, {vr(RB[s_%8])}, {xf32(s_)}, {'0' if s_ == 0 else vr(64)}")
        if s_ + 6 < NG: gread(s_ + 6)
        if s_ == NG // 2: b2_unit(rest.pop(0), 4)
    if not att:
        assert e.vmq[0][0].count("st2") == 4
        e.wait(vm="st3")
        push_group(lambda: (I(f"s_lshl_b32 s{S_t2}, s{S_jj}, 2"), I(f"s_lshl_b32 s{S_t2}, 12, s{S_t2}")), (0, 1, 2, 3))
    z1 = 68 if att else 65; G = 72
    T = [f"v_cvt_pk_bf16_f32 v1, v64, v{z1}", f"v_lshlrev_b32 v{G}, 16, v1", f"v_and_b32 v{G+2}, 0xffff0000, v1"]
    T += [f"v_mul_f32 v{G+2*p}, {f2u(-1.4426950408889634)}, v{G+2*p}" for p in range(2)]
    T += [f"v_exp_f32 v{G+2*p}, v{G+2*p}" for p in range(2)]
    T += [f"v_add_f32 v{G+2*p}, 1.0, v{G+2*p}" for p in range(2)]
    T += [f"v_rcp_f32 v{G+2*p}, v{G+2*p}" for p in range(2)]
    T += [f"v_cvt_pk_bf16_f32 v1, v{G}, v{G+2}", f"v_lshlrev_b32 v{G}, 16, v1", f"v_and_b32 v{G+2}, 0xffff0000, v1"]
    T += [f"v_sub_f32 v{G+1+2*p}, 1.0, v{G+2*p}" for p in range(2)]
    T += [f"v_cvt_pk_bf16_f32 v1, v{G+1}, v{G+3}", f"v_lshlrev_b32 v{G+1}, 16, v1", f"v_and_b32 v{G+3}, 0xffff0000, v1"]
    T += [f"v_max_f32 v{G+2*p}, {f2u(2.0**-60)}, v{G+2*p}" for p in range(2)]
    T += [f"v_rcp_f32 v{G+4+p}, v{G+2*p}" for p in range(2)]
    T += [f"v_mul_f32 v{G+1+2*p}, v{G+4+p}, v{G+1+2*p}" for p in range(2)]
    for t in T: I(t)
    I(f"s_lshl_b32 s{S_t0}, s{S_w}, 8"); I(f"s_add_u32 s{S_t0}, s{S_t0}, {GB_LDS}")
    I(f"v_lshl_add_u32 v1, v0, 3, s{S_t0}")
    I("s_mov_b64 exec, 0xffff")
    I(f"ds_write_b64 v1, {vr(G,2)}", tag="gz")
    I(f"ds_write_b64 v1, {vr(G+2,2)} offset:128", tag="gz")
    I("s_mov_b64 exec, -1")
    e.wait(lg="gz")
    stamp("c_g1")
    for g in rest:
        throttle(); b2_unit(g, 4)
    if OPT["dummy"]:
        I(f"s_lshl_b32 s{S_t0}, s2, 2"); I(f"s_add_u32 s{S_t0}, s{S_t0}, s{S_w}"); I(f"s_mul_i32 s{S_t0}, s{S_t0}, 9216"); I(f"s_add_u32 s{S_t0}, s{S_t0}, {20<<20}")
        for k in range(9):
            I(f"buffer_store_dwordx4 {vr(64)}, v{V_L16}, {srd(S_WS)}, s{S_t0 if OPT['dummy'] == 1 else S_WS+2} offen")
            I(f"s_add_u32 s{S_t0}, s{S_t0}, 1024")
    I("s_waitcnt vmcnt(0) lgkmcnt(0)")
    finish()

c_prog(False)
e.label("L_c_att")
c_prog(True)

e.label("L_end")
I("s_endpgm")
e.raw('.section .rodata,"a"')
e.raw(".p2align 6")
e.raw(f".amdhsa_kernel {NAME}_kernel")
e.raw("  .amdhsa_next_free_vgpr 256")
e.raw("  .amdhsa_next_free_sgpr 102")
e.raw("  .amdhsa_accum_offset 128")
e.raw("  .amdhsa_group_segment_fixed_size 0")
e.raw("  .amdhsa_kernarg_size 80")
e.raw("  .amdhsa_user_sgpr_count 2")
e.raw("  .amdhsa_user_sgpr_kernarg_segment_ptr 1")
e.raw("  .amdhsa_system_sgpr_workgroup_id_x 1")
e.raw(".end_amdhsa_kernel")
sys.stdout.write(e.text())
sys.stderr.write(f"instructions {e.nins} nop-states {e.nops}\n")
```

```python
import sys, struct
from emit import Em

NAME = "gated_mix__sliding_local_dilated__dense_activation_relu__prompt"
OPT = dict(padt=6000, padk=-1, padr=0, stamp=0, D=4, DF=5, D2=5, codepf=1, spin=400000, lround=0, side=2, sidef=2, side2=3,
           ld=6, thr=5, pre=4, pfd=18, ackb=10, cprio=2, dummy=0, sch=1, tm=0, qb=0, rotq=1, spf=1)
CST = ["s0", "s2", "s4", "s6", "s8", "s10", "s12", "c_end"]
HST = ["h_b0", "h_b7", "h_p2", "h_late", "h_o", "h_own", "h_rcv", "h_sum"]
for a in sys.argv[1:]:
    k, v = a.split("=")
    if k == "cst": CST = v.split(",")
    elif k == "hst": HST = v.split(",")
    else:
        assert k in OPT, k
        OPT[k] = int(v)
STAMP = OPT["stamp"]
def f2u(x): return struct.unpack("<I", struct.pack("<f", x))[0]

PART_OFF = 10 << 20
INB_OFF = 32 << 20
STAMP_OFF = 33 << 20
WS_BYTES = 36 << 20
SLOT = 16384
HALO_LDS = 7 * SLOT
EXCH_LDS = 8 * SLOT
EV_LDS = EXCH_LDS + 20480
ZERO_LDS = EV_LDS + 256
GW_LDS = EV_LDS + 1024
GB_LDS = EV_LDS + 2048
NEG = f2u(-1e30)

e = Em()
I = e.I
def vr(b, n=4): return f"v[{b}:{b+n-1}]"
def ar(b, n=4): return f"a[{b}:{b+n-1}]"
def srd(b): return f"s[{b}:{b+3}]"
MF = "v_mfma_f32_16x16x32_bf16"
M32 = "v_mfma_f32_32x32x16_bf16"

S_X, S_W, S_WS, S_OUT, S_W2, S_WO, S_GW = 24, 28, 32, 36, 40, 44, 48
S_INB = 52; S_DBG = 54
S_w, S_r, S_jj, S_rot, S_q, S_m0b, S_j1 = 60, 61, 62, 63, 64, 65, 66
S_t0, S_t1, S_t2 = 3, 67, 68
S_BUD = 69; S_EV = 70; S_SOFF = 71
S_POLL = 74; S_MYIN = 75; S_CEXP = 76; S_THR = 77; S_W4 = 79
S_KG = 80; S_WK = 84
S_COL = 88; S_A2 = 89; S_B2 = 90; S_BO = 91; S_PB = 92; S_J32 = 93; S_GIN = 94; S_P = 95
S_STAMP = 4
EVD = {}
def evd(name):
    if name not in EVD: EVD[name] = len(EVD)
    assert EVD[name] < 16
    return EVD[name] * 16
role = ["H"]
def stamp(name):
    L = CST if role[0] == "C" else HST
    if name == "end": idx = 8
    elif name in L: idx = L.index(name)
    else: return
    if STAMP == 3: I(f"s_memrealtime s[{S_STAMP+2*idx}:{S_STAMP+2*idx+1}]")
    elif STAMP: I(f"s_memtime s[{S_STAMP+2*idx}:{S_STAMP+2*idx+1}]")
uid = [0]
def U(p):
    uid[0] += 1
    return f"L_{p}{uid[0]}"
def reset():
    e.vmq = [[[], 0]]; e.lgq = [[[], 0]]; e.hist = []
V_L16 = 16; V_EVW = 17; V_CHK = 3
SLOW = []
def flush_slow():
    for l in SLOW: e.raw(l)
    SLOW.clear()
def spin_tail(lp, ok):
    return [f"    s_sub_u32 s{S_BUD}, s{S_BUD}, 1", f"    s_cbranch_scc0 {lp}", f"    s_mov_b32 s{S_BUD}, 0", f"    s_branch {ok}"]
def dsig(name):
    I(f"s_add_u32 m0, s{S_W4}, {EV_LDS + evd(name)}")
    I("s_mov_b64 exec, 1")
    I(f"buffer_load_dword v{V_L16}, {srd(S_WO)}, s{S_WO+2} offen lds", tag="dsig")
    I("s_mov_b64 exec, -1")
def d_read(name, tag): I(f"ds_read_b32 v{V_CHK}, v{V_EVW} offset:{evd(name)}", tag=tag)
def d_check(name, tag):
    ok = U("ok"); lp = U("sp")
    e.wait(lg=tag)
    I(f"v_cmp_ne_u32 vcc, 0, v{V_CHK}")
    I(f"s_cbranch_vccnz {lp}")
    e.label(ok)
    SLOW.extend([f"{lp}:", f"    ds_read_b32 v{V_CHK}, v{V_EVW} offset:{evd(name)}", "    s_waitcnt lgkmcnt(0)", f"    v_cmp_ne_u32 vcc, 0, v{V_CHK}",
                 f"    s_cbranch_vccz {ok}", "    s_sleep 1"] + spin_tail(lp, ok))
def throttle():
    n = OPT["thr"]
    I(f"s_waitcnt vmcnt({n})")
    for q in e.vmq: q[1] = max(q[1], len(q[0]) - n)
def poll_load():
    I(f"s_load_dword s{S_POLL}, s[{S_INB}:{S_INB+1}], s{S_MYIN} glc")
def poll_check(mask):
    ok = U("pk"); lp = U("pl")
    I(f"s_andn2_b32 s{S_EV}, {mask}, s{S_POLL}")
    I(f"s_cbranch_scc1 {lp}")
    e.label(ok)
    SLOW.extend([f"{lp}:", "    s_waitcnt lgkmcnt(0)", f"    s_andn2_b32 s{S_EV}, {mask}, s{S_POLL}", f"    s_cbranch_scc0 {ok}",
                 f"    s_load_dword s{S_POLL}, s[{S_INB}:{S_INB+1}], s{S_MYIN} glc"] + spin_tail(lp, ok))
def push_group(bit_fn, ds):
    bit_fn()
    for d in ds:
        I(f"s_xor_b32 s{S_t0}, s{S_MYIN}, {d*512}")
        I(f"s_atomic_or s{S_t2}, s[{S_INB}:{S_INB+1}], s{S_t0}")
def ownbit(b):
    def f():
        I(f"s_lshl_b32 s{S_t2}, s{S_jj}, 2"); I(f"s_lshl_b32 s{S_t2}, {1<<b}, s{S_t2}")
    return f
def mk_srd(b, p, nbytes):
    I(f"s_mov_b32 s{b}, s{p}")
    I(f"s_and_b32 s{b+1}, s{p+1}, 0xffff")
    I(f"s_mov_b32 s{b+2}, {nbytes}")
    I(f"s_mov_b32 s{b+3}, 0x20000")
def b2_voffs(dst):
    I("v_lshrrev_b32 v1, 3, v0")
    I("v_bfe_u32 v2, v0, 4, 1")
    I("v_lshlrev_b32 v2, 2, v2")
    I(f"v_and_b32 v{dst}, 7, v0")
    I(f"v_xor_b32 v{dst}, v{dst}, v2")
    I(f"v_lshlrev_b32 v{dst}, 4, v{dst}")
    I(f"v_lshl_add_u32 v{dst}, v1, 10, v{dst}")
    for i in range(1, 4): I(f"v_add_u32 v{dst+i}, {i*7168}, v{dst}")
def late_scalars():
    I(f"s_lshl_b32 s{S_W4}, s{S_w}, 2")
    I(f"s_mov_b32 s{S_BUD}, {OPT['spin']}")
    I(f"s_and_b32 s{S_j1}, s{S_jj}, 1")
    I(f"s_lshl_b32 s{S_t0}, s{S_jj}, 8")
    I(f"s_lshr_b32 s{S_t1}, s{S_w}, 1")
    I(f"s_lshl_b32 s{S_t1}, s{S_t1}, 7")
    I(f"s_add_u32 s{S_t0}, s{S_t0}, s{S_t1}")
    I(f"s_and_b32 s{S_t1}, s{S_w}, 1")
    I(f"s_lshl_b32 s{S_t1}, s{S_t1}, 15")
    I(f"s_add_u32 s{S_t0}, s{S_t0}, s{S_t1}")
    I(f"s_mul_i32 s{S_B2}, s{S_q}, {14*32768}")
    I(f"s_add_u32 s{S_B2}, s{S_B2}, s{S_t0}")
    I(f"s_lshl_b32 s{S_BO}, s{S_q}, 17")
    I(f"s_add_u32 s{S_BO}, s{S_BO}, s{S_t0}")
    I(f"s_lshl_b32 s{S_J32}, s{S_j1}, 16")
    I(f"s_lshl_b32 s{S_t0}, s{S_r}, 2")
    I(f"s_add_u32 s{S_t0}, s{S_t0}, s{S_q}")
    I(f"s_mul_i32 s{S_A2}, s{S_t0}, {18*8192}")
    I(f"s_lshl_b32 s{S_t1}, s{S_w}, 11")
    I(f"s_add_u32 s{S_A2}, s{S_A2}, s{S_t1}")
    I(f"s_lshl_b32 s{S_MYIN}, s{S_t0}, 2")
    I(f"s_add_u32 s{S_MYIN}, s{S_MYIN}, s{S_jj}")
    I(f"s_lshl_b32 s{S_MYIN}, s{S_MYIN}, 2")
    I(f"s_add_u32 s{S_MYIN}, s{S_MYIN}, s{S_w}")
    I(f"s_lshl_b32 s{S_MYIN}, s{S_MYIN}, 7")
    I(f"v_lshlrev_b32 v{V_L16}, 4, v0")
    I(f"v_and_b32 v{V_EVW}, 3, v0")
    I(f"v_lshlrev_b32 v{V_EVW}, 2, v{V_EVW}")
    I(f"v_add_u32 v{V_EVW}, {EV_LDS}, v{V_EVW}")
def common_ptrs():
    I(f"s_add_u32 s{S_INB}, s22, {INB_OFF}")
    I(f"s_addc_u32 s{S_INB+1}, s23, 0")
    I(f"s_lshl_b32 s{S_t0}, s{S_r}, 4")
    I(f"s_add_u32 s{S_DBG}, s20, s{S_t0}")
    I(f"s_addc_u32 s{S_DBG+1}, s21, 0")
    mk_srd(S_WS, 22, WS_BYTES)
    mk_srd(S_W2, 14, 1792 * 1024)
    mk_srd(S_WO, 8, 512 * 1024)
def dma4(voff, srdb, tag):
    for i in range(4):
        I(f"buffer_load_dwordx4 v{voff+i}, {srd(srdb)}, s{S_SOFF} offen offset:{i*1024} lds", tag=tag)
def b2_unit(g, voff):
    I(f"s_add_u32 m0, s{S_m0b}, {g*SLOT}")
    if g < 7: I(f"s_add_u32 s{S_SOFF}, s{S_B2}, {g*65536}")
    else:
        I(f"s_xor_b32 s{S_SOFF}, s{S_J32}, {((g-7)^1)*65536}")
        I(f"s_add_u32 s{S_SOFF}, s{S_SOFF}, s{S_BO}")
    dma4(voff, S_W2 if g < 7 else S_WO, f"b{g}")
    dsig(f"Lb{g}")
def a2_soff(lam, dst):
    if lam < 14: I(f"s_add_u32 s{dst}, s{S_A2}, {lam*8192}")
    else:
        I(f"s_lshr_b32 s{dst}, s{S_J32}, 2"); I(f"s_xor_b32 s{dst}, s{dst}, {((lam-14)^2)*8192}")
        I(f"s_add_u32 s{dst}, s{dst}, s{S_A2}"); I(f"s_add_u32 s{dst}, s{dst}, {14*8192}")
def after_karg():
    I("s_waitcnt lgkmcnt(0)")
    if STAMP:
        I("s_memtime s[100:101]")
        I("s_mov_b32 s72, s96")
        I("s_mov_b32 s73, s98")
def finish():
    if STAMP:
        I("s_waitcnt vmcnt(0)")
        stamp("end")
        I("s_memrealtime s[22:23]")
        I("s_waitcnt lgkmcnt(0)")
        I(f"s_lshl_b32 s{S_t0}, s2, 3")
        I(f"s_add_u32 s{S_t0}, s{S_t0}, s{S_w}")
        if role[0] == "H": I(f"s_add_u32 s{S_t0}, s{S_t0}, 4")
        I(f"s_lshl_b32 s{S_t0}, s{S_t0}, 6")
        I(f"s_add_u32 s{S_t0}, s{S_t0}, {STAMP_OFF}")
        I(f"v_mov_b32 v2, s{S_t0}")
        for k in range(9): I(f"v_mov_b32 v{32+k}, s{S_STAMP+2*k}")
        I("v_mov_b32 v41, s73"); I("v_mov_b32 v42, s22"); I("v_mov_b32 v43, s72"); I("v_mov_b32 v44, s100")
        I(f"v_mov_b32 v45, s{S_BUD}"); I("v_mov_b32 v46, 0")
        I("s_mov_b64 exec, 1")
        for k in range(4): I(f"buffer_store_dwordx4 {vr(32+4*k)}, v2, {srd(S_WS)}, 0 offen offset:{16*k}")
    if STAMP >= 3:
        if OPT["padk"] >= 0 and (OPT["padr"] == 1) == (role[0] == "H"):
            I(f"s_sub_u32 s24, s{S_STAMP+2*OPT['padk']}, s{73 if STAMP == 3 else 72}")
            if STAMP == 4: I("s_lshr_b32 s24, s24, 4")
        else: I("s_mov_b32 s24, 0")
        I(f"s_add_u32 s24, s24, {OPT['padt']}")
        l = U("pad")
        e.label(l)
        I("s_memrealtime s[26:27]"); I("s_waitcnt lgkmcnt(0)"); I("s_sub_u32 s25, s26, s73"); I("s_cmp_lt_u32 s25, s24"); I(f"s_cbranch_scc1 {l}")
    I("s_endpgm")
    flush_slow()
def units(att):
    L = []
    for u in range(4): L += [("x", u, 0), ("x", u, 1), ("g", 0, u), ("g", 1, u)]
    L += [("g", 2, u) for u in range(4)]
    if not att: L += [("g", 3, 0), ("g", 3, 1)]
    return L
def phys(att, k):
    if not att: return (k - 14) % 9
    i = (k - 13) % 8
    return 8 if i == 7 else i
QSLOT = phys(True, 13)

class Stream:
    def __init__(self, steps, depth, ring):
        self.steps = steps; self.side = []; self.after = {}; self.D = depth; self.ring = ring
        assert len(ring) >= depth + 2
    def add(self, ready, deadline, fns):
        for f in fns: self.side.append([ready, deadline, f])
    def aft(self, k, f):
        prev = self.after.get(k)
        self.after[k] = (lambda: (prev(), f())) if prev else f
    def issue(self, k, half):
        st = self.steps[k]
        b = self.ring[k % len(self.ring)]
        a, off, d2 = st["rd"]
        if half == 0:
            if "pre" in st: st["pre"]()
            I(f"ds_read_b64_tr_b16 {vr(b,2)}, v{a} offset:{off}", tag=f"w{k}")
        else:
            I(f"ds_read_b64_tr_b16 {vr(b+2,2)}, v{a} offset:{off+d2}", tag=f"w{k}")
            if "post" in st: st["post"](k)
    def pump(self, k, n):
        c = 0
        while self.side and c < n and self.side[0][0] <= k:
            r = self.side.pop(0)[2]()
            c += r if isinstance(r, int) else 1
    def run(self, rate):
        n = len(self.steps); D = self.D
        for k in range(min(D, n)):
            self.issue(k, 0); self.issue(k, 1)
        for k in range(n):
            st = self.steps[k]
            while any(s[1] <= k for s in self.side): self.side.pop(0)[2]()
            if "need" in st: st["need"]()
            if k % 2 == 0 and k + 1 < n: e.wait(lg=f"w{k+1}")
            e.wait(lg=f"w{k}")
            mfs = st["mf"](vr(self.ring[k % len(self.ring)]), st)
            I(mfs[0])
            if k + D < n: self.issue(k + D, 0)
            if len(mfs) > 1:
                self.pump(k, (rate + 1) // 2)
                I(mfs[1])
            if k + D < n: self.issue(k + D, 1)
            for m in mfs[2:]: I(m)
            self.pump(k, rate // 2 if len(mfs) > 1 else rate)
            if k in self.after: self.after[k]()
            stamp(f"k{k}")
        while self.side: self.side.pop(0)[2]()
def cost(n, f):
    def g():
        f(); return n
    return g

e.raw(f"; @launch grid=(256,1,1) block=(512,1,1) lds=163840")
e.raw('.amdgcn_target "amdgcn-amd-amdhsa--gfx950"')
e.raw(".text")
e.raw(f".globl {NAME}_kernel")
e.raw(".p2align 8")
e.raw(f".type {NAME}_kernel,@function")
e.label(f"{NAME}_kernel")
I("s_load_dwordx16 s[4:19], s[0:1], 0")
I("s_load_dwordx4 s[20:23], s[0:1], 64")
if STAMP:
    I("s_memrealtime s[98:99]")
    I("s_memtime s[96:97]")
I("v_lshrrev_b32 v1, 6, v0")
I("s_cmp_ge_u32 s2, 256")
I("s_cbranch_scc1 L_end")
I(f"v_readfirstlane_b32 s{S_t2}, v1")
I("v_and_b32 v0, 63, v0")
I(f"s_bfe_u32 s{S_q}, s2, 0x20001")
I(f"s_and_b32 s{S_t0}, s2, 1")
I(f"s_lshl_b32 s{S_t0}, s{S_t0}, 3")
I(f"s_bfe_u32 s{S_r}, s2, 0x30003")
I(f"s_or_b32 s{S_r}, s{S_r}, s{S_t0}")
I(f"s_lshr_b32 s{S_jj}, s2, 6")
if OPT["rotq"]: I(f"s_add_u32 s{S_rot}, s{S_r}, s{S_q}")
else: I(f"s_mov_b32 s{S_rot}, s{S_r}")
I(f"s_and_b32 s{S_w}, s{S_t2}, 3")
I(f"s_lshl_b32 s{S_m0b}, s{S_w}, 12")
I(f"s_cmp_lt_u32 s{S_t2}, 4")
I("s_cbranch_scc1 L_C")

H_XD = 4; H_WD = 8; H_BD = 12; H_G = 18; H_BR = 20; H_ACC = 64
H_RING = [32, 36, 40, 44, 48, 52, 24, 28]
def a2r(lam, p):
    if lam < 16: return ar(lam * 8 + p * 4)
    return vr((56 if lam == 16 else 4) + p * 4)
I("s_setprio 3")
I("v_lshrrev_b32 v32, 4, v0")
I("v_lshrrev_b32 v36, 3, v0")
I("v_and_b32 v37, 7, v0")
I("v_xor_b32 v39, v37, v32")
I("v_lshlrev_b32 v39, 4, v39")
I(f"v_lshl_add_u32 v{H_XD}, v36, 11, v39")
I(f"v_xor_b32 v{H_XD+1}, 64, v{H_XD}")
I(f"v_add_u32 v{H_XD+2}, {14*1024}, v{H_XD+1}")
I(f"v_add_u32 v{H_XD+3}, {14*1024}, v{H_XD}")
I(f"s_lshl_b32 s{S_t0}, s{S_r}, 17")
I(f"s_lshl_b32 s{S_t1}, s{S_w}, 15")
I(f"s_add_u32 s{S_t0}, s{S_t0}, s{S_t1}")
for g4 in range(4):
    I(f"s_add_u32 s{S_WK+g4}, s{S_rot}, {g4}")
    I(f"s_and_b32 s{S_WK+g4}, s{S_WK+g4}, 3")
    I(f"s_lshl_b32 s{S_KG+g4}, s{S_WK+g4}, 8")
    I(f"s_add_u32 s{S_KG+g4}, s{S_KG+g4}, s{S_t0}")
I(f"s_mov_b32 s{S_X+2}, {2048*1024}")
I(f"s_mov_b32 s{S_X+3}, 0x20000")
assert phys(False, 0) == 4 and phys(False, 1) == 5 and phys(True, 0) == 3 and phys(True, 1) == 4 and phys(False, 2) == 6 and phys(True, 2) == 5
I(f"s_cmp_ge_u32 s{S_jj}, 2")
I(f"s_cselect_b32 s{S_t2}, 3, 4")
I(f"s_mov_b32 s{S_W+2}, {512*3584}")
I(f"s_cmov_b32 s{S_W+2}, {512*3072}")
I(f"s_mov_b32 s{S_P}, 3584")
I(f"s_cmov_b32 s{S_P}, 3072")
I(f"s_lshl_b32 s{S_t2}, s{S_t2}, 14")
I(f"s_add_u32 s{S_t2}, s{S_t2}, s{S_m0b}")
I(f"s_mov_b32 m0, s{S_t2}")
I(f"s_add_u32 s{S_SOFF}, s{S_KG}, 128")
after_karg()
I(f"s_mov_b32 s{S_X}, s4")
I(f"s_and_b32 s{S_X+1}, s5, 0xffff")
for i in range(4): I(f"buffer_load_dwordx4 v{H_XD+i}, {srd(S_X)}, s{S_KG} offen offset:{i*1024} lds", tag="u0")
I(f"s_add_u32 m0, s{S_t2}, {SLOT}")
I(f"s_mov_b32 s{S_W+3}, 0x20000")
dma4(H_XD, S_X, "u1")
I(f"s_lshl_b32 s{S_t0}, s{S_w}, 5")
I(f"v_add_u32 v38, s{S_t0}, v36")
I(f"v_mul_lo_u32 v38, v38, s{S_P}")
I(f"s_mul_i32 s{S_COL}, s{S_q}, 896")
I(f"s_lshl_b32 s{S_t0}, s{S_q}, 8")
I(f"s_add_u32 s{S_t0}, s{S_t0}, {1024-256}")
I(f"s_cmp_ge_u32 s{S_jj}, 2")
I(f"s_cselect_b32 s{S_W}, s6, s12")
I(f"s_cselect_b32 s{S_W+1}, s7, s13")
I(f"s_cselect_b32 s{S_COL}, s{S_t0}, s{S_COL}")
I(f"s_cselect_b32 s{S_t0}, 1, 2")
I(f"s_cselect_b32 s{S_t1}, 64, 0")
I(f"s_and_b32 s{S_W+1}, s{S_W+1}, 0xffff")
I("v_and_b32 v39, 1, v32")
I(f"v_lshlrev_b32 v39, s{S_t0}, v39")
I("v_xor_b32 v39, v39, v37")
I("v_lshlrev_b32 v39, 4, v39")
I(f"v_add_u32 v{H_WD}, v38, v39")
I(f"v_xor_b32 v39, s{S_t1}, v39")
I(f"s_lshl_b32 s{S_t0}, s{S_P}, 3")
I(f"s_sub_u32 s{S_t0}, s{S_t0}, 1024")
I(f"v_add3_u32 v{H_WD+1}, v38, v39, s{S_t0}")
I(f"s_lshl_b32 s{S_t0}, s{S_t0}, 1")
I(f"v_add_u32 v{H_WD+2}, s{S_t0}, v{H_WD}")
I(f"v_add_u32 v{H_WD+3}, s{S_t0}, v{H_WD+1}")
I(f"s_lshl_b32 s{S_t0}, s{S_jj}, 7")
I(f"s_add_u32 s{S_COL}, s{S_COL}, s{S_t0}")
I(f"s_lshl_b32 s{S_t1}, s{S_P}, 7")
for g4 in range(4): I(f"s_mul_i32 s{S_WK+g4}, s{S_WK+g4}, s{S_t1}")
I(f"s_add_u32 m0, s{S_t2}, {2*SLOT}")
I(f"s_add_u32 s{S_SOFF}, s{S_WK}, s{S_COL}")
dma4(H_WD, S_W, "u2")
common_ptrs()
mk_srd(S_OUT, 18, 2048 * 1024)
mk_srd(S_GW, 16, 1024)
I(f"s_cmp_ge_u32 s{S_jj}, 2")
I("s_cbranch_scc1 L_h_att")
snapH = e.snapshot()

def h_prog(att):
    e.restore(snapH); e.hist = []
    UL = units(att)
    CH = [0, -1024, 1024] if att else [0, 256, 512]
    def issue(k):
        un = UL[k]
        I(f"s_add_u32 m0, s{S_m0b}, {phys(att,k)*SLOT}")
        if un[0] == "x":
            I(f"s_add_u32 s{S_SOFF}, s{S_KG+un[1]}, {un[2]*128}")
            dma4(H_XD, S_X, f"u{k}")
            return
        _, c, u = un
        if c < 3:
            I(f"s_add_u32 s{S_SOFF}, s{S_WK+u}, s{S_COL}")
            if CH[c]: I(f"s_add_i32 s{S_SOFF}, s{S_SOFF}, {CH[c]}")
        else:
            KH = 256 * 3584
            if u == 0:
                I("v_lshrrev_b32 v2, 2, v0")
                I("v_lshrrev_b32 v1, 4, v0")
                I("v_xor_b32 v2, v2, v1")
                I("v_and_b32 v2, 1, v2")
                I(f"v_mul_u32_u24 v1, {KH-64}, v2")
                for i in range(4): I(f"v_add_u32 v{H_WD+i}, v{H_WD+i}, v1")
                I(f"v_mul_u32_u24 v2, {2*KH}, v2")
                I(f"v_sub_u32 v{H_XD}, {KH}, v2")
                I(f"s_cmp_ge_u32 s{S_WK}, {KH}")
                I(f"s_cselect_b32 s{S_t0}, 1, 0")
            else:
                I(f"s_cmp_ge_u32 s{S_WK}, {KH}")
                I(f"s_cselect_b32 s{S_t1}, 1, 0")
                I(f"s_cmp_ge_u32 s{S_WK+1}, {KH}")
                I(f"s_cselect_b32 s{S_t0}, 1, 0")
                I(f"s_sub_u32 s{S_t0}, s{S_t0}, s{S_t1}")
            for i in range(4): I(f"v_mad_i32_i24 v{H_WD+i}, v{H_XD}, s{S_t0}, v{H_WD+i}")
            I(f"s_min_u32 s{S_SOFF}, s{S_WK+u}, s{S_WK+u+2}")
            I(f"s_add_u32 s{S_SOFF}, s{S_SOFF}, s{S_COL}")
            I(f"s_lshl_b32 s{S_t0}, s{S_jj}, 6")
            I(f"s_sub_u32 s{S_SOFF}, s{S_SOFF}, s{S_t0}")
            I(f"s_add_u32 s{S_SOFF}, s{S_SOFF}, 768")
        dma4(H_WD, S_W, f"u{k}")
    def w0(f):
        l = U("w0")
        I(f"s_cmp_eq_u32 s{S_w}, 0"); I(f"s_cbranch_scc0 {l}")
        e.cond_begin(); f(); e.cond_end(); e.label(l)
    def peer_issue(): w0(lambda: I(f"s_load_dword s{S_POLL}, s[{S_DBG}:{S_DBG+1}], 0 glc"))
    def peer():
        def f():
            lp = U("pp"); ok = U("po")
            I("s_waitcnt lgkmcnt(0)")
            I(f"s_cmp_ge_u32 s{S_POLL}, 16")
            I(f"s_cbranch_scc0 {lp}")
            e.label(ok)
            SLOW.extend([f"{lp}:", "    s_sleep 8", f"    s_load_dword s{S_POLL}, s[{S_DBG}:{S_DBG+1}], 0 glc", "    s_waitcnt lgkmcnt(0)",
                         f"    s_cmp_ge_u32 s{S_POLL}, 16", f"    s_cbranch_scc1 {ok}"] + spin_tail(lp, ok))
        w0(f)
        I(f"s_mov_b32 s{S_POLL}, 0")
    V_Q = 64; V_S = 96; V_BIAS = 32; V_RINV = 40; V_T = 48; A_KV = 64; A_ONES = 96; V_AD = 24
    def att_setup(part):
        if part == 0:
            I(f"s_add_u32 s{S_t0}, s{S_m0b}, {EXCH_LDS+4096}")
            I(f"v_add_u32 v{V_AD}, s{S_t0}, v{V_L16}")
            I("v_bfe_u32 v1, v0, 3, 1")
            I("v_lshlrev_b32 v1, 12, v1")
            I(f"v_sub_u32 v{V_AD+2}, v{V_AD}, v1")
            I("v_xor_b32 v1, 4096, v1")
            I(f"v_sub_u32 v{V_AD+1}, v{V_AD}, v1")
            I("v_lshrrev_b32 v1, 5, v0")
            I("v_lshlrev_b32 v1, 12, v1")
            I(f"v_sub_u32 v{V_AD+4}, v{V_AD}, v1")
            I("v_xor_b32 v1, 4096, v1")
            I(f"v_sub_u32 v{V_AD+3}, v{V_AD}, v1")
            I(f"v_add_u32 v{V_AD+5}, {(QSLOT*SLOT - EXCH_LDS - 4096) & 0xffffffff}, v{V_AD}")
            I(f"s_mov_b32 s{S_CEXP}, {f2u(0.25*1.4426950408889634)}")
            I(f"s_or_b32 s{S_t0}, s{S_r}, s{S_w}")
            I(f"s_cmp_eq_u32 s{S_t0}, 0")
            I(f"s_cselect_b32 s{S_THR}, -16, -9")
            I(f"v_mov_b32 v{V_T}, 0x3f803f80")
            for k in range(4): I(f"v_accvgpr_write_b32 a{A_ONES+k}, v{V_T}")
            I(f"v_mov_b32 v{V_T}, {NEG}")
            I(f"v_and_b32 v{V_T+1}, 15, v0")
            I(f"v_lshrrev_b32 v{V_T+2}, 4, v0")
            I(f"v_lshlrev_b32 v{V_T+2}, 2, v{V_T+2}")
        elif part in (1, 2):
            p = part - 1; x8 = 8 if p == 0 else 0
            I(f"v_xor_b32 v{V_T+3}, {x8}, v{V_T+1}")
            I(f"v_xor_b32 v{V_T+4}, {x8}, v{V_T+2}")
            I(f"v_sub_u32 v{V_T+3}, v{V_T+3}, v{V_T+4}")
            for r in range(4):
                I(f"v_subrev_u32 v{V_T+4}, {r}, v{V_T+3}")
                I(f"v_cmp_lt_u32 vcc, 7, v{V_T+4}")
                I(f"v_cmp_lt_i32 s[56:57], s{S_THR}, v{V_T+4}")
                I("s_and_b64 vcc, vcc, s[56:57]")
                I(f"v_cndmask_b32 v{V_BIAS+p*4+r}, 0, v{V_T}, vcc")
        else:
            for k in range(16): I(f"v_mov_b32 v{V_Q+16*(part-3)+k}, 0")
            I("s_mov_b32 s56, 0xff00ff00"); I("s_mov_b32 s57, 0xff00ff00")
            I("s_not_b64 s[58:59], s[56:57]")
    def br_setup():
        I("v_bfe_u32 v1, v0, 2, 2")
        I("v_lshrrev_b32 v2, 5, v0")
        I("v_lshl_add_u32 v1, v2, 2, v1")
        I("v_lshlrev_b32 v1, 7, v1")
        I("v_bfe_u32 v2, v0, 4, 1")
        I("v_lshl_add_u32 v1, v2, 5, v1")
        I("v_bfe_u32 v2, v0, 3, 1")
        I("v_lshl_add_u32 v1, v2, 6, v1")
        I("v_and_b32 v2, 3, v0")
        I("v_lshl_add_u32 v1, v2, 3, v1")
        I(f"s_lshr_b32 s{S_t0}, s{S_q}, 1")
        I(f"s_lshl_b32 s{S_t0}, s{S_t0}, 13")
        I(f"s_and_b32 s{S_t1}, s{S_q}, 1")
        I(f"s_lshl_b32 s{S_t1}, s{S_t1}, 6")
        I(f"s_or_b32 s{S_t0}, s{S_t0}, s{S_t1}")
        I(f"v_xor_b32 v1, s{S_t0}, v1")
        for tau in range(4):
            cb = 3 - tau
            I(f"v_xor_b32 v{H_BR+tau}, {(cb>>1)*8192 + (cb&1)*64}, v1")
        I(f"s_lshl_b32 s{S_PB}, s{S_r}, 2"); I(f"s_add_u32 s{S_PB}, s{S_PB}, s{S_jj}")
        I(f"s_mul_i32 s{S_PB}, s{S_PB}, {12*8192}")
        I(f"s_lshl_b32 s{S_t0}, s{S_w}, 11"); I(f"s_add_u32 s{S_PB}, s{S_PB}, s{S_t0}"); I(f"s_add_u32 s{S_PB}, s{S_PB}, {PART_OFF}")
    if att:
        I(f"s_lshl_b32 s{S_t0}, s{S_r}, 17")
        I(f"s_sub_u32 s{S_t0}, s{S_t0}, 16384")
        I(f"v_add_u32 v38, s{S_t0}, v{H_XD}")
        I(f"s_add_u32 s{S_t0}, s{S_t0}, 1024")
        I(f"v_add_u32 v39, s{S_t0}, v{H_XD+1}")
        I("v_max_i32 v38, 0, v38")
        I("v_max_i32 v39, 0, v39")
        I(f"s_add_u32 s{S_t0}, s{S_rot}, s{S_w}")
        I(f"s_and_b32 s{S_t0}, s{S_t0}, 3")
        I(f"s_lshl_b32 s{S_t0}, s{S_t0}, 8")
        for i in range(4):
            kh, rh = divmod(i, 2)
            I(f"s_add_u32 m0, s{S_m0b}, {HALO_LDS + i*1024 - kh*128}")
            I(f"buffer_load_dwordx4 v{38+rh}, {srd(S_X)}, s{S_t0} offen offset:{kh*128} lds", tag="u2")
    PRE = OPT["pre"] - (1 if att else 0)
    for k in range(3, PRE + 1): issue(k)
    first = list(range(PRE + 1, 8))
    if att: sched = [first, [8, 9], [10], [11, 12, 13], [14], [15, 16, 17], [18], [19]]
    else: sched = [first, [8, 9], [10, 11], [12, 13], [14, 15], [16, 17], [18, 19], []]
    def gw_dma():
        I(f"s_mov_b32 m0, {GW_LDS}")
        w0(lambda: I(f"buffer_load_dwordx4 v{V_L16}, {srd(S_GW)}, 0 offen lds"))
    extra = {1: lambda: (late_scalars(), b2_voffs(H_BD)), 3: gw_dma, 7: (br_setup if att or OPT["sch"] else lambda: (b2_unit(8, H_BD), br_setup()))}
    if att: extra.update({2: lambda: (att_setup(0), att_setup(1)), 4: lambda: (att_setup(2), att_setup(3)), 6: lambda: att_setup(4)})
    gk = [k for k, un in enumerate(UL) if un[0] == "g"]
    def bar(i, need=None):
        stamp(f"h_a{i}")
        if need is None and i < len(gk): need = gk[i]
        if need is not None: e.wait(vm=f"u{need}")
        if i == 6: peer()
        I("s_barrier"); stamp(f"h_b{i}")
    for i in range(8):
        bar(i)
        if i == 4: peer_issue()
        for k in sched[i]: issue(k)
        if i in extra: extra[i]()
    def a2_load(lam):
        a2_soff(lam, S_t1)
        for p in range(2):
            I(f"buffer_load_dwordx4 {a2r(lam,p)}, v{V_L16}, {srd(S_WS)}, s{S_t1} offen offset:{p*1024} sc1", tag=f"a{lam}")
    def a2_items(lams, gap=1):
        F = []
        for lam in lams:
            F.append(cost(9, lambda lam=lam: (a2_soff(lam, S_COL), I(f"buffer_load_dwordx4 {a2r(lam,0)}, v{V_L16}, {srd(S_WS)}, s{S_COL} offen sc1", tag=f"a{lam}x"))))
            F += [cost(9, lambda: None)] * (gap - 1)
            F.append(cost(9, lambda lam=lam: I(f"buffer_load_dwordx4 {a2r(lam,1)}, v{V_L16}, {srd(S_WS)}, s{S_COL} offen offset:1024 sc1", tag=f"a{lam}")))
            F += [cost(9, lambda: None)] * (gap - 1)
        return F
    Bu = lambda g: b2_unit(g, H_BD)
    SS = []
    ALL = (0, 1, 2, 3)
    side = {}
    if not att:
        if OPT["sch"] == 0:
            bar(8); Bu(0)
            bar(9); issue(20); Bu(1)
            bar(10); push_group(ownbit(0), ALL); issue(21); Bu(2)
            bar(11); push_group(ownbit(1), ALL); Bu(3); poll_load()
            bar(12); poll_check(0x11)
            for lam in range(4): a2_load(lam)
            Bu(4); poll_load()
            bar(13); poll_check(0x22)
            for lam in range(4, 8): a2_load(lam)
            Bu(5)
            bar(14)
        else:
            bar(8)
            bar(9); issue(20)
            bar(10); push_group(ownbit(0), ALL); issue(21)
            bar(11); push_group(ownbit(1), ALL); Bu(0); Bu(1); poll_load()
            bar(12); poll_check(0x11); a2_load(0); a2_load(1); poll_load()
            bar(13); a2_load(2); a2_load(3); Bu(2)
            bar(14); poll_check(0x22)
            side[(0, 0)] = lambda: SS[0].add(0, 999, a2_items((4, 5, 6, 7), 2))
        def f_o(): poll_check(0x300); SS[0].add(0, 999, a2_items((16, 17, 14, 15)))
    else:
        def kv_reads(m0, tag):
            for t in range(4):
                I(f"ds_read_b64 {ar(A_KV+8*t,2)}, v{m0} offset:{t*1024}", tag=f"{tag}{t}")
                I(f"ds_read_b128 {ar(A_KV+8*t+2)}, v{V_AD} offset:{t*1024}", tag=f"{tag}{t}")
                I(f"ds_read_b64 {ar(A_KV+8*t+6,2)}, v{m0+1} offset:{t*1024+8}", tag=f"{tag}{t}")
        bar(8)
        kv_reads(V_AD + 1, "k")
        e.wait(lg="k3")
        poll_load()
        bar(9, 19)
        def Preg(t, p): return V_Q + 8 * t + 4 * p
        for half, m in enumerate(("s[56:57]", "s[58:59]")):
            I(f"s_mov_b64 exec, {m}")
            for t in range(4):
                for p in range(2):
                    I(f"ds_read_b64 {vr(Preg(t,p)+2*half,2)}, v{V_AD+5} offset:{t*1024+p*8}", tag="q")
        I("s_mov_b64 exec, -1")
        stamp("h_q")
        e.wait(lg="q")
        un = [(i >> 1, i & 1) for i in range(8)]
        Sc = lambda i: V_S + 4 * i
        for i, (t, p) in enumerate(un): I(f"{MF} {vr(Sc(i))}, {ar(A_KV+8*t+4*p)}, {vr(Preg(t,p))}, {vr(V_BIAS+4*p)}")
        Bu(0)
        m = [V_T + i for i in range(8)]
        for i in range(8):
            if OPT["lround"]:
                I(f"v_cvt_pk_bf16_f32 v1, v{Sc(i)}, v{Sc(i)+1}")
                I(f"v_cvt_pk_bf16_f32 v2, v{Sc(i)+2}, v{Sc(i)+3}")
                I(f"v_lshlrev_b32 v{Sc(i)}, 16, v1")
                I(f"v_and_b32 v{Sc(i)+1}, 0xffff0000, v1")
                I(f"v_lshlrev_b32 v{Sc(i)+2}, 16, v2")
                I(f"v_and_b32 v{Sc(i)+3}, 0xffff0000, v2")
            I(f"v_max3_f32 v{m[i]}, v{Sc(i)}, v{Sc(i)+1}, v{Sc(i)+2}")
            I(f"v_max_f32 v{m[i]}, v{m[i]}, v{Sc(i)+3}")
        for k in range(4): I(f"v_permlane32_swap_b32 v{m[2*k]}, v{m[2*k+1]}")
        for k in range(4): I(f"v_max_f32 v{m[2*k]}, v{m[2*k]}, v{m[2*k+1]}")
        for k in range(2): I(f"v_permlane16_swap_b32 v{m[4*k]}, v{m[4*k+2]}")
        for k in range(2): I(f"v_max_f32 v{m[4*k]}, v{m[4*k]}, v{m[4*k+2]}")
        for k in range(2): I(f"v_mul_f32 v{m[4*k+2]}, s{S_CEXP}, v{m[4*k]}")
        for k in range(2): I(f"v_mul_f32 v{m[4*k]}, s{S_CEXP}, v{m[4*k]}")
        for k in range(2): I(f"v_permlane16_swap_b32 v{m[4*k]}, v{m[4*k+2]}")
        for k in range(4): I(f"v_mov_b32 v{m[2*k+1]}, v{m[2*k]}")
        for k in range(4): I(f"v_permlane32_swap_b32 v{m[2*k]}, v{m[2*k+1]}")
        Bu(1)
        poll_check(0x33)
        for i in range(8):
            for r in range(4): I(f"v_fma_f32 v{Sc(i)+r}, v{Sc(i)+r}, s{S_CEXP}, -v{m[i]}")
            for r in range(4): I(f"v_exp_f32 v{Sc(i)+r}, v{Sc(i)+r}")
            a2_load(i)
        for half, mk in enumerate(("s[56:57]", "s[58:59]")):
            I(f"s_mov_b64 exec, {mk}")
            for i, (t, p) in enumerate(un):
                I(f"v_cvt_pk_bf16_f32 v{Preg(t,p)+2*half}, v{Sc(i)}, v{Sc(i)+1}")
                I(f"v_cvt_pk_bf16_f32 v{Preg(t,p)+2*half+1}, v{Sc(i)+2}, v{Sc(i)+3}")
        I("s_mov_b64 exec, -1")
        for i, (t, p) in enumerate(un): I(f"{MF} {vr(Sc(i))}, {ar(A_ONES)}, {vr(Preg(t,p))}, 0")
        for i in range(8): I(f"v_rcp_f32 v{V_RINV+i}, v{Sc(i)}")
        stamp("h_sm")
        I("s_barrier")
        kv_reads(V_AD + 3, "v")
        e.wait(lg="v3")
        I("s_barrier")
        for i, (t, p) in enumerate(un): I(f"{MF} {vr(Sc(i))}, {ar(A_KV+8*t+4*p)}, {vr(Preg(t,p))}, 0")
        for b in range(2):
            for t in (2 * b, 2 * b + 1):
                ob = (56 if b == 0 else 4) + (t & 1) * 4
                for p in range(2):
                    o = Sc(2 * t + p)
                    for r in range(4): I(f"v_mul_f32 v{o+r}, v{V_RINV+2*t+p}, v{o+r}")
                    I(f"v_cvt_pk_bf16_f32 v{ob+2*p}, v{o}, v{o+1}")
                    I(f"v_cvt_pk_bf16_f32 v{ob+2*p+1}, v{o+2}, v{o+3}")
            a2_soff(16 + b, S_t1)
            for t1 in range(2):
                ob = (56 if b == 0 else 4) + t1 * 4
                I(f"v_permlane16_swap_b32 v{ob}, v{ob+2}")
                I(f"v_permlane16_swap_b32 v{ob+1}, v{ob+3}")
            for p in range(2):
                I(f"buffer_store_dwordx4 {a2r(16+b,p)}, v{V_L16}, {srd(S_WS)}, s{S_t1} offen offset:{p*1024} sc1", tag="so")
        stamp("h_so")
        def f_push():
            e.wait(vm="so")
            push_group(lambda: I(f"s_lshl_b32 s{S_t2}, 64, s{S_jj}"), (1, 2, 3))
        side[(0, 14)] = f_push
        def f_o():
            I(f"s_xor_b32 s{S_THR}, s{S_jj}, 1"); I(f"s_lshl_b32 s{S_THR}, 64, s{S_THR}")
            poll_check(f"s{S_THR}"); SS[0].add(0, 999, a2_items((14, 15)))
    def f_c(): poll_check(0x44); SS[0].add(0, 999, a2_items((8, 9, 10, 11)))
    def f_h(): poll_check(0x88); SS[0].add(0, 999, a2_items((12, 13)))
    side.update({(8, -46): poll_load, (8, -28): f_c, (12, -42): poll_load, (12, -26): f_h, (16, -40): poll_load, (16, -24): f_o})
    I("s_setprio 1")
    stamp("h_p2")
    own = [16, 17] if att else []
    LD = OPT["ld"]
    oo = [16, 17, 14, 15]
    TM = 14 - OPT["tm"]
    seq = [(lam, tau) for lam in range(TM) for tau in range(4 if lam < LD else 3)]
    seq += [(lam, tau) for tau in range(3) for lam in list(range(TM, 14)) + oo]
    seq += [(lam, 3) for lam in list(range(LD, 14)) + oo]
    steps = []; rng = {}; seen_g = set(); seen_l = set(); first_ = set()
    for (lam, tau) in seq:
        g = lam >> 1
        for kh in range(2):
            a = H_BR + tau
            off = g * SLOT + (lam & 1) * 4096 + kh * 2048
            hi = off >> 16
            st = dict(rd=(a, off & 0xffff, 1024))
            pres = []
            if g not in seen_g:
                seen_g.add(g); t = U("t")
                if len(steps) >= 3: steps[-3]["post"] = lambda k, g=g, t=t: d_read(f"Lb{g}", t)
                else: pres.append(lambda g=g, t=t: d_read(f"Lb{g}", t))
                pres.append(lambda g=g, t=t: d_check(f"Lb{g}", t))
            if rng.get(a, 0) != hi:
                dlt = (hi - rng.get(a, 0)) * 65536; rng[a] = hi
                pres.append(lambda a=a, dlt=dlt: I(f"v_add_u32 v{a}, {dlt & 0xffffffff}, v{a}"))
            if pres: st["pre"] = lambda pres=pres: [f() for f in pres]
            at = 4 if (tau == 3 and lam >= 14) else tau
            zero = at not in first_; first_.add(at)
            d = vr(H_ACC + 16 * (at & 3 if at < 4 else 0), 16)
            st["mf"] = lambda W, st, lam=lam, kh=kh, d=d, zero=zero: [f"{M32} {d}, {W}, {a2r(lam,kh)}, {'0' if zero else d}"]
            if lam not in seen_l:
                seen_l.add(lam)
                if lam not in own: st["need"] = lambda lam=lam: e.wait(vm=f"a{lam}")
            st["id"] = (lam, tau, kh)
            steps.append(st)
    S = Stream(steps, OPT["D2"], H_RING)
    SS.append(S)
    idx = {st["id"]: k for k, st in enumerate(steps)}
    n = len(steps)
    for (lam, d), f in side.items(): S.aft(idx[(lam, 0, 0)] + d, f)
    def scale(tau, greg): return [lambda r=r: I(f"v_mul_f32 v{r}, v{greg}, v{r}") for r in range(H_ACC + 16 * tau, H_ACC + 16 * tau + 16)]
    def pack(tau):
        b = H_ACC + tau * 16
        return [lambda k=k: I(f"v_cvt_pk_bf16_f32 v{b+k}, v{b+2*k}, v{b+2*k+1}") for k in range(8)]
    def send(tau):
        def so():
            I(f"s_xor_b32 s{S_GIN}, s{S_q}, {3-tau}"); I(f"s_mul_i32 s{S_GIN}, s{S_GIN}, {3*8192}")
            I(f"s_add_u32 s{S_GIN}, s{S_GIN}, s{S_PB}"); I(f"s_add_u32 s{S_GIN}, s{S_GIN}, {tau*8192}")
        return [so] + pack(tau) + [cost(3, lambda j=j: I(f"buffer_store_dwordx4 {vr(H_ACC+tau*16+j*4)}, v{V_L16}, {srd(S_WS)}, s{S_GIN} offen offset:{j*1024} sc1", tag=f"p{tau}")) for j in range(2)]
    def pflag(tau):
        assert e.vmq[0][0].count(f"p{tau}") == 2
        stamp(f"h_pa{tau}")
        e.wait(vm=f"p{tau}")
        stamp(f"h_pb{tau}")
        I(f"s_xor_b32 s{S_t0}, s{S_MYIN}, {(3-tau)*2048}")
        I(f"s_mov_b32 s{S_KG+tau}, {1024<<tau}")
        I(f"s_atomic_or s{S_KG+tau}, s[{S_INB}:{S_INB+1}], s{S_t0}")
    def gget():
        I(f"s_lshl_b32 s{S_t0}, s{S_w}, 8"); I(f"s_add_u32 s{S_t0}, s{S_t0}, {GB_LDS}")
        I("v_and_b32 v1, 31, v0")
        I(f"v_lshl_add_u32 v1, v1, 3, s{S_t0}")
        I(f"ds_read_b64 {vr(H_G,2)}, v1", tag="gz")
    S.aft(idx[(12, 0, 0)] - 3, gget)
    S.aft(idx[(13, 0, 1)], lambda: e.wait(lg="gz"))
    for tau in range(4):
        k = idx[(13, tau, 1)]
        S.aft(k, lambda k=k, tau=tau: S.add(k + 3, idx[(oo[0], tau, 0)] if tau < 3 else n, scale(tau, H_G + 1)))
    late_flags = []
    for tau in range(3):
        k = idx[(oo[-1], tau, 1)]
        S.aft(k, lambda k=k, tau=tau: S.add(k + 3, k + 8, send(tau)))
        kf = k + 7 + OPT["pfd"]
        if kf <= n - OPT["D2"] - 14: S.aft(kf, lambda tau=tau: pflag(tau))
        else: late_flags.append(tau)
    S.aft(n - OPT["D2"], lambda: (e.wait(lg=f"w{n-1}"), [pflag(t) for t in late_flags[:-1]], poll_load()))
    S.aft(idx[(8, 0, 0)], lambda: stamp("h_late"))
    S.aft(idx[(oo[0], 0, 0)], lambda: stamp("h_o"))
    S.aft(idx[(LD, 3, 0)], lambda: stamp("h_own"))
    S.run(OPT["side2"])
    I(f"s_mul_i32 s{S_GIN}, s{S_q}, {3*8192}")
    I(f"s_add_u32 s{S_GIN}, s{S_GIN}, s{S_PB}")
    I("v_bfe_u32 v5, v0, 4, 1")
    I("v_lshlrev_b32 v6, 3, v5")
    I("v_xor_b32 v6, 8, v6")
    I("v_and_b32 v4, 15, v0")
    I("v_xor_b32 v4, v4, v6")
    I("v_lshl_add_u32 v4, v4, 1, v5")
    I("v_lshrrev_b32 v5, 5, v0")
    I("v_lshlrev_b32 v5, 4, v5")
    I("v_lshl_add_u32 v4, v4, 10, v5")
    I(f"s_lshl_b32 s{S_COL}, s{S_r}, 17"); I(f"s_lshl_b32 s{S_t1}, s{S_w}, 15"); I(f"s_add_u32 s{S_COL}, s{S_COL}, s{S_t1}")
    I(f"s_lshl_b32 s{S_t1}, s{S_jj}, 8"); I(f"s_add_u32 s{S_COL}, s{S_COL}, s{S_t1}")
    I(f"s_lshl_b32 s{S_t1}, s{S_q}, 6"); I(f"s_add_u32 s{S_COL}, s{S_COL}, s{S_t1}")
    for t in late_flags[-1:]: pflag(t)
    O = H_ACC + 48
    for k in range(8): I(f"v_pk_add_f32 {vr(O+2*k,2)}, {vr(O+2*k,2)}, {vr(H_ACC+2*k,2)}")
    for tau in range(3):
        poll_check(1024 << tau)
        stamp(f"h_r{tau}")
        if tau == 2: stamp("h_rcv")
        for j in range(2):
            I(f"buffer_load_dwordx4 {vr(24+tau*8+j*4)}, v{V_L16}, {srd(S_WS)}, s{S_GIN} offen offset:{j*1024} sc1", tag=f"r{tau}")
        if tau < 2: I(f"s_add_u32 s{S_GIN}, s{S_GIN}, 8192")
    for tau in range(3):
        e.wait(vm=f"r{tau}")
        b = H_ACC + 16
        for k in range(8):
            I(f"v_lshlrev_b32 v{b+2*k}, 16, v{24+tau*8+k}")
            I(f"v_and_b32 v{b+2*k+1}, 0xffff0000, v{24+tau*8+k}")
        for k in range(8): I(f"v_pk_add_f32 {vr(O+2*k,2)}, {vr(O+2*k,2)}, {vr(b+2*k,2)}")
    for k in range(8): I(f"v_pk_mul_f32 {vr(O+2*k,2)}, {vr(O+2*k,2)}, {vr(H_G,2)} op_sel_hi:[1,0]")
    stamp("h_sum")
    for f in pack(3): f()
    for j in range(2):
        I(f"v_permlane32_swap_b32 v{O+4*j}, v{O+4*j+2}")
        I(f"v_permlane32_swap_b32 v{O+4*j+1}, v{O+4*j+3}")
        I(f"buffer_store_dwordx4 {vr(O+4*j)}, v4, {srd(S_OUT)}, s{S_COL} offen offset:{j*32}")
    finish()

h_prog(False)
e.label("L_h_att")
h_prog(True)

e.label("L_C")
role[0] = "C"
reset()
C_WR = 4; C_XR = 12; C_EXW = 18; C_HA = 20; C_HX = (24, 56, 60); C_HACC = 28; C_ACC = 64
I("s_setprio 2")
if OPT["codepf"]:
    I("s_cmp_lt_u32 s2, 16")
    I("s_cbranch_scc0 L_nopf")
    e.cond_begin()
    I("s_getpc_b64 s[56:57]")
    e.label("L_pc")
    I(f"s_sub_u32 s56, s56, L_pc-{NAME}_kernel")
    I("s_subb_u32 s57, s57, 0")
    I(f"s_lshr_b32 s{S_t0}, s2, 3")
    I(f"s_lshl_b32 s{S_t0}, s{S_t0}, 15")
    I(f"v_lshlrev_b32 v2, 7, v0")
    I(f"v_lshl_add_u32 v2, v1, 13, v2")
    I(f"v_add_u32 v2, s{S_t0}, v2")
    I(f"v_min_u32 v2, L_end-{NAME}_kernel, v2")
    I(f"global_load_dword v23, v2, s[56:57]")
    e.cond_end()
    e.label("L_nopf")
late_scalars()
I("v_lshlrev_b32 v2, 2, v0")
I(f"v_add_u32 v2, {EV_LDS}, v2")
I("v_mov_b32 v1, 1")
I("ds_write_b32 v2, v1")
I("v_mov_b32 v1, 0")
I("ds_write_b32 v2, v1 offset:256")
I("v_lshrrev_b32 v32, 4, v0")
I("v_and_b32 v33, 15, v0")
I("v_bfe_u32 v34, v0, 2, 2")
I("v_and_b32 v35, 3, v0")
after_karg()
common_ptrs()
I(f"s_cmp_eq_u32 s{S_w}, 0")
I("s_cbranch_scc0 L_c_noinit")
e.cond_begin()
for k in range(4):
    I(f"s_mov_b32 s{S_KG+k}, 0")
    I(f"s_add_u32 s{S_t0}, s{S_MYIN}, {k*128}")
    I(f"s_atomic_swap s{S_KG+k}, s[{S_INB}:{S_INB+1}], s{S_t0} glc")
e.cond_end()
e.label("L_c_noinit")
I(f"s_cmp_ge_u32 s{S_jj}, 2")
I("s_cbranch_scc1 L_c_att")

def c_prog(att):
    reset()
    UL = units(att)
    slot_of = {un: phys(att, k) for k, un in enumerate(UL)}
    subs = [un for un in UL if un[0] == "g"]
    if att:
        for p in range(2):
            I(f"v_xor_b32 v38, {8 if p == 0 else 0}, v33")
            I("v_and_b32 v39, 8, v38")
            I("v_add_u32 v39, v39, v38")
            I("v_lshlrev_b32 v39, 7, v39")
            I("v_lshrrev_b32 v38, 1, v38")
            I("v_xor_b32 v38, v38, v32")
            I("v_lshl_add_u32 v39, v38, 4, v39")
            I(f"v_add_u32 v39, s{S_m0b}, v39")
            I(f"v_add_u32 v{C_XR+2*p+p}, {p*1024}, v39")
            I(f"v_xor_b32 v{C_XR+2*p+1-p}, 64, v{C_XR+2*p+p}")
        I("v_lshl_add_u32 v38, v32, 3, v34")
        I("v_lshlrev_b32 v38, 7, v38")
        I("v_lshl_add_u32 v38, v35, 3, v38")
        I("v_lshrrev_b32 v39, 1, v34")
        I("v_and_b32 v40, 1, v32")
        I("v_lshl_or_b32 v39, v40, 1, v39")
        I(f"v_xor_b32 v41, s{S_w}, v39")
        for t in range(4):
            I(f"v_xor_b32 v40, {t}, v41")
            I(f"v_lshl_add_u32 v{C_WR+t}, v40, 5, v38")
            I(f"v_add_u32 v{C_WR+4+t}, 0x10000, v{C_WR+t}")
        I("v_lshrrev_b32 v38, 1, v33")
        I("v_xor_b32 v38, v38, v32")
        I("v_lshlrev_b32 v38, 4, v38")
        I("v_lshl_add_u32 v38, v33, 7, v38")
        I(f"v_add_u32 v{C_HA}, {HALO_LDS}, v38")
        I(f"v_xor_b32 v{C_HA+1}, 64, v{C_HA}")
        I(f"s_mul_i32 s{S_t0}, s{S_w}, 5120")
        I(f"s_add_u32 s{S_t0}, s{S_t0}, {EXCH_LDS+4096}")
        I(f"v_add_u32 v{C_EXW}, s{S_t0}, v{V_L16}")
        I("v_add_u32 v19, 1, v35")
        I("v_bfe_u32 v19, v19, 1, 1")
        I("v_mul_u32_u24 v19, 24, v19")
    else:
        I("v_and_b32 v40, 1, v32")
        I("v_lshlrev_b32 v38, 3, v40")
        I("v_xor_b32 v38, 8, v38")
        I("v_xor_b32 v38, v38, v33")
        I("v_and_b32 v39, 8, v38")
        I("v_add_u32 v39, v39, v38")
        I("v_lshl_add_u32 v39, v40, 3, v39")
        I("v_lshlrev_b32 v39, 7, v39")
        I("v_lshrrev_b32 v38, 1, v38")
        I("v_lshlrev_b32 v41, 2, v40")
        I("v_xor_b32 v38, v38, v41")
        I("v_lshrrev_b32 v41, 1, v32")
        I("v_xor_b32 v38, v38, v41")
        I("v_lshl_add_u32 v39, v38, 4, v39")
        I(f"v_add_u32 v{C_XR}, s{S_m0b}, v39")
        for k in range(1, 4): I(f"v_xor_b32 v{C_XR+k}, {32*k}, v{C_XR}")
        I("v_lshl_add_u32 v38, v41, 3, v34")
        I("v_lshlrev_b32 v38, 7, v38")
        I("v_lshl_add_u32 v38, v35, 3, v38")
        I("v_lshl_add_u32 v38, v40, 5, v38")
        I("v_lshrrev_b32 v39, 1, v34")
        I(f"v_lshl_add_u32 v{C_WR}, v39, 6, v38")
        I(f"v_xor_b32 v{C_WR+1}, 64, v{C_WR}")
        for t in range(2): I(f"v_add_u32 v{C_WR+4+t}, 0x10000, v{C_WR+t}")
    if OPT["spf"]:
        P = 3072 if att else 3584; wp = 6 if att else 12
        I(f"s_lshl_b32 s{S_t0}, s{S_r}, 2"); I(f"s_add_u32 s{S_t0}, s{S_t0}, s{S_w}")
        I(f"s_mul_i32 s{S_t1}, s{S_t0}, {8*P}")
        I(f"s_mul_i32 s{S_t2}, s{S_q}, {256 if att else 896}"); I(f"s_add_u32 s{S_t1}, s{S_t1}, s{S_t2}")
        I(f"s_lshl_b32 s{S_t2}, s{S_j1}, 7"); I(f"s_add_u32 s{S_t2}, s{S_t2}, s{S_t1}")
        I(f"s_add_u32 s56, s{wp}, s{S_t2}"); I(f"s_addc_u32 s57, s{wp+1}, 0")
        for k in range(8): I(f"s_load_dword s{S_EV}, s[56:57], {k*P + (2048 if att else 512)}")
        if not att:
            I(f"s_mul_i32 s{S_t2}, s{S_j1}, {4*P}"); I(f"s_add_u32 s{S_t2}, s{S_t2}, s{S_t1}")
            I(f"s_add_u32 s56, s{wp}, s{S_t2}"); I(f"s_addc_u32 s57, s{wp+1}, 0")
            for k in range(4): I(f"s_load_dword s{S_EV}, s[56:57], {k*P + 768}")
        I(f"s_lshl_b32 s{S_t0}, s{S_t0}, 2"); I(f"s_add_u32 s{S_t0}, s{S_t0}, s{S_jj}")
        I(f"s_mul_i32 s{S_t1}, s{S_t0}, 1792"); I(f"s_mul_i32 s{S_t2}, s{S_q}, {448*1024}"); I(f"s_add_u32 s{S_t1}, s{S_t1}, s{S_t2}")
        I(f"s_add_u32 s56, s14, s{S_t1}"); I("s_addc_u32 s57, s15, 0")
        for k in range(14): I(f"s_load_dword s{S_EV}, s[56:57], {k*128}")
        I(f"s_lshl_b32 s{S_t1}, s{S_t0}, 9"); I(f"s_lshl_b32 s{S_t2}, s{S_q}, 17"); I(f"s_add_u32 s{S_t1}, s{S_t1}, s{S_t2}")
        I(f"s_add_u32 s56, s8, s{S_t1}"); I("s_addc_u32 s57, s9, 0")
        for k in range(4): I(f"s_load_dword s{S_EV}, s[56:57], {k*128}")
        I("s_waitcnt lgkmcnt(0)")
    l = U("ci")
    I(f"s_cmp_eq_u32 s{S_w}, 0"); I(f"s_cbranch_scc0 {l}")
    e.cond_begin()
    I(f"s_mov_b32 s{S_t1}, 1")
    I("s_waitcnt lgkmcnt(0)")
    I(f"s_atomic_add s{S_t1}, s[{S_DBG}:{S_DBG+1}], 0")
    e.cond_end(); e.label(l)
    stamp("c_go")
    def xfr(p, s): return ar((p * 16 + s) * 4)
    def xf32(s16): return ar(s16 * 4)
    def acc(c, T, p=0):
        base = C_ACC + 32 * (c & 1)
        return base + (T * 2 + p) * 4 if att else base + T * 16
    def xread(dst, areg, slot, tmp, k):
        base = slot * SLOT
        if base >= 65536:
            I(f"v_add_u32 v{tmp}, {base & ~0xffff}, v{areg}"); areg = tmp
        I(f"ds_read_b128 {dst}, v{areg} offset:{base & 0xffff}", tag=f"w{k}")
    steps = []; nh = [0]
    for i, un in enumerate(subs):
        _, c, u = un; slot = slot_of[un]
        for j in range(16):
            h = j >> 3
            if att:
                ks = (j >> 1) & 3; T = 2 * h + (j & 1); s = 4 * u + ks; zero = (u == 0 and ks == 0)
                halo = T == 0 and c != 1
                st = dict(rd=(C_WR + (4 if slot >= 4 else 0) + T, (slot & 3) * SLOT + ks * 4096, 512))
                def mf(W, st, s=s, T=T, zero=zero, c=c, halo=halo):
                    out = []
                    for p in range(2):
                        a, b = (xfr(p, s), W) if c == 2 else (W, xfr(p, s))
                        d = vr(acc(c, T, p))
                        out.append(f"{MF} {d}, {a}, {b}, {'0' if zero else d}")
                    if halo:
                        a, b = (vr(st["hreg"]), W) if c == 2 else (W, vr(st["hreg"]))
                        out.append(f"{MF} {vr(C_HACC)}, {a}, {b}, {'0' if zero else vr(C_HACC)}")
                    return out
                def post(k, st=st, s=s, halo=halo, j=j, c=c, u=u, ks=ks):
                    if c == 0 and j < 8 and j % 2 == 0:
                        for p in range(2): xread(xfr(p, s), C_XR + 2 * p + (ks & 1), slot_of[("x", u, ks >> 1)], 1 + p, k)
                    if halo:
                        st["hreg"] = C_HX[nh[0] % 3]; nh[0] += 1
                        I(f"ds_read_b128 {vr(st['hreg'])}, v{C_HA+(s&1)} offset:{(s>>1)*2048}", tag=f"w{k}")
            else:
                kk = j & 7
                if c < 3: s16 = 8 * u + kk; ta = h; zero = (u == 0 and kk == 0)
                else: s16 = 8 * (u + 2 * h) + kk; ta = 0; zero = (u == 0 and j == 0)
                st = dict(rd=(C_WR + (4 if slot >= 4 else 0) + h, (slot & 3) * SLOT + kk * 2048, 512))
                d = vr(acc(c, ta), 16)
                def mf(W, st, s16=s16, d=d, zero=zero): return [f"{M32} {d}, {W}, {xf32(s16)}, {'0' if zero else d}"]
                def post(k, s16=s16, j=j, c=c, u=u, kk=kk):
                    if c == 0 and j < 8: xread(xf32(s16), C_XR + (kk & 3), slot_of[("x", u, kk >> 2)], 1 + (kk & 1), k)
            st["mf"] = mf; st["post"] = post
            if j == 0:
                def pre(i=i):
                    stamp(f"t{i}")
                    if att and i in (8, 9):
                        assert e.lgq[0][0].count(f"exw{i-8}") == (5 if i == 8 else 4)
                        e.wait(lg=f"exw{i-8}")
                    if not att and i - OPT["ackb"] in (0, 1):
                        assert e.vmq[0][0].count(f"st{i-OPT['ackb']}") == 4
                        e.wait(vm=f"st{i-OPT['ackb']}")
                    if i < (10 if att else 14): I("s_barrier")
                    stamp(f"s{i}")
                    if att and i == 8:
                        for t in range(8): I(f"v_xor_b32 v{C_WR+t}, v19, v{C_WR+t}")
                st["pre"] = pre
            steps.append(st)
    if att: S = Stream(steps, OPT["D"], [32, 36, 40, 44, 48, 52])
    else: S = Stream(steps, OPT["DF"], [32, 36, 40, 44, 48, 52, 56, 60])
    DD = S.D
    def packn(a, n_): return [lambda k=k: I(f"v_cvt_pk_bf16_f32 v{a+k}, v{a+2*k}, v{a+2*k+1}") for k in range(n_)]
    def epi(c, h):
        F = []
        if att:
            for t in (2 * h, 2 * h + 1):
                a = acc(c, t, 0)
                F += packn(a, 4)
                def wr(t=t, a=a):
                    I(f"v_xor_b32 v1, {t*1024}, v{C_EXW}")
                    if c == 1: I(f"v_add_u32 v1, {(QSLOT*SLOT - EXCH_LDS - 4096) & 0xffffffff}, v1")
                    I(f"ds_write_b128 v1, {vr(a)}", tag=f"exw{c}")
                F.append(wr)
            if h == 0 and c != 1:
                def hw():
                    I(f"v_cvt_pk_bf16_f32 v{C_HACC}, v{C_HACC}, v{C_HACC+1}")
                    I(f"v_cvt_pk_bf16_f32 v{C_HACC+1}, v{C_HACC+2}, v{C_HACC+3}")
                    I(f"s_add_u32 s{S_t0}, s{S_m0b}, 4096")
                    I(f"v_subrev_u32 v1, s{S_t0}, v{C_EXW}")
                    I(f"ds_write2_b64 v1, {vr(C_HACC,2)}, {vr(C_HACC,2)} offset0:0 offset1:1", tag=f"exw{c}")
                F.append(hw)
        else:
            a = acc(c, h)
            F += packn(a, 8)
            def so():
                I(f"s_lshr_b32 s{S_GIN}, s{S_J32}, {2 if c < 3 else 3}")
                I(f"s_add_u32 s{S_GIN}, s{S_GIN}, s{S_A2}"); I(f"s_add_u32 s{S_GIN}, s{S_GIN}, {(4*c+h)*8192}")
            F.append(so)
            for p in range(2):
                F += [lambda k=k: I(f"v_pk_max_i16 v{k}, v{k}, 0") for k in range(a + 4 * p, a + 4 * p + 4)]
                F.append(cost(9, lambda p=p: I(f"buffer_store_dwordx4 {vr(a+4*p)}, v{V_L16}, {srd(S_WS)}, s{S_GIN} offen offset:{p*1024} sc1", tag=f"st{c}")))
        return F
    n = len(steps)
    for c, i, reuse in ((0, 6, 8), (1, 7, 12), (2, 11, 99)):
        for h in range(2):
            k = 16 * i + 8 * h + 7
            if k == n - 1: continue
            dl = min(16 * reuse + (8 * h if reuse == 8 else 0), n)
            if att and c < 2: dl = 16 * (8 + c) - DD - 3
            S.aft(k, lambda k=k, c=c, h=h, dl=dl: S.add(max(k + (2 if att else 4), 16 * 7 - DD + 1 if att else 0), dl, epi(c, h)))
    S.run(OPT["side"] if att else OPT["sidef"])
    stamp("c_end")
    if not att: I("s_barrier")
    for f in (epi(2, 1) if att else epi(3, 0)): f()
    if att:
        e.wait(lg="exw2")
        I("s_barrier")
    if OPT["cprio"] != 2: I(f"s_setprio {OPT['cprio']}")
    b2_voffs(4)
    if att: I("s_barrier")
    rest = [2, 3, 4, 5, 6, 8, 7] if att else [3, 4, 5, 6, 8, 7]
    b2_unit(rest.pop(0), 4); b2_unit(rest.pop(0), 4)
    stamp("c_g0")
    I("v_lshrrev_b32 v9, 4, v0")
    if att:
        I("v_lshlrev_b32 v8, 4, v9")
    else:
        I("v_lshrrev_b32 v8, 5, v0"); I("v_lshlrev_b32 v8, 4, v8")
        I("v_xor_b32 v9, v9, v0"); I("v_and_b32 v9, 1, v9")
        I("v_cmp_eq_u32 vcc, 0, v9")
    NG = 16 if att else 32; per = NG // 4
    RB = [32 + 4 * k for k in range(8)]
    def gread(s_):
        if s_ % per == 0:
            I(f"s_add_u32 s{S_t0}, s{S_rot}, {s_//per}"); I(f"s_and_b32 s{S_t0}, s{S_t0}, 3"); I(f"s_lshl_b32 s{S_t0}, s{S_t0}, 8")
            I(f"s_add_u32 s{S_t0}, s{S_t0}, {GW_LDS}")
            I(f"v_add_u32 v10, s{S_t0}, v8")
            if not att:
                I(f"v_mov_b32 v11, {ZERO_LDS}"); I("v_cndmask_b32 v10, v11, v10, vcc")
        I(f"ds_read_b128 {vr(RB[s_%8])}, v10 offset:{(s_%per)*(64 if att else 32)}", tag=f"g{s_}")
    for s_ in range(6): gread(s_)
    for s_ in range(NG):
        e.wait(lg=f"g{s_}")
        if att:
            for p in range(2): I(f"{MF} {vr(64+4*p)}, {vr(RB[s_%8])}, {xfr(p,s_)}, {'0' if s_ == 0 else vr(64+4*p)}")
        else:
            I(f"{MF} {vr(64)}, {vr(RB[s_%8])}, {xf32(s_)}, {'0' if s_ == 0 else vr(64)}")
        if s_ + 6 < NG: gread(s_ + 6)
        if s_ == NG // 2: b2_unit(rest.pop(0), 4)
    if not att:
        assert e.vmq[0][0].count("st2") == 4
        e.wait(vm="st3")
        push_group(lambda: (I(f"s_lshl_b32 s{S_t2}, s{S_jj}, 2"), I(f"s_lshl_b32 s{S_t2}, 12, s{S_t2}")), (0, 1, 2, 3))
    z1 = 68 if att else 65; G = 72
    T = [f"v_cvt_pk_bf16_f32 v1, v64, v{z1}", f"v_lshlrev_b32 v{G}, 16, v1", f"v_and_b32 v{G+2}, 0xffff0000, v1"]
    T += [f"v_mul_f32 v{G+2*p}, {f2u(-1.4426950408889634)}, v{G+2*p}" for p in range(2)]
    T += [f"v_exp_f32 v{G+2*p}, v{G+2*p}" for p in range(2)]
    T += [f"v_add_f32 v{G+2*p}, 1.0, v{G+2*p}" for p in range(2)]
    T += [f"v_rcp_f32 v{G+2*p}, v{G+2*p}" for p in range(2)]
    T += [f"v_cvt_pk_bf16_f32 v1, v{G}, v{G+2}", f"v_lshlrev_b32 v{G}, 16, v1", f"v_and_b32 v{G+2}, 0xffff0000, v1"]
    T += [f"v_sub_f32 v{G+1+2*p}, 1.0, v{G+2*p}" for p in range(2)]
    T += [f"v_cvt_pk_bf16_f32 v1, v{G+1}, v{G+3}", f"v_lshlrev_b32 v{G+1}, 16, v1", f"v_and_b32 v{G+3}, 0xffff0000, v1"]
    T += [f"v_max_f32 v{G+2*p}, {f2u(2.0**-60)}, v{G+2*p}" for p in range(2)]
    T += [f"v_rcp_f32 v{G+4+p}, v{G+2*p}" for p in range(2)]
    T += [f"v_mul_f32 v{G+1+2*p}, v{G+4+p}, v{G+1+2*p}" for p in range(2)]
    for t in T: I(t)
    I(f"s_lshl_b32 s{S_t0}, s{S_w}, 8"); I(f"s_add_u32 s{S_t0}, s{S_t0}, {GB_LDS}")
    I(f"v_lshl_add_u32 v1, v0, 3, s{S_t0}")
    I("s_mov_b64 exec, 0xffff")
    I(f"ds_write_b64 v1, {vr(G,2)}", tag="gz")
    I(f"ds_write_b64 v1, {vr(G+2,2)} offset:128", tag="gz")
    I("s_mov_b64 exec, -1")
    e.wait(lg="gz")
    stamp("c_g1")
    for g in rest:
        throttle(); b2_unit(g, 4)
    if OPT["dummy"]:
        I(f"s_lshl_b32 s{S_t0}, s2, 2"); I(f"s_add_u32 s{S_t0}, s{S_t0}, s{S_w}"); I(f"s_mul_i32 s{S_t0}, s{S_t0}, 9216"); I(f"s_add_u32 s{S_t0}, s{S_t0}, {20<<20}")
        for k in range(9):
            I(f"buffer_store_dwordx4 {vr(64)}, v{V_L16}, {srd(S_WS)}, s{S_t0 if OPT['dummy'] == 1 else S_WS+2} offen")
            I(f"s_add_u32 s{S_t0}, s{S_t0}, 1024")
    I("s_waitcnt vmcnt(0) lgkmcnt(0)")
    finish()

c_prog(False)
e.label("L_c_att")
c_prog(True)

e.label("L_end")
I("s_endpgm")
e.raw('.section .rodata,"a"')
e.raw(".p2align 6")
e.raw(f".amdhsa_kernel {NAME}_kernel")
e.raw("  .amdhsa_next_free_vgpr 256")
e.raw("  .amdhsa_next_free_sgpr 102")
e.raw("  .amdhsa_accum_offset 128")
e.raw("  .amdhsa_group_segment_fixed_size 0")
e.raw("  .amdhsa_kernarg_size 80")
e.raw("  .amdhsa_user_sgpr_count 2")
e.raw("  .amdhsa_user_sgpr_kernarg_segment_ptr 1")
e.raw("  .amdhsa_system_sgpr_workgroup_id_x 1")
e.raw(".end_amdhsa_kernel")
sys.stdout.write(e.text())
sys.stderr.write(f"instructions {e.nins} nop-states {e.nops}\n")
```

```python
import sys, struct
from emit import Em

NAME = "gated_mix__sliding_local_dilated__dense_activation_relu__prompt"
OPT = dict(padt=6000, padk=-1, padr=0, stamp=0, D=4, DF=5, D2=5, codepf=1, spin=400000, lround=0, side=2, sidef=2, side2=3,
           ld=6, thr=5, pre=4, pfd=18, ackb=10, cprio=2, dummy=0, sch=1, tm=0, qb=0, rotq=1, spf=1)
CST = ["s0", "s2", "s4", "s6", "s8", "s10", "s12", "c_end"]
HST = ["h_b0", "h_b7", "h_p2", "h_late", "h_o", "h_own", "h_rcv", "h_sum"]
for a in sys.argv[1:]:
    k, v = a.split("=")
    if k == "cst": CST = v.split(",")
    elif k == "hst": HST = v.split(",")
    else:
        assert k in OPT, k
        OPT[k] = int(v)
STAMP = OPT["stamp"]
def f2u(x): return struct.unpack("<I", struct.pack("<f", x))[0]

PART_OFF = 10 << 20
INB_OFF = 32 << 20
STAMP_OFF = 33 << 20
WS_BYTES = 36 << 20
SLOT = 16384
HALO_LDS = 7 * SLOT
EXCH_LDS = 8 * SLOT
EV_LDS = EXCH_LDS + 20480
ZERO_LDS = EV_LDS + 256
GW_LDS = EV_LDS + 1024
GB_LDS = EV_LDS + 2048
NEG = f2u(-1e30)

e = Em()
I = e.I
def vr(b, n=4): return f"v[{b}:{b+n-1}]"
def ar(b, n=4): return f"a[{b}:{b+n-1}]"
def srd(b): return f"s[{b}:{b+3}]"
MF = "v_mfma_f32_16x16x32_bf16"
M32 = "v_mfma_f32_32x32x16_bf16"

S_X, S_W, S_WS, S_OUT, S_W2, S_WO, S_GW = 24, 28, 32, 36, 40, 44, 48
S_INB = 52; S_DBG = 54
S_w, S_r, S_jj, S_rot, S_q, S_m0b, S_j1 = 60, 61, 62, 63, 64, 65, 66
S_t0, S_t1, S_t2 = 3, 67, 68
S_BUD = 69; S_EV = 70; S_SOFF = 71
S_POLL = 74; S_MYIN = 75; S_CEXP = 76; S_THR = 77; S_W4 = 79
S_KG = 80; S_WK = 84
S_COL = 88; S_A2 = 89; S_B2 = 90; S_BO = 91; S_PB = 92; S_J32 = 93; S_GIN = 94; S_P = 95
S_STAMP = 4
EVD = {}
def evd(name):
    if name not in EVD: EVD[name] = len(EVD)
    assert EVD[name] < 16
    return EVD[name] * 16
role = ["H"]
def stamp(name):
    L = CST if role[0] == "C" else HST
    if name == "end": idx = 8
    elif name in L: idx = L.index(name)
    else: return
    if STAMP == 3: I(f"s_memrealtime s[{S_STAMP+2*idx}:{S_STAMP+2*idx+1}]")
    elif STAMP: I(f"s_memtime s[{S_STAMP+2*idx}:{S_STAMP+2*idx+1}]")
uid = [0]
def U(p):
    uid[0] += 1
    return f"L_{p}{uid[0]}"
def reset():
    e.vmq = [[[], 0]]; e.lgq = [[[], 0]]; e.hist = []
V_L16 = 16; V_EVW = 17; V_CHK = 3
SLOW = []
def flush_slow():
    for l in SLOW: e.raw(l)
    SLOW.clear()
def spin_tail(lp, ok):
    return [f"    s_sub_u32 s{S_BUD}, s{S_BUD}, 1", f"    s_cbranch_scc0 {lp}", f"    s_mov_b32 s{S_BUD}, 0", f"    s_branch {ok}"]
def dsig(name):
    I(f"s_add_u32 m0, s{S_W4}, {EV_LDS + evd(name)}")
    I("s_mov_b64 exec, 1")
    I(f"buffer_load_dword v{V_L16}, {srd(S_WO)}, s{S_WO+2} offen lds", tag="dsig")
    I("s_mov_b64 exec, -1")
def d_read(name, tag): I(f"ds_read_b32 v{V_CHK}, v{V_EVW} offset:{evd(name)}", tag=tag)
def d_check(name, tag):
    ok = U("ok"); lp = U("sp")
    e.wait(lg=tag)
    I(f"v_cmp_ne_u32 vcc, 0, v{V_CHK}")
    I(f"s_cbranch_vccnz {lp}")
    e.label(ok)
    SLOW.extend([f"{lp}:", f"    ds_read_b32 v{V_CHK}, v{V_EVW} offset:{evd(name)}", "    s_waitcnt lgkmcnt(0)", f"    v_cmp_ne_u32 vcc, 0, v{V_CHK}",
                 f"    s_cbranch_vccz {ok}", "    s_sleep 1"] + spin_tail(lp, ok))
def throttle():
    n = OPT["thr"]
    I(f"s_waitcnt vmcnt({n})")
    for q in e.vmq: q[1] = max(q[1], len(q[0]) - n)
def poll_load():
    I(f"s_load_dword s{S_POLL}, s[{S_INB}:{S_INB+1}], s{S_MYIN} glc")
def poll_check(mask):
    ok = U("pk"); lp = U("pl")
    I(f"s_andn2_b32 s{S_EV}, {mask}, s{S_POLL}")
    I(f"s_cbranch_scc1 {lp}")
    e.label(ok)
    SLOW.extend([f"{lp}:", "    s_waitcnt lgkmcnt(0)", f"    s_andn2_b32 s{S_EV}, {mask}, s{S_POLL}", f"    s_cbranch_scc0 {ok}",
                 f"    s_load_dword s{S_POLL}, s[{S_INB}:{S_INB+1}], s{S_MYIN} glc"] + spin_tail(lp, ok))
def push_group(bit_fn, ds):
    bit_fn()
    for d in ds:
        I(f"s_xor_b32 s{S_t0}, s{S_MYIN}, {d*512}")
        I(f"s_atomic_or s{S_t2}, s[{S_INB}:{S_INB+1}], s{S_t0}")
def ownbit(b):
    def f():
        I(f"s_lshl_b32 s{S_t2}, s{S_jj}, 2"); I(f"s_lshl_b32 s{S_t2}, {1<<b}, s{S_t2}")
    return f
def mk_srd(b, p, nbytes):
    I(f"s_mov_b32 s{b}, s{p}")
    I(f"s_and_b32 s{b+1}, s{p+1}, 0xffff")
    I(f"s_mov_b32 s{b+2}, {nbytes}")
    I(f"s_mov_b32 s{b+3}, 0x20000")
def b2_voffs(dst):
    I("v_lshrrev_b32 v1, 3, v0")
    I("v_bfe_u32 v2, v0, 4, 1")
    I("v_lshlrev_b32 v2, 2, v2")
    I(f"v_and_b32 v{dst}, 7, v0")
    I(f"v_xor_b32 v{dst}, v{dst}, v2")
    I(f"v_lshlrev_b32 v{dst}, 4, v{dst}")
    I(f"v_lshl_add_u32 v{dst}, v1, 10, v{dst}")
    for i in range(1, 4): I(f"v_add_u32 v{dst+i}, {i*7168}, v{dst}")
def late_scalars():
    I(f"s_lshl_b32 s{S_W4}, s{S_w}, 2")
    I(f"s_mov_b32 s{S_BUD}, {OPT['spin']}")
    I(f"s_and_b32 s{S_j1}, s{S_jj}, 1")
    I(f"s_lshl_b32 s{S_t0}, s{S_jj}, 8")
    I(f"s_lshr_b32 s{S_t1}, s{S_w}, 1")
    I(f"s_lshl_b32 s{S_t1}, s{S_t1}, 7")
    I(f"s_add_u32 s{S_t0}, s{S_t0}, s{S_t1}")
    I(f"s_and_b32 s{S_t1}, s{S_w}, 1")
    I(f"s_lshl_b32 s{S_t1}, s{S_t1}, 15")
    I(f"s_add_u32 s{S_t0}, s{S_t0}, s{S_t1}")
    I(f"s_mul_i32 s{S_B2}, s{S_q}, {14*32768}")
    I(f"s_add_u32 s{S_B2}, s{S_B2}, s{S_t0}")
    I(f"s_lshl_b32 s{S_BO}, s{S_q}, 17")
    I(f"s_add_u32 s{S_BO}, s{S_BO}, s{S_t0}")
    I(f"s_lshl_b32 s{S_J32}, s{S_j1}, 16")
    I(f"s_lshl_b32 s{S_t0}, s{S_r}, 2")
    I(f"s_add_u32 s{S_t0}, s{S_t0}, s{S_q}")
    I(f"s_mul_i32 s{S_A2}, s{S_t0}, {18*8192}")
    I(f"s_lshl_b32 s{S_t1}, s{S_w}, 11")
    I(f"s_add_u32 s{S_A2}, s{S_A2}, s{S_t1}")
    I(f"s_lshl_b32 s{S_MYIN}, s{S_t0}, 2")
    I(f"s_add_u32 s{S_MYIN}, s{S_MYIN}, s{S_jj}")
    I(f"s_lshl_b32 s{S_MYIN}, s{S_MYIN}, 2")
    I(f"s_add_u32 s{S_MYIN}, s{S_MYIN}, s{S_w}")
    I(f"s_lshl_b32 s{S_MYIN}, s{S_MYIN}, 7")
    I(f"v_lshlrev_b32 v{V_L16}, 4, v0")
    I(f"v_and_b32 v{V_EVW}, 3, v0")
    I(f"v_lshlrev_b32 v{V_EVW}, 2, v{V_EVW}")
    I(f"v_add_u32 v{V_EVW}, {EV_LDS}, v{V_EVW}")
def common_ptrs():
    I(f"s_add_u32 s{S_INB}, s22, {INB_OFF}")
    I(f"s_addc_u32 s{S_INB+1}, s23, 0")
    I(f"s_lshl_b32 s{S_t0}, s{S_r}, 4")
    I(f"s_add_u32 s{S_DBG}, s20, s{S_t0}")
    I(f"s_addc_u32 s{S_DBG+1}, s21, 0")
    mk_srd(S_WS, 22, WS_BYTES)
    mk_srd(S_W2, 14, 1792 * 1024)
    mk_srd(S_WO, 8, 512 * 1024)
def dma4(voff, srdb, tag):
    for i in range(4):
        I(f"buffer_load_dwordx4 v{voff+i}, {srd(srdb)}, s{S_SOFF} offen offset:{i*1024} lds", tag=tag)
def b2_unit(g, voff):
    I(f"s_add_u32 m0, s{S_m0b}, {g*SLOT}")
    if g < 7: I(f"s_add_u32 s{S_SOFF}, s{S_B2}, {g*65536}")
    else:
        I(f"s_xor_b32 s{S_SOFF}, s{S_J32}, {((g-7)^1)*65536}")
        I(f"s_add_u32 s{S_SOFF}, s{S_SOFF}, s{S_BO}")
    dma4(voff, S_W2 if g < 7 else S_WO, f"b{g}")
    dsig(f"Lb{g}")
def a2_soff(lam, dst):
    if lam < 14: I(f"s_add_u32 s{dst}, s{S_A2}, {lam*8192}")
    else:
        I(f"s_lshr_b32 s{dst}, s{S_J32}, 2"); I(f"s_xor_b32 s{dst}, s{dst}, {((lam-14)^2)*8192}")
        I(f"s_add_u32 s{dst}, s{dst}, s{S_A2}"); I(f"s_add_u32 s{dst}, s{dst}, {14*8192}")
def after_karg():
    I("s_waitcnt lgkmcnt(0)")
    if STAMP:
        I("s_memtime s[100:101]")
        I("s_mov_b32 s72, s96")
        I("s_mov_b32 s73, s98")
def finish():
    if STAMP:
        I("s_waitcnt vmcnt(0)")
        stamp("end")
        I("s_memrealtime s[22:23]")
        I("s_waitcnt lgkmcnt(0)")
        I(f"s_lshl_b32 s{S_t0}, s2, 3")
        I(f"s_add_u32 s{S_t0}, s{S_t0}, s{S_w}")
        if role[0] == "H": I(f"s_add_u32 s{S_t0}, s{S_t0}, 4")
        I(f"s_lshl_b32 s{S_t0}, s{S_t0}, 6")
        I(f"s_add_u32 s{S_t0}, s{S_t0}, {STAMP_OFF}")
        I(f"v_mov_b32 v2, s{S_t0}")
        for k in range(9): I(f"v_mov_b32 v{32+k}, s{S_STAMP+2*k}")
        I("v_mov_b32 v41, s73"); I("v_mov_b32 v42, s22"); I("v_mov_b32 v43, s72"); I("v_mov_b32 v44, s100")
        I(f"v_mov_b32 v45, s{S_BUD}"); I("v_mov_b32 v46, 0")
        I("s_mov_b64 exec, 1")
        for k in range(4): I(f"buffer_store_dwordx4 {vr(32+4*k)}, v2, {srd(S_WS)}, 0 offen offset:{16*k}")
    if STAMP >= 3:
        if OPT["padk"] >= 0 and (OPT["padr"] == 1) == (role[0] == "H"):
            I(f"s_sub_u32 s24, s{S_STAMP+2*OPT['padk']}, s{73 if STAMP == 3 else 72}")
            if STAMP == 4: I("s_lshr_b32 s24, s24, 4")
        else: I("s_mov_b32 s24, 0")
        I(f"s_add_u32 s24, s24, {OPT['padt']}")
        l = U("pad")
        e.label(l)
        I("s_memrealtime s[26:27]"); I("s_waitcnt lgkmcnt(0)"); I("s_sub_u32 s25, s26, s73"); I("s_cmp_lt_u32 s25, s24"); I(f"s_cbranch_scc1 {l}")
    I("s_endpgm")
    flush_slow()
def units(att):
    L = []
    for u in range(4): L += [("x", u, 0), ("x", u, 1), ("g", 0, u), ("g", 1, u)]
    L += [("g", 2, u) for u in range(4)]
    if not att: L += [("g", 3, 0), ("g", 3, 1)]
    return L
def phys(att, k):
    if not att: return (k - 14) % 9
    i = (k - 13) % 8
    return 8 if i == 7 else i
QSLOT = phys(True, 13)

class Stream:
    def __init__(self, steps, depth, ring):
        self.steps = steps; self.side = []; self.after = {}; self.D = depth; self.ring = ring
        assert len(ring) >= depth + 2
    def add(self, ready, deadline, fns):
        for f in fns: self.side.append([ready, deadline, f])
    def aft(self, k, f):
        prev = self.after.get(k)
        self.after[k] = (lambda: (prev(), f())) if prev else f
    def issue(self, k, half):
        st = self.steps[k]
        b = self.ring[k % len(self.ring)]
        a, off, d2 = st["rd"]
        if half == 0:
            if "pre" in st: st["pre"]()
            I(f"ds_read_b64_tr_b16 {vr(b,2)}, v{a} offset:{off}", tag=f"w{k}")
        else:
            I(f"ds_read_b64_tr_b16 {vr(b+2,2)}, v{a} offset:{off+d2}", tag=f"w{k}")
            if "post" in st: st["post"](k)
    def pump(self, k, n):
        c = 0
        while self.side and c < n and self.side[0][0] <= k:
            r = self.side.pop(0)[2]()
            c += r if isinstance(r, int) else 1
    def run(self, rate):
        n = len(self.steps); D = self.D
        for k in range(min(D, n)):
            self.issue(k, 0); self.issue(k, 1)
        for k in range(n):
            st = self.steps[k]
            while any(s[1] <= k for s in self.side): self.side.pop(0)[2]()
            if "need" in st: st["need"]()
            if k % 2 == 0 and k + 1 < n: e.wait(lg=f"w{k+1}")
            e.wait(lg=f"w{k}")
            mfs = st["mf"](vr(self.ring[k % len(self.ring)]), st)
            I(mfs[0])
            if k + D < n: self.issue(k + D, 0)
            if len(mfs) > 1:
                self.pump(k, (rate + 1) // 2)
                I(mfs[1])
            if k + D < n: self.issue(k + D, 1)
            for m in mfs[2:]: I(m)
            self.pump(k, rate // 2 if len(mfs) > 1 else rate)
            if k in self.after: self.after[k]()
            stamp(f"k{k}")
        while self.side: self.side.pop(0)[2]()
def cost(n, f):
    def g():
        f(); return n
    return g

e.raw(f"; @launch grid=(256,1,1) block=(512,1,1) lds=163840")
e.raw('.amdgcn_target "amdgcn-amd-amdhsa--gfx950"')
e.raw(".text")
e.raw(f".globl {NAME}_kernel")
e.raw(".p2align 8")
e.raw(f".type {NAME}_kernel,@function")
e.label(f"{NAME}_kernel")
I("s_load_dwordx16 s[4:19], s[0:1], 0")
I("s_load_dwordx4 s[20:23], s[0:1], 64")
if STAMP:
    I("s_memrealtime s[98:99]")
    I("s_memtime s[96:97]")
I("v_lshrrev_b32 v1, 6, v0")
I("s_cmp_ge_u32 s2, 256")
I("s_cbranch_scc1 L_end")
I(f"v_readfirstlane_b32 s{S_t2}, v1")
I("v_and_b32 v0, 63, v0")
I(f"s_bfe_u32 s{S_q}, s2, 0x20001")
I(f"s_and_b32 s{S_t0}, s2, 1")
I(f"s_lshl_b32 s{S_t0}, s{S_t0}, 3")
I(f"s_bfe_u32 s{S_r}, s2, 0x30003")
I(f"s_or_b32 s{S_r}, s{S_r}, s{S_t0}")
I(f"s_lshr_b32 s{S_jj}, s2, 6")
if OPT["rotq"]: I(f"s_add_u32 s{S_rot}, s{S_r}, s{S_q}")
else: I(f"s_mov_b32 s{S_rot}, s{S_r}")
I(f"s_and_b32 s{S_w}, s{S_t2}, 3")
I(f"s_lshl_b32 s{S_m0b}, s{S_w}, 12")
I(f"s_cmp_lt_u32 s{S_t2}, 4")
I("s_cbranch_scc1 L_C")

H_XD = 4; H_WD = 8; H_BD = 12; H_G = 18; H_BR = 20; H_ACC = 64
H_RING = [32, 36, 40, 44, 48, 52, 24, 28]
def a2r(lam, p):
    if lam < 16: return ar(lam * 8 + p * 4)
    return vr((56 if lam == 16 else 4) + p * 4)
I("s_setprio 3")
I("v_lshrrev_b32 v32, 4, v0")
I("v_lshrrev_b32 v36, 3, v0")
I("v_and_b32 v37, 7, v0")
I("v_xor_b32 v39, v37, v32")
I("v_lshlrev_b32 v39, 4, v39")
I(f"v_lshl_add_u32 v{H_XD}, v36, 11, v39")
I(f"v_xor_b32 v{H_XD+1}, 64, v{H_XD}")
I(f"v_add_u32 v{H_XD+2}, {14*1024}, v{H_XD+1}")
I(f"v_add_u32 v{H_XD+3}, {14*1024}, v{H_XD}")
I(f"s_lshl_b32 s{S_t0}, s{S_r}, 17")
I(f"s_lshl_b32 s{S_t1}, s{S_w}, 15")
I(f"s_add_u32 s{S_t0}, s{S_t0}, s{S_t1}")
for g4 in range(4):
    I(f"s_add_u32 s{S_WK+g4}, s{S_rot}, {g4}")
    I(f"s_and_b32 s{S_WK+g4}, s{S_WK+g4}, 3")
    I(f"s_lshl_b32 s{S_KG+g4}, s{S_WK+g4}, 8")
    I(f"s_add_u32 s{S_KG+g4}, s{S_KG+g4}, s{S_t0}")
I(f"s_mov_b32 s{S_X+2}, {2048*1024}")
I(f"s_mov_b32 s{S_X+3}, 0x20000")
assert phys(False, 0) == 4 and phys(False, 1) == 5 and phys(True, 0) == 3 and phys(True, 1) == 4 and phys(False, 2) == 6 and phys(True, 2) == 5
I(f"s_cmp_ge_u32 s{S_jj}, 2")
I(f"s_cselect_b32 s{S_t2}, 3, 4")
I(f"s_mov_b32 s{S_W+2}, {512*3584}")
I(f"s_cmov_b32 s{S_W+2}, {512*3072}")
I(f"s_mov_b32 s{S_P}, 3584")
I(f"s_cmov_b32 s{S_P}, 3072")
I(f"s_lshl_b32 s{S_t2}, s{S_t2}, 14")
I(f"s_add_u32 s{S_t2}, s{S_t2}, s{S_m0b}")
I(f"s_mov_b32 m0, s{S_t2}")
I(f"s_add_u32 s{S_SOFF}, s{S_KG}, 128")
after_karg()
I(f"s_mov_b32 s{S_X}, s4")
I(f"s_and_b32 s{S_X+1}, s5, 0xffff")
for i in range(4): I(f"buffer_load_dwordx4 v{H_XD+i}, {srd(S_X)}, s{S_KG} offen offset:{i*1024} lds", tag="u0")
I(f"s_add_u32 m0, s{S_t2}, {SLOT}")
I(f"s_mov_b32 s{S_W+3}, 0x20000")
dma4(H_XD, S_X, "u1")
I(f"s_lshl_b32 s{S_t0}, s{S_w}, 5")
I(f"v_add_u32 v38, s{S_t0}, v36")
I(f"v_mul_lo_u32 v38, v38, s{S_P}")
I(f"s_mul_i32 s{S_COL}, s{S_q}, 896")
I(f"s_lshl_b32 s{S_t0}, s{S_q}, 8")
I(f"s_add_u32 s{S_t0}, s{S_t0}, {1024-256}")
I(f"s_cmp_ge_u32 s{S_jj}, 2")
I(f"s_cselect_b32 s{S_W}, s6, s12")
I(f"s_cselect_b32 s{S_W+1}, s7, s13")
I(f"s_cselect_b32 s{S_COL}, s{S_t0}, s{S_COL}")
I(f"s_cselect_b32 s{S_t0}, 1, 2")
I(f"s_cselect_b32 s{S_t1}, 64, 0")
I(f"s_and_b32 s{S_W+1}, s{S_W+1}, 0xffff")
I("v_and_b32 v39, 1, v32")
I(f"v_lshlrev_b32 v39, s{S_t0}, v39")
I("v_xor_b32 v39, v39, v37")
I("v_lshlrev_b32 v39, 4, v39")
I(f"v_add_u32 v{H_WD}, v38, v39")
I(f"v_xor_b32 v39, s{S_t1}, v39")
I(f"s_lshl_b32 s{S_t0}, s{S_P}, 3")
I(f"s_sub_u32 s{S_t0}, s{S_t0}, 1024")
I(f"v_add3_u32 v{H_WD+1}, v38, v39, s{S_t0}")
I(f"s_lshl_b32 s{S_t0}, s{S_t0}, 1")
I(f"v_add_u32 v{H_WD+2}, s{S_t0}, v{H_WD}")
I(f"v_add_u32 v{H_WD+3}, s{S_t0}, v{H_WD+1}")
I(f"s_lshl_b32 s{S_t0}, s{S_jj}, 7")
I(f"s_add_u32 s{S_COL}, s{S_COL}, s{S_t0}")
I(f"s_lshl_b32 s{S_t1}, s{S_P}, 7")
for g4 in range(4): I(f"s_mul_i32 s{S_WK+g4}, s{S_WK+g4}, s{S_t1}")
I(f"s_add_u32 m0, s{S_t2}, {2*SLOT}")
I(f"s_add_u32 s{S_SOFF}, s{S_WK}, s{S_COL}")
dma4(H_WD, S_W, "u2")
common_ptrs()
mk_srd(S_OUT, 18, 2048 * 1024)
mk_srd(S_GW, 16, 1024)
I(f"s_cmp_ge_u32 s{S_jj}, 2")
I("s_cbranch_scc1 L_h_att")
snapH = e.snapshot()

def h_prog(att):
    e.restore(snapH); e.hist = []
    UL = units(att)
    CH = [0, -1024, 1024] if att else [0, 256, 512]
    def issue(k):
        un = UL[k]
        I(f"s_add_u32 m0, s{S_m0b}, {phys(att,k)*SLOT}")
        if un[0] == "x":
            I(f"s_add_u32 s{S_SOFF}, s{S_KG+un[1]}, {un[2]*128}")
            dma4(H_XD, S_X, f"u{k}")
            return
        _, c, u = un
        if c < 3:
            I(f"s_add_u32 s{S_SOFF}, s{S_WK+u}, s{S_COL}")
            if CH[c]: I(f"s_add_i32 s{S_SOFF}, s{S_SOFF}, {CH[c]}")
        else:
            KH = 256 * 3584
            if u == 0:
                I("v_lshrrev_b32 v2, 2, v0")
                I("v_lshrrev_b32 v1, 4, v0")
                I("v_xor_b32 v2, v2, v1")
                I("v_and_b32 v2, 1, v2")
                I(f"v_mul_u32_u24 v1, {KH-64}, v2")
                for i in range(4): I(f"v_add_u32 v{H_WD+i}, v{H_WD+i}, v1")
                I(f"v_mul_u32_u24 v2, {2*KH}, v2")
                I(f"v_sub_u32 v{H_XD}, {KH}, v2")
                I(f"s_cmp_ge_u32 s{S_WK}, {KH}")
                I(f"s_cselect_b32 s{S_t0}, 1, 0")
            else:
                I(f"s_cmp_ge_u32 s{S_WK}, {KH}")
                I(f"s_cselect_b32 s{S_t1}, 1, 0")
                I(f"s_cmp_ge_u32 s{S_WK+1}, {KH}")
                I(f"s_cselect_b32 s{S_t0}, 1, 0")
                I(f"s_sub_u32 s{S_t0}, s{S_t0}, s{S_t1}")
            for i in range(4): I(f"v_mad_i32_i24 v{H_WD+i}, v{H_XD}, s{S_t0}, v{H_WD+i}")
            I(f"s_min_u32 s{S_SOFF}, s{S_WK+u}, s{S_WK+u+2}")
            I(f"s_add_u32 s{S_SOFF}, s{S_SOFF}, s{S_COL}")
            I(f"s_lshl_b32 s{S_t0}, s{S_jj}, 6")
            I(f"s_sub_u32 s{S_SOFF}, s{S_SOFF}, s{S_t0}")
            I(f"s_add_u32 s{S_SOFF}, s{S_SOFF}, 768")
        dma4(H_WD, S_W, f"u{k}")
    def w0(f):
        l = U("w0")
        I(f"s_cmp_eq_u32 s{S_w}, 0"); I(f"s_cbranch_scc0 {l}")
        e.cond_begin(); f(); e.cond_end(); e.label(l)
    def peer_issue(): w0(lambda: I(f"s_load_dword s{S_POLL}, s[{S_DBG}:{S_DBG+1}], 0 glc"))
    def peer():
        def f():
            lp = U("pp"); ok = U("po")
            I("s_waitcnt lgkmcnt(0)")
            I(f"s_cmp_ge_u32 s{S_POLL}, 16")
            I(f"s_cbranch_scc0 {lp}")
            e.label(ok)
            SLOW.extend([f"{lp}:", "    s_sleep 8", f"    s_load_dword s{S_POLL}, s[{S_DBG}:{S_DBG+1}], 0 glc", "    s_waitcnt lgkmcnt(0)",
                         f"    s_cmp_ge_u32 s{S_POLL}, 16", f"    s_cbranch_scc1 {ok}"] + spin_tail(lp, ok))
        w0(f)
        I(f"s_mov_b32 s{S_POLL}, 0")
    V_Q = 64; V_S = 96; V_BIAS = 32; V_RINV = 40; V_T = 48; A_KV = 64; A_ONES = 96; V_AD = 24
    def att_setup(part):
        if part == 0:
            I(f"s_add_u32 s{S_t0}, s{S_m0b}, {EXCH_LDS+4096}")
            I(f"v_add_u32 v{V_AD}, s{S_t0}, v{V_L16}")
            I("v_bfe_u32 v1, v0, 3, 1")
            I("v_lshlrev_b32 v1, 12, v1")
            I(f"v_sub_u32 v{V_AD+2}, v{V_AD}, v1")
            I("v_xor_b32 v1, 4096, v1")
            I(f"v_sub_u32 v{V_AD+1}, v{V_AD}, v1")
            I("v_lshrrev_b32 v1, 5, v0")
            I("v_lshlrev_b32 v1, 12, v1")
            I(f"v_sub_u32 v{V_AD+4}, v{V_AD}, v1")
            I("v_xor_b32 v1, 4096, v1")
            I(f"v_sub_u32 v{V_AD+3}, v{V_AD}, v1")
            I(f"v_add_u32 v{V_AD+5}, {(QSLOT*SLOT - EXCH_LDS - 4096) & 0xffffffff}, v{V_AD}")
            I(f"s_mov_b32 s{S_CEXP}, {f2u(0.25*1.4426950408889634)}")
            I(f"s_or_b32 s{S_t0}, s{S_r}, s{S_w}")
            I(f"s_cmp_eq_u32 s{S_t0}, 0")
            I(f"s_cselect_b32 s{S_THR}, -16, -9")
            I(f"v_mov_b32 v{V_T}, 0x3f803f80")
            for k in range(4): I(f"v_accvgpr_write_b32 a{A_ONES+k}, v{V_T}")
            I(f"v_mov_b32 v{V_T}, {NEG}")
            I(f"v_and_b32 v{V_T+1}, 15, v0")
            I(f"v_lshrrev_b32 v{V_T+2}, 4, v0")
            I(f"v_lshlrev_b32 v{V_T+2}, 2, v{V_T+2}")
        elif part in (1, 2):
            p = part - 1; x8 = 8 if p == 0 else 0
            I(f"v_xor_b32 v{V_T+3}, {x8}, v{V_T+1}")
            I(f"v_xor_b32 v{V_T+4}, {x8}, v{V_T+2}")
            I(f"v_sub_u32 v{V_T+3}, v{V_T+3}, v{V_T+4}")
            for r in range(4):
                I(f"v_subrev_u32 v{V_T+4}, {r}, v{V_T+3}")
                I(f"v_cmp_lt_u32 vcc, 7, v{V_T+4}")
                I(f"v_cmp_lt_i32 s[56:57], s{S_THR}, v{V_T+4}")
                I("s_and_b64 vcc, vcc, s[56:57]")
                I(f"v_cndmask_b32 v{V_BIAS+p*4+r}, 0, v{V_T}, vcc")
        else:
            for k in range(16): I(f"v_mov_b32 v{V_Q+16*(part-3)+k}, 0")
            I("s_mov_b32 s56, 0xff00ff00"); I("s_mov_b32 s57, 0xff00ff00")
            I("s_not_b64 s[58:59], s[56:57]")
    def br_setup():
        I("v_bfe_u32 v1, v0, 2, 2")
        I("v_lshrrev_b32 v2, 5, v0")
        I("v_lshl_add_u32 v1, v2, 2, v1")
        I("v_lshlrev_b32 v1, 7, v1")
        I("v_bfe_u32 v2, v0, 4, 1")
        I("v_lshl_add_u32 v1, v2, 5, v1")
        I("v_bfe_u32 v2, v0, 3, 1")
        I("v_lshl_add_u32 v1, v2, 6, v1")
        I("v_and_b32 v2, 3, v0")
        I("v_lshl_add_u32 v1, v2, 3, v1")
        I(f"s_lshr_b32 s{S_t0}, s{S_q}, 1")
        I(f"s_lshl_b32 s{S_t0}, s{S_t0}, 13")
        I(f"s_and_b32 s{S_t1}, s{S_q}, 1")
        I(f"s_lshl_b32 s{S_t1}, s{S_t1}, 6")
        I(f"s_or_b32 s{S_t0}, s{S_t0}, s{S_t1}")
        I(f"v_xor_b32 v1, s{S_t0}, v1")
        for tau in range(4):
            cb = 3 - tau
            I(f"v_xor_b32 v{H_BR+tau}, {(cb>>1)*8192 + (cb&1)*64}, v1")
        I(f"s_lshl_b32 s{S_PB}, s{S_r}, 2"); I(f"s_add_u32 s{S_PB}, s{S_PB}, s{S_jj}")
        I(f"s_mul_i32 s{S_PB}, s{S_PB}, {12*8192}")
        I(f"s_lshl_b32 s{S_t0}, s{S_w}, 11"); I(f"s_add_u32 s{S_PB}, s{S_PB}, s{S_t0}"); I(f"s_add_u32 s{S_PB}, s{S_PB}, {PART_OFF}")
    if att:
        I(f"s_lshl_b32 s{S_t0}, s{S_r}, 17")
        I(f"s_sub_u32 s{S_t0}, s{S_t0}, 16384")
        I(f"v_add_u32 v38, s{S_t0}, v{H_XD}")
        I(f"s_add_u32 s{S_t0}, s{S_t0}, 1024")
        I(f"v_add_u32 v39, s{S_t0}, v{H_XD+1}")
        I("v_max_i32 v38, 0, v38")
        I("v_max_i32 v39, 0, v39")
        I(f"s_add_u32 s{S_t0}, s{S_rot}, s{S_w}")
        I(f"s_and_b32 s{S_t0}, s{S_t0}, 3")
        I(f"s_lshl_b32 s{S_t0}, s{S_t0}, 8")
        for i in range(4):
            kh, rh = divmod(i, 2)
            I(f"s_add_u32 m0, s{S_m0b}, {HALO_LDS + i*1024 - kh*128}")
            I(f"buffer_load_dwordx4 v{38+rh}, {srd(S_X)}, s{S_t0} offen offset:{kh*128} lds", tag="u2")
    PRE = OPT["pre"] - (1 if att else 0)
    for k in range(3, PRE + 1): issue(k)
    first = list(range(PRE + 1, 8))
    if att: sched = [first, [8, 9], [10], [11, 12, 13], [14], [15, 16, 17], [18], [19]]
    else: sched = [first, [8, 9], [10, 11], [12, 13], [14, 15], [16, 17], [18, 19], []]
    def gw_dma():
        I(f"s_mov_b32 m0, {GW_LDS}")
        w0(lambda: I(f"buffer_load_dwordx4 v{V_L16}, {srd(S_GW)}, 0 offen lds"))
    extra = {1: lambda: (late_scalars(), b2_voffs(H_BD)), 3: gw_dma, 7: (br_setup if att or OPT["sch"] else lambda: (b2_unit(8, H_BD), br_setup()))}
    if att: extra.update({2: lambda: (att_setup(0), att_setup(1)), 4: lambda: (att_setup(2), att_setup(3)), 6: lambda: att_setup(4)})
    gk = [k for k, un in enumerate(UL) if un[0] == "g"]
    def bar(i, need=None):
        stamp(f"h_a{i}")
        if need is None and i < len(gk): need = gk[i]
        if need is not None: e.wait(vm=f"u{need}")
        if i == 6: peer()
        I("s_barrier"); stamp(f"h_b{i}")
    for i in range(8):
        bar(i)
        if i == 4: peer_issue()
        for k in sched[i]: issue(k)
        if i in extra: extra[i]()
    def a2_load(lam):
        a2_soff(lam, S_t1)
        for p in range(2):
            I(f"buffer_load_dwordx4 {a2r(lam,p)}, v{V_L16}, {srd(S_WS)}, s{S_t1} offen offset:{p*1024} sc1", tag=f"a{lam}")
    def a2_items(lams, gap=1):
        F = []
        for lam in lams:
            F.append(cost(9, lambda lam=lam: (a2_soff(lam, S_COL), I(f"buffer_load_dwordx4 {a2r(lam,0)}, v{V_L16}, {srd(S_WS)}, s{S_COL} offen sc1", tag=f"a{lam}x"))))
            F += [cost(9, lambda: None)] * (gap - 1)
            F.append(cost(9, lambda lam=lam: I(f"buffer_load_dwordx4 {a2r(lam,1)}, v{V_L16}, {srd(S_WS)}, s{S_COL} offen offset:1024 sc1", tag=f"a{lam}")))
            F += [cost(9, lambda: None)] * (gap - 1)
        return F
    Bu = lambda g: b2_unit(g, H_BD)
    SS = []
    ALL = (0, 1, 2, 3)
    side = {}
    if not att:
        if OPT["sch"] == 0:
            bar(8); Bu(0)
            bar(9); issue(20); Bu(1)
            bar(10); push_group(ownbit(0), ALL); issue(21); Bu(2)
            bar(11); push_group(ownbit(1), ALL); Bu(3); poll_load()
            bar(12); poll_check(0x11)
            for lam in range(4): a2_load(lam)
            Bu(4); poll_load()
            bar(13); poll_check(0x22)
            for lam in range(4, 8): a2_load(lam)
            Bu(5)
            bar(14)
        else:
            bar(8)
            bar(9); issue(20)
            bar(10); push_group(ownbit(0), ALL); issue(21)
            bar(11); push_group(ownbit(1), ALL); Bu(0); Bu(1); poll_load()
            bar(12); poll_check(0x11); a2_load(0); a2_load(1); poll_load()
            bar(13); a2_load(2); a2_load(3); Bu(2)
            bar(14); poll_check(0x22)
            side[(0, 0)] = lambda: SS[0].add(0, 999, a2_items((4, 5, 6, 7), 2))
        def f_o(): poll_check(0x300); SS[0].add(0, 999, a2_items((16, 17, 14, 15)))
    else:
        def kv_reads(m0, tag):
            for t in range(4):
                I(f"ds_read_b64 {ar(A_KV+8*t,2)}, v{m0} offset:{t*1024}", tag=f"{tag}{t}")
                I(f"ds_read_b128 {ar(A_KV+8*t+2)}, v{V_AD} offset:{t*1024}", tag=f"{tag}{t}")
                I(f"ds_read_b64 {ar(A_KV+8*t+6,2)}, v{m0+1} offset:{t*1024+8}", tag=f"{tag}{t}")
        bar(8)
        kv_reads(V_AD + 1, "k")
        e.wait(lg="k3")
        poll_load()
        bar(9, 19)
        def Preg(t, p): return V_Q + 8 * t + 4 * p
        for half, m in enumerate(("s[56:57]", "s[58:59]")):
            I(f"s_mov_b64 exec, {m}")
            for t in range(4):
                for p in range(2):
                    I(f"ds_read_b64 {vr(Preg(t,p)+2*half,2)}, v{V_AD+5} offset:{t*1024+p*8}", tag="q")
        I("s_mov_b64 exec, -1")
        stamp("h_q")
        e.wait(lg="q")
        un = [(i >> 1, i & 1) for i in range(8)]
        Sc = lambda i: V_S + 4 * i
        for i, (t, p) in enumerate(un): I(f"{MF} {vr(Sc(i))}, {ar(A_KV+8*t+4*p)}, {vr(Preg(t,p))}, {vr(V_BIAS+4*p)}")
        Bu(0)
        m = [V_T + i for i in range(8)]
        for i in range(8):
            if OPT["lround"]:
                I(f"v_cvt_pk_bf16_f32 v1, v{Sc(i)}, v{Sc(i)+1}")
                I(f"v_cvt_pk_bf16_f32 v2, v{Sc(i)+2}, v{Sc(i)+3}")
                I(f"v_lshlrev_b32 v{Sc(i)}, 16, v1")
                I(f"v_and_b32 v{Sc(i)+1}, 0xffff0000, v1")
                I(f"v_lshlrev_b32 v{Sc(i)+2}, 16, v2")
                I(f"v_and_b32 v{Sc(i)+3}, 0xffff0000, v2")
            I(f"v_max3_f32 v{m[i]}, v{Sc(i)}, v{Sc(i)+1}, v{Sc(i)+2}")
            I(f"v_max_f32 v{m[i]}, v{m[i]}, v{Sc(i)+3}")
        for k in range(4): I(f"v_permlane32_swap_b32 v{m[2*k]}, v{m[2*k+1]}")
        for k in range(4): I(f"v_max_f32 v{m[2*k]}, v{m[2*k]}, v{m[2*k+1]}")
        for k in range(2): I(f"v_permlane16_swap_b32 v{m[4*k]}, v{m[4*k+2]}")
        for k in range(2): I(f"v_max_f32 v{m[4*k]}, v{m[4*k]}, v{m[4*k+2]}")
        for k in range(2): I(f"v_mul_f32 v{m[4*k+2]}, s{S_CEXP}, v{m[4*k]}")
        for k in range(2): I(f"v_mul_f32 v{m[4*k]}, s{S_CEXP}, v{m[4*k]}")
        for k in range(2): I(f"v_permlane16_swap_b32 v{m[4*k]}, v{m[4*k+2]}")
        for k in range(4): I(f"v_mov_b32 v{m[2*k+1]}, v{m[2*k]}")
        for k in range(4): I(f"v_permlane32_swap_b32 v{m[2*k]}, v{m[2*k+1]}")
        Bu(1)
        poll_check(0x33)
        for i in range(8):
            for r in range(4): I(f"v_fma_f32 v{Sc(i)+r}, v{Sc(i)+r}, s{S_CEXP}, -v{m[i]}")
            for r in range(4): I(f"v_exp_f32 v{Sc(i)+r}, v{Sc(i)+r}")
            a2_load(i)
        for half, mk in enumerate(("s[56:57]", "s[58:59]")):
            I(f"s_mov_b64 exec, {mk}")
            for i, (t, p) in enumerate(un):
                I(f"v_cvt_pk_bf16_f32 v{Preg(t,p)+2*half}, v{Sc(i)}, v{Sc(i)+1}")
                I(f"v_cvt_pk_bf16_f32 v{Preg(t,p)+2*half+1}, v{Sc(i)+2}, v{Sc(i)+3}")
        I("s_mov_b64 exec, -1")
        for i, (t, p) in enumerate(un): I(f"{MF} {vr(Sc(i))}, {ar(A_ONES)}, {vr(Preg(t,p))}, 0")
        for i in range(8): I(f"v_rcp_f32 v{V_RINV+i}, v{Sc(i)}")
        stamp("h_sm")
        I("s_barrier")
        kv_reads(V_AD + 3, "v")
        e.wait(lg="v3")
        I("s_barrier")
        for i, (t, p) in enumerate(un): I(f"{MF} {vr(Sc(i))}, {ar(A_KV+8*t+4*p)}, {vr(Preg(t,p))}, 0")
        for b in range(2):
            for t in (2 * b, 2 * b + 1):
                ob = (56 if b == 0 else 4) + (t & 1) * 4
                for p in range(2):
                    o = Sc(2 * t + p)
                    for r in range(4): I(f"v_mul_f32 v{o+r}, v{V_RINV+2*t+p}, v{o+r}")
                    I(f"v_cvt_pk_bf16_f32 v{ob+2*p}, v{o}, v{o+1}")
                    I(f"v_cvt_pk_bf16_f32 v{ob+2*p+1}, v{o+2}, v{o+3}")
            a2_soff(16 + b, S_t1)
            for t1 in range(2):
                ob = (56 if b == 0 else 4) + t1 * 4
                I(f"v_permlane16_swap_b32 v{ob}, v{ob+2}")
                I(f"v_permlane16_swap_b32 v{ob+1}, v{ob+3}")
            for p in range(2):
                I(f"buffer_store_dwordx4 {a2r(16+b,p)}, v{V_L16}, {srd(S_WS)}, s{S_t1} offen offset:{p*1024} sc1", tag="so")
        stamp("h_so")
        def f_push():
            e.wait(vm="so")
            push_group(lambda: I(f"s_lshl_b32 s{S_t2}, 64, s{S_jj}"), (1, 2, 3))
        side[(0, 14)] = f_push
        def f_o():
            I(f"s_xor_b32 s{S_THR}, s{S_jj}, 1"); I(f"s_lshl_b32 s{S_THR}, 64, s{S_THR}")
            poll_check(f"s{S_THR}"); SS[0].add(0, 999, a2_items((14, 15)))
    def f_c(): poll_check(0x44); SS[0].add(0, 999, a2_items((8, 9, 10, 11)))
    def f_h(): poll_check(0x88); SS[0].add(0, 999, a2_items((12, 13)))
    side.update({(8, -46): poll_load, (8, -28): f_c, (12, -42): poll_load, (12, -26): f_h, (16, -40): poll_load, (16, -24): f_o})
    I("s_setprio 1")
    stamp("h_p2")
    own = [16, 17] if att else []
    LD = OPT["ld"]
    oo = [16, 17, 14, 15]
    TM = 14 - OPT["tm"]
    seq = [(lam, tau) for lam in range(TM) for tau in range(4 if lam < LD else 3)]
    seq += [(lam, tau) for tau in range(3) for lam in list(range(TM, 14)) + oo]
    seq += [(lam, 3) for lam in list(range(LD, 14)) + oo]
    steps = []; rng = {}; seen_g = set(); seen_l = set(); first_ = set()
    for (lam, tau) in seq:
        g = lam >> 1
        for kh in range(2):
            a = H_BR + tau
            off = g * SLOT + (lam & 1) * 4096 + kh * 2048
            hi = off >> 16
            st = dict(rd=(a, off & 0xffff, 1024))
            pres = []
            if g not in seen_g:
                seen_g.add(g); t = U("t")
                if len(steps) >= 3: steps[-3]["post"] = lambda k, g=g, t=t: d_read(f"Lb{g}", t)
                else: pres.append(lambda g=g, t=t: d_read(f"Lb{g}", t))
                pres.append(lambda g=g, t=t: d_check(f"Lb{g}", t))
            if rng.get(a, 0) != hi:
                dlt = (hi - rng.get(a, 0)) * 65536; rng[a] = hi
                pres.append(lambda a=a, dlt=dlt: I(f"v_add_u32 v{a}, {dlt & 0xffffffff}, v{a}"))
            if pres: st["pre"] = lambda pres=pres: [f() for f in pres]
            at = 4 if (tau == 3 and lam >= 14) else tau
            zero = at not in first_; first_.add(at)
            d = vr(H_ACC + 16 * (at & 3 if at < 4 else 0), 16)
            st["mf"] = lambda W, st, lam=lam, kh=kh, d=d, zero=zero: [f"{M32} {d}, {W}, {a2r(lam,kh)}, {'0' if zero else d}"]
            if lam not in seen_l:
                seen_l.add(lam)
                if lam not in own: st["need"] = lambda lam=lam: e.wait(vm=f"a{lam}")
            st["id"] = (lam, tau, kh)
            steps.append(st)
    S = Stream(steps, OPT["D2"], H_RING)
    SS.append(S)
    idx = {st["id"]: k for k, st in enumerate(steps)}
    n = len(steps)
    for (lam, d), f in side.items(): S.aft(idx[(lam, 0, 0)] + d, f)
    def scale(tau, greg): return [lambda r=r: I(f"v_mul_f32 v{r}, v{greg}, v{r}") for r in range(H_ACC + 16 * tau, H_ACC + 16 * tau + 16)]
    def pack(tau):
        b = H_ACC + tau * 16
        return [lambda k=k: I(f"v_cvt_pk_bf16_f32 v{b+k}, v{b+2*k}, v{b+2*k+1}") for k in range(8)]
    def send(tau):
        def so():
            I(f"s_xor_b32 s{S_GIN}, s{S_q}, {3-tau}"); I(f"s_mul_i32 s{S_GIN}, s{S_GIN}, {3*8192}")
            I(f"s_add_u32 s{S_GIN}, s{S_GIN}, s{S_PB}"); I(f"s_add_u32 s{S_GIN}, s{S_GIN}, {tau*8192}")
        return [so] + pack(tau) + [cost(3, lambda j=j: I(f"buffer_store_dwordx4 {vr(H_ACC+tau*16+j*4)}, v{V_L16}, {srd(S_WS)}, s{S_GIN} offen offset:{j*1024} sc1", tag=f"p{tau}")) for j in range(2)]
    def pflag(tau):
        assert e.vmq[0][0].count(f"p{tau}") == 2
        stamp(f"h_pa{tau}")
        e.wait(vm=f"p{tau}")
        stamp(f"h_pb{tau}")
        I(f"s_xor_b32 s{S_t0}, s{S_MYIN}, {(3-tau)*2048}")
        I(f"s_mov_b32 s{S_KG+tau}, {1024<<tau}")
        I(f"s_atomic_or s{S_KG+tau}, s[{S_INB}:{S_INB+1}], s{S_t0}")
    def gget():
        I(f"s_lshl_b32 s{S_t0}, s{S_w}, 8"); I(f"s_add_u32 s{S_t0}, s{S_t0}, {GB_LDS}")
        I("v_and_b32 v1, 31, v0")
        I(f"v_lshl_add_u32 v1, v1, 3, s{S_t0}")
        I(f"ds_read_b64 {vr(H_G,2)}, v1", tag="gz")
    S.aft(idx[(12, 0, 0)] - 3, gget)
    S.aft(idx[(13, 0, 1)], lambda: e.wait(lg="gz"))
    for tau in range(4):
        k = idx[(13, tau, 1)]
        S.aft(k, lambda k=k, tau=tau: S.add(k + 3, idx[(oo[0], tau, 0)] if tau < 3 else n, scale(tau, H_G + 1)))
    late_flags = []
    for tau in range(3):
        k = idx[(oo[-1], tau, 1)]
        S.aft(k, lambda k=k, tau=tau: S.add(k + 3, k + 8, send(tau)))
        kf = k + 7 + OPT["pfd"]
        if kf <= n - OPT["D2"] - 14: S.aft(kf, lambda tau=tau: pflag(tau))
        else: late_flags.append(tau)
    S.aft(n - OPT["D2"], lambda: (e.wait(lg=f"w{n-1}"), [pflag(t) for t in late_flags[:-1]], poll_load()))
    S.aft(idx[(8, 0, 0)], lambda: stamp("h_late"))
    S.aft(idx[(oo[0], 0, 0)], lambda: stamp("h_o"))
    S.aft(idx[(LD, 3, 0)], lambda: stamp("h_own"))
    S.run(OPT["side2"])
    I(f"s_mul_i32 s{S_GIN}, s{S_q}, {3*8192}")
    I(f"s_add_u32 s{S_GIN}, s{S_GIN}, s{S_PB}")
    I("v_bfe_u32 v5, v0, 4, 1")
    I("v_lshlrev_b32 v6, 3, v5")
    I("v_xor_b32 v6, 8, v6")
    I("v_and_b32 v4, 15, v0")
    I("v_xor_b32 v4, v4, v6")
    I("v_lshl_add_u32 v4, v4, 1, v5")
    I("v_lshrrev_b32 v5, 5, v0")
    I("v_lshlrev_b32 v5, 4, v5")
    I("v_lshl_add_u32 v4, v4, 10, v5")
    I(f"s_lshl_b32 s{S_COL}, s{S_r}, 17"); I(f"s_lshl_b32 s{S_t1}, s{S_w}, 15"); I(f"s_add_u32 s{S_COL}, s{S_COL}, s{S_t1}")
    I(f"s_lshl_b32 s{S_t1}, s{S_jj}, 8"); I(f"s_add_u32 s{S_COL}, s{S_COL}, s{S_t1}")
    I(f"s_lshl_b32 s{S_t1}, s{S_q}, 6"); I(f"s_add_u32 s{S_COL}, s{S_COL}, s{S_t1}")
    for t in late_flags[-1:]: pflag(t)
    O = H_ACC + 48
    for k in range(8): I(f"v_pk_add_f32 {vr(O+2*k,2)}, {vr(O+2*k,2)}, {vr(H_ACC+2*k,2)}")
    for tau in range(3):
        poll_check(1024 << tau)
        stamp(f"h_r{tau}")
        if tau == 2: stamp("h_rcv")
        for j in range(2):
            I(f"buffer_load_dwordx4 {vr(24+tau*8+j*4)}, v{V_L16}, {srd(S_WS)}, s{S_GIN} offen offset:{j*1024} sc1", tag=f"r{tau}")
        if tau < 2: I(f"s_add_u32 s{S_GIN}, s{S_GIN}, 8192")
    for tau in range(3):
        e.wait(vm=f"r{tau}")
        b = H_ACC + 16
        for k in range(8):
            I(f"v_lshlrev_b32 v{b+2*k}, 16, v{24+tau*8+k}")
            I(f"v_and_b32 v{b+2*k+1}, 0xffff0000, v{24+tau*8+k}")
        for k in range(8): I(f"v_pk_add_f32 {vr(O+2*k,2)}, {vr(O+2*k,2)}, {vr(b+2*k,2)}")
    for k in range(8): I(f"v_pk_mul_f32 {vr(O+2*k,2)}, {vr(O+2*k,2)}, {vr(H_G,2)} op_sel_hi:[1,0]")
    stamp("h_sum")
    for f in pack(3): f()
    for j in range(2):
        I(f"v_permlane32_swap_b32 v{O+4*j}, v{O+4*j+2}")
        I(f"v_permlane32_swap_b32 v{O+4*j+1}, v{O+4*j+3}")
        I(f"buffer_store_dwordx4 {vr(O+4*j)}, v4, {srd(S_OUT)}, s{S_COL} offen offset:{j*32}")
    finish()

h_prog(False)
e.label("L_h_att")
h_prog(True)

e.label("L_C")
role[0] = "C"
reset()
C_WR = 4; C_XR = 12; C_EXW = 18; C_HA = 20; C_HX = (24, 56, 60); C_HACC = 28; C_ACC = 64
I("s_setprio 2")
if OPT["codepf"]:
    I("s_cmp_lt_u32 s2, 16")
    I("s_cbranch_scc0 L_nopf")
    e.cond_begin()
    I("s_getpc_b64 s[56:57]")
    e.label("L_pc")
    I(f"s_sub_u32 s56, s56, L_pc-{NAME}_kernel")
    I("s_subb_u32 s57, s57, 0")
    I(f"s_lshr_b32 s{S_t0}, s2, 3")
    I(f"s_lshl_b32 s{S_t0}, s{S_t0}, 15")
    I(f"v_lshlrev_b32 v2, 7, v0")
    I(f"v_lshl_add_u32 v2, v1, 13, v2")
    I(f"v_add_u32 v2, s{S_t0}, v2")
    I(f"v_min_u32 v2, L_end-{NAME}_kernel, v2")
    I(f"global_load_dword v23, v2, s[56:57]")
    e.cond_end()
    e.label("L_nopf")
late_scalars()
I("v_lshlrev_b32 v2, 2, v0")
I(f"v_add_u32 v2, {EV_LDS}, v2")
I("v_mov_b32 v1, 1")
I("ds_write_b32 v2, v1")
I("v_mov_b32 v1, 0")
I("ds_write_b32 v2, v1 offset:256")
I("v_lshrrev_b32 v32, 4, v0")
I("v_and_b32 v33, 15, v0")
I("v_bfe_u32 v34, v0, 2, 2")
I("v_and_b32 v35, 3, v0")
after_karg()
common_ptrs()
I(f"s_cmp_eq_u32 s{S_w}, 0")
I("s_cbranch_scc0 L_c_noinit")
e.cond_begin()
for k in range(4):
    I(f"s_mov_b32 s{S_KG+k}, 0")
    I(f"s_add_u32 s{S_t0}, s{S_MYIN}, {k*128}")
    I(f"s_atomic_swap s{S_KG+k}, s[{S_INB}:{S_INB+1}], s{S_t0} glc")
e.cond_end()
e.label("L_c_noinit")
I(f"s_cmp_ge_u32 s{S_jj}, 2")
I("s_cbranch_scc1 L_c_att")

def c_prog(att):
    reset()
    UL = units(att)
    slot_of = {un: phys(att, k) for k, un in enumerate(UL)}
    subs = [un for un in UL if un[0] == "g"]
    if att:
        for p in range(2):
            I(f"v_xor_b32 v38, {8 if p == 0 else 0}, v33")
            I("v_and_b32 v39, 8, v38")
            I("v_add_u32 v39, v39, v38")
            I("v_lshlrev_b32 v39, 7, v39")
            I("v_lshrrev_b32 v38, 1, v38")
            I("v_xor_b32 v38, v38, v32")
            I("v_lshl_add_u32 v39, v38, 4, v39")
            I(f"v_add_u32 v39, s{S_m0b}, v39")
            I(f"v_add_u32 v{C_XR+2*p+p}, {p*1024}, v39")
            I(f"v_xor_b32 v{C_XR+2*p+1-p}, 64, v{C_XR+2*p+p}")
        I("v_lshl_add_u32 v38, v32, 3, v34")
        I("v_lshlrev_b32 v38, 7, v38")
        I("v_lshl_add_u32 v38, v35, 3, v38")
        I("v_lshrrev_b32 v39, 1, v34")
        I("v_and_b32 v40, 1, v32")
        I("v_lshl_or_b32 v39, v40, 1, v39")
        I(f"v_xor_b32 v41, s{S_w}, v39")
        for t in range(4):
            I(f"v_xor_b32 v40, {t}, v41")
            I(f"v_lshl_add_u32 v{C_WR+t}, v40, 5, v38")
            I(f"v_add_u32 v{C_WR+4+t}, 0x10000, v{C_WR+t}")
        I("v_lshrrev_b32 v38, 1, v33")
        I("v_xor_b32 v38, v38, v32")
        I("v_lshlrev_b32 v38, 4, v38")
        I("v_lshl_add_u32 v38, v33, 7, v38")
        I(f"v_add_u32 v{C_HA}, {HALO_LDS}, v38")
        I(f"v_xor_b32 v{C_HA+1}, 64, v{C_HA}")
        I(f"s_mul_i32 s{S_t0}, s{S_w}, 5120")
        I(f"s_add_u32 s{S_t0}, s{S_t0}, {EXCH_LDS+4096}")
        I(f"v_add_u32 v{C_EXW}, s{S_t0}, v{V_L16}")
        I("v_add_u32 v19, 1, v35")
        I("v_bfe_u32 v19, v19, 1, 1")
        I("v_mul_u32_u24 v19, 24, v19")
    else:
        I("v_and_b32 v40, 1, v32")
        I("v_lshlrev_b32 v38, 3, v40")
        I("v_xor_b32 v38, 8, v38")
        I("v_xor_b32 v38, v38, v33")
        I("v_and_b32 v39, 8, v38")
        I("v_add_u32 v39, v39, v38")
        I("v_lshl_add_u32 v39, v40, 3, v39")
        I("v_lshlrev_b32 v39, 7, v39")
        I("v_lshrrev_b32 v38, 1, v38")
        I("v_lshlrev_b32 v41, 2, v40")
        I("v_xor_b32 v38, v38, v41")
        I("v_lshrrev_b32 v41, 1, v32")
        I("v_xor_b32 v38, v38, v41")
        I("v_lshl_add_u32 v39, v38, 4, v39")
        I(f"v_add_u32 v{C_XR}, s{S_m0b}, v39")
        for k in range(1, 4): I(f"v_xor_b32 v{C_XR+k}, {32*k}, v{C_XR}")
        I("v_lshl_add_u32 v38, v41, 3, v34")
        I("v_lshlrev_b32 v38, 7, v38")
        I("v_lshl_add_u32 v38, v35, 3, v38")
        I("v_lshl_add_u32 v38, v40, 5, v38")
        I("v_lshrrev_b32 v39, 1, v34")
        I(f"v_lshl_add_u32 v{C_WR}, v39, 6, v38")
        I(f"v_xor_b32 v{C_WR+1}, 64, v{C_WR}")
        for t in range(2): I(f"v_add_u32 v{C_WR+4+t}, 0x10000, v{C_WR+t}")
    def vtouch():
        P = 3072 if att else 3584; wp = 6 if att else 12
        mk_srd(S_W, wp, 512 * P)
        I(f"s_lshl_b32 s{S_t0}, s{S_r}, 2"); I(f"s_add_u32 s{S_t0}, s{S_t0}, s{S_w}")
        I(f"s_mul_i32 s{S_t1}, s{S_t0}, {8*P}")
        I(f"s_mul_i32 s{S_t2}, s{S_q}, {256 if att else 896}"); I(f"s_add_u32 s{S_t1}, s{S_t1}, s{S_t2}")
        I("v_and_b32 v1, 7, v0"); I(f"v_mul_u32_u24 v1, {P}, v1")
        I(f"s_lshl_b32 s{S_t2}, s{S_j1}, 7"); I(f"s_add_u32 s{S_t2}, s{S_t2}, s{S_t1}")
        I("v_lshlrev_b32 v2, 7, v0")
        I("s_mov_b64 exec, 0xff")
        I(f"buffer_load_dword v22, v1, {srd(S_W)}, s{S_t2} offen offset:{2048 if att else 512}")
        if not att:
            I(f"s_mul_i32 s{S_t2}, s{S_j1}, {4*P}"); I(f"s_add_u32 s{S_t2}, s{S_t2}, s{S_t1}")
            I("s_mov_b64 exec, 0xf")
            I(f"buffer_load_dword v22, v1, {srd(S_W)}, s{S_t2} offen offset:768")
        I(f"s_lshl_b32 s{S_t0}, s{S_t0}, 2"); I(f"s_add_u32 s{S_t0}, s{S_t0}, s{S_jj}")
        I(f"s_mul_i32 s{S_t1}, s{S_t0}, 1792"); I(f"s_mul_i32 s{S_t2}, s{S_q}, {448*1024}"); I(f"s_add_u32 s{S_t1}, s{S_t1}, s{S_t2}")
        I("s_mov_b64 exec, 0x3fff")
        I(f"buffer_load_dword v22, v2, {srd(S_W2)}, s{S_t1} offen")
        I(f"s_lshl_b32 s{S_t1}, s{S_t0}, 9"); I(f"s_lshl_b32 s{S_t2}, s{S_q}, 17"); I(f"s_add_u32 s{S_t1}, s{S_t1}, s{S_t2}")
        I("s_mov_b64 exec, 0xf")
        I(f"buffer_load_dword v22, v2, {srd(S_WO)}, s{S_t1} offen")
        I("s_mov_b64 exec, -1")
    if OPT["spf"] == 2: vtouch()
    if OPT["spf"] == 1:
        P = 3072 if att else 3584; wp = 6 if att else 12
        I(f"s_lshl_b32 s{S_t0}, s{S_r}, 2"); I(f"s_add_u32 s{S_t0}, s{S_t0}, s{S_w}")
        I(f"s_mul_i32 s{S_t1}, s{S_t0}, {8*P}")
        I(f"s_mul_i32 s{S_t2}, s{S_q}, {256 if att else 896}"); I(f"s_add_u32 s{S_t1}, s{S_t1}, s{S_t2}")
        I(f"s_lshl_b32 s{S_t2}, s{S_j1}, 7"); I(f"s_add_u32 s{S_t2}, s{S_t2}, s{S_t1}")
        I(f"s_add_u32 s56, s{wp}, s{S_t2}"); I(f"s_addc_u32 s57, s{wp+1}, 0")
        for k in range(8): I(f"s_load_dword s{S_EV}, s[56:57], {k*P + (2048 if att else 512)}")
        if not att:
            I(f"s_mul_i32 s{S_t2}, s{S_j1}, {4*P}"); I(f"s_add_u32 s{S_t2}, s{S_t2}, s{S_t1}")
            I(f"s_add_u32 s56, s{wp}, s{S_t2}"); I(f"s_addc_u32 s57, s{wp+1}, 0")
            for k in range(4): I(f"s_load_dword s{S_EV}, s[56:57], {k*P + 768}")
        I(f"s_lshl_b32 s{S_t0}, s{S_t0}, 2"); I(f"s_add_u32 s{S_t0}, s{S_t0}, s{S_jj}")
        I(f"s_mul_i32 s{S_t1}, s{S_t0}, 1792"); I(f"s_mul_i32 s{S_t2}, s{S_q}, {448*1024}"); I(f"s_add_u32 s{S_t1}, s{S_t1}, s{S_t2}")
        I(f"s_add_u32 s56, s14, s{S_t1}"); I("s_addc_u32 s57, s15, 0")
        for k in range(14): I(f"s_load_dword s{S_EV}, s[56:57], {k*128}")
        I(f"s_lshl_b32 s{S_t1}, s{S_t0}, 9"); I(f"s_lshl_b32 s{S_t2}, s{S_q}, 17"); I(f"s_add_u32 s{S_t1}, s{S_t1}, s{S_t2}")
        I(f"s_add_u32 s56, s8, s{S_t1}"); I("s_addc_u32 s57, s9, 0")
        for k in range(4): I(f"s_load_dword s{S_EV}, s[56:57], {k*128}")
        I("s_waitcnt lgkmcnt(0)")
    l = U("ci")
    I(f"s_cmp_eq_u32 s{S_w}, 0"); I(f"s_cbranch_scc0 {l}")
    e.cond_begin()
    I(f"s_mov_b32 s{S_t1}, 1")
    I("s_waitcnt lgkmcnt(0)")
    I(f"s_atomic_add s{S_t1}, s[{S_DBG}:{S_DBG+1}], 0")
    e.cond_end(); e.label(l)
    stamp("c_go")
    def xfr(p, s): return ar((p * 16 + s) * 4)
    def xf32(s16): return ar(s16 * 4)
    def acc(c, T, p=0):
        base = C_ACC + 32 * (c & 1)
        return base + (T * 2 + p) * 4 if att else base + T * 16
    def xread(dst, areg, slot, tmp, k):
        base = slot * SLOT
        if base >= 65536:
            I(f"v_add_u32 v{tmp}, {base & ~0xffff}, v{areg}"); areg = tmp
        I(f"ds_read_b128 {dst}, v{areg} offset:{base & 0xffff}", tag=f"w{k}")
    steps = []; nh = [0]
    for i, un in enumerate(subs):
        _, c, u = un; slot = slot_of[un]
        for j in range(16):
            h = j >> 3
            if att:
                ks = (j >> 1) & 3; T = 2 * h + (j & 1); s = 4 * u + ks; zero = (u == 0 and ks == 0)
                halo = T == 0 and c != 1
                st = dict(rd=(C_WR + (4 if slot >= 4 else 0) + T, (slot & 3) * SLOT + ks * 4096, 512))
                def mf(W, st, s=s, T=T, zero=zero, c=c, halo=halo):
                    out = []
                    for p in range(2):
                        a, b = (xfr(p, s), W) if c == 2 else (W, xfr(p, s))
                        d = vr(acc(c, T, p))
                        out.append(f"{MF} {d}, {a}, {b}, {'0' if zero else d}")
                    if halo:
                        a, b = (vr(st["hreg"]), W) if c == 2 else (W, vr(st["hreg"]))
                        out.append(f"{MF} {vr(C_HACC)}, {a}, {b}, {'0' if zero else vr(C_HACC)}")
                    return out
                def post(k, st=st, s=s, halo=halo, j=j, c=c, u=u, ks=ks):
                    if c == 0 and j < 8 and j % 2 == 0:
                        for p in range(2): xread(xfr(p, s), C_XR + 2 * p + (ks & 1), slot_of[("x", u, ks >> 1)], 1 + p, k)
                    if halo:
                        st["hreg"] = C_HX[nh[0] % 3]; nh[0] += 1
                        I(f"ds_read_b128 {vr(st['hreg'])}, v{C_HA+(s&1)} offset:{(s>>1)*2048}", tag=f"w{k}")
            else:
                kk = j & 7
                if c < 3: s16 = 8 * u + kk; ta = h; zero = (u == 0 and kk == 0)
                else: s16 = 8 * (u + 2 * h) + kk; ta = 0; zero = (u == 0 and j == 0)
                st = dict(rd=(C_WR + (4 if slot >= 4 else 0) + h, (slot & 3) * SLOT + kk * 2048, 512))
                d = vr(acc(c, ta), 16)
                def mf(W, st, s16=s16, d=d, zero=zero): return [f"{M32} {d}, {W}, {xf32(s16)}, {'0' if zero else d}"]
                def post(k, s16=s16, j=j, c=c, u=u, kk=kk):
                    if c == 0 and j < 8: xread(xf32(s16), C_XR + (kk & 3), slot_of[("x", u, kk >> 2)], 1 + (kk & 1), k)
            st["mf"] = mf; st["post"] = post
            if j == 0:
                def pre(i=i):
                    stamp(f"t{i}")
                    if att and i in (8, 9):
                        assert e.lgq[0][0].count(f"exw{i-8}") == (5 if i == 8 else 4)
                        e.wait(lg=f"exw{i-8}")
                    if not att and i - OPT["ackb"] in (0, 1):
                        assert e.vmq[0][0].count(f"st{i-OPT['ackb']}") == 4
                        e.wait(vm=f"st{i-OPT['ackb']}")
                    if i < (10 if att else 14): I("s_barrier")
                    stamp(f"s{i}")
                    if att and i == 8:
                        for t in range(8): I(f"v_xor_b32 v{C_WR+t}, v19, v{C_WR+t}")
                st["pre"] = pre
            steps.append(st)
    if att: S = Stream(steps, OPT["D"], [32, 36, 40, 44, 48, 52])
    else: S = Stream(steps, OPT["DF"], [32, 36, 40, 44, 48, 52, 56, 60])
    DD = S.D
    def packn(a, n_): return [lambda k=k: I(f"v_cvt_pk_bf16_f32 v{a+k}, v{a+2*k}, v{a+2*k+1}") for k in range(n_)]
    def epi(c, h):
        F = []
        if att:
            for t in (2 * h, 2 * h + 1):
                a = acc(c, t, 0)
                F += packn(a, 4)
                def wr(t=t, a=a):
                    I(f"v_xor_b32 v1, {t*1024}, v{C_EXW}")
                    if c == 1: I(f"v_add_u32 v1, {(QSLOT*SLOT - EXCH_LDS - 4096) & 0xffffffff}, v1")
                    I(f"ds_write_b128 v1, {vr(a)}", tag=f"exw{c}")
                F.append(wr)
            if h == 0 and c != 1:
                def hw():
                    I(f"v_cvt_pk_bf16_f32 v{C_HACC}, v{C_HACC}, v{C_HACC+1}")
                    I(f"v_cvt_pk_bf16_f32 v{C_HACC+1}, v{C_HACC+2}, v{C_HACC+3}")
                    I(f"s_add_u32 s{S_t0}, s{S_m0b}, 4096")
                    I(f"v_subrev_u32 v1, s{S_t0}, v{C_EXW}")
                    I(f"ds_write2_b64 v1, {vr(C_HACC,2)}, {vr(C_HACC,2)} offset0:0 offset1:1", tag=f"exw{c}")
                F.append(hw)
        else:
            a = acc(c, h)
            F += packn(a, 8)
            def so():
                I(f"s_lshr_b32 s{S_GIN}, s{S_J32}, {2 if c < 3 else 3}")
                I(f"s_add_u32 s{S_GIN}, s{S_GIN}, s{S_A2}"); I(f"s_add_u32 s{S_GIN}, s{S_GIN}, {(4*c+h)*8192}")
            F.append(so)
            for p in range(2):
                F += [lambda k=k: I(f"v_pk_max_i16 v{k}, v{k}, 0") for k in range(a + 4 * p, a + 4 * p + 4)]
                F.append(cost(9, lambda p=p: I(f"buffer_store_dwordx4 {vr(a+4*p)}, v{V_L16}, {srd(S_WS)}, s{S_GIN} offen offset:{p*1024} sc1", tag=f"st{c}")))
        return F
    n = len(steps)
    for c, i, reuse in ((0, 6, 8), (1, 7, 12), (2, 11, 99)):
        for h in range(2):
            k = 16 * i + 8 * h + 7
            if k == n - 1: continue
            dl = min(16 * reuse + (8 * h if reuse == 8 else 0), n)
            if att and c < 2: dl = 16 * (8 + c) - DD - 3
            S.aft(k, lambda k=k, c=c, h=h, dl=dl: S.add(max(k + (2 if att else 4), 16 * 7 - DD + 1 if att else 0), dl, epi(c, h)))
    S.run(OPT["side"] if att else OPT["sidef"])
    stamp("c_end")
    if not att: I("s_barrier")
    for f in (epi(2, 1) if att else epi(3, 0)): f()
    if att:
        e.wait(lg="exw2")
        I("s_barrier")
    if OPT["cprio"] != 2: I(f"s_setprio {OPT['cprio']}")
    b2_voffs(4)
    if att: I("s_barrier")
    rest = [2, 3, 4, 5, 6, 8, 7] if att else [3, 4, 5, 6, 8, 7]
    b2_unit(rest.pop(0), 4); b2_unit(rest.pop(0), 4)
    stamp("c_g0")
    I("v_lshrrev_b32 v9, 4, v0")
    if att:
        I("v_lshlrev_b32 v8, 4, v9")
    else:
        I("v_lshrrev_b32 v8, 5, v0"); I("v_lshlrev_b32 v8, 4, v8")
        I("v_xor_b32 v9, v9, v0"); I("v_and_b32 v9, 1, v9")
        I("v_cmp_eq_u32 vcc, 0, v9")
    NG = 16 if att else 32; per = NG // 4
    RB = [32 + 4 * k for k in range(8)]
    def gread(s_):
        if s_ % per == 0:
            I(f"s_add_u32 s{S_t0}, s{S_rot}, {s_//per}"); I(f"s_and_b32 s{S_t0}, s{S_t0}, 3"); I(f"s_lshl_b32 s{S_t0}, s{S_t0}, 8")
            I(f"s_add_u32 s{S_t0}, s{S_t0}, {GW_LDS}")
            I(f"v_add_u32 v10, s{S_t0}, v8")
            if not att:
                I(f"v_mov_b32 v11, {ZERO_LDS}"); I("v_cndmask_b32 v10, v11, v10, vcc")
        I(f"ds_read_b128 {vr(RB[s_%8])}, v10 offset:{(s_%per)*(64 if att else 32)}", tag=f"g{s_}")
    for s_ in range(6): gread(s_)
    for s_ in range(NG):
        e.wait(lg=f"g{s_}")
        if att:
            for p in range(2): I(f"{MF} {vr(64+4*p)}, {vr(RB[s_%8])}, {xfr(p,s_)}, {'0' if s_ == 0 else vr(64+4*p)}")
        else:
            I(f"{MF} {vr(64)}, {vr(RB[s_%8])}, {xf32(s_)}, {'0' if s_ == 0 else vr(64)}")
        if s_ + 6 < NG: gread(s_ + 6)
        if s_ == NG // 2: b2_unit(rest.pop(0), 4)
    if not att:
        assert e.vmq[0][0].count("st2") == 4
        e.wait(vm="st3")
        push_group(lambda: (I(f"s_lshl_b32 s{S_t2}, s{S_jj}, 2"), I(f"s_lshl_b32 s{S_t2}, 12, s{S_t2}")), (0, 1, 2, 3))
    z1 = 68 if att else 65; G = 72
    T = [f"v_cvt_pk_bf16_f32 v1, v64, v{z1}", f"v_lshlrev_b32 v{G}, 16, v1", f"v_and_b32 v{G+2}, 0xffff0000, v1"]
    T += [f"v_mul_f32 v{G+2*p}, {f2u(-1.4426950408889634)}, v{G+2*p}" for p in range(2)]
    T += [f"v_exp_f32 v{G+2*p}, v{G+2*p}" for p in range(2)]
    T += [f"v_add_f32 v{G+2*p}, 1.0, v{G+2*p}" for p in range(2)]
    T += [f"v_rcp_f32 v{G+2*p}, v{G+2*p}" for p in range(2)]
    T += [f"v_cvt_pk_bf16_f32 v1, v{G}, v{G+2}", f"v_lshlrev_b32 v{G}, 16, v1", f"v_and_b32 v{G+2}, 0xffff0000, v1"]
    T += [f"v_sub_f32 v{G+1+2*p}, 1.0, v{G+2*p}" for p in range(2)]
    T += [f"v_cvt_pk_bf16_f32 v1, v{G+1}, v{G+3}", f"v_lshlrev_b32 v{G+1}, 16, v1", f"v_and_b32 v{G+3}, 0xffff0000, v1"]
    T += [f"v_max_f32 v{G+2*p}, {f2u(2.0**-60)}, v{G+2*p}" for p in range(2)]
    T += [f"v_rcp_f32 v{G+4+p}, v{G+2*p}" for p in range(2)]
    T += [f"v_mul_f32 v{G+1+2*p}, v{G+4+p}, v{G+1+2*p}" for p in range(2)]
    for t in T: I(t)
    I(f"s_lshl_b32 s{S_t0}, s{S_w}, 8"); I(f"s_add_u32 s{S_t0}, s{S_t0}, {GB_LDS}")
    I(f"v_lshl_add_u32 v1, v0, 3, s{S_t0}")
    I("s_mov_b64 exec, 0xffff")
    I(f"ds_write_b64 v1, {vr(G,2)}", tag="gz")
    I(f"ds_write_b64 v1, {vr(G+2,2)} offset:128", tag="gz")
    I("s_mov_b64 exec, -1")
    e.wait(lg="gz")
    stamp("c_g1")
    for g in rest:
        throttle(); b2_unit(g, 4)
    if OPT["dummy"]:
        I(f"s_lshl_b32 s{S_t0}, s2, 2"); I(f"s_add_u32 s{S_t0}, s{S_t0}, s{S_w}"); I(f"s_mul_i32 s{S_t0}, s{S_t0}, 9216"); I(f"s_add_u32 s{S_t0}, s{S_t0}, {20<<20}")
        for k in range(9):
            I(f"buffer_store_dwordx4 {vr(64)}, v{V_L16}, {srd(S_WS)}, s{S_t0 if OPT['dummy'] == 1 else S_WS+2} offen")
            I(f"s_add_u32 s{S_t0}, s{S_t0}, 1024")
    I("s_waitcnt vmcnt(0) lgkmcnt(0)")
    finish()

c_prog(False)
e.label("L_c_att")
c_prog(True)

e.label("L_end")
I("s_endpgm")
e.raw('.section .rodata,"a"')
e.raw(".p2align 6")
e.raw(f".amdhsa_kernel {NAME}_kernel")
e.raw("  .amdhsa_next_free_vgpr 256")
e.raw("  .amdhsa_next_free_sgpr 102")
e.raw("  .amdhsa_accum_offset 128")
e.raw("  .amdhsa_group_segment_fixed_size 0")
e.raw("  .amdhsa_kernarg_size 80")
e.raw("  .amdhsa_user_sgpr_count 2")
e.raw("  .amdhsa_user_sgpr_kernarg_segment_ptr 1")
e.raw("  .amdhsa_system_sgpr_workgroup_id_x 1")
e.raw(".end_amdhsa_kernel")
sys.stdout.write(e.text())
sys.stderr.write(f"instructions {e.nins} nop-states {e.nops}\n")
```

```python
import sys, struct
from emit import Em

NAME = "gated_mix__sliding_local_dilated__dense_activation_relu__prompt"
OPT = dict(padt=6000, padk=-1, padr=0, stamp=0, D=4, DF=5, D2=5, codepf=1, spin=400000, lround=0, side=2, sidef=2, side2=3,
           ld=6, thr=5, pre=4, pfd=18, ackb=10, cprio=2, dummy=0, sch=1, tm=0, qb=0, rotq=1, spf=2, tearly=1, tB=0, tfull=0)
CST = ["s0", "s2", "s4", "s6", "s8", "s10", "s12", "c_end"]
HST = ["h_b0", "h_b7", "h_p2", "h_late", "h_o", "h_own", "h_rcv", "h_sum"]
for a in sys.argv[1:]:
    k, v = a.split("=")
    if k == "cst": CST = v.split(",")
    elif k == "hst": HST = v.split(",")
    else:
        assert k in OPT, k
        OPT[k] = int(v)
STAMP = OPT["stamp"]
def f2u(x): return struct.unpack("<I", struct.pack("<f", x))[0]

PART_OFF = 10 << 20
INB_OFF = 32 << 20
STAMP_OFF = 33 << 20
WS_BYTES = 36 << 20
SLOT = 16384
HALO_LDS = 7 * SLOT
EXCH_LDS = 8 * SLOT
EV_LDS = EXCH_LDS + 20480
ZERO_LDS = EV_LDS + 256
GW_LDS = EV_LDS + 1024
GB_LDS = EV_LDS + 2048
NEG = f2u(-1e30)

e = Em()
I = e.I
def vr(b, n=4): return f"v[{b}:{b+n-1}]"
def ar(b, n=4): return f"a[{b}:{b+n-1}]"
def srd(b): return f"s[{b}:{b+3}]"
MF = "v_mfma_f32_16x16x32_bf16"
M32 = "v_mfma_f32_32x32x16_bf16"

S_X, S_W, S_WS, S_OUT, S_W2, S_WO, S_GW = 24, 28, 32, 36, 40, 44, 48
S_INB = 52; S_DBG = 54
S_w, S_r, S_jj, S_rot, S_q, S_m0b, S_j1 = 60, 61, 62, 63, 64, 65, 66
S_t0, S_t1, S_t2 = 3, 67, 68
S_BUD = 69; S_EV = 70; S_SOFF = 71
S_POLL = 74; S_MYIN = 75; S_CEXP = 76; S_THR = 77; S_W4 = 79
S_KG = 80; S_WK = 84
S_COL = 88; S_A2 = 89; S_B2 = 90; S_BO = 91; S_PB = 92; S_J32 = 93; S_GIN = 94; S_P = 95
S_STAMP = 4
EVD = {}
def evd(name):
    if name not in EVD: EVD[name] = len(EVD)
    assert EVD[name] < 16
    return EVD[name] * 16
role = ["H"]
def stamp(name):
    L = CST if role[0] == "C" else HST
    if name == "end": idx = 8
    elif name in L: idx = L.index(name)
    else: return
    if STAMP == 3: I(f"s_memrealtime s[{S_STAMP+2*idx}:{S_STAMP+2*idx+1}]")
    elif STAMP: I(f"s_memtime s[{S_STAMP+2*idx}:{S_STAMP+2*idx+1}]")
uid = [0]
def U(p):
    uid[0] += 1
    return f"L_{p}{uid[0]}"
def reset():
    e.vmq = [[[], 0]]; e.lgq = [[[], 0]]; e.hist = []
V_L16 = 16; V_EVW = 17; V_CHK = 3
SLOW = []
def flush_slow():
    for l in SLOW: e.raw(l)
    SLOW.clear()
def spin_tail(lp, ok):
    return [f"    s_sub_u32 s{S_BUD}, s{S_BUD}, 1", f"    s_cbranch_scc0 {lp}", f"    s_mov_b32 s{S_BUD}, 0", f"    s_branch {ok}"]
def dsig(name):
    I(f"s_add_u32 m0, s{S_W4}, {EV_LDS + evd(name)}")
    I("s_mov_b64 exec, 1")
    I(f"buffer_load_dword v{V_L16}, {srd(S_WO)}, s{S_WO+2} offen lds", tag="dsig")
    I("s_mov_b64 exec, -1")
def d_read(name, tag): I(f"ds_read_b32 v{V_CHK}, v{V_EVW} offset:{evd(name)}", tag=tag)
def d_check(name, tag):
    ok = U("ok"); lp = U("sp")
    e.wait(lg=tag)
    I(f"v_cmp_ne_u32 vcc, 0, v{V_CHK}")
    I(f"s_cbranch_vccnz {lp}")
    e.label(ok)
    SLOW.extend([f"{lp}:", f"    ds_read_b32 v{V_CHK}, v{V_EVW} offset:{evd(name)}", "    s_waitcnt lgkmcnt(0)", f"    v_cmp_ne_u32 vcc, 0, v{V_CHK}",
                 f"    s_cbranch_vccz {ok}", "    s_sleep 1"] + spin_tail(lp, ok))
def throttle():
    n = OPT["thr"]
    I(f"s_waitcnt vmcnt({n})")
    for q in e.vmq: q[1] = max(q[1], len(q[0]) - n)
def poll_load():
    I(f"s_load_dword s{S_POLL}, s[{S_INB}:{S_INB+1}], s{S_MYIN} glc")
def poll_check(mask):
    ok = U("pk"); lp = U("pl")
    I(f"s_andn2_b32 s{S_EV}, {mask}, s{S_POLL}")
    I(f"s_cbranch_scc1 {lp}")
    e.label(ok)
    SLOW.extend([f"{lp}:", "    s_waitcnt lgkmcnt(0)", f"    s_andn2_b32 s{S_EV}, {mask}, s{S_POLL}", f"    s_cbranch_scc0 {ok}",
                 f"    s_load_dword s{S_POLL}, s[{S_INB}:{S_INB+1}], s{S_MYIN} glc"] + spin_tail(lp, ok))
def push_group(bit_fn, ds):
    bit_fn()
    for d in ds:
        I(f"s_xor_b32 s{S_t0}, s{S_MYIN}, {d*512}")
        I(f"s_atomic_or s{S_t2}, s[{S_INB}:{S_INB+1}], s{S_t0}")
def ownbit(b):
    def f():
        I(f"s_lshl_b32 s{S_t2}, s{S_jj}, 2"); I(f"s_lshl_b32 s{S_t2}, {1<<b}, s{S_t2}")
    return f
def mk_srd(b, p, nbytes):
    I(f"s_mov_b32 s{b}, s{p}")
    I(f"s_and_b32 s{b+1}, s{p+1}, 0xffff")
    I(f"s_mov_b32 s{b+2}, {nbytes}")
    I(f"s_mov_b32 s{b+3}, 0x20000")
def b2_voffs(dst):
    I("v_lshrrev_b32 v1, 3, v0")
    I("v_bfe_u32 v2, v0, 4, 1")
    I("v_lshlrev_b32 v2, 2, v2")
    I(f"v_and_b32 v{dst}, 7, v0")
    I(f"v_xor_b32 v{dst}, v{dst}, v2")
    I(f"v_lshlrev_b32 v{dst}, 4, v{dst}")
    I(f"v_lshl_add_u32 v{dst}, v1, 10, v{dst}")
    for i in range(1, 4): I(f"v_add_u32 v{dst+i}, {i*7168}, v{dst}")
def late_scalars():
    I(f"s_lshl_b32 s{S_W4}, s{S_w}, 2")
    I(f"s_mov_b32 s{S_BUD}, {OPT['spin']}")
    I(f"s_and_b32 s{S_j1}, s{S_jj}, 1")
    I(f"s_lshl_b32 s{S_t0}, s{S_jj}, 8")
    I(f"s_lshr_b32 s{S_t1}, s{S_w}, 1")
    I(f"s_lshl_b32 s{S_t1}, s{S_t1}, 7")
    I(f"s_add_u32 s{S_t0}, s{S_t0}, s{S_t1}")
    I(f"s_and_b32 s{S_t1}, s{S_w}, 1")
    I(f"s_lshl_b32 s{S_t1}, s{S_t1}, 15")
    I(f"s_add_u32 s{S_t0}, s{S_t0}, s{S_t1}")
    I(f"s_mul_i32 s{S_B2}, s{S_q}, {14*32768}")
    I(f"s_add_u32 s{S_B2}, s{S_B2}, s{S_t0}")
    I(f"s_lshl_b32 s{S_BO}, s{S_q}, 17")
    I(f"s_add_u32 s{S_BO}, s{S_BO}, s{S_t0}")
    I(f"s_lshl_b32 s{S_J32}, s{S_j1}, 16")
    I(f"s_lshl_b32 s{S_t0}, s{S_r}, 2")
    I(f"s_add_u32 s{S_t0}, s{S_t0}, s{S_q}")
    I(f"s_mul_i32 s{S_A2}, s{S_t0}, {18*8192}")
    I(f"s_lshl_b32 s{S_t1}, s{S_w}, 11")
    I(f"s_add_u32 s{S_A2}, s{S_A2}, s{S_t1}")
    I(f"s_lshl_b32 s{S_MYIN}, s{S_t0}, 2")
    I(f"s_add_u32 s{S_MYIN}, s{S_MYIN}, s{S_jj}")
    I(f"s_lshl_b32 s{S_MYIN}, s{S_MYIN}, 2")
    I(f"s_add_u32 s{S_MYIN}, s{S_MYIN}, s{S_w}")
    I(f"s_lshl_b32 s{S_MYIN}, s{S_MYIN}, 7")
    I(f"v_lshlrev_b32 v{V_L16}, 4, v0")
    I(f"v_and_b32 v{V_EVW}, 3, v0")
    I(f"v_lshlrev_b32 v{V_EVW}, 2, v{V_EVW}")
    I(f"v_add_u32 v{V_EVW}, {EV_LDS}, v{V_EVW}")
def common_ptrs():
    I(f"s_add_u32 s{S_INB}, s22, {INB_OFF}")
    I(f"s_addc_u32 s{S_INB+1}, s23, 0")
    I(f"s_lshl_b32 s{S_t0}, s{S_r}, 4")
    I(f"s_add_u32 s{S_DBG}, s20, s{S_t0}")
    I(f"s_addc_u32 s{S_DBG+1}, s21, 0")
    mk_srd(S_WS, 22, WS_BYTES)
    mk_srd(S_W2, 14, 1792 * 1024)
    mk_srd(S_WO, 8, 512 * 1024)
def dma4(voff, srdb, tag):
    for i in range(4):
        I(f"buffer_load_dwordx4 v{voff+i}, {srd(srdb)}, s{S_SOFF} offen offset:{i*1024} lds", tag=tag)
def b2_unit(g, voff):
    I(f"s_add_u32 m0, s{S_m0b}, {g*SLOT}")
    if g < 7: I(f"s_add_u32 s{S_SOFF}, s{S_B2}, {g*65536}")
    else:
        I(f"s_xor_b32 s{S_SOFF}, s{S_J32}, {((g-7)^1)*65536}")
        I(f"s_add_u32 s{S_SOFF}, s{S_SOFF}, s{S_BO}")
    dma4(voff, S_W2 if g < 7 else S_WO, f"b{g}")
    dsig(f"Lb{g}")
def a2_soff(lam, dst):
    if lam < 14: I(f"s_add_u32 s{dst}, s{S_A2}, {lam*8192}")
    else:
        I(f"s_lshr_b32 s{dst}, s{S_J32}, 2"); I(f"s_xor_b32 s{dst}, s{dst}, {((lam-14)^2)*8192}")
        I(f"s_add_u32 s{dst}, s{dst}, s{S_A2}"); I(f"s_add_u32 s{dst}, s{dst}, {14*8192}")
def after_karg():
    I("s_waitcnt lgkmcnt(0)")
    if STAMP:
        I("s_memtime s[100:101]")
        I("s_mov_b32 s72, s96")
        I("s_mov_b32 s73, s98")
def finish():
    if STAMP:
        I("s_waitcnt vmcnt(0)")
        stamp("end")
        I("s_memrealtime s[22:23]")
        I("s_waitcnt lgkmcnt(0)")
        I(f"s_lshl_b32 s{S_t0}, s2, 3")
        I(f"s_add_u32 s{S_t0}, s{S_t0}, s{S_w}")
        if role[0] == "H": I(f"s_add_u32 s{S_t0}, s{S_t0}, 4")
        I(f"s_lshl_b32 s{S_t0}, s{S_t0}, 6")
        I(f"s_add_u32 s{S_t0}, s{S_t0}, {STAMP_OFF}")
        I(f"v_mov_b32 v2, s{S_t0}")
        for k in range(9): I(f"v_mov_b32 v{32+k}, s{S_STAMP+2*k}")
        I("v_mov_b32 v41, s73"); I("v_mov_b32 v42, s22"); I("v_mov_b32 v43, s72"); I("v_mov_b32 v44, s100")
        I(f"v_mov_b32 v45, s{S_BUD}"); I("v_mov_b32 v46, 0")
        I("s_mov_b64 exec, 1")
        for k in range(4): I(f"buffer_store_dwordx4 {vr(32+4*k)}, v2, {srd(S_WS)}, 0 offen offset:{16*k}")
    if STAMP >= 3:
        if OPT["padk"] >= 0 and (OPT["padr"] == 1) == (role[0] == "H"):
            I(f"s_sub_u32 s24, s{S_STAMP+2*OPT['padk']}, s{73 if STAMP == 3 else 72}")
            if STAMP == 4: I("s_lshr_b32 s24, s24, 4")
        else: I("s_mov_b32 s24, 0")
        I(f"s_add_u32 s24, s24, {OPT['padt']}")
        l = U("pad")
        e.label(l)
        I("s_memrealtime s[26:27]"); I("s_waitcnt lgkmcnt(0)"); I("s_sub_u32 s25, s26, s73"); I("s_cmp_lt_u32 s25, s24"); I(f"s_cbranch_scc1 {l}")
    I("s_endpgm")
    flush_slow()
def units(att):
    L = []
    for u in range(4): L += [("x", u, 0), ("x", u, 1), ("g", 0, u), ("g", 1, u)]
    L += [("g", 2, u) for u in range(4)]
    if not att: L += [("g", 3, 0), ("g", 3, 1)]
    return L
def phys(att, k):
    if not att: return (k - 14) % 9
    i = (k - 13) % 8
    return 8 if i == 7 else i
QSLOT = phys(True, 13)

class Stream:
    def __init__(self, steps, depth, ring):
        self.steps = steps; self.side = []; self.after = {}; self.D = depth; self.ring = ring
        assert len(ring) >= depth + 2
    def add(self, ready, deadline, fns):
        for f in fns: self.side.append([ready, deadline, f])
    def aft(self, k, f):
        prev = self.after.get(k)
        self.after[k] = (lambda: (prev(), f())) if prev else f
    def issue(self, k, half):
        st = self.steps[k]
        b = self.ring[k % len(self.ring)]
        a, off, d2 = st["rd"]
        if half == 0:
            if "pre" in st: st["pre"]()
            I(f"ds_read_b64_tr_b16 {vr(b,2)}, v{a} offset:{off}", tag=f"w{k}")
        else:
            I(f"ds_read_b64_tr_b16 {vr(b+2,2)}, v{a} offset:{off+d2}", tag=f"w{k}")
            if "post" in st: st["post"](k)
    def pump(self, k, n):
        c = 0
        while self.side and c < n and self.side[0][0] <= k:
            r = self.side.pop(0)[2]()
            c += r if isinstance(r, int) else 1
    def run(self, rate):
        n = len(self.steps); D = self.D
        for k in range(min(D, n)):
            self.issue(k, 0); self.issue(k, 1)
        for k in range(n):
            st = self.steps[k]
            while any(s[1] <= k for s in self.side): self.side.pop(0)[2]()
            if "need" in st: st["need"]()
            if k % 2 == 0 and k + 1 < n: e.wait(lg=f"w{k+1}")
            e.wait(lg=f"w{k}")
            mfs = st["mf"](vr(self.ring[k % len(self.ring)]), st)
            I(mfs[0])
            if k + D < n: self.issue(k + D, 0)
            if len(mfs) > 1:
                self.pump(k, (rate + 1) // 2)
                I(mfs[1])
            if k + D < n: self.issue(k + D, 1)
            for m in mfs[2:]: I(m)
            self.pump(k, rate // 2 if len(mfs) > 1 else rate)
            if k in self.after: self.after[k]()
            stamp(f"k{k}")
        while self.side: self.side.pop(0)[2]()
def cost(n, f):
    def g():
        f(); return n
    return g

e.raw(f"; @launch grid=(256,1,1) block=(512,1,1) lds=163840")
e.raw('.amdgcn_target "amdgcn-amd-amdhsa--gfx950"')
e.raw(".text")
e.raw(f".globl {NAME}_kernel")
e.raw(".p2align 8")
e.raw(f".type {NAME}_kernel,@function")
e.label(f"{NAME}_kernel")
I("s_load_dwordx16 s[4:19], s[0:1], 0")
I("s_load_dwordx4 s[20:23], s[0:1], 64")
if STAMP:
    I("s_memrealtime s[98:99]")
    I("s_memtime s[96:97]")
I("v_lshrrev_b32 v1, 6, v0")
I("s_cmp_ge_u32 s2, 256")
I("s_cbranch_scc1 L_end")
I(f"v_readfirstlane_b32 s{S_t2}, v1")
I("v_and_b32 v0, 63, v0")
I(f"s_bfe_u32 s{S_q}, s2, 0x20001")
I(f"s_and_b32 s{S_t0}, s2, 1")
I(f"s_lshl_b32 s{S_t0}, s{S_t0}, 3")
I(f"s_bfe_u32 s{S_r}, s2, 0x30003")
I(f"s_or_b32 s{S_r}, s{S_r}, s{S_t0}")
I(f"s_lshr_b32 s{S_jj}, s2, 6")
if OPT["rotq"]: I(f"s_add_u32 s{S_rot}, s{S_r}, s{S_q}")
else: I(f"s_mov_b32 s{S_rot}, s{S_r}")
I(f"s_and_b32 s{S_w}, s{S_t2}, 3")
I(f"s_lshl_b32 s{S_m0b}, s{S_w}, 12")
I(f"s_cmp_lt_u32 s{S_t2}, 4")
I("s_cbranch_scc1 L_C")

H_XD = 4; H_WD = 8; H_BD = 12; H_G = 18; H_BR = 20; H_ACC = 64
H_RING = [32, 36, 40, 44, 48, 52, 24, 28]
def a2r(lam, p):
    if lam < 16: return ar(lam * 8 + p * 4)
    return vr((56 if lam == 16 else 4) + p * 4)
I("s_setprio 3")
I("v_lshrrev_b32 v32, 4, v0")
I("v_lshrrev_b32 v36, 3, v0")
I("v_and_b32 v37, 7, v0")
I("v_xor_b32 v39, v37, v32")
I("v_lshlrev_b32 v39, 4, v39")
I(f"v_lshl_add_u32 v{H_XD}, v36, 11, v39")
I(f"v_xor_b32 v{H_XD+1}, 64, v{H_XD}")
I(f"v_add_u32 v{H_XD+2}, {14*1024}, v{H_XD+1}")
I(f"v_add_u32 v{H_XD+3}, {14*1024}, v{H_XD}")
I(f"s_lshl_b32 s{S_t0}, s{S_r}, 17")
I(f"s_lshl_b32 s{S_t1}, s{S_w}, 15")
I(f"s_add_u32 s{S_t0}, s{S_t0}, s{S_t1}")
for g4 in range(4):
    I(f"s_add_u32 s{S_WK+g4}, s{S_rot}, {g4}")
    I(f"s_and_b32 s{S_WK+g4}, s{S_WK+g4}, 3")
    I(f"s_lshl_b32 s{S_KG+g4}, s{S_WK+g4}, 8")
    I(f"s_add_u32 s{S_KG+g4}, s{S_KG+g4}, s{S_t0}")
I(f"s_mov_b32 s{S_X+2}, {2048*1024}")
I(f"s_mov_b32 s{S_X+3}, 0x20000")
assert phys(False, 0) == 4 and phys(False, 1) == 5 and phys(True, 0) == 3 and phys(True, 1) == 4 and phys(False, 2) == 6 and phys(True, 2) == 5
I(f"s_cmp_ge_u32 s{S_jj}, 2")
I(f"s_cselect_b32 s{S_t2}, 3, 4")
I(f"s_mov_b32 s{S_W+2}, {512*3584}")
I(f"s_cmov_b32 s{S_W+2}, {512*3072}")
I(f"s_mov_b32 s{S_P}, 3584")
I(f"s_cmov_b32 s{S_P}, 3072")
I(f"s_lshl_b32 s{S_t2}, s{S_t2}, 14")
I(f"s_add_u32 s{S_t2}, s{S_t2}, s{S_m0b}")
I(f"s_mov_b32 m0, s{S_t2}")
I(f"s_add_u32 s{S_SOFF}, s{S_KG}, 128")
after_karg()
I(f"s_mov_b32 s{S_X}, s4")
I(f"s_and_b32 s{S_X+1}, s5, 0xffff")
for i in range(4): I(f"buffer_load_dwordx4 v{H_XD+i}, {srd(S_X)}, s{S_KG} offen offset:{i*1024} lds", tag="u0")
I(f"s_add_u32 m0, s{S_t2}, {SLOT}")
I(f"s_mov_b32 s{S_W+3}, 0x20000")
dma4(H_XD, S_X, "u1")
I(f"s_lshl_b32 s{S_t0}, s{S_w}, 5")
I(f"v_add_u32 v38, s{S_t0}, v36")
I(f"v_mul_lo_u32 v38, v38, s{S_P}")
I(f"s_mul_i32 s{S_COL}, s{S_q}, 896")
I(f"s_lshl_b32 s{S_t0}, s{S_q}, 8")
I(f"s_add_u32 s{S_t0}, s{S_t0}, {1024-256}")
I(f"s_cmp_ge_u32 s{S_jj}, 2")
I(f"s_cselect_b32 s{S_W}, s6, s12")
I(f"s_cselect_b32 s{S_W+1}, s7, s13")
I(f"s_cselect_b32 s{S_COL}, s{S_t0}, s{S_COL}")
I(f"s_cselect_b32 s{S_t0}, 1, 2")
I(f"s_cselect_b32 s{S_t1}, 64, 0")
I(f"s_and_b32 s{S_W+1}, s{S_W+1}, 0xffff")
I("v_and_b32 v39, 1, v32")
I(f"v_lshlrev_b32 v39, s{S_t0}, v39")
I("v_xor_b32 v39, v39, v37")
I("v_lshlrev_b32 v39, 4, v39")
I(f"v_add_u32 v{H_WD}, v38, v39")
I(f"v_xor_b32 v39, s{S_t1}, v39")
I(f"s_lshl_b32 s{S_t0}, s{S_P}, 3")
I(f"s_sub_u32 s{S_t0}, s{S_t0}, 1024")
I(f"v_add3_u32 v{H_WD+1}, v38, v39, s{S_t0}")
I(f"s_lshl_b32 s{S_t0}, s{S_t0}, 1")
I(f"v_add_u32 v{H_WD+2}, s{S_t0}, v{H_WD}")
I(f"v_add_u32 v{H_WD+3}, s{S_t0}, v{H_WD+1}")
I(f"s_lshl_b32 s{S_t0}, s{S_jj}, 7")
I(f"s_add_u32 s{S_COL}, s{S_COL}, s{S_t0}")
I(f"s_lshl_b32 s{S_t1}, s{S_P}, 7")
for g4 in range(4): I(f"s_mul_i32 s{S_WK+g4}, s{S_WK+g4}, s{S_t1}")
I(f"s_add_u32 m0, s{S_t2}, {2*SLOT}")
I(f"s_add_u32 s{S_SOFF}, s{S_WK}, s{S_COL}")
dma4(H_WD, S_W, "u2")
common_ptrs()
mk_srd(S_OUT, 18, 2048 * 1024)
mk_srd(S_GW, 16, 1024)
I(f"s_cmp_ge_u32 s{S_jj}, 2")
I("s_cbranch_scc1 L_h_att")
snapH = e.snapshot()

def h_prog(att):
    e.restore(snapH); e.hist = []
    UL = units(att)
    CH = [0, -1024, 1024] if att else [0, 256, 512]
    def issue(k):
        un = UL[k]
        I(f"s_add_u32 m0, s{S_m0b}, {phys(att,k)*SLOT}")
        if un[0] == "x":
            I(f"s_add_u32 s{S_SOFF}, s{S_KG+un[1]}, {un[2]*128}")
            dma4(H_XD, S_X, f"u{k}")
            return
        _, c, u = un
        if c < 3:
            I(f"s_add_u32 s{S_SOFF}, s{S_WK+u}, s{S_COL}")
            if CH[c]: I(f"s_add_i32 s{S_SOFF}, s{S_SOFF}, {CH[c]}")
        else:
            KH = 256 * 3584
            if u == 0:
                I("v_lshrrev_b32 v2, 2, v0")
                I("v_lshrrev_b32 v1, 4, v0")
                I("v_xor_b32 v2, v2, v1")
                I("v_and_b32 v2, 1, v2")
                I(f"v_mul_u32_u24 v1, {KH-64}, v2")
                for i in range(4): I(f"v_add_u32 v{H_WD+i}, v{H_WD+i}, v1")
                I(f"v_mul_u32_u24 v2, {2*KH}, v2")
                I(f"v_sub_u32 v{H_XD}, {KH}, v2")
                I(f"s_cmp_ge_u32 s{S_WK}, {KH}")
                I(f"s_cselect_b32 s{S_t0}, 1, 0")
            else:
                I(f"s_cmp_ge_u32 s{S_WK}, {KH}")
                I(f"s_cselect_b32 s{S_t1}, 1, 0")
                I(f"s_cmp_ge_u32 s{S_WK+1}, {KH}")
                I(f"s_cselect_b32 s{S_t0}, 1, 0")
                I(f"s_sub_u32 s{S_t0}, s{S_t0}, s{S_t1}")
            for i in range(4): I(f"v_mad_i32_i24 v{H_WD+i}, v{H_XD}, s{S_t0}, v{H_WD+i}")
            I(f"s_min_u32 s{S_SOFF}, s{S_WK+u}, s{S_WK+u+2}")
            I(f"s_add_u32 s{S_SOFF}, s{S_SOFF}, s{S_COL}")
            I(f"s_lshl_b32 s{S_t0}, s{S_jj}, 6")
            I(f"s_sub_u32 s{S_SOFF}, s{S_SOFF}, s{S_t0}")
            I(f"s_add_u32 s{S_SOFF}, s{S_SOFF}, 768")
        dma4(H_WD, S_W, f"u{k}")
    def w0(f):
        l = U("w0")
        I(f"s_cmp_eq_u32 s{S_w}, 0"); I(f"s_cbranch_scc0 {l}")
        e.cond_begin(); f(); e.cond_end(); e.label(l)
    def peer_issue(): w0(lambda: I(f"s_load_dword s{S_POLL}, s[{S_DBG}:{S_DBG+1}], 0 glc"))
    def peer():
        def f():
            lp = U("pp"); ok = U("po")
            I("s_waitcnt lgkmcnt(0)")
            I(f"s_cmp_ge_u32 s{S_POLL}, 16")
            I(f"s_cbranch_scc0 {lp}")
            e.label(ok)
            SLOW.extend([f"{lp}:", "    s_sleep 8", f"    s_load_dword s{S_POLL}, s[{S_DBG}:{S_DBG+1}], 0 glc", "    s_waitcnt lgkmcnt(0)",
                         f"    s_cmp_ge_u32 s{S_POLL}, 16", f"    s_cbranch_scc1 {ok}"] + spin_tail(lp, ok))
        w0(f)
        I(f"s_mov_b32 s{S_POLL}, 0")
    V_Q = 64; V_S = 96; V_BIAS = 32; V_RINV = 40; V_T = 48; A_KV = 64; A_ONES = 96; V_AD = 24
    def att_setup(part):
        if part == 0:
            I(f"s_add_u32 s{S_t0}, s{S_m0b}, {EXCH_LDS+4096}")
            I(f"v_add_u32 v{V_AD}, s{S_t0}, v{V_L16}")
            I("v_bfe_u32 v1, v0, 3, 1")
            I("v_lshlrev_b32 v1, 12, v1")
            I(f"v_sub_u32 v{V_AD+2}, v{V_AD}, v1")
            I("v_xor_b32 v1, 4096, v1")
            I(f"v_sub_u32 v{V_AD+1}, v{V_AD}, v1")
            I("v_lshrrev_b32 v1, 5, v0")
            I("v_lshlrev_b32 v1, 12, v1")
            I(f"v_sub_u32 v{V_AD+4}, v{V_AD}, v1")
            I("v_xor_b32 v1, 4096, v1")
            I(f"v_sub_u32 v{V_AD+3}, v{V_AD}, v1")
            I(f"v_add_u32 v{V_AD+5}, {(QSLOT*SLOT - EXCH_LDS - 4096) & 0xffffffff}, v{V_AD}")
            I(f"s_mov_b32 s{S_CEXP}, {f2u(0.25*1.4426950408889634)}")
            I(f"s_or_b32 s{S_t0}, s{S_r}, s{S_w}")
            I(f"s_cmp_eq_u32 s{S_t0}, 0")
            I(f"s_cselect_b32 s{S_THR}, -16, -9")
            I(f"v_mov_b32 v{V_T}, 0x3f803f80")
            for k in range(4): I(f"v_accvgpr_write_b32 a{A_ONES+k}, v{V_T}")
            I(f"v_mov_b32 v{V_T}, {NEG}")
            I(f"v_and_b32 v{V_T+1}, 15, v0")
            I(f"v_lshrrev_b32 v{V_T+2}, 4, v0")
            I(f"v_lshlrev_b32 v{V_T+2}, 2, v{V_T+2}")
        elif part in (1, 2):
            p = part - 1; x8 = 8 if p == 0 else 0
            I(f"v_xor_b32 v{V_T+3}, {x8}, v{V_T+1}")
            I(f"v_xor_b32 v{V_T+4}, {x8}, v{V_T+2}")
            I(f"v_sub_u32 v{V_T+3}, v{V_T+3}, v{V_T+4}")
            for r in range(4):
                I(f"v_subrev_u32 v{V_T+4}, {r}, v{V_T+3}")
                I(f"v_cmp_lt_u32 vcc, 7, v{V_T+4}")
                I(f"v_cmp_lt_i32 s[56:57], s{S_THR}, v{V_T+4}")
                I("s_and_b64 vcc, vcc, s[56:57]")
                I(f"v_cndmask_b32 v{V_BIAS+p*4+r}, 0, v{V_T}, vcc")
        else:
            for k in range(16): I(f"v_mov_b32 v{V_Q+16*(part-3)+k}, 0")
            I("s_mov_b32 s56, 0xff00ff00"); I("s_mov_b32 s57, 0xff00ff00")
            I("s_not_b64 s[58:59], s[56:57]")
    def br_setup():
        I("v_bfe_u32 v1, v0, 2, 2")
        I("v_lshrrev_b32 v2, 5, v0")
        I("v_lshl_add_u32 v1, v2, 2, v1")
        I("v_lshlrev_b32 v1, 7, v1")
        I("v_bfe_u32 v2, v0, 4, 1")
        I("v_lshl_add_u32 v1, v2, 5, v1")
        I("v_bfe_u32 v2, v0, 3, 1")
        I("v_lshl_add_u32 v1, v2, 6, v1")
        I("v_and_b32 v2, 3, v0")
        I("v_lshl_add_u32 v1, v2, 3, v1")
        I(f"s_lshr_b32 s{S_t0}, s{S_q}, 1")
        I(f"s_lshl_b32 s{S_t0}, s{S_t0}, 13")
        I(f"s_and_b32 s{S_t1}, s{S_q}, 1")
        I(f"s_lshl_b32 s{S_t1}, s{S_t1}, 6")
        I(f"s_or_b32 s{S_t0}, s{S_t0}, s{S_t1}")
        I(f"v_xor_b32 v1, s{S_t0}, v1")
        for tau in range(4):
            cb = 3 - tau
            I(f"v_xor_b32 v{H_BR+tau}, {(cb>>1)*8192 + (cb&1)*64}, v1")
        I(f"s_lshl_b32 s{S_PB}, s{S_r}, 2"); I(f"s_add_u32 s{S_PB}, s{S_PB}, s{S_jj}")
        I(f"s_mul_i32 s{S_PB}, s{S_PB}, {12*8192}")
        I(f"s_lshl_b32 s{S_t0}, s{S_w}, 11"); I(f"s_add_u32 s{S_PB}, s{S_PB}, s{S_t0}"); I(f"s_add_u32 s{S_PB}, s{S_PB}, {PART_OFF}")
    if att:
        I(f"s_lshl_b32 s{S_t0}, s{S_r}, 17")
        I(f"s_sub_u32 s{S_t0}, s{S_t0}, 16384")
        I(f"v_add_u32 v38, s{S_t0}, v{H_XD}")
        I(f"s_add_u32 s{S_t0}, s{S_t0}, 1024")
        I(f"v_add_u32 v39, s{S_t0}, v{H_XD+1}")
        I("v_max_i32 v38, 0, v38")
        I("v_max_i32 v39, 0, v39")
        I(f"s_add_u32 s{S_t0}, s{S_rot}, s{S_w}")
        I(f"s_and_b32 s{S_t0}, s{S_t0}, 3")
        I(f"s_lshl_b32 s{S_t0}, s{S_t0}, 8")
        for i in range(4):
            kh, rh = divmod(i, 2)
            I(f"s_add_u32 m0, s{S_m0b}, {HALO_LDS + i*1024 - kh*128}")
            I(f"buffer_load_dwordx4 v{38+rh}, {srd(S_X)}, s{S_t0} offen offset:{kh*128} lds", tag="u2")
    PRE = OPT["pre"] - (1 if att else 0)
    for k in range(3, PRE + 1): issue(k)
    first = list(range(PRE + 1, 8))
    if att: sched = [first, [8, 9], [10], [11, 12, 13], [14], [15, 16, 17], [18], [19]]
    else: sched = [first, [8, 9], [10, 11], [12, 13], [14, 15], [16, 17], [18, 19], []]
    def gw_dma():
        I(f"s_mov_b32 m0, {GW_LDS}")
        w0(lambda: I(f"buffer_load_dwordx4 v{V_L16}, {srd(S_GW)}, 0 offen lds"))
    extra = {1: lambda: (late_scalars(), b2_voffs(H_BD)), 3: gw_dma, 7: (br_setup if att or OPT["sch"] else lambda: (b2_unit(8, H_BD), br_setup()))}
    if att: extra.update({2: lambda: (att_setup(0), att_setup(1)), 4: lambda: (att_setup(2), att_setup(3)), 6: lambda: att_setup(4)})
    gk = [k for k, un in enumerate(UL) if un[0] == "g"]
    def bar(i, need=None):
        stamp(f"h_a{i}")
        if need is None and i < len(gk): need = gk[i]
        if need is not None: e.wait(vm=f"u{need}")
        if i == 6: peer()
        I("s_barrier"); stamp(f"h_b{i}")
    for i in range(8):
        bar(i)
        if i == 4: peer_issue()
        for k in sched[i]: issue(k)
        if i in extra: extra[i]()
    def a2_load(lam):
        a2_soff(lam, S_t1)
        for p in range(2):
            I(f"buffer_load_dwordx4 {a2r(lam,p)}, v{V_L16}, {srd(S_WS)}, s{S_t1} offen offset:{p*1024} sc1", tag=f"a{lam}")
    def a2_items(lams, gap=1):
        F = []
        for lam in lams:
            F.append(cost(9, lambda lam=lam: (a2_soff(lam, S_COL), I(f"buffer_load_dwordx4 {a2r(lam,0)}, v{V_L16}, {srd(S_WS)}, s{S_COL} offen sc1", tag=f"a{lam}x"))))
            F += [cost(9, lambda: None)] * (gap - 1)
            F.append(cost(9, lambda lam=lam: I(f"buffer_load_dwordx4 {a2r(lam,1)}, v{V_L16}, {srd(S_WS)}, s{S_COL} offen offset:1024 sc1", tag=f"a{lam}")))
            F += [cost(9, lambda: None)] * (gap - 1)
        return F
    Bu = lambda g: b2_unit(g, H_BD)
    SS = []
    ALL = (0, 1, 2, 3)
    side = {}
    if not att:
        if OPT["sch"] == 0:
            bar(8); Bu(0)
            bar(9); issue(20); Bu(1)
            bar(10); push_group(ownbit(0), ALL); issue(21); Bu(2)
            bar(11); push_group(ownbit(1), ALL); Bu(3); poll_load()
            bar(12); poll_check(0x11)
            for lam in range(4): a2_load(lam)
            Bu(4); poll_load()
            bar(13); poll_check(0x22)
            for lam in range(4, 8): a2_load(lam)
            Bu(5)
            bar(14)
        else:
            bar(8)
            bar(9); issue(20)
            bar(10); push_group(ownbit(0), ALL); issue(21)
            bar(11); push_group(ownbit(1), ALL); Bu(0); Bu(1); poll_load()
            bar(12); poll_check(0x11); a2_load(0); a2_load(1); poll_load()
            bar(13); a2_load(2); a2_load(3); Bu(2)
            bar(14); poll_check(0x22)
            side[(0, 0)] = lambda: SS[0].add(0, 999, a2_items((4, 5, 6, 7), 2))
        def f_o(): poll_check(0x300); SS[0].add(0, 999, a2_items((16, 17, 14, 15)))
    else:
        def kv_reads(m0, tag):
            for t in range(4):
                I(f"ds_read_b64 {ar(A_KV+8*t,2)}, v{m0} offset:{t*1024}", tag=f"{tag}{t}")
                I(f"ds_read_b128 {ar(A_KV+8*t+2)}, v{V_AD} offset:{t*1024}", tag=f"{tag}{t}")
                I(f"ds_read_b64 {ar(A_KV+8*t+6,2)}, v{m0+1} offset:{t*1024+8}", tag=f"{tag}{t}")
        bar(8)
        kv_reads(V_AD + 1, "k")
        e.wait(lg="k3")
        poll_load()
        bar(9, 19)
        def Preg(t, p): return V_Q + 8 * t + 4 * p
        for half, m in enumerate(("s[56:57]", "s[58:59]")):
            I(f"s_mov_b64 exec, {m}")
            for t in range(4):
                for p in range(2):
                    I(f"ds_read_b64 {vr(Preg(t,p)+2*half,2)}, v{V_AD+5} offset:{t*1024+p*8}", tag="q")
        I("s_mov_b64 exec, -1")
        stamp("h_q")
        e.wait(lg="q")
        un = [(i >> 1, i & 1) for i in range(8)]
        Sc = lambda i: V_S + 4 * i
        for i, (t, p) in enumerate(un): I(f"{MF} {vr(Sc(i))}, {ar(A_KV+8*t+4*p)}, {vr(Preg(t,p))}, {vr(V_BIAS+4*p)}")
        Bu(0)
        m = [V_T + i for i in range(8)]
        for i in range(8):
            if OPT["lround"]:
                I(f"v_cvt_pk_bf16_f32 v1, v{Sc(i)}, v{Sc(i)+1}")
                I(f"v_cvt_pk_bf16_f32 v2, v{Sc(i)+2}, v{Sc(i)+3}")
                I(f"v_lshlrev_b32 v{Sc(i)}, 16, v1")
                I(f"v_and_b32 v{Sc(i)+1}, 0xffff0000, v1")
                I(f"v_lshlrev_b32 v{Sc(i)+2}, 16, v2")
                I(f"v_and_b32 v{Sc(i)+3}, 0xffff0000, v2")
            I(f"v_max3_f32 v{m[i]}, v{Sc(i)}, v{Sc(i)+1}, v{Sc(i)+2}")
            I(f"v_max_f32 v{m[i]}, v{m[i]}, v{Sc(i)+3}")
        for k in range(4): I(f"v_permlane32_swap_b32 v{m[2*k]}, v{m[2*k+1]}")
        for k in range(4): I(f"v_max_f32 v{m[2*k]}, v{m[2*k]}, v{m[2*k+1]}")
        for k in range(2): I(f"v_permlane16_swap_b32 v{m[4*k]}, v{m[4*k+2]}")
        for k in range(2): I(f"v_max_f32 v{m[4*k]}, v{m[4*k]}, v{m[4*k+2]}")
        for k in range(2): I(f"v_mul_f32 v{m[4*k+2]}, s{S_CEXP}, v{m[4*k]}")
        for k in range(2): I(f"v_mul_f32 v{m[4*k]}, s{S_CEXP}, v{m[4*k]}")
        for k in range(2): I(f"v_permlane16_swap_b32 v{m[4*k]}, v{m[4*k+2]}")
        for k in range(4): I(f"v_mov_b32 v{m[2*k+1]}, v{m[2*k]}")
        for k in range(4): I(f"v_permlane32_swap_b32 v{m[2*k]}, v{m[2*k+1]}")
        Bu(1)
        poll_check(0x33)
        for i in range(8):
            for r in range(4): I(f"v_fma_f32 v{Sc(i)+r}, v{Sc(i)+r}, s{S_CEXP}, -v{m[i]}")
            for r in range(4): I(f"v_exp_f32 v{Sc(i)+r}, v{Sc(i)+r}")
            a2_load(i)
        for half, mk in enumerate(("s[56:57]", "s[58:59]")):
            I(f"s_mov_b64 exec, {mk}")
            for i, (t, p) in enumerate(un):
                I(f"v_cvt_pk_bf16_f32 v{Preg(t,p)+2*half}, v{Sc(i)}, v{Sc(i)+1}")
                I(f"v_cvt_pk_bf16_f32 v{Preg(t,p)+2*half+1}, v{Sc(i)+2}, v{Sc(i)+3}")
        I("s_mov_b64 exec, -1")
        for i, (t, p) in enumerate(un): I(f"{MF} {vr(Sc(i))}, {ar(A_ONES)}, {vr(Preg(t,p))}, 0")
        for i in range(8): I(f"v_rcp_f32 v{V_RINV+i}, v{Sc(i)}")
        stamp("h_sm")
        I("s_barrier")
        kv_reads(V_AD + 3, "v")
        e.wait(lg="v3")
        I("s_barrier")
        for i, (t, p) in enumerate(un): I(f"{MF} {vr(Sc(i))}, {ar(A_KV+8*t+4*p)}, {vr(Preg(t,p))}, 0")
        for b in range(2):
            for t in (2 * b, 2 * b + 1):
                ob = (56 if b == 0 else 4) + (t & 1) * 4
                for p in range(2):
                    o = Sc(2 * t + p)
                    for r in range(4): I(f"v_mul_f32 v{o+r}, v{V_RINV+2*t+p}, v{o+r}")
                    I(f"v_cvt_pk_bf16_f32 v{ob+2*p}, v{o}, v{o+1}")
                    I(f"v_cvt_pk_bf16_f32 v{ob+2*p+1}, v{o+2}, v{o+3}")
            a2_soff(16 + b, S_t1)
            for t1 in range(2):
                ob = (56 if b == 0 else 4) + t1 * 4
                I(f"v_permlane16_swap_b32 v{ob}, v{ob+2}")
                I(f"v_permlane16_swap_b32 v{ob+1}, v{ob+3}")
            for p in range(2):
                I(f"buffer_store_dwordx4 {a2r(16+b,p)}, v{V_L16}, {srd(S_WS)}, s{S_t1} offen offset:{p*1024} sc1", tag="so")
        stamp("h_so")
        def f_push():
            e.wait(vm="so")
            push_group(lambda: I(f"s_lshl_b32 s{S_t2}, 64, s{S_jj}"), (1, 2, 3))
        side[(0, 14)] = f_push
        def f_o():
            I(f"s_xor_b32 s{S_THR}, s{S_jj}, 1"); I(f"s_lshl_b32 s{S_THR}, 64, s{S_THR}")
            poll_check(f"s{S_THR}"); SS[0].add(0, 999, a2_items((14, 15)))
    def f_c(): poll_check(0x44); SS[0].add(0, 999, a2_items((8, 9, 10, 11)))
    def f_h(): poll_check(0x88); SS[0].add(0, 999, a2_items((12, 13)))
    side.update({(8, -46): poll_load, (8, -28): f_c, (12, -42): poll_load, (12, -26): f_h, (16, -40): poll_load, (16, -24): f_o})
    I("s_setprio 1")
    stamp("h_p2")
    own = [16, 17] if att else []
    LD = OPT["ld"]
    oo = [16, 17, 14, 15]
    TM = 14 - OPT["tm"]
    seq = [(lam, tau) for lam in range(TM) for tau in range(4 if lam < LD else 3)]
    seq += [(lam, tau) for tau in range(3) for lam in list(range(TM, 14)) + oo]
    seq += [(lam, 3) for lam in list(range(LD, 14)) + oo]
    steps = []; rng = {}; seen_g = set(); seen_l = set(); first_ = set()
    for (lam, tau) in seq:
        g = lam >> 1
        for kh in range(2):
            a = H_BR + tau
            off = g * SLOT + (lam & 1) * 4096 + kh * 2048
            hi = off >> 16
            st = dict(rd=(a, off & 0xffff, 1024))
            pres = []
            if g not in seen_g:
                seen_g.add(g); t = U("t")
                if len(steps) >= 3: steps[-3]["post"] = lambda k, g=g, t=t: d_read(f"Lb{g}", t)
                else: pres.append(lambda g=g, t=t: d_read(f"Lb{g}", t))
                pres.append(lambda g=g, t=t: d_check(f"Lb{g}", t))
            if rng.get(a, 0) != hi:
                dlt = (hi - rng.get(a, 0)) * 65536; rng[a] = hi
                pres.append(lambda a=a, dlt=dlt: I(f"v_add_u32 v{a}, {dlt & 0xffffffff}, v{a}"))
            if pres: st["pre"] = lambda pres=pres: [f() for f in pres]
            at = 4 if (tau == 3 and lam >= 14) else tau
            zero = at not in first_; first_.add(at)
            d = vr(H_ACC + 16 * (at & 3 if at < 4 else 0), 16)
            st["mf"] = lambda W, st, lam=lam, kh=kh, d=d, zero=zero: [f"{M32} {d}, {W}, {a2r(lam,kh)}, {'0' if zero else d}"]
            if lam not in seen_l:
                seen_l.add(lam)
                if lam not in own: st["need"] = lambda lam=lam: e.wait(vm=f"a{lam}")
            st["id"] = (lam, tau, kh)
            steps.append(st)
    S = Stream(steps, OPT["D2"], H_RING)
    SS.append(S)
    idx = {st["id"]: k for k, st in enumerate(steps)}
    n = len(steps)
    for (lam, d), f in side.items(): S.aft(idx[(lam, 0, 0)] + d, f)
    def scale(tau, greg): return [lambda r=r: I(f"v_mul_f32 v{r}, v{greg}, v{r}") for r in range(H_ACC + 16 * tau, H_ACC + 16 * tau + 16)]
    def pack(tau):
        b = H_ACC + tau * 16
        return [lambda k=k: I(f"v_cvt_pk_bf16_f32 v{b+k}, v{b+2*k}, v{b+2*k+1}") for k in range(8)]
    def send(tau):
        def so():
            I(f"s_xor_b32 s{S_GIN}, s{S_q}, {3-tau}"); I(f"s_mul_i32 s{S_GIN}, s{S_GIN}, {3*8192}")
            I(f"s_add_u32 s{S_GIN}, s{S_GIN}, s{S_PB}"); I(f"s_add_u32 s{S_GIN}, s{S_GIN}, {tau*8192}")
        return [so] + pack(tau) + [cost(3, lambda j=j: I(f"buffer_store_dwordx4 {vr(H_ACC+tau*16+j*4)}, v{V_L16}, {srd(S_WS)}, s{S_GIN} offen offset:{j*1024} sc1", tag=f"p{tau}")) for j in range(2)]
    def pflag(tau):
        assert e.vmq[0][0].count(f"p{tau}") == 2
        stamp(f"h_pa{tau}")
        e.wait(vm=f"p{tau}")
        stamp(f"h_pb{tau}")
        I(f"s_xor_b32 s{S_t0}, s{S_MYIN}, {(3-tau)*2048}")
        I(f"s_mov_b32 s{S_KG+tau}, {1024<<tau}")
        I(f"s_atomic_or s{S_KG+tau}, s[{S_INB}:{S_INB+1}], s{S_t0}")
    def gget():
        I(f"s_lshl_b32 s{S_t0}, s{S_w}, 8"); I(f"s_add_u32 s{S_t0}, s{S_t0}, {GB_LDS}")
        I("v_and_b32 v1, 31, v0")
        I(f"v_lshl_add_u32 v1, v1, 3, s{S_t0}")
        I(f"ds_read_b64 {vr(H_G,2)}, v1", tag="gz")
    S.aft(idx[(12, 0, 0)] - 3, gget)
    S.aft(idx[(13, 0, 1)], lambda: e.wait(lg="gz"))
    for tau in range(4):
        k = idx[(13, tau, 1)]
        S.aft(k, lambda k=k, tau=tau: S.add(k + 3, idx[(oo[0], tau, 0)] if tau < 3 else n, scale(tau, H_G + 1)))
    late_flags = []
    for tau in range(3):
        k = idx[(oo[-1], tau, 1)]
        S.aft(k, lambda k=k, tau=tau: S.add(k + 3, k + 8, send(tau)))
        kf = k + 7 + OPT["pfd"]
        if kf <= n - OPT["D2"] - 14: S.aft(kf, lambda tau=tau: pflag(tau))
        else: late_flags.append(tau)
    S.aft(n - OPT["D2"], lambda: (e.wait(lg=f"w{n-1}"), [pflag(t) for t in late_flags[:-1]], poll_load()))
    S.aft(idx[(8, 0, 0)], lambda: stamp("h_late"))
    S.aft(idx[(oo[0], 0, 0)], lambda: stamp("h_o"))
    S.aft(idx[(LD, 3, 0)], lambda: stamp("h_own"))
    S.run(OPT["side2"])
    I(f"s_mul_i32 s{S_GIN}, s{S_q}, {3*8192}")
    I(f"s_add_u32 s{S_GIN}, s{S_GIN}, s{S_PB}")
    I("v_bfe_u32 v5, v0, 4, 1")
    I("v_lshlrev_b32 v6, 3, v5")
    I("v_xor_b32 v6, 8, v6")
    I("v_and_b32 v4, 15, v0")
    I("v_xor_b32 v4, v4, v6")
    I("v_lshl_add_u32 v4, v4, 1, v5")
    I("v_lshrrev_b32 v5, 5, v0")
    I("v_lshlrev_b32 v5, 4, v5")
    I("v_lshl_add_u32 v4, v4, 10, v5")
    I(f"s_lshl_b32 s{S_COL}, s{S_r}, 17"); I(f"s_lshl_b32 s{S_t1}, s{S_w}, 15"); I(f"s_add_u32 s{S_COL}, s{S_COL}, s{S_t1}")
    I(f"s_lshl_b32 s{S_t1}, s{S_jj}, 8"); I(f"s_add_u32 s{S_COL}, s{S_COL}, s{S_t1}")
    I(f"s_lshl_b32 s{S_t1}, s{S_q}, 6"); I(f"s_add_u32 s{S_COL}, s{S_COL}, s{S_t1}")
    for t in late_flags[-1:]: pflag(t)
    O = H_ACC + 48
    for k in range(8): I(f"v_pk_add_f32 {vr(O+2*k,2)}, {vr(O+2*k,2)}, {vr(H_ACC+2*k,2)}")
    for tau in range(3):
        poll_check(1024 << tau)
        stamp(f"h_r{tau}")
        if tau == 2: stamp("h_rcv")
        for j in range(2):
            I(f"buffer_load_dwordx4 {vr(24+tau*8+j*4)}, v{V_L16}, {srd(S_WS)}, s{S_GIN} offen offset:{j*1024} sc1", tag=f"r{tau}")
        if tau < 2: I(f"s_add_u32 s{S_GIN}, s{S_GIN}, 8192")
    for tau in range(3):
        e.wait(vm=f"r{tau}")
        b = H_ACC + 16
        for k in range(8):
            I(f"v_lshlrev_b32 v{b+2*k}, 16, v{24+tau*8+k}")
            I(f"v_and_b32 v{b+2*k+1}, 0xffff0000, v{24+tau*8+k}")
        for k in range(8): I(f"v_pk_add_f32 {vr(O+2*k,2)}, {vr(O+2*k,2)}, {vr(b+2*k,2)}")
    for k in range(8): I(f"v_pk_mul_f32 {vr(O+2*k,2)}, {vr(O+2*k,2)}, {vr(H_G,2)} op_sel_hi:[1,0]")
    stamp("h_sum")
    for f in pack(3): f()
    for j in range(2):
        I(f"v_permlane32_swap_b32 v{O+4*j}, v{O+4*j+2}")
        I(f"v_permlane32_swap_b32 v{O+4*j+1}, v{O+4*j+3}")
        I(f"buffer_store_dwordx4 {vr(O+4*j)}, v4, {srd(S_OUT)}, s{S_COL} offen offset:{j*32}")
    finish()

h_prog(False)
e.label("L_h_att")
h_prog(True)

e.label("L_C")
role[0] = "C"
reset()
C_WR = 4; C_XR = 12; C_EXW = 18; C_HA = 20; C_HX = (24, 56, 60); C_HACC = 28; C_ACC = 64
I("s_setprio 2")
if OPT["codepf"]:
    I("s_cmp_lt_u32 s2, 16")
    I("s_cbranch_scc0 L_nopf")
    e.cond_begin()
    I("s_getpc_b64 s[56:57]")
    e.label("L_pc")
    I(f"s_sub_u32 s56, s56, L_pc-{NAME}_kernel")
    I("s_subb_u32 s57, s57, 0")
    I(f"s_lshr_b32 s{S_t0}, s2, 3")
    I(f"s_lshl_b32 s{S_t0}, s{S_t0}, 15")
    I(f"v_lshlrev_b32 v2, 7, v0")
    I(f"v_lshl_add_u32 v2, v1, 13, v2")
    I(f"v_add_u32 v2, s{S_t0}, v2")
    I(f"v_min_u32 v2, L_end-{NAME}_kernel, v2")
    I(f"global_load_dword v23, v2, s[56:57]")
    e.cond_end()
    e.label("L_nopf")
late_scalars()
I("v_lshlrev_b32 v2, 2, v0")
I(f"v_add_u32 v2, {EV_LDS}, v2")
I("v_mov_b32 v1, 1")
I("ds_write_b32 v2, v1")
I("v_mov_b32 v1, 0")
I("ds_write_b32 v2, v1 offset:256")
I("v_lshrrev_b32 v32, 4, v0")
I("v_and_b32 v33, 15, v0")
I("v_bfe_u32 v34, v0, 2, 2")
I("v_and_b32 v35, 3, v0")
after_karg()
common_ptrs()
I(f"s_cmp_eq_u32 s{S_w}, 0")
I("s_cbranch_scc0 L_c_noinit")
e.cond_begin()
for k in range(4):
    I(f"s_mov_b32 s{S_KG+k}, 0")
    I(f"s_add_u32 s{S_t0}, s{S_MYIN}, {k*128}")
    I(f"s_atomic_swap s{S_KG+k}, s[{S_INB}:{S_INB+1}], s{S_t0} glc")
e.cond_end()
e.label("L_c_noinit")
I(f"s_cmp_ge_u32 s{S_jj}, 2")
I("s_cbranch_scc1 L_c_att")

def c_prog(att):
    reset()
    UL = units(att)
    slot_of = {un: phys(att, k) for k, un in enumerate(UL)}
    subs = [un for un in UL if un[0] == "g"]
    def vtouch():
        P = 3072 if att else 3584; wp = 6 if att else 12
        mk_srd(S_W, wp, 512 * P)
        I(f"s_lshl_b32 s{S_t0}, s{S_r}, 2"); I(f"s_add_u32 s{S_t0}, s{S_t0}, s{S_w}")
        I(f"s_mul_i32 s{S_t1}, s{S_t0}, {8*P}")
        I(f"s_mul_i32 s{S_t2}, s{S_q}, {256 if att else 896}"); I(f"s_add_u32 s{S_t1}, s{S_t1}, s{S_t2}")
        I("v_and_b32 v1, 7, v0"); I(f"v_mul_u32_u24 v1, {P}, v1")
        I(f"s_lshl_b32 s{S_t2}, s{S_j1}, 7"); I(f"s_add_u32 s{S_t2}, s{S_t2}, s{S_t1}")
        I("v_lshlrev_b32 v2, 7, v0")
        I("s_mov_b64 exec, 0xff")
        I(f"buffer_load_dword v22, v1, {srd(S_W)}, s{S_t2} offen offset:{2048 if att else 512}")
        if OPT["tB"]: I(f"buffer_load_dword v22, v1, {srd(S_W)}, s{S_t2} offen offset:{0 if att else 256}")
        if not att:
            I(f"s_mul_i32 s{S_t2}, s{S_j1}, {4*P}"); I(f"s_add_u32 s{S_t2}, s{S_t2}, s{S_t1}")
            I("s_mov_b64 exec, 0xf")
            I(f"buffer_load_dword v22, v1, {srd(S_W)}, s{S_t2} offen offset:768")
        I(f"s_lshl_b32 s{S_t0}, s{S_t0}, 2"); I(f"s_add_u32 s{S_t0}, s{S_t0}, s{S_jj}")
        F_ = 2 if OPT["tfull"] else 1
        if OPT["tfull"]: I(f"s_and_b32 s{S_t0}, s{S_t0}, 127"); I(f"s_lshl_b32 s{S_t0}, s{S_t0}, 1")
        I(f"s_mul_i32 s{S_t1}, s{S_t0}, 1792"); I(f"s_mul_i32 s{S_t2}, s{S_q}, {448*1024}"); I(f"s_add_u32 s{S_t1}, s{S_t1}, s{S_t2}")
        I(f"s_mov_b64 exec, {(1 << (14*F_)) - 1}")
        I(f"buffer_load_dword v22, v2, {srd(S_W2)}, s{S_t1} offen")
        I(f"s_lshl_b32 s{S_t1}, s{S_t0}, 9"); I(f"s_lshl_b32 s{S_t2}, s{S_q}, 17"); I(f"s_add_u32 s{S_t1}, s{S_t1}, s{S_t2}")
        I(f"s_mov_b64 exec, {(1 << (4*F_)) - 1}")
        I(f"buffer_load_dword v22, v2, {srd(S_WO)}, s{S_t1} offen")
        I("s_mov_b64 exec, -1")
    if OPT["spf"] == 2 and OPT["tearly"]: vtouch()
    if att:
        for p in range(2):
            I(f"v_xor_b32 v38, {8 if p == 0 else 0}, v33")
            I("v_and_b32 v39, 8, v38")
            I("v_add_u32 v39, v39, v38")
            I("v_lshlrev_b32 v39, 7, v39")
            I("v_lshrrev_b32 v38, 1, v38")
            I("v_xor_b32 v38, v38, v32")
            I("v_lshl_add_u32 v39, v38, 4, v39")
            I(f"v_add_u32 v39, s{S_m0b}, v39")
            I(f"v_add_u32 v{C_XR+2*p+p}, {p*1024}, v39")
            I(f"v_xor_b32 v{C_XR+2*p+1-p}, 64, v{C_XR+2*p+p}")
        I("v_lshl_add_u32 v38, v32, 3, v34")
        I("v_lshlrev_b32 v38, 7, v38")
        I("v_lshl_add_u32 v38, v35, 3, v38")
        I("v_lshrrev_b32 v39, 1, v34")
        I("v_and_b32 v40, 1, v32")
        I("v_lshl_or_b32 v39, v40, 1, v39")
        I(f"v_xor_b32 v41, s{S_w}, v39")
        for t in range(4):
            I(f"v_xor_b32 v40, {t}, v41")
            I(f"v_lshl_add_u32 v{C_WR+t}, v40, 5, v38")
            I(f"v_add_u32 v{C_WR+4+t}, 0x10000, v{C_WR+t}")
        I("v_lshrrev_b32 v38, 1, v33")
        I("v_xor_b32 v38, v38, v32")
        I("v_lshlrev_b32 v38, 4, v38")
        I("v_lshl_add_u32 v38, v33, 7, v38")
        I(f"v_add_u32 v{C_HA}, {HALO_LDS}, v38")
        I(f"v_xor_b32 v{C_HA+1}, 64, v{C_HA}")
        I(f"s_mul_i32 s{S_t0}, s{S_w}, 5120")
        I(f"s_add_u32 s{S_t0}, s{S_t0}, {EXCH_LDS+4096}")
        I(f"v_add_u32 v{C_EXW}, s{S_t0}, v{V_L16}")
        I("v_add_u32 v19, 1, v35")
        I("v_bfe_u32 v19, v19, 1, 1")
        I("v_mul_u32_u24 v19, 24, v19")
    else:
        I("v_and_b32 v40, 1, v32")
        I("v_lshlrev_b32 v38, 3, v40")
        I("v_xor_b32 v38, 8, v38")
        I("v_xor_b32 v38, v38, v33")
        I("v_and_b32 v39, 8, v38")
        I("v_add_u32 v39, v39, v38")
        I("v_lshl_add_u32 v39, v40, 3, v39")
        I("v_lshlrev_b32 v39, 7, v39")
        I("v_lshrrev_b32 v38, 1, v38")
        I("v_lshlrev_b32 v41, 2, v40")
        I("v_xor_b32 v38, v38, v41")
        I("v_lshrrev_b32 v41, 1, v32")
        I("v_xor_b32 v38, v38, v41")
        I("v_lshl_add_u32 v39, v38, 4, v39")
        I(f"v_add_u32 v{C_XR}, s{S_m0b}, v39")
        for k in range(1, 4): I(f"v_xor_b32 v{C_XR+k}, {32*k}, v{C_XR}")
        I("v_lshl_add_u32 v38, v41, 3, v34")
        I("v_lshlrev_b32 v38, 7, v38")
        I("v_lshl_add_u32 v38, v35, 3, v38")
        I("v_lshl_add_u32 v38, v40, 5, v38")
        I("v_lshrrev_b32 v39, 1, v34")
        I(f"v_lshl_add_u32 v{C_WR}, v39, 6, v38")
        I(f"v_xor_b32 v{C_WR+1}, 64, v{C_WR}")
        for t in range(2): I(f"v_add_u32 v{C_WR+4+t}, 0x10000, v{C_WR+t}")
    if OPT["spf"] == 2 and not OPT["tearly"]: vtouch()
    if OPT["spf"] == 1:
        P = 3072 if att else 3584; wp = 6 if att else 12
        I(f"s_lshl_b32 s{S_t0}, s{S_r}, 2"); I(f"s_add_u32 s{S_t0}, s{S_t0}, s{S_w}")
        I(f"s_mul_i32 s{S_t1}, s{S_t0}, {8*P}")
        I(f"s_mul_i32 s{S_t2}, s{S_q}, {256 if att else 896}"); I(f"s_add_u32 s{S_t1}, s{S_t1}, s{S_t2}")
        I(f"s_lshl_b32 s{S_t2}, s{S_j1}, 7"); I(f"s_add_u32 s{S_t2}, s{S_t2}, s{S_t1}")
        I(f"s_add_u32 s56, s{wp}, s{S_t2}"); I(f"s_addc_u32 s57, s{wp+1}, 0")
        for k in range(8): I(f"s_load_dword s{S_EV}, s[56:57], {k*P + (2048 if att else 512)}")
        if not att:
            I(f"s_mul_i32 s{S_t2}, s{S_j1}, {4*P}"); I(f"s_add_u32 s{S_t2}, s{S_t2}, s{S_t1}")
            I(f"s_add_u32 s56, s{wp}, s{S_t2}"); I(f"s_addc_u32 s57, s{wp+1}, 0")
            for k in range(4): I(f"s_load_dword s{S_EV}, s[56:57], {k*P + 768}")
        I(f"s_lshl_b32 s{S_t0}, s{S_t0}, 2"); I(f"s_add_u32 s{S_t0}, s{S_t0}, s{S_jj}")
        I(f"s_mul_i32 s{S_t1}, s{S_t0}, 1792"); I(f"s_mul_i32 s{S_t2}, s{S_q}, {448*1024}"); I(f"s_add_u32 s{S_t1}, s{S_t1}, s{S_t2}")
        I(f"s_add_u32 s56, s14, s{S_t1}"); I("s_addc_u32 s57, s15, 0")
        for k in range(14): I(f"s_load_dword s{S_EV}, s[56:57], {k*128}")
        I(f"s_lshl_b32 s{S_t1}, s{S_t0}, 9"); I(f"s_lshl_b32 s{S_t2}, s{S_q}, 17"); I(f"s_add_u32 s{S_t1}, s{S_t1}, s{S_t2}")
        I(f"s_add_u32 s56, s8, s{S_t1}"); I("s_addc_u32 s57, s9, 0")
        for k in range(4): I(f"s_load_dword s{S_EV}, s[56:57], {k*128}")
        I("s_waitcnt lgkmcnt(0)")
    l = U("ci")
    I(f"s_cmp_eq_u32 s{S_w}, 0"); I(f"s_cbranch_scc0 {l}")
    e.cond_begin()
    I(f"s_mov_b32 s{S_t1}, 1")
    I("s_waitcnt lgkmcnt(0)")
    I(f"s_atomic_add s{S_t1}, s[{S_DBG}:{S_DBG+1}], 0")
    e.cond_end(); e.label(l)
    stamp("c_go")
    def xfr(p, s): return ar((p * 16 + s) * 4)
    def xf32(s16): return ar(s16 * 4)
    def acc(c, T, p=0):
        base = C_ACC + 32 * (c & 1)
        return base + (T * 2 + p) * 4 if att else base + T * 16
    def xread(dst, areg, slot, tmp, k):
        base = slot * SLOT
        if base >= 65536:
            I(f"v_add_u32 v{tmp}, {base & ~0xffff}, v{areg}"); areg = tmp
        I(f"ds_read_b128 {dst}, v{areg} offset:{base & 0xffff}", tag=f"w{k}")
    steps = []; nh = [0]
    for i, un in enumerate(subs):
        _, c, u = un; slot = slot_of[un]
        for j in range(16):
            h = j >> 3
            if att:
                ks = (j >> 1) & 3; T = 2 * h + (j & 1); s = 4 * u + ks; zero = (u == 0 and ks == 0)
                halo = T == 0 and c != 1
                st = dict(rd=(C_WR + (4 if slot >= 4 else 0) + T, (slot & 3) * SLOT + ks * 4096, 512))
                def mf(W, st, s=s, T=T, zero=zero, c=c, halo=halo):
                    out = []
                    for p in range(2):
                        a, b = (xfr(p, s), W) if c == 2 else (W, xfr(p, s))
                        d = vr(acc(c, T, p))
                        out.append(f"{MF} {d}, {a}, {b}, {'0' if zero else d}")
                    if halo:
                        a, b = (vr(st["hreg"]), W) if c == 2 else (W, vr(st["hreg"]))
                        out.append(f"{MF} {vr(C_HACC)}, {a}, {b}, {'0' if zero else vr(C_HACC)}")
                    return out
                def post(k, st=st, s=s, halo=halo, j=j, c=c, u=u, ks=ks):
                    if c == 0 and j < 8 and j % 2 == 0:
                        for p in range(2): xread(xfr(p, s), C_XR + 2 * p + (ks & 1), slot_of[("x", u, ks >> 1)], 1 + p, k)
                    if halo:
                        st["hreg"] = C_HX[nh[0] % 3]; nh[0] += 1
                        I(f"ds_read_b128 {vr(st['hreg'])}, v{C_HA+(s&1)} offset:{(s>>1)*2048}", tag=f"w{k}")
            else:
                kk = j & 7
                if c < 3: s16 = 8 * u + kk; ta = h; zero = (u == 0 and kk == 0)
                else: s16 = 8 * (u + 2 * h) + kk; ta = 0; zero = (u == 0 and j == 0)
                st = dict(rd=(C_WR + (4 if slot >= 4 else 0) + h, (slot & 3) * SLOT + kk * 2048, 512))
                d = vr(acc(c, ta), 16)
                def mf(W, st, s16=s16, d=d, zero=zero): return [f"{M32} {d}, {W}, {xf32(s16)}, {'0' if zero else d}"]
                def post(k, s16=s16, j=j, c=c, u=u, kk=kk):
                    if c == 0 and j < 8: xread(xf32(s16), C_XR + (kk & 3), slot_of[("x", u, kk >> 2)], 1 + (kk & 1), k)
            st["mf"] = mf; st["post"] = post
            if j == 0:
                def pre(i=i):
                    stamp(f"t{i}")
                    if att and i in (8, 9):
                        assert e.lgq[0][0].count(f"exw{i-8}") == (5 if i == 8 else 4)
                        e.wait(lg=f"exw{i-8}")
                    if not att and i - OPT["ackb"] in (0, 1):
                        assert e.vmq[0][0].count(f"st{i-OPT['ackb']}") == 4
                        e.wait(vm=f"st{i-OPT['ackb']}")
                    if i < (10 if att else 14): I("s_barrier")
                    stamp(f"s{i}")
                    if att and i == 8:
                        for t in range(8): I(f"v_xor_b32 v{C_WR+t}, v19, v{C_WR+t}")
                st["pre"] = pre
            steps.append(st)
    if att: S = Stream(steps, OPT["D"], [32, 36, 40, 44, 48, 52])
    else: S = Stream(steps, OPT["DF"], [32, 36, 40, 44, 48, 52, 56, 60])
    DD = S.D
    def packn(a, n_): return [lambda k=k: I(f"v_cvt_pk_bf16_f32 v{a+k}, v{a+2*k}, v{a+2*k+1}") for k in range(n_)]
    def epi(c, h):
        F = []
        if att:
            for t in (2 * h, 2 * h + 1):
                a = acc(c, t, 0)
                F += packn(a, 4)
                def wr(t=t, a=a):
                    I(f"v_xor_b32 v1, {t*1024}, v{C_EXW}")
                    if c == 1: I(f"v_add_u32 v1, {(QSLOT*SLOT - EXCH_LDS - 4096) & 0xffffffff}, v1")
                    I(f"ds_write_b128 v1, {vr(a)}", tag=f"exw{c}")
                F.append(wr)
            if h == 0 and c != 1:
                def hw():
                    I(f"v_cvt_pk_bf16_f32 v{C_HACC}, v{C_HACC}, v{C_HACC+1}")
                    I(f"v_cvt_pk_bf16_f32 v{C_HACC+1}, v{C_HACC+2}, v{C_HACC+3}")
                    I(f"s_add_u32 s{S_t0}, s{S_m0b}, 4096")
                    I(f"v_subrev_u32 v1, s{S_t0}, v{C_EXW}")
                    I(f"ds_write2_b64 v1, {vr(C_HACC,2)}, {vr(C_HACC,2)} offset0:0 offset1:1", tag=f"exw{c}")
                F.append(hw)
        else:
            a = acc(c, h)
            F += packn(a, 8)
            def so():
                I(f"s_lshr_b32 s{S_GIN}, s{S_J32}, {2 if c < 3 else 3}")
                I(f"s_add_u32 s{S_GIN}, s{S_GIN}, s{S_A2}"); I(f"s_add_u32 s{S_GIN}, s{S_GIN}, {(4*c+h)*8192}")
            F.append(so)
            for p in range(2):
                F += [lambda k=k: I(f"v_pk_max_i16 v{k}, v{k}, 0") for k in range(a + 4 * p, a + 4 * p + 4)]
                F.append(cost(9, lambda p=p: I(f"buffer_store_dwordx4 {vr(a+4*p)}, v{V_L16}, {srd(S_WS)}, s{S_GIN} offen offset:{p*1024} sc1", tag=f"st{c}")))
        return F
    n = len(steps)
    for c, i, reuse in ((0, 6, 8), (1, 7, 12), (2, 11, 99)):
        for h in range(2):
            k = 16 * i + 8 * h + 7
            if k == n - 1: continue
            dl = min(16 * reuse + (8 * h if reuse == 8 else 0), n)
            if att and c < 2: dl = 16 * (8 + c) - DD - 3
            S.aft(k, lambda k=k, c=c, h=h, dl=dl: S.add(max(k + (2 if att else 4), 16 * 7 - DD + 1 if att else 0), dl, epi(c, h)))
    S.run(OPT["side"] if att else OPT["sidef"])
    stamp("c_end")
    if not att: I("s_barrier")
    for f in (epi(2, 1) if att else epi(3, 0)): f()
    if att:
        e.wait(lg="exw2")
        I("s_barrier")
    if OPT["cprio"] != 2: I(f"s_setprio {OPT['cprio']}")
    b2_voffs(4)
    if att: I("s_barrier")
    rest = [2, 3, 4, 5, 6, 8, 7] if att else [3, 4, 5, 6, 8, 7]
    b2_unit(rest.pop(0), 4); b2_unit(rest.pop(0), 4)
    stamp("c_g0")
    I("v_lshrrev_b32 v9, 4, v0")
    if att:
        I("v_lshlrev_b32 v8, 4, v9")
    else:
        I("v_lshrrev_b32 v8, 5, v0"); I("v_lshlrev_b32 v8, 4, v8")
        I("v_xor_b32 v9, v9, v0"); I("v_and_b32 v9, 1, v9")
        I("v_cmp_eq_u32 vcc, 0, v9")
    NG = 16 if att else 32; per = NG // 4
    RB = [32 + 4 * k for k in range(8)]
    def gread(s_):
        if s_ % per == 0:
            I(f"s_add_u32 s{S_t0}, s{S_rot}, {s_//per}"); I(f"s_and_b32 s{S_t0}, s{S_t0}, 3"); I(f"s_lshl_b32 s{S_t0}, s{S_t0}, 8")
            I(f"s_add_u32 s{S_t0}, s{S_t0}, {GW_LDS}")
            I(f"v_add_u32 v10, s{S_t0}, v8")
            if not att:
                I(f"v_mov_b32 v11, {ZERO_LDS}"); I("v_cndmask_b32 v10, v11, v10, vcc")
        I(f"ds_read_b128 {vr(RB[s_%8])}, v10 offset:{(s_%per)*(64 if att else 32)}", tag=f"g{s_}")
    for s_ in range(6): gread(s_)
    for s_ in range(NG):
        e.wait(lg=f"g{s_}")
        if att:
            for p in range(2): I(f"{MF} {vr(64+4*p)}, {vr(RB[s_%8])}, {xfr(p,s_)}, {'0' if s_ == 0 else vr(64+4*p)}")
        else:
            I(f"{MF} {vr(64)}, {vr(RB[s_%8])}, {xf32(s_)}, {'0' if s_ == 0 else vr(64)}")
        if s_ + 6 < NG: gread(s_ + 6)
        if s_ == NG // 2: b2_unit(rest.pop(0), 4)
    if not att:
        assert e.vmq[0][0].count("st2") == 4
        e.wait(vm="st3")
        push_group(lambda: (I(f"s_lshl_b32 s{S_t2}, s{S_jj}, 2"), I(f"s_lshl_b32 s{S_t2}, 12, s{S_t2}")), (0, 1, 2, 3))
    z1 = 68 if att else 65; G = 72
    T = [f"v_cvt_pk_bf16_f32 v1, v64, v{z1}", f"v_lshlrev_b32 v{G}, 16, v1", f"v_and_b32 v{G+2}, 0xffff0000, v1"]
    T += [f"v_mul_f32 v{G+2*p}, {f2u(-1.4426950408889634)}, v{G+2*p}" for p in range(2)]
    T += [f"v_exp_f32 v{G+2*p}, v{G+2*p}" for p in range(2)]
    T += [f"v_add_f32 v{G+2*p}, 1.0, v{G+2*p}" for p in range(2)]
    T += [f"v_rcp_f32 v{G+2*p}, v{G+2*p}" for p in range(2)]
    T += [f"v_cvt_pk_bf16_f32 v1, v{G}, v{G+2}", f"v_lshlrev_b32 v{G}, 16, v1", f"v_and_b32 v{G+2}, 0xffff0000, v1"]
    T += [f"v_sub_f32 v{G+1+2*p}, 1.0, v{G+2*p}" for p in range(2)]
    T += [f"v_cvt_pk_bf16_f32 v1, v{G+1}, v{G+3}", f"v_lshlrev_b32 v{G+1}, 16, v1", f"v_and_b32 v{G+3}, 0xffff0000, v1"]
    T += [f"v_max_f32 v{G+2*p}, {f2u(2.0**-60)}, v{G+2*p}" for p in range(2)]
    T += [f"v_rcp_f32 v{G+4+p}, v{G+2*p}" for p in range(2)]
    T += [f"v_mul_f32 v{G+1+2*p}, v{G+4+p}, v{G+1+2*p}" for p in range(2)]
    for t in T: I(t)
    I(f"s_lshl_b32 s{S_t0}, s{S_w}, 8"); I(f"s_add_u32 s{S_t0}, s{S_t0}, {GB_LDS}")
    I(f"v_lshl_add_u32 v1, v0, 3, s{S_t0}")
    I("s_mov_b64 exec, 0xffff")
    I(f"ds_write_b64 v1, {vr(G,2)}", tag="gz")
    I(f"ds_write_b64 v1, {vr(G+2,2)} offset:128", tag="gz")
    I("s_mov_b64 exec, -1")
    e.wait(lg="gz")
    stamp("c_g1")
    for g in rest:
        throttle(); b2_unit(g, 4)
    if OPT["dummy"]:
        I(f"s_lshl_b32 s{S_t0}, s2, 2"); I(f"s_add_u32 s{S_t0}, s{S_t0}, s{S_w}"); I(f"s_mul_i32 s{S_t0}, s{S_t0}, 9216"); I(f"s_add_u32 s{S_t0}, s{S_t0}, {20<<20}")
        for k in range(9):
            I(f"buffer_store_dwordx4 {vr(64)}, v{V_L16}, {srd(S_WS)}, s{S_t0 if OPT['dummy'] == 1 else S_WS+2} offen")
            I(f"s_add_u32 s{S_t0}, s{S_t0}, 1024")
    I("s_waitcnt vmcnt(0) lgkmcnt(0)")
    finish()

c_prog(False)
e.label("L_c_att")
c_prog(True)

e.label("L_end")
I("s_endpgm")
e.raw('.section .rodata,"a"')
e.raw(".p2align 6")
e.raw(f".amdhsa_kernel {NAME}_kernel")
e.raw("  .amdhsa_next_free_vgpr 256")
e.raw("  .amdhsa_next_free_sgpr 102")
e.raw("  .amdhsa_accum_offset 128")
e.raw("  .amdhsa_group_segment_fixed_size 0")
e.raw("  .amdhsa_kernarg_size 80")
e.raw("  .amdhsa_user_sgpr_count 2")
e.raw("  .amdhsa_user_sgpr_kernarg_segment_ptr 1")
e.raw("  .amdhsa_system_sgpr_workgroup_id_x 1")
e.raw(".end_amdhsa_kernel")
sys.stdout.write(e.text())
sys.stderr.write(f"instructions {e.nins} nop-states {e.nops}\n")
```

```python
import sys, struct
from emit import Em

NAME = "gated_mix__sliding_local_dilated__dense_activation_relu__prompt"
OPT = dict(padt=6000, padk=-1, padr=0, stamp=0, D=4, DF=5, D2=5, codepf=1, spin=400000, lround=0, side=2, sidef=2, side2=3,
           ld=6, thr=5, pre=4, pfd=18, ackb=10, cprio=2, dummy=0, sch=1, tm=0, qb=0, rotq=1, spf=2, tearly=0, tB=0, tfull=0, th=-1)
CST = ["s0", "s2", "s4", "s6", "s8", "s10", "s12", "c_end"]
HST = ["h_b0", "h_b7", "h_p2", "h_late", "h_o", "h_own", "h_rcv", "h_sum"]
for a in sys.argv[1:]:
    k, v = a.split("=")
    if k == "cst": CST = v.split(",")
    elif k == "hst": HST = v.split(",")
    else:
        assert k in OPT, k
        OPT[k] = int(v)
STAMP = OPT["stamp"]
def f2u(x): return struct.unpack("<I", struct.pack("<f", x))[0]

PART_OFF = 10 << 20
INB_OFF = 32 << 20
STAMP_OFF = 33 << 20
WS_BYTES = 36 << 20
SLOT = 16384
HALO_LDS = 7 * SLOT
EXCH_LDS = 8 * SLOT
EV_LDS = EXCH_LDS + 20480
ZERO_LDS = EV_LDS + 256
GW_LDS = EV_LDS + 1024
GB_LDS = EV_LDS + 2048
NEG = f2u(-1e30)

e = Em()
I = e.I
def vr(b, n=4): return f"v[{b}:{b+n-1}]"
def ar(b, n=4): return f"a[{b}:{b+n-1}]"
def srd(b): return f"s[{b}:{b+3}]"
MF = "v_mfma_f32_16x16x32_bf16"
M32 = "v_mfma_f32_32x32x16_bf16"

S_X, S_W, S_WS, S_OUT, S_W2, S_WO, S_GW = 24, 28, 32, 36, 40, 44, 48
S_INB = 52; S_DBG = 54
S_w, S_r, S_jj, S_rot, S_q, S_m0b, S_j1 = 60, 61, 62, 63, 64, 65, 66
S_t0, S_t1, S_t2 = 3, 67, 68
S_BUD = 69; S_EV = 70; S_SOFF = 71
S_POLL = 74; S_MYIN = 75; S_CEXP = 76; S_THR = 77; S_W4 = 79
S_KG = 80; S_WK = 84
S_COL = 88; S_A2 = 89; S_B2 = 90; S_BO = 91; S_PB = 92; S_J32 = 93; S_GIN = 94; S_P = 95
S_STAMP = 4
EVD = {}
def evd(name):
    if name not in EVD: EVD[name] = len(EVD)
    assert EVD[name] < 16
    return EVD[name] * 16
role = ["H"]
def stamp(name):
    L = CST if role[0] == "C" else HST
    if name == "end": idx = 8
    elif name in L: idx = L.index(name)
    else: return
    if STAMP == 3: I(f"s_memrealtime s[{S_STAMP+2*idx}:{S_STAMP+2*idx+1}]")
    elif STAMP: I(f"s_memtime s[{S_STAMP+2*idx}:{S_STAMP+2*idx+1}]")
uid = [0]
def U(p):
    uid[0] += 1
    return f"L_{p}{uid[0]}"
def reset():
    e.vmq = [[[], 0]]; e.lgq = [[[], 0]]; e.hist = []
V_L16 = 16; V_EVW = 17; V_CHK = 3
SLOW = []
def flush_slow():
    for l in SLOW: e.raw(l)
    SLOW.clear()
def spin_tail(lp, ok):
    return [f"    s_sub_u32 s{S_BUD}, s{S_BUD}, 1", f"    s_cbranch_scc0 {lp}", f"    s_mov_b32 s{S_BUD}, 0", f"    s_branch {ok}"]
def dsig(name):
    I(f"s_add_u32 m0, s{S_W4}, {EV_LDS + evd(name)}")
    I("s_mov_b64 exec, 1")
    I(f"buffer_load_dword v{V_L16}, {srd(S_WO)}, s{S_WO+2} offen lds", tag="dsig")
    I("s_mov_b64 exec, -1")
def d_read(name, tag): I(f"ds_read_b32 v{V_CHK}, v{V_EVW} offset:{evd(name)}", tag=tag)
def d_check(name, tag):
    ok = U("ok"); lp = U("sp")
    e.wait(lg=tag)
    I(f"v_cmp_ne_u32 vcc, 0, v{V_CHK}")
    I(f"s_cbranch_vccnz {lp}")
    e.label(ok)
    SLOW.extend([f"{lp}:", f"    ds_read_b32 v{V_CHK}, v{V_EVW} offset:{evd(name)}", "    s_waitcnt lgkmcnt(0)", f"    v_cmp_ne_u32 vcc, 0, v{V_CHK}",
                 f"    s_cbranch_vccz {ok}", "    s_sleep 1"] + spin_tail(lp, ok))
def throttle():
    n = OPT["thr"]
    I(f"s_waitcnt vmcnt({n})")
    for q in e.vmq: q[1] = max(q[1], len(q[0]) - n)
def poll_load():
    I(f"s_load_dword s{S_POLL}, s[{S_INB}:{S_INB+1}], s{S_MYIN} glc")
def poll_check(mask):
    ok = U("pk"); lp = U("pl")
    I(f"s_andn2_b32 s{S_EV}, {mask}, s{S_POLL}")
    I(f"s_cbranch_scc1 {lp}")
    e.label(ok)
    SLOW.extend([f"{lp}:", "    s_waitcnt lgkmcnt(0)", f"    s_andn2_b32 s{S_EV}, {mask}, s{S_POLL}", f"    s_cbranch_scc0 {ok}",
                 f"    s_load_dword s{S_POLL}, s[{S_INB}:{S_INB+1}], s{S_MYIN} glc"] + spin_tail(lp, ok))
def push_group(bit_fn, ds):
    bit_fn()
    for d in ds:
        I(f"s_xor_b32 s{S_t0}, s{S_MYIN}, {d*512}")
        I(f"s_atomic_or s{S_t2}, s[{S_INB}:{S_INB+1}], s{S_t0}")
def ownbit(b):
    def f():
        I(f"s_lshl_b32 s{S_t2}, s{S_jj}, 2"); I(f"s_lshl_b32 s{S_t2}, {1<<b}, s{S_t2}")
    return f
def mk_srd(b, p, nbytes):
    I(f"s_mov_b32 s{b}, s{p}")
    I(f"s_and_b32 s{b+1}, s{p+1}, 0xffff")
    I(f"s_mov_b32 s{b+2}, {nbytes}")
    I(f"s_mov_b32 s{b+3}, 0x20000")
def b2_voffs(dst):
    I("v_lshrrev_b32 v1, 3, v0")
    I("v_bfe_u32 v2, v0, 4, 1")
    I("v_lshlrev_b32 v2, 2, v2")
    I(f"v_and_b32 v{dst}, 7, v0")
    I(f"v_xor_b32 v{dst}, v{dst}, v2")
    I(f"v_lshlrev_b32 v{dst}, 4, v{dst}")
    I(f"v_lshl_add_u32 v{dst}, v1, 10, v{dst}")
    for i in range(1, 4): I(f"v_add_u32 v{dst+i}, {i*7168}, v{dst}")
def late_scalars():
    I(f"s_lshl_b32 s{S_W4}, s{S_w}, 2")
    I(f"s_mov_b32 s{S_BUD}, {OPT['spin']}")
    I(f"s_and_b32 s{S_j1}, s{S_jj}, 1")
    I(f"s_lshl_b32 s{S_t0}, s{S_jj}, 8")
    I(f"s_lshr_b32 s{S_t1}, s{S_w}, 1")
    I(f"s_lshl_b32 s{S_t1}, s{S_t1}, 7")
    I(f"s_add_u32 s{S_t0}, s{S_t0}, s{S_t1}")
    I(f"s_and_b32 s{S_t1}, s{S_w}, 1")
    I(f"s_lshl_b32 s{S_t1}, s{S_t1}, 15")
    I(f"s_add_u32 s{S_t0}, s{S_t0}, s{S_t1}")
    I(f"s_mul_i32 s{S_B2}, s{S_q}, {14*32768}")
    I(f"s_add_u32 s{S_B2}, s{S_B2}, s{S_t0}")
    I(f"s_lshl_b32 s{S_BO}, s{S_q}, 17")
    I(f"s_add_u32 s{S_BO}, s{S_BO}, s{S_t0}")
    I(f"s_lshl_b32 s{S_J32}, s{S_j1}, 16")
    I(f"s_lshl_b32 s{S_t0}, s{S_r}, 2")
    I(f"s_add_u32 s{S_t0}, s{S_t0}, s{S_q}")
    I(f"s_mul_i32 s{S_A2}, s{S_t0}, {18*8192}")
    I(f"s_lshl_b32 s{S_t1}, s{S_w}, 11")
    I(f"s_add_u32 s{S_A2}, s{S_A2}, s{S_t1}")
    I(f"s_lshl_b32 s{S_MYIN}, s{S_t0}, 2")
    I(f"s_add_u32 s{S_MYIN}, s{S_MYIN}, s{S_jj}")
    I(f"s_lshl_b32 s{S_MYIN}, s{S_MYIN}, 2")
    I(f"s_add_u32 s{S_MYIN}, s{S_MYIN}, s{S_w}")
    I(f"s_lshl_b32 s{S_MYIN}, s{S_MYIN}, 7")
    I(f"v_lshlrev_b32 v{V_L16}, 4, v0")
    I(f"v_and_b32 v{V_EVW}, 3, v0")
    I(f"v_lshlrev_b32 v{V_EVW}, 2, v{V_EVW}")
    I(f"v_add_u32 v{V_EVW}, {EV_LDS}, v{V_EVW}")
def common_ptrs():
    I(f"s_add_u32 s{S_INB}, s22, {INB_OFF}")
    I(f"s_addc_u32 s{S_INB+1}, s23, 0")
    I(f"s_lshl_b32 s{S_t0}, s{S_r}, 4")
    I(f"s_add_u32 s{S_DBG}, s20, s{S_t0}")
    I(f"s_addc_u32 s{S_DBG+1}, s21, 0")
    mk_srd(S_WS, 22, WS_BYTES)
    mk_srd(S_W2, 14, 1792 * 1024)
    mk_srd(S_WO, 8, 512 * 1024)
def dma4(voff, srdb, tag):
    for i in range(4):
        I(f"buffer_load_dwordx4 v{voff+i}, {srd(srdb)}, s{S_SOFF} offen offset:{i*1024} lds", tag=tag)
def b2_unit(g, voff):
    I(f"s_add_u32 m0, s{S_m0b}, {g*SLOT}")
    if g < 7: I(f"s_add_u32 s{S_SOFF}, s{S_B2}, {g*65536}")
    else:
        I(f"s_xor_b32 s{S_SOFF}, s{S_J32}, {((g-7)^1)*65536}")
        I(f"s_add_u32 s{S_SOFF}, s{S_SOFF}, s{S_BO}")
    dma4(voff, S_W2 if g < 7 else S_WO, f"b{g}")
    dsig(f"Lb{g}")
def a2_soff(lam, dst):
    if lam < 14: I(f"s_add_u32 s{dst}, s{S_A2}, {lam*8192}")
    else:
        I(f"s_lshr_b32 s{dst}, s{S_J32}, 2"); I(f"s_xor_b32 s{dst}, s{dst}, {((lam-14)^2)*8192}")
        I(f"s_add_u32 s{dst}, s{dst}, s{S_A2}"); I(f"s_add_u32 s{dst}, s{dst}, {14*8192}")
def after_karg():
    I("s_waitcnt lgkmcnt(0)")
    if STAMP:
        I("s_memtime s[100:101]")
        I("s_mov_b32 s72, s96")
        I("s_mov_b32 s73, s98")
def finish():
    if STAMP:
        I("s_waitcnt vmcnt(0)")
        stamp("end")
        I("s_memrealtime s[22:23]")
        I("s_waitcnt lgkmcnt(0)")
        I(f"s_lshl_b32 s{S_t0}, s2, 3")
        I(f"s_add_u32 s{S_t0}, s{S_t0}, s{S_w}")
        if role[0] == "H": I(f"s_add_u32 s{S_t0}, s{S_t0}, 4")
        I(f"s_lshl_b32 s{S_t0}, s{S_t0}, 6")
        I(f"s_add_u32 s{S_t0}, s{S_t0}, {STAMP_OFF}")
        I(f"v_mov_b32 v2, s{S_t0}")
        for k in range(9): I(f"v_mov_b32 v{32+k}, s{S_STAMP+2*k}")
        I("v_mov_b32 v41, s73"); I("v_mov_b32 v42, s22"); I("v_mov_b32 v43, s72"); I("v_mov_b32 v44, s100")
        I(f"v_mov_b32 v45, s{S_BUD}"); I("v_mov_b32 v46, 0")
        I("s_mov_b64 exec, 1")
        for k in range(4): I(f"buffer_store_dwordx4 {vr(32+4*k)}, v2, {srd(S_WS)}, 0 offen offset:{16*k}")
    if STAMP >= 3:
        if OPT["padk"] >= 0 and (OPT["padr"] == 1) == (role[0] == "H"):
            I(f"s_sub_u32 s24, s{S_STAMP+2*OPT['padk']}, s{73 if STAMP == 3 else 72}")
            if STAMP == 4: I("s_lshr_b32 s24, s24, 4")
        else: I("s_mov_b32 s24, 0")
        I(f"s_add_u32 s24, s24, {OPT['padt']}")
        l = U("pad")
        e.label(l)
        I("s_memrealtime s[26:27]"); I("s_waitcnt lgkmcnt(0)"); I("s_sub_u32 s25, s26, s73"); I("s_cmp_lt_u32 s25, s24"); I(f"s_cbranch_scc1 {l}")
    I("s_endpgm")
    flush_slow()
def units(att):
    L = []
    for u in range(4): L += [("x", u, 0), ("x", u, 1), ("g", 0, u), ("g", 1, u)]
    L += [("g", 2, u) for u in range(4)]
    if not att: L += [("g", 3, 0), ("g", 3, 1)]
    return L
def phys(att, k):
    if not att: return (k - 14) % 9
    i = (k - 13) % 8
    return 8 if i == 7 else i
QSLOT = phys(True, 13)

class Stream:
    def __init__(self, steps, depth, ring):
        self.steps = steps; self.side = []; self.after = {}; self.D = depth; self.ring = ring
        assert len(ring) >= depth + 2
    def add(self, ready, deadline, fns):
        for f in fns: self.side.append([ready, deadline, f])
    def aft(self, k, f):
        prev = self.after.get(k)
        self.after[k] = (lambda: (prev(), f())) if prev else f
    def issue(self, k, half):
        st = self.steps[k]
        b = self.ring[k % len(self.ring)]
        a, off, d2 = st["rd"]
        if half == 0:
            if "pre" in st: st["pre"]()
            I(f"ds_read_b64_tr_b16 {vr(b,2)}, v{a} offset:{off}", tag=f"w{k}")
        else:
            I(f"ds_read_b64_tr_b16 {vr(b+2,2)}, v{a} offset:{off+d2}", tag=f"w{k}")
            if "post" in st: st["post"](k)
    def pump(self, k, n):
        c = 0
        while self.side and c < n and self.side[0][0] <= k:
            r = self.side.pop(0)[2]()
            c += r if isinstance(r, int) else 1
    def run(self, rate):
        n = len(self.steps); D = self.D
        for k in range(min(D, n)):
            self.issue(k, 0); self.issue(k, 1)
        for k in range(n):
            st = self.steps[k]
            while any(s[1] <= k for s in self.side): self.side.pop(0)[2]()
            if "need" in st: st["need"]()
            if k % 2 == 0 and k + 1 < n: e.wait(lg=f"w{k+1}")
            e.wait(lg=f"w{k}")
            mfs = st["mf"](vr(self.ring[k % len(self.ring)]), st)
            I(mfs[0])
            if k + D < n: self.issue(k + D, 0)
            if len(mfs) > 1:
                self.pump(k, (rate + 1) // 2)
                I(mfs[1])
            if k + D < n: self.issue(k + D, 1)
            for m in mfs[2:]: I(m)
            self.pump(k, rate // 2 if len(mfs) > 1 else rate)
            if k in self.after: self.after[k]()
            stamp(f"k{k}")
        while self.side: self.side.pop(0)[2]()
def cost(n, f):
    def g():
        f(); return n
    return g

def vtouch(att, dst=22):
    P = 3072 if att else 3584; wp = 6 if att else 12
    if dst == 22: mk_srd(S_W, wp, 512 * P)
    I(f"s_lshl_b32 s{S_t0}, s{S_r}, 2"); I(f"s_add_u32 s{S_t0}, s{S_t0}, s{S_w}")
    I(f"s_mul_i32 s{S_t1}, s{S_t0}, {8*P}")
    I(f"s_mul_i32 s{S_t2}, s{S_q}, {256 if att else 896}"); I(f"s_add_u32 s{S_t1}, s{S_t1}, s{S_t2}")
    I("v_and_b32 v1, 7, v0"); I(f"v_mul_u32_u24 v1, {P}, v1")
    I(f"s_lshl_b32 s{S_t2}, s{S_j1}, 7"); I(f"s_add_u32 s{S_t2}, s{S_t2}, s{S_t1}")
    I("v_lshlrev_b32 v2, 7, v0")
    I("s_mov_b64 exec, 0xff")
    I(f"buffer_load_dword v{dst}, v1, {srd(S_W)}, s{S_t2} offen offset:{2048 if att else 512}")
    if OPT["tB"]: I(f"buffer_load_dword v{dst}, v1, {srd(S_W)}, s{S_t2} offen offset:{0 if att else 256}")
    if not att:
        I(f"s_mul_i32 s{S_t2}, s{S_j1}, {4*P}"); I(f"s_add_u32 s{S_t2}, s{S_t2}, s{S_t1}")
        I("s_mov_b64 exec, 0xf")
        I(f"buffer_load_dword v{dst}, v1, {srd(S_W)}, s{S_t2} offen offset:768")
    I(f"s_lshl_b32 s{S_t0}, s{S_t0}, 2"); I(f"s_add_u32 s{S_t0}, s{S_t0}, s{S_jj}")
    F_ = 2 if OPT["tfull"] else 1
    if OPT["tfull"]: I(f"s_and_b32 s{S_t0}, s{S_t0}, 127"); I(f"s_lshl_b32 s{S_t0}, s{S_t0}, 1")
    I(f"s_mul_i32 s{S_t1}, s{S_t0}, 1792"); I(f"s_mul_i32 s{S_t2}, s{S_q}, {448*1024}"); I(f"s_add_u32 s{S_t1}, s{S_t1}, s{S_t2}")
    I(f"s_mov_b64 exec, {(1 << (14*F_)) - 1}")
    I(f"buffer_load_dword v{dst}, v2, {srd(S_W2)}, s{S_t1} offen")
    I(f"s_lshl_b32 s{S_t1}, s{S_t0}, 9"); I(f"s_lshl_b32 s{S_t2}, s{S_q}, 17"); I(f"s_add_u32 s{S_t1}, s{S_t1}, s{S_t2}")
    I(f"s_mov_b64 exec, {(1 << (4*F_)) - 1}")
    I(f"buffer_load_dword v{dst}, v2, {srd(S_WO)}, s{S_t1} offen")
    I("s_mov_b64 exec, -1")
e.raw(f"; @launch grid=(256,1,1) block=(512,1,1) lds=163840")
e.raw('.amdgcn_target "amdgcn-amd-amdhsa--gfx950"')
e.raw(".text")
e.raw(f".globl {NAME}_kernel")
e.raw(".p2align 8")
e.raw(f".type {NAME}_kernel,@function")
e.label(f"{NAME}_kernel")
I("s_load_dwordx16 s[4:19], s[0:1], 0")
I("s_load_dwordx4 s[20:23], s[0:1], 64")
if STAMP:
    I("s_memrealtime s[98:99]")
    I("s_memtime s[96:97]")
I("v_lshrrev_b32 v1, 6, v0")
I("s_cmp_ge_u32 s2, 256")
I("s_cbranch_scc1 L_end")
I(f"v_readfirstlane_b32 s{S_t2}, v1")
I("v_and_b32 v0, 63, v0")
I(f"s_bfe_u32 s{S_q}, s2, 0x20001")
I(f"s_and_b32 s{S_t0}, s2, 1")
I(f"s_lshl_b32 s{S_t0}, s{S_t0}, 3")
I(f"s_bfe_u32 s{S_r}, s2, 0x30003")
I(f"s_or_b32 s{S_r}, s{S_r}, s{S_t0}")
I(f"s_lshr_b32 s{S_jj}, s2, 6")
if OPT["rotq"]: I(f"s_add_u32 s{S_rot}, s{S_r}, s{S_q}")
else: I(f"s_mov_b32 s{S_rot}, s{S_r}")
I(f"s_and_b32 s{S_w}, s{S_t2}, 3")
I(f"s_lshl_b32 s{S_m0b}, s{S_w}, 12")
I(f"s_cmp_lt_u32 s{S_t2}, 4")
I("s_cbranch_scc1 L_C")

H_XD = 4; H_WD = 8; H_BD = 12; H_G = 18; H_BR = 20; H_ACC = 64
H_RING = [32, 36, 40, 44, 48, 52, 24, 28]
def a2r(lam, p):
    if lam < 16: return ar(lam * 8 + p * 4)
    return vr((56 if lam == 16 else 4) + p * 4)
I("s_setprio 3")
I("v_lshrrev_b32 v32, 4, v0")
I("v_lshrrev_b32 v36, 3, v0")
I("v_and_b32 v37, 7, v0")
I("v_xor_b32 v39, v37, v32")
I("v_lshlrev_b32 v39, 4, v39")
I(f"v_lshl_add_u32 v{H_XD}, v36, 11, v39")
I(f"v_xor_b32 v{H_XD+1}, 64, v{H_XD}")
I(f"v_add_u32 v{H_XD+2}, {14*1024}, v{H_XD+1}")
I(f"v_add_u32 v{H_XD+3}, {14*1024}, v{H_XD}")
I(f"s_lshl_b32 s{S_t0}, s{S_r}, 17")
I(f"s_lshl_b32 s{S_t1}, s{S_w}, 15")
I(f"s_add_u32 s{S_t0}, s{S_t0}, s{S_t1}")
for g4 in range(4):
    I(f"s_add_u32 s{S_WK+g4}, s{S_rot}, {g4}")
    I(f"s_and_b32 s{S_WK+g4}, s{S_WK+g4}, 3")
    I(f"s_lshl_b32 s{S_KG+g4}, s{S_WK+g4}, 8")
    I(f"s_add_u32 s{S_KG+g4}, s{S_KG+g4}, s{S_t0}")
I(f"s_mov_b32 s{S_X+2}, {2048*1024}")
I(f"s_mov_b32 s{S_X+3}, 0x20000")
assert phys(False, 0) == 4 and phys(False, 1) == 5 and phys(True, 0) == 3 and phys(True, 1) == 4 and phys(False, 2) == 6 and phys(True, 2) == 5
I(f"s_cmp_ge_u32 s{S_jj}, 2")
I(f"s_cselect_b32 s{S_t2}, 3, 4")
I(f"s_mov_b32 s{S_W+2}, {512*3584}")
I(f"s_cmov_b32 s{S_W+2}, {512*3072}")
I(f"s_mov_b32 s{S_P}, 3584")
I(f"s_cmov_b32 s{S_P}, 3072")
I(f"s_lshl_b32 s{S_t2}, s{S_t2}, 14")
I(f"s_add_u32 s{S_t2}, s{S_t2}, s{S_m0b}")
I(f"s_mov_b32 m0, s{S_t2}")
I(f"s_add_u32 s{S_SOFF}, s{S_KG}, 128")
after_karg()
I(f"s_mov_b32 s{S_X}, s4")
I(f"s_and_b32 s{S_X+1}, s5, 0xffff")
for i in range(4): I(f"buffer_load_dwordx4 v{H_XD+i}, {srd(S_X)}, s{S_KG} offen offset:{i*1024} lds", tag="u0")
I(f"s_add_u32 m0, s{S_t2}, {SLOT}")
I(f"s_mov_b32 s{S_W+3}, 0x20000")
dma4(H_XD, S_X, "u1")
I(f"s_lshl_b32 s{S_t0}, s{S_w}, 5")
I(f"v_add_u32 v38, s{S_t0}, v36")
I(f"v_mul_lo_u32 v38, v38, s{S_P}")
I(f"s_mul_i32 s{S_COL}, s{S_q}, 896")
I(f"s_lshl_b32 s{S_t0}, s{S_q}, 8")
I(f"s_add_u32 s{S_t0}, s{S_t0}, {1024-256}")
I(f"s_cmp_ge_u32 s{S_jj}, 2")
I(f"s_cselect_b32 s{S_W}, s6, s12")
I(f"s_cselect_b32 s{S_W+1}, s7, s13")
I(f"s_cselect_b32 s{S_COL}, s{S_t0}, s{S_COL}")
I(f"s_cselect_b32 s{S_t0}, 1, 2")
I(f"s_cselect_b32 s{S_t1}, 64, 0")
I(f"s_and_b32 s{S_W+1}, s{S_W+1}, 0xffff")
I("v_and_b32 v39, 1, v32")
I(f"v_lshlrev_b32 v39, s{S_t0}, v39")
I("v_xor_b32 v39, v39, v37")
I("v_lshlrev_b32 v39, 4, v39")
I(f"v_add_u32 v{H_WD}, v38, v39")
I(f"v_xor_b32 v39, s{S_t1}, v39")
I(f"s_lshl_b32 s{S_t0}, s{S_P}, 3")
I(f"s_sub_u32 s{S_t0}, s{S_t0}, 1024")
I(f"v_add3_u32 v{H_WD+1}, v38, v39, s{S_t0}")
I(f"s_lshl_b32 s{S_t0}, s{S_t0}, 1")
I(f"v_add_u32 v{H_WD+2}, s{S_t0}, v{H_WD}")
I(f"v_add_u32 v{H_WD+3}, s{S_t0}, v{H_WD+1}")
I(f"s_lshl_b32 s{S_t0}, s{S_jj}, 7")
I(f"s_add_u32 s{S_COL}, s{S_COL}, s{S_t0}")
I(f"s_lshl_b32 s{S_t1}, s{S_P}, 7")
for g4 in range(4): I(f"s_mul_i32 s{S_WK+g4}, s{S_WK+g4}, s{S_t1}")
I(f"s_add_u32 m0, s{S_t2}, {2*SLOT}")
I(f"s_add_u32 s{S_SOFF}, s{S_WK}, s{S_COL}")
dma4(H_WD, S_W, "u2")
common_ptrs()
mk_srd(S_OUT, 18, 2048 * 1024)
mk_srd(S_GW, 16, 1024)
I(f"s_cmp_ge_u32 s{S_jj}, 2")
I("s_cbranch_scc1 L_h_att")
snapH = e.snapshot()

def h_prog(att):
    e.restore(snapH); e.hist = []
    UL = units(att)
    CH = [0, -1024, 1024] if att else [0, 256, 512]
    def issue(k):
        un = UL[k]
        I(f"s_add_u32 m0, s{S_m0b}, {phys(att,k)*SLOT}")
        if un[0] == "x":
            I(f"s_add_u32 s{S_SOFF}, s{S_KG+un[1]}, {un[2]*128}")
            dma4(H_XD, S_X, f"u{k}")
            return
        _, c, u = un
        if c < 3:
            I(f"s_add_u32 s{S_SOFF}, s{S_WK+u}, s{S_COL}")
            if CH[c]: I(f"s_add_i32 s{S_SOFF}, s{S_SOFF}, {CH[c]}")
        else:
            KH = 256 * 3584
            if u == 0:
                I("v_lshrrev_b32 v2, 2, v0")
                I("v_lshrrev_b32 v1, 4, v0")
                I("v_xor_b32 v2, v2, v1")
                I("v_and_b32 v2, 1, v2")
                I(f"v_mul_u32_u24 v1, {KH-64}, v2")
                for i in range(4): I(f"v_add_u32 v{H_WD+i}, v{H_WD+i}, v1")
                I(f"v_mul_u32_u24 v2, {2*KH}, v2")
                I(f"v_sub_u32 v{H_XD}, {KH}, v2")
                I(f"s_cmp_ge_u32 s{S_WK}, {KH}")
                I(f"s_cselect_b32 s{S_t0}, 1, 0")
            else:
                I(f"s_cmp_ge_u32 s{S_WK}, {KH}")
                I(f"s_cselect_b32 s{S_t1}, 1, 0")
                I(f"s_cmp_ge_u32 s{S_WK+1}, {KH}")
                I(f"s_cselect_b32 s{S_t0}, 1, 0")
                I(f"s_sub_u32 s{S_t0}, s{S_t0}, s{S_t1}")
            for i in range(4): I(f"v_mad_i32_i24 v{H_WD+i}, v{H_XD}, s{S_t0}, v{H_WD+i}")
            I(f"s_min_u32 s{S_SOFF}, s{S_WK+u}, s{S_WK+u+2}")
            I(f"s_add_u32 s{S_SOFF}, s{S_SOFF}, s{S_COL}")
            I(f"s_lshl_b32 s{S_t0}, s{S_jj}, 6")
            I(f"s_sub_u32 s{S_SOFF}, s{S_SOFF}, s{S_t0}")
            I(f"s_add_u32 s{S_SOFF}, s{S_SOFF}, 768")
        dma4(H_WD, S_W, f"u{k}")
    def w0(f):
        l = U("w0")
        I(f"s_cmp_eq_u32 s{S_w}, 0"); I(f"s_cbranch_scc0 {l}")
        e.cond_begin(); f(); e.cond_end(); e.label(l)
    def peer_issue(): w0(lambda: I(f"s_load_dword s{S_POLL}, s[{S_DBG}:{S_DBG+1}], 0 glc"))
    def peer():
        def f():
            lp = U("pp"); ok = U("po")
            I("s_waitcnt lgkmcnt(0)")
            I(f"s_cmp_ge_u32 s{S_POLL}, 16")
            I(f"s_cbranch_scc0 {lp}")
            e.label(ok)
            SLOW.extend([f"{lp}:", "    s_sleep 8", f"    s_load_dword s{S_POLL}, s[{S_DBG}:{S_DBG+1}], 0 glc", "    s_waitcnt lgkmcnt(0)",
                         f"    s_cmp_ge_u32 s{S_POLL}, 16", f"    s_cbranch_scc1 {ok}"] + spin_tail(lp, ok))
        w0(f)
        I(f"s_mov_b32 s{S_POLL}, 0")
    V_Q = 64; V_S = 96; V_BIAS = 32; V_RINV = 40; V_T = 48; A_KV = 64; A_ONES = 96; V_AD = 24
    def att_setup(part):
        if part == 0:
            I(f"s_add_u32 s{S_t0}, s{S_m0b}, {EXCH_LDS+4096}")
            I(f"v_add_u32 v{V_AD}, s{S_t0}, v{V_L16}")
            I("v_bfe_u32 v1, v0, 3, 1")
            I("v_lshlrev_b32 v1, 12, v1")
            I(f"v_sub_u32 v{V_AD+2}, v{V_AD}, v1")
            I("v_xor_b32 v1, 4096, v1")
            I(f"v_sub_u32 v{V_AD+1}, v{V_AD}, v1")
            I("v_lshrrev_b32 v1, 5, v0")
            I("v_lshlrev_b32 v1, 12, v1")
            I(f"v_sub_u32 v{V_AD+4}, v{V_AD}, v1")
            I("v_xor_b32 v1, 4096, v1")
            I(f"v_sub_u32 v{V_AD+3}, v{V_AD}, v1")
            I(f"v_add_u32 v{V_AD+5}, {(QSLOT*SLOT - EXCH_LDS - 4096) & 0xffffffff}, v{V_AD}")
            I(f"s_mov_b32 s{S_CEXP}, {f2u(0.25*1.4426950408889634)}")
            I(f"s_or_b32 s{S_t0}, s{S_r}, s{S_w}")
            I(f"s_cmp_eq_u32 s{S_t0}, 0")
            I(f"s_cselect_b32 s{S_THR}, -16, -9")
            I(f"v_mov_b32 v{V_T}, 0x3f803f80")
            for k in range(4): I(f"v_accvgpr_write_b32 a{A_ONES+k}, v{V_T}")
            I(f"v_mov_b32 v{V_T}, {NEG}")
            I(f"v_and_b32 v{V_T+1}, 15, v0")
            I(f"v_lshrrev_b32 v{V_T+2}, 4, v0")
            I(f"v_lshlrev_b32 v{V_T+2}, 2, v{V_T+2}")
        elif part in (1, 2):
            p = part - 1; x8 = 8 if p == 0 else 0
            I(f"v_xor_b32 v{V_T+3}, {x8}, v{V_T+1}")
            I(f"v_xor_b32 v{V_T+4}, {x8}, v{V_T+2}")
            I(f"v_sub_u32 v{V_T+3}, v{V_T+3}, v{V_T+4}")
            for r in range(4):
                I(f"v_subrev_u32 v{V_T+4}, {r}, v{V_T+3}")
                I(f"v_cmp_lt_u32 vcc, 7, v{V_T+4}")
                I(f"v_cmp_lt_i32 s[56:57], s{S_THR}, v{V_T+4}")
                I("s_and_b64 vcc, vcc, s[56:57]")
                I(f"v_cndmask_b32 v{V_BIAS+p*4+r}, 0, v{V_T}, vcc")
        else:
            for k in range(16): I(f"v_mov_b32 v{V_Q+16*(part-3)+k}, 0")
            I("s_mov_b32 s56, 0xff00ff00"); I("s_mov_b32 s57, 0xff00ff00")
            I("s_not_b64 s[58:59], s[56:57]")
    def br_setup():
        I("v_bfe_u32 v1, v0, 2, 2")
        I("v_lshrrev_b32 v2, 5, v0")
        I("v_lshl_add_u32 v1, v2, 2, v1")
        I("v_lshlrev_b32 v1, 7, v1")
        I("v_bfe_u32 v2, v0, 4, 1")
        I("v_lshl_add_u32 v1, v2, 5, v1")
        I("v_bfe_u32 v2, v0, 3, 1")
        I("v_lshl_add_u32 v1, v2, 6, v1")
        I("v_and_b32 v2, 3, v0")
        I("v_lshl_add_u32 v1, v2, 3, v1")
        I(f"s_lshr_b32 s{S_t0}, s{S_q}, 1")
        I(f"s_lshl_b32 s{S_t0}, s{S_t0}, 13")
        I(f"s_and_b32 s{S_t1}, s{S_q}, 1")
        I(f"s_lshl_b32 s{S_t1}, s{S_t1}, 6")
        I(f"s_or_b32 s{S_t0}, s{S_t0}, s{S_t1}")
        I(f"v_xor_b32 v1, s{S_t0}, v1")
        for tau in range(4):
            cb = 3 - tau
            I(f"v_xor_b32 v{H_BR+tau}, {(cb>>1)*8192 + (cb&1)*64}, v1")
        I(f"s_lshl_b32 s{S_PB}, s{S_r}, 2"); I(f"s_add_u32 s{S_PB}, s{S_PB}, s{S_jj}")
        I(f"s_mul_i32 s{S_PB}, s{S_PB}, {12*8192}")
        I(f"s_lshl_b32 s{S_t0}, s{S_w}, 11"); I(f"s_add_u32 s{S_PB}, s{S_PB}, s{S_t0}"); I(f"s_add_u32 s{S_PB}, s{S_PB}, {PART_OFF}")
    if att:
        I(f"s_lshl_b32 s{S_t0}, s{S_r}, 17")
        I(f"s_sub_u32 s{S_t0}, s{S_t0}, 16384")
        I(f"v_add_u32 v38, s{S_t0}, v{H_XD}")
        I(f"s_add_u32 s{S_t0}, s{S_t0}, 1024")
        I(f"v_add_u32 v39, s{S_t0}, v{H_XD+1}")
        I("v_max_i32 v38, 0, v38")
        I("v_max_i32 v39, 0, v39")
        I(f"s_add_u32 s{S_t0}, s{S_rot}, s{S_w}")
        I(f"s_and_b32 s{S_t0}, s{S_t0}, 3")
        I(f"s_lshl_b32 s{S_t0}, s{S_t0}, 8")
        for i in range(4):
            kh, rh = divmod(i, 2)
            I(f"s_add_u32 m0, s{S_m0b}, {HALO_LDS + i*1024 - kh*128}")
            I(f"buffer_load_dwordx4 v{38+rh}, {srd(S_X)}, s{S_t0} offen offset:{kh*128} lds", tag="u2")
    PRE = OPT["pre"] - (1 if att else 0)
    for k in range(3, PRE + 1): issue(k)
    first = list(range(PRE + 1, 8))
    if att: sched = [first, [8, 9], [10], [11, 12, 13], [14], [15, 16, 17], [18], [19]]
    else: sched = [first, [8, 9], [10, 11], [12, 13], [14, 15], [16, 17], [18, 19], []]
    def gw_dma():
        I(f"s_mov_b32 m0, {GW_LDS}")
        w0(lambda: I(f"buffer_load_dwordx4 v{V_L16}, {srd(S_GW)}, 0 offen lds"))
    extra = {1: lambda: (late_scalars(), b2_voffs(H_BD)), 3: gw_dma, 7: (br_setup if att or OPT["sch"] else lambda: (b2_unit(8, H_BD), br_setup()))}
    if att: extra.update({2: lambda: (att_setup(0), att_setup(1)), 4: lambda: (att_setup(2), att_setup(3)), 6: lambda: att_setup(4)})
    gk = [k for k, un in enumerate(UL) if un[0] == "g"]
    def bar(i, need=None):
        stamp(f"h_a{i}")
        if need is None and i < len(gk): need = gk[i]
        if need is not None: e.wait(vm=f"u{need}")
        if i == 6: peer()
        I("s_barrier"); stamp(f"h_b{i}")
    for i in range(8):
        bar(i)
        if i == 4: peer_issue()
        for k in sched[i]: issue(k)
        if i in extra: extra[i]()
        if i == OPT["th"]: vtouch(att, 30)
    def a2_load(lam):
        a2_soff(lam, S_t1)
        for p in range(2):
            I(f"buffer_load_dwordx4 {a2r(lam,p)}, v{V_L16}, {srd(S_WS)}, s{S_t1} offen offset:{p*1024} sc1", tag=f"a{lam}")
    def a2_items(lams, gap=1):
        F = []
        for lam in lams:
            F.append(cost(9, lambda lam=lam: (a2_soff(lam, S_COL), I(f"buffer_load_dwordx4 {a2r(lam,0)}, v{V_L16}, {srd(S_WS)}, s{S_COL} offen sc1", tag=f"a{lam}x"))))
            F += [cost(9, lambda: None)] * (gap - 1)
            F.append(cost(9, lambda lam=lam: I(f"buffer_load_dwordx4 {a2r(lam,1)}, v{V_L16}, {srd(S_WS)}, s{S_COL} offen offset:1024 sc1", tag=f"a{lam}")))
            F += [cost(9, lambda: None)] * (gap - 1)
        return F
    Bu = lambda g: b2_unit(g, H_BD)
    SS = []
    ALL = (0, 1, 2, 3)
    side = {}
    if not att:
        if OPT["sch"] == 0:
            bar(8); Bu(0)
            bar(9); issue(20); Bu(1)
            bar(10); push_group(ownbit(0), ALL); issue(21); Bu(2)
            bar(11); push_group(ownbit(1), ALL); Bu(3); poll_load()
            bar(12); poll_check(0x11)
            for lam in range(4): a2_load(lam)
            Bu(4); poll_load()
            bar(13); poll_check(0x22)
            for lam in range(4, 8): a2_load(lam)
            Bu(5)
            bar(14)
        else:
            bar(8)
            bar(9); issue(20)
            bar(10); push_group(ownbit(0), ALL); issue(21)
            bar(11); push_group(ownbit(1), ALL); Bu(0); Bu(1); poll_load()
            bar(12); poll_check(0x11); a2_load(0); a2_load(1); poll_load()
            bar(13); a2_load(2); a2_load(3); Bu(2)
            bar(14); poll_check(0x22)
            side[(0, 0)] = lambda: SS[0].add(0, 999, a2_items((4, 5, 6, 7), 2))
        def f_o(): poll_check(0x300); SS[0].add(0, 999, a2_items((16, 17, 14, 15)))
    else:
        def kv_reads(m0, tag):
            for t in range(4):
                I(f"ds_read_b64 {ar(A_KV+8*t,2)}, v{m0} offset:{t*1024}", tag=f"{tag}{t}")
                I(f"ds_read_b128 {ar(A_KV+8*t+2)}, v{V_AD} offset:{t*1024}", tag=f"{tag}{t}")
                I(f"ds_read_b64 {ar(A_KV+8*t+6,2)}, v{m0+1} offset:{t*1024+8}", tag=f"{tag}{t}")
        bar(8)
        kv_reads(V_AD + 1, "k")
        e.wait(lg="k3")
        poll_load()
        bar(9, 19)
        def Preg(t, p): return V_Q + 8 * t + 4 * p
        for half, m in enumerate(("s[56:57]", "s[58:59]")):
            I(f"s_mov_b64 exec, {m}")
            for t in range(4):
                for p in range(2):
                    I(f"ds_read_b64 {vr(Preg(t,p)+2*half,2)}, v{V_AD+5} offset:{t*1024+p*8}", tag="q")
        I("s_mov_b64 exec, -1")
        stamp("h_q")
        e.wait(lg="q")
        un = [(i >> 1, i & 1) for i in range(8)]
        Sc = lambda i: V_S + 4 * i
        for i, (t, p) in enumerate(un): I(f"{MF} {vr(Sc(i))}, {ar(A_KV+8*t+4*p)}, {vr(Preg(t,p))}, {vr(V_BIAS+4*p)}")
        Bu(0)
        m = [V_T + i for i in range(8)]
        for i in range(8):
            if OPT["lround"]:
                I(f"v_cvt_pk_bf16_f32 v1, v{Sc(i)}, v{Sc(i)+1}")
                I(f"v_cvt_pk_bf16_f32 v2, v{Sc(i)+2}, v{Sc(i)+3}")
                I(f"v_lshlrev_b32 v{Sc(i)}, 16, v1")
                I(f"v_and_b32 v{Sc(i)+1}, 0xffff0000, v1")
                I(f"v_lshlrev_b32 v{Sc(i)+2}, 16, v2")
                I(f"v_and_b32 v{Sc(i)+3}, 0xffff0000, v2")
            I(f"v_max3_f32 v{m[i]}, v{Sc(i)}, v{Sc(i)+1}, v{Sc(i)+2}")
            I(f"v_max_f32 v{m[i]}, v{m[i]}, v{Sc(i)+3}")
        for k in range(4): I(f"v_permlane32_swap_b32 v{m[2*k]}, v{m[2*k+1]}")
        for k in range(4): I(f"v_max_f32 v{m[2*k]}, v{m[2*k]}, v{m[2*k+1]}")
        for k in range(2): I(f"v_permlane16_swap_b32 v{m[4*k]}, v{m[4*k+2]}")
        for k in range(2): I(f"v_max_f32 v{m[4*k]}, v{m[4*k]}, v{m[4*k+2]}")
        for k in range(2): I(f"v_mul_f32 v{m[4*k+2]}, s{S_CEXP}, v{m[4*k]}")
        for k in range(2): I(f"v_mul_f32 v{m[4*k]}, s{S_CEXP}, v{m[4*k]}")
        for k in range(2): I(f"v_permlane16_swap_b32 v{m[4*k]}, v{m[4*k+2]}")
        for k in range(4): I(f"v_mov_b32 v{m[2*k+1]}, v{m[2*k]}")
        for k in range(4): I(f"v_permlane32_swap_b32 v{m[2*k]}, v{m[2*k+1]}")
        Bu(1)
        poll_check(0x33)
        for i in range(8):
            for r in range(4): I(f"v_fma_f32 v{Sc(i)+r}, v{Sc(i)+r}, s{S_CEXP}, -v{m[i]}")
            for r in range(4): I(f"v_exp_f32 v{Sc(i)+r}, v{Sc(i)+r}")
            a2_load(i)
        for half, mk in enumerate(("s[56:57]", "s[58:59]")):
            I(f"s_mov_b64 exec, {mk}")
            for i, (t, p) in enumerate(un):
                I(f"v_cvt_pk_bf16_f32 v{Preg(t,p)+2*half}, v{Sc(i)}, v{Sc(i)+1}")
                I(f"v_cvt_pk_bf16_f32 v{Preg(t,p)+2*half+1}, v{Sc(i)+2}, v{Sc(i)+3}")
        I("s_mov_b64 exec, -1")
        for i, (t, p) in enumerate(un): I(f"{MF} {vr(Sc(i))}, {ar(A_ONES)}, {vr(Preg(t,p))}, 0")
        for i in range(8): I(f"v_rcp_f32 v{V_RINV+i}, v{Sc(i)}")
        stamp("h_sm")
        I("s_barrier")
        kv_reads(V_AD + 3, "v")
        e.wait(lg="v3")
        I("s_barrier")
        for i, (t, p) in enumerate(un): I(f"{MF} {vr(Sc(i))}, {ar(A_KV+8*t+4*p)}, {vr(Preg(t,p))}, 0")
        for b in range(2):
            for t in (2 * b, 2 * b + 1):
                ob = (56 if b == 0 else 4) + (t & 1) * 4
                for p in range(2):
                    o = Sc(2 * t + p)
                    for r in range(4): I(f"v_mul_f32 v{o+r}, v{V_RINV+2*t+p}, v{o+r}")
                    I(f"v_cvt_pk_bf16_f32 v{ob+2*p}, v{o}, v{o+1}")
                    I(f"v_cvt_pk_bf16_f32 v{ob+2*p+1}, v{o+2}, v{o+3}")
            a2_soff(16 + b, S_t1)
            for t1 in range(2):
                ob = (56 if b == 0 else 4) + t1 * 4
                I(f"v_permlane16_swap_b32 v{ob}, v{ob+2}")
                I(f"v_permlane16_swap_b32 v{ob+1}, v{ob+3}")
            for p in range(2):
                I(f"buffer_store_dwordx4 {a2r(16+b,p)}, v{V_L16}, {srd(S_WS)}, s{S_t1} offen offset:{p*1024} sc1", tag="so")
        stamp("h_so")
        def f_push():
            e.wait(vm="so")
            push_group(lambda: I(f"s_lshl_b32 s{S_t2}, 64, s{S_jj}"), (1, 2, 3))
        side[(0, 14)] = f_push
        def f_o():
            I(f"s_xor_b32 s{S_THR}, s{S_jj}, 1"); I(f"s_lshl_b32 s{S_THR}, 64, s{S_THR}")
            poll_check(f"s{S_THR}"); SS[0].add(0, 999, a2_items((14, 15)))
    def f_c(): poll_check(0x44); SS[0].add(0, 999, a2_items((8, 9, 10, 11)))
    def f_h(): poll_check(0x88); SS[0].add(0, 999, a2_items((12, 13)))
    side.update({(8, -46): poll_load, (8, -28): f_c, (12, -42): poll_load, (12, -26): f_h, (16, -40): poll_load, (16, -24): f_o})
    I("s_setprio 1")
    stamp("h_p2")
    own = [16, 17] if att else []
    LD = OPT["ld"]
    oo = [16, 17, 14, 15]
    TM = 14 - OPT["tm"]
    seq = [(lam, tau) for lam in range(TM) for tau in range(4 if lam < LD else 3)]
    seq += [(lam, tau) for tau in range(3) for lam in list(range(TM, 14)) + oo]
    seq += [(lam, 3) for lam in list(range(LD, 14)) + oo]
    steps = []; rng = {}; seen_g = set(); seen_l = set(); first_ = set()
    for (lam, tau) in seq:
        g = lam >> 1
        for kh in range(2):
            a = H_BR + tau
            off = g * SLOT + (lam & 1) * 4096 + kh * 2048
            hi = off >> 16
            st = dict(rd=(a, off & 0xffff, 1024))
            pres = []
            if g not in seen_g:
                seen_g.add(g); t = U("t")
                if len(steps) >= 3: steps[-3]["post"] = lambda k, g=g, t=t: d_read(f"Lb{g}", t)
                else: pres.append(lambda g=g, t=t: d_read(f"Lb{g}", t))
                pres.append(lambda g=g, t=t: d_check(f"Lb{g}", t))
            if rng.get(a, 0) != hi:
                dlt = (hi - rng.get(a, 0)) * 65536; rng[a] = hi
                pres.append(lambda a=a, dlt=dlt: I(f"v_add_u32 v{a}, {dlt & 0xffffffff}, v{a}"))
            if pres: st["pre"] = lambda pres=pres: [f() for f in pres]
            at = 4 if (tau == 3 and lam >= 14) else tau
            zero = at not in first_; first_.add(at)
            d = vr(H_ACC + 16 * (at & 3 if at < 4 else 0), 16)
            st["mf"] = lambda W, st, lam=lam, kh=kh, d=d, zero=zero: [f"{M32} {d}, {W}, {a2r(lam,kh)}, {'0' if zero else d}"]
            if lam not in seen_l:
                seen_l.add(lam)
                if lam not in own: st["need"] = lambda lam=lam: e.wait(vm=f"a{lam}")
            st["id"] = (lam, tau, kh)
            steps.append(st)
    S = Stream(steps, OPT["D2"], H_RING)
    SS.append(S)
    idx = {st["id"]: k for k, st in enumerate(steps)}
    n = len(steps)
    for (lam, d), f in side.items(): S.aft(idx[(lam, 0, 0)] + d, f)
    def scale(tau, greg): return [lambda r=r: I(f"v_mul_f32 v{r}, v{greg}, v{r}") for r in range(H_ACC + 16 * tau, H_ACC + 16 * tau + 16)]
    def pack(tau):
        b = H_ACC + tau * 16
        return [lambda k=k: I(f"v_cvt_pk_bf16_f32 v{b+k}, v{b+2*k}, v{b+2*k+1}") for k in range(8)]
    def send(tau):
        def so():
            I(f"s_xor_b32 s{S_GIN}, s{S_q}, {3-tau}"); I(f"s_mul_i32 s{S_GIN}, s{S_GIN}, {3*8192}")
            I(f"s_add_u32 s{S_GIN}, s{S_GIN}, s{S_PB}"); I(f"s_add_u32 s{S_GIN}, s{S_GIN}, {tau*8192}")
        return [so] + pack(tau) + [cost(3, lambda j=j: I(f"buffer_store_dwordx4 {vr(H_ACC+tau*16+j*4)}, v{V_L16}, {srd(S_WS)}, s{S_GIN} offen offset:{j*1024} sc1", tag=f"p{tau}")) for j in range(2)]
    def pflag(tau):
        assert e.vmq[0][0].count(f"p{tau}") == 2
        stamp(f"h_pa{tau}")
        e.wait(vm=f"p{tau}")
        stamp(f"h_pb{tau}")
        I(f"s_xor_b32 s{S_t0}, s{S_MYIN}, {(3-tau)*2048}")
        I(f"s_mov_b32 s{S_KG+tau}, {1024<<tau}")
        I(f"s_atomic_or s{S_KG+tau}, s[{S_INB}:{S_INB+1}], s{S_t0}")
    def gget():
        I(f"s_lshl_b32 s{S_t0}, s{S_w}, 8"); I(f"s_add_u32 s{S_t0}, s{S_t0}, {GB_LDS}")
        I("v_and_b32 v1, 31, v0")
        I(f"v_lshl_add_u32 v1, v1, 3, s{S_t0}")
        I(f"ds_read_b64 {vr(H_G,2)}, v1", tag="gz")
    S.aft(idx[(12, 0, 0)] - 3, gget)
    S.aft(idx[(13, 0, 1)], lambda: e.wait(lg="gz"))
    for tau in range(4):
        k = idx[(13, tau, 1)]
        S.aft(k, lambda k=k, tau=tau: S.add(k + 3, idx[(oo[0], tau, 0)] if tau < 3 else n, scale(tau, H_G + 1)))
    late_flags = []
    for tau in range(3):
        k = idx[(oo[-1], tau, 1)]
        S.aft(k, lambda k=k, tau=tau: S.add(k + 3, k + 8, send(tau)))
        kf = k + 7 + OPT["pfd"]
        if kf <= n - OPT["D2"] - 14: S.aft(kf, lambda tau=tau: pflag(tau))
        else: late_flags.append(tau)
    S.aft(n - OPT["D2"], lambda: (e.wait(lg=f"w{n-1}"), [pflag(t) for t in late_flags[:-1]], poll_load()))
    S.aft(idx[(8, 0, 0)], lambda: stamp("h_late"))
    S.aft(idx[(oo[0], 0, 0)], lambda: stamp("h_o"))
    S.aft(idx[(LD, 3, 0)], lambda: stamp("h_own"))
    S.run(OPT["side2"])
    I(f"s_mul_i32 s{S_GIN}, s{S_q}, {3*8192}")
    I(f"s_add_u32 s{S_GIN}, s{S_GIN}, s{S_PB}")
    I("v_bfe_u32 v5, v0, 4, 1")
    I("v_lshlrev_b32 v6, 3, v5")
    I("v_xor_b32 v6, 8, v6")
    I("v_and_b32 v4, 15, v0")
    I("v_xor_b32 v4, v4, v6")
    I("v_lshl_add_u32 v4, v4, 1, v5")
    I("v_lshrrev_b32 v5, 5, v0")
    I("v_lshlrev_b32 v5, 4, v5")
    I("v_lshl_add_u32 v4, v4, 10, v5")
    I(f"s_lshl_b32 s{S_COL}, s{S_r}, 17"); I(f"s_lshl_b32 s{S_t1}, s{S_w}, 15"); I(f"s_add_u32 s{S_COL}, s{S_COL}, s{S_t1}")
    I(f"s_lshl_b32 s{S_t1}, s{S_jj}, 8"); I(f"s_add_u32 s{S_COL}, s{S_COL}, s{S_t1}")
    I(f"s_lshl_b32 s{S_t1}, s{S_q}, 6"); I(f"s_add_u32 s{S_COL}, s{S_COL}, s{S_t1}")
    for t in late_flags[-1:]: pflag(t)
    O = H_ACC + 48
    for k in range(8): I(f"v_pk_add_f32 {vr(O+2*k,2)}, {vr(O+2*k,2)}, {vr(H_ACC+2*k,2)}")
    for tau in range(3):
        poll_check(1024 << tau)
        stamp(f"h_r{tau}")
        if tau == 2: stamp("h_rcv")
        for j in range(2):
            I(f"buffer_load_dwordx4 {vr(24+tau*8+j*4)}, v{V_L16}, {srd(S_WS)}, s{S_GIN} offen offset:{j*1024} sc1", tag=f"r{tau}")
        if tau < 2: I(f"s_add_u32 s{S_GIN}, s{S_GIN}, 8192")
    for tau in range(3):
        e.wait(vm=f"r{tau}")
        b = H_ACC + 16
        for k in range(8):
            I(f"v_lshlrev_b32 v{b+2*k}, 16, v{24+tau*8+k}")
            I(f"v_and_b32 v{b+2*k+1}, 0xffff0000, v{24+tau*8+k}")
        for k in range(8): I(f"v_pk_add_f32 {vr(O+2*k,2)}, {vr(O+2*k,2)}, {vr(b+2*k,2)}")
    for k in range(8): I(f"v_pk_mul_f32 {vr(O+2*k,2)}, {vr(O+2*k,2)}, {vr(H_G,2)} op_sel_hi:[1,0]")
    stamp("h_sum")
    for f in pack(3): f()
    for j in range(2):
        I(f"v_permlane32_swap_b32 v{O+4*j}, v{O+4*j+2}")
        I(f"v_permlane32_swap_b32 v{O+4*j+1}, v{O+4*j+3}")
        I(f"buffer_store_dwordx4 {vr(O+4*j)}, v4, {srd(S_OUT)}, s{S_COL} offen offset:{j*32}")
    finish()

h_prog(False)
e.label("L_h_att")
h_prog(True)

e.label("L_C")
role[0] = "C"
reset()
C_WR = 4; C_XR = 12; C_EXW = 18; C_HA = 20; C_HX = (24, 56, 60); C_HACC = 28; C_ACC = 64
I("s_setprio 2")
if OPT["codepf"]:
    I("s_cmp_lt_u32 s2, 16")
    I("s_cbranch_scc0 L_nopf")
    e.cond_begin()
    I("s_getpc_b64 s[56:57]")
    e.label("L_pc")
    I(f"s_sub_u32 s56, s56, L_pc-{NAME}_kernel")
    I("s_subb_u32 s57, s57, 0")
    I(f"s_lshr_b32 s{S_t0}, s2, 3")
    I(f"s_lshl_b32 s{S_t0}, s{S_t0}, 15")
    I(f"v_lshlrev_b32 v2, 7, v0")
    I(f"v_lshl_add_u32 v2, v1, 13, v2")
    I(f"v_add_u32 v2, s{S_t0}, v2")
    I(f"v_min_u32 v2, L_end-{NAME}_kernel, v2")
    I(f"global_load_dword v23, v2, s[56:57]")
    e.cond_end()
    e.label("L_nopf")
late_scalars()
I("v_lshlrev_b32 v2, 2, v0")
I(f"v_add_u32 v2, {EV_LDS}, v2")
I("v_mov_b32 v1, 1")
I("ds_write_b32 v2, v1")
I("v_mov_b32 v1, 0")
I("ds_write_b32 v2, v1 offset:256")
I("v_lshrrev_b32 v32, 4, v0")
I("v_and_b32 v33, 15, v0")
I("v_bfe_u32 v34, v0, 2, 2")
I("v_and_b32 v35, 3, v0")
after_karg()
common_ptrs()
I(f"s_cmp_eq_u32 s{S_w}, 0")
I("s_cbranch_scc0 L_c_noinit")
e.cond_begin()
for k in range(4):
    I(f"s_mov_b32 s{S_KG+k}, 0")
    I(f"s_add_u32 s{S_t0}, s{S_MYIN}, {k*128}")
    I(f"s_atomic_swap s{S_KG+k}, s[{S_INB}:{S_INB+1}], s{S_t0} glc")
e.cond_end()
e.label("L_c_noinit")
I(f"s_cmp_ge_u32 s{S_jj}, 2")
I("s_cbranch_scc1 L_c_att")

def c_prog(att):
    reset()
    UL = units(att)
    slot_of = {un: phys(att, k) for k, un in enumerate(UL)}
    subs = [un for un in UL if un[0] == "g"]
    if OPT["spf"] == 2 and OPT["tearly"] and OPT["th"] < 0: vtouch(att)
    if att:
        for p in range(2):
            I(f"v_xor_b32 v38, {8 if p == 0 else 0}, v33")
            I("v_and_b32 v39, 8, v38")
            I("v_add_u32 v39, v39, v38")
            I("v_lshlrev_b32 v39, 7, v39")
            I("v_lshrrev_b32 v38, 1, v38")
            I("v_xor_b32 v38, v38, v32")
            I("v_lshl_add_u32 v39, v38, 4, v39")
            I(f"v_add_u32 v39, s{S_m0b}, v39")
            I(f"v_add_u32 v{C_XR+2*p+p}, {p*1024}, v39")
            I(f"v_xor_b32 v{C_XR+2*p+1-p}, 64, v{C_XR+2*p+p}")
        I("v_lshl_add_u32 v38, v32, 3, v34")
        I("v_lshlrev_b32 v38, 7, v38")
        I("v_lshl_add_u32 v38, v35, 3, v38")
        I("v_lshrrev_b32 v39, 1, v34")
        I("v_and_b32 v40, 1, v32")
        I("v_lshl_or_b32 v39, v40, 1, v39")
        I(f"v_xor_b32 v41, s{S_w}, v39")
        for t in range(4):
            I(f"v_xor_b32 v40, {t}, v41")
            I(f"v_lshl_add_u32 v{C_WR+t}, v40, 5, v38")
            I(f"v_add_u32 v{C_WR+4+t}, 0x10000, v{C_WR+t}")
        I("v_lshrrev_b32 v38, 1, v33")
        I("v_xor_b32 v38, v38, v32")
        I("v_lshlrev_b32 v38, 4, v38")
        I("v_lshl_add_u32 v38, v33, 7, v38")
        I(f"v_add_u32 v{C_HA}, {HALO_LDS}, v38")
        I(f"v_xor_b32 v{C_HA+1}, 64, v{C_HA}")
        I(f"s_mul_i32 s{S_t0}, s{S_w}, 5120")
        I(f"s_add_u32 s{S_t0}, s{S_t0}, {EXCH_LDS+4096}")
        I(f"v_add_u32 v{C_EXW}, s{S_t0}, v{V_L16}")
        I("v_add_u32 v19, 1, v35")
        I("v_bfe_u32 v19, v19, 1, 1")
        I("v_mul_u32_u24 v19, 24, v19")
    else:
        I("v_and_b32 v40, 1, v32")
        I("v_lshlrev_b32 v38, 3, v40")
        I("v_xor_b32 v38, 8, v38")
        I("v_xor_b32 v38, v38, v33")
        I("v_and_b32 v39, 8, v38")
        I("v_add_u32 v39, v39, v38")
        I("v_lshl_add_u32 v39, v40, 3, v39")
        I("v_lshlrev_b32 v39, 7, v39")
        I("v_lshrrev_b32 v38, 1, v38")
        I("v_lshlrev_b32 v41, 2, v40")
        I("v_xor_b32 v38, v38, v41")
        I("v_lshrrev_b32 v41, 1, v32")
        I("v_xor_b32 v38, v38, v41")
        I("v_lshl_add_u32 v39, v38, 4, v39")
        I(f"v_add_u32 v{C_XR}, s{S_m0b}, v39")
        for k in range(1, 4): I(f"v_xor_b32 v{C_XR+k}, {32*k}, v{C_XR}")
        I("v_lshl_add_u32 v38, v41, 3, v34")
        I("v_lshlrev_b32 v38, 7, v38")
        I("v_lshl_add_u32 v38, v35, 3, v38")
        I("v_lshl_add_u32 v38, v40, 5, v38")
        I("v_lshrrev_b32 v39, 1, v34")
        I(f"v_lshl_add_u32 v{C_WR}, v39, 6, v38")
        I(f"v_xor_b32 v{C_WR+1}, 64, v{C_WR}")
        for t in range(2): I(f"v_add_u32 v{C_WR+4+t}, 0x10000, v{C_WR+t}")
    if OPT["spf"] == 2 and not OPT["tearly"] and OPT["th"] < 0: vtouch(att)
    if OPT["spf"] == 1:
        P = 3072 if att else 3584; wp = 6 if att else 12
        I(f"s_lshl_b32 s{S_t0}, s{S_r}, 2"); I(f"s_add_u32 s{S_t0}, s{S_t0}, s{S_w}")
        I(f"s_mul_i32 s{S_t1}, s{S_t0}, {8*P}")
        I(f"s_mul_i32 s{S_t2}, s{S_q}, {256 if att else 896}"); I(f"s_add_u32 s{S_t1}, s{S_t1}, s{S_t2}")
        I(f"s_lshl_b32 s{S_t2}, s{S_j1}, 7"); I(f"s_add_u32 s{S_t2}, s{S_t2}, s{S_t1}")
        I(f"s_add_u32 s56, s{wp}, s{S_t2}"); I(f"s_addc_u32 s57, s{wp+1}, 0")
        for k in range(8): I(f"s_load_dword s{S_EV}, s[56:57], {k*P + (2048 if att else 512)}")
        if not att:
            I(f"s_mul_i32 s{S_t2}, s{S_j1}, {4*P}"); I(f"s_add_u32 s{S_t2}, s{S_t2}, s{S_t1}")
            I(f"s_add_u32 s56, s{wp}, s{S_t2}"); I(f"s_addc_u32 s57, s{wp+1}, 0")
            for k in range(4): I(f"s_load_dword s{S_EV}, s[56:57], {k*P + 768}")
        I(f"s_lshl_b32 s{S_t0}, s{S_t0}, 2"); I(f"s_add_u32 s{S_t0}, s{S_t0}, s{S_jj}")
        I(f"s_mul_i32 s{S_t1}, s{S_t0}, 1792"); I(f"s_mul_i32 s{S_t2}, s{S_q}, {448*1024}"); I(f"s_add_u32 s{S_t1}, s{S_t1}, s{S_t2}")
        I(f"s_add_u32 s56, s14, s{S_t1}"); I("s_addc_u32 s57, s15, 0")
        for k in range(14): I(f"s_load_dword s{S_EV}, s[56:57], {k*128}")
        I(f"s_lshl_b32 s{S_t1}, s{S_t0}, 9"); I(f"s_lshl_b32 s{S_t2}, s{S_q}, 17"); I(f"s_add_u32 s{S_t1}, s{S_t1}, s{S_t2}")
        I(f"s_add_u32 s56, s8, s{S_t1}"); I("s_addc_u32 s57, s9, 0")
        for k in range(4): I(f"s_load_dword s{S_EV}, s[56:57], {k*128}")
        I("s_waitcnt lgkmcnt(0)")
    l = U("ci")
    I(f"s_cmp_eq_u32 s{S_w}, 0"); I(f"s_cbranch_scc0 {l}")
    e.cond_begin()
    I(f"s_mov_b32 s{S_t1}, 1")
    I("s_waitcnt lgkmcnt(0)")
    I(f"s_atomic_add s{S_t1}, s[{S_DBG}:{S_DBG+1}], 0")
    e.cond_end(); e.label(l)
    stamp("c_go")
    def xfr(p, s): return ar((p * 16 + s) * 4)
    def xf32(s16): return ar(s16 * 4)
    def acc(c, T, p=0):
        base = C_ACC + 32 * (c & 1)
        return base + (T * 2 + p) * 4 if att else base + T * 16
    def xread(dst, areg, slot, tmp, k):
        base = slot * SLOT
        if base >= 65536:
            I(f"v_add_u32 v{tmp}, {base & ~0xffff}, v{areg}"); areg = tmp
        I(f"ds_read_b128 {dst}, v{areg} offset:{base & 0xffff}", tag=f"w{k}")
    steps = []; nh = [0]
    for i, un in enumerate(subs):
        _, c, u = un; slot = slot_of[un]
        for j in range(16):
            h = j >> 3
            if att:
                ks = (j >> 1) & 3; T = 2 * h + (j & 1); s = 4 * u + ks; zero = (u == 0 and ks == 0)
                halo = T == 0 and c != 1
                st = dict(rd=(C_WR + (4 if slot >= 4 else 0) + T, (slot & 3) * SLOT + ks * 4096, 512))
                def mf(W, st, s=s, T=T, zero=zero, c=c, halo=halo):
                    out = []
                    for p in range(2):
                        a, b = (xfr(p, s), W) if c == 2 else (W, xfr(p, s))
                        d = vr(acc(c, T, p))
                        out.append(f"{MF} {d}, {a}, {b}, {'0' if zero else d}")
                    if halo:
                        a, b = (vr(st["hreg"]), W) if c == 2 else (W, vr(st["hreg"]))
                        out.append(f"{MF} {vr(C_HACC)}, {a}, {b}, {'0' if zero else vr(C_HACC)}")
                    return out
                def post(k, st=st, s=s, halo=halo, j=j, c=c, u=u, ks=ks):
                    if c == 0 and j < 8 and j % 2 == 0:
                        for p in range(2): xread(xfr(p, s), C_XR + 2 * p + (ks & 1), slot_of[("x", u, ks >> 1)], 1 + p, k)
                    if halo:
                        st["hreg"] = C_HX[nh[0] % 3]; nh[0] += 1
                        I(f"ds_read_b128 {vr(st['hreg'])}, v{C_HA+(s&1)} offset:{(s>>1)*2048}", tag=f"w{k}")
            else:
                kk = j & 7
                if c < 3: s16 = 8 * u + kk; ta = h; zero = (u == 0 and kk == 0)
                else: s16 = 8 * (u + 2 * h) + kk; ta = 0; zero = (u == 0 and j == 0)
                st = dict(rd=(C_WR + (4 if slot >= 4 else 0) + h, (slot & 3) * SLOT + kk * 2048, 512))
                d = vr(acc(c, ta), 16)
                def mf(W, st, s16=s16, d=d, zero=zero): return [f"{M32} {d}, {W}, {xf32(s16)}, {'0' if zero else d}"]
                def post(k, s16=s16, j=j, c=c, u=u, kk=kk):
                    if c == 0 and j < 8: xread(xf32(s16), C_XR + (kk & 3), slot_of[("x", u, kk >> 2)], 1 + (kk & 1), k)
            st["mf"] = mf; st["post"] = post
            if j == 0:
                def pre(i=i):
                    stamp(f"t{i}")
                    if att and i in (8, 9):
                        assert e.lgq[0][0].count(f"exw{i-8}") == (5 if i == 8 else 4)
                        e.wait(lg=f"exw{i-8}")
                    if not att and i - OPT["ackb"] in (0, 1):
                        assert e.vmq[0][0].count(f"st{i-OPT['ackb']}") == 4
                        e.wait(vm=f"st{i-OPT['ackb']}")
                    if i < (10 if att else 14): I("s_barrier")
                    stamp(f"s{i}")
                    if att and i == 8:
                        for t in range(8): I(f"v_xor_b32 v{C_WR+t}, v19, v{C_WR+t}")
                st["pre"] = pre
            steps.append(st)
    if att: S = Stream(steps, OPT["D"], [32, 36, 40, 44, 48, 52])
    else: S = Stream(steps, OPT["DF"], [32, 36, 40, 44, 48, 52, 56, 60])
    DD = S.D
    def packn(a, n_): return [lambda k=k: I(f"v_cvt_pk_bf16_f32 v{a+k}, v{a+2*k}, v{a+2*k+1}") for k in range(n_)]
    def epi(c, h):
        F = []
        if att:
            for t in (2 * h, 2 * h + 1):
                a = acc(c, t, 0)
                F += packn(a, 4)
                def wr(t=t, a=a):
                    I(f"v_xor_b32 v1, {t*1024}, v{C_EXW}")
                    if c == 1: I(f"v_add_u32 v1, {(QSLOT*SLOT - EXCH_LDS - 4096) & 0xffffffff}, v1")
                    I(f"ds_write_b128 v1, {vr(a)}", tag=f"exw{c}")
                F.append(wr)
            if h == 0 and c != 1:
                def hw():
                    I(f"v_cvt_pk_bf16_f32 v{C_HACC}, v{C_HACC}, v{C_HACC+1}")
                    I(f"v_cvt_pk_bf16_f32 v{C_HACC+1}, v{C_HACC+2}, v{C_HACC+3}")
                    I(f"s_add_u32 s{S_t0}, s{S_m0b}, 4096")
                    I(f"v_subrev_u32 v1, s{S_t0}, v{C_EXW}")
                    I(f"ds_write2_b64 v1, {vr(C_HACC,2)}, {vr(C_HACC,2)} offset0:0 offset1:1", tag=f"exw{c}")
                F.append(hw)
        else:
            a = acc(c, h)
            F += packn(a, 8)
            def so():
                I(f"s_lshr_b32 s{S_GIN}, s{S_J32}, {2 if c < 3 else 3}")
                I(f"s_add_u32 s{S_GIN}, s{S_GIN}, s{S_A2}"); I(f"s_add_u32 s{S_GIN}, s{S_GIN}, {(4*c+h)*8192}")
            F.append(so)
            for p in range(2):
                F += [lambda k=k: I(f"v_pk_max_i16 v{k}, v{k}, 0") for k in range(a + 4 * p, a + 4 * p + 4)]
                F.append(cost(9, lambda p=p: I(f"buffer_store_dwordx4 {vr(a+4*p)}, v{V_L16}, {srd(S_WS)}, s{S_GIN} offen offset:{p*1024} sc1", tag=f"st{c}")))
        return F
    n = len(steps)
    for c, i, reuse in ((0, 6, 8), (1, 7, 12), (2, 11, 99)):
        for h in range(2):
            k = 16 * i + 8 * h + 7
            if k == n - 1: continue
            dl = min(16 * reuse + (8 * h if reuse == 8 else 0), n)
            if att and c < 2: dl = 16 * (8 + c) - DD - 3
            S.aft(k, lambda k=k, c=c, h=h, dl=dl: S.add(max(k + (2 if att else 4), 16 * 7 - DD + 1 if att else 0), dl, epi(c, h)))
    S.run(OPT["side"] if att else OPT["sidef"])
    stamp("c_end")
    if not att: I("s_barrier")
    for f in (epi(2, 1) if att else epi(3, 0)): f()
    if att:
        e.wait(lg="exw2")
        I("s_barrier")
    if OPT["cprio"] != 2: I(f"s_setprio {OPT['cprio']}")
    b2_voffs(4)
    if att: I("s_barrier")
    rest = [2, 3, 4, 5, 6, 8, 7] if att else [3, 4, 5, 6, 8, 7]
    b2_unit(rest.pop(0), 4); b2_unit(rest.pop(0), 4)
    stamp("c_g0")
    I("v_lshrrev_b32 v9, 4, v0")
    if att:
        I("v_lshlrev_b32 v8, 4, v9")
    else:
        I("v_lshrrev_b32 v8, 5, v0"); I("v_lshlrev_b32 v8, 4, v8")
        I("v_xor_b32 v9, v9, v0"); I("v_and_b32 v9, 1, v9")
        I("v_cmp_eq_u32 vcc, 0, v9")
    NG = 16 if att else 32; per = NG // 4
    RB = [32 + 4 * k for k in range(8)]
    def gread(s_):
        if s_ % per == 0:
            I(f"s_add_u32 s{S_t0}, s{S_rot}, {s_//per}"); I(f"s_and_b32 s{S_t0}, s{S_t0}, 3"); I(f"s_lshl_b32 s{S_t0}, s{S_t0}, 8")
            I(f"s_add_u32 s{S_t0}, s{S_t0}, {GW_LDS}")
            I(f"v_add_u32 v10, s{S_t0}, v8")
            if not att:
                I(f"v_mov_b32 v11, {ZERO_LDS}"); I("v_cndmask_b32 v10, v11, v10, vcc")
        I(f"ds_read_b128 {vr(RB[s_%8])}, v10 offset:{(s_%per)*(64 if att else 32)}", tag=f"g{s_}")
    for s_ in range(6): gread(s_)
    for s_ in range(NG):
        e.wait(lg=f"g{s_}")
        if att:
            for p in range(2): I(f"{MF} {vr(64+4*p)}, {vr(RB[s_%8])}, {xfr(p,s_)}, {'0' if s_ == 0 else vr(64+4*p)}")
        else:
            I(f"{MF} {vr(64)}, {vr(RB[s_%8])}, {xf32(s_)}, {'0' if s_ == 0 else vr(64)}")
        if s_ + 6 < NG: gread(s_ + 6)
        if s_ == NG // 2: b2_unit(rest.pop(0), 4)
    if not att:
        assert e.vmq[0][0].count("st2") == 4
        e.wait(vm="st3")
        push_group(lambda: (I(f"s_lshl_b32 s{S_t2}, s{S_jj}, 2"), I(f"s_lshl_b32 s{S_t2}, 12, s{S_t2}")), (0, 1, 2, 3))
    z1 = 68 if att else 65; G = 72
    T = [f"v_cvt_pk_bf16_f32 v1, v64, v{z1}", f"v_lshlrev_b32 v{G}, 16, v1", f"v_and_b32 v{G+2}, 0xffff0000, v1"]
    T += [f"v_mul_f32 v{G+2*p}, {f2u(-1.4426950408889634)}, v{G+2*p}" for p in range(2)]
    T += [f"v_exp_f32 v{G+2*p}, v{G+2*p}" for p in range(2)]
    T += [f"v_add_f32 v{G+2*p}, 1.0, v{G+2*p}" for p in range(2)]
    T += [f"v_rcp_f32 v{G+2*p}, v{G+2*p}" for p in range(2)]
    T += [f"v_cvt_pk_bf16_f32 v1, v{G}, v{G+2}", f"v_lshlrev_b32 v{G}, 16, v1", f"v_and_b32 v{G+2}, 0xffff0000, v1"]
    T += [f"v_sub_f32 v{G+1+2*p}, 1.0, v{G+2*p}" for p in range(2)]
    T += [f"v_cvt_pk_bf16_f32 v1, v{G+1}, v{G+3}", f"v_lshlrev_b32 v{G+1}, 16, v1", f"v_and_b32 v{G+3}, 0xffff0000, v1"]
    T += [f"v_max_f32 v{G+2*p}, {f2u(2.0**-60)}, v{G+2*p}" for p in range(2)]
    T += [f"v_rcp_f32 v{G+4+p}, v{G+2*p}" for p in range(2)]
    T += [f"v_mul_f32 v{G+1+2*p}, v{G+4+p}, v{G+1+2*p}" for p in range(2)]
    for t in T: I(t)
    I(f"s_lshl_b32 s{S_t0}, s{S_w}, 8"); I(f"s_add_u32 s{S_t0}, s{S_t0}, {GB_LDS}")
    I(f"v_lshl_add_u32 v1, v0, 3, s{S_t0}")
    I("s_mov_b64 exec, 0xffff")
    I(f"ds_write_b64 v1, {vr(G,2)}", tag="gz")
    I(f"ds_write_b64 v1, {vr(G+2,2)} offset:128", tag="gz")
    I("s_mov_b64 exec, -1")
    e.wait(lg="gz")
    stamp("c_g1")
    for g in rest:
        throttle(); b2_unit(g, 4)
    if OPT["dummy"]:
        I(f"s_lshl_b32 s{S_t0}, s2, 2"); I(f"s_add_u32 s{S_t0}, s{S_t0}, s{S_w}"); I(f"s_mul_i32 s{S_t0}, s{S_t0}, 9216"); I(f"s_add_u32 s{S_t0}, s{S_t0}, {20<<20}")
        for k in range(9):
            I(f"buffer_store_dwordx4 {vr(64)}, v{V_L16}, {srd(S_WS)}, s{S_t0 if OPT['dummy'] == 1 else S_WS+2} offen")
            I(f"s_add_u32 s{S_t0}, s{S_t0}, 1024")
    I("s_waitcnt vmcnt(0) lgkmcnt(0)")
    finish()

c_prog(False)
e.label("L_c_att")
c_prog(True)

e.label("L_end")
I("s_endpgm")
e.raw('.section .rodata,"a"')
e.raw(".p2align 6")
e.raw(f".amdhsa_kernel {NAME}_kernel")
e.raw("  .amdhsa_next_free_vgpr 256")
e.raw("  .amdhsa_next_free_sgpr 102")
e.raw("  .amdhsa_accum_offset 128")
e.raw("  .amdhsa_group_segment_fixed_size 0")
e.raw("  .amdhsa_kernarg_size 80")
e.raw("  .amdhsa_user_sgpr_count 2")
e.raw("  .amdhsa_user_sgpr_kernarg_segment_ptr 1")
e.raw("  .amdhsa_system_sgpr_workgroup_id_x 1")
e.raw(".end_amdhsa_kernel")
sys.stdout.write(e.text())
sys.stderr.write(f"instructions {e.nins} nop-states {e.nops}\n")
```

```python
import sys, struct
from emit import Em

NAME = "gated_mix__sliding_local_dilated__dense_activation_relu__prompt"
OPT = dict(padt=6000, padk=-1, padr=0, stamp=0, D=4, DF=5, D2=5, codepf=1, spin=400000, lround=0, side=2, sidef=2, side2=3,
           ld=6, thr=10, pre=4, pfd=18, ackb=10, cprio=2, dummy=0, sch=1, tm=0, qb=0, rotq=2, spf=2, tearly=0, tB=0, tfull=0, th=6, gap=1, lowp=1, tatt=1)
CST = ["s0", "s2", "s4", "s6", "s8", "s10", "s12", "c_end"]
HST = ["h_b0", "h_b7", "h_p2", "h_late", "h_o", "h_own", "h_rcv", "h_sum"]
for a in sys.argv[1:]:
    k, v = a.split("=")
    if k == "cst": CST = v.split(",")
    elif k == "hst": HST = v.split(",")
    else:
        assert k in OPT, k
        OPT[k] = int(v)
STAMP = OPT["stamp"]
def f2u(x): return struct.unpack("<I", struct.pack("<f", x))[0]

PART_OFF = 10 << 20
INB_OFF = 32 << 20
STAMP_OFF = 33 << 20
WS_BYTES = 36 << 20
SLOT = 16384
HALO_LDS = 7 * SLOT
EXCH_LDS = 8 * SLOT
EV_LDS = EXCH_LDS + 20480
ZERO_LDS = EV_LDS + 256
GW_LDS = EV_LDS + 1024
GB_LDS = EV_LDS + 2048
NEG = f2u(-1e30)

e = Em()
I = e.I
def vr(b, n=4): return f"v[{b}:{b+n-1}]"
def ar(b, n=4): return f"a[{b}:{b+n-1}]"
def srd(b): return f"s[{b}:{b+3}]"
MF = "v_mfma_f32_16x16x32_bf16"
M32 = "v_mfma_f32_32x32x16_bf16"

S_X, S_W, S_WS, S_OUT, S_W2, S_WO, S_GW = 24, 28, 32, 36, 40, 44, 48
S_INB = 52; S_DBG = 54
S_w, S_r, S_jj, S_rot, S_q, S_m0b, S_j1 = 60, 61, 62, 63, 64, 65, 66
S_t0, S_t1, S_t2 = 3, 67, 68
S_BUD = 69; S_EV = 70; S_SOFF = 71
S_POLL = 74; S_MYIN = 75; S_CEXP = 76; S_THR = 77; S_W4 = 79
S_KG = 80; S_WK = 84
S_COL = 88; S_A2 = 89; S_B2 = 90; S_BO = 91; S_PB = 92; S_J32 = 93; S_GIN = 94; S_P = 95
S_STAMP = 4
EVD = {}
def evd(name):
    if name not in EVD: EVD[name] = len(EVD)
    assert EVD[name] < 16
    return EVD[name] * 16
role = ["H"]
def stamp(name):
    L = CST if role[0] == "C" else HST
    if name == "end": idx = 8
    elif name in L: idx = L.index(name)
    else: return
    if STAMP == 3: I(f"s_memrealtime s[{S_STAMP+2*idx}:{S_STAMP+2*idx+1}]")
    elif STAMP: I(f"s_memtime s[{S_STAMP+2*idx}:{S_STAMP+2*idx+1}]")
uid = [0]
def U(p):
    uid[0] += 1
    return f"L_{p}{uid[0]}"
def reset():
    e.vmq = [[[], 0]]; e.lgq = [[[], 0]]; e.hist = []
V_L16 = 16; V_EVW = 17; V_CHK = 3
SLOW = []
def flush_slow():
    for l in SLOW: e.raw(l)
    SLOW.clear()
def spin_tail(lp, ok):
    return [f"    s_sub_u32 s{S_BUD}, s{S_BUD}, 1", f"    s_cbranch_scc0 {lp}", f"    s_mov_b32 s{S_BUD}, 0", f"    s_branch {ok}"]
def dsig(name):
    I(f"s_add_u32 m0, s{S_W4}, {EV_LDS + evd(name)}")
    I("s_mov_b64 exec, 1")
    I(f"buffer_load_dword v{V_L16}, {srd(S_WO)}, s{S_WO+2} offen lds", tag="dsig")
    I("s_mov_b64 exec, -1")
def d_read(name, tag): I(f"ds_read_b32 v{V_CHK}, v{V_EVW} offset:{evd(name)}", tag=tag)
def d_check(name, tag):
    ok = U("ok"); lp = U("sp")
    e.wait(lg=tag)
    I(f"v_cmp_ne_u32 vcc, 0, v{V_CHK}")
    I(f"s_cbranch_vccnz {lp}")
    e.label(ok)
    SLOW.extend([f"{lp}:", f"    ds_read_b32 v{V_CHK}, v{V_EVW} offset:{evd(name)}", "    s_waitcnt lgkmcnt(0)", f"    v_cmp_ne_u32 vcc, 0, v{V_CHK}",
                 f"    s_cbranch_vccz {ok}", "    s_sleep 1"] + spin_tail(lp, ok))
def throttle():
    n = OPT["thr"]
    I(f"s_waitcnt vmcnt({n})")
    for q in e.vmq: q[1] = max(q[1], len(q[0]) - n)
def poll_load():
    I(f"s_load_dword s{S_POLL}, s[{S_INB}:{S_INB+1}], s{S_MYIN} glc")
def poll_check(mask):
    ok = U("pk"); lp = U("pl")
    I(f"s_andn2_b32 s{S_EV}, {mask}, s{S_POLL}")
    I(f"s_cbranch_scc1 {lp}")
    e.label(ok)
    SLOW.extend([f"{lp}:", "    s_waitcnt lgkmcnt(0)", f"    s_andn2_b32 s{S_EV}, {mask}, s{S_POLL}", f"    s_cbranch_scc0 {ok}",
                 f"    s_load_dword s{S_POLL}, s[{S_INB}:{S_INB+1}], s{S_MYIN} glc"] + spin_tail(lp, ok))
def push_group(bit_fn, ds):
    bit_fn()
    for d in ds:
        I(f"s_xor_b32 s{S_t0}, s{S_MYIN}, {d*512}")
        I(f"s_atomic_or s{S_t2}, s[{S_INB}:{S_INB+1}], s{S_t0}")
def ownbit(b):
    def f():
        I(f"s_lshl_b32 s{S_t2}, s{S_jj}, 2"); I(f"s_lshl_b32 s{S_t2}, {1<<b}, s{S_t2}")
    return f
def mk_srd(b, p, nbytes):
    I(f"s_mov_b32 s{b}, s{p}")
    I(f"s_and_b32 s{b+1}, s{p+1}, 0xffff")
    I(f"s_mov_b32 s{b+2}, {nbytes}")
    I(f"s_mov_b32 s{b+3}, 0x20000")
def b2_voffs(dst):
    I("v_lshrrev_b32 v1, 3, v0")
    I("v_bfe_u32 v2, v0, 4, 1")
    I("v_lshlrev_b32 v2, 2, v2")
    I(f"v_and_b32 v{dst}, 7, v0")
    I(f"v_xor_b32 v{dst}, v{dst}, v2")
    I(f"v_lshlrev_b32 v{dst}, 4, v{dst}")
    I(f"v_lshl_add_u32 v{dst}, v1, 10, v{dst}")
    for i in range(1, 4): I(f"v_add_u32 v{dst+i}, {i*7168}, v{dst}")
def late_scalars():
    I(f"s_lshl_b32 s{S_W4}, s{S_w}, 2")
    I(f"s_mov_b32 s{S_BUD}, {OPT['spin']}")
    I(f"s_and_b32 s{S_j1}, s{S_jj}, 1")
    I(f"s_lshl_b32 s{S_t0}, s{S_jj}, 8")
    I(f"s_lshr_b32 s{S_t1}, s{S_w}, 1")
    I(f"s_lshl_b32 s{S_t1}, s{S_t1}, 7")
    I(f"s_add_u32 s{S_t0}, s{S_t0}, s{S_t1}")
    I(f"s_and_b32 s{S_t1}, s{S_w}, 1")
    I(f"s_lshl_b32 s{S_t1}, s{S_t1}, 15")
    I(f"s_add_u32 s{S_t0}, s{S_t0}, s{S_t1}")
    I(f"s_mul_i32 s{S_B2}, s{S_q}, {14*32768}")
    I(f"s_add_u32 s{S_B2}, s{S_B2}, s{S_t0}")
    I(f"s_lshl_b32 s{S_BO}, s{S_q}, 17")
    I(f"s_add_u32 s{S_BO}, s{S_BO}, s{S_t0}")
    I(f"s_lshl_b32 s{S_J32}, s{S_j1}, 16")
    I(f"s_lshl_b32 s{S_t0}, s{S_r}, 2")
    I(f"s_add_u32 s{S_t0}, s{S_t0}, s{S_q}")
    I(f"s_mul_i32 s{S_A2}, s{S_t0}, {18*8192}")
    I(f"s_lshl_b32 s{S_t1}, s{S_w}, 11")
    I(f"s_add_u32 s{S_A2}, s{S_A2}, s{S_t1}")
    I(f"s_lshl_b32 s{S_MYIN}, s{S_t0}, 2")
    I(f"s_add_u32 s{S_MYIN}, s{S_MYIN}, s{S_jj}")
    I(f"s_lshl_b32 s{S_MYIN}, s{S_MYIN}, 2")
    I(f"s_add_u32 s{S_MYIN}, s{S_MYIN}, s{S_w}")
    I(f"s_lshl_b32 s{S_MYIN}, s{S_MYIN}, 7")
    I(f"v_lshlrev_b32 v{V_L16}, 4, v0")
    I(f"v_and_b32 v{V_EVW}, 3, v0")
    I(f"v_lshlrev_b32 v{V_EVW}, 2, v{V_EVW}")
    I(f"v_add_u32 v{V_EVW}, {EV_LDS}, v{V_EVW}")
def common_ptrs():
    I(f"s_add_u32 s{S_INB}, s22, {INB_OFF}")
    I(f"s_addc_u32 s{S_INB+1}, s23, 0")
    I(f"s_lshl_b32 s{S_t0}, s{S_r}, 4")
    I(f"s_add_u32 s{S_DBG}, s20, s{S_t0}")
    I(f"s_addc_u32 s{S_DBG+1}, s21, 0")
    mk_srd(S_WS, 22, WS_BYTES)
    mk_srd(S_W2, 14, 1792 * 1024)
    mk_srd(S_WO, 8, 512 * 1024)
def dma4(voff, srdb, tag):
    for i in range(4):
        I(f"buffer_load_dwordx4 v{voff+i}, {srd(srdb)}, s{S_SOFF} offen offset:{i*1024} lds", tag=tag)
def b2_unit(g, voff, sig=True):
    I(f"s_add_u32 m0, s{S_m0b}, {g*SLOT}")
    if g < 7: I(f"s_add_u32 s{S_SOFF}, s{S_B2}, {g*65536}")
    else:
        I(f"s_xor_b32 s{S_SOFF}, s{S_J32}, {((g-7)^1)*65536}")
        I(f"s_add_u32 s{S_SOFF}, s{S_SOFF}, s{S_BO}")
    dma4(voff, S_W2 if g < 7 else S_WO, f"b{g}")
    if sig: dsig(f"Lb{g}")
def a2_soff(lam, dst):
    if lam < 14: I(f"s_add_u32 s{dst}, s{S_A2}, {lam*8192}")
    else:
        I(f"s_lshr_b32 s{dst}, s{S_J32}, 2"); I(f"s_xor_b32 s{dst}, s{dst}, {((lam-14)^2)*8192}")
        I(f"s_add_u32 s{dst}, s{dst}, s{S_A2}"); I(f"s_add_u32 s{dst}, s{dst}, {14*8192}")
def after_karg():
    I("s_waitcnt lgkmcnt(0)")
    if STAMP:
        I("s_memtime s[100:101]")
        I("s_mov_b32 s72, s96")
        I("s_mov_b32 s73, s98")
def finish():
    if STAMP:
        I("s_waitcnt vmcnt(0)")
        stamp("end")
        I("s_memrealtime s[22:23]")
        I("s_waitcnt lgkmcnt(0)")
        I(f"s_lshl_b32 s{S_t0}, s2, 3")
        I(f"s_add_u32 s{S_t0}, s{S_t0}, s{S_w}")
        if role[0] == "H": I(f"s_add_u32 s{S_t0}, s{S_t0}, 4")
        I(f"s_lshl_b32 s{S_t0}, s{S_t0}, 6")
        I(f"s_add_u32 s{S_t0}, s{S_t0}, {STAMP_OFF}")
        I(f"v_mov_b32 v2, s{S_t0}")
        for k in range(9): I(f"v_mov_b32 v{32+k}, s{S_STAMP+2*k}")
        I("v_mov_b32 v41, s73"); I("v_mov_b32 v42, s22"); I("v_mov_b32 v43, s72"); I("v_mov_b32 v44, s100")
        I(f"v_mov_b32 v45, s{S_BUD}"); I("v_mov_b32 v46, 0")
        I("s_mov_b64 exec, 1")
        for k in range(4): I(f"buffer_store_dwordx4 {vr(32+4*k)}, v2, {srd(S_WS)}, 0 offen offset:{16*k}")
    if STAMP >= 3:
        if OPT["padk"] >= 0 and (OPT["padr"] == 1) == (role[0] == "H"):
            I(f"s_sub_u32 s24, s{S_STAMP+2*OPT['padk']}, s{73 if STAMP == 3 else 72}")
            if STAMP == 4: I("s_lshr_b32 s24, s24, 4")
        else: I("s_mov_b32 s24, 0")
        I(f"s_add_u32 s24, s24, {OPT['padt']}")
        l = U("pad")
        e.label(l)
        I("s_memrealtime s[26:27]"); I("s_waitcnt lgkmcnt(0)"); I("s_sub_u32 s25, s26, s73"); I("s_cmp_lt_u32 s25, s24"); I(f"s_cbranch_scc1 {l}")
    I("s_endpgm")
    flush_slow()
def units(att):
    L = []
    for u in range(4): L += [("x", u, 0), ("x", u, 1), ("g", 0, u), ("g", 1, u)]
    L += [("g", 2, u) for u in range(4)]
    if not att: L += [("g", 3, 0), ("g", 3, 1)]
    return L
def phys(att, k):
    if not att: return (k - 14) % 9
    i = (k - 13) % 8
    return 8 if i == 7 else i
QSLOT = phys(True, 13)
SIGG = (2, 3, 4, 6, 7)
CHKG = {2: 2, 3: 3, 4: 4, 5: 6, 6: 6, 8: 7, 7: 7}

class Stream:
    def __init__(self, steps, depth, ring):
        self.steps = steps; self.side = []; self.after = {}; self.D = depth; self.ring = ring
        assert len(ring) >= depth + 2
    def add(self, ready, deadline, fns):
        for f in fns: self.side.append([ready, deadline, f])
    def aft(self, k, f):
        prev = self.after.get(k)
        self.after[k] = (lambda: (prev(), f())) if prev else f
    def issue(self, k, half):
        st = self.steps[k]
        b = self.ring[k % len(self.ring)]
        a, off, d2 = st["rd"]
        if half == 0:
            if "pre" in st: st["pre"]()
            I(f"ds_read_b64_tr_b16 {vr(b,2)}, v{a} offset:{off}", tag=f"w{k}")
        else:
            I(f"ds_read_b64_tr_b16 {vr(b+2,2)}, v{a} offset:{off+d2}", tag=f"w{k}")
            if "post" in st: st["post"](k)
    def pump(self, k, n):
        c = 0
        while self.side and c < n and self.side[0][0] <= k:
            r = self.side.pop(0)[2]()
            c += r if isinstance(r, int) else 1
    def run(self, rate):
        n = len(self.steps); D = self.D
        for k in range(min(D, n)):
            self.issue(k, 0); self.issue(k, 1)
        for k in range(n):
            st = self.steps[k]
            while any(s[1] <= k for s in self.side): self.side.pop(0)[2]()
            if "need" in st: st["need"]()
            if k % 2 == 0 and k + 1 < n: e.wait(lg=f"w{k+1}")
            e.wait(lg=f"w{k}")
            mfs = st["mf"](vr(self.ring[k % len(self.ring)]), st)
            I(mfs[0])
            if k + D < n: self.issue(k + D, 0)
            if len(mfs) > 1:
                self.pump(k, (rate + 1) // 2)
                I(mfs[1])
            if k + D < n: self.issue(k + D, 1)
            for m in mfs[2:]: I(m)
            self.pump(k, rate // 2 if len(mfs) > 1 else rate)
            if k in self.after: self.after[k]()
            stamp(f"k{k}")
        while self.side: self.side.pop(0)[2]()
def cost(n, f):
    def g():
        f(); return n
    return g

def vtouch(att, dst=22):
    P = 3072 if att else 3584; wp = 6 if att else 12
    if dst == 22: mk_srd(S_W, wp, 512 * P)
    I(f"s_lshl_b32 s{S_t0}, s{S_r}, 2"); I(f"s_add_u32 s{S_t0}, s{S_t0}, s{S_w}")
    I(f"s_mul_i32 s{S_t1}, s{S_t0}, {8*P}")
    I(f"s_mul_i32 s{S_t2}, s{S_q}, {256 if att else 896}"); I(f"s_add_u32 s{S_t1}, s{S_t1}, s{S_t2}")
    I("v_and_b32 v1, 7, v0"); I(f"v_mul_u32_u24 v1, {P}, v1")
    I(f"s_lshl_b32 s{S_t2}, s{S_j1}, 7"); I(f"s_add_u32 s{S_t2}, s{S_t2}, s{S_t1}")
    I("v_lshlrev_b32 v2, 7, v0")
    I("s_mov_b64 exec, 0xff")
    I(f"buffer_load_dword v{dst}, v1, {srd(S_W)}, s{S_t2} offen offset:{2048 if att else 512}")
    if OPT["tB"]: I(f"buffer_load_dword v{dst}, v1, {srd(S_W)}, s{S_t2} offen offset:{0 if att else 256}")
    if not att:
        I(f"s_mul_i32 s{S_t2}, s{S_j1}, {4*P}"); I(f"s_add_u32 s{S_t2}, s{S_t2}, s{S_t1}")
        I("s_mov_b64 exec, 0xf")
        I(f"buffer_load_dword v{dst}, v1, {srd(S_W)}, s{S_t2} offen offset:768")
    I(f"s_lshl_b32 s{S_t0}, s{S_t0}, 2"); I(f"s_add_u32 s{S_t0}, s{S_t0}, s{S_jj}")
    F_ = 2 if OPT["tfull"] else 1
    if OPT["tfull"]: I(f"s_and_b32 s{S_t0}, s{S_t0}, 127"); I(f"s_lshl_b32 s{S_t0}, s{S_t0}, 1")
    I(f"s_mul_i32 s{S_t1}, s{S_t0}, 1792"); I(f"s_mul_i32 s{S_t2}, s{S_q}, {448*1024}"); I(f"s_add_u32 s{S_t1}, s{S_t1}, s{S_t2}")
    I(f"s_mov_b64 exec, {(1 << (14*F_)) - 1}")
    I(f"buffer_load_dword v{dst}, v2, {srd(S_W2)}, s{S_t1} offen")
    I(f"s_lshl_b32 s{S_t1}, s{S_t0}, 9"); I(f"s_lshl_b32 s{S_t2}, s{S_q}, 17"); I(f"s_add_u32 s{S_t1}, s{S_t1}, s{S_t2}")
    I(f"s_mov_b64 exec, {(1 << (4*F_)) - 1}")
    I(f"buffer_load_dword v{dst}, v2, {srd(S_WO)}, s{S_t1} offen")
    I("s_mov_b64 exec, -1")
def vtouch2():
    I(f"s_lshl_b32 s{S_t0}, s{S_r}, 2"); I(f"s_add_u32 s{S_t0}, s{S_t0}, s{S_w}")
    I(f"s_lshl_b32 s{S_t0}, s{S_t0}, 1"); I(f"s_add_u32 s{S_t0}, s{S_t0}, s{S_j1}")
    I("v_lshlrev_b32 v2, 7, v0")
    I(f"s_mul_i32 s{S_t1}, s{S_t0}, 3584"); I(f"s_mul_i32 s{S_t2}, s{S_q}, {448*1024}"); I(f"s_add_u32 s{S_t1}, s{S_t1}, s{S_t2}")
    I(f"s_mov_b64 exec, {(1 << 28) - 1}")
    I(f"buffer_load_dword v30, v2, {srd(S_W2)}, s{S_t1} offen")
    I(f"s_lshl_b32 s{S_t1}, s{S_t0}, 10"); I(f"s_lshl_b32 s{S_t2}, s{S_q}, 17"); I(f"s_add_u32 s{S_t1}, s{S_t1}, s{S_t2}")
    I("s_mov_b64 exec, 0xff")
    I(f"buffer_load_dword v30, v2, {srd(S_WO)}, s{S_t1} offen")
    I("s_mov_b64 exec, -1")
e.raw(f"; @launch grid=(256,1,1) block=(512,1,1) lds=163840")
e.raw('.amdgcn_target "amdgcn-amd-amdhsa--gfx950"')
e.raw(".text")
e.raw(f".globl {NAME}_kernel")
e.raw(".p2align 8")
e.raw(f".type {NAME}_kernel,@function")
e.label(f"{NAME}_kernel")
I("s_load_dwordx16 s[4:19], s[0:1], 0")
I("s_load_dwordx4 s[20:23], s[0:1], 64")
if STAMP:
    I("s_memrealtime s[98:99]")
    I("s_memtime s[96:97]")
I("v_lshrrev_b32 v1, 6, v0")
I("s_cmp_ge_u32 s2, 256")
I("s_cbranch_scc1 L_end")
I(f"v_readfirstlane_b32 s{S_t2}, v1")
I("v_and_b32 v0, 63, v0")
I(f"s_bfe_u32 s{S_q}, s2, 0x20001")
I(f"s_and_b32 s{S_t0}, s2, 1")
I(f"s_lshl_b32 s{S_t0}, s{S_t0}, 3")
I(f"s_bfe_u32 s{S_r}, s2, 0x30003")
I(f"s_or_b32 s{S_r}, s{S_r}, s{S_t0}")
I(f"s_lshr_b32 s{S_jj}, s2, 6")
if OPT["rotq"] == 2:
    I(f"s_lshr_b32 s{S_rot}, s{S_t0}, 2")
    I(f"s_add_u32 s{S_rot}, s{S_rot}, s{S_q}")
    I(f"s_and_b32 s{S_t0}, s{S_r}, 1")
    I(f"s_add_u32 s{S_rot}, s{S_rot}, s{S_t0}")
elif OPT["rotq"]: I(f"s_add_u32 s{S_rot}, s{S_r}, s{S_q}")
else: I(f"s_mov_b32 s{S_rot}, s{S_r}")
I(f"s_and_b32 s{S_w}, s{S_t2}, 3")
I(f"s_lshl_b32 s{S_m0b}, s{S_w}, 12")
I(f"s_cmp_lt_u32 s{S_t2}, 4")
I("s_cbranch_scc1 L_C")

H_XD = 4; H_WD = 8; H_BD = 12; H_G = 18; H_BR = 20; H_ACC = 64
H_RING = [32, 36, 40, 44, 48, 52, 24, 28]
def a2r(lam, p):
    if lam < 16: return ar(lam * 8 + p * 4)
    return vr((56 if lam == 16 else 4) + p * 4)
I("s_setprio 3")
I("v_lshrrev_b32 v32, 4, v0")
I("v_lshrrev_b32 v36, 3, v0")
I("v_and_b32 v37, 7, v0")
I("v_xor_b32 v39, v37, v32")
I("v_lshlrev_b32 v39, 4, v39")
I(f"v_lshl_add_u32 v{H_XD}, v36, 11, v39")
I(f"v_xor_b32 v{H_XD+1}, 64, v{H_XD}")
I(f"v_add_u32 v{H_XD+2}, {14*1024}, v{H_XD+1}")
I(f"v_add_u32 v{H_XD+3}, {14*1024}, v{H_XD}")
I(f"s_lshl_b32 s{S_t0}, s{S_r}, 17")
I(f"s_lshl_b32 s{S_t1}, s{S_w}, 15")
I(f"s_add_u32 s{S_t0}, s{S_t0}, s{S_t1}")
for g4 in range(4):
    I(f"s_add_u32 s{S_WK+g4}, s{S_rot}, {g4}")
    I(f"s_and_b32 s{S_WK+g4}, s{S_WK+g4}, 3")
    I(f"s_lshl_b32 s{S_KG+g4}, s{S_WK+g4}, 8")
    I(f"s_add_u32 s{S_KG+g4}, s{S_KG+g4}, s{S_t0}")
I(f"s_mov_b32 s{S_X+2}, {2048*1024}")
I(f"s_mov_b32 s{S_X+3}, 0x20000")
assert phys(False, 0) == 4 and phys(False, 1) == 5 and phys(True, 0) == 3 and phys(True, 1) == 4 and phys(False, 2) == 6 and phys(True, 2) == 5
I(f"s_cmp_ge_u32 s{S_jj}, 2")
I(f"s_cselect_b32 s{S_t2}, 3, 4")
I(f"s_mov_b32 s{S_W+2}, {512*3584}")
I(f"s_cmov_b32 s{S_W+2}, {512*3072}")
I(f"s_mov_b32 s{S_P}, 3584")
I(f"s_cmov_b32 s{S_P}, 3072")
I(f"s_lshl_b32 s{S_t2}, s{S_t2}, 14")
I(f"s_add_u32 s{S_t2}, s{S_t2}, s{S_m0b}")
I(f"s_mov_b32 m0, s{S_t2}")
I(f"s_add_u32 s{S_SOFF}, s{S_KG}, 128")
after_karg()
I(f"s_mov_b32 s{S_X}, s4")
I(f"s_and_b32 s{S_X+1}, s5, 0xffff")
for i in range(4): I(f"buffer_load_dwordx4 v{H_XD+i}, {srd(S_X)}, s{S_KG} offen offset:{i*1024} lds", tag="u0")
I(f"s_add_u32 m0, s{S_t2}, {SLOT}")
I(f"s_mov_b32 s{S_W+3}, 0x20000")
dma4(H_XD, S_X, "u1")
I(f"s_lshl_b32 s{S_t0}, s{S_w}, 5")
I(f"v_add_u32 v38, s{S_t0}, v36")
I(f"v_mul_lo_u32 v38, v38, s{S_P}")
I(f"s_mul_i32 s{S_COL}, s{S_q}, 896")
I(f"s_lshl_b32 s{S_t0}, s{S_q}, 8")
I(f"s_add_u32 s{S_t0}, s{S_t0}, {1024-256}")
I(f"s_cmp_ge_u32 s{S_jj}, 2")
I(f"s_cselect_b32 s{S_W}, s6, s12")
I(f"s_cselect_b32 s{S_W+1}, s7, s13")
I(f"s_cselect_b32 s{S_COL}, s{S_t0}, s{S_COL}")
I(f"s_cselect_b32 s{S_t0}, 1, 2")
I(f"s_cselect_b32 s{S_t1}, 64, 0")
I(f"s_and_b32 s{S_W+1}, s{S_W+1}, 0xffff")
I("v_and_b32 v39, 1, v32")
I(f"v_lshlrev_b32 v39, s{S_t0}, v39")
I("v_xor_b32 v39, v39, v37")
I("v_lshlrev_b32 v39, 4, v39")
I(f"v_add_u32 v{H_WD}, v38, v39")
I(f"v_xor_b32 v39, s{S_t1}, v39")
I(f"s_lshl_b32 s{S_t0}, s{S_P}, 3")
I(f"s_sub_u32 s{S_t0}, s{S_t0}, 1024")
I(f"v_add3_u32 v{H_WD+1}, v38, v39, s{S_t0}")
I(f"s_lshl_b32 s{S_t0}, s{S_t0}, 1")
I(f"v_add_u32 v{H_WD+2}, s{S_t0}, v{H_WD}")
I(f"v_add_u32 v{H_WD+3}, s{S_t0}, v{H_WD+1}")
I(f"s_lshl_b32 s{S_t0}, s{S_jj}, 7")
I(f"s_add_u32 s{S_COL}, s{S_COL}, s{S_t0}")
I(f"s_lshl_b32 s{S_t1}, s{S_P}, 7")
for g4 in range(4): I(f"s_mul_i32 s{S_WK+g4}, s{S_WK+g4}, s{S_t1}")
I(f"s_add_u32 m0, s{S_t2}, {2*SLOT}")
I(f"s_add_u32 s{S_SOFF}, s{S_WK}, s{S_COL}")
dma4(H_WD, S_W, "u2")
common_ptrs()
mk_srd(S_OUT, 18, 2048 * 1024)
mk_srd(S_GW, 16, 1024)
I(f"s_cmp_ge_u32 s{S_jj}, 2")
I("s_cbranch_scc1 L_h_att")
snapH = e.snapshot()

def h_prog(att):
    e.restore(snapH); e.hist = []
    UL = units(att)
    CH = [0, -1024, 1024] if att else [0, 256, 512]
    def issue(k):
        un = UL[k]
        I(f"s_add_u32 m0, s{S_m0b}, {phys(att,k)*SLOT}")
        if un[0] == "x":
            I(f"s_add_u32 s{S_SOFF}, s{S_KG+un[1]}, {un[2]*128}")
            dma4(H_XD, S_X, f"u{k}")
            if att and un[2] == 1: halo(un[1], f"u{k}")
            return
        _, c, u = un
        if c < 3:
            I(f"s_add_u32 s{S_SOFF}, s{S_WK+u}, s{S_COL}")
            if CH[c]: I(f"s_add_i32 s{S_SOFF}, s{S_SOFF}, {CH[c]}")
        else:
            KH = 256 * 3584
            if u == 0:
                I("v_lshrrev_b32 v2, 2, v0")
                I("v_lshrrev_b32 v1, 4, v0")
                I("v_xor_b32 v2, v2, v1")
                I("v_and_b32 v2, 1, v2")
                I(f"v_mul_u32_u24 v1, {KH-64}, v2")
                for i in range(4): I(f"v_add_u32 v{H_WD+i}, v{H_WD+i}, v1")
                I(f"v_mul_u32_u24 v2, {2*KH}, v2")
                I(f"v_sub_u32 v{H_XD}, {KH}, v2")
                I(f"s_cmp_ge_u32 s{S_WK}, {KH}")
                I(f"s_cselect_b32 s{S_t0}, 1, 0")
            else:
                I(f"s_cmp_ge_u32 s{S_WK}, {KH}")
                I(f"s_cselect_b32 s{S_t1}, 1, 0")
                I(f"s_cmp_ge_u32 s{S_WK+1}, {KH}")
                I(f"s_cselect_b32 s{S_t0}, 1, 0")
                I(f"s_sub_u32 s{S_t0}, s{S_t0}, s{S_t1}")
            for i in range(4): I(f"v_mad_i32_i24 v{H_WD+i}, v{H_XD}, s{S_t0}, v{H_WD+i}")
            I(f"s_min_u32 s{S_SOFF}, s{S_WK+u}, s{S_WK+u+2}")
            I(f"s_add_u32 s{S_SOFF}, s{S_SOFF}, s{S_COL}")
            I(f"s_lshl_b32 s{S_t0}, s{S_jj}, 6")
            I(f"s_sub_u32 s{S_SOFF}, s{S_SOFF}, s{S_t0}")
            I(f"s_add_u32 s{S_SOFF}, s{S_SOFF}, 768")
        dma4(H_WD, S_W, f"u{k}")
    def w0(f):
        l = U("w0")
        I(f"s_cmp_eq_u32 s{S_w}, 0"); I(f"s_cbranch_scc0 {l}")
        e.cond_begin(); f(); e.cond_end(); e.label(l)
    def peer_issue(): w0(lambda: I(f"s_load_dword s{S_POLL}, s[{S_DBG}:{S_DBG+1}], 0 glc"))
    def peer():
        def f():
            lp = U("pp"); ok = U("po")
            I("s_waitcnt lgkmcnt(0)")
            I(f"s_cmp_ge_u32 s{S_POLL}, 16")
            I(f"s_cbranch_scc0 {lp}")
            e.label(ok)
            SLOW.extend([f"{lp}:", "    s_sleep 8", f"    s_load_dword s{S_POLL}, s[{S_DBG}:{S_DBG+1}], 0 glc", "    s_waitcnt lgkmcnt(0)",
                         f"    s_cmp_ge_u32 s{S_POLL}, 16", f"    s_cbranch_scc1 {ok}"] + spin_tail(lp, ok))
        w0(f)
        I(f"s_mov_b32 s{S_POLL}, 0")
    V_Q = 64; V_S = 96; V_BIAS = 32; V_RINV = 40; V_T = 48; A_KV = 64; A_ONES = 96; V_AD = 24
    def att_setup(part):
        if part == 0:
            I(f"s_add_u32 s{S_t0}, s{S_m0b}, {EXCH_LDS+4096}")
            I(f"v_add_u32 v{V_AD}, s{S_t0}, v{V_L16}")
            I("v_bfe_u32 v1, v0, 3, 1")
            I("v_lshlrev_b32 v1, 12, v1")
            I(f"v_sub_u32 v{V_AD+2}, v{V_AD}, v1")
            I("v_xor_b32 v1, 4096, v1")
            I(f"v_sub_u32 v{V_AD+1}, v{V_AD}, v1")
            I("v_lshrrev_b32 v1, 5, v0")
            I("v_lshlrev_b32 v1, 12, v1")
            I(f"v_sub_u32 v{V_AD+4}, v{V_AD}, v1")
            I("v_xor_b32 v1, 4096, v1")
            I(f"v_sub_u32 v{V_AD+3}, v{V_AD}, v1")
            I(f"v_add_u32 v{V_AD+5}, {(QSLOT*SLOT - EXCH_LDS - 4096) & 0xffffffff}, v{V_AD}")
            I(f"s_mov_b32 s{S_CEXP}, {f2u(0.25*1.4426950408889634)}")
            I(f"s_or_b32 s{S_t0}, s{S_r}, s{S_w}")
            I(f"s_cmp_eq_u32 s{S_t0}, 0")
            I(f"s_cselect_b32 s{S_THR}, -16, -9")
            I(f"v_mov_b32 v{V_T}, 0x3f803f80")
            for k in range(4): I(f"v_accvgpr_write_b32 a{A_ONES+k}, v{V_T}")
            I(f"v_mov_b32 v{V_T}, {NEG}")
            I(f"v_and_b32 v{V_T+1}, 15, v0")
            I(f"v_lshrrev_b32 v{V_T+2}, 4, v0")
            I(f"v_lshlrev_b32 v{V_T+2}, 2, v{V_T+2}")
        elif part in (1, 2):
            p = part - 1; x8 = 8 if p == 0 else 0
            I(f"v_xor_b32 v{V_T+3}, {x8}, v{V_T+1}")
            I(f"v_xor_b32 v{V_T+4}, {x8}, v{V_T+2}")
            I(f"v_sub_u32 v{V_T+3}, v{V_T+3}, v{V_T+4}")
            for r in range(4):
                I(f"v_subrev_u32 v{V_T+4}, {r}, v{V_T+3}")
                I(f"v_cmp_lt_u32 vcc, 7, v{V_T+4}")
                I(f"v_cmp_lt_i32 s[56:57], s{S_THR}, v{V_T+4}")
                I("s_and_b64 vcc, vcc, s[56:57]")
                I(f"v_cndmask_b32 v{V_BIAS+p*4+r}, 0, v{V_T}, vcc")
        else:
            for k in range(16): I(f"v_mov_b32 v{V_Q+16*(part-3)+k}, 0")
            I("s_mov_b32 s56, 0xff00ff00"); I("s_mov_b32 s57, 0xff00ff00")
            I("s_not_b64 s[58:59], s[56:57]")
    def br_setup():
        I("v_bfe_u32 v1, v0, 2, 2")
        I("v_lshrrev_b32 v2, 5, v0")
        I("v_lshl_add_u32 v1, v2, 2, v1")
        I("v_lshlrev_b32 v1, 7, v1")
        I("v_bfe_u32 v2, v0, 4, 1")
        I("v_lshl_add_u32 v1, v2, 5, v1")
        I("v_bfe_u32 v2, v0, 3, 1")
        I("v_lshl_add_u32 v1, v2, 6, v1")
        I("v_and_b32 v2, 3, v0")
        I("v_lshl_add_u32 v1, v2, 3, v1")
        I(f"s_lshr_b32 s{S_t0}, s{S_q}, 1")
        I(f"s_lshl_b32 s{S_t0}, s{S_t0}, 13")
        I(f"s_and_b32 s{S_t1}, s{S_q}, 1")
        I(f"s_lshl_b32 s{S_t1}, s{S_t1}, 6")
        I(f"s_or_b32 s{S_t0}, s{S_t0}, s{S_t1}")
        I(f"v_xor_b32 v1, s{S_t0}, v1")
        for tau in range(4):
            cb = 3 - tau
            I(f"v_xor_b32 v{H_BR+tau}, {(cb>>1)*8192 + (cb&1)*64}, v1")
        I(f"s_lshl_b32 s{S_PB}, s{S_r}, 2"); I(f"s_add_u32 s{S_PB}, s{S_PB}, s{S_jj}")
        I(f"s_mul_i32 s{S_PB}, s{S_PB}, {12*8192}")
        I(f"s_lshl_b32 s{S_t0}, s{S_w}, 11"); I(f"s_add_u32 s{S_PB}, s{S_PB}, s{S_t0}"); I(f"s_add_u32 s{S_PB}, s{S_PB}, {PART_OFF}")
    V_HV = 31
    def halo(u, tag):
        I(f"s_lshr_b32 s{S_t0}, s{S_m0b}, 2")
        I(f"s_add_u32 m0, s{S_t0}, {HALO_LDS + u*4096}")
        I(f"s_and_b32 s{S_t0}, s{S_KG+u}, 0x300")
        I(f"buffer_load_dwordx4 v{V_HV}, {srd(S_X)}, s{S_t0} offen lds", tag=tag)
    if att:
        I(f"s_and_b32 s{S_t1}, s{S_w}, 1")
        I(f"s_mul_i32 s{S_t1}, s{S_t1}, {1024+64}")
        I(f"v_xor_b32 v{V_HV}, s{S_t1}, v{H_XD}")
        I(f"s_lshl_b32 s{S_t0}, s{S_r}, 17")
        I(f"s_sub_u32 s{S_t0}, s{S_t0}, 16384")
        I(f"s_lshr_b32 s{S_t1}, s{S_w}, 1")
        I(f"s_lshl_b32 s{S_t1}, s{S_t1}, 7")
        I(f"s_add_u32 s{S_t0}, s{S_t0}, s{S_t1}")
        I(f"v_add_u32 v{V_HV}, s{S_t0}, v{V_HV}")
        I(f"v_max_i32 v{V_HV}, 0, v{V_HV}")
        halo(0, "u2")
    PRE = OPT["pre"]
    for k in range(3, PRE + 1): issue(k)
    first = list(range(PRE + 1, 8))
    if att: sched = [first, [8, 9], [10], [11, 12, 13], [14], [15, 16, 17], [18], [19]]
    else: sched = [first, [8, 9], [10, 11], [12, 13], [14, 15], [16, 17], [18, 19], []]
    def gw_dma():
        I(f"s_mov_b32 m0, {GW_LDS}")
        w0(lambda: I(f"buffer_load_dwordx4 v{V_L16}, {srd(S_GW)}, 0 offen lds"))
    extra = {1: lambda: (late_scalars(), b2_voffs(H_BD)), 3: gw_dma, 7: (br_setup if att or OPT["sch"] else lambda: (b2_unit(8, H_BD), br_setup()))}
    if att: extra.update({2: lambda: (att_setup(0), att_setup(1)), 4: lambda: (att_setup(2), att_setup(3)), 6: lambda: att_setup(4)})
    gk = [k for k, un in enumerate(UL) if un[0] == "g"]
    def bar(i, need=None):
        stamp(f"h_a{i}")
        if need is None and i < len(gk): need = gk[i]
        if need is not None: e.wait(vm=f"u{need}")
        if i == 6: peer()
        I("s_barrier"); stamp(f"h_b{i}")
    for i in range(8):
        bar(i)
        if i == 4: peer_issue()
        for k in sched[i]: issue(k)
        if i in extra: extra[i]()
        if i == OPT["th"] and not OPT["tatt"]: vtouch(att, 30)
        if i == OPT["th"] and OPT["tatt"] and att: vtouch2()
    def a2_load(lam):
        a2_soff(lam, S_t1)
        for p in range(2):
            I(f"buffer_load_dwordx4 {a2r(lam,p)}, v{V_L16}, {srd(S_WS)}, s{S_t1} offen offset:{p*1024} sc1", tag=f"a{lam}")
    def a2_items(lams, gap=None):
        gap = OPT['gap']
        F = []
        for lam in lams:
            F.append(cost(9, lambda lam=lam: (a2_soff(lam, S_COL), I(f"buffer_load_dwordx4 {a2r(lam,0)}, v{V_L16}, {srd(S_WS)}, s{S_COL} offen sc1", tag=f"a{lam}x"))))
            F += [cost(9, lambda: None)] * (gap - 1)
            F.append(cost(9, lambda lam=lam: I(f"buffer_load_dwordx4 {a2r(lam,1)}, v{V_L16}, {srd(S_WS)}, s{S_COL} offen offset:1024 sc1", tag=f"a{lam}")))
            F += [cost(9, lambda: None)] * (gap - 1)
        return F
    Bu = lambda g: b2_unit(g, H_BD, False)
    SS = []
    ALL = (0, 1, 2, 3)
    side = {}
    if not att:
        if OPT["sch"] == 0:
            bar(8); Bu(0)
            bar(9); issue(20); Bu(1)
            bar(10); push_group(ownbit(0), ALL); issue(21); Bu(2)
            bar(11); push_group(ownbit(1), ALL); Bu(3); poll_load()
            bar(12); poll_check(0x11)
            for lam in range(4): a2_load(lam)
            Bu(4); poll_load()
            bar(13); poll_check(0x22)
            for lam in range(4, 8): a2_load(lam)
            Bu(5)
            bar(14)
        else:
            bar(8)
            bar(9); issue(20)
            bar(10); push_group(ownbit(0), ALL); issue(21)
            bar(11); push_group(ownbit(1), ALL); Bu(0); Bu(1); poll_load()
            bar(12); poll_check(0x11); a2_load(0); a2_load(1); poll_load()
            bar(13); a2_load(2); a2_load(3); b2_unit(2, H_BD)
            e.wait(vm="b1")
            bar(14); poll_check(0x22)
            side[(0, 0)] = lambda: SS[0].add(0, 999, a2_items((4, 5, 6, 7), 2))
        def f_o(): poll_check(0x300); SS[0].add(0, 999, a2_items((16, 17, 14, 15)))
    else:
        def kv_reads(m0, tag):
            for t in range(4):
                I(f"ds_read_b64 {ar(A_KV+8*t,2)}, v{m0} offset:{t*1024}", tag=f"{tag}{t}")
                I(f"ds_read_b128 {ar(A_KV+8*t+2)}, v{V_AD} offset:{t*1024}", tag=f"{tag}{t}")
                I(f"ds_read_b64 {ar(A_KV+8*t+6,2)}, v{m0+1} offset:{t*1024+8}", tag=f"{tag}{t}")
        bar(8)
        kv_reads(V_AD + 1, "k")
        e.wait(lg="k3")
        bar(9, 19)
        def Preg(t, p): return V_Q + 8 * t + 4 * p
        for half, m in enumerate(("s[56:57]", "s[58:59]")):
            I(f"s_mov_b64 exec, {m}")
            for t in range(4):
                for p in range(2):
                    I(f"ds_read_b64 {vr(Preg(t,p)+2*half,2)}, v{V_AD+5} offset:{t*1024+p*8}", tag="q")
        I("s_mov_b64 exec, -1")
        stamp("h_q")
        e.wait(lg="q")
        un = [(i >> 1, i & 1) for i in range(8)]
        Sc = lambda i: V_S + 4 * i
        for i, (t, p) in enumerate(un): I(f"{MF} {vr(Sc(i))}, {ar(A_KV+8*t+4*p)}, {vr(Preg(t,p))}, {vr(V_BIAS+4*p)}")
        poll_load()
        Bu(0)
        m = [V_T + i for i in range(8)]
        for i in range(8):
            if OPT["lround"]:
                I(f"v_cvt_pk_bf16_f32 v1, v{Sc(i)}, v{Sc(i)+1}")
                I(f"v_cvt_pk_bf16_f32 v2, v{Sc(i)+2}, v{Sc(i)+3}")
                I(f"v_lshlrev_b32 v{Sc(i)}, 16, v1")
                I(f"v_and_b32 v{Sc(i)+1}, 0xffff0000, v1")
                I(f"v_lshlrev_b32 v{Sc(i)+2}, 16, v2")
                I(f"v_and_b32 v{Sc(i)+3}, 0xffff0000, v2")
            I(f"v_max3_f32 v{m[i]}, v{Sc(i)}, v{Sc(i)+1}, v{Sc(i)+2}")
            I(f"v_max_f32 v{m[i]}, v{m[i]}, v{Sc(i)+3}")
        for k in range(4): I(f"v_permlane32_swap_b32 v{m[2*k]}, v{m[2*k+1]}")
        for k in range(4): I(f"v_max_f32 v{m[2*k]}, v{m[2*k]}, v{m[2*k+1]}")
        for k in range(2): I(f"v_permlane16_swap_b32 v{m[4*k]}, v{m[4*k+2]}")
        for k in range(2): I(f"v_max_f32 v{m[4*k]}, v{m[4*k]}, v{m[4*k+2]}")
        for k in range(2): I(f"v_mul_f32 v{m[4*k+2]}, s{S_CEXP}, v{m[4*k]}")
        for k in range(2): I(f"v_mul_f32 v{m[4*k]}, s{S_CEXP}, v{m[4*k]}")
        for k in range(2): I(f"v_permlane16_swap_b32 v{m[4*k]}, v{m[4*k+2]}")
        for k in range(4): I(f"v_mov_b32 v{m[2*k+1]}, v{m[2*k]}")
        for k in range(4): I(f"v_permlane32_swap_b32 v{m[2*k]}, v{m[2*k+1]}")
        Bu(1)
        for i in range(8):
            for r in range(4): I(f"v_fma_f32 v{Sc(i)+r}, v{Sc(i)+r}, s{S_CEXP}, -v{m[i]}")
            for r in range(4): I(f"v_exp_f32 v{Sc(i)+r}, v{Sc(i)+r}")
            if i == 4: poll_check(0x11); poll_load()
            if i >= 4: a2_load(i - 4)
        b2_unit(2, H_BD)
        for half, mk in enumerate(("s[56:57]", "s[58:59]")):
            I(f"s_mov_b64 exec, {mk}")
            for i, (t, p) in enumerate(un):
                I(f"v_cvt_pk_bf16_f32 v{Preg(t,p)+2*half}, v{Sc(i)}, v{Sc(i)+1}")
                I(f"v_cvt_pk_bf16_f32 v{Preg(t,p)+2*half+1}, v{Sc(i)+2}, v{Sc(i)+3}")
        I("s_mov_b64 exec, -1")
        for i, (t, p) in enumerate(un): I(f"{MF} {vr(Sc(i))}, {ar(A_ONES)}, {vr(Preg(t,p))}, 0")
        for i in range(8): I(f"v_rcp_f32 v{V_RINV+i}, v{Sc(i)}")
        e.wait(vm="b1")
        stamp("h_sm")
        I("s_barrier")
        kv_reads(V_AD + 3, "v")
        e.wait(lg="v3")
        I("s_barrier")
        for i, (t, p) in enumerate(un): I(f"{MF} {vr(Sc(i))}, {ar(A_KV+8*t+4*p)}, {vr(Preg(t,p))}, 0")
        for b in range(2):
            for t in (2 * b, 2 * b + 1):
                ob = (56 if b == 0 else 4) + (t & 1) * 4
                for p in range(2):
                    o = Sc(2 * t + p)
                    for r in range(4): I(f"v_mul_f32 v{o+r}, v{V_RINV+2*t+p}, v{o+r}")
                    I(f"v_cvt_pk_bf16_f32 v{ob+2*p}, v{o}, v{o+1}")
                    I(f"v_cvt_pk_bf16_f32 v{ob+2*p+1}, v{o+2}, v{o+3}")
            a2_soff(16 + b, S_t1)
            for t1 in range(2):
                ob = (56 if b == 0 else 4) + t1 * 4
                I(f"v_permlane16_swap_b32 v{ob}, v{ob+2}")
                I(f"v_permlane16_swap_b32 v{ob+1}, v{ob+3}")
            for p in range(2):
                I(f"buffer_store_dwordx4 {a2r(16+b,p)}, v{V_L16}, {srd(S_WS)}, s{S_t1} offen offset:{p*1024} sc1", tag="so")
        stamp("h_so")
        def f_push():
            e.wait(vm="so")
            push_group(lambda: I(f"s_lshl_b32 s{S_t2}, 64, s{S_jj}"), (1, 2, 3))
        side[(0, 14)] = f_push
        side[(0, 0)] = lambda: (poll_check(0x22), SS[0].add(0, 999, a2_items((4, 5, 6, 7), 1)))
        def f_o():
            I(f"s_xor_b32 s{S_THR}, s{S_jj}, 1"); I(f"s_lshl_b32 s{S_THR}, 64, s{S_THR}")
            poll_check(f"s{S_THR}"); SS[0].add(0, 999, a2_items((14, 15)))
    def f_c(): poll_check(0x44); SS[0].add(0, 999, a2_items((8, 9, 10, 11)))
    def f_h(): poll_check(0x88); SS[0].add(0, 999, a2_items((12, 13)))
    side.update({(8, -46): poll_load, (8, -28): f_c, (12, -42): poll_load, (12, -26): f_h, (16, -40): poll_load, (16, -24): f_o})
    I("s_setprio 1")
    stamp("h_p2")
    own = [16, 17] if att else []
    LD = OPT["ld"]
    oo = [16, 17, 14, 15]
    TM = 14 - OPT["tm"]
    seq = [(lam, tau) for lam in range(TM) for tau in range(4 if lam < LD else 3)]
    seq += [(lam, tau) for tau in range(3) for lam in list(range(TM, 14)) + oo]
    seq += [(lam, 3) for lam in list(range(LD, 14)) + oo]
    steps = []; rng = {}; seen_g = set(); seen_l = set(); first_ = set()
    for (lam, tau) in seq:
        g = lam >> 1
        for kh in range(2):
            a = H_BR + tau
            off = g * SLOT + (lam & 1) * 4096 + kh * 2048
            hi = off >> 16
            st = dict(rd=(a, off & 0xffff, 1024))
            pres = []
            cg = CHKG.get(g)
            if cg is not None and cg not in seen_g:
                seen_g.add(cg); t = U("t")
                steps[-3]["post"] = lambda k, g=cg, t=t: d_read(f"Lb{g}", t)
                pres.append(lambda g=cg, t=t: d_check(f"Lb{g}", t))
            if rng.get(a, 0) != hi:
                dlt = (hi - rng.get(a, 0)) * 65536; rng[a] = hi
                pres.append(lambda a=a, dlt=dlt: I(f"v_add_u32 v{a}, {dlt & 0xffffffff}, v{a}"))
            if pres: st["pre"] = lambda pres=pres: [f() for f in pres]
            at = 4 if (tau == 3 and lam >= 14) else tau
            zero = at not in first_; first_.add(at)
            d = vr(H_ACC + 16 * (at & 3 if at < 4 else 0), 16)
            st["mf"] = lambda W, st, lam=lam, kh=kh, d=d, zero=zero: [f"{M32} {d}, {W}, {a2r(lam,kh)}, {'0' if zero else d}"]
            if lam not in seen_l:
                seen_l.add(lam)
                if lam not in own: st["need"] = lambda lam=lam: e.wait(vm=f"a{lam}")
            st["id"] = (lam, tau, kh)
            steps.append(st)
    S = Stream(steps, OPT["D2"], H_RING)
    SS.append(S)
    idx = {st["id"]: k for k, st in enumerate(steps)}
    n = len(steps)
    for (lam, d), f in side.items(): S.aft(idx[(lam, 0, 0)] + d, f)
    def scale(tau, greg): return [lambda r=r: I(f"v_mul_f32 v{r}, v{greg}, v{r}") for r in range(H_ACC + 16 * tau, H_ACC + 16 * tau + 16)]
    def pack(tau):
        b = H_ACC + tau * 16
        return [lambda k=k: I(f"v_cvt_pk_bf16_f32 v{b+k}, v{b+2*k}, v{b+2*k+1}") for k in range(8)]
    def send(tau):
        def so():
            I(f"s_xor_b32 s{S_GIN}, s{S_q}, {3-tau}"); I(f"s_mul_i32 s{S_GIN}, s{S_GIN}, {3*8192}")
            I(f"s_add_u32 s{S_GIN}, s{S_GIN}, s{S_PB}"); I(f"s_add_u32 s{S_GIN}, s{S_GIN}, {tau*8192}")
        return [so] + pack(tau) + [cost(3, lambda j=j: I(f"buffer_store_dwordx4 {vr(H_ACC+tau*16+j*4)}, v{V_L16}, {srd(S_WS)}, s{S_GIN} offen offset:{j*1024} sc1", tag=f"p{tau}")) for j in range(2)]
    def pflag(tau):
        assert e.vmq[0][0].count(f"p{tau}") == 2
        stamp(f"h_pa{tau}")
        e.wait(vm=f"p{tau}")
        stamp(f"h_pb{tau}")
        I(f"s_xor_b32 s{S_t0}, s{S_MYIN}, {(3-tau)*2048}")
        I(f"s_mov_b32 s{S_KG+tau}, {1024<<tau}")
        I(f"s_atomic_or s{S_KG+tau}, s[{S_INB}:{S_INB+1}], s{S_t0}")
    def gget():
        t = U("t"); d_read("G", t); d_check("G", t)
        I(f"s_lshl_b32 s{S_t0}, s{S_w}, 8"); I(f"s_add_u32 s{S_t0}, s{S_t0}, {GB_LDS}")
        I("v_and_b32 v1, 31, v0")
        I(f"v_lshl_add_u32 v1, v1, 3, s{S_t0}")
        I(f"ds_read_b64 {vr(H_G,2)}, v1", tag="gz")
    S.aft(idx[(12, 0, 1)], gget)
    S.aft(idx[(13, 0, 1)], lambda: e.wait(lg="gz"))
    for tau in range(4):
        k = idx[(13, tau, 1)]
        S.aft(k, lambda k=k, tau=tau: S.add(k + 3, idx[(oo[0], tau, 0)] if tau < 3 else n, scale(tau, H_G + 1)))
    late_flags = []
    for tau in range(3):
        k = idx[(oo[-1], tau, 1)]
        S.aft(k, lambda k=k, tau=tau: S.add(k + 3, k + 8, send(tau)))
        kf = k + 7 + OPT["pfd"]
        if kf <= n - OPT["D2"] - 14: S.aft(kf, lambda tau=tau: pflag(tau))
        else: late_flags.append(tau)
    S.aft(n - OPT["D2"], lambda: (e.wait(lg=f"w{n-1}"), [pflag(t) for t in late_flags[:-1]], poll_load()))
    S.aft(idx[(8, 0, 0)], lambda: stamp("h_late"))
    S.aft(idx[(oo[0], 0, 0)], lambda: stamp("h_o"))
    S.aft(idx[(LD, 3, 0)], lambda: stamp("h_own"))
    S.run(OPT["side2"])
    I(f"s_mul_i32 s{S_GIN}, s{S_q}, {3*8192}")
    I(f"s_add_u32 s{S_GIN}, s{S_GIN}, s{S_PB}")
    I("v_bfe_u32 v5, v0, 4, 1")
    I("v_lshlrev_b32 v6, 3, v5")
    I("v_xor_b32 v6, 8, v6")
    I("v_and_b32 v4, 15, v0")
    I("v_xor_b32 v4, v4, v6")
    I("v_lshl_add_u32 v4, v4, 1, v5")
    I("v_lshrrev_b32 v5, 5, v0")
    I("v_lshlrev_b32 v5, 4, v5")
    I("v_lshl_add_u32 v4, v4, 10, v5")
    I(f"s_lshl_b32 s{S_COL}, s{S_r}, 17"); I(f"s_lshl_b32 s{S_t1}, s{S_w}, 15"); I(f"s_add_u32 s{S_COL}, s{S_COL}, s{S_t1}")
    I(f"s_lshl_b32 s{S_t1}, s{S_jj}, 8"); I(f"s_add_u32 s{S_COL}, s{S_COL}, s{S_t1}")
    I(f"s_lshl_b32 s{S_t1}, s{S_q}, 6"); I(f"s_add_u32 s{S_COL}, s{S_COL}, s{S_t1}")
    for t in late_flags[-1:]: pflag(t)
    O = H_ACC + 48
    for k in range(8): I(f"v_pk_add_f32 {vr(O+2*k,2)}, {vr(O+2*k,2)}, {vr(H_ACC+2*k,2)}")
    for tau in range(3):
        poll_check(1024 << tau)
        stamp(f"h_r{tau}")
        if tau == 2: stamp("h_rcv")
        for j in range(2):
            I(f"buffer_load_dwordx4 {vr(24+tau*8+j*4)}, v{V_L16}, {srd(S_WS)}, s{S_GIN} offen offset:{j*1024} sc1", tag=f"r{tau}")
        if tau < 2: I(f"s_add_u32 s{S_GIN}, s{S_GIN}, 8192")
    for tau in range(3):
        e.wait(vm=f"r{tau}")
        b = H_ACC + 16
        for k in range(8):
            I(f"v_lshlrev_b32 v{b+2*k}, 16, v{24+tau*8+k}")
            I(f"v_and_b32 v{b+2*k+1}, 0xffff0000, v{24+tau*8+k}")
        for k in range(8): I(f"v_pk_add_f32 {vr(O+2*k,2)}, {vr(O+2*k,2)}, {vr(b+2*k,2)}")
    for k in range(8): I(f"v_pk_mul_f32 {vr(O+2*k,2)}, {vr(O+2*k,2)}, {vr(H_G,2)} op_sel_hi:[1,0]")
    stamp("h_sum")
    for f in pack(3): f()
    for j in range(2):
        I(f"v_permlane32_swap_b32 v{O+4*j}, v{O+4*j+2}")
        I(f"v_permlane32_swap_b32 v{O+4*j+1}, v{O+4*j+3}")
        I(f"buffer_store_dwordx4 {vr(O+4*j)}, v4, {srd(S_OUT)}, s{S_COL} offen offset:{j*32}")
    finish()

h_prog(False)
e.label("L_h_att")
h_prog(True)

e.label("L_C")
role[0] = "C"
reset()
C_WR = 4; C_XR = 12; C_EXW = 18; C_HA = 20; C_HX = (24, 56, 60); C_HACC = 28; C_ACC = 64
I("s_setprio 2")
if OPT["codepf"]:
    I("s_cmp_lt_u32 s2, 16")
    I("s_cbranch_scc0 L_nopf")
    e.cond_begin()
    I("s_getpc_b64 s[56:57]")
    e.label("L_pc")
    I(f"s_sub_u32 s56, s56, L_pc-{NAME}_kernel")
    I("s_subb_u32 s57, s57, 0")
    I(f"s_lshr_b32 s{S_t0}, s2, 3")
    I(f"s_lshl_b32 s{S_t0}, s{S_t0}, 15")
    I(f"v_lshlrev_b32 v2, 7, v0")
    I(f"v_lshl_add_u32 v2, v1, 13, v2")
    I(f"v_add_u32 v2, s{S_t0}, v2")
    I(f"v_min_u32 v2, L_end-{NAME}_kernel, v2")
    I(f"global_load_dword v23, v2, s[56:57]")
    e.cond_end()
    e.label("L_nopf")
late_scalars()
I("v_lshlrev_b32 v2, 2, v0")
I(f"v_add_u32 v2, {EV_LDS}, v2")
I("v_mov_b32 v1, 1")
I("ds_write_b32 v2, v1")
I("v_mov_b32 v1, 0")
I("ds_write_b32 v2, v1 offset:256")
I("v_lshrrev_b32 v32, 4, v0")
I("v_and_b32 v33, 15, v0")
I("v_bfe_u32 v34, v0, 2, 2")
I("v_and_b32 v35, 3, v0")
after_karg()
common_ptrs()
I(f"s_cmp_eq_u32 s{S_w}, 0")
I("s_cbranch_scc0 L_c_noinit")
e.cond_begin()
for k in range(4):
    I(f"s_mov_b32 s{S_KG+k}, 0")
    I(f"s_add_u32 s{S_t0}, s{S_MYIN}, {k*128}")
    I(f"s_atomic_swap s{S_KG+k}, s[{S_INB}:{S_INB+1}], s{S_t0} glc")
e.cond_end()
e.label("L_c_noinit")
I(f"s_cmp_ge_u32 s{S_jj}, 2")
I("s_cbranch_scc1 L_c_att")

def c_prog(att):
    reset()
    UL = units(att)
    slot_of = {un: phys(att, k) for k, un in enumerate(UL)}
    subs = [un for un in UL if un[0] == "g"]
    if OPT["spf"] == 2 and OPT["tearly"] and OPT["th"] < 0: vtouch(att)
    if att:
        for p in range(2):
            I(f"v_xor_b32 v38, {8 if p == 0 else 0}, v33")
            I("v_and_b32 v39, 8, v38")
            I("v_add_u32 v39, v39, v38")
            I("v_lshlrev_b32 v39, 7, v39")
            I("v_lshrrev_b32 v38, 1, v38")
            I("v_xor_b32 v38, v38, v32")
            I("v_lshl_add_u32 v39, v38, 4, v39")
            I(f"v_add_u32 v39, s{S_m0b}, v39")
            I(f"v_add_u32 v{C_XR+2*p+p}, {p*1024}, v39")
            I(f"v_xor_b32 v{C_XR+2*p+1-p}, 64, v{C_XR+2*p+p}")
        I("v_lshl_add_u32 v38, v32, 3, v34")
        I("v_lshlrev_b32 v38, 7, v38")
        I("v_lshl_add_u32 v38, v35, 3, v38")
        I("v_lshrrev_b32 v39, 1, v34")
        I("v_and_b32 v40, 1, v32")
        I("v_lshl_or_b32 v39, v40, 1, v39")
        I(f"v_xor_b32 v41, s{S_w}, v39")
        for t in range(4):
            I(f"v_xor_b32 v40, {t}, v41")
            I(f"v_lshl_add_u32 v{C_WR+t}, v40, 5, v38")
            I(f"v_add_u32 v{C_WR+4+t}, 0x10000, v{C_WR+t}")
        I("v_lshrrev_b32 v38, 1, v33")
        I("v_xor_b32 v38, v38, v32")
        I("v_lshlrev_b32 v38, 4, v38")
        I("v_lshl_add_u32 v38, v33, 7, v38")
        I(f"v_add_u32 v{C_HA}, {HALO_LDS}, v38")
        I(f"v_xor_b32 v{C_HA+1}, 64, v{C_HA}")
        I(f"s_mul_i32 s{S_t0}, s{S_w}, 5120")
        I(f"s_add_u32 s{S_t0}, s{S_t0}, {EXCH_LDS+4096}")
        I(f"v_add_u32 v{C_EXW}, s{S_t0}, v{V_L16}")
        I("v_add_u32 v19, 1, v35")
        I("v_bfe_u32 v19, v19, 1, 1")
        I("v_mul_u32_u24 v19, 24, v19")
    else:
        I("v_and_b32 v40, 1, v32")
        I("v_lshlrev_b32 v38, 3, v40")
        I("v_xor_b32 v38, 8, v38")
        I("v_xor_b32 v38, v38, v33")
        I("v_and_b32 v39, 8, v38")
        I("v_add_u32 v39, v39, v38")
        I("v_lshl_add_u32 v39, v40, 3, v39")
        I("v_lshlrev_b32 v39, 7, v39")
        I("v_lshrrev_b32 v38, 1, v38")
        I("v_lshlrev_b32 v41, 2, v40")
        I("v_xor_b32 v38, v38, v41")
        I("v_lshrrev_b32 v41, 1, v32")
        I("v_xor_b32 v38, v38, v41")
        I("v_lshl_add_u32 v39, v38, 4, v39")
        I(f"v_add_u32 v{C_XR}, s{S_m0b}, v39")
        for k in range(1, 4): I(f"v_xor_b32 v{C_XR+k}, {32*k}, v{C_XR}")
        I("v_lshl_add_u32 v38, v41, 3, v34")
        I("v_lshlrev_b32 v38, 7, v38")
        I("v_lshl_add_u32 v38, v35, 3, v38")
        I("v_lshl_add_u32 v38, v40, 5, v38")
        I("v_lshrrev_b32 v39, 1, v34")
        I(f"v_lshl_add_u32 v{C_WR}, v39, 6, v38")
        I(f"v_xor_b32 v{C_WR+1}, 64, v{C_WR}")
        for t in range(2): I(f"v_add_u32 v{C_WR+4+t}, 0x10000, v{C_WR+t}")
    if OPT["spf"] == 2 and not OPT["tearly"] and OPT["th"] < 0: vtouch(att)
    if OPT["spf"] == 1:
        P = 3072 if att else 3584; wp = 6 if att else 12
        I(f"s_lshl_b32 s{S_t0}, s{S_r}, 2"); I(f"s_add_u32 s{S_t0}, s{S_t0}, s{S_w}")
        I(f"s_mul_i32 s{S_t1}, s{S_t0}, {8*P}")
        I(f"s_mul_i32 s{S_t2}, s{S_q}, {256 if att else 896}"); I(f"s_add_u32 s{S_t1}, s{S_t1}, s{S_t2}")
        I(f"s_lshl_b32 s{S_t2}, s{S_j1}, 7"); I(f"s_add_u32 s{S_t2}, s{S_t2}, s{S_t1}")
        I(f"s_add_u32 s56, s{wp}, s{S_t2}"); I(f"s_addc_u32 s57, s{wp+1}, 0")
        for k in range(8): I(f"s_load_dword s{S_EV}, s[56:57], {k*P + (2048 if att else 512)}")
        if not att:
            I(f"s_mul_i32 s{S_t2}, s{S_j1}, {4*P}"); I(f"s_add_u32 s{S_t2}, s{S_t2}, s{S_t1}")
            I(f"s_add_u32 s56, s{wp}, s{S_t2}"); I(f"s_addc_u32 s57, s{wp+1}, 0")
            for k in range(4): I(f"s_load_dword s{S_EV}, s[56:57], {k*P + 768}")
        I(f"s_lshl_b32 s{S_t0}, s{S_t0}, 2"); I(f"s_add_u32 s{S_t0}, s{S_t0}, s{S_jj}")
        I(f"s_mul_i32 s{S_t1}, s{S_t0}, 1792"); I(f"s_mul_i32 s{S_t2}, s{S_q}, {448*1024}"); I(f"s_add_u32 s{S_t1}, s{S_t1}, s{S_t2}")
        I(f"s_add_u32 s56, s14, s{S_t1}"); I("s_addc_u32 s57, s15, 0")
        for k in range(14): I(f"s_load_dword s{S_EV}, s[56:57], {k*128}")
        I(f"s_lshl_b32 s{S_t1}, s{S_t0}, 9"); I(f"s_lshl_b32 s{S_t2}, s{S_q}, 17"); I(f"s_add_u32 s{S_t1}, s{S_t1}, s{S_t2}")
        I(f"s_add_u32 s56, s8, s{S_t1}"); I("s_addc_u32 s57, s9, 0")
        for k in range(4): I(f"s_load_dword s{S_EV}, s[56:57], {k*128}")
        I("s_waitcnt lgkmcnt(0)")
    l = U("ci")
    I(f"s_cmp_eq_u32 s{S_w}, 0"); I(f"s_cbranch_scc0 {l}")
    e.cond_begin()
    I(f"s_mov_b32 s{S_t1}, 1")
    I("s_waitcnt lgkmcnt(0)")
    I(f"s_atomic_add s{S_t1}, s[{S_DBG}:{S_DBG+1}], 0")
    e.cond_end(); e.label(l)
    stamp("c_go")
    def xfr(p, s): return ar((p * 16 + s) * 4)
    def xf32(s16): return ar(s16 * 4)
    def acc(c, T, p=0):
        base = C_ACC + 32 * (c & 1)
        return base + (T * 2 + p) * 4 if att else base + T * 16
    def xread(dst, areg, slot, tmp, k):
        base = slot * SLOT
        if base >= 65536:
            I(f"v_add_u32 v{tmp}, {base & ~0xffff}, v{areg}"); areg = tmp
        I(f"ds_read_b128 {dst}, v{areg} offset:{base & 0xffff}", tag=f"w{k}")
    steps = []; nh = [0]
    for i, un in enumerate(subs):
        _, c, u = un; slot = slot_of[un]
        for j in range(16):
            h = j >> 3
            if att:
                ks = (j >> 1) & 3; T = 2 * h + (j & 1); s = 4 * u + ks; zero = (u == 0 and ks == 0)
                halo = T == 0 and c != 1
                st = dict(rd=(C_WR + (4 if slot >= 4 else 0) + T, (slot & 3) * SLOT + ks * 4096, 512))
                def mf(W, st, s=s, T=T, zero=zero, c=c, halo=halo):
                    out = []
                    for p in range(2):
                        a, b = (xfr(p, s), W) if c == 2 else (W, xfr(p, s))
                        d = vr(acc(c, T, p))
                        out.append(f"{MF} {d}, {a}, {b}, {'0' if zero else d}")
                    if halo:
                        a, b = (vr(st["hreg"]), W) if c == 2 else (W, vr(st["hreg"]))
                        out.append(f"{MF} {vr(C_HACC)}, {a}, {b}, {'0' if zero else vr(C_HACC)}")
                    return out
                def post(k, st=st, s=s, halo=halo, j=j, c=c, u=u, ks=ks):
                    if c == 0 and j < 8 and j % 2 == 0:
                        for p in range(2): xread(xfr(p, s), C_XR + 2 * p + (ks & 1), slot_of[("x", u, ks >> 1)], 1 + p, k)
                    if halo:
                        st["hreg"] = C_HX[nh[0] % 3]; nh[0] += 1
                        I(f"ds_read_b128 {vr(st['hreg'])}, v{C_HA+(s&1)} offset:{(s>>1)*2048}", tag=f"w{k}")
            else:
                kk = j & 7
                if c < 3: s16 = 8 * u + kk; ta = h; zero = (u == 0 and kk == 0)
                else: s16 = 8 * (u + 2 * h) + kk; ta = 0; zero = (u == 0 and j == 0)
                st = dict(rd=(C_WR + (4 if slot >= 4 else 0) + h, (slot & 3) * SLOT + kk * 2048, 512))
                d = vr(acc(c, ta), 16)
                def mf(W, st, s16=s16, d=d, zero=zero): return [f"{M32} {d}, {W}, {xf32(s16)}, {'0' if zero else d}"]
                def post(k, s16=s16, j=j, c=c, u=u, kk=kk):
                    if c == 0 and j < 8: xread(xf32(s16), C_XR + (kk & 3), slot_of[("x", u, kk >> 2)], 1 + (kk & 1), k)
            st["mf"] = mf; st["post"] = post
            if j == 0:
                def pre(i=i):
                    stamp(f"t{i}")
                    if att and i in (8, 9):
                        assert e.lgq[0][0].count(f"exw{i-8}") == (5 if i == 8 else 4)
                        e.wait(lg=f"exw{i-8}")
                    if not att and i - OPT["ackb"] in (0, 1):
                        assert e.vmq[0][0].count(f"st{i-OPT['ackb']}") == 4
                        e.wait(vm=f"st{i-OPT['ackb']}")
                    if i < (10 if att else 14): I("s_barrier")
                    stamp(f"s{i}")
                    if att and i == 8:
                        for t in range(8): I(f"v_xor_b32 v{C_WR+t}, v19, v{C_WR+t}")
                st["pre"] = pre
            steps.append(st)
    if att: S = Stream(steps, OPT["D"], [32, 36, 40, 44, 48, 52])
    else: S = Stream(steps, OPT["DF"], [32, 36, 40, 44, 48, 52, 56, 60])
    DD = S.D
    def packn(a, n_): return [lambda k=k: I(f"v_cvt_pk_bf16_f32 v{a+k}, v{a+2*k}, v{a+2*k+1}") for k in range(n_)]
    def epi(c, h):
        F = []
        if att:
            for t in (2 * h, 2 * h + 1):
                a = acc(c, t, 0)
                F += packn(a, 4)
                def wr(t=t, a=a):
                    I(f"v_xor_b32 v1, {t*1024}, v{C_EXW}")
                    if c == 1: I(f"v_add_u32 v1, {(QSLOT*SLOT - EXCH_LDS - 4096) & 0xffffffff}, v1")
                    I(f"ds_write_b128 v1, {vr(a)}", tag=f"exw{c}")
                F.append(wr)
            if h == 0 and c != 1:
                def hw():
                    I(f"v_cvt_pk_bf16_f32 v{C_HACC}, v{C_HACC}, v{C_HACC+1}")
                    I(f"v_cvt_pk_bf16_f32 v{C_HACC+1}, v{C_HACC+2}, v{C_HACC+3}")
                    I(f"s_add_u32 s{S_t0}, s{S_m0b}, 4096")
                    I(f"v_subrev_u32 v1, s{S_t0}, v{C_EXW}")
                    I(f"ds_write2_b64 v1, {vr(C_HACC,2)}, {vr(C_HACC,2)} offset0:0 offset1:1", tag=f"exw{c}")
                F.append(hw)
        else:
            a = acc(c, h)
            F += packn(a, 8)
            def so():
                I(f"s_lshr_b32 s{S_GIN}, s{S_J32}, {2 if c < 3 else 3}")
                I(f"s_add_u32 s{S_GIN}, s{S_GIN}, s{S_A2}"); I(f"s_add_u32 s{S_GIN}, s{S_GIN}, {(4*c+h)*8192}")
            F.append(so)
            for p in range(2):
                F += [lambda k=k: I(f"v_pk_max_i16 v{k}, v{k}, 0") for k in range(a + 4 * p, a + 4 * p + 4)]
                F.append(cost(9, lambda p=p: I(f"buffer_store_dwordx4 {vr(a+4*p)}, v{V_L16}, {srd(S_WS)}, s{S_GIN} offen offset:{p*1024} sc1", tag=f"st{c}")))
        return F
    n = len(steps)
    for c, i, reuse in ((0, 6, 8), (1, 7, 12), (2, 11, 99)):
        for h in range(2):
            k = 16 * i + 8 * h + 7
            if k == n - 1: continue
            dl = min(16 * reuse + (8 * h if reuse == 8 else 0), n)
            if att and c < 2: dl = 16 * (8 + c) - DD - 3
            S.aft(k, lambda k=k, c=c, h=h, dl=dl: S.add(max(k + (2 if att else 4), 16 * 7 - DD + 1 if att else 0), dl, epi(c, h)))
    S.run(OPT["side"] if att else OPT["sidef"])
    stamp("c_end")
    if not att: I("s_barrier")
    for f in (epi(2, 1) if att else epi(3, 0)): f()
    if att:
        e.wait(lg="exw2")
        I("s_barrier")
    if OPT["cprio"] != 2: I(f"s_setprio {OPT['cprio']}")
    rest = [3, 4, 5, 6, 8, 7]
    def cunit():
        g = rest.pop(0); b2_unit(g, 4, g in SIGG)
    if not att:
        assert e.vmq[0][0].count("st2") == 4
        e.wait(vm="st2"); push_group(ownbit(2), (0, 1, 2, 3))
        stamp("c_f2")
        b2_voffs(4)
        if OPT["lowp"]: I("s_setprio 0")
        cunit(); cunit()
    I("s_setprio 2")
    stamp("c_g0")
    I("v_lshrrev_b32 v9, 4, v0")
    if att:
        I("v_lshlrev_b32 v8, 4, v9")
    else:
        I("v_lshrrev_b32 v8, 5, v0"); I("v_lshlrev_b32 v8, 4, v8")
        I("v_xor_b32 v9, v9, v0"); I("v_and_b32 v9, 1, v9")
        I("v_cmp_eq_u32 vcc, 0, v9")
    NG = 16 if att else 32; per = NG // 4
    RB = [32 + 4 * k for k in range(8)]
    def gread(s_):
        if s_ % per == 0:
            I(f"s_add_u32 s{S_t0}, s{S_rot}, {s_//per}"); I(f"s_and_b32 s{S_t0}, s{S_t0}, 3"); I(f"s_lshl_b32 s{S_t0}, s{S_t0}, 8")
            I(f"s_add_u32 s{S_t0}, s{S_t0}, {GW_LDS}")
            I(f"v_add_u32 v10, s{S_t0}, v8")
            if not att:
                I(f"v_mov_b32 v11, {ZERO_LDS}"); I("v_cndmask_b32 v10, v11, v10, vcc")
        I(f"ds_read_b128 {vr(RB[s_%8])}, v10 offset:{(s_%per)*(64 if att else 32)}", tag=f"g{s_}")
    for s_ in range(6): gread(s_)
    if att:
        b2_voffs(4)
        I("s_barrier")
        cunit()
    for s_ in range(NG):
        e.wait(lg=f"g{s_}")
        if att:
            for p in range(2): I(f"{MF} {vr(64+4*p)}, {vr(RB[s_%8])}, {xfr(p,s_)}, {'0' if s_ == 0 else vr(64+4*p)}")
        else:
            I(f"{MF} {vr(64)}, {vr(RB[s_%8])}, {xf32(s_)}, {'0' if s_ == 0 else vr(64)}")
        if s_ + 6 < NG: gread(s_ + 6)
        if s_ == NG // 2 and rest: cunit()
    if not att:
        e.wait(vm="st3"); push_group(ownbit(3), (0, 1, 2, 3))
        stamp("c_f3")
    cunit()
    z1 = 68 if att else 65; G = 72
    T = [f"v_cvt_pk_bf16_f32 v1, v64, v{z1}", f"v_lshlrev_b32 v{G}, 16, v1", f"v_and_b32 v{G+2}, 0xffff0000, v1"]
    T += [f"v_mul_f32 v{G+2*p}, {f2u(-1.4426950408889634)}, v{G+2*p}" for p in range(2)]
    T += [f"v_exp_f32 v{G+2*p}, v{G+2*p}" for p in range(2)]
    T += [f"v_add_f32 v{G+2*p}, 1.0, v{G+2*p}" for p in range(2)]
    T += [f"v_rcp_f32 v{G+2*p}, v{G+2*p}" for p in range(2)]
    T += [f"v_cvt_pk_bf16_f32 v1, v{G}, v{G+2}", f"v_lshlrev_b32 v{G}, 16, v1", f"v_and_b32 v{G+2}, 0xffff0000, v1"]
    T += [f"v_sub_f32 v{G+1+2*p}, 1.0, v{G+2*p}" for p in range(2)]
    T += [f"v_cvt_pk_bf16_f32 v1, v{G+1}, v{G+3}", f"v_lshlrev_b32 v{G+1}, 16, v1", f"v_and_b32 v{G+3}, 0xffff0000, v1"]
    T += [f"v_max_f32 v{G+2*p}, {f2u(2.0**-60)}, v{G+2*p}" for p in range(2)]
    T += [f"v_rcp_f32 v{G+4+p}, v{G+2*p}" for p in range(2)]
    T += [f"v_mul_f32 v{G+1+2*p}, v{G+4+p}, v{G+1+2*p}" for p in range(2)]
    for t in T: I(t)
    I(f"s_lshl_b32 s{S_t0}, s{S_w}, 8"); I(f"s_add_u32 s{S_t0}, s{S_t0}, {GB_LDS}")
    I(f"v_lshl_add_u32 v1, v0, 3, s{S_t0}")
    I("s_mov_b64 exec, 0xffff")
    I(f"ds_write_b64 v1, {vr(G,2)}", tag="gz")
    I(f"ds_write_b64 v1, {vr(G+2,2)} offset:128", tag="gz")
    I("s_mov_b64 exec, -1")
    e.wait(lg="gz")
    if OPT["lowp"]: I("s_setprio 0")
    dsig("G")
    stamp("c_g1")
    while rest:
        throttle(); cunit()
    if OPT["dummy"]:
        I(f"s_lshl_b32 s{S_t0}, s2, 2"); I(f"s_add_u32 s{S_t0}, s{S_t0}, s{S_w}"); I(f"s_mul_i32 s{S_t0}, s{S_t0}, 9216"); I(f"s_add_u32 s{S_t0}, s{S_t0}, {20<<20}")
        for k in range(9):
            I(f"buffer_store_dwordx4 {vr(64)}, v{V_L16}, {srd(S_WS)}, s{S_t0 if OPT['dummy'] == 1 else S_WS+2} offen")
            I(f"s_add_u32 s{S_t0}, s{S_t0}, 1024")
    I("s_waitcnt vmcnt(0) lgkmcnt(0)")
    finish()

c_prog(False)
e.label("L_c_att")
c_prog(True)

e.label("L_end")
I("s_endpgm")
e.raw('.section .rodata,"a"')
e.raw(".p2align 6")
e.raw(f".amdhsa_kernel {NAME}_kernel")
e.raw("  .amdhsa_next_free_vgpr 256")
e.raw("  .amdhsa_next_free_sgpr 102")
e.raw("  .amdhsa_accum_offset 128")
e.raw("  .amdhsa_group_segment_fixed_size 0")
e.raw("  .amdhsa_kernarg_size 80")
e.raw("  .amdhsa_user_sgpr_count 2")
e.raw("  .amdhsa_user_sgpr_kernarg_segment_ptr 1")
e.raw("  .amdhsa_system_sgpr_workgroup_id_x 1")
e.raw(".end_amdhsa_kernel")
sys.stdout.write(e.text())
sys.stderr.write(f"instructions {e.nins} nop-states {e.nops}\n")
```

```python
import sys, struct
from emit import Em

NAME = "gated_mix__sliding_local_dilated__dense_activation_relu__prompt"
OPT = dict(padt=6000, padk=-1, padr=0, stamp=0, D=4, DF=5, D2=5, codepf=1, spin=400000, lround=0, side=2, sidef=2, side2=3,
           ld=6, thr=10, pre=4, pfd=18, ackb=10, cprio=2, dummy=0, sch=1, tm=0, qb=0, rotq=2, spf=2, tearly=0, tB=0, tfull=0, th=6, gap=1, lowp=1, tatt=0, m32=0, fp=8, u19=0, tha=6, of=0)
CST = ["s0", "s2", "s4", "s6", "s8", "s10", "s12", "c_end"]
HST = ["h_b0", "h_b7", "h_p2", "h_late", "h_o", "h_own", "h_rcv", "h_sum"]
for a in sys.argv[1:]:
    k, v = a.split("=")
    if k == "cst": CST = v.split(",")
    elif k == "hst": HST = v.split(",")
    else:
        assert k in OPT, k
        OPT[k] = int(v)
STAMP = OPT["stamp"]; M = OPT["m32"]
def f2u(x): return struct.unpack("<I", struct.pack("<f", x))[0]

PART_OFF = 10 << 20
INB_OFF = 32 << 20
STAMP_OFF = 33 << 20
WS_BYTES = 36 << 20
SLOT = 16384
HALO_LDS = 7 * SLOT
EXCH_LDS = 8 * SLOT
EV_LDS = EXCH_LDS + 20480
ZERO_LDS = EV_LDS + 256
GW_LDS = EV_LDS + 1024
GB_LDS = EV_LDS + 2048
NEG = f2u(-1e30)

e = Em()
I = e.I
def vr(b, n=4): return f"v[{b}:{b+n-1}]"
def ar(b, n=4): return f"a[{b}:{b+n-1}]"
def srd(b): return f"s[{b}:{b+3}]"
MF = "v_mfma_f32_16x16x32_bf16"
M32 = "v_mfma_f32_32x32x16_bf16"

S_X, S_W, S_WS, S_OUT, S_W2, S_WO, S_GW = 24, 28, 32, 36, 40, 44, 48
S_INB = 52; S_DBG = 54
S_w, S_r, S_jj, S_rot, S_q, S_m0b, S_j1 = 60, 61, 62, 63, 64, 65, 66
S_t0, S_t1, S_t2 = 3, 67, 68
S_BUD = 69; S_EV = 70; S_SOFF = 71
S_POLL = 74; S_MYIN = 75; S_CEXP = 76; S_THR = 77; S_W4 = 79
S_KG = 80; S_WK = 84
S_COL = 88; S_A2 = 89; S_B2 = 90; S_BO = 91; S_PB = 92; S_J32 = 93; S_GIN = 94; S_P = 95
S_STAMP = 4
EVD = {}
def evd(name):
    if name not in EVD: EVD[name] = len(EVD)
    assert EVD[name] < 16
    return EVD[name] * 16
role = ["H"]
def stamp(name):
    L = CST if role[0] == "C" else HST
    if name == "end": idx = 8
    elif name in L: idx = L.index(name)
    else: return
    if STAMP == 2 and idx < 4:
        I(f"s_memtime s[{S_STAMP+2*idx}:{S_STAMP+2*idx+1}]"); I(f"s_memrealtime s[{S_STAMP+2*idx+8}:{S_STAMP+2*idx+9}]")
    elif STAMP == 3: I(f"s_memrealtime s[{S_STAMP+2*idx}:{S_STAMP+2*idx+1}]")
    elif STAMP: I(f"s_memtime s[{S_STAMP+2*idx}:{S_STAMP+2*idx+1}]")
uid = [0]
def U(p):
    uid[0] += 1
    return f"L_{p}{uid[0]}"
def reset():
    e.vmq = [[[], 0]]; e.lgq = [[[], 0]]; e.hist = []
V_L16 = 16; V_EVW = 17; V_CHK = 3
SLOW = []
def flush_slow():
    for l in SLOW: e.raw(l)
    SLOW.clear()
def spin_tail(lp, ok):
    return [f"    s_sub_u32 s{S_BUD}, s{S_BUD}, 1", f"    s_cbranch_scc0 {lp}", f"    s_mov_b32 s{S_BUD}, 0", f"    s_branch {ok}"]
def dsig(name):
    I(f"s_add_u32 m0, s{S_W4}, {EV_LDS + evd(name)}")
    I("s_mov_b64 exec, 1")
    I(f"buffer_load_dword v{V_L16}, {srd(S_WO)}, s{S_WO+2} offen lds", tag="dsig")
    I("s_mov_b64 exec, -1")
def d_read(name, tag): I(f"ds_read_b32 v{V_CHK}, v{V_EVW} offset:{evd(name)}", tag=tag)
def d_check(name, tag):
    ok = U("ok"); lp = U("sp")
    e.wait(lg=tag)
    I(f"v_cmp_ne_u32 vcc, 0, v{V_CHK}")
    I(f"s_cbranch_vccnz {lp}")
    e.label(ok)
    SLOW.extend([f"{lp}:", f"    ds_read_b32 v{V_CHK}, v{V_EVW} offset:{evd(name)}", "    s_waitcnt lgkmcnt(0)", f"    v_cmp_ne_u32 vcc, 0, v{V_CHK}",
                 f"    s_cbranch_vccz {ok}", "    s_sleep 1"] + spin_tail(lp, ok))
def throttle():
    n = OPT["thr"]
    I(f"s_waitcnt vmcnt({n})")
    for q in e.vmq: q[1] = max(q[1], len(q[0]) - n)
def poll_load():
    I(f"s_load_dword s{S_POLL}, s[{S_INB}:{S_INB+1}], s{S_MYIN} glc")
def poll_check(mask):
    ok = U("pk"); lp = U("pl")
    I(f"s_andn2_b32 s{S_EV}, {mask}, s{S_POLL}")
    I(f"s_cbranch_scc1 {lp}")
    e.label(ok)
    SLOW.extend([f"{lp}:", "    s_waitcnt lgkmcnt(0)", f"    s_andn2_b32 s{S_EV}, {mask}, s{S_POLL}", f"    s_cbranch_scc0 {ok}",
                 f"    s_load_dword s{S_POLL}, s[{S_INB}:{S_INB+1}], s{S_MYIN} glc"] + spin_tail(lp, ok))
def push_group(bit_fn, ds):
    bit_fn()
    for d in ds:
        I(f"s_xor_b32 s{S_t0}, s{S_MYIN}, {d*512}")
        I(f"s_atomic_or s{S_t2}, s[{S_INB}:{S_INB+1}], s{S_t0}")
def ownbit(b):
    def f():
        I(f"s_lshl_b32 s{S_t2}, s{S_jj}, 2"); I(f"s_lshl_b32 s{S_t2}, {1<<b}, s{S_t2}")
    return f
def mk_srd(b, p, nbytes):
    I(f"s_mov_b32 s{b}, s{p}")
    I(f"s_and_b32 s{b+1}, s{p+1}, 0xffff")
    I(f"s_mov_b32 s{b+2}, {nbytes}")
    I(f"s_mov_b32 s{b+3}, 0x20000")
def b2_voffs(dst):
    I("v_lshrrev_b32 v1, 3, v0")
    if M:
        I("v_bfe_u32 v2, v0, 4, 1")
        I("v_lshlrev_b32 v2, 2, v2")
    else:
        I("v_lshrrev_b32 v2, 4, v0")
        I("v_lshlrev_b32 v2, 1, v2")
    I(f"v_and_b32 v{dst}, 7, v0")
    I(f"v_xor_b32 v{dst}, v{dst}, v2")
    I(f"v_lshlrev_b32 v{dst}, 4, v{dst}")
    I(f"v_lshl_add_u32 v{dst}, v1, 10, v{dst}")
    for i in range(1, 4): I(f"v_add_u32 v{dst+i}, {i*7168}, v{dst}")
def late_scalars():
    I(f"s_lshl_b32 s{S_W4}, s{S_w}, 2")
    I(f"s_mov_b32 s{S_BUD}, {OPT['spin']}")
    I(f"s_and_b32 s{S_j1}, s{S_jj}, 1")
    I(f"s_lshl_b32 s{S_t0}, s{S_jj}, 8")
    I(f"s_lshr_b32 s{S_t1}, s{S_w}, 1")
    I(f"s_lshl_b32 s{S_t1}, s{S_t1}, 7")
    I(f"s_add_u32 s{S_t0}, s{S_t0}, s{S_t1}")
    I(f"s_and_b32 s{S_t1}, s{S_w}, 1")
    I(f"s_lshl_b32 s{S_t1}, s{S_t1}, 15")
    I(f"s_add_u32 s{S_t0}, s{S_t0}, s{S_t1}")
    I(f"s_mul_i32 s{S_B2}, s{S_q}, {14*32768}")
    I(f"s_add_u32 s{S_B2}, s{S_B2}, s{S_t0}")
    I(f"s_lshl_b32 s{S_BO}, s{S_q}, 17")
    I(f"s_add_u32 s{S_BO}, s{S_BO}, s{S_t0}")
    I(f"s_lshl_b32 s{S_J32}, s{S_j1}, 16")
    I(f"s_lshl_b32 s{S_t0}, s{S_r}, 2")
    I(f"s_add_u32 s{S_t0}, s{S_t0}, s{S_q}")
    I(f"s_mul_i32 s{S_A2}, s{S_t0}, {18*8192}")
    I(f"s_lshl_b32 s{S_t1}, s{S_w}, 11")
    I(f"s_add_u32 s{S_A2}, s{S_A2}, s{S_t1}")
    I(f"s_lshl_b32 s{S_MYIN}, s{S_t0}, 2")
    I(f"s_add_u32 s{S_MYIN}, s{S_MYIN}, s{S_jj}")
    I(f"s_lshl_b32 s{S_MYIN}, s{S_MYIN}, 2")
    I(f"s_add_u32 s{S_MYIN}, s{S_MYIN}, s{S_w}")
    I(f"s_lshl_b32 s{S_MYIN}, s{S_MYIN}, 7")
    I(f"v_lshlrev_b32 v{V_L16}, 4, v0")
    I(f"v_and_b32 v{V_EVW}, 3, v0")
    I(f"v_lshlrev_b32 v{V_EVW}, 2, v{V_EVW}")
    I(f"v_add_u32 v{V_EVW}, {EV_LDS}, v{V_EVW}")
def common_ptrs():
    I(f"s_add_u32 s{S_INB}, s22, {INB_OFF}")
    I(f"s_addc_u32 s{S_INB+1}, s23, 0")
    I(f"s_lshl_b32 s{S_t0}, s{S_r}, 4")
    I(f"s_add_u32 s{S_DBG}, s20, s{S_t0}")
    I(f"s_addc_u32 s{S_DBG+1}, s21, 0")
    mk_srd(S_WS, 22, WS_BYTES)
    mk_srd(S_W2, 14, 1792 * 1024)
    mk_srd(S_WO, 8, 512 * 1024)
def dma4(voff, srdb, tag):
    for i in range(4):
        I(f"buffer_load_dwordx4 v{voff+i}, {srd(srdb)}, s{S_SOFF} offen offset:{i*1024} lds", tag=tag)
def b2_unit(g, voff, sig=True):
    I(f"s_add_u32 m0, s{S_m0b}, {g*SLOT}")
    if g < 7: I(f"s_add_u32 s{S_SOFF}, s{S_B2}, {g*65536}")
    else:
        I(f"s_xor_b32 s{S_SOFF}, s{S_J32}, {((g-7)^1)*65536}")
        I(f"s_add_u32 s{S_SOFF}, s{S_SOFF}, s{S_BO}")
    dma4(voff, S_W2 if g < 7 else S_WO, f"b{g}")
    if sig: dsig(f"Lb{g}")
def a2_soff(lam, dst):
    if lam < 14: I(f"s_add_u32 s{dst}, s{S_A2}, {lam*8192}")
    else:
        I(f"s_lshr_b32 s{dst}, s{S_J32}, 2"); I(f"s_xor_b32 s{dst}, s{dst}, {((lam-14)^2)*8192}")
        I(f"s_add_u32 s{dst}, s{dst}, s{S_A2}"); I(f"s_add_u32 s{dst}, s{dst}, {14*8192}")
def after_karg():
    I("s_waitcnt lgkmcnt(0)")
    if STAMP:
        I("s_memtime s[100:101]")
        I("s_mov_b32 s72, s96")
        I("s_mov_b32 s73, s98")
def finish():
    if STAMP:
        I("s_waitcnt vmcnt(0)")
        stamp("end")
        I("s_memrealtime s[22:23]")
        I("s_waitcnt lgkmcnt(0)")
        I(f"s_lshl_b32 s{S_t0}, s2, 3")
        I(f"s_add_u32 s{S_t0}, s{S_t0}, s{S_w}")
        if role[0] == "H": I(f"s_add_u32 s{S_t0}, s{S_t0}, 4")
        I(f"s_lshl_b32 s{S_t0}, s{S_t0}, 6")
        I(f"s_add_u32 s{S_t0}, s{S_t0}, {STAMP_OFF}")
        I(f"v_mov_b32 v2, s{S_t0}")
        for k in range(9): I(f"v_mov_b32 v{32+k}, s{S_STAMP+2*k}")
        I("v_mov_b32 v41, s73"); I("v_mov_b32 v42, s22"); I("v_mov_b32 v43, s72"); I("v_mov_b32 v44, s100")
        I(f"v_mov_b32 v45, s{S_BUD}"); I("v_mov_b32 v46, 0")
        I("s_mov_b64 exec, 1")
        for k in range(4): I(f"buffer_store_dwordx4 {vr(32+4*k)}, v2, {srd(S_WS)}, 0 offen offset:{16*k}")
    if STAMP >= 3:
        if OPT["padk"] >= 0 and (OPT["padr"] == 1) == (role[0] == "H"):
            I(f"s_sub_u32 s24, s{S_STAMP+2*OPT['padk']}, s{73 if STAMP == 3 else 72}")
            if STAMP == 4: I("s_lshr_b32 s24, s24, 4")
        else: I("s_mov_b32 s24, 0")
        I(f"s_add_u32 s24, s24, {OPT['padt']}")
        l = U("pad")
        e.label(l)
        I("s_memrealtime s[26:27]"); I("s_waitcnt lgkmcnt(0)"); I("s_sub_u32 s25, s26, s73"); I("s_cmp_lt_u32 s25, s24"); I(f"s_cbranch_scc1 {l}")
    I("s_endpgm")
    flush_slow()
def units(att):
    L = []
    for u in range(4): L += [("x", u, 0), ("x", u, 1), ("g", 0, u), ("g", 1, u)]
    L += [("g", 2, u) for u in range(4)]
    if not att: L += [("g", 3, 0), ("g", 3, 1)]
    return L
def phys(att, k):
    if not att: return (k - 14) % 9
    i = (k - 13) % 8
    return 8 if i == 7 else i
QSLOT = phys(True, 13)
SIGG = (2, 3, 4, 6, 7)
CHKG = {2: 2, 3: 3, 4: 4, 5: 6, 6: 6, 8: 7, 7: 7}

class Stream:
    def __init__(self, steps, depth, ring):
        self.steps = steps; self.side = []; self.after = {}; self.D = depth; self.ring = ring
        assert len(ring) >= depth + 2
    def add(self, ready, deadline, fns):
        for f in fns: self.side.append([ready, deadline, f])
    def aft(self, k, f):
        prev = self.after.get(k)
        self.after[k] = (lambda: (prev(), f())) if prev else f
    def issue(self, k, half):
        st = self.steps[k]
        b = self.ring[k % len(self.ring)]
        a, off, d2 = st["rd"]
        if half == 0:
            if "pre" in st: st["pre"]()
            I(f"ds_read_b64_tr_b16 {vr(b,2)}, v{a} offset:{off}", tag=f"w{k}")
        else:
            I(f"ds_read_b64_tr_b16 {vr(b+2,2)}, v{a} offset:{off+d2}", tag=f"w{k}")
            if "post" in st: st["post"](k)
    def pump(self, k, n):
        c = 0
        while self.side and c < n and self.side[0][0] <= k:
            r = self.side.pop(0)[2]()
            c += r if isinstance(r, int) else 1
    def run(self, rate):
        n = len(self.steps); D = self.D
        for k in range(min(D, n)):
            self.issue(k, 0); self.issue(k, 1)
        for k in range(n):
            st = self.steps[k]
            while any(s[1] <= k for s in self.side): self.side.pop(0)[2]()
            if "need" in st: st["need"]()
            if k % 2 == 0 and k + 1 < n: e.wait(lg=f"w{k+1}")
            e.wait(lg=f"w{k}")
            mfs = st["mf"](vr(self.ring[k % len(self.ring)]), st)
            I(mfs[0])
            if k + D < n: self.issue(k + D, 0)
            if len(mfs) > 1:
                self.pump(k, (rate + 1) // 2)
                I(mfs[1])
            if k + D < n: self.issue(k + D, 1)
            for m in mfs[2:]: I(m)
            self.pump(k, rate // 2 if len(mfs) > 1 else rate)
            if k in self.after: self.after[k]()
            stamp(f"k{k}")
        while self.side: self.side.pop(0)[2]()
def cost(n, f):
    def g():
        f(); return n
    return g

def vtouch(att, dst=22):
    P = 3072 if att else 3584; wp = 6 if att else 12
    if dst == 22: mk_srd(S_W, wp, 512 * P)
    I(f"s_lshl_b32 s{S_t0}, s{S_r}, 2"); I(f"s_add_u32 s{S_t0}, s{S_t0}, s{S_w}")
    I(f"s_mul_i32 s{S_t1}, s{S_t0}, {8*P}")
    I(f"s_mul_i32 s{S_t2}, s{S_q}, {256 if att else 896}"); I(f"s_add_u32 s{S_t1}, s{S_t1}, s{S_t2}")
    I("v_and_b32 v1, 7, v0"); I(f"v_mul_u32_u24 v1, {P}, v1")
    I(f"s_lshl_b32 s{S_t2}, s{S_j1}, 7"); I(f"s_add_u32 s{S_t2}, s{S_t2}, s{S_t1}")
    I("v_lshlrev_b32 v2, 7, v0")
    I("s_mov_b64 exec, 0xff")
    I(f"buffer_load_dword v{dst}, v1, {srd(S_W)}, s{S_t2} offen offset:{2048 if att else 512}")
    if OPT["tB"]: I(f"buffer_load_dword v{dst}, v1, {srd(S_W)}, s{S_t2} offen offset:{0 if att else 256}")
    if not att:
        I(f"s_mul_i32 s{S_t2}, s{S_j1}, {4*P}"); I(f"s_add_u32 s{S_t2}, s{S_t2}, s{S_t1}")
        I("s_mov_b64 exec, 0xf")
        I(f"buffer_load_dword v{dst}, v1, {srd(S_W)}, s{S_t2} offen offset:768")
    I(f"s_lshl_b32 s{S_t0}, s{S_t0}, 2"); I(f"s_add_u32 s{S_t0}, s{S_t0}, s{S_jj}")
    F_ = 2 if OPT["tfull"] else 1
    if OPT["tfull"]: I(f"s_and_b32 s{S_t0}, s{S_t0}, 127"); I(f"s_lshl_b32 s{S_t0}, s{S_t0}, 1")
    I(f"s_mul_i32 s{S_t1}, s{S_t0}, 1792"); I(f"s_mul_i32 s{S_t2}, s{S_q}, {448*1024}"); I(f"s_add_u32 s{S_t1}, s{S_t1}, s{S_t2}")
    I(f"s_mov_b64 exec, {(1 << (14*F_)) - 1}")
    I(f"buffer_load_dword v{dst}, v2, {srd(S_W2)}, s{S_t1} offen")
    I(f"s_lshl_b32 s{S_t1}, s{S_t0}, 9"); I(f"s_lshl_b32 s{S_t2}, s{S_q}, 17"); I(f"s_add_u32 s{S_t1}, s{S_t1}, s{S_t2}")
    I(f"s_mov_b64 exec, {(1 << (4*F_)) - 1}")
    I(f"buffer_load_dword v{dst}, v2, {srd(S_WO)}, s{S_t1} offen")
    I("s_mov_b64 exec, -1")
def vtouch2():
    I(f"s_lshl_b32 s{S_t0}, s{S_r}, 2"); I(f"s_add_u32 s{S_t0}, s{S_t0}, s{S_w}")
    I(f"s_lshl_b32 s{S_t0}, s{S_t0}, 1"); I(f"s_add_u32 s{S_t0}, s{S_t0}, s{S_j1}")
    I("v_lshlrev_b32 v2, 7, v0")
    I(f"s_mul_i32 s{S_t1}, s{S_t0}, 3584"); I(f"s_mul_i32 s{S_t2}, s{S_q}, {448*1024}"); I(f"s_add_u32 s{S_t1}, s{S_t1}, s{S_t2}")
    I(f"s_mov_b64 exec, {(1 << 28) - 1}")
    I(f"buffer_load_dword v{30 if M else 18}, v2, {srd(S_W2)}, s{S_t1} offen")
    I(f"s_lshl_b32 s{S_t1}, s{S_t0}, 10"); I(f"s_lshl_b32 s{S_t2}, s{S_q}, 17"); I(f"s_add_u32 s{S_t1}, s{S_t1}, s{S_t2}")
    I("s_mov_b64 exec, 0xff")
    I(f"buffer_load_dword v{30 if M else 18}, v2, {srd(S_WO)}, s{S_t1} offen")
    I("s_mov_b64 exec, -1")
e.raw(f"; @launch grid=(256,1,1) block=(512,1,1) lds=163840")
e.raw('.amdgcn_target "amdgcn-amd-amdhsa--gfx950"')
e.raw(".text")
e.raw(f".globl {NAME}_kernel")
e.raw(".p2align 8")
e.raw(f".type {NAME}_kernel,@function")
e.label(f"{NAME}_kernel")
I("s_load_dwordx16 s[4:19], s[0:1], 0")
I("s_load_dwordx4 s[20:23], s[0:1], 64")
if STAMP:
    I("s_memrealtime s[98:99]")
    I("s_memtime s[96:97]")
I("v_lshrrev_b32 v1, 6, v0")
I("s_cmp_ge_u32 s2, 256")
I("s_cbranch_scc1 L_end")
I(f"v_readfirstlane_b32 s{S_t2}, v1")
I("v_and_b32 v0, 63, v0")
I(f"s_bfe_u32 s{S_q}, s2, 0x20001")
I(f"s_and_b32 s{S_t0}, s2, 1")
I(f"s_lshl_b32 s{S_t0}, s{S_t0}, 3")
I(f"s_bfe_u32 s{S_r}, s2, 0x30003")
I(f"s_or_b32 s{S_r}, s{S_r}, s{S_t0}")
I(f"s_lshr_b32 s{S_jj}, s2, 6")
if OPT["rotq"] == 2:
    I(f"s_lshr_b32 s{S_rot}, s{S_t0}, 2")
    I(f"s_add_u32 s{S_rot}, s{S_rot}, s{S_q}")
    I(f"s_and_b32 s{S_t0}, s{S_r}, 1")
    I(f"s_add_u32 s{S_rot}, s{S_rot}, s{S_t0}")
elif OPT["rotq"]: I(f"s_add_u32 s{S_rot}, s{S_r}, s{S_q}")
else: I(f"s_mov_b32 s{S_rot}, s{S_r}")
I(f"s_and_b32 s{S_w}, s{S_t2}, 3")
I(f"s_lshl_b32 s{S_m0b}, s{S_w}, 12")
I(f"s_cmp_lt_u32 s{S_t2}, 4")
I("s_cbranch_scc1 L_C")

H_XD = 4; H_WD = 8; H_BD = 12; H_ACC = 64
H_G = 18 if M else 20; H_BR = 20 if M else 24
H_RING = [32, 36, 40, 44, 48, 52, 24, 28] if M else [32, 36, 40, 44, 48, 52, 12]
def a2r(lam, p):
    if lam < 16: return ar(lam * 8 + p * 4)
    return vr((56 if lam == 16 else 4) + p * 4)
I("s_setprio 3")
I("v_lshrrev_b32 v32, 4, v0")
I("v_lshrrev_b32 v36, 3, v0")
I("v_and_b32 v37, 7, v0")
I("v_xor_b32 v39, v37, v32")
I("v_lshlrev_b32 v39, 4, v39")
I(f"v_lshl_add_u32 v{H_XD}, v36, 11, v39")
I(f"v_xor_b32 v{H_XD+1}, 64, v{H_XD}")
I(f"v_add_u32 v{H_XD+2}, {14*1024}, v{H_XD+1}")
I(f"v_add_u32 v{H_XD+3}, {14*1024}, v{H_XD}")
I(f"s_lshl_b32 s{S_t0}, s{S_r}, 17")
I(f"s_lshl_b32 s{S_t1}, s{S_w}, 15")
I(f"s_add_u32 s{S_t0}, s{S_t0}, s{S_t1}")
for g4 in range(4):
    I(f"s_add_u32 s{S_WK+g4}, s{S_rot}, {g4}")
    I(f"s_and_b32 s{S_WK+g4}, s{S_WK+g4}, 3")
    I(f"s_lshl_b32 s{S_KG+g4}, s{S_WK+g4}, 8")
    I(f"s_add_u32 s{S_KG+g4}, s{S_KG+g4}, s{S_t0}")
I(f"s_mov_b32 s{S_X+2}, {2048*1024}")
I(f"s_mov_b32 s{S_X+3}, 0x20000")
assert phys(False, 0) == 4 and phys(False, 1) == 5 and phys(True, 0) == 3 and phys(True, 1) == 4 and phys(False, 2) == 6 and phys(True, 2) == 5
I(f"s_cmp_ge_u32 s{S_jj}, 2")
I(f"s_cselect_b32 s{S_t2}, 3, 4")
I(f"s_mov_b32 s{S_W+2}, {512*3584}")
I(f"s_cmov_b32 s{S_W+2}, {512*3072}")
I(f"s_mov_b32 s{S_P}, 3584")
I(f"s_cmov_b32 s{S_P}, 3072")
I(f"s_lshl_b32 s{S_t2}, s{S_t2}, 14")
I(f"s_add_u32 s{S_t2}, s{S_t2}, s{S_m0b}")
I(f"s_mov_b32 m0, s{S_t2}")
I(f"s_add_u32 s{S_SOFF}, s{S_KG}, 128")
after_karg()
I(f"s_mov_b32 s{S_X}, s4")
I(f"s_and_b32 s{S_X+1}, s5, 0xffff")
for i in range(4): I(f"buffer_load_dwordx4 v{H_XD+i}, {srd(S_X)}, s{S_KG} offen offset:{i*1024} lds", tag="u0")
I(f"s_add_u32 m0, s{S_t2}, {SLOT}")
I(f"s_mov_b32 s{S_W+3}, 0x20000")
dma4(H_XD, S_X, "u1")
I(f"s_lshl_b32 s{S_t0}, s{S_w}, 5")
I(f"v_add_u32 v38, s{S_t0}, v36")
I(f"v_mul_lo_u32 v38, v38, s{S_P}")
I(f"s_mul_i32 s{S_COL}, s{S_q}, 896")
I(f"s_lshl_b32 s{S_t0}, s{S_q}, 8")
I(f"s_add_u32 s{S_t0}, s{S_t0}, {1024-256}")
I(f"s_cmp_ge_u32 s{S_jj}, 2")
I(f"s_cselect_b32 s{S_W}, s6, s12")
I(f"s_cselect_b32 s{S_W+1}, s7, s13")
I(f"s_cselect_b32 s{S_COL}, s{S_t0}, s{S_COL}")
I(f"s_cselect_b32 s{S_t0}, 1, {2 if M else 1}")
I(f"s_cselect_b32 s{S_t1}, 64, {0 if M else 64}")
I(f"s_and_b32 s{S_W+1}, s{S_W+1}, 0xffff")
I("v_and_b32 v39, 1, v32")
I(f"v_lshlrev_b32 v39, s{S_t0}, v39")
I("v_xor_b32 v39, v39, v37")
I("v_lshlrev_b32 v39, 4, v39")
I(f"v_add_u32 v{H_WD}, v38, v39")
I(f"v_xor_b32 v39, s{S_t1}, v39")
I(f"s_lshl_b32 s{S_t0}, s{S_P}, 3")
I(f"s_sub_u32 s{S_t0}, s{S_t0}, 1024")
I(f"v_add3_u32 v{H_WD+1}, v38, v39, s{S_t0}")
I(f"s_lshl_b32 s{S_t0}, s{S_t0}, 1")
I(f"v_add_u32 v{H_WD+2}, s{S_t0}, v{H_WD}")
I(f"v_add_u32 v{H_WD+3}, s{S_t0}, v{H_WD+1}")
I(f"s_lshl_b32 s{S_t0}, s{S_jj}, 7")
I(f"s_add_u32 s{S_COL}, s{S_COL}, s{S_t0}")
I(f"s_lshl_b32 s{S_t1}, s{S_P}, 7")
for g4 in range(4): I(f"s_mul_i32 s{S_WK+g4}, s{S_WK+g4}, s{S_t1}")
I(f"s_add_u32 m0, s{S_t2}, {2*SLOT}")
I(f"s_add_u32 s{S_SOFF}, s{S_WK}, s{S_COL}")
dma4(H_WD, S_W, "u2")
common_ptrs()
mk_srd(S_OUT, 18, 2048 * 1024)
mk_srd(S_GW, 16, 1024)
I(f"s_cmp_ge_u32 s{S_jj}, 2")
I("s_cbranch_scc1 L_h_att")
snapH = e.snapshot()

def h_prog(att):
    e.restore(snapH); e.hist = []
    UL = units(att)
    CH = [0, -1024, 1024] if att else [0, 256, 512]
    def issue(k):
        un = UL[k]
        I(f"s_add_u32 m0, s{S_m0b}, {phys(att,k)*SLOT}")
        if un[0] == "x":
            I(f"s_add_u32 s{S_SOFF}, s{S_KG+un[1]}, {un[2]*128}")
            dma4(H_XD, S_X, f"u{k}")
            if att and un[2] == 1: halo(un[1], f"u{k}")
            return
        _, c, u = un
        if c < 3:
            I(f"s_add_u32 s{S_SOFF}, s{S_WK+u}, s{S_COL}")
            if CH[c]: I(f"s_add_i32 s{S_SOFF}, s{S_SOFF}, {CH[c]}")
        else:
            KH = 256 * 3584
            if u == 0:
                I("v_lshrrev_b32 v2, 2, v0")
                if M:
                    I("v_lshrrev_b32 v1, 4, v0")
                    I("v_xor_b32 v2, v2, v1")
                I("v_and_b32 v2, 1, v2")
                I(f"v_mul_u32_u24 v1, {KH-64}, v2")
                for i in (0, 2): I(f"v_add_u32 v{H_WD+i}, v{H_WD+i}, v1")
                if not M: I(f"v_sub_u32 v1, {KH-64}, v1")
                for i in (1, 3): I(f"v_add_u32 v{H_WD+i}, v{H_WD+i}, v1")
                I(f"v_mul_u32_u24 v2, {2*KH}, v2")
                I(f"v_sub_u32 v{H_XD}, {KH}, v2")
                I(f"s_cmp_ge_u32 s{S_WK}, {KH}")
                I(f"s_cselect_b32 s{S_t0}, 1, 0")
            else:
                I(f"s_cmp_ge_u32 s{S_WK}, {KH}")
                I(f"s_cselect_b32 s{S_t1}, 1, 0")
                I(f"s_cmp_ge_u32 s{S_WK+1}, {KH}")
                I(f"s_cselect_b32 s{S_t0}, 1, 0")
                I(f"s_sub_u32 s{S_t0}, s{S_t0}, s{S_t1}")
            I(f"s_sub_u32 s{S_t1}, 0, s{S_t0}")
            for i in range(4): I(f"v_mad_i32_i24 v{H_WD+i}, v{H_XD}, s{S_t0 if (M or i % 2 == 0) else S_t1}, v{H_WD+i}")
            I(f"s_min_u32 s{S_SOFF}, s{S_WK+u}, s{S_WK+u+2}")
            I(f"s_add_u32 s{S_SOFF}, s{S_SOFF}, s{S_COL}")
            I(f"s_lshl_b32 s{S_t0}, s{S_jj}, 6")
            I(f"s_sub_u32 s{S_SOFF}, s{S_SOFF}, s{S_t0}")
            I(f"s_add_u32 s{S_SOFF}, s{S_SOFF}, 768")
        dma4(H_WD, S_W, f"u{k}")
    def w0(f):
        l = U("w0")
        I(f"s_cmp_eq_u32 s{S_w}, 0"); I(f"s_cbranch_scc0 {l}")
        e.cond_begin(); f(); e.cond_end(); e.label(l)
    def peer_issue(): w0(lambda: I(f"s_load_dword s{S_POLL}, s[{S_DBG}:{S_DBG+1}], 0 glc"))
    def peer():
        def f():
            lp = U("pp"); ok = U("po")
            I("s_waitcnt lgkmcnt(0)")
            I(f"s_cmp_ge_u32 s{S_POLL}, 16")
            I(f"s_cbranch_scc0 {lp}")
            e.label(ok)
            SLOW.extend([f"{lp}:", "    s_sleep 8", f"    s_load_dword s{S_POLL}, s[{S_DBG}:{S_DBG+1}], 0 glc", "    s_waitcnt lgkmcnt(0)",
                         f"    s_cmp_ge_u32 s{S_POLL}, 16", f"    s_cbranch_scc1 {ok}"] + spin_tail(lp, ok))
        w0(f)
        I(f"s_mov_b32 s{S_POLL}, 0")
    V_Q = 64; V_S = 96; V_BIAS = 32; V_RINV = 40; V_T = 48; A_KV = 64; A_ONES = 96; V_AD = 24 if M else 56
    def att_setup(part):
        if part == 0:
            I(f"s_add_u32 s{S_t0}, s{S_m0b}, {EXCH_LDS+4096}")
            I(f"v_add_u32 v{V_AD}, s{S_t0}, v{V_L16}")
            I("v_bfe_u32 v1, v0, 3, 1")
            I("v_lshlrev_b32 v1, 12, v1")
            I(f"v_sub_u32 v{V_AD+2}, v{V_AD}, v1")
            I("v_xor_b32 v1, 4096, v1")
            I(f"v_sub_u32 v{V_AD+1}, v{V_AD}, v1")
            I("v_lshrrev_b32 v1, 5, v0")
            I("v_lshlrev_b32 v1, 12, v1")
            I(f"v_sub_u32 v{V_AD+4}, v{V_AD}, v1")
            I("v_xor_b32 v1, 4096, v1")
            I(f"v_sub_u32 v{V_AD+3}, v{V_AD}, v1")
            I(f"v_add_u32 v{V_AD+5}, {(QSLOT*SLOT - EXCH_LDS - 4096) & 0xffffffff}, v{V_AD}")
            I(f"s_mov_b32 s{S_CEXP}, {f2u(0.25*1.4426950408889634)}")
            I(f"s_or_b32 s{S_t0}, s{S_r}, s{S_w}")
            I(f"s_cmp_eq_u32 s{S_t0}, 0")
            I(f"s_cselect_b32 s{S_THR}, -16, -9")
            I(f"v_mov_b32 v{V_T}, 0x3f803f80")
            for k in range(4): I(f"v_accvgpr_write_b32 a{A_ONES+k}, v{V_T}")
            I(f"v_mov_b32 v{V_T}, {NEG}")
            I(f"v_and_b32 v{V_T+1}, 15, v0")
            I(f"v_lshrrev_b32 v{V_T+2}, 4, v0")
            I(f"v_lshlrev_b32 v{V_T+2}, 2, v{V_T+2}")
        elif part in (1, 2):
            p = part - 1; x8 = 8 if p == 0 else 0
            I(f"v_xor_b32 v{V_T+3}, {x8}, v{V_T+1}")
            I(f"v_xor_b32 v{V_T+4}, {x8}, v{V_T+2}")
            I(f"v_sub_u32 v{V_T+3}, v{V_T+3}, v{V_T+4}")
            for r in range(4):
                I(f"v_subrev_u32 v{V_T+4}, {r}, v{V_T+3}")
                I(f"v_cmp_lt_u32 vcc, 7, v{V_T+4}")
                I(f"v_cmp_lt_i32 s[56:57], s{S_THR}, v{V_T+4}")
                I("s_and_b64 vcc, vcc, s[56:57]")
                I(f"v_cndmask_b32 v{V_BIAS+p*4+r}, 0, v{V_T}, vcc")
        else:
            for k in range(16): I(f"v_mov_b32 v{V_Q+16*(part-3)+k}, 0")
            I("s_mov_b32 s56, 0xff00ff00"); I("s_mov_b32 s57, 0xff00ff00")
            I("s_not_b64 s[58:59], s[56:57]")
    def br_setup():
        if M:
            I("v_bfe_u32 v1, v0, 2, 2")
            I("v_lshrrev_b32 v2, 5, v0")
            I("v_lshl_add_u32 v1, v2, 2, v1")
            I("v_lshlrev_b32 v1, 7, v1")
            I("v_bfe_u32 v2, v0, 4, 1")
            I("v_lshl_add_u32 v1, v2, 5, v1")
            I("v_bfe_u32 v2, v0, 3, 1")
            I("v_lshl_add_u32 v1, v2, 6, v1")
        else:
            I("v_lshrrev_b32 v1, 2, v0")
            I("v_bfe_u32 v2, v0, 3, 2")
            I("v_lshlrev_b32 v1, 7, v1")
            I("v_lshl_add_u32 v1, v2, 5, v1")
        I("v_and_b32 v2, 3, v0")
        I("v_lshl_add_u32 v1, v2, 3, v1")
        I(f"s_lshr_b32 s{S_t0}, s{S_q}, 1")
        I(f"s_lshl_b32 s{S_t0}, s{S_t0}, 13")
        I(f"s_and_b32 s{S_t1}, s{S_q}, 1")
        I(f"s_lshl_b32 s{S_t1}, s{S_t1}, 6")
        I(f"s_or_b32 s{S_t0}, s{S_t0}, s{S_t1}")
        I(f"v_xor_b32 v1, s{S_t0}, v1")
        for tau in range(4):
            cb = 3 - tau
            if M: I(f"v_xor_b32 v{H_BR+tau}, {(cb>>1)*8192 + (cb&1)*64}, v1")
            else:
                for tt in range(2): I(f"v_xor_b32 v{H_BR+2*tau+tt}, {(cb>>1)*8192 + (cb&1)*64 + tt*32}, v1")
        I(f"s_lshl_b32 s{S_PB}, s{S_r}, 2"); I(f"s_add_u32 s{S_PB}, s{S_PB}, s{S_jj}")
        I(f"s_mul_i32 s{S_PB}, s{S_PB}, {12*8192}")
        I(f"s_lshl_b32 s{S_t0}, s{S_w}, 11"); I(f"s_add_u32 s{S_PB}, s{S_PB}, s{S_t0}"); I(f"s_add_u32 s{S_PB}, s{S_PB}, {PART_OFF}")
    V_HV = 31 if M else 19
    def halo(u, tag):
        I(f"s_lshr_b32 s{S_t0}, s{S_m0b}, 2")
        I(f"s_add_u32 m0, s{S_t0}, {HALO_LDS + u*4096}")
        I(f"s_and_b32 s{S_t0}, s{S_KG+u}, 0x300")
        I(f"buffer_load_dwordx4 v{V_HV}, {srd(S_X)}, s{S_t0} offen lds", tag=tag)
    if att:
        I(f"s_and_b32 s{S_t1}, s{S_w}, 1")
        I(f"s_mul_i32 s{S_t1}, s{S_t1}, {1024+64}")
        I(f"v_xor_b32 v{V_HV}, s{S_t1}, v{H_XD}")
        I(f"s_lshl_b32 s{S_t0}, s{S_r}, 17")
        I(f"s_sub_u32 s{S_t0}, s{S_t0}, 16384")
        I(f"s_lshr_b32 s{S_t1}, s{S_w}, 1")
        I(f"s_lshl_b32 s{S_t1}, s{S_t1}, 7")
        I(f"s_add_u32 s{S_t0}, s{S_t0}, s{S_t1}")
        I(f"v_add_u32 v{V_HV}, s{S_t0}, v{V_HV}")
        I(f"v_max_i32 v{V_HV}, 0, v{V_HV}")
        halo(0, "u2")
    PRE = OPT["pre"]
    for k in range(3, PRE + 1): issue(k)
    first = list(range(PRE + 1, 8))
    if att: sched = [first, [8, 9], [10], [11, 12, 13], [14], [15, 16, 17], [18], [] if OPT["u19"] else [19]]
    else: sched = [first, [8, 9], [10, 11], [12, 13], [14, 15], [16, 17], [18, 19], []]
    def gw_dma():
        I(f"s_mov_b32 m0, {GW_LDS}")
        w0(lambda: I(f"buffer_load_dwordx4 v{V_L16}, {srd(S_GW)}, 0 offen lds"))
    extra = {1: lambda: (late_scalars(), b2_voffs(H_BD)), 3: gw_dma, 7: (br_setup if att or OPT["sch"] else lambda: (b2_unit(8, H_BD), br_setup()))}
    if att: extra.update({2: lambda: (att_setup(0), att_setup(1)), 4: lambda: (att_setup(2), att_setup(3)), 6: lambda: att_setup(4)})
    gk = [k for k, un in enumerate(UL) if un[0] == "g"]
    def bar(i, need=None):
        stamp(f"h_a{i}")
        if need is None and i < len(gk): need = gk[i]
        if need is not None: e.wait(vm=f"u{need}")
        if i == 6: peer()
        I("s_barrier"); stamp(f"h_b{i}")
    for i in range(8):
        bar(i)
        if i == 4: peer_issue()
        for k in sched[i]: issue(k)
        if i in extra: extra[i]()
        if i == (OPT["tha"] if att else OPT["th"]) and not OPT["tatt"]: vtouch(att, 30 if M else 18)
        if i == OPT["th"] and OPT["tatt"] and att: vtouch2()
    def a2_load(lam):
        a2_soff(lam, S_t1)
        for p in range(2):
            I(f"buffer_load_dwordx4 {a2r(lam,p)}, v{V_L16}, {srd(S_WS)}, s{S_t1} offen offset:{p*1024} sc1", tag=f"a{lam}")
    def a2_items(lams, gap=None):
        gap = OPT['gap']
        F = []
        for lam in lams:
            F.append(cost(9, lambda lam=lam: (a2_soff(lam, S_COL), I(f"buffer_load_dwordx4 {a2r(lam,0)}, v{V_L16}, {srd(S_WS)}, s{S_COL} offen sc1", tag=f"a{lam}x"))))
            F += [cost(9, lambda: None)] * (gap - 1)
            F.append(cost(9, lambda lam=lam: I(f"buffer_load_dwordx4 {a2r(lam,1)}, v{V_L16}, {srd(S_WS)}, s{S_COL} offen offset:1024 sc1", tag=f"a{lam}")))
            F += [cost(9, lambda: None)] * (gap - 1)
        return F
    Bu = lambda g: b2_unit(g, H_BD, False)
    SS = []
    ALL = (0, 1, 2, 3)
    side = {}
    if not att:
        if OPT["sch"] == 0:
            bar(8); Bu(0)
            bar(9); issue(20); Bu(1)
            bar(10); push_group(ownbit(0), ALL); issue(21); Bu(2)
            bar(11); push_group(ownbit(1), ALL); Bu(3); poll_load()
            bar(12); poll_check(0x11)
            for lam in range(4): a2_load(lam)
            Bu(4); poll_load()
            bar(13); poll_check(0x22)
            for lam in range(4, 8): a2_load(lam)
            Bu(5)
            bar(14)
        else:
            bar(8)
            bar(9); issue(20)
            bar(10); push_group(ownbit(0), ALL); issue(21)
            bar(11); push_group(ownbit(1), ALL); Bu(0); Bu(1); poll_load()
            bar(12); poll_check(0x11); a2_load(0); a2_load(1); poll_load()
            bar(13); a2_load(2); a2_load(3); b2_unit(2, H_BD)
            e.wait(vm="b1")
            bar(14); poll_check(0x22)
            side[(0, 0)] = lambda: SS[0].add(0, 999, a2_items((4, 5, 6, 7), 2))
        def f_o(): poll_check(0x300); SS[0].add(0, 999, a2_items((16, 17, 14, 15)))
    else:
        def kv_reads(m0, tag):
            for t in range(4):
                I(f"ds_read_b64 {ar(A_KV+8*t,2)}, v{m0} offset:{t*1024}", tag=f"{tag}{t}")
                I(f"ds_read_b128 {ar(A_KV+8*t+2)}, v{V_AD} offset:{t*1024}", tag=f"{tag}{t}")
                I(f"ds_read_b64 {ar(A_KV+8*t+6,2)}, v{m0+1} offset:{t*1024+8}", tag=f"{tag}{t}")
        bar(8)
        kv_reads(V_AD + 1, "k")
        e.wait(lg="k3")
        bar(9, 18 if OPT["u19"] else 19)
        def Preg(t, p): return V_Q + 8 * t + 4 * p
        for half, m in enumerate(("s[56:57]", "s[58:59]")):
            I(f"s_mov_b64 exec, {m}")
            for t in range(4):
                for p in range(2):
                    I(f"ds_read_b64 {vr(Preg(t,p)+2*half,2)}, v{V_AD+5} offset:{t*1024+p*8}", tag="q")
        I("s_mov_b64 exec, -1")
        stamp("h_q")
        e.wait(lg="q")
        un = [(i >> 1, i & 1) for i in range(8)]
        Sc = lambda i: V_S + 4 * i
        for i, (t, p) in enumerate(un): I(f"{MF} {vr(Sc(i))}, {ar(A_KV+8*t+4*p)}, {vr(Preg(t,p))}, {vr(V_BIAS+4*p)}")
        poll_load()
        if OPT["u19"]: issue(19); dsig("Lv3")
        Bu(0)
        m = [V_T + i for i in range(8)]
        for i in range(8):
            if OPT["lround"]:
                I(f"v_cvt_pk_bf16_f32 v1, v{Sc(i)}, v{Sc(i)+1}")
                I(f"v_cvt_pk_bf16_f32 v2, v{Sc(i)+2}, v{Sc(i)+3}")
                I(f"v_lshlrev_b32 v{Sc(i)}, 16, v1")
                I(f"v_and_b32 v{Sc(i)+1}, 0xffff0000, v1")
                I(f"v_lshlrev_b32 v{Sc(i)+2}, 16, v2")
                I(f"v_and_b32 v{Sc(i)+3}, 0xffff0000, v2")
            I(f"v_max3_f32 v{m[i]}, v{Sc(i)}, v{Sc(i)+1}, v{Sc(i)+2}")
            I(f"v_max_f32 v{m[i]}, v{m[i]}, v{Sc(i)+3}")
        for k in range(4): I(f"v_permlane32_swap_b32 v{m[2*k]}, v{m[2*k+1]}")
        for k in range(4): I(f"v_max_f32 v{m[2*k]}, v{m[2*k]}, v{m[2*k+1]}")
        for k in range(2): I(f"v_permlane16_swap_b32 v{m[4*k]}, v{m[4*k+2]}")
        for k in range(2): I(f"v_max_f32 v{m[4*k]}, v{m[4*k]}, v{m[4*k+2]}")
        for k in range(2): I(f"v_mul_f32 v{m[4*k+2]}, s{S_CEXP}, v{m[4*k]}")
        for k in range(2): I(f"v_mul_f32 v{m[4*k]}, s{S_CEXP}, v{m[4*k]}")
        for k in range(2): I(f"v_permlane16_swap_b32 v{m[4*k]}, v{m[4*k+2]}")
        for k in range(4): I(f"v_mov_b32 v{m[2*k+1]}, v{m[2*k]}")
        for k in range(4): I(f"v_permlane32_swap_b32 v{m[2*k]}, v{m[2*k+1]}")
        Bu(1)
        for i in range(8):
            for r in range(4): I(f"v_fma_f32 v{Sc(i)+r}, v{Sc(i)+r}, s{S_CEXP}, -v{m[i]}")
            for r in range(4): I(f"v_exp_f32 v{Sc(i)+r}, v{Sc(i)+r}")
            if i == 4: poll_check(0x11); poll_load()
            if i >= 4: a2_load(i - 4)
        b2_unit(2, H_BD)
        for half, mk in enumerate(("s[56:57]", "s[58:59]")):
            I(f"s_mov_b64 exec, {mk}")
            for i, (t, p) in enumerate(un):
                I(f"v_cvt_pk_bf16_f32 v{Preg(t,p)+2*half}, v{Sc(i)}, v{Sc(i)+1}")
                I(f"v_cvt_pk_bf16_f32 v{Preg(t,p)+2*half+1}, v{Sc(i)+2}, v{Sc(i)+3}")
        I("s_mov_b64 exec, -1")
        for i, (t, p) in enumerate(un): I(f"{MF} {vr(Sc(i))}, {ar(A_ONES)}, {vr(Preg(t,p))}, 0")
        for i in range(8): I(f"v_rcp_f32 v{V_RINV+i}, v{Sc(i)}")
        e.wait(vm="b1")
        stamp("h_sm")
        I("s_barrier")
        kv_reads(V_AD + 3, "v")
        e.wait(lg="v3")
        I("s_barrier")
        for i, (t, p) in enumerate(un): I(f"{MF} {vr(Sc(i))}, {ar(A_KV+8*t+4*p)}, {vr(Preg(t,p))}, 0")
        for b in range(2):
            for t in (2 * b, 2 * b + 1):
                ob = (56 if b == 0 else 4) + (t & 1) * 4
                for p in range(2):
                    o = Sc(2 * t + p)
                    for r in range(4): I(f"v_mul_f32 v{o+r}, v{V_RINV+2*t+p}, v{o+r}")
                    od = ob + 2 * p if M else (56 if b == 0 else 4) + p * 4 + (t & 1) * 2
                    I(f"v_cvt_pk_bf16_f32 v{od}, v{o}, v{o+1}")
                    I(f"v_cvt_pk_bf16_f32 v{od+1}, v{o+2}, v{o+3}")
            a2_soff(16 + b, S_t1)
            for t1 in range(2 if M else 0):
                ob = (56 if b == 0 else 4) + t1 * 4
                I(f"v_permlane16_swap_b32 v{ob}, v{ob+2}")
                I(f"v_permlane16_swap_b32 v{ob+1}, v{ob+3}")
            for p in range(2):
                I(f"buffer_store_dwordx4 {a2r(16+b,p)}, v{V_L16}, {srd(S_WS)}, s{S_t1} offen offset:{p*1024} sc1", tag="so")
        stamp("h_so")
        def f_push():
            e.wait(vm="so")
            push_group(lambda: I(f"s_lshl_b32 s{S_t2}, 64, s{S_jj}"), (1, 2, 3))
        side[(0, OPT["fp"])] = f_push
        side[(0, 0)] = lambda: (poll_check(0x22), SS[0].add(0, 999, a2_items((4, 5, 6, 7), 1)))
        def f_o():
            I(f"s_xor_b32 s{S_THR}, s{S_jj}, 1"); I(f"s_lshl_b32 s{S_THR}, 64, s{S_THR}")
            poll_check(f"s{S_THR}"); SS[0].add(0, 999, a2_items((14, 15)))
    def f_c(): poll_check(0x44); SS[0].add(0, 999, a2_items((8, 9, 10, 11)))
    def f_h(): poll_check(0x88); SS[0].add(0, 999, a2_items((12, 13)))
    side.update({(8, -46): poll_load, (8, -28): f_c, (12, -42): poll_load, (12, -26): f_h, (16, -40): poll_load, (16, -24): f_o})
    I("s_setprio 1")
    stamp("h_p2")
    own = [16, 17] if att else []
    LD = OPT["ld"]
    oo = [16, 17, 14, 15]
    TM = 14 - OPT["tm"]
    seq = [(lam, tau) for lam in range(TM) for tau in range(4 if lam < LD else 3)]
    seq += [(lam, tau) for tau in range(3) for lam in list(range(TM, 14)) + oo]
    seq += [(lam, 3) for lam in list(range(LD, 14)) + oo]
    steps = []; rng = {}; seen_g = set(); seen_l = set(); first_ = set()
    for (lam, tau) in seq:
        g = lam >> 1
        for kh in range(2):
            a = H_BR + tau if M else H_BR + 2 * tau + kh
            off = g * SLOT + (lam & 1) * 4096 + (kh * 2048 if M else 0)
            hi = off >> 16
            st = dict(rd=(a, off & 0xffff, 1024 if M else 2048))
            pres = []
            cg = CHKG.get(g)
            if cg is not None and cg not in seen_g:
                seen_g.add(cg); t = U("t")
                steps[-3]["post"] = lambda k, g=cg, t=t: d_read(f"Lb{g}", t)
                pres.append(lambda g=cg, t=t: d_check(f"Lb{g}", t))
            if rng.get(a, 0) != hi:
                dlt = (hi - rng.get(a, 0)) * 65536; rng[a] = hi
                pres.append(lambda a=a, dlt=dlt: I(f"v_add_u32 v{a}, {dlt & 0xffffffff}, v{a}"))
            if pres: st["pre"] = lambda pres=pres: [f() for f in pres]
            at = 4 if (tau == 3 and lam >= 14) else tau
            key = at if M else (at, kh)
            zero = key not in first_; first_.add(key)
            db = H_ACC + 16 * (at if at < 4 else 0)
            if M: st["mf"] = lambda W, st, lam=lam, kh=kh, d=vr(db, 16), zero=zero: [f"{M32} {d}, {W}, {a2r(lam,kh)}, {'0' if zero else d}"]
            else: st["mf"] = lambda W, st, lam=lam, db=db + 4 * kh, zero=zero: [f"{MF} {vr(db+8*p)}, {W}, {a2r(lam,p)}, {'0' if zero else vr(db+8*p)}" for p in range(2)]
            if lam not in seen_l:
                seen_l.add(lam)
                if lam not in own: st["need"] = lambda lam=lam: e.wait(vm=f"a{lam}")
            st["id"] = (lam, tau, kh)
            steps.append(st)
    S = Stream(steps, OPT["D2"], H_RING)
    SS.append(S)
    idx = {st["id"]: k for k, st in enumerate(steps)}
    n = len(steps)
    for (lam, d), f in side.items(): S.aft(idx[(lam, 0, 0)] + d, f)
    def scale(tau, greg): return [lambda k=k: I(f"v_mul_f32 v{H_ACC+16*tau+k}, v{greg + (0 if M else 2*(k>>3))}, v{H_ACC+16*tau+k}") for k in range(16)]
    def pack(tau):
        b = H_ACC + tau * 16
        return [lambda k=k: I(f"v_cvt_pk_bf16_f32 v{b+k}, v{b+2*k}, v{b+2*k+1}") for k in range(8)]
    def send(tau):
        def so():
            I(f"s_xor_b32 s{S_GIN}, s{S_q}, {3-tau}"); I(f"s_mul_i32 s{S_GIN}, s{S_GIN}, {3*8192}")
            I(f"s_add_u32 s{S_GIN}, s{S_GIN}, s{S_PB}"); I(f"s_add_u32 s{S_GIN}, s{S_GIN}, {tau*8192}")
        return [so] + pack(tau) + [cost(3, lambda j=j: I(f"buffer_store_dwordx4 {vr(H_ACC+tau*16+j*4)}, v{V_L16}, {srd(S_WS)}, s{S_GIN} offen offset:{j*1024} sc1", tag=f"p{tau}")) for j in range(2)]
    def pflag(tau):
        assert e.vmq[0][0].count(f"p{tau}") == 2
        stamp(f"h_pa{tau}")
        e.wait(vm=f"p{tau}")
        stamp(f"h_pb{tau}")
        I(f"s_xor_b32 s{S_t0}, s{S_MYIN}, {(3-tau)*2048}")
        I(f"s_mov_b32 s{S_KG+tau}, {1024<<tau}")
        I(f"s_atomic_or s{S_KG+tau}, s[{S_INB}:{S_INB+1}], s{S_t0}")
    def gget():
        t = U("t"); d_read("G", t); d_check("G", t)
        I(f"s_lshl_b32 s{S_t0}, s{S_w}, 8"); I(f"s_add_u32 s{S_t0}, s{S_t0}, {GB_LDS}")
        I(f"v_and_b32 v1, {31 if M else 15}, v0")
        I(f"v_lshl_add_u32 v1, v1, 3, s{S_t0}")
        I(f"ds_read_b64 {vr(H_G,2)}, v1", tag="gz")
        if not M: I(f"ds_read_b64 {vr(H_G+2,2)}, v1 offset:128", tag="gz")
    S.aft(idx[(12, 0, 1)], gget)
    S.aft(idx[(13, 0, 1)], lambda: e.wait(lg="gz"))
    for tau in range(4):
        k = idx[(13, tau, 1)]
        S.aft(k, lambda k=k, tau=tau: S.add(k + 3, idx[(oo[0], tau, 0)] if tau < 3 else n, scale(tau, H_G + 1)))
    late_flags = []
    for tau in range(3):
        k = idx[(oo[-1], tau, 1)]
        S.aft(k, lambda k=k, tau=tau: S.add(k + 3, k + 8, send(tau)))
        kf = k + 7 + OPT["pfd"]
        if kf <= n - OPT["D2"] - 14: S.aft(kf, lambda tau=tau: pflag(tau))
        else: late_flags.append(tau)
    S.aft(n - OPT["D2"], lambda: (e.wait(lg=f"w{n-1}"), [pflag(t) for t in late_flags[:-1]], poll_load()))
    S.aft(idx[(8, 0, 0)], lambda: stamp("h_late"))
    S.aft(idx[(oo[0], 0, 0)], lambda: stamp("h_o"))
    S.aft(idx[(LD, 3, 0)], lambda: stamp("h_own"))
    S.run(OPT["side2"])
    I(f"s_mul_i32 s{S_GIN}, s{S_q}, {3*8192}")
    I(f"s_add_u32 s{S_GIN}, s{S_GIN}, s{S_PB}")
    if M:
        I("v_bfe_u32 v5, v0, 4, 1")
        I("v_lshlrev_b32 v6, 3, v5")
        I("v_xor_b32 v6, 8, v6")
        I("v_and_b32 v4, 15, v0")
        I("v_xor_b32 v4, v4, v6")
        I("v_lshl_add_u32 v4, v4, 1, v5")
        I("v_lshrrev_b32 v5, 5, v0")
        I("v_lshlrev_b32 v5, 4, v5")
        I("v_lshl_add_u32 v4, v4, 10, v5")
    else:
        I("v_and_b32 v4, 15, v0")
        I("v_bfe_u32 v6, v0, 4, 1")
        I("v_lshlrev_b32 v6, 5, v6")
        I("v_lshrrev_b32 v7, 5, v0")
        I("v_lshl_add_u32 v6, v7, 4, v6")
        I("v_lshl_add_u32 v5, v4, 11, v6")
        I("v_xor_b32 v4, 0x4000, v5")
    I(f"s_lshl_b32 s{S_COL}, s{S_r}, 17"); I(f"s_lshl_b32 s{S_t1}, s{S_w}, 15"); I(f"s_add_u32 s{S_COL}, s{S_COL}, s{S_t1}")
    I(f"s_lshl_b32 s{S_t1}, s{S_jj}, 8"); I(f"s_add_u32 s{S_COL}, s{S_COL}, s{S_t1}")
    I(f"s_lshl_b32 s{S_t1}, s{S_q}, 6"); I(f"s_add_u32 s{S_COL}, s{S_COL}, s{S_t1}")
    for t in late_flags[-1:]: pflag(t)
    O = H_ACC + 48
    for k in range(8): I(f"v_pk_add_f32 {vr(O+2*k,2)}, {vr(O+2*k,2)}, {vr(H_ACC+2*k,2)}")
    for tau in range(3):
        poll_check(1024 << tau)
        stamp(f"h_r{tau}")
        if tau == 2: stamp("h_rcv")
        for j in range(2):
            I(f"buffer_load_dwordx4 {vr(24+tau*8+j*4)}, v{V_L16}, {srd(S_WS)}, s{S_GIN} offen offset:{j*1024} sc1", tag=f"r{tau}")
        if tau < 2: I(f"s_add_u32 s{S_GIN}, s{S_GIN}, 8192")
    for tau in range(3):
        e.wait(vm=f"r{tau}")
        b = H_ACC + 16
        for k in range(8):
            I(f"v_lshlrev_b32 v{b+2*k}, 16, v{24+tau*8+k}")
            I(f"v_and_b32 v{b+2*k+1}, 0xffff0000, v{24+tau*8+k}")
        for k in range(8): I(f"v_pk_add_f32 {vr(O+2*k,2)}, {vr(O+2*k,2)}, {vr(b+2*k,2)}")
    for k in range(8): I(f"v_pk_mul_f32 {vr(O+2*k,2)}, {vr(O+2*k,2)}, {vr(H_G + (0 if M else 2*(k>>2)),2)} op_sel_hi:[1,0]")
    stamp("h_sum")
    for f in pack(3): f()
    for j in range(2):
        sw = "v_permlane32_swap_b32" if M else "v_permlane16_swap_b32"
        I(f"{sw} v{O+4*j}, v{O+4*j+2}")
        I(f"{sw} v{O+4*j+1}, v{O+4*j+3}")
        I(f"buffer_store_dwordx4 {vr(O+4*j)}, v{4 if M else 4+j}, {srd(S_OUT)}, s{S_COL} offen offset:{j*(32 if M else 1024)}" + ["", " nt", " sc0", " sc1"][OPT["of"]])
    finish()

h_prog(False)
e.label("L_h_att")
h_prog(True)

e.label("L_C")
role[0] = "C"
reset()
C_WR = 4; C_XR = 12; C_EXW = 18; C_HA = 20; C_HX = (24, 56, 60); C_HACC = 28; C_ACC = 64
I("s_setprio 2")
if OPT["codepf"]:
    I("s_cmp_lt_u32 s2, 16")
    I("s_cbranch_scc0 L_nopf")
    e.cond_begin()
    I("s_getpc_b64 s[56:57]")
    e.label("L_pc")
    I(f"s_sub_u32 s56, s56, L_pc-{NAME}_kernel")
    I("s_subb_u32 s57, s57, 0")
    I(f"s_lshr_b32 s{S_t0}, s2, 3")
    I(f"s_lshl_b32 s{S_t0}, s{S_t0}, 15")
    I(f"v_lshlrev_b32 v2, 7, v0")
    I(f"v_lshl_add_u32 v2, v1, 13, v2")
    I(f"v_add_u32 v2, s{S_t0}, v2")
    I(f"v_min_u32 v2, L_end-{NAME}_kernel, v2")
    I(f"global_load_dword v23, v2, s[56:57]")
    e.cond_end()
    e.label("L_nopf")
late_scalars()
I("v_lshlrev_b32 v2, 2, v0")
I(f"v_add_u32 v2, {EV_LDS}, v2")
I("v_mov_b32 v1, 1")
I("ds_write_b32 v2, v1")
I("v_mov_b32 v1, 0")
I("ds_write_b32 v2, v1 offset:256")
I("v_lshrrev_b32 v32, 4, v0")
I("v_and_b32 v33, 15, v0")
I("v_bfe_u32 v34, v0, 2, 2")
I("v_and_b32 v35, 3, v0")
after_karg()
common_ptrs()
I(f"s_cmp_eq_u32 s{S_w}, 0")
I("s_cbranch_scc0 L_c_noinit")
e.cond_begin()
for k in range(4):
    I(f"s_mov_b32 s{S_KG+k}, 0")
    I(f"s_add_u32 s{S_t0}, s{S_MYIN}, {k*128}")
    I(f"s_atomic_swap s{S_KG+k}, s[{S_INB}:{S_INB+1}], s{S_t0} glc")
e.cond_end()
e.label("L_c_noinit")
I(f"s_cmp_ge_u32 s{S_jj}, 2")
I("s_cbranch_scc1 L_c_att")

def c_prog(att):
    reset()
    UL = units(att)
    slot_of = {un: phys(att, k) for k, un in enumerate(UL)}
    subs = [un for un in UL if un[0] == "g"]
    if OPT["spf"] == 2 and OPT["tearly"] and OPT["th"] < 0: vtouch(att)
    n16 = att or not M
    if n16:
        for p in range(2):
            I(f"v_xor_b32 v38, {8 if p == 0 else 0}, v33")
            I("v_and_b32 v39, 8, v38")
            I("v_add_u32 v39, v39, v38")
            I("v_lshlrev_b32 v39, 7, v39")
            I("v_lshrrev_b32 v38, 1, v38")
            I("v_xor_b32 v38, v38, v32")
            I("v_lshl_add_u32 v39, v38, 4, v39")
            I(f"v_add_u32 v39, s{S_m0b}, v39")
            I(f"v_add_u32 v{C_XR+2*p+p}, {p*1024}, v39")
            I(f"v_xor_b32 v{C_XR+2*p+1-p}, 64, v{C_XR+2*p+p}")
        I("v_lshl_add_u32 v38, v32, 3, v34")
        I("v_lshlrev_b32 v38, 7, v38")
        I("v_lshl_add_u32 v38, v35, 3, v38")
        I("v_lshrrev_b32 v39, 1, v34")
        I("v_and_b32 v40, 1, v32")
        I("v_lshl_or_b32 v39, v40, 1, v39")
        I(f"v_xor_b32 v41, {'s'+str(S_w) if att else 0}, v39")
        for t in range(4):
            I(f"v_xor_b32 v40, {t}, v41")
            I(f"v_lshl_add_u32 v{C_WR+t}, v40, 5, v38")
            I(f"v_add_u32 v{C_WR+4+t}, 0x10000, v{C_WR+t}")
        if att:
            I("v_lshrrev_b32 v38, 1, v33")
            I("v_xor_b32 v38, v38, v32")
            I("v_lshlrev_b32 v38, 4, v38")
            I("v_lshl_add_u32 v38, v33, 7, v38")
            I(f"v_add_u32 v{C_HA}, {HALO_LDS}, v38")
            I(f"v_xor_b32 v{C_HA+1}, 64, v{C_HA}")
            I(f"s_mul_i32 s{S_t0}, s{S_w}, 5120")
            I(f"s_add_u32 s{S_t0}, s{S_t0}, {EXCH_LDS+4096}")
            I(f"v_add_u32 v{C_EXW}, s{S_t0}, v{V_L16}")
            I("v_add_u32 v19, 1, v35")
            I("v_bfe_u32 v19, v19, 1, 1")
            I("v_mul_u32_u24 v19, 24, v19")
    else:
        I("v_and_b32 v40, 1, v32")
        I("v_lshlrev_b32 v38, 3, v40")
        I("v_xor_b32 v38, 8, v38")
        I("v_xor_b32 v38, v38, v33")
        I("v_and_b32 v39, 8, v38")
        I("v_add_u32 v39, v39, v38")
        I("v_lshl_add_u32 v39, v40, 3, v39")
        I("v_lshlrev_b32 v39, 7, v39")
        I("v_lshrrev_b32 v38, 1, v38")
        I("v_lshlrev_b32 v41, 2, v40")
        I("v_xor_b32 v38, v38, v41")
        I("v_lshrrev_b32 v41, 1, v32")
        I("v_xor_b32 v38, v38, v41")
        I("v_lshl_add_u32 v39, v38, 4, v39")
        I(f"v_add_u32 v{C_XR}, s{S_m0b}, v39")
        for k in range(1, 4): I(f"v_xor_b32 v{C_XR+k}, {32*k}, v{C_XR}")
        I("v_lshl_add_u32 v38, v41, 3, v34")
        I("v_lshlrev_b32 v38, 7, v38")
        I("v_lshl_add_u32 v38, v35, 3, v38")
        I("v_lshl_add_u32 v38, v40, 5, v38")
        I("v_lshrrev_b32 v39, 1, v34")
        I(f"v_lshl_add_u32 v{C_WR}, v39, 6, v38")
        I(f"v_xor_b32 v{C_WR+1}, 64, v{C_WR}")
        for t in range(2): I(f"v_add_u32 v{C_WR+4+t}, 0x10000, v{C_WR+t}")
    if OPT["spf"] == 2 and not OPT["tearly"] and OPT["th"] < 0: vtouch(att)
    if OPT["spf"] == 1:
        P = 3072 if att else 3584; wp = 6 if att else 12
        I(f"s_lshl_b32 s{S_t0}, s{S_r}, 2"); I(f"s_add_u32 s{S_t0}, s{S_t0}, s{S_w}")
        I(f"s_mul_i32 s{S_t1}, s{S_t0}, {8*P}")
        I(f"s_mul_i32 s{S_t2}, s{S_q}, {256 if att else 896}"); I(f"s_add_u32 s{S_t1}, s{S_t1}, s{S_t2}")
        I(f"s_lshl_b32 s{S_t2}, s{S_j1}, 7"); I(f"s_add_u32 s{S_t2}, s{S_t2}, s{S_t1}")
        I(f"s_add_u32 s56, s{wp}, s{S_t2}"); I(f"s_addc_u32 s57, s{wp+1}, 0")
        for k in range(8): I(f"s_load_dword s{S_EV}, s[56:57], {k*P + (2048 if att else 512)}")
        if not att:
            I(f"s_mul_i32 s{S_t2}, s{S_j1}, {4*P}"); I(f"s_add_u32 s{S_t2}, s{S_t2}, s{S_t1}")
            I(f"s_add_u32 s56, s{wp}, s{S_t2}"); I(f"s_addc_u32 s57, s{wp+1}, 0")
            for k in range(4): I(f"s_load_dword s{S_EV}, s[56:57], {k*P + 768}")
        I(f"s_lshl_b32 s{S_t0}, s{S_t0}, 2"); I(f"s_add_u32 s{S_t0}, s{S_t0}, s{S_jj}")
        I(f"s_mul_i32 s{S_t1}, s{S_t0}, 1792"); I(f"s_mul_i32 s{S_t2}, s{S_q}, {448*1024}"); I(f"s_add_u32 s{S_t1}, s{S_t1}, s{S_t2}")
        I(f"s_add_u32 s56, s14, s{S_t1}"); I("s_addc_u32 s57, s15, 0")
        for k in range(14): I(f"s_load_dword s{S_EV}, s[56:57], {k*128}")
        I(f"s_lshl_b32 s{S_t1}, s{S_t0}, 9"); I(f"s_lshl_b32 s{S_t2}, s{S_q}, 17"); I(f"s_add_u32 s{S_t1}, s{S_t1}, s{S_t2}")
        I(f"s_add_u32 s56, s8, s{S_t1}"); I("s_addc_u32 s57, s9, 0")
        for k in range(4): I(f"s_load_dword s{S_EV}, s[56:57], {k*128}")
        I("s_waitcnt lgkmcnt(0)")
    l = U("ci")
    I(f"s_cmp_eq_u32 s{S_w}, 0"); I(f"s_cbranch_scc0 {l}")
    e.cond_begin()
    I(f"s_mov_b32 s{S_t1}, 1")
    I("s_waitcnt lgkmcnt(0)")
    I(f"s_atomic_add s{S_t1}, s[{S_DBG}:{S_DBG+1}], 0")
    e.cond_end(); e.label(l)
    stamp("c_go")
    def xfr(p, s): return ar((p * 16 + s) * 4)
    def xf32(s16): return ar(s16 * 4)
    def acc(c, T, p=0):
        base = C_ACC + 32 * (c & 1)
        if att: return base + (T * 2 + p) * 4
        if M: return base + T * 16
        return base + (((T >> 1) * 2 + p) * 2 + (T & 1)) * 4
    def xread(dst, areg, slot, tmp, k):
        base = slot * SLOT
        if base >= 65536:
            I(f"v_add_u32 v{tmp}, {base & ~0xffff}, v{areg}"); areg = tmp
        I(f"ds_read_b128 {dst}, v{areg} offset:{base & 0xffff}", tag=f"w{k}")
    steps = []; nh = [0]
    for i, un in enumerate(subs):
        _, c, u = un; slot = slot_of[un]
        for j in range(16):
            h = j >> 3
            if n16:
                ks = (j >> 1) & 3; T = 2 * h + (j & 1); s = 4 * u + ks; zero = (u == 0 and ks == 0); ta = T
                if c == 3: s = 4 * (u + 2 * h) + ks; ta = j & 1; zero = (u == 0 and h == 0 and ks == 0)
                halo = att and T == 0 and c != 1
                st = dict(rd=(C_WR + (4 if slot >= 4 else 0) + T, (slot & 3) * SLOT + ks * 4096, 512))
                def mf(W, st, s=s, T=ta, zero=zero, c=c, halo=halo):
                    out = []
                    for p in range(2):
                        a, b = (xfr(p, s), W) if (att and c == 2) else (W, xfr(p, s))
                        d = vr(acc(c, T, p))
                        out.append(f"{MF} {d}, {a}, {b}, {'0' if zero else d}")
                    if halo:
                        a, b = (vr(st["hreg"]), W) if c == 2 else (W, vr(st["hreg"]))
                        out.append(f"{MF} {vr(C_HACC)}, {a}, {b}, {'0' if zero else vr(C_HACC)}")
                    return out
                def post(k, st=st, s=s, halo=halo, j=j, c=c, u=u, ks=ks):
                    if c == 0 and j < 8 and j % 2 == 0:
                        for p in range(2): xread(xfr(p, s), C_XR + 2 * p + (ks & 1), slot_of[("x", u, ks >> 1)], 1 + p, k)
                    if att and c == 2 and u == 2 and j == 11 and OPT["u19"]: d_read("Lv3", "chk11")
                    if halo:
                        st["hreg"] = C_HX[nh[0] % 3]; nh[0] += 1
                        I(f"ds_read_b128 {vr(st['hreg'])}, v{C_HA+(s&1)} offset:{(s>>1)*2048}", tag=f"w{k}")
            else:
                kk = j & 7
                if c < 3: s16 = 8 * u + kk; ta = h; zero = (u == 0 and kk == 0)
                else: s16 = 8 * (u + 2 * h) + kk; ta = 0; zero = (u == 0 and j == 0)
                st = dict(rd=(C_WR + (4 if slot >= 4 else 0) + h, (slot & 3) * SLOT + kk * 2048, 512))
                d = vr(acc(c, ta), 16)
                def mf(W, st, s16=s16, d=d, zero=zero): return [f"{M32} {d}, {W}, {xf32(s16)}, {'0' if zero else d}"]
                def post(k, s16=s16, j=j, c=c, u=u, kk=kk):
                    if c == 0 and j < 8: xread(xf32(s16), C_XR + (kk & 3), slot_of[("x", u, kk >> 2)], 1 + (kk & 1), k)
            st["mf"] = mf; st["post"] = post
            if j == 0:
                def pre(i=i):
                    stamp(f"t{i}")
                    if att and i in (8, 9):
                        assert e.lgq[0][0].count(f"exw{i-8}") == (5 if i == 8 else 4)
                        e.wait(lg=f"exw{i-8}")
                    if not att and i - OPT["ackb"] in (0, 1):
                        assert e.vmq[0][0].count(f"st{i-OPT['ackb']}") == 4
                        e.wait(vm=f"st{i-OPT['ackb']}")
                    if i < (10 if att else 14): I("s_barrier")
                    if att and i == 11 and OPT["u19"]: d_check("Lv3", "chk11")
                    stamp(f"s{i}")
                    if att and M and i == 8:
                        for t in range(8): I(f"v_xor_b32 v{C_WR+t}, v19, v{C_WR+t}")
                st["pre"] = pre
            steps.append(st)
    if att: S = Stream(steps, OPT["D"], [32, 36, 40, 44, 48, 52])
    else: S = Stream(steps, OPT["DF"], [32, 36, 40, 44, 48, 52, 56, 60])
    DD = S.D
    def packn(a, n_): return [lambda k=k: I(f"v_cvt_pk_bf16_f32 v{a+k}, v{a+2*k}, v{a+2*k+1}") for k in range(n_)]
    def epi(c, h):
        F = []
        if att:
            for t in (2 * h, 2 * h + 1):
                a = acc(c, t, 0)
                F += packn(a, 4)
                def wr(t=t, a=a):
                    I(f"v_xor_b32 v1, {t*1024}, v{C_EXW}")
                    if c == 1: I(f"v_add_u32 v1, {(QSLOT*SLOT - EXCH_LDS - 4096) & 0xffffffff}, v1")
                    I(f"ds_write_b128 v1, {vr(a)}", tag=f"exw{c}")
                F.append(wr)
            if h == 0 and c != 1:
                def hw():
                    I(f"v_cvt_pk_bf16_f32 v{C_HACC}, v{C_HACC}, v{C_HACC+1}")
                    I(f"v_cvt_pk_bf16_f32 v{C_HACC+1}, v{C_HACC+2}, v{C_HACC+3}")
                    I(f"s_add_u32 s{S_t0}, s{S_m0b}, 4096")
                    I(f"v_subrev_u32 v1, s{S_t0}, v{C_EXW}")
                    I(f"ds_write2_b64 v1, {vr(C_HACC,2)}, {vr(C_HACC,2)} offset0:0 offset1:1", tag=f"exw{c}")
                F.append(hw)
        else:
            a = acc(c, h) if M else acc(c, 2 * h, 0)
            F += packn(a, 8)
            def so():
                I(f"s_lshr_b32 s{S_GIN}, s{S_J32}, {2 if c < 3 else 3}")
                I(f"s_add_u32 s{S_GIN}, s{S_GIN}, s{S_A2}"); I(f"s_add_u32 s{S_GIN}, s{S_GIN}, {(4*c+h)*8192}")
            F.append(so)
            for p in range(2):
                F += [lambda k=k: I(f"v_pk_max_i16 v{k}, v{k}, 0") for k in range(a + 4 * p, a + 4 * p + 4)]
                F.append(cost(9, lambda p=p: I(f"buffer_store_dwordx4 {vr(a+4*p)}, v{V_L16}, {srd(S_WS)}, s{S_GIN} offen offset:{p*1024} sc1", tag=f"st{c}")))
        return F
    n = len(steps)
    for c, i, reuse in ((0, 6, 8), (1, 7, 12), (2, 11, 99)):
        for h in range(2):
            k = 16 * i + 8 * h + 7
            if k == n - 1: continue
            dl = min(16 * reuse + (8 * h if reuse == 8 else 0), n)
            if att and c < 2: dl = 16 * (8 + c) - DD - 3
            S.aft(k, lambda k=k, c=c, h=h, dl=dl: S.add(max(k + (2 if n16 else 4), 16 * 7 - DD + 1 if att else 0), dl, epi(c, h)))
    S.run(OPT["side"] if att else OPT["sidef"])
    stamp("c_end")
    if not att: I("s_barrier")
    for f in (epi(2, 1) if att else epi(3, 0)): f()
    if att:
        e.wait(lg="exw2")
        I("s_barrier")
    if OPT["cprio"] != 2: I(f"s_setprio {OPT['cprio']}")
    rest = [3, 4, 5, 6, 8, 7]
    def cunit():
        g = rest.pop(0); b2_unit(g, 4, g in SIGG)
    if not att:
        assert e.vmq[0][0].count("st2") == 4
        e.wait(vm="st2"); push_group(ownbit(2), (0, 1, 2, 3))
        stamp("c_f2")
        b2_voffs(4)
        if OPT["lowp"]: I("s_setprio 0")
        cunit(); cunit()
    I("s_setprio 2")
    stamp("c_g0")
    I("v_lshrrev_b32 v9, 4, v0")
    if n16:
        I("v_lshlrev_b32 v8, 4, v9")
    else:
        I("v_lshrrev_b32 v8, 5, v0"); I("v_lshlrev_b32 v8, 4, v8")
        I("v_xor_b32 v9, v9, v0"); I("v_and_b32 v9, 1, v9")
        I("v_cmp_eq_u32 vcc, 0, v9")
    NG = 16 if n16 else 32; per = NG // 4
    RB = [32 + 4 * k for k in range(8)]
    def gread(s_):
        if s_ % per == 0:
            I(f"s_add_u32 s{S_t0}, s{S_rot}, {s_//per}"); I(f"s_and_b32 s{S_t0}, s{S_t0}, 3"); I(f"s_lshl_b32 s{S_t0}, s{S_t0}, 8")
            I(f"s_add_u32 s{S_t0}, s{S_t0}, {GW_LDS}")
            I(f"v_add_u32 v10, s{S_t0}, v8")
            if not n16:
                I(f"v_mov_b32 v11, {ZERO_LDS}"); I("v_cndmask_b32 v10, v11, v10, vcc")
        I(f"ds_read_b128 {vr(RB[s_%8])}, v10 offset:{(s_%per)*(64 if n16 else 32)}", tag=f"g{s_}")
    for s_ in range(6): gread(s_)
    if att:
        b2_voffs(4)
        I("s_barrier")
        cunit()
    for s_ in range(NG):
        e.wait(lg=f"g{s_}")
        if n16:
            for p in range(2): I(f"{MF} {vr(64+4*p)}, {vr(RB[s_%8])}, {xfr(p,s_)}, {'0' if s_ == 0 else vr(64+4*p)}")
        else:
            I(f"{MF} {vr(64)}, {vr(RB[s_%8])}, {xf32(s_)}, {'0' if s_ == 0 else vr(64)}")
        if s_ + 6 < NG: gread(s_ + 6)
        if s_ == NG // 2 and rest: cunit()
    if not att:
        e.wait(vm="st3"); push_group(ownbit(3), (0, 1, 2, 3))
        stamp("c_f3")
    cunit()
    z1 = 68 if n16 else 65; G = 72
    T = [f"v_cvt_pk_bf16_f32 v1, v64, v{z1}", f"v_lshlrev_b32 v{G}, 16, v1", f"v_and_b32 v{G+2}, 0xffff0000, v1"]
    T += [f"v_mul_f32 v{G+2*p}, {f2u(-1.4426950408889634)}, v{G+2*p}" for p in range(2)]
    T += [f"v_exp_f32 v{G+2*p}, v{G+2*p}" for p in range(2)]
    T += [f"v_add_f32 v{G+2*p}, 1.0, v{G+2*p}" for p in range(2)]
    T += [f"v_rcp_f32 v{G+2*p}, v{G+2*p}" for p in range(2)]
    T += [f"v_cvt_pk_bf16_f32 v1, v{G}, v{G+2}", f"v_lshlrev_b32 v{G}, 16, v1", f"v_and_b32 v{G+2}, 0xffff0000, v1"]
    T += [f"v_sub_f32 v{G+1+2*p}, 1.0, v{G+2*p}" for p in range(2)]
    T += [f"v_cvt_pk_bf16_f32 v1, v{G+1}, v{G+3}", f"v_lshlrev_b32 v{G+1}, 16, v1", f"v_and_b32 v{G+3}, 0xffff0000, v1"]
    T += [f"v_max_f32 v{G+2*p}, {f2u(2.0**-60)}, v{G+2*p}" for p in range(2)]
    T += [f"v_rcp_f32 v{G+4+p}, v{G+2*p}" for p in range(2)]
    T += [f"v_mul_f32 v{G+1+2*p}, v{G+4+p}, v{G+1+2*p}" for p in range(2)]
    for t in T: I(t)
    I(f"s_lshl_b32 s{S_t0}, s{S_w}, 8"); I(f"s_add_u32 s{S_t0}, s{S_t0}, {GB_LDS}")
    I(f"v_lshl_add_u32 v1, v0, 3, s{S_t0}")
    I("s_mov_b64 exec, 0xffff")
    I(f"ds_write_b64 v1, {vr(G,2)}", tag="gz")
    I(f"ds_write_b64 v1, {vr(G+2,2)} offset:128", tag="gz")
    I("s_mov_b64 exec, -1")
    e.wait(lg="gz")
    if OPT["lowp"]: I("s_setprio 0")
    dsig("G")
    stamp("c_g1")
    while rest:
        throttle(); cunit()
    if OPT["dummy"]:
        I(f"s_lshl_b32 s{S_t0}, s2, 2"); I(f"s_add_u32 s{S_t0}, s{S_t0}, s{S_w}"); I(f"s_mul_i32 s{S_t0}, s{S_t0}, 9216"); I(f"s_add_u32 s{S_t0}, s{S_t0}, {20<<20}")
        for k in range(9):
            I(f"buffer_store_dwordx4 {vr(64)}, v{V_L16}, {srd(S_WS)}, s{S_t0 if OPT['dummy'] == 1 else S_WS+2} offen")
            I(f"s_add_u32 s{S_t0}, s{S_t0}, 1024")
    I("s_waitcnt vmcnt(0) lgkmcnt(0)")
    finish()

c_prog(False)
e.label("L_c_att")
c_prog(True)

e.label("L_end")
I("s_endpgm")
e.raw('.section .rodata,"a"')
e.raw(".p2align 6")
e.raw(f".amdhsa_kernel {NAME}_kernel")
e.raw("  .amdhsa_next_free_vgpr 256")
e.raw("  .amdhsa_next_free_sgpr 102")
e.raw("  .amdhsa_accum_offset 128")
e.raw("  .amdhsa_group_segment_fixed_size 0")
e.raw("  .amdhsa_kernarg_size 80")
e.raw("  .amdhsa_user_sgpr_count 2")
e.raw("  .amdhsa_user_sgpr_kernarg_segment_ptr 1")
e.raw("  .amdhsa_system_sgpr_workgroup_id_x 1")
e.raw(".end_amdhsa_kernel")
sys.stdout.write(e.text())
sys.stderr.write(f"instructions {e.nins} nop-states {e.nops}\n")
```

```python
import sys, struct
from emit import Em

NAME = "gated_mix__sliding_local_dilated__dense_activation_relu__prompt"
OPT = dict(padt=6000, padk=-1, padr=0, stamp=0, D=4, DF=5, D2=5, codepf=1, spin=400000, lround=0, side=2, sidef=2, side2=3,
           ld=6, thr=5, pre=4, pfd=18, ackb=10, cprio=2, dummy=0, sch=1, tm=0, qb=0, rotq=2, spf=2, tearly=0, tB=0, tfull=0, th=6, gap=1, kc=30, kh=52, ko=64, lowp=1, tatt=0, m32=0, fp=8, u19=0, tha=6, of=0, eg=1)
CST = ["s0", "s2", "s4", "s6", "s8", "s10", "s12", "c_end"]
HST = ["h_b0", "h_b7", "h_p2", "h_late", "h_o", "h_own", "h_rcv", "h_sum"]
for a in sys.argv[1:]:
    k, v = a.split("=")
    if k == "cst": CST = v.split(",")
    elif k == "hst": HST = v.split(",")
    else:
        assert k in OPT, k
        OPT[k] = int(v)
STAMP = OPT["stamp"]; M = OPT["m32"]; EG = OPT["eg"]
assert not (M and EG)
if EG: OPT["DF"] = 4
GA_OFF = (9 << 20) + (512 << 10)
def f2u(x): return struct.unpack("<I", struct.pack("<f", x))[0]

PART_OFF = 10 << 20
INB_OFF = 32 << 20
STAMP_OFF = 33 << 20
WS_BYTES = 36 << 20
SLOT = 16384
HALO_LDS = 7 * SLOT
EXCH_LDS = 8 * SLOT
EV_LDS = EXCH_LDS + 20480
ZERO_LDS = EV_LDS + 256
GW_LDS = EV_LDS + 1024
GB_LDS = EV_LDS + 2048
NEG = f2u(-1e30)

e = Em()
I = e.I
def vr(b, n=4): return f"v[{b}:{b+n-1}]"
def ar(b, n=4): return f"a[{b}:{b+n-1}]"
def srd(b): return f"s[{b}:{b+3}]"
MF = "v_mfma_f32_16x16x32_bf16"
M32 = "v_mfma_f32_32x32x16_bf16"

S_X, S_W, S_WS, S_OUT, S_W2, S_WO, S_GW = 24, 28, 32, 36, 40, 44, 48
S_INB = 52; S_DBG = 54
S_w, S_r, S_jj, S_rot, S_q, S_m0b, S_j1 = 60, 61, 62, 63, 64, 65, 66
S_t0, S_t1, S_t2 = 3, 67, 68
S_BUD = 69; S_EV = 70; S_SOFF = 71
S_POLL = 74; S_MYIN = 75; S_CEXP = 76; S_THR = 77; S_W4 = 79
S_KG = 80; S_WK = 84
S_COL = 88; S_A2 = 89; S_B2 = 90; S_BO = 91; S_PB = 92; S_J32 = 93; S_GIN = 94; S_P = 95
S_STAMP = 4
EVD = {}
def evd(name):
    if name not in EVD: EVD[name] = len(EVD)
    assert EVD[name] < 16
    return EVD[name] * 16
role = ["H"]
def stamp(name):
    L = CST if role[0] == "C" else HST
    if name == "end": idx = 8
    elif name in L: idx = L.index(name)
    else: return
    if STAMP == 2 and idx < 4:
        I(f"s_memtime s[{S_STAMP+2*idx}:{S_STAMP+2*idx+1}]"); I(f"s_memrealtime s[{S_STAMP+2*idx+8}:{S_STAMP+2*idx+9}]")
    elif STAMP == 3: I(f"s_memrealtime s[{S_STAMP+2*idx}:{S_STAMP+2*idx+1}]")
    elif STAMP: I(f"s_memtime s[{S_STAMP+2*idx}:{S_STAMP+2*idx+1}]")
uid = [0]
def U(p):
    uid[0] += 1
    return f"L_{p}{uid[0]}"
def reset():
    e.vmq = [[[], 0]]; e.lgq = [[[], 0]]; e.hist = []
V_L16 = 16; V_EVW = 17; V_CHK = 3
SLOW = []
def flush_slow():
    for l in SLOW: e.raw(l)
    SLOW.clear()
def spin_tail(lp, ok):
    return [f"    s_sub_u32 s{S_BUD}, s{S_BUD}, 1", f"    s_cbranch_scc0 {lp}", f"    s_mov_b32 s{S_BUD}, 0", f"    s_branch {ok}"]
def dsig(name):
    I(f"s_add_u32 m0, s{S_W4}, {EV_LDS + evd(name)}")
    I("s_mov_b64 exec, 1")
    I(f"buffer_load_dword v{V_L16}, {srd(S_WO)}, s{S_WO+2} offen lds", tag="dsig")
    I("s_mov_b64 exec, -1")
def d_read(name, tag): I(f"ds_read_b32 v{V_CHK}, v{V_EVW} offset:{evd(name)}", tag=tag)
def d_check(name, tag):
    ok = U("ok"); lp = U("sp")
    e.wait(lg=tag)
    I(f"v_cmp_ne_u32 vcc, 0, v{V_CHK}")
    I(f"s_cbranch_vccnz {lp}")
    e.label(ok)
    SLOW.extend([f"{lp}:", f"    ds_read_b32 v{V_CHK}, v{V_EVW} offset:{evd(name)}", "    s_waitcnt lgkmcnt(0)", f"    v_cmp_ne_u32 vcc, 0, v{V_CHK}",
                 f"    s_cbranch_vccz {ok}", "    s_sleep 1"] + spin_tail(lp, ok))
def throttle():
    n = OPT["thr"]
    I(f"s_waitcnt vmcnt({n})")
    for q in e.vmq: q[1] = max(q[1], len(q[0]) - n)
def poll_load():
    I(f"s_load_dword s{S_POLL}, s[{S_INB}:{S_INB+1}], s{S_MYIN} glc")
def poll_check(mask):
    ok = U("pk"); lp = U("pl")
    I(f"s_andn2_b32 s{S_EV}, {mask}, s{S_POLL}")
    I(f"s_cbranch_scc1 {lp}")
    e.label(ok)
    SLOW.extend([f"{lp}:", "    s_waitcnt lgkmcnt(0)", f"    s_andn2_b32 s{S_EV}, {mask}, s{S_POLL}", f"    s_cbranch_scc0 {ok}",
                 f"    s_load_dword s{S_POLL}, s[{S_INB}:{S_INB+1}], s{S_MYIN} glc"] + spin_tail(lp, ok))
def push_group(bit_fn, ds):
    bit_fn()
    for d in ds:
        I(f"s_xor_b32 s{S_t0}, s{S_MYIN}, {d*512}")
        I(f"s_atomic_or s{S_t2}, s[{S_INB}:{S_INB+1}], s{S_t0}")
def ownbit(b):
    def f():
        I(f"s_lshl_b32 s{S_t2}, s{S_jj}, 2"); I(f"s_lshl_b32 s{S_t2}, {1<<b}, s{S_t2}")
    return f
def mk_srd(b, p, nbytes):
    I(f"s_mov_b32 s{b}, s{p}")
    I(f"s_and_b32 s{b+1}, s{p+1}, 0xffff")
    I(f"s_mov_b32 s{b+2}, {nbytes}")
    I(f"s_mov_b32 s{b+3}, 0x20000")
def b2_voffs(dst):
    I("v_lshrrev_b32 v1, 3, v0")
    if M:
        I("v_bfe_u32 v2, v0, 4, 1")
        I("v_lshlrev_b32 v2, 2, v2")
    else:
        I("v_lshrrev_b32 v2, 4, v0")
        I("v_lshlrev_b32 v2, 1, v2")
    I(f"v_and_b32 v{dst}, 7, v0")
    I(f"v_xor_b32 v{dst}, v{dst}, v2")
    I(f"v_lshlrev_b32 v{dst}, 4, v{dst}")
    I(f"v_lshl_add_u32 v{dst}, v1, 10, v{dst}")
    for i in range(1, 4): I(f"v_add_u32 v{dst+i}, {i*7168}, v{dst}")
def late_scalars():
    I(f"s_lshl_b32 s{S_W4}, s{S_w}, 2")
    I(f"s_mov_b32 s{S_BUD}, {OPT['spin']}")
    I(f"s_and_b32 s{S_j1}, s{S_jj}, 1")
    I(f"s_lshl_b32 s{S_t0}, s{S_jj}, 8")
    I(f"s_lshr_b32 s{S_t1}, s{S_w}, 1")
    I(f"s_lshl_b32 s{S_t1}, s{S_t1}, 7")
    I(f"s_add_u32 s{S_t0}, s{S_t0}, s{S_t1}")
    I(f"s_and_b32 s{S_t1}, s{S_w}, 1")
    I(f"s_lshl_b32 s{S_t1}, s{S_t1}, 15")
    I(f"s_add_u32 s{S_t0}, s{S_t0}, s{S_t1}")
    I(f"s_mul_i32 s{S_B2}, s{S_q}, {14*32768}")
    I(f"s_add_u32 s{S_B2}, s{S_B2}, s{S_t0}")
    I(f"s_lshl_b32 s{S_BO}, s{S_q}, 17")
    I(f"s_add_u32 s{S_BO}, s{S_BO}, s{S_t0}")
    I(f"s_lshl_b32 s{S_J32}, s{S_j1}, 16")
    I(f"s_lshl_b32 s{S_t0}, s{S_r}, 2")
    I(f"s_add_u32 s{S_t0}, s{S_t0}, s{S_q}")
    I(f"s_mul_i32 s{S_A2}, s{S_t0}, {18*8192}")
    I(f"s_lshl_b32 s{S_t1}, s{S_w}, 11")
    I(f"s_add_u32 s{S_A2}, s{S_A2}, s{S_t1}")
    I(f"s_lshl_b32 s{S_MYIN}, s{S_t0}, 2")
    I(f"s_add_u32 s{S_MYIN}, s{S_MYIN}, s{S_jj}")
    I(f"s_lshl_b32 s{S_MYIN}, s{S_MYIN}, 2")
    I(f"s_add_u32 s{S_MYIN}, s{S_MYIN}, s{S_w}")
    I(f"s_lshl_b32 s{S_MYIN}, s{S_MYIN}, 7")
    I(f"v_lshlrev_b32 v{V_L16}, 4, v0")
    I(f"v_and_b32 v{V_EVW}, 3, v0")
    I(f"v_lshlrev_b32 v{V_EVW}, 2, v{V_EVW}")
    I(f"v_add_u32 v{V_EVW}, {EV_LDS}, v{V_EVW}")
def common_ptrs():
    I(f"s_add_u32 s{S_INB}, s22, {INB_OFF}")
    I(f"s_addc_u32 s{S_INB+1}, s23, 0")
    I(f"s_lshl_b32 s{S_t0}, s{S_r}, 4")
    I(f"s_add_u32 s{S_DBG}, s20, s{S_t0}")
    I(f"s_addc_u32 s{S_DBG+1}, s21, 0")
    mk_srd(S_WS, 22, WS_BYTES)
    mk_srd(S_W2, 14, 1792 * 1024)
    mk_srd(S_WO, 8, 512 * 1024)
def dma4(voff, srdb, tag):
    for i in range(4):
        I(f"buffer_load_dwordx4 v{voff+i}, {srd(srdb)}, s{S_SOFF} offen offset:{i*1024} lds", tag=tag)
def b2_unit(g, voff, sig=True):
    I(f"s_add_u32 m0, s{S_m0b}, {g*SLOT}")
    if g < 7: I(f"s_add_u32 s{S_SOFF}, s{S_B2}, {g*65536}")
    else:
        I(f"s_xor_b32 s{S_SOFF}, s{S_J32}, {((g-7)^1)*65536}")
        I(f"s_add_u32 s{S_SOFF}, s{S_SOFF}, s{S_BO}")
    dma4(voff, S_W2 if g < 7 else S_WO, f"b{g}")
    if sig: dsig(f"Lb{g}")
def a2_soff(lam, dst):
    if lam < 14: I(f"s_add_u32 s{dst}, s{S_A2}, {lam*8192}")
    else:
        I(f"s_lshr_b32 s{dst}, s{S_J32}, 2"); I(f"s_xor_b32 s{dst}, s{dst}, {((lam-14)^2)*8192}")
        I(f"s_add_u32 s{dst}, s{dst}, s{S_A2}"); I(f"s_add_u32 s{dst}, s{dst}, {14*8192}")
def after_karg():
    I("s_waitcnt lgkmcnt(0)")
    if STAMP:
        I("s_memtime s[100:101]")
        I("s_mov_b32 s72, s96")
        I("s_mov_b32 s73, s98")
def finish():
    if STAMP:
        I("s_waitcnt vmcnt(0)")
        stamp("end")
        I("s_memrealtime s[22:23]")
        I("s_waitcnt lgkmcnt(0)")
        I(f"s_lshl_b32 s{S_t0}, s2, 3")
        I(f"s_add_u32 s{S_t0}, s{S_t0}, s{S_w}")
        if role[0] == "H": I(f"s_add_u32 s{S_t0}, s{S_t0}, 4")
        I(f"s_lshl_b32 s{S_t0}, s{S_t0}, 6")
        I(f"s_add_u32 s{S_t0}, s{S_t0}, {STAMP_OFF}")
        I(f"v_mov_b32 v2, s{S_t0}")
        for k in range(9): I(f"v_mov_b32 v{32+k}, s{S_STAMP+2*k}")
        I("v_mov_b32 v41, s73"); I("v_mov_b32 v42, s22"); I("v_mov_b32 v43, s72"); I("v_mov_b32 v44, s100")
        I(f"v_mov_b32 v45, s{S_BUD}"); I("v_mov_b32 v46, 0")
        I("s_mov_b64 exec, 1")
        for k in range(4): I(f"buffer_store_dwordx4 {vr(32+4*k)}, v2, {srd(S_WS)}, 0 offen offset:{16*k}")
    if STAMP >= 3:
        if OPT["padk"] >= 0 and (OPT["padr"] == 1) == (role[0] == "H"):
            I(f"s_sub_u32 s24, s{S_STAMP+2*OPT['padk']}, s{73 if STAMP == 3 else 72}")
            if STAMP == 4: I("s_lshr_b32 s24, s24, 4")
        else: I("s_mov_b32 s24, 0")
        I(f"s_add_u32 s24, s24, {OPT['padt']}")
        l = U("pad")
        e.label(l)
        I("s_memrealtime s[26:27]"); I("s_waitcnt lgkmcnt(0)"); I("s_sub_u32 s25, s26, s73"); I("s_cmp_lt_u32 s25, s24"); I(f"s_cbranch_scc1 {l}")
    I("s_endpgm")
    flush_slow()
def units(att):
    L = []
    for u in range(4): L += [("x", u, 0), ("x", u, 1), ("g", 0, u), ("g", 1, u)]
    L += [("g", 2, u) for u in range(4)]
    if not att: L += [("g", 3, 0), ("g", 3, 1)]
    return L
def phys(att, k):
    if not att: return (k - 14) % 9
    i = (k - 13) % 8
    return 8 if i == 7 else i
QSLOT = phys(True, 13)
SIGG = (2, 3, 4, 6, 7)
CHKG = {2: 2, 3: 3, 4: 4, 5: 6, 6: 6, 8: 7, 7: 7}

class Stream:
    def __init__(self, steps, depth, ring):
        self.steps = steps; self.side = []; self.after = {}; self.D = depth; self.ring = ring
        assert len(ring) >= depth + 2
    def add(self, ready, deadline, fns):
        for f in fns: self.side.append([ready, deadline, f])
    def aft(self, k, f):
        prev = self.after.get(k)
        self.after[k] = (lambda: (prev(), f())) if prev else f
    def issue(self, k, half):
        st = self.steps[k]
        b = self.ring[k % len(self.ring)]
        a, off, d2 = st["rd"]
        if half == 0:
            if "pre" in st: st["pre"]()
            I(f"ds_read_b64_tr_b16 {vr(b,2)}, v{a} offset:{off}", tag=f"w{k}")
        else:
            I(f"ds_read_b64_tr_b16 {vr(b+2,2)}, v{a} offset:{off+d2}", tag=f"w{k}")
            if "post" in st: st["post"](k)
    def pump(self, k, n):
        c = 0
        while self.side and c < n and self.side[0][0] <= k:
            r = self.side.pop(0)[2]()
            c += r if isinstance(r, int) else 1
    def run(self, rate):
        n = len(self.steps); D = self.D
        for k in range(min(D, n)):
            self.issue(k, 0); self.issue(k, 1)
        for k in range(n):
            st = self.steps[k]
            while any(s[1] <= k for s in self.side): self.side.pop(0)[2]()
            if "need" in st: st["need"]()
            if k % 2 == 0 and k + 1 < n: e.wait(lg=f"w{k+1}")
            e.wait(lg=f"w{k}")
            mfs = st["mf"](vr(self.ring[k % len(self.ring)]), st)
            I(mfs[0])
            if k + D < n: self.issue(k + D, 0)
            if len(mfs) > 1:
                self.pump(k, (rate + 1) // 2)
                I(mfs[1])
            if k + D < n: self.issue(k + D, 1)
            for m in mfs[2:]: I(m)
            self.pump(k, rate // 2 if len(mfs) > 1 else rate)
            if k in self.after: self.after[k]()
            stamp(f"k{k}")
        while self.side: self.side.pop(0)[2]()
def cost(n, f):
    def g():
        f(); return n
    return g

def vtouch(att, dst=22):
    P = 3072 if att else 3584; wp = 6 if att else 12
    if dst == 22: mk_srd(S_W, wp, 512 * P)
    I(f"s_lshl_b32 s{S_t0}, s{S_r}, 2"); I(f"s_add_u32 s{S_t0}, s{S_t0}, s{S_w}")
    I(f"s_mul_i32 s{S_t1}, s{S_t0}, {8*P}")
    I(f"s_mul_i32 s{S_t2}, s{S_q}, {256 if att else 896}"); I(f"s_add_u32 s{S_t1}, s{S_t1}, s{S_t2}")
    I("v_and_b32 v1, 7, v0"); I(f"v_mul_u32_u24 v1, {P}, v1")
    I(f"s_lshl_b32 s{S_t2}, s{S_j1}, 7"); I(f"s_add_u32 s{S_t2}, s{S_t2}, s{S_t1}")
    I("v_lshlrev_b32 v2, 7, v0")
    I("s_mov_b64 exec, 0xff")
    I(f"buffer_load_dword v{dst}, v1, {srd(S_W)}, s{S_t2} offen offset:{2048 if att else 512}")
    if OPT["tB"]: I(f"buffer_load_dword v{dst}, v1, {srd(S_W)}, s{S_t2} offen offset:{0 if att else 256}")
    if not att:
        I(f"s_mul_i32 s{S_t2}, s{S_j1}, {4*P}"); I(f"s_add_u32 s{S_t2}, s{S_t2}, s{S_t1}")
        I("s_mov_b64 exec, 0xf")
        I(f"buffer_load_dword v{dst}, v1, {srd(S_W)}, s{S_t2} offen offset:768")
    I(f"s_lshl_b32 s{S_t0}, s{S_t0}, 2"); I(f"s_add_u32 s{S_t0}, s{S_t0}, s{S_jj}")
    F_ = 2 if OPT["tfull"] else 1
    if OPT["tfull"]: I(f"s_and_b32 s{S_t0}, s{S_t0}, 127"); I(f"s_lshl_b32 s{S_t0}, s{S_t0}, 1")
    I(f"s_mul_i32 s{S_t1}, s{S_t0}, 1792"); I(f"s_mul_i32 s{S_t2}, s{S_q}, {448*1024}"); I(f"s_add_u32 s{S_t1}, s{S_t1}, s{S_t2}")
    I(f"s_mov_b64 exec, {(1 << (14*F_)) - 1}")
    I(f"buffer_load_dword v{dst}, v2, {srd(S_W2)}, s{S_t1} offen")
    I(f"s_lshl_b32 s{S_t1}, s{S_t0}, 9"); I(f"s_lshl_b32 s{S_t2}, s{S_q}, 17"); I(f"s_add_u32 s{S_t1}, s{S_t1}, s{S_t2}")
    I(f"s_mov_b64 exec, {(1 << (4*F_)) - 1}")
    I(f"buffer_load_dword v{dst}, v2, {srd(S_WO)}, s{S_t1} offen")
    I("s_mov_b64 exec, -1")
def gate_math(z0, z1, G, tmp):
    T = [f"v_cvt_pk_bf16_f32 v{tmp}, v{z0}, v{z1}", f"v_lshlrev_b32 v{G}, 16, v{tmp}", f"v_and_b32 v{G+2}, 0xffff0000, v{tmp}"]
    T += [f"v_mul_f32 v{G+2*p}, {f2u(-1.4426950408889634)}, v{G+2*p}" for p in range(2)]
    T += [f"v_exp_f32 v{G+2*p}, v{G+2*p}" for p in range(2)]
    T += [f"v_add_f32 v{G+2*p}, 1.0, v{G+2*p}" for p in range(2)]
    T += [f"v_rcp_f32 v{G+2*p}, v{G+2*p}" for p in range(2)]
    T += [f"v_cvt_pk_bf16_f32 v{tmp}, v{G}, v{G+2}", f"v_lshlrev_b32 v{G}, 16, v{tmp}", f"v_and_b32 v{G+2}, 0xffff0000, v{tmp}"]
    T += [f"v_sub_f32 v{G+1+2*p}, 1.0, v{G+2*p}" for p in range(2)]
    T += [f"v_cvt_pk_bf16_f32 v{tmp}, v{G+1}, v{G+3}", f"v_lshlrev_b32 v{G+1}, 16, v{tmp}", f"v_and_b32 v{G+3}, 0xffff0000, v{tmp}"]
    T += [f"v_max_f32 v{G+2*p}, {f2u(2.0**-60)}, v{G+2*p}" for p in range(2)]
    T += [f"v_rcp_f32 v{G+4+p}, v{G+2*p}" for p in range(2)]
    T += [f"v_mul_f32 v{G+1+2*p}, v{G+4+p}, v{G+1+2*p}" for p in range(2)]
    return T
def vtouch2():
    I(f"s_lshl_b32 s{S_t0}, s{S_r}, 2"); I(f"s_add_u32 s{S_t0}, s{S_t0}, s{S_w}")
    I(f"s_lshl_b32 s{S_t0}, s{S_t0}, 1"); I(f"s_add_u32 s{S_t0}, s{S_t0}, s{S_j1}")
    I("v_lshlrev_b32 v2, 7, v0")
    I(f"s_mul_i32 s{S_t1}, s{S_t0}, 3584"); I(f"s_mul_i32 s{S_t2}, s{S_q}, {448*1024}"); I(f"s_add_u32 s{S_t1}, s{S_t1}, s{S_t2}")
    I(f"s_mov_b64 exec, {(1 << 28) - 1}")
    I(f"buffer_load_dword v{30 if M else 18}, v2, {srd(S_W2)}, s{S_t1} offen")
    I(f"s_lshl_b32 s{S_t1}, s{S_t0}, 10"); I(f"s_lshl_b32 s{S_t2}, s{S_q}, 17"); I(f"s_add_u32 s{S_t1}, s{S_t1}, s{S_t2}")
    I("s_mov_b64 exec, 0xff")
    I(f"buffer_load_dword v{30 if M else 18}, v2, {srd(S_WO)}, s{S_t1} offen")
    I("s_mov_b64 exec, -1")
e.raw(f"; @launch grid=(256,1,1) block=(512,1,1) lds=163840")
e.raw('.amdgcn_target "amdgcn-amd-amdhsa--gfx950"')
e.raw(".text")
e.raw(f".globl {NAME}_kernel")
e.raw(".p2align 8")
e.raw(f".type {NAME}_kernel,@function")
e.label(f"{NAME}_kernel")
I("s_load_dwordx16 s[4:19], s[0:1], 0")
I("s_load_dwordx4 s[20:23], s[0:1], 64")
if STAMP:
    I("s_memrealtime s[98:99]")
    I("s_memtime s[96:97]")
I("v_lshrrev_b32 v1, 6, v0")
I("s_cmp_ge_u32 s2, 256")
I("s_cbranch_scc1 L_end")
I(f"v_readfirstlane_b32 s{S_t2}, v1")
I("v_and_b32 v0, 63, v0")
I(f"s_bfe_u32 s{S_q}, s2, 0x20001")
I(f"s_and_b32 s{S_t0}, s2, 1")
I(f"s_lshl_b32 s{S_t0}, s{S_t0}, 3")
I(f"s_bfe_u32 s{S_r}, s2, 0x30003")
I(f"s_or_b32 s{S_r}, s{S_r}, s{S_t0}")
I(f"s_lshr_b32 s{S_jj}, s2, 6")
if OPT["rotq"] == 2:
    I(f"s_lshr_b32 s{S_rot}, s{S_t0}, 2")
    I(f"s_add_u32 s{S_rot}, s{S_rot}, s{S_q}")
    I(f"s_and_b32 s{S_t0}, s{S_r}, 1")
    I(f"s_add_u32 s{S_rot}, s{S_rot}, s{S_t0}")
elif OPT["rotq"]: I(f"s_add_u32 s{S_rot}, s{S_r}, s{S_q}")
else: I(f"s_mov_b32 s{S_rot}, s{S_r}")
I(f"s_and_b32 s{S_w}, s{S_t2}, 3")
I(f"s_lshl_b32 s{S_m0b}, s{S_w}, 12")
I(f"s_cmp_lt_u32 s{S_t2}, 4")
I("s_cbranch_scc1 L_C")

H_XD = 4; H_WD = 8; H_BD = 12; H_ACC = 64
H_G = 18 if M else 20; H_BR = 20 if M else 24
H_RING = [32, 36, 40, 44, 48, 52, 24, 28] if M else [32, 36, 40, 44, 48, 52, 12]
def a2r(lam, p):
    if lam < 16: return ar(lam * 8 + p * 4)
    return vr((56 if lam == 16 else 4) + p * 4)
I("s_setprio 3")
I("v_lshrrev_b32 v32, 4, v0")
I("v_lshrrev_b32 v36, 3, v0")
I("v_and_b32 v37, 7, v0")
I("v_xor_b32 v39, v37, v32")
I("v_lshlrev_b32 v39, 4, v39")
I(f"v_lshl_add_u32 v{H_XD}, v36, 11, v39")
I(f"v_xor_b32 v{H_XD+1}, 64, v{H_XD}")
I(f"v_add_u32 v{H_XD+2}, {14*1024}, v{H_XD+1}")
I(f"v_add_u32 v{H_XD+3}, {14*1024}, v{H_XD}")
I(f"s_lshl_b32 s{S_t0}, s{S_r}, 17")
I(f"s_lshl_b32 s{S_t1}, s{S_w}, 15")
I(f"s_add_u32 s{S_t0}, s{S_t0}, s{S_t1}")
for g4 in range(4):
    I(f"s_add_u32 s{S_WK+g4}, s{S_rot}, {g4}")
    I(f"s_and_b32 s{S_WK+g4}, s{S_WK+g4}, 3")
    I(f"s_lshl_b32 s{S_KG+g4}, s{S_WK+g4}, 8")
    I(f"s_add_u32 s{S_KG+g4}, s{S_KG+g4}, s{S_t0}")
I(f"s_mov_b32 s{S_X+2}, {2048*1024}")
I(f"s_mov_b32 s{S_X+3}, 0x20000")
assert phys(False, 0) == 4 and phys(False, 1) == 5 and phys(True, 0) == 3 and phys(True, 1) == 4 and phys(False, 2) == 6 and phys(True, 2) == 5
I(f"s_cmp_ge_u32 s{S_jj}, 2")
I(f"s_cselect_b32 s{S_t2}, 3, 4")
I(f"s_mov_b32 s{S_W+2}, {512*3584}")
I(f"s_cmov_b32 s{S_W+2}, {512*3072}")
I(f"s_mov_b32 s{S_P}, 3584")
I(f"s_cmov_b32 s{S_P}, 3072")
I(f"s_lshl_b32 s{S_t2}, s{S_t2}, 14")
I(f"s_add_u32 s{S_t2}, s{S_t2}, s{S_m0b}")
I(f"s_mov_b32 m0, s{S_t2}")
I(f"s_add_u32 s{S_SOFF}, s{S_KG}, 128")
after_karg()
I(f"s_mov_b32 s{S_X}, s4")
I(f"s_and_b32 s{S_X+1}, s5, 0xffff")
for i in range(4): I(f"buffer_load_dwordx4 v{H_XD+i}, {srd(S_X)}, s{S_KG} offen offset:{i*1024} lds", tag="u0")
I(f"s_add_u32 m0, s{S_t2}, {SLOT}")
I(f"s_mov_b32 s{S_W+3}, 0x20000")
dma4(H_XD, S_X, "u1")
I(f"s_lshl_b32 s{S_t0}, s{S_w}, 5")
I(f"v_add_u32 v38, s{S_t0}, v36")
I(f"v_mul_lo_u32 v38, v38, s{S_P}")
I(f"s_mul_i32 s{S_COL}, s{S_q}, 896")
I(f"s_lshl_b32 s{S_t0}, s{S_q}, 8")
I(f"s_add_u32 s{S_t0}, s{S_t0}, {1024-256}")
I(f"s_cmp_ge_u32 s{S_jj}, 2")
I(f"s_cselect_b32 s{S_W}, s6, s12")
I(f"s_cselect_b32 s{S_W+1}, s7, s13")
I(f"s_cselect_b32 s{S_COL}, s{S_t0}, s{S_COL}")
I(f"s_cselect_b32 s{S_t0}, 1, {2 if M else 1}")
I(f"s_cselect_b32 s{S_t1}, 64, {0 if M else 64}")
I(f"s_and_b32 s{S_W+1}, s{S_W+1}, 0xffff")
I("v_and_b32 v39, 1, v32")
I(f"v_lshlrev_b32 v39, s{S_t0}, v39")
I("v_xor_b32 v39, v39, v37")
I("v_lshlrev_b32 v39, 4, v39")
I(f"v_add_u32 v{H_WD}, v38, v39")
I(f"v_xor_b32 v39, s{S_t1}, v39")
I(f"s_lshl_b32 s{S_t0}, s{S_P}, 3")
I(f"s_sub_u32 s{S_t0}, s{S_t0}, 1024")
I(f"v_add3_u32 v{H_WD+1}, v38, v39, s{S_t0}")
I(f"s_lshl_b32 s{S_t0}, s{S_t0}, 1")
I(f"v_add_u32 v{H_WD+2}, s{S_t0}, v{H_WD}")
I(f"v_add_u32 v{H_WD+3}, s{S_t0}, v{H_WD+1}")
I(f"s_lshl_b32 s{S_t0}, s{S_jj}, 7")
I(f"s_add_u32 s{S_COL}, s{S_COL}, s{S_t0}")
I(f"s_lshl_b32 s{S_t1}, s{S_P}, 7")
for g4 in range(4): I(f"s_mul_i32 s{S_WK+g4}, s{S_WK+g4}, s{S_t1}")
I(f"s_add_u32 m0, s{S_t2}, {2*SLOT}")
I(f"s_add_u32 s{S_SOFF}, s{S_WK}, s{S_COL}")
dma4(H_WD, S_W, "u2")
common_ptrs()
mk_srd(S_OUT, 18, 2048 * 1024)
mk_srd(S_GW, 16, 1024)
I(f"s_cmp_ge_u32 s{S_jj}, 2")
I("s_cbranch_scc1 L_h_att")
snapH = e.snapshot()

def h_prog(att):
    e.restore(snapH); e.hist = []
    UL = units(att)
    CH = [0, -1024, 1024] if att else [0, 256, 512]
    def issue(k):
        un = UL[k]
        I(f"s_add_u32 m0, s{S_m0b}, {phys(att,k)*SLOT}")
        if un[0] == "x":
            I(f"s_add_u32 s{S_SOFF}, s{S_KG+un[1]}, {un[2]*128}")
            dma4(H_XD, S_X, f"u{k}")
            if att and un[2] == 1: halo(un[1], f"u{k}")
            return
        _, c, u = un
        if c < 3:
            I(f"s_add_u32 s{S_SOFF}, s{S_WK+u}, s{S_COL}")
            if CH[c]: I(f"s_add_i32 s{S_SOFF}, s{S_SOFF}, {CH[c]}")
        else:
            KH = 256 * 3584
            if u == 0:
                I("v_lshrrev_b32 v2, 2, v0")
                if M:
                    I("v_lshrrev_b32 v1, 4, v0")
                    I("v_xor_b32 v2, v2, v1")
                I("v_and_b32 v2, 1, v2")
                I(f"v_mul_u32_u24 v1, {KH-64}, v2")
                for i in (0, 2): I(f"v_add_u32 v{H_WD+i}, v{H_WD+i}, v1")
                if not M: I(f"v_sub_u32 v1, {KH-64}, v1")
                for i in (1, 3): I(f"v_add_u32 v{H_WD+i}, v{H_WD+i}, v1")
                I(f"v_mul_u32_u24 v2, {2*KH}, v2")
                I(f"v_sub_u32 v{H_XD}, {KH}, v2")
                I(f"s_cmp_ge_u32 s{S_WK}, {KH}")
                I(f"s_cselect_b32 s{S_t0}, 1, 0")
            else:
                I(f"s_cmp_ge_u32 s{S_WK}, {KH}")
                I(f"s_cselect_b32 s{S_t1}, 1, 0")
                I(f"s_cmp_ge_u32 s{S_WK+1}, {KH}")
                I(f"s_cselect_b32 s{S_t0}, 1, 0")
                I(f"s_sub_u32 s{S_t0}, s{S_t0}, s{S_t1}")
            I(f"s_sub_u32 s{S_t1}, 0, s{S_t0}")
            for i in range(4): I(f"v_mad_i32_i24 v{H_WD+i}, v{H_XD}, s{S_t0 if (M or i % 2 == 0) else S_t1}, v{H_WD+i}")
            I(f"s_min_u32 s{S_SOFF}, s{S_WK+u}, s{S_WK+u+2}")
            I(f"s_add_u32 s{S_SOFF}, s{S_SOFF}, s{S_COL}")
            I(f"s_lshl_b32 s{S_t0}, s{S_jj}, 6")
            I(f"s_sub_u32 s{S_SOFF}, s{S_SOFF}, s{S_t0}")
            I(f"s_add_u32 s{S_SOFF}, s{S_SOFF}, 768")
        dma4(H_WD, S_W, f"u{k}")
    def w0(f):
        l = U("w0")
        I(f"s_cmp_eq_u32 s{S_w}, 0"); I(f"s_cbranch_scc0 {l}")
        e.cond_begin(); f(); e.cond_end(); e.label(l)
    def peer_issue(): w0(lambda: I(f"s_load_dword s{S_POLL}, s[{S_DBG}:{S_DBG+1}], 0 glc"))
    def peer():
        def f():
            lp = U("pp"); ok = U("po")
            I("s_waitcnt lgkmcnt(0)")
            I(f"s_cmp_ge_u32 s{S_POLL}, 16")
            I(f"s_cbranch_scc0 {lp}")
            e.label(ok)
            SLOW.extend([f"{lp}:", "    s_sleep 8", f"    s_load_dword s{S_POLL}, s[{S_DBG}:{S_DBG+1}], 0 glc", "    s_waitcnt lgkmcnt(0)",
                         f"    s_cmp_ge_u32 s{S_POLL}, 16", f"    s_cbranch_scc1 {ok}"] + spin_tail(lp, ok))
        w0(f)
        I(f"s_mov_b32 s{S_POLL}, 0")
    V_Q = 64; V_S = 96; V_BIAS = 32; V_RINV = 40; V_T = 48; A_KV = 64; A_ONES = 96; V_AD = 24 if M else 56
    def att_setup(part):
        if part == 0:
            I(f"s_add_u32 s{S_t0}, s{S_m0b}, {EXCH_LDS+4096}")
            I(f"v_add_u32 v{V_AD}, s{S_t0}, v{V_L16}")
            I("v_bfe_u32 v1, v0, 3, 1")
            I("v_lshlrev_b32 v1, 12, v1")
            I(f"v_sub_u32 v{V_AD+2}, v{V_AD}, v1")
            I("v_xor_b32 v1, 4096, v1")
            I(f"v_sub_u32 v{V_AD+1}, v{V_AD}, v1")
            I("v_lshrrev_b32 v1, 5, v0")
            I("v_lshlrev_b32 v1, 12, v1")
            I(f"v_sub_u32 v{V_AD+4}, v{V_AD}, v1")
            I("v_xor_b32 v1, 4096, v1")
            I(f"v_sub_u32 v{V_AD+3}, v{V_AD}, v1")
            I(f"v_add_u32 v{V_AD+5}, {(QSLOT*SLOT - EXCH_LDS - 4096) & 0xffffffff}, v{V_AD}")
            I(f"s_mov_b32 s{S_CEXP}, {f2u(0.25*1.4426950408889634)}")
            I(f"s_or_b32 s{S_t0}, s{S_r}, s{S_w}")
            I(f"s_cmp_eq_u32 s{S_t0}, 0")
            I(f"s_cselect_b32 s{S_THR}, -16, -9")
            I(f"v_mov_b32 v{V_T}, 0x3f803f80")
            for k in range(4): I(f"v_accvgpr_write_b32 a{A_ONES+k}, v{V_T}")
            I(f"v_mov_b32 v{V_T}, {NEG}")
            I(f"v_and_b32 v{V_T+1}, 15, v0")
            I(f"v_lshrrev_b32 v{V_T+2}, 4, v0")
            I(f"v_lshlrev_b32 v{V_T+2}, 2, v{V_T+2}")
        elif part in (1, 2):
            p = part - 1; x8 = 8 if p == 0 else 0
            I(f"v_xor_b32 v{V_T+3}, {x8}, v{V_T+1}")
            I(f"v_xor_b32 v{V_T+4}, {x8}, v{V_T+2}")
            I(f"v_sub_u32 v{V_T+3}, v{V_T+3}, v{V_T+4}")
            for r in range(4):
                I(f"v_subrev_u32 v{V_T+4}, {r}, v{V_T+3}")
                I(f"v_cmp_lt_u32 vcc, 7, v{V_T+4}")
                I(f"v_cmp_lt_i32 s[56:57], s{S_THR}, v{V_T+4}")
                I("s_and_b64 vcc, vcc, s[56:57]")
                I(f"v_cndmask_b32 v{V_BIAS+p*4+r}, 0, v{V_T}, vcc")
        else:
            for k in range(16): I(f"v_mov_b32 v{V_Q+16*(part-3)+k}, 0")
            I("s_mov_b32 s56, 0xff00ff00"); I("s_mov_b32 s57, 0xff00ff00")
            I("s_not_b64 s[58:59], s[56:57]")
    def br_setup():
        if M:
            I("v_bfe_u32 v1, v0, 2, 2")
            I("v_lshrrev_b32 v2, 5, v0")
            I("v_lshl_add_u32 v1, v2, 2, v1")
            I("v_lshlrev_b32 v1, 7, v1")
            I("v_bfe_u32 v2, v0, 4, 1")
            I("v_lshl_add_u32 v1, v2, 5, v1")
            I("v_bfe_u32 v2, v0, 3, 1")
            I("v_lshl_add_u32 v1, v2, 6, v1")
        else:
            I("v_lshrrev_b32 v1, 2, v0")
            I("v_bfe_u32 v2, v0, 3, 2")
            I("v_lshlrev_b32 v1, 7, v1")
            I("v_lshl_add_u32 v1, v2, 5, v1")
        I("v_and_b32 v2, 3, v0")
        I("v_lshl_add_u32 v1, v2, 3, v1")
        I(f"s_lshr_b32 s{S_t0}, s{S_q}, 1")
        I(f"s_lshl_b32 s{S_t0}, s{S_t0}, 13")
        I(f"s_and_b32 s{S_t1}, s{S_q}, 1")
        I(f"s_lshl_b32 s{S_t1}, s{S_t1}, 6")
        I(f"s_or_b32 s{S_t0}, s{S_t0}, s{S_t1}")
        I(f"v_xor_b32 v1, s{S_t0}, v1")
        for tau in range(4):
            cb = 3 - tau
            if M: I(f"v_xor_b32 v{H_BR+tau}, {(cb>>1)*8192 + (cb&1)*64}, v1")
            else:
                for tt in range(2): I(f"v_xor_b32 v{H_BR+2*tau+tt}, {(cb>>1)*8192 + (cb&1)*64 + tt*32}, v1")
        I(f"s_lshl_b32 s{S_PB}, s{S_r}, 2"); I(f"s_add_u32 s{S_PB}, s{S_PB}, s{S_jj}")
        I(f"s_mul_i32 s{S_PB}, s{S_PB}, {12*8192}")
        I(f"s_lshl_b32 s{S_t0}, s{S_w}, 11"); I(f"s_add_u32 s{S_PB}, s{S_PB}, s{S_t0}"); I(f"s_add_u32 s{S_PB}, s{S_PB}, {PART_OFF}")
    V_HV = 31 if M else 19
    def halo(u, tag):
        I(f"s_lshr_b32 s{S_t0}, s{S_m0b}, 2")
        I(f"s_add_u32 m0, s{S_t0}, {HALO_LDS + u*4096}")
        I(f"s_and_b32 s{S_t0}, s{S_KG+u}, 0x300")
        I(f"buffer_load_dwordx4 v{V_HV}, {srd(S_X)}, s{S_t0} offen lds", tag=tag)
    if att:
        I(f"s_and_b32 s{S_t1}, s{S_w}, 1")
        I(f"s_mul_i32 s{S_t1}, s{S_t1}, {1024+64}")
        I(f"v_xor_b32 v{V_HV}, s{S_t1}, v{H_XD}")
        I(f"s_lshl_b32 s{S_t0}, s{S_r}, 17")
        I(f"s_sub_u32 s{S_t0}, s{S_t0}, 16384")
        I(f"s_lshr_b32 s{S_t1}, s{S_w}, 1")
        I(f"s_lshl_b32 s{S_t1}, s{S_t1}, 7")
        I(f"s_add_u32 s{S_t0}, s{S_t0}, s{S_t1}")
        I(f"v_add_u32 v{V_HV}, s{S_t0}, v{V_HV}")
        I(f"v_max_i32 v{V_HV}, 0, v{V_HV}")
        halo(0, "u2")
    if EG and not att:
        I(f"s_lshl_b32 s{S_t0}, s{S_w}, 8")
        I(f"s_add_u32 m0, s{S_t0}, {GW_LDS}")
        I("v_lshlrev_b32 v1, 2, v0")
        I(f"buffer_load_dword v1, {srd(S_GW)}, s{S_t0} offen lds", tag="u2")
    PRE = OPT["pre"]
    for k in range(3, PRE + 1): issue(k)
    first = list(range(PRE + 1, 8))
    if att: sched = [first, [8, 9], [10], [11, 12, 13], [14], [15, 16, 17], [18], [] if OPT["u19"] else [19]]
    else: sched = [first, [8, 9], [10, 11], [12, 13], [14, 15], [16, 17], [18, 19], []]
    def gw_dma():
        I(f"s_mov_b32 m0, {GW_LDS}")
        w0(lambda: I(f"buffer_load_dwordx4 v{V_L16}, {srd(S_GW)}, 0 offen lds"))
    extra = {1: lambda: (late_scalars(), b2_voffs(H_BD)), 3: (gw_dma if not EG else lambda: None), 7: (br_setup if att or OPT["sch"] else lambda: (b2_unit(8, H_BD), br_setup()))}
    if att: extra.update({2: lambda: (att_setup(0), att_setup(1)), 4: lambda: (att_setup(2), att_setup(3)), 6: lambda: att_setup(4)})
    gk = [k for k, un in enumerate(UL) if un[0] == "g"]
    def bar(i, need=None):
        stamp(f"h_a{i}")
        if need is None and i < len(gk): need = gk[i]
        if need is not None: e.wait(vm=f"u{need}")
        if i == 6: peer()
        I("s_barrier"); stamp(f"h_b{i}")
    for i in range(8):
        bar(i)
        if i == 4: peer_issue()
        for k in sched[i]: issue(k)
        if i in extra: extra[i]()
        if i == (OPT["tha"] if att else OPT["th"]) and not OPT["tatt"]: vtouch(att, 30 if M else 18)
        if i == OPT["th"] and OPT["tatt"] and att: vtouch2()
    def a2_load(lam):
        a2_soff(lam, S_t1)
        for p in range(2):
            I(f"buffer_load_dwordx4 {a2r(lam,p)}, v{V_L16}, {srd(S_WS)}, s{S_t1} offen offset:{p*1024} sc1", tag=f"a{lam}")
    def a2_items(lams, gap=None):
        gap = OPT['gap']
        F = []
        for lam in lams:
            F.append(cost(9, lambda lam=lam: (a2_soff(lam, S_COL), I(f"buffer_load_dwordx4 {a2r(lam,0)}, v{V_L16}, {srd(S_WS)}, s{S_COL} offen sc1", tag=f"a{lam}x"))))
            F += [cost(9, lambda: None)] * (gap - 1)
            F.append(cost(9, lambda lam=lam: I(f"buffer_load_dwordx4 {a2r(lam,1)}, v{V_L16}, {srd(S_WS)}, s{S_COL} offen offset:1024 sc1", tag=f"a{lam}")))
            F += [cost(9, lambda: None)] * (gap - 1)
        return F
    Bu = lambda g: b2_unit(g, H_BD, False)
    SS = []
    ALL = (0, 1, 2, 3)
    side = {}
    if not att:
        if OPT["sch"] == 0:
            bar(8); Bu(0)
            bar(9); issue(20); Bu(1)
            bar(10); push_group(ownbit(0), ALL); issue(21); Bu(2)
            bar(11); push_group(ownbit(1), ALL); Bu(3); poll_load()
            bar(12); poll_check(0x11)
            for lam in range(4): a2_load(lam)
            Bu(4); poll_load()
            bar(13); poll_check(0x22)
            for lam in range(4, 8): a2_load(lam)
            Bu(5)
            bar(14)
        else:
            bar(8)
            bar(9); issue(20)
            bar(10); push_group(ownbit(0), ALL); issue(21)
            bar(11); push_group(ownbit(1), ALL); Bu(0); Bu(1); poll_load()
            bar(12); poll_check(0x11); a2_load(0); a2_load(1); poll_load()
            bar(13); a2_load(2); a2_load(3); b2_unit(2, H_BD)
            e.wait(vm="b1")
            bar(14); poll_check(0x22)
            side[(0, 0)] = lambda: SS[0].add(0, 999, a2_items((4, 5, 6, 7), 2))
        def f_o(): poll_check(0x300); SS[0].add(0, 999, a2_items((16, 17, 14, 15)))
    else:
        def kv_reads(m0, tag):
            for t in range(4):
                I(f"ds_read_b64 {ar(A_KV+8*t,2)}, v{m0} offset:{t*1024}", tag=f"{tag}{t}")
                I(f"ds_read_b128 {ar(A_KV+8*t+2)}, v{V_AD} offset:{t*1024}", tag=f"{tag}{t}")
                I(f"ds_read_b64 {ar(A_KV+8*t+6,2)}, v{m0+1} offset:{t*1024+8}", tag=f"{tag}{t}")
        bar(8)
        kv_reads(V_AD + 1, "k")
        e.wait(lg="k3")
        bar(9, 18 if OPT["u19"] else 19)
        def Preg(t, p): return V_Q + 8 * t + 4 * p
        for half, m in enumerate(("s[56:57]", "s[58:59]")):
            I(f"s_mov_b64 exec, {m}")
            for t in range(4):
                for p in range(2):
                    I(f"ds_read_b64 {vr(Preg(t,p)+2*half,2)}, v{V_AD+5} offset:{t*1024+p*8}", tag="q")
        I("s_mov_b64 exec, -1")
        stamp("h_q")
        e.wait(lg="q")
        un = [(i >> 1, i & 1) for i in range(8)]
        Sc = lambda i: V_S + 4 * i
        for i, (t, p) in enumerate(un): I(f"{MF} {vr(Sc(i))}, {ar(A_KV+8*t+4*p)}, {vr(Preg(t,p))}, {vr(V_BIAS+4*p)}")
        poll_load()
        if OPT["u19"]: issue(19); dsig("Lv3")
        Bu(0)
        m = [V_T + i for i in range(8)]
        for i in range(8):
            if OPT["lround"]:
                I(f"v_cvt_pk_bf16_f32 v1, v{Sc(i)}, v{Sc(i)+1}")
                I(f"v_cvt_pk_bf16_f32 v2, v{Sc(i)+2}, v{Sc(i)+3}")
                I(f"v_lshlrev_b32 v{Sc(i)}, 16, v1")
                I(f"v_and_b32 v{Sc(i)+1}, 0xffff0000, v1")
                I(f"v_lshlrev_b32 v{Sc(i)+2}, 16, v2")
                I(f"v_and_b32 v{Sc(i)+3}, 0xffff0000, v2")
            I(f"v_max3_f32 v{m[i]}, v{Sc(i)}, v{Sc(i)+1}, v{Sc(i)+2}")
            I(f"v_max_f32 v{m[i]}, v{m[i]}, v{Sc(i)+3}")
        for k in range(4): I(f"v_permlane32_swap_b32 v{m[2*k]}, v{m[2*k+1]}")
        for k in range(4): I(f"v_max_f32 v{m[2*k]}, v{m[2*k]}, v{m[2*k+1]}")
        for k in range(2): I(f"v_permlane16_swap_b32 v{m[4*k]}, v{m[4*k+2]}")
        for k in range(2): I(f"v_max_f32 v{m[4*k]}, v{m[4*k]}, v{m[4*k+2]}")
        for k in range(2): I(f"v_mul_f32 v{m[4*k+2]}, s{S_CEXP}, v{m[4*k]}")
        for k in range(2): I(f"v_mul_f32 v{m[4*k]}, s{S_CEXP}, v{m[4*k]}")
        for k in range(2): I(f"v_permlane16_swap_b32 v{m[4*k]}, v{m[4*k+2]}")
        for k in range(4): I(f"v_mov_b32 v{m[2*k+1]}, v{m[2*k]}")
        for k in range(4): I(f"v_permlane32_swap_b32 v{m[2*k]}, v{m[2*k+1]}")
        Bu(1)
        for i in range(8):
            for r in range(4): I(f"v_fma_f32 v{Sc(i)+r}, v{Sc(i)+r}, s{S_CEXP}, -v{m[i]}")
            for r in range(4): I(f"v_exp_f32 v{Sc(i)+r}, v{Sc(i)+r}")
            if i == 4: poll_check(0x11); poll_load()
            if i >= 4: a2_load(i - 4)
        b2_unit(2, H_BD)
        for half, mk in enumerate(("s[56:57]", "s[58:59]")):
            I(f"s_mov_b64 exec, {mk}")
            for i, (t, p) in enumerate(un):
                I(f"v_cvt_pk_bf16_f32 v{Preg(t,p)+2*half}, v{Sc(i)}, v{Sc(i)+1}")
                I(f"v_cvt_pk_bf16_f32 v{Preg(t,p)+2*half+1}, v{Sc(i)+2}, v{Sc(i)+3}")
        I("s_mov_b64 exec, -1")
        for i, (t, p) in enumerate(un): I(f"{MF} {vr(Sc(i))}, {ar(A_ONES)}, {vr(Preg(t,p))}, 0")
        for i in range(8): I(f"v_rcp_f32 v{V_RINV+i}, v{Sc(i)}")
        e.wait(vm="b1")
        stamp("h_sm")
        I("s_barrier")
        kv_reads(V_AD + 3, "v")
        e.wait(lg="v3")
        I("s_barrier")
        for i, (t, p) in enumerate(un): I(f"{MF} {vr(Sc(i))}, {ar(A_KV+8*t+4*p)}, {vr(Preg(t,p))}, 0")
        for b in range(2):
            for t in (2 * b, 2 * b + 1):
                ob = (56 if b == 0 else 4) + (t & 1) * 4
                for p in range(2):
                    o = Sc(2 * t + p)
                    for r in range(4): I(f"v_mul_f32 v{o+r}, v{V_RINV+2*t+p}, v{o+r}")
                    od = ob + 2 * p if M else (56 if b == 0 else 4) + p * 4 + (t & 1) * 2
                    I(f"v_cvt_pk_bf16_f32 v{od}, v{o}, v{o+1}")
                    I(f"v_cvt_pk_bf16_f32 v{od+1}, v{o+2}, v{o+3}")
            a2_soff(16 + b, S_t1)
            for t1 in range(2 if M else 0):
                ob = (56 if b == 0 else 4) + t1 * 4
                I(f"v_permlane16_swap_b32 v{ob}, v{ob+2}")
                I(f"v_permlane16_swap_b32 v{ob+1}, v{ob+3}")
            for p in range(2):
                I(f"buffer_store_dwordx4 {a2r(16+b,p)}, v{V_L16}, {srd(S_WS)}, s{S_t1} offen offset:{p*1024} sc1", tag="so")
        stamp("h_so")
        def f_push():
            e.wait(vm="so")
            push_group(lambda: I(f"s_lshl_b32 s{S_t2}, 64, s{S_jj}"), (1, 2, 3))
        side[(0, OPT["fp"])] = f_push
        side[(0, 0)] = lambda: (poll_check(0x22), SS[0].add(0, 999, a2_items((4, 5, 6, 7), 1)))
        def f_o():
            I(f"s_xor_b32 s{S_THR}, s{S_jj}, 1"); I(f"s_lshl_b32 s{S_THR}, 64, s{S_THR}")
            poll_check(f"s{S_THR}"); SS[0].add(0, 999, a2_items((14, 15)))
    def f_c(): poll_check(0x44); SS[0].add(0, 999, a2_items((8, 9, 10, 11)))
    def f_h(): poll_check(0x88); SS[0].add(0, 999, a2_items((12, 13)))
    side.update({(0, OPT["kc"] - 15): poll_load, (0, OPT["kc"]): f_c, (0, OPT["kh"] - 15): poll_load, (0, OPT["kh"]): f_h, (0, OPT["ko"] - 11): poll_load, (0, OPT["ko"]): f_o})
    I("s_setprio 1")
    stamp("h_p2")
    own = [16, 17] if att else []
    LD = OPT["ld"]
    oo = [16, 17, 14, 15]
    TM = 14 - OPT["tm"]
    seq = [(lam, tau) for lam in range(TM) for tau in range(4 if lam < LD else 3)]
    seq += [(lam, tau) for tau in range(3) for lam in list(range(TM, 14)) + oo]
    seq += [(lam, 3) for lam in list(range(LD, 14)) + oo]
    steps = []; rng = {}; seen_g = set(); seen_l = set(); first_ = set()
    for (lam, tau) in seq:
        g = lam >> 1
        for kh in range(2):
            a = H_BR + tau if M else H_BR + 2 * tau + kh
            off = g * SLOT + (lam & 1) * 4096 + (kh * 2048 if M else 0)
            hi = off >> 16
            st = dict(rd=(a, off & 0xffff, 1024 if M else 2048))
            pres = []
            cg = CHKG.get(g)
            if cg is not None and cg not in seen_g:
                seen_g.add(cg); t = U("t")
                steps[-3]["post"] = lambda k, g=cg, t=t: d_read(f"Lb{g}", t)
                pres.append(lambda g=cg, t=t: d_check(f"Lb{g}", t))
            if rng.get(a, 0) != hi:
                dlt = (hi - rng.get(a, 0)) * 65536; rng[a] = hi
                pres.append(lambda a=a, dlt=dlt: I(f"v_add_u32 v{a}, {dlt & 0xffffffff}, v{a}"))
            if pres: st["pre"] = lambda pres=pres: [f() for f in pres]
            at = 4 if (tau == 3 and lam >= 14) else tau
            key = at if M else (at, kh)
            zero = key not in first_; first_.add(key)
            db = H_ACC + 16 * (at if at < 4 else 0)
            if M: st["mf"] = lambda W, st, lam=lam, kh=kh, d=vr(db, 16), zero=zero: [f"{M32} {d}, {W}, {a2r(lam,kh)}, {'0' if zero else d}"]
            else: st["mf"] = lambda W, st, lam=lam, db=db + 4 * kh, zero=zero: [f"{MF} {vr(db+8*p)}, {W}, {a2r(lam,p)}, {'0' if zero else vr(db+8*p)}" for p in range(2)]
            if lam not in seen_l:
                seen_l.add(lam)
                if lam not in own: st["need"] = lambda lam=lam: e.wait(vm=f"a{lam}")
            st["id"] = (lam, tau, kh)
            steps.append(st)
    S = Stream(steps, OPT["D2"], H_RING)
    SS.append(S)
    idx = {st["id"]: k for k, st in enumerate(steps)}
    n = len(steps)
    for (lam, d), f in side.items(): S.aft(idx[(lam, 0, 0)] + d, f)
    def scale(tau, greg): return [lambda k=k: I(f"v_mul_f32 v{H_ACC+16*tau+k}, v{greg + (0 if M else 2*(k>>3))}, v{H_ACC+16*tau+k}") for k in range(16)]
    def pack(tau):
        b = H_ACC + tau * 16
        return [lambda k=k: I(f"v_cvt_pk_bf16_f32 v{b+k}, v{b+2*k}, v{b+2*k+1}") for k in range(8)]
    def send(tau):
        def so():
            I(f"s_xor_b32 s{S_GIN}, s{S_q}, {3-tau}"); I(f"s_mul_i32 s{S_GIN}, s{S_GIN}, {3*8192}")
            I(f"s_add_u32 s{S_GIN}, s{S_GIN}, s{S_PB}"); I(f"s_add_u32 s{S_GIN}, s{S_GIN}, {tau*8192}")
        return [so] + pack(tau) + [cost(3, lambda j=j: I(f"buffer_store_dwordx4 {vr(H_ACC+tau*16+j*4)}, v{V_L16}, {srd(S_WS)}, s{S_GIN} offen offset:{j*1024} sc1", tag=f"p{tau}")) for j in range(2)]
    def pflag(tau):
        assert e.vmq[0][0].count(f"p{tau}") == 2
        stamp(f"h_pa{tau}")
        e.wait(vm=f"p{tau}")
        stamp(f"h_pb{tau}")
        I(f"s_xor_b32 s{S_t0}, s{S_MYIN}, {(3-tau)*2048}")
        I(f"s_mov_b32 s{S_KG+tau}, {1024<<tau}")
        I(f"s_atomic_or s{S_KG+tau}, s[{S_INB}:{S_INB+1}], s{S_t0}")
    if EG:
        def gget():
            I(f"s_lshl_b32 s{S_t0}, s{S_r}, 2"); I(f"s_add_u32 s{S_t0}, s{S_t0}, s{S_q}"); I(f"s_lshl_b32 s{S_t0}, s{S_t0}, 12")
            I(f"s_lshr_b32 s{S_t1}, s{S_m0b}, 2"); I(f"s_add_u32 s{S_t0}, s{S_t0}, s{S_t1}"); I(f"s_add_u32 s{S_t0}, s{S_t0}, {GA_OFF}")
            I(f"buffer_load_dwordx4 {vr(H_G)}, v{V_L16}, {srd(S_WS)}, s{S_t0} offen sc1", tag="gz")
        S.aft(24, gget)
        S.aft(idx[(13, 0, 1)], lambda: e.wait(vm="gz"))
    else:
        def gget():
            t = U("t"); d_read("G", t); d_check("G", t)
            I(f"s_lshl_b32 s{S_t0}, s{S_w}, 8"); I(f"s_add_u32 s{S_t0}, s{S_t0}, {GB_LDS}")
            I(f"v_and_b32 v1, {31 if M else 15}, v0")
            I(f"v_lshl_add_u32 v1, v1, 3, s{S_t0}")
            I(f"ds_read_b64 {vr(H_G,2)}, v1", tag="gz")
            if not M: I(f"ds_read_b64 {vr(H_G+2,2)}, v1 offset:128", tag="gz")
        S.aft(idx[(12, 0, 1)], gget)
        S.aft(idx[(13, 0, 1)], lambda: e.wait(lg="gz"))
    for tau in range(4):
        k = idx[(13, tau, 1)]
        S.aft(k, lambda k=k, tau=tau: S.add(k + 3, idx[(oo[0], tau, 0)] if tau < 3 else n, scale(tau, H_G + 1)))
    late_flags = []
    for tau in range(3):
        k = idx[(oo[-1], tau, 1)]
        S.aft(k, lambda k=k, tau=tau: S.add(k + 3, k + 8, send(tau)))
        kf = k + 7 + OPT["pfd"]
        if kf <= n - OPT["D2"] - 14: S.aft(kf, lambda tau=tau: pflag(tau))
        else: late_flags.append(tau)
    S.aft(n - OPT["D2"], lambda: (e.wait(lg=f"w{n-1}"), [pflag(t) for t in late_flags[:-1]], poll_load()))
    S.aft(idx[(8, 0, 0)], lambda: stamp("h_late"))
    S.aft(idx[(oo[0], 0, 0)], lambda: stamp("h_o"))
    S.aft(idx[(LD, 3, 0)], lambda: stamp("h_own"))
    S.run(OPT["side2"])
    I(f"s_mul_i32 s{S_GIN}, s{S_q}, {3*8192}")
    I(f"s_add_u32 s{S_GIN}, s{S_GIN}, s{S_PB}")
    if M:
        I("v_bfe_u32 v5, v0, 4, 1")
        I("v_lshlrev_b32 v6, 3, v5")
        I("v_xor_b32 v6, 8, v6")
        I("v_and_b32 v4, 15, v0")
        I("v_xor_b32 v4, v4, v6")
        I("v_lshl_add_u32 v4, v4, 1, v5")
        I("v_lshrrev_b32 v5, 5, v0")
        I("v_lshlrev_b32 v5, 4, v5")
        I("v_lshl_add_u32 v4, v4, 10, v5")
    else:
        I("v_and_b32 v4, 15, v0")
        I("v_bfe_u32 v6, v0, 4, 1")
        I("v_lshlrev_b32 v6, 5, v6")
        I("v_lshrrev_b32 v7, 5, v0")
        I("v_lshl_add_u32 v6, v7, 4, v6")
        I("v_lshl_add_u32 v5, v4, 11, v6")
        I("v_xor_b32 v4, 0x4000, v5")
    I(f"s_lshl_b32 s{S_COL}, s{S_r}, 17"); I(f"s_lshl_b32 s{S_t1}, s{S_w}, 15"); I(f"s_add_u32 s{S_COL}, s{S_COL}, s{S_t1}")
    I(f"s_lshl_b32 s{S_t1}, s{S_jj}, 8"); I(f"s_add_u32 s{S_COL}, s{S_COL}, s{S_t1}")
    I(f"s_lshl_b32 s{S_t1}, s{S_q}, 6"); I(f"s_add_u32 s{S_COL}, s{S_COL}, s{S_t1}")
    for t in late_flags[-1:]: pflag(t)
    O = H_ACC + 48
    for k in range(8): I(f"v_pk_add_f32 {vr(O+2*k,2)}, {vr(O+2*k,2)}, {vr(H_ACC+2*k,2)}")
    for tau in range(3):
        poll_check(1024 << tau)
        stamp(f"h_r{tau}")
        if tau == 2: stamp("h_rcv")
        for j in range(2):
            I(f"buffer_load_dwordx4 {vr(24+tau*8+j*4)}, v{V_L16}, {srd(S_WS)}, s{S_GIN} offen offset:{j*1024} sc1", tag=f"r{tau}")
        if tau < 2: I(f"s_add_u32 s{S_GIN}, s{S_GIN}, 8192")
    for tau in range(3):
        e.wait(vm=f"r{tau}")
        b = H_ACC + 16
        for k in range(8):
            I(f"v_lshlrev_b32 v{b+2*k}, 16, v{24+tau*8+k}")
            I(f"v_and_b32 v{b+2*k+1}, 0xffff0000, v{24+tau*8+k}")
        for k in range(8): I(f"v_pk_add_f32 {vr(O+2*k,2)}, {vr(O+2*k,2)}, {vr(b+2*k,2)}")
    for k in range(8): I(f"v_pk_mul_f32 {vr(O+2*k,2)}, {vr(O+2*k,2)}, {vr(H_G + (0 if M else 2*(k>>2)),2)} op_sel_hi:[1,0]")
    stamp("h_sum")
    for f in pack(3): f()
    for j in range(2):
        sw = "v_permlane32_swap_b32" if M else "v_permlane16_swap_b32"
        I(f"{sw} v{O+4*j}, v{O+4*j+2}")
        I(f"{sw} v{O+4*j+1}, v{O+4*j+3}")
        I(f"buffer_store_dwordx4 {vr(O+4*j)}, v{4 if M else 4+j}, {srd(S_OUT)}, s{S_COL} offen offset:{j*(32 if M else 1024)}" + ["", " nt", " sc0", " sc1"][OPT["of"]])
    finish()

h_prog(False)
e.label("L_h_att")
h_prog(True)

e.label("L_C")
role[0] = "C"
reset()
C_WR = 4; C_XR = 12; C_EXW = 18; C_HA = 20; C_HX = (24, 56, 60); C_HACC = 28; C_ACC = 64
I("s_setprio 2")
if OPT["codepf"]:
    I("s_cmp_lt_u32 s2, 16")
    I("s_cbranch_scc0 L_nopf")
    e.cond_begin()
    I("s_getpc_b64 s[56:57]")
    e.label("L_pc")
    I(f"s_sub_u32 s56, s56, L_pc-{NAME}_kernel")
    I("s_subb_u32 s57, s57, 0")
    I(f"s_lshr_b32 s{S_t0}, s2, 3")
    I(f"s_lshl_b32 s{S_t0}, s{S_t0}, 15")
    I(f"v_lshlrev_b32 v2, 7, v0")
    I(f"v_lshl_add_u32 v2, v1, 13, v2")
    I(f"v_add_u32 v2, s{S_t0}, v2")
    I(f"v_min_u32 v2, L_end-{NAME}_kernel, v2")
    I(f"global_load_dword v23, v2, s[56:57]")
    e.cond_end()
    e.label("L_nopf")
late_scalars()
I("v_lshlrev_b32 v2, 2, v0")
I(f"v_add_u32 v2, {EV_LDS}, v2")
I("v_mov_b32 v1, 1")
I("ds_write_b32 v2, v1")
I("v_mov_b32 v1, 0")
I("ds_write_b32 v2, v1 offset:256")
I("v_lshrrev_b32 v32, 4, v0")
I("v_and_b32 v33, 15, v0")
I("v_bfe_u32 v34, v0, 2, 2")
I("v_and_b32 v35, 3, v0")
after_karg()
common_ptrs()
I(f"s_cmp_eq_u32 s{S_w}, 0")
I("s_cbranch_scc0 L_c_noinit")
e.cond_begin()
for k in range(4):
    I(f"s_mov_b32 s{S_KG+k}, 0")
    I(f"s_add_u32 s{S_t0}, s{S_MYIN}, {k*128}")
    I(f"s_atomic_swap s{S_KG+k}, s[{S_INB}:{S_INB+1}], s{S_t0} glc")
e.cond_end()
e.label("L_c_noinit")
I(f"s_cmp_ge_u32 s{S_jj}, 2")
I("s_cbranch_scc1 L_c_att")

def c_prog(att):
    reset()
    UL = units(att)
    slot_of = {un: phys(att, k) for k, un in enumerate(UL)}
    subs = [un for un in UL if un[0] == "g"]
    if OPT["spf"] == 2 and OPT["tearly"] and OPT["th"] < 0: vtouch(att)
    n16 = att or not M
    if n16:
        for p in range(2):
            I(f"v_xor_b32 v38, {8 if p == 0 else 0}, v33")
            I("v_and_b32 v39, 8, v38")
            I("v_add_u32 v39, v39, v38")
            I("v_lshlrev_b32 v39, 7, v39")
            I("v_lshrrev_b32 v38, 1, v38")
            I("v_xor_b32 v38, v38, v32")
            I("v_lshl_add_u32 v39, v38, 4, v39")
            I(f"v_add_u32 v39, s{S_m0b}, v39")
            I(f"v_add_u32 v{C_XR+2*p+p}, {p*1024}, v39")
            I(f"v_xor_b32 v{C_XR+2*p+1-p}, 64, v{C_XR+2*p+p}")
        I("v_lshl_add_u32 v38, v32, 3, v34")
        I("v_lshlrev_b32 v38, 7, v38")
        I("v_lshl_add_u32 v38, v35, 3, v38")
        I("v_lshrrev_b32 v39, 1, v34")
        I("v_and_b32 v40, 1, v32")
        I("v_lshl_or_b32 v39, v40, 1, v39")
        I(f"v_xor_b32 v41, {'s'+str(S_w) if att else 0}, v39")
        for t in range(4):
            I(f"v_xor_b32 v40, {t}, v41")
            I(f"v_lshl_add_u32 v{C_WR+t}, v40, 5, v38")
            I(f"v_add_u32 v{C_WR+4+t}, 0x10000, v{C_WR+t}")
        if att:
            I("v_lshrrev_b32 v38, 1, v33")
            I("v_xor_b32 v38, v38, v32")
            I("v_lshlrev_b32 v38, 4, v38")
            I("v_lshl_add_u32 v38, v33, 7, v38")
            I(f"v_add_u32 v{C_HA}, {HALO_LDS}, v38")
            I(f"v_xor_b32 v{C_HA+1}, 64, v{C_HA}")
            I(f"s_mul_i32 s{S_t0}, s{S_w}, 5120")
            I(f"s_add_u32 s{S_t0}, s{S_t0}, {EXCH_LDS+4096}")
            I(f"v_add_u32 v{C_EXW}, s{S_t0}, v{V_L16}")
            I("v_add_u32 v19, 1, v35")
            I("v_bfe_u32 v19, v19, 1, 1")
            I("v_mul_u32_u24 v19, 24, v19")
    else:
        I("v_and_b32 v40, 1, v32")
        I("v_lshlrev_b32 v38, 3, v40")
        I("v_xor_b32 v38, 8, v38")
        I("v_xor_b32 v38, v38, v33")
        I("v_and_b32 v39, 8, v38")
        I("v_add_u32 v39, v39, v38")
        I("v_lshl_add_u32 v39, v40, 3, v39")
        I("v_lshlrev_b32 v39, 7, v39")
        I("v_lshrrev_b32 v38, 1, v38")
        I("v_lshlrev_b32 v41, 2, v40")
        I("v_xor_b32 v38, v38, v41")
        I("v_lshrrev_b32 v41, 1, v32")
        I("v_xor_b32 v38, v38, v41")
        I("v_lshl_add_u32 v39, v38, 4, v39")
        I(f"v_add_u32 v{C_XR}, s{S_m0b}, v39")
        for k in range(1, 4): I(f"v_xor_b32 v{C_XR+k}, {32*k}, v{C_XR}")
        I("v_lshl_add_u32 v38, v41, 3, v34")
        I("v_lshlrev_b32 v38, 7, v38")
        I("v_lshl_add_u32 v38, v35, 3, v38")
        I("v_lshl_add_u32 v38, v40, 5, v38")
        I("v_lshrrev_b32 v39, 1, v34")
        I(f"v_lshl_add_u32 v{C_WR}, v39, 6, v38")
        I(f"v_xor_b32 v{C_WR+1}, 64, v{C_WR}")
        for t in range(2): I(f"v_add_u32 v{C_WR+4+t}, 0x10000, v{C_WR+t}")
    if OPT["spf"] == 2 and not OPT["tearly"] and OPT["th"] < 0: vtouch(att)
    if OPT["spf"] == 1:
        P = 3072 if att else 3584; wp = 6 if att else 12
        I(f"s_lshl_b32 s{S_t0}, s{S_r}, 2"); I(f"s_add_u32 s{S_t0}, s{S_t0}, s{S_w}")
        I(f"s_mul_i32 s{S_t1}, s{S_t0}, {8*P}")
        I(f"s_mul_i32 s{S_t2}, s{S_q}, {256 if att else 896}"); I(f"s_add_u32 s{S_t1}, s{S_t1}, s{S_t2}")
        I(f"s_lshl_b32 s{S_t2}, s{S_j1}, 7"); I(f"s_add_u32 s{S_t2}, s{S_t2}, s{S_t1}")
        I(f"s_add_u32 s56, s{wp}, s{S_t2}"); I(f"s_addc_u32 s57, s{wp+1}, 0")
        for k in range(8): I(f"s_load_dword s{S_EV}, s[56:57], {k*P + (2048 if att else 512)}")
        if not att:
            I(f"s_mul_i32 s{S_t2}, s{S_j1}, {4*P}"); I(f"s_add_u32 s{S_t2}, s{S_t2}, s{S_t1}")
            I(f"s_add_u32 s56, s{wp}, s{S_t2}"); I(f"s_addc_u32 s57, s{wp+1}, 0")
            for k in range(4): I(f"s_load_dword s{S_EV}, s[56:57], {k*P + 768}")
        I(f"s_lshl_b32 s{S_t0}, s{S_t0}, 2"); I(f"s_add_u32 s{S_t0}, s{S_t0}, s{S_jj}")
        I(f"s_mul_i32 s{S_t1}, s{S_t0}, 1792"); I(f"s_mul_i32 s{S_t2}, s{S_q}, {448*1024}"); I(f"s_add_u32 s{S_t1}, s{S_t1}, s{S_t2}")
        I(f"s_add_u32 s56, s14, s{S_t1}"); I("s_addc_u32 s57, s15, 0")
        for k in range(14): I(f"s_load_dword s{S_EV}, s[56:57], {k*128}")
        I(f"s_lshl_b32 s{S_t1}, s{S_t0}, 9"); I(f"s_lshl_b32 s{S_t2}, s{S_q}, 17"); I(f"s_add_u32 s{S_t1}, s{S_t1}, s{S_t2}")
        I(f"s_add_u32 s56, s8, s{S_t1}"); I("s_addc_u32 s57, s9, 0")
        for k in range(4): I(f"s_load_dword s{S_EV}, s[56:57], {k*128}")
        I("s_waitcnt lgkmcnt(0)")
    l = U("ci")
    I(f"s_cmp_eq_u32 s{S_w}, 0"); I(f"s_cbranch_scc0 {l}")
    e.cond_begin()
    I(f"s_mov_b32 s{S_t1}, 1")
    I("s_waitcnt lgkmcnt(0)")
    I(f"s_atomic_add s{S_t1}, s[{S_DBG}:{S_DBG+1}], 0")
    e.cond_end(); e.label(l)
    if EG and not att:
        I("v_lshlrev_b32 v18, 4, v32"); I(f"v_add_u32 v18, {GW_LDS}, v18")
    stamp("c_go")
    def xfr(p, s): return ar((p * 16 + s) * 4)
    def xf32(s16): return ar(s16 * 4)
    def acc(c, T, p=0):
        base = C_ACC + 32 * (c & 1)
        if att: return base + (T * 2 + p) * 4
        if M: return base + T * 16
        return base + (((T >> 1) * 2 + p) * 2 + (T & 1)) * 4
    def xread(dst, areg, slot, tmp, k):
        base = slot * SLOT
        if base >= 65536:
            I(f"v_add_u32 v{tmp}, {base & ~0xffff}, v{areg}"); areg = tmp
        I(f"ds_read_b128 {dst}, v{areg} offset:{base & 0xffff}", tag=f"w{k}")
    steps = []; nh = [0]
    for i, un in enumerate(subs):
        _, c, u = un; slot = slot_of[un]
        for j in range(16):
            h = j >> 3
            if n16:
                ks = (j >> 1) & 3; T = 2 * h + (j & 1); s = 4 * u + ks; zero = (u == 0 and ks == 0); ta = T
                if c == 3: s = 4 * (u + 2 * h) + ks; ta = j & 1; zero = (u == 0 and h == 0 and ks == 0)
                halo = att and T == 0 and c != 1
                st = dict(rd=(C_WR + (4 if slot >= 4 else 0) + T, (slot & 3) * SLOT + ks * 4096, 512))
                def mf(W, st, s=s, T=ta, zero=zero, c=c, halo=halo):
                    out = []
                    for p in range(2):
                        a, b = (xfr(p, s), W) if (att and c == 2) else (W, xfr(p, s))
                        d = vr(acc(c, T, p))
                        out.append(f"{MF} {d}, {a}, {b}, {'0' if zero else d}")
                    if "gate" in st:
                        gs, gp = st["gate"]
                        out.append(f"{MF} {vr(24+4*gp)}, {vr(56+4*(gs&1))}, {xfr(gp,gs)}, {'0' if gs == 0 else vr(24+4*gp)}")
                    if halo:
                        a, b = (vr(st["hreg"]), W) if c == 2 else (W, vr(st["hreg"]))
                        out.append(f"{MF} {vr(C_HACC)}, {a}, {b}, {'0' if zero else vr(C_HACC)}")
                    return out
                if EG and not att and c == 1 and j % 4 >= 2: st["gate"] = (4 * u + (j >> 2), j & 1)
                def post(k, st=st, s=s, halo=halo, j=j, c=c, u=u, ks=ks):
                    if EG and not att and c == 1 and j % 4 == 2:
                        if j == 2:
                            I(f"s_add_u32 s{S_t0}, s{S_rot}, {u}"); I(f"s_and_b32 s{S_t0}, s{S_t0}, 3"); I(f"s_lshl_b32 s{S_t0}, s{S_t0}, 8")
                            I(f"v_add_u32 v19, s{S_t0}, v18")
                        I(f"ds_read_b128 {vr(56+4*((j>>2)&1))}, v19 offset:{(j>>2)*64}", tag=f"w{k}")
                    if c == 0 and j < 8 and j % 2 == 0:
                        for p in range(2): xread(xfr(p, s), C_XR + 2 * p + (ks & 1), slot_of[("x", u, ks >> 1)], 1 + p, k)
                    if att and c == 2 and u == 2 and j == 11 and OPT["u19"]: d_read("Lv3", "chk11")
                    if halo:
                        st["hreg"] = C_HX[nh[0] % 3]; nh[0] += 1
                        I(f"ds_read_b128 {vr(st['hreg'])}, v{C_HA+(s&1)} offset:{(s>>1)*2048}", tag=f"w{k}")
            else:
                kk = j & 7
                if c < 3: s16 = 8 * u + kk; ta = h; zero = (u == 0 and kk == 0)
                else: s16 = 8 * (u + 2 * h) + kk; ta = 0; zero = (u == 0 and j == 0)
                st = dict(rd=(C_WR + (4 if slot >= 4 else 0) + h, (slot & 3) * SLOT + kk * 2048, 512))
                d = vr(acc(c, ta), 16)
                def mf(W, st, s16=s16, d=d, zero=zero): return [f"{M32} {d}, {W}, {xf32(s16)}, {'0' if zero else d}"]
                def post(k, s16=s16, j=j, c=c, u=u, kk=kk):
                    if c == 0 and j < 8: xread(xf32(s16), C_XR + (kk & 3), slot_of[("x", u, kk >> 2)], 1 + (kk & 1), k)
            st["mf"] = mf; st["post"] = post
            if j == 0:
                def pre(i=i):
                    stamp(f"t{i}")
                    if att and i in (8, 9):
                        assert e.lgq[0][0].count(f"exw{i-8}") == (5 if i == 8 else 4)
                        e.wait(lg=f"exw{i-8}")
                    if not att and i - OPT["ackb"] in (0, 1):
                        assert e.vmq[0][0].count(f"st{i-OPT['ackb']}") == 4
                        e.wait(vm=f"st{i-OPT['ackb']}")
                        if EG and i - OPT["ackb"] == 1: e.wait(vm="stg")
                    if i < (10 if att else 14): I("s_barrier")
                    if att and i == 11 and OPT["u19"]: d_check("Lv3", "chk11")
                    stamp(f"s{i}")
                    if att and M and i == 8:
                        for t in range(8): I(f"v_xor_b32 v{C_WR+t}, v19, v{C_WR+t}")
                st["pre"] = pre
            steps.append(st)
    if att: S = Stream(steps, OPT["D"], [32, 36, 40, 44, 48, 52])
    else: S = Stream(steps, OPT["DF"], [32, 36, 40, 44, 48, 52] + ([] if EG else [56, 60]))
    DD = S.D
    def packn(a, n_): return [lambda k=k: I(f"v_cvt_pk_bf16_f32 v{a+k}, v{a+2*k}, v{a+2*k+1}") for k in range(n_)]
    def epi(c, h):
        F = []
        if att:
            for t in (2 * h, 2 * h + 1):
                a = acc(c, t, 0)
                F += packn(a, 4)
                def wr(t=t, a=a):
                    I(f"v_xor_b32 v1, {t*1024}, v{C_EXW}")
                    if c == 1: I(f"v_add_u32 v1, {(QSLOT*SLOT - EXCH_LDS - 4096) & 0xffffffff}, v1")
                    I(f"ds_write_b128 v1, {vr(a)}", tag=f"exw{c}")
                F.append(wr)
            if h == 0 and c != 1:
                def hw():
                    I(f"v_cvt_pk_bf16_f32 v{C_HACC}, v{C_HACC}, v{C_HACC+1}")
                    I(f"v_cvt_pk_bf16_f32 v{C_HACC+1}, v{C_HACC+2}, v{C_HACC+3}")
                    I(f"s_add_u32 s{S_t0}, s{S_m0b}, 4096")
                    I(f"v_subrev_u32 v1, s{S_t0}, v{C_EXW}")
                    I(f"ds_write2_b64 v1, {vr(C_HACC,2)}, {vr(C_HACC,2)} offset0:0 offset1:1", tag=f"exw{c}")
                F.append(hw)
        else:
            a = acc(c, h) if M else acc(c, 2 * h, 0)
            F += packn(a, 8)
            def so():
                I(f"s_lshr_b32 s{S_GIN}, s{S_J32}, {2 if c < 3 else 3}")
                I(f"s_add_u32 s{S_GIN}, s{S_GIN}, s{S_A2}"); I(f"s_add_u32 s{S_GIN}, s{S_GIN}, {(4*c+h)*8192}")
            F.append(so)
            for p in range(2):
                F += [lambda k=k: I(f"v_pk_max_i16 v{k}, v{k}, 0") for k in range(a + 4 * p, a + 4 * p + 4)]
                F.append(cost(9, lambda p=p: I(f"buffer_store_dwordx4 {vr(a+4*p)}, v{V_L16}, {srd(S_WS)}, s{S_GIN} offen offset:{p*1024} sc1", tag=f"st{c}")))
        return F
    n = len(steps)
    for c, i, reuse in ((0, 6, 8), (1, 7, 12), (2, 11, 99)):
        for h in range(2):
            k = 16 * i + 8 * h + 7
            if k == n - 1: continue
            dl = min(16 * reuse + (8 * h if reuse == 8 else 0), n)
            if att and c < 2: dl = 16 * (8 + c) - DD - 3
            S.aft(k, lambda k=k, c=c, h=h, dl=dl: S.add(max(k + (2 if n16 else 4), 16 * 7 - DD + 1 if att else 0), dl, epi(c, h)))
    if EG and not att:
        def gst():
            I(f"s_lshl_b32 s{S_t0}, s{S_r}, 2"); I(f"s_add_u32 s{S_t0}, s{S_t0}, s{S_q}"); I(f"s_lshl_b32 s{S_t0}, s{S_t0}, 12")
            I(f"s_lshr_b32 s{S_t1}, s{S_m0b}, 2"); I(f"s_add_u32 s{S_t0}, s{S_t0}, s{S_t1}"); I(f"s_add_u32 s{S_t0}, s{S_t0}, {GA_OFF}")
            I(f"s_lshl_b32 s{S_t1}, s{S_j1}, 28"); I(f"s_add_u32 s{S_t0}, s{S_t0}, s{S_t1}")
            I(f"buffer_store_dwordx4 {vr(56)}, v{V_L16}, {srd(S_WS)}, s{S_t0} offen sc1", tag="stg")
        S.aft(16 * 8, lambda: S.add(0, 16 * (OPT["ackb"] + 1) - 12, [lambda t=t: I(t) for t in gate_math(24, 28, 56, 20)] + [gst]))
    S.run(OPT["side"] if att else OPT["sidef"])
    stamp("c_end")
    if not att: I("s_barrier")
    for f in (epi(2, 1) if att else epi(3, 0)): f()
    if att:
        e.wait(lg="exw2")
        I("s_barrier")
    if OPT["cprio"] != 2: I(f"s_setprio {OPT['cprio']}")
    rest = [3, 4, 5, 6, 8, 7]
    def cunit():
        g = rest.pop(0); b2_unit(g, 4, g in SIGG)
    if not att:
        assert e.vmq[0][0].count("st2") == 4
        e.wait(vm="st2"); push_group(ownbit(2), (0, 1, 2, 3))
        stamp("c_f2")
        b2_voffs(4)
        if OPT["lowp"]: I("s_setprio 0")
        cunit(); cunit()
    if EG:
        if att:
            b2_voffs(4)
            I("s_barrier")
            if OPT["lowp"]: I("s_setprio 0")
            cunit(); cunit()
        else:
            e.wait(vm="st3"); push_group(ownbit(3), (0, 1, 2, 3))
    else:
        I("s_setprio 2")
        stamp("c_g0")
        I("v_lshrrev_b32 v9, 4, v0")
        if n16:
            I("v_lshlrev_b32 v8, 4, v9")
        else:
            I("v_lshrrev_b32 v8, 5, v0"); I("v_lshlrev_b32 v8, 4, v8")
            I("v_xor_b32 v9, v9, v0"); I("v_and_b32 v9, 1, v9")
            I("v_cmp_eq_u32 vcc, 0, v9")
        NG = 16 if n16 else 32; per = NG // 4
        RB = [32 + 4 * k for k in range(8)]
        def gread(s_):
            if s_ % per == 0:
                I(f"s_add_u32 s{S_t0}, s{S_rot}, {s_//per}"); I(f"s_and_b32 s{S_t0}, s{S_t0}, 3"); I(f"s_lshl_b32 s{S_t0}, s{S_t0}, 8")
                I(f"s_add_u32 s{S_t0}, s{S_t0}, {GW_LDS}")
                I(f"v_add_u32 v10, s{S_t0}, v8")
                if not n16:
                    I(f"v_mov_b32 v11, {ZERO_LDS}"); I("v_cndmask_b32 v10, v11, v10, vcc")
            I(f"ds_read_b128 {vr(RB[s_%8])}, v10 offset:{(s_%per)*(64 if n16 else 32)}", tag=f"g{s_}")
        for s_ in range(6): gread(s_)
        if att:
            b2_voffs(4)
            I("s_barrier")
            cunit()
        for s_ in range(NG):
            e.wait(lg=f"g{s_}")
            if n16:
                for p in range(2): I(f"{MF} {vr(64+4*p)}, {vr(RB[s_%8])}, {xfr(p,s_)}, {'0' if s_ == 0 else vr(64+4*p)}")
            else:
                I(f"{MF} {vr(64)}, {vr(RB[s_%8])}, {xf32(s_)}, {'0' if s_ == 0 else vr(64)}")
            if s_ + 6 < NG: gread(s_ + 6)
            if s_ == NG // 2 and rest: cunit()
        if not att:
            e.wait(vm="st3"); push_group(ownbit(3), (0, 1, 2, 3))
            stamp("c_f3")
        cunit()
        z1 = 68 if n16 else 65; G = 72
        T = gate_math(64, z1, G, 1)
        for t in T: I(t)
        I(f"s_lshl_b32 s{S_t0}, s{S_w}, 8"); I(f"s_add_u32 s{S_t0}, s{S_t0}, {GB_LDS}")
        I(f"v_lshl_add_u32 v1, v0, 3, s{S_t0}")
        I("s_mov_b64 exec, 0xffff")
        I(f"ds_write_b64 v1, {vr(G,2)}", tag="gz")
        I(f"ds_write_b64 v1, {vr(G+2,2)} offset:128", tag="gz")
        I("s_mov_b64 exec, -1")
        e.wait(lg="gz")
        if OPT["lowp"]: I("s_setprio 0")
        dsig("G")
    stamp("c_g1")
    while rest:
        throttle(); cunit()
    if OPT["dummy"]:
        I(f"s_lshl_b32 s{S_t0}, s2, 2"); I(f"s_add_u32 s{S_t0}, s{S_t0}, s{S_w}"); I(f"s_mul_i32 s{S_t0}, s{S_t0}, 9216"); I(f"s_add_u32 s{S_t0}, s{S_t0}, {20<<20}")
        for k in range(9):
            I(f"buffer_store_dwordx4 {vr(64)}, v{V_L16}, {srd(S_WS)}, s{S_t0 if OPT['dummy'] == 1 else S_WS+2} offen")
            I(f"s_add_u32 s{S_t0}, s{S_t0}, 1024")
    I("s_waitcnt vmcnt(0) lgkmcnt(0)")
    finish()

c_prog(False)
e.label("L_c_att")
c_prog(True)

e.label("L_end")
I("s_endpgm")
e.raw('.section .rodata,"a"')
e.raw(".p2align 6")
e.raw(f".amdhsa_kernel {NAME}_kernel")
e.raw("  .amdhsa_next_free_vgpr 256")
e.raw("  .amdhsa_next_free_sgpr 102")
e.raw("  .amdhsa_accum_offset 128")
e.raw("  .amdhsa_group_segment_fixed_size 0")
e.raw("  .amdhsa_kernarg_size 80")
e.raw("  .amdhsa_user_sgpr_count 2")
e.raw("  .amdhsa_user_sgpr_kernarg_segment_ptr 1")
e.raw("  .amdhsa_system_sgpr_workgroup_id_x 1")
e.raw(".end_amdhsa_kernel")
sys.stdout.write(e.text())
sys.stderr.write(f"instructions {e.nins} nop-states {e.nops}\n")
```

```python
import sys, struct
from emit import Em

NAME = "gated_mix__sliding_local_dilated__dense_activation_relu__prompt"
OPT = dict(padt=6000, padk=-1, padr=0, stamp=0, D=4, DF=5, D2=5, codepf=1, spin=400000, lround=0, side=2, sidef=2, side2=3,
           ld=6, thr=5, pre=4, pfd=18, ackb=10, cprio=2, dummy=0, sch=1, tm=0, qb=0, rotq=2, spf=2, tearly=0, tB=0, tfull=0, th=6, gap=1, kc=30, kh=52, ko=64, lowp=1, tatt=0, m32=0, fp=8, u19=0, tha=6, of=0, eg=1, pfe=1, hinit=1)
CST = ["s0", "s2", "s4", "s6", "s8", "s10", "s12", "c_end"]
HST = ["h_b0", "h_b7", "h_p2", "h_late", "h_o", "h_own", "h_rcv", "h_sum"]
for a in sys.argv[1:]:
    k, v = a.split("=")
    if k == "cst": CST = v.split(",")
    elif k == "hst": HST = v.split(",")
    else:
        assert k in OPT, k
        OPT[k] = int(v)
STAMP = OPT["stamp"]; M = OPT["m32"]; EG = OPT["eg"]
assert not (M and EG)
if EG: OPT["DF"] = 4
GA_OFF = (9 << 20) + (512 << 10)
def f2u(x): return struct.unpack("<I", struct.pack("<f", x))[0]

PART_OFF = 10 << 20
INB_OFF = 32 << 20
STAMP_OFF = 33 << 20
WS_BYTES = 36 << 20
SLOT = 16384
HALO_LDS = 7 * SLOT
EXCH_LDS = 8 * SLOT
EV_LDS = EXCH_LDS + 20480
ZERO_LDS = EV_LDS + 256
GW_LDS = EV_LDS + 1024
GB_LDS = EV_LDS + 2048
NEG = f2u(-1e30)

e = Em()
I = e.I
def vr(b, n=4): return f"v[{b}:{b+n-1}]"
def ar(b, n=4): return f"a[{b}:{b+n-1}]"
def srd(b): return f"s[{b}:{b+3}]"
MF = "v_mfma_f32_16x16x32_bf16"
M32 = "v_mfma_f32_32x32x16_bf16"

S_X, S_W, S_WS, S_OUT, S_W2, S_WO, S_GW = 24, 28, 32, 36, 40, 44, 48
S_INB = 52; S_DBG = 54
S_w, S_r, S_jj, S_rot, S_q, S_m0b, S_j1 = 60, 61, 62, 63, 64, 65, 66
S_t0, S_t1, S_t2 = 3, 67, 68
S_BUD = 69; S_EV = 70; S_SOFF = 71
S_POLL = 74; S_MYIN = 75; S_CEXP = 76; S_THR = 77; S_W4 = 79
S_KG = 80; S_WK = 84
S_COL = 88; S_A2 = 89; S_B2 = 90; S_BO = 91; S_PB = 92; S_J32 = 93; S_GIN = 94; S_P = 95
S_STAMP = 4
EVD = {}
def evd(name):
    if name not in EVD: EVD[name] = len(EVD)
    assert EVD[name] < 16
    return EVD[name] * 16
role = ["H"]
def stamp(name):
    L = CST if role[0] == "C" else HST
    if name == "end": idx = 8
    elif name in L: idx = L.index(name)
    else: return
    if STAMP == 2 and idx < 4:
        I(f"s_memtime s[{S_STAMP+2*idx}:{S_STAMP+2*idx+1}]"); I(f"s_memrealtime s[{S_STAMP+2*idx+8}:{S_STAMP+2*idx+9}]")
    elif STAMP == 3: I(f"s_memrealtime s[{S_STAMP+2*idx}:{S_STAMP+2*idx+1}]")
    elif STAMP: I(f"s_memtime s[{S_STAMP+2*idx}:{S_STAMP+2*idx+1}]")
uid = [0]
def U(p):
    uid[0] += 1
    return f"L_{p}{uid[0]}"
def reset():
    e.vmq = [[[], 0]]; e.lgq = [[[], 0]]; e.hist = []
V_L16 = 16; V_EVW = 17; V_CHK = 3
SLOW = []
def flush_slow():
    for l in SLOW: e.raw(l)
    SLOW.clear()
def spin_tail(lp, ok):
    return [f"    s_sub_u32 s{S_BUD}, s{S_BUD}, 1", f"    s_cbranch_scc0 {lp}", f"    s_mov_b32 s{S_BUD}, 0", f"    s_branch {ok}"]
def dsig(name):
    I(f"s_add_u32 m0, s{S_W4}, {EV_LDS + evd(name)}")
    I("s_mov_b64 exec, 1")
    I(f"buffer_load_dword v{V_L16}, {srd(S_WO)}, s{S_WO+2} offen lds", tag="dsig")
    I("s_mov_b64 exec, -1")
def d_read(name, tag): I(f"ds_read_b32 v{V_CHK}, v{V_EVW} offset:{evd(name)}", tag=tag)
def d_check(name, tag):
    ok = U("ok"); lp = U("sp")
    e.wait(lg=tag)
    I(f"v_cmp_ne_u32 vcc, 0, v{V_CHK}")
    I(f"s_cbranch_vccnz {lp}")
    e.label(ok)
    SLOW.extend([f"{lp}:", f"    ds_read_b32 v{V_CHK}, v{V_EVW} offset:{evd(name)}", "    s_waitcnt lgkmcnt(0)", f"    v_cmp_ne_u32 vcc, 0, v{V_CHK}",
                 f"    s_cbranch_vccz {ok}", "    s_sleep 1"] + spin_tail(lp, ok))
def throttle():
    n = OPT["thr"]
    I(f"s_waitcnt vmcnt({n})")
    for q in e.vmq: q[1] = max(q[1], len(q[0]) - n)
def poll_load():
    I(f"s_load_dword s{S_POLL}, s[{S_INB}:{S_INB+1}], s{S_MYIN} glc")
def poll_check(mask):
    ok = U("pk"); lp = U("pl")
    I(f"s_andn2_b32 s{S_EV}, {mask}, s{S_POLL}")
    I(f"s_cbranch_scc1 {lp}")
    e.label(ok)
    SLOW.extend([f"{lp}:", "    s_waitcnt lgkmcnt(0)", f"    s_andn2_b32 s{S_EV}, {mask}, s{S_POLL}", f"    s_cbranch_scc0 {ok}",
                 f"    s_load_dword s{S_POLL}, s[{S_INB}:{S_INB+1}], s{S_MYIN} glc"] + spin_tail(lp, ok))
def push_group(bit_fn, ds):
    bit_fn()
    for d in ds:
        I(f"s_xor_b32 s{S_t0}, s{S_MYIN}, {d*512}")
        I(f"s_atomic_or s{S_t2}, s[{S_INB}:{S_INB+1}], s{S_t0}")
def ownbit(b):
    def f():
        I(f"s_lshl_b32 s{S_t2}, s{S_jj}, 2"); I(f"s_lshl_b32 s{S_t2}, {1<<b}, s{S_t2}")
    return f
def mk_srd(b, p, nbytes):
    I(f"s_mov_b32 s{b}, s{p}")
    I(f"s_and_b32 s{b+1}, s{p+1}, 0xffff")
    I(f"s_mov_b32 s{b+2}, {nbytes}")
    I(f"s_mov_b32 s{b+3}, 0x20000")
def b2_voffs(dst):
    I("v_lshrrev_b32 v1, 3, v0")
    if M:
        I("v_bfe_u32 v2, v0, 4, 1")
        I("v_lshlrev_b32 v2, 2, v2")
    else:
        I("v_lshrrev_b32 v2, 4, v0")
        I("v_lshlrev_b32 v2, 1, v2")
    I(f"v_and_b32 v{dst}, 7, v0")
    I(f"v_xor_b32 v{dst}, v{dst}, v2")
    I(f"v_lshlrev_b32 v{dst}, 4, v{dst}")
    I(f"v_lshl_add_u32 v{dst}, v1, 10, v{dst}")
    for i in range(1, 4): I(f"v_add_u32 v{dst+i}, {i*7168}, v{dst}")
def late_scalars():
    I(f"s_lshl_b32 s{S_W4}, s{S_w}, 2")
    I(f"s_mov_b32 s{S_BUD}, {OPT['spin']}")
    I(f"s_and_b32 s{S_j1}, s{S_jj}, 1")
    I(f"s_lshl_b32 s{S_t0}, s{S_jj}, 8")
    I(f"s_lshr_b32 s{S_t1}, s{S_w}, 1")
    I(f"s_lshl_b32 s{S_t1}, s{S_t1}, 7")
    I(f"s_add_u32 s{S_t0}, s{S_t0}, s{S_t1}")
    I(f"s_and_b32 s{S_t1}, s{S_w}, 1")
    I(f"s_lshl_b32 s{S_t1}, s{S_t1}, 15")
    I(f"s_add_u32 s{S_t0}, s{S_t0}, s{S_t1}")
    I(f"s_mul_i32 s{S_B2}, s{S_q}, {14*32768}")
    I(f"s_add_u32 s{S_B2}, s{S_B2}, s{S_t0}")
    I(f"s_lshl_b32 s{S_BO}, s{S_q}, 17")
    I(f"s_add_u32 s{S_BO}, s{S_BO}, s{S_t0}")
    I(f"s_lshl_b32 s{S_J32}, s{S_j1}, 16")
    I(f"s_lshl_b32 s{S_t0}, s{S_r}, 2")
    I(f"s_add_u32 s{S_t0}, s{S_t0}, s{S_q}")
    I(f"s_mul_i32 s{S_A2}, s{S_t0}, {18*8192}")
    I(f"s_lshl_b32 s{S_t1}, s{S_w}, 11")
    I(f"s_add_u32 s{S_A2}, s{S_A2}, s{S_t1}")
    I(f"s_lshl_b32 s{S_MYIN}, s{S_t0}, 2")
    I(f"s_add_u32 s{S_MYIN}, s{S_MYIN}, s{S_jj}")
    I(f"s_lshl_b32 s{S_MYIN}, s{S_MYIN}, 2")
    I(f"s_add_u32 s{S_MYIN}, s{S_MYIN}, s{S_w}")
    I(f"s_lshl_b32 s{S_MYIN}, s{S_MYIN}, 7")
    I(f"v_lshlrev_b32 v{V_L16}, 4, v0")
    I(f"v_and_b32 v{V_EVW}, 3, v0")
    I(f"v_lshlrev_b32 v{V_EVW}, 2, v{V_EVW}")
    I(f"v_add_u32 v{V_EVW}, {EV_LDS}, v{V_EVW}")
def common_ptrs():
    I(f"s_add_u32 s{S_INB}, s22, {INB_OFF}")
    I(f"s_addc_u32 s{S_INB+1}, s23, 0")
    I(f"s_lshl_b32 s{S_t0}, s{S_r}, 4")
    I(f"s_add_u32 s{S_DBG}, s20, s{S_t0}")
    I(f"s_addc_u32 s{S_DBG+1}, s21, 0")
    mk_srd(S_WS, 22, WS_BYTES)
    mk_srd(S_W2, 14, 1792 * 1024)
    mk_srd(S_WO, 8, 512 * 1024)
def dma4(voff, srdb, tag):
    for i in range(4):
        I(f"buffer_load_dwordx4 v{voff+i}, {srd(srdb)}, s{S_SOFF} offen offset:{i*1024} lds", tag=tag)
def b2_unit(g, voff, sig=True):
    I(f"s_add_u32 m0, s{S_m0b}, {g*SLOT}")
    if g < 7: I(f"s_add_u32 s{S_SOFF}, s{S_B2}, {g*65536}")
    else:
        I(f"s_xor_b32 s{S_SOFF}, s{S_J32}, {((g-7)^1)*65536}")
        I(f"s_add_u32 s{S_SOFF}, s{S_SOFF}, s{S_BO}")
    dma4(voff, S_W2 if g < 7 else S_WO, f"b{g}")
    if sig: dsig(f"Lb{g}")
def a2_soff(lam, dst):
    if lam < 14: I(f"s_add_u32 s{dst}, s{S_A2}, {lam*8192}")
    else:
        I(f"s_lshr_b32 s{dst}, s{S_J32}, 2"); I(f"s_xor_b32 s{dst}, s{dst}, {((lam-14)^2)*8192}")
        I(f"s_add_u32 s{dst}, s{dst}, s{S_A2}"); I(f"s_add_u32 s{dst}, s{dst}, {14*8192}")
def after_karg():
    I("s_waitcnt lgkmcnt(0)")
    if STAMP:
        I("s_memtime s[100:101]")
        I("s_mov_b32 s72, s96")
        I("s_mov_b32 s73, s98")
def finish():
    if STAMP:
        I("s_waitcnt vmcnt(0)")
        stamp("end")
        I("s_memrealtime s[22:23]")
        I("s_waitcnt lgkmcnt(0)")
        I(f"s_lshl_b32 s{S_t0}, s2, 3")
        I(f"s_add_u32 s{S_t0}, s{S_t0}, s{S_w}")
        if role[0] == "H": I(f"s_add_u32 s{S_t0}, s{S_t0}, 4")
        I(f"s_lshl_b32 s{S_t0}, s{S_t0}, 6")
        I(f"s_add_u32 s{S_t0}, s{S_t0}, {STAMP_OFF}")
        I(f"v_mov_b32 v2, s{S_t0}")
        for k in range(9): I(f"v_mov_b32 v{32+k}, s{S_STAMP+2*k}")
        I("v_mov_b32 v41, s73"); I("v_mov_b32 v42, s22"); I("v_mov_b32 v43, s72"); I("v_mov_b32 v44, s100")
        I(f"v_mov_b32 v45, s{S_BUD}"); I("v_mov_b32 v46, 0")
        I("s_mov_b64 exec, 1")
        for k in range(4): I(f"buffer_store_dwordx4 {vr(32+4*k)}, v2, {srd(S_WS)}, 0 offen offset:{16*k}")
    if STAMP >= 3:
        if OPT["padk"] >= 0 and (OPT["padr"] == 1) == (role[0] == "H"):
            I(f"s_sub_u32 s24, s{S_STAMP+2*OPT['padk']}, s{73 if STAMP == 3 else 72}")
            if STAMP == 4: I("s_lshr_b32 s24, s24, 4")
        else: I("s_mov_b32 s24, 0")
        I(f"s_add_u32 s24, s24, {OPT['padt']}")
        l = U("pad")
        e.label(l)
        I("s_memrealtime s[26:27]"); I("s_waitcnt lgkmcnt(0)"); I("s_sub_u32 s25, s26, s73"); I("s_cmp_lt_u32 s25, s24"); I(f"s_cbranch_scc1 {l}")
    I("s_endpgm")
    flush_slow()
def units(att):
    L = []
    for u in range(4): L += [("x", u, 0), ("x", u, 1), ("g", 0, u), ("g", 1, u)]
    L += [("g", 2, u) for u in range(4)]
    if not att: L += [("g", 3, 0), ("g", 3, 1)]
    return L
def phys(att, k):
    if not att: return (k - 14) % 9
    i = (k - 13) % 8
    return 8 if i == 7 else i
QSLOT = phys(True, 13)
SIGG = (2, 3, 4, 6, 7)
CHKG = {2: 2, 3: 3, 4: 4, 5: 6, 6: 6, 8: 7, 7: 7}

class Stream:
    def __init__(self, steps, depth, ring):
        self.steps = steps; self.side = []; self.after = {}; self.D = depth; self.ring = ring
        assert len(ring) >= depth + 2
    def add(self, ready, deadline, fns):
        for f in fns: self.side.append([ready, deadline, f])
    def aft(self, k, f):
        prev = self.after.get(k)
        self.after[k] = (lambda: (prev(), f())) if prev else f
    def issue(self, k, half):
        st = self.steps[k]
        b = self.ring[k % len(self.ring)]
        a, off, d2 = st["rd"]
        if half == 0:
            if "pre" in st: st["pre"]()
            I(f"ds_read_b64_tr_b16 {vr(b,2)}, v{a} offset:{off}", tag=f"w{k}")
        else:
            I(f"ds_read_b64_tr_b16 {vr(b+2,2)}, v{a} offset:{off+d2}", tag=f"w{k}")
            if "post" in st: st["post"](k)
    def pump(self, k, n):
        c = 0
        while self.side and c < n and self.side[0][0] <= k:
            r = self.side.pop(0)[2]()
            c += r if isinstance(r, int) else 1
    def run(self, rate):
        n = len(self.steps); D = self.D
        for k in range(min(D, n)):
            self.issue(k, 0); self.issue(k, 1)
        for k in range(n):
            st = self.steps[k]
            while any(s[1] <= k for s in self.side): self.side.pop(0)[2]()
            if "need" in st: st["need"]()
            if k % 2 == 0 and k + 1 < n: e.wait(lg=f"w{k+1}")
            e.wait(lg=f"w{k}")
            mfs = st["mf"](vr(self.ring[k % len(self.ring)]), st)
            I(mfs[0])
            if k + D < n: self.issue(k + D, 0)
            if len(mfs) > 1:
                self.pump(k, (rate + 1) // 2)
                I(mfs[1])
            if k + D < n: self.issue(k + D, 1)
            for m in mfs[2:]: I(m)
            self.pump(k, rate // 2 if len(mfs) > 1 else rate)
            if k in self.after: self.after[k]()
            stamp(f"k{k}")
        while self.side: self.side.pop(0)[2]()
def cost(n, f):
    def g():
        f(); return n
    return g

def vtouch(att, dst=22):
    P = 3072 if att else 3584; wp = 6 if att else 12
    if dst == 22: mk_srd(S_W, wp, 512 * P)
    I(f"s_lshl_b32 s{S_t0}, s{S_r}, 2"); I(f"s_add_u32 s{S_t0}, s{S_t0}, s{S_w}")
    I(f"s_mul_i32 s{S_t1}, s{S_t0}, {8*P}")
    I(f"s_mul_i32 s{S_t2}, s{S_q}, {256 if att else 896}"); I(f"s_add_u32 s{S_t1}, s{S_t1}, s{S_t2}")
    I("v_and_b32 v1, 7, v0"); I(f"v_mul_u32_u24 v1, {P}, v1")
    I(f"s_lshl_b32 s{S_t2}, s{S_j1}, 7"); I(f"s_add_u32 s{S_t2}, s{S_t2}, s{S_t1}")
    I("v_lshlrev_b32 v2, 7, v0")
    I("s_mov_b64 exec, 0xff")
    I(f"buffer_load_dword v{dst}, v1, {srd(S_W)}, s{S_t2} offen offset:{2048 if att else 512}")
    if OPT["tB"]: I(f"buffer_load_dword v{dst}, v1, {srd(S_W)}, s{S_t2} offen offset:{0 if att else 256}")
    if not att:
        I(f"s_mul_i32 s{S_t2}, s{S_j1}, {4*P}"); I(f"s_add_u32 s{S_t2}, s{S_t2}, s{S_t1}")
        I("s_mov_b64 exec, 0xf")
        I(f"buffer_load_dword v{dst}, v1, {srd(S_W)}, s{S_t2} offen offset:768")
    I(f"s_lshl_b32 s{S_t0}, s{S_t0}, 2"); I(f"s_add_u32 s{S_t0}, s{S_t0}, s{S_jj}")
    F_ = 2 if OPT["tfull"] else 1
    if OPT["tfull"]: I(f"s_and_b32 s{S_t0}, s{S_t0}, 127"); I(f"s_lshl_b32 s{S_t0}, s{S_t0}, 1")
    I(f"s_mul_i32 s{S_t1}, s{S_t0}, 1792"); I(f"s_mul_i32 s{S_t2}, s{S_q}, {448*1024}"); I(f"s_add_u32 s{S_t1}, s{S_t1}, s{S_t2}")
    I(f"s_mov_b64 exec, {(1 << (14*F_)) - 1}")
    I(f"buffer_load_dword v{dst}, v2, {srd(S_W2)}, s{S_t1} offen")
    I(f"s_lshl_b32 s{S_t1}, s{S_t0}, 9"); I(f"s_lshl_b32 s{S_t2}, s{S_q}, 17"); I(f"s_add_u32 s{S_t1}, s{S_t1}, s{S_t2}")
    I(f"s_mov_b64 exec, {(1 << (4*F_)) - 1}")
    I(f"buffer_load_dword v{dst}, v2, {srd(S_WO)}, s{S_t1} offen")
    I("s_mov_b64 exec, -1")
def gate_math(z0, z1, G, tmp):
    T = [f"v_cvt_pk_bf16_f32 v{tmp}, v{z0}, v{z1}", f"v_lshlrev_b32 v{G}, 16, v{tmp}", f"v_and_b32 v{G+2}, 0xffff0000, v{tmp}"]
    T += [f"v_mul_f32 v{G+2*p}, {f2u(-1.4426950408889634)}, v{G+2*p}" for p in range(2)]
    T += [f"v_exp_f32 v{G+2*p}, v{G+2*p}" for p in range(2)]
    T += [f"v_add_f32 v{G+2*p}, 1.0, v{G+2*p}" for p in range(2)]
    T += [f"v_rcp_f32 v{G+2*p}, v{G+2*p}" for p in range(2)]
    T += [f"v_cvt_pk_bf16_f32 v{tmp}, v{G}, v{G+2}", f"v_lshlrev_b32 v{G}, 16, v{tmp}", f"v_and_b32 v{G+2}, 0xffff0000, v{tmp}"]
    T += [f"v_sub_f32 v{G+1+2*p}, 1.0, v{G+2*p}" for p in range(2)]
    T += [f"v_cvt_pk_bf16_f32 v{tmp}, v{G+1}, v{G+3}", f"v_lshlrev_b32 v{G+1}, 16, v{tmp}", f"v_and_b32 v{G+3}, 0xffff0000, v{tmp}"]
    T += [f"v_max_f32 v{G+2*p}, {f2u(2.0**-60)}, v{G+2*p}" for p in range(2)]
    T += [f"v_rcp_f32 v{G+4+p}, v{G+2*p}" for p in range(2)]
    T += [f"v_mul_f32 v{G+1+2*p}, v{G+4+p}, v{G+1+2*p}" for p in range(2)]
    return T
def vtouch2():
    I(f"s_lshl_b32 s{S_t0}, s{S_r}, 2"); I(f"s_add_u32 s{S_t0}, s{S_t0}, s{S_w}")
    I(f"s_lshl_b32 s{S_t0}, s{S_t0}, 1"); I(f"s_add_u32 s{S_t0}, s{S_t0}, s{S_j1}")
    I("v_lshlrev_b32 v2, 7, v0")
    I(f"s_mul_i32 s{S_t1}, s{S_t0}, 3584"); I(f"s_mul_i32 s{S_t2}, s{S_q}, {448*1024}"); I(f"s_add_u32 s{S_t1}, s{S_t1}, s{S_t2}")
    I(f"s_mov_b64 exec, {(1 << 28) - 1}")
    I(f"buffer_load_dword v{30 if M else 18}, v2, {srd(S_W2)}, s{S_t1} offen")
    I(f"s_lshl_b32 s{S_t1}, s{S_t0}, 10"); I(f"s_lshl_b32 s{S_t2}, s{S_q}, 17"); I(f"s_add_u32 s{S_t1}, s{S_t1}, s{S_t2}")
    I("s_mov_b64 exec, 0xff")
    I(f"buffer_load_dword v{30 if M else 18}, v2, {srd(S_WO)}, s{S_t1} offen")
    I("s_mov_b64 exec, -1")
e.raw(f"; @launch grid=(256,1,1) block=(512,1,1) lds=163840")
e.raw('.amdgcn_target "amdgcn-amd-amdhsa--gfx950"')
e.raw(".text")
e.raw(f".globl {NAME}_kernel")
e.raw(".p2align 8")
e.raw(f".type {NAME}_kernel,@function")
e.label(f"{NAME}_kernel")
I("s_load_dwordx16 s[4:19], s[0:1], 0")
I("s_load_dwordx4 s[20:23], s[0:1], 64")
if STAMP:
    I("s_memrealtime s[98:99]")
    I("s_memtime s[96:97]")
if OPT["codepf"] and OPT["pfe"]:
    I("s_cmp_lt_u32 s2, 8")
    I("s_cbranch_scc0 L_nopf")
    e.cond_begin()
    I("s_getpc_b64 s[56:57]")
    e.label("L_pc")
    I("v_lshlrev_b32 v2, 7, v0")
    I("v_min_u32 v2, L_end-L_pc, v2")
    I("global_load_dword v23, v2, s[56:57]")
    e.cond_end()
    e.label("L_nopf")
I("v_lshrrev_b32 v1, 6, v0")
I("s_cmp_ge_u32 s2, 256")
I("s_cbranch_scc1 L_end")
I(f"v_readfirstlane_b32 s{S_t2}, v1")
I("v_and_b32 v0, 63, v0")
I(f"s_bfe_u32 s{S_q}, s2, 0x20001")
I(f"s_and_b32 s{S_t0}, s2, 1")
I(f"s_lshl_b32 s{S_t0}, s{S_t0}, 3")
I(f"s_bfe_u32 s{S_r}, s2, 0x30003")
I(f"s_or_b32 s{S_r}, s{S_r}, s{S_t0}")
I(f"s_lshr_b32 s{S_jj}, s2, 6")
if OPT["rotq"] == 2:
    I(f"s_lshr_b32 s{S_rot}, s{S_t0}, 2")
    I(f"s_add_u32 s{S_rot}, s{S_rot}, s{S_q}")
    I(f"s_and_b32 s{S_t0}, s{S_r}, 1")
    I(f"s_add_u32 s{S_rot}, s{S_rot}, s{S_t0}")
elif OPT["rotq"]: I(f"s_add_u32 s{S_rot}, s{S_r}, s{S_q}")
else: I(f"s_mov_b32 s{S_rot}, s{S_r}")
I(f"s_and_b32 s{S_w}, s{S_t2}, 3")
I(f"s_lshl_b32 s{S_m0b}, s{S_w}, 12")
I(f"s_cmp_lt_u32 s{S_t2}, 4")
I("s_cbranch_scc1 L_C")

H_XD = 4; H_WD = 8; H_BD = 12; H_ACC = 64
H_G = 18 if M else 20; H_BR = 20 if M else 24
H_RING = [32, 36, 40, 44, 48, 52, 24, 28] if M else [32, 36, 40, 44, 48, 52, 12]
def a2r(lam, p):
    if lam < 16: return ar(lam * 8 + p * 4)
    return vr((56 if lam == 16 else 4) + p * 4)
I("s_setprio 3")
I("v_lshrrev_b32 v32, 4, v0")
I("v_lshrrev_b32 v36, 3, v0")
I("v_and_b32 v37, 7, v0")
I("v_xor_b32 v39, v37, v32")
I("v_lshlrev_b32 v39, 4, v39")
I(f"v_lshl_add_u32 v{H_XD}, v36, 11, v39")
I(f"v_xor_b32 v{H_XD+1}, 64, v{H_XD}")
I(f"v_add_u32 v{H_XD+2}, {14*1024}, v{H_XD+1}")
I(f"v_add_u32 v{H_XD+3}, {14*1024}, v{H_XD}")
I(f"s_lshl_b32 s{S_t0}, s{S_r}, 17")
I(f"s_lshl_b32 s{S_t1}, s{S_w}, 15")
I(f"s_add_u32 s{S_t0}, s{S_t0}, s{S_t1}")
for g4 in range(4):
    I(f"s_add_u32 s{S_WK+g4}, s{S_rot}, {g4}")
    I(f"s_and_b32 s{S_WK+g4}, s{S_WK+g4}, 3")
    I(f"s_lshl_b32 s{S_KG+g4}, s{S_WK+g4}, 8")
    I(f"s_add_u32 s{S_KG+g4}, s{S_KG+g4}, s{S_t0}")
I(f"s_mov_b32 s{S_X+2}, {2048*1024}")
I(f"s_mov_b32 s{S_X+3}, 0x20000")
assert phys(False, 0) == 4 and phys(False, 1) == 5 and phys(True, 0) == 3 and phys(True, 1) == 4 and phys(False, 2) == 6 and phys(True, 2) == 5
I(f"s_cmp_ge_u32 s{S_jj}, 2")
I(f"s_cselect_b32 s{S_t2}, 3, 4")
I(f"s_mov_b32 s{S_W+2}, {512*3584}")
I(f"s_cmov_b32 s{S_W+2}, {512*3072}")
I(f"s_mov_b32 s{S_P}, 3584")
I(f"s_cmov_b32 s{S_P}, 3072")
I(f"s_lshl_b32 s{S_t2}, s{S_t2}, 14")
I(f"s_add_u32 s{S_t2}, s{S_t2}, s{S_m0b}")
I(f"s_mov_b32 m0, s{S_t2}")
I(f"s_add_u32 s{S_SOFF}, s{S_KG}, 128")
after_karg()
I(f"s_mov_b32 s{S_X}, s4")
I(f"s_and_b32 s{S_X+1}, s5, 0xffff")
for i in range(4): I(f"buffer_load_dwordx4 v{H_XD+i}, {srd(S_X)}, s{S_KG} offen offset:{i*1024} lds", tag="u0")
I(f"s_add_u32 m0, s{S_t2}, {SLOT}")
I(f"s_mov_b32 s{S_W+3}, 0x20000")
dma4(H_XD, S_X, "u1")
I(f"s_lshl_b32 s{S_t0}, s{S_w}, 5")
I(f"v_add_u32 v38, s{S_t0}, v36")
I(f"v_mul_lo_u32 v38, v38, s{S_P}")
I(f"s_mul_i32 s{S_COL}, s{S_q}, 896")
I(f"s_lshl_b32 s{S_t0}, s{S_q}, 8")
I(f"s_add_u32 s{S_t0}, s{S_t0}, {1024-256}")
I(f"s_cmp_ge_u32 s{S_jj}, 2")
I(f"s_cselect_b32 s{S_W}, s6, s12")
I(f"s_cselect_b32 s{S_W+1}, s7, s13")
I(f"s_cselect_b32 s{S_COL}, s{S_t0}, s{S_COL}")
I(f"s_cselect_b32 s{S_t0}, 1, {2 if M else 1}")
I(f"s_cselect_b32 s{S_t1}, 64, {0 if M else 64}")
I(f"s_and_b32 s{S_W+1}, s{S_W+1}, 0xffff")
I("v_and_b32 v39, 1, v32")
I(f"v_lshlrev_b32 v39, s{S_t0}, v39")
I("v_xor_b32 v39, v39, v37")
I("v_lshlrev_b32 v39, 4, v39")
I(f"v_add_u32 v{H_WD}, v38, v39")
I(f"v_xor_b32 v39, s{S_t1}, v39")
I(f"s_lshl_b32 s{S_t0}, s{S_P}, 3")
I(f"s_sub_u32 s{S_t0}, s{S_t0}, 1024")
I(f"v_add3_u32 v{H_WD+1}, v38, v39, s{S_t0}")
I(f"s_lshl_b32 s{S_t0}, s{S_t0}, 1")
I(f"v_add_u32 v{H_WD+2}, s{S_t0}, v{H_WD}")
I(f"v_add_u32 v{H_WD+3}, s{S_t0}, v{H_WD+1}")
I(f"s_lshl_b32 s{S_t0}, s{S_jj}, 7")
I(f"s_add_u32 s{S_COL}, s{S_COL}, s{S_t0}")
I(f"s_lshl_b32 s{S_t1}, s{S_P}, 7")
for g4 in range(4): I(f"s_mul_i32 s{S_WK+g4}, s{S_WK+g4}, s{S_t1}")
I(f"s_add_u32 m0, s{S_t2}, {2*SLOT}")
I(f"s_add_u32 s{S_SOFF}, s{S_WK}, s{S_COL}")
dma4(H_WD, S_W, "u2")
common_ptrs()
mk_srd(S_OUT, 18, 2048 * 1024)
mk_srd(S_GW, 16, 1024)
I(f"s_cmp_ge_u32 s{S_jj}, 2")
I("s_cbranch_scc1 L_h_att")
snapH = e.snapshot()

def h_prog(att):
    e.restore(snapH); e.hist = []
    UL = units(att)
    CH = [0, -1024, 1024] if att else [0, 256, 512]
    def issue(k):
        un = UL[k]
        I(f"s_add_u32 m0, s{S_m0b}, {phys(att,k)*SLOT}")
        if un[0] == "x":
            I(f"s_add_u32 s{S_SOFF}, s{S_KG+un[1]}, {un[2]*128}")
            dma4(H_XD, S_X, f"u{k}")
            if att and un[2] == 1: halo(un[1], f"u{k}")
            return
        _, c, u = un
        if c < 3:
            I(f"s_add_u32 s{S_SOFF}, s{S_WK+u}, s{S_COL}")
            if CH[c]: I(f"s_add_i32 s{S_SOFF}, s{S_SOFF}, {CH[c]}")
        else:
            KH = 256 * 3584
            if u == 0:
                I("v_lshrrev_b32 v2, 2, v0")
                if M:
                    I("v_lshrrev_b32 v1, 4, v0")
                    I("v_xor_b32 v2, v2, v1")
                I("v_and_b32 v2, 1, v2")
                I(f"v_mul_u32_u24 v1, {KH-64}, v2")
                for i in (0, 2): I(f"v_add_u32 v{H_WD+i}, v{H_WD+i}, v1")
                if not M: I(f"v_sub_u32 v1, {KH-64}, v1")
                for i in (1, 3): I(f"v_add_u32 v{H_WD+i}, v{H_WD+i}, v1")
                I(f"v_mul_u32_u24 v2, {2*KH}, v2")
                I(f"v_sub_u32 v{H_XD}, {KH}, v2")
                I(f"s_cmp_ge_u32 s{S_WK}, {KH}")
                I(f"s_cselect_b32 s{S_t0}, 1, 0")
            else:
                I(f"s_cmp_ge_u32 s{S_WK}, {KH}")
                I(f"s_cselect_b32 s{S_t1}, 1, 0")
                I(f"s_cmp_ge_u32 s{S_WK+1}, {KH}")
                I(f"s_cselect_b32 s{S_t0}, 1, 0")
                I(f"s_sub_u32 s{S_t0}, s{S_t0}, s{S_t1}")
            I(f"s_sub_u32 s{S_t1}, 0, s{S_t0}")
            for i in range(4): I(f"v_mad_i32_i24 v{H_WD+i}, v{H_XD}, s{S_t0 if (M or i % 2 == 0) else S_t1}, v{H_WD+i}")
            I(f"s_min_u32 s{S_SOFF}, s{S_WK+u}, s{S_WK+u+2}")
            I(f"s_add_u32 s{S_SOFF}, s{S_SOFF}, s{S_COL}")
            I(f"s_lshl_b32 s{S_t0}, s{S_jj}, 6")
            I(f"s_sub_u32 s{S_SOFF}, s{S_SOFF}, s{S_t0}")
            I(f"s_add_u32 s{S_SOFF}, s{S_SOFF}, 768")
        dma4(H_WD, S_W, f"u{k}")
    def w0(f):
        l = U("w0")
        I(f"s_cmp_eq_u32 s{S_w}, 0"); I(f"s_cbranch_scc0 {l}")
        e.cond_begin(); f(); e.cond_end(); e.label(l)
    def peer_issue(): w0(lambda: I(f"s_load_dword s{S_POLL}, s[{S_DBG}:{S_DBG+1}], 0 glc"))
    def peer():
        def f():
            lp = U("pp"); ok = U("po")
            I("s_waitcnt lgkmcnt(0)")
            I(f"s_cmp_ge_u32 s{S_POLL}, 16")
            I(f"s_cbranch_scc0 {lp}")
            e.label(ok)
            SLOW.extend([f"{lp}:", "    s_sleep 8", f"    s_load_dword s{S_POLL}, s[{S_DBG}:{S_DBG+1}], 0 glc", "    s_waitcnt lgkmcnt(0)",
                         f"    s_cmp_ge_u32 s{S_POLL}, 16", f"    s_cbranch_scc1 {ok}"] + spin_tail(lp, ok))
        w0(f)
        I(f"s_mov_b32 s{S_POLL}, 0")
    V_Q = 64; V_S = 96; V_BIAS = 32; V_RINV = 40; V_T = 48; A_KV = 64; A_ONES = 96; V_AD = 24 if M else 56
    def att_setup(part):
        if part == 0:
            I(f"s_add_u32 s{S_t0}, s{S_m0b}, {EXCH_LDS+4096}")
            I(f"v_add_u32 v{V_AD}, s{S_t0}, v{V_L16}")
            I("v_bfe_u32 v1, v0, 3, 1")
            I("v_lshlrev_b32 v1, 12, v1")
            I(f"v_sub_u32 v{V_AD+2}, v{V_AD}, v1")
            I("v_xor_b32 v1, 4096, v1")
            I(f"v_sub_u32 v{V_AD+1}, v{V_AD}, v1")
            I("v_lshrrev_b32 v1, 5, v0")
            I("v_lshlrev_b32 v1, 12, v1")
            I(f"v_sub_u32 v{V_AD+4}, v{V_AD}, v1")
            I("v_xor_b32 v1, 4096, v1")
            I(f"v_sub_u32 v{V_AD+3}, v{V_AD}, v1")
            I(f"v_add_u32 v{V_AD+5}, {(QSLOT*SLOT - EXCH_LDS - 4096) & 0xffffffff}, v{V_AD}")
            I(f"s_mov_b32 s{S_CEXP}, {f2u(0.25*1.4426950408889634)}")
            I(f"s_or_b32 s{S_t0}, s{S_r}, s{S_w}")
            I(f"s_cmp_eq_u32 s{S_t0}, 0")
            I(f"s_cselect_b32 s{S_THR}, -16, -9")
            I(f"v_mov_b32 v{V_T}, 0x3f803f80")
            for k in range(4): I(f"v_accvgpr_write_b32 a{A_ONES+k}, v{V_T}")
            I(f"v_mov_b32 v{V_T}, {NEG}")
            I(f"v_and_b32 v{V_T+1}, 15, v0")
            I(f"v_lshrrev_b32 v{V_T+2}, 4, v0")
            I(f"v_lshlrev_b32 v{V_T+2}, 2, v{V_T+2}")
        elif part in (1, 2):
            p = part - 1; x8 = 8 if p == 0 else 0
            I(f"v_xor_b32 v{V_T+3}, {x8}, v{V_T+1}")
            I(f"v_xor_b32 v{V_T+4}, {x8}, v{V_T+2}")
            I(f"v_sub_u32 v{V_T+3}, v{V_T+3}, v{V_T+4}")
            for r in range(4):
                I(f"v_subrev_u32 v{V_T+4}, {r}, v{V_T+3}")
                I(f"v_cmp_lt_u32 vcc, 7, v{V_T+4}")
                I(f"v_cmp_lt_i32 s[56:57], s{S_THR}, v{V_T+4}")
                I("s_and_b64 vcc, vcc, s[56:57]")
                I(f"v_cndmask_b32 v{V_BIAS+p*4+r}, 0, v{V_T}, vcc")
        else:
            for k in range(16): I(f"v_mov_b32 v{V_Q+16*(part-3)+k}, 0")
            I("s_mov_b32 s56, 0xff00ff00"); I("s_mov_b32 s57, 0xff00ff00")
            I("s_not_b64 s[58:59], s[56:57]")
    def br_setup():
        if M:
            I("v_bfe_u32 v1, v0, 2, 2")
            I("v_lshrrev_b32 v2, 5, v0")
            I("v_lshl_add_u32 v1, v2, 2, v1")
            I("v_lshlrev_b32 v1, 7, v1")
            I("v_bfe_u32 v2, v0, 4, 1")
            I("v_lshl_add_u32 v1, v2, 5, v1")
            I("v_bfe_u32 v2, v0, 3, 1")
            I("v_lshl_add_u32 v1, v2, 6, v1")
        else:
            I("v_lshrrev_b32 v1, 2, v0")
            I("v_bfe_u32 v2, v0, 3, 2")
            I("v_lshlrev_b32 v1, 7, v1")
            I("v_lshl_add_u32 v1, v2, 5, v1")
        I("v_and_b32 v2, 3, v0")
        I("v_lshl_add_u32 v1, v2, 3, v1")
        I(f"s_lshr_b32 s{S_t0}, s{S_q}, 1")
        I(f"s_lshl_b32 s{S_t0}, s{S_t0}, 13")
        I(f"s_and_b32 s{S_t1}, s{S_q}, 1")
        I(f"s_lshl_b32 s{S_t1}, s{S_t1}, 6")
        I(f"s_or_b32 s{S_t0}, s{S_t0}, s{S_t1}")
        I(f"v_xor_b32 v1, s{S_t0}, v1")
        for tau in range(4):
            cb = 3 - tau
            if M: I(f"v_xor_b32 v{H_BR+tau}, {(cb>>1)*8192 + (cb&1)*64}, v1")
            else:
                for tt in range(2): I(f"v_xor_b32 v{H_BR+2*tau+tt}, {(cb>>1)*8192 + (cb&1)*64 + tt*32}, v1")
        I(f"s_lshl_b32 s{S_PB}, s{S_r}, 2"); I(f"s_add_u32 s{S_PB}, s{S_PB}, s{S_jj}")
        I(f"s_mul_i32 s{S_PB}, s{S_PB}, {12*8192}")
        I(f"s_lshl_b32 s{S_t0}, s{S_w}, 11"); I(f"s_add_u32 s{S_PB}, s{S_PB}, s{S_t0}"); I(f"s_add_u32 s{S_PB}, s{S_PB}, {PART_OFF}")
    V_HV = 31 if M else 19
    def halo(u, tag):
        I(f"s_lshr_b32 s{S_t0}, s{S_m0b}, 2")
        I(f"s_add_u32 m0, s{S_t0}, {HALO_LDS + u*4096}")
        I(f"s_and_b32 s{S_t0}, s{S_KG+u}, 0x300")
        I(f"buffer_load_dwordx4 v{V_HV}, {srd(S_X)}, s{S_t0} offen lds", tag=tag)
    if att:
        I(f"s_and_b32 s{S_t1}, s{S_w}, 1")
        I(f"s_mul_i32 s{S_t1}, s{S_t1}, {1024+64}")
        I(f"v_xor_b32 v{V_HV}, s{S_t1}, v{H_XD}")
        I(f"s_lshl_b32 s{S_t0}, s{S_r}, 17")
        I(f"s_sub_u32 s{S_t0}, s{S_t0}, 16384")
        I(f"s_lshr_b32 s{S_t1}, s{S_w}, 1")
        I(f"s_lshl_b32 s{S_t1}, s{S_t1}, 7")
        I(f"s_add_u32 s{S_t0}, s{S_t0}, s{S_t1}")
        I(f"v_add_u32 v{V_HV}, s{S_t0}, v{V_HV}")
        I(f"v_max_i32 v{V_HV}, 0, v{V_HV}")
        halo(0, "u2")
    if EG and not att:
        I(f"s_lshl_b32 s{S_t0}, s{S_w}, 8")
        I(f"s_add_u32 m0, s{S_t0}, {GW_LDS}")
        I("v_lshlrev_b32 v1, 2, v0")
        I(f"buffer_load_dword v1, {srd(S_GW)}, s{S_t0} offen lds", tag="u2")
    PRE = OPT["pre"]
    for k in range(3, PRE + 1): issue(k)
    first = list(range(PRE + 1, 8))
    if att: sched = [first, [8, 9], [10], [11, 12, 13], [14], [15, 16, 17], [18], [] if OPT["u19"] else [19]]
    else: sched = [first, [8, 9], [10, 11], [12, 13], [14, 15], [16, 17], [18, 19], []]
    def gw_dma():
        I(f"s_mov_b32 m0, {GW_LDS}")
        w0(lambda: I(f"buffer_load_dwordx4 v{V_L16}, {srd(S_GW)}, 0 offen lds"))
    def inb_reset():
        for k in range(4):
            I(f"s_mov_b32 s{56+k}, 0")
            I(f"s_add_u32 s{S_t0}, s{S_MYIN}, {k*128}")
            I(f"s_atomic_swap s{56+k}, s[{S_INB}:{S_INB+1}], s{S_t0} glc")
    def count_in():
        I(f"s_mov_b32 s{S_EV}, 1")
        I("s_waitcnt lgkmcnt(0)")
        I(f"s_atomic_add s{S_EV}, s[{S_DBG}:{S_DBG+1}], 0")
    if OPT["hinit"]:
        late_scalars(); w0(inb_reset)
    extra = {1: lambda: ((w0(count_in) if OPT["hinit"] else late_scalars()), b2_voffs(H_BD)), 3: (gw_dma if not EG else lambda: None), 7: (br_setup if att or OPT["sch"] else lambda: (b2_unit(8, H_BD), br_setup()))}
    if att: extra.update({2: lambda: (att_setup(0), att_setup(1)), 4: lambda: (att_setup(2), att_setup(3)), 6: lambda: att_setup(4)})
    gk = [k for k, un in enumerate(UL) if un[0] == "g"]
    def bar(i, need=None):
        stamp(f"h_a{i}")
        if need is None and i < len(gk): need = gk[i]
        if need is not None: e.wait(vm=f"u{need}")
        if i == 6: peer()
        I("s_barrier"); stamp(f"h_b{i}")
    for i in range(8):
        bar(i)
        if i == 4: peer_issue()
        for k in sched[i]: issue(k)
        if i in extra: extra[i]()
        if i == (OPT["tha"] if att else OPT["th"]) and not OPT["tatt"]: vtouch(att, 30 if M else 18)
        if i == OPT["th"] and OPT["tatt"] and att: vtouch2()
    def a2_load(lam):
        a2_soff(lam, S_t1)
        for p in range(2):
            I(f"buffer_load_dwordx4 {a2r(lam,p)}, v{V_L16}, {srd(S_WS)}, s{S_t1} offen offset:{p*1024} sc1", tag=f"a{lam}")
    def a2_items(lams, gap=None):
        gap = OPT['gap']
        F = []
        for lam in lams:
            F.append(cost(9, lambda lam=lam: (a2_soff(lam, S_COL), I(f"buffer_load_dwordx4 {a2r(lam,0)}, v{V_L16}, {srd(S_WS)}, s{S_COL} offen sc1", tag=f"a{lam}x"))))
            F += [cost(9, lambda: None)] * (gap - 1)
            F.append(cost(9, lambda lam=lam: I(f"buffer_load_dwordx4 {a2r(lam,1)}, v{V_L16}, {srd(S_WS)}, s{S_COL} offen offset:1024 sc1", tag=f"a{lam}")))
            F += [cost(9, lambda: None)] * (gap - 1)
        return F
    Bu = lambda g: b2_unit(g, H_BD, False)
    SS = []
    ALL = (0, 1, 2, 3)
    side = {}
    if not att:
        if OPT["sch"] == 0:
            bar(8); Bu(0)
            bar(9); issue(20); Bu(1)
            bar(10); push_group(ownbit(0), ALL); issue(21); Bu(2)
            bar(11); push_group(ownbit(1), ALL); Bu(3); poll_load()
            bar(12); poll_check(0x11)
            for lam in range(4): a2_load(lam)
            Bu(4); poll_load()
            bar(13); poll_check(0x22)
            for lam in range(4, 8): a2_load(lam)
            Bu(5)
            bar(14)
        else:
            bar(8)
            bar(9); issue(20)
            bar(10); push_group(ownbit(0), ALL); issue(21)
            bar(11); push_group(ownbit(1), ALL); Bu(0); Bu(1); poll_load()
            bar(12); poll_check(0x11); a2_load(0); a2_load(1); poll_load()
            bar(13); a2_load(2); a2_load(3); b2_unit(2, H_BD)
            e.wait(vm="b1")
            bar(14); poll_check(0x22)
            side[(0, 0)] = lambda: SS[0].add(0, 999, a2_items((4, 5, 6, 7), 2))
        def f_o(): poll_check(0x300); SS[0].add(0, 999, a2_items((16, 17, 14, 15)))
    else:
        def kv_reads(m0, tag):
            for t in range(4):
                I(f"ds_read_b64 {ar(A_KV+8*t,2)}, v{m0} offset:{t*1024}", tag=f"{tag}{t}")
                I(f"ds_read_b128 {ar(A_KV+8*t+2)}, v{V_AD} offset:{t*1024}", tag=f"{tag}{t}")
                I(f"ds_read_b64 {ar(A_KV+8*t+6,2)}, v{m0+1} offset:{t*1024+8}", tag=f"{tag}{t}")
        bar(8)
        kv_reads(V_AD + 1, "k")
        e.wait(lg="k3")
        bar(9, 18 if OPT["u19"] else 19)
        def Preg(t, p): return V_Q + 8 * t + 4 * p
        for half, m in enumerate(("s[56:57]", "s[58:59]")):
            I(f"s_mov_b64 exec, {m}")
            for t in range(4):
                for p in range(2):
                    I(f"ds_read_b64 {vr(Preg(t,p)+2*half,2)}, v{V_AD+5} offset:{t*1024+p*8}", tag="q")
        I("s_mov_b64 exec, -1")
        stamp("h_q")
        e.wait(lg="q")
        un = [(i >> 1, i & 1) for i in range(8)]
        Sc = lambda i: V_S + 4 * i
        for i, (t, p) in enumerate(un): I(f"{MF} {vr(Sc(i))}, {ar(A_KV+8*t+4*p)}, {vr(Preg(t,p))}, {vr(V_BIAS+4*p)}")
        poll_load()
        if OPT["u19"]: issue(19); dsig("Lv3")
        Bu(0)
        m = [V_T + i for i in range(8)]
        for i in range(8):
            if OPT["lround"]:
                I(f"v_cvt_pk_bf16_f32 v1, v{Sc(i)}, v{Sc(i)+1}")
                I(f"v_cvt_pk_bf16_f32 v2, v{Sc(i)+2}, v{Sc(i)+3}")
                I(f"v_lshlrev_b32 v{Sc(i)}, 16, v1")
                I(f"v_and_b32 v{Sc(i)+1}, 0xffff0000, v1")
                I(f"v_lshlrev_b32 v{Sc(i)+2}, 16, v2")
                I(f"v_and_b32 v{Sc(i)+3}, 0xffff0000, v2")
            I(f"v_max3_f32 v{m[i]}, v{Sc(i)}, v{Sc(i)+1}, v{Sc(i)+2}")
            I(f"v_max_f32 v{m[i]}, v{m[i]}, v{Sc(i)+3}")
        for k in range(4): I(f"v_permlane32_swap_b32 v{m[2*k]}, v{m[2*k+1]}")
        for k in range(4): I(f"v_max_f32 v{m[2*k]}, v{m[2*k]}, v{m[2*k+1]}")
        for k in range(2): I(f"v_permlane16_swap_b32 v{m[4*k]}, v{m[4*k+2]}")
        for k in range(2): I(f"v_max_f32 v{m[4*k]}, v{m[4*k]}, v{m[4*k+2]}")
        for k in range(2): I(f"v_mul_f32 v{m[4*k+2]}, s{S_CEXP}, v{m[4*k]}")
        for k in range(2): I(f"v_mul_f32 v{m[4*k]}, s{S_CEXP}, v{m[4*k]}")
        for k in range(2): I(f"v_permlane16_swap_b32 v{m[4*k]}, v{m[4*k+2]}")
        for k in range(4): I(f"v_mov_b32 v{m[2*k+1]}, v{m[2*k]}")
        for k in range(4): I(f"v_permlane32_swap_b32 v{m[2*k]}, v{m[2*k+1]}")
        Bu(1)
        for i in range(8):
            for r in range(4): I(f"v_fma_f32 v{Sc(i)+r}, v{Sc(i)+r}, s{S_CEXP}, -v{m[i]}")
            for r in range(4): I(f"v_exp_f32 v{Sc(i)+r}, v{Sc(i)+r}")
            if i == 4: poll_check(0x11); poll_load()
            if i >= 4: a2_load(i - 4)
        b2_unit(2, H_BD)
        for half, mk in enumerate(("s[56:57]", "s[58:59]")):
            I(f"s_mov_b64 exec, {mk}")
            for i, (t, p) in enumerate(un):
                I(f"v_cvt_pk_bf16_f32 v{Preg(t,p)+2*half}, v{Sc(i)}, v{Sc(i)+1}")
                I(f"v_cvt_pk_bf16_f32 v{Preg(t,p)+2*half+1}, v{Sc(i)+2}, v{Sc(i)+3}")
        I("s_mov_b64 exec, -1")
        for i, (t, p) in enumerate(un): I(f"{MF} {vr(Sc(i))}, {ar(A_ONES)}, {vr(Preg(t,p))}, 0")
        for i in range(8): I(f"v_rcp_f32 v{V_RINV+i}, v{Sc(i)}")
        e.wait(vm="b1")
        stamp("h_sm")
        I("s_barrier")
        kv_reads(V_AD + 3, "v")
        e.wait(lg="v3")
        I("s_barrier")
        for i, (t, p) in enumerate(un): I(f"{MF} {vr(Sc(i))}, {ar(A_KV+8*t+4*p)}, {vr(Preg(t,p))}, 0")
        for b in range(2):
            for t in (2 * b, 2 * b + 1):
                ob = (56 if b == 0 else 4) + (t & 1) * 4
                for p in range(2):
                    o = Sc(2 * t + p)
                    for r in range(4): I(f"v_mul_f32 v{o+r}, v{V_RINV+2*t+p}, v{o+r}")
                    od = ob + 2 * p if M else (56 if b == 0 else 4) + p * 4 + (t & 1) * 2
                    I(f"v_cvt_pk_bf16_f32 v{od}, v{o}, v{o+1}")
                    I(f"v_cvt_pk_bf16_f32 v{od+1}, v{o+2}, v{o+3}")
            a2_soff(16 + b, S_t1)
            for t1 in range(2 if M else 0):
                ob = (56 if b == 0 else 4) + t1 * 4
                I(f"v_permlane16_swap_b32 v{ob}, v{ob+2}")
                I(f"v_permlane16_swap_b32 v{ob+1}, v{ob+3}")
            for p in range(2):
                I(f"buffer_store_dwordx4 {a2r(16+b,p)}, v{V_L16}, {srd(S_WS)}, s{S_t1} offen offset:{p*1024} sc1", tag="so")
        stamp("h_so")
        def f_push():
            e.wait(vm="so")
            push_group(lambda: I(f"s_lshl_b32 s{S_t2}, 64, s{S_jj}"), (1, 2, 3))
        side[(0, OPT["fp"])] = f_push
        side[(0, 0)] = lambda: (poll_check(0x22), SS[0].add(0, 999, a2_items((4, 5, 6, 7), 1)))
        def f_o():
            I(f"s_xor_b32 s{S_THR}, s{S_jj}, 1"); I(f"s_lshl_b32 s{S_THR}, 64, s{S_THR}")
            poll_check(f"s{S_THR}"); SS[0].add(0, 999, a2_items((14, 15)))
    def f_c(): poll_check(0x44); SS[0].add(0, 999, a2_items((8, 9, 10, 11)))
    def f_h(): poll_check(0x88); SS[0].add(0, 999, a2_items((12, 13)))
    side.update({(0, OPT["kc"] - 15): poll_load, (0, OPT["kc"]): f_c, (0, OPT["kh"] - 15): poll_load, (0, OPT["kh"]): f_h, (0, OPT["ko"] - 11): poll_load, (0, OPT["ko"]): f_o})
    I("s_setprio 1")
    stamp("h_p2")
    own = [16, 17] if att else []
    LD = OPT["ld"]
    oo = [16, 17, 14, 15]
    TM = 14 - OPT["tm"]
    seq = [(lam, tau) for lam in range(TM) for tau in range(4 if lam < LD else 3)]
    seq += [(lam, tau) for tau in range(3) for lam in list(range(TM, 14)) + oo]
    seq += [(lam, 3) for lam in list(range(LD, 14)) + oo]
    steps = []; rng = {}; seen_g = set(); seen_l = set(); first_ = set()
    for (lam, tau) in seq:
        g = lam >> 1
        for kh in range(2):
            a = H_BR + tau if M else H_BR + 2 * tau + kh
            off = g * SLOT + (lam & 1) * 4096 + (kh * 2048 if M else 0)
            hi = off >> 16
            st = dict(rd=(a, off & 0xffff, 1024 if M else 2048))
            pres = []
            cg = CHKG.get(g)
            if cg is not None and cg not in seen_g:
                seen_g.add(cg); t = U("t")
                steps[-3]["post"] = lambda k, g=cg, t=t: d_read(f"Lb{g}", t)
                pres.append(lambda g=cg, t=t: d_check(f"Lb{g}", t))
            if rng.get(a, 0) != hi:
                dlt = (hi - rng.get(a, 0)) * 65536; rng[a] = hi
                pres.append(lambda a=a, dlt=dlt: I(f"v_add_u32 v{a}, {dlt & 0xffffffff}, v{a}"))
            if pres: st["pre"] = lambda pres=pres: [f() for f in pres]
            at = 4 if (tau == 3 and lam >= 14) else tau
            key = at if M else (at, kh)
            zero = key not in first_; first_.add(key)
            db = H_ACC + 16 * (at if at < 4 else 0)
            if M: st["mf"] = lambda W, st, lam=lam, kh=kh, d=vr(db, 16), zero=zero: [f"{M32} {d}, {W}, {a2r(lam,kh)}, {'0' if zero else d}"]
            else: st["mf"] = lambda W, st, lam=lam, db=db + 4 * kh, zero=zero: [f"{MF} {vr(db+8*p)}, {W}, {a2r(lam,p)}, {'0' if zero else vr(db+8*p)}" for p in range(2)]
            if lam not in seen_l:
                seen_l.add(lam)
                if lam not in own: st["need"] = lambda lam=lam: e.wait(vm=f"a{lam}")
            st["id"] = (lam, tau, kh)
            steps.append(st)
    S = Stream(steps, OPT["D2"], H_RING)
    SS.append(S)
    idx = {st["id"]: k for k, st in enumerate(steps)}
    n = len(steps)
    for (lam, d), f in side.items(): S.aft(idx[(lam, 0, 0)] + d, f)
    def scale(tau, greg): return [lambda k=k: I(f"v_mul_f32 v{H_ACC+16*tau+k}, v{greg + (0 if M else 2*(k>>3))}, v{H_ACC+16*tau+k}") for k in range(16)]
    def pack(tau):
        b = H_ACC + tau * 16
        return [lambda k=k: I(f"v_cvt_pk_bf16_f32 v{b+k}, v{b+2*k}, v{b+2*k+1}") for k in range(8)]
    def send(tau):
        def so():
            I(f"s_xor_b32 s{S_GIN}, s{S_q}, {3-tau}"); I(f"s_mul_i32 s{S_GIN}, s{S_GIN}, {3*8192}")
            I(f"s_add_u32 s{S_GIN}, s{S_GIN}, s{S_PB}"); I(f"s_add_u32 s{S_GIN}, s{S_GIN}, {tau*8192}")
        return [so] + pack(tau) + [cost(3, lambda j=j: I(f"buffer_store_dwordx4 {vr(H_ACC+tau*16+j*4)}, v{V_L16}, {srd(S_WS)}, s{S_GIN} offen offset:{j*1024} sc1", tag=f"p{tau}")) for j in range(2)]
    def pflag(tau):
        assert e.vmq[0][0].count(f"p{tau}") == 2
        stamp(f"h_pa{tau}")
        e.wait(vm=f"p{tau}")
        stamp(f"h_pb{tau}")
        I(f"s_xor_b32 s{S_t0}, s{S_MYIN}, {(3-tau)*2048}")
        I(f"s_mov_b32 s{S_KG+tau}, {1024<<tau}")
        I(f"s_atomic_or s{S_KG+tau}, s[{S_INB}:{S_INB+1}], s{S_t0}")
    if EG:
        def gget():
            I(f"s_lshl_b32 s{S_t0}, s{S_r}, 2"); I(f"s_add_u32 s{S_t0}, s{S_t0}, s{S_q}"); I(f"s_lshl_b32 s{S_t0}, s{S_t0}, 12")
            I(f"s_lshr_b32 s{S_t1}, s{S_m0b}, 2"); I(f"s_add_u32 s{S_t0}, s{S_t0}, s{S_t1}"); I(f"s_add_u32 s{S_t0}, s{S_t0}, {GA_OFF}")
            I(f"buffer_load_dwordx4 {vr(H_G)}, v{V_L16}, {srd(S_WS)}, s{S_t0} offen sc1", tag="gz")
        S.aft(24, gget)
        S.aft(idx[(13, 0, 1)], lambda: e.wait(vm="gz"))
    else:
        def gget():
            t = U("t"); d_read("G", t); d_check("G", t)
            I(f"s_lshl_b32 s{S_t0}, s{S_w}, 8"); I(f"s_add_u32 s{S_t0}, s{S_t0}, {GB_LDS}")
            I(f"v_and_b32 v1, {31 if M else 15}, v0")
            I(f"v_lshl_add_u32 v1, v1, 3, s{S_t0}")
            I(f"ds_read_b64 {vr(H_G,2)}, v1", tag="gz")
            if not M: I(f"ds_read_b64 {vr(H_G+2,2)}, v1 offset:128", tag="gz")
        S.aft(idx[(12, 0, 1)], gget)
        S.aft(idx[(13, 0, 1)], lambda: e.wait(lg="gz"))
    for tau in range(4):
        k = idx[(13, tau, 1)]
        S.aft(k, lambda k=k, tau=tau: S.add(k + 3, idx[(oo[0], tau, 0)] if tau < 3 else n, scale(tau, H_G + 1)))
    late_flags = []
    for tau in range(3):
        k = idx[(oo[-1], tau, 1)]
        S.aft(k, lambda k=k, tau=tau: S.add(k + 3, k + 8, send(tau)))
        kf = k + 7 + OPT["pfd"]
        if kf <= n - OPT["D2"] - 14: S.aft(kf, lambda tau=tau: pflag(tau))
        else: late_flags.append(tau)
    S.aft(n - OPT["D2"], lambda: (e.wait(lg=f"w{n-1}"), [pflag(t) for t in late_flags[:-1]], poll_load()))
    S.aft(idx[(8, 0, 0)], lambda: stamp("h_late"))
    S.aft(idx[(oo[0], 0, 0)], lambda: stamp("h_o"))
    S.aft(idx[(LD, 3, 0)], lambda: stamp("h_own"))
    S.run(OPT["side2"])
    I(f"s_mul_i32 s{S_GIN}, s{S_q}, {3*8192}")
    I(f"s_add_u32 s{S_GIN}, s{S_GIN}, s{S_PB}")
    if M:
        I("v_bfe_u32 v5, v0, 4, 1")
        I("v_lshlrev_b32 v6, 3, v5")
        I("v_xor_b32 v6, 8, v6")
        I("v_and_b32 v4, 15, v0")
        I("v_xor_b32 v4, v4, v6")
        I("v_lshl_add_u32 v4, v4, 1, v5")
        I("v_lshrrev_b32 v5, 5, v0")
        I("v_lshlrev_b32 v5, 4, v5")
        I("v_lshl_add_u32 v4, v4, 10, v5")
    else:
        I("v_and_b32 v4, 15, v0")
        I("v_bfe_u32 v6, v0, 4, 1")
        I("v_lshlrev_b32 v6, 5, v6")
        I("v_lshrrev_b32 v7, 5, v0")
        I("v_lshl_add_u32 v6, v7, 4, v6")
        I("v_lshl_add_u32 v5, v4, 11, v6")
        I("v_xor_b32 v4, 0x4000, v5")
    I(f"s_lshl_b32 s{S_COL}, s{S_r}, 17"); I(f"s_lshl_b32 s{S_t1}, s{S_w}, 15"); I(f"s_add_u32 s{S_COL}, s{S_COL}, s{S_t1}")
    I(f"s_lshl_b32 s{S_t1}, s{S_jj}, 8"); I(f"s_add_u32 s{S_COL}, s{S_COL}, s{S_t1}")
    I(f"s_lshl_b32 s{S_t1}, s{S_q}, 6"); I(f"s_add_u32 s{S_COL}, s{S_COL}, s{S_t1}")
    for t in late_flags[-1:]: pflag(t)
    O = H_ACC + 48
    for k in range(8): I(f"v_pk_add_f32 {vr(O+2*k,2)}, {vr(O+2*k,2)}, {vr(H_ACC+2*k,2)}")
    for tau in range(3):
        poll_check(1024 << tau)
        stamp(f"h_r{tau}")
        if tau == 2: stamp("h_rcv")
        for j in range(2):
            I(f"buffer_load_dwordx4 {vr(24+tau*8+j*4)}, v{V_L16}, {srd(S_WS)}, s{S_GIN} offen offset:{j*1024} sc1", tag=f"r{tau}")
        if tau < 2: I(f"s_add_u32 s{S_GIN}, s{S_GIN}, 8192")
    for tau in range(3):
        e.wait(vm=f"r{tau}")
        b = H_ACC + 16
        for k in range(8):
            I(f"v_lshlrev_b32 v{b+2*k}, 16, v{24+tau*8+k}")
            I(f"v_and_b32 v{b+2*k+1}, 0xffff0000, v{24+tau*8+k}")
        for k in range(8): I(f"v_pk_add_f32 {vr(O+2*k,2)}, {vr(O+2*k,2)}, {vr(b+2*k,2)}")
    for k in range(8): I(f"v_pk_mul_f32 {vr(O+2*k,2)}, {vr(O+2*k,2)}, {vr(H_G + (0 if M else 2*(k>>2)),2)} op_sel_hi:[1,0]")
    stamp("h_sum")
    for f in pack(3): f()
    for j in range(2):
        sw = "v_permlane32_swap_b32" if M else "v_permlane16_swap_b32"
        I(f"{sw} v{O+4*j}, v{O+4*j+2}")
        I(f"{sw} v{O+4*j+1}, v{O+4*j+3}")
        I(f"buffer_store_dwordx4 {vr(O+4*j)}, v{4 if M else 4+j}, {srd(S_OUT)}, s{S_COL} offen offset:{j*(32 if M else 1024)}" + ["", " nt", " sc0", " sc1"][OPT["of"]])
    finish()

h_prog(False)
e.label("L_h_att")
h_prog(True)

e.label("L_C")
role[0] = "C"
reset()
C_WR = 4; C_XR = 12; C_EXW = 18; C_HA = 20; C_HX = (24, 56, 60); C_HACC = 28; C_ACC = 64
I("s_setprio 2")
if OPT["codepf"] and not OPT["pfe"]:
    I("s_cmp_lt_u32 s2, 16")
    I("s_cbranch_scc0 L_nopf")
    e.cond_begin()
    I("s_getpc_b64 s[56:57]")
    e.label("L_pc")
    I(f"s_sub_u32 s56, s56, L_pc-{NAME}_kernel")
    I("s_subb_u32 s57, s57, 0")
    I(f"s_lshr_b32 s{S_t0}, s2, 3")
    I(f"s_lshl_b32 s{S_t0}, s{S_t0}, 15")
    I(f"v_lshlrev_b32 v2, 7, v0")
    I(f"v_lshl_add_u32 v2, v1, 13, v2")
    I(f"v_add_u32 v2, s{S_t0}, v2")
    I(f"v_min_u32 v2, L_end-{NAME}_kernel, v2")
    I(f"global_load_dword v23, v2, s[56:57]")
    e.cond_end()
    e.label("L_nopf")
late_scalars()
I("v_lshlrev_b32 v2, 2, v0")
I(f"v_add_u32 v2, {EV_LDS}, v2")
I("v_mov_b32 v1, 1")
I("ds_write_b32 v2, v1")
I("v_mov_b32 v1, 0")
I("ds_write_b32 v2, v1 offset:256")
I("v_lshrrev_b32 v32, 4, v0")
I("v_and_b32 v33, 15, v0")
I("v_bfe_u32 v34, v0, 2, 2")
I("v_and_b32 v35, 3, v0")
after_karg()
common_ptrs()
if not OPT["hinit"]:
    I(f"s_cmp_eq_u32 s{S_w}, 0")
    I("s_cbranch_scc0 L_c_noinit")
    e.cond_begin()
    for k in range(4):
        I(f"s_mov_b32 s{S_KG+k}, 0")
        I(f"s_add_u32 s{S_t0}, s{S_MYIN}, {k*128}")
        I(f"s_atomic_swap s{S_KG+k}, s[{S_INB}:{S_INB+1}], s{S_t0} glc")
    e.cond_end()
    e.label("L_c_noinit")
I(f"s_cmp_ge_u32 s{S_jj}, 2")
I("s_cbranch_scc1 L_c_att")

def c_prog(att):
    reset()
    UL = units(att)
    slot_of = {un: phys(att, k) for k, un in enumerate(UL)}
    subs = [un for un in UL if un[0] == "g"]
    if OPT["spf"] == 2 and OPT["tearly"] and OPT["th"] < 0: vtouch(att)
    n16 = att or not M
    if n16:
        for p in range(2):
            I(f"v_xor_b32 v38, {8 if p == 0 else 0}, v33")
            I("v_and_b32 v39, 8, v38")
            I("v_add_u32 v39, v39, v38")
            I("v_lshlrev_b32 v39, 7, v39")
            I("v_lshrrev_b32 v38, 1, v38")
            I("v_xor_b32 v38, v38, v32")
            I("v_lshl_add_u32 v39, v38, 4, v39")
            I(f"v_add_u32 v39, s{S_m0b}, v39")
            I(f"v_add_u32 v{C_XR+2*p+p}, {p*1024}, v39")
            I(f"v_xor_b32 v{C_XR+2*p+1-p}, 64, v{C_XR+2*p+p}")
        I("v_lshl_add_u32 v38, v32, 3, v34")
        I("v_lshlrev_b32 v38, 7, v38")
        I("v_lshl_add_u32 v38, v35, 3, v38")
        I("v_lshrrev_b32 v39, 1, v34")
        I("v_and_b32 v40, 1, v32")
        I("v_lshl_or_b32 v39, v40, 1, v39")
        I(f"v_xor_b32 v41, {'s'+str(S_w) if att else 0}, v39")
        for t in range(4):
            I(f"v_xor_b32 v40, {t}, v41")
            I(f"v_lshl_add_u32 v{C_WR+t}, v40, 5, v38")
            I(f"v_add_u32 v{C_WR+4+t}, 0x10000, v{C_WR+t}")
        if att:
            I("v_lshrrev_b32 v38, 1, v33")
            I("v_xor_b32 v38, v38, v32")
            I("v_lshlrev_b32 v38, 4, v38")
            I("v_lshl_add_u32 v38, v33, 7, v38")
            I(f"v_add_u32 v{C_HA}, {HALO_LDS}, v38")
            I(f"v_xor_b32 v{C_HA+1}, 64, v{C_HA}")
            I(f"s_mul_i32 s{S_t0}, s{S_w}, 5120")
            I(f"s_add_u32 s{S_t0}, s{S_t0}, {EXCH_LDS+4096}")
            I(f"v_add_u32 v{C_EXW}, s{S_t0}, v{V_L16}")
            I("v_add_u32 v19, 1, v35")
            I("v_bfe_u32 v19, v19, 1, 1")
            I("v_mul_u32_u24 v19, 24, v19")
    else:
        I("v_and_b32 v40, 1, v32")
        I("v_lshlrev_b32 v38, 3, v40")
        I("v_xor_b32 v38, 8, v38")
        I("v_xor_b32 v38, v38, v33")
        I("v_and_b32 v39, 8, v38")
        I("v_add_u32 v39, v39, v38")
        I("v_lshl_add_u32 v39, v40, 3, v39")
        I("v_lshlrev_b32 v39, 7, v39")
        I("v_lshrrev_b32 v38, 1, v38")
        I("v_lshlrev_b32 v41, 2, v40")
        I("v_xor_b32 v38, v38, v41")
        I("v_lshrrev_b32 v41, 1, v32")
        I("v_xor_b32 v38, v38, v41")
        I("v_lshl_add_u32 v39, v38, 4, v39")
        I(f"v_add_u32 v{C_XR}, s{S_m0b}, v39")
        for k in range(1, 4): I(f"v_xor_b32 v{C_XR+k}, {32*k}, v{C_XR}")
        I("v_lshl_add_u32 v38, v41, 3, v34")
        I("v_lshlrev_b32 v38, 7, v38")
        I("v_lshl_add_u32 v38, v35, 3, v38")
        I("v_lshl_add_u32 v38, v40, 5, v38")
        I("v_lshrrev_b32 v39, 1, v34")
        I(f"v_lshl_add_u32 v{C_WR}, v39, 6, v38")
        I(f"v_xor_b32 v{C_WR+1}, 64, v{C_WR}")
        for t in range(2): I(f"v_add_u32 v{C_WR+4+t}, 0x10000, v{C_WR+t}")
    if OPT["spf"] == 2 and not OPT["tearly"] and OPT["th"] < 0: vtouch(att)
    if OPT["spf"] == 1:
        P = 3072 if att else 3584; wp = 6 if att else 12
        I(f"s_lshl_b32 s{S_t0}, s{S_r}, 2"); I(f"s_add_u32 s{S_t0}, s{S_t0}, s{S_w}")
        I(f"s_mul_i32 s{S_t1}, s{S_t0}, {8*P}")
        I(f"s_mul_i32 s{S_t2}, s{S_q}, {256 if att else 896}"); I(f"s_add_u32 s{S_t1}, s{S_t1}, s{S_t2}")
        I(f"s_lshl_b32 s{S_t2}, s{S_j1}, 7"); I(f"s_add_u32 s{S_t2}, s{S_t2}, s{S_t1}")
        I(f"s_add_u32 s56, s{wp}, s{S_t2}"); I(f"s_addc_u32 s57, s{wp+1}, 0")
        for k in range(8): I(f"s_load_dword s{S_EV}, s[56:57], {k*P + (2048 if att else 512)}")
        if not att:
            I(f"s_mul_i32 s{S_t2}, s{S_j1}, {4*P}"); I(f"s_add_u32 s{S_t2}, s{S_t2}, s{S_t1}")
            I(f"s_add_u32 s56, s{wp}, s{S_t2}"); I(f"s_addc_u32 s57, s{wp+1}, 0")
            for k in range(4): I(f"s_load_dword s{S_EV}, s[56:57], {k*P + 768}")
        I(f"s_lshl_b32 s{S_t0}, s{S_t0}, 2"); I(f"s_add_u32 s{S_t0}, s{S_t0}, s{S_jj}")
        I(f"s_mul_i32 s{S_t1}, s{S_t0}, 1792"); I(f"s_mul_i32 s{S_t2}, s{S_q}, {448*1024}"); I(f"s_add_u32 s{S_t1}, s{S_t1}, s{S_t2}")
        I(f"s_add_u32 s56, s14, s{S_t1}"); I("s_addc_u32 s57, s15, 0")
        for k in range(14): I(f"s_load_dword s{S_EV}, s[56:57], {k*128}")
        I(f"s_lshl_b32 s{S_t1}, s{S_t0}, 9"); I(f"s_lshl_b32 s{S_t2}, s{S_q}, 17"); I(f"s_add_u32 s{S_t1}, s{S_t1}, s{S_t2}")
        I(f"s_add_u32 s56, s8, s{S_t1}"); I("s_addc_u32 s57, s9, 0")
        for k in range(4): I(f"s_load_dword s{S_EV}, s[56:57], {k*128}")
        I("s_waitcnt lgkmcnt(0)")
    if not OPT["hinit"]:
        l = U("ci")
        I(f"s_cmp_eq_u32 s{S_w}, 0"); I(f"s_cbranch_scc0 {l}")
        e.cond_begin()
        I(f"s_mov_b32 s{S_t1}, 1")
        I("s_waitcnt lgkmcnt(0)")
        I(f"s_atomic_add s{S_t1}, s[{S_DBG}:{S_DBG+1}], 0")
        e.cond_end(); e.label(l)
    if EG and not att:
        I("v_lshlrev_b32 v18, 4, v32"); I(f"v_add_u32 v18, {GW_LDS}, v18")
    stamp("c_go")
    def xfr(p, s): return ar((p * 16 + s) * 4)
    def xf32(s16): return ar(s16 * 4)
    def acc(c, T, p=0):
        base = C_ACC + 32 * (c & 1)
        if att: return base + (T * 2 + p) * 4
        if M: return base + T * 16
        return base + (((T >> 1) * 2 + p) * 2 + (T & 1)) * 4
    def xread(dst, areg, slot, tmp, k):
        base = slot * SLOT
        if base >= 65536:
            I(f"v_add_u32 v{tmp}, {base & ~0xffff}, v{areg}"); areg = tmp
        I(f"ds_read_b128 {dst}, v{areg} offset:{base & 0xffff}", tag=f"w{k}")
    steps = []; nh = [0]
    for i, un in enumerate(subs):
        _, c, u = un; slot = slot_of[un]
        for j in range(16):
            h = j >> 3
            if n16:
                ks = (j >> 1) & 3; T = 2 * h + (j & 1); s = 4 * u + ks; zero = (u == 0 and ks == 0); ta = T
                if c == 3: s = 4 * (u + 2 * h) + ks; ta = j & 1; zero = (u == 0 and h == 0 and ks == 0)
                halo = att and T == 0 and c != 1
                st = dict(rd=(C_WR + (4 if slot >= 4 else 0) + T, (slot & 3) * SLOT + ks * 4096, 512))
                def mf(W, st, s=s, T=ta, zero=zero, c=c, halo=halo):
                    out = []
                    for p in range(2):
                        a, b = (xfr(p, s), W) if (att and c == 2) else (W, xfr(p, s))
                        d = vr(acc(c, T, p))
                        out.append(f"{MF} {d}, {a}, {b}, {'0' if zero else d}")
                    if "gate" in st:
                        gs, gp = st["gate"]
                        out.append(f"{MF} {vr(24+4*gp)}, {vr(56+4*(gs&1))}, {xfr(gp,gs)}, {'0' if gs == 0 else vr(24+4*gp)}")
                    if halo:
                        a, b = (vr(st["hreg"]), W) if c == 2 else (W, vr(st["hreg"]))
                        out.append(f"{MF} {vr(C_HACC)}, {a}, {b}, {'0' if zero else vr(C_HACC)}")
                    return out
                if EG and not att and c == 1 and j % 4 >= 2: st["gate"] = (4 * u + (j >> 2), j & 1)
                def post(k, st=st, s=s, halo=halo, j=j, c=c, u=u, ks=ks):
                    if EG and not att and c == 1 and j % 4 == 2:
                        if j == 2:
                            I(f"s_add_u32 s{S_t0}, s{S_rot}, {u}"); I(f"s_and_b32 s{S_t0}, s{S_t0}, 3"); I(f"s_lshl_b32 s{S_t0}, s{S_t0}, 8")
                            I(f"v_add_u32 v19, s{S_t0}, v18")
                        I(f"ds_read_b128 {vr(56+4*((j>>2)&1))}, v19 offset:{(j>>2)*64}", tag=f"w{k}")
                    if c == 0 and j < 8 and j % 2 == 0:
                        for p in range(2): xread(xfr(p, s), C_XR + 2 * p + (ks & 1), slot_of[("x", u, ks >> 1)], 1 + p, k)
                    if att and c == 2 and u == 2 and j == 11 and OPT["u19"]: d_read("Lv3", "chk11")
                    if halo:
                        st["hreg"] = C_HX[nh[0] % 3]; nh[0] += 1
                        I(f"ds_read_b128 {vr(st['hreg'])}, v{C_HA+(s&1)} offset:{(s>>1)*2048}", tag=f"w{k}")
            else:
                kk = j & 7
                if c < 3: s16 = 8 * u + kk; ta = h; zero = (u == 0 and kk == 0)
                else: s16 = 8 * (u + 2 * h) + kk; ta = 0; zero = (u == 0 and j == 0)
                st = dict(rd=(C_WR + (4 if slot >= 4 else 0) + h, (slot & 3) * SLOT + kk * 2048, 512))
                d = vr(acc(c, ta), 16)
                def mf(W, st, s16=s16, d=d, zero=zero): return [f"{M32} {d}, {W}, {xf32(s16)}, {'0' if zero else d}"]
                def post(k, s16=s16, j=j, c=c, u=u, kk=kk):
                    if c == 0 and j < 8: xread(xf32(s16), C_XR + (kk & 3), slot_of[("x", u, kk >> 2)], 1 + (kk & 1), k)
            st["mf"] = mf; st["post"] = post
            if j == 0:
                def pre(i=i):
                    stamp(f"t{i}")
                    if att and i in (8, 9):
                        assert e.lgq[0][0].count(f"exw{i-8}") == (5 if i == 8 else 4)
                        e.wait(lg=f"exw{i-8}")
                    if not att and i - OPT["ackb"] in (0, 1):
                        assert e.vmq[0][0].count(f"st{i-OPT['ackb']}") == 4
                        e.wait(vm=f"st{i-OPT['ackb']}")
                        if EG and i - OPT["ackb"] == 1: e.wait(vm="stg")
                    if i < (10 if att else 14): I("s_barrier")
                    if att and i == 11 and OPT["u19"]: d_check("Lv3", "chk11")
                    stamp(f"s{i}")
                    if att and M and i == 8:
                        for t in range(8): I(f"v_xor_b32 v{C_WR+t}, v19, v{C_WR+t}")
                st["pre"] = pre
            steps.append(st)
    if att: S = Stream(steps, OPT["D"], [32, 36, 40, 44, 48, 52])
    else: S = Stream(steps, OPT["DF"], [32, 36, 40, 44, 48, 52] + ([] if EG else [56, 60]))
    DD = S.D
    def packn(a, n_): return [lambda k=k: I(f"v_cvt_pk_bf16_f32 v{a+k}, v{a+2*k}, v{a+2*k+1}") for k in range(n_)]
    def epi(c, h):
        F = []
        if att:
            for t in (2 * h, 2 * h + 1):
                a = acc(c, t, 0)
                F += packn(a, 4)
                def wr(t=t, a=a):
                    I(f"v_xor_b32 v1, {t*1024}, v{C_EXW}")
                    if c == 1: I(f"v_add_u32 v1, {(QSLOT*SLOT - EXCH_LDS - 4096) & 0xffffffff}, v1")
                    I(f"ds_write_b128 v1, {vr(a)}", tag=f"exw{c}")
                F.append(wr)
            if h == 0 and c != 1:
                def hw():
                    I(f"v_cvt_pk_bf16_f32 v{C_HACC}, v{C_HACC}, v{C_HACC+1}")
                    I(f"v_cvt_pk_bf16_f32 v{C_HACC+1}, v{C_HACC+2}, v{C_HACC+3}")
                    I(f"s_add_u32 s{S_t0}, s{S_m0b}, 4096")
                    I(f"v_subrev_u32 v1, s{S_t0}, v{C_EXW}")
                    I(f"ds_write2_b64 v1, {vr(C_HACC,2)}, {vr(C_HACC,2)} offset0:0 offset1:1", tag=f"exw{c}")
                F.append(hw)
        else:
            a = acc(c, h) if M else acc(c, 2 * h, 0)
            F += packn(a, 8)
            def so():
                I(f"s_lshr_b32 s{S_GIN}, s{S_J32}, {2 if c < 3 else 3}")
                I(f"s_add_u32 s{S_GIN}, s{S_GIN}, s{S_A2}"); I(f"s_add_u32 s{S_GIN}, s{S_GIN}, {(4*c+h)*8192}")
            F.append(so)
            for p in range(2):
                F += [lambda k=k: I(f"v_pk_max_i16 v{k}, v{k}, 0") for k in range(a + 4 * p, a + 4 * p + 4)]
                F.append(cost(9, lambda p=p: I(f"buffer_store_dwordx4 {vr(a+4*p)}, v{V_L16}, {srd(S_WS)}, s{S_GIN} offen offset:{p*1024} sc1", tag=f"st{c}")))
        return F
    n = len(steps)
    for c, i, reuse in ((0, 6, 8), (1, 7, 12), (2, 11, 99)):
        for h in range(2):
            k = 16 * i + 8 * h + 7
            if k == n - 1: continue
            dl = min(16 * reuse + (8 * h if reuse == 8 else 0), n)
            if att and c < 2: dl = 16 * (8 + c) - DD - 3
            S.aft(k, lambda k=k, c=c, h=h, dl=dl: S.add(max(k + (2 if n16 else 4), 16 * 7 - DD + 1 if att else 0), dl, epi(c, h)))
    if EG and not att:
        def gst():
            I(f"s_lshl_b32 s{S_t0}, s{S_r}, 2"); I(f"s_add_u32 s{S_t0}, s{S_t0}, s{S_q}"); I(f"s_lshl_b32 s{S_t0}, s{S_t0}, 12")
            I(f"s_lshr_b32 s{S_t1}, s{S_m0b}, 2"); I(f"s_add_u32 s{S_t0}, s{S_t0}, s{S_t1}"); I(f"s_add_u32 s{S_t0}, s{S_t0}, {GA_OFF}")
            I(f"s_lshl_b32 s{S_t1}, s{S_j1}, 28"); I(f"s_add_u32 s{S_t0}, s{S_t0}, s{S_t1}")
            I(f"buffer_store_dwordx4 {vr(56)}, v{V_L16}, {srd(S_WS)}, s{S_t0} offen sc1", tag="stg")
        S.aft(16 * 8, lambda: S.add(0, 16 * (OPT["ackb"] + 1) - 12, [lambda t=t: I(t) for t in gate_math(24, 28, 56, 20)] + [gst]))
    S.run(OPT["side"] if att else OPT["sidef"])
    stamp("c_end")
    if not att: I("s_barrier")
    for f in (epi(2, 1) if att else epi(3, 0)): f()
    if att:
        e.wait(lg="exw2")
        I("s_barrier")
    if OPT["cprio"] != 2: I(f"s_setprio {OPT['cprio']}")
    rest = [3, 4, 5, 6, 8, 7]
    def cunit():
        g = rest.pop(0); b2_unit(g, 4, g in SIGG)
    if not att:
        assert e.vmq[0][0].count("st2") == 4
        e.wait(vm="st2"); push_group(ownbit(2), (0, 1, 2, 3))
        stamp("c_f2")
        b2_voffs(4)
        if OPT["lowp"]: I("s_setprio 0")
        cunit(); cunit()
    if EG:
        if att:
            b2_voffs(4)
            I("s_barrier")
            if OPT["lowp"]: I("s_setprio 0")
            cunit(); cunit()
        else:
            e.wait(vm="st3"); push_group(ownbit(3), (0, 1, 2, 3))
    else:
        I("s_setprio 2")
        stamp("c_g0")
        I("v_lshrrev_b32 v9, 4, v0")
        if n16:
            I("v_lshlrev_b32 v8, 4, v9")
        else:
            I("v_lshrrev_b32 v8, 5, v0"); I("v_lshlrev_b32 v8, 4, v8")
            I("v_xor_b32 v9, v9, v0"); I("v_and_b32 v9, 1, v9")
            I("v_cmp_eq_u32 vcc, 0, v9")
        NG = 16 if n16 else 32; per = NG // 4
        RB = [32 + 4 * k for k in range(8)]
        def gread(s_):
            if s_ % per == 0:
                I(f"s_add_u32 s{S_t0}, s{S_rot}, {s_//per}"); I(f"s_and_b32 s{S_t0}, s{S_t0}, 3"); I(f"s_lshl_b32 s{S_t0}, s{S_t0}, 8")
                I(f"s_add_u32 s{S_t0}, s{S_t0}, {GW_LDS}")
                I(f"v_add_u32 v10, s{S_t0}, v8")
                if not n16:
                    I(f"v_mov_b32 v11, {ZERO_LDS}"); I("v_cndmask_b32 v10, v11, v10, vcc")
            I(f"ds_read_b128 {vr(RB[s_%8])}, v10 offset:{(s_%per)*(64 if n16 else 32)}", tag=f"g{s_}")
        for s_ in range(6): gread(s_)
        if att:
            b2_voffs(4)
            I("s_barrier")
            cunit()
        for s_ in range(NG):
            e.wait(lg=f"g{s_}")
            if n16:
                for p in range(2): I(f"{MF} {vr(64+4*p)}, {vr(RB[s_%8])}, {xfr(p,s_)}, {'0' if s_ == 0 else vr(64+4*p)}")
            else:
                I(f"{MF} {vr(64)}, {vr(RB[s_%8])}, {xf32(s_)}, {'0' if s_ == 0 else vr(64)}")
            if s_ + 6 < NG: gread(s_ + 6)
            if s_ == NG // 2 and rest: cunit()
        if not att:
            e.wait(vm="st3"); push_group(ownbit(3), (0, 1, 2, 3))
            stamp("c_f3")
        cunit()
        z1 = 68 if n16 else 65; G = 72
        T = gate_math(64, z1, G, 1)
        for t in T: I(t)
        I(f"s_lshl_b32 s{S_t0}, s{S_w}, 8"); I(f"s_add_u32 s{S_t0}, s{S_t0}, {GB_LDS}")
        I(f"v_lshl_add_u32 v1, v0, 3, s{S_t0}")
        I("s_mov_b64 exec, 0xffff")
        I(f"ds_write_b64 v1, {vr(G,2)}", tag="gz")
        I(f"ds_write_b64 v1, {vr(G+2,2)} offset:128", tag="gz")
        I("s_mov_b64 exec, -1")
        e.wait(lg="gz")
        if OPT["lowp"]: I("s_setprio 0")
        dsig("G")
    stamp("c_g1")
    while rest:
        throttle(); cunit()
    if OPT["dummy"]:
        I(f"s_lshl_b32 s{S_t0}, s2, 2"); I(f"s_add_u32 s{S_t0}, s{S_t0}, s{S_w}"); I(f"s_mul_i32 s{S_t0}, s{S_t0}, 9216"); I(f"s_add_u32 s{S_t0}, s{S_t0}, {20<<20}")
        for k in range(9):
            I(f"buffer_store_dwordx4 {vr(64)}, v{V_L16}, {srd(S_WS)}, s{S_t0 if OPT['dummy'] == 1 else S_WS+2} offen")
            I(f"s_add_u32 s{S_t0}, s{S_t0}, 1024")
    I("s_waitcnt vmcnt(0) lgkmcnt(0)")
    finish()

c_prog(False)
e.label("L_c_att")
c_prog(True)

e.label("L_end")
I("s_endpgm")
e.raw('.section .rodata,"a"')
e.raw(".p2align 6")
e.raw(f".amdhsa_kernel {NAME}_kernel")
e.raw("  .amdhsa_next_free_vgpr 256")
e.raw("  .amdhsa_next_free_sgpr 102")
e.raw("  .amdhsa_accum_offset 128")
e.raw("  .amdhsa_group_segment_fixed_size 0")
e.raw("  .amdhsa_kernarg_size 80")
e.raw("  .amdhsa_user_sgpr_count 2")
e.raw("  .amdhsa_user_sgpr_kernarg_segment_ptr 1")
e.raw("  .amdhsa_system_sgpr_workgroup_id_x 1")
e.raw(".end_amdhsa_kernel")
sys.stdout.write(e.text())
sys.stderr.write(f"instructions {e.nins} nop-states {e.nops}\n")
```

```python
import sys, struct
from emit import Em

NAME = "gated_mix__sliding_local_dilated__dense_activation_relu__prompt"
OPT = dict(padt=6000, padk=-1, padr=0, stamp=0, D=4, DF=5, D2=5, codepf=1, spin=400000, lround=0, side=2, sidef=2, side2=3,
           ld=6, thr=5, pre=4, pfd=18, ackb=10, cprio=2, dummy=0, sch=1, tm=0, qb=0, rotq=2, spf=2, tearly=0, tB=0, tfull=0, th=6, gap=1, kc=30, kh=52, ko=64, lowp=1, tatt=0, m32=0, fp=8, u19=0, tha=6, of=0, eg=1, pfe=2, hinit=0, pb=9)
CST = ["s0", "s2", "s4", "s6", "s8", "s10", "s12", "c_end"]
HST = ["h_b0", "h_b7", "h_p2", "h_late", "h_o", "h_own", "h_rcv", "h_sum"]
for a in sys.argv[1:]:
    k, v = a.split("=")
    if k == "cst": CST = v.split(",")
    elif k == "hst": HST = v.split(",")
    else:
        assert k in OPT, k
        OPT[k] = int(v)
STAMP = OPT["stamp"]; M = OPT["m32"]; EG = OPT["eg"]
assert not (M and EG)
if EG: OPT["DF"] = 4
GA_OFF = (9 << 20) + (512 << 10)
def f2u(x): return struct.unpack("<I", struct.pack("<f", x))[0]

PART_OFF = 10 << 20
INB_OFF = 32 << 20
STAMP_OFF = 33 << 20
WS_BYTES = 36 << 20
SLOT = 16384
HALO_LDS = 7 * SLOT
EXCH_LDS = 8 * SLOT
EV_LDS = EXCH_LDS + 20480
ZERO_LDS = EV_LDS + 256
GW_LDS = EV_LDS + 1024
GB_LDS = EV_LDS + 2048
NEG = f2u(-1e30)

e = Em()
I = e.I
def vr(b, n=4): return f"v[{b}:{b+n-1}]"
def ar(b, n=4): return f"a[{b}:{b+n-1}]"
def srd(b): return f"s[{b}:{b+3}]"
MF = "v_mfma_f32_16x16x32_bf16"
M32 = "v_mfma_f32_32x32x16_bf16"

S_X, S_W, S_WS, S_OUT, S_W2, S_WO, S_GW = 24, 28, 32, 36, 40, 44, 48
S_INB = 52; S_DBG = 54
S_w, S_r, S_jj, S_rot, S_q, S_m0b, S_j1 = 60, 61, 62, 63, 64, 65, 66
S_t0, S_t1, S_t2 = 3, 67, 68
S_BUD = 69; S_EV = 70; S_SOFF = 71
S_POLL = 74; S_MYIN = 75; S_CEXP = 76; S_THR = 77; S_W4 = 79
S_KG = 80; S_WK = 84
S_COL = 88; S_A2 = 89; S_B2 = 90; S_BO = 91; S_PB = 92; S_J32 = 93; S_GIN = 94; S_P = 95
S_STAMP = 4
EVD = {}
def evd(name):
    if name not in EVD: EVD[name] = len(EVD)
    assert EVD[name] < 16
    return EVD[name] * 16
role = ["H"]
def stamp(name):
    L = CST if role[0] == "C" else HST
    if name == "end": idx = 8
    elif name in L: idx = L.index(name)
    else: return
    if STAMP == 2 and idx < 4:
        I(f"s_memtime s[{S_STAMP+2*idx}:{S_STAMP+2*idx+1}]"); I(f"s_memrealtime s[{S_STAMP+2*idx+8}:{S_STAMP+2*idx+9}]")
    elif STAMP == 3: I(f"s_memrealtime s[{S_STAMP+2*idx}:{S_STAMP+2*idx+1}]")
    elif STAMP: I(f"s_memtime s[{S_STAMP+2*idx}:{S_STAMP+2*idx+1}]")
uid = [0]
def U(p):
    uid[0] += 1
    return f"L_{p}{uid[0]}"
def reset():
    e.vmq = [[[], 0]]; e.lgq = [[[], 0]]; e.hist = []
V_L16 = 16; V_EVW = 17; V_CHK = 3
SLOW = []
def flush_slow():
    for l in SLOW: e.raw(l)
    SLOW.clear()
def spin_tail(lp, ok):
    return [f"    s_sub_u32 s{S_BUD}, s{S_BUD}, 1", f"    s_cbranch_scc0 {lp}", f"    s_mov_b32 s{S_BUD}, 0", f"    s_branch {ok}"]
def dsig(name):
    I(f"s_add_u32 m0, s{S_W4}, {EV_LDS + evd(name)}")
    I("s_mov_b64 exec, 1")
    I(f"buffer_load_dword v{V_L16}, {srd(S_WO)}, s{S_WO+2} offen lds", tag="dsig")
    I("s_mov_b64 exec, -1")
def d_read(name, tag): I(f"ds_read_b32 v{V_CHK}, v{V_EVW} offset:{evd(name)}", tag=tag)
def d_check(name, tag):
    ok = U("ok"); lp = U("sp")
    e.wait(lg=tag)
    I(f"v_cmp_ne_u32 vcc, 0, v{V_CHK}")
    I(f"s_cbranch_vccnz {lp}")
    e.label(ok)
    SLOW.extend([f"{lp}:", f"    ds_read_b32 v{V_CHK}, v{V_EVW} offset:{evd(name)}", "    s_waitcnt lgkmcnt(0)", f"    v_cmp_ne_u32 vcc, 0, v{V_CHK}",
                 f"    s_cbranch_vccz {ok}", "    s_sleep 1"] + spin_tail(lp, ok))
def throttle():
    n = OPT["thr"]
    I(f"s_waitcnt vmcnt({n})")
    for q in e.vmq: q[1] = max(q[1], len(q[0]) - n)
def poll_load():
    I(f"s_load_dword s{S_POLL}, s[{S_INB}:{S_INB+1}], s{S_MYIN} glc")
def poll_check(mask):
    ok = U("pk"); lp = U("pl")
    I(f"s_andn2_b32 s{S_EV}, {mask}, s{S_POLL}")
    I(f"s_cbranch_scc1 {lp}")
    e.label(ok)
    SLOW.extend([f"{lp}:", "    s_waitcnt lgkmcnt(0)", f"    s_andn2_b32 s{S_EV}, {mask}, s{S_POLL}", f"    s_cbranch_scc0 {ok}",
                 f"    s_load_dword s{S_POLL}, s[{S_INB}:{S_INB+1}], s{S_MYIN} glc"] + spin_tail(lp, ok))
def push_group(bit_fn, ds):
    bit_fn()
    for d in ds:
        I(f"s_xor_b32 s{S_t0}, s{S_MYIN}, {d*512}")
        I(f"s_atomic_or s{S_t2}, s[{S_INB}:{S_INB+1}], s{S_t0}")
def ownbit(b):
    def f():
        I(f"s_lshl_b32 s{S_t2}, s{S_jj}, 2"); I(f"s_lshl_b32 s{S_t2}, {1<<b}, s{S_t2}")
    return f
def mk_srd(b, p, nbytes):
    I(f"s_mov_b32 s{b}, s{p}")
    I(f"s_and_b32 s{b+1}, s{p+1}, 0xffff")
    I(f"s_mov_b32 s{b+2}, {nbytes}")
    I(f"s_mov_b32 s{b+3}, 0x20000")
def b2_voffs(dst):
    I("v_lshrrev_b32 v1, 3, v0")
    if M:
        I("v_bfe_u32 v2, v0, 4, 1")
        I("v_lshlrev_b32 v2, 2, v2")
    else:
        I("v_lshrrev_b32 v2, 4, v0")
        I("v_lshlrev_b32 v2, 1, v2")
    I(f"v_and_b32 v{dst}, 7, v0")
    I(f"v_xor_b32 v{dst}, v{dst}, v2")
    I(f"v_lshlrev_b32 v{dst}, 4, v{dst}")
    I(f"v_lshl_add_u32 v{dst}, v1, 10, v{dst}")
    for i in range(1, 4): I(f"v_add_u32 v{dst+i}, {i*7168}, v{dst}")
def late_scalars():
    I(f"s_lshl_b32 s{S_W4}, s{S_w}, 2")
    I(f"s_mov_b32 s{S_BUD}, {OPT['spin']}")
    I(f"s_and_b32 s{S_j1}, s{S_jj}, 1")
    I(f"s_lshl_b32 s{S_t0}, s{S_jj}, 8")
    I(f"s_lshr_b32 s{S_t1}, s{S_w}, 1")
    I(f"s_lshl_b32 s{S_t1}, s{S_t1}, 7")
    I(f"s_add_u32 s{S_t0}, s{S_t0}, s{S_t1}")
    I(f"s_and_b32 s{S_t1}, s{S_w}, 1")
    I(f"s_lshl_b32 s{S_t1}, s{S_t1}, 15")
    I(f"s_add_u32 s{S_t0}, s{S_t0}, s{S_t1}")
    I(f"s_mul_i32 s{S_B2}, s{S_q}, {14*32768}")
    I(f"s_add_u32 s{S_B2}, s{S_B2}, s{S_t0}")
    I(f"s_lshl_b32 s{S_BO}, s{S_q}, 17")
    I(f"s_add_u32 s{S_BO}, s{S_BO}, s{S_t0}")
    I(f"s_lshl_b32 s{S_J32}, s{S_j1}, 16")
    I(f"s_lshl_b32 s{S_t0}, s{S_r}, 2")
    I(f"s_add_u32 s{S_t0}, s{S_t0}, s{S_q}")
    I(f"s_mul_i32 s{S_A2}, s{S_t0}, {18*8192}")
    I(f"s_lshl_b32 s{S_t1}, s{S_w}, 11")
    I(f"s_add_u32 s{S_A2}, s{S_A2}, s{S_t1}")
    I(f"s_lshl_b32 s{S_MYIN}, s{S_t0}, 2")
    I(f"s_add_u32 s{S_MYIN}, s{S_MYIN}, s{S_jj}")
    I(f"s_lshl_b32 s{S_MYIN}, s{S_MYIN}, 2")
    I(f"s_add_u32 s{S_MYIN}, s{S_MYIN}, s{S_w}")
    I(f"s_lshl_b32 s{S_MYIN}, s{S_MYIN}, 7")
    I(f"v_lshlrev_b32 v{V_L16}, 4, v0")
    I(f"v_and_b32 v{V_EVW}, 3, v0")
    I(f"v_lshlrev_b32 v{V_EVW}, 2, v{V_EVW}")
    I(f"v_add_u32 v{V_EVW}, {EV_LDS}, v{V_EVW}")
def common_ptrs():
    I(f"s_add_u32 s{S_INB}, s22, {INB_OFF}")
    I(f"s_addc_u32 s{S_INB+1}, s23, 0")
    I(f"s_lshl_b32 s{S_t0}, s{S_r}, 4")
    I(f"s_add_u32 s{S_DBG}, s20, s{S_t0}")
    I(f"s_addc_u32 s{S_DBG+1}, s21, 0")
    mk_srd(S_WS, 22, WS_BYTES)
    mk_srd(S_W2, 14, 1792 * 1024)
    mk_srd(S_WO, 8, 512 * 1024)
def dma4(voff, srdb, tag):
    for i in range(4):
        I(f"buffer_load_dwordx4 v{voff+i}, {srd(srdb)}, s{S_SOFF} offen offset:{i*1024} lds", tag=tag)
def b2_unit(g, voff, sig=True):
    I(f"s_add_u32 m0, s{S_m0b}, {g*SLOT}")
    if g < 7: I(f"s_add_u32 s{S_SOFF}, s{S_B2}, {g*65536}")
    else:
        I(f"s_xor_b32 s{S_SOFF}, s{S_J32}, {((g-7)^1)*65536}")
        I(f"s_add_u32 s{S_SOFF}, s{S_SOFF}, s{S_BO}")
    dma4(voff, S_W2 if g < 7 else S_WO, f"b{g}")
    if sig: dsig(f"Lb{g}")
def a2_soff(lam, dst):
    if lam < 14: I(f"s_add_u32 s{dst}, s{S_A2}, {lam*8192}")
    else:
        I(f"s_lshr_b32 s{dst}, s{S_J32}, 2"); I(f"s_xor_b32 s{dst}, s{dst}, {((lam-14)^2)*8192}")
        I(f"s_add_u32 s{dst}, s{dst}, s{S_A2}"); I(f"s_add_u32 s{dst}, s{dst}, {14*8192}")
def after_karg():
    I("s_waitcnt lgkmcnt(0)")
    if STAMP:
        I("s_memtime s[100:101]")
        I("s_mov_b32 s72, s96")
        I("s_mov_b32 s73, s98")
def finish():
    if STAMP:
        I("s_waitcnt vmcnt(0)")
        stamp("end")
        I("s_memrealtime s[22:23]")
        I("s_waitcnt lgkmcnt(0)")
        I(f"s_lshl_b32 s{S_t0}, s2, 3")
        I(f"s_add_u32 s{S_t0}, s{S_t0}, s{S_w}")
        if role[0] == "H": I(f"s_add_u32 s{S_t0}, s{S_t0}, 4")
        I(f"s_lshl_b32 s{S_t0}, s{S_t0}, 6")
        I(f"s_add_u32 s{S_t0}, s{S_t0}, {STAMP_OFF}")
        I(f"v_mov_b32 v2, s{S_t0}")
        for k in range(9): I(f"v_mov_b32 v{32+k}, s{S_STAMP+2*k}")
        I("v_mov_b32 v41, s73"); I("v_mov_b32 v42, s22"); I("v_mov_b32 v43, s72"); I("v_mov_b32 v44, s100")
        I(f"v_mov_b32 v45, s{S_BUD}"); I("v_mov_b32 v46, 0")
        I("s_mov_b64 exec, 1")
        for k in range(4): I(f"buffer_store_dwordx4 {vr(32+4*k)}, v2, {srd(S_WS)}, 0 offen offset:{16*k}")
    if STAMP >= 3:
        if OPT["padk"] >= 0 and (OPT["padr"] == 1) == (role[0] == "H"):
            I(f"s_sub_u32 s24, s{S_STAMP+2*OPT['padk']}, s{73 if STAMP == 3 else 72}")
            if STAMP == 4: I("s_lshr_b32 s24, s24, 4")
        else: I("s_mov_b32 s24, 0")
        I(f"s_add_u32 s24, s24, {OPT['padt']}")
        l = U("pad")
        e.label(l)
        I("s_memrealtime s[26:27]"); I("s_waitcnt lgkmcnt(0)"); I("s_sub_u32 s25, s26, s73"); I("s_cmp_lt_u32 s25, s24"); I(f"s_cbranch_scc1 {l}")
    I("s_endpgm")
    flush_slow()
def units(att):
    L = []
    for u in range(4): L += [("x", u, 0), ("x", u, 1), ("g", 0, u), ("g", 1, u)]
    L += [("g", 2, u) for u in range(4)]
    if not att: L += [("g", 3, 0), ("g", 3, 1)]
    return L
def phys(att, k):
    if not att: return (k - 14) % 9
    i = (k - 13) % 8
    return 8 if i == 7 else i
QSLOT = phys(True, 13)
SIGG = (2, 3, 4, 6, 7)
CHKG = {2: 2, 3: 3, 4: 4, 5: 6, 6: 6, 8: 7, 7: 7}

class Stream:
    def __init__(self, steps, depth, ring):
        self.steps = steps; self.side = []; self.after = {}; self.D = depth; self.ring = ring
        assert len(ring) >= depth + 2
    def add(self, ready, deadline, fns):
        for f in fns: self.side.append([ready, deadline, f])
    def aft(self, k, f):
        prev = self.after.get(k)
        self.after[k] = (lambda: (prev(), f())) if prev else f
    def issue(self, k, half):
        st = self.steps[k]
        b = self.ring[k % len(self.ring)]
        a, off, d2 = st["rd"]
        if half == 0:
            if "pre" in st: st["pre"]()
            I(f"ds_read_b64_tr_b16 {vr(b,2)}, v{a} offset:{off}", tag=f"w{k}")
        else:
            I(f"ds_read_b64_tr_b16 {vr(b+2,2)}, v{a} offset:{off+d2}", tag=f"w{k}")
            if "post" in st: st["post"](k)
    def pump(self, k, n):
        c = 0
        while self.side and c < n and self.side[0][0] <= k:
            r = self.side.pop(0)[2]()
            c += r if isinstance(r, int) else 1
    def run(self, rate):
        n = len(self.steps); D = self.D
        for k in range(min(D, n)):
            self.issue(k, 0); self.issue(k, 1)
        for k in range(n):
            st = self.steps[k]
            while any(s[1] <= k for s in self.side): self.side.pop(0)[2]()
            if "need" in st: st["need"]()
            if k % 2 == 0 and k + 1 < n: e.wait(lg=f"w{k+1}")
            e.wait(lg=f"w{k}")
            mfs = st["mf"](vr(self.ring[k % len(self.ring)]), st)
            I(mfs[0])
            if k + D < n: self.issue(k + D, 0)
            if len(mfs) > 1:
                self.pump(k, (rate + 1) // 2)
                I(mfs[1])
            if k + D < n: self.issue(k + D, 1)
            for m in mfs[2:]: I(m)
            self.pump(k, rate // 2 if len(mfs) > 1 else rate)
            if k in self.after: self.after[k]()
            stamp(f"k{k}")
        while self.side: self.side.pop(0)[2]()
def cost(n, f):
    def g():
        f(); return n
    return g

def vtouch(att, dst=22):
    P = 3072 if att else 3584; wp = 6 if att else 12
    if dst == 22: mk_srd(S_W, wp, 512 * P)
    I(f"s_lshl_b32 s{S_t0}, s{S_r}, 2"); I(f"s_add_u32 s{S_t0}, s{S_t0}, s{S_w}")
    I(f"s_mul_i32 s{S_t1}, s{S_t0}, {8*P}")
    I(f"s_mul_i32 s{S_t2}, s{S_q}, {256 if att else 896}"); I(f"s_add_u32 s{S_t1}, s{S_t1}, s{S_t2}")
    I("v_and_b32 v1, 7, v0"); I(f"v_mul_u32_u24 v1, {P}, v1")
    I(f"s_lshl_b32 s{S_t2}, s{S_j1}, 7"); I(f"s_add_u32 s{S_t2}, s{S_t2}, s{S_t1}")
    I("v_lshlrev_b32 v2, 7, v0")
    I("s_mov_b64 exec, 0xff")
    I(f"buffer_load_dword v{dst}, v1, {srd(S_W)}, s{S_t2} offen offset:{2048 if att else 512}")
    if OPT["tB"]: I(f"buffer_load_dword v{dst}, v1, {srd(S_W)}, s{S_t2} offen offset:{0 if att else 256}")
    if not att:
        I(f"s_mul_i32 s{S_t2}, s{S_j1}, {4*P}"); I(f"s_add_u32 s{S_t2}, s{S_t2}, s{S_t1}")
        I("s_mov_b64 exec, 0xf")
        I(f"buffer_load_dword v{dst}, v1, {srd(S_W)}, s{S_t2} offen offset:768")
    I(f"s_lshl_b32 s{S_t0}, s{S_t0}, 2"); I(f"s_add_u32 s{S_t0}, s{S_t0}, s{S_jj}")
    F_ = 2 if OPT["tfull"] else 1
    if OPT["tfull"]: I(f"s_and_b32 s{S_t0}, s{S_t0}, 127"); I(f"s_lshl_b32 s{S_t0}, s{S_t0}, 1")
    I(f"s_mul_i32 s{S_t1}, s{S_t0}, 1792"); I(f"s_mul_i32 s{S_t2}, s{S_q}, {448*1024}"); I(f"s_add_u32 s{S_t1}, s{S_t1}, s{S_t2}")
    I(f"s_mov_b64 exec, {(1 << (14*F_)) - 1}")
    I(f"buffer_load_dword v{dst}, v2, {srd(S_W2)}, s{S_t1} offen")
    I(f"s_lshl_b32 s{S_t1}, s{S_t0}, 9"); I(f"s_lshl_b32 s{S_t2}, s{S_q}, 17"); I(f"s_add_u32 s{S_t1}, s{S_t1}, s{S_t2}")
    I(f"s_mov_b64 exec, {(1 << (4*F_)) - 1}")
    I(f"buffer_load_dword v{dst}, v2, {srd(S_WO)}, s{S_t1} offen")
    I("s_mov_b64 exec, -1")
def gate_math(z0, z1, G, tmp):
    T = [f"v_cvt_pk_bf16_f32 v{tmp}, v{z0}, v{z1}", f"v_lshlrev_b32 v{G}, 16, v{tmp}", f"v_and_b32 v{G+2}, 0xffff0000, v{tmp}"]
    T += [f"v_mul_f32 v{G+2*p}, {f2u(-1.4426950408889634)}, v{G+2*p}" for p in range(2)]
    T += [f"v_exp_f32 v{G+2*p}, v{G+2*p}" for p in range(2)]
    T += [f"v_add_f32 v{G+2*p}, 1.0, v{G+2*p}" for p in range(2)]
    T += [f"v_rcp_f32 v{G+2*p}, v{G+2*p}" for p in range(2)]
    T += [f"v_cvt_pk_bf16_f32 v{tmp}, v{G}, v{G+2}", f"v_lshlrev_b32 v{G}, 16, v{tmp}", f"v_and_b32 v{G+2}, 0xffff0000, v{tmp}"]
    T += [f"v_sub_f32 v{G+1+2*p}, 1.0, v{G+2*p}" for p in range(2)]
    T += [f"v_cvt_pk_bf16_f32 v{tmp}, v{G+1}, v{G+3}", f"v_lshlrev_b32 v{G+1}, 16, v{tmp}", f"v_and_b32 v{G+3}, 0xffff0000, v{tmp}"]
    T += [f"v_max_f32 v{G+2*p}, {f2u(2.0**-60)}, v{G+2*p}" for p in range(2)]
    T += [f"v_rcp_f32 v{G+4+p}, v{G+2*p}" for p in range(2)]
    T += [f"v_mul_f32 v{G+1+2*p}, v{G+4+p}, v{G+1+2*p}" for p in range(2)]
    return T
def vtouch2():
    I(f"s_lshl_b32 s{S_t0}, s{S_r}, 2"); I(f"s_add_u32 s{S_t0}, s{S_t0}, s{S_w}")
    I(f"s_lshl_b32 s{S_t0}, s{S_t0}, 1"); I(f"s_add_u32 s{S_t0}, s{S_t0}, s{S_j1}")
    I("v_lshlrev_b32 v2, 7, v0")
    I(f"s_mul_i32 s{S_t1}, s{S_t0}, 3584"); I(f"s_mul_i32 s{S_t2}, s{S_q}, {448*1024}"); I(f"s_add_u32 s{S_t1}, s{S_t1}, s{S_t2}")
    I(f"s_mov_b64 exec, {(1 << 28) - 1}")
    I(f"buffer_load_dword v{30 if M else 18}, v2, {srd(S_W2)}, s{S_t1} offen")
    I(f"s_lshl_b32 s{S_t1}, s{S_t0}, 10"); I(f"s_lshl_b32 s{S_t2}, s{S_q}, 17"); I(f"s_add_u32 s{S_t1}, s{S_t1}, s{S_t2}")
    I("s_mov_b64 exec, 0xff")
    I(f"buffer_load_dword v{30 if M else 18}, v2, {srd(S_WO)}, s{S_t1} offen")
    I("s_mov_b64 exec, -1")
e.raw(f"; @launch grid=(256,1,1) block=(512,1,1) lds=163840")
e.raw('.amdgcn_target "amdgcn-amd-amdhsa--gfx950"')
e.raw(".text")
e.raw(f".globl {NAME}_kernel")
e.raw(".p2align 8")
e.raw(f".type {NAME}_kernel,@function")
e.label(f"{NAME}_kernel")
I("s_load_dwordx16 s[4:19], s[0:1], 0")
I("s_load_dwordx4 s[20:23], s[0:1], 64")
if STAMP:
    I("s_memrealtime s[98:99]")
    I("s_memtime s[96:97]")
if OPT["codepf"] and OPT["pfe"] == 2:
    I("s_getpc_b64 s[56:57]")
    e.label("L_pc")
    I("v_lshrrev_b32 v1, 5, v0")
    I("v_and_b32 v2, 1, v0")
    I("v_add_u32 v2, v2, v1")
    I(f"s_bfe_u32 s{S_t0}, s2, 0x50003")
    I(f"s_lshl_b32 s{S_t0}, s{S_t0}, 4")
    I(f"v_add_lshl_u32 v2, v2, s{S_t0}, 7")
    I("v_min_u32 v2, L_end-L_pc, v2")
    I("s_mov_b64 exec, 3")
    I("global_load_dword v23, v2, s[56:57]")
    I("s_mov_b64 exec, -1")
if OPT["codepf"] and OPT["pfe"] == 1:
    I("s_cmp_lt_u32 s2, 8")
    I("s_cbranch_scc0 L_nopf")
    e.cond_begin()
    I("s_getpc_b64 s[56:57]")
    e.label("L_pc")
    I("v_lshlrev_b32 v2, 7, v0")
    I("v_min_u32 v2, L_end-L_pc, v2")
    I("global_load_dword v23, v2, s[56:57]")
    e.cond_end()
    e.label("L_nopf")
I("v_lshrrev_b32 v1, 6, v0")
I("s_cmp_ge_u32 s2, 256")
I("s_cbranch_scc1 L_end")
I(f"v_readfirstlane_b32 s{S_t2}, v1")
I("v_and_b32 v0, 63, v0")
I(f"s_bfe_u32 s{S_q}, s2, 0x20001")
I(f"s_and_b32 s{S_t0}, s2, 1")
I(f"s_lshl_b32 s{S_t0}, s{S_t0}, 3")
I(f"s_bfe_u32 s{S_r}, s2, 0x30003")
I(f"s_or_b32 s{S_r}, s{S_r}, s{S_t0}")
I(f"s_lshr_b32 s{S_jj}, s2, 6")
if OPT["rotq"] == 2:
    I(f"s_lshr_b32 s{S_rot}, s{S_t0}, 2")
    I(f"s_add_u32 s{S_rot}, s{S_rot}, s{S_q}")
    I(f"s_and_b32 s{S_t0}, s{S_r}, 1")
    I(f"s_add_u32 s{S_rot}, s{S_rot}, s{S_t0}")
elif OPT["rotq"]: I(f"s_add_u32 s{S_rot}, s{S_r}, s{S_q}")
else: I(f"s_mov_b32 s{S_rot}, s{S_r}")
I(f"s_and_b32 s{S_w}, s{S_t2}, 3")
I(f"s_lshl_b32 s{S_m0b}, s{S_w}, 12")
I(f"s_cmp_lt_u32 s{S_t2}, 4")
I("s_cbranch_scc1 L_C")

H_XD = 4; H_WD = 8; H_BD = 12; H_ACC = 64
H_G = 18 if M else 20; H_BR = 20 if M else 24
H_RING = [32, 36, 40, 44, 48, 52, 24, 28] if M else [32, 36, 40, 44, 48, 52, 12]
def a2r(lam, p):
    if lam < 16: return ar(lam * 8 + p * 4)
    return vr((56 if lam == 16 else 4) + p * 4)
I("s_setprio 3")
I("v_lshrrev_b32 v32, 4, v0")
I("v_lshrrev_b32 v36, 3, v0")
I("v_and_b32 v37, 7, v0")
I("v_xor_b32 v39, v37, v32")
I("v_lshlrev_b32 v39, 4, v39")
I(f"v_lshl_add_u32 v{H_XD}, v36, 11, v39")
I(f"v_xor_b32 v{H_XD+1}, 64, v{H_XD}")
I(f"v_add_u32 v{H_XD+2}, {14*1024}, v{H_XD+1}")
I(f"v_add_u32 v{H_XD+3}, {14*1024}, v{H_XD}")
I(f"s_lshl_b32 s{S_t0}, s{S_r}, 17")
I(f"s_lshl_b32 s{S_t1}, s{S_w}, 15")
I(f"s_add_u32 s{S_t0}, s{S_t0}, s{S_t1}")
for g4 in range(4):
    I(f"s_add_u32 s{S_WK+g4}, s{S_rot}, {g4}")
    I(f"s_and_b32 s{S_WK+g4}, s{S_WK+g4}, 3")
    I(f"s_lshl_b32 s{S_KG+g4}, s{S_WK+g4}, 8")
    I(f"s_add_u32 s{S_KG+g4}, s{S_KG+g4}, s{S_t0}")
I(f"s_mov_b32 s{S_X+2}, {2048*1024}")
I(f"s_mov_b32 s{S_X+3}, 0x20000")
assert phys(False, 0) == 4 and phys(False, 1) == 5 and phys(True, 0) == 3 and phys(True, 1) == 4 and phys(False, 2) == 6 and phys(True, 2) == 5
I(f"s_cmp_ge_u32 s{S_jj}, 2")
I(f"s_cselect_b32 s{S_t2}, 3, 4")
I(f"s_mov_b32 s{S_W+2}, {512*3584}")
I(f"s_cmov_b32 s{S_W+2}, {512*3072}")
I(f"s_mov_b32 s{S_P}, 3584")
I(f"s_cmov_b32 s{S_P}, 3072")
I(f"s_lshl_b32 s{S_t2}, s{S_t2}, 14")
I(f"s_add_u32 s{S_t2}, s{S_t2}, s{S_m0b}")
I(f"s_mov_b32 m0, s{S_t2}")
I(f"s_add_u32 s{S_SOFF}, s{S_KG}, 128")
after_karg()
I(f"s_mov_b32 s{S_X}, s4")
I(f"s_and_b32 s{S_X+1}, s5, 0xffff")
for i in range(4): I(f"buffer_load_dwordx4 v{H_XD+i}, {srd(S_X)}, s{S_KG} offen offset:{i*1024} lds", tag="u0")
I(f"s_add_u32 m0, s{S_t2}, {SLOT}")
I(f"s_mov_b32 s{S_W+3}, 0x20000")
dma4(H_XD, S_X, "u1")
I(f"s_lshl_b32 s{S_t0}, s{S_w}, 5")
I(f"v_add_u32 v38, s{S_t0}, v36")
I(f"v_mul_lo_u32 v38, v38, s{S_P}")
I(f"s_mul_i32 s{S_COL}, s{S_q}, 896")
I(f"s_lshl_b32 s{S_t0}, s{S_q}, 8")
I(f"s_add_u32 s{S_t0}, s{S_t0}, {1024-256}")
I(f"s_cmp_ge_u32 s{S_jj}, 2")
I(f"s_cselect_b32 s{S_W}, s6, s12")
I(f"s_cselect_b32 s{S_W+1}, s7, s13")
I(f"s_cselect_b32 s{S_COL}, s{S_t0}, s{S_COL}")
I(f"s_cselect_b32 s{S_t0}, 1, {2 if M else 1}")
I(f"s_cselect_b32 s{S_t1}, 64, {0 if M else 64}")
I(f"s_and_b32 s{S_W+1}, s{S_W+1}, 0xffff")
I("v_and_b32 v39, 1, v32")
I(f"v_lshlrev_b32 v39, s{S_t0}, v39")
I("v_xor_b32 v39, v39, v37")
I("v_lshlrev_b32 v39, 4, v39")
I(f"v_add_u32 v{H_WD}, v38, v39")
I(f"v_xor_b32 v39, s{S_t1}, v39")
I(f"s_lshl_b32 s{S_t0}, s{S_P}, 3")
I(f"s_sub_u32 s{S_t0}, s{S_t0}, 1024")
I(f"v_add3_u32 v{H_WD+1}, v38, v39, s{S_t0}")
I(f"s_lshl_b32 s{S_t0}, s{S_t0}, 1")
I(f"v_add_u32 v{H_WD+2}, s{S_t0}, v{H_WD}")
I(f"v_add_u32 v{H_WD+3}, s{S_t0}, v{H_WD+1}")
I(f"s_lshl_b32 s{S_t0}, s{S_jj}, 7")
I(f"s_add_u32 s{S_COL}, s{S_COL}, s{S_t0}")
I(f"s_lshl_b32 s{S_t1}, s{S_P}, 7")
for g4 in range(4): I(f"s_mul_i32 s{S_WK+g4}, s{S_WK+g4}, s{S_t1}")
I(f"s_add_u32 m0, s{S_t2}, {2*SLOT}")
I(f"s_add_u32 s{S_SOFF}, s{S_WK}, s{S_COL}")
dma4(H_WD, S_W, "u2")
common_ptrs()
mk_srd(S_OUT, 18, 2048 * 1024)
mk_srd(S_GW, 16, 1024)
I(f"s_cmp_ge_u32 s{S_jj}, 2")
I("s_cbranch_scc1 L_h_att")
snapH = e.snapshot()

def h_prog(att):
    e.restore(snapH); e.hist = []
    UL = units(att)
    CH = [0, -1024, 1024] if att else [0, 256, 512]
    def issue(k):
        un = UL[k]
        I(f"s_add_u32 m0, s{S_m0b}, {phys(att,k)*SLOT}")
        if un[0] == "x":
            I(f"s_add_u32 s{S_SOFF}, s{S_KG+un[1]}, {un[2]*128}")
            dma4(H_XD, S_X, f"u{k}")
            if att and un[2] == 1: halo(un[1], f"u{k}")
            return
        _, c, u = un
        if c < 3:
            I(f"s_add_u32 s{S_SOFF}, s{S_WK+u}, s{S_COL}")
            if CH[c]: I(f"s_add_i32 s{S_SOFF}, s{S_SOFF}, {CH[c]}")
        else:
            KH = 256 * 3584
            if u == 0:
                I("v_lshrrev_b32 v2, 2, v0")
                if M:
                    I("v_lshrrev_b32 v1, 4, v0")
                    I("v_xor_b32 v2, v2, v1")
                I("v_and_b32 v2, 1, v2")
                I(f"v_mul_u32_u24 v1, {KH-64}, v2")
                for i in (0, 2): I(f"v_add_u32 v{H_WD+i}, v{H_WD+i}, v1")
                if not M: I(f"v_sub_u32 v1, {KH-64}, v1")
                for i in (1, 3): I(f"v_add_u32 v{H_WD+i}, v{H_WD+i}, v1")
                I(f"v_mul_u32_u24 v2, {2*KH}, v2")
                I(f"v_sub_u32 v{H_XD}, {KH}, v2")
                I(f"s_cmp_ge_u32 s{S_WK}, {KH}")
                I(f"s_cselect_b32 s{S_t0}, 1, 0")
            else:
                I(f"s_cmp_ge_u32 s{S_WK}, {KH}")
                I(f"s_cselect_b32 s{S_t1}, 1, 0")
                I(f"s_cmp_ge_u32 s{S_WK+1}, {KH}")
                I(f"s_cselect_b32 s{S_t0}, 1, 0")
                I(f"s_sub_u32 s{S_t0}, s{S_t0}, s{S_t1}")
            I(f"s_sub_u32 s{S_t1}, 0, s{S_t0}")
            for i in range(4): I(f"v_mad_i32_i24 v{H_WD+i}, v{H_XD}, s{S_t0 if (M or i % 2 == 0) else S_t1}, v{H_WD+i}")
            I(f"s_min_u32 s{S_SOFF}, s{S_WK+u}, s{S_WK+u+2}")
            I(f"s_add_u32 s{S_SOFF}, s{S_SOFF}, s{S_COL}")
            I(f"s_lshl_b32 s{S_t0}, s{S_jj}, 6")
            I(f"s_sub_u32 s{S_SOFF}, s{S_SOFF}, s{S_t0}")
            I(f"s_add_u32 s{S_SOFF}, s{S_SOFF}, 768")
        dma4(H_WD, S_W, f"u{k}")
    def w0(f):
        l = U("w0")
        I(f"s_cmp_eq_u32 s{S_w}, 0"); I(f"s_cbranch_scc0 {l}")
        e.cond_begin(); f(); e.cond_end(); e.label(l)
    def peer_issue(): w0(lambda: I(f"s_load_dword s{S_POLL}, s[{S_DBG}:{S_DBG+1}], 0 glc"))
    def peer():
        def f():
            lp = U("pp"); ok = U("po")
            I("s_waitcnt lgkmcnt(0)")
            I(f"s_cmp_ge_u32 s{S_POLL}, 16")
            I(f"s_cbranch_scc0 {lp}")
            e.label(ok)
            SLOW.extend([f"{lp}:", "    s_sleep 8", f"    s_load_dword s{S_POLL}, s[{S_DBG}:{S_DBG+1}], 0 glc", "    s_waitcnt lgkmcnt(0)",
                         f"    s_cmp_ge_u32 s{S_POLL}, 16", f"    s_cbranch_scc1 {ok}"] + spin_tail(lp, ok))
        w0(f)
        I(f"s_mov_b32 s{S_POLL}, 0")
    V_Q = 64; V_S = 96; V_BIAS = 32; V_RINV = 40; V_T = 48; A_KV = 64; A_ONES = 96; V_AD = 24 if M else 56
    def att_setup(part):
        if part == 0:
            I(f"s_add_u32 s{S_t0}, s{S_m0b}, {EXCH_LDS+4096}")
            I(f"v_add_u32 v{V_AD}, s{S_t0}, v{V_L16}")
            I("v_bfe_u32 v1, v0, 3, 1")
            I("v_lshlrev_b32 v1, 12, v1")
            I(f"v_sub_u32 v{V_AD+2}, v{V_AD}, v1")
            I("v_xor_b32 v1, 4096, v1")
            I(f"v_sub_u32 v{V_AD+1}, v{V_AD}, v1")
            I("v_lshrrev_b32 v1, 5, v0")
            I("v_lshlrev_b32 v1, 12, v1")
            I(f"v_sub_u32 v{V_AD+4}, v{V_AD}, v1")
            I("v_xor_b32 v1, 4096, v1")
            I(f"v_sub_u32 v{V_AD+3}, v{V_AD}, v1")
            I(f"v_add_u32 v{V_AD+5}, {(QSLOT*SLOT - EXCH_LDS - 4096) & 0xffffffff}, v{V_AD}")
            I(f"s_mov_b32 s{S_CEXP}, {f2u(0.25*1.4426950408889634)}")
            I(f"s_or_b32 s{S_t0}, s{S_r}, s{S_w}")
            I(f"s_cmp_eq_u32 s{S_t0}, 0")
            I(f"s_cselect_b32 s{S_THR}, -16, -9")
            I(f"v_mov_b32 v{V_T}, 0x3f803f80")
            for k in range(4): I(f"v_accvgpr_write_b32 a{A_ONES+k}, v{V_T}")
            I(f"v_mov_b32 v{V_T}, {NEG}")
            I(f"v_and_b32 v{V_T+1}, 15, v0")
            I(f"v_lshrrev_b32 v{V_T+2}, 4, v0")
            I(f"v_lshlrev_b32 v{V_T+2}, 2, v{V_T+2}")
        elif part in (1, 2):
            p = part - 1; x8 = 8 if p == 0 else 0
            I(f"v_xor_b32 v{V_T+3}, {x8}, v{V_T+1}")
            I(f"v_xor_b32 v{V_T+4}, {x8}, v{V_T+2}")
            I(f"v_sub_u32 v{V_T+3}, v{V_T+3}, v{V_T+4}")
            for r in range(4):
                I(f"v_subrev_u32 v{V_T+4}, {r}, v{V_T+3}")
                I(f"v_cmp_lt_u32 vcc, 7, v{V_T+4}")
                I(f"v_cmp_lt_i32 s[56:57], s{S_THR}, v{V_T+4}")
                I("s_and_b64 vcc, vcc, s[56:57]")
                I(f"v_cndmask_b32 v{V_BIAS+p*4+r}, 0, v{V_T}, vcc")
        else:
            for k in range(16): I(f"v_mov_b32 v{V_Q+16*(part-3)+k}, 0")
            I("s_mov_b32 s56, 0xff00ff00"); I("s_mov_b32 s57, 0xff00ff00")
            I("s_not_b64 s[58:59], s[56:57]")
    def br_setup():
        if M:
            I("v_bfe_u32 v1, v0, 2, 2")
            I("v_lshrrev_b32 v2, 5, v0")
            I("v_lshl_add_u32 v1, v2, 2, v1")
            I("v_lshlrev_b32 v1, 7, v1")
            I("v_bfe_u32 v2, v0, 4, 1")
            I("v_lshl_add_u32 v1, v2, 5, v1")
            I("v_bfe_u32 v2, v0, 3, 1")
            I("v_lshl_add_u32 v1, v2, 6, v1")
        else:
            I("v_lshrrev_b32 v1, 2, v0")
            I("v_bfe_u32 v2, v0, 3, 2")
            I("v_lshlrev_b32 v1, 7, v1")
            I("v_lshl_add_u32 v1, v2, 5, v1")
        I("v_and_b32 v2, 3, v0")
        I("v_lshl_add_u32 v1, v2, 3, v1")
        I(f"s_lshr_b32 s{S_t0}, s{S_q}, 1")
        I(f"s_lshl_b32 s{S_t0}, s{S_t0}, 13")
        I(f"s_and_b32 s{S_t1}, s{S_q}, 1")
        I(f"s_lshl_b32 s{S_t1}, s{S_t1}, 6")
        I(f"s_or_b32 s{S_t0}, s{S_t0}, s{S_t1}")
        I(f"v_xor_b32 v1, s{S_t0}, v1")
        for tau in range(4):
            cb = 3 - tau
            if M: I(f"v_xor_b32 v{H_BR+tau}, {(cb>>1)*8192 + (cb&1)*64}, v1")
            else:
                for tt in range(2): I(f"v_xor_b32 v{H_BR+2*tau+tt}, {(cb>>1)*8192 + (cb&1)*64 + tt*32}, v1")
        I(f"s_lshl_b32 s{S_PB}, s{S_r}, 2"); I(f"s_add_u32 s{S_PB}, s{S_PB}, s{S_jj}")
        I(f"s_mul_i32 s{S_PB}, s{S_PB}, {12*8192}")
        I(f"s_lshl_b32 s{S_t0}, s{S_w}, 11"); I(f"s_add_u32 s{S_PB}, s{S_PB}, s{S_t0}"); I(f"s_add_u32 s{S_PB}, s{S_PB}, {PART_OFF}")
    V_HV = 31 if M else 19
    def halo(u, tag):
        I(f"s_lshr_b32 s{S_t0}, s{S_m0b}, 2")
        I(f"s_add_u32 m0, s{S_t0}, {HALO_LDS + u*4096}")
        I(f"s_and_b32 s{S_t0}, s{S_KG+u}, 0x300")
        I(f"buffer_load_dwordx4 v{V_HV}, {srd(S_X)}, s{S_t0} offen lds", tag=tag)
    if att:
        I(f"s_and_b32 s{S_t1}, s{S_w}, 1")
        I(f"s_mul_i32 s{S_t1}, s{S_t1}, {1024+64}")
        I(f"v_xor_b32 v{V_HV}, s{S_t1}, v{H_XD}")
        I(f"s_lshl_b32 s{S_t0}, s{S_r}, 17")
        I(f"s_sub_u32 s{S_t0}, s{S_t0}, 16384")
        I(f"s_lshr_b32 s{S_t1}, s{S_w}, 1")
        I(f"s_lshl_b32 s{S_t1}, s{S_t1}, 7")
        I(f"s_add_u32 s{S_t0}, s{S_t0}, s{S_t1}")
        I(f"v_add_u32 v{V_HV}, s{S_t0}, v{V_HV}")
        I(f"v_max_i32 v{V_HV}, 0, v{V_HV}")
        halo(0, "u2")
    if EG and not att:
        I(f"s_lshl_b32 s{S_t0}, s{S_w}, 8")
        I(f"s_add_u32 m0, s{S_t0}, {GW_LDS}")
        I("v_lshlrev_b32 v1, 2, v0")
        I(f"buffer_load_dword v1, {srd(S_GW)}, s{S_t0} offen lds", tag="u2")
    PRE = OPT["pre"]
    for k in range(3, PRE + 1): issue(k)
    first = list(range(PRE + 1, 8))
    if att: sched = [first, [8, 9], [10], [11, 12, 13], [14], [15, 16, 17], [18], [] if OPT["u19"] else [19]]
    else: sched = [first, [8, 9], [10, 11], [12, 13], [14, 15], [16, 17], [18, 19], []]
    def gw_dma():
        I(f"s_mov_b32 m0, {GW_LDS}")
        w0(lambda: I(f"buffer_load_dwordx4 v{V_L16}, {srd(S_GW)}, 0 offen lds"))
    def inb_reset():
        for k in range(4):
            I(f"s_mov_b32 s{56+k}, 0")
            I(f"s_add_u32 s{S_t0}, s{S_MYIN}, {k*128}")
            I(f"s_atomic_swap s{56+k}, s[{S_INB}:{S_INB+1}], s{S_t0} glc")
    def count_in():
        I(f"s_mov_b32 s{S_EV}, 1")
        I("s_waitcnt lgkmcnt(0)")
        I(f"s_atomic_add s{S_EV}, s[{S_DBG}:{S_DBG+1}], 0")
    if OPT["hinit"]:
        late_scalars(); w0(inb_reset)
    extra = {1: lambda: ((w0(count_in) if OPT["hinit"] else late_scalars()), b2_voffs(H_BD)), 3: (gw_dma if not EG else lambda: None), 7: (br_setup if att or OPT["sch"] else lambda: (b2_unit(8, H_BD), br_setup()))}
    if att: extra.update({2: lambda: (att_setup(0), att_setup(1)), 4: lambda: (att_setup(2), att_setup(3)), 6: lambda: att_setup(4)})
    gk = [k for k, un in enumerate(UL) if un[0] == "g"]
    def bar(i, need=None):
        stamp(f"h_a{i}")
        if need is None and i < len(gk): need = gk[i]
        if need is not None: e.wait(vm=f"u{need}")
        if i == OPT["pb"]: peer()
        I("s_barrier"); stamp(f"h_b{i}")
    for i in range(8):
        bar(i)
        if i == OPT["pb"] - 2: peer_issue()
        for k in sched[i]: issue(k)
        if i in extra: extra[i]()
        if i == (OPT["tha"] if att else OPT["th"]) and not OPT["tatt"]: vtouch(att, 30 if M else 18)
        if i == OPT["th"] and OPT["tatt"] and att: vtouch2()
    def a2_load(lam):
        a2_soff(lam, S_t1)
        for p in range(2):
            I(f"buffer_load_dwordx4 {a2r(lam,p)}, v{V_L16}, {srd(S_WS)}, s{S_t1} offen offset:{p*1024} sc1", tag=f"a{lam}")
    def a2_items(lams, gap=None):
        gap = OPT['gap']
        F = []
        for lam in lams:
            F.append(cost(9, lambda lam=lam: (a2_soff(lam, S_COL), I(f"buffer_load_dwordx4 {a2r(lam,0)}, v{V_L16}, {srd(S_WS)}, s{S_COL} offen sc1", tag=f"a{lam}x"))))
            F += [cost(9, lambda: None)] * (gap - 1)
            F.append(cost(9, lambda lam=lam: I(f"buffer_load_dwordx4 {a2r(lam,1)}, v{V_L16}, {srd(S_WS)}, s{S_COL} offen offset:1024 sc1", tag=f"a{lam}")))
            F += [cost(9, lambda: None)] * (gap - 1)
        return F
    Bu = lambda g: b2_unit(g, H_BD, False)
    SS = []
    ALL = (0, 1, 2, 3)
    side = {}
    if not att:
        if OPT["sch"] == 0:
            bar(8); Bu(0)
            bar(9); issue(20); Bu(1)
            bar(10); push_group(ownbit(0), ALL); issue(21); Bu(2)
            bar(11); push_group(ownbit(1), ALL); Bu(3); poll_load()
            bar(12); poll_check(0x11)
            for lam in range(4): a2_load(lam)
            Bu(4); poll_load()
            bar(13); poll_check(0x22)
            for lam in range(4, 8): a2_load(lam)
            Bu(5)
            bar(14)
        else:
            bar(8)
            bar(9); issue(20)
            bar(10); push_group(ownbit(0), ALL); issue(21)
            bar(11); push_group(ownbit(1), ALL); Bu(0); Bu(1); poll_load()
            bar(12); poll_check(0x11); a2_load(0); a2_load(1); poll_load()
            bar(13); a2_load(2); a2_load(3); b2_unit(2, H_BD)
            e.wait(vm="b1")
            bar(14); poll_check(0x22)
            side[(0, 0)] = lambda: SS[0].add(0, 999, a2_items((4, 5, 6, 7), 2))
        def f_o(): poll_check(0x300); SS[0].add(0, 999, a2_items((16, 17, 14, 15)))
    else:
        def kv_reads(m0, tag):
            for t in range(4):
                I(f"ds_read_b64 {ar(A_KV+8*t,2)}, v{m0} offset:{t*1024}", tag=f"{tag}{t}")
                I(f"ds_read_b128 {ar(A_KV+8*t+2)}, v{V_AD} offset:{t*1024}", tag=f"{tag}{t}")
                I(f"ds_read_b64 {ar(A_KV+8*t+6,2)}, v{m0+1} offset:{t*1024+8}", tag=f"{tag}{t}")
        bar(8)
        kv_reads(V_AD + 1, "k")
        e.wait(lg="k3")
        bar(9, 18 if OPT["u19"] else 19)
        def Preg(t, p): return V_Q + 8 * t + 4 * p
        for half, m in enumerate(("s[56:57]", "s[58:59]")):
            I(f"s_mov_b64 exec, {m}")
            for t in range(4):
                for p in range(2):
                    I(f"ds_read_b64 {vr(Preg(t,p)+2*half,2)}, v{V_AD+5} offset:{t*1024+p*8}", tag="q")
        I("s_mov_b64 exec, -1")
        stamp("h_q")
        e.wait(lg="q")
        un = [(i >> 1, i & 1) for i in range(8)]
        Sc = lambda i: V_S + 4 * i
        for i, (t, p) in enumerate(un): I(f"{MF} {vr(Sc(i))}, {ar(A_KV+8*t+4*p)}, {vr(Preg(t,p))}, {vr(V_BIAS+4*p)}")
        poll_load()
        if OPT["u19"]: issue(19); dsig("Lv3")
        Bu(0)
        m = [V_T + i for i in range(8)]
        for i in range(8):
            if OPT["lround"]:
                I(f"v_cvt_pk_bf16_f32 v1, v{Sc(i)}, v{Sc(i)+1}")
                I(f"v_cvt_pk_bf16_f32 v2, v{Sc(i)+2}, v{Sc(i)+3}")
                I(f"v_lshlrev_b32 v{Sc(i)}, 16, v1")
                I(f"v_and_b32 v{Sc(i)+1}, 0xffff0000, v1")
                I(f"v_lshlrev_b32 v{Sc(i)+2}, 16, v2")
                I(f"v_and_b32 v{Sc(i)+3}, 0xffff0000, v2")
            I(f"v_max3_f32 v{m[i]}, v{Sc(i)}, v{Sc(i)+1}, v{Sc(i)+2}")
            I(f"v_max_f32 v{m[i]}, v{m[i]}, v{Sc(i)+3}")
        for k in range(4): I(f"v_permlane32_swap_b32 v{m[2*k]}, v{m[2*k+1]}")
        for k in range(4): I(f"v_max_f32 v{m[2*k]}, v{m[2*k]}, v{m[2*k+1]}")
        for k in range(2): I(f"v_permlane16_swap_b32 v{m[4*k]}, v{m[4*k+2]}")
        for k in range(2): I(f"v_max_f32 v{m[4*k]}, v{m[4*k]}, v{m[4*k+2]}")
        for k in range(2): I(f"v_mul_f32 v{m[4*k+2]}, s{S_CEXP}, v{m[4*k]}")
        for k in range(2): I(f"v_mul_f32 v{m[4*k]}, s{S_CEXP}, v{m[4*k]}")
        for k in range(2): I(f"v_permlane16_swap_b32 v{m[4*k]}, v{m[4*k+2]}")
        for k in range(4): I(f"v_mov_b32 v{m[2*k+1]}, v{m[2*k]}")
        for k in range(4): I(f"v_permlane32_swap_b32 v{m[2*k]}, v{m[2*k+1]}")
        Bu(1)
        for i in range(8):
            for r in range(4): I(f"v_fma_f32 v{Sc(i)+r}, v{Sc(i)+r}, s{S_CEXP}, -v{m[i]}")
            for r in range(4): I(f"v_exp_f32 v{Sc(i)+r}, v{Sc(i)+r}")
            if i == 4: poll_check(0x11); poll_load()
            if i >= 4: a2_load(i - 4)
        b2_unit(2, H_BD)
        for half, mk in enumerate(("s[56:57]", "s[58:59]")):
            I(f"s_mov_b64 exec, {mk}")
            for i, (t, p) in enumerate(un):
                I(f"v_cvt_pk_bf16_f32 v{Preg(t,p)+2*half}, v{Sc(i)}, v{Sc(i)+1}")
                I(f"v_cvt_pk_bf16_f32 v{Preg(t,p)+2*half+1}, v{Sc(i)+2}, v{Sc(i)+3}")
        I("s_mov_b64 exec, -1")
        for i, (t, p) in enumerate(un): I(f"{MF} {vr(Sc(i))}, {ar(A_ONES)}, {vr(Preg(t,p))}, 0")
        for i in range(8): I(f"v_rcp_f32 v{V_RINV+i}, v{Sc(i)}")
        e.wait(vm="b1")
        stamp("h_sm")
        I("s_barrier")
        kv_reads(V_AD + 3, "v")
        e.wait(lg="v3")
        I("s_barrier")
        for i, (t, p) in enumerate(un): I(f"{MF} {vr(Sc(i))}, {ar(A_KV+8*t+4*p)}, {vr(Preg(t,p))}, 0")
        for b in range(2):
            for t in (2 * b, 2 * b + 1):
                ob = (56 if b == 0 else 4) + (t & 1) * 4
                for p in range(2):
                    o = Sc(2 * t + p)
                    for r in range(4): I(f"v_mul_f32 v{o+r}, v{V_RINV+2*t+p}, v{o+r}")
                    od = ob + 2 * p if M else (56 if b == 0 else 4) + p * 4 + (t & 1) * 2
                    I(f"v_cvt_pk_bf16_f32 v{od}, v{o}, v{o+1}")
                    I(f"v_cvt_pk_bf16_f32 v{od+1}, v{o+2}, v{o+3}")
            a2_soff(16 + b, S_t1)
            for t1 in range(2 if M else 0):
                ob = (56 if b == 0 else 4) + t1 * 4
                I(f"v_permlane16_swap_b32 v{ob}, v{ob+2}")
                I(f"v_permlane16_swap_b32 v{ob+1}, v{ob+3}")
            for p in range(2):
                I(f"buffer_store_dwordx4 {a2r(16+b,p)}, v{V_L16}, {srd(S_WS)}, s{S_t1} offen offset:{p*1024} sc1", tag="so")
        stamp("h_so")
        def f_push():
            e.wait(vm="so")
            push_group(lambda: I(f"s_lshl_b32 s{S_t2}, 64, s{S_jj}"), (1, 2, 3))
        side[(0, OPT["fp"])] = f_push
        side[(0, 0)] = lambda: (poll_check(0x22), SS[0].add(0, 999, a2_items((4, 5, 6, 7), 1)))
        def f_o():
            I(f"s_xor_b32 s{S_THR}, s{S_jj}, 1"); I(f"s_lshl_b32 s{S_THR}, 64, s{S_THR}")
            poll_check(f"s{S_THR}"); SS[0].add(0, 999, a2_items((14, 15)))
    def f_c(): poll_check(0x44); SS[0].add(0, 999, a2_items((8, 9, 10, 11)))
    def f_h(): poll_check(0x88); SS[0].add(0, 999, a2_items((12, 13)))
    side.update({(0, OPT["kc"] - 15): poll_load, (0, OPT["kc"]): f_c, (0, OPT["kh"] - 15): poll_load, (0, OPT["kh"]): f_h, (0, OPT["ko"] - 11): poll_load, (0, OPT["ko"]): f_o})
    I("s_setprio 1")
    stamp("h_p2")
    own = [16, 17] if att else []
    LD = OPT["ld"]
    oo = [16, 17, 14, 15]
    TM = 14 - OPT["tm"]
    seq = [(lam, tau) for lam in range(TM) for tau in range(4 if lam < LD else 3)]
    seq += [(lam, tau) for tau in range(3) for lam in list(range(TM, 14)) + oo]
    seq += [(lam, 3) for lam in list(range(LD, 14)) + oo]
    steps = []; rng = {}; seen_g = set(); seen_l = set(); first_ = set()
    for (lam, tau) in seq:
        g = lam >> 1
        for kh in range(2):
            a = H_BR + tau if M else H_BR + 2 * tau + kh
            off = g * SLOT + (lam & 1) * 4096 + (kh * 2048 if M else 0)
            hi = off >> 16
            st = dict(rd=(a, off & 0xffff, 1024 if M else 2048))
            pres = []
            cg = CHKG.get(g)
            if cg is not None and cg not in seen_g:
                seen_g.add(cg); t = U("t")
                steps[-3]["post"] = lambda k, g=cg, t=t: d_read(f"Lb{g}", t)
                pres.append(lambda g=cg, t=t: d_check(f"Lb{g}", t))
            if rng.get(a, 0) != hi:
                dlt = (hi - rng.get(a, 0)) * 65536; rng[a] = hi
                pres.append(lambda a=a, dlt=dlt: I(f"v_add_u32 v{a}, {dlt & 0xffffffff}, v{a}"))
            if pres: st["pre"] = lambda pres=pres: [f() for f in pres]
            at = 4 if (tau == 3 and lam >= 14) else tau
            key = at if M else (at, kh)
            zero = key not in first_; first_.add(key)
            db = H_ACC + 16 * (at if at < 4 else 0)
            if M: st["mf"] = lambda W, st, lam=lam, kh=kh, d=vr(db, 16), zero=zero: [f"{M32} {d}, {W}, {a2r(lam,kh)}, {'0' if zero else d}"]
            else: st["mf"] = lambda W, st, lam=lam, db=db + 4 * kh, zero=zero: [f"{MF} {vr(db+8*p)}, {W}, {a2r(lam,p)}, {'0' if zero else vr(db+8*p)}" for p in range(2)]
            if lam not in seen_l:
                seen_l.add(lam)
                if lam not in own: st["need"] = lambda lam=lam: e.wait(vm=f"a{lam}")
            st["id"] = (lam, tau, kh)
            steps.append(st)
    S = Stream(steps, OPT["D2"], H_RING)
    SS.append(S)
    idx = {st["id"]: k for k, st in enumerate(steps)}
    n = len(steps)
    for (lam, d), f in side.items(): S.aft(idx[(lam, 0, 0)] + d, f)
    def scale(tau, greg): return [lambda k=k: I(f"v_mul_f32 v{H_ACC+16*tau+k}, v{greg + (0 if M else 2*(k>>3))}, v{H_ACC+16*tau+k}") for k in range(16)]
    def pack(tau):
        b = H_ACC + tau * 16
        return [lambda k=k: I(f"v_cvt_pk_bf16_f32 v{b+k}, v{b+2*k}, v{b+2*k+1}") for k in range(8)]
    def send(tau):
        def so():
            I(f"s_xor_b32 s{S_GIN}, s{S_q}, {3-tau}"); I(f"s_mul_i32 s{S_GIN}, s{S_GIN}, {3*8192}")
            I(f"s_add_u32 s{S_GIN}, s{S_GIN}, s{S_PB}"); I(f"s_add_u32 s{S_GIN}, s{S_GIN}, {tau*8192}")
        return [so] + pack(tau) + [cost(3, lambda j=j: I(f"buffer_store_dwordx4 {vr(H_ACC+tau*16+j*4)}, v{V_L16}, {srd(S_WS)}, s{S_GIN} offen offset:{j*1024} sc1", tag=f"p{tau}")) for j in range(2)]
    def pflag(tau):
        assert e.vmq[0][0].count(f"p{tau}") == 2
        stamp(f"h_pa{tau}")
        e.wait(vm=f"p{tau}")
        stamp(f"h_pb{tau}")
        I(f"s_xor_b32 s{S_t0}, s{S_MYIN}, {(3-tau)*2048}")
        I(f"s_mov_b32 s{S_KG+tau}, {1024<<tau}")
        I(f"s_atomic_or s{S_KG+tau}, s[{S_INB}:{S_INB+1}], s{S_t0}")
    if EG:
        def gget():
            I(f"s_lshl_b32 s{S_t0}, s{S_r}, 2"); I(f"s_add_u32 s{S_t0}, s{S_t0}, s{S_q}"); I(f"s_lshl_b32 s{S_t0}, s{S_t0}, 12")
            I(f"s_lshr_b32 s{S_t1}, s{S_m0b}, 2"); I(f"s_add_u32 s{S_t0}, s{S_t0}, s{S_t1}"); I(f"s_add_u32 s{S_t0}, s{S_t0}, {GA_OFF}")
            I(f"buffer_load_dwordx4 {vr(H_G)}, v{V_L16}, {srd(S_WS)}, s{S_t0} offen sc1", tag="gz")
        S.aft(24, gget)
        S.aft(idx[(13, 0, 1)], lambda: e.wait(vm="gz"))
    else:
        def gget():
            t = U("t"); d_read("G", t); d_check("G", t)
            I(f"s_lshl_b32 s{S_t0}, s{S_w}, 8"); I(f"s_add_u32 s{S_t0}, s{S_t0}, {GB_LDS}")
            I(f"v_and_b32 v1, {31 if M else 15}, v0")
            I(f"v_lshl_add_u32 v1, v1, 3, s{S_t0}")
            I(f"ds_read_b64 {vr(H_G,2)}, v1", tag="gz")
            if not M: I(f"ds_read_b64 {vr(H_G+2,2)}, v1 offset:128", tag="gz")
        S.aft(idx[(12, 0, 1)], gget)
        S.aft(idx[(13, 0, 1)], lambda: e.wait(lg="gz"))
    for tau in range(4):
        k = idx[(13, tau, 1)]
        S.aft(k, lambda k=k, tau=tau: S.add(k + 3, idx[(oo[0], tau, 0)] if tau < 3 else n, scale(tau, H_G + 1)))
    late_flags = []
    for tau in range(3):
        k = idx[(oo[-1], tau, 1)]
        S.aft(k, lambda k=k, tau=tau: S.add(k + 3, k + 8, send(tau)))
        kf = k + 7 + OPT["pfd"]
        if kf <= n - OPT["D2"] - 14: S.aft(kf, lambda tau=tau: pflag(tau))
        else: late_flags.append(tau)
    S.aft(n - OPT["D2"], lambda: (e.wait(lg=f"w{n-1}"), [pflag(t) for t in late_flags[:-1]], poll_load()))
    S.aft(idx[(8, 0, 0)], lambda: stamp("h_late"))
    S.aft(idx[(oo[0], 0, 0)], lambda: stamp("h_o"))
    S.aft(idx[(LD, 3, 0)], lambda: stamp("h_own"))
    S.run(OPT["side2"])
    I(f"s_mul_i32 s{S_GIN}, s{S_q}, {3*8192}")
    I(f"s_add_u32 s{S_GIN}, s{S_GIN}, s{S_PB}")
    if M:
        I("v_bfe_u32 v5, v0, 4, 1")
        I("v_lshlrev_b32 v6, 3, v5")
        I("v_xor_b32 v6, 8, v6")
        I("v_and_b32 v4, 15, v0")
        I("v_xor_b32 v4, v4, v6")
        I("v_lshl_add_u32 v4, v4, 1, v5")
        I("v_lshrrev_b32 v5, 5, v0")
        I("v_lshlrev_b32 v5, 4, v5")
        I("v_lshl_add_u32 v4, v4, 10, v5")
    else:
        I("v_and_b32 v4, 15, v0")
        I("v_bfe_u32 v6, v0, 4, 1")
        I("v_lshlrev_b32 v6, 5, v6")
        I("v_lshrrev_b32 v7, 5, v0")
        I("v_lshl_add_u32 v6, v7, 4, v6")
        I("v_lshl_add_u32 v5, v4, 11, v6")
        I("v_xor_b32 v4, 0x4000, v5")
    I(f"s_lshl_b32 s{S_COL}, s{S_r}, 17"); I(f"s_lshl_b32 s{S_t1}, s{S_w}, 15"); I(f"s_add_u32 s{S_COL}, s{S_COL}, s{S_t1}")
    I(f"s_lshl_b32 s{S_t1}, s{S_jj}, 8"); I(f"s_add_u32 s{S_COL}, s{S_COL}, s{S_t1}")
    I(f"s_lshl_b32 s{S_t1}, s{S_q}, 6"); I(f"s_add_u32 s{S_COL}, s{S_COL}, s{S_t1}")
    for t in late_flags[-1:]: pflag(t)
    O = H_ACC + 48
    for k in range(8): I(f"v_pk_add_f32 {vr(O+2*k,2)}, {vr(O+2*k,2)}, {vr(H_ACC+2*k,2)}")
    for tau in range(3):
        poll_check(1024 << tau)
        stamp(f"h_r{tau}")
        if tau == 2: stamp("h_rcv")
        for j in range(2):
            I(f"buffer_load_dwordx4 {vr(24+tau*8+j*4)}, v{V_L16}, {srd(S_WS)}, s{S_GIN} offen offset:{j*1024} sc1", tag=f"r{tau}")
        if tau < 2: I(f"s_add_u32 s{S_GIN}, s{S_GIN}, 8192")
    for tau in range(3):
        e.wait(vm=f"r{tau}")
        b = H_ACC + 16
        for k in range(8):
            I(f"v_lshlrev_b32 v{b+2*k}, 16, v{24+tau*8+k}")
            I(f"v_and_b32 v{b+2*k+1}, 0xffff0000, v{24+tau*8+k}")
        for k in range(8): I(f"v_pk_add_f32 {vr(O+2*k,2)}, {vr(O+2*k,2)}, {vr(b+2*k,2)}")
    for k in range(8): I(f"v_pk_mul_f32 {vr(O+2*k,2)}, {vr(O+2*k,2)}, {vr(H_G + (0 if M else 2*(k>>2)),2)} op_sel_hi:[1,0]")
    stamp("h_sum")
    for f in pack(3): f()
    for j in range(2):
        sw = "v_permlane32_swap_b32" if M else "v_permlane16_swap_b32"
        I(f"{sw} v{O+4*j}, v{O+4*j+2}")
        I(f"{sw} v{O+4*j+1}, v{O+4*j+3}")
        I(f"buffer_store_dwordx4 {vr(O+4*j)}, v{4 if M else 4+j}, {srd(S_OUT)}, s{S_COL} offen offset:{j*(32 if M else 1024)}" + ["", " nt", " sc0", " sc1"][OPT["of"]])
    finish()

h_prog(False)
e.label("L_h_att")
h_prog(True)

e.label("L_C")
role[0] = "C"
reset()
C_WR = 4; C_XR = 12; C_EXW = 18; C_HA = 20; C_HX = (24, 56, 60); C_HACC = 28; C_ACC = 64
I("s_setprio 2")
if OPT["codepf"] and not OPT["pfe"]:
    I("s_cmp_lt_u32 s2, 16")
    I("s_cbranch_scc0 L_nopf")
    e.cond_begin()
    I("s_getpc_b64 s[56:57]")
    e.label("L_pc")
    I(f"s_sub_u32 s56, s56, L_pc-{NAME}_kernel")
    I("s_subb_u32 s57, s57, 0")
    I(f"s_lshr_b32 s{S_t0}, s2, 3")
    I(f"s_lshl_b32 s{S_t0}, s{S_t0}, 15")
    I(f"v_lshlrev_b32 v2, 7, v0")
    I(f"v_lshl_add_u32 v2, v1, 13, v2")
    I(f"v_add_u32 v2, s{S_t0}, v2")
    I(f"v_min_u32 v2, L_end-{NAME}_kernel, v2")
    I(f"global_load_dword v23, v2, s[56:57]")
    e.cond_end()
    e.label("L_nopf")
late_scalars()
I("v_lshlrev_b32 v2, 2, v0")
I(f"v_add_u32 v2, {EV_LDS}, v2")
I("v_mov_b32 v1, 1")
I("ds_write_b32 v2, v1")
I("v_mov_b32 v1, 0")
I("ds_write_b32 v2, v1 offset:256")
I("v_lshrrev_b32 v32, 4, v0")
I("v_and_b32 v33, 15, v0")
I("v_bfe_u32 v34, v0, 2, 2")
I("v_and_b32 v35, 3, v0")
after_karg()
common_ptrs()
if not OPT["hinit"]:
    I(f"s_cmp_eq_u32 s{S_w}, 0")
    I("s_cbranch_scc0 L_c_noinit")
    e.cond_begin()
    for k in range(4):
        I(f"s_mov_b32 s{S_KG+k}, 0")
        I(f"s_add_u32 s{S_t0}, s{S_MYIN}, {k*128}")
        I(f"s_atomic_swap s{S_KG+k}, s[{S_INB}:{S_INB+1}], s{S_t0} glc")
    e.cond_end()
    e.label("L_c_noinit")
I(f"s_cmp_ge_u32 s{S_jj}, 2")
I("s_cbranch_scc1 L_c_att")

def c_prog(att):
    reset()
    UL = units(att)
    slot_of = {un: phys(att, k) for k, un in enumerate(UL)}
    subs = [un for un in UL if un[0] == "g"]
    if OPT["spf"] == 2 and OPT["tearly"] and OPT["th"] < 0: vtouch(att)
    n16 = att or not M
    if n16:
        for p in range(2):
            I(f"v_xor_b32 v38, {8 if p == 0 else 0}, v33")
            I("v_and_b32 v39, 8, v38")
            I("v_add_u32 v39, v39, v38")
            I("v_lshlrev_b32 v39, 7, v39")
            I("v_lshrrev_b32 v38, 1, v38")
            I("v_xor_b32 v38, v38, v32")
            I("v_lshl_add_u32 v39, v38, 4, v39")
            I(f"v_add_u32 v39, s{S_m0b}, v39")
            I(f"v_add_u32 v{C_XR+2*p+p}, {p*1024}, v39")
            I(f"v_xor_b32 v{C_XR+2*p+1-p}, 64, v{C_XR+2*p+p}")
        I("v_lshl_add_u32 v38, v32, 3, v34")
        I("v_lshlrev_b32 v38, 7, v38")
        I("v_lshl_add_u32 v38, v35, 3, v38")
        I("v_lshrrev_b32 v39, 1, v34")
        I("v_and_b32 v40, 1, v32")
        I("v_lshl_or_b32 v39, v40, 1, v39")
        I(f"v_xor_b32 v41, {'s'+str(S_w) if att else 0}, v39")
        for t in range(4):
            I(f"v_xor_b32 v40, {t}, v41")
            I(f"v_lshl_add_u32 v{C_WR+t}, v40, 5, v38")
            I(f"v_add_u32 v{C_WR+4+t}, 0x10000, v{C_WR+t}")
        if att:
            I("v_lshrrev_b32 v38, 1, v33")
            I("v_xor_b32 v38, v38, v32")
            I("v_lshlrev_b32 v38, 4, v38")
            I("v_lshl_add_u32 v38, v33, 7, v38")
            I(f"v_add_u32 v{C_HA}, {HALO_LDS}, v38")
            I(f"v_xor_b32 v{C_HA+1}, 64, v{C_HA}")
            I(f"s_mul_i32 s{S_t0}, s{S_w}, 5120")
            I(f"s_add_u32 s{S_t0}, s{S_t0}, {EXCH_LDS+4096}")
            I(f"v_add_u32 v{C_EXW}, s{S_t0}, v{V_L16}")
            I("v_add_u32 v19, 1, v35")
            I("v_bfe_u32 v19, v19, 1, 1")
            I("v_mul_u32_u24 v19, 24, v19")
    else:
        I("v_and_b32 v40, 1, v32")
        I("v_lshlrev_b32 v38, 3, v40")
        I("v_xor_b32 v38, 8, v38")
        I("v_xor_b32 v38, v38, v33")
        I("v_and_b32 v39, 8, v38")
        I("v_add_u32 v39, v39, v38")
        I("v_lshl_add_u32 v39, v40, 3, v39")
        I("v_lshlrev_b32 v39, 7, v39")
        I("v_lshrrev_b32 v38, 1, v38")
        I("v_lshlrev_b32 v41, 2, v40")
        I("v_xor_b32 v38, v38, v41")
        I("v_lshrrev_b32 v41, 1, v32")
        I("v_xor_b32 v38, v38, v41")
        I("v_lshl_add_u32 v39, v38, 4, v39")
        I(f"v_add_u32 v{C_XR}, s{S_m0b}, v39")
        for k in range(1, 4): I(f"v_xor_b32 v{C_XR+k}, {32*k}, v{C_XR}")
        I("v_lshl_add_u32 v38, v41, 3, v34")
        I("v_lshlrev_b32 v38, 7, v38")
        I("v_lshl_add_u32 v38, v35, 3, v38")
        I("v_lshl_add_u32 v38, v40, 5, v38")
        I("v_lshrrev_b32 v39, 1, v34")
        I(f"v_lshl_add_u32 v{C_WR}, v39, 6, v38")
        I(f"v_xor_b32 v{C_WR+1}, 64, v{C_WR}")
        for t in range(2): I(f"v_add_u32 v{C_WR+4+t}, 0x10000, v{C_WR+t}")
    if OPT["spf"] == 2 and not OPT["tearly"] and OPT["th"] < 0: vtouch(att)
    if OPT["spf"] == 1:
        P = 3072 if att else 3584; wp = 6 if att else 12
        I(f"s_lshl_b32 s{S_t0}, s{S_r}, 2"); I(f"s_add_u32 s{S_t0}, s{S_t0}, s{S_w}")
        I(f"s_mul_i32 s{S_t1}, s{S_t0}, {8*P}")
        I(f"s_mul_i32 s{S_t2}, s{S_q}, {256 if att else 896}"); I(f"s_add_u32 s{S_t1}, s{S_t1}, s{S_t2}")
        I(f"s_lshl_b32 s{S_t2}, s{S_j1}, 7"); I(f"s_add_u32 s{S_t2}, s{S_t2}, s{S_t1}")
        I(f"s_add_u32 s56, s{wp}, s{S_t2}"); I(f"s_addc_u32 s57, s{wp+1}, 0")
        for k in range(8): I(f"s_load_dword s{S_EV}, s[56:57], {k*P + (2048 if att else 512)}")
        if not att:
            I(f"s_mul_i32 s{S_t2}, s{S_j1}, {4*P}"); I(f"s_add_u32 s{S_t2}, s{S_t2}, s{S_t1}")
            I(f"s_add_u32 s56, s{wp}, s{S_t2}"); I(f"s_addc_u32 s57, s{wp+1}, 0")
            for k in range(4): I(f"s_load_dword s{S_EV}, s[56:57], {k*P + 768}")
        I(f"s_lshl_b32 s{S_t0}, s{S_t0}, 2"); I(f"s_add_u32 s{S_t0}, s{S_t0}, s{S_jj}")
        I(f"s_mul_i32 s{S_t1}, s{S_t0}, 1792"); I(f"s_mul_i32 s{S_t2}, s{S_q}, {448*1024}"); I(f"s_add_u32 s{S_t1}, s{S_t1}, s{S_t2}")
        I(f"s_add_u32 s56, s14, s{S_t1}"); I("s_addc_u32 s57, s15, 0")
        for k in range(14): I(f"s_load_dword s{S_EV}, s[56:57], {k*128}")
        I(f"s_lshl_b32 s{S_t1}, s{S_t0}, 9"); I(f"s_lshl_b32 s{S_t2}, s{S_q}, 17"); I(f"s_add_u32 s{S_t1}, s{S_t1}, s{S_t2}")
        I(f"s_add_u32 s56, s8, s{S_t1}"); I("s_addc_u32 s57, s9, 0")
        for k in range(4): I(f"s_load_dword s{S_EV}, s[56:57], {k*128}")
        I("s_waitcnt lgkmcnt(0)")
    if not OPT["hinit"]:
        l = U("ci")
        I(f"s_cmp_eq_u32 s{S_w}, 0"); I(f"s_cbranch_scc0 {l}")
        e.cond_begin()
        I(f"s_mov_b32 s{S_t1}, 1")
        I("s_waitcnt lgkmcnt(0)")
        I(f"s_atomic_add s{S_t1}, s[{S_DBG}:{S_DBG+1}], 0")
        e.cond_end(); e.label(l)
    if EG and not att:
        I("v_lshlrev_b32 v18, 4, v32"); I(f"v_add_u32 v18, {GW_LDS}, v18")
    stamp("c_go")
    def xfr(p, s): return ar((p * 16 + s) * 4)
    def xf32(s16): return ar(s16 * 4)
    def acc(c, T, p=0):
        base = C_ACC + 32 * (c & 1)
        if att: return base + (T * 2 + p) * 4
        if M: return base + T * 16
        return base + (((T >> 1) * 2 + p) * 2 + (T & 1)) * 4
    def xread(dst, areg, slot, tmp, k):
        base = slot * SLOT
        if base >= 65536:
            I(f"v_add_u32 v{tmp}, {base & ~0xffff}, v{areg}"); areg = tmp
        I(f"ds_read_b128 {dst}, v{areg} offset:{base & 0xffff}", tag=f"w{k}")
    steps = []; nh = [0]
    for i, un in enumerate(subs):
        _, c, u = un; slot = slot_of[un]
        for j in range(16):
            h = j >> 3
            if n16:
                ks = (j >> 1) & 3; T = 2 * h + (j & 1); s = 4 * u + ks; zero = (u == 0 and ks == 0); ta = T
                if c == 3: s = 4 * (u + 2 * h) + ks; ta = j & 1; zero = (u == 0 and h == 0 and ks == 0)
                halo = att and T == 0 and c != 1
                st = dict(rd=(C_WR + (4 if slot >= 4 else 0) + T, (slot & 3) * SLOT + ks * 4096, 512))
                def mf(W, st, s=s, T=ta, zero=zero, c=c, halo=halo):
                    out = []
                    for p in range(2):
                        a, b = (xfr(p, s), W) if (att and c == 2) else (W, xfr(p, s))
                        d = vr(acc(c, T, p))
                        out.append(f"{MF} {d}, {a}, {b}, {'0' if zero else d}")
                    if "gate" in st:
                        gs, gp = st["gate"]
                        out.append(f"{MF} {vr(24+4*gp)}, {vr(56+4*(gs&1))}, {xfr(gp,gs)}, {'0' if gs == 0 else vr(24+4*gp)}")
                    if halo:
                        a, b = (vr(st["hreg"]), W) if c == 2 else (W, vr(st["hreg"]))
                        out.append(f"{MF} {vr(C_HACC)}, {a}, {b}, {'0' if zero else vr(C_HACC)}")
                    return out
                if EG and not att and c == 1 and j % 4 >= 2: st["gate"] = (4 * u + (j >> 2), j & 1)
                def post(k, st=st, s=s, halo=halo, j=j, c=c, u=u, ks=ks):
                    if EG and not att and c == 1 and j % 4 == 2:
                        if j == 2:
                            I(f"s_add_u32 s{S_t0}, s{S_rot}, {u}"); I(f"s_and_b32 s{S_t0}, s{S_t0}, 3"); I(f"s_lshl_b32 s{S_t0}, s{S_t0}, 8")
                            I(f"v_add_u32 v19, s{S_t0}, v18")
                        I(f"ds_read_b128 {vr(56+4*((j>>2)&1))}, v19 offset:{(j>>2)*64}", tag=f"w{k}")
                    if c == 0 and j < 8 and j % 2 == 0:
                        for p in range(2): xread(xfr(p, s), C_XR + 2 * p + (ks & 1), slot_of[("x", u, ks >> 1)], 1 + p, k)
                    if att and c == 2 and u == 2 and j == 11 and OPT["u19"]: d_read("Lv3", "chk11")
                    if halo:
                        st["hreg"] = C_HX[nh[0] % 3]; nh[0] += 1
                        I(f"ds_read_b128 {vr(st['hreg'])}, v{C_HA+(s&1)} offset:{(s>>1)*2048}", tag=f"w{k}")
            else:
                kk = j & 7
                if c < 3: s16 = 8 * u + kk; ta = h; zero = (u == 0 and kk == 0)
                else: s16 = 8 * (u + 2 * h) + kk; ta = 0; zero = (u == 0 and j == 0)
                st = dict(rd=(C_WR + (4 if slot >= 4 else 0) + h, (slot & 3) * SLOT + kk * 2048, 512))
                d = vr(acc(c, ta), 16)
                def mf(W, st, s16=s16, d=d, zero=zero): return [f"{M32} {d}, {W}, {xf32(s16)}, {'0' if zero else d}"]
                def post(k, s16=s16, j=j, c=c, u=u, kk=kk):
                    if c == 0 and j < 8: xread(xf32(s16), C_XR + (kk & 3), slot_of[("x", u, kk >> 2)], 1 + (kk & 1), k)
            st["mf"] = mf; st["post"] = post
            if j == 0:
                def pre(i=i):
                    stamp(f"t{i}")
                    if att and i in (8, 9):
                        assert e.lgq[0][0].count(f"exw{i-8}") == (5 if i == 8 else 4)
                        e.wait(lg=f"exw{i-8}")
                    if not att and i - OPT["ackb"] in (0, 1):
                        assert e.vmq[0][0].count(f"st{i-OPT['ackb']}") == 4
                        e.wait(vm=f"st{i-OPT['ackb']}")
                        if EG and i - OPT["ackb"] == 1: e.wait(vm="stg")
                    if i < (10 if att else 14): I("s_barrier")
                    if att and i == 11 and OPT["u19"]: d_check("Lv3", "chk11")
                    stamp(f"s{i}")
                    if att and M and i == 8:
                        for t in range(8): I(f"v_xor_b32 v{C_WR+t}, v19, v{C_WR+t}")
                st["pre"] = pre
            steps.append(st)
    if att: S = Stream(steps, OPT["D"], [32, 36, 40, 44, 48, 52])
    else: S = Stream(steps, OPT["DF"], [32, 36, 40, 44, 48, 52] + ([] if EG else [56, 60]))
    DD = S.D
    def packn(a, n_): return [lambda k=k: I(f"v_cvt_pk_bf16_f32 v{a+k}, v{a+2*k}, v{a+2*k+1}") for k in range(n_)]
    def epi(c, h):
        F = []
        if att:
            for t in (2 * h, 2 * h + 1):
                a = acc(c, t, 0)
                F += packn(a, 4)
                def wr(t=t, a=a):
                    I(f"v_xor_b32 v1, {t*1024}, v{C_EXW}")
                    if c == 1: I(f"v_add_u32 v1, {(QSLOT*SLOT - EXCH_LDS - 4096) & 0xffffffff}, v1")
                    I(f"ds_write_b128 v1, {vr(a)}", tag=f"exw{c}")
                F.append(wr)
            if h == 0 and c != 1:
                def hw():
                    I(f"v_cvt_pk_bf16_f32 v{C_HACC}, v{C_HACC}, v{C_HACC+1}")
                    I(f"v_cvt_pk_bf16_f32 v{C_HACC+1}, v{C_HACC+2}, v{C_HACC+3}")
                    I(f"s_add_u32 s{S_t0}, s{S_m0b}, 4096")
                    I(f"v_subrev_u32 v1, s{S_t0}, v{C_EXW}")
                    I(f"ds_write2_b64 v1, {vr(C_HACC,2)}, {vr(C_HACC,2)} offset0:0 offset1:1", tag=f"exw{c}")
                F.append(hw)
        else:
            a = acc(c, h) if M else acc(c, 2 * h, 0)
            F += packn(a, 8)
            def so():
                I(f"s_lshr_b32 s{S_GIN}, s{S_J32}, {2 if c < 3 else 3}")
                I(f"s_add_u32 s{S_GIN}, s{S_GIN}, s{S_A2}"); I(f"s_add_u32 s{S_GIN}, s{S_GIN}, {(4*c+h)*8192}")
            F.append(so)
            for p in range(2):
                F += [lambda k=k: I(f"v_pk_max_i16 v{k}, v{k}, 0") for k in range(a + 4 * p, a + 4 * p + 4)]
                F.append(cost(9, lambda p=p: I(f"buffer_store_dwordx4 {vr(a+4*p)}, v{V_L16}, {srd(S_WS)}, s{S_GIN} offen offset:{p*1024} sc1", tag=f"st{c}")))
        return F
    n = len(steps)
    for c, i, reuse in ((0, 6, 8), (1, 7, 12), (2, 11, 99)):
        for h in range(2):
            k = 16 * i + 8 * h + 7
            if k == n - 1: continue
            dl = min(16 * reuse + (8 * h if reuse == 8 else 0), n)
            if att and c < 2: dl = 16 * (8 + c) - DD - 3
            S.aft(k, lambda k=k, c=c, h=h, dl=dl: S.add(max(k + (2 if n16 else 4), 16 * 7 - DD + 1 if att else 0), dl, epi(c, h)))
    if EG and not att:
        def gst():
            I(f"s_lshl_b32 s{S_t0}, s{S_r}, 2"); I(f"s_add_u32 s{S_t0}, s{S_t0}, s{S_q}"); I(f"s_lshl_b32 s{S_t0}, s{S_t0}, 12")
            I(f"s_lshr_b32 s{S_t1}, s{S_m0b}, 2"); I(f"s_add_u32 s{S_t0}, s{S_t0}, s{S_t1}"); I(f"s_add_u32 s{S_t0}, s{S_t0}, {GA_OFF}")
            I(f"s_lshl_b32 s{S_t1}, s{S_j1}, 28"); I(f"s_add_u32 s{S_t0}, s{S_t0}, s{S_t1}")
            I(f"buffer_store_dwordx4 {vr(56)}, v{V_L16}, {srd(S_WS)}, s{S_t0} offen sc1", tag="stg")
        S.aft(16 * 8, lambda: S.add(0, 16 * (OPT["ackb"] + 1) - 12, [lambda t=t: I(t) for t in gate_math(24, 28, 56, 20)] + [gst]))
    S.run(OPT["side"] if att else OPT["sidef"])
    stamp("c_end")
    if not att: I("s_barrier")
    for f in (epi(2, 1) if att else epi(3, 0)): f()
    if att:
        e.wait(lg="exw2")
        I("s_barrier")
    if OPT["cprio"] != 2: I(f"s_setprio {OPT['cprio']}")
    rest = [3, 4, 5, 6, 8, 7]
    def cunit():
        g = rest.pop(0); b2_unit(g, 4, g in SIGG)
    if not att:
        assert e.vmq[0][0].count("st2") == 4
        e.wait(vm="st2"); push_group(ownbit(2), (0, 1, 2, 3))
        stamp("c_f2")
        b2_voffs(4)
        if OPT["lowp"]: I("s_setprio 0")
        cunit(); cunit()
    if EG:
        if att:
            b2_voffs(4)
            I("s_barrier")
            if OPT["lowp"]: I("s_setprio 0")
            cunit(); cunit()
        else:
            e.wait(vm="st3"); push_group(ownbit(3), (0, 1, 2, 3))
    else:
        I("s_setprio 2")
        stamp("c_g0")
        I("v_lshrrev_b32 v9, 4, v0")
        if n16:
            I("v_lshlrev_b32 v8, 4, v9")
        else:
            I("v_lshrrev_b32 v8, 5, v0"); I("v_lshlrev_b32 v8, 4, v8")
            I("v_xor_b32 v9, v9, v0"); I("v_and_b32 v9, 1, v9")
            I("v_cmp_eq_u32 vcc, 0, v9")
        NG = 16 if n16 else 32; per = NG // 4
        RB = [32 + 4 * k for k in range(8)]
        def gread(s_):
            if s_ % per == 0:
                I(f"s_add_u32 s{S_t0}, s{S_rot}, {s_//per}"); I(f"s_and_b32 s{S_t0}, s{S_t0}, 3"); I(f"s_lshl_b32 s{S_t0}, s{S_t0}, 8")
                I(f"s_add_u32 s{S_t0}, s{S_t0}, {GW_LDS}")
                I(f"v_add_u32 v10, s{S_t0}, v8")
                if not n16:
                    I(f"v_mov_b32 v11, {ZERO_LDS}"); I("v_cndmask_b32 v10, v11, v10, vcc")
            I(f"ds_read_b128 {vr(RB[s_%8])}, v10 offset:{(s_%per)*(64 if n16 else 32)}", tag=f"g{s_}")
        for s_ in range(6): gread(s_)
        if att:
            b2_voffs(4)
            I("s_barrier")
            cunit()
        for s_ in range(NG):
            e.wait(lg=f"g{s_}")
            if n16:
                for p in range(2): I(f"{MF} {vr(64+4*p)}, {vr(RB[s_%8])}, {xfr(p,s_)}, {'0' if s_ == 0 else vr(64+4*p)}")
            else:
                I(f"{MF} {vr(64)}, {vr(RB[s_%8])}, {xf32(s_)}, {'0' if s_ == 0 else vr(64)}")
            if s_ + 6 < NG: gread(s_ + 6)
            if s_ == NG // 2 and rest: cunit()
        if not att:
            e.wait(vm="st3"); push_group(ownbit(3), (0, 1, 2, 3))
            stamp("c_f3")
        cunit()
        z1 = 68 if n16 else 65; G = 72
        T = gate_math(64, z1, G, 1)
        for t in T: I(t)
        I(f"s_lshl_b32 s{S_t0}, s{S_w}, 8"); I(f"s_add_u32 s{S_t0}, s{S_t0}, {GB_LDS}")
        I(f"v_lshl_add_u32 v1, v0, 3, s{S_t0}")
        I("s_mov_b64 exec, 0xffff")
        I(f"ds_write_b64 v1, {vr(G,2)}", tag="gz")
        I(f"ds_write_b64 v1, {vr(G+2,2)} offset:128", tag="gz")
        I("s_mov_b64 exec, -1")
        e.wait(lg="gz")
        if OPT["lowp"]: I("s_setprio 0")
        dsig("G")
    stamp("c_g1")
    while rest:
        throttle(); cunit()
    if OPT["dummy"]:
        I(f"s_lshl_b32 s{S_t0}, s2, 2"); I(f"s_add_u32 s{S_t0}, s{S_t0}, s{S_w}"); I(f"s_mul_i32 s{S_t0}, s{S_t0}, 9216"); I(f"s_add_u32 s{S_t0}, s{S_t0}, {20<<20}")
        for k in range(9):
            I(f"buffer_store_dwordx4 {vr(64)}, v{V_L16}, {srd(S_WS)}, s{S_t0 if OPT['dummy'] == 1 else S_WS+2} offen")
            I(f"s_add_u32 s{S_t0}, s{S_t0}, 1024")
    I("s_waitcnt vmcnt(0) lgkmcnt(0)")
    finish()

c_prog(False)
e.label("L_c_att")
c_prog(True)

e.label("L_end")
I("s_endpgm")
e.raw('.section .rodata,"a"')
e.raw(".p2align 6")
e.raw(f".amdhsa_kernel {NAME}_kernel")
e.raw("  .amdhsa_next_free_vgpr 256")
e.raw("  .amdhsa_next_free_sgpr 102")
e.raw("  .amdhsa_accum_offset 128")
e.raw("  .amdhsa_group_segment_fixed_size 0")
e.raw("  .amdhsa_kernarg_size 80")
e.raw("  .amdhsa_user_sgpr_count 2")
e.raw("  .amdhsa_user_sgpr_kernarg_segment_ptr 1")
e.raw("  .amdhsa_system_sgpr_workgroup_id_x 1")
e.raw(".end_amdhsa_kernel")
sys.stdout.write(e.text())
sys.stderr.write(f"instructions {e.nins} nop-states {e.nops}\n")
```

```python
import sys, struct
from emit import Em

NAME = "gated_mix__sliding_local_dilated__dense_activation_relu__prompt"
OPT = dict(padt=6000, padk=-1, padr=0, stamp=0, D=4, DF=4, D2=5, codepf=1, spin=400000, lround=0, side=2, sidef=2, side2=3,
           ld=2, thr=5, pre=5, pfd=18, ackb=10, cprio=2, dummy=0, sch=1, tm=0, qb=0, rotq=2, spf=2, tearly=0, tB=0, tfull=0, th=6, gap=1, kc=30, kh=52, ko=64, lowp=1, tatt=0, m32=0, fp=8, u19=0, tha=6, of=0, eg=1, pfe=2, hinit=0, pb=9, n9=1, kq=135, vb2=1, pkm=1, stg=0, a47=2, crx=0, lead=8, pba=50, pbb=66)
CST = ["s0", "s2", "s4", "s6", "s8", "s10", "s12", "c_end"]
HST = ["h_b0", "h_b7", "h_p2", "h_late", "h_o", "h_own", "h_rcv", "h_sum"]
for a in sys.argv[1:]:
    k, v = a.split("=")
    if k == "cst": CST = v.split(",")
    elif k == "hst": HST = v.split(",")
    else:
        assert k in OPT, k
        OPT[k] = int(v)
STAMP = OPT["stamp"]; M = OPT["m32"]; EG = OPT["eg"]
assert EG and not M
assert not OPT["u19"] and OPT["th"] >= 0
STG = OPT["stg"]
if STG: OPT["ld"] = 8; assert OPT["vb2"]
GA_OFF = (9 << 20) + (512 << 10)
def f2u(x): return struct.unpack("<I", struct.pack("<f", x))[0]

PART_OFF = 10 << 20
INB_OFF = 32 << 20
STAMP_OFF = 33 << 20
WS_BYTES = 36 << 20
SLOT = 16384
HALO_LDS = 7 * SLOT
EXCH_LDS = 8 * SLOT
EV_LDS = EXCH_LDS + 20480
ZERO_LDS = EV_LDS + 256
GW_LDS = EV_LDS + 1024
GB_LDS = EV_LDS + 2048
NEG = f2u(-1e30)

e = Em()
I = e.I
def vr(b, n=4): return f"v[{b}:{b+n-1}]"
def ar(b, n=4): return f"a[{b}:{b+n-1}]"
def srd(b): return f"s[{b}:{b+3}]"
MF = "v_mfma_f32_16x16x32_bf16"
M32 = "v_mfma_f32_32x32x16_bf16"

S_X, S_W, S_WS, S_OUT, S_W2, S_WO, S_GW = 24, 28, 32, 36, 40, 44, 48
S_INB = 52; S_DBG = 54
S_w, S_r, S_jj, S_rot, S_q, S_m0b, S_j1 = 60, 61, 62, 63, 64, 65, 66
S_t0, S_t1, S_t2 = 3, 67, 68
S_BUD = 69; S_EV = 70; S_SOFF = 71
S_POLL = 74; S_MYIN = 75; S_CEXP = 76; S_THR = 77; S_W4 = 79
S_KG = 80; S_WK = 84
S_COL = 88; S_A2 = 89; S_B2 = 90; S_BO = 91; S_PB = 92; S_J32 = 93; S_GIN = 94; S_P = 95
S_STAMP = 4
EVD = {}
def evd(name):
    if name not in EVD: EVD[name] = len(EVD)
    assert EVD[name] < 16
    return EVD[name] * 16
role = ["H"]
def stamp(name):
    L = CST if role[0] == "C" else HST
    if name == "end": idx = 8
    elif name in L: idx = L.index(name)
    else: return
    if STAMP == 2 and idx < 4:
        I(f"s_memtime s[{S_STAMP+2*idx}:{S_STAMP+2*idx+1}]"); I(f"s_memrealtime s[{S_STAMP+2*idx+8}:{S_STAMP+2*idx+9}]")
    elif STAMP == 3: I(f"s_memrealtime s[{S_STAMP+2*idx}:{S_STAMP+2*idx+1}]")
    elif STAMP: I(f"s_memtime s[{S_STAMP+2*idx}:{S_STAMP+2*idx+1}]")
uid = [0]
def U(p):
    uid[0] += 1
    return f"L_{p}{uid[0]}"
def reset():
    e.vmq = [[[], 0]]; e.lgq = [[[], 0]]; e.hist = []
V_L16 = 16; V_EVW = 17; V_CHK = 3
SLOW = []
def flush_slow():
    for l in SLOW: e.raw(l)
    SLOW.clear()
def spin_tail(lp, ok):
    return [f"    s_sub_u32 s{S_BUD}, s{S_BUD}, 1", f"    s_cbranch_scc0 {lp}", f"    s_mov_b32 s{S_BUD}, 0", f"    s_branch {ok}"]
def dsig(name):
    I(f"s_add_u32 m0, s{S_W4}, {EV_LDS + evd(name)}")
    I("s_mov_b64 exec, 1")
    I(f"buffer_load_dword v{V_L16}, {srd(S_WO)}, s{S_WO+2} offen lds", tag="dsig")
    I("s_mov_b64 exec, -1")
def d_read(name, tag): I(f"ds_read_b32 v{V_CHK}, v{V_EVW} offset:{evd(name)}", tag=tag)
def d_check(name, tag):
    ok = U("ok"); lp = U("sp")
    e.wait(lg=tag)
    I(f"v_cmp_ne_u32 vcc, 0, v{V_CHK}")
    I(f"s_cbranch_vccnz {lp}")
    e.label(ok)
    SLOW.extend([f"{lp}:", f"    ds_read_b32 v{V_CHK}, v{V_EVW} offset:{evd(name)}", "    s_waitcnt lgkmcnt(0)", f"    v_cmp_ne_u32 vcc, 0, v{V_CHK}",
                 f"    s_cbranch_vccz {ok}", "    s_sleep 1"] + spin_tail(lp, ok))
def throttle():
    n = OPT["thr"]
    I(f"s_waitcnt vmcnt({n})")
    for q in e.vmq: q[1] = max(q[1], len(q[0]) - n)
def poll_load():
    I(f"s_load_dword s{S_POLL}, s[{S_INB}:{S_INB+1}], s{S_MYIN} glc")
def poll_check(mask):
    ok = U("pk"); lp = U("pl")
    I(f"s_andn2_b32 s{S_EV}, {mask}, s{S_POLL}")
    I(f"s_cbranch_scc1 {lp}")
    e.label(ok)
    SLOW.extend([f"{lp}:", "    s_waitcnt lgkmcnt(0)", f"    s_andn2_b32 s{S_EV}, {mask}, s{S_POLL}", f"    s_cbranch_scc0 {ok}",
                 f"    s_load_dword s{S_POLL}, s[{S_INB}:{S_INB+1}], s{S_MYIN} glc"] + spin_tail(lp, ok))
def push_group(bit_fn, ds):
    bit_fn()
    for d in ds:
        I(f"s_xor_b32 s{S_t0}, s{S_MYIN}, {d*512}")
        I(f"s_atomic_or s{S_t2}, s[{S_INB}:{S_INB+1}], s{S_t0}")
def ownbit(b):
    def f():
        I(f"s_lshl_b32 s{S_t2}, s{S_jj}, 2"); I(f"s_lshl_b32 s{S_t2}, {1<<b}, s{S_t2}")
    return f
def mk_srd(b, p, nbytes):
    I(f"s_mov_b32 s{b}, s{p}")
    I(f"s_and_b32 s{b+1}, s{p+1}, 0xffff")
    I(f"s_mov_b32 s{b+2}, {nbytes}")
    I(f"s_mov_b32 s{b+3}, 0x20000")
def b2_voffs(dst):
    I("v_lshrrev_b32 v1, 3, v0")
    if M:
        I("v_bfe_u32 v2, v0, 4, 1")
        I("v_lshlrev_b32 v2, 2, v2")
    else:
        I("v_lshrrev_b32 v2, 4, v0")
        I("v_lshlrev_b32 v2, 1, v2")
    I(f"v_and_b32 v{dst}, 7, v0")
    I(f"v_xor_b32 v{dst}, v{dst}, v2")
    I(f"v_lshlrev_b32 v{dst}, 4, v{dst}")
    I(f"v_lshl_add_u32 v{dst}, v1, 10, v{dst}")
    for i in range(1, 4): I(f"v_add_u32 v{dst+i}, {i*7168}, v{dst}")
def late_scalars():
    I(f"s_lshl_b32 s{S_W4}, s{S_w}, 2")
    I(f"s_mov_b32 s{S_BUD}, {OPT['spin']}")
    I(f"s_and_b32 s{S_j1}, s{S_jj}, 1")
    I(f"s_lshl_b32 s{S_t0}, s{S_jj}, 8")
    I(f"s_lshr_b32 s{S_t1}, s{S_w}, 1")
    I(f"s_lshl_b32 s{S_t1}, s{S_t1}, 7")
    I(f"s_add_u32 s{S_t0}, s{S_t0}, s{S_t1}")
    I(f"s_and_b32 s{S_t1}, s{S_w}, 1")
    I(f"s_lshl_b32 s{S_t1}, s{S_t1}, 15")
    I(f"s_add_u32 s{S_t0}, s{S_t0}, s{S_t1}")
    I(f"s_mul_i32 s{S_B2}, s{S_q}, {14*32768}")
    I(f"s_add_u32 s{S_B2}, s{S_B2}, s{S_t0}")
    I(f"s_lshl_b32 s{S_BO}, s{S_q}, 17")
    I(f"s_add_u32 s{S_BO}, s{S_BO}, s{S_t0}")
    I(f"s_lshl_b32 s{S_J32}, s{S_j1}, 16")
    I(f"s_lshl_b32 s{S_t0}, s{S_r}, 2")
    I(f"s_add_u32 s{S_t0}, s{S_t0}, s{S_q}")
    I(f"s_mul_i32 s{S_A2}, s{S_t0}, {18*8192}")
    I(f"s_lshl_b32 s{S_t1}, s{S_w}, 11")
    I(f"s_add_u32 s{S_A2}, s{S_A2}, s{S_t1}")
    I(f"s_lshl_b32 s{S_MYIN}, s{S_t0}, 2")
    I(f"s_add_u32 s{S_MYIN}, s{S_MYIN}, s{S_jj}")
    I(f"s_lshl_b32 s{S_MYIN}, s{S_MYIN}, 2")
    I(f"s_add_u32 s{S_MYIN}, s{S_MYIN}, s{S_w}")
    I(f"s_lshl_b32 s{S_MYIN}, s{S_MYIN}, 7")
    I(f"v_lshlrev_b32 v{V_L16}, 4, v0")
    I(f"v_and_b32 v{V_EVW}, 3, v0")
    I(f"v_lshlrev_b32 v{V_EVW}, 2, v{V_EVW}")
    I(f"v_add_u32 v{V_EVW}, {EV_LDS}, v{V_EVW}")
def common_ptrs():
    I(f"s_add_u32 s{S_INB}, s22, {INB_OFF}")
    I(f"s_addc_u32 s{S_INB+1}, s23, 0")
    I(f"s_lshl_b32 s{S_t0}, s{S_r}, 4")
    I(f"s_add_u32 s{S_DBG}, s20, s{S_t0}")
    I(f"s_addc_u32 s{S_DBG+1}, s21, 0")
    mk_srd(S_WS, 22, WS_BYTES)
    mk_srd(S_W2, 14, 1792 * 1024)
    mk_srd(S_WO, 8, 512 * 1024)
def dma4(voff, srdb, tag):
    for i in range(4):
        I(f"buffer_load_dwordx4 v{voff+i}, {srd(srdb)}, s{S_SOFF} offen offset:{i*1024} lds", tag=tag)
def b2_unit(g, voff, sig=True):
    I(f"s_add_u32 m0, s{S_m0b}, {g*SLOT}")
    if g < 7: I(f"s_add_u32 s{S_SOFF}, s{S_B2}, {g*65536}")
    else:
        I(f"s_xor_b32 s{S_SOFF}, s{S_J32}, {((g-7)^1)*65536}")
        I(f"s_add_u32 s{S_SOFF}, s{S_SOFF}, s{S_BO}")
    dma4(voff, S_W2 if g < 7 else S_WO, f"b{g}")
    if sig: dsig(f"Lb{g}")
def a2_soff(lam, dst):
    if lam < 14: I(f"s_add_u32 s{dst}, s{S_A2}, {lam*8192}")
    else:
        I(f"s_lshr_b32 s{dst}, s{S_J32}, 2"); I(f"s_xor_b32 s{dst}, s{dst}, {((lam-14)^2)*8192}")
        I(f"s_add_u32 s{dst}, s{dst}, s{S_A2}"); I(f"s_add_u32 s{dst}, s{dst}, {14*8192}")
def after_karg():
    I("s_waitcnt lgkmcnt(0)")
    if STAMP:
        I("s_memtime s[100:101]")
        I("s_mov_b32 s72, s96")
        I("s_mov_b32 s73, s98")
def finish():
    if STAMP:
        I("s_waitcnt vmcnt(0)")
        stamp("end")
        I("s_memrealtime s[22:23]")
        I("s_waitcnt lgkmcnt(0)")
        I(f"s_lshl_b32 s{S_t0}, s2, 3")
        I(f"s_add_u32 s{S_t0}, s{S_t0}, s{S_w}")
        if role[0] == "H": I(f"s_add_u32 s{S_t0}, s{S_t0}, 4")
        I(f"s_lshl_b32 s{S_t0}, s{S_t0}, 6")
        I(f"s_add_u32 s{S_t0}, s{S_t0}, {STAMP_OFF}")
        I(f"v_mov_b32 v2, s{S_t0}")
        for k in range(9): I(f"v_mov_b32 v{32+k}, s{S_STAMP+2*k}")
        I("v_mov_b32 v41, s73"); I("v_mov_b32 v42, s22"); I("v_mov_b32 v43, s72"); I("v_mov_b32 v44, s100")
        I(f"v_mov_b32 v45, s{S_BUD}"); I("v_mov_b32 v46, 0")
        I("s_mov_b64 exec, 1")
        for k in range(4): I(f"buffer_store_dwordx4 {vr(32+4*k)}, v2, {srd(S_WS)}, 0 offen offset:{16*k}")
    if STAMP >= 3:
        if OPT["padk"] >= 0 and (OPT["padr"] == 1) == (role[0] == "H"):
            I(f"s_sub_u32 s24, s{S_STAMP+2*OPT['padk']}, s{73 if STAMP == 3 else 72}")
            if STAMP == 4: I("s_lshr_b32 s24, s24, 4")
        else: I("s_mov_b32 s24, 0")
        I(f"s_add_u32 s24, s24, {OPT['padt']}")
        l = U("pad")
        e.label(l)
        I("s_memrealtime s[26:27]"); I("s_waitcnt lgkmcnt(0)"); I("s_sub_u32 s25, s26, s73"); I("s_cmp_lt_u32 s25, s24"); I(f"s_cbranch_scc1 {l}")
    I("s_endpgm")
    flush_slow()
def units(att):
    L = []
    for u in range(4): L += [("x", u, 0), ("x", u, 1), ("g", 0, u), ("g", 1, u)]
    L += [("g", 2, u) for u in range(4)]
    if not att: L += [("g", 3, 0), ("g", 3, 1)]
    return L
def phys(att, k):
    if not att: return (k - 14) % 9
    if OPT["n9"]: return {2: 0, 3: 8, 4: 9, 5: 1, 6: 2, 7: 3, 8: 4, 0: 5, 1: 6}[k % 9]
    i = (k - 13) % 8
    return 8 if i == 7 else i
QSLOT = 0
SIGG = (2, 3, 4, 6, 7)
CHKG = {2: 2, 3: 3, 4: 4, 5: 6, 6: 6, 8: 7, 7: 7}

class Stream:
    def __init__(self, steps, depth, ring):
        self.steps = steps; self.side = []; self.after = {}; self.D = depth; self.ring = ring
        assert len(ring) >= depth + 2
    def add(self, ready, deadline, fns):
        for f in fns: self.side.append([ready, deadline, f])
    def aft(self, k, f):
        prev = self.after.get(k)
        self.after[k] = (lambda: (prev(), f())) if prev else f
    def issue(self, k, half):
        st = self.steps[k]
        b = self.ring[k % len(self.ring)]
        a, off, d2 = st["rd"]
        if half == 0:
            if "pre" in st: st["pre"]()
            I(f"ds_read_b64_tr_b16 {vr(b,2)}, v{a} offset:{off}", tag=f"w{k}")
        else:
            I(f"ds_read_b64_tr_b16 {vr(b+2,2)}, v{a} offset:{off+d2}", tag=f"w{k}")
            if "post" in st: st["post"](k)
    def pump(self, k, n):
        c = 0
        while self.side and c < n and self.side[0][0] <= k:
            r = self.side.pop(0)[2]()
            c += r if isinstance(r, int) else 1
    def run(self, rate):
        n = len(self.steps); D = self.D
        for k in range(min(D, n)):
            self.issue(k, 0); self.issue(k, 1)
        for k in range(n):
            st = self.steps[k]
            while any(s[1] <= k for s in self.side): self.side.pop(0)[2]()
            if "need" in st: st["need"]()
            if k % 2 == 0 and k + 1 < n: e.wait(lg=f"w{k+1}")
            e.wait(lg=f"w{k}")
            mfs = st["mf"](vr(self.ring[k % len(self.ring)]), st)
            I(mfs[0])
            if k + D < n: self.issue(k + D, 0)
            if len(mfs) > 1:
                self.pump(k, (rate + 1) // 2)
                I(mfs[1])
            if k + D < n: self.issue(k + D, 1)
            for m in mfs[2:]: I(m)
            self.pump(k, rate // 2 if len(mfs) > 1 else rate)
            if k in self.after: self.after[k]()
            stamp(f"k{k}")
        while self.side: self.side.pop(0)[2]()
def cost(n, f):
    def g():
        f(); return n
    return g

def vtouch(att, dst=22):
    P = 3072 if att else 3584; wp = 6 if att else 12
    if dst == 22: mk_srd(S_W, wp, 512 * P)
    I(f"s_lshl_b32 s{S_t0}, s{S_r}, 2"); I(f"s_add_u32 s{S_t0}, s{S_t0}, s{S_w}")
    I(f"s_mul_i32 s{S_t1}, s{S_t0}, {8*P}")
    I(f"s_mul_i32 s{S_t2}, s{S_q}, {256 if att else 896}"); I(f"s_add_u32 s{S_t1}, s{S_t1}, s{S_t2}")
    I("v_and_b32 v1, 7, v0"); I(f"v_mul_u32_u24 v1, {P}, v1")
    I(f"s_lshl_b32 s{S_t2}, s{S_j1}, 7"); I(f"s_add_u32 s{S_t2}, s{S_t2}, s{S_t1}")
    I("v_lshlrev_b32 v2, 7, v0")
    I("s_mov_b64 exec, 0xff")
    I(f"buffer_load_dword v{dst}, v1, {srd(S_W)}, s{S_t2} offen offset:{2048 if att else 512}")
    if OPT["tB"]: I(f"buffer_load_dword v{dst}, v1, {srd(S_W)}, s{S_t2} offen offset:{0 if att else 256}")
    if not att:
        I(f"s_mul_i32 s{S_t2}, s{S_j1}, {4*P}"); I(f"s_add_u32 s{S_t2}, s{S_t2}, s{S_t1}")
        I("s_mov_b64 exec, 0xf")
        I(f"buffer_load_dword v{dst}, v1, {srd(S_W)}, s{S_t2} offen offset:768")
    I(f"s_lshl_b32 s{S_t0}, s{S_t0}, 2"); I(f"s_add_u32 s{S_t0}, s{S_t0}, s{S_jj}")
    F_ = 2 if OPT["tfull"] else 1
    if OPT["tfull"]: I(f"s_and_b32 s{S_t0}, s{S_t0}, 127"); I(f"s_lshl_b32 s{S_t0}, s{S_t0}, 1")
    I(f"s_mul_i32 s{S_t1}, s{S_t0}, 1792"); I(f"s_mul_i32 s{S_t2}, s{S_q}, {448*1024}"); I(f"s_add_u32 s{S_t1}, s{S_t1}, s{S_t2}")
    I(f"s_mov_b64 exec, {(1 << (14*F_)) - 1}")
    I(f"buffer_load_dword v{dst}, v2, {srd(S_W2)}, s{S_t1} offen")
    I(f"s_lshl_b32 s{S_t1}, s{S_t0}, 9"); I(f"s_lshl_b32 s{S_t2}, s{S_q}, 17"); I(f"s_add_u32 s{S_t1}, s{S_t1}, s{S_t2}")
    I(f"s_mov_b64 exec, {(1 << (4*F_)) - 1}")
    I(f"buffer_load_dword v{dst}, v2, {srd(S_WO)}, s{S_t1} offen")
    I("s_mov_b64 exec, -1")
def gate_math(z0, z1, G, tmp):
    T = [f"v_cvt_pk_bf16_f32 v{tmp}, v{z0}, v{z1}", f"v_lshlrev_b32 v{G}, 16, v{tmp}", f"v_and_b32 v{G+2}, 0xffff0000, v{tmp}"]
    T += [f"v_mul_f32 v{G+2*p}, {f2u(-1.4426950408889634)}, v{G+2*p}" for p in range(2)]
    T += [f"v_exp_f32 v{G+2*p}, v{G+2*p}" for p in range(2)]
    T += [f"v_add_f32 v{G+2*p}, 1.0, v{G+2*p}" for p in range(2)]
    T += [f"v_rcp_f32 v{G+2*p}, v{G+2*p}" for p in range(2)]
    T += [f"v_cvt_pk_bf16_f32 v{tmp}, v{G}, v{G+2}", f"v_lshlrev_b32 v{G}, 16, v{tmp}", f"v_and_b32 v{G+2}, 0xffff0000, v{tmp}"]
    T += [f"v_sub_f32 v{G+1+2*p}, 1.0, v{G+2*p}" for p in range(2)]
    T += [f"v_cvt_pk_bf16_f32 v{tmp}, v{G+1}, v{G+3}", f"v_lshlrev_b32 v{G+1}, 16, v{tmp}", f"v_and_b32 v{G+3}, 0xffff0000, v{tmp}"]
    T += [f"v_max_f32 v{G+2*p}, {f2u(2.0**-60)}, v{G+2*p}" for p in range(2)]
    T += [f"v_rcp_f32 v{G+4+p}, v{G+2*p}" for p in range(2)]
    T += [f"v_mul_f32 v{G+1+2*p}, v{G+4+p}, v{G+1+2*p}" for p in range(2)]
    return T
def out_addr():
    I(f"s_mul_i32 s{S_GIN}, s{S_q}, {3*8192}")
    I(f"s_add_u32 s{S_GIN}, s{S_GIN}, s{S_PB}")
    if M:
        I("v_bfe_u32 v5, v0, 4, 1")
        I("v_lshlrev_b32 v6, 3, v5")
        I("v_xor_b32 v6, 8, v6")
        I("v_and_b32 v4, 15, v0")
        I("v_xor_b32 v4, v4, v6")
        I("v_lshl_add_u32 v4, v4, 1, v5")
        I("v_lshrrev_b32 v5, 5, v0")
        I("v_lshlrev_b32 v5, 4, v5")
        I("v_lshl_add_u32 v4, v4, 10, v5")
    else:
        I("v_and_b32 v4, 15, v0")
        I("v_bfe_u32 v6, v0, 4, 1")
        I("v_lshlrev_b32 v6, 5, v6")
        I("v_lshrrev_b32 v7, 5, v0")
        I("v_lshl_add_u32 v6, v7, 4, v6")
        I("v_lshl_add_u32 v5, v4, 11, v6")
        I("v_xor_b32 v4, 0x4000, v5")
    I(f"s_lshl_b32 s{S_COL}, s{S_r}, 17"); I(f"s_lshl_b32 s{S_t1}, s{S_w}, 15"); I(f"s_add_u32 s{S_COL}, s{S_COL}, s{S_t1}")
    I(f"s_lshl_b32 s{S_t1}, s{S_jj}, 8"); I(f"s_add_u32 s{S_COL}, s{S_COL}, s{S_t1}")
    I(f"s_lshl_b32 s{S_t1}, s{S_q}, 6"); I(f"s_add_u32 s{S_COL}, s{S_COL}, s{S_t1}")
def pb_setup():
    I(f"s_lshl_b32 s{S_PB}, s{S_r}, 2"); I(f"s_add_u32 s{S_PB}, s{S_PB}, s{S_jj}")
    I(f"s_mul_i32 s{S_PB}, s{S_PB}, {12*8192}")
    I(f"s_lshl_b32 s{S_t0}, s{S_w}, 11"); I(f"s_add_u32 s{S_PB}, s{S_PB}, s{S_t0}"); I(f"s_add_u32 s{S_PB}, s{S_PB}, {PART_OFF}")
def vtouch2():
    I(f"s_lshl_b32 s{S_t0}, s{S_r}, 2"); I(f"s_add_u32 s{S_t0}, s{S_t0}, s{S_w}")
    I(f"s_lshl_b32 s{S_t0}, s{S_t0}, 1"); I(f"s_add_u32 s{S_t0}, s{S_t0}, s{S_j1}")
    I("v_lshlrev_b32 v2, 7, v0")
    I(f"s_mul_i32 s{S_t1}, s{S_t0}, 3584"); I(f"s_mul_i32 s{S_t2}, s{S_q}, {448*1024}"); I(f"s_add_u32 s{S_t1}, s{S_t1}, s{S_t2}")
    I(f"s_mov_b64 exec, {(1 << 28) - 1}")
    I(f"buffer_load_dword v{30 if M else 18}, v2, {srd(S_W2)}, s{S_t1} offen")
    I(f"s_lshl_b32 s{S_t1}, s{S_t0}, 10"); I(f"s_lshl_b32 s{S_t2}, s{S_q}, 17"); I(f"s_add_u32 s{S_t1}, s{S_t1}, s{S_t2}")
    I("s_mov_b64 exec, 0xff")
    I(f"buffer_load_dword v{30 if M else 18}, v2, {srd(S_WO)}, s{S_t1} offen")
    I("s_mov_b64 exec, -1")
e.raw(f"; @launch grid=(256,1,1) block=(512,1,1) lds=163840")
e.raw('.amdgcn_target "amdgcn-amd-amdhsa--gfx950"')
e.raw(".text")
e.raw(f".globl {NAME}_kernel")
e.raw(".p2align 8")
e.raw(f".type {NAME}_kernel,@function")
e.label(f"{NAME}_kernel")
I("s_load_dwordx16 s[4:19], s[0:1], 0")
I("s_load_dwordx4 s[20:23], s[0:1], 64")
if STAMP:
    I("s_memrealtime s[98:99]")
    I("s_memtime s[96:97]")
if OPT["codepf"] and OPT["pfe"] == 2:
    I("s_getpc_b64 s[56:57]")
    e.label("L_pc")
    I("v_lshrrev_b32 v1, 5, v0")
    I("v_and_b32 v2, 1, v0")
    I("v_add_u32 v2, v2, v1")
    I(f"s_bfe_u32 s{S_t0}, s2, 0x50003")
    I(f"s_lshl_b32 s{S_t0}, s{S_t0}, 4")
    I(f"v_add_lshl_u32 v2, v2, s{S_t0}, 7")
    I("v_min_u32 v2, L_end-L_pc, v2")
    I("s_mov_b64 exec, 3")
    I("global_load_dword v127, v2, s[56:57]")
    I("s_mov_b64 exec, -1")
if OPT["codepf"] and OPT["pfe"] == 1:
    I("s_cmp_lt_u32 s2, 8")
    I("s_cbranch_scc0 L_nopf")
    e.cond_begin()
    I("s_getpc_b64 s[56:57]")
    e.label("L_pc")
    I("v_lshlrev_b32 v2, 7, v0")
    I("v_min_u32 v2, L_end-L_pc, v2")
    I("global_load_dword v127, v2, s[56:57]")
    e.cond_end()
    e.label("L_nopf")
I("v_lshrrev_b32 v1, 6, v0")
I("s_cmp_ge_u32 s2, 256")
I("s_cbranch_scc1 L_end")
I(f"v_readfirstlane_b32 s{S_t2}, v1")
I("v_and_b32 v0, 63, v0")
I(f"s_bfe_u32 s{S_q}, s2, 0x20001")
I(f"s_and_b32 s{S_t0}, s2, 1")
I(f"s_lshl_b32 s{S_t0}, s{S_t0}, 3")
I(f"s_bfe_u32 s{S_r}, s2, 0x30003")
I(f"s_or_b32 s{S_r}, s{S_r}, s{S_t0}")
I(f"s_lshr_b32 s{S_jj}, s2, 6")
if OPT["rotq"] == 2:
    I(f"s_lshr_b32 s{S_rot}, s{S_t0}, 2")
    I(f"s_add_u32 s{S_rot}, s{S_rot}, s{S_q}")
    I(f"s_and_b32 s{S_t0}, s{S_r}, 1")
    I(f"s_add_u32 s{S_rot}, s{S_rot}, s{S_t0}")
elif OPT["rotq"]: I(f"s_add_u32 s{S_rot}, s{S_r}, s{S_q}")
else: I(f"s_mov_b32 s{S_rot}, s{S_r}")
I(f"s_and_b32 s{S_w}, s{S_t2}, 3")
I(f"s_lshl_b32 s{S_m0b}, s{S_w}, 12")
I(f"s_cmp_lt_u32 s{S_t2}, 4")
I("s_cbranch_scc1 L_C")

H_XD = 4; H_WD = 8; H_BD = 12; H_ACC = 64
H_G = 18 if M else 20; H_BR = 20 if M else 24
H_RING = [32, 36, 40, 44, 48, 52, 24, 28] if M else [32, 36, 40, 44, 48, 52, 12]
def a2r(lam, p):
    if lam < 16: return ar(lam * 8 + p * 4)
    return vr((56 if lam == 16 else 4) + p * 4)
I("s_setprio 3")
I("v_lshrrev_b32 v32, 4, v0")
I("v_lshrrev_b32 v36, 3, v0")
I("v_and_b32 v37, 7, v0")
I("v_xor_b32 v39, v37, v32")
I("v_lshlrev_b32 v39, 4, v39")
I(f"v_lshl_add_u32 v{H_XD}, v36, 11, v39")
I(f"v_xor_b32 v{H_XD+1}, 64, v{H_XD}")
I(f"v_add_u32 v{H_XD+2}, {14*1024}, v{H_XD+1}")
I(f"v_add_u32 v{H_XD+3}, {14*1024}, v{H_XD}")
I(f"s_lshl_b32 s{S_t0}, s{S_r}, 17")
I(f"s_lshl_b32 s{S_t1}, s{S_w}, 15")
I(f"s_add_u32 s{S_t0}, s{S_t0}, s{S_t1}")
for g4 in range(4):
    I(f"s_add_u32 s{S_WK+g4}, s{S_rot}, {g4}")
    I(f"s_and_b32 s{S_WK+g4}, s{S_WK+g4}, 3")
    I(f"s_lshl_b32 s{S_KG+g4}, s{S_WK+g4}, 8")
    I(f"s_add_u32 s{S_KG+g4}, s{S_KG+g4}, s{S_t0}")
I(f"s_mov_b32 s{S_X+2}, {2048*1024}")
I(f"s_mov_b32 s{S_X+3}, 0x20000")
assert phys(False, 1) == phys(False, 0) + 1 and phys(True, 1) == phys(True, 0) + 1
I(f"s_cmp_ge_u32 s{S_jj}, 2")
I(f"s_cselect_b32 s{S_t2}, {phys(True,0)}, {phys(False,0)}")
I(f"s_cselect_b32 s{S_EV}, {phys(True,2)}, {phys(False,2)}")
I(f"s_mov_b32 s{S_W+2}, {512*3584}")
I(f"s_cmov_b32 s{S_W+2}, {512*3072}")
I(f"s_mov_b32 s{S_P}, 3584")
I(f"s_cmov_b32 s{S_P}, 3072")
I(f"s_lshl_b32 s{S_t2}, s{S_t2}, 14")
I(f"s_add_u32 s{S_t2}, s{S_t2}, s{S_m0b}")
I(f"s_mov_b32 m0, s{S_t2}")
I(f"s_add_u32 s{S_SOFF}, s{S_KG}, 128")
after_karg()
I(f"s_mov_b32 s{S_X}, s4")
I(f"s_and_b32 s{S_X+1}, s5, 0xffff")
for i in range(4): I(f"buffer_load_dwordx4 v{H_XD+i}, {srd(S_X)}, s{S_KG} offen offset:{i*1024} lds", tag="u0")
I(f"s_add_u32 m0, s{S_t2}, {SLOT}")
I(f"s_mov_b32 s{S_W+3}, 0x20000")
dma4(H_XD, S_X, "u1")
I(f"s_lshl_b32 s{S_t0}, s{S_w}, 5")
I(f"v_add_u32 v38, s{S_t0}, v36")
I(f"v_mul_lo_u32 v38, v38, s{S_P}")
I(f"s_mul_i32 s{S_COL}, s{S_q}, 896")
I(f"s_lshl_b32 s{S_t0}, s{S_q}, 8")
I(f"s_add_u32 s{S_t0}, s{S_t0}, {1024-256}")
I(f"s_cmp_ge_u32 s{S_jj}, 2")
I(f"s_cselect_b32 s{S_W}, s6, s12")
I(f"s_cselect_b32 s{S_W+1}, s7, s13")
I(f"s_cselect_b32 s{S_COL}, s{S_t0}, s{S_COL}")
I(f"s_cselect_b32 s{S_t0}, 1, {2 if M else 1}")
I(f"s_cselect_b32 s{S_t1}, 64, {0 if M else 64}")
I(f"s_and_b32 s{S_W+1}, s{S_W+1}, 0xffff")
I("v_and_b32 v39, 1, v32")
I(f"v_lshlrev_b32 v39, s{S_t0}, v39")
I("v_xor_b32 v39, v39, v37")
I("v_lshlrev_b32 v39, 4, v39")
I(f"v_add_u32 v{H_WD}, v38, v39")
I(f"v_xor_b32 v39, s{S_t1}, v39")
I(f"s_lshl_b32 s{S_t0}, s{S_P}, 3")
I(f"s_sub_u32 s{S_t0}, s{S_t0}, 1024")
I(f"v_add3_u32 v{H_WD+1}, v38, v39, s{S_t0}")
I(f"s_lshl_b32 s{S_t0}, s{S_t0}, 1")
I(f"v_add_u32 v{H_WD+2}, s{S_t0}, v{H_WD}")
I(f"v_add_u32 v{H_WD+3}, s{S_t0}, v{H_WD+1}")
I(f"s_lshl_b32 s{S_t0}, s{S_jj}, 7")
I(f"s_add_u32 s{S_COL}, s{S_COL}, s{S_t0}")
I(f"s_lshl_b32 s{S_t1}, s{S_P}, 7")
for g4 in range(4): I(f"s_mul_i32 s{S_WK+g4}, s{S_WK+g4}, s{S_t1}")
I(f"s_lshl_b32 s{S_EV}, s{S_EV}, 14")
I(f"s_add_u32 m0, s{S_EV}, s{S_m0b}")
I(f"s_add_u32 s{S_SOFF}, s{S_WK}, s{S_COL}")
dma4(H_WD, S_W, "u2")
common_ptrs()
mk_srd(S_OUT, 18, 2048 * 1024)
mk_srd(S_GW, 16, 1024)
I(f"s_cmp_ge_u32 s{S_jj}, 2")
I("s_cbranch_scc1 L_h_att")
snapH = e.snapshot()

def h_prog(att):
    e.restore(snapH); e.hist = []
    UL = units(att)
    CH = [0, -1024, 1024] if att else [0, 256, 512]
    def issue(k):
        un = UL[k]
        I(f"s_add_u32 m0, s{S_m0b}, {phys(att,k)*SLOT}")
        if un[0] == "x":
            I(f"s_add_u32 s{S_SOFF}, s{S_KG+un[1]}, {un[2]*128}")
            dma4(H_XD, S_X, f"u{k}")
            if att and un[2] == 1: halo(un[1], f"u{k}")
            return
        _, c, u = un
        if c < 3:
            I(f"s_add_u32 s{S_SOFF}, s{S_WK+u}, s{S_COL}")
            if CH[c]: I(f"s_add_i32 s{S_SOFF}, s{S_SOFF}, {CH[c]}")
        else:
            KH = 256 * 3584
            if u == 0:
                I("v_lshrrev_b32 v2, 2, v0")
                if M:
                    I("v_lshrrev_b32 v1, 4, v0")
                    I("v_xor_b32 v2, v2, v1")
                I("v_and_b32 v2, 1, v2")
                I(f"v_mul_u32_u24 v1, {KH-64}, v2")
                for i in (0, 2): I(f"v_add_u32 v{H_WD+i}, v{H_WD+i}, v1")
                if not M: I(f"v_sub_u32 v1, {KH-64}, v1")
                for i in (1, 3): I(f"v_add_u32 v{H_WD+i}, v{H_WD+i}, v1")
                I(f"v_mul_u32_u24 v2, {2*KH}, v2")
                I(f"v_sub_u32 v{H_XD}, {KH}, v2")
                I(f"s_cmp_ge_u32 s{S_WK}, {KH}")
                I(f"s_cselect_b32 s{S_t0}, 1, 0")
            else:
                I(f"s_cmp_ge_u32 s{S_WK}, {KH}")
                I(f"s_cselect_b32 s{S_t1}, 1, 0")
                I(f"s_cmp_ge_u32 s{S_WK+1}, {KH}")
                I(f"s_cselect_b32 s{S_t0}, 1, 0")
                I(f"s_sub_u32 s{S_t0}, s{S_t0}, s{S_t1}")
            I(f"s_sub_u32 s{S_t1}, 0, s{S_t0}")
            for i in range(4): I(f"v_mad_i32_i24 v{H_WD+i}, v{H_XD}, s{S_t0 if (M or i % 2 == 0) else S_t1}, v{H_WD+i}")
            I(f"s_min_u32 s{S_SOFF}, s{S_WK+u}, s{S_WK+u+2}")
            I(f"s_add_u32 s{S_SOFF}, s{S_SOFF}, s{S_COL}")
            I(f"s_lshl_b32 s{S_t0}, s{S_jj}, 6")
            I(f"s_sub_u32 s{S_SOFF}, s{S_SOFF}, s{S_t0}")
            I(f"s_add_u32 s{S_SOFF}, s{S_SOFF}, 768")
        dma4(H_WD, S_W, f"u{k}")
    def w0(f):
        l = U("w0")
        I(f"s_cmp_eq_u32 s{S_w}, 0"); I(f"s_cbranch_scc0 {l}")
        e.cond_begin(); f(); e.cond_end(); e.label(l)
    def peer_issue(): w0(lambda: I(f"s_load_dword s{S_POLL}, s[{S_DBG}:{S_DBG+1}], 0 glc"))
    def peer():
        def f():
            lp = U("pp"); ok = U("po")
            I("s_waitcnt lgkmcnt(0)")
            I(f"s_cmp_ge_u32 s{S_POLL}, 16")
            I(f"s_cbranch_scc0 {lp}")
            e.label(ok)
            SLOW.extend([f"{lp}:", "    s_sleep 8", f"    s_load_dword s{S_POLL}, s[{S_DBG}:{S_DBG+1}], 0 glc", "    s_waitcnt lgkmcnt(0)",
                         f"    s_cmp_ge_u32 s{S_POLL}, 16", f"    s_cbranch_scc1 {ok}"] + spin_tail(lp, ok))
        w0(f)
        I(f"s_mov_b32 s{S_POLL}, 0")
    V_Q = 64; V_S = 96; V_BIAS = 32; V_RINV = 40; V_T = 48; A_KV = 64; A_ONES = 96; V_AD = 24 if M else 56
    def att_setup(part):
        if part == 0:
            I(f"s_add_u32 s{S_t0}, s{S_m0b}, {EXCH_LDS+4096}")
            I(f"v_add_u32 v{V_AD}, s{S_t0}, v{V_L16}")
            I("v_bfe_u32 v1, v0, 3, 1")
            I("v_lshlrev_b32 v1, 12, v1")
            I(f"v_sub_u32 v{V_AD+2}, v{V_AD}, v1")
            I("v_xor_b32 v1, 4096, v1")
            I(f"v_sub_u32 v{V_AD+1}, v{V_AD}, v1")
            I("v_lshrrev_b32 v1, 5, v0")
            I("v_lshlrev_b32 v1, 12, v1")
            I(f"v_sub_u32 v{V_AD+4}, v{V_AD}, v1")
            I("v_xor_b32 v1, 4096, v1")
            I(f"v_sub_u32 v{V_AD+3}, v{V_AD}, v1")
            I(f"v_add_u32 v{V_AD+5}, {(QSLOT*SLOT - EXCH_LDS - 4096) & 0xffffffff}, v{V_AD}")
            I(f"s_mov_b32 s{S_CEXP}, {f2u(0.25*1.4426950408889634)}")
            I(f"s_or_b32 s{S_t0}, s{S_r}, s{S_w}")
            I(f"s_cmp_eq_u32 s{S_t0}, 0")
            I(f"s_cselect_b32 s{S_THR}, -16, -9")
            I(f"v_mov_b32 v{V_T}, 0x3f803f80")
            for k in range(4): I(f"v_accvgpr_write_b32 a{A_ONES+k}, v{V_T}")
            I(f"v_mov_b32 v{V_T}, {NEG}")
            I(f"v_and_b32 v{V_T+1}, 15, v0")
            I(f"v_lshrrev_b32 v{V_T+2}, 4, v0")
            I(f"v_lshlrev_b32 v{V_T+2}, 2, v{V_T+2}")
        elif part in (1, 2):
            p = part - 1; x8 = 8 if p == 0 else 0
            I(f"v_xor_b32 v{V_T+3}, {x8}, v{V_T+1}")
            I(f"v_xor_b32 v{V_T+4}, {x8}, v{V_T+2}")
            I(f"v_sub_u32 v{V_T+3}, v{V_T+3}, v{V_T+4}")
            for r in range(4):
                I(f"v_subrev_u32 v{V_T+4}, {r}, v{V_T+3}")
                I(f"v_cmp_lt_u32 vcc, 7, v{V_T+4}")
                I(f"v_cmp_lt_i32 s[56:57], s{S_THR}, v{V_T+4}")
                I("s_and_b64 vcc, vcc, s[56:57]")
                I(f"v_cndmask_b32 v{V_BIAS+p*4+r}, 0, v{V_T}, vcc")
        else:
            for k in range(16): I(f"v_mov_b32 v{V_Q+16*(part-3)+k}, 0")
            I("s_mov_b32 s56, 0xff00ff00"); I("s_mov_b32 s57, 0xff00ff00")
            I("s_not_b64 s[58:59], s[56:57]")
    def br_setup():
        if M:
            I("v_bfe_u32 v1, v0, 2, 2")
            I("v_lshrrev_b32 v2, 5, v0")
            I("v_lshl_add_u32 v1, v2, 2, v1")
            I("v_lshlrev_b32 v1, 7, v1")
            I("v_bfe_u32 v2, v0, 4, 1")
            I("v_lshl_add_u32 v1, v2, 5, v1")
            I("v_bfe_u32 v2, v0, 3, 1")
            I("v_lshl_add_u32 v1, v2, 6, v1")
        else:
            I("v_lshrrev_b32 v1, 2, v0")
            I("v_bfe_u32 v2, v0, 3, 2")
            I("v_lshlrev_b32 v1, 7, v1")
            I("v_lshl_add_u32 v1, v2, 5, v1")
        I("v_and_b32 v2, 3, v0")
        I("v_lshl_add_u32 v1, v2, 3, v1")
        I(f"s_lshr_b32 s{S_t0}, s{S_q}, 1")
        I(f"s_lshl_b32 s{S_t0}, s{S_t0}, 13")
        I(f"s_and_b32 s{S_t1}, s{S_q}, 1")
        I(f"s_lshl_b32 s{S_t1}, s{S_t1}, 6")
        I(f"s_or_b32 s{S_t0}, s{S_t0}, s{S_t1}")
        I(f"v_xor_b32 v1, s{S_t0}, v1")
        for tau in range(4):
            cb = 3 - tau
            if M: I(f"v_xor_b32 v{H_BR+tau}, {(cb>>1)*8192 + (cb&1)*64}, v1")
            else:
                for tt in range(2): I(f"v_xor_b32 v{H_BR+2*tau+tt}, {(cb>>1)*8192 + (cb&1)*64 + tt*32}, v1")
        I(f"s_lshl_b32 s{S_PB}, s{S_r}, 2"); I(f"s_add_u32 s{S_PB}, s{S_PB}, s{S_jj}")
        I(f"s_mul_i32 s{S_PB}, s{S_PB}, {12*8192}")
        I(f"s_lshl_b32 s{S_t0}, s{S_w}, 11"); I(f"s_add_u32 s{S_PB}, s{S_PB}, s{S_t0}"); I(f"s_add_u32 s{S_PB}, s{S_PB}, {PART_OFF}")
    V_HV = 31 if M else 19
    def halo(u, tag):
        I(f"s_lshr_b32 s{S_t0}, s{S_m0b}, 2")
        I(f"s_add_u32 m0, s{S_t0}, {HALO_LDS + u*4096}")
        I(f"s_and_b32 s{S_t0}, s{S_KG+u}, 0x300")
        I(f"buffer_load_dwordx4 v{V_HV}, {srd(S_X)}, s{S_t0} offen lds", tag=tag)
    if att:
        I(f"s_and_b32 s{S_t1}, s{S_w}, 1")
        I(f"s_mul_i32 s{S_t1}, s{S_t1}, {1024+64}")
        I(f"v_xor_b32 v{V_HV}, s{S_t1}, v{H_XD}")
        I(f"s_lshl_b32 s{S_t0}, s{S_r}, 17")
        I(f"s_sub_u32 s{S_t0}, s{S_t0}, 16384")
        I(f"s_lshr_b32 s{S_t1}, s{S_w}, 1")
        I(f"s_lshl_b32 s{S_t1}, s{S_t1}, 7")
        I(f"s_add_u32 s{S_t0}, s{S_t0}, s{S_t1}")
        I(f"v_add_u32 v{V_HV}, s{S_t0}, v{V_HV}")
        I(f"v_max_i32 v{V_HV}, 0, v{V_HV}")
        halo(0, "u2")
    if EG and not att:
        I(f"s_lshl_b32 s{S_t0}, s{S_w}, 8")
        I(f"s_add_u32 m0, s{S_t0}, {GW_LDS}")
        I("v_lshlrev_b32 v1, 2, v0")
        I(f"buffer_load_dword v1, {srd(S_GW)}, s{S_t0} offen lds", tag="u2")
    PRE = OPT["pre"]
    for k in range(3, PRE + 1): issue(k)
    first = list(range(PRE + 1, 8))
    if att and not OPT["n9"]: sched = [first, [8, 9], [10], [11, 12, 13], [14], [15, 16, 17], [18], [] if OPT["u19"] else [19]]
    else: sched = [first, [8, 9], [10, 11], [12, 13], [14, 15], [16, 17], [18, 19], []]
    def gw_dma():
        I(f"s_mov_b32 m0, {GW_LDS}")
        w0(lambda: I(f"buffer_load_dwordx4 v{V_L16}, {srd(S_GW)}, 0 offen lds"))
    def inb_reset():
        for k in range(4):
            I(f"s_mov_b32 s{56+k}, 0")
            I(f"s_add_u32 s{S_t0}, s{S_MYIN}, {k*128}")
            I(f"s_atomic_swap s{56+k}, s[{S_INB}:{S_INB+1}], s{S_t0} glc")
    def count_in():
        I(f"s_mov_b32 s{S_EV}, 1")
        I("s_waitcnt lgkmcnt(0)")
        I(f"s_atomic_add s{S_EV}, s[{S_DBG}:{S_DBG+1}], 0")
    if OPT["hinit"]:
        late_scalars(); w0(inb_reset)
    extra = {1: lambda: ((w0(count_in) if OPT["hinit"] else late_scalars()), b2_voffs(H_BD)), 3: (gw_dma if not EG else lambda: None), 7: (br_setup if att or OPT["sch"] else lambda: (b2_unit(8, H_BD), br_setup()))}
    if att: extra.update({2: lambda: (att_setup(0), att_setup(1)), 4: lambda: (att_setup(2), att_setup(3)), 6: lambda: att_setup(4)})
    gk = [k for k, un in enumerate(UL) if un[0] == "g"]
    def bar(i, need=None):
        stamp(f"h_a{i}")
        if need is None and i < len(gk): need = gk[i]
        if need is not None: e.wait(vm=f"u{need}")
        if i == OPT["pb"]: peer()
        I("s_barrier"); stamp(f"h_b{i}")
    for i in range(8):
        bar(i)
        if i == OPT["pb"] - 2: peer_issue()
        for k in sched[i]: issue(k)
        if i in extra: extra[i]()
        if i == (OPT["tha"] if att else OPT["th"]) and not OPT["tatt"]: vtouch(att, 30 if M else 18)
        if i == OPT["th"] and OPT["tatt"] and att: vtouch2()
    def a2_load(lam):
        a2_soff(lam, S_t1)
        for p in range(2):
            I(f"buffer_load_dwordx4 {a2r(lam,p)}, v{V_L16}, {srd(S_WS)}, s{S_t1} offen offset:{p*1024} sc1", tag=f"a{lam}")
    def a2_items(lams, gap=None):
        gap = OPT['gap']
        F = []
        for lam in lams:
            F.append(cost(9, lambda lam=lam: (a2_soff(lam, S_COL), I(f"buffer_load_dwordx4 {a2r(lam,0)}, v{V_L16}, {srd(S_WS)}, s{S_COL} offen sc1", tag=f"a{lam}x"))))
            F += [cost(9, lambda: None)] * (gap - 1)
            F.append(cost(9, lambda lam=lam: I(f"buffer_load_dwordx4 {a2r(lam,1)}, v{V_L16}, {srd(S_WS)}, s{S_COL} offen offset:1024 sc1", tag=f"a{lam}")))
            F += [cost(9, lambda: None)] * (gap - 1)
        return F
    Bu = lambda g: b2_unit(g, H_BD, False)
    SS = []
    ALL = (0, 1, 2, 3)
    side = {}
    if not att:
        if OPT["sch"] == 0:
            bar(8); Bu(0)
            bar(9); issue(20); Bu(1)
            bar(10); push_group(ownbit(0), ALL); issue(21); Bu(2)
            bar(11); push_group(ownbit(1), ALL); Bu(3); poll_load()
            bar(12); poll_check(0x11)
            for lam in range(4): a2_load(lam)
            Bu(4); poll_load()
            bar(13); poll_check(0x22)
            for lam in range(4, 8): a2_load(lam)
            Bu(5)
            bar(14)
        else:
            bar(8)
            bar(9); issue(20)
            bar(10); push_group(ownbit(0), ALL); issue(21)
            bar(11); push_group(ownbit(1), ALL); Bu(0); Bu(1); poll_load()
            bar(12); poll_check(0x11); a2_load(0); a2_load(1); (None if STG else poll_load())
            bar(13); a2_load(2); a2_load(3); b2_unit(2, H_BD)
            e.wait(vm="b1")
            bar(14)
            if not STG:
                poll_check(0x22)
                side[(0, 0)] = lambda: SS[0].add(0, 999, a2_items((4, 5, 6, 7), 2))
        def f_o(): poll_check(0x300); SS[0].add(0, 999, a2_items((16, 17, 14, 15)))
    else:
        def kv_reads(m0, tag):
            for t in range(4):
                I(f"ds_read_b64 {ar(A_KV+8*t,2)}, v{m0} offset:{t*1024}", tag=f"{tag}{t}")
                I(f"ds_read_b128 {ar(A_KV+8*t+2)}, v{V_AD} offset:{t*1024}", tag=f"{tag}{t}")
                I(f"ds_read_b64 {ar(A_KV+8*t+6,2)}, v{m0+1} offset:{t*1024+8}", tag=f"{tag}{t}")
        bar(8)
        kv_reads(V_AD + 1, "k")
        e.wait(lg="k3")
        bar(9, 18 if OPT["u19"] else 19)
        def Preg(t, p): return V_Q + 8 * t + 4 * p
        for half, m in enumerate(("s[56:57]", "s[58:59]")):
            I(f"s_mov_b64 exec, {m}")
            for t in range(4):
                for p in range(2):
                    I(f"ds_read_b64 {vr(Preg(t,p)+2*half,2)}, v{V_AD+5} offset:{t*1024+p*8}", tag="q")
        I("s_mov_b64 exec, -1")
        stamp("h_q")
        e.wait(lg="q")
        un = [(i >> 1, i & 1) for i in range(8)]
        Sc = lambda i: V_S + 4 * i
        for i, (t, p) in enumerate(un): I(f"{MF} {vr(Sc(i))}, {ar(A_KV+8*t+4*p)}, {vr(Preg(t,p))}, {vr(V_BIAS+4*p)}")
        poll_load()
        if OPT["u19"]: issue(19); dsig("Lv3")
        Bu(0)
        stamp("m1")
        m = [V_T + i for i in range(8)]
        for i in range(8):
            if OPT["lround"]:
                I(f"v_cvt_pk_bf16_f32 v1, v{Sc(i)}, v{Sc(i)+1}")
                I(f"v_cvt_pk_bf16_f32 v2, v{Sc(i)+2}, v{Sc(i)+3}")
                I(f"v_lshlrev_b32 v{Sc(i)}, 16, v1")
                I(f"v_and_b32 v{Sc(i)+1}, 0xffff0000, v1")
                I(f"v_lshlrev_b32 v{Sc(i)+2}, 16, v2")
                I(f"v_and_b32 v{Sc(i)+3}, 0xffff0000, v2")
            I(f"v_max3_f32 v{m[i]}, v{Sc(i)}, v{Sc(i)+1}, v{Sc(i)+2}")
            I(f"v_max_f32 v{m[i]}, v{m[i]}, v{Sc(i)+3}")
        for k in range(4): I(f"v_permlane32_swap_b32 v{m[2*k]}, v{m[2*k+1]}")
        for k in range(4): I(f"v_max_f32 v{m[2*k]}, v{m[2*k]}, v{m[2*k+1]}")
        for k in range(2): I(f"v_permlane16_swap_b32 v{m[4*k]}, v{m[4*k+2]}")
        for k in range(2): I(f"v_max_f32 v{m[4*k]}, v{m[4*k]}, v{m[4*k+2]}")
        for k in range(2): I(f"v_mul_f32 v{m[4*k+2]}, s{S_CEXP}, v{m[4*k]}")
        for k in range(2): I(f"v_mul_f32 v{m[4*k]}, s{S_CEXP}, v{m[4*k]}")
        for k in range(2): I(f"v_permlane16_swap_b32 v{m[4*k]}, v{m[4*k+2]}")
        for k in range(4): I(f"v_mov_b32 v{m[2*k+1]}, v{m[2*k]}")
        for k in range(4): I(f"v_permlane32_swap_b32 v{m[2*k]}, v{m[2*k+1]}")
        stamp("m2")
        Bu(1)
        stamp("m3")
        for i in range(8):
            for r in range(4): I(f"v_fma_f32 v{Sc(i)+r}, v{Sc(i)+r}, s{S_CEXP}, -v{m[i]}")
            for r in range(4): I(f"v_exp_f32 v{Sc(i)+r}, v{Sc(i)+r}")
            if i == 4: stamp("m4"); poll_check(0x11); (None if STG else poll_load()); stamp("m5")
            if i >= 4: a2_load(i - 4)
        stamp("m6")
        b2_unit(2, H_BD)
        stamp("m7")
        for half, mk in enumerate(("s[56:57]", "s[58:59]")):
            I(f"s_mov_b64 exec, {mk}")
            for i, (t, p) in enumerate(un):
                I(f"v_cvt_pk_bf16_f32 v{Preg(t,p)+2*half}, v{Sc(i)}, v{Sc(i)+1}")
                I(f"v_cvt_pk_bf16_f32 v{Preg(t,p)+2*half+1}, v{Sc(i)+2}, v{Sc(i)+3}")
        I("s_mov_b64 exec, -1")
        for i, (t, p) in enumerate(un): I(f"{MF} {vr(Sc(i))}, {ar(A_ONES)}, {vr(Preg(t,p))}, 0")
        for i in range(8): I(f"v_rcp_f32 v{V_RINV+i}, v{Sc(i)}")
        e.wait(vm="b1")
        if OPT["a47"] and not STG:
            poll_check(0x22)
            for lam in range(4, 4 + 2 * OPT["a47"]): a2_load(lam)
        stamp("h_sm")
        I("s_barrier")
        stamp("v1")
        kv_reads(V_AD + 3, "v")
        e.wait(lg="v3")
        stamp("v2")
        if OPT["vb2"]: I("s_barrier")
        for i, (t, p) in enumerate(un): I(f"{MF} {vr(Sc(i))}, {ar(A_KV+8*t+4*p)}, {vr(Preg(t,p))}, 0")
        for b in range(2):
            for t in (2 * b, 2 * b + 1):
                ob = (56 if b == 0 else 4) + (t & 1) * 4
                for p in range(2):
                    o = Sc(2 * t + p)
                    if OPT["pkm"]:
                        for r in (0, 2): I(f"v_pk_mul_f32 {vr(o+r,2)}, {vr(o+r,2)}, {vr(V_RINV+2*t,2)} op_sel:[0,{p}] op_sel_hi:[1,{p}]")
                    else:
                        for r in range(4): I(f"v_mul_f32 v{o+r}, v{V_RINV+2*t+p}, v{o+r}")
                    od = ob + 2 * p if M else (56 if b == 0 else 4) + p * 4 + (t & 1) * 2
                    I(f"v_cvt_pk_bf16_f32 v{od}, v{o}, v{o+1}")
                    I(f"v_cvt_pk_bf16_f32 v{od+1}, v{o+2}, v{o+3}")
            stamp(f"v{3+b}")
            a2_soff(16 + b, S_t1)
            for t1 in range(2 if M else 0):
                ob = (56 if b == 0 else 4) + t1 * 4
                I(f"v_permlane16_swap_b32 v{ob}, v{ob+2}")
                I(f"v_permlane16_swap_b32 v{ob+1}, v{ob+3}")
            for p in range(2):
                I(f"buffer_store_dwordx4 {a2r(16+b,p)}, v{V_L16}, {srd(S_WS)}, s{S_t1} offen offset:{p*1024} sc1", tag="so")
        if not OPT["vb2"]: dsig("VD")
        stamp("h_so")
        def f_push():
            e.wait(vm="so")
            push_group(lambda: I(f"s_lshl_b32 s{S_t2}, 64, s{S_jj}"), (1, 2, 3))
        side[(0, OPT["fp"])] = f_push
        if not STG and OPT["a47"] < 2: side[(0, OPT["fp"] + 2)] = lambda: (poll_check(0x22), SS[0].add(0, 999, a2_items(range(4 + 2 * OPT["a47"], 8), 1)))
        def f_o():
            I(f"s_xor_b32 s{S_THR}, s{S_jj}, 1"); I(f"s_lshl_b32 s{S_THR}, 64, s{S_THR}")
            poll_check(f"s{S_THR}"); SS[0].add(0, 999, a2_items((14, 15)))
    def f_c(): poll_check(0x44); SS[0].add(0, 999, a2_items((8, 9, 10, 11)))
    def f_h(): poll_check(0x88); SS[0].add(0, 999, a2_items((12, 13)))
    if not STG: side.update({(0, OPT["kc"] - 15): poll_load, (0, OPT["kc"]): f_c, (0, OPT["kh"] - 15): poll_load, (0, OPT["kh"]): f_h, (0, OPT["ko"] - 11): poll_load, (0, OPT["ko"]): f_o})
    I("s_setprio 1")
    stamp("h_p2")
    own = [16, 17] if att else []
    LD = OPT["ld"]
    oo = [16, 17, 14, 15]
    TM = 14 - OPT["tm"]
    seq = [(lam, tau) for lam in range(TM) for tau in range(4 if lam < LD else 3)]
    seq += [(lam, tau) for tau in range(3) for lam in list(range(TM, 14)) + oo]
    seq += [(lam, 3) for lam in list(range(LD, 14)) + oo]
    steps = []; rng = {}; seen_g = set(); seen_l = set(); first_ = set()
    for (lam, tau) in seq:
        g = lam >> 1
        for kh in range(2):
            a = H_BR + tau if M else H_BR + 2 * tau + kh
            off = g * SLOT + (lam & 1) * 4096 + (kh * 2048 if M else 0)
            hi = off >> 16
            st = dict(rd=(a, off & 0xffff, 1024 if M else 2048))
            pres = []
            cg = CHKG.get(g) if not STG else {2: 2}.get(g)
            if cg is not None and cg not in seen_g:
                seen_g.add(cg); t = U("t")
                steps[-3]["post"] = lambda k, g=cg, t=t: d_read(f"Lb{g}", t)
                pres.append(lambda g=cg, t=t: d_check(f"Lb{g}", t))
            if rng.get(a, 0) != hi:
                dlt = (hi - rng.get(a, 0)) * 65536; rng[a] = hi
                pres.append(lambda a=a, dlt=dlt: I(f"v_add_u32 v{a}, {dlt & 0xffffffff}, v{a}"))
            if pres: st["pre"] = lambda pres=pres: [f() for f in pres]
            at = 4 if (tau == 3 and lam >= 14) else tau
            key = at if M else (at, kh)
            zero = key not in first_; first_.add(key)
            db = H_ACC + 16 * (at if at < 4 else 0)
            if M: st["mf"] = lambda W, st, lam=lam, kh=kh, d=vr(db, 16), zero=zero: [f"{M32} {d}, {W}, {a2r(lam,kh)}, {'0' if zero else d}"]
            else: st["mf"] = lambda W, st, lam=lam, db=db + 4 * kh, zero=zero: [f"{MF} {vr(db+8*p)}, {W}, {a2r(lam,p)}, {'0' if zero else vr(db+8*p)}" for p in range(2)]
            if lam not in seen_l:
                seen_l.add(lam)
                if STG and lam >= 4 and lam not in own: st["need"] = lambda lam=lam: e.wait(lg=f"a{lam}")
                elif lam not in own: st["need"] = lambda lam=lam: e.wait(vm=f"a{lam}")
            st["id"] = (lam, tau, kh)
            steps.append(st)
    S = Stream(steps, OPT["D2"], H_RING)
    SS.append(S)
    idx = {st["id"]: k for k, st in enumerate(steps)}
    n = len(steps)
    for (lam, d), f in side.items(): S.aft(idx[(lam, 0, 0)] + d, f)
    def scale(tau, greg): return [lambda k=k: I(f"v_mul_f32 v{H_ACC+16*tau+k}, v{greg + (0 if M else 2*(k>>3))}, v{H_ACC+16*tau+k}") for k in range(16)]
    def pack(tau):
        b = H_ACC + tau * 16
        return [lambda k=k: I(f"v_cvt_pk_bf16_f32 v{b+k}, v{b+2*k}, v{b+2*k+1}") for k in range(8)]
    def send(tau):
        def so():
            I(f"s_xor_b32 s{S_GIN}, s{S_q}, {3-tau}"); I(f"s_mul_i32 s{S_GIN}, s{S_GIN}, {3*8192}")
            I(f"s_add_u32 s{S_GIN}, s{S_GIN}, s{S_PB}"); I(f"s_add_u32 s{S_GIN}, s{S_GIN}, {tau*8192}")
        return [so] + pack(tau) + [cost(3, lambda j=j: I(f"buffer_store_dwordx4 {vr(H_ACC+tau*16+j*4)}, v{V_L16}, {srd(S_WS)}, s{S_GIN} offen offset:{j*1024} sc1", tag=f"p{tau}")) for j in range(2)]
    def pflag(tau):
        assert e.vmq[0][0].count(f"p{tau}") == 2
        stamp(f"h_pa{tau}")
        e.wait(vm=f"p{tau}")
        stamp(f"h_pb{tau}")
        I(f"s_xor_b32 s{S_t0}, s{S_MYIN}, {(3-tau)*2048}")
        I(f"s_mov_b32 s{S_KG+tau}, {1024<<tau}")
        I(f"s_atomic_or s{S_KG+tau}, s[{S_INB}:{S_INB+1}], s{S_t0}")
    if STG:
        I(f"v_add_u32 v18, s{S_m0b}, v{V_L16}")
        I(f"v_add_u32 v19, 0x10000, v18")
        def stage_rd(lam, slot):
            a = (18, 19, 2)[slot >> 2]
            return [lambda j=j: I(f"ds_read_b128 {a2r(lam+(j>>1), j&1)}, v{a} offset:{(slot&3)*SLOT+j*1024}", tag=f"a{lam+(j>>1)}") for j in range(4)]
        def g_rd():
            I(f"s_lshr_b32 s{S_t0}, s{S_m0b}, 2"); I(f"s_add_u32 s{S_t0}, s{S_t0}, {GB_LDS}"); I(f"v_add_u32 v1, s{S_t0}, v{V_L16}")
            I(f"ds_read_b128 {vr(H_G)}, v1", tag="gz")
        I(f"v_add_u32 v2, 0x20000, v18")
        plan = [("S1", 4, stage_rd(4, 6)), ("S2", 6, stage_rd(6, 7)), ("S3", 8, stage_rd(8, 8)), ("S4", 10, stage_rd(10, 0)),
                ("S5", 12, stage_rd(12, 1) + [g_rd]), ("S6", 16, ([] if att else stage_rd(16, 2)) + stage_rd(14, 3))]
        for evn, lam, rds in plan:
            k = idx[(lam, 0, 0)] - OPT["lead"]; t = U("t")
            S.aft(k - 3 - (6 if lam == 4 else 0), lambda evn=evn, t=t: d_read(evn, t))
            S.aft(k - (6 if lam == 4 else 0), lambda evn=evn, t=t, rds=rds, k=k: (d_check(evn, t), S.add(0, k + OPT["lead"] - 3, rds)))
        for k, tg in ((OPT["pba"], "a7"), (OPT["pbb"], "a9")):
            S.aft(k, lambda tg=tg: ((e.wait(lg=tg) if tg else None), I("s_barrier")))
        S.aft(idx[(13, 0, 1)], lambda: e.wait(lg="gz"))
    elif EG:
        def gget():
            I(f"s_lshl_b32 s{S_t0}, s{S_r}, 2"); I(f"s_add_u32 s{S_t0}, s{S_t0}, s{S_q}"); I(f"s_lshl_b32 s{S_t0}, s{S_t0}, 12")
            I(f"s_lshr_b32 s{S_t1}, s{S_m0b}, 2"); I(f"s_add_u32 s{S_t0}, s{S_t0}, s{S_t1}"); I(f"s_add_u32 s{S_t0}, s{S_t0}, {GA_OFF}")
            I(f"buffer_load_dwordx4 {vr(H_G)}, v{V_L16}, {srd(S_WS)}, s{S_t0} offen sc1", tag="gz")
        S.aft(24, gget)
        S.aft(idx[(13, 0, 1)], lambda: e.wait(vm="gz"))
    else:
        def gget():
            t = U("t"); d_read("G", t); d_check("G", t)
            I(f"s_lshl_b32 s{S_t0}, s{S_w}, 8"); I(f"s_add_u32 s{S_t0}, s{S_t0}, {GB_LDS}")
            I(f"v_and_b32 v1, {31 if M else 15}, v0")
            I(f"v_lshl_add_u32 v1, v1, 3, s{S_t0}")
            I(f"ds_read_b64 {vr(H_G,2)}, v1", tag="gz")
            if not M: I(f"ds_read_b64 {vr(H_G+2,2)}, v1 offset:128", tag="gz")
        S.aft(idx[(12, 0, 1)], gget)
        S.aft(idx[(13, 0, 1)], lambda: e.wait(lg="gz"))
    for tau in range(4):
        k = idx[(13, tau, 1)]
        S.aft(k, lambda k=k, tau=tau: S.add(k + 3, idx[(oo[0], tau, 0)] if tau < 3 else n, scale(tau, H_G + 1)))
    late_flags = []
    for tau in range(3):
        k = idx[(oo[-1], tau, 1)]
        S.aft(k, lambda k=k, tau=tau: S.add(k + 3, k + 8, send(tau)))
        kf = k + 7 + OPT["pfd"]
        if kf <= n - (1 if OPT["crx"] else OPT["D2"] + 14): S.aft(kf, lambda tau=tau: pflag(tau))
        else: late_flags.append(tau)
    if OPT["crx"]:
        assert LD >= 2
        S.aft(idx[(oo[0], 0, 0)], lambda: I("s_barrier"))
    else: S.aft(n - OPT["D2"], lambda: (e.wait(lg=f"w{n-1}"), [pflag(t) for t in late_flags[:-1]], poll_load()))
    S.aft(idx[(8, 0, 0)], lambda: stamp("h_late"))
    S.aft(idx[(oo[0], 0, 0)], lambda: stamp("h_o"))
    S.aft(idx[(LD, 3, 0)], lambda: stamp("h_own"))
    S.run(OPT["side2"])
    if OPT["crx"]:
        for t in late_flags: pflag(t)
        O = H_ACC + 48
        I(f"v_add_u32 v1, s{S_m0b}, v{V_L16}")
        for k in range(8): I(f"v_pk_add_f32 {vr(O+2*k,2)}, {vr(O+2*k,2)}, {vr(H_ACC+2*k,2)}")
        for j in range(4): I(f"ds_write_b128 v1, {vr(O+4*j)} offset:{j*1024}")
        I("s_waitcnt lgkmcnt(0)")
        stamp("h_sum")
        I("s_barrier")
        finish()
        return
    out_addr()
    for t in late_flags[-1:]: pflag(t)
    O = H_ACC + 48
    for k in range(8): I(f"v_pk_add_f32 {vr(O+2*k,2)}, {vr(O+2*k,2)}, {vr(H_ACC+2*k,2)}")
    for tau in range(3):
        poll_check(1024 << tau)
        stamp(f"h_r{tau}")
        if tau == 2: stamp("h_rcv")
        for j in range(2):
            I(f"buffer_load_dwordx4 {vr(24+tau*8+j*4)}, v{V_L16}, {srd(S_WS)}, s{S_GIN} offen offset:{j*1024} sc1", tag=f"r{tau}")
        if tau < 2: I(f"s_add_u32 s{S_GIN}, s{S_GIN}, 8192")
    for tau in range(3):
        e.wait(vm=f"r{tau}")
        b = H_ACC + 16
        for k in range(8):
            I(f"v_lshlrev_b32 v{b+2*k}, 16, v{24+tau*8+k}")
            I(f"v_and_b32 v{b+2*k+1}, 0xffff0000, v{24+tau*8+k}")
        for k in range(8): I(f"v_pk_add_f32 {vr(O+2*k,2)}, {vr(O+2*k,2)}, {vr(b+2*k,2)}")
    for k in range(8): I(f"v_pk_mul_f32 {vr(O+2*k,2)}, {vr(O+2*k,2)}, {vr(H_G + (0 if M else 2*(k>>2)),2)} op_sel_hi:[1,0]")
    stamp("h_sum")
    for f in pack(3): f()
    for j in range(2):
        sw = "v_permlane32_swap_b32" if M else "v_permlane16_swap_b32"
        I(f"{sw} v{O+4*j}, v{O+4*j+2}")
        I(f"{sw} v{O+4*j+1}, v{O+4*j+3}")
        I(f"buffer_store_dwordx4 {vr(O+4*j)}, v{4 if M else 4+j}, {srd(S_OUT)}, s{S_COL} offen offset:{j*(32 if M else 1024)}" + ["", " nt", " sc0", " sc1"][OPT["of"]])
    finish()

h_prog(False)
e.label("L_h_att")
h_prog(True)

e.label("L_C")
role[0] = "C"
reset()
C_WR = 4; C_XR = 12; C_EXW = 3; C_HA = 18; C_HX = (24, 56, 60); C_HACC = 28; C_ACC = 64
I("s_setprio 2")
if OPT["codepf"] and not OPT["pfe"]:
    I("s_cmp_lt_u32 s2, 16")
    I("s_cbranch_scc0 L_nopf")
    e.cond_begin()
    I("s_getpc_b64 s[56:57]")
    e.label("L_pc")
    I(f"s_sub_u32 s56, s56, L_pc-{NAME}_kernel")
    I("s_subb_u32 s57, s57, 0")
    I(f"s_lshr_b32 s{S_t0}, s2, 3")
    I(f"s_lshl_b32 s{S_t0}, s{S_t0}, 15")
    I(f"v_lshlrev_b32 v2, 7, v0")
    I(f"v_lshl_add_u32 v2, v1, 13, v2")
    I(f"v_add_u32 v2, s{S_t0}, v2")
    I(f"v_min_u32 v2, L_end-{NAME}_kernel, v2")
    I(f"global_load_dword v127, v2, s[56:57]")
    e.cond_end()
    e.label("L_nopf")
late_scalars()
def ev_init():
    I("v_lshlrev_b32 v2, 2, v0")
    I(f"v_add_u32 v2, {EV_LDS}, v2")
    I("v_mov_b32 v1, 1")
    I("ds_write_b32 v2, v1", tag="exw0")
I("v_lshrrev_b32 v32, 4, v0")
I("v_and_b32 v33, 15, v0")
I("v_bfe_u32 v34, v0, 2, 2")
I("v_and_b32 v35, 3, v0")
after_karg()
common_ptrs()
mk_srd(S_OUT, 18, 2048 * 1024)
if not OPT["hinit"]:
    I(f"s_cmp_eq_u32 s{S_w}, 0")
    I("s_cbranch_scc0 L_c_noinit")
    e.cond_begin()
    for k in range(4):
        I(f"s_mov_b32 s{S_KG+k}, 0")
        I(f"s_add_u32 s{S_t0}, s{S_MYIN}, {k*128}")
        I(f"s_atomic_swap s{S_KG+k}, s[{S_INB}:{S_INB+1}], s{S_t0} glc")
    e.cond_end()
    e.label("L_c_noinit")
I(f"s_cmp_ge_u32 s{S_jj}, 2")
I("s_cbranch_scc1 L_c_att")

def c_prog(att):
    reset()
    UL = units(att)
    slot_of = {un: phys(att, k) for k, un in enumerate(UL)}
    subs = [un for un in UL if un[0] == "g"]
    if OPT["spf"] == 2 and OPT["tearly"] and OPT["th"] < 0: vtouch(att)
    n16 = att or not M
    if not (att and OPT["n9"]):
        ev_init(); I("s_waitcnt lgkmcnt(0)"); reset()
    if n16:
        for p in range(2):
            I(f"v_xor_b32 v38, {8 if p == 0 else 0}, v33")
            I("v_and_b32 v39, 8, v38")
            I("v_add_u32 v39, v39, v38")
            I("v_lshlrev_b32 v39, 7, v39")
            I("v_lshrrev_b32 v38, 1, v38")
            I("v_xor_b32 v38, v38, v32")
            I("v_lshl_add_u32 v39, v38, 4, v39")
            I(f"v_add_u32 v39, s{S_m0b}, v39")
            I(f"v_add_u32 v{C_XR+2*p+p}, {p*1024}, v39")
            I(f"v_xor_b32 v{C_XR+2*p+1-p}, 64, v{C_XR+2*p+p}")
        I("v_lshl_add_u32 v38, v32, 3, v34")
        I("v_lshlrev_b32 v38, 7, v38")
        I("v_lshl_add_u32 v38, v35, 3, v38")
        I("v_lshrrev_b32 v39, 1, v34")
        I("v_and_b32 v40, 1, v32")
        I("v_lshl_or_b32 v39, v40, 1, v39")
        I(f"v_xor_b32 v41, {'s'+str(S_w) if att else 0}, v39")
        for t in range(4):
            I(f"v_xor_b32 v40, {t}, v41")
            I(f"v_lshl_add_u32 v{C_WR+t}, v40, 5, v38")
            I(f"v_add_u32 v{C_WR+4+t}, 0x10000, v{C_WR+t}")
        if att:
            I("v_lshrrev_b32 v38, 1, v33")
            I("v_xor_b32 v38, v38, v32")
            I("v_lshlrev_b32 v38, 4, v38")
            I("v_lshl_add_u32 v38, v33, 7, v38")
            I(f"v_add_u32 v{C_HA}, {HALO_LDS}, v38")
            I(f"v_xor_b32 v{C_HA+1}, 64, v{C_HA}")
            I(f"s_mul_i32 s{S_t0}, s{S_w}, 5120")
            I(f"s_add_u32 s{S_t0}, s{S_t0}, {EXCH_LDS+4096}")
            I(f"v_add_u32 v{C_EXW}, s{S_t0}, v{V_L16}")
    else:
        I("v_and_b32 v40, 1, v32")
        I("v_lshlrev_b32 v38, 3, v40")
        I("v_xor_b32 v38, 8, v38")
        I("v_xor_b32 v38, v38, v33")
        I("v_and_b32 v39, 8, v38")
        I("v_add_u32 v39, v39, v38")
        I("v_lshl_add_u32 v39, v40, 3, v39")
        I("v_lshlrev_b32 v39, 7, v39")
        I("v_lshrrev_b32 v38, 1, v38")
        I("v_lshlrev_b32 v41, 2, v40")
        I("v_xor_b32 v38, v38, v41")
        I("v_lshrrev_b32 v41, 1, v32")
        I("v_xor_b32 v38, v38, v41")
        I("v_lshl_add_u32 v39, v38, 4, v39")
        I(f"v_add_u32 v{C_XR}, s{S_m0b}, v39")
        for k in range(1, 4): I(f"v_xor_b32 v{C_XR+k}, {32*k}, v{C_XR}")
        I("v_lshl_add_u32 v38, v41, 3, v34")
        I("v_lshlrev_b32 v38, 7, v38")
        I("v_lshl_add_u32 v38, v35, 3, v38")
        I("v_lshl_add_u32 v38, v40, 5, v38")
        I("v_lshrrev_b32 v39, 1, v34")
        I(f"v_lshl_add_u32 v{C_WR}, v39, 6, v38")
        I(f"v_xor_b32 v{C_WR+1}, 64, v{C_WR}")
        for t in range(2): I(f"v_add_u32 v{C_WR+4+t}, 0x10000, v{C_WR+t}")
    if OPT["spf"] == 2 and not OPT["tearly"] and OPT["th"] < 0: vtouch(att)
    if OPT["spf"] == 1:
        P = 3072 if att else 3584; wp = 6 if att else 12
        I(f"s_lshl_b32 s{S_t0}, s{S_r}, 2"); I(f"s_add_u32 s{S_t0}, s{S_t0}, s{S_w}")
        I(f"s_mul_i32 s{S_t1}, s{S_t0}, {8*P}")
        I(f"s_mul_i32 s{S_t2}, s{S_q}, {256 if att else 896}"); I(f"s_add_u32 s{S_t1}, s{S_t1}, s{S_t2}")
        I(f"s_lshl_b32 s{S_t2}, s{S_j1}, 7"); I(f"s_add_u32 s{S_t2}, s{S_t2}, s{S_t1}")
        I(f"s_add_u32 s56, s{wp}, s{S_t2}"); I(f"s_addc_u32 s57, s{wp+1}, 0")
        for k in range(8): I(f"s_load_dword s{S_EV}, s[56:57], {k*P + (2048 if att else 512)}")
        if not att:
            I(f"s_mul_i32 s{S_t2}, s{S_j1}, {4*P}"); I(f"s_add_u32 s{S_t2}, s{S_t2}, s{S_t1}")
            I(f"s_add_u32 s56, s{wp}, s{S_t2}"); I(f"s_addc_u32 s57, s{wp+1}, 0")
            for k in range(4): I(f"s_load_dword s{S_EV}, s[56:57], {k*P + 768}")
        I(f"s_lshl_b32 s{S_t0}, s{S_t0}, 2"); I(f"s_add_u32 s{S_t0}, s{S_t0}, s{S_jj}")
        I(f"s_mul_i32 s{S_t1}, s{S_t0}, 1792"); I(f"s_mul_i32 s{S_t2}, s{S_q}, {448*1024}"); I(f"s_add_u32 s{S_t1}, s{S_t1}, s{S_t2}")
        I(f"s_add_u32 s56, s14, s{S_t1}"); I("s_addc_u32 s57, s15, 0")
        for k in range(14): I(f"s_load_dword s{S_EV}, s[56:57], {k*128}")
        I(f"s_lshl_b32 s{S_t1}, s{S_t0}, 9"); I(f"s_lshl_b32 s{S_t2}, s{S_q}, 17"); I(f"s_add_u32 s{S_t1}, s{S_t1}, s{S_t2}")
        I(f"s_add_u32 s56, s8, s{S_t1}"); I("s_addc_u32 s57, s9, 0")
        for k in range(4): I(f"s_load_dword s{S_EV}, s[56:57], {k*128}")
        I("s_waitcnt lgkmcnt(0)")
    if not OPT["hinit"]:
        l = U("ci")
        I(f"s_cmp_eq_u32 s{S_w}, 0"); I(f"s_cbranch_scc0 {l}")
        e.cond_begin()
        I(f"s_mov_b32 s{S_t1}, 1")
        I("s_waitcnt lgkmcnt(0)")
        I(f"s_atomic_add s{S_t1}, s[{S_DBG}:{S_DBG+1}], 0")
        e.cond_end(); e.label(l)
    if EG and not att:
        I("v_lshlrev_b32 v18, 4, v32"); I(f"v_add_u32 v18, {GW_LDS}, v18")
    I("s_waitcnt vmcnt(0)")
    stamp("c_go")
    def xfr(p, s): return ar((p * 16 + s) * 4)
    def xf32(s16): return ar(s16 * 4)
    def acc(c, T, p=0):
        base = C_ACC + 32 * (c & 1)
        if att: return base + (T * 2 + p) * 4
        if M: return base + T * 16
        return base + (((T >> 1) * 2 + p) * 2 + (T & 1)) * 4
    def xread(dst, areg, slot, tmp, k):
        base = slot * SLOT
        if base >= 65536:
            I(f"v_add_u32 v{tmp}, {base & ~0xffff}, v{areg}"); areg = tmp
        I(f"ds_read_b128 {dst}, v{areg} offset:{base & 0xffff}", tag=f"w{k}")
    steps = []; nh = [0]
    for i, un in enumerate(subs):
        _, c, u = un; slot = slot_of[un]
        for j in range(16):
            h = j >> 3
            if n16:
                ks = (j >> 1) & 3; T = 2 * h + (j & 1); s = 4 * u + ks; zero = (u == 0 and ks == 0); ta = T
                if c == 3: s = 4 * (u + 2 * h) + ks; ta = j & 1; zero = (u == 0 and h == 0 and ks == 0)
                halo = att and T == 0 and c != 1
                st = dict(rd=(C_WR + (4 if slot >= 4 else 0) + T, (slot & 3) * SLOT + ks * 4096, 512))
                def mf(W, st, s=s, T=ta, zero=zero, c=c, halo=halo):
                    out = []
                    for p in range(2):
                        a, b = (xfr(p, s), W) if (att and c == 2) else (W, xfr(p, s))
                        d = vr(acc(c, T, p))
                        out.append(f"{MF} {d}, {a}, {b}, {'0' if zero else d}")
                    if "gate" in st:
                        gs, gp = st["gate"]
                        out.append(f"{MF} {vr(24+4*gp)}, {vr(56+4*(gs&1))}, {xfr(gp,gs)}, {'0' if gs == 0 else vr(24+4*gp)}")
                    if halo:
                        a, b = (vr(st["hreg"]), W) if c == 2 else (W, vr(st["hreg"]))
                        out.append(f"{MF} {vr(C_HACC)}, {a}, {b}, {'0' if zero else vr(C_HACC)}")
                    return out
                if EG and not att and c == 1 and j % 4 >= 2: st["gate"] = (4 * u + (j >> 2), j & 1)
                def post(k, st=st, s=s, halo=halo, j=j, c=c, u=u, ks=ks):
                    if EG and not att and c == 1 and j % 4 == 2:
                        if j == 2:
                            I(f"s_add_u32 s{S_t0}, s{S_rot}, {u}"); I(f"s_and_b32 s{S_t0}, s{S_t0}, 3"); I(f"s_lshl_b32 s{S_t0}, s{S_t0}, 8")
                            I(f"v_add_u32 v19, s{S_t0}, v18")
                        I(f"ds_read_b128 {vr(56+4*((j>>2)&1))}, v19 offset:{(j>>2)*64}", tag=f"w{k}")
                    if c == 0 and j < 8 and j % 2 == 0:
                        for p in range(2): xread(xfr(p, s), C_XR + 2 * p + (ks & 1), slot_of[("x", u, ks >> 1)], 1 + p, k)
                    if att and c == 2 and u == 2 and j == 11 and OPT["u19"]: d_read("Lv3", "chk11")
                    if halo:
                        st["hreg"] = C_HX[nh[0] % 3]; nh[0] += 1
                        I(f"ds_read_b128 {vr(st['hreg'])}, v{C_HA+(s&1)} offset:{(s>>1)*2048}", tag=f"w{k}")
            else:
                kk = j & 7
                if c < 3: s16 = 8 * u + kk; ta = h; zero = (u == 0 and kk == 0)
                else: s16 = 8 * (u + 2 * h) + kk; ta = 0; zero = (u == 0 and j == 0)
                st = dict(rd=(C_WR + (4 if slot >= 4 else 0) + h, (slot & 3) * SLOT + kk * 2048, 512))
                d = vr(acc(c, ta), 16)
                def mf(W, st, s16=s16, d=d, zero=zero): return [f"{M32} {d}, {W}, {xf32(s16)}, {'0' if zero else d}"]
                def post(k, s16=s16, j=j, c=c, u=u, kk=kk):
                    if c == 0 and j < 8: xread(xf32(s16), C_XR + (kk & 3), slot_of[("x", u, kk >> 2)], 1 + (kk & 1), k)
            st["mf"] = mf; st["post"] = post
            if j == 0:
                def pre(i=i):
                    stamp(f"t{i}")
                    if att and i == 8:
                        assert e.lgq[0][0].count("exw0") == 5 + OPT["n9"]
                        e.wait(lg="exw0")
                    if att and slot_of[subs[i]] >= 8:
                        for t in range(4): I(f"v_add_u32 v{C_WR+4+t}, 0x10000, v{C_WR+4+t}")
                    if att and i and slot_of[subs[i-1]] >= 8:
                        for t in range(4): I(f"v_subrev_u32 v{C_WR+4+t}, 0x10000, v{C_WR+4+t}")
                    if not att and i - OPT["ackb"] in (0, 1):
                        assert e.vmq[0][0].count(f"st{i-OPT['ackb']}") == 4
                        e.wait(vm=f"st{i-OPT['ackb']}")
                        if EG and i - OPT["ackb"] == 1: e.wait(vm="stg")
                    if i < (9 if att else 14): I("s_barrier")
                    if att and i == 11 and OPT["u19"]: d_check("Lv3", "chk11")
                    stamp(f"s{i}")
                    if att and M and i == 8:
                        for t in range(8): I(f"v_xor_b32 v{C_WR+t}, v19, v{C_WR+t}")
                st["pre"] = pre
            steps.append(st)
    if att: S = Stream(steps, OPT["D"], [32, 36, 40, 44, 48, 52, 20])
    else: S = Stream(steps, OPT["DF"], [32, 36, 40, 44, 48, 52, 20])
    DD = S.D
    def packn(a, n_): return [lambda k=k: I(f"v_cvt_pk_bf16_f32 v{a+k}, v{a+2*k}, v{a+2*k+1}") for k in range(n_)]
    def epi(c, h):
        F = []
        if att:
            for t in (2 * h, 2 * h + 1):
                a = acc(c, t, 0)
                F += packn(a, 4)
                def wr(t=t, a=a):
                    I(f"v_xor_b32 v1, {t*1024}, v{C_EXW}")
                    if c == 1: I(f"v_add_u32 v1, {(QSLOT*SLOT - EXCH_LDS - 4096) & 0xffffffff}, v1")
                    I(f"ds_write_b128 v1, {vr(a)}", tag=f"exw{c}")
                F.append(wr)
            if h == 0 and c != 1:
                def hw():
                    I(f"v_cvt_pk_bf16_f32 v{C_HACC}, v{C_HACC}, v{C_HACC+1}")
                    I(f"v_cvt_pk_bf16_f32 v{C_HACC+1}, v{C_HACC+2}, v{C_HACC+3}")
                    I(f"s_add_u32 s{S_t0}, s{S_m0b}, 4096")
                    I(f"v_subrev_u32 v1, s{S_t0}, v{C_EXW}")
                    I(f"ds_write2_b64 v1, {vr(C_HACC,2)}, {vr(C_HACC,2)} offset0:0 offset1:1", tag=f"exw{c}")
                F.append(hw)
                if c == 0 and OPT["n9"]: F.append(ev_init)
        else:
            a = acc(c, h) if M else acc(c, 2 * h, 0)
            F += packn(a, 8)
            def so():
                I(f"s_lshr_b32 s{S_GIN}, s{S_J32}, {2 if c < 3 else 3}")
                I(f"s_add_u32 s{S_GIN}, s{S_GIN}, s{S_A2}"); I(f"s_add_u32 s{S_GIN}, s{S_GIN}, {(4*c+h)*8192}")
            F.append(so)
            for p in range(2):
                F += [lambda k=k: I(f"v_pk_max_i16 v{k}, v{k}, 0") for k in range(a + 4 * p, a + 4 * p + 4)]
                F.append(cost(9, lambda p=p: I(f"buffer_store_dwordx4 {vr(a+4*p)}, v{V_L16}, {srd(S_WS)}, s{S_GIN} offen offset:{p*1024} sc1", tag=f"st{c}")))
        return F
    n = len(steps)
    for c, i, reuse in ((0, 6, 8), (1, 7, 12), (2, 11, 99)):
        for h in range(2):
            k = 16 * i + 8 * h + 7
            if k == n - 1: continue
            dl = min(16 * reuse + (8 * h if reuse == 8 else 0), n)
            if att and c < 2: dl = 16 * 8 - DD - 3 if c == 0 else OPT["kq"] - 1
            S.aft(k, lambda k=k, c=c, h=h, dl=dl: S.add(max(k + (2 if n16 else 4), 16 * 7 - DD + 1 if att else 0), dl, epi(c, h)))
    if att:
        def qbar():
            assert e.lgq[0][0].count("exw1") == 4
            e.wait(lg="exw1"); I("s_barrier")
        assert OPT["kq"] < 16 * 9 - DD
        S.aft(OPT["kq"], qbar)
    if EG and not att:
        def gst():
            I(f"s_lshl_b32 s{S_t0}, s{S_r}, 2"); I(f"s_add_u32 s{S_t0}, s{S_t0}, s{S_q}"); I(f"s_lshl_b32 s{S_t0}, s{S_t0}, 12")
            I(f"s_lshr_b32 s{S_t1}, s{S_m0b}, 2"); I(f"s_add_u32 s{S_t0}, s{S_t0}, s{S_t1}"); I(f"s_add_u32 s{S_t0}, s{S_t0}, {GA_OFF}")
            I(f"s_lshl_b32 s{S_t1}, s{S_j1}, 28"); I(f"s_add_u32 s{S_t0}, s{S_t0}, s{S_t1}")
            I(f"buffer_store_dwordx4 {vr(56)}, v{V_L16}, {srd(S_WS)}, s{S_t0} offen sc1", tag="stg")
        S.aft(16 * 8, lambda: S.add(0, 16 * (OPT["ackb"] + 1) - 12, [lambda t=t: I(t) for t in gate_math(24, 28, 56, 3)] + [gst]))
    if STG:
        I(f"s_mov_b32 s{S_POLL}, 0")
        S.aft(n - 24, poll_load)
    S.run(OPT["side"] if att else OPT["sidef"])
    stamp("c_end")
    if not att: I("s_barrier")
    for f in (epi(2, 1) if att else epi(3, 0)): f()
    if att:
        e.wait(lg="exw2")
        I("s_barrier")
    if OPT["cprio"] != 2: I(f"s_setprio {OPT['cprio']}")
    if STG:
        I("s_setprio 3")
        def pair(lam, slot):
            I(f"s_add_u32 m0, s{S_m0b}, {slot*SLOT}")
            a2_soff(lam, S_SOFF)
            for i in range(4):
                if i == 2: I(f"s_add_u32 s{S_SOFF}, s{S_SOFF}, {8192-2048}")
                I(f"buffer_load_dwordx4 v{V_L16}, {srd(S_WS)}, s{S_SOFF} offen offset:{i*1024} sc1 lds")
        B = lambda g: b2_unit(g, 4, False)
        b2_voffs(4)
        if att: I("s_barrier")
        else:
            assert e.vmq[0][0].count("st2") == 4
            e.wait(vm="st2"); push_group(ownbit(2), (0, 1, 2, 3))
        poll_check(0x22)
        pair(4, 6); dsig("S1")
        B(3); pair(6, 7); dsig("S2")
        if not att:
            e.wait(vm="st3"); push_group(ownbit(3), (0, 1, 2, 3))
        poll_load()
        B(4); poll_check(0x44); pair(8, 8); dsig("S3"); poll_load()
        B(5)
        I(f"s_lshr_b32 s{S_t1}, s{S_m0b}, 2"); I(f"s_add_u32 m0, s{S_t1}, {GB_LDS}")
        I(f"s_lshl_b32 s{S_t0}, s{S_r}, 2"); I(f"s_add_u32 s{S_t0}, s{S_t0}, s{S_q}"); I(f"s_lshl_b32 s{S_t0}, s{S_t0}, 12")
        I(f"s_add_u32 s{S_t0}, s{S_t0}, s{S_t1}"); I(f"s_add_u32 s{S_t0}, s{S_t0}, {GA_OFF}")
        I(f"buffer_load_dwordx4 v{V_L16}, {srd(S_WS)}, s{S_t0} offen sc1 lds")
        stamp("c_pa")
        I("s_barrier")
        pair(10, 0); dsig("S4"); B(6)
        poll_check(0x88); pair(12, 1); dsig("S5"); poll_load()
        stamp("c_pb")
        I("s_barrier")
        poll_load()
        B(8); B(7)
        if att:
            I(f"s_xor_b32 s{S_THR}, s{S_jj}, 1"); I(f"s_lshl_b32 s{S_THR}, 64, s{S_THR}")
            poll_check(f"s{S_THR}")
        else:
            poll_check(0x300); pair(16, 2)
        pair(14, 3); dsig("S6")
    else:
        rest = [3, 4, 5, 6, 8, 7]
        def cunit():
            g = rest.pop(0)
            if att and g == 8 and not OPT["vb2"]:
                t = U("t"); d_read("VD", t); d_check("VD", t)
            b2_unit(g, 4, g in SIGG)
        if not att:
            assert e.vmq[0][0].count("st2") == 4
            e.wait(vm="st2"); push_group(ownbit(2), (0, 1, 2, 3))
            stamp("c_f2")
            b2_voffs(4)
            if OPT["lowp"]: I("s_setprio 0")
            cunit(); cunit()
        if EG:
            if att:
                b2_voffs(4)
                if OPT["vb2"]: I("s_barrier")
                if OPT["lowp"]: I("s_setprio 0")
                cunit(); cunit()
            else:
                e.wait(vm="st3"); push_group(ownbit(3), (0, 1, 2, 3))
        else:
            I("s_setprio 2")
            stamp("c_g0")
            I("v_lshrrev_b32 v9, 4, v0")
            if n16:
                I("v_lshlrev_b32 v8, 4, v9")
            else:
                I("v_lshrrev_b32 v8, 5, v0"); I("v_lshlrev_b32 v8, 4, v8")
                I("v_xor_b32 v9, v9, v0"); I("v_and_b32 v9, 1, v9")
                I("v_cmp_eq_u32 vcc, 0, v9")
            NG = 16 if n16 else 32; per = NG // 4
            RB = [32 + 4 * k for k in range(8)]
            def gread(s_):
                if s_ % per == 0:
                    I(f"s_add_u32 s{S_t0}, s{S_rot}, {s_//per}"); I(f"s_and_b32 s{S_t0}, s{S_t0}, 3"); I(f"s_lshl_b32 s{S_t0}, s{S_t0}, 8")
                    I(f"s_add_u32 s{S_t0}, s{S_t0}, {GW_LDS}")
                    I(f"v_add_u32 v10, s{S_t0}, v8")
                    if not n16:
                        I(f"v_mov_b32 v11, {ZERO_LDS}"); I("v_cndmask_b32 v10, v11, v10, vcc")
                I(f"ds_read_b128 {vr(RB[s_%8])}, v10 offset:{(s_%per)*(64 if n16 else 32)}", tag=f"g{s_}")
            for s_ in range(6): gread(s_)
            if att:
                b2_voffs(4)
                I("s_barrier")
                cunit()
            for s_ in range(NG):
                e.wait(lg=f"g{s_}")
                if n16:
                    for p in range(2): I(f"{MF} {vr(64+4*p)}, {vr(RB[s_%8])}, {xfr(p,s_)}, {'0' if s_ == 0 else vr(64+4*p)}")
                else:
                    I(f"{MF} {vr(64)}, {vr(RB[s_%8])}, {xf32(s_)}, {'0' if s_ == 0 else vr(64)}")
                if s_ + 6 < NG: gread(s_ + 6)
                if s_ == NG // 2 and rest: cunit()
            if not att:
                e.wait(vm="st3"); push_group(ownbit(3), (0, 1, 2, 3))
                stamp("c_f3")
            cunit()
            z1 = 68 if n16 else 65; G = 72
            T = gate_math(64, z1, G, 1)
            for t in T: I(t)
            I(f"s_lshl_b32 s{S_t0}, s{S_w}, 8"); I(f"s_add_u32 s{S_t0}, s{S_t0}, {GB_LDS}")
            I(f"v_lshl_add_u32 v1, v0, 3, s{S_t0}")
            I("s_mov_b64 exec, 0xffff")
            I(f"ds_write_b64 v1, {vr(G,2)}", tag="gz")
            I(f"ds_write_b64 v1, {vr(G+2,2)} offset:128", tag="gz")
            I("s_mov_b64 exec, -1")
            e.wait(lg="gz")
            if OPT["lowp"]: I("s_setprio 0")
            dsig("G")
        stamp("c_g1")
        while rest:
            throttle(); cunit()
    if OPT["crx"]:
        I("s_setprio 3")
        I(f"s_mov_b32 s{S_POLL}, 0")
        poll_check(2)
        I(f"s_lshl_b32 s{S_t0}, s{S_r}, 2"); I(f"s_add_u32 s{S_t0}, s{S_t0}, s{S_q}"); I(f"s_lshl_b32 s{S_t0}, s{S_t0}, 12")
        I(f"s_lshr_b32 s{S_t1}, s{S_m0b}, 2"); I(f"s_add_u32 s{S_t0}, s{S_t0}, s{S_t1}"); I(f"s_add_u32 s{S_t0}, s{S_t0}, {GA_OFF}")
        I(f"buffer_load_dwordx4 {vr(20)}, v{V_L16}, {srd(S_WS)}, s{S_t0} offen sc1", tag="gz")
        pb_setup(); out_addr()
        I(f"v_add_u32 v1, s{S_m0b}, v{V_L16}")
        I("s_barrier")
        O = 64
        for tau in range(3):
            poll_check(1024 << tau)
            stamp(f"c_r{tau}")
            for j in range(2):
                I(f"buffer_load_dwordx4 {vr(24+tau*8+j*4)}, v{V_L16}, {srd(S_WS)}, s{S_GIN} offen offset:{j*1024} sc1", tag=f"r{tau}")
            if tau < 2: I(f"s_add_u32 s{S_GIN}, s{S_GIN}, 8192")
        def unpack(tau, b):
            e.wait(vm=f"r{tau}")
            for k in range(8):
                I(f"v_lshlrev_b32 v{b+2*k}, 16, v{24+tau*8+k}")
                I(f"v_and_b32 v{b+2*k+1}, 0xffff0000, v{24+tau*8+k}")
        def addv(d, b):
            for k in range(16): I(f"v_add_f32 v{d+k}, v{d+k}, v{b+k}")
        unpack(0, 80); unpack(1, 96); addv(80, 96)
        I("s_barrier")
        for j in range(4): I(f"ds_read_b128 {vr(O+4*j)}, v1 offset:{j*1024}", tag="own")
        unpack(2, 96)
        for k in range(8): I(f"v_pk_add_f32 {vr(80+2*k,2)}, {vr(80+2*k,2)}, {vr(96+2*k,2)}")
        e.wait(lg="own")
        for k in range(8): I(f"v_pk_add_f32 {vr(O+2*k,2)}, {vr(O+2*k,2)}, {vr(80+2*k,2)}")
        for k in range(8): I(f"v_pk_mul_f32 {vr(O+2*k,2)}, {vr(O+2*k,2)}, {vr(20+2*(k>>2),2)} op_sel_hi:[1,0]")
        stamp("c_sum")
        for k in range(8): I(f"v_cvt_pk_bf16_f32 v{O+k}, v{O+2*k}, v{O+2*k+1}")
        for j in range(2):
            I(f"v_permlane16_swap_b32 v{O+4*j}, v{O+4*j+2}")
            I(f"v_permlane16_swap_b32 v{O+4*j+1}, v{O+4*j+3}")
            I(f"buffer_store_dwordx4 {vr(O+4*j)}, v{4+j}, {srd(S_OUT)}, s{S_COL} offen offset:{j*1024}")
        finish()
        return
    if OPT["dummy"]:
        I(f"s_lshl_b32 s{S_t0}, s2, 2"); I(f"s_add_u32 s{S_t0}, s{S_t0}, s{S_w}"); I(f"s_mul_i32 s{S_t0}, s{S_t0}, 9216"); I(f"s_add_u32 s{S_t0}, s{S_t0}, {20<<20}")
        for k in range(9):
            I(f"buffer_store_dwordx4 {vr(64)}, v{V_L16}, {srd(S_WS)}, s{S_t0 if OPT['dummy'] == 1 else S_WS+2} offen")
            I(f"s_add_u32 s{S_t0}, s{S_t0}, 1024")
    I("s_waitcnt vmcnt(0) lgkmcnt(0)")
    finish()

c_prog(False)
e.label("L_c_att")
c_prog(True)

e.label("L_end")
I("s_endpgm")
e.raw('.section .rodata,"a"')
e.raw(".p2align 6")
e.raw(f".amdhsa_kernel {NAME}_kernel")
e.raw("  .amdhsa_next_free_vgpr 256")
e.raw("  .amdhsa_next_free_sgpr 102")
e.raw("  .amdhsa_accum_offset 128")
e.raw("  .amdhsa_group_segment_fixed_size 0")
e.raw("  .amdhsa_kernarg_size 80")
e.raw("  .amdhsa_user_sgpr_count 2")
e.raw("  .amdhsa_user_sgpr_kernarg_segment_ptr 1")
e.raw("  .amdhsa_system_sgpr_workgroup_id_x 1")
e.raw(".end_amdhsa_kernel")
sys.stdout.write(e.text())
sys.stderr.write(f"instructions {e.nins} nop-states {e.nops}\n")
```

```python
import sys, struct
from emit import Em

NAME = "gated_mix__sliding_local_dilated__dense_activation_relu__prompt"
OPT = dict(padt=6000, padk=-1, padr=0, stamp=0, D=4, DF=4, D2=5, codepf=1, spin=400000, lround=0, side=2, sidef=2, side2=3,
           ld=2, thr=5, pre=5, pfd=18, ackb=10, cprio=2, dummy=0, sch=1, tm=0, qb=0, rotq=2, spf=2, tearly=0, tB=0, tfull=0, th=6, gap=1, kc=30, kh=52, ko=64, lowp=1, tatt=0, m32=0, fp=8, u19=0, tha=6, of=0, eg=1, pfe=2, hinit=0, pb=9, n9=1, kq=135, vb2=1, pkm=1, stg=0, a47=2, crx=0, tw=0, lead=8, pba=50, pbb=66)
CST = ["s0", "s2", "s4", "s6", "s8", "s10", "s12", "c_end"]
HST = ["h_b0", "h_b7", "h_p2", "h_late", "h_o", "h_own", "h_rcv", "h_sum"]
for a in sys.argv[1:]:
    k, v = a.split("=")
    if k == "cst": CST = v.split(",")
    elif k == "hst": HST = v.split(",")
    else:
        assert k in OPT, k
        OPT[k] = int(v)
STAMP = OPT["stamp"]; M = OPT["m32"]; EG = OPT["eg"]
assert EG and not M
assert not OPT["u19"] and OPT["th"] >= 0
STG = OPT["stg"]
if STG: OPT["ld"] = 8; assert OPT["vb2"]
GA_OFF = (9 << 20) + (512 << 10)
def f2u(x): return struct.unpack("<I", struct.pack("<f", x))[0]

PART_OFF = 10 << 20
INB_OFF = 32 << 20
STAMP_OFF = 33 << 20
WS_BYTES = 36 << 20
SLOT = 16384
HALO_LDS = 7 * SLOT
EXCH_LDS = 8 * SLOT
EV_LDS = EXCH_LDS + 20480
ZERO_LDS = EV_LDS + 256
GW_LDS = EV_LDS + 1024
GB_LDS = EV_LDS + 2048
NEG = f2u(-1e30)

e = Em()
I = e.I
def vr(b, n=4): return f"v[{b}:{b+n-1}]"
def ar(b, n=4): return f"a[{b}:{b+n-1}]"
def srd(b): return f"s[{b}:{b+3}]"
MF = "v_mfma_f32_16x16x32_bf16"
M32 = "v_mfma_f32_32x32x16_bf16"

S_X, S_W, S_WS, S_OUT, S_W2, S_WO, S_GW = 24, 28, 32, 36, 40, 44, 48
S_INB = 52; S_DBG = 54
S_w, S_r, S_jj, S_rot, S_q, S_m0b, S_j1 = 60, 61, 62, 63, 64, 65, 66
S_t0, S_t1, S_t2 = 3, 67, 68
S_BUD = 69; S_EV = 70; S_SOFF = 71
S_POLL = 74; S_MYIN = 75; S_CEXP = 76; S_THR = 77; S_W4 = 79
S_KG = 80; S_WK = 84
S_COL = 88; S_A2 = 89; S_B2 = 90; S_BO = 91; S_PB = 92; S_J32 = 93; S_GIN = 94; S_P = 95
S_STAMP = 4
EVD = {}
def evd(name):
    if name not in EVD: EVD[name] = len(EVD)
    assert EVD[name] < 16
    return EVD[name] * 16
role = ["H"]
def stamp(name):
    L = CST if role[0] == "C" else HST
    if name == "end": idx = 8
    elif name in L: idx = L.index(name)
    else: return
    if STAMP == 2 and idx < 4:
        I(f"s_memtime s[{S_STAMP+2*idx}:{S_STAMP+2*idx+1}]"); I(f"s_memrealtime s[{S_STAMP+2*idx+8}:{S_STAMP+2*idx+9}]")
    elif STAMP == 3: I(f"s_memrealtime s[{S_STAMP+2*idx}:{S_STAMP+2*idx+1}]")
    elif STAMP: I(f"s_memtime s[{S_STAMP+2*idx}:{S_STAMP+2*idx+1}]")
uid = [0]
def U(p):
    uid[0] += 1
    return f"L_{p}{uid[0]}"
def reset():
    e.vmq = [[[], 0]]; e.lgq = [[[], 0]]; e.hist = []
V_L16 = 16; V_EVW = 17; V_CHK = 3
SLOW = []
def flush_slow():
    for l in SLOW: e.raw(l)
    SLOW.clear()
def spin_tail(lp, ok):
    return [f"    s_sub_u32 s{S_BUD}, s{S_BUD}, 1", f"    s_cbranch_scc0 {lp}", f"    s_mov_b32 s{S_BUD}, 0", f"    s_branch {ok}"]
def dsig(name):
    I(f"s_add_u32 m0, s{S_W4}, {EV_LDS + evd(name)}")
    I("s_mov_b64 exec, 1")
    I(f"buffer_load_dword v{V_L16}, {srd(S_WO)}, s{S_WO+2} offen lds", tag="dsig")
    I("s_mov_b64 exec, -1")
def d_read(name, tag): I(f"ds_read_b32 v{V_CHK}, v{V_EVW} offset:{evd(name)}", tag=tag)
def d_check(name, tag):
    ok = U("ok"); lp = U("sp")
    e.wait(lg=tag)
    I(f"v_cmp_ne_u32 vcc, 0, v{V_CHK}")
    I(f"s_cbranch_vccnz {lp}")
    e.label(ok)
    SLOW.extend([f"{lp}:", f"    ds_read_b32 v{V_CHK}, v{V_EVW} offset:{evd(name)}", "    s_waitcnt lgkmcnt(0)", f"    v_cmp_ne_u32 vcc, 0, v{V_CHK}",
                 f"    s_cbranch_vccz {ok}", "    s_sleep 1"] + spin_tail(lp, ok))
def throttle():
    n = OPT["thr"]
    I(f"s_waitcnt vmcnt({n})")
    for q in e.vmq: q[1] = max(q[1], len(q[0]) - n)
def poll_load():
    I(f"s_load_dword s{S_POLL}, s[{S_INB}:{S_INB+1}], s{S_MYIN} glc")
def poll_check(mask):
    ok = U("pk"); lp = U("pl")
    I(f"s_andn2_b32 s{S_EV}, {mask}, s{S_POLL}")
    I(f"s_cbranch_scc1 {lp}")
    e.label(ok)
    SLOW.extend([f"{lp}:", "    s_waitcnt lgkmcnt(0)", f"    s_andn2_b32 s{S_EV}, {mask}, s{S_POLL}", f"    s_cbranch_scc0 {ok}",
                 f"    s_load_dword s{S_POLL}, s[{S_INB}:{S_INB+1}], s{S_MYIN} glc"] + spin_tail(lp, ok))
def push_group(bit_fn, ds):
    bit_fn()
    for d in ds:
        I(f"s_xor_b32 s{S_t0}, s{S_MYIN}, {d*512}")
        I(f"s_atomic_or s{S_t2}, s[{S_INB}:{S_INB+1}], s{S_t0}")
def ownbit(b):
    def f():
        I(f"s_lshl_b32 s{S_t2}, s{S_jj}, 2"); I(f"s_lshl_b32 s{S_t2}, {1<<b}, s{S_t2}")
    return f
def mk_srd(b, p, nbytes):
    I(f"s_mov_b32 s{b}, s{p}")
    I(f"s_and_b32 s{b+1}, s{p+1}, 0xffff")
    I(f"s_mov_b32 s{b+2}, {nbytes}")
    I(f"s_mov_b32 s{b+3}, 0x20000")
def b2_voffs(dst):
    I("v_lshrrev_b32 v1, 3, v0")
    if M:
        I("v_bfe_u32 v2, v0, 4, 1")
        I("v_lshlrev_b32 v2, 2, v2")
    else:
        I("v_lshrrev_b32 v2, 4, v0")
        I("v_lshlrev_b32 v2, 1, v2")
    I(f"v_and_b32 v{dst}, 7, v0")
    I(f"v_xor_b32 v{dst}, v{dst}, v2")
    I(f"v_lshlrev_b32 v{dst}, 4, v{dst}")
    I(f"v_lshl_add_u32 v{dst}, v1, 10, v{dst}")
    for i in range(1, 4): I(f"v_add_u32 v{dst+i}, {i*7168}, v{dst}")
def late_scalars():
    I(f"s_lshl_b32 s{S_W4}, s{S_w}, 2")
    I(f"s_mov_b32 s{S_BUD}, {OPT['spin']}")
    I(f"s_and_b32 s{S_j1}, s{S_jj}, 1")
    I(f"s_lshl_b32 s{S_t0}, s{S_jj}, 8")
    I(f"s_lshr_b32 s{S_t1}, s{S_w}, 1")
    I(f"s_lshl_b32 s{S_t1}, s{S_t1}, 7")
    I(f"s_add_u32 s{S_t0}, s{S_t0}, s{S_t1}")
    I(f"s_and_b32 s{S_t1}, s{S_w}, 1")
    I(f"s_lshl_b32 s{S_t1}, s{S_t1}, 15")
    I(f"s_add_u32 s{S_t0}, s{S_t0}, s{S_t1}")
    I(f"s_mul_i32 s{S_B2}, s{S_q}, {14*32768}")
    I(f"s_add_u32 s{S_B2}, s{S_B2}, s{S_t0}")
    I(f"s_lshl_b32 s{S_BO}, s{S_q}, 17")
    I(f"s_add_u32 s{S_BO}, s{S_BO}, s{S_t0}")
    I(f"s_lshl_b32 s{S_J32}, s{S_j1}, 16")
    I(f"s_lshl_b32 s{S_t0}, s{S_r}, 2")
    I(f"s_add_u32 s{S_t0}, s{S_t0}, s{S_q}")
    I(f"s_mul_i32 s{S_A2}, s{S_t0}, {18*8192}")
    I(f"s_lshl_b32 s{S_t1}, s{S_w}, 11")
    I(f"s_add_u32 s{S_A2}, s{S_A2}, s{S_t1}")
    I(f"s_lshl_b32 s{S_MYIN}, s{S_t0}, 2")
    I(f"s_add_u32 s{S_MYIN}, s{S_MYIN}, s{S_jj}")
    I(f"s_lshl_b32 s{S_MYIN}, s{S_MYIN}, 2")
    I(f"s_add_u32 s{S_MYIN}, s{S_MYIN}, s{S_w}")
    I(f"s_lshl_b32 s{S_MYIN}, s{S_MYIN}, 7")
    I(f"v_lshlrev_b32 v{V_L16}, 4, v0")
    I(f"v_and_b32 v{V_EVW}, 3, v0")
    I(f"v_lshlrev_b32 v{V_EVW}, 2, v{V_EVW}")
    I(f"v_add_u32 v{V_EVW}, {EV_LDS}, v{V_EVW}")
def common_ptrs():
    I(f"s_add_u32 s{S_INB}, s22, {INB_OFF}")
    I(f"s_addc_u32 s{S_INB+1}, s23, 0")
    I(f"s_lshl_b32 s{S_t0}, s{S_r}, 4")
    I(f"s_add_u32 s{S_DBG}, s20, s{S_t0}")
    I(f"s_addc_u32 s{S_DBG+1}, s21, 0")
    mk_srd(S_WS, 22, WS_BYTES)
    mk_srd(S_W2, 14, 1792 * 1024)
    mk_srd(S_WO, 8, 512 * 1024)
def dma4(voff, srdb, tag):
    for i in range(4):
        I(f"buffer_load_dwordx4 v{voff+i}, {srd(srdb)}, s{S_SOFF} offen offset:{i*1024} lds", tag=tag)
def b2_unit(g, voff, sig=True):
    I(f"s_add_u32 m0, s{S_m0b}, {g*SLOT}")
    if g < 7: I(f"s_add_u32 s{S_SOFF}, s{S_B2}, {g*65536}")
    else:
        I(f"s_xor_b32 s{S_SOFF}, s{S_J32}, {((g-7)^1)*65536}")
        I(f"s_add_u32 s{S_SOFF}, s{S_SOFF}, s{S_BO}")
    dma4(voff, S_W2 if g < 7 else S_WO, f"b{g}")
    if sig: dsig(f"Lb{g}")
def a2_soff(lam, dst):
    if lam < 14: I(f"s_add_u32 s{dst}, s{S_A2}, {lam*8192}")
    else:
        I(f"s_lshr_b32 s{dst}, s{S_J32}, 2"); I(f"s_xor_b32 s{dst}, s{dst}, {((lam-14)^2)*8192}")
        I(f"s_add_u32 s{dst}, s{dst}, s{S_A2}"); I(f"s_add_u32 s{dst}, s{dst}, {14*8192}")
def after_karg():
    I("s_waitcnt lgkmcnt(0)")
    if STAMP:
        I("s_memrealtime s[100:101]" if STAMP == 3 else "s_memtime s[100:101]")
        I("s_mov_b32 s72, s96")
        I("s_mov_b32 s73, s98")
def finish():
    if STAMP:
        I("s_waitcnt vmcnt(0)")
        stamp("end")
        I("s_memrealtime s[22:23]")
        I("s_waitcnt lgkmcnt(0)")
        I(f"s_lshl_b32 s{S_t0}, s2, 3")
        I(f"s_add_u32 s{S_t0}, s{S_t0}, s{S_w}")
        if role[0] == "H": I(f"s_add_u32 s{S_t0}, s{S_t0}, 4")
        I(f"s_lshl_b32 s{S_t0}, s{S_t0}, 6")
        I(f"s_add_u32 s{S_t0}, s{S_t0}, {STAMP_OFF}")
        I(f"v_mov_b32 v2, s{S_t0}")
        for k in range(9): I(f"v_mov_b32 v{32+k}, s{S_STAMP+2*k}")
        I("v_mov_b32 v41, s73"); I("v_mov_b32 v42, s22"); I("v_mov_b32 v43, s72"); I("v_mov_b32 v44, s100")
        I(f"v_mov_b32 v45, s{S_BUD}"); I("v_mov_b32 v46, 0")
        I("s_mov_b64 exec, 1")
        for k in range(4): I(f"buffer_store_dwordx4 {vr(32+4*k)}, v2, {srd(S_WS)}, 0 offen offset:{16*k}")
    if STAMP >= 3:
        if OPT["padk"] >= 0 and (OPT["padr"] == 1) == (role[0] == "H"):
            I(f"s_sub_u32 s24, s{100 if OPT['padk'] == 9 else S_STAMP+2*OPT['padk']}, s{73 if STAMP == 3 else 72}")
            if STAMP == 4: I("s_lshr_b32 s24, s24, 4")
        else: I("s_mov_b32 s24, 0")
        I(f"s_add_u32 s24, s24, {OPT['padt']}")
        l = U("pad")
        e.label(l)
        I("s_memrealtime s[26:27]"); I("s_waitcnt lgkmcnt(0)"); I("s_sub_u32 s25, s26, s73"); I("s_cmp_lt_u32 s25, s24"); I(f"s_cbranch_scc1 {l}")
    I("s_endpgm")
    flush_slow()
def units(att):
    L = []
    for u in range(4): L += [("x", u, 0), ("x", u, 1), ("g", 0, u), ("g", 1, u)]
    L += [("g", 2, u) for u in range(4)]
    if not att: L += [("g", 3, 0), ("g", 3, 1)]
    return L
def phys(att, k):
    if not att: return (k - 14) % 9
    if OPT["n9"]: return {2: 0, 3: 8, 4: 9, 5: 1, 6: 2, 7: 3, 8: 4, 0: 5, 1: 6}[k % 9]
    i = (k - 13) % 8
    return 8 if i == 7 else i
QSLOT = 0
SIGG = (2, 3, 4, 6, 7)
CHKG = {2: 2, 3: 3, 4: 4, 5: 6, 6: 6, 8: 7, 7: 7}

class Stream:
    def __init__(self, steps, depth, ring):
        self.steps = steps; self.side = []; self.after = {}; self.D = depth; self.ring = ring
        assert len(ring) >= depth + 2
    def add(self, ready, deadline, fns):
        for f in fns: self.side.append([ready, deadline, f])
    def aft(self, k, f):
        prev = self.after.get(k)
        self.after[k] = (lambda: (prev(), f())) if prev else f
    def issue(self, k, half):
        st = self.steps[k]
        b = self.ring[k % len(self.ring)]
        a, off, d2 = st["rd"]
        if half == 0:
            if "pre" in st: st["pre"]()
            I(f"ds_read_b64_tr_b16 {vr(b,2)}, v{a} offset:{off}", tag=f"w{k}")
        else:
            I(f"ds_read_b64_tr_b16 {vr(b+2,2)}, v{a} offset:{off+d2}", tag=f"w{k}")
            if "post" in st: st["post"](k)
    def pump(self, k, n):
        c = 0
        while self.side and c < n and self.side[0][0] <= k:
            r = self.side.pop(0)[2]()
            c += r if isinstance(r, int) else 1
    def run(self, rate):
        n = len(self.steps); D = self.D
        for k in range(min(D, n)):
            self.issue(k, 0); self.issue(k, 1)
        for k in range(n):
            st = self.steps[k]
            while any(s[1] <= k for s in self.side): self.side.pop(0)[2]()
            if "need" in st: st["need"]()
            if k % 2 == 0 and k + 1 < n: e.wait(lg=f"w{k+1}")
            e.wait(lg=f"w{k}")
            mfs = st["mf"](vr(self.ring[k % len(self.ring)]), st)
            I(mfs[0])
            if k + D < n: self.issue(k + D, 0)
            if len(mfs) > 1:
                self.pump(k, (rate + 1) // 2)
                I(mfs[1])
            if k + D < n: self.issue(k + D, 1)
            for m in mfs[2:]: I(m)
            self.pump(k, rate // 2 if len(mfs) > 1 else rate)
            if k in self.after: self.after[k]()
            stamp(f"k{k}")
        while self.side: self.side.pop(0)[2]()
def cost(n, f):
    def g():
        f(); return n
    return g

def vtouch(att, dst=22):
    P = 3072 if att else 3584; wp = 6 if att else 12
    if dst == 22: mk_srd(S_W, wp, 512 * P)
    I(f"s_lshl_b32 s{S_t0}, s{S_r}, 2"); I(f"s_add_u32 s{S_t0}, s{S_t0}, s{S_w}")
    I(f"s_mul_i32 s{S_t1}, s{S_t0}, {8*P}")
    I(f"s_mul_i32 s{S_t2}, s{S_q}, {256 if att else 896}"); I(f"s_add_u32 s{S_t1}, s{S_t1}, s{S_t2}")
    I("v_and_b32 v1, 7, v0"); I(f"v_mul_u32_u24 v1, {P}, v1")
    I(f"s_lshl_b32 s{S_t2}, s{S_j1}, 7"); I(f"s_add_u32 s{S_t2}, s{S_t2}, s{S_t1}")
    I("v_lshlrev_b32 v2, 7, v0")
    I("s_mov_b64 exec, 0xff")
    I(f"buffer_load_dword v{dst}, v1, {srd(S_W)}, s{S_t2} offen offset:{2048 if att else 512}")
    if OPT["tB"]: I(f"buffer_load_dword v{dst}, v1, {srd(S_W)}, s{S_t2} offen offset:{0 if att else 256}")
    if not att:
        I(f"s_mul_i32 s{S_t2}, s{S_j1}, {4*P}"); I(f"s_add_u32 s{S_t2}, s{S_t2}, s{S_t1}")
        I("s_mov_b64 exec, 0xf")
        I(f"buffer_load_dword v{dst}, v1, {srd(S_W)}, s{S_t2} offen offset:768")
    I(f"s_lshl_b32 s{S_t0}, s{S_t0}, 2"); I(f"s_add_u32 s{S_t0}, s{S_t0}, s{S_jj}")
    F_ = 2 if OPT["tfull"] else 1
    if OPT["tfull"]: I(f"s_and_b32 s{S_t0}, s{S_t0}, 127"); I(f"s_lshl_b32 s{S_t0}, s{S_t0}, 1")
    I(f"s_mul_i32 s{S_t1}, s{S_t0}, 1792"); I(f"s_mul_i32 s{S_t2}, s{S_q}, {448*1024}"); I(f"s_add_u32 s{S_t1}, s{S_t1}, s{S_t2}")
    I(f"s_mov_b64 exec, {(1 << (14*F_)) - 1}")
    I(f"buffer_load_dword v{dst}, v2, {srd(S_W2)}, s{S_t1} offen")
    I(f"s_lshl_b32 s{S_t1}, s{S_t0}, 9"); I(f"s_lshl_b32 s{S_t2}, s{S_q}, 17"); I(f"s_add_u32 s{S_t1}, s{S_t1}, s{S_t2}")
    I(f"s_mov_b64 exec, {(1 << (4*F_)) - 1}")
    I(f"buffer_load_dword v{dst}, v2, {srd(S_WO)}, s{S_t1} offen")
    I("s_mov_b64 exec, -1")
def gate_math(z0, z1, G, tmp):
    T = [f"v_cvt_pk_bf16_f32 v{tmp}, v{z0}, v{z1}", f"v_lshlrev_b32 v{G}, 16, v{tmp}", f"v_and_b32 v{G+2}, 0xffff0000, v{tmp}"]
    T += [f"v_mul_f32 v{G+2*p}, {f2u(-1.4426950408889634)}, v{G+2*p}" for p in range(2)]
    T += [f"v_exp_f32 v{G+2*p}, v{G+2*p}" for p in range(2)]
    T += [f"v_add_f32 v{G+2*p}, 1.0, v{G+2*p}" for p in range(2)]
    T += [f"v_rcp_f32 v{G+2*p}, v{G+2*p}" for p in range(2)]
    T += [f"v_cvt_pk_bf16_f32 v{tmp}, v{G}, v{G+2}", f"v_lshlrev_b32 v{G}, 16, v{tmp}", f"v_and_b32 v{G+2}, 0xffff0000, v{tmp}"]
    T += [f"v_sub_f32 v{G+1+2*p}, 1.0, v{G+2*p}" for p in range(2)]
    T += [f"v_cvt_pk_bf16_f32 v{tmp}, v{G+1}, v{G+3}", f"v_lshlrev_b32 v{G+1}, 16, v{tmp}", f"v_and_b32 v{G+3}, 0xffff0000, v{tmp}"]
    T += [f"v_max_f32 v{G+2*p}, {f2u(2.0**-60)}, v{G+2*p}" for p in range(2)]
    T += [f"v_rcp_f32 v{G+4+p}, v{G+2*p}" for p in range(2)]
    T += [f"v_mul_f32 v{G+1+2*p}, v{G+4+p}, v{G+1+2*p}" for p in range(2)]
    return T
def out_addr():
    I(f"s_mul_i32 s{S_GIN}, s{S_q}, {3*8192}")
    I(f"s_add_u32 s{S_GIN}, s{S_GIN}, s{S_PB}")
    if M:
        I("v_bfe_u32 v5, v0, 4, 1")
        I("v_lshlrev_b32 v6, 3, v5")
        I("v_xor_b32 v6, 8, v6")
        I("v_and_b32 v4, 15, v0")
        I("v_xor_b32 v4, v4, v6")
        I("v_lshl_add_u32 v4, v4, 1, v5")
        I("v_lshrrev_b32 v5, 5, v0")
        I("v_lshlrev_b32 v5, 4, v5")
        I("v_lshl_add_u32 v4, v4, 10, v5")
    else:
        I("v_and_b32 v4, 15, v0")
        I("v_bfe_u32 v6, v0, 4, 1")
        I("v_lshlrev_b32 v6, 5, v6")
        I("v_lshrrev_b32 v7, 5, v0")
        I("v_lshl_add_u32 v6, v7, 4, v6")
        I("v_lshl_add_u32 v5, v4, 11, v6")
        I("v_xor_b32 v4, 0x4000, v5")
    I(f"s_lshl_b32 s{S_COL}, s{S_r}, 17"); I(f"s_lshl_b32 s{S_t1}, s{S_w}, 15"); I(f"s_add_u32 s{S_COL}, s{S_COL}, s{S_t1}")
    I(f"s_lshl_b32 s{S_t1}, s{S_jj}, 8"); I(f"s_add_u32 s{S_COL}, s{S_COL}, s{S_t1}")
    I(f"s_lshl_b32 s{S_t1}, s{S_q}, 6"); I(f"s_add_u32 s{S_COL}, s{S_COL}, s{S_t1}")
def pb_setup():
    I(f"s_lshl_b32 s{S_PB}, s{S_r}, 2"); I(f"s_add_u32 s{S_PB}, s{S_PB}, s{S_jj}")
    I(f"s_mul_i32 s{S_PB}, s{S_PB}, {12*8192}")
    I(f"s_lshl_b32 s{S_t0}, s{S_w}, 11"); I(f"s_add_u32 s{S_PB}, s{S_PB}, s{S_t0}"); I(f"s_add_u32 s{S_PB}, s{S_PB}, {PART_OFF}")
def vtouch2():
    I(f"s_lshl_b32 s{S_t0}, s{S_r}, 2"); I(f"s_add_u32 s{S_t0}, s{S_t0}, s{S_w}")
    I(f"s_lshl_b32 s{S_t0}, s{S_t0}, 1"); I(f"s_add_u32 s{S_t0}, s{S_t0}, s{S_j1}")
    I("v_lshlrev_b32 v2, 7, v0")
    I(f"s_mul_i32 s{S_t1}, s{S_t0}, 3584"); I(f"s_mul_i32 s{S_t2}, s{S_q}, {448*1024}"); I(f"s_add_u32 s{S_t1}, s{S_t1}, s{S_t2}")
    I(f"s_mov_b64 exec, {(1 << 28) - 1}")
    I(f"buffer_load_dword v{30 if M else 18}, v2, {srd(S_W2)}, s{S_t1} offen")
    I(f"s_lshl_b32 s{S_t1}, s{S_t0}, 10"); I(f"s_lshl_b32 s{S_t2}, s{S_q}, 17"); I(f"s_add_u32 s{S_t1}, s{S_t1}, s{S_t2}")
    I("s_mov_b64 exec, 0xff")
    I(f"buffer_load_dword v{30 if M else 18}, v2, {srd(S_WO)}, s{S_t1} offen")
    I("s_mov_b64 exec, -1")
e.raw(f"; @launch grid=(256,1,1) block=(512,1,1) lds=163840")
e.raw('.amdgcn_target "amdgcn-amd-amdhsa--gfx950"')
e.raw(".text")
e.raw(f".globl {NAME}_kernel")
e.raw(".p2align 8")
e.raw(f".type {NAME}_kernel,@function")
e.label(f"{NAME}_kernel")
I("s_load_dwordx16 s[4:19], s[0:1], 0")
I("s_load_dwordx4 s[20:23], s[0:1], 64")
if STAMP:
    I("s_memrealtime s[98:99]")
    I("s_memtime s[96:97]")
if OPT["codepf"] and OPT["pfe"] == 2:
    I("s_getpc_b64 s[56:57]")
    e.label("L_pc")
    I("v_lshrrev_b32 v1, 5, v0")
    I("v_and_b32 v2, 1, v0")
    I("v_add_u32 v2, v2, v1")
    I(f"s_bfe_u32 s{S_t0}, s2, 0x50003")
    I(f"s_lshl_b32 s{S_t0}, s{S_t0}, 4")
    I(f"v_add_lshl_u32 v2, v2, s{S_t0}, 7")
    I("v_min_u32 v2, L_end-L_pc, v2")
    I("s_mov_b64 exec, 3")
    I("global_load_dword v127, v2, s[56:57]")
    I("s_mov_b64 exec, -1")
if OPT["codepf"] and OPT["pfe"] == 1:
    I("s_cmp_lt_u32 s2, 8")
    I("s_cbranch_scc0 L_nopf")
    e.cond_begin()
    I("s_getpc_b64 s[56:57]")
    e.label("L_pc")
    I("v_lshlrev_b32 v2, 7, v0")
    I("v_min_u32 v2, L_end-L_pc, v2")
    I("global_load_dword v127, v2, s[56:57]")
    e.cond_end()
    e.label("L_nopf")
I("v_lshrrev_b32 v1, 6, v0")
I("s_cmp_ge_u32 s2, 256")
I("s_cbranch_scc1 L_end")
I(f"v_readfirstlane_b32 s{S_t2}, v1")
I("v_and_b32 v0, 63, v0")
I(f"s_bfe_u32 s{S_q}, s2, 0x20001")
I(f"s_and_b32 s{S_t0}, s2, 1")
I(f"s_lshl_b32 s{S_t0}, s{S_t0}, 3")
I(f"s_bfe_u32 s{S_r}, s2, 0x30003")
I(f"s_or_b32 s{S_r}, s{S_r}, s{S_t0}")
I(f"s_lshr_b32 s{S_jj}, s2, 6")
if OPT["rotq"] == 2:
    I(f"s_lshr_b32 s{S_rot}, s{S_t0}, 2")
    I(f"s_add_u32 s{S_rot}, s{S_rot}, s{S_q}")
    I(f"s_and_b32 s{S_t0}, s{S_r}, 1")
    I(f"s_add_u32 s{S_rot}, s{S_rot}, s{S_t0}")
elif OPT["rotq"]: I(f"s_add_u32 s{S_rot}, s{S_r}, s{S_q}")
else: I(f"s_mov_b32 s{S_rot}, s{S_r}")
I(f"s_and_b32 s{S_w}, s{S_t2}, 3")
I(f"s_lshl_b32 s{S_m0b}, s{S_w}, 12")
I(f"s_cmp_lt_u32 s{S_t2}, 4")
I("s_cbranch_scc1 L_C")

H_XD = 4; H_WD = 8; H_BD = 12; H_ACC = 64
H_G = 18 if M else 20; H_BR = 20 if M else 24
H_RING = [32, 36, 40, 44, 48, 52, 24, 28] if M else [32, 36, 40, 44, 48, 52, 12]
def a2r(lam, p):
    if lam < 16: return ar(lam * 8 + p * 4)
    return vr((56 if lam == 16 else 4) + p * 4)
I("s_setprio 3")
I("v_lshrrev_b32 v32, 4, v0")
I("v_lshrrev_b32 v36, 3, v0")
I("v_and_b32 v37, 7, v0")
I("v_xor_b32 v39, v37, v32")
I("v_lshlrev_b32 v39, 4, v39")
I(f"v_lshl_add_u32 v{H_XD}, v36, 11, v39")
I(f"v_xor_b32 v{H_XD+1}, 64, v{H_XD}")
I(f"v_add_u32 v{H_XD+2}, {14*1024}, v{H_XD+1}")
I(f"v_add_u32 v{H_XD+3}, {14*1024}, v{H_XD}")
I(f"s_lshl_b32 s{S_t0}, s{S_r}, 17")
I(f"s_lshl_b32 s{S_t1}, s{S_w}, 15")
I(f"s_add_u32 s{S_t0}, s{S_t0}, s{S_t1}")
for g4 in range(4):
    I(f"s_add_u32 s{S_WK+g4}, s{S_rot}, {g4}")
    I(f"s_and_b32 s{S_WK+g4}, s{S_WK+g4}, 3")
    I(f"s_lshl_b32 s{S_KG+g4}, s{S_WK+g4}, 8")
    I(f"s_add_u32 s{S_KG+g4}, s{S_KG+g4}, s{S_t0}")
I(f"s_mov_b32 s{S_X+2}, {2048*1024}")
I(f"s_mov_b32 s{S_X+3}, 0x20000")
assert phys(False, 1) == phys(False, 0) + 1 and phys(True, 1) == phys(True, 0) + 1
I(f"s_cmp_ge_u32 s{S_jj}, 2")
I(f"s_cselect_b32 s{S_t2}, {phys(True,0)}, {phys(False,0)}")
I(f"s_cselect_b32 s{S_EV}, {phys(True,2)}, {phys(False,2)}")
I(f"s_mov_b32 s{S_W+2}, {512*3584}")
I(f"s_cmov_b32 s{S_W+2}, {512*3072}")
I(f"s_mov_b32 s{S_P}, 3584")
I(f"s_cmov_b32 s{S_P}, 3072")
I(f"s_lshl_b32 s{S_t2}, s{S_t2}, 14")
I(f"s_add_u32 s{S_t2}, s{S_t2}, s{S_m0b}")
I(f"s_mov_b32 m0, s{S_t2}")
I(f"s_add_u32 s{S_SOFF}, s{S_KG}, 128")
after_karg()
if OPT["tw"] & 1:
    I(f"s_load_dword s{S_BUD}, s[6:7], 0")
    I(f"s_load_dword s{S_BUD}, s[12:13], 0")
I(f"s_mov_b32 s{S_X}, s4")
I(f"s_and_b32 s{S_X+1}, s5, 0xffff")
for i in range(4): I(f"buffer_load_dwordx4 v{H_XD+i}, {srd(S_X)}, s{S_KG} offen offset:{i*1024} lds", tag="u0")
I(f"s_add_u32 m0, s{S_t2}, {SLOT}")
I(f"s_mov_b32 s{S_W+3}, 0x20000")
dma4(H_XD, S_X, "u1")
I(f"s_lshl_b32 s{S_t0}, s{S_w}, 5")
I(f"v_add_u32 v38, s{S_t0}, v36")
I(f"v_mul_lo_u32 v38, v38, s{S_P}")
I(f"s_mul_i32 s{S_COL}, s{S_q}, 896")
I(f"s_lshl_b32 s{S_t0}, s{S_q}, 8")
I(f"s_add_u32 s{S_t0}, s{S_t0}, {1024-256}")
I(f"s_cmp_ge_u32 s{S_jj}, 2")
I(f"s_cselect_b32 s{S_W}, s6, s12")
I(f"s_cselect_b32 s{S_W+1}, s7, s13")
I(f"s_cselect_b32 s{S_COL}, s{S_t0}, s{S_COL}")
I(f"s_cselect_b32 s{S_t0}, 1, {2 if M else 1}")
I(f"s_cselect_b32 s{S_t1}, 64, {0 if M else 64}")
I(f"s_and_b32 s{S_W+1}, s{S_W+1}, 0xffff")
I("v_and_b32 v39, 1, v32")
I(f"v_lshlrev_b32 v39, s{S_t0}, v39")
I("v_xor_b32 v39, v39, v37")
I("v_lshlrev_b32 v39, 4, v39")
I(f"v_add_u32 v{H_WD}, v38, v39")
I(f"v_xor_b32 v39, s{S_t1}, v39")
I(f"s_lshl_b32 s{S_t0}, s{S_P}, 3")
I(f"s_sub_u32 s{S_t0}, s{S_t0}, 1024")
I(f"v_add3_u32 v{H_WD+1}, v38, v39, s{S_t0}")
I(f"s_lshl_b32 s{S_t0}, s{S_t0}, 1")
I(f"v_add_u32 v{H_WD+2}, s{S_t0}, v{H_WD}")
I(f"v_add_u32 v{H_WD+3}, s{S_t0}, v{H_WD+1}")
I(f"s_lshl_b32 s{S_t0}, s{S_jj}, 7")
I(f"s_add_u32 s{S_COL}, s{S_COL}, s{S_t0}")
I(f"s_lshl_b32 s{S_t1}, s{S_P}, 7")
for g4 in range(4): I(f"s_mul_i32 s{S_WK+g4}, s{S_WK+g4}, s{S_t1}")
I(f"s_lshl_b32 s{S_EV}, s{S_EV}, 14")
I(f"s_add_u32 m0, s{S_EV}, s{S_m0b}")
I(f"s_add_u32 s{S_SOFF}, s{S_WK}, s{S_COL}")
dma4(H_WD, S_W, "u2")
common_ptrs()
mk_srd(S_OUT, 18, 2048 * 1024)
mk_srd(S_GW, 16, 1024)
I(f"s_cmp_ge_u32 s{S_jj}, 2")
I("s_cbranch_scc1 L_h_att")
snapH = e.snapshot()

def h_prog(att):
    e.restore(snapH); e.hist = []
    UL = units(att)
    CH = [0, -1024, 1024] if att else [0, 256, 512]
    def issue(k):
        un = UL[k]
        I(f"s_add_u32 m0, s{S_m0b}, {phys(att,k)*SLOT}")
        if un[0] == "x":
            I(f"s_add_u32 s{S_SOFF}, s{S_KG+un[1]}, {un[2]*128}")
            dma4(H_XD, S_X, f"u{k}")
            if att and un[2] == 1: halo(un[1], f"u{k}")
            return
        _, c, u = un
        if c < 3:
            I(f"s_add_u32 s{S_SOFF}, s{S_WK+u}, s{S_COL}")
            if CH[c]: I(f"s_add_i32 s{S_SOFF}, s{S_SOFF}, {CH[c]}")
        else:
            KH = 256 * 3584
            if u == 0:
                I("v_lshrrev_b32 v2, 2, v0")
                if M:
                    I("v_lshrrev_b32 v1, 4, v0")
                    I("v_xor_b32 v2, v2, v1")
                I("v_and_b32 v2, 1, v2")
                I(f"v_mul_u32_u24 v1, {KH-64}, v2")
                for i in (0, 2): I(f"v_add_u32 v{H_WD+i}, v{H_WD+i}, v1")
                if not M: I(f"v_sub_u32 v1, {KH-64}, v1")
                for i in (1, 3): I(f"v_add_u32 v{H_WD+i}, v{H_WD+i}, v1")
                I(f"v_mul_u32_u24 v2, {2*KH}, v2")
                I(f"v_sub_u32 v{H_XD}, {KH}, v2")
                I(f"s_cmp_ge_u32 s{S_WK}, {KH}")
                I(f"s_cselect_b32 s{S_t0}, 1, 0")
            else:
                I(f"s_cmp_ge_u32 s{S_WK}, {KH}")
                I(f"s_cselect_b32 s{S_t1}, 1, 0")
                I(f"s_cmp_ge_u32 s{S_WK+1}, {KH}")
                I(f"s_cselect_b32 s{S_t0}, 1, 0")
                I(f"s_sub_u32 s{S_t0}, s{S_t0}, s{S_t1}")
            I(f"s_sub_u32 s{S_t1}, 0, s{S_t0}")
            for i in range(4): I(f"v_mad_i32_i24 v{H_WD+i}, v{H_XD}, s{S_t0 if (M or i % 2 == 0) else S_t1}, v{H_WD+i}")
            I(f"s_min_u32 s{S_SOFF}, s{S_WK+u}, s{S_WK+u+2}")
            I(f"s_add_u32 s{S_SOFF}, s{S_SOFF}, s{S_COL}")
            I(f"s_lshl_b32 s{S_t0}, s{S_jj}, 6")
            I(f"s_sub_u32 s{S_SOFF}, s{S_SOFF}, s{S_t0}")
            I(f"s_add_u32 s{S_SOFF}, s{S_SOFF}, 768")
        dma4(H_WD, S_W, f"u{k}")
    def w0(f):
        l = U("w0")
        I(f"s_cmp_eq_u32 s{S_w}, 0"); I(f"s_cbranch_scc0 {l}")
        e.cond_begin(); f(); e.cond_end(); e.label(l)
    def peer_issue(): w0(lambda: I(f"s_load_dword s{S_POLL}, s[{S_DBG}:{S_DBG+1}], 0 glc"))
    def peer():
        def f():
            lp = U("pp"); ok = U("po")
            I("s_waitcnt lgkmcnt(0)")
            I(f"s_cmp_ge_u32 s{S_POLL}, 16")
            I(f"s_cbranch_scc0 {lp}")
            e.label(ok)
            SLOW.extend([f"{lp}:", "    s_sleep 8", f"    s_load_dword s{S_POLL}, s[{S_DBG}:{S_DBG+1}], 0 glc", "    s_waitcnt lgkmcnt(0)",
                         f"    s_cmp_ge_u32 s{S_POLL}, 16", f"    s_cbranch_scc1 {ok}"] + spin_tail(lp, ok))
        w0(f)
        I(f"s_mov_b32 s{S_POLL}, 0")
    V_Q = 64; V_S = 96; V_BIAS = 32; V_RINV = 40; V_T = 48; A_KV = 64; A_ONES = 96; V_AD = 24 if M else 56
    def att_setup(part):
        if part == 0:
            I(f"s_add_u32 s{S_t0}, s{S_m0b}, {EXCH_LDS+4096}")
            I(f"v_add_u32 v{V_AD}, s{S_t0}, v{V_L16}")
            I("v_bfe_u32 v1, v0, 3, 1")
            I("v_lshlrev_b32 v1, 12, v1")
            I(f"v_sub_u32 v{V_AD+2}, v{V_AD}, v1")
            I("v_xor_b32 v1, 4096, v1")
            I(f"v_sub_u32 v{V_AD+1}, v{V_AD}, v1")
            I("v_lshrrev_b32 v1, 5, v0")
            I("v_lshlrev_b32 v1, 12, v1")
            I(f"v_sub_u32 v{V_AD+4}, v{V_AD}, v1")
            I("v_xor_b32 v1, 4096, v1")
            I(f"v_sub_u32 v{V_AD+3}, v{V_AD}, v1")
            I(f"v_add_u32 v{V_AD+5}, {(QSLOT*SLOT - EXCH_LDS - 4096) & 0xffffffff}, v{V_AD}")
            I(f"s_mov_b32 s{S_CEXP}, {f2u(0.25*1.4426950408889634)}")
            I(f"s_or_b32 s{S_t0}, s{S_r}, s{S_w}")
            I(f"s_cmp_eq_u32 s{S_t0}, 0")
            I(f"s_cselect_b32 s{S_THR}, -16, -9")
            I(f"v_mov_b32 v{V_T}, 0x3f803f80")
            for k in range(4): I(f"v_accvgpr_write_b32 a{A_ONES+k}, v{V_T}")
            I(f"v_mov_b32 v{V_T}, {NEG}")
            I(f"v_and_b32 v{V_T+1}, 15, v0")
            I(f"v_lshrrev_b32 v{V_T+2}, 4, v0")
            I(f"v_lshlrev_b32 v{V_T+2}, 2, v{V_T+2}")
        elif part in (1, 2):
            p = part - 1; x8 = 8 if p == 0 else 0
            I(f"v_xor_b32 v{V_T+3}, {x8}, v{V_T+1}")
            I(f"v_xor_b32 v{V_T+4}, {x8}, v{V_T+2}")
            I(f"v_sub_u32 v{V_T+3}, v{V_T+3}, v{V_T+4}")
            for r in range(4):
                I(f"v_subrev_u32 v{V_T+4}, {r}, v{V_T+3}")
                I(f"v_cmp_lt_u32 vcc, 7, v{V_T+4}")
                I(f"v_cmp_lt_i32 s[56:57], s{S_THR}, v{V_T+4}")
                I("s_and_b64 vcc, vcc, s[56:57]")
                I(f"v_cndmask_b32 v{V_BIAS+p*4+r}, 0, v{V_T}, vcc")
        else:
            for k in range(16): I(f"v_mov_b32 v{V_Q+16*(part-3)+k}, 0")
            I("s_mov_b32 s56, 0xff00ff00"); I("s_mov_b32 s57, 0xff00ff00")
            I("s_not_b64 s[58:59], s[56:57]")
    def br_setup():
        if M:
            I("v_bfe_u32 v1, v0, 2, 2")
            I("v_lshrrev_b32 v2, 5, v0")
            I("v_lshl_add_u32 v1, v2, 2, v1")
            I("v_lshlrev_b32 v1, 7, v1")
            I("v_bfe_u32 v2, v0, 4, 1")
            I("v_lshl_add_u32 v1, v2, 5, v1")
            I("v_bfe_u32 v2, v0, 3, 1")
            I("v_lshl_add_u32 v1, v2, 6, v1")
        else:
            I("v_lshrrev_b32 v1, 2, v0")
            I("v_bfe_u32 v2, v0, 3, 2")
            I("v_lshlrev_b32 v1, 7, v1")
            I("v_lshl_add_u32 v1, v2, 5, v1")
        I("v_and_b32 v2, 3, v0")
        I("v_lshl_add_u32 v1, v2, 3, v1")
        I(f"s_lshr_b32 s{S_t0}, s{S_q}, 1")
        I(f"s_lshl_b32 s{S_t0}, s{S_t0}, 13")
        I(f"s_and_b32 s{S_t1}, s{S_q}, 1")
        I(f"s_lshl_b32 s{S_t1}, s{S_t1}, 6")
        I(f"s_or_b32 s{S_t0}, s{S_t0}, s{S_t1}")
        I(f"v_xor_b32 v1, s{S_t0}, v1")
        for tau in range(4):
            cb = 3 - tau
            if M: I(f"v_xor_b32 v{H_BR+tau}, {(cb>>1)*8192 + (cb&1)*64}, v1")
            else:
                for tt in range(2): I(f"v_xor_b32 v{H_BR+2*tau+tt}, {(cb>>1)*8192 + (cb&1)*64 + tt*32}, v1")
        I(f"s_lshl_b32 s{S_PB}, s{S_r}, 2"); I(f"s_add_u32 s{S_PB}, s{S_PB}, s{S_jj}")
        I(f"s_mul_i32 s{S_PB}, s{S_PB}, {12*8192}")
        I(f"s_lshl_b32 s{S_t0}, s{S_w}, 11"); I(f"s_add_u32 s{S_PB}, s{S_PB}, s{S_t0}"); I(f"s_add_u32 s{S_PB}, s{S_PB}, {PART_OFF}")
    V_HV = 31 if M else 19
    def halo(u, tag):
        I(f"s_lshr_b32 s{S_t0}, s{S_m0b}, 2")
        I(f"s_add_u32 m0, s{S_t0}, {HALO_LDS + u*4096}")
        I(f"s_and_b32 s{S_t0}, s{S_KG+u}, 0x300")
        I(f"buffer_load_dwordx4 v{V_HV}, {srd(S_X)}, s{S_t0} offen lds", tag=tag)
    if att:
        I(f"s_and_b32 s{S_t1}, s{S_w}, 1")
        I(f"s_mul_i32 s{S_t1}, s{S_t1}, {1024+64}")
        I(f"v_xor_b32 v{V_HV}, s{S_t1}, v{H_XD}")
        I(f"s_lshl_b32 s{S_t0}, s{S_r}, 17")
        I(f"s_sub_u32 s{S_t0}, s{S_t0}, 16384")
        I(f"s_lshr_b32 s{S_t1}, s{S_w}, 1")
        I(f"s_lshl_b32 s{S_t1}, s{S_t1}, 7")
        I(f"s_add_u32 s{S_t0}, s{S_t0}, s{S_t1}")
        I(f"v_add_u32 v{V_HV}, s{S_t0}, v{V_HV}")
        I(f"v_max_i32 v{V_HV}, 0, v{V_HV}")
        halo(0, "u2")
    if EG and not att:
        I(f"s_lshl_b32 s{S_t0}, s{S_w}, 8")
        I(f"s_add_u32 m0, s{S_t0}, {GW_LDS}")
        I("v_lshlrev_b32 v1, 2, v0")
        I(f"buffer_load_dword v1, {srd(S_GW)}, s{S_t0} offen lds", tag="u2")
    stamp("h_i2")
    if "h_w0" in HST: e.wait(vm="u0"); stamp("h_w0"); e.wait(vm="u1"); stamp("h_w1"); e.wait(vm="u2"); stamp("h_w2")
    PRE = OPT["pre"]
    for k in range(3, PRE + 1): issue(k)
    first = list(range(PRE + 1, 8))
    if att and not OPT["n9"]: sched = [first, [8, 9], [10], [11, 12, 13], [14], [15, 16, 17], [18], [] if OPT["u19"] else [19]]
    else: sched = [first, [8, 9], [10, 11], [12, 13], [14, 15], [16, 17], [18, 19], []]
    def gw_dma():
        I(f"s_mov_b32 m0, {GW_LDS}")
        w0(lambda: I(f"buffer_load_dwordx4 v{V_L16}, {srd(S_GW)}, 0 offen lds"))
    def inb_reset():
        for k in range(4):
            I(f"s_mov_b32 s{56+k}, 0")
            I(f"s_add_u32 s{S_t0}, s{S_MYIN}, {k*128}")
            I(f"s_atomic_swap s{56+k}, s[{S_INB}:{S_INB+1}], s{S_t0} glc")
    def count_in():
        I(f"s_mov_b32 s{S_EV}, 1")
        I("s_waitcnt lgkmcnt(0)")
        I(f"s_atomic_add s{S_EV}, s[{S_DBG}:{S_DBG+1}], 0")
    if OPT["hinit"]:
        late_scalars(); w0(inb_reset)
    if OPT["tw"] & 1: I("s_waitcnt lgkmcnt(0)")
    extra = {1: lambda: ((w0(count_in) if OPT["hinit"] else late_scalars()), b2_voffs(H_BD)), 3: (gw_dma if not EG else lambda: None), 7: (br_setup if att or OPT["sch"] else lambda: (b2_unit(8, H_BD), br_setup()))}
    if att: extra.update({2: lambda: (att_setup(0), att_setup(1)), 4: lambda: (att_setup(2), att_setup(3)), 6: lambda: att_setup(4)})
    gk = [k for k, un in enumerate(UL) if un[0] == "g"]
    def bar(i, need=None):
        stamp(f"h_a{i}")
        if need is None and i < len(gk): need = gk[i]
        if need is not None: e.wait(vm=f"u{need}")
        if i == OPT["pb"]: peer()
        I("s_barrier"); stamp(f"h_b{i}")
    for i in range(8):
        bar(i)
        if i == OPT["pb"] - 2: peer_issue()
        for k in sched[i]: issue(k)
        if i in extra: extra[i]()
        if i == (OPT["tha"] if att else OPT["th"]) and not OPT["tatt"]: vtouch(att, 30 if M else 18)
        if i == OPT["th"] and OPT["tatt"] and att: vtouch2()
    def a2_load(lam):
        a2_soff(lam, S_t1)
        for p in range(2):
            I(f"buffer_load_dwordx4 {a2r(lam,p)}, v{V_L16}, {srd(S_WS)}, s{S_t1} offen offset:{p*1024} sc1", tag=f"a{lam}")
    def a2_items(lams, gap=None):
        gap = OPT['gap']
        F = []
        for lam in lams:
            F.append(cost(9, lambda lam=lam: (a2_soff(lam, S_COL), I(f"buffer_load_dwordx4 {a2r(lam,0)}, v{V_L16}, {srd(S_WS)}, s{S_COL} offen sc1", tag=f"a{lam}x"))))
            F += [cost(9, lambda: None)] * (gap - 1)
            F.append(cost(9, lambda lam=lam: I(f"buffer_load_dwordx4 {a2r(lam,1)}, v{V_L16}, {srd(S_WS)}, s{S_COL} offen offset:1024 sc1", tag=f"a{lam}")))
            F += [cost(9, lambda: None)] * (gap - 1)
        return F
    Bu = lambda g: b2_unit(g, H_BD, False)
    SS = []
    ALL = (0, 1, 2, 3)
    side = {}
    if not att:
        if OPT["sch"] == 0:
            bar(8); Bu(0)
            bar(9); issue(20); Bu(1)
            bar(10); push_group(ownbit(0), ALL); issue(21); Bu(2)
            bar(11); push_group(ownbit(1), ALL); Bu(3); poll_load()
            bar(12); poll_check(0x11)
            for lam in range(4): a2_load(lam)
            Bu(4); poll_load()
            bar(13); poll_check(0x22)
            for lam in range(4, 8): a2_load(lam)
            Bu(5)
            bar(14)
        else:
            bar(8)
            bar(9); issue(20)
            bar(10); push_group(ownbit(0), ALL); issue(21)
            bar(11); push_group(ownbit(1), ALL); Bu(0); Bu(1); poll_load()
            bar(12); poll_check(0x11); a2_load(0); a2_load(1); (None if STG else poll_load())
            bar(13); a2_load(2); a2_load(3); b2_unit(2, H_BD)
            e.wait(vm="b1")
            bar(14)
            if not STG:
                poll_check(0x22)
                side[(0, 0)] = lambda: SS[0].add(0, 999, a2_items((4, 5, 6, 7), 2))
        def f_o(): poll_check(0x300); SS[0].add(0, 999, a2_items((16, 17, 14, 15)))
    else:
        def kv_reads(m0, tag):
            for t in range(4):
                I(f"ds_read_b64 {ar(A_KV+8*t,2)}, v{m0} offset:{t*1024}", tag=f"{tag}{t}")
                I(f"ds_read_b128 {ar(A_KV+8*t+2)}, v{V_AD} offset:{t*1024}", tag=f"{tag}{t}")
                I(f"ds_read_b64 {ar(A_KV+8*t+6,2)}, v{m0+1} offset:{t*1024+8}", tag=f"{tag}{t}")
        bar(8)
        kv_reads(V_AD + 1, "k")
        e.wait(lg="k3")
        bar(9, 18 if OPT["u19"] else 19)
        def Preg(t, p): return V_Q + 8 * t + 4 * p
        for half, m in enumerate(("s[56:57]", "s[58:59]")):
            I(f"s_mov_b64 exec, {m}")
            for t in range(4):
                for p in range(2):
                    I(f"ds_read_b64 {vr(Preg(t,p)+2*half,2)}, v{V_AD+5} offset:{t*1024+p*8}", tag="q")
        I("s_mov_b64 exec, -1")
        stamp("h_q")
        e.wait(lg="q")
        un = [(i >> 1, i & 1) for i in range(8)]
        Sc = lambda i: V_S + 4 * i
        for i, (t, p) in enumerate(un): I(f"{MF} {vr(Sc(i))}, {ar(A_KV+8*t+4*p)}, {vr(Preg(t,p))}, {vr(V_BIAS+4*p)}")
        poll_load()
        if OPT["u19"]: issue(19); dsig("Lv3")
        Bu(0)
        stamp("m1")
        m = [V_T + i for i in range(8)]
        for i in range(8):
            if OPT["lround"]:
                I(f"v_cvt_pk_bf16_f32 v1, v{Sc(i)}, v{Sc(i)+1}")
                I(f"v_cvt_pk_bf16_f32 v2, v{Sc(i)+2}, v{Sc(i)+3}")
                I(f"v_lshlrev_b32 v{Sc(i)}, 16, v1")
                I(f"v_and_b32 v{Sc(i)+1}, 0xffff0000, v1")
                I(f"v_lshlrev_b32 v{Sc(i)+2}, 16, v2")
                I(f"v_and_b32 v{Sc(i)+3}, 0xffff0000, v2")
            I(f"v_max3_f32 v{m[i]}, v{Sc(i)}, v{Sc(i)+1}, v{Sc(i)+2}")
            I(f"v_max_f32 v{m[i]}, v{m[i]}, v{Sc(i)+3}")
        for k in range(4): I(f"v_permlane32_swap_b32 v{m[2*k]}, v{m[2*k+1]}")
        for k in range(4): I(f"v_max_f32 v{m[2*k]}, v{m[2*k]}, v{m[2*k+1]}")
        for k in range(2): I(f"v_permlane16_swap_b32 v{m[4*k]}, v{m[4*k+2]}")
        for k in range(2): I(f"v_max_f32 v{m[4*k]}, v{m[4*k]}, v{m[4*k+2]}")
        for k in range(2): I(f"v_mul_f32 v{m[4*k+2]}, s{S_CEXP}, v{m[4*k]}")
        for k in range(2): I(f"v_mul_f32 v{m[4*k]}, s{S_CEXP}, v{m[4*k]}")
        for k in range(2): I(f"v_permlane16_swap_b32 v{m[4*k]}, v{m[4*k+2]}")
        for k in range(4): I(f"v_mov_b32 v{m[2*k+1]}, v{m[2*k]}")
        for k in range(4): I(f"v_permlane32_swap_b32 v{m[2*k]}, v{m[2*k+1]}")
        stamp("m2")
        Bu(1)
        stamp("m3")
        for i in range(8):
            for r in range(4): I(f"v_fma_f32 v{Sc(i)+r}, v{Sc(i)+r}, s{S_CEXP}, -v{m[i]}")
            for r in range(4): I(f"v_exp_f32 v{Sc(i)+r}, v{Sc(i)+r}")
            if i == 4: stamp("m4"); poll_check(0x11); (None if STG else poll_load()); stamp("m5")
            if i >= 4: a2_load(i - 4)
        stamp("m6")
        b2_unit(2, H_BD)
        stamp("m7")
        for half, mk in enumerate(("s[56:57]", "s[58:59]")):
            I(f"s_mov_b64 exec, {mk}")
            for i, (t, p) in enumerate(un):
                I(f"v_cvt_pk_bf16_f32 v{Preg(t,p)+2*half}, v{Sc(i)}, v{Sc(i)+1}")
                I(f"v_cvt_pk_bf16_f32 v{Preg(t,p)+2*half+1}, v{Sc(i)+2}, v{Sc(i)+3}")
        I("s_mov_b64 exec, -1")
        for i, (t, p) in enumerate(un): I(f"{MF} {vr(Sc(i))}, {ar(A_ONES)}, {vr(Preg(t,p))}, 0")
        for i in range(8): I(f"v_rcp_f32 v{V_RINV+i}, v{Sc(i)}")
        e.wait(vm="b1")
        if OPT["a47"] and not STG:
            poll_check(0x22)
            for lam in range(4, 4 + 2 * OPT["a47"]): a2_load(lam)
        stamp("h_sm")
        I("s_barrier")
        stamp("v1")
        kv_reads(V_AD + 3, "v")
        e.wait(lg="v3")
        stamp("v2")
        if OPT["vb2"]: I("s_barrier")
        for i, (t, p) in enumerate(un): I(f"{MF} {vr(Sc(i))}, {ar(A_KV+8*t+4*p)}, {vr(Preg(t,p))}, 0")
        for b in range(2):
            for t in (2 * b, 2 * b + 1):
                ob = (56 if b == 0 else 4) + (t & 1) * 4
                for p in range(2):
                    o = Sc(2 * t + p)
                    if OPT["pkm"]:
                        for r in (0, 2): I(f"v_pk_mul_f32 {vr(o+r,2)}, {vr(o+r,2)}, {vr(V_RINV+2*t,2)} op_sel:[0,{p}] op_sel_hi:[1,{p}]")
                    else:
                        for r in range(4): I(f"v_mul_f32 v{o+r}, v{V_RINV+2*t+p}, v{o+r}")
                    od = ob + 2 * p if M else (56 if b == 0 else 4) + p * 4 + (t & 1) * 2
                    I(f"v_cvt_pk_bf16_f32 v{od}, v{o}, v{o+1}")
                    I(f"v_cvt_pk_bf16_f32 v{od+1}, v{o+2}, v{o+3}")
            stamp(f"v{3+b}")
            a2_soff(16 + b, S_t1)
            for t1 in range(2 if M else 0):
                ob = (56 if b == 0 else 4) + t1 * 4
                I(f"v_permlane16_swap_b32 v{ob}, v{ob+2}")
                I(f"v_permlane16_swap_b32 v{ob+1}, v{ob+3}")
            for p in range(2):
                I(f"buffer_store_dwordx4 {a2r(16+b,p)}, v{V_L16}, {srd(S_WS)}, s{S_t1} offen offset:{p*1024} sc1", tag="so")
        if not OPT["vb2"]: dsig("VD")
        stamp("h_so")
        def f_push():
            e.wait(vm="so")
            push_group(lambda: I(f"s_lshl_b32 s{S_t2}, 64, s{S_jj}"), (1, 2, 3))
        side[(0, OPT["fp"])] = f_push
        if not STG and OPT["a47"] < 2: side[(0, OPT["fp"] + 2)] = lambda: (poll_check(0x22), SS[0].add(0, 999, a2_items(range(4 + 2 * OPT["a47"], 8), 1)))
        def f_o():
            I(f"s_xor_b32 s{S_THR}, s{S_jj}, 1"); I(f"s_lshl_b32 s{S_THR}, 64, s{S_THR}")
            poll_check(f"s{S_THR}"); SS[0].add(0, 999, a2_items((14, 15)))
    def f_c(): poll_check(0x44); SS[0].add(0, 999, a2_items((8, 9, 10, 11)))
    def f_h(): poll_check(0x88); SS[0].add(0, 999, a2_items((12, 13)))
    if not STG: side.update({(0, OPT["kc"] - 15): poll_load, (0, OPT["kc"]): f_c, (0, OPT["kh"] - 15): poll_load, (0, OPT["kh"]): f_h, (0, OPT["ko"] - 11): poll_load, (0, OPT["ko"]): f_o})
    I("s_setprio 1")
    stamp("h_p2")
    own = [16, 17] if att else []
    LD = OPT["ld"]
    oo = [16, 17, 14, 15]
    TM = 14 - OPT["tm"]
    seq = [(lam, tau) for lam in range(TM) for tau in range(4 if lam < LD else 3)]
    seq += [(lam, tau) for tau in range(3) for lam in list(range(TM, 14)) + oo]
    seq += [(lam, 3) for lam in list(range(LD, 14)) + oo]
    steps = []; rng = {}; seen_g = set(); seen_l = set(); first_ = set()
    for (lam, tau) in seq:
        g = lam >> 1
        for kh in range(2):
            a = H_BR + tau if M else H_BR + 2 * tau + kh
            off = g * SLOT + (lam & 1) * 4096 + (kh * 2048 if M else 0)
            hi = off >> 16
            st = dict(rd=(a, off & 0xffff, 1024 if M else 2048))
            pres = []
            cg = CHKG.get(g) if not STG else {2: 2}.get(g)
            if cg is not None and cg not in seen_g:
                seen_g.add(cg); t = U("t")
                steps[-3]["post"] = lambda k, g=cg, t=t: d_read(f"Lb{g}", t)
                pres.append(lambda g=cg, t=t: d_check(f"Lb{g}", t))
            if rng.get(a, 0) != hi:
                dlt = (hi - rng.get(a, 0)) * 65536; rng[a] = hi
                pres.append(lambda a=a, dlt=dlt: I(f"v_add_u32 v{a}, {dlt & 0xffffffff}, v{a}"))
            if pres: st["pre"] = lambda pres=pres: [f() for f in pres]
            at = 4 if (tau == 3 and lam >= 14) else tau
            key = at if M else (at, kh)
            zero = key not in first_; first_.add(key)
            db = H_ACC + 16 * (at if at < 4 else 0)
            if M: st["mf"] = lambda W, st, lam=lam, kh=kh, d=vr(db, 16), zero=zero: [f"{M32} {d}, {W}, {a2r(lam,kh)}, {'0' if zero else d}"]
            else: st["mf"] = lambda W, st, lam=lam, db=db + 4 * kh, zero=zero: [f"{MF} {vr(db+8*p)}, {W}, {a2r(lam,p)}, {'0' if zero else vr(db+8*p)}" for p in range(2)]
            if lam not in seen_l:
                seen_l.add(lam)
                if STG and lam >= 4 and lam not in own: st["need"] = lambda lam=lam: e.wait(lg=f"a{lam}")
                elif lam not in own: st["need"] = lambda lam=lam: e.wait(vm=f"a{lam}")
            st["id"] = (lam, tau, kh)
            steps.append(st)
    S = Stream(steps, OPT["D2"], H_RING)
    SS.append(S)
    idx = {st["id"]: k for k, st in enumerate(steps)}
    n = len(steps)
    for (lam, d), f in side.items(): S.aft(idx[(lam, 0, 0)] + d, f)
    def scale(tau, greg): return [lambda k=k: I(f"v_mul_f32 v{H_ACC+16*tau+k}, v{greg + (0 if M else 2*(k>>3))}, v{H_ACC+16*tau+k}") for k in range(16)]
    def pack(tau):
        b = H_ACC + tau * 16
        return [lambda k=k: I(f"v_cvt_pk_bf16_f32 v{b+k}, v{b+2*k}, v{b+2*k+1}") for k in range(8)]
    def send(tau):
        def so():
            I(f"s_xor_b32 s{S_GIN}, s{S_q}, {3-tau}"); I(f"s_mul_i32 s{S_GIN}, s{S_GIN}, {3*8192}")
            I(f"s_add_u32 s{S_GIN}, s{S_GIN}, s{S_PB}"); I(f"s_add_u32 s{S_GIN}, s{S_GIN}, {tau*8192}")
        return [so] + pack(tau) + [cost(3, lambda j=j: I(f"buffer_store_dwordx4 {vr(H_ACC+tau*16+j*4)}, v{V_L16}, {srd(S_WS)}, s{S_GIN} offen offset:{j*1024} sc1", tag=f"p{tau}")) for j in range(2)]
    def pflag(tau):
        assert e.vmq[0][0].count(f"p{tau}") == 2
        stamp(f"h_pa{tau}")
        e.wait(vm=f"p{tau}")
        stamp(f"h_pb{tau}")
        I(f"s_xor_b32 s{S_t0}, s{S_MYIN}, {(3-tau)*2048}")
        I(f"s_mov_b32 s{S_KG+tau}, {1024<<tau}")
        I(f"s_atomic_or s{S_KG+tau}, s[{S_INB}:{S_INB+1}], s{S_t0}")
    if STG:
        I(f"v_add_u32 v18, s{S_m0b}, v{V_L16}")
        I(f"v_add_u32 v19, 0x10000, v18")
        def stage_rd(lam, slot):
            a = (18, 19, 2)[slot >> 2]
            return [lambda j=j: I(f"ds_read_b128 {a2r(lam+(j>>1), j&1)}, v{a} offset:{(slot&3)*SLOT+j*1024}", tag=f"a{lam+(j>>1)}") for j in range(4)]
        def g_rd():
            I(f"s_lshr_b32 s{S_t0}, s{S_m0b}, 2"); I(f"s_add_u32 s{S_t0}, s{S_t0}, {GB_LDS}"); I(f"v_add_u32 v1, s{S_t0}, v{V_L16}")
            I(f"ds_read_b128 {vr(H_G)}, v1", tag="gz")
        I(f"v_add_u32 v2, 0x20000, v18")
        plan = [("S1", 4, stage_rd(4, 6)), ("S2", 6, stage_rd(6, 7)), ("S3", 8, stage_rd(8, 8)), ("S4", 10, stage_rd(10, 0)),
                ("S5", 12, stage_rd(12, 1) + [g_rd]), ("S6", 16, ([] if att else stage_rd(16, 2)) + stage_rd(14, 3))]
        for evn, lam, rds in plan:
            k = idx[(lam, 0, 0)] - OPT["lead"]; t = U("t")
            S.aft(k - 3 - (6 if lam == 4 else 0), lambda evn=evn, t=t: d_read(evn, t))
            S.aft(k - (6 if lam == 4 else 0), lambda evn=evn, t=t, rds=rds, k=k: (d_check(evn, t), S.add(0, k + OPT["lead"] - 3, rds)))
        for k, tg in ((OPT["pba"], "a7"), (OPT["pbb"], "a9")):
            S.aft(k, lambda tg=tg: ((e.wait(lg=tg) if tg else None), I("s_barrier")))
        S.aft(idx[(13, 0, 1)], lambda: e.wait(lg="gz"))
    elif EG:
        def gget():
            I(f"s_lshl_b32 s{S_t0}, s{S_r}, 2"); I(f"s_add_u32 s{S_t0}, s{S_t0}, s{S_q}"); I(f"s_lshl_b32 s{S_t0}, s{S_t0}, 12")
            I(f"s_lshr_b32 s{S_t1}, s{S_m0b}, 2"); I(f"s_add_u32 s{S_t0}, s{S_t0}, s{S_t1}"); I(f"s_add_u32 s{S_t0}, s{S_t0}, {GA_OFF}")
            I(f"buffer_load_dwordx4 {vr(H_G)}, v{V_L16}, {srd(S_WS)}, s{S_t0} offen sc1", tag="gz")
        S.aft(24, gget)
        S.aft(idx[(13, 0, 1)], lambda: e.wait(vm="gz"))
    else:
        def gget():
            t = U("t"); d_read("G", t); d_check("G", t)
            I(f"s_lshl_b32 s{S_t0}, s{S_w}, 8"); I(f"s_add_u32 s{S_t0}, s{S_t0}, {GB_LDS}")
            I(f"v_and_b32 v1, {31 if M else 15}, v0")
            I(f"v_lshl_add_u32 v1, v1, 3, s{S_t0}")
            I(f"ds_read_b64 {vr(H_G,2)}, v1", tag="gz")
            if not M: I(f"ds_read_b64 {vr(H_G+2,2)}, v1 offset:128", tag="gz")
        S.aft(idx[(12, 0, 1)], gget)
        S.aft(idx[(13, 0, 1)], lambda: e.wait(lg="gz"))
    for tau in range(4):
        k = idx[(13, tau, 1)]
        S.aft(k, lambda k=k, tau=tau: S.add(k + 3, idx[(oo[0], tau, 0)] if tau < 3 else n, scale(tau, H_G + 1)))
    late_flags = []
    for tau in range(3):
        k = idx[(oo[-1], tau, 1)]
        S.aft(k, lambda k=k, tau=tau: S.add(k + 3, k + 8, send(tau)))
        kf = k + 7 + OPT["pfd"]
        if kf <= n - (1 if OPT["crx"] else OPT["D2"] + 14): S.aft(kf, lambda tau=tau: pflag(tau))
        else: late_flags.append(tau)
    if OPT["crx"]:
        assert LD >= 2
        S.aft(idx[(oo[0], 0, 0)], lambda: I("s_barrier"))
    else: S.aft(n - OPT["D2"], lambda: (e.wait(lg=f"w{n-1}"), [pflag(t) for t in late_flags[:-1]], poll_load()))
    S.aft(idx[(8, 0, 0)], lambda: stamp("h_late"))
    S.aft(idx[(oo[0], 0, 0)], lambda: stamp("h_o"))
    S.aft(idx[(LD, 3, 0)], lambda: stamp("h_own"))
    S.run(OPT["side2"])
    if OPT["crx"]:
        for t in late_flags: pflag(t)
        O = H_ACC + 48
        I(f"v_add_u32 v1, s{S_m0b}, v{V_L16}")
        for k in range(8): I(f"v_pk_add_f32 {vr(O+2*k,2)}, {vr(O+2*k,2)}, {vr(H_ACC+2*k,2)}")
        for j in range(4): I(f"ds_write_b128 v1, {vr(O+4*j)} offset:{j*1024}")
        I("s_waitcnt lgkmcnt(0)")
        stamp("h_sum")
        I("s_barrier")
        finish()
        return
    out_addr()
    for t in late_flags[-1:]: pflag(t)
    O = H_ACC + 48
    for k in range(8): I(f"v_pk_add_f32 {vr(O+2*k,2)}, {vr(O+2*k,2)}, {vr(H_ACC+2*k,2)}")
    for tau in range(3):
        poll_check(1024 << tau)
        stamp(f"h_r{tau}")
        if tau == 2: stamp("h_rcv")
        for j in range(2):
            I(f"buffer_load_dwordx4 {vr(24+tau*8+j*4)}, v{V_L16}, {srd(S_WS)}, s{S_GIN} offen offset:{j*1024} sc1", tag=f"r{tau}")
        if tau < 2: I(f"s_add_u32 s{S_GIN}, s{S_GIN}, 8192")
    for tau in range(3):
        e.wait(vm=f"r{tau}")
        b = H_ACC + 16
        for k in range(8):
            I(f"v_lshlrev_b32 v{b+2*k}, 16, v{24+tau*8+k}")
            I(f"v_and_b32 v{b+2*k+1}, 0xffff0000, v{24+tau*8+k}")
        for k in range(8): I(f"v_pk_add_f32 {vr(O+2*k,2)}, {vr(O+2*k,2)}, {vr(b+2*k,2)}")
    for k in range(8): I(f"v_pk_mul_f32 {vr(O+2*k,2)}, {vr(O+2*k,2)}, {vr(H_G + (0 if M else 2*(k>>2)),2)} op_sel_hi:[1,0]")
    stamp("h_sum")
    for f in pack(3): f()
    for j in range(2):
        sw = "v_permlane32_swap_b32" if M else "v_permlane16_swap_b32"
        I(f"{sw} v{O+4*j}, v{O+4*j+2}")
        I(f"{sw} v{O+4*j+1}, v{O+4*j+3}")
        I(f"buffer_store_dwordx4 {vr(O+4*j)}, v{4 if M else 4+j}, {srd(S_OUT)}, s{S_COL} offen offset:{j*(32 if M else 1024)}" + ["", " nt", " sc0", " sc1"][OPT["of"]])
    finish()

h_prog(False)
e.label("L_h_att")
h_prog(True)

e.label("L_C")
role[0] = "C"
reset()
C_WR = 4; C_XR = 12; C_EXW = 3; C_HA = 18; C_HX = (24, 56, 60); C_HACC = 28; C_ACC = 64
I("s_setprio 2")
if OPT["codepf"] and not OPT["pfe"]:
    I("s_cmp_lt_u32 s2, 16")
    I("s_cbranch_scc0 L_nopf")
    e.cond_begin()
    I("s_getpc_b64 s[56:57]")
    e.label("L_pc")
    I(f"s_sub_u32 s56, s56, L_pc-{NAME}_kernel")
    I("s_subb_u32 s57, s57, 0")
    I(f"s_lshr_b32 s{S_t0}, s2, 3")
    I(f"s_lshl_b32 s{S_t0}, s{S_t0}, 15")
    I(f"v_lshlrev_b32 v2, 7, v0")
    I(f"v_lshl_add_u32 v2, v1, 13, v2")
    I(f"v_add_u32 v2, s{S_t0}, v2")
    I(f"v_min_u32 v2, L_end-{NAME}_kernel, v2")
    I(f"global_load_dword v127, v2, s[56:57]")
    e.cond_end()
    e.label("L_nopf")
late_scalars()
def ev_init():
    I("v_lshlrev_b32 v2, 2, v0")
    I(f"v_add_u32 v2, {EV_LDS}, v2")
    I("v_mov_b32 v1, 1")
    I("ds_write_b32 v2, v1", tag="exw0")
I("v_lshrrev_b32 v32, 4, v0")
I("v_and_b32 v33, 15, v0")
I("v_bfe_u32 v34, v0, 2, 2")
I("v_and_b32 v35, 3, v0")
after_karg()
common_ptrs()
mk_srd(S_OUT, 18, 2048 * 1024)
if OPT["tw"] & 2:
    I(f"s_cmp_eq_u32 s{S_w}, 1")
    I("s_cbranch_scc0 L_notw")
    e.cond_begin()
    I(f"s_lshl_b32 s{S_t0}, s2, 12")
    I(f"s_load_dword s{S_EV}, s[14:15], 0")
    I(f"s_load_dword s{S_EV}, s[8:9], 0")
    I(f"s_load_dword s{S_EV}, s[18:19], s{S_t0} glc")
    I(f"s_load_dword s{S_EV}, s[22:23], s{S_A2} glc")
    I(f"s_add_u32 s{S_t0}, s{S_t0}, {PART_OFF}")
    I(f"s_load_dword s{S_EV}, s[22:23], s{S_t0} glc")
    I("s_waitcnt lgkmcnt(0)")
    e.cond_end()
    e.label("L_notw")
if not OPT["hinit"]:
    I(f"s_cmp_eq_u32 s{S_w}, 0")
    I("s_cbranch_scc0 L_c_noinit")
    e.cond_begin()
    for k in range(4):
        I(f"s_mov_b32 s{S_KG+k}, 0")
        I(f"s_add_u32 s{S_t0}, s{S_MYIN}, {k*128}")
        I(f"s_atomic_swap s{S_KG+k}, s[{S_INB}:{S_INB+1}], s{S_t0} glc")
    e.cond_end()
    e.label("L_c_noinit")
I(f"s_cmp_ge_u32 s{S_jj}, 2")
I("s_cbranch_scc1 L_c_att")

def c_prog(att):
    reset()
    UL = units(att)
    slot_of = {un: phys(att, k) for k, un in enumerate(UL)}
    subs = [un for un in UL if un[0] == "g"]
    if OPT["spf"] == 2 and OPT["tearly"] and OPT["th"] < 0: vtouch(att)
    n16 = att or not M
    if not (att and OPT["n9"]):
        ev_init(); I("s_waitcnt lgkmcnt(0)"); reset()
    if n16:
        for p in range(2):
            I(f"v_xor_b32 v38, {8 if p == 0 else 0}, v33")
            I("v_and_b32 v39, 8, v38")
            I("v_add_u32 v39, v39, v38")
            I("v_lshlrev_b32 v39, 7, v39")
            I("v_lshrrev_b32 v38, 1, v38")
            I("v_xor_b32 v38, v38, v32")
            I("v_lshl_add_u32 v39, v38, 4, v39")
            I(f"v_add_u32 v39, s{S_m0b}, v39")
            I(f"v_add_u32 v{C_XR+2*p+p}, {p*1024}, v39")
            I(f"v_xor_b32 v{C_XR+2*p+1-p}, 64, v{C_XR+2*p+p}")
        I("v_lshl_add_u32 v38, v32, 3, v34")
        I("v_lshlrev_b32 v38, 7, v38")
        I("v_lshl_add_u32 v38, v35, 3, v38")
        I("v_lshrrev_b32 v39, 1, v34")
        I("v_and_b32 v40, 1, v32")
        I("v_lshl_or_b32 v39, v40, 1, v39")
        I(f"v_xor_b32 v41, {'s'+str(S_w) if att else 0}, v39")
        for t in range(4):
            I(f"v_xor_b32 v40, {t}, v41")
            I(f"v_lshl_add_u32 v{C_WR+t}, v40, 5, v38")
            I(f"v_add_u32 v{C_WR+4+t}, 0x10000, v{C_WR+t}")
        if att:
            I("v_lshrrev_b32 v38, 1, v33")
            I("v_xor_b32 v38, v38, v32")
            I("v_lshlrev_b32 v38, 4, v38")
            I("v_lshl_add_u32 v38, v33, 7, v38")
            I(f"v_add_u32 v{C_HA}, {HALO_LDS}, v38")
            I(f"v_xor_b32 v{C_HA+1}, 64, v{C_HA}")
            I(f"s_mul_i32 s{S_t0}, s{S_w}, 5120")
            I(f"s_add_u32 s{S_t0}, s{S_t0}, {EXCH_LDS+4096}")
            I(f"v_add_u32 v{C_EXW}, s{S_t0}, v{V_L16}")
    else:
        I("v_and_b32 v40, 1, v32")
        I("v_lshlrev_b32 v38, 3, v40")
        I("v_xor_b32 v38, 8, v38")
        I("v_xor_b32 v38, v38, v33")
        I("v_and_b32 v39, 8, v38")
        I("v_add_u32 v39, v39, v38")
        I("v_lshl_add_u32 v39, v40, 3, v39")
        I("v_lshlrev_b32 v39, 7, v39")
        I("v_lshrrev_b32 v38, 1, v38")
        I("v_lshlrev_b32 v41, 2, v40")
        I("v_xor_b32 v38, v38, v41")
        I("v_lshrrev_b32 v41, 1, v32")
        I("v_xor_b32 v38, v38, v41")
        I("v_lshl_add_u32 v39, v38, 4, v39")
        I(f"v_add_u32 v{C_XR}, s{S_m0b}, v39")
        for k in range(1, 4): I(f"v_xor_b32 v{C_XR+k}, {32*k}, v{C_XR}")
        I("v_lshl_add_u32 v38, v41, 3, v34")
        I("v_lshlrev_b32 v38, 7, v38")
        I("v_lshl_add_u32 v38, v35, 3, v38")
        I("v_lshl_add_u32 v38, v40, 5, v38")
        I("v_lshrrev_b32 v39, 1, v34")
        I(f"v_lshl_add_u32 v{C_WR}, v39, 6, v38")
        I(f"v_xor_b32 v{C_WR+1}, 64, v{C_WR}")
        for t in range(2): I(f"v_add_u32 v{C_WR+4+t}, 0x10000, v{C_WR+t}")
    if OPT["spf"] == 2 and not OPT["tearly"] and OPT["th"] < 0: vtouch(att)
    if OPT["spf"] == 1:
        P = 3072 if att else 3584; wp = 6 if att else 12
        I(f"s_lshl_b32 s{S_t0}, s{S_r}, 2"); I(f"s_add_u32 s{S_t0}, s{S_t0}, s{S_w}")
        I(f"s_mul_i32 s{S_t1}, s{S_t0}, {8*P}")
        I(f"s_mul_i32 s{S_t2}, s{S_q}, {256 if att else 896}"); I(f"s_add_u32 s{S_t1}, s{S_t1}, s{S_t2}")
        I(f"s_lshl_b32 s{S_t2}, s{S_j1}, 7"); I(f"s_add_u32 s{S_t2}, s{S_t2}, s{S_t1}")
        I(f"s_add_u32 s56, s{wp}, s{S_t2}"); I(f"s_addc_u32 s57, s{wp+1}, 0")
        for k in range(8): I(f"s_load_dword s{S_EV}, s[56:57], {k*P + (2048 if att else 512)}")
        if not att:
            I(f"s_mul_i32 s{S_t2}, s{S_j1}, {4*P}"); I(f"s_add_u32 s{S_t2}, s{S_t2}, s{S_t1}")
            I(f"s_add_u32 s56, s{wp}, s{S_t2}"); I(f"s_addc_u32 s57, s{wp+1}, 0")
            for k in range(4): I(f"s_load_dword s{S_EV}, s[56:57], {k*P + 768}")
        I(f"s_lshl_b32 s{S_t0}, s{S_t0}, 2"); I(f"s_add_u32 s{S_t0}, s{S_t0}, s{S_jj}")
        I(f"s_mul_i32 s{S_t1}, s{S_t0}, 1792"); I(f"s_mul_i32 s{S_t2}, s{S_q}, {448*1024}"); I(f"s_add_u32 s{S_t1}, s{S_t1}, s{S_t2}")
        I(f"s_add_u32 s56, s14, s{S_t1}"); I("s_addc_u32 s57, s15, 0")
        for k in range(14): I(f"s_load_dword s{S_EV}, s[56:57], {k*128}")
        I(f"s_lshl_b32 s{S_t1}, s{S_t0}, 9"); I(f"s_lshl_b32 s{S_t2}, s{S_q}, 17"); I(f"s_add_u32 s{S_t1}, s{S_t1}, s{S_t2}")
        I(f"s_add_u32 s56, s8, s{S_t1}"); I("s_addc_u32 s57, s9, 0")
        for k in range(4): I(f"s_load_dword s{S_EV}, s[56:57], {k*128}")
        I("s_waitcnt lgkmcnt(0)")
    if not OPT["hinit"]:
        l = U("ci")
        I(f"s_cmp_eq_u32 s{S_w}, 0"); I(f"s_cbranch_scc0 {l}")
        e.cond_begin()
        I(f"s_mov_b32 s{S_t1}, 1")
        I("s_waitcnt lgkmcnt(0)")
        I(f"s_atomic_add s{S_t1}, s[{S_DBG}:{S_DBG+1}], 0")
        e.cond_end(); e.label(l)
    if EG and not att:
        I("v_lshlrev_b32 v18, 4, v32"); I(f"v_add_u32 v18, {GW_LDS}, v18")
    I("s_waitcnt vmcnt(0)")
    stamp("c_go")
    def xfr(p, s): return ar((p * 16 + s) * 4)
    def xf32(s16): return ar(s16 * 4)
    def acc(c, T, p=0):
        base = C_ACC + 32 * (c & 1)
        if att: return base + (T * 2 + p) * 4
        if M: return base + T * 16
        return base + (((T >> 1) * 2 + p) * 2 + (T & 1)) * 4
    def xread(dst, areg, slot, tmp, k):
        base = slot * SLOT
        if base >= 65536:
            I(f"v_add_u32 v{tmp}, {base & ~0xffff}, v{areg}"); areg = tmp
        I(f"ds_read_b128 {dst}, v{areg} offset:{base & 0xffff}", tag=f"w{k}")
    steps = []; nh = [0]
    for i, un in enumerate(subs):
        _, c, u = un; slot = slot_of[un]
        for j in range(16):
            h = j >> 3
            if n16:
                ks = (j >> 1) & 3; T = 2 * h + (j & 1); s = 4 * u + ks; zero = (u == 0 and ks == 0); ta = T
                if c == 3: s = 4 * (u + 2 * h) + ks; ta = j & 1; zero = (u == 0 and h == 0 and ks == 0)
                halo = att and T == 0 and c != 1
                st = dict(rd=(C_WR + (4 if slot >= 4 else 0) + T, (slot & 3) * SLOT + ks * 4096, 512))
                def mf(W, st, s=s, T=ta, zero=zero, c=c, halo=halo):
                    out = []
                    for p in range(2):
                        a, b = (xfr(p, s), W) if (att and c == 2) else (W, xfr(p, s))
                        d = vr(acc(c, T, p))
                        out.append(f"{MF} {d}, {a}, {b}, {'0' if zero else d}")
                    if "gate" in st:
                        gs, gp = st["gate"]
                        out.append(f"{MF} {vr(24+4*gp)}, {vr(56+4*(gs&1))}, {xfr(gp,gs)}, {'0' if gs == 0 else vr(24+4*gp)}")
                    if halo:
                        a, b = (vr(st["hreg"]), W) if c == 2 else (W, vr(st["hreg"]))
                        out.append(f"{MF} {vr(C_HACC)}, {a}, {b}, {'0' if zero else vr(C_HACC)}")
                    return out
                if EG and not att and c == 1 and j % 4 >= 2: st["gate"] = (4 * u + (j >> 2), j & 1)
                def post(k, st=st, s=s, halo=halo, j=j, c=c, u=u, ks=ks):
                    if EG and not att and c == 1 and j % 4 == 2:
                        if j == 2:
                            I(f"s_add_u32 s{S_t0}, s{S_rot}, {u}"); I(f"s_and_b32 s{S_t0}, s{S_t0}, 3"); I(f"s_lshl_b32 s{S_t0}, s{S_t0}, 8")
                            I(f"v_add_u32 v19, s{S_t0}, v18")
                        I(f"ds_read_b128 {vr(56+4*((j>>2)&1))}, v19 offset:{(j>>2)*64}", tag=f"w{k}")
                    if c == 0 and j < 8 and j % 2 == 0:
                        for p in range(2): xread(xfr(p, s), C_XR + 2 * p + (ks & 1), slot_of[("x", u, ks >> 1)], 1 + p, k)
                    if att and c == 2 and u == 2 and j == 11 and OPT["u19"]: d_read("Lv3", "chk11")
                    if halo:
                        st["hreg"] = C_HX[nh[0] % 3]; nh[0] += 1
                        I(f"ds_read_b128 {vr(st['hreg'])}, v{C_HA+(s&1)} offset:{(s>>1)*2048}", tag=f"w{k}")
            else:
                kk = j & 7
                if c < 3: s16 = 8 * u + kk; ta = h; zero = (u == 0 and kk == 0)
                else: s16 = 8 * (u + 2 * h) + kk; ta = 0; zero = (u == 0 and j == 0)
                st = dict(rd=(C_WR + (4 if slot >= 4 else 0) + h, (slot & 3) * SLOT + kk * 2048, 512))
                d = vr(acc(c, ta), 16)
                def mf(W, st, s16=s16, d=d, zero=zero): return [f"{M32} {d}, {W}, {xf32(s16)}, {'0' if zero else d}"]
                def post(k, s16=s16, j=j, c=c, u=u, kk=kk):
                    if c == 0 and j < 8: xread(xf32(s16), C_XR + (kk & 3), slot_of[("x", u, kk >> 2)], 1 + (kk & 1), k)
            st["mf"] = mf; st["post"] = post
            if j == 0:
                def pre(i=i):
                    stamp(f"t{i}")
                    if att and i == 8:
                        assert e.lgq[0][0].count("exw0") == 5 + OPT["n9"]
                        e.wait(lg="exw0")
                    if att and slot_of[subs[i]] >= 8:
                        for t in range(4): I(f"v_add_u32 v{C_WR+4+t}, 0x10000, v{C_WR+4+t}")
                    if att and i and slot_of[subs[i-1]] >= 8:
                        for t in range(4): I(f"v_subrev_u32 v{C_WR+4+t}, 0x10000, v{C_WR+4+t}")
                    if not att and i - OPT["ackb"] in (0, 1):
                        assert e.vmq[0][0].count(f"st{i-OPT['ackb']}") == 4
                        e.wait(vm=f"st{i-OPT['ackb']}")
                        if EG and i - OPT["ackb"] == 1: e.wait(vm="stg")
                    if i < (9 if att else 14): I("s_barrier")
                    if att and i == 11 and OPT["u19"]: d_check("Lv3", "chk11")
                    stamp(f"s{i}")
                    if att and M and i == 8:
                        for t in range(8): I(f"v_xor_b32 v{C_WR+t}, v19, v{C_WR+t}")
                st["pre"] = pre
            steps.append(st)
    if att: S = Stream(steps, OPT["D"], [32, 36, 40, 44, 48, 52, 20])
    else: S = Stream(steps, OPT["DF"], [32, 36, 40, 44, 48, 52, 20])
    DD = S.D
    def packn(a, n_): return [lambda k=k: I(f"v_cvt_pk_bf16_f32 v{a+k}, v{a+2*k}, v{a+2*k+1}") for k in range(n_)]
    def epi(c, h):
        F = []
        if att:
            for t in (2 * h, 2 * h + 1):
                a = acc(c, t, 0)
                F += packn(a, 4)
                def wr(t=t, a=a):
                    I(f"v_xor_b32 v1, {t*1024}, v{C_EXW}")
                    if c == 1: I(f"v_add_u32 v1, {(QSLOT*SLOT - EXCH_LDS - 4096) & 0xffffffff}, v1")
                    I(f"ds_write_b128 v1, {vr(a)}", tag=f"exw{c}")
                F.append(wr)
            if h == 0 and c != 1:
                def hw():
                    I(f"v_cvt_pk_bf16_f32 v{C_HACC}, v{C_HACC}, v{C_HACC+1}")
                    I(f"v_cvt_pk_bf16_f32 v{C_HACC+1}, v{C_HACC+2}, v{C_HACC+3}")
                    I(f"s_add_u32 s{S_t0}, s{S_m0b}, 4096")
                    I(f"v_subrev_u32 v1, s{S_t0}, v{C_EXW}")
                    I(f"ds_write2_b64 v1, {vr(C_HACC,2)}, {vr(C_HACC,2)} offset0:0 offset1:1", tag=f"exw{c}")
                F.append(hw)
                if c == 0 and OPT["n9"]: F.append(ev_init)
        else:
            a = acc(c, h) if M else acc(c, 2 * h, 0)
            F += packn(a, 8)
            def so():
                I(f"s_lshr_b32 s{S_GIN}, s{S_J32}, {2 if c < 3 else 3}")
                I(f"s_add_u32 s{S_GIN}, s{S_GIN}, s{S_A2}"); I(f"s_add_u32 s{S_GIN}, s{S_GIN}, {(4*c+h)*8192}")
            F.append(so)
            for p in range(2):
                F += [lambda k=k: I(f"v_pk_max_i16 v{k}, v{k}, 0") for k in range(a + 4 * p, a + 4 * p + 4)]
                F.append(cost(9, lambda p=p: I(f"buffer_store_dwordx4 {vr(a+4*p)}, v{V_L16}, {srd(S_WS)}, s{S_GIN} offen offset:{p*1024} sc1", tag=f"st{c}")))
        return F
    n = len(steps)
    for c, i, reuse in ((0, 6, 8), (1, 7, 12), (2, 11, 99)):
        for h in range(2):
            k = 16 * i + 8 * h + 7
            if k == n - 1: continue
            dl = min(16 * reuse + (8 * h if reuse == 8 else 0), n)
            if att and c < 2: dl = 16 * 8 - DD - 3 if c == 0 else OPT["kq"] - 1
            S.aft(k, lambda k=k, c=c, h=h, dl=dl: S.add(max(k + (2 if n16 else 4), 16 * 7 - DD + 1 if att else 0), dl, epi(c, h)))
    if att:
        def qbar():
            assert e.lgq[0][0].count("exw1") == 4
            e.wait(lg="exw1"); I("s_barrier")
        assert OPT["kq"] < 16 * 9 - DD
        S.aft(OPT["kq"], qbar)
    if EG and not att:
        def gst():
            I(f"s_lshl_b32 s{S_t0}, s{S_r}, 2"); I(f"s_add_u32 s{S_t0}, s{S_t0}, s{S_q}"); I(f"s_lshl_b32 s{S_t0}, s{S_t0}, 12")
            I(f"s_lshr_b32 s{S_t1}, s{S_m0b}, 2"); I(f"s_add_u32 s{S_t0}, s{S_t0}, s{S_t1}"); I(f"s_add_u32 s{S_t0}, s{S_t0}, {GA_OFF}")
            I(f"s_lshl_b32 s{S_t1}, s{S_j1}, 28"); I(f"s_add_u32 s{S_t0}, s{S_t0}, s{S_t1}")
            I(f"buffer_store_dwordx4 {vr(56)}, v{V_L16}, {srd(S_WS)}, s{S_t0} offen sc1", tag="stg")
        S.aft(16 * 8, lambda: S.add(0, 16 * (OPT["ackb"] + 1) - 12, [lambda t=t: I(t) for t in gate_math(24, 28, 56, 3)] + [gst]))
    if STG:
        I(f"s_mov_b32 s{S_POLL}, 0")
        S.aft(n - 24, poll_load)
    S.run(OPT["side"] if att else OPT["sidef"])
    stamp("c_end")
    if not att: I("s_barrier")
    for f in (epi(2, 1) if att else epi(3, 0)): f()
    if att:
        e.wait(lg="exw2")
        I("s_barrier")
    if OPT["cprio"] != 2: I(f"s_setprio {OPT['cprio']}")
    if STG:
        I("s_setprio 3")
        def pair(lam, slot):
            I(f"s_add_u32 m0, s{S_m0b}, {slot*SLOT}")
            a2_soff(lam, S_SOFF)
            for i in range(4):
                if i == 2: I(f"s_add_u32 s{S_SOFF}, s{S_SOFF}, {8192-2048}")
                I(f"buffer_load_dwordx4 v{V_L16}, {srd(S_WS)}, s{S_SOFF} offen offset:{i*1024} sc1 lds")
        B = lambda g: b2_unit(g, 4, False)
        b2_voffs(4)
        if att: I("s_barrier")
        else:
            assert e.vmq[0][0].count("st2") == 4
            e.wait(vm="st2"); push_group(ownbit(2), (0, 1, 2, 3))
        poll_check(0x22)
        pair(4, 6); dsig("S1")
        B(3); pair(6, 7); dsig("S2")
        if not att:
            e.wait(vm="st3"); push_group(ownbit(3), (0, 1, 2, 3))
        poll_load()
        B(4); poll_check(0x44); pair(8, 8); dsig("S3"); poll_load()
        B(5)
        I(f"s_lshr_b32 s{S_t1}, s{S_m0b}, 2"); I(f"s_add_u32 m0, s{S_t1}, {GB_LDS}")
        I(f"s_lshl_b32 s{S_t0}, s{S_r}, 2"); I(f"s_add_u32 s{S_t0}, s{S_t0}, s{S_q}"); I(f"s_lshl_b32 s{S_t0}, s{S_t0}, 12")
        I(f"s_add_u32 s{S_t0}, s{S_t0}, s{S_t1}"); I(f"s_add_u32 s{S_t0}, s{S_t0}, {GA_OFF}")
        I(f"buffer_load_dwordx4 v{V_L16}, {srd(S_WS)}, s{S_t0} offen sc1 lds")
        stamp("c_pa")
        I("s_barrier")
        pair(10, 0); dsig("S4"); B(6)
        poll_check(0x88); pair(12, 1); dsig("S5"); poll_load()
        stamp("c_pb")
        I("s_barrier")
        poll_load()
        B(8); B(7)
        if att:
            I(f"s_xor_b32 s{S_THR}, s{S_jj}, 1"); I(f"s_lshl_b32 s{S_THR}, 64, s{S_THR}")
            poll_check(f"s{S_THR}")
        else:
            poll_check(0x300); pair(16, 2)
        pair(14, 3); dsig("S6")
    else:
        rest = [3, 4, 5, 6, 8, 7]
        def cunit():
            g = rest.pop(0)
            if att and g == 8 and not OPT["vb2"]:
                t = U("t"); d_read("VD", t); d_check("VD", t)
            b2_unit(g, 4, g in SIGG)
        if not att:
            assert e.vmq[0][0].count("st2") == 4
            e.wait(vm="st2"); push_group(ownbit(2), (0, 1, 2, 3))
            stamp("c_f2")
            b2_voffs(4)
            if OPT["lowp"]: I("s_setprio 0")
            cunit(); cunit()
        if EG:
            if att:
                b2_voffs(4)
                if OPT["vb2"]: I("s_barrier")
                if OPT["lowp"]: I("s_setprio 0")
                cunit(); cunit()
            else:
                e.wait(vm="st3"); push_group(ownbit(3), (0, 1, 2, 3))
        else:
            I("s_setprio 2")
            stamp("c_g0")
            I("v_lshrrev_b32 v9, 4, v0")
            if n16:
                I("v_lshlrev_b32 v8, 4, v9")
            else:
                I("v_lshrrev_b32 v8, 5, v0"); I("v_lshlrev_b32 v8, 4, v8")
                I("v_xor_b32 v9, v9, v0"); I("v_and_b32 v9, 1, v9")
                I("v_cmp_eq_u32 vcc, 0, v9")
            NG = 16 if n16 else 32; per = NG // 4
            RB = [32 + 4 * k for k in range(8)]
            def gread(s_):
                if s_ % per == 0:
                    I(f"s_add_u32 s{S_t0}, s{S_rot}, {s_//per}"); I(f"s_and_b32 s{S_t0}, s{S_t0}, 3"); I(f"s_lshl_b32 s{S_t0}, s{S_t0}, 8")
                    I(f"s_add_u32 s{S_t0}, s{S_t0}, {GW_LDS}")
                    I(f"v_add_u32 v10, s{S_t0}, v8")
                    if not n16:
                        I(f"v_mov_b32 v11, {ZERO_LDS}"); I("v_cndmask_b32 v10, v11, v10, vcc")
                I(f"ds_read_b128 {vr(RB[s_%8])}, v10 offset:{(s_%per)*(64 if n16 else 32)}", tag=f"g{s_}")
            for s_ in range(6): gread(s_)
            if att:
                b2_voffs(4)
                I("s_barrier")
                cunit()
            for s_ in range(NG):
                e.wait(lg=f"g{s_}")
                if n16:
                    for p in range(2): I(f"{MF} {vr(64+4*p)}, {vr(RB[s_%8])}, {xfr(p,s_)}, {'0' if s_ == 0 else vr(64+4*p)}")
                else:
                    I(f"{MF} {vr(64)}, {vr(RB[s_%8])}, {xf32(s_)}, {'0' if s_ == 0 else vr(64)}")
                if s_ + 6 < NG: gread(s_ + 6)
                if s_ == NG // 2 and rest: cunit()
            if not att:
                e.wait(vm="st3"); push_group(ownbit(3), (0, 1, 2, 3))
                stamp("c_f3")
            cunit()
            z1 = 68 if n16 else 65; G = 72
            T = gate_math(64, z1, G, 1)
            for t in T: I(t)
            I(f"s_lshl_b32 s{S_t0}, s{S_w}, 8"); I(f"s_add_u32 s{S_t0}, s{S_t0}, {GB_LDS}")
            I(f"v_lshl_add_u32 v1, v0, 3, s{S_t0}")
            I("s_mov_b64 exec, 0xffff")
            I(f"ds_write_b64 v1, {vr(G,2)}", tag="gz")
            I(f"ds_write_b64 v1, {vr(G+2,2)} offset:128", tag="gz")
            I("s_mov_b64 exec, -1")
            e.wait(lg="gz")
            if OPT["lowp"]: I("s_setprio 0")
            dsig("G")
        stamp("c_g1")
        while rest:
            throttle(); cunit()
    if OPT["crx"]:
        I("s_setprio 3")
        I(f"s_mov_b32 s{S_POLL}, 0")
        poll_check(2)
        I(f"s_lshl_b32 s{S_t0}, s{S_r}, 2"); I(f"s_add_u32 s{S_t0}, s{S_t0}, s{S_q}"); I(f"s_lshl_b32 s{S_t0}, s{S_t0}, 12")
        I(f"s_lshr_b32 s{S_t1}, s{S_m0b}, 2"); I(f"s_add_u32 s{S_t0}, s{S_t0}, s{S_t1}"); I(f"s_add_u32 s{S_t0}, s{S_t0}, {GA_OFF}")
        I(f"buffer_load_dwordx4 {vr(20)}, v{V_L16}, {srd(S_WS)}, s{S_t0} offen sc1", tag="gz")
        pb_setup(); out_addr()
        I(f"v_add_u32 v1, s{S_m0b}, v{V_L16}")
        I("s_barrier")
        O = 64
        for tau in range(3):
            poll_check(1024 << tau)
            stamp(f"c_r{tau}")
            for j in range(2):
                I(f"buffer_load_dwordx4 {vr(24+tau*8+j*4)}, v{V_L16}, {srd(S_WS)}, s{S_GIN} offen offset:{j*1024} sc1", tag=f"r{tau}")
            if tau < 2: I(f"s_add_u32 s{S_GIN}, s{S_GIN}, 8192")
        def unpack(tau, b):
            e.wait(vm=f"r{tau}")
            for k in range(8):
                I(f"v_lshlrev_b32 v{b+2*k}, 16, v{24+tau*8+k}")
                I(f"v_and_b32 v{b+2*k+1}, 0xffff0000, v{24+tau*8+k}")
        def addv(d, b):
            for k in range(16): I(f"v_add_f32 v{d+k}, v{d+k}, v{b+k}")
        unpack(0, 80); unpack(1, 96); addv(80, 96)
        I("s_barrier")
        for j in range(4): I(f"ds_read_b128 {vr(O+4*j)}, v1 offset:{j*1024}", tag="own")
        unpack(2, 96)
        for k in range(8): I(f"v_pk_add_f32 {vr(80+2*k,2)}, {vr(80+2*k,2)}, {vr(96+2*k,2)}")
        e.wait(lg="own")
        for k in range(8): I(f"v_pk_add_f32 {vr(O+2*k,2)}, {vr(O+2*k,2)}, {vr(80+2*k,2)}")
        for k in range(8): I(f"v_pk_mul_f32 {vr(O+2*k,2)}, {vr(O+2*k,2)}, {vr(20+2*(k>>2),2)} op_sel_hi:[1,0]")
        stamp("c_sum")
        for k in range(8): I(f"v_cvt_pk_bf16_f32 v{O+k}, v{O+2*k}, v{O+2*k+1}")
        for j in range(2):
            I(f"v_permlane16_swap_b32 v{O+4*j}, v{O+4*j+2}")
            I(f"v_permlane16_swap_b32 v{O+4*j+1}, v{O+4*j+3}")
            I(f"buffer_store_dwordx4 {vr(O+4*j)}, v{4+j}, {srd(S_OUT)}, s{S_COL} offen offset:{j*1024}")
        finish()
        return
    if OPT["dummy"]:
        I(f"s_lshl_b32 s{S_t0}, s2, 2"); I(f"s_add_u32 s{S_t0}, s{S_t0}, s{S_w}"); I(f"s_mul_i32 s{S_t0}, s{S_t0}, 9216"); I(f"s_add_u32 s{S_t0}, s{S_t0}, {20<<20}")
        for k in range(9):
            I(f"buffer_store_dwordx4 {vr(64)}, v{V_L16}, {srd(S_WS)}, s{S_t0 if OPT['dummy'] == 1 else S_WS+2} offen")
            I(f"s_add_u32 s{S_t0}, s{S_t0}, 1024")
    I("s_waitcnt vmcnt(0) lgkmcnt(0)")
    finish()

c_prog(False)
e.label("L_c_att")
c_prog(True)

e.label("L_end")
I("s_endpgm")
e.raw('.section .rodata,"a"')
e.raw(".p2align 6")
e.raw(f".amdhsa_kernel {NAME}_kernel")
e.raw("  .amdhsa_next_free_vgpr 256")
e.raw("  .amdhsa_next_free_sgpr 102")
e.raw("  .amdhsa_accum_offset 128")
e.raw("  .amdhsa_group_segment_fixed_size 0")
e.raw("  .amdhsa_kernarg_size 80")
e.raw("  .amdhsa_user_sgpr_count 2")
e.raw("  .amdhsa_user_sgpr_kernarg_segment_ptr 1")
e.raw("  .amdhsa_system_sgpr_workgroup_id_x 1")
e.raw(".end_amdhsa_kernel")
sys.stdout.write(e.text())
sys.stderr.write(f"instructions {e.nins} nop-states {e.nops}\n")
```

```python
import sys, struct
from emit import Em

NAME = "gated_mix__sliding_local_dilated__dense_activation_relu__prompt"
OPT = dict(padt=6000, padk=-1, padr=0, stamp=0, D=4, DF=4, D2=5, codepf=1, spin=400000, lround=0, side=2, sidef=2, side2=3,
           ld=2, thr=5, pre=5, pfd=18, ackb=10, cprio=2, dummy=0, sch=1, tm=0, qb=0, rotq=2, spf=2, tearly=0, tB=0, tfull=0, th=6, gap=1, kc=30, kh=52, ko=64, lowp=1, tatt=0, m32=0, fp=8, u19=0, tha=6, of=0, eg=1, pfe=2, hinit=0, pb=9, n9=1, kq=135, vb2=1, pkm=1, stg=0, a47=2, crx=0, tw=0, ev0=1, lead=8, pba=50, pbb=66)
CST = ["s0", "s2", "s4", "s6", "s8", "s10", "s12", "c_end"]
HST = ["h_b0", "h_b7", "h_p2", "h_late", "h_o", "h_own", "h_rcv", "h_sum"]
for a in sys.argv[1:]:
    k, v = a.split("=")
    if k == "cst": CST = v.split(",")
    elif k == "hst": HST = v.split(",")
    else:
        assert k in OPT, k
        OPT[k] = int(v)
STAMP = OPT["stamp"]; M = OPT["m32"]; EG = OPT["eg"]
assert EG and not M
assert not OPT["u19"] and OPT["th"] >= 0
STG = OPT["stg"]
if STG: OPT["ld"] = 8; assert OPT["vb2"]
GA_OFF = (9 << 20) + (512 << 10)
def f2u(x): return struct.unpack("<I", struct.pack("<f", x))[0]

PART_OFF = 10 << 20
INB_OFF = 32 << 20
STAMP_OFF = 33 << 20
WS_BYTES = 36 << 20
SLOT = 16384
HALO_LDS = 7 * SLOT
EXCH_LDS = 8 * SLOT
EV_LDS = EXCH_LDS + 20480
ZERO_LDS = EV_LDS + 256
GW_LDS = EV_LDS + 1024
GB_LDS = EV_LDS + 2048
NEG = f2u(-1e30)
def SEV(att): return HALO_LDS + 3 * 4096 if att else EV_LDS + 512

e = Em()
I = e.I
def vr(b, n=4): return f"v[{b}:{b+n-1}]"
def ar(b, n=4): return f"a[{b}:{b+n-1}]"
def srd(b): return f"s[{b}:{b+3}]"
MF = "v_mfma_f32_16x16x32_bf16"
M32 = "v_mfma_f32_32x32x16_bf16"

S_X, S_W, S_WS, S_OUT, S_W2, S_WO, S_GW = 24, 28, 32, 36, 40, 44, 48
S_INB = 52; S_DBG = 54
S_w, S_r, S_jj, S_rot, S_q, S_m0b, S_j1 = 60, 61, 62, 63, 64, 65, 66
S_t0, S_t1, S_t2 = 3, 67, 68
S_BUD = 69; S_EV = 70; S_SOFF = 71
S_POLL = 74; S_MYIN = 75; S_CEXP = 76; S_THR = 77; S_W4 = 79
S_KG = 80; S_WK = 84
S_COL = 88; S_A2 = 89; S_B2 = 90; S_BO = 91; S_PB = 92; S_J32 = 93; S_GIN = 94; S_P = 95
S_STAMP = 4
EVD = {}
def evd(name):
    if name not in EVD: EVD[name] = len(EVD)
    assert EVD[name] < 16
    return EVD[name] * 16
role = ["H"]
def stamp(name):
    L = CST if role[0] == "C" else HST
    if name == "end": idx = 8
    elif name in L: idx = L.index(name)
    else: return
    if STAMP == 2 and idx < 4:
        I(f"s_memtime s[{S_STAMP+2*idx}:{S_STAMP+2*idx+1}]"); I(f"s_memrealtime s[{S_STAMP+2*idx+8}:{S_STAMP+2*idx+9}]")
    elif STAMP == 3: I(f"s_memrealtime s[{S_STAMP+2*idx}:{S_STAMP+2*idx+1}]")
    elif STAMP: I(f"s_memtime s[{S_STAMP+2*idx}:{S_STAMP+2*idx+1}]")
uid = [0]
def U(p):
    uid[0] += 1
    return f"L_{p}{uid[0]}"
def reset():
    e.vmq = [[[], 0]]; e.lgq = [[[], 0]]; e.hist = []
V_L16 = 16; V_EVW = 17; V_CHK = 3
SLOW = []
def flush_slow():
    for l in SLOW: e.raw(l)
    SLOW.clear()
def spin_tail(lp, ok):
    return [f"    s_sub_u32 s{S_BUD}, s{S_BUD}, 1", f"    s_cbranch_scc0 {lp}", f"    s_mov_b32 s{S_BUD}, 0", f"    s_branch {ok}"]
def dsig(name):
    I(f"s_add_u32 m0, s{S_W4}, {EV_LDS + evd(name)}")
    I("s_mov_b64 exec, 1")
    I(f"buffer_load_dword v{V_L16}, {srd(S_WO)}, s{S_WO+2} offen lds", tag="dsig")
    I("s_mov_b64 exec, -1")
def d_read(name, tag): I(f"ds_read_b32 v{V_CHK}, v{V_EVW} offset:{evd(name)}", tag=tag)
def d_check(name, tag):
    ok = U("ok"); lp = U("sp")
    e.wait(lg=tag)
    I(f"v_cmp_ne_u32 vcc, 0, v{V_CHK}")
    I(f"s_cbranch_vccnz {lp}")
    e.label(ok)
    SLOW.extend([f"{lp}:", f"    ds_read_b32 v{V_CHK}, v{V_EVW} offset:{evd(name)}", "    s_waitcnt lgkmcnt(0)", f"    v_cmp_ne_u32 vcc, 0, v{V_CHK}",
                 f"    s_cbranch_vccz {ok}", "    s_sleep 1"] + spin_tail(lp, ok))
def throttle():
    n = OPT["thr"]
    I(f"s_waitcnt vmcnt({n})")
    for q in e.vmq: q[1] = max(q[1], len(q[0]) - n)
def poll_load():
    I(f"s_load_dword s{S_POLL}, s[{S_INB}:{S_INB+1}], s{S_MYIN} glc")
def poll_check(mask):
    ok = U("pk"); lp = U("pl")
    I(f"s_andn2_b32 s{S_EV}, {mask}, s{S_POLL}")
    I(f"s_cbranch_scc1 {lp}")
    e.label(ok)
    SLOW.extend([f"{lp}:", "    s_waitcnt lgkmcnt(0)", f"    s_andn2_b32 s{S_EV}, {mask}, s{S_POLL}", f"    s_cbranch_scc0 {ok}",
                 f"    s_load_dword s{S_POLL}, s[{S_INB}:{S_INB+1}], s{S_MYIN} glc"] + spin_tail(lp, ok))
def push_group(bit_fn, ds):
    bit_fn()
    for d in ds:
        I(f"s_xor_b32 s{S_t0}, s{S_MYIN}, {d*512}")
        I(f"s_atomic_or s{S_t2}, s[{S_INB}:{S_INB+1}], s{S_t0}")
def ownbit(b):
    def f():
        I(f"s_lshl_b32 s{S_t2}, s{S_jj}, 2"); I(f"s_lshl_b32 s{S_t2}, {1<<b}, s{S_t2}")
    return f
def mk_srd(b, p, nbytes):
    I(f"s_mov_b32 s{b}, s{p}")
    I(f"s_and_b32 s{b+1}, s{p+1}, 0xffff")
    I(f"s_mov_b32 s{b+2}, {nbytes}")
    I(f"s_mov_b32 s{b+3}, 0x20000")
def b2_voffs(dst):
    I("v_lshrrev_b32 v1, 3, v0")
    if M:
        I("v_bfe_u32 v2, v0, 4, 1")
        I("v_lshlrev_b32 v2, 2, v2")
    else:
        I("v_lshrrev_b32 v2, 4, v0")
        I("v_lshlrev_b32 v2, 1, v2")
    I(f"v_and_b32 v{dst}, 7, v0")
    I(f"v_xor_b32 v{dst}, v{dst}, v2")
    I(f"v_lshlrev_b32 v{dst}, 4, v{dst}")
    I(f"v_lshl_add_u32 v{dst}, v1, 10, v{dst}")
    for i in range(1, 4): I(f"v_add_u32 v{dst+i}, {i*7168}, v{dst}")
def late_scalars():
    I(f"s_lshl_b32 s{S_W4}, s{S_w}, 2")
    I(f"s_mov_b32 s{S_BUD}, {OPT['spin']}")
    I(f"s_and_b32 s{S_j1}, s{S_jj}, 1")
    I(f"s_lshl_b32 s{S_t0}, s{S_jj}, 8")
    I(f"s_lshr_b32 s{S_t1}, s{S_w}, 1")
    I(f"s_lshl_b32 s{S_t1}, s{S_t1}, 7")
    I(f"s_add_u32 s{S_t0}, s{S_t0}, s{S_t1}")
    I(f"s_and_b32 s{S_t1}, s{S_w}, 1")
    I(f"s_lshl_b32 s{S_t1}, s{S_t1}, 15")
    I(f"s_add_u32 s{S_t0}, s{S_t0}, s{S_t1}")
    I(f"s_mul_i32 s{S_B2}, s{S_q}, {14*32768}")
    I(f"s_add_u32 s{S_B2}, s{S_B2}, s{S_t0}")
    I(f"s_lshl_b32 s{S_BO}, s{S_q}, 17")
    I(f"s_add_u32 s{S_BO}, s{S_BO}, s{S_t0}")
    I(f"s_lshl_b32 s{S_J32}, s{S_j1}, 16")
    I(f"s_lshl_b32 s{S_t0}, s{S_r}, 2")
    I(f"s_add_u32 s{S_t0}, s{S_t0}, s{S_q}")
    I(f"s_mul_i32 s{S_A2}, s{S_t0}, {18*8192}")
    I(f"s_lshl_b32 s{S_t1}, s{S_w}, 11")
    I(f"s_add_u32 s{S_A2}, s{S_A2}, s{S_t1}")
    I(f"s_lshl_b32 s{S_MYIN}, s{S_t0}, 2")
    I(f"s_add_u32 s{S_MYIN}, s{S_MYIN}, s{S_jj}")
    I(f"s_lshl_b32 s{S_MYIN}, s{S_MYIN}, 2")
    I(f"s_add_u32 s{S_MYIN}, s{S_MYIN}, s{S_w}")
    I(f"s_lshl_b32 s{S_MYIN}, s{S_MYIN}, 7")
    I(f"v_lshlrev_b32 v{V_L16}, 4, v0")
    I(f"v_and_b32 v{V_EVW}, 3, v0")
    I(f"v_lshlrev_b32 v{V_EVW}, 2, v{V_EVW}")
    I(f"v_add_u32 v{V_EVW}, {EV_LDS}, v{V_EVW}")
def common_ptrs():
    I(f"s_add_u32 s{S_INB}, s22, {INB_OFF}")
    I(f"s_addc_u32 s{S_INB+1}, s23, 0")
    I(f"s_lshl_b32 s{S_t0}, s{S_r}, 4")
    I(f"s_add_u32 s{S_DBG}, s20, s{S_t0}")
    I(f"s_addc_u32 s{S_DBG+1}, s21, 0")
    mk_srd(S_WS, 22, WS_BYTES)
    mk_srd(S_W2, 14, 1792 * 1024)
    mk_srd(S_WO, 8, 512 * 1024)
def dma4(voff, srdb, tag):
    for i in range(4):
        I(f"buffer_load_dwordx4 v{voff+i}, {srd(srdb)}, s{S_SOFF} offen offset:{i*1024} lds", tag=tag)
def b2_unit(g, voff, sig=True):
    I(f"s_add_u32 m0, s{S_m0b}, {g*SLOT}")
    if g < 7: I(f"s_add_u32 s{S_SOFF}, s{S_B2}, {g*65536}")
    else:
        I(f"s_xor_b32 s{S_SOFF}, s{S_J32}, {((g-7)^1)*65536}")
        I(f"s_add_u32 s{S_SOFF}, s{S_SOFF}, s{S_BO}")
    dma4(voff, S_W2 if g < 7 else S_WO, f"b{g}")
    if sig: dsig(f"Lb{g}")
def a2_soff(lam, dst):
    if lam < 14: I(f"s_add_u32 s{dst}, s{S_A2}, {lam*8192}")
    else:
        I(f"s_lshr_b32 s{dst}, s{S_J32}, 2"); I(f"s_xor_b32 s{dst}, s{dst}, {((lam-14)^2)*8192}")
        I(f"s_add_u32 s{dst}, s{dst}, s{S_A2}"); I(f"s_add_u32 s{dst}, s{dst}, {14*8192}")
def after_karg():
    I("s_waitcnt lgkmcnt(0)")
    if STAMP:
        I("s_memrealtime s[100:101]" if STAMP == 3 else "s_memtime s[100:101]")
        I("s_mov_b32 s72, s96")
        I("s_mov_b32 s73, s98")
def finish():
    if STAMP:
        I("s_waitcnt vmcnt(0)")
        stamp("end")
        I("s_memrealtime s[22:23]")
        I("s_waitcnt lgkmcnt(0)")
        I(f"s_lshl_b32 s{S_t0}, s2, 3")
        I(f"s_add_u32 s{S_t0}, s{S_t0}, s{S_w}")
        if role[0] == "H": I(f"s_add_u32 s{S_t0}, s{S_t0}, 4")
        I(f"s_lshl_b32 s{S_t0}, s{S_t0}, 6")
        I(f"s_add_u32 s{S_t0}, s{S_t0}, {STAMP_OFF}")
        I(f"v_mov_b32 v2, s{S_t0}")
        for k in range(9): I(f"v_mov_b32 v{32+k}, s{S_STAMP+2*k}")
        I("v_mov_b32 v41, s73"); I("v_mov_b32 v42, s22"); I("v_mov_b32 v43, s72"); I("v_mov_b32 v44, s100")
        I(f"v_mov_b32 v45, s{S_BUD}"); I("v_mov_b32 v46, 0")
        I("s_mov_b64 exec, 1")
        for k in range(4): I(f"buffer_store_dwordx4 {vr(32+4*k)}, v2, {srd(S_WS)}, 0 offen offset:{16*k}")
    if STAMP >= 3:
        if OPT["padk"] >= 0 and (OPT["padr"] == 1) == (role[0] == "H"):
            I(f"s_sub_u32 s24, s{100 if OPT['padk'] == 9 else S_STAMP+2*OPT['padk']}, s{73 if STAMP == 3 else 72}")
            if STAMP == 4: I("s_lshr_b32 s24, s24, 4")
        else: I("s_mov_b32 s24, 0")
        I(f"s_add_u32 s24, s24, {OPT['padt']}")
        l = U("pad")
        e.label(l)
        I("s_memrealtime s[26:27]"); I("s_waitcnt lgkmcnt(0)"); I("s_sub_u32 s25, s26, s73"); I("s_cmp_lt_u32 s25, s24"); I(f"s_cbranch_scc1 {l}")
    I("s_endpgm")
    flush_slow()
def units(att):
    L = []
    for u in range(4): L += [("x", u, 0), ("x", u, 1), ("g", 0, u), ("g", 1, u)]
    L += [("g", 2, u) for u in range(4)]
    if not att: L += [("g", 3, 0), ("g", 3, 1)]
    return L
def phys(att, k):
    if not att: return (k - 14) % 9
    if OPT["n9"]: return {2: 0, 3: 8, 4: 9, 5: 1, 6: 2, 7: 3, 8: 4, 0: 5, 1: 6}[k % 9]
    i = (k - 13) % 8
    return 8 if i == 7 else i
QSLOT = 0
SIGG = (2, 3, 4, 6, 7)
CHKG = {2: 2, 3: 3, 4: 4, 5: 6, 6: 6, 8: 7, 7: 7}

class Stream:
    def __init__(self, steps, depth, ring):
        self.steps = steps; self.side = []; self.after = {}; self.D = depth; self.ring = ring
        assert len(ring) >= depth + 2
    def add(self, ready, deadline, fns):
        for f in fns: self.side.append([ready, deadline, f])
    def aft(self, k, f):
        prev = self.after.get(k)
        self.after[k] = (lambda: (prev(), f())) if prev else f
    def issue(self, k, half):
        st = self.steps[k]
        b = self.ring[k % len(self.ring)]
        a, off, d2 = st["rd"]
        if half == 0:
            if "pre" in st: st["pre"]()
            I(f"ds_read_b64_tr_b16 {vr(b,2)}, v{a} offset:{off}", tag=f"w{k}")
        else:
            I(f"ds_read_b64_tr_b16 {vr(b+2,2)}, v{a} offset:{off+d2}", tag=f"w{k}")
            if "post" in st: st["post"](k)
    def pump(self, k, n):
        c = 0
        while self.side and c < n and self.side[0][0] <= k:
            r = self.side.pop(0)[2]()
            c += r if isinstance(r, int) else 1
    def run(self, rate):
        n = len(self.steps); D = self.D
        for k in range(min(D, n)):
            self.issue(k, 0); self.issue(k, 1)
        for k in range(n):
            st = self.steps[k]
            while any(s[1] <= k for s in self.side): self.side.pop(0)[2]()
            if "need" in st: st["need"]()
            if k % 2 == 0 and k + 1 < n: e.wait(lg=f"w{k+1}")
            e.wait(lg=f"w{k}")
            mfs = st["mf"](vr(self.ring[k % len(self.ring)]), st)
            I(mfs[0])
            if k + D < n: self.issue(k + D, 0)
            if len(mfs) > 1:
                self.pump(k, (rate + 1) // 2)
                I(mfs[1])
            if k + D < n: self.issue(k + D, 1)
            for m in mfs[2:]: I(m)
            self.pump(k, rate // 2 if len(mfs) > 1 else rate)
            if k in self.after: self.after[k]()
            stamp(f"k{k}")
        while self.side: self.side.pop(0)[2]()
def cost(n, f):
    def g():
        f(); return n
    return g

def vtouch(att, dst=22):
    P = 3072 if att else 3584; wp = 6 if att else 12
    if dst == 22: mk_srd(S_W, wp, 512 * P)
    I(f"s_lshl_b32 s{S_t0}, s{S_r}, 2"); I(f"s_add_u32 s{S_t0}, s{S_t0}, s{S_w}")
    I(f"s_mul_i32 s{S_t1}, s{S_t0}, {8*P}")
    I(f"s_mul_i32 s{S_t2}, s{S_q}, {256 if att else 896}"); I(f"s_add_u32 s{S_t1}, s{S_t1}, s{S_t2}")
    I("v_and_b32 v1, 7, v0"); I(f"v_mul_u32_u24 v1, {P}, v1")
    I(f"s_lshl_b32 s{S_t2}, s{S_j1}, 7"); I(f"s_add_u32 s{S_t2}, s{S_t2}, s{S_t1}")
    I("v_lshlrev_b32 v2, 7, v0")
    I("s_mov_b64 exec, 0xff")
    I(f"buffer_load_dword v{dst}, v1, {srd(S_W)}, s{S_t2} offen offset:{2048 if att else 512}")
    if OPT["tB"]: I(f"buffer_load_dword v{dst}, v1, {srd(S_W)}, s{S_t2} offen offset:{0 if att else 256}")
    if not att:
        I(f"s_mul_i32 s{S_t2}, s{S_j1}, {4*P}"); I(f"s_add_u32 s{S_t2}, s{S_t2}, s{S_t1}")
        I("s_mov_b64 exec, 0xf")
        I(f"buffer_load_dword v{dst}, v1, {srd(S_W)}, s{S_t2} offen offset:768")
    I(f"s_lshl_b32 s{S_t0}, s{S_t0}, 2"); I(f"s_add_u32 s{S_t0}, s{S_t0}, s{S_jj}")
    F_ = 2 if OPT["tfull"] else 1
    if OPT["tfull"]: I(f"s_and_b32 s{S_t0}, s{S_t0}, 127"); I(f"s_lshl_b32 s{S_t0}, s{S_t0}, 1")
    I(f"s_mul_i32 s{S_t1}, s{S_t0}, 1792"); I(f"s_mul_i32 s{S_t2}, s{S_q}, {448*1024}"); I(f"s_add_u32 s{S_t1}, s{S_t1}, s{S_t2}")
    I(f"s_mov_b64 exec, {(1 << (14*F_)) - 1}")
    I(f"buffer_load_dword v{dst}, v2, {srd(S_W2)}, s{S_t1} offen")
    I(f"s_lshl_b32 s{S_t1}, s{S_t0}, 9"); I(f"s_lshl_b32 s{S_t2}, s{S_q}, 17"); I(f"s_add_u32 s{S_t1}, s{S_t1}, s{S_t2}")
    I(f"s_mov_b64 exec, {(1 << (4*F_)) - 1}")
    I(f"buffer_load_dword v{dst}, v2, {srd(S_WO)}, s{S_t1} offen")
    I("s_mov_b64 exec, -1")
def gate_math(z0, z1, G, tmp):
    T = [f"v_cvt_pk_bf16_f32 v{tmp}, v{z0}, v{z1}", f"v_lshlrev_b32 v{G}, 16, v{tmp}", f"v_and_b32 v{G+2}, 0xffff0000, v{tmp}"]
    T += [f"v_mul_f32 v{G+2*p}, {f2u(-1.4426950408889634)}, v{G+2*p}" for p in range(2)]
    T += [f"v_exp_f32 v{G+2*p}, v{G+2*p}" for p in range(2)]
    T += [f"v_add_f32 v{G+2*p}, 1.0, v{G+2*p}" for p in range(2)]
    T += [f"v_rcp_f32 v{G+2*p}, v{G+2*p}" for p in range(2)]
    T += [f"v_cvt_pk_bf16_f32 v{tmp}, v{G}, v{G+2}", f"v_lshlrev_b32 v{G}, 16, v{tmp}", f"v_and_b32 v{G+2}, 0xffff0000, v{tmp}"]
    T += [f"v_sub_f32 v{G+1+2*p}, 1.0, v{G+2*p}" for p in range(2)]
    T += [f"v_cvt_pk_bf16_f32 v{tmp}, v{G+1}, v{G+3}", f"v_lshlrev_b32 v{G+1}, 16, v{tmp}", f"v_and_b32 v{G+3}, 0xffff0000, v{tmp}"]
    T += [f"v_max_f32 v{G+2*p}, {f2u(2.0**-60)}, v{G+2*p}" for p in range(2)]
    T += [f"v_rcp_f32 v{G+4+p}, v{G+2*p}" for p in range(2)]
    T += [f"v_mul_f32 v{G+1+2*p}, v{G+4+p}, v{G+1+2*p}" for p in range(2)]
    return T
def out_addr():
    I(f"s_mul_i32 s{S_GIN}, s{S_q}, {3*8192}")
    I(f"s_add_u32 s{S_GIN}, s{S_GIN}, s{S_PB}")
    if M:
        I("v_bfe_u32 v5, v0, 4, 1")
        I("v_lshlrev_b32 v6, 3, v5")
        I("v_xor_b32 v6, 8, v6")
        I("v_and_b32 v4, 15, v0")
        I("v_xor_b32 v4, v4, v6")
        I("v_lshl_add_u32 v4, v4, 1, v5")
        I("v_lshrrev_b32 v5, 5, v0")
        I("v_lshlrev_b32 v5, 4, v5")
        I("v_lshl_add_u32 v4, v4, 10, v5")
    else:
        I("v_and_b32 v4, 15, v0")
        I("v_bfe_u32 v6, v0, 4, 1")
        I("v_lshlrev_b32 v6, 5, v6")
        I("v_lshrrev_b32 v7, 5, v0")
        I("v_lshl_add_u32 v6, v7, 4, v6")
        I("v_lshl_add_u32 v5, v4, 11, v6")
        I("v_xor_b32 v4, 0x4000, v5")
    I(f"s_lshl_b32 s{S_COL}, s{S_r}, 17"); I(f"s_lshl_b32 s{S_t1}, s{S_w}, 15"); I(f"s_add_u32 s{S_COL}, s{S_COL}, s{S_t1}")
    I(f"s_lshl_b32 s{S_t1}, s{S_jj}, 8"); I(f"s_add_u32 s{S_COL}, s{S_COL}, s{S_t1}")
    I(f"s_lshl_b32 s{S_t1}, s{S_q}, 6"); I(f"s_add_u32 s{S_COL}, s{S_COL}, s{S_t1}")
def pb_setup():
    I(f"s_lshl_b32 s{S_PB}, s{S_r}, 2"); I(f"s_add_u32 s{S_PB}, s{S_PB}, s{S_jj}")
    I(f"s_mul_i32 s{S_PB}, s{S_PB}, {12*8192}")
    I(f"s_lshl_b32 s{S_t0}, s{S_w}, 11"); I(f"s_add_u32 s{S_PB}, s{S_PB}, s{S_t0}"); I(f"s_add_u32 s{S_PB}, s{S_PB}, {PART_OFF}")
def vtouch2():
    I(f"s_lshl_b32 s{S_t0}, s{S_r}, 2"); I(f"s_add_u32 s{S_t0}, s{S_t0}, s{S_w}")
    I(f"s_lshl_b32 s{S_t0}, s{S_t0}, 1"); I(f"s_add_u32 s{S_t0}, s{S_t0}, s{S_j1}")
    I("v_lshlrev_b32 v2, 7, v0")
    I(f"s_mul_i32 s{S_t1}, s{S_t0}, 3584"); I(f"s_mul_i32 s{S_t2}, s{S_q}, {448*1024}"); I(f"s_add_u32 s{S_t1}, s{S_t1}, s{S_t2}")
    I(f"s_mov_b64 exec, {(1 << 28) - 1}")
    I(f"buffer_load_dword v{30 if M else 18}, v2, {srd(S_W2)}, s{S_t1} offen")
    I(f"s_lshl_b32 s{S_t1}, s{S_t0}, 10"); I(f"s_lshl_b32 s{S_t2}, s{S_q}, 17"); I(f"s_add_u32 s{S_t1}, s{S_t1}, s{S_t2}")
    I("s_mov_b64 exec, 0xff")
    I(f"buffer_load_dword v{30 if M else 18}, v2, {srd(S_WO)}, s{S_t1} offen")
    I("s_mov_b64 exec, -1")
e.raw(f"; @launch grid=(256,1,1) block=(512,1,1) lds=163840")
e.raw('.amdgcn_target "amdgcn-amd-amdhsa--gfx950"')
e.raw(".text")
e.raw(f".globl {NAME}_kernel")
e.raw(".p2align 8")
e.raw(f".type {NAME}_kernel,@function")
e.label(f"{NAME}_kernel")
I("s_load_dwordx16 s[4:19], s[0:1], 0")
I("s_load_dwordx4 s[20:23], s[0:1], 64")
if STAMP:
    I("s_memrealtime s[98:99]")
    I("s_memtime s[96:97]")
if OPT["codepf"] and OPT["pfe"] == 2:
    I("s_getpc_b64 s[56:57]")
    e.label("L_pc")
    I("v_lshrrev_b32 v1, 5, v0")
    I("v_and_b32 v2, 1, v0")
    I("v_add_u32 v2, v2, v1")
    I(f"s_bfe_u32 s{S_t0}, s2, 0x50003")
    I(f"s_lshl_b32 s{S_t0}, s{S_t0}, 4")
    I(f"v_add_lshl_u32 v2, v2, s{S_t0}, 7")
    I("v_min_u32 v2, L_end-L_pc, v2")
    I("s_mov_b64 exec, 3")
    I("global_load_dword v127, v2, s[56:57]")
    I("s_mov_b64 exec, -1")
if OPT["codepf"] and OPT["pfe"] == 1:
    I("s_cmp_lt_u32 s2, 8")
    I("s_cbranch_scc0 L_nopf")
    e.cond_begin()
    I("s_getpc_b64 s[56:57]")
    e.label("L_pc")
    I("v_lshlrev_b32 v2, 7, v0")
    I("v_min_u32 v2, L_end-L_pc, v2")
    I("global_load_dword v127, v2, s[56:57]")
    e.cond_end()
    e.label("L_nopf")
I("v_lshrrev_b32 v1, 6, v0")
I("s_cmp_ge_u32 s2, 256")
I("s_cbranch_scc1 L_end")
I(f"v_readfirstlane_b32 s{S_t2}, v1")
I("v_and_b32 v0, 63, v0")
I(f"s_bfe_u32 s{S_q}, s2, 0x20001")
I(f"s_and_b32 s{S_t0}, s2, 1")
I(f"s_lshl_b32 s{S_t0}, s{S_t0}, 3")
I(f"s_bfe_u32 s{S_r}, s2, 0x30003")
I(f"s_or_b32 s{S_r}, s{S_r}, s{S_t0}")
I(f"s_lshr_b32 s{S_jj}, s2, 6")
if OPT["rotq"] == 2:
    I(f"s_lshr_b32 s{S_rot}, s{S_t0}, 2")
    I(f"s_add_u32 s{S_rot}, s{S_rot}, s{S_q}")
    I(f"s_and_b32 s{S_t0}, s{S_r}, 1")
    I(f"s_add_u32 s{S_rot}, s{S_rot}, s{S_t0}")
elif OPT["rotq"]: I(f"s_add_u32 s{S_rot}, s{S_r}, s{S_q}")
else: I(f"s_mov_b32 s{S_rot}, s{S_r}")
I(f"s_and_b32 s{S_w}, s{S_t2}, 3")
I(f"s_lshl_b32 s{S_m0b}, s{S_w}, 12")
I(f"s_cmp_lt_u32 s{S_t2}, 4")
I("s_cbranch_scc1 L_C")

H_XD = 4; H_WD = 8; H_BD = 12; H_ACC = 64
H_G = 18 if M else 20; H_BR = 20 if M else 24
H_RING = [32, 36, 40, 44, 48, 52, 24, 28] if M else [32, 36, 40, 44, 48, 52, 12]
def a2r(lam, p):
    if lam < 16: return ar(lam * 8 + p * 4)
    return vr((56 if lam == 16 else 4) + p * 4)
I("s_setprio 3")
I("v_lshrrev_b32 v32, 4, v0")
I("v_lshrrev_b32 v36, 3, v0")
I("v_and_b32 v37, 7, v0")
I("v_xor_b32 v39, v37, v32")
I("v_lshlrev_b32 v39, 4, v39")
I(f"v_lshl_add_u32 v{H_XD}, v36, 11, v39")
I(f"v_xor_b32 v{H_XD+1}, 64, v{H_XD}")
I(f"v_add_u32 v{H_XD+2}, {14*1024}, v{H_XD+1}")
I(f"v_add_u32 v{H_XD+3}, {14*1024}, v{H_XD}")
I(f"s_lshl_b32 s{S_t0}, s{S_r}, 17")
I(f"s_lshl_b32 s{S_t1}, s{S_w}, 15")
I(f"s_add_u32 s{S_t0}, s{S_t0}, s{S_t1}")
for g4 in range(4):
    I(f"s_add_u32 s{S_WK+g4}, s{S_rot}, {g4}")
    I(f"s_and_b32 s{S_WK+g4}, s{S_WK+g4}, 3")
    I(f"s_lshl_b32 s{S_KG+g4}, s{S_WK+g4}, 8")
    I(f"s_add_u32 s{S_KG+g4}, s{S_KG+g4}, s{S_t0}")
I(f"s_mov_b32 s{S_X+2}, {2048*1024}")
I(f"s_mov_b32 s{S_X+3}, 0x20000")
assert phys(False, 1) == phys(False, 0) + 1 and phys(True, 1) == phys(True, 0) + 1
I(f"s_cmp_ge_u32 s{S_jj}, 2")
I(f"s_cselect_b32 s{S_t2}, {phys(True,0)}, {phys(False,0)}")
I(f"s_cselect_b32 s{S_EV}, {phys(True,2)}, {phys(False,2)}")
I(f"s_mov_b32 s{S_W+2}, {512*3584}")
I(f"s_cmov_b32 s{S_W+2}, {512*3072}")
I(f"s_mov_b32 s{S_P}, 3584")
I(f"s_cmov_b32 s{S_P}, 3072")
if OPT["ev0"]:
    assert OPT["n9"]
    I(f"s_mov_b32 s{S_W4}, {SEV(False)}")
    I(f"s_cmov_b32 s{S_W4}, {SEV(True)}")
    I(f"v_lshl_add_u32 v1, v37, 2, s{S_W4}")
    I("ds_write_b32 v1, v1")
I(f"s_lshl_b32 s{S_t2}, s{S_t2}, 14")
I(f"s_add_u32 s{S_t2}, s{S_t2}, s{S_m0b}")
I(f"s_mov_b32 m0, s{S_t2}")
I(f"s_add_u32 s{S_SOFF}, s{S_KG}, 128")
after_karg()
if OPT["tw"] & 1:
    I(f"s_load_dword s{S_BUD}, s[6:7], 0")
    I(f"s_load_dword s{S_BUD}, s[12:13], 0")
I(f"s_mov_b32 s{S_X}, s4")
I(f"s_and_b32 s{S_X+1}, s5, 0xffff")
for i in range(4): I(f"buffer_load_dwordx4 v{H_XD+i}, {srd(S_X)}, s{S_KG} offen offset:{i*1024} lds", tag="u0")
I(f"s_add_u32 m0, s{S_t2}, {SLOT}")
I(f"s_mov_b32 s{S_W+3}, 0x20000")
dma4(H_XD, S_X, "u1")
I(f"s_lshl_b32 s{S_t0}, s{S_w}, 5")
I(f"v_add_u32 v38, s{S_t0}, v36")
I(f"v_mul_lo_u32 v38, v38, s{S_P}")
I(f"s_mul_i32 s{S_COL}, s{S_q}, 896")
I(f"s_lshl_b32 s{S_t0}, s{S_q}, 8")
I(f"s_add_u32 s{S_t0}, s{S_t0}, {1024-256}")
I(f"s_cmp_ge_u32 s{S_jj}, 2")
I(f"s_cselect_b32 s{S_W}, s6, s12")
I(f"s_cselect_b32 s{S_W+1}, s7, s13")
I(f"s_cselect_b32 s{S_COL}, s{S_t0}, s{S_COL}")
I(f"s_cselect_b32 s{S_t0}, 1, {2 if M else 1}")
I(f"s_cselect_b32 s{S_t1}, 64, {0 if M else 64}")
I(f"s_and_b32 s{S_W+1}, s{S_W+1}, 0xffff")
I("v_and_b32 v39, 1, v32")
I(f"v_lshlrev_b32 v39, s{S_t0}, v39")
I("v_xor_b32 v39, v39, v37")
I("v_lshlrev_b32 v39, 4, v39")
I(f"v_add_u32 v{H_WD}, v38, v39")
I(f"v_xor_b32 v39, s{S_t1}, v39")
I(f"s_lshl_b32 s{S_t0}, s{S_P}, 3")
I(f"s_sub_u32 s{S_t0}, s{S_t0}, 1024")
I(f"v_add3_u32 v{H_WD+1}, v38, v39, s{S_t0}")
I(f"s_lshl_b32 s{S_t0}, s{S_t0}, 1")
I(f"v_add_u32 v{H_WD+2}, s{S_t0}, v{H_WD}")
I(f"v_add_u32 v{H_WD+3}, s{S_t0}, v{H_WD+1}")
I(f"s_lshl_b32 s{S_t0}, s{S_jj}, 7")
I(f"s_add_u32 s{S_COL}, s{S_COL}, s{S_t0}")
I(f"s_lshl_b32 s{S_t1}, s{S_P}, 7")
for g4 in range(4): I(f"s_mul_i32 s{S_WK+g4}, s{S_WK+g4}, s{S_t1}")
I(f"s_lshl_b32 s{S_EV}, s{S_EV}, 14")
I(f"s_add_u32 m0, s{S_EV}, s{S_m0b}")
I(f"s_add_u32 s{S_SOFF}, s{S_WK}, s{S_COL}")
dma4(H_WD, S_W, "u2")
common_ptrs()
mk_srd(S_OUT, 18, 2048 * 1024)
mk_srd(S_GW, 16, 1024)
I(f"s_cmp_ge_u32 s{S_jj}, 2")
I("s_cbranch_scc1 L_h_att")
snapH = e.snapshot()

def h_prog(att):
    e.restore(snapH); e.hist = []
    UL = units(att)
    CH = [0, -1024, 1024] if att else [0, 256, 512]
    def issue(k):
        un = UL[k]
        I(f"s_add_u32 m0, s{S_m0b}, {phys(att,k)*SLOT}")
        if un[0] == "x":
            I(f"s_add_u32 s{S_SOFF}, s{S_KG+un[1]}, {un[2]*128}")
            dma4(H_XD, S_X, f"u{k}")
            if att and un[2] == 1: halo(un[1], f"u{k}")
            return
        _, c, u = un
        if c < 3:
            I(f"s_add_u32 s{S_SOFF}, s{S_WK+u}, s{S_COL}")
            if CH[c]: I(f"s_add_i32 s{S_SOFF}, s{S_SOFF}, {CH[c]}")
        else:
            KH = 256 * 3584
            if u == 0:
                I("v_lshrrev_b32 v2, 2, v0")
                if M:
                    I("v_lshrrev_b32 v1, 4, v0")
                    I("v_xor_b32 v2, v2, v1")
                I("v_and_b32 v2, 1, v2")
                I(f"v_mul_u32_u24 v1, {KH-64}, v2")
                for i in (0, 2): I(f"v_add_u32 v{H_WD+i}, v{H_WD+i}, v1")
                if not M: I(f"v_sub_u32 v1, {KH-64}, v1")
                for i in (1, 3): I(f"v_add_u32 v{H_WD+i}, v{H_WD+i}, v1")
                I(f"v_mul_u32_u24 v2, {2*KH}, v2")
                I(f"v_sub_u32 v{H_XD}, {KH}, v2")
                I(f"s_cmp_ge_u32 s{S_WK}, {KH}")
                I(f"s_cselect_b32 s{S_t0}, 1, 0")
            else:
                I(f"s_cmp_ge_u32 s{S_WK}, {KH}")
                I(f"s_cselect_b32 s{S_t1}, 1, 0")
                I(f"s_cmp_ge_u32 s{S_WK+1}, {KH}")
                I(f"s_cselect_b32 s{S_t0}, 1, 0")
                I(f"s_sub_u32 s{S_t0}, s{S_t0}, s{S_t1}")
            I(f"s_sub_u32 s{S_t1}, 0, s{S_t0}")
            for i in range(4): I(f"v_mad_i32_i24 v{H_WD+i}, v{H_XD}, s{S_t0 if (M or i % 2 == 0) else S_t1}, v{H_WD+i}")
            I(f"s_min_u32 s{S_SOFF}, s{S_WK+u}, s{S_WK+u+2}")
            I(f"s_add_u32 s{S_SOFF}, s{S_SOFF}, s{S_COL}")
            I(f"s_lshl_b32 s{S_t0}, s{S_jj}, 6")
            I(f"s_sub_u32 s{S_SOFF}, s{S_SOFF}, s{S_t0}")
            I(f"s_add_u32 s{S_SOFF}, s{S_SOFF}, 768")
        dma4(H_WD, S_W, f"u{k}")
    def w0(f):
        l = U("w0")
        I(f"s_cmp_eq_u32 s{S_w}, 0"); I(f"s_cbranch_scc0 {l}")
        e.cond_begin(); f(); e.cond_end(); e.label(l)
    def peer_issue(): w0(lambda: I(f"s_load_dword s{S_POLL}, s[{S_DBG}:{S_DBG+1}], 0 glc"))
    def peer():
        def f():
            lp = U("pp"); ok = U("po")
            I("s_waitcnt lgkmcnt(0)")
            I(f"s_cmp_ge_u32 s{S_POLL}, 16")
            I(f"s_cbranch_scc0 {lp}")
            e.label(ok)
            SLOW.extend([f"{lp}:", "    s_sleep 8", f"    s_load_dword s{S_POLL}, s[{S_DBG}:{S_DBG+1}], 0 glc", "    s_waitcnt lgkmcnt(0)",
                         f"    s_cmp_ge_u32 s{S_POLL}, 16", f"    s_cbranch_scc1 {ok}"] + spin_tail(lp, ok))
        w0(f)
        I(f"s_mov_b32 s{S_POLL}, 0")
    V_Q = 64; V_S = 96; V_BIAS = 32; V_RINV = 40; V_T = 48; A_KV = 64; A_ONES = 96; V_AD = 24 if M else 56
    def att_setup(part):
        if part == 0:
            I(f"s_add_u32 s{S_t0}, s{S_m0b}, {EXCH_LDS+4096}")
            I(f"v_add_u32 v{V_AD}, s{S_t0}, v{V_L16}")
            I("v_bfe_u32 v1, v0, 3, 1")
            I("v_lshlrev_b32 v1, 12, v1")
            I(f"v_sub_u32 v{V_AD+2}, v{V_AD}, v1")
            I("v_xor_b32 v1, 4096, v1")
            I(f"v_sub_u32 v{V_AD+1}, v{V_AD}, v1")
            I("v_lshrrev_b32 v1, 5, v0")
            I("v_lshlrev_b32 v1, 12, v1")
            I(f"v_sub_u32 v{V_AD+4}, v{V_AD}, v1")
            I("v_xor_b32 v1, 4096, v1")
            I(f"v_sub_u32 v{V_AD+3}, v{V_AD}, v1")
            I(f"v_add_u32 v{V_AD+5}, {(QSLOT*SLOT - EXCH_LDS - 4096) & 0xffffffff}, v{V_AD}")
            I(f"s_mov_b32 s{S_CEXP}, {f2u(0.25*1.4426950408889634)}")
            I(f"s_or_b32 s{S_t0}, s{S_r}, s{S_w}")
            I(f"s_cmp_eq_u32 s{S_t0}, 0")
            I(f"s_cselect_b32 s{S_THR}, -16, -9")
            I(f"v_mov_b32 v{V_T}, 0x3f803f80")
            for k in range(4): I(f"v_accvgpr_write_b32 a{A_ONES+k}, v{V_T}")
            I(f"v_mov_b32 v{V_T}, {NEG}")
            I(f"v_and_b32 v{V_T+1}, 15, v0")
            I(f"v_lshrrev_b32 v{V_T+2}, 4, v0")
            I(f"v_lshlrev_b32 v{V_T+2}, 2, v{V_T+2}")
        elif part in (1, 2):
            p = part - 1; x8 = 8 if p == 0 else 0
            I(f"v_xor_b32 v{V_T+3}, {x8}, v{V_T+1}")
            I(f"v_xor_b32 v{V_T+4}, {x8}, v{V_T+2}")
            I(f"v_sub_u32 v{V_T+3}, v{V_T+3}, v{V_T+4}")
            for r in range(4):
                I(f"v_subrev_u32 v{V_T+4}, {r}, v{V_T+3}")
                I(f"v_cmp_lt_u32 vcc, 7, v{V_T+4}")
                I(f"v_cmp_lt_i32 s[56:57], s{S_THR}, v{V_T+4}")
                I("s_and_b64 vcc, vcc, s[56:57]")
                I(f"v_cndmask_b32 v{V_BIAS+p*4+r}, 0, v{V_T}, vcc")
        else:
            for k in range(16): I(f"v_mov_b32 v{V_Q+16*(part-3)+k}, 0")
            I("s_mov_b32 s56, 0xff00ff00"); I("s_mov_b32 s57, 0xff00ff00")
            I("s_not_b64 s[58:59], s[56:57]")
    def br_setup():
        if M:
            I("v_bfe_u32 v1, v0, 2, 2")
            I("v_lshrrev_b32 v2, 5, v0")
            I("v_lshl_add_u32 v1, v2, 2, v1")
            I("v_lshlrev_b32 v1, 7, v1")
            I("v_bfe_u32 v2, v0, 4, 1")
            I("v_lshl_add_u32 v1, v2, 5, v1")
            I("v_bfe_u32 v2, v0, 3, 1")
            I("v_lshl_add_u32 v1, v2, 6, v1")
        else:
            I("v_lshrrev_b32 v1, 2, v0")
            I("v_bfe_u32 v2, v0, 3, 2")
            I("v_lshlrev_b32 v1, 7, v1")
            I("v_lshl_add_u32 v1, v2, 5, v1")
        I("v_and_b32 v2, 3, v0")
        I("v_lshl_add_u32 v1, v2, 3, v1")
        I(f"s_lshr_b32 s{S_t0}, s{S_q}, 1")
        I(f"s_lshl_b32 s{S_t0}, s{S_t0}, 13")
        I(f"s_and_b32 s{S_t1}, s{S_q}, 1")
        I(f"s_lshl_b32 s{S_t1}, s{S_t1}, 6")
        I(f"s_or_b32 s{S_t0}, s{S_t0}, s{S_t1}")
        I(f"v_xor_b32 v1, s{S_t0}, v1")
        for tau in range(4):
            cb = 3 - tau
            if M: I(f"v_xor_b32 v{H_BR+tau}, {(cb>>1)*8192 + (cb&1)*64}, v1")
            else:
                for tt in range(2): I(f"v_xor_b32 v{H_BR+2*tau+tt}, {(cb>>1)*8192 + (cb&1)*64 + tt*32}, v1")
        I(f"s_lshl_b32 s{S_PB}, s{S_r}, 2"); I(f"s_add_u32 s{S_PB}, s{S_PB}, s{S_jj}")
        I(f"s_mul_i32 s{S_PB}, s{S_PB}, {12*8192}")
        I(f"s_lshl_b32 s{S_t0}, s{S_w}, 11"); I(f"s_add_u32 s{S_PB}, s{S_PB}, s{S_t0}"); I(f"s_add_u32 s{S_PB}, s{S_PB}, {PART_OFF}")
    V_HV = 31 if M else 19
    def halo(u, tag):
        I(f"s_lshr_b32 s{S_t0}, s{S_m0b}, 2")
        I(f"s_add_u32 m0, s{S_t0}, {HALO_LDS + u*4096}")
        I(f"s_and_b32 s{S_t0}, s{S_KG+u}, 0x300")
        I(f"buffer_load_dwordx4 v{V_HV}, {srd(S_X)}, s{S_t0} offen lds", tag=tag)
    if att:
        I(f"s_and_b32 s{S_t1}, s{S_w}, 1")
        I(f"s_mul_i32 s{S_t1}, s{S_t1}, {1024+64}")
        I(f"v_xor_b32 v{V_HV}, s{S_t1}, v{H_XD}")
        I(f"s_lshl_b32 s{S_t0}, s{S_r}, 17")
        I(f"s_sub_u32 s{S_t0}, s{S_t0}, 16384")
        I(f"s_lshr_b32 s{S_t1}, s{S_w}, 1")
        I(f"s_lshl_b32 s{S_t1}, s{S_t1}, 7")
        I(f"s_add_u32 s{S_t0}, s{S_t0}, s{S_t1}")
        I(f"v_add_u32 v{V_HV}, s{S_t0}, v{V_HV}")
        I(f"v_max_i32 v{V_HV}, 0, v{V_HV}")
        halo(0, "u2")
    if EG and not att:
        I(f"s_lshl_b32 s{S_t0}, s{S_w}, 8")
        I(f"s_add_u32 m0, s{S_t0}, {GW_LDS}")
        I("v_lshlrev_b32 v1, 2, v0")
        I(f"buffer_load_dword v1, {srd(S_GW)}, s{S_t0} offen lds", tag="u2")
    stamp("h_i2")
    if "h_w0" in HST: e.wait(vm="u0"); stamp("h_w0"); e.wait(vm="u1"); stamp("h_w1"); e.wait(vm="u2"); stamp("h_w2")
    def ssig(i):
        I(f"s_lshl_b32 s{S_t0}, s{S_w}, 2")
        I(f"s_add_u32 m0, s{S_t0}, {SEV(att) + 16*i}")
        I("s_mov_b64 exec, 1")
        I(f"buffer_load_dword v0, {srd(S_X)}, s{S_X+2} offen lds", tag="dsig")
        I("s_mov_b64 exec, -1")
    if OPT["ev0"]:
        I("s_barrier")
        ssig(0); issue(3); ssig(1)
        for k in range(4, 9): issue(k)
    PRE = OPT["pre"] if not OPT["ev0"] else 2
    for k in range(3, PRE + 1): issue(k)
    first = list(range(PRE + 1, 8))
    if att and not OPT["n9"]: sched = [first, [8, 9], [10], [11, 12, 13], [14], [15, 16, 17], [18], [] if OPT["u19"] else [19]]
    else: sched = [first, [8, 9], [10, 11], [12, 13], [14, 15], [16, 17], [18, 19], []]
    def gw_dma():
        I(f"s_mov_b32 m0, {GW_LDS}")
        w0(lambda: I(f"buffer_load_dwordx4 v{V_L16}, {srd(S_GW)}, 0 offen lds"))
    def inb_reset():
        for k in range(4):
            I(f"s_mov_b32 s{56+k}, 0")
            I(f"s_add_u32 s{S_t0}, s{S_MYIN}, {k*128}")
            I(f"s_atomic_swap s{56+k}, s[{S_INB}:{S_INB+1}], s{S_t0} glc")
    def count_in():
        I(f"s_mov_b32 s{S_EV}, 1")
        I("s_waitcnt lgkmcnt(0)")
        I(f"s_atomic_add s{S_EV}, s[{S_DBG}:{S_DBG+1}], 0")
    if OPT["hinit"]:
        late_scalars(); w0(inb_reset)
    if OPT["tw"] & 1: I("s_waitcnt lgkmcnt(0)")
    extra = {1: lambda: ((w0(count_in) if OPT["hinit"] else late_scalars()), b2_voffs(H_BD)), 3: (gw_dma if not EG else lambda: None), 7: (br_setup if att or OPT["sch"] else lambda: (b2_unit(8, H_BD), br_setup()))}
    if att: extra.update({2: lambda: (att_setup(0), att_setup(1)), 4: lambda: (att_setup(2), att_setup(3)), 6: lambda: att_setup(4)})
    gk = [k for k, un in enumerate(UL) if un[0] == "g"]
    if OPT["ev0"]: sched = [[], [], [9, 10, 11]] + sched[3:]
    def bar(i, need=None):
        stamp(f"h_a{i}")
        if need is None and i < len(gk): need = gk[i]
        if need is not None: e.wait(vm=f"u{need}")
        if i == OPT["pb"]: peer()
        I("s_barrier"); stamp(f"h_b{i}")
    for i in range(8):
        if i >= 2 or not OPT["ev0"]: bar(i)
        if i == OPT["pb"] - 2: peer_issue()
        for k in sched[i]: issue(k)
        if i in extra: extra[i]()
        if i == (OPT["tha"] if att else OPT["th"]) and not OPT["tatt"]: vtouch(att, 30 if M else 18)
        if i == OPT["th"] and OPT["tatt"] and att: vtouch2()
    def a2_load(lam):
        a2_soff(lam, S_t1)
        for p in range(2):
            I(f"buffer_load_dwordx4 {a2r(lam,p)}, v{V_L16}, {srd(S_WS)}, s{S_t1} offen offset:{p*1024} sc1", tag=f"a{lam}")
    def a2_items(lams, gap=None):
        gap = OPT['gap']
        F = []
        for lam in lams:
            F.append(cost(9, lambda lam=lam: (a2_soff(lam, S_COL), I(f"buffer_load_dwordx4 {a2r(lam,0)}, v{V_L16}, {srd(S_WS)}, s{S_COL} offen sc1", tag=f"a{lam}x"))))
            F += [cost(9, lambda: None)] * (gap - 1)
            F.append(cost(9, lambda lam=lam: I(f"buffer_load_dwordx4 {a2r(lam,1)}, v{V_L16}, {srd(S_WS)}, s{S_COL} offen offset:1024 sc1", tag=f"a{lam}")))
            F += [cost(9, lambda: None)] * (gap - 1)
        return F
    Bu = lambda g: b2_unit(g, H_BD, False)
    SS = []
    ALL = (0, 1, 2, 3)
    side = {}
    if not att:
        if OPT["sch"] == 0:
            bar(8); Bu(0)
            bar(9); issue(20); Bu(1)
            bar(10); push_group(ownbit(0), ALL); issue(21); Bu(2)
            bar(11); push_group(ownbit(1), ALL); Bu(3); poll_load()
            bar(12); poll_check(0x11)
            for lam in range(4): a2_load(lam)
            Bu(4); poll_load()
            bar(13); poll_check(0x22)
            for lam in range(4, 8): a2_load(lam)
            Bu(5)
            bar(14)
        else:
            bar(8)
            bar(9); issue(20)
            bar(10); push_group(ownbit(0), ALL); issue(21)
            bar(11); push_group(ownbit(1), ALL); Bu(0); Bu(1); poll_load()
            bar(12); poll_check(0x11); a2_load(0); a2_load(1); (None if STG else poll_load())
            bar(13); a2_load(2); a2_load(3); b2_unit(2, H_BD)
            e.wait(vm="b1")
            bar(14)
            if not STG:
                poll_check(0x22)
                side[(0, 0)] = lambda: SS[0].add(0, 999, a2_items((4, 5, 6, 7), 2))
        def f_o(): poll_check(0x300); SS[0].add(0, 999, a2_items((16, 17, 14, 15)))
    else:
        def kv_reads(m0, tag):
            for t in range(4):
                I(f"ds_read_b64 {ar(A_KV+8*t,2)}, v{m0} offset:{t*1024}", tag=f"{tag}{t}")
                I(f"ds_read_b128 {ar(A_KV+8*t+2)}, v{V_AD} offset:{t*1024}", tag=f"{tag}{t}")
                I(f"ds_read_b64 {ar(A_KV+8*t+6,2)}, v{m0+1} offset:{t*1024+8}", tag=f"{tag}{t}")
        bar(8)
        kv_reads(V_AD + 1, "k")
        e.wait(lg="k3")
        bar(9, 18 if OPT["u19"] else 19)
        def Preg(t, p): return V_Q + 8 * t + 4 * p
        for half, m in enumerate(("s[56:57]", "s[58:59]")):
            I(f"s_mov_b64 exec, {m}")
            for t in range(4):
                for p in range(2):
                    I(f"ds_read_b64 {vr(Preg(t,p)+2*half,2)}, v{V_AD+5} offset:{t*1024+p*8}", tag="q")
        I("s_mov_b64 exec, -1")
        stamp("h_q")
        e.wait(lg="q")
        un = [(i >> 1, i & 1) for i in range(8)]
        Sc = lambda i: V_S + 4 * i
        for i, (t, p) in enumerate(un): I(f"{MF} {vr(Sc(i))}, {ar(A_KV+8*t+4*p)}, {vr(Preg(t,p))}, {vr(V_BIAS+4*p)}")
        poll_load()
        if OPT["u19"]: issue(19); dsig("Lv3")
        Bu(0)
        stamp("m1")
        m = [V_T + i for i in range(8)]
        for i in range(8):
            if OPT["lround"]:
                I(f"v_cvt_pk_bf16_f32 v1, v{Sc(i)}, v{Sc(i)+1}")
                I(f"v_cvt_pk_bf16_f32 v2, v{Sc(i)+2}, v{Sc(i)+3}")
                I(f"v_lshlrev_b32 v{Sc(i)}, 16, v1")
                I(f"v_and_b32 v{Sc(i)+1}, 0xffff0000, v1")
                I(f"v_lshlrev_b32 v{Sc(i)+2}, 16, v2")
                I(f"v_and_b32 v{Sc(i)+3}, 0xffff0000, v2")
            I(f"v_max3_f32 v{m[i]}, v{Sc(i)}, v{Sc(i)+1}, v{Sc(i)+2}")
            I(f"v_max_f32 v{m[i]}, v{m[i]}, v{Sc(i)+3}")
        for k in range(4): I(f"v_permlane32_swap_b32 v{m[2*k]}, v{m[2*k+1]}")
        for k in range(4): I(f"v_max_f32 v{m[2*k]}, v{m[2*k]}, v{m[2*k+1]}")
        for k in range(2): I(f"v_permlane16_swap_b32 v{m[4*k]}, v{m[4*k+2]}")
        for k in range(2): I(f"v_max_f32 v{m[4*k]}, v{m[4*k]}, v{m[4*k+2]}")
        for k in range(2): I(f"v_mul_f32 v{m[4*k+2]}, s{S_CEXP}, v{m[4*k]}")
        for k in range(2): I(f"v_mul_f32 v{m[4*k]}, s{S_CEXP}, v{m[4*k]}")
        for k in range(2): I(f"v_permlane16_swap_b32 v{m[4*k]}, v{m[4*k+2]}")
        for k in range(4): I(f"v_mov_b32 v{m[2*k+1]}, v{m[2*k]}")
        for k in range(4): I(f"v_permlane32_swap_b32 v{m[2*k]}, v{m[2*k+1]}")
        stamp("m2")
        Bu(1)
        stamp("m3")
        for i in range(8):
            for r in range(4): I(f"v_fma_f32 v{Sc(i)+r}, v{Sc(i)+r}, s{S_CEXP}, -v{m[i]}")
            for r in range(4): I(f"v_exp_f32 v{Sc(i)+r}, v{Sc(i)+r}")
            if i == 4: stamp("m4"); poll_check(0x11); (None if STG else poll_load()); stamp("m5")
            if i >= 4: a2_load(i - 4)
        stamp("m6")
        b2_unit(2, H_BD)
        stamp("m7")
        for half, mk in enumerate(("s[56:57]", "s[58:59]")):
            I(f"s_mov_b64 exec, {mk}")
            for i, (t, p) in enumerate(un):
                I(f"v_cvt_pk_bf16_f32 v{Preg(t,p)+2*half}, v{Sc(i)}, v{Sc(i)+1}")
                I(f"v_cvt_pk_bf16_f32 v{Preg(t,p)+2*half+1}, v{Sc(i)+2}, v{Sc(i)+3}")
        I("s_mov_b64 exec, -1")
        for i, (t, p) in enumerate(un): I(f"{MF} {vr(Sc(i))}, {ar(A_ONES)}, {vr(Preg(t,p))}, 0")
        for i in range(8): I(f"v_rcp_f32 v{V_RINV+i}, v{Sc(i)}")
        e.wait(vm="b1")
        if OPT["a47"] and not STG:
            poll_check(0x22)
            for lam in range(4, 4 + 2 * OPT["a47"]): a2_load(lam)
        stamp("h_sm")
        I("s_barrier")
        stamp("v1")
        kv_reads(V_AD + 3, "v")
        e.wait(lg="v3")
        stamp("v2")
        if OPT["vb2"]: I("s_barrier")
        for i, (t, p) in enumerate(un): I(f"{MF} {vr(Sc(i))}, {ar(A_KV+8*t+4*p)}, {vr(Preg(t,p))}, 0")
        for b in range(2):
            for t in (2 * b, 2 * b + 1):
                ob = (56 if b == 0 else 4) + (t & 1) * 4
                for p in range(2):
                    o = Sc(2 * t + p)
                    if OPT["pkm"]:
                        for r in (0, 2): I(f"v_pk_mul_f32 {vr(o+r,2)}, {vr(o+r,2)}, {vr(V_RINV+2*t,2)} op_sel:[0,{p}] op_sel_hi:[1,{p}]")
                    else:
                        for r in range(4): I(f"v_mul_f32 v{o+r}, v{V_RINV+2*t+p}, v{o+r}")
                    od = ob + 2 * p if M else (56 if b == 0 else 4) + p * 4 + (t & 1) * 2
                    I(f"v_cvt_pk_bf16_f32 v{od}, v{o}, v{o+1}")
                    I(f"v_cvt_pk_bf16_f32 v{od+1}, v{o+2}, v{o+3}")
            stamp(f"v{3+b}")
            a2_soff(16 + b, S_t1)
            for t1 in range(2 if M else 0):
                ob = (56 if b == 0 else 4) + t1 * 4
                I(f"v_permlane16_swap_b32 v{ob}, v{ob+2}")
                I(f"v_permlane16_swap_b32 v{ob+1}, v{ob+3}")
            for p in range(2):
                I(f"buffer_store_dwordx4 {a2r(16+b,p)}, v{V_L16}, {srd(S_WS)}, s{S_t1} offen offset:{p*1024} sc1", tag="so")
        if not OPT["vb2"]: dsig("VD")
        stamp("h_so")
        def f_push():
            e.wait(vm="so")
            push_group(lambda: I(f"s_lshl_b32 s{S_t2}, 64, s{S_jj}"), (1, 2, 3))
        side[(0, OPT["fp"])] = f_push
        if not STG and OPT["a47"] < 2: side[(0, OPT["fp"] + 2)] = lambda: (poll_check(0x22), SS[0].add(0, 999, a2_items(range(4 + 2 * OPT["a47"], 8), 1)))
        def f_o():
            I(f"s_xor_b32 s{S_THR}, s{S_jj}, 1"); I(f"s_lshl_b32 s{S_THR}, 64, s{S_THR}")
            poll_check(f"s{S_THR}"); SS[0].add(0, 999, a2_items((14, 15)))
    def f_c(): poll_check(0x44); SS[0].add(0, 999, a2_items((8, 9, 10, 11)))
    def f_h(): poll_check(0x88); SS[0].add(0, 999, a2_items((12, 13)))
    if not STG: side.update({(0, OPT["kc"] - 15): poll_load, (0, OPT["kc"]): f_c, (0, OPT["kh"] - 15): poll_load, (0, OPT["kh"]): f_h, (0, OPT["ko"] - 11): poll_load, (0, OPT["ko"]): f_o})
    I("s_setprio 1")
    stamp("h_p2")
    own = [16, 17] if att else []
    LD = OPT["ld"]
    oo = [16, 17, 14, 15]
    TM = 14 - OPT["tm"]
    seq = [(lam, tau) for lam in range(TM) for tau in range(4 if lam < LD else 3)]
    seq += [(lam, tau) for tau in range(3) for lam in list(range(TM, 14)) + oo]
    seq += [(lam, 3) for lam in list(range(LD, 14)) + oo]
    steps = []; rng = {}; seen_g = set(); seen_l = set(); first_ = set()
    for (lam, tau) in seq:
        g = lam >> 1
        for kh in range(2):
            a = H_BR + tau if M else H_BR + 2 * tau + kh
            off = g * SLOT + (lam & 1) * 4096 + (kh * 2048 if M else 0)
            hi = off >> 16
            st = dict(rd=(a, off & 0xffff, 1024 if M else 2048))
            pres = []
            cg = CHKG.get(g) if not STG else {2: 2}.get(g)
            if cg is not None and cg not in seen_g:
                seen_g.add(cg); t = U("t")
                steps[-3]["post"] = lambda k, g=cg, t=t: d_read(f"Lb{g}", t)
                pres.append(lambda g=cg, t=t: d_check(f"Lb{g}", t))
            if rng.get(a, 0) != hi:
                dlt = (hi - rng.get(a, 0)) * 65536; rng[a] = hi
                pres.append(lambda a=a, dlt=dlt: I(f"v_add_u32 v{a}, {dlt & 0xffffffff}, v{a}"))
            if pres: st["pre"] = lambda pres=pres: [f() for f in pres]
            at = 4 if (tau == 3 and lam >= 14) else tau
            key = at if M else (at, kh)
            zero = key not in first_; first_.add(key)
            db = H_ACC + 16 * (at if at < 4 else 0)
            if M: st["mf"] = lambda W, st, lam=lam, kh=kh, d=vr(db, 16), zero=zero: [f"{M32} {d}, {W}, {a2r(lam,kh)}, {'0' if zero else d}"]
            else: st["mf"] = lambda W, st, lam=lam, db=db + 4 * kh, zero=zero: [f"{MF} {vr(db+8*p)}, {W}, {a2r(lam,p)}, {'0' if zero else vr(db+8*p)}" for p in range(2)]
            if lam not in seen_l:
                seen_l.add(lam)
                if STG and lam >= 4 and lam not in own: st["need"] = lambda lam=lam: e.wait(lg=f"a{lam}")
                elif lam not in own: st["need"] = lambda lam=lam: e.wait(vm=f"a{lam}")
            st["id"] = (lam, tau, kh)
            steps.append(st)
    S = Stream(steps, OPT["D2"], H_RING)
    SS.append(S)
    idx = {st["id"]: k for k, st in enumerate(steps)}
    n = len(steps)
    for (lam, d), f in side.items(): S.aft(idx[(lam, 0, 0)] + d, f)
    def scale(tau, greg): return [lambda k=k: I(f"v_mul_f32 v{H_ACC+16*tau+k}, v{greg + (0 if M else 2*(k>>3))}, v{H_ACC+16*tau+k}") for k in range(16)]
    def pack(tau):
        b = H_ACC + tau * 16
        return [lambda k=k: I(f"v_cvt_pk_bf16_f32 v{b+k}, v{b+2*k}, v{b+2*k+1}") for k in range(8)]
    def send(tau):
        def so():
            I(f"s_xor_b32 s{S_GIN}, s{S_q}, {3-tau}"); I(f"s_mul_i32 s{S_GIN}, s{S_GIN}, {3*8192}")
            I(f"s_add_u32 s{S_GIN}, s{S_GIN}, s{S_PB}"); I(f"s_add_u32 s{S_GIN}, s{S_GIN}, {tau*8192}")
        return [so] + pack(tau) + [cost(3, lambda j=j: I(f"buffer_store_dwordx4 {vr(H_ACC+tau*16+j*4)}, v{V_L16}, {srd(S_WS)}, s{S_GIN} offen offset:{j*1024} sc1", tag=f"p{tau}")) for j in range(2)]
    def pflag(tau):
        assert e.vmq[0][0].count(f"p{tau}") == 2
        stamp(f"h_pa{tau}")
        e.wait(vm=f"p{tau}")
        stamp(f"h_pb{tau}")
        I(f"s_xor_b32 s{S_t0}, s{S_MYIN}, {(3-tau)*2048}")
        I(f"s_mov_b32 s{S_KG+tau}, {1024<<tau}")
        I(f"s_atomic_or s{S_KG+tau}, s[{S_INB}:{S_INB+1}], s{S_t0}")
    if STG:
        I(f"v_add_u32 v18, s{S_m0b}, v{V_L16}")
        I(f"v_add_u32 v19, 0x10000, v18")
        def stage_rd(lam, slot):
            a = (18, 19, 2)[slot >> 2]
            return [lambda j=j: I(f"ds_read_b128 {a2r(lam+(j>>1), j&1)}, v{a} offset:{(slot&3)*SLOT+j*1024}", tag=f"a{lam+(j>>1)}") for j in range(4)]
        def g_rd():
            I(f"s_lshr_b32 s{S_t0}, s{S_m0b}, 2"); I(f"s_add_u32 s{S_t0}, s{S_t0}, {GB_LDS}"); I(f"v_add_u32 v1, s{S_t0}, v{V_L16}")
            I(f"ds_read_b128 {vr(H_G)}, v1", tag="gz")
        I(f"v_add_u32 v2, 0x20000, v18")
        plan = [("S1", 4, stage_rd(4, 6)), ("S2", 6, stage_rd(6, 7)), ("S3", 8, stage_rd(8, 8)), ("S4", 10, stage_rd(10, 0)),
                ("S5", 12, stage_rd(12, 1) + [g_rd]), ("S6", 16, ([] if att else stage_rd(16, 2)) + stage_rd(14, 3))]
        for evn, lam, rds in plan:
            k = idx[(lam, 0, 0)] - OPT["lead"]; t = U("t")
            S.aft(k - 3 - (6 if lam == 4 else 0), lambda evn=evn, t=t: d_read(evn, t))
            S.aft(k - (6 if lam == 4 else 0), lambda evn=evn, t=t, rds=rds, k=k: (d_check(evn, t), S.add(0, k + OPT["lead"] - 3, rds)))
        for k, tg in ((OPT["pba"], "a7"), (OPT["pbb"], "a9")):
            S.aft(k, lambda tg=tg: ((e.wait(lg=tg) if tg else None), I("s_barrier")))
        S.aft(idx[(13, 0, 1)], lambda: e.wait(lg="gz"))
    elif EG:
        def gget():
            I(f"s_lshl_b32 s{S_t0}, s{S_r}, 2"); I(f"s_add_u32 s{S_t0}, s{S_t0}, s{S_q}"); I(f"s_lshl_b32 s{S_t0}, s{S_t0}, 12")
            I(f"s_lshr_b32 s{S_t1}, s{S_m0b}, 2"); I(f"s_add_u32 s{S_t0}, s{S_t0}, s{S_t1}"); I(f"s_add_u32 s{S_t0}, s{S_t0}, {GA_OFF}")
            I(f"buffer_load_dwordx4 {vr(H_G)}, v{V_L16}, {srd(S_WS)}, s{S_t0} offen sc1", tag="gz")
        S.aft(24, gget)
        S.aft(idx[(13, 0, 1)], lambda: e.wait(vm="gz"))
    else:
        def gget():
            t = U("t"); d_read("G", t); d_check("G", t)
            I(f"s_lshl_b32 s{S_t0}, s{S_w}, 8"); I(f"s_add_u32 s{S_t0}, s{S_t0}, {GB_LDS}")
            I(f"v_and_b32 v1, {31 if M else 15}, v0")
            I(f"v_lshl_add_u32 v1, v1, 3, s{S_t0}")
            I(f"ds_read_b64 {vr(H_G,2)}, v1", tag="gz")
            if not M: I(f"ds_read_b64 {vr(H_G+2,2)}, v1 offset:128", tag="gz")
        S.aft(idx[(12, 0, 1)], gget)
        S.aft(idx[(13, 0, 1)], lambda: e.wait(lg="gz"))
    for tau in range(4):
        k = idx[(13, tau, 1)]
        S.aft(k, lambda k=k, tau=tau: S.add(k + 3, idx[(oo[0], tau, 0)] if tau < 3 else n, scale(tau, H_G + 1)))
    late_flags = []
    for tau in range(3):
        k = idx[(oo[-1], tau, 1)]
        S.aft(k, lambda k=k, tau=tau: S.add(k + 3, k + 8, send(tau)))
        kf = k + 7 + OPT["pfd"]
        if kf <= n - (1 if OPT["crx"] else OPT["D2"] + 14): S.aft(kf, lambda tau=tau: pflag(tau))
        else: late_flags.append(tau)
    if OPT["crx"]:
        assert LD >= 2
        S.aft(idx[(oo[0], 0, 0)], lambda: I("s_barrier"))
    else: S.aft(n - OPT["D2"], lambda: (e.wait(lg=f"w{n-1}"), [pflag(t) for t in late_flags[:-1]], poll_load()))
    S.aft(idx[(8, 0, 0)], lambda: stamp("h_late"))
    S.aft(idx[(oo[0], 0, 0)], lambda: stamp("h_o"))
    S.aft(idx[(LD, 3, 0)], lambda: stamp("h_own"))
    S.run(OPT["side2"])
    if OPT["crx"]:
        for t in late_flags: pflag(t)
        O = H_ACC + 48
        I(f"v_add_u32 v1, s{S_m0b}, v{V_L16}")
        for k in range(8): I(f"v_pk_add_f32 {vr(O+2*k,2)}, {vr(O+2*k,2)}, {vr(H_ACC+2*k,2)}")
        for j in range(4): I(f"ds_write_b128 v1, {vr(O+4*j)} offset:{j*1024}")
        I("s_waitcnt lgkmcnt(0)")
        stamp("h_sum")
        I("s_barrier")
        finish()
        return
    out_addr()
    for t in late_flags[-1:]: pflag(t)
    O = H_ACC + 48
    for k in range(8): I(f"v_pk_add_f32 {vr(O+2*k,2)}, {vr(O+2*k,2)}, {vr(H_ACC+2*k,2)}")
    for tau in range(3):
        poll_check(1024 << tau)
        stamp(f"h_r{tau}")
        if tau == 2: stamp("h_rcv")
        for j in range(2):
            I(f"buffer_load_dwordx4 {vr(24+tau*8+j*4)}, v{V_L16}, {srd(S_WS)}, s{S_GIN} offen offset:{j*1024} sc1", tag=f"r{tau}")
        if tau < 2: I(f"s_add_u32 s{S_GIN}, s{S_GIN}, 8192")
    for tau in range(3):
        e.wait(vm=f"r{tau}")
        b = H_ACC + 16
        for k in range(8):
            I(f"v_lshlrev_b32 v{b+2*k}, 16, v{24+tau*8+k}")
            I(f"v_and_b32 v{b+2*k+1}, 0xffff0000, v{24+tau*8+k}")
        for k in range(8): I(f"v_pk_add_f32 {vr(O+2*k,2)}, {vr(O+2*k,2)}, {vr(b+2*k,2)}")
    for k in range(8): I(f"v_pk_mul_f32 {vr(O+2*k,2)}, {vr(O+2*k,2)}, {vr(H_G + (0 if M else 2*(k>>2)),2)} op_sel_hi:[1,0]")
    stamp("h_sum")
    for f in pack(3): f()
    for j in range(2):
        sw = "v_permlane32_swap_b32" if M else "v_permlane16_swap_b32"
        I(f"{sw} v{O+4*j}, v{O+4*j+2}")
        I(f"{sw} v{O+4*j+1}, v{O+4*j+3}")
        I(f"buffer_store_dwordx4 {vr(O+4*j)}, v{4 if M else 4+j}, {srd(S_OUT)}, s{S_COL} offen offset:{j*(32 if M else 1024)}" + ["", " nt", " sc0", " sc1"][OPT["of"]])
    finish()

h_prog(False)
e.label("L_h_att")
h_prog(True)

e.label("L_C")
role[0] = "C"
reset()
C_WR = 4; C_XR = 12; C_EXW = 3; C_HA = 18; C_HX = (24, 56, 60); C_HACC = 28; C_ACC = 64
I("s_setprio 2")
if OPT["codepf"] and not OPT["pfe"]:
    I("s_cmp_lt_u32 s2, 16")
    I("s_cbranch_scc0 L_nopf")
    e.cond_begin()
    I("s_getpc_b64 s[56:57]")
    e.label("L_pc")
    I(f"s_sub_u32 s56, s56, L_pc-{NAME}_kernel")
    I("s_subb_u32 s57, s57, 0")
    I(f"s_lshr_b32 s{S_t0}, s2, 3")
    I(f"s_lshl_b32 s{S_t0}, s{S_t0}, 15")
    I(f"v_lshlrev_b32 v2, 7, v0")
    I(f"v_lshl_add_u32 v2, v1, 13, v2")
    I(f"v_add_u32 v2, s{S_t0}, v2")
    I(f"v_min_u32 v2, L_end-{NAME}_kernel, v2")
    I(f"global_load_dword v127, v2, s[56:57]")
    e.cond_end()
    e.label("L_nopf")
late_scalars()
def ev_init():
    I("v_lshlrev_b32 v2, 2, v0")
    I(f"v_add_u32 v2, {EV_LDS}, v2")
    I("v_mov_b32 v1, 1")
    I("ds_write_b32 v2, v1", tag="exw0")
I("v_lshrrev_b32 v32, 4, v0")
I("v_and_b32 v33, 15, v0")
I("v_bfe_u32 v34, v0, 2, 2")
I("v_and_b32 v35, 3, v0")
after_karg()
common_ptrs()
mk_srd(S_OUT, 18, 2048 * 1024)
if OPT["tw"] & 2:
    I(f"s_cmp_eq_u32 s{S_w}, 1")
    I("s_cbranch_scc0 L_notw")
    e.cond_begin()
    I(f"s_lshl_b32 s{S_t0}, s2, 12")
    I(f"s_load_dword s{S_EV}, s[14:15], 0")
    I(f"s_load_dword s{S_EV}, s[8:9], 0")
    I(f"s_load_dword s{S_EV}, s[18:19], s{S_t0} glc")
    I(f"s_load_dword s{S_EV}, s[22:23], s{S_A2} glc")
    I(f"s_add_u32 s{S_t0}, s{S_t0}, {PART_OFF}")
    I(f"s_load_dword s{S_EV}, s[22:23], s{S_t0} glc")
    I("s_waitcnt lgkmcnt(0)")
    e.cond_end()
    e.label("L_notw")
if not OPT["hinit"]:
    I(f"s_cmp_eq_u32 s{S_w}, 0")
    I("s_cbranch_scc0 L_c_noinit")
    e.cond_begin()
    for k in range(4):
        I(f"s_mov_b32 s{S_KG+k}, 0")
        I(f"s_add_u32 s{S_t0}, s{S_MYIN}, {k*128}")
        I(f"s_atomic_swap s{S_KG+k}, s[{S_INB}:{S_INB+1}], s{S_t0} glc")
    e.cond_end()
    e.label("L_c_noinit")
if OPT["ev0"]: I("s_barrier")
I(f"s_cmp_ge_u32 s{S_jj}, 2")
I("s_cbranch_scc1 L_c_att")

def c_prog(att):
    reset()
    UL = units(att)
    slot_of = {un: phys(att, k) for k, un in enumerate(UL)}
    subs = [un for un in UL if un[0] == "g"]
    if OPT["spf"] == 2 and OPT["tearly"] and OPT["th"] < 0: vtouch(att)
    n16 = att or not M
    if not (att and OPT["n9"]):
        ev_init(); I("s_waitcnt lgkmcnt(0)"); reset()
    if n16:
        for p in range(2):
            I(f"v_xor_b32 v38, {8 if p == 0 else 0}, v33")
            I("v_and_b32 v39, 8, v38")
            I("v_add_u32 v39, v39, v38")
            I("v_lshlrev_b32 v39, 7, v39")
            I("v_lshrrev_b32 v38, 1, v38")
            I("v_xor_b32 v38, v38, v32")
            I("v_lshl_add_u32 v39, v38, 4, v39")
            I(f"v_add_u32 v39, s{S_m0b}, v39")
            I(f"v_add_u32 v{C_XR+2*p+p}, {p*1024}, v39")
            I(f"v_xor_b32 v{C_XR+2*p+1-p}, 64, v{C_XR+2*p+p}")
        I("v_lshl_add_u32 v38, v32, 3, v34")
        I("v_lshlrev_b32 v38, 7, v38")
        I("v_lshl_add_u32 v38, v35, 3, v38")
        I("v_lshrrev_b32 v39, 1, v34")
        I("v_and_b32 v40, 1, v32")
        I("v_lshl_or_b32 v39, v40, 1, v39")
        I(f"v_xor_b32 v41, {'s'+str(S_w) if att else 0}, v39")
        for t in range(4):
            I(f"v_xor_b32 v40, {t}, v41")
            I(f"v_lshl_add_u32 v{C_WR+t}, v40, 5, v38")
            I(f"v_add_u32 v{C_WR+4+t}, 0x10000, v{C_WR+t}")
        if att:
            I("v_lshrrev_b32 v38, 1, v33")
            I("v_xor_b32 v38, v38, v32")
            I("v_lshlrev_b32 v38, 4, v38")
            I("v_lshl_add_u32 v38, v33, 7, v38")
            I(f"v_add_u32 v{C_HA}, {HALO_LDS}, v38")
            I(f"v_xor_b32 v{C_HA+1}, 64, v{C_HA}")
            I(f"s_mul_i32 s{S_t0}, s{S_w}, 5120")
            I(f"s_add_u32 s{S_t0}, s{S_t0}, {EXCH_LDS+4096}")
            I(f"v_add_u32 v{C_EXW}, s{S_t0}, v{V_L16}")
    else:
        I("v_and_b32 v40, 1, v32")
        I("v_lshlrev_b32 v38, 3, v40")
        I("v_xor_b32 v38, 8, v38")
        I("v_xor_b32 v38, v38, v33")
        I("v_and_b32 v39, 8, v38")
        I("v_add_u32 v39, v39, v38")
        I("v_lshl_add_u32 v39, v40, 3, v39")
        I("v_lshlrev_b32 v39, 7, v39")
        I("v_lshrrev_b32 v38, 1, v38")
        I("v_lshlrev_b32 v41, 2, v40")
        I("v_xor_b32 v38, v38, v41")
        I("v_lshrrev_b32 v41, 1, v32")
        I("v_xor_b32 v38, v38, v41")
        I("v_lshl_add_u32 v39, v38, 4, v39")
        I(f"v_add_u32 v{C_XR}, s{S_m0b}, v39")
        for k in range(1, 4): I(f"v_xor_b32 v{C_XR+k}, {32*k}, v{C_XR}")
        I("v_lshl_add_u32 v38, v41, 3, v34")
        I("v_lshlrev_b32 v38, 7, v38")
        I("v_lshl_add_u32 v38, v35, 3, v38")
        I("v_lshl_add_u32 v38, v40, 5, v38")
        I("v_lshrrev_b32 v39, 1, v34")
        I(f"v_lshl_add_u32 v{C_WR}, v39, 6, v38")
        I(f"v_xor_b32 v{C_WR+1}, 64, v{C_WR}")
        for t in range(2): I(f"v_add_u32 v{C_WR+4+t}, 0x10000, v{C_WR+t}")
    if OPT["spf"] == 2 and not OPT["tearly"] and OPT["th"] < 0: vtouch(att)
    if OPT["spf"] == 1:
        P = 3072 if att else 3584; wp = 6 if att else 12
        I(f"s_lshl_b32 s{S_t0}, s{S_r}, 2"); I(f"s_add_u32 s{S_t0}, s{S_t0}, s{S_w}")
        I(f"s_mul_i32 s{S_t1}, s{S_t0}, {8*P}")
        I(f"s_mul_i32 s{S_t2}, s{S_q}, {256 if att else 896}"); I(f"s_add_u32 s{S_t1}, s{S_t1}, s{S_t2}")
        I(f"s_lshl_b32 s{S_t2}, s{S_j1}, 7"); I(f"s_add_u32 s{S_t2}, s{S_t2}, s{S_t1}")
        I(f"s_add_u32 s56, s{wp}, s{S_t2}"); I(f"s_addc_u32 s57, s{wp+1}, 0")
        for k in range(8): I(f"s_load_dword s{S_EV}, s[56:57], {k*P + (2048 if att else 512)}")
        if not att:
            I(f"s_mul_i32 s{S_t2}, s{S_j1}, {4*P}"); I(f"s_add_u32 s{S_t2}, s{S_t2}, s{S_t1}")
            I(f"s_add_u32 s56, s{wp}, s{S_t2}"); I(f"s_addc_u32 s57, s{wp+1}, 0")
            for k in range(4): I(f"s_load_dword s{S_EV}, s[56:57], {k*P + 768}")
        I(f"s_lshl_b32 s{S_t0}, s{S_t0}, 2"); I(f"s_add_u32 s{S_t0}, s{S_t0}, s{S_jj}")
        I(f"s_mul_i32 s{S_t1}, s{S_t0}, 1792"); I(f"s_mul_i32 s{S_t2}, s{S_q}, {448*1024}"); I(f"s_add_u32 s{S_t1}, s{S_t1}, s{S_t2}")
        I(f"s_add_u32 s56, s14, s{S_t1}"); I("s_addc_u32 s57, s15, 0")
        for k in range(14): I(f"s_load_dword s{S_EV}, s[56:57], {k*128}")
        I(f"s_lshl_b32 s{S_t1}, s{S_t0}, 9"); I(f"s_lshl_b32 s{S_t2}, s{S_q}, 17"); I(f"s_add_u32 s{S_t1}, s{S_t1}, s{S_t2}")
        I(f"s_add_u32 s56, s8, s{S_t1}"); I("s_addc_u32 s57, s9, 0")
        for k in range(4): I(f"s_load_dword s{S_EV}, s[56:57], {k*128}")
        I("s_waitcnt lgkmcnt(0)")
    if not OPT["hinit"]:
        l = U("ci")
        I(f"s_cmp_eq_u32 s{S_w}, 0"); I(f"s_cbranch_scc0 {l}")
        e.cond_begin()
        I(f"s_mov_b32 s{S_t1}, 1")
        I("s_waitcnt lgkmcnt(0)")
        I(f"s_atomic_add s{S_t1}, s[{S_DBG}:{S_DBG+1}], 0")
        e.cond_end(); e.label(l)
    if EG and not att:
        I("v_lshlrev_b32 v18, 4, v32"); I(f"v_add_u32 v18, {GW_LDS}, v18")
    I("s_waitcnt vmcnt(0)")
    stamp("c_go")
    def xfr(p, s): return ar((p * 16 + s) * 4)
    def xf32(s16): return ar(s16 * 4)
    def acc(c, T, p=0):
        base = C_ACC + 32 * (c & 1)
        if att: return base + (T * 2 + p) * 4
        if M: return base + T * 16
        return base + (((T >> 1) * 2 + p) * 2 + (T & 1)) * 4
    def xread(dst, areg, slot, tmp, k):
        base = slot * SLOT
        if base >= 65536:
            I(f"v_add_u32 v{tmp}, {base & ~0xffff}, v{areg}"); areg = tmp
        I(f"ds_read_b128 {dst}, v{areg} offset:{base & 0xffff}", tag=f"w{k}")
    steps = []; nh = [0]
    for i, un in enumerate(subs):
        _, c, u = un; slot = slot_of[un]
        for j in range(16):
            h = j >> 3
            if n16:
                ks = (j >> 1) & 3; T = 2 * h + (j & 1); s = 4 * u + ks; zero = (u == 0 and ks == 0); ta = T
                if c == 3: s = 4 * (u + 2 * h) + ks; ta = j & 1; zero = (u == 0 and h == 0 and ks == 0)
                halo = att and T == 0 and c != 1
                st = dict(rd=(C_WR + (4 if slot >= 4 else 0) + T, (slot & 3) * SLOT + ks * 4096, 512))
                def mf(W, st, s=s, T=ta, zero=zero, c=c, halo=halo):
                    out = []
                    for p in range(2):
                        a, b = (xfr(p, s), W) if (att and c == 2) else (W, xfr(p, s))
                        d = vr(acc(c, T, p))
                        out.append(f"{MF} {d}, {a}, {b}, {'0' if zero else d}")
                    if "gate" in st:
                        gs, gp = st["gate"]
                        out.append(f"{MF} {vr(24+4*gp)}, {vr(56+4*(gs&1))}, {xfr(gp,gs)}, {'0' if gs == 0 else vr(24+4*gp)}")
                    if halo:
                        a, b = (vr(st["hreg"]), W) if c == 2 else (W, vr(st["hreg"]))
                        out.append(f"{MF} {vr(C_HACC)}, {a}, {b}, {'0' if zero else vr(C_HACC)}")
                    return out
                if EG and not att and c == 1 and j % 4 >= 2: st["gate"] = (4 * u + (j >> 2), j & 1)
                def post(k, st=st, s=s, halo=halo, j=j, c=c, u=u, ks=ks):
                    if EG and not att and c == 1 and j % 4 == 2:
                        if j == 2:
                            I(f"s_add_u32 s{S_t0}, s{S_rot}, {u}"); I(f"s_and_b32 s{S_t0}, s{S_t0}, 3"); I(f"s_lshl_b32 s{S_t0}, s{S_t0}, 8")
                            I(f"v_add_u32 v19, s{S_t0}, v18")
                        I(f"ds_read_b128 {vr(56+4*((j>>2)&1))}, v19 offset:{(j>>2)*64}", tag=f"w{k}")
                    if OPT["ev0"] and c == 0 and u == 0 and j == 12: I("ds_read_b32 v21, v20 offset:16", tag="se1")
                    if c == 0 and j < 8 and j % 2 == 0:
                        for p in range(2): xread(xfr(p, s), C_XR + 2 * p + (ks & 1), slot_of[("x", u, ks >> 1)], 1 + p, k)
                    if att and c == 2 and u == 2 and j == 11 and OPT["u19"]: d_read("Lv3", "chk11")
                    if halo:
                        st["hreg"] = C_HX[nh[0] % 3]; nh[0] += 1
                        I(f"ds_read_b128 {vr(st['hreg'])}, v{C_HA+(s&1)} offset:{(s>>1)*2048}", tag=f"w{k}")
            else:
                kk = j & 7
                if c < 3: s16 = 8 * u + kk; ta = h; zero = (u == 0 and kk == 0)
                else: s16 = 8 * (u + 2 * h) + kk; ta = 0; zero = (u == 0 and j == 0)
                st = dict(rd=(C_WR + (4 if slot >= 4 else 0) + h, (slot & 3) * SLOT + kk * 2048, 512))
                d = vr(acc(c, ta), 16)
                def mf(W, st, s16=s16, d=d, zero=zero): return [f"{M32} {d}, {W}, {xf32(s16)}, {'0' if zero else d}"]
                def post(k, s16=s16, j=j, c=c, u=u, kk=kk):
                    if c == 0 and j < 8: xread(xf32(s16), C_XR + (kk & 3), slot_of[("x", u, kk >> 2)], 1 + (kk & 1), k)
            st["mf"] = mf; st["post"] = post
            if j == 0:
                def pre(i=i):
                    stamp(f"t{i}")
                    if att and i == 8:
                        assert e.lgq[0][0].count("exw0") == 5 + OPT["n9"]
                        e.wait(lg="exw0")
                    if att and slot_of[subs[i]] >= 8:
                        for t in range(4): I(f"v_add_u32 v{C_WR+4+t}, 0x10000, v{C_WR+4+t}")
                    if att and i and slot_of[subs[i-1]] >= 8:
                        for t in range(4): I(f"v_subrev_u32 v{C_WR+4+t}, 0x10000, v{C_WR+4+t}")
                    if not att and i - OPT["ackb"] in (0, 1):
                        assert e.vmq[0][0].count(f"st{i-OPT['ackb']}") == 4
                        e.wait(vm=f"st{i-OPT['ackb']}")
                        if EG and i - OPT["ackb"] == 1: e.wait(vm="stg")
                    if i < 2 and OPT["ev0"]:
                        ok = U("ok"); lp = U("sp")
                        rd = f"ds_read_b32 v21, v20 offset:{16*i}"
                        if i == 0:
                            I(f"v_add_u32 v20, {(SEV(att) - EV_LDS) & 0xffffffff}, v{V_EVW}")
                            I(rd, tag="se0")
                        e.wait(lg=f"se{i}")
                        I("v_cmp_ne_u32 vcc, 0, v21")
                        I(f"s_cbranch_vccnz {lp}")
                        e.label(ok)
                        SLOW.extend([f"{lp}:", f"    {rd}", "    s_waitcnt lgkmcnt(0)", "    v_cmp_ne_u32 vcc, 0, v21", f"    s_cbranch_vccz {ok}", "    s_sleep 1"] + spin_tail(lp, ok))
                    elif i < (9 if att else 14): I("s_barrier")
                    if att and i == 11 and OPT["u19"]: d_check("Lv3", "chk11")
                    stamp(f"s{i}")
                    if att and M and i == 8:
                        for t in range(8): I(f"v_xor_b32 v{C_WR+t}, v19, v{C_WR+t}")
                st["pre"] = pre
            steps.append(st)
    if att: S = Stream(steps, OPT["D"], [32, 36, 40, 44, 48, 52])
    else: S = Stream(steps, OPT["DF"], [32, 36, 40, 44, 48, 52])
    DD = S.D
    def packn(a, n_): return [lambda k=k: I(f"v_cvt_pk_bf16_f32 v{a+k}, v{a+2*k}, v{a+2*k+1}") for k in range(n_)]
    def epi(c, h):
        F = []
        if att:
            for t in (2 * h, 2 * h + 1):
                a = acc(c, t, 0)
                F += packn(a, 4)
                def wr(t=t, a=a):
                    I(f"v_xor_b32 v1, {t*1024}, v{C_EXW}")
                    if c == 1: I(f"v_add_u32 v1, {(QSLOT*SLOT - EXCH_LDS - 4096) & 0xffffffff}, v1")
                    I(f"ds_write_b128 v1, {vr(a)}", tag=f"exw{c}")
                F.append(wr)
            if h == 0 and c != 1:
                def hw():
                    I(f"v_cvt_pk_bf16_f32 v{C_HACC}, v{C_HACC}, v{C_HACC+1}")
                    I(f"v_cvt_pk_bf16_f32 v{C_HACC+1}, v{C_HACC+2}, v{C_HACC+3}")
                    I(f"s_add_u32 s{S_t0}, s{S_m0b}, 4096")
                    I(f"v_subrev_u32 v1, s{S_t0}, v{C_EXW}")
                    I(f"ds_write2_b64 v1, {vr(C_HACC,2)}, {vr(C_HACC,2)} offset0:0 offset1:1", tag=f"exw{c}")
                F.append(hw)
                if c == 0 and OPT["n9"]: F.append(ev_init)
        else:
            a = acc(c, h) if M else acc(c, 2 * h, 0)
            F += packn(a, 8)
            def so():
                I(f"s_lshr_b32 s{S_GIN}, s{S_J32}, {2 if c < 3 else 3}")
                I(f"s_add_u32 s{S_GIN}, s{S_GIN}, s{S_A2}"); I(f"s_add_u32 s{S_GIN}, s{S_GIN}, {(4*c+h)*8192}")
            F.append(so)
            for p in range(2):
                F += [lambda k=k: I(f"v_pk_max_i16 v{k}, v{k}, 0") for k in range(a + 4 * p, a + 4 * p + 4)]
                F.append(cost(9, lambda p=p: I(f"buffer_store_dwordx4 {vr(a+4*p)}, v{V_L16}, {srd(S_WS)}, s{S_GIN} offen offset:{p*1024} sc1", tag=f"st{c}")))
        return F
    n = len(steps)
    for c, i, reuse in ((0, 6, 8), (1, 7, 12), (2, 11, 99)):
        for h in range(2):
            k = 16 * i + 8 * h + 7
            if k == n - 1: continue
            dl = min(16 * reuse + (8 * h if reuse == 8 else 0), n)
            if att and c < 2: dl = 16 * 8 - DD - 3 if c == 0 else OPT["kq"] - 1
            S.aft(k, lambda k=k, c=c, h=h, dl=dl: S.add(max(k + (2 if n16 else 4), 16 * 7 - DD + 1 if att else 0), dl, epi(c, h)))
    if att:
        def qbar():
            assert e.lgq[0][0].count("exw1") == 4
            e.wait(lg="exw1"); I("s_barrier")
        assert OPT["kq"] < 16 * 9 - DD
        S.aft(OPT["kq"], qbar)
    if EG and not att:
        def gst():
            I(f"s_lshl_b32 s{S_t0}, s{S_r}, 2"); I(f"s_add_u32 s{S_t0}, s{S_t0}, s{S_q}"); I(f"s_lshl_b32 s{S_t0}, s{S_t0}, 12")
            I(f"s_lshr_b32 s{S_t1}, s{S_m0b}, 2"); I(f"s_add_u32 s{S_t0}, s{S_t0}, s{S_t1}"); I(f"s_add_u32 s{S_t0}, s{S_t0}, {GA_OFF}")
            I(f"s_lshl_b32 s{S_t1}, s{S_j1}, 28"); I(f"s_add_u32 s{S_t0}, s{S_t0}, s{S_t1}")
            I(f"buffer_store_dwordx4 {vr(56)}, v{V_L16}, {srd(S_WS)}, s{S_t0} offen sc1", tag="stg")
        S.aft(16 * 8, lambda: S.add(0, 16 * (OPT["ackb"] + 1) - 12, [lambda t=t: I(t) for t in gate_math(24, 28, 56, 3)] + [gst]))
    if STG:
        I(f"s_mov_b32 s{S_POLL}, 0")
        S.aft(n - 24, poll_load)
    S.run(OPT["side"] if att else OPT["sidef"])
    stamp("c_end")
    if not att: I("s_barrier")
    for f in (epi(2, 1) if att else epi(3, 0)): f()
    if att:
        e.wait(lg="exw2")
        I("s_barrier")
    if OPT["cprio"] != 2: I(f"s_setprio {OPT['cprio']}")
    if STG:
        I("s_setprio 3")
        def pair(lam, slot):
            I(f"s_add_u32 m0, s{S_m0b}, {slot*SLOT}")
            a2_soff(lam, S_SOFF)
            for i in range(4):
                if i == 2: I(f"s_add_u32 s{S_SOFF}, s{S_SOFF}, {8192-2048}")
                I(f"buffer_load_dwordx4 v{V_L16}, {srd(S_WS)}, s{S_SOFF} offen offset:{i*1024} sc1 lds")
        B = lambda g: b2_unit(g, 4, False)
        b2_voffs(4)
        if att: I("s_barrier")
        else:
            assert e.vmq[0][0].count("st2") == 4
            e.wait(vm="st2"); push_group(ownbit(2), (0, 1, 2, 3))
        poll_check(0x22)
        pair(4, 6); dsig("S1")
        B(3); pair(6, 7); dsig("S2")
        if not att:
            e.wait(vm="st3"); push_group(ownbit(3), (0, 1, 2, 3))
        poll_load()
        B(4); poll_check(0x44); pair(8, 8); dsig("S3"); poll_load()
        B(5)
        I(f"s_lshr_b32 s{S_t1}, s{S_m0b}, 2"); I(f"s_add_u32 m0, s{S_t1}, {GB_LDS}")
        I(f"s_lshl_b32 s{S_t0}, s{S_r}, 2"); I(f"s_add_u32 s{S_t0}, s{S_t0}, s{S_q}"); I(f"s_lshl_b32 s{S_t0}, s{S_t0}, 12")
        I(f"s_add_u32 s{S_t0}, s{S_t0}, s{S_t1}"); I(f"s_add_u32 s{S_t0}, s{S_t0}, {GA_OFF}")
        I(f"buffer_load_dwordx4 v{V_L16}, {srd(S_WS)}, s{S_t0} offen sc1 lds")
        stamp("c_pa")
        I("s_barrier")
        pair(10, 0); dsig("S4"); B(6)
        poll_check(0x88); pair(12, 1); dsig("S5"); poll_load()
        stamp("c_pb")
        I("s_barrier")
        poll_load()
        B(8); B(7)
        if att:
            I(f"s_xor_b32 s{S_THR}, s{S_jj}, 1"); I(f"s_lshl_b32 s{S_THR}, 64, s{S_THR}")
            poll_check(f"s{S_THR}")
        else:
            poll_check(0x300); pair(16, 2)
        pair(14, 3); dsig("S6")
    else:
        rest = [3, 4, 5, 6, 8, 7]
        def cunit():
            g = rest.pop(0)
            if att and g == 8 and not OPT["vb2"]:
                t = U("t"); d_read("VD", t); d_check("VD", t)
            b2_unit(g, 4, g in SIGG)
        if not att:
            assert e.vmq[0][0].count("st2") == 4
            e.wait(vm="st2"); push_group(ownbit(2), (0, 1, 2, 3))
            stamp("c_f2")
            b2_voffs(4)
            if OPT["lowp"]: I("s_setprio 0")
            cunit(); cunit()
        if EG:
            if att:
                b2_voffs(4)
                if OPT["vb2"]: I("s_barrier")
                if OPT["lowp"]: I("s_setprio 0")
                cunit(); cunit()
            else:
                e.wait(vm="st3"); push_group(ownbit(3), (0, 1, 2, 3))
        else:
            I("s_setprio 2")
            stamp("c_g0")
            I("v_lshrrev_b32 v9, 4, v0")
            if n16:
                I("v_lshlrev_b32 v8, 4, v9")
            else:
                I("v_lshrrev_b32 v8, 5, v0"); I("v_lshlrev_b32 v8, 4, v8")
                I("v_xor_b32 v9, v9, v0"); I("v_and_b32 v9, 1, v9")
                I("v_cmp_eq_u32 vcc, 0, v9")
            NG = 16 if n16 else 32; per = NG // 4
            RB = [32 + 4 * k for k in range(8)]
            def gread(s_):
                if s_ % per == 0:
                    I(f"s_add_u32 s{S_t0}, s{S_rot}, {s_//per}"); I(f"s_and_b32 s{S_t0}, s{S_t0}, 3"); I(f"s_lshl_b32 s{S_t0}, s{S_t0}, 8")
                    I(f"s_add_u32 s{S_t0}, s{S_t0}, {GW_LDS}")
                    I(f"v_add_u32 v10, s{S_t0}, v8")
                    if not n16:
                        I(f"v_mov_b32 v11, {ZERO_LDS}"); I("v_cndmask_b32 v10, v11, v10, vcc")
                I(f"ds_read_b128 {vr(RB[s_%8])}, v10 offset:{(s_%per)*(64 if n16 else 32)}", tag=f"g{s_}")
            for s_ in range(6): gread(s_)
            if att:
                b2_voffs(4)
                I("s_barrier")
                cunit()
            for s_ in range(NG):
                e.wait(lg=f"g{s_}")
                if n16:
                    for p in range(2): I(f"{MF} {vr(64+4*p)}, {vr(RB[s_%8])}, {xfr(p,s_)}, {'0' if s_ == 0 else vr(64+4*p)}")
                else:
                    I(f"{MF} {vr(64)}, {vr(RB[s_%8])}, {xf32(s_)}, {'0' if s_ == 0 else vr(64)}")
                if s_ + 6 < NG: gread(s_ + 6)
                if s_ == NG // 2 and rest: cunit()
            if not att:
                e.wait(vm="st3"); push_group(ownbit(3), (0, 1, 2, 3))
                stamp("c_f3")
            cunit()
            z1 = 68 if n16 else 65; G = 72
            T = gate_math(64, z1, G, 1)
            for t in T: I(t)
            I(f"s_lshl_b32 s{S_t0}, s{S_w}, 8"); I(f"s_add_u32 s{S_t0}, s{S_t0}, {GB_LDS}")
            I(f"v_lshl_add_u32 v1, v0, 3, s{S_t0}")
            I("s_mov_b64 exec, 0xffff")
            I(f"ds_write_b64 v1, {vr(G,2)}", tag="gz")
            I(f"ds_write_b64 v1, {vr(G+2,2)} offset:128", tag="gz")
            I("s_mov_b64 exec, -1")
            e.wait(lg="gz")
            if OPT["lowp"]: I("s_setprio 0")
            dsig("G")
        stamp("c_g1")
        while rest:
            throttle(); cunit()
    if OPT["crx"]:
        I("s_setprio 3")
        I(f"s_mov_b32 s{S_POLL}, 0")
        poll_check(2)
        I(f"s_lshl_b32 s{S_t0}, s{S_r}, 2"); I(f"s_add_u32 s{S_t0}, s{S_t0}, s{S_q}"); I(f"s_lshl_b32 s{S_t0}, s{S_t0}, 12")
        I(f"s_lshr_b32 s{S_t1}, s{S_m0b}, 2"); I(f"s_add_u32 s{S_t0}, s{S_t0}, s{S_t1}"); I(f"s_add_u32 s{S_t0}, s{S_t0}, {GA_OFF}")
        I(f"buffer_load_dwordx4 {vr(20)}, v{V_L16}, {srd(S_WS)}, s{S_t0} offen sc1", tag="gz")
        pb_setup(); out_addr()
        I(f"v_add_u32 v1, s{S_m0b}, v{V_L16}")
        I("s_barrier")
        O = 64
        for tau in range(3):
            poll_check(1024 << tau)
            stamp(f"c_r{tau}")
            for j in range(2):
                I(f"buffer_load_dwordx4 {vr(24+tau*8+j*4)}, v{V_L16}, {srd(S_WS)}, s{S_GIN} offen offset:{j*1024} sc1", tag=f"r{tau}")
            if tau < 2: I(f"s_add_u32 s{S_GIN}, s{S_GIN}, 8192")
        def unpack(tau, b):
            e.wait(vm=f"r{tau}")
            for k in range(8):
                I(f"v_lshlrev_b32 v{b+2*k}, 16, v{24+tau*8+k}")
                I(f"v_and_b32 v{b+2*k+1}, 0xffff0000, v{24+tau*8+k}")
        def addv(d, b):
            for k in range(16): I(f"v_add_f32 v{d+k}, v{d+k}, v{b+k}")
        unpack(0, 80); unpack(1, 96); addv(80, 96)
        I("s_barrier")
        for j in range(4): I(f"ds_read_b128 {vr(O+4*j)}, v1 offset:{j*1024}", tag="own")
        unpack(2, 96)
        for k in range(8): I(f"v_pk_add_f32 {vr(80+2*k,2)}, {vr(80+2*k,2)}, {vr(96+2*k,2)}")
        e.wait(lg="own")
        for k in range(8): I(f"v_pk_add_f32 {vr(O+2*k,2)}, {vr(O+2*k,2)}, {vr(80+2*k,2)}")
        for k in range(8): I(f"v_pk_mul_f32 {vr(O+2*k,2)}, {vr(O+2*k,2)}, {vr(20+2*(k>>2),2)} op_sel_hi:[1,0]")
        stamp("c_sum")
        for k in range(8): I(f"v_cvt_pk_bf16_f32 v{O+k}, v{O+2*k}, v{O+2*k+1}")
        for j in range(2):
            I(f"v_permlane16_swap_b32 v{O+4*j}, v{O+4*j+2}")
            I(f"v_permlane16_swap_b32 v{O+4*j+1}, v{O+4*j+3}")
            I(f"buffer_store_dwordx4 {vr(O+4*j)}, v{4+j}, {srd(S_OUT)}, s{S_COL} offen offset:{j*1024}")
        finish()
        return
    if OPT["dummy"]:
        I(f"s_lshl_b32 s{S_t0}, s2, 2"); I(f"s_add_u32 s{S_t0}, s{S_t0}, s{S_w}"); I(f"s_mul_i32 s{S_t0}, s{S_t0}, 9216"); I(f"s_add_u32 s{S_t0}, s{S_t0}, {20<<20}")
        for k in range(9):
            I(f"buffer_store_dwordx4 {vr(64)}, v{V_L16}, {srd(S_WS)}, s{S_t0 if OPT['dummy'] == 1 else S_WS+2} offen")
            I(f"s_add_u32 s{S_t0}, s{S_t0}, 1024")
    I("s_waitcnt vmcnt(0) lgkmcnt(0)")
    finish()

c_prog(False)
e.label("L_c_att")
c_prog(True)

e.label("L_end")
I("s_endpgm")
e.raw('.section .rodata,"a"')
e.raw(".p2align 6")
e.raw(f".amdhsa_kernel {NAME}_kernel")
e.raw("  .amdhsa_next_free_vgpr 256")
e.raw("  .amdhsa_next_free_sgpr 102")
e.raw("  .amdhsa_accum_offset 128")
e.raw("  .amdhsa_group_segment_fixed_size 0")
e.raw("  .amdhsa_kernarg_size 80")
e.raw("  .amdhsa_user_sgpr_count 2")
e.raw("  .amdhsa_user_sgpr_kernarg_segment_ptr 1")
e.raw("  .amdhsa_system_sgpr_workgroup_id_x 1")
e.raw(".end_amdhsa_kernel")
sys.stdout.write(e.text())
sys.stderr.write(f"instructions {e.nins} nop-states {e.nops}\n")
```

```python
import sys, struct
from emit import Em

NAME = "gated_mix__sliding_local_dilated__dense_activation_relu__prompt"
OPT = dict(padt=6000, padk=-1, padr=0, stamp=0, D=4, DF=4, D2=5, codepf=1, spin=400000, lround=0, side=2, sidef=2, side2=3,
           ld=2, thr=5, pre=5, pfd=18, ackb=10, cprio=2, dummy=0, sch=1, tm=0, qb=0, rotq=2, spf=2, tearly=0, tB=0, tfull=0, th=6, gap=1, kc=30, kh=52, ko=64, lowp=1, tatt=0, m32=0, fp=8, u19=0, tha=6, of=0, eg=1, pfe=2, hinit=0, pb=9, n9=1, kq=135, vb2=1, pkm=1, stg=0, a47=2, crx=0, tw=0, ev0=0, own=0, fpc=8, lead=8, pba=50, pbb=66)
CST = ["s0", "s2", "s4", "s6", "s8", "s10", "s12", "c_end"]
HST = ["h_b0", "h_b7", "h_p2", "h_late", "h_o", "h_own", "h_rcv", "h_sum"]
for a in sys.argv[1:]:
    k, v = a.split("=")
    if k == "cst": CST = v.split(",")
    elif k == "hst": HST = v.split(",")
    else:
        assert k in OPT, k
        OPT[k] = int(v)
STAMP = OPT["stamp"]; M = OPT["m32"]; EG = OPT["eg"]
assert EG and not M
assert not OPT["u19"] and OPT["th"] >= 0
STG = OPT["stg"]
if STG: OPT["ld"] = 8; assert OPT["vb2"]
OWN = OPT["own"]
GA_OFF = (9 << 20) + (512 << 10)
def f2u(x): return struct.unpack("<I", struct.pack("<f", x))[0]

PART_OFF = 10 << 20
INB_OFF = 32 << 20
STAMP_OFF = 33 << 20
WS_BYTES = 36 << 20
SLOT = 16384
HALO_LDS = 7 * SLOT
EXCH_LDS = 8 * SLOT
EV_LDS = EXCH_LDS + 20480
ZERO_LDS = EV_LDS + 256
GW_LDS = EV_LDS + 1024
GB_LDS = EV_LDS + 2048
NEG = f2u(-1e30)
def SEV(att): return HALO_LDS + 3 * 4096 if att else EV_LDS + 512

e = Em()
I = e.I
def vr(b, n=4): return f"v[{b}:{b+n-1}]"
def ar(b, n=4): return f"a[{b}:{b+n-1}]"
def srd(b): return f"s[{b}:{b+3}]"
MF = "v_mfma_f32_16x16x32_bf16"
M32 = "v_mfma_f32_32x32x16_bf16"

S_X, S_W, S_WS, S_OUT, S_W2, S_WO, S_GW = 24, 28, 32, 36, 40, 44, 48
S_INB = 52; S_DBG = 54
S_w, S_r, S_jj, S_rot, S_q, S_m0b, S_j1 = 60, 61, 62, 63, 64, 65, 66
S_t0, S_t1, S_t2 = 3, 67, 68
S_BUD = 69; S_EV = 70; S_SOFF = 71
S_POLL = 74; S_MYIN = 75; S_CEXP = 76; S_THR = 77; S_W4 = 79
S_KG = 80; S_WK = 84
S_COL = 88; S_A2 = 89; S_B2 = 90; S_BO = 91; S_PB = 92; S_J32 = 93; S_GIN = 94; S_P = 95
S_STAMP = 4
EVD = {}
def evd(name):
    if name not in EVD: EVD[name] = len(EVD)
    assert EVD[name] < 16
    return EVD[name] * 16
role = ["H"]
def stamp(name):
    L = CST if role[0] == "C" else HST
    if name == "end": idx = 8
    elif name in L: idx = L.index(name)
    else: return
    if STAMP == 2 and idx < 4:
        I(f"s_memtime s[{S_STAMP+2*idx}:{S_STAMP+2*idx+1}]"); I(f"s_memrealtime s[{S_STAMP+2*idx+8}:{S_STAMP+2*idx+9}]")
    elif STAMP == 3: I(f"s_memrealtime s[{S_STAMP+2*idx}:{S_STAMP+2*idx+1}]")
    elif STAMP: I(f"s_memtime s[{S_STAMP+2*idx}:{S_STAMP+2*idx+1}]")
uid = [0]
def U(p):
    uid[0] += 1
    return f"L_{p}{uid[0]}"
def reset():
    e.vmq = [[[], 0]]; e.lgq = [[[], 0]]; e.hist = []
V_L16 = 16; V_EVW = 17; V_CHK = 3
SLOW = []
def flush_slow():
    for l in SLOW: e.raw(l)
    SLOW.clear()
def spin_tail(lp, ok):
    return [f"    s_sub_u32 s{S_BUD}, s{S_BUD}, 1", f"    s_cbranch_scc0 {lp}", f"    s_mov_b32 s{S_BUD}, 0", f"    s_branch {ok}"]
def dsig(name):
    I(f"s_add_u32 m0, s{S_W4}, {EV_LDS + evd(name)}")
    I("s_mov_b64 exec, 1")
    I(f"buffer_load_dword v{V_L16}, {srd(S_WO)}, s{S_WO+2} offen lds", tag="dsig")
    I("s_mov_b64 exec, -1")
def d_read(name, tag): I(f"ds_read_b32 v{V_CHK}, v{V_EVW} offset:{evd(name)}", tag=tag)
def d_check(name, tag):
    ok = U("ok"); lp = U("sp")
    e.wait(lg=tag)
    I(f"v_cmp_ne_u32 vcc, 0, v{V_CHK}")
    I(f"s_cbranch_vccnz {lp}")
    e.label(ok)
    SLOW.extend([f"{lp}:", f"    ds_read_b32 v{V_CHK}, v{V_EVW} offset:{evd(name)}", "    s_waitcnt lgkmcnt(0)", f"    v_cmp_ne_u32 vcc, 0, v{V_CHK}",
                 f"    s_cbranch_vccz {ok}", "    s_sleep 1"] + spin_tail(lp, ok))
def throttle():
    n = OPT["thr"]
    I(f"s_waitcnt vmcnt({n})")
    for q in e.vmq: q[1] = max(q[1], len(q[0]) - n)
def poll_load():
    I(f"s_load_dword s{S_POLL}, s[{S_INB}:{S_INB+1}], s{S_MYIN} glc")
def poll_check(mask):
    ok = U("pk"); lp = U("pl")
    I(f"s_andn2_b32 s{S_EV}, {mask}, s{S_POLL}")
    I(f"s_cbranch_scc1 {lp}")
    e.label(ok)
    SLOW.extend([f"{lp}:", "    s_waitcnt lgkmcnt(0)", f"    s_andn2_b32 s{S_EV}, {mask}, s{S_POLL}", f"    s_cbranch_scc0 {ok}",
                 f"    s_load_dword s{S_POLL}, s[{S_INB}:{S_INB+1}], s{S_MYIN} glc"] + spin_tail(lp, ok))
def push_group(bit_fn, ds):
    bit_fn()
    for d in ds:
        I(f"s_xor_b32 s{S_t0}, s{S_MYIN}, {d*512}")
        I(f"s_atomic_or s{S_t2}, s[{S_INB}:{S_INB+1}], s{S_t0}")
def ownbit(b):
    def f():
        I(f"s_lshl_b32 s{S_t2}, s{S_jj}, 2"); I(f"s_lshl_b32 s{S_t2}, {1<<b}, s{S_t2}")
    return f
def mk_srd(b, p, nbytes):
    I(f"s_mov_b32 s{b}, s{p}")
    I(f"s_and_b32 s{b+1}, s{p+1}, 0xffff")
    I(f"s_mov_b32 s{b+2}, {nbytes}")
    I(f"s_mov_b32 s{b+3}, 0x20000")
def b2_voffs(dst):
    I("v_lshrrev_b32 v1, 3, v0")
    if M:
        I("v_bfe_u32 v2, v0, 4, 1")
        I("v_lshlrev_b32 v2, 2, v2")
    else:
        I("v_lshrrev_b32 v2, 4, v0")
        I("v_lshlrev_b32 v2, 1, v2")
    I(f"v_and_b32 v{dst}, 7, v0")
    I(f"v_xor_b32 v{dst}, v{dst}, v2")
    I(f"v_lshlrev_b32 v{dst}, 4, v{dst}")
    I(f"v_lshl_add_u32 v{dst}, v1, 10, v{dst}")
    for i in range(1, 4): I(f"v_add_u32 v{dst+i}, {i*7168}, v{dst}")
def late_scalars():
    I(f"s_lshl_b32 s{S_W4}, s{S_w}, 2")
    I(f"s_mov_b32 s{S_BUD}, {OPT['spin']}")
    I(f"s_and_b32 s{S_j1}, s{S_jj}, 1")
    I(f"s_lshl_b32 s{S_t0}, s{S_jj}, 8")
    I(f"s_lshr_b32 s{S_t1}, s{S_w}, 1")
    I(f"s_lshl_b32 s{S_t1}, s{S_t1}, 7")
    I(f"s_add_u32 s{S_t0}, s{S_t0}, s{S_t1}")
    I(f"s_and_b32 s{S_t1}, s{S_w}, 1")
    I(f"s_lshl_b32 s{S_t1}, s{S_t1}, 15")
    I(f"s_add_u32 s{S_t0}, s{S_t0}, s{S_t1}")
    I(f"s_mul_i32 s{S_B2}, s{S_q}, {14*32768}")
    I(f"s_add_u32 s{S_B2}, s{S_B2}, s{S_t0}")
    I(f"s_lshl_b32 s{S_BO}, s{S_q}, 17")
    I(f"s_add_u32 s{S_BO}, s{S_BO}, s{S_t0}")
    I(f"s_lshl_b32 s{S_J32}, s{S_j1}, 16")
    I(f"s_lshl_b32 s{S_t0}, s{S_r}, 2")
    I(f"s_add_u32 s{S_t0}, s{S_t0}, s{S_q}")
    I(f"s_mul_i32 s{S_A2}, s{S_t0}, {18*8192}")
    I(f"s_lshl_b32 s{S_t1}, s{S_w}, 11")
    I(f"s_add_u32 s{S_A2}, s{S_A2}, s{S_t1}")
    I(f"s_lshl_b32 s{S_MYIN}, s{S_t0}, 2")
    I(f"s_add_u32 s{S_MYIN}, s{S_MYIN}, s{S_jj}")
    I(f"s_lshl_b32 s{S_MYIN}, s{S_MYIN}, 2")
    I(f"s_add_u32 s{S_MYIN}, s{S_MYIN}, s{S_w}")
    I(f"s_lshl_b32 s{S_MYIN}, s{S_MYIN}, 7")
    I(f"v_lshlrev_b32 v{V_L16}, 4, v0")
    I(f"v_and_b32 v{V_EVW}, 3, v0")
    I(f"v_lshlrev_b32 v{V_EVW}, 2, v{V_EVW}")
    I(f"v_add_u32 v{V_EVW}, {EV_LDS}, v{V_EVW}")
def common_ptrs():
    I(f"s_add_u32 s{S_INB}, s22, {INB_OFF}")
    I(f"s_addc_u32 s{S_INB+1}, s23, 0")
    I(f"s_lshl_b32 s{S_t0}, s{S_r}, 4")
    I(f"s_add_u32 s{S_DBG}, s20, s{S_t0}")
    I(f"s_addc_u32 s{S_DBG+1}, s21, 0")
    mk_srd(S_WS, 22, WS_BYTES)
    mk_srd(S_W2, 14, 1792 * 1024)
    mk_srd(S_WO, 8, 512 * 1024)
def dma4(voff, srdb, tag):
    for i in range(4):
        I(f"buffer_load_dwordx4 v{voff+i}, {srd(srdb)}, s{S_SOFF} offen offset:{i*1024} lds", tag=tag)
def b2_unit(g, voff, sig=True):
    I(f"s_add_u32 m0, s{S_m0b}, {g*SLOT}")
    if g < 6 and OWN:
        I(f"s_xor_b32 s{S_SOFF}, s{S_J32}, {g*65536}"); I(f"s_add_u32 s{S_SOFF}, s{S_SOFF}, s{S_B2}")
    elif g < 7: I(f"s_add_u32 s{S_SOFF}, s{S_B2}, {g*65536}")
    else:
        I(f"s_xor_b32 s{S_SOFF}, s{S_J32}, {((g-7)^1)*65536}")
        I(f"s_add_u32 s{S_SOFF}, s{S_SOFF}, s{S_BO}")
    dma4(voff, S_W2 if g < 7 else S_WO, f"b{g}")
    if sig: dsig(f"Lb{g}")
def a2_soff(lam, dst):
    if lam < 12 and OWN:
        I(f"s_lshr_b32 s{dst}, s{S_J32}, 2"); I(f"s_xor_b32 s{dst}, s{dst}, {lam*8192}"); I(f"s_add_u32 s{dst}, s{dst}, s{S_A2}")
    elif lam < 14: I(f"s_add_u32 s{dst}, s{S_A2}, {lam*8192}")
    else:
        I(f"s_lshr_b32 s{dst}, s{S_J32}, 2"); I(f"s_xor_b32 s{dst}, s{dst}, {((lam-14)^2)*8192}")
        I(f"s_add_u32 s{dst}, s{dst}, s{S_A2}"); I(f"s_add_u32 s{dst}, s{dst}, {14*8192}")
def after_karg():
    I("s_waitcnt lgkmcnt(0)")
    if STAMP:
        I("s_memrealtime s[100:101]" if STAMP == 3 else "s_memtime s[100:101]")
        I("s_mov_b32 s72, s96")
        I("s_mov_b32 s73, s98")
def finish():
    if STAMP:
        I("s_waitcnt vmcnt(0)")
        stamp("end")
        I("s_memrealtime s[22:23]")
        I("s_waitcnt lgkmcnt(0)")
        I(f"s_lshl_b32 s{S_t0}, s2, 3")
        I(f"s_add_u32 s{S_t0}, s{S_t0}, s{S_w}")
        if role[0] == "H": I(f"s_add_u32 s{S_t0}, s{S_t0}, 4")
        I(f"s_lshl_b32 s{S_t0}, s{S_t0}, 6")
        I(f"s_add_u32 s{S_t0}, s{S_t0}, {STAMP_OFF}")
        I(f"v_mov_b32 v2, s{S_t0}")
        for k in range(9): I(f"v_mov_b32 v{32+k}, s{S_STAMP+2*k}")
        I("v_mov_b32 v41, s73"); I("v_mov_b32 v42, s22"); I("v_mov_b32 v43, s72"); I("v_mov_b32 v44, s100")
        I(f"v_mov_b32 v45, s{S_BUD}"); I("v_mov_b32 v46, 0")
        I("s_mov_b64 exec, 1")
        for k in range(4): I(f"buffer_store_dwordx4 {vr(32+4*k)}, v2, {srd(S_WS)}, 0 offen offset:{16*k}")
    if STAMP >= 3:
        if OPT["padk"] >= 0 and (OPT["padr"] == 1) == (role[0] == "H"):
            I(f"s_sub_u32 s24, s{100 if OPT['padk'] == 9 else S_STAMP+2*OPT['padk']}, s{73 if STAMP == 3 else 72}")
            if STAMP == 4: I("s_lshr_b32 s24, s24, 4")
        else: I("s_mov_b32 s24, 0")
        I(f"s_add_u32 s24, s24, {OPT['padt']}")
        l = U("pad")
        e.label(l)
        I("s_memrealtime s[26:27]"); I("s_waitcnt lgkmcnt(0)"); I("s_sub_u32 s25, s26, s73"); I("s_cmp_lt_u32 s25, s24"); I(f"s_cbranch_scc1 {l}")
    I("s_endpgm")
    flush_slow()
def units(att):
    L = []
    for u in range(4): L += [("x", u, 0), ("x", u, 1), ("g", 0, u), ("g", 1, u)]
    L += [("g", 2, u) for u in range(4)]
    if not att: L += [("g", 3, 0), ("g", 3, 1)]
    return L
def phys(att, k):
    if not att: return (k - 14) % 9
    if OPT["n9"]: return {2: 0, 3: 8, 4: 9, 5: 1, 6: 2, 7: 3, 8: 4, 0: 5, 1: 6}[k % 9]
    i = (k - 13) % 8
    return 8 if i == 7 else i
QSLOT = 0
SIGG = (2, 3, 4, 6, 7)
CHKG = {2: 2, 3: 3, 4: 4, 5: 6, 6: 6, 8: 7, 7: 7}

class Stream:
    def __init__(self, steps, depth, ring):
        self.steps = steps; self.side = []; self.after = {}; self.D = depth; self.ring = ring
        assert len(ring) >= depth + 2
    def add(self, ready, deadline, fns):
        for f in fns: self.side.append([ready, deadline, f])
    def aft(self, k, f):
        prev = self.after.get(k)
        self.after[k] = (lambda: (prev(), f())) if prev else f
    def issue(self, k, half):
        st = self.steps[k]
        b = self.ring[k % len(self.ring)]
        a, off, d2 = st["rd"]
        if half == 0:
            if "pre" in st: st["pre"]()
            I(f"ds_read_b64_tr_b16 {vr(b,2)}, v{a} offset:{off}", tag=f"w{k}")
        else:
            I(f"ds_read_b64_tr_b16 {vr(b+2,2)}, v{a} offset:{off+d2}", tag=f"w{k}")
            if "post" in st: st["post"](k)
    def pump(self, k, n):
        c = 0
        while self.side and c < n and self.side[0][0] <= k:
            r = self.side.pop(0)[2]()
            c += r if isinstance(r, int) else 1
    def run(self, rate):
        n = len(self.steps); D = self.D
        for k in range(min(D, n)):
            self.issue(k, 0); self.issue(k, 1)
        for k in range(n):
            st = self.steps[k]
            while any(s[1] <= k for s in self.side): self.side.pop(0)[2]()
            if "need" in st: st["need"]()
            if k % 2 == 0 and k + 1 < n: e.wait(lg=f"w{k+1}")
            e.wait(lg=f"w{k}")
            mfs = st["mf"](vr(self.ring[k % len(self.ring)]), st)
            I(mfs[0])
            if k + D < n: self.issue(k + D, 0)
            if len(mfs) > 1:
                self.pump(k, (rate + 1) // 2)
                I(mfs[1])
            if k + D < n: self.issue(k + D, 1)
            for m in mfs[2:]: I(m)
            self.pump(k, rate // 2 if len(mfs) > 1 else rate)
            if k in self.after: self.after[k]()
            stamp(f"k{k}")
        while self.side: self.side.pop(0)[2]()
def cost(n, f):
    def g():
        f(); return n
    return g

def vtouch(att, dst=22):
    P = 3072 if att else 3584; wp = 6 if att else 12
    if dst == 22: mk_srd(S_W, wp, 512 * P)
    I(f"s_lshl_b32 s{S_t0}, s{S_r}, 2"); I(f"s_add_u32 s{S_t0}, s{S_t0}, s{S_w}")
    I(f"s_mul_i32 s{S_t1}, s{S_t0}, {8*P}")
    I(f"s_mul_i32 s{S_t2}, s{S_q}, {256 if att else 896}"); I(f"s_add_u32 s{S_t1}, s{S_t1}, s{S_t2}")
    I("v_and_b32 v1, 7, v0"); I(f"v_mul_u32_u24 v1, {P}, v1")
    I(f"s_lshl_b32 s{S_t2}, s{S_j1}, 7"); I(f"s_add_u32 s{S_t2}, s{S_t2}, s{S_t1}")
    I("v_lshlrev_b32 v2, 7, v0")
    I("s_mov_b64 exec, 0xff")
    I(f"buffer_load_dword v{dst}, v1, {srd(S_W)}, s{S_t2} offen offset:{2048 if att else 512}")
    if OPT["tB"]: I(f"buffer_load_dword v{dst}, v1, {srd(S_W)}, s{S_t2} offen offset:{0 if att else 256}")
    if not att:
        I(f"s_mul_i32 s{S_t2}, s{S_j1}, {4*P}"); I(f"s_add_u32 s{S_t2}, s{S_t2}, s{S_t1}")
        I("s_mov_b64 exec, 0xf")
        I(f"buffer_load_dword v{dst}, v1, {srd(S_W)}, s{S_t2} offen offset:768")
    I(f"s_lshl_b32 s{S_t0}, s{S_t0}, 2"); I(f"s_add_u32 s{S_t0}, s{S_t0}, s{S_jj}")
    F_ = 2 if OPT["tfull"] else 1
    if OPT["tfull"]: I(f"s_and_b32 s{S_t0}, s{S_t0}, 127"); I(f"s_lshl_b32 s{S_t0}, s{S_t0}, 1")
    I(f"s_mul_i32 s{S_t1}, s{S_t0}, 1792"); I(f"s_mul_i32 s{S_t2}, s{S_q}, {448*1024}"); I(f"s_add_u32 s{S_t1}, s{S_t1}, s{S_t2}")
    I(f"s_mov_b64 exec, {(1 << (14*F_)) - 1}")
    I(f"buffer_load_dword v{dst}, v2, {srd(S_W2)}, s{S_t1} offen")
    I(f"s_lshl_b32 s{S_t1}, s{S_t0}, 9"); I(f"s_lshl_b32 s{S_t2}, s{S_q}, 17"); I(f"s_add_u32 s{S_t1}, s{S_t1}, s{S_t2}")
    I(f"s_mov_b64 exec, {(1 << (4*F_)) - 1}")
    I(f"buffer_load_dword v{dst}, v2, {srd(S_WO)}, s{S_t1} offen")
    I("s_mov_b64 exec, -1")
def gate_math(z0, z1, G, tmp):
    T = [f"v_cvt_pk_bf16_f32 v{tmp}, v{z0}, v{z1}", f"v_lshlrev_b32 v{G}, 16, v{tmp}", f"v_and_b32 v{G+2}, 0xffff0000, v{tmp}"]
    T += [f"v_mul_f32 v{G+2*p}, {f2u(-1.4426950408889634)}, v{G+2*p}" for p in range(2)]
    T += [f"v_exp_f32 v{G+2*p}, v{G+2*p}" for p in range(2)]
    T += [f"v_add_f32 v{G+2*p}, 1.0, v{G+2*p}" for p in range(2)]
    T += [f"v_rcp_f32 v{G+2*p}, v{G+2*p}" for p in range(2)]
    T += [f"v_cvt_pk_bf16_f32 v{tmp}, v{G}, v{G+2}", f"v_lshlrev_b32 v{G}, 16, v{tmp}", f"v_and_b32 v{G+2}, 0xffff0000, v{tmp}"]
    T += [f"v_sub_f32 v{G+1+2*p}, 1.0, v{G+2*p}" for p in range(2)]
    T += [f"v_cvt_pk_bf16_f32 v{tmp}, v{G+1}, v{G+3}", f"v_lshlrev_b32 v{G+1}, 16, v{tmp}", f"v_and_b32 v{G+3}, 0xffff0000, v{tmp}"]
    T += [f"v_max_f32 v{G+2*p}, {f2u(2.0**-60)}, v{G+2*p}" for p in range(2)]
    T += [f"v_rcp_f32 v{G+4+p}, v{G+2*p}" for p in range(2)]
    T += [f"v_mul_f32 v{G+1+2*p}, v{G+4+p}, v{G+1+2*p}" for p in range(2)]
    return T
def out_addr():
    I(f"s_mul_i32 s{S_GIN}, s{S_q}, {3*8192}")
    I(f"s_add_u32 s{S_GIN}, s{S_GIN}, s{S_PB}")
    if M:
        I("v_bfe_u32 v5, v0, 4, 1")
        I("v_lshlrev_b32 v6, 3, v5")
        I("v_xor_b32 v6, 8, v6")
        I("v_and_b32 v4, 15, v0")
        I("v_xor_b32 v4, v4, v6")
        I("v_lshl_add_u32 v4, v4, 1, v5")
        I("v_lshrrev_b32 v5, 5, v0")
        I("v_lshlrev_b32 v5, 4, v5")
        I("v_lshl_add_u32 v4, v4, 10, v5")
    else:
        I("v_and_b32 v4, 15, v0")
        I("v_bfe_u32 v6, v0, 4, 1")
        I("v_lshlrev_b32 v6, 5, v6")
        I("v_lshrrev_b32 v7, 5, v0")
        I("v_lshl_add_u32 v6, v7, 4, v6")
        I("v_lshl_add_u32 v5, v4, 11, v6")
        I("v_xor_b32 v4, 0x4000, v5")
    I(f"s_lshl_b32 s{S_COL}, s{S_r}, 17"); I(f"s_lshl_b32 s{S_t1}, s{S_w}, 15"); I(f"s_add_u32 s{S_COL}, s{S_COL}, s{S_t1}")
    I(f"s_lshl_b32 s{S_t1}, s{S_jj}, 8"); I(f"s_add_u32 s{S_COL}, s{S_COL}, s{S_t1}")
    I(f"s_lshl_b32 s{S_t1}, s{S_q}, 6"); I(f"s_add_u32 s{S_COL}, s{S_COL}, s{S_t1}")
def pb_setup():
    I(f"s_lshl_b32 s{S_PB}, s{S_r}, 2"); I(f"s_add_u32 s{S_PB}, s{S_PB}, s{S_jj}")
    I(f"s_mul_i32 s{S_PB}, s{S_PB}, {12*8192}")
    I(f"s_lshl_b32 s{S_t0}, s{S_w}, 11"); I(f"s_add_u32 s{S_PB}, s{S_PB}, s{S_t0}"); I(f"s_add_u32 s{S_PB}, s{S_PB}, {PART_OFF}")
def vtouch2():
    I(f"s_lshl_b32 s{S_t0}, s{S_r}, 2"); I(f"s_add_u32 s{S_t0}, s{S_t0}, s{S_w}")
    I(f"s_lshl_b32 s{S_t0}, s{S_t0}, 1"); I(f"s_add_u32 s{S_t0}, s{S_t0}, s{S_j1}")
    I("v_lshlrev_b32 v2, 7, v0")
    I(f"s_mul_i32 s{S_t1}, s{S_t0}, 3584"); I(f"s_mul_i32 s{S_t2}, s{S_q}, {448*1024}"); I(f"s_add_u32 s{S_t1}, s{S_t1}, s{S_t2}")
    I(f"s_mov_b64 exec, {(1 << 28) - 1}")
    I(f"buffer_load_dword v{30 if M else 18}, v2, {srd(S_W2)}, s{S_t1} offen")
    I(f"s_lshl_b32 s{S_t1}, s{S_t0}, 10"); I(f"s_lshl_b32 s{S_t2}, s{S_q}, 17"); I(f"s_add_u32 s{S_t1}, s{S_t1}, s{S_t2}")
    I("s_mov_b64 exec, 0xff")
    I(f"buffer_load_dword v{30 if M else 18}, v2, {srd(S_WO)}, s{S_t1} offen")
    I("s_mov_b64 exec, -1")
HDR = """; gated_mix: out = g * (attn(x) @ wo) + (1 - g) * (relu(x @ w1) @ w2),  g = sigmoid(x . gate_w)
; Kernarg (ptrs): 0 A_x, 8 A_wqkv, 16 A_wo, 24 B_x (unused), 32 B_w1, 40 B_w2, 48 gate_w, 56 out, 64 debug, 72 ws
; One persistent launch, 256 workgroups (one per CU) x 8 waves.  Workgroup = (row block r of 128 rows, q, jj):
;            waves 0-3 run the MFMA stream, waves 4-7 feed LDS by DMA (and do the softmax).
;   phase 2: waves 4-7 multiply the K-quarter q of [h | o] with [w2 ; wo][:, 128 cols]; the four q partial sums are
;            exchanged through ws (write-through stores, flag bits in per-wave inbox words reset at launch start,
;            arrival counter in debug).  Every spin is bounded; s_sleep appears only as back-off inside those spins.
; Generated by a script (straight-line schedule, wait states and counters tracked by the generator).
"""
e.raw(HDR + "; @launch grid=(256,1,1) block=(512,1,1) lds=163840")
e.raw('.amdgcn_target "amdgcn-amd-amdhsa--gfx950"')
e.raw(".text")
e.raw(f".globl {NAME}_kernel")
e.raw(".p2align 8")
e.raw(f".type {NAME}_kernel,@function")
e.label(f"{NAME}_kernel")
I("s_load_dwordx16 s[4:19], s[0:1], 0")
I("s_load_dwordx4 s[20:23], s[0:1], 64")
if STAMP:
    I("s_memrealtime s[98:99]")
    I("s_memtime s[96:97]")
if OPT["codepf"] and OPT["pfe"] == 2:
    I("s_getpc_b64 s[56:57]")
    e.label("L_pc")
    I("v_lshrrev_b32 v1, 5, v0")
    I("v_and_b32 v2, 1, v0")
    I("v_add_u32 v2, v2, v1")
    I(f"s_bfe_u32 s{S_t0}, s2, 0x50003")
    I(f"s_lshl_b32 s{S_t0}, s{S_t0}, 4")
    I(f"v_add_lshl_u32 v2, v2, s{S_t0}, 7")
    I("v_min_u32 v2, L_end-L_pc, v2")
    I("s_mov_b64 exec, 3")
    I("global_load_dword v127, v2, s[56:57]")
    I("s_mov_b64 exec, -1")
if OPT["codepf"] and OPT["pfe"] == 1:
    I("s_cmp_lt_u32 s2, 8")
    I("s_cbranch_scc0 L_nopf")
    e.cond_begin()
    I("s_getpc_b64 s[56:57]")
    e.label("L_pc")
    I("v_lshlrev_b32 v2, 7, v0")
    I("v_min_u32 v2, L_end-L_pc, v2")
    I("global_load_dword v127, v2, s[56:57]")
    e.cond_end()
    e.label("L_nopf")
I("v_lshrrev_b32 v1, 6, v0")
I("s_cmp_ge_u32 s2, 256")
I("s_cbranch_scc1 L_end")
I(f"v_readfirstlane_b32 s{S_t2}, v1")
I("v_and_b32 v0, 63, v0")
I(f"s_bfe_u32 s{S_q}, s2, 0x20001")
I(f"s_and_b32 s{S_t0}, s2, 1")
I(f"s_lshl_b32 s{S_t0}, s{S_t0}, 3")
I(f"s_bfe_u32 s{S_r}, s2, 0x30003")
I(f"s_or_b32 s{S_r}, s{S_r}, s{S_t0}")
I(f"s_lshr_b32 s{S_jj}, s2, 6")
if OPT["rotq"] == 2:
    I(f"s_lshr_b32 s{S_rot}, s{S_t0}, 2")
    I(f"s_add_u32 s{S_rot}, s{S_rot}, s{S_q}")
    I(f"s_and_b32 s{S_t0}, s{S_r}, 1")
    I(f"s_add_u32 s{S_rot}, s{S_rot}, s{S_t0}")
elif OPT["rotq"]: I(f"s_add_u32 s{S_rot}, s{S_r}, s{S_q}")
else: I(f"s_mov_b32 s{S_rot}, s{S_r}")
I(f"s_and_b32 s{S_w}, s{S_t2}, 3")
I(f"s_lshl_b32 s{S_m0b}, s{S_w}, 12")
I(f"s_cmp_lt_u32 s{S_t2}, 4")
I("s_cbranch_scc1 L_C")

H_XD = 4; H_WD = 8; H_BD = 12; H_ACC = 64
H_G = 18 if M else 20; H_BR = 20 if M else 24
H_RING = [32, 36, 40, 44, 48, 52, 24, 28] if M else [32, 36, 40, 44, 48, 52, 12]
def a2r(lam, p):
    if lam < 16: return ar(lam * 8 + p * 4)
    return vr((56 if lam == 16 else 4) + p * 4)
I("s_setprio 3")
I("v_lshrrev_b32 v32, 4, v0")
I("v_lshrrev_b32 v36, 3, v0")
I("v_and_b32 v37, 7, v0")
I("v_xor_b32 v39, v37, v32")
I("v_lshlrev_b32 v39, 4, v39")
I(f"v_lshl_add_u32 v{H_XD}, v36, 11, v39")
I(f"v_xor_b32 v{H_XD+1}, 64, v{H_XD}")
I(f"v_add_u32 v{H_XD+2}, {14*1024}, v{H_XD+1}")
I(f"v_add_u32 v{H_XD+3}, {14*1024}, v{H_XD}")
I(f"s_lshl_b32 s{S_t0}, s{S_r}, 17")
I(f"s_lshl_b32 s{S_t1}, s{S_w}, 15")
I(f"s_add_u32 s{S_t0}, s{S_t0}, s{S_t1}")
for g4 in range(4):
    I(f"s_add_u32 s{S_WK+g4}, s{S_rot}, {g4}")
    I(f"s_and_b32 s{S_WK+g4}, s{S_WK+g4}, 3")
    I(f"s_lshl_b32 s{S_KG+g4}, s{S_WK+g4}, 8")
    I(f"s_add_u32 s{S_KG+g4}, s{S_KG+g4}, s{S_t0}")
I(f"s_mov_b32 s{S_X+2}, {2048*1024}")
I(f"s_mov_b32 s{S_X+3}, 0x20000")
assert phys(False, 1) == phys(False, 0) + 1 and phys(True, 1) == phys(True, 0) + 1
I(f"s_cmp_ge_u32 s{S_jj}, 2")
I(f"s_cselect_b32 s{S_t2}, {phys(True,0)}, {phys(False,0)}")
I(f"s_cselect_b32 s{S_EV}, {phys(True,2)}, {phys(False,2)}")
I(f"s_mov_b32 s{S_W+2}, {512*3584}")
I(f"s_cmov_b32 s{S_W+2}, {512*3072}")
I(f"s_mov_b32 s{S_P}, 3584")
I(f"s_cmov_b32 s{S_P}, 3072")
if OPT["ev0"]:
    assert OPT["n9"]
    I(f"s_mov_b32 s{S_W4}, {SEV(False)}")
    I(f"s_cmov_b32 s{S_W4}, {SEV(True)}")
    I(f"v_lshl_add_u32 v1, v37, 2, s{S_W4}")
    I("ds_write_b32 v1, v1")
I(f"s_lshl_b32 s{S_t2}, s{S_t2}, 14")
I(f"s_add_u32 s{S_t2}, s{S_t2}, s{S_m0b}")
I(f"s_mov_b32 m0, s{S_t2}")
I(f"s_add_u32 s{S_SOFF}, s{S_KG}, 128")
after_karg()
if OPT["tw"] & 1:
    I(f"s_load_dword s{S_BUD}, s[6:7], 0")
    I(f"s_load_dword s{S_BUD}, s[12:13], 0")
I(f"s_mov_b32 s{S_X}, s4")
I(f"s_and_b32 s{S_X+1}, s5, 0xffff")
for i in range(4): I(f"buffer_load_dwordx4 v{H_XD+i}, {srd(S_X)}, s{S_KG} offen offset:{i*1024} lds", tag="u0")
I(f"s_add_u32 m0, s{S_t2}, {SLOT}")
I(f"s_mov_b32 s{S_W+3}, 0x20000")
dma4(H_XD, S_X, "u1")
I(f"s_lshl_b32 s{S_t0}, s{S_w}, 5")
I(f"v_add_u32 v38, s{S_t0}, v36")
I(f"v_mul_lo_u32 v38, v38, s{S_P}")
I(f"s_mul_i32 s{S_COL}, s{S_q}, 896")
I(f"s_lshl_b32 s{S_t0}, s{S_q}, 8")
I(f"s_add_u32 s{S_t0}, s{S_t0}, {1024-256}")
I(f"s_cmp_ge_u32 s{S_jj}, 2")
I(f"s_cselect_b32 s{S_W}, s6, s12")
I(f"s_cselect_b32 s{S_W+1}, s7, s13")
I(f"s_cselect_b32 s{S_COL}, s{S_t0}, s{S_COL}")
I(f"s_cselect_b32 s{S_t0}, 1, {2 if M else 1}")
I(f"s_cselect_b32 s{S_t1}, 64, {0 if M else 64}")
I(f"s_and_b32 s{S_W+1}, s{S_W+1}, 0xffff")
I("v_and_b32 v39, 1, v32")
I(f"v_lshlrev_b32 v39, s{S_t0}, v39")
I("v_xor_b32 v39, v39, v37")
I("v_lshlrev_b32 v39, 4, v39")
I(f"v_add_u32 v{H_WD}, v38, v39")
I(f"v_xor_b32 v39, s{S_t1}, v39")
I(f"s_lshl_b32 s{S_t0}, s{S_P}, 3")
I(f"s_sub_u32 s{S_t0}, s{S_t0}, 1024")
I(f"v_add3_u32 v{H_WD+1}, v38, v39, s{S_t0}")
I(f"s_lshl_b32 s{S_t0}, s{S_t0}, 1")
I(f"v_add_u32 v{H_WD+2}, s{S_t0}, v{H_WD}")
I(f"v_add_u32 v{H_WD+3}, s{S_t0}, v{H_WD+1}")
I(f"s_lshl_b32 s{S_t0}, s{S_jj}, 7")
I(f"s_add_u32 s{S_COL}, s{S_COL}, s{S_t0}")
I(f"s_lshl_b32 s{S_t1}, s{S_P}, 7")
for g4 in range(4): I(f"s_mul_i32 s{S_WK+g4}, s{S_WK+g4}, s{S_t1}")
I(f"s_lshl_b32 s{S_EV}, s{S_EV}, 14")
I(f"s_add_u32 m0, s{S_EV}, s{S_m0b}")
I(f"s_add_u32 s{S_SOFF}, s{S_WK}, s{S_COL}")
dma4(H_WD, S_W, "u2")
common_ptrs()
mk_srd(S_OUT, 18, 2048 * 1024)
mk_srd(S_GW, 16, 1024)
I(f"s_cmp_ge_u32 s{S_jj}, 2")
I("s_cbranch_scc1 L_h_att")
snapH = e.snapshot()

def h_prog(att):
    e.restore(snapH); e.hist = []
    UL = units(att)
    CH = [0, -1024, 1024] if att else [0, 256, 512]
    def issue(k):
        un = UL[k]
        I(f"s_add_u32 m0, s{S_m0b}, {phys(att,k)*SLOT}")
        if un[0] == "x":
            I(f"s_add_u32 s{S_SOFF}, s{S_KG+un[1]}, {un[2]*128}")
            dma4(H_XD, S_X, f"u{k}")
            if att and un[2] == 1: halo(un[1], f"u{k}")
            return
        _, c, u = un
        if c < 3:
            I(f"s_add_u32 s{S_SOFF}, s{S_WK+u}, s{S_COL}")
            if CH[c]: I(f"s_add_i32 s{S_SOFF}, s{S_SOFF}, {CH[c]}")
        else:
            KH = 256 * 3584
            if u == 0:
                I("v_lshrrev_b32 v2, 2, v0")
                if M:
                    I("v_lshrrev_b32 v1, 4, v0")
                    I("v_xor_b32 v2, v2, v1")
                I("v_and_b32 v2, 1, v2")
                I(f"v_mul_u32_u24 v1, {KH-64}, v2")
                for i in (0, 2): I(f"v_add_u32 v{H_WD+i}, v{H_WD+i}, v1")
                if not M: I(f"v_sub_u32 v1, {KH-64}, v1")
                for i in (1, 3): I(f"v_add_u32 v{H_WD+i}, v{H_WD+i}, v1")
                I(f"v_mul_u32_u24 v2, {2*KH}, v2")
                I(f"v_sub_u32 v{H_XD}, {KH}, v2")
                I(f"s_cmp_ge_u32 s{S_WK}, {KH}")
                I(f"s_cselect_b32 s{S_t0}, 1, 0")
            else:
                I(f"s_cmp_ge_u32 s{S_WK}, {KH}")
                I(f"s_cselect_b32 s{S_t1}, 1, 0")
                I(f"s_cmp_ge_u32 s{S_WK+1}, {KH}")
                I(f"s_cselect_b32 s{S_t0}, 1, 0")
                I(f"s_sub_u32 s{S_t0}, s{S_t0}, s{S_t1}")
            I(f"s_sub_u32 s{S_t1}, 0, s{S_t0}")
            for i in range(4): I(f"v_mad_i32_i24 v{H_WD+i}, v{H_XD}, s{S_t0 if (M or i % 2 == 0) else S_t1}, v{H_WD+i}")
            I(f"s_min_u32 s{S_SOFF}, s{S_WK+u}, s{S_WK+u+2}")
            I(f"s_add_u32 s{S_SOFF}, s{S_SOFF}, s{S_COL}")
            I(f"s_lshl_b32 s{S_t0}, s{S_jj}, 6")
            I(f"s_sub_u32 s{S_SOFF}, s{S_SOFF}, s{S_t0}")
            I(f"s_add_u32 s{S_SOFF}, s{S_SOFF}, 768")
        dma4(H_WD, S_W, f"u{k}")
    def w0(f):
        l = U("w0")
        I(f"s_cmp_eq_u32 s{S_w}, 0"); I(f"s_cbranch_scc0 {l}")
        e.cond_begin(); f(); e.cond_end(); e.label(l)
    def peer_issue(): w0(lambda: I(f"s_load_dword s{S_POLL}, s[{S_DBG}:{S_DBG+1}], 0 glc"))
    def peer():
        def f():
            lp = U("pp"); ok = U("po")
            I("s_waitcnt lgkmcnt(0)")
            I(f"s_cmp_ge_u32 s{S_POLL}, 16")
            I(f"s_cbranch_scc0 {lp}")
            e.label(ok)
            SLOW.extend([f"{lp}:", "    s_sleep 8", f"    s_load_dword s{S_POLL}, s[{S_DBG}:{S_DBG+1}], 0 glc", "    s_waitcnt lgkmcnt(0)",
                         f"    s_cmp_ge_u32 s{S_POLL}, 16", f"    s_cbranch_scc1 {ok}"] + spin_tail(lp, ok))
        w0(f)
        I(f"s_mov_b32 s{S_POLL}, 0")
    V_Q = 64; V_S = 96; V_BIAS = 32; V_RINV = 40; V_T = 48; A_KV = 64; A_ONES = 96; V_AD = 24 if M else 56
    def att_setup(part):
        if part == 0:
            I(f"s_add_u32 s{S_t0}, s{S_m0b}, {EXCH_LDS+4096}")
            I(f"v_add_u32 v{V_AD}, s{S_t0}, v{V_L16}")
            I("v_bfe_u32 v1, v0, 3, 1")
            I("v_lshlrev_b32 v1, 12, v1")
            I(f"v_sub_u32 v{V_AD+2}, v{V_AD}, v1")
            I("v_xor_b32 v1, 4096, v1")
            I(f"v_sub_u32 v{V_AD+1}, v{V_AD}, v1")
            I("v_lshrrev_b32 v1, 5, v0")
            I("v_lshlrev_b32 v1, 12, v1")
            I(f"v_sub_u32 v{V_AD+4}, v{V_AD}, v1")
            I("v_xor_b32 v1, 4096, v1")
            I(f"v_sub_u32 v{V_AD+3}, v{V_AD}, v1")
            I(f"v_add_u32 v{V_AD+5}, {(QSLOT*SLOT - EXCH_LDS - 4096) & 0xffffffff}, v{V_AD}")
            I(f"s_mov_b32 s{S_CEXP}, {f2u(0.25*1.4426950408889634)}")
            I(f"s_or_b32 s{S_t0}, s{S_r}, s{S_w}")
            I(f"s_cmp_eq_u32 s{S_t0}, 0")
            I(f"s_cselect_b32 s{S_THR}, -16, -9")
            I(f"v_mov_b32 v{V_T}, 0x3f803f80")
            for k in range(4): I(f"v_accvgpr_write_b32 a{A_ONES+k}, v{V_T}")
            I(f"v_mov_b32 v{V_T}, {NEG}")
            I(f"v_and_b32 v{V_T+1}, 15, v0")
            I(f"v_lshrrev_b32 v{V_T+2}, 4, v0")
            I(f"v_lshlrev_b32 v{V_T+2}, 2, v{V_T+2}")
        elif part in (1, 2):
            p = part - 1; x8 = 8 if p == 0 else 0
            I(f"v_xor_b32 v{V_T+3}, {x8}, v{V_T+1}")
            I(f"v_xor_b32 v{V_T+4}, {x8}, v{V_T+2}")
            I(f"v_sub_u32 v{V_T+3}, v{V_T+3}, v{V_T+4}")
            for r in range(4):
                I(f"v_subrev_u32 v{V_T+4}, {r}, v{V_T+3}")
                I(f"v_cmp_lt_u32 vcc, 7, v{V_T+4}")
                I(f"v_cmp_lt_i32 s[56:57], s{S_THR}, v{V_T+4}")
                I("s_and_b64 vcc, vcc, s[56:57]")
                I(f"v_cndmask_b32 v{V_BIAS+p*4+r}, 0, v{V_T}, vcc")
        else:
            for k in range(16): I(f"v_mov_b32 v{V_Q+16*(part-3)+k}, 0")
            I("s_mov_b32 s56, 0xff00ff00"); I("s_mov_b32 s57, 0xff00ff00")
            I("s_not_b64 s[58:59], s[56:57]")
    def br_setup():
        if M:
            I("v_bfe_u32 v1, v0, 2, 2")
            I("v_lshrrev_b32 v2, 5, v0")
            I("v_lshl_add_u32 v1, v2, 2, v1")
            I("v_lshlrev_b32 v1, 7, v1")
            I("v_bfe_u32 v2, v0, 4, 1")
            I("v_lshl_add_u32 v1, v2, 5, v1")
            I("v_bfe_u32 v2, v0, 3, 1")
            I("v_lshl_add_u32 v1, v2, 6, v1")
        else:
            I("v_lshrrev_b32 v1, 2, v0")
            I("v_bfe_u32 v2, v0, 3, 2")
            I("v_lshlrev_b32 v1, 7, v1")
            I("v_lshl_add_u32 v1, v2, 5, v1")
        I("v_and_b32 v2, 3, v0")
        I("v_lshl_add_u32 v1, v2, 3, v1")
        I(f"s_lshr_b32 s{S_t0}, s{S_q}, 1")
        I(f"s_lshl_b32 s{S_t0}, s{S_t0}, 13")
        I(f"s_and_b32 s{S_t1}, s{S_q}, 1")
        I(f"s_lshl_b32 s{S_t1}, s{S_t1}, 6")
        I(f"s_or_b32 s{S_t0}, s{S_t0}, s{S_t1}")
        I(f"v_xor_b32 v1, s{S_t0}, v1")
        for tau in range(4):
            cb = 3 - tau
            if M: I(f"v_xor_b32 v{H_BR+tau}, {(cb>>1)*8192 + (cb&1)*64}, v1")
            else:
                for tt in range(2): I(f"v_xor_b32 v{H_BR+2*tau+tt}, {(cb>>1)*8192 + (cb&1)*64 + tt*32}, v1")
        I(f"s_lshl_b32 s{S_PB}, s{S_r}, 2"); I(f"s_add_u32 s{S_PB}, s{S_PB}, s{S_jj}")
        I(f"s_mul_i32 s{S_PB}, s{S_PB}, {12*8192}")
        I(f"s_lshl_b32 s{S_t0}, s{S_w}, 11"); I(f"s_add_u32 s{S_PB}, s{S_PB}, s{S_t0}"); I(f"s_add_u32 s{S_PB}, s{S_PB}, {PART_OFF}")
    V_HV = 31 if M else 19
    def halo(u, tag):
        I(f"s_lshr_b32 s{S_t0}, s{S_m0b}, 2")
        I(f"s_add_u32 m0, s{S_t0}, {HALO_LDS + u*4096}")
        I(f"s_and_b32 s{S_t0}, s{S_KG+u}, 0x300")
        I(f"buffer_load_dwordx4 v{V_HV}, {srd(S_X)}, s{S_t0} offen lds", tag=tag)
    if att:
        I(f"s_and_b32 s{S_t1}, s{S_w}, 1")
        I(f"s_mul_i32 s{S_t1}, s{S_t1}, {1024+64}")
        I(f"v_xor_b32 v{V_HV}, s{S_t1}, v{H_XD}")
        I(f"s_lshl_b32 s{S_t0}, s{S_r}, 17")
        I(f"s_sub_u32 s{S_t0}, s{S_t0}, 16384")
        I(f"s_lshr_b32 s{S_t1}, s{S_w}, 1")
        I(f"s_lshl_b32 s{S_t1}, s{S_t1}, 7")
        I(f"s_add_u32 s{S_t0}, s{S_t0}, s{S_t1}")
        I(f"v_add_u32 v{V_HV}, s{S_t0}, v{V_HV}")
        I(f"v_max_i32 v{V_HV}, 0, v{V_HV}")
        halo(0, "u2")
    if EG and not att:
        I(f"s_lshl_b32 s{S_t0}, s{S_w}, 8")
        I(f"s_add_u32 m0, s{S_t0}, {GW_LDS}")
        I("v_lshlrev_b32 v1, 2, v0")
        I(f"buffer_load_dword v1, {srd(S_GW)}, s{S_t0} offen lds", tag="u2")
    stamp("h_i2")
    if "h_w0" in HST: e.wait(vm="u0"); stamp("h_w0"); e.wait(vm="u1"); stamp("h_w1"); e.wait(vm="u2"); stamp("h_w2")
    def ssig(i):
        I(f"s_lshl_b32 s{S_t0}, s{S_w}, 2")
        I(f"s_add_u32 m0, s{S_t0}, {SEV(att) + 16*i}")
        I("s_mov_b64 exec, 1")
        I(f"buffer_load_dword v0, {srd(S_X)}, s{S_X+2} offen lds", tag="dsig")
        I("s_mov_b64 exec, -1")
    if OPT["ev0"]:
        I("s_barrier")
        ssig(0); issue(3); ssig(1)
        for k in range(4, 9): issue(k)
    PRE = OPT["pre"] if not OPT["ev0"] else 2
    for k in range(3, PRE + 1): issue(k)
    first = list(range(PRE + 1, 8))
    if att and not OPT["n9"]: sched = [first, [8, 9], [10], [11, 12, 13], [14], [15, 16, 17], [18], [] if OPT["u19"] else [19]]
    else: sched = [first, [8, 9], [10, 11], [12, 13], [14, 15], [16, 17], [18, 19], []]
    def gw_dma():
        I(f"s_mov_b32 m0, {GW_LDS}")
        w0(lambda: I(f"buffer_load_dwordx4 v{V_L16}, {srd(S_GW)}, 0 offen lds"))
    def inb_reset():
        for k in range(4):
            I(f"s_mov_b32 s{56+k}, 0")
            I(f"s_add_u32 s{S_t0}, s{S_MYIN}, {k*128}")
            I(f"s_atomic_swap s{56+k}, s[{S_INB}:{S_INB+1}], s{S_t0} glc")
    def count_in():
        I(f"s_mov_b32 s{S_EV}, 1")
        I("s_waitcnt lgkmcnt(0)")
        I(f"s_atomic_add s{S_EV}, s[{S_DBG}:{S_DBG+1}], 0")
    if OPT["hinit"]:
        late_scalars(); w0(inb_reset)
    if OPT["tw"] & 1: I("s_waitcnt lgkmcnt(0)")
    extra = {1: lambda: ((w0(count_in) if OPT["hinit"] else late_scalars()), b2_voffs(H_BD)), 3: (gw_dma if not EG else lambda: None), 7: (br_setup if att or OPT["sch"] else lambda: (b2_unit(8, H_BD), br_setup()))}
    if att: extra.update({2: lambda: (att_setup(0), att_setup(1)), 4: lambda: (att_setup(2), att_setup(3)), 6: lambda: att_setup(4)})
    gk = [k for k, un in enumerate(UL) if un[0] == "g"]
    if OPT["ev0"]: sched = [[], [], [9, 10, 11]] + sched[3:]
    def bar(i, need=None):
        stamp(f"h_a{i}")
        if need is None and i < len(gk): need = gk[i]
        if need is not None: e.wait(vm=f"u{need}")
        if i == OPT["pb"]: peer()
        I("s_barrier"); stamp(f"h_b{i}")
    for i in range(8):
        if i >= 2 or not OPT["ev0"]: bar(i)
        if i == OPT["pb"] - 2: peer_issue()
        for k in sched[i]: issue(k)
        if i in extra: extra[i]()
        if i == (OPT["tha"] if att else OPT["th"]) and not OPT["tatt"]: vtouch(att, 30 if M else 18)
        if i == OPT["th"] and OPT["tatt"] and att: vtouch2()
    def a2_load(lam):
        a2_soff(lam, S_t1)
        for p in range(2):
            I(f"buffer_load_dwordx4 {a2r(lam,p)}, v{V_L16}, {srd(S_WS)}, s{S_t1} offen offset:{p*1024} sc1", tag=f"a{lam}")
    def a2_items(lams, gap=None):
        gap = OPT['gap']
        F = []
        for lam in lams:
            F.append(cost(9, lambda lam=lam: (a2_soff(lam, S_COL), I(f"buffer_load_dwordx4 {a2r(lam,0)}, v{V_L16}, {srd(S_WS)}, s{S_COL} offen sc1", tag=f"a{lam}x"))))
            F += [cost(9, lambda: None)] * (gap - 1)
            F.append(cost(9, lambda lam=lam: I(f"buffer_load_dwordx4 {a2r(lam,1)}, v{V_L16}, {srd(S_WS)}, s{S_COL} offen offset:1024 sc1", tag=f"a{lam}")))
            F += [cost(9, lambda: None)] * (gap - 1)
        return F
    Bu = lambda g: b2_unit(g, H_BD, False)
    SS = []
    ALL = (0, 1, 2, 3)
    side = {}
    if not att:
        if OPT["sch"] == 0:
            bar(8); Bu(0)
            bar(9); issue(20); Bu(1)
            bar(10); push_group(ownbit(0), ALL); issue(21); Bu(2)
            bar(11); push_group(ownbit(1), ALL); Bu(3); poll_load()
            bar(12); poll_check(0x11)
            for lam in range(4): a2_load(lam)
            Bu(4); poll_load()
            bar(13); poll_check(0x22)
            for lam in range(4, 8): a2_load(lam)
            Bu(5)
            bar(14)
        elif OWN:
            XB = [8 * SLOT, 0, 8 * SLOT]
            def take(c):
                I(f"s_lshr_b32 s{S_t0}, s{S_m0b}, 1"); I(f"s_add_u32 s{S_t0}, s{S_t0}, {XB[c]}"); I(f"v_add_u32 v1, s{S_t0}, v{V_L16}")
                for h in range(2):
                    for p in range(2): I(f"ds_read_b128 {a2r(4*c+h,p)}, v1 offset:{h*8192+p*1024}", tag=f"t{c}{h}")
                for h in range(2):
                    a2_soff(4 * c + h, S_t1); e.wait(lg=f"t{c}{h}")
                    for p in range(2): I(f"buffer_store_dwordx4 {a2r(4*c+h,p)}, v{V_L16}, {srd(S_WS)}, s{S_t1} offen offset:{p*1024} sc1", tag=f"s{c}")
            bar(8); take(0)
            bar(9); take(1); issue(20)
            bar(10); e.wait(vm="s0"); push_group(ownbit(0), ALL); issue(21)
            bar(11); e.wait(vm="s1"); push_group(ownbit(1), ALL); Bu(0); Bu(1); poll_load()
            bar(12); poll_check(0x11); a2_load(2); a2_load(3); poll_load()
            bar(13); take(2); b2_unit(2, H_BD); poll_check(0x22); a2_load(6); a2_load(7)
            e.wait(vm="b1")
            bar(14)
            side[(0, OPT["fpc"])] = lambda: (e.wait(vm="s2"), push_group(ownbit(2), ALL))
        else:
            bar(8)
            bar(9); issue(20)
            bar(10); push_group(ownbit(0), ALL); issue(21)
            bar(11); push_group(ownbit(1), ALL); Bu(0); Bu(1); poll_load()
            bar(12); poll_check(0x11); a2_load(0); a2_load(1); (None if STG else poll_load())
            bar(13); a2_load(2); a2_load(3); b2_unit(2, H_BD)
            e.wait(vm="b1")
            bar(14)
            if not STG:
                poll_check(0x22)
                side[(0, 0)] = lambda: SS[0].add(0, 999, a2_items((4, 5, 6, 7), 2))
        def f_o(): poll_check(0x300); SS[0].add(0, 999, a2_items((16, 17, 14, 15)))
    else:
        def kv_reads(m0, tag):
            for t in range(4):
                I(f"ds_read_b64 {ar(A_KV+8*t,2)}, v{m0} offset:{t*1024}", tag=f"{tag}{t}")
                I(f"ds_read_b128 {ar(A_KV+8*t+2)}, v{V_AD} offset:{t*1024}", tag=f"{tag}{t}")
                I(f"ds_read_b64 {ar(A_KV+8*t+6,2)}, v{m0+1} offset:{t*1024+8}", tag=f"{tag}{t}")
        bar(8)
        kv_reads(V_AD + 1, "k")
        e.wait(lg="k3")
        bar(9, 18 if OPT["u19"] else 19)
        def Preg(t, p): return V_Q + 8 * t + 4 * p
        for half, m in enumerate(("s[56:57]", "s[58:59]")):
            I(f"s_mov_b64 exec, {m}")
            for t in range(4):
                for p in range(2):
                    I(f"ds_read_b64 {vr(Preg(t,p)+2*half,2)}, v{V_AD+5} offset:{t*1024+p*8}", tag="q")
        I("s_mov_b64 exec, -1")
        stamp("h_q")
        e.wait(lg="q")
        un = [(i >> 1, i & 1) for i in range(8)]
        Sc = lambda i: V_S + 4 * i
        for i, (t, p) in enumerate(un): I(f"{MF} {vr(Sc(i))}, {ar(A_KV+8*t+4*p)}, {vr(Preg(t,p))}, {vr(V_BIAS+4*p)}")
        poll_load()
        if OPT["u19"]: issue(19); dsig("Lv3")
        Bu(0)
        stamp("m1")
        m = [V_T + i for i in range(8)]
        for i in range(8):
            if OPT["lround"]:
                I(f"v_cvt_pk_bf16_f32 v1, v{Sc(i)}, v{Sc(i)+1}")
                I(f"v_cvt_pk_bf16_f32 v2, v{Sc(i)+2}, v{Sc(i)+3}")
                I(f"v_lshlrev_b32 v{Sc(i)}, 16, v1")
                I(f"v_and_b32 v{Sc(i)+1}, 0xffff0000, v1")
                I(f"v_lshlrev_b32 v{Sc(i)+2}, 16, v2")
                I(f"v_and_b32 v{Sc(i)+3}, 0xffff0000, v2")
            I(f"v_max3_f32 v{m[i]}, v{Sc(i)}, v{Sc(i)+1}, v{Sc(i)+2}")
            I(f"v_max_f32 v{m[i]}, v{m[i]}, v{Sc(i)+3}")
        for k in range(4): I(f"v_permlane32_swap_b32 v{m[2*k]}, v{m[2*k+1]}")
        for k in range(4): I(f"v_max_f32 v{m[2*k]}, v{m[2*k]}, v{m[2*k+1]}")
        for k in range(2): I(f"v_permlane16_swap_b32 v{m[4*k]}, v{m[4*k+2]}")
        for k in range(2): I(f"v_max_f32 v{m[4*k]}, v{m[4*k]}, v{m[4*k+2]}")
        for k in range(2): I(f"v_mul_f32 v{m[4*k+2]}, s{S_CEXP}, v{m[4*k]}")
        for k in range(2): I(f"v_mul_f32 v{m[4*k]}, s{S_CEXP}, v{m[4*k]}")
        for k in range(2): I(f"v_permlane16_swap_b32 v{m[4*k]}, v{m[4*k+2]}")
        for k in range(4): I(f"v_mov_b32 v{m[2*k+1]}, v{m[2*k]}")
        for k in range(4): I(f"v_permlane32_swap_b32 v{m[2*k]}, v{m[2*k+1]}")
        stamp("m2")
        Bu(1)
        stamp("m3")
        for i in range(8):
            for r in range(4): I(f"v_fma_f32 v{Sc(i)+r}, v{Sc(i)+r}, s{S_CEXP}, -v{m[i]}")
            for r in range(4): I(f"v_exp_f32 v{Sc(i)+r}, v{Sc(i)+r}")
            if i == 4: stamp("m4"); poll_check(0x11); (None if STG else poll_load()); stamp("m5")
            if i >= 4: a2_load(i - 4)
        stamp("m6")
        b2_unit(2, H_BD)
        stamp("m7")
        for half, mk in enumerate(("s[56:57]", "s[58:59]")):
            I(f"s_mov_b64 exec, {mk}")
            for i, (t, p) in enumerate(un):
                I(f"v_cvt_pk_bf16_f32 v{Preg(t,p)+2*half}, v{Sc(i)}, v{Sc(i)+1}")
                I(f"v_cvt_pk_bf16_f32 v{Preg(t,p)+2*half+1}, v{Sc(i)+2}, v{Sc(i)+3}")
        I("s_mov_b64 exec, -1")
        for i, (t, p) in enumerate(un): I(f"{MF} {vr(Sc(i))}, {ar(A_ONES)}, {vr(Preg(t,p))}, 0")
        for i in range(8): I(f"v_rcp_f32 v{V_RINV+i}, v{Sc(i)}")
        e.wait(vm="b1")
        if OPT["a47"] and not STG:
            poll_check(0x22)
            for lam in range(4, 4 + 2 * OPT["a47"]): a2_load(lam)
        stamp("h_sm")
        I("s_barrier")
        stamp("v1")
        kv_reads(V_AD + 3, "v")
        e.wait(lg="v3")
        stamp("v2")
        if OPT["vb2"]: I("s_barrier")
        for i, (t, p) in enumerate(un): I(f"{MF} {vr(Sc(i))}, {ar(A_KV+8*t+4*p)}, {vr(Preg(t,p))}, 0")
        for b in range(2):
            for t in (2 * b, 2 * b + 1):
                ob = (56 if b == 0 else 4) + (t & 1) * 4
                for p in range(2):
                    o = Sc(2 * t + p)
                    if OPT["pkm"]:
                        for r in (0, 2): I(f"v_pk_mul_f32 {vr(o+r,2)}, {vr(o+r,2)}, {vr(V_RINV+2*t,2)} op_sel:[0,{p}] op_sel_hi:[1,{p}]")
                    else:
                        for r in range(4): I(f"v_mul_f32 v{o+r}, v{V_RINV+2*t+p}, v{o+r}")
                    od = ob + 2 * p if M else (56 if b == 0 else 4) + p * 4 + (t & 1) * 2
                    I(f"v_cvt_pk_bf16_f32 v{od}, v{o}, v{o+1}")
                    I(f"v_cvt_pk_bf16_f32 v{od+1}, v{o+2}, v{o+3}")
            stamp(f"v{3+b}")
            a2_soff(16 + b, S_t1)
            for t1 in range(2 if M else 0):
                ob = (56 if b == 0 else 4) + t1 * 4
                I(f"v_permlane16_swap_b32 v{ob}, v{ob+2}")
                I(f"v_permlane16_swap_b32 v{ob+1}, v{ob+3}")
            for p in range(2):
                I(f"buffer_store_dwordx4 {a2r(16+b,p)}, v{V_L16}, {srd(S_WS)}, s{S_t1} offen offset:{p*1024} sc1", tag="so")
        if not OPT["vb2"]: dsig("VD")
        stamp("h_so")
        def f_push():
            e.wait(vm="so")
            push_group(lambda: I(f"s_lshl_b32 s{S_t2}, 64, s{S_jj}"), (1, 2, 3))
        side[(0, OPT["fp"])] = f_push
        if not STG and OPT["a47"] < 2: side[(0, OPT["fp"] + 2)] = lambda: (poll_check(0x22), SS[0].add(0, 999, a2_items(range(4 + 2 * OPT["a47"], 8), 1)))
        def f_o():
            I(f"s_xor_b32 s{S_THR}, s{S_jj}, 1"); I(f"s_lshl_b32 s{S_THR}, 64, s{S_THR}")
            poll_check(f"s{S_THR}"); SS[0].add(0, 999, a2_items((14, 15)))
    def f_c(): poll_check(0x44); SS[0].add(0, 999, a2_items((10, 11) if (OWN and not att) else (8, 9, 10, 11)))
    def f_h(): poll_check(0x88); SS[0].add(0, 999, a2_items((12, 13)))
    if not STG: side.update({(0, OPT["kc"] - 15): poll_load, (0, OPT["kc"]): f_c, (0, OPT["kh"] - 15): poll_load, (0, OPT["kh"]): f_h, (0, OPT["ko"] - 11): poll_load, (0, OPT["ko"]): f_o})
    I("s_setprio 1")
    stamp("h_p2")
    own = [16, 17] if att else ([0, 1, 4, 5, 8, 9] if OWN else [])
    LD = OPT["ld"]
    oo = [16, 17, 14, 15]
    TM = 14 - OPT["tm"]
    seq = [(lam, tau) for lam in range(TM) for tau in range(4 if lam < LD else 3)]
    seq += [(lam, tau) for tau in range(3) for lam in list(range(TM, 14)) + oo]
    seq += [(lam, 3) for lam in list(range(LD, 14)) + oo]
    steps = []; rng = {}; seen_g = set(); seen_l = set(); first_ = set()
    for (lam, tau) in seq:
        g = lam >> 1
        for kh in range(2):
            a = H_BR + tau if M else H_BR + 2 * tau + kh
            off = g * SLOT + (lam & 1) * 4096 + (kh * 2048 if M else 0)
            hi = off >> 16
            st = dict(rd=(a, off & 0xffff, 1024 if M else 2048))
            pres = []
            cg = CHKG.get(g) if not STG else {2: 2}.get(g)
            if cg is not None and cg not in seen_g:
                seen_g.add(cg); t = U("t")
                steps[-3]["post"] = lambda k, g=cg, t=t: d_read(f"Lb{g}", t)
                pres.append(lambda g=cg, t=t: d_check(f"Lb{g}", t))
            if rng.get(a, 0) != hi:
                dlt = (hi - rng.get(a, 0)) * 65536; rng[a] = hi
                pres.append(lambda a=a, dlt=dlt: I(f"v_add_u32 v{a}, {dlt & 0xffffffff}, v{a}"))
            if pres: st["pre"] = lambda pres=pres: [f() for f in pres]
            at = 4 if (tau == 3 and lam >= 14) else tau
            key = at if M else (at, kh)
            zero = key not in first_; first_.add(key)
            db = H_ACC + 16 * (at if at < 4 else 0)
            if M: st["mf"] = lambda W, st, lam=lam, kh=kh, d=vr(db, 16), zero=zero: [f"{M32} {d}, {W}, {a2r(lam,kh)}, {'0' if zero else d}"]
            else: st["mf"] = lambda W, st, lam=lam, db=db + 4 * kh, zero=zero: [f"{MF} {vr(db+8*p)}, {W}, {a2r(lam,p)}, {'0' if zero else vr(db+8*p)}" for p in range(2)]
            if lam not in seen_l:
                seen_l.add(lam)
                if STG and lam >= 4 and lam not in own: st["need"] = lambda lam=lam: e.wait(lg=f"a{lam}")
                elif lam not in own: st["need"] = lambda lam=lam: e.wait(vm=f"a{lam}")
            st["id"] = (lam, tau, kh)
            steps.append(st)
    S = Stream(steps, OPT["D2"], H_RING)
    SS.append(S)
    idx = {st["id"]: k for k, st in enumerate(steps)}
    n = len(steps)
    for (lam, d), f in side.items(): S.aft(idx[(lam, 0, 0)] + d, f)
    def scale(tau, greg): return [lambda k=k: I(f"v_mul_f32 v{H_ACC+16*tau+k}, v{greg + (0 if M else 2*(k>>3))}, v{H_ACC+16*tau+k}") for k in range(16)]
    def pack(tau):
        b = H_ACC + tau * 16
        return [lambda k=k: I(f"v_cvt_pk_bf16_f32 v{b+k}, v{b+2*k}, v{b+2*k+1}") for k in range(8)]
    def send(tau):
        def so():
            I(f"s_xor_b32 s{S_GIN}, s{S_q}, {3-tau}"); I(f"s_mul_i32 s{S_GIN}, s{S_GIN}, {3*8192}")
            I(f"s_add_u32 s{S_GIN}, s{S_GIN}, s{S_PB}"); I(f"s_add_u32 s{S_GIN}, s{S_GIN}, {tau*8192}")
        return [so] + pack(tau) + [cost(3, lambda j=j: I(f"buffer_store_dwordx4 {vr(H_ACC+tau*16+j*4)}, v{V_L16}, {srd(S_WS)}, s{S_GIN} offen offset:{j*1024} sc1", tag=f"p{tau}")) for j in range(2)]
    def pflag(tau):
        assert e.vmq[0][0].count(f"p{tau}") == 2
        stamp(f"h_pa{tau}")
        e.wait(vm=f"p{tau}")
        stamp(f"h_pb{tau}")
        I(f"s_xor_b32 s{S_t0}, s{S_MYIN}, {(3-tau)*2048}")
        I(f"s_mov_b32 s{S_KG+tau}, {1024<<tau}")
        I(f"s_atomic_or s{S_KG+tau}, s[{S_INB}:{S_INB+1}], s{S_t0}")
    if STG:
        I(f"v_add_u32 v18, s{S_m0b}, v{V_L16}")
        I(f"v_add_u32 v19, 0x10000, v18")
        def stage_rd(lam, slot):
            a = (18, 19, 2)[slot >> 2]
            return [lambda j=j: I(f"ds_read_b128 {a2r(lam+(j>>1), j&1)}, v{a} offset:{(slot&3)*SLOT+j*1024}", tag=f"a{lam+(j>>1)}") for j in range(4)]
        def g_rd():
            I(f"s_lshr_b32 s{S_t0}, s{S_m0b}, 2"); I(f"s_add_u32 s{S_t0}, s{S_t0}, {GB_LDS}"); I(f"v_add_u32 v1, s{S_t0}, v{V_L16}")
            I(f"ds_read_b128 {vr(H_G)}, v1", tag="gz")
        I(f"v_add_u32 v2, 0x20000, v18")
        plan = [("S1", 4, stage_rd(4, 6)), ("S2", 6, stage_rd(6, 7)), ("S3", 8, stage_rd(8, 8)), ("S4", 10, stage_rd(10, 0)),
                ("S5", 12, stage_rd(12, 1) + [g_rd]), ("S6", 16, ([] if att else stage_rd(16, 2)) + stage_rd(14, 3))]
        for evn, lam, rds in plan:
            k = idx[(lam, 0, 0)] - OPT["lead"]; t = U("t")
            S.aft(k - 3 - (6 if lam == 4 else 0), lambda evn=evn, t=t: d_read(evn, t))
            S.aft(k - (6 if lam == 4 else 0), lambda evn=evn, t=t, rds=rds, k=k: (d_check(evn, t), S.add(0, k + OPT["lead"] - 3, rds)))
        for k, tg in ((OPT["pba"], "a7"), (OPT["pbb"], "a9")):
            S.aft(k, lambda tg=tg: ((e.wait(lg=tg) if tg else None), I("s_barrier")))
        S.aft(idx[(13, 0, 1)], lambda: e.wait(lg="gz"))
    elif EG:
        def gget():
            I(f"s_lshl_b32 s{S_t0}, s{S_r}, 2"); I(f"s_add_u32 s{S_t0}, s{S_t0}, s{S_q}"); I(f"s_lshl_b32 s{S_t0}, s{S_t0}, 12")
            I(f"s_lshr_b32 s{S_t1}, s{S_m0b}, 2"); I(f"s_add_u32 s{S_t0}, s{S_t0}, s{S_t1}"); I(f"s_add_u32 s{S_t0}, s{S_t0}, {GA_OFF}")
            I(f"buffer_load_dwordx4 {vr(H_G)}, v{V_L16}, {srd(S_WS)}, s{S_t0} offen sc1", tag="gz")
        S.aft(24, gget)
        S.aft(idx[(13, 0, 1)], lambda: e.wait(vm="gz"))
    else:
        def gget():
            t = U("t"); d_read("G", t); d_check("G", t)
            I(f"s_lshl_b32 s{S_t0}, s{S_w}, 8"); I(f"s_add_u32 s{S_t0}, s{S_t0}, {GB_LDS}")
            I(f"v_and_b32 v1, {31 if M else 15}, v0")
            I(f"v_lshl_add_u32 v1, v1, 3, s{S_t0}")
            I(f"ds_read_b64 {vr(H_G,2)}, v1", tag="gz")
            if not M: I(f"ds_read_b64 {vr(H_G+2,2)}, v1 offset:128", tag="gz")
        S.aft(idx[(12, 0, 1)], gget)
        S.aft(idx[(13, 0, 1)], lambda: e.wait(lg="gz"))
    for tau in range(4):
        k = idx[(13, tau, 1)]
        S.aft(k, lambda k=k, tau=tau: S.add(k + 3, idx[(oo[0], tau, 0)] if tau < 3 else n, scale(tau, H_G + 1)))
    late_flags = []
    for tau in range(3):
        k = idx[(oo[-1], tau, 1)]
        S.aft(k, lambda k=k, tau=tau: S.add(k + 3, k + 8, send(tau)))
        kf = k + 7 + OPT["pfd"]
        if kf <= n - (1 if OPT["crx"] else OPT["D2"] + 14): S.aft(kf, lambda tau=tau: pflag(tau))
        else: late_flags.append(tau)
    if OPT["crx"]:
        assert LD >= 2
        S.aft(idx[(oo[0], 0, 0)], lambda: I("s_barrier"))
    else: S.aft(n - OPT["D2"], lambda: (e.wait(lg=f"w{n-1}"), [pflag(t) for t in late_flags[:-1]], poll_load()))
    S.aft(idx[(8, 0, 0)], lambda: stamp("h_late"))
    S.aft(idx[(oo[0], 0, 0)], lambda: stamp("h_o"))
    S.aft(idx[(LD, 3, 0)], lambda: stamp("h_own"))
    S.run(OPT["side2"])
    if OPT["crx"]:
        for t in late_flags: pflag(t)
        O = H_ACC + 48
        I(f"v_add_u32 v1, s{S_m0b}, v{V_L16}")
        for k in range(8): I(f"v_pk_add_f32 {vr(O+2*k,2)}, {vr(O+2*k,2)}, {vr(H_ACC+2*k,2)}")
        for j in range(4): I(f"ds_write_b128 v1, {vr(O+4*j)} offset:{j*1024}")
        I("s_waitcnt lgkmcnt(0)")
        stamp("h_sum")
        I("s_barrier")
        finish()
        return
    out_addr()
    for t in late_flags[-1:]: pflag(t)
    O = H_ACC + 48
    for k in range(8): I(f"v_pk_add_f32 {vr(O+2*k,2)}, {vr(O+2*k,2)}, {vr(H_ACC+2*k,2)}")
    for tau in range(3):
        poll_check(1024 << tau)
        stamp(f"h_r{tau}")
        if tau == 2: stamp("h_rcv")
        for j in range(2):
            I(f"buffer_load_dwordx4 {vr(24+tau*8+j*4)}, v{V_L16}, {srd(S_WS)}, s{S_GIN} offen offset:{j*1024} sc1", tag=f"r{tau}")
        if tau < 2: I(f"s_add_u32 s{S_GIN}, s{S_GIN}, 8192")
    for tau in range(3):
        e.wait(vm=f"r{tau}")
        b = H_ACC + 16
        for k in range(8):
            I(f"v_lshlrev_b32 v{b+2*k}, 16, v{24+tau*8+k}")
            I(f"v_and_b32 v{b+2*k+1}, 0xffff0000, v{24+tau*8+k}")
        for k in range(8): I(f"v_pk_add_f32 {vr(O+2*k,2)}, {vr(O+2*k,2)}, {vr(b+2*k,2)}")
    for k in range(8): I(f"v_pk_mul_f32 {vr(O+2*k,2)}, {vr(O+2*k,2)}, {vr(H_G + (0 if M else 2*(k>>2)),2)} op_sel_hi:[1,0]")
    stamp("h_sum")
    for f in pack(3): f()
    for j in range(2):
        sw = "v_permlane32_swap_b32" if M else "v_permlane16_swap_b32"
        I(f"{sw} v{O+4*j}, v{O+4*j+2}")
        I(f"{sw} v{O+4*j+1}, v{O+4*j+3}")
        I(f"buffer_store_dwordx4 {vr(O+4*j)}, v{4 if M else 4+j}, {srd(S_OUT)}, s{S_COL} offen offset:{j*(32 if M else 1024)}" + ["", " nt", " sc0", " sc1"][OPT["of"]])
    finish()

h_prog(False)
e.label("L_h_att")
h_prog(True)

e.label("L_C")
role[0] = "C"
reset()
C_WR = 4; C_XR = 12; C_EXW = 3; C_HA = 18; C_HX = (24, 56, 60); C_HACC = 28; C_ACC = 64
I("s_setprio 2")
if OPT["codepf"] and not OPT["pfe"]:
    I("s_cmp_lt_u32 s2, 16")
    I("s_cbranch_scc0 L_nopf")
    e.cond_begin()
    I("s_getpc_b64 s[56:57]")
    e.label("L_pc")
    I(f"s_sub_u32 s56, s56, L_pc-{NAME}_kernel")
    I("s_subb_u32 s57, s57, 0")
    I(f"s_lshr_b32 s{S_t0}, s2, 3")
    I(f"s_lshl_b32 s{S_t0}, s{S_t0}, 15")
    I(f"v_lshlrev_b32 v2, 7, v0")
    I(f"v_lshl_add_u32 v2, v1, 13, v2")
    I(f"v_add_u32 v2, s{S_t0}, v2")
    I(f"v_min_u32 v2, L_end-{NAME}_kernel, v2")
    I(f"global_load_dword v127, v2, s[56:57]")
    e.cond_end()
    e.label("L_nopf")
late_scalars()
def ev_init():
    I("v_lshlrev_b32 v2, 2, v0")
    I(f"v_add_u32 v2, {EV_LDS}, v2")
    I("v_mov_b32 v1, 1")
    I("ds_write_b32 v2, v1", tag="exw0")
I("v_lshrrev_b32 v32, 4, v0")
I("v_and_b32 v33, 15, v0")
I("v_bfe_u32 v34, v0, 2, 2")
I("v_and_b32 v35, 3, v0")
after_karg()
common_ptrs()
mk_srd(S_OUT, 18, 2048 * 1024)
if OPT["tw"] & 2:
    I(f"s_cmp_eq_u32 s{S_w}, 1")
    I("s_cbranch_scc0 L_notw")
    e.cond_begin()
    I(f"s_lshl_b32 s{S_t0}, s2, 12")
    I(f"s_load_dword s{S_EV}, s[14:15], 0")
    I(f"s_load_dword s{S_EV}, s[8:9], 0")
    I(f"s_load_dword s{S_EV}, s[18:19], s{S_t0} glc")
    I(f"s_load_dword s{S_EV}, s[22:23], s{S_A2} glc")
    I(f"s_add_u32 s{S_t0}, s{S_t0}, {PART_OFF}")
    I(f"s_load_dword s{S_EV}, s[22:23], s{S_t0} glc")
    I("s_waitcnt lgkmcnt(0)")
    e.cond_end()
    e.label("L_notw")
if not OPT["hinit"]:
    I(f"s_cmp_eq_u32 s{S_w}, 0")
    I("s_cbranch_scc0 L_c_noinit")
    e.cond_begin()
    for k in range(4):
        I(f"s_mov_b32 s{S_KG+k}, 0")
        I(f"s_add_u32 s{S_t0}, s{S_MYIN}, {k*128}")
        I(f"s_atomic_swap s{S_KG+k}, s[{S_INB}:{S_INB+1}], s{S_t0} glc")
    e.cond_end()
    e.label("L_c_noinit")
if OPT["ev0"]: I("s_barrier")
I(f"s_cmp_ge_u32 s{S_jj}, 2")
I("s_cbranch_scc1 L_c_att")

def c_prog(att):
    reset()
    UL = units(att)
    slot_of = {un: phys(att, k) for k, un in enumerate(UL)}
    subs = [un for un in UL if un[0] == "g"]
    if OPT["spf"] == 2 and OPT["tearly"] and OPT["th"] < 0: vtouch(att)
    n16 = att or not M
    if not (att and OPT["n9"]):
        ev_init(); I("s_waitcnt lgkmcnt(0)"); reset()
    if n16:
        for p in range(2):
            I(f"v_xor_b32 v38, {8 if p == 0 else 0}, v33")
            I("v_and_b32 v39, 8, v38")
            I("v_add_u32 v39, v39, v38")
            I("v_lshlrev_b32 v39, 7, v39")
            I("v_lshrrev_b32 v38, 1, v38")
            I("v_xor_b32 v38, v38, v32")
            I("v_lshl_add_u32 v39, v38, 4, v39")
            I(f"v_add_u32 v39, s{S_m0b}, v39")
            I(f"v_add_u32 v{C_XR+2*p+p}, {p*1024}, v39")
            I(f"v_xor_b32 v{C_XR+2*p+1-p}, 64, v{C_XR+2*p+p}")
        I("v_lshl_add_u32 v38, v32, 3, v34")
        I("v_lshlrev_b32 v38, 7, v38")
        I("v_lshl_add_u32 v38, v35, 3, v38")
        I("v_lshrrev_b32 v39, 1, v34")
        I("v_and_b32 v40, 1, v32")
        I("v_lshl_or_b32 v39, v40, 1, v39")
        I(f"v_xor_b32 v41, {'s'+str(S_w) if att else 0}, v39")
        for t in range(4):
            I(f"v_xor_b32 v40, {t}, v41")
            I(f"v_lshl_add_u32 v{C_WR+t}, v40, 5, v38")
            I(f"v_add_u32 v{C_WR+4+t}, 0x10000, v{C_WR+t}")
        if att:
            I("v_lshrrev_b32 v38, 1, v33")
            I("v_xor_b32 v38, v38, v32")
            I("v_lshlrev_b32 v38, 4, v38")
            I("v_lshl_add_u32 v38, v33, 7, v38")
            I(f"v_add_u32 v{C_HA}, {HALO_LDS}, v38")
            I(f"v_xor_b32 v{C_HA+1}, 64, v{C_HA}")
            I(f"s_mul_i32 s{S_t0}, s{S_w}, 5120")
            I(f"s_add_u32 s{S_t0}, s{S_t0}, {EXCH_LDS+4096}")
            I(f"v_add_u32 v{C_EXW}, s{S_t0}, v{V_L16}")
    else:
        I("v_and_b32 v40, 1, v32")
        I("v_lshlrev_b32 v38, 3, v40")
        I("v_xor_b32 v38, 8, v38")
        I("v_xor_b32 v38, v38, v33")
        I("v_and_b32 v39, 8, v38")
        I("v_add_u32 v39, v39, v38")
        I("v_lshl_add_u32 v39, v40, 3, v39")
        I("v_lshlrev_b32 v39, 7, v39")
        I("v_lshrrev_b32 v38, 1, v38")
        I("v_lshlrev_b32 v41, 2, v40")
        I("v_xor_b32 v38, v38, v41")
        I("v_lshrrev_b32 v41, 1, v32")
        I("v_xor_b32 v38, v38, v41")
        I("v_lshl_add_u32 v39, v38, 4, v39")
        I(f"v_add_u32 v{C_XR}, s{S_m0b}, v39")
        for k in range(1, 4): I(f"v_xor_b32 v{C_XR+k}, {32*k}, v{C_XR}")
        I("v_lshl_add_u32 v38, v41, 3, v34")
        I("v_lshlrev_b32 v38, 7, v38")
        I("v_lshl_add_u32 v38, v35, 3, v38")
        I("v_lshl_add_u32 v38, v40, 5, v38")
        I("v_lshrrev_b32 v39, 1, v34")
        I(f"v_lshl_add_u32 v{C_WR}, v39, 6, v38")
        I(f"v_xor_b32 v{C_WR+1}, 64, v{C_WR}")
        for t in range(2): I(f"v_add_u32 v{C_WR+4+t}, 0x10000, v{C_WR+t}")
    if OPT["spf"] == 2 and not OPT["tearly"] and OPT["th"] < 0: vtouch(att)
    if OPT["spf"] == 1:
        P = 3072 if att else 3584; wp = 6 if att else 12
        I(f"s_lshl_b32 s{S_t0}, s{S_r}, 2"); I(f"s_add_u32 s{S_t0}, s{S_t0}, s{S_w}")
        I(f"s_mul_i32 s{S_t1}, s{S_t0}, {8*P}")
        I(f"s_mul_i32 s{S_t2}, s{S_q}, {256 if att else 896}"); I(f"s_add_u32 s{S_t1}, s{S_t1}, s{S_t2}")
        I(f"s_lshl_b32 s{S_t2}, s{S_j1}, 7"); I(f"s_add_u32 s{S_t2}, s{S_t2}, s{S_t1}")
        I(f"s_add_u32 s56, s{wp}, s{S_t2}"); I(f"s_addc_u32 s57, s{wp+1}, 0")
        for k in range(8): I(f"s_load_dword s{S_EV}, s[56:57], {k*P + (2048 if att else 512)}")
        if not att:
            I(f"s_mul_i32 s{S_t2}, s{S_j1}, {4*P}"); I(f"s_add_u32 s{S_t2}, s{S_t2}, s{S_t1}")
            I(f"s_add_u32 s56, s{wp}, s{S_t2}"); I(f"s_addc_u32 s57, s{wp+1}, 0")
            for k in range(4): I(f"s_load_dword s{S_EV}, s[56:57], {k*P + 768}")
        I(f"s_lshl_b32 s{S_t0}, s{S_t0}, 2"); I(f"s_add_u32 s{S_t0}, s{S_t0}, s{S_jj}")
        I(f"s_mul_i32 s{S_t1}, s{S_t0}, 1792"); I(f"s_mul_i32 s{S_t2}, s{S_q}, {448*1024}"); I(f"s_add_u32 s{S_t1}, s{S_t1}, s{S_t2}")
        I(f"s_add_u32 s56, s14, s{S_t1}"); I("s_addc_u32 s57, s15, 0")
        for k in range(14): I(f"s_load_dword s{S_EV}, s[56:57], {k*128}")
        I(f"s_lshl_b32 s{S_t1}, s{S_t0}, 9"); I(f"s_lshl_b32 s{S_t2}, s{S_q}, 17"); I(f"s_add_u32 s{S_t1}, s{S_t1}, s{S_t2}")
        I(f"s_add_u32 s56, s8, s{S_t1}"); I("s_addc_u32 s57, s9, 0")
        for k in range(4): I(f"s_load_dword s{S_EV}, s[56:57], {k*128}")
        I("s_waitcnt lgkmcnt(0)")
    if not OPT["hinit"]:
        l = U("ci")
        I(f"s_cmp_eq_u32 s{S_w}, 0"); I(f"s_cbranch_scc0 {l}")
        e.cond_begin()
        I(f"s_mov_b32 s{S_t1}, 1")
        I("s_waitcnt lgkmcnt(0)")
        I(f"s_atomic_add s{S_t1}, s[{S_DBG}:{S_DBG+1}], 0")
        e.cond_end(); e.label(l)
    if EG and not att:
        I("v_lshlrev_b32 v18, 4, v32"); I(f"v_add_u32 v18, {GW_LDS}, v18")
        assert not OPT["ev0"]
        I(f"s_lshr_b32 s{S_t0}, s{S_m0b}, 1"); I(f"v_add_u32 v21, s{S_t0}, v{V_L16}"); I(f"v_add_u32 v22, {8*SLOT}, v21")
    I("s_waitcnt vmcnt(0)")
    stamp("c_go")
    def xfr(p, s): return ar((p * 16 + s) * 4)
    def xf32(s16): return ar(s16 * 4)
    def acc(c, T, p=0):
        base = C_ACC + 32 * (c & 1)
        if att: return base + (T * 2 + p) * 4
        if M: return base + T * 16
        return base + (((T >> 1) * 2 + p) * 2 + (T & 1)) * 4
    def xread(dst, areg, slot, tmp, k):
        base = slot * SLOT
        if base >= 65536:
            I(f"v_add_u32 v{tmp}, {base & ~0xffff}, v{areg}"); areg = tmp
        I(f"ds_read_b128 {dst}, v{areg} offset:{base & 0xffff}", tag=f"w{k}")
    steps = []; nh = [0]
    for i, un in enumerate(subs):
        _, c, u = un; slot = slot_of[un]
        for j in range(16):
            h = j >> 3
            if n16:
                ks = (j >> 1) & 3; T = 2 * h + (j & 1); s = 4 * u + ks; zero = (u == 0 and ks == 0); ta = T
                if c == 3: s = 4 * (u + 2 * h) + ks; ta = j & 1; zero = (u == 0 and h == 0 and ks == 0)
                halo = att and T == 0 and c != 1
                st = dict(rd=(C_WR + (4 if slot >= 4 else 0) + T, (slot & 3) * SLOT + ks * 4096, 512))
                def mf(W, st, s=s, T=ta, zero=zero, c=c, halo=halo):
                    out = []
                    for p in range(2):
                        a, b = (xfr(p, s), W) if (att and c == 2) else (W, xfr(p, s))
                        d = vr(acc(c, T, p))
                        out.append(f"{MF} {d}, {a}, {b}, {'0' if zero else d}")
                    if "gate" in st:
                        gs, gp = st["gate"]
                        out.append(f"{MF} {vr(24+4*gp)}, {vr(56+4*(gs&1))}, {xfr(gp,gs)}, {'0' if gs == 0 else vr(24+4*gp)}")
                    if halo:
                        a, b = (vr(st["hreg"]), W) if c == 2 else (W, vr(st["hreg"]))
                        out.append(f"{MF} {vr(C_HACC)}, {a}, {b}, {'0' if zero else vr(C_HACC)}")
                    return out
                if EG and not att and c == 1 and j % 4 >= 2: st["gate"] = (4 * u + (j >> 2), j & 1)
                def post(k, st=st, s=s, halo=halo, j=j, c=c, u=u, ks=ks):
                    if EG and not att and c == 1 and j % 4 == 2:
                        if j == 2:
                            I(f"s_add_u32 s{S_t0}, s{S_rot}, {u}"); I(f"s_and_b32 s{S_t0}, s{S_t0}, 3"); I(f"s_lshl_b32 s{S_t0}, s{S_t0}, 8")
                            I(f"v_add_u32 v19, s{S_t0}, v18")
                        I(f"ds_read_b128 {vr(56+4*((j>>2)&1))}, v19 offset:{(j>>2)*64}", tag=f"w{k}")
                    if OPT["ev0"] and c == 0 and u == 0 and j == 12: I("ds_read_b32 v21, v20 offset:16", tag="se1")
                    if c == 0 and j < 8 and j % 2 == 0:
                        for p in range(2): xread(xfr(p, s), C_XR + 2 * p + (ks & 1), slot_of[("x", u, ks >> 1)], 1 + p, k)
                    if att and c == 2 and u == 2 and j == 11 and OPT["u19"]: d_read("Lv3", "chk11")
                    if halo:
                        st["hreg"] = C_HX[nh[0] % 3]; nh[0] += 1
                        I(f"ds_read_b128 {vr(st['hreg'])}, v{C_HA+(s&1)} offset:{(s>>1)*2048}", tag=f"w{k}")
            else:
                kk = j & 7
                if c < 3: s16 = 8 * u + kk; ta = h; zero = (u == 0 and kk == 0)
                else: s16 = 8 * (u + 2 * h) + kk; ta = 0; zero = (u == 0 and j == 0)
                st = dict(rd=(C_WR + (4 if slot >= 4 else 0) + h, (slot & 3) * SLOT + kk * 2048, 512))
                d = vr(acc(c, ta), 16)
                def mf(W, st, s16=s16, d=d, zero=zero): return [f"{M32} {d}, {W}, {xf32(s16)}, {'0' if zero else d}"]
                def post(k, s16=s16, j=j, c=c, u=u, kk=kk):
                    if c == 0 and j < 8: xread(xf32(s16), C_XR + (kk & 3), slot_of[("x", u, kk >> 2)], 1 + (kk & 1), k)
            st["mf"] = mf; st["post"] = post
            if j == 0:
                def pre(i=i):
                    stamp(f"t{i}")
                    if att and i == 8:
                        assert e.lgq[0][0].count("exw0") == 5 + OPT["n9"]
                        e.wait(lg="exw0")
                    if att and slot_of[subs[i]] >= 8:
                        for t in range(4): I(f"v_add_u32 v{C_WR+4+t}, 0x10000, v{C_WR+4+t}")
                    if att and i and slot_of[subs[i-1]] >= 8:
                        for t in range(4): I(f"v_subrev_u32 v{C_WR+4+t}, 0x10000, v{C_WR+4+t}")
                    if not att and OWN:
                        cc = {8: 0, 9: 1, 13: 2}.get(i)
                        if cc is not None:
                            assert e.lgq[0][0].count(f"exw{cc}") == 4, (i, e.lgq[0][0].count(f"exw{cc}"))
                            e.wait(lg=f"exw{cc}")
                        if i == 11: e.wait(vm="stg")
                    elif not att and i - OPT["ackb"] in (0, 1):
                        assert e.vmq[0][0].count(f"st{i-OPT['ackb']}") == 4
                        e.wait(vm=f"st{i-OPT['ackb']}")
                        if EG and i - OPT["ackb"] == 1: e.wait(vm="stg")
                    if i < 2 and OPT["ev0"]:
                        ok = U("ok"); lp = U("sp")
                        rd = f"ds_read_b32 v21, v20 offset:{16*i}"
                        if i == 0:
                            I(f"v_add_u32 v20, {(SEV(att) - EV_LDS) & 0xffffffff}, v{V_EVW}")
                            I(rd, tag="se0")
                        e.wait(lg=f"se{i}")
                        I("v_cmp_ne_u32 vcc, 0, v21")
                        I(f"s_cbranch_vccnz {lp}")
                        e.label(ok)
                        SLOW.extend([f"{lp}:", f"    {rd}", "    s_waitcnt lgkmcnt(0)", "    v_cmp_ne_u32 vcc, 0, v21", f"    s_cbranch_vccz {ok}", "    s_sleep 1"] + spin_tail(lp, ok))
                    elif i < (9 if att else 14): I("s_barrier")
                    if att and i == 11 and OPT["u19"]: d_check("Lv3", "chk11")
                    stamp(f"s{i}")
                    if att and M and i == 8:
                        for t in range(8): I(f"v_xor_b32 v{C_WR+t}, v19, v{C_WR+t}")
                st["pre"] = pre
            steps.append(st)
    if att: S = Stream(steps, OPT["D"], [32, 36, 40, 44, 48, 52])
    else: S = Stream(steps, OPT["DF"], [32, 36, 40, 44, 48, 52])
    DD = S.D
    line0 = len(e.lines)
    def chkbar(nb): assert sum(1 for l in e.lines[line0:] if l.strip() == "s_barrier") >= nb
    def packn(a, n_): return [lambda k=k: I(f"v_cvt_pk_bf16_f32 v{a+k}, v{a+2*k}, v{a+2*k+1}") for k in range(n_)]
    def epi(c, h):
        F = []
        if att:
            for t in (2 * h, 2 * h + 1):
                a = acc(c, t, 0)
                F += packn(a, 4)
                def wr(t=t, a=a):
                    I(f"v_xor_b32 v1, {t*1024}, v{C_EXW}")
                    if c == 1: I(f"v_add_u32 v1, {(QSLOT*SLOT - EXCH_LDS - 4096) & 0xffffffff}, v1")
                    I(f"ds_write_b128 v1, {vr(a)}", tag=f"exw{c}")
                F.append(wr)
            if h == 0 and c != 1:
                def hw():
                    I(f"v_cvt_pk_bf16_f32 v{C_HACC}, v{C_HACC}, v{C_HACC+1}")
                    I(f"v_cvt_pk_bf16_f32 v{C_HACC+1}, v{C_HACC+2}, v{C_HACC+3}")
                    I(f"s_add_u32 s{S_t0}, s{S_m0b}, 4096")
                    I(f"v_subrev_u32 v1, s{S_t0}, v{C_EXW}")
                    I(f"ds_write2_b64 v1, {vr(C_HACC,2)}, {vr(C_HACC,2)} offset0:0 offset1:1", tag=f"exw{c}")
                F.append(hw)
                if c == 0 and OPT["n9"]: F.append(ev_init)
        else:
            a = acc(c, h) if M else acc(c, 2 * h, 0)
            F += packn(a, 8)
            def so():
                I(f"s_lshr_b32 s{S_GIN}, s{S_J32}, {2 if c < 3 else 3}")
                I(f"s_add_u32 s{S_GIN}, s{S_GIN}, s{S_A2}"); I(f"s_add_u32 s{S_GIN}, s{S_GIN}, {(4*c+h)*8192}")
            if OWN and c < 3:
                for p in range(2):
                    F += [lambda k=k: I(f"v_pk_max_i16 v{k}, v{k}, 0") for k in range(a + 4 * p, a + 4 * p + 4)]
                    F.append(cost(0, lambda: chkbar((8, 9, 10)[c])))
                    F.append(cost(2, lambda p=p: I(f"ds_write_b128 v{21 if c == 1 else 22}, {vr(a+4*p)} offset:{h*8192+p*1024}", tag=f"exw{c}")))
                return F
            F.append(so)
            for p in range(2):
                F += [lambda k=k: I(f"v_pk_max_i16 v{k}, v{k}, 0") for k in range(a + 4 * p, a + 4 * p + 4)]
                F.append(cost(9, lambda p=p: I(f"buffer_store_dwordx4 {vr(a+4*p)}, v{V_L16}, {srd(S_WS)}, s{S_GIN} offen offset:{p*1024} sc1", tag=f"st{c}")))
        return F
    n = len(steps)
    for c, i, reuse in ((0, 6, 8), (1, 7, 12), (2, 11, 99)):
        for h in range(2):
            k = 16 * i + 8 * h + 7
            if k == n - 1: continue
            dl = min(16 * reuse + (8 * h if reuse == 8 else 0), n)
            if att and c < 2: dl = 16 * 8 - DD - 3 if c == 0 else OPT["kq"] - 1
            if OWN and not att: dl = 16 * (8, 9, 13)[c] - DD - 1
            S.aft(k, lambda k=k, c=c, h=h, dl=dl: S.add(max(k + (2 if n16 else 4), 16 * 7 - DD + 1 if att else (0, 16 * 8 - DD - 4, 0)[c] if OWN else 0), dl, epi(c, h)))
    if att:
        def qbar():
            assert e.lgq[0][0].count("exw1") == 4
            e.wait(lg="exw1"); I("s_barrier")
        assert OPT["kq"] < 16 * 9 - DD
        S.aft(OPT["kq"], qbar)
    if EG and not att:
        def gst():
            I(f"s_lshl_b32 s{S_t0}, s{S_r}, 2"); I(f"s_add_u32 s{S_t0}, s{S_t0}, s{S_q}"); I(f"s_lshl_b32 s{S_t0}, s{S_t0}, 12")
            I(f"s_lshr_b32 s{S_t1}, s{S_m0b}, 2"); I(f"s_add_u32 s{S_t0}, s{S_t0}, s{S_t1}"); I(f"s_add_u32 s{S_t0}, s{S_t0}, {GA_OFF}")
            I(f"s_lshl_b32 s{S_t1}, s{S_j1}, 28"); I(f"s_add_u32 s{S_t0}, s{S_t0}, s{S_t1}")
            I(f"buffer_store_dwordx4 {vr(56)}, v{V_L16}, {srd(S_WS)}, s{S_t0} offen sc1", tag="stg")
        S.aft(16 * 8, lambda: S.add(0, 16 * (OPT["ackb"] + 1) - 12, [lambda t=t: I(t) for t in gate_math(24, 28, 56, 3)] + [gst]))
    if STG:
        I(f"s_mov_b32 s{S_POLL}, 0")
        S.aft(n - 24, poll_load)
    S.run(OPT["side"] if att else OPT["sidef"])
    stamp("c_end")
    if not att: I("s_barrier")
    for f in (epi(2, 1) if att else epi(3, 0)): f()
    if att:
        e.wait(lg="exw2")
        I("s_barrier")
    if OPT["cprio"] != 2: I(f"s_setprio {OPT['cprio']}")
    if STG:
        I("s_setprio 3")
        def pair(lam, slot):
            I(f"s_add_u32 m0, s{S_m0b}, {slot*SLOT}")
            a2_soff(lam, S_SOFF)
            for i in range(4):
                if i == 2: I(f"s_add_u32 s{S_SOFF}, s{S_SOFF}, {8192-2048}")
                I(f"buffer_load_dwordx4 v{V_L16}, {srd(S_WS)}, s{S_SOFF} offen offset:{i*1024} sc1 lds")
        B = lambda g: b2_unit(g, 4, False)
        b2_voffs(4)
        if att: I("s_barrier")
        else:
            assert e.vmq[0][0].count("st2") == 4
            e.wait(vm="st2"); push_group(ownbit(2), (0, 1, 2, 3))
        poll_check(0x22)
        pair(4, 6); dsig("S1")
        B(3); pair(6, 7); dsig("S2")
        if not att:
            e.wait(vm="st3"); push_group(ownbit(3), (0, 1, 2, 3))
        poll_load()
        B(4); poll_check(0x44); pair(8, 8); dsig("S3"); poll_load()
        B(5)
        I(f"s_lshr_b32 s{S_t1}, s{S_m0b}, 2"); I(f"s_add_u32 m0, s{S_t1}, {GB_LDS}")
        I(f"s_lshl_b32 s{S_t0}, s{S_r}, 2"); I(f"s_add_u32 s{S_t0}, s{S_t0}, s{S_q}"); I(f"s_lshl_b32 s{S_t0}, s{S_t0}, 12")
        I(f"s_add_u32 s{S_t0}, s{S_t0}, s{S_t1}"); I(f"s_add_u32 s{S_t0}, s{S_t0}, {GA_OFF}")
        I(f"buffer_load_dwordx4 v{V_L16}, {srd(S_WS)}, s{S_t0} offen sc1 lds")
        stamp("c_pa")
        I("s_barrier")
        pair(10, 0); dsig("S4"); B(6)
        poll_check(0x88); pair(12, 1); dsig("S5"); poll_load()
        stamp("c_pb")
        I("s_barrier")
        poll_load()
        B(8); B(7)
        if att:
            I(f"s_xor_b32 s{S_THR}, s{S_jj}, 1"); I(f"s_lshl_b32 s{S_THR}, 64, s{S_THR}")
            poll_check(f"s{S_THR}")
        else:
            poll_check(0x300); pair(16, 2)
        pair(14, 3); dsig("S6")
    else:
        rest = [3, 4, 5, 6, 8, 7]
        def cunit():
            g = rest.pop(0)
            if att and g == 8 and not OPT["vb2"]:
                t = U("t"); d_read("VD", t); d_check("VD", t)
            b2_unit(g, 4, g in SIGG)
        if not att:
            if not OWN:
                assert e.vmq[0][0].count("st2") == 4
                e.wait(vm="st2"); push_group(ownbit(2), (0, 1, 2, 3))
            stamp("c_f2")
            b2_voffs(4)
            if OPT["lowp"]: I("s_setprio 0")
            cunit(); cunit()
        if EG:
            if att:
                b2_voffs(4)
                if OPT["vb2"]: I("s_barrier")
                if OPT["lowp"]: I("s_setprio 0")
                cunit(); cunit()
            else:
                e.wait(vm="st3"); push_group(ownbit(3), (0, 1, 2, 3))
        else:
            I("s_setprio 2")
            stamp("c_g0")
            I("v_lshrrev_b32 v9, 4, v0")
            if n16:
                I("v_lshlrev_b32 v8, 4, v9")
            else:
                I("v_lshrrev_b32 v8, 5, v0"); I("v_lshlrev_b32 v8, 4, v8")
                I("v_xor_b32 v9, v9, v0"); I("v_and_b32 v9, 1, v9")
                I("v_cmp_eq_u32 vcc, 0, v9")
            NG = 16 if n16 else 32; per = NG // 4
            RB = [32 + 4 * k for k in range(8)]
            def gread(s_):
                if s_ % per == 0:
                    I(f"s_add_u32 s{S_t0}, s{S_rot}, {s_//per}"); I(f"s_and_b32 s{S_t0}, s{S_t0}, 3"); I(f"s_lshl_b32 s{S_t0}, s{S_t0}, 8")
                    I(f"s_add_u32 s{S_t0}, s{S_t0}, {GW_LDS}")
                    I(f"v_add_u32 v10, s{S_t0}, v8")
                    if not n16:
                        I(f"v_mov_b32 v11, {ZERO_LDS}"); I("v_cndmask_b32 v10, v11, v10, vcc")
                I(f"ds_read_b128 {vr(RB[s_%8])}, v10 offset:{(s_%per)*(64 if n16 else 32)}", tag=f"g{s_}")
            for s_ in range(6): gread(s_)
            if att:
                b2_voffs(4)
                I("s_barrier")
                cunit()
            for s_ in range(NG):
                e.wait(lg=f"g{s_}")
                if n16:
                    for p in range(2): I(f"{MF} {vr(64+4*p)}, {vr(RB[s_%8])}, {xfr(p,s_)}, {'0' if s_ == 0 else vr(64+4*p)}")
                else:
                    I(f"{MF} {vr(64)}, {vr(RB[s_%8])}, {xf32(s_)}, {'0' if s_ == 0 else vr(64)}")
                if s_ + 6 < NG: gread(s_ + 6)
                if s_ == NG // 2 and rest: cunit()
            if not att:
                e.wait(vm="st3"); push_group(ownbit(3), (0, 1, 2, 3))
                stamp("c_f3")
            cunit()
            z1 = 68 if n16 else 65; G = 72
            T = gate_math(64, z1, G, 1)
            for t in T: I(t)
            I(f"s_lshl_b32 s{S_t0}, s{S_w}, 8"); I(f"s_add_u32 s{S_t0}, s{S_t0}, {GB_LDS}")
            I(f"v_lshl_add_u32 v1, v0, 3, s{S_t0}")
            I("s_mov_b64 exec, 0xffff")
            I(f"ds_write_b64 v1, {vr(G,2)}", tag="gz")
            I(f"ds_write_b64 v1, {vr(G+2,2)} offset:128", tag="gz")
            I("s_mov_b64 exec, -1")
            e.wait(lg="gz")
            if OPT["lowp"]: I("s_setprio 0")
            dsig("G")
        stamp("c_g1")
        while rest:
            throttle(); cunit()
    if OPT["crx"]:
        I("s_setprio 3")
        I(f"s_mov_b32 s{S_POLL}, 0")
        poll_check(2)
        I(f"s_lshl_b32 s{S_t0}, s{S_r}, 2"); I(f"s_add_u32 s{S_t0}, s{S_t0}, s{S_q}"); I(f"s_lshl_b32 s{S_t0}, s{S_t0}, 12")
        I(f"s_lshr_b32 s{S_t1}, s{S_m0b}, 2"); I(f"s_add_u32 s{S_t0}, s{S_t0}, s{S_t1}"); I(f"s_add_u32 s{S_t0}, s{S_t0}, {GA_OFF}")
        I(f"buffer_load_dwordx4 {vr(20)}, v{V_L16}, {srd(S_WS)}, s{S_t0} offen sc1", tag="gz")
        pb_setup(); out_addr()
        I(f"v_add_u32 v1, s{S_m0b}, v{V_L16}")
        I("s_barrier")
        O = 64
        for tau in range(3):
            poll_check(1024 << tau)
            stamp(f"c_r{tau}")
            for j in range(2):
                I(f"buffer_load_dwordx4 {vr(24+tau*8+j*4)}, v{V_L16}, {srd(S_WS)}, s{S_GIN} offen offset:{j*1024} sc1", tag=f"r{tau}")
            if tau < 2: I(f"s_add_u32 s{S_GIN}, s{S_GIN}, 8192")
        def unpack(tau, b):
            e.wait(vm=f"r{tau}")
            for k in range(8):
                I(f"v_lshlrev_b32 v{b+2*k}, 16, v{24+tau*8+k}")
                I(f"v_and_b32 v{b+2*k+1}, 0xffff0000, v{24+tau*8+k}")
        def addv(d, b):
            for k in range(16): I(f"v_add_f32 v{d+k}, v{d+k}, v{b+k}")
        unpack(0, 80); unpack(1, 96); addv(80, 96)
        I("s_barrier")
        for j in range(4): I(f"ds_read_b128 {vr(O+4*j)}, v1 offset:{j*1024}", tag="own")
        unpack(2, 96)
        for k in range(8): I(f"v_pk_add_f32 {vr(80+2*k,2)}, {vr(80+2*k,2)}, {vr(96+2*k,2)}")
        e.wait(lg="own")
        for k in range(8): I(f"v_pk_add_f32 {vr(O+2*k,2)}, {vr(O+2*k,2)}, {vr(80+2*k,2)}")
        for k in range(8): I(f"v_pk_mul_f32 {vr(O+2*k,2)}, {vr(O+2*k,2)}, {vr(20+2*(k>>2),2)} op_sel_hi:[1,0]")
        stamp("c_sum")
        for k in range(8): I(f"v_cvt_pk_bf16_f32 v{O+k}, v{O+2*k}, v{O+2*k+1}")
        for j in range(2):
            I(f"v_permlane16_swap_b32 v{O+4*j}, v{O+4*j+2}")
            I(f"v_permlane16_swap_b32 v{O+4*j+1}, v{O+4*j+3}")
            I(f"buffer_store_dwordx4 {vr(O+4*j)}, v{4+j}, {srd(S_OUT)}, s{S_COL} offen offset:{j*1024}")
        finish()
        return
    if OPT["dummy"]:
        I(f"s_lshl_b32 s{S_t0}, s2, 2"); I(f"s_add_u32 s{S_t0}, s{S_t0}, s{S_w}"); I(f"s_mul_i32 s{S_t0}, s{S_t0}, 9216"); I(f"s_add_u32 s{S_t0}, s{S_t0}, {20<<20}")
        for k in range(9):
            I(f"buffer_store_dwordx4 {vr(64)}, v{V_L16}, {srd(S_WS)}, s{S_t0 if OPT['dummy'] == 1 else S_WS+2} offen")
            I(f"s_add_u32 s{S_t0}, s{S_t0}, 1024")
    I("s_waitcnt vmcnt(0) lgkmcnt(0)")
    finish()

c_prog(False)
e.label("L_c_att")
c_prog(True)

e.label("L_end")
I("s_endpgm")
e.raw('.section .rodata,"a"')
e.raw(".p2align 6")
e.raw(f".amdhsa_kernel {NAME}_kernel")
e.raw("  .amdhsa_next_free_vgpr 256")
e.raw("  .amdhsa_next_free_sgpr 102")
e.raw("  .amdhsa_accum_offset 128")
e.raw("  .amdhsa_group_segment_fixed_size 0")
e.raw("  .amdhsa_kernarg_size 80")
e.raw("  .amdhsa_user_sgpr_count 2")
e.raw("  .amdhsa_user_sgpr_kernarg_segment_ptr 1")
e.raw("  .amdhsa_system_sgpr_workgroup_id_x 1")
e.raw(".end_amdhsa_kernel")
sys.stdout.write(e.text())
sys.stderr.write(f"instructions {e.nins} nop-states {e.nops}\n")
```

```python
import sys, struct
from emit import Em

NAME = "gated_mix__sliding_local_dilated__dense_activation_relu__prompt"
OPT = dict(padt=6000, padk=-1, padr=0, stamp=0, D=4, DF=4, D2=5, codepf=1, spin=400000, lround=0, side=2, sidef=2, side2=3,
           ld=2, thr=5, pre=5, pfd=18, ackb=10, cprio=2, dummy=0, sch=1, tm=0, qb=0, rotq=2, spf=2, tearly=0, tB=0, tfull=0, th=6, gap=1, kc=30, kh=52, ko=64, lowp=1, tatt=0, m32=0, fp=8, u19=0, tha=6, of=0, eg=1, pfe=2, hinit=0, pb=9, n9=1, kq=135, vb2=1, pkm=1, stg=0, a47=2, crx=0, tw=0, ev0=0, own=0, nt=0, wsb=0, fpc=8, lead=8, pba=50, pbb=66)
CST = ["s0", "s2", "s4", "s6", "s8", "s10", "s12", "c_end"]
HST = ["h_b0", "h_b7", "h_p2", "h_late", "h_o", "h_own", "h_rcv", "h_sum"]
for a in sys.argv[1:]:
    k, v = a.split("=")
    if k == "cst": CST = v.split(",")
    elif k == "hst": HST = v.split(",")
    else:
        assert k in OPT, k
        OPT[k] = int(v)
STAMP = OPT["stamp"]; M = OPT["m32"]; EG = OPT["eg"]
assert EG and not M
assert not OPT["u19"] and OPT["th"] >= 0
STG = OPT["stg"]
if STG: OPT["ld"] = 8; assert OPT["vb2"]
OWN = OPT["own"]
GA_OFF = (9 << 20) + (512 << 10)
def f2u(x): return struct.unpack("<I", struct.pack("<f", x))[0]

PART_OFF = 10 << 20
INB_OFF = 32 << 20
STAMP_OFF = 33 << 20
WS_BYTES = 36 << 20
SLOT = 16384
HALO_LDS = 7 * SLOT
EXCH_LDS = 8 * SLOT
EV_LDS = EXCH_LDS + 20480
ZERO_LDS = EV_LDS + 256
GW_LDS = EV_LDS + 1024
GB_LDS = EV_LDS + 2048
NEG = f2u(-1e30)
def SEV(att): return HALO_LDS + 3 * 4096 if att else EV_LDS + 512

e = Em()
I = e.I
def vr(b, n=4): return f"v[{b}:{b+n-1}]"
def ar(b, n=4): return f"a[{b}:{b+n-1}]"
def srd(b): return f"s[{b}:{b+3}]"
MF = "v_mfma_f32_16x16x32_bf16"
M32 = "v_mfma_f32_32x32x16_bf16"

S_X, S_W, S_WS, S_OUT, S_W2, S_WO, S_GW = 24, 28, 32, 36, 40, 44, 48
S_INB = 52; S_DBG = 54
S_w, S_r, S_jj, S_rot, S_q, S_m0b, S_j1 = 60, 61, 62, 63, 64, 65, 66
S_t0, S_t1, S_t2 = 3, 67, 68
S_BUD = 69; S_EV = 70; S_SOFF = 71
S_POLL = 74; S_MYIN = 75; S_CEXP = 76; S_THR = 77; S_W4 = 79
S_KG = 80; S_WK = 84
S_COL = 88; S_A2 = 89; S_B2 = 90; S_BO = 91; S_PB = 92; S_J32 = 93; S_GIN = 94; S_P = 95
S_STAMP = 4
EVD = {}
def evd(name):
    if name not in EVD: EVD[name] = len(EVD)
    assert EVD[name] < 16
    return EVD[name] * 16
role = ["H"]
def stamp(name):
    L = CST if role[0] == "C" else HST
    if name == "end": idx = 8
    elif name in L: idx = L.index(name)
    else: return
    if STAMP == 2 and idx < 4:
        I(f"s_memtime s[{S_STAMP+2*idx}:{S_STAMP+2*idx+1}]"); I(f"s_memrealtime s[{S_STAMP+2*idx+8}:{S_STAMP+2*idx+9}]")
    elif STAMP == 3: I(f"s_memrealtime s[{S_STAMP+2*idx}:{S_STAMP+2*idx+1}]")
    elif STAMP: I(f"s_memtime s[{S_STAMP+2*idx}:{S_STAMP+2*idx+1}]")
uid = [0]
def U(p):
    uid[0] += 1
    return f"L_{p}{uid[0]}"
def reset():
    e.vmq = [[[], 0]]; e.lgq = [[[], 0]]; e.hist = []
V_L16 = 16; V_EVW = 17; V_CHK = 3
SLOW = []
def flush_slow():
    for l in SLOW: e.raw(l)
    SLOW.clear()
def spin_tail(lp, ok):
    return [f"    s_sub_u32 s{S_BUD}, s{S_BUD}, 1", f"    s_cbranch_scc0 {lp}", f"    s_mov_b32 s{S_BUD}, 0", f"    s_branch {ok}"]
def dsig(name):
    I(f"s_add_u32 m0, s{S_W4}, {EV_LDS + evd(name)}")
    I("s_mov_b64 exec, 1")
    I(f"buffer_load_dword v{V_L16}, {srd(S_WO)}, s{S_WO+2} offen lds", tag="dsig")
    I("s_mov_b64 exec, -1")
def d_read(name, tag): I(f"ds_read_b32 v{V_CHK}, v{V_EVW} offset:{evd(name)}", tag=tag)
def d_check(name, tag):
    ok = U("ok"); lp = U("sp")
    e.wait(lg=tag)
    I(f"v_cmp_ne_u32 vcc, 0, v{V_CHK}")
    I(f"s_cbranch_vccnz {lp}")
    e.label(ok)
    SLOW.extend([f"{lp}:", f"    ds_read_b32 v{V_CHK}, v{V_EVW} offset:{evd(name)}", "    s_waitcnt lgkmcnt(0)", f"    v_cmp_ne_u32 vcc, 0, v{V_CHK}",
                 f"    s_cbranch_vccz {ok}", "    s_sleep 1"] + spin_tail(lp, ok))
def throttle():
    n = OPT["thr"]
    I(f"s_waitcnt vmcnt({n})")
    for q in e.vmq: q[1] = max(q[1], len(q[0]) - n)
def poll_load():
    I(f"s_load_dword s{S_POLL}, s[{S_INB}:{S_INB+1}], s{S_MYIN} glc")
def poll_check(mask):
    ok = U("pk"); lp = U("pl")
    I(f"s_andn2_b32 s{S_EV}, {mask}, s{S_POLL}")
    I(f"s_cbranch_scc1 {lp}")
    e.label(ok)
    SLOW.extend([f"{lp}:", "    s_waitcnt lgkmcnt(0)", f"    s_andn2_b32 s{S_EV}, {mask}, s{S_POLL}", f"    s_cbranch_scc0 {ok}",
                 f"    s_load_dword s{S_POLL}, s[{S_INB}:{S_INB+1}], s{S_MYIN} glc"] + spin_tail(lp, ok))
def push_group(bit_fn, ds):
    bit_fn()
    for d in ds:
        I(f"s_xor_b32 s{S_t0}, s{S_MYIN}, {d*512}")
        I(f"s_atomic_or s{S_t2}, s[{S_INB}:{S_INB+1}], s{S_t0}")
def ownbit(b):
    def f():
        I(f"s_lshl_b32 s{S_t2}, s{S_jj}, 2"); I(f"s_lshl_b32 s{S_t2}, {1<<b}, s{S_t2}")
    return f
def mk_srd(b, p, nbytes):
    I(f"s_mov_b32 s{b}, s{p}")
    I(f"s_and_b32 s{b+1}, s{p+1}, 0xffff")
    I(f"s_mov_b32 s{b+2}, {nbytes}")
    I(f"s_mov_b32 s{b+3}, 0x20000")
def b2_voffs(dst):
    I("v_lshrrev_b32 v1, 3, v0")
    if M:
        I("v_bfe_u32 v2, v0, 4, 1")
        I("v_lshlrev_b32 v2, 2, v2")
    else:
        I("v_lshrrev_b32 v2, 4, v0")
        I("v_lshlrev_b32 v2, 1, v2")
    I(f"v_and_b32 v{dst}, 7, v0")
    I(f"v_xor_b32 v{dst}, v{dst}, v2")
    I(f"v_lshlrev_b32 v{dst}, 4, v{dst}")
    I(f"v_lshl_add_u32 v{dst}, v1, 10, v{dst}")
    for i in range(1, 4): I(f"v_add_u32 v{dst+i}, {i*7168}, v{dst}")
def late_scalars():
    I(f"s_lshl_b32 s{S_W4}, s{S_w}, 2")
    I(f"s_mov_b32 s{S_BUD}, {OPT['spin']}")
    I(f"s_and_b32 s{S_j1}, s{S_jj}, 1")
    I(f"s_lshl_b32 s{S_t0}, s{S_jj}, 8")
    I(f"s_lshr_b32 s{S_t1}, s{S_w}, 1")
    I(f"s_lshl_b32 s{S_t1}, s{S_t1}, 7")
    I(f"s_add_u32 s{S_t0}, s{S_t0}, s{S_t1}")
    I(f"s_and_b32 s{S_t1}, s{S_w}, 1")
    I(f"s_lshl_b32 s{S_t1}, s{S_t1}, 15")
    I(f"s_add_u32 s{S_t0}, s{S_t0}, s{S_t1}")
    I(f"s_mul_i32 s{S_B2}, s{S_q}, {14*32768}")
    I(f"s_add_u32 s{S_B2}, s{S_B2}, s{S_t0}")
    I(f"s_lshl_b32 s{S_BO}, s{S_q}, 17")
    I(f"s_add_u32 s{S_BO}, s{S_BO}, s{S_t0}")
    I(f"s_lshl_b32 s{S_J32}, s{S_j1}, 16")
    I(f"s_lshl_b32 s{S_t0}, s{S_r}, 2")
    I(f"s_add_u32 s{S_t0}, s{S_t0}, s{S_q}")
    I(f"s_mul_i32 s{S_A2}, s{S_t0}, {18*8192}")
    I(f"s_lshl_b32 s{S_t1}, s{S_w}, 11")
    I(f"s_add_u32 s{S_A2}, s{S_A2}, s{S_t1}")
    I(f"s_lshl_b32 s{S_MYIN}, s{S_t0}, 2")
    I(f"s_add_u32 s{S_MYIN}, s{S_MYIN}, s{S_jj}")
    I(f"s_lshl_b32 s{S_MYIN}, s{S_MYIN}, 2")
    I(f"s_add_u32 s{S_MYIN}, s{S_MYIN}, s{S_w}")
    I(f"s_lshl_b32 s{S_MYIN}, s{S_MYIN}, 7")
    I(f"v_lshlrev_b32 v{V_L16}, 4, v0")
    I(f"v_and_b32 v{V_EVW}, 3, v0")
    I(f"v_lshlrev_b32 v{V_EVW}, 2, v{V_EVW}")
    I(f"v_add_u32 v{V_EVW}, {EV_LDS}, v{V_EVW}")
def common_ptrs():
    if OPT["wsb"]:
        I(f"s_add_u32 s22, s22, {OPT['wsb'] << 20}")
        I("s_addc_u32 s23, s23, 0")
    I(f"s_add_u32 s{S_INB}, s22, {INB_OFF}")
    I(f"s_addc_u32 s{S_INB+1}, s23, 0")
    I(f"s_lshl_b32 s{S_t0}, s{S_r}, 4")
    I(f"s_add_u32 s{S_DBG}, s20, s{S_t0}")
    I(f"s_addc_u32 s{S_DBG+1}, s21, 0")
    mk_srd(S_WS, 22, WS_BYTES)
    mk_srd(S_W2, 14, 1792 * 1024)
    mk_srd(S_WO, 8, 512 * 1024)
def dma4(voff, srdb, tag):
    for i in range(4):
        nt = " nt" if ((OPT["nt"] & 1 and srdb == S_W) or (OPT["nt"] & 2 and srdb == S_X) or (OPT["nt"] & 4 and srdb in (S_W2, S_WO))) else ""
        I(f"buffer_load_dwordx4 v{voff+i}, {srd(srdb)}, s{S_SOFF} offen offset:{i*1024}{nt} lds", tag=tag)
def b2_unit(g, voff, sig=True):
    I(f"s_add_u32 m0, s{S_m0b}, {g*SLOT}")
    if g < 6 and OWN:
        I(f"s_xor_b32 s{S_SOFF}, s{S_J32}, {g*65536}"); I(f"s_add_u32 s{S_SOFF}, s{S_SOFF}, s{S_B2}")
    elif g < 7: I(f"s_add_u32 s{S_SOFF}, s{S_B2}, {g*65536}")
    else:
        I(f"s_xor_b32 s{S_SOFF}, s{S_J32}, {((g-7)^1)*65536}")
        I(f"s_add_u32 s{S_SOFF}, s{S_SOFF}, s{S_BO}")
    dma4(voff, S_W2 if g < 7 else S_WO, f"b{g}")
    if sig: dsig(f"Lb{g}")
def a2_soff(lam, dst):
    if lam < 12 and OWN:
        I(f"s_lshr_b32 s{dst}, s{S_J32}, 2"); I(f"s_xor_b32 s{dst}, s{dst}, {lam*8192}"); I(f"s_add_u32 s{dst}, s{dst}, s{S_A2}")
    elif lam < 14: I(f"s_add_u32 s{dst}, s{S_A2}, {lam*8192}")
    else:
        I(f"s_lshr_b32 s{dst}, s{S_J32}, 2"); I(f"s_xor_b32 s{dst}, s{dst}, {((lam-14)^2)*8192}")
        I(f"s_add_u32 s{dst}, s{dst}, s{S_A2}"); I(f"s_add_u32 s{dst}, s{dst}, {14*8192}")
def after_karg():
    I("s_waitcnt lgkmcnt(0)")
    if STAMP:
        I("s_memrealtime s[100:101]" if STAMP == 3 else "s_memtime s[100:101]")
        I("s_mov_b32 s72, s96")
        I("s_mov_b32 s73, s98")
def finish():
    if STAMP:
        I("s_waitcnt vmcnt(0)")
        stamp("end")
        I("s_memrealtime s[22:23]")
        I("s_waitcnt lgkmcnt(0)")
        I(f"s_lshl_b32 s{S_t0}, s2, 3")
        I(f"s_add_u32 s{S_t0}, s{S_t0}, s{S_w}")
        if role[0] == "H": I(f"s_add_u32 s{S_t0}, s{S_t0}, 4")
        I(f"s_lshl_b32 s{S_t0}, s{S_t0}, 6")
        I(f"s_add_u32 s{S_t0}, s{S_t0}, {STAMP_OFF}")
        I(f"v_mov_b32 v2, s{S_t0}")
        for k in range(9): I(f"v_mov_b32 v{32+k}, s{S_STAMP+2*k}")
        I("v_mov_b32 v41, s73"); I("v_mov_b32 v42, s22"); I("v_mov_b32 v43, s72"); I("v_mov_b32 v44, s100")
        I(f"v_mov_b32 v45, s{S_BUD}"); I("v_mov_b32 v46, 0")
        I("s_mov_b64 exec, 1")
        for k in range(4): I(f"buffer_store_dwordx4 {vr(32+4*k)}, v2, {srd(S_WS)}, 0 offen offset:{16*k}")
    if STAMP >= 3:
        if OPT["padk"] >= 0 and (OPT["padr"] == 1) == (role[0] == "H"):
            I(f"s_sub_u32 s24, s{100 if OPT['padk'] == 9 else S_STAMP+2*OPT['padk']}, s{73 if STAMP == 3 else 72}")
            if STAMP == 4: I("s_lshr_b32 s24, s24, 4")
        else: I("s_mov_b32 s24, 0")
        I(f"s_add_u32 s24, s24, {OPT['padt']}")
        l = U("pad")
        e.label(l)
        I("s_memrealtime s[26:27]"); I("s_waitcnt lgkmcnt(0)"); I("s_sub_u32 s25, s26, s73"); I("s_cmp_lt_u32 s25, s24"); I(f"s_cbranch_scc1 {l}")
    I("s_endpgm")
    flush_slow()
def units(att):
    L = []
    for u in range(4): L += [("x", u, 0), ("x", u, 1), ("g", 0, u), ("g", 1, u)]
    L += [("g", 2, u) for u in range(4)]
    if not att: L += [("g", 3, 0), ("g", 3, 1)]
    return L
def phys(att, k):
    if not att: return (k - 14) % 9
    if OPT["n9"]: return {2: 0, 3: 8, 4: 9, 5: 1, 6: 2, 7: 3, 8: 4, 0: 5, 1: 6}[k % 9]
    i = (k - 13) % 8
    return 8 if i == 7 else i
QSLOT = 0
SIGG = (2, 3, 4, 6, 7)
CHKG = {2: 2, 3: 3, 4: 4, 5: 6, 6: 6, 8: 7, 7: 7}

class Stream:
    def __init__(self, steps, depth, ring):
        self.steps = steps; self.side = []; self.after = {}; self.D = depth; self.ring = ring
        assert len(ring) >= depth + 2
    def add(self, ready, deadline, fns):
        for f in fns: self.side.append([ready, deadline, f])
    def aft(self, k, f):
        prev = self.after.get(k)
        self.after[k] = (lambda: (prev(), f())) if prev else f
    def issue(self, k, half):
        st = self.steps[k]
        b = self.ring[k % len(self.ring)]
        a, off, d2 = st["rd"]
        if half == 0:
            if "pre" in st: st["pre"]()
            I(f"ds_read_b64_tr_b16 {vr(b,2)}, v{a} offset:{off}", tag=f"w{k}")
        else:
            I(f"ds_read_b64_tr_b16 {vr(b+2,2)}, v{a} offset:{off+d2}", tag=f"w{k}")
            if "post" in st: st["post"](k)
    def pump(self, k, n):
        c = 0
        while self.side and c < n and self.side[0][0] <= k:
            r = self.side.pop(0)[2]()
            c += r if isinstance(r, int) else 1
    def run(self, rate):
        n = len(self.steps); D = self.D
        for k in range(min(D, n)):
            self.issue(k, 0); self.issue(k, 1)
        for k in range(n):
            st = self.steps[k]
            while any(s[1] <= k for s in self.side): self.side.pop(0)[2]()
            if "need" in st: st["need"]()
            if k % 2 == 0 and k + 1 < n: e.wait(lg=f"w{k+1}")
            e.wait(lg=f"w{k}")
            mfs = st["mf"](vr(self.ring[k % len(self.ring)]), st)
            I(mfs[0])
            if k + D < n: self.issue(k + D, 0)
            if len(mfs) > 1:
                self.pump(k, (rate + 1) // 2)
                I(mfs[1])
            if k + D < n: self.issue(k + D, 1)
            for m in mfs[2:]: I(m)
            self.pump(k, rate // 2 if len(mfs) > 1 else rate)
            if k in self.after: self.after[k]()
            stamp(f"k{k}")
        while self.side: self.side.pop(0)[2]()
def cost(n, f):
    def g():
        f(); return n
    return g

def vtouch(att, dst=22):
    P = 3072 if att else 3584; wp = 6 if att else 12
    if dst == 22: mk_srd(S_W, wp, 512 * P)
    I(f"s_lshl_b32 s{S_t0}, s{S_r}, 2"); I(f"s_add_u32 s{S_t0}, s{S_t0}, s{S_w}")
    I(f"s_mul_i32 s{S_t1}, s{S_t0}, {8*P}")
    I(f"s_mul_i32 s{S_t2}, s{S_q}, {256 if att else 896}"); I(f"s_add_u32 s{S_t1}, s{S_t1}, s{S_t2}")
    I("v_and_b32 v1, 7, v0"); I(f"v_mul_u32_u24 v1, {P}, v1")
    I(f"s_lshl_b32 s{S_t2}, s{S_j1}, 7"); I(f"s_add_u32 s{S_t2}, s{S_t2}, s{S_t1}")
    I("v_lshlrev_b32 v2, 7, v0")
    I("s_mov_b64 exec, 0xff")
    I(f"buffer_load_dword v{dst}, v1, {srd(S_W)}, s{S_t2} offen offset:{2048 if att else 512}")
    if OPT["tB"]: I(f"buffer_load_dword v{dst}, v1, {srd(S_W)}, s{S_t2} offen offset:{0 if att else 256}")
    if not att:
        I(f"s_mul_i32 s{S_t2}, s{S_j1}, {4*P}"); I(f"s_add_u32 s{S_t2}, s{S_t2}, s{S_t1}")
        I("s_mov_b64 exec, 0xf")
        I(f"buffer_load_dword v{dst}, v1, {srd(S_W)}, s{S_t2} offen offset:768")
    I(f"s_lshl_b32 s{S_t0}, s{S_t0}, 2"); I(f"s_add_u32 s{S_t0}, s{S_t0}, s{S_jj}")
    F_ = 2 if OPT["tfull"] else 1
    if OPT["tfull"]: I(f"s_and_b32 s{S_t0}, s{S_t0}, 127"); I(f"s_lshl_b32 s{S_t0}, s{S_t0}, 1")
    I(f"s_mul_i32 s{S_t1}, s{S_t0}, 1792"); I(f"s_mul_i32 s{S_t2}, s{S_q}, {448*1024}"); I(f"s_add_u32 s{S_t1}, s{S_t1}, s{S_t2}")
    I(f"s_mov_b64 exec, {(1 << (14*F_)) - 1}")
    I(f"buffer_load_dword v{dst}, v2, {srd(S_W2)}, s{S_t1} offen")
    I(f"s_lshl_b32 s{S_t1}, s{S_t0}, 9"); I(f"s_lshl_b32 s{S_t2}, s{S_q}, 17"); I(f"s_add_u32 s{S_t1}, s{S_t1}, s{S_t2}")
    I(f"s_mov_b64 exec, {(1 << (4*F_)) - 1}")
    I(f"buffer_load_dword v{dst}, v2, {srd(S_WO)}, s{S_t1} offen")
    I("s_mov_b64 exec, -1")
def gate_math(z0, z1, G, tmp):
    T = [f"v_cvt_pk_bf16_f32 v{tmp}, v{z0}, v{z1}", f"v_lshlrev_b32 v{G}, 16, v{tmp}", f"v_and_b32 v{G+2}, 0xffff0000, v{tmp}"]
    T += [f"v_mul_f32 v{G+2*p}, {f2u(-1.4426950408889634)}, v{G+2*p}" for p in range(2)]
    T += [f"v_exp_f32 v{G+2*p}, v{G+2*p}" for p in range(2)]
    T += [f"v_add_f32 v{G+2*p}, 1.0, v{G+2*p}" for p in range(2)]
    T += [f"v_rcp_f32 v{G+2*p}, v{G+2*p}" for p in range(2)]
    T += [f"v_cvt_pk_bf16_f32 v{tmp}, v{G}, v{G+2}", f"v_lshlrev_b32 v{G}, 16, v{tmp}", f"v_and_b32 v{G+2}, 0xffff0000, v{tmp}"]
    T += [f"v_sub_f32 v{G+1+2*p}, 1.0, v{G+2*p}" for p in range(2)]
    T += [f"v_cvt_pk_bf16_f32 v{tmp}, v{G+1}, v{G+3}", f"v_lshlrev_b32 v{G+1}, 16, v{tmp}", f"v_and_b32 v{G+3}, 0xffff0000, v{tmp}"]
    T += [f"v_max_f32 v{G+2*p}, {f2u(2.0**-60)}, v{G+2*p}" for p in range(2)]
    T += [f"v_rcp_f32 v{G+4+p}, v{G+2*p}" for p in range(2)]
    T += [f"v_mul_f32 v{G+1+2*p}, v{G+4+p}, v{G+1+2*p}" for p in range(2)]
    return T
def out_addr():
    I(f"s_mul_i32 s{S_GIN}, s{S_q}, {3*8192}")
    I(f"s_add_u32 s{S_GIN}, s{S_GIN}, s{S_PB}")
    if M:
        I("v_bfe_u32 v5, v0, 4, 1")
        I("v_lshlrev_b32 v6, 3, v5")
        I("v_xor_b32 v6, 8, v6")
        I("v_and_b32 v4, 15, v0")
        I("v_xor_b32 v4, v4, v6")
        I("v_lshl_add_u32 v4, v4, 1, v5")
        I("v_lshrrev_b32 v5, 5, v0")
        I("v_lshlrev_b32 v5, 4, v5")
        I("v_lshl_add_u32 v4, v4, 10, v5")
    else:
        I("v_and_b32 v4, 15, v0")
        I("v_bfe_u32 v6, v0, 4, 1")
        I("v_lshlrev_b32 v6, 5, v6")
        I("v_lshrrev_b32 v7, 5, v0")
        I("v_lshl_add_u32 v6, v7, 4, v6")
        I("v_lshl_add_u32 v5, v4, 11, v6")
        I("v_xor_b32 v4, 0x4000, v5")
    I(f"s_lshl_b32 s{S_COL}, s{S_r}, 17"); I(f"s_lshl_b32 s{S_t1}, s{S_w}, 15"); I(f"s_add_u32 s{S_COL}, s{S_COL}, s{S_t1}")
    I(f"s_lshl_b32 s{S_t1}, s{S_jj}, 8"); I(f"s_add_u32 s{S_COL}, s{S_COL}, s{S_t1}")
    I(f"s_lshl_b32 s{S_t1}, s{S_q}, 6"); I(f"s_add_u32 s{S_COL}, s{S_COL}, s{S_t1}")
def pb_setup():
    I(f"s_lshl_b32 s{S_PB}, s{S_r}, 2"); I(f"s_add_u32 s{S_PB}, s{S_PB}, s{S_jj}")
    I(f"s_mul_i32 s{S_PB}, s{S_PB}, {12*8192}")
    I(f"s_lshl_b32 s{S_t0}, s{S_w}, 11"); I(f"s_add_u32 s{S_PB}, s{S_PB}, s{S_t0}"); I(f"s_add_u32 s{S_PB}, s{S_PB}, {PART_OFF}")
def vtouch2():
    I(f"s_lshl_b32 s{S_t0}, s{S_r}, 2"); I(f"s_add_u32 s{S_t0}, s{S_t0}, s{S_w}")
    I(f"s_lshl_b32 s{S_t0}, s{S_t0}, 1"); I(f"s_add_u32 s{S_t0}, s{S_t0}, s{S_j1}")
    I("v_lshlrev_b32 v2, 7, v0")
    I(f"s_mul_i32 s{S_t1}, s{S_t0}, 3584"); I(f"s_mul_i32 s{S_t2}, s{S_q}, {448*1024}"); I(f"s_add_u32 s{S_t1}, s{S_t1}, s{S_t2}")
    I(f"s_mov_b64 exec, {(1 << 28) - 1}")
    I(f"buffer_load_dword v{30 if M else 18}, v2, {srd(S_W2)}, s{S_t1} offen")
    I(f"s_lshl_b32 s{S_t1}, s{S_t0}, 10"); I(f"s_lshl_b32 s{S_t2}, s{S_q}, 17"); I(f"s_add_u32 s{S_t1}, s{S_t1}, s{S_t2}")
    I("s_mov_b64 exec, 0xff")
    I(f"buffer_load_dword v{30 if M else 18}, v2, {srd(S_WO)}, s{S_t1} offen")
    I("s_mov_b64 exec, -1")
HDR = """; gated_mix: out = g * (attn(x) @ wo) + (1 - g) * (relu(x @ w1) @ w2),  g = sigmoid(x . gate_w)
; Kernarg (ptrs): 0 A_x, 8 A_wqkv, 16 A_wo, 24 B_x (unused), 32 B_w1, 40 B_w2, 48 gate_w, 56 out, 64 debug, 72 ws
; One persistent launch, 256 workgroups (one per CU) x 8 waves.  Workgroup = (row block r of 128 rows, q, jj):
;            waves 0-3 run the MFMA stream, waves 4-7 feed LDS by DMA (and do the softmax).
;   phase 2: waves 4-7 multiply the K-quarter q of [h | o] with [w2 ; wo][:, 128 cols]; the four q partial sums are
;            exchanged through ws (write-through stores, flag bits in per-wave inbox words reset at launch start,
;            arrival counter in debug).  Every spin is bounded; s_sleep appears only as back-off inside those spins.
; Generated by a script (straight-line schedule, wait states and counters tracked by the generator).
"""
e.raw(HDR + "; @launch grid=(256,1,1) block=(512,1,1) lds=163840")
e.raw('.amdgcn_target "amdgcn-amd-amdhsa--gfx950"')
e.raw(".text")
e.raw(f".globl {NAME}_kernel")
e.raw(".p2align 8")
e.raw(f".type {NAME}_kernel,@function")
e.label(f"{NAME}_kernel")
I("s_load_dwordx16 s[4:19], s[0:1], 0")
I("s_load_dwordx4 s[20:23], s[0:1], 64")
if STAMP:
    I("s_memrealtime s[98:99]")
    I("s_memtime s[96:97]")
if OPT["codepf"] and OPT["pfe"] == 2:
    I("s_getpc_b64 s[56:57]")
    e.label("L_pc")
    I("v_lshrrev_b32 v1, 5, v0")
    I("v_and_b32 v2, 1, v0")
    I("v_add_u32 v2, v2, v1")
    I(f"s_bfe_u32 s{S_t0}, s2, 0x50003")
    I(f"s_lshl_b32 s{S_t0}, s{S_t0}, 4")
    I(f"v_add_lshl_u32 v2, v2, s{S_t0}, 7")
    I("v_min_u32 v2, L_end-L_pc, v2")
    I("s_mov_b64 exec, 3")
    I("global_load_dword v127, v2, s[56:57]")
    I("s_mov_b64 exec, -1")
if OPT["codepf"] and OPT["pfe"] == 1:
    I("s_cmp_lt_u32 s2, 8")
    I("s_cbranch_scc0 L_nopf")
    e.cond_begin()
    I("s_getpc_b64 s[56:57]")
    e.label("L_pc")
    I("v_lshlrev_b32 v2, 7, v0")
    I("v_min_u32 v2, L_end-L_pc, v2")
    I("global_load_dword v127, v2, s[56:57]")
    e.cond_end()
    e.label("L_nopf")
I("v_lshrrev_b32 v1, 6, v0")
I("s_cmp_ge_u32 s2, 256")
I("s_cbranch_scc1 L_end")
I(f"v_readfirstlane_b32 s{S_t2}, v1")
I("v_and_b32 v0, 63, v0")
I(f"s_bfe_u32 s{S_q}, s2, 0x20001")
I(f"s_and_b32 s{S_t0}, s2, 1")
I(f"s_lshl_b32 s{S_t0}, s{S_t0}, 3")
I(f"s_bfe_u32 s{S_r}, s2, 0x30003")
I(f"s_or_b32 s{S_r}, s{S_r}, s{S_t0}")
I(f"s_lshr_b32 s{S_jj}, s2, 6")
if OPT["rotq"] == 2:
    I(f"s_lshr_b32 s{S_rot}, s{S_t0}, 2")
    I(f"s_add_u32 s{S_rot}, s{S_rot}, s{S_q}")
    I(f"s_and_b32 s{S_t0}, s{S_r}, 1")
    I(f"s_add_u32 s{S_rot}, s{S_rot}, s{S_t0}")
elif OPT["rotq"]: I(f"s_add_u32 s{S_rot}, s{S_r}, s{S_q}")
else: I(f"s_mov_b32 s{S_rot}, s{S_r}")
I(f"s_and_b32 s{S_w}, s{S_t2}, 3")
I(f"s_lshl_b32 s{S_m0b}, s{S_w}, 12")
I(f"s_cmp_lt_u32 s{S_t2}, 4")
I("s_cbranch_scc1 L_C")

H_XD = 4; H_WD = 8; H_BD = 12; H_ACC = 64
H_G = 18 if M else 20; H_BR = 20 if M else 24
H_RING = [32, 36, 40, 44, 48, 52, 24, 28] if M else [32, 36, 40, 44, 48, 52, 12]
def a2r(lam, p):
    if lam < 16: return ar(lam * 8 + p * 4)
    return vr((56 if lam == 16 else 4) + p * 4)
I("s_setprio 3")
I("v_lshrrev_b32 v32, 4, v0")
I("v_lshrrev_b32 v36, 3, v0")
I("v_and_b32 v37, 7, v0")
I("v_xor_b32 v39, v37, v32")
I("v_lshlrev_b32 v39, 4, v39")
I(f"v_lshl_add_u32 v{H_XD}, v36, 11, v39")
I(f"v_xor_b32 v{H_XD+1}, 64, v{H_XD}")
I(f"v_add_u32 v{H_XD+2}, {14*1024}, v{H_XD+1}")
I(f"v_add_u32 v{H_XD+3}, {14*1024}, v{H_XD}")
I(f"s_lshl_b32 s{S_t0}, s{S_r}, 17")
I(f"s_lshl_b32 s{S_t1}, s{S_w}, 15")
I(f"s_add_u32 s{S_t0}, s{S_t0}, s{S_t1}")
for g4 in range(4):
    I(f"s_add_u32 s{S_WK+g4}, s{S_rot}, {g4}")
    I(f"s_and_b32 s{S_WK+g4}, s{S_WK+g4}, 3")
    I(f"s_lshl_b32 s{S_KG+g4}, s{S_WK+g4}, 8")
    I(f"s_add_u32 s{S_KG+g4}, s{S_KG+g4}, s{S_t0}")
I(f"s_mov_b32 s{S_X+2}, {2048*1024}")
I(f"s_mov_b32 s{S_X+3}, 0x20000")
assert phys(False, 1) == phys(False, 0) + 1 and phys(True, 1) == phys(True, 0) + 1
I(f"s_cmp_ge_u32 s{S_jj}, 2")
I(f"s_cselect_b32 s{S_t2}, {phys(True,0)}, {phys(False,0)}")
I(f"s_cselect_b32 s{S_EV}, {phys(True,2)}, {phys(False,2)}")
I(f"s_mov_b32 s{S_W+2}, {512*3584}")
I(f"s_cmov_b32 s{S_W+2}, {512*3072}")
I(f"s_mov_b32 s{S_P}, 3584")
I(f"s_cmov_b32 s{S_P}, 3072")
if OPT["ev0"]:
    assert OPT["n9"]
    I(f"s_mov_b32 s{S_W4}, {SEV(False)}")
    I(f"s_cmov_b32 s{S_W4}, {SEV(True)}")
    I(f"v_lshl_add_u32 v1, v37, 2, s{S_W4}")
    I("ds_write_b32 v1, v1")
I(f"s_lshl_b32 s{S_t2}, s{S_t2}, 14")
I(f"s_add_u32 s{S_t2}, s{S_t2}, s{S_m0b}")
I(f"s_mov_b32 m0, s{S_t2}")
I(f"s_add_u32 s{S_SOFF}, s{S_KG}, 128")
after_karg()
if OPT["tw"] & 1:
    I(f"s_load_dword s{S_BUD}, s[6:7], 0")
    I(f"s_load_dword s{S_BUD}, s[12:13], 0")
I(f"s_mov_b32 s{S_X}, s4")
I(f"s_and_b32 s{S_X+1}, s5, 0xffff")
for i in range(4): I(f"buffer_load_dwordx4 v{H_XD+i}, {srd(S_X)}, s{S_KG} offen offset:{i*1024}{' nt' if OPT['nt'] & 2 else ''} lds", tag="u0")
I(f"s_add_u32 m0, s{S_t2}, {SLOT}")
I(f"s_mov_b32 s{S_W+3}, 0x20000")
dma4(H_XD, S_X, "u1")
I(f"s_lshl_b32 s{S_t0}, s{S_w}, 5")
I(f"v_add_u32 v38, s{S_t0}, v36")
I(f"v_mul_lo_u32 v38, v38, s{S_P}")
I(f"s_mul_i32 s{S_COL}, s{S_q}, 896")
I(f"s_lshl_b32 s{S_t0}, s{S_q}, 8")
I(f"s_add_u32 s{S_t0}, s{S_t0}, {1024-256}")
I(f"s_cmp_ge_u32 s{S_jj}, 2")
I(f"s_cselect_b32 s{S_W}, s6, s12")
I(f"s_cselect_b32 s{S_W+1}, s7, s13")
I(f"s_cselect_b32 s{S_COL}, s{S_t0}, s{S_COL}")
I(f"s_cselect_b32 s{S_t0}, 1, {2 if M else 1}")
I(f"s_cselect_b32 s{S_t1}, 64, {0 if M else 64}")
I(f"s_and_b32 s{S_W+1}, s{S_W+1}, 0xffff")
I("v_and_b32 v39, 1, v32")
I(f"v_lshlrev_b32 v39, s{S_t0}, v39")
I("v_xor_b32 v39, v39, v37")
I("v_lshlrev_b32 v39, 4, v39")
I(f"v_add_u32 v{H_WD}, v38, v39")
I(f"v_xor_b32 v39, s{S_t1}, v39")
I(f"s_lshl_b32 s{S_t0}, s{S_P}, 3")
I(f"s_sub_u32 s{S_t0}, s{S_t0}, 1024")
I(f"v_add3_u32 v{H_WD+1}, v38, v39, s{S_t0}")
I(f"s_lshl_b32 s{S_t0}, s{S_t0}, 1")
I(f"v_add_u32 v{H_WD+2}, s{S_t0}, v{H_WD}")
I(f"v_add_u32 v{H_WD+3}, s{S_t0}, v{H_WD+1}")
I(f"s_lshl_b32 s{S_t0}, s{S_jj}, 7")
I(f"s_add_u32 s{S_COL}, s{S_COL}, s{S_t0}")
I(f"s_lshl_b32 s{S_t1}, s{S_P}, 7")
for g4 in range(4): I(f"s_mul_i32 s{S_WK+g4}, s{S_WK+g4}, s{S_t1}")
I(f"s_lshl_b32 s{S_EV}, s{S_EV}, 14")
I(f"s_add_u32 m0, s{S_EV}, s{S_m0b}")
I(f"s_add_u32 s{S_SOFF}, s{S_WK}, s{S_COL}")
dma4(H_WD, S_W, "u2")
common_ptrs()
mk_srd(S_OUT, 18, 2048 * 1024)
mk_srd(S_GW, 16, 1024)
I(f"s_cmp_ge_u32 s{S_jj}, 2")
I("s_cbranch_scc1 L_h_att")
snapH = e.snapshot()

def h_prog(att):
    e.restore(snapH); e.hist = []
    UL = units(att)
    CH = [0, -1024, 1024] if att else [0, 256, 512]
    def issue(k):
        un = UL[k]
        I(f"s_add_u32 m0, s{S_m0b}, {phys(att,k)*SLOT}")
        if un[0] == "x":
            I(f"s_add_u32 s{S_SOFF}, s{S_KG+un[1]}, {un[2]*128}")
            dma4(H_XD, S_X, f"u{k}")
            if att and un[2] == 1: halo(un[1], f"u{k}")
            return
        _, c, u = un
        if c < 3:
            I(f"s_add_u32 s{S_SOFF}, s{S_WK+u}, s{S_COL}")
            if CH[c]: I(f"s_add_i32 s{S_SOFF}, s{S_SOFF}, {CH[c]}")
        else:
            KH = 256 * 3584
            if u == 0:
                I("v_lshrrev_b32 v2, 2, v0")
                if M:
                    I("v_lshrrev_b32 v1, 4, v0")
                    I("v_xor_b32 v2, v2, v1")
                I("v_and_b32 v2, 1, v2")
                I(f"v_mul_u32_u24 v1, {KH-64}, v2")
                for i in (0, 2): I(f"v_add_u32 v{H_WD+i}, v{H_WD+i}, v1")
                if not M: I(f"v_sub_u32 v1, {KH-64}, v1")
                for i in (1, 3): I(f"v_add_u32 v{H_WD+i}, v{H_WD+i}, v1")
                I(f"v_mul_u32_u24 v2, {2*KH}, v2")
                I(f"v_sub_u32 v{H_XD}, {KH}, v2")
                I(f"s_cmp_ge_u32 s{S_WK}, {KH}")
                I(f"s_cselect_b32 s{S_t0}, 1, 0")
            else:
                I(f"s_cmp_ge_u32 s{S_WK}, {KH}")
                I(f"s_cselect_b32 s{S_t1}, 1, 0")
                I(f"s_cmp_ge_u32 s{S_WK+1}, {KH}")
                I(f"s_cselect_b32 s{S_t0}, 1, 0")
                I(f"s_sub_u32 s{S_t0}, s{S_t0}, s{S_t1}")
            I(f"s_sub_u32 s{S_t1}, 0, s{S_t0}")
            for i in range(4): I(f"v_mad_i32_i24 v{H_WD+i}, v{H_XD}, s{S_t0 if (M or i % 2 == 0) else S_t1}, v{H_WD+i}")
            I(f"s_min_u32 s{S_SOFF}, s{S_WK+u}, s{S_WK+u+2}")
            I(f"s_add_u32 s{S_SOFF}, s{S_SOFF}, s{S_COL}")
            I(f"s_lshl_b32 s{S_t0}, s{S_jj}, 6")
            I(f"s_sub_u32 s{S_SOFF}, s{S_SOFF}, s{S_t0}")
            I(f"s_add_u32 s{S_SOFF}, s{S_SOFF}, 768")
        dma4(H_WD, S_W, f"u{k}")
    def w0(f):
        l = U("w0")
        I(f"s_cmp_eq_u32 s{S_w}, 0"); I(f"s_cbranch_scc0 {l}")
        e.cond_begin(); f(); e.cond_end(); e.label(l)
    def peer_issue(): w0(lambda: I(f"s_load_dword s{S_POLL}, s[{S_DBG}:{S_DBG+1}], 0 glc"))
    def peer():
        def f():
            lp = U("pp"); ok = U("po")
            I("s_waitcnt lgkmcnt(0)")
            I(f"s_cmp_ge_u32 s{S_POLL}, 16")
            I(f"s_cbranch_scc0 {lp}")
            e.label(ok)
            SLOW.extend([f"{lp}:", "    s_sleep 8", f"    s_load_dword s{S_POLL}, s[{S_DBG}:{S_DBG+1}], 0 glc", "    s_waitcnt lgkmcnt(0)",
                         f"    s_cmp_ge_u32 s{S_POLL}, 16", f"    s_cbranch_scc1 {ok}"] + spin_tail(lp, ok))
        w0(f)
        I(f"s_mov_b32 s{S_POLL}, 0")
    V_Q = 64; V_S = 96; V_BIAS = 32; V_RINV = 40; V_T = 48; A_KV = 64; A_ONES = 96; V_AD = 24 if M else 56
    def att_setup(part):
        if part == 0:
            I(f"s_add_u32 s{S_t0}, s{S_m0b}, {EXCH_LDS+4096}")
            I(f"v_add_u32 v{V_AD}, s{S_t0}, v{V_L16}")
            I("v_bfe_u32 v1, v0, 3, 1")
            I("v_lshlrev_b32 v1, 12, v1")
            I(f"v_sub_u32 v{V_AD+2}, v{V_AD}, v1")
            I("v_xor_b32 v1, 4096, v1")
            I(f"v_sub_u32 v{V_AD+1}, v{V_AD}, v1")
            I("v_lshrrev_b32 v1, 5, v0")
            I("v_lshlrev_b32 v1, 12, v1")
            I(f"v_sub_u32 v{V_AD+4}, v{V_AD}, v1")
            I("v_xor_b32 v1, 4096, v1")
            I(f"v_sub_u32 v{V_AD+3}, v{V_AD}, v1")
            I(f"v_add_u32 v{V_AD+5}, {(QSLOT*SLOT - EXCH_LDS - 4096) & 0xffffffff}, v{V_AD}")
            I(f"s_mov_b32 s{S_CEXP}, {f2u(0.25*1.4426950408889634)}")
            I(f"s_or_b32 s{S_t0}, s{S_r}, s{S_w}")
            I(f"s_cmp_eq_u32 s{S_t0}, 0")
            I(f"s_cselect_b32 s{S_THR}, -16, -9")
            I(f"v_mov_b32 v{V_T}, 0x3f803f80")
            for k in range(4): I(f"v_accvgpr_write_b32 a{A_ONES+k}, v{V_T}")
            I(f"v_mov_b32 v{V_T}, {NEG}")
            I(f"v_and_b32 v{V_T+1}, 15, v0")
            I(f"v_lshrrev_b32 v{V_T+2}, 4, v0")
            I(f"v_lshlrev_b32 v{V_T+2}, 2, v{V_T+2}")
        elif part in (1, 2):
            p = part - 1; x8 = 8 if p == 0 else 0
            I(f"v_xor_b32 v{V_T+3}, {x8}, v{V_T+1}")
            I(f"v_xor_b32 v{V_T+4}, {x8}, v{V_T+2}")
            I(f"v_sub_u32 v{V_T+3}, v{V_T+3}, v{V_T+4}")
            for r in range(4):
                I(f"v_subrev_u32 v{V_T+4}, {r}, v{V_T+3}")
                I(f"v_cmp_lt_u32 vcc, 7, v{V_T+4}")
                I(f"v_cmp_lt_i32 s[56:57], s{S_THR}, v{V_T+4}")
                I("s_and_b64 vcc, vcc, s[56:57]")
                I(f"v_cndmask_b32 v{V_BIAS+p*4+r}, 0, v{V_T}, vcc")
        else:
            for k in range(16): I(f"v_mov_b32 v{V_Q+16*(part-3)+k}, 0")
            I("s_mov_b32 s56, 0xff00ff00"); I("s_mov_b32 s57, 0xff00ff00")
            I("s_not_b64 s[58:59], s[56:57]")
    def br_setup():
        if M:
            I("v_bfe_u32 v1, v0, 2, 2")
            I("v_lshrrev_b32 v2, 5, v0")
            I("v_lshl_add_u32 v1, v2, 2, v1")
            I("v_lshlrev_b32 v1, 7, v1")
            I("v_bfe_u32 v2, v0, 4, 1")
            I("v_lshl_add_u32 v1, v2, 5, v1")
            I("v_bfe_u32 v2, v0, 3, 1")
            I("v_lshl_add_u32 v1, v2, 6, v1")
        else:
            I("v_lshrrev_b32 v1, 2, v0")
            I("v_bfe_u32 v2, v0, 3, 2")
            I("v_lshlrev_b32 v1, 7, v1")
            I("v_lshl_add_u32 v1, v2, 5, v1")
        I("v_and_b32 v2, 3, v0")
        I("v_lshl_add_u32 v1, v2, 3, v1")
        I(f"s_lshr_b32 s{S_t0}, s{S_q}, 1")
        I(f"s_lshl_b32 s{S_t0}, s{S_t0}, 13")
        I(f"s_and_b32 s{S_t1}, s{S_q}, 1")
        I(f"s_lshl_b32 s{S_t1}, s{S_t1}, 6")
        I(f"s_or_b32 s{S_t0}, s{S_t0}, s{S_t1}")
        I(f"v_xor_b32 v1, s{S_t0}, v1")
        for tau in range(4):
            cb = 3 - tau
            if M: I(f"v_xor_b32 v{H_BR+tau}, {(cb>>1)*8192 + (cb&1)*64}, v1")
            else:
                for tt in range(2): I(f"v_xor_b32 v{H_BR+2*tau+tt}, {(cb>>1)*8192 + (cb&1)*64 + tt*32}, v1")
        I(f"s_lshl_b32 s{S_PB}, s{S_r}, 2"); I(f"s_add_u32 s{S_PB}, s{S_PB}, s{S_jj}")
        I(f"s_mul_i32 s{S_PB}, s{S_PB}, {12*8192}")
        I(f"s_lshl_b32 s{S_t0}, s{S_w}, 11"); I(f"s_add_u32 s{S_PB}, s{S_PB}, s{S_t0}"); I(f"s_add_u32 s{S_PB}, s{S_PB}, {PART_OFF}")
    V_HV = 31 if M else 19
    def halo(u, tag):
        I(f"s_lshr_b32 s{S_t0}, s{S_m0b}, 2")
        I(f"s_add_u32 m0, s{S_t0}, {HALO_LDS + u*4096}")
        I(f"s_and_b32 s{S_t0}, s{S_KG+u}, 0x300")
        I(f"buffer_load_dwordx4 v{V_HV}, {srd(S_X)}, s{S_t0} offen lds", tag=tag)
    if att:
        I(f"s_and_b32 s{S_t1}, s{S_w}, 1")
        I(f"s_mul_i32 s{S_t1}, s{S_t1}, {1024+64}")
        I(f"v_xor_b32 v{V_HV}, s{S_t1}, v{H_XD}")
        I(f"s_lshl_b32 s{S_t0}, s{S_r}, 17")
        I(f"s_sub_u32 s{S_t0}, s{S_t0}, 16384")
        I(f"s_lshr_b32 s{S_t1}, s{S_w}, 1")
        I(f"s_lshl_b32 s{S_t1}, s{S_t1}, 7")
        I(f"s_add_u32 s{S_t0}, s{S_t0}, s{S_t1}")
        I(f"v_add_u32 v{V_HV}, s{S_t0}, v{V_HV}")
        I(f"v_max_i32 v{V_HV}, 0, v{V_HV}")
        halo(0, "u2")
    if EG and not att:
        I(f"s_lshl_b32 s{S_t0}, s{S_w}, 8")
        I(f"s_add_u32 m0, s{S_t0}, {GW_LDS}")
        I("v_lshlrev_b32 v1, 2, v0")
        I(f"buffer_load_dword v1, {srd(S_GW)}, s{S_t0} offen lds", tag="u2")
    stamp("h_i2")
    if "h_w0" in HST: e.wait(vm="u0"); stamp("h_w0"); e.wait(vm="u1"); stamp("h_w1"); e.wait(vm="u2"); stamp("h_w2")
    def ssig(i):
        I(f"s_lshl_b32 s{S_t0}, s{S_w}, 2")
        I(f"s_add_u32 m0, s{S_t0}, {SEV(att) + 16*i}")
        I("s_mov_b64 exec, 1")
        I(f"buffer_load_dword v0, {srd(S_X)}, s{S_X+2} offen lds", tag="dsig")
        I("s_mov_b64 exec, -1")
    if OPT["ev0"]:
        I("s_barrier")
        ssig(0); issue(3); ssig(1)
        for k in range(4, 9): issue(k)
    PRE = OPT["pre"] if not OPT["ev0"] else 2
    for k in range(3, PRE + 1): issue(k)
    first = list(range(PRE + 1, 8))
    if att and not OPT["n9"]: sched = [first, [8, 9], [10], [11, 12, 13], [14], [15, 16, 17], [18], [] if OPT["u19"] else [19]]
    else: sched = [first, [8, 9], [10, 11], [12, 13], [14, 15], [16, 17], [18, 19], []]
    def gw_dma():
        I(f"s_mov_b32 m0, {GW_LDS}")
        w0(lambda: I(f"buffer_load_dwordx4 v{V_L16}, {srd(S_GW)}, 0 offen lds"))
    def inb_reset():
        for k in range(4):
            I(f"s_mov_b32 s{56+k}, 0")
            I(f"s_add_u32 s{S_t0}, s{S_MYIN}, {k*128}")
            I(f"s_atomic_swap s{56+k}, s[{S_INB}:{S_INB+1}], s{S_t0} glc")
    def count_in():
        I(f"s_mov_b32 s{S_EV}, 1")
        I("s_waitcnt lgkmcnt(0)")
        I(f"s_atomic_add s{S_EV}, s[{S_DBG}:{S_DBG+1}], 0")
    if OPT["hinit"]:
        late_scalars(); w0(inb_reset)
    if OPT["tw"] & 1: I("s_waitcnt lgkmcnt(0)")
    extra = {1: lambda: ((w0(count_in) if OPT["hinit"] else late_scalars()), b2_voffs(H_BD)), 3: (gw_dma if not EG else lambda: None), 7: (br_setup if att or OPT["sch"] else lambda: (b2_unit(8, H_BD), br_setup()))}
    if att: extra.update({2: lambda: (att_setup(0), att_setup(1)), 4: lambda: (att_setup(2), att_setup(3)), 6: lambda: att_setup(4)})
    gk = [k for k, un in enumerate(UL) if un[0] == "g"]
    if OPT["ev0"]: sched = [[], [], [9, 10, 11]] + sched[3:]
    def bar(i, need=None):
        stamp(f"h_a{i}")
        if need is None and i < len(gk): need = gk[i]
        if need is not None: e.wait(vm=f"u{need}")
        if i == OPT["pb"]: peer()
        I("s_barrier"); stamp(f"h_b{i}")
    for i in range(8):
        if i >= 2 or not OPT["ev0"]: bar(i)
        if i == OPT["pb"] - 2: peer_issue()
        for k in sched[i]: issue(k)
        if i in extra: extra[i]()
        if i == (OPT["tha"] if att else OPT["th"]) and not OPT["tatt"]: vtouch(att, 30 if M else 18)
        if i == OPT["th"] and OPT["tatt"] and att: vtouch2()
    def a2_load(lam):
        a2_soff(lam, S_t1)
        for p in range(2):
            I(f"buffer_load_dwordx4 {a2r(lam,p)}, v{V_L16}, {srd(S_WS)}, s{S_t1} offen offset:{p*1024} sc1", tag=f"a{lam}")
    def a2_items(lams, gap=None):
        gap = OPT['gap']
        F = []
        for lam in lams:
            F.append(cost(9, lambda lam=lam: (a2_soff(lam, S_COL), I(f"buffer_load_dwordx4 {a2r(lam,0)}, v{V_L16}, {srd(S_WS)}, s{S_COL} offen sc1", tag=f"a{lam}x"))))
            F += [cost(9, lambda: None)] * (gap - 1)
            F.append(cost(9, lambda lam=lam: I(f"buffer_load_dwordx4 {a2r(lam,1)}, v{V_L16}, {srd(S_WS)}, s{S_COL} offen offset:1024 sc1", tag=f"a{lam}")))
            F += [cost(9, lambda: None)] * (gap - 1)
        return F
    Bu = lambda g: b2_unit(g, H_BD, False)
    SS = []
    ALL = (0, 1, 2, 3)
    side = {}
    if not att:
        if OPT["sch"] == 0:
            bar(8); Bu(0)
            bar(9); issue(20); Bu(1)
            bar(10); push_group(ownbit(0), ALL); issue(21); Bu(2)
            bar(11); push_group(ownbit(1), ALL); Bu(3); poll_load()
            bar(12); poll_check(0x11)
            for lam in range(4): a2_load(lam)
            Bu(4); poll_load()
            bar(13); poll_check(0x22)
            for lam in range(4, 8): a2_load(lam)
            Bu(5)
            bar(14)
        elif OWN:
            XB = [8 * SLOT, 0, 8 * SLOT]
            def take(c):
                I(f"s_lshr_b32 s{S_t0}, s{S_m0b}, 1"); I(f"s_add_u32 s{S_t0}, s{S_t0}, {XB[c]}"); I(f"v_add_u32 v1, s{S_t0}, v{V_L16}")
                for h in range(2):
                    for p in range(2): I(f"ds_read_b128 {a2r(4*c+h,p)}, v1 offset:{h*8192+p*1024}", tag=f"t{c}{h}")
                for h in range(2):
                    a2_soff(4 * c + h, S_t1); e.wait(lg=f"t{c}{h}")
                    for p in range(2): I(f"buffer_store_dwordx4 {a2r(4*c+h,p)}, v{V_L16}, {srd(S_WS)}, s{S_t1} offen offset:{p*1024} sc1", tag=f"s{c}")
            bar(8); take(0)
            bar(9); take(1); issue(20)
            bar(10); e.wait(vm="s0"); push_group(ownbit(0), ALL); issue(21)
            bar(11); e.wait(vm="s1"); push_group(ownbit(1), ALL); Bu(0); Bu(1); poll_load()
            bar(12); poll_check(0x11); a2_load(2); a2_load(3); poll_load()
            bar(13); take(2); b2_unit(2, H_BD); poll_check(0x22); a2_load(6); a2_load(7)
            e.wait(vm="b1")
            bar(14)
            side[(0, OPT["fpc"])] = lambda: (e.wait(vm="s2"), push_group(ownbit(2), ALL))
        else:
            bar(8)
            bar(9); issue(20)
            bar(10); push_group(ownbit(0), ALL); issue(21)
            bar(11); push_group(ownbit(1), ALL); Bu(0); Bu(1); poll_load()
            bar(12); poll_check(0x11); a2_load(0); a2_load(1); (None if STG else poll_load())
            bar(13); a2_load(2); a2_load(3); b2_unit(2, H_BD)
            e.wait(vm="b1")
            bar(14)
            if not STG:
                poll_check(0x22)
                side[(0, 0)] = lambda: SS[0].add(0, 999, a2_items((4, 5, 6, 7), 2))
        def f_o(): poll_check(0x300); SS[0].add(0, 999, a2_items((16, 17, 14, 15)))
    else:
        def kv_reads(m0, tag):
            for t in range(4):
                I(f"ds_read_b64 {ar(A_KV+8*t,2)}, v{m0} offset:{t*1024}", tag=f"{tag}{t}")
                I(f"ds_read_b128 {ar(A_KV+8*t+2)}, v{V_AD} offset:{t*1024}", tag=f"{tag}{t}")
                I(f"ds_read_b64 {ar(A_KV+8*t+6,2)}, v{m0+1} offset:{t*1024+8}", tag=f"{tag}{t}")
        bar(8)
        kv_reads(V_AD + 1, "k")
        e.wait(lg="k3")
        bar(9, 18 if OPT["u19"] else 19)
        def Preg(t, p): return V_Q + 8 * t + 4 * p
        for half, m in enumerate(("s[56:57]", "s[58:59]")):
            I(f"s_mov_b64 exec, {m}")
            for t in range(4):
                for p in range(2):
                    I(f"ds_read_b64 {vr(Preg(t,p)+2*half,2)}, v{V_AD+5} offset:{t*1024+p*8}", tag="q")
        I("s_mov_b64 exec, -1")
        stamp("h_q")
        e.wait(lg="q")
        un = [(i >> 1, i & 1) for i in range(8)]
        Sc = lambda i: V_S + 4 * i
        for i, (t, p) in enumerate(un): I(f"{MF} {vr(Sc(i))}, {ar(A_KV+8*t+4*p)}, {vr(Preg(t,p))}, {vr(V_BIAS+4*p)}")
        poll_load()
        if OPT["u19"]: issue(19); dsig("Lv3")
        Bu(0)
        stamp("m1")
        m = [V_T + i for i in range(8)]
        for i in range(8):
            if OPT["lround"]:
                I(f"v_cvt_pk_bf16_f32 v1, v{Sc(i)}, v{Sc(i)+1}")
                I(f"v_cvt_pk_bf16_f32 v2, v{Sc(i)+2}, v{Sc(i)+3}")
                I(f"v_lshlrev_b32 v{Sc(i)}, 16, v1")
                I(f"v_and_b32 v{Sc(i)+1}, 0xffff0000, v1")
                I(f"v_lshlrev_b32 v{Sc(i)+2}, 16, v2")
                I(f"v_and_b32 v{Sc(i)+3}, 0xffff0000, v2")
            I(f"v_max3_f32 v{m[i]}, v{Sc(i)}, v{Sc(i)+1}, v{Sc(i)+2}")
            I(f"v_max_f32 v{m[i]}, v{m[i]}, v{Sc(i)+3}")
        for k in range(4): I(f"v_permlane32_swap_b32 v{m[2*k]}, v{m[2*k+1]}")
        for k in range(4): I(f"v_max_f32 v{m[2*k]}, v{m[2*k]}, v{m[2*k+1]}")
        for k in range(2): I(f"v_permlane16_swap_b32 v{m[4*k]}, v{m[4*k+2]}")
        for k in range(2): I(f"v_max_f32 v{m[4*k]}, v{m[4*k]}, v{m[4*k+2]}")
        for k in range(2): I(f"v_mul_f32 v{m[4*k+2]}, s{S_CEXP}, v{m[4*k]}")
        for k in range(2): I(f"v_mul_f32 v{m[4*k]}, s{S_CEXP}, v{m[4*k]}")
        for k in range(2): I(f"v_permlane16_swap_b32 v{m[4*k]}, v{m[4*k+2]}")
        for k in range(4): I(f"v_mov_b32 v{m[2*k+1]}, v{m[2*k]}")
        for k in range(4): I(f"v_permlane32_swap_b32 v{m[2*k]}, v{m[2*k+1]}")
        stamp("m2")
        Bu(1)
        stamp("m3")
        for i in range(8):
            for r in range(4): I(f"v_fma_f32 v{Sc(i)+r}, v{Sc(i)+r}, s{S_CEXP}, -v{m[i]}")
            for r in range(4): I(f"v_exp_f32 v{Sc(i)+r}, v{Sc(i)+r}")
            if i == 4: stamp("m4"); poll_check(0x11); (None if STG else poll_load()); stamp("m5")
            if i >= 4: a2_load(i - 4)
        stamp("m6")
        b2_unit(2, H_BD)
        stamp("m7")
        for half, mk in enumerate(("s[56:57]", "s[58:59]")):
            I(f"s_mov_b64 exec, {mk}")
            for i, (t, p) in enumerate(un):
                I(f"v_cvt_pk_bf16_f32 v{Preg(t,p)+2*half}, v{Sc(i)}, v{Sc(i)+1}")
                I(f"v_cvt_pk_bf16_f32 v{Preg(t,p)+2*half+1}, v{Sc(i)+2}, v{Sc(i)+3}")
        I("s_mov_b64 exec, -1")
        for i, (t, p) in enumerate(un): I(f"{MF} {vr(Sc(i))}, {ar(A_ONES)}, {vr(Preg(t,p))}, 0")
        for i in range(8): I(f"v_rcp_f32 v{V_RINV+i}, v{Sc(i)}")
        e.wait(vm="b1")
        if OPT["a47"] and not STG:
            poll_check(0x22)
            for lam in range(4, 4 + 2 * OPT["a47"]): a2_load(lam)
        stamp("h_sm")
        I("s_barrier")
        stamp("v1")
        kv_reads(V_AD + 3, "v")
        e.wait(lg="v3")
        stamp("v2")
        if OPT["vb2"]: I("s_barrier")
        for i, (t, p) in enumerate(un): I(f"{MF} {vr(Sc(i))}, {ar(A_KV+8*t+4*p)}, {vr(Preg(t,p))}, 0")
        for b in range(2):
            for t in (2 * b, 2 * b + 1):
                ob = (56 if b == 0 else 4) + (t & 1) * 4
                for p in range(2):
                    o = Sc(2 * t + p)
                    if OPT["pkm"]:
                        for r in (0, 2): I(f"v_pk_mul_f32 {vr(o+r,2)}, {vr(o+r,2)}, {vr(V_RINV+2*t,2)} op_sel:[0,{p}] op_sel_hi:[1,{p}]")
                    else:
                        for r in range(4): I(f"v_mul_f32 v{o+r}, v{V_RINV+2*t+p}, v{o+r}")
                    od = ob + 2 * p if M else (56 if b == 0 else 4) + p * 4 + (t & 1) * 2
                    I(f"v_cvt_pk_bf16_f32 v{od}, v{o}, v{o+1}")
                    I(f"v_cvt_pk_bf16_f32 v{od+1}, v{o+2}, v{o+3}")
            stamp(f"v{3+b}")
            a2_soff(16 + b, S_t1)
            for t1 in range(2 if M else 0):
                ob = (56 if b == 0 else 4) + t1 * 4
                I(f"v_permlane16_swap_b32 v{ob}, v{ob+2}")
                I(f"v_permlane16_swap_b32 v{ob+1}, v{ob+3}")
            for p in range(2):
                I(f"buffer_store_dwordx4 {a2r(16+b,p)}, v{V_L16}, {srd(S_WS)}, s{S_t1} offen offset:{p*1024} sc1", tag="so")
        if not OPT["vb2"]: dsig("VD")
        stamp("h_so")
        def f_push():
            e.wait(vm="so")
            push_group(lambda: I(f"s_lshl_b32 s{S_t2}, 64, s{S_jj}"), (1, 2, 3))
        side[(0, OPT["fp"])] = f_push
        if not STG and OPT["a47"] < 2: side[(0, OPT["fp"] + 2)] = lambda: (poll_check(0x22), SS[0].add(0, 999, a2_items(range(4 + 2 * OPT["a47"], 8), 1)))
        def f_o():
            I(f"s_xor_b32 s{S_THR}, s{S_jj}, 1"); I(f"s_lshl_b32 s{S_THR}, 64, s{S_THR}")
            poll_check(f"s{S_THR}"); SS[0].add(0, 999, a2_items((14, 15)))
    def f_c(): poll_check(0x44); SS[0].add(0, 999, a2_items((10, 11) if (OWN and not att) else (8, 9, 10, 11)))
    def f_h(): poll_check(0x88); SS[0].add(0, 999, a2_items((12, 13)))
    if not STG: side.update({(0, OPT["kc"] - 15): poll_load, (0, OPT["kc"]): f_c, (0, OPT["kh"] - 15): poll_load, (0, OPT["kh"]): f_h, (0, OPT["ko"] - 11): poll_load, (0, OPT["ko"]): f_o})
    I("s_setprio 1")
    stamp("h_p2")
    own = [16, 17] if att else ([0, 1, 4, 5, 8, 9] if OWN else [])
    LD = OPT["ld"]
    oo = [16, 17, 14, 15]
    TM = 14 - OPT["tm"]
    seq = [(lam, tau) for lam in range(TM) for tau in range(4 if lam < LD else 3)]
    seq += [(lam, tau) for tau in range(3) for lam in list(range(TM, 14)) + oo]
    seq += [(lam, 3) for lam in list(range(LD, 14)) + oo]
    steps = []; rng = {}; seen_g = set(); seen_l = set(); first_ = set()
    for (lam, tau) in seq:
        g = lam >> 1
        for kh in range(2):
            a = H_BR + tau if M else H_BR + 2 * tau + kh
            off = g * SLOT + (lam & 1) * 4096 + (kh * 2048 if M else 0)
            hi = off >> 16
            st = dict(rd=(a, off & 0xffff, 1024 if M else 2048))
            pres = []
            cg = CHKG.get(g) if not STG else {2: 2}.get(g)
            if cg is not None and cg not in seen_g:
                seen_g.add(cg); t = U("t")
                steps[-3]["post"] = lambda k, g=cg, t=t: d_read(f"Lb{g}", t)
                pres.append(lambda g=cg, t=t: d_check(f"Lb{g}", t))
            if rng.get(a, 0) != hi:
                dlt = (hi - rng.get(a, 0)) * 65536; rng[a] = hi
                pres.append(lambda a=a, dlt=dlt: I(f"v_add_u32 v{a}, {dlt & 0xffffffff}, v{a}"))
            if pres: st["pre"] = lambda pres=pres: [f() for f in pres]
            at = 4 if (tau == 3 and lam >= 14) else tau
            key = at if M else (at, kh)
            zero = key not in first_; first_.add(key)
            db = H_ACC + 16 * (at if at < 4 else 0)
            if M: st["mf"] = lambda W, st, lam=lam, kh=kh, d=vr(db, 16), zero=zero: [f"{M32} {d}, {W}, {a2r(lam,kh)}, {'0' if zero else d}"]
            else: st["mf"] = lambda W, st, lam=lam, db=db + 4 * kh, zero=zero: [f"{MF} {vr(db+8*p)}, {W}, {a2r(lam,p)}, {'0' if zero else vr(db+8*p)}" for p in range(2)]
            if lam not in seen_l:
                seen_l.add(lam)
                if STG and lam >= 4 and lam not in own: st["need"] = lambda lam=lam: e.wait(lg=f"a{lam}")
                elif lam not in own: st["need"] = lambda lam=lam: e.wait(vm=f"a{lam}")
            st["id"] = (lam, tau, kh)
            steps.append(st)
    S = Stream(steps, OPT["D2"], H_RING)
    SS.append(S)
    idx = {st["id"]: k for k, st in enumerate(steps)}
    n = len(steps)
    for (lam, d), f in side.items(): S.aft(idx[(lam, 0, 0)] + d, f)
    def scale(tau, greg): return [lambda k=k: I(f"v_mul_f32 v{H_ACC+16*tau+k}, v{greg + (0 if M else 2*(k>>3))}, v{H_ACC+16*tau+k}") for k in range(16)]
    def pack(tau):
        b = H_ACC + tau * 16
        return [lambda k=k: I(f"v_cvt_pk_bf16_f32 v{b+k}, v{b+2*k}, v{b+2*k+1}") for k in range(8)]
    def send(tau):
        def so():
            I(f"s_xor_b32 s{S_GIN}, s{S_q}, {3-tau}"); I(f"s_mul_i32 s{S_GIN}, s{S_GIN}, {3*8192}")
            I(f"s_add_u32 s{S_GIN}, s{S_GIN}, s{S_PB}"); I(f"s_add_u32 s{S_GIN}, s{S_GIN}, {tau*8192}")
        return [so] + pack(tau) + [cost(3, lambda j=j: I(f"buffer_store_dwordx4 {vr(H_ACC+tau*16+j*4)}, v{V_L16}, {srd(S_WS)}, s{S_GIN} offen offset:{j*1024} sc1", tag=f"p{tau}")) for j in range(2)]
    def pflag(tau):
        assert e.vmq[0][0].count(f"p{tau}") == 2
        stamp(f"h_pa{tau}")
        e.wait(vm=f"p{tau}")
        stamp(f"h_pb{tau}")
        I(f"s_xor_b32 s{S_t0}, s{S_MYIN}, {(3-tau)*2048}")
        I(f"s_mov_b32 s{S_KG+tau}, {1024<<tau}")
        I(f"s_atomic_or s{S_KG+tau}, s[{S_INB}:{S_INB+1}], s{S_t0}")
    if STG:
        I(f"v_add_u32 v18, s{S_m0b}, v{V_L16}")
        I(f"v_add_u32 v19, 0x10000, v18")
        def stage_rd(lam, slot):
            a = (18, 19, 2)[slot >> 2]
            return [lambda j=j: I(f"ds_read_b128 {a2r(lam+(j>>1), j&1)}, v{a} offset:{(slot&3)*SLOT+j*1024}", tag=f"a{lam+(j>>1)}") for j in range(4)]
        def g_rd():
            I(f"s_lshr_b32 s{S_t0}, s{S_m0b}, 2"); I(f"s_add_u32 s{S_t0}, s{S_t0}, {GB_LDS}"); I(f"v_add_u32 v1, s{S_t0}, v{V_L16}")
            I(f"ds_read_b128 {vr(H_G)}, v1", tag="gz")
        I(f"v_add_u32 v2, 0x20000, v18")
        plan = [("S1", 4, stage_rd(4, 6)), ("S2", 6, stage_rd(6, 7)), ("S3", 8, stage_rd(8, 8)), ("S4", 10, stage_rd(10, 0)),
                ("S5", 12, stage_rd(12, 1) + [g_rd]), ("S6", 16, ([] if att else stage_rd(16, 2)) + stage_rd(14, 3))]
        for evn, lam, rds in plan:
            k = idx[(lam, 0, 0)] - OPT["lead"]; t = U("t")
            S.aft(k - 3 - (6 if lam == 4 else 0), lambda evn=evn, t=t: d_read(evn, t))
            S.aft(k - (6 if lam == 4 else 0), lambda evn=evn, t=t, rds=rds, k=k: (d_check(evn, t), S.add(0, k + OPT["lead"] - 3, rds)))
        for k, tg in ((OPT["pba"], "a7"), (OPT["pbb"], "a9")):
            S.aft(k, lambda tg=tg: ((e.wait(lg=tg) if tg else None), I("s_barrier")))
        S.aft(idx[(13, 0, 1)], lambda: e.wait(lg="gz"))
    elif EG:
        def gget():
            I(f"s_lshl_b32 s{S_t0}, s{S_r}, 2"); I(f"s_add_u32 s{S_t0}, s{S_t0}, s{S_q}"); I(f"s_lshl_b32 s{S_t0}, s{S_t0}, 12")
            I(f"s_lshr_b32 s{S_t1}, s{S_m0b}, 2"); I(f"s_add_u32 s{S_t0}, s{S_t0}, s{S_t1}"); I(f"s_add_u32 s{S_t0}, s{S_t0}, {GA_OFF}")
            I(f"buffer_load_dwordx4 {vr(H_G)}, v{V_L16}, {srd(S_WS)}, s{S_t0} offen sc1", tag="gz")
        S.aft(24, gget)
        S.aft(idx[(13, 0, 1)], lambda: e.wait(vm="gz"))
    else:
        def gget():
            t = U("t"); d_read("G", t); d_check("G", t)
            I(f"s_lshl_b32 s{S_t0}, s{S_w}, 8"); I(f"s_add_u32 s{S_t0}, s{S_t0}, {GB_LDS}")
            I(f"v_and_b32 v1, {31 if M else 15}, v0")
            I(f"v_lshl_add_u32 v1, v1, 3, s{S_t0}")
            I(f"ds_read_b64 {vr(H_G,2)}, v1", tag="gz")
            if not M: I(f"ds_read_b64 {vr(H_G+2,2)}, v1 offset:128", tag="gz")
        S.aft(idx[(12, 0, 1)], gget)
        S.aft(idx[(13, 0, 1)], lambda: e.wait(lg="gz"))
    for tau in range(4):
        k = idx[(13, tau, 1)]
        S.aft(k, lambda k=k, tau=tau: S.add(k + 3, idx[(oo[0], tau, 0)] if tau < 3 else n, scale(tau, H_G + 1)))
    late_flags = []
    for tau in range(3):
        k = idx[(oo[-1], tau, 1)]
        S.aft(k, lambda k=k, tau=tau: S.add(k + 3, k + 8, send(tau)))
        kf = k + 7 + OPT["pfd"]
        if kf <= n - (1 if OPT["crx"] else OPT["D2"] + 14): S.aft(kf, lambda tau=tau: pflag(tau))
        else: late_flags.append(tau)
    if OPT["crx"]:
        assert LD >= 2
        S.aft(idx[(oo[0], 0, 0)], lambda: I("s_barrier"))
    else: S.aft(n - OPT["D2"], lambda: (e.wait(lg=f"w{n-1}"), [pflag(t) for t in late_flags[:-1]], poll_load()))
    S.aft(idx[(8, 0, 0)], lambda: stamp("h_late"))
    S.aft(idx[(oo[0], 0, 0)], lambda: stamp("h_o"))
    S.aft(idx[(LD, 3, 0)], lambda: stamp("h_own"))
    S.run(OPT["side2"])
    if OPT["crx"]:
        for t in late_flags: pflag(t)
        O = H_ACC + 48
        I(f"v_add_u32 v1, s{S_m0b}, v{V_L16}")
        for k in range(8): I(f"v_pk_add_f32 {vr(O+2*k,2)}, {vr(O+2*k,2)}, {vr(H_ACC+2*k,2)}")
        for j in range(4): I(f"ds_write_b128 v1, {vr(O+4*j)} offset:{j*1024}")
        I("s_waitcnt lgkmcnt(0)")
        stamp("h_sum")
        I("s_barrier")
        finish()
        return
    out_addr()
    for t in late_flags[-1:]: pflag(t)
    O = H_ACC + 48
    for k in range(8): I(f"v_pk_add_f32 {vr(O+2*k,2)}, {vr(O+2*k,2)}, {vr(H_ACC+2*k,2)}")
    for tau in range(3):
        poll_check(1024 << tau)
        stamp(f"h_r{tau}")
        if tau == 2: stamp("h_rcv")
        for j in range(2):
            I(f"buffer_load_dwordx4 {vr(24+tau*8+j*4)}, v{V_L16}, {srd(S_WS)}, s{S_GIN} offen offset:{j*1024} sc1", tag=f"r{tau}")
        if tau < 2: I(f"s_add_u32 s{S_GIN}, s{S_GIN}, 8192")
    for tau in range(3):
        e.wait(vm=f"r{tau}")
        b = H_ACC + 16
        for k in range(8):
            I(f"v_lshlrev_b32 v{b+2*k}, 16, v{24+tau*8+k}")
            I(f"v_and_b32 v{b+2*k+1}, 0xffff0000, v{24+tau*8+k}")
        for k in range(8): I(f"v_pk_add_f32 {vr(O+2*k,2)}, {vr(O+2*k,2)}, {vr(b+2*k,2)}")
    for k in range(8): I(f"v_pk_mul_f32 {vr(O+2*k,2)}, {vr(O+2*k,2)}, {vr(H_G + (0 if M else 2*(k>>2)),2)} op_sel_hi:[1,0]")
    stamp("h_sum")
    for f in pack(3): f()
    for j in range(2):
        sw = "v_permlane32_swap_b32" if M else "v_permlane16_swap_b32"
        I(f"{sw} v{O+4*j}, v{O+4*j+2}")
        I(f"{sw} v{O+4*j+1}, v{O+4*j+3}")
        I(f"buffer_store_dwordx4 {vr(O+4*j)}, v{4 if M else 4+j}, {srd(S_OUT)}, s{S_COL} offen offset:{j*(32 if M else 1024)}" + ["", " nt", " sc0", " sc1"][OPT["of"]])
    finish()

h_prog(False)
e.label("L_h_att")
h_prog(True)

e.label("L_C")
role[0] = "C"
reset()
C_WR = 4; C_XR = 12; C_EXW = 3; C_HA = 18; C_HX = (24, 56, 60); C_HACC = 28; C_ACC = 64
I("s_setprio 2")
if OPT["codepf"] and not OPT["pfe"]:
    I("s_cmp_lt_u32 s2, 16")
    I("s_cbranch_scc0 L_nopf")
    e.cond_begin()
    I("s_getpc_b64 s[56:57]")
    e.label("L_pc")
    I(f"s_sub_u32 s56, s56, L_pc-{NAME}_kernel")
    I("s_subb_u32 s57, s57, 0")
    I(f"s_lshr_b32 s{S_t0}, s2, 3")
    I(f"s_lshl_b32 s{S_t0}, s{S_t0}, 15")
    I(f"v_lshlrev_b32 v2, 7, v0")
    I(f"v_lshl_add_u32 v2, v1, 13, v2")
    I(f"v_add_u32 v2, s{S_t0}, v2")
    I(f"v_min_u32 v2, L_end-{NAME}_kernel, v2")
    I(f"global_load_dword v127, v2, s[56:57]")
    e.cond_end()
    e.label("L_nopf")
late_scalars()
def ev_init():
    I("v_lshlrev_b32 v2, 2, v0")
    I(f"v_add_u32 v2, {EV_LDS}, v2")
    I("v_mov_b32 v1, 1")
    I("ds_write_b32 v2, v1", tag="exw0")
I("v_lshrrev_b32 v32, 4, v0")
I("v_and_b32 v33, 15, v0")
I("v_bfe_u32 v34, v0, 2, 2")
I("v_and_b32 v35, 3, v0")
after_karg()
common_ptrs()
mk_srd(S_OUT, 18, 2048 * 1024)
if OPT["tw"] & 2:
    I(f"s_cmp_eq_u32 s{S_w}, 1")
    I("s_cbranch_scc0 L_notw")
    e.cond_begin()
    I(f"s_lshl_b32 s{S_t0}, s2, 12")
    I(f"s_load_dword s{S_EV}, s[14:15], 0")
    I(f"s_load_dword s{S_EV}, s[8:9], 0")
    I(f"s_load_dword s{S_EV}, s[18:19], s{S_t0} glc")
    I(f"s_load_dword s{S_EV}, s[22:23], s{S_A2} glc")
    I(f"s_add_u32 s{S_t0}, s{S_t0}, {PART_OFF}")
    I(f"s_load_dword s{S_EV}, s[22:23], s{S_t0} glc")
    I("s_waitcnt lgkmcnt(0)")
    e.cond_end()
    e.label("L_notw")
if not OPT["hinit"]:
    I(f"s_cmp_eq_u32 s{S_w}, 0")
    I("s_cbranch_scc0 L_c_noinit")
    e.cond_begin()
    for k in range(4):
        I(f"s_mov_b32 s{S_KG+k}, 0")
        I(f"s_add_u32 s{S_t0}, s{S_MYIN}, {k*128}")
        I(f"s_atomic_swap s{S_KG+k}, s[{S_INB}:{S_INB+1}], s{S_t0} glc")
    e.cond_end()
    e.label("L_c_noinit")
if OPT["ev0"]: I("s_barrier")
I(f"s_cmp_ge_u32 s{S_jj}, 2")
I("s_cbranch_scc1 L_c_att")

def c_prog(att):
    reset()
    UL = units(att)
    slot_of = {un: phys(att, k) for k, un in enumerate(UL)}
    subs = [un for un in UL if un[0] == "g"]
    if OPT["spf"] == 2 and OPT["tearly"] and OPT["th"] < 0: vtouch(att)
    n16 = att or not M
    if not (att and OPT["n9"]):
        ev_init(); I("s_waitcnt lgkmcnt(0)"); reset()
    if n16:
        for p in range(2):
            I(f"v_xor_b32 v38, {8 if p == 0 else 0}, v33")
            I("v_and_b32 v39, 8, v38")
            I("v_add_u32 v39, v39, v38")
            I("v_lshlrev_b32 v39, 7, v39")
            I("v_lshrrev_b32 v38, 1, v38")
            I("v_xor_b32 v38, v38, v32")
            I("v_lshl_add_u32 v39, v38, 4, v39")
            I(f"v_add_u32 v39, s{S_m0b}, v39")
            I(f"v_add_u32 v{C_XR+2*p+p}, {p*1024}, v39")
            I(f"v_xor_b32 v{C_XR+2*p+1-p}, 64, v{C_XR+2*p+p}")
        I("v_lshl_add_u32 v38, v32, 3, v34")
        I("v_lshlrev_b32 v38, 7, v38")
        I("v_lshl_add_u32 v38, v35, 3, v38")
        I("v_lshrrev_b32 v39, 1, v34")
        I("v_and_b32 v40, 1, v32")
        I("v_lshl_or_b32 v39, v40, 1, v39")
        I(f"v_xor_b32 v41, {'s'+str(S_w) if att else 0}, v39")
        for t in range(4):
            I(f"v_xor_b32 v40, {t}, v41")
            I(f"v_lshl_add_u32 v{C_WR+t}, v40, 5, v38")
            I(f"v_add_u32 v{C_WR+4+t}, 0x10000, v{C_WR+t}")
        if att:
            I("v_lshrrev_b32 v38, 1, v33")
            I("v_xor_b32 v38, v38, v32")
            I("v_lshlrev_b32 v38, 4, v38")
            I("v_lshl_add_u32 v38, v33, 7, v38")
            I(f"v_add_u32 v{C_HA}, {HALO_LDS}, v38")
            I(f"v_xor_b32 v{C_HA+1}, 64, v{C_HA}")
            I(f"s_mul_i32 s{S_t0}, s{S_w}, 5120")
            I(f"s_add_u32 s{S_t0}, s{S_t0}, {EXCH_LDS+4096}")
            I(f"v_add_u32 v{C_EXW}, s{S_t0}, v{V_L16}")
    else:
        I("v_and_b32 v40, 1, v32")
        I("v_lshlrev_b32 v38, 3, v40")
        I("v_xor_b32 v38, 8, v38")
        I("v_xor_b32 v38, v38, v33")
        I("v_and_b32 v39, 8, v38")
        I("v_add_u32 v39, v39, v38")
        I("v_lshl_add_u32 v39, v40, 3, v39")
        I("v_lshlrev_b32 v39, 7, v39")
        I("v_lshrrev_b32 v38, 1, v38")
        I("v_lshlrev_b32 v41, 2, v40")
        I("v_xor_b32 v38, v38, v41")
        I("v_lshrrev_b32 v41, 1, v32")
        I("v_xor_b32 v38, v38, v41")
        I("v_lshl_add_u32 v39, v38, 4, v39")
        I(f"v_add_u32 v{C_XR}, s{S_m0b}, v39")
        for k in range(1, 4): I(f"v_xor_b32 v{C_XR+k}, {32*k}, v{C_XR}")
        I("v_lshl_add_u32 v38, v41, 3, v34")
        I("v_lshlrev_b32 v38, 7, v38")
        I("v_lshl_add_u32 v38, v35, 3, v38")
        I("v_lshl_add_u32 v38, v40, 5, v38")
        I("v_lshrrev_b32 v39, 1, v34")
        I(f"v_lshl_add_u32 v{C_WR}, v39, 6, v38")
        I(f"v_xor_b32 v{C_WR+1}, 64, v{C_WR}")
        for t in range(2): I(f"v_add_u32 v{C_WR+4+t}, 0x10000, v{C_WR+t}")
    if OPT["spf"] == 2 and not OPT["tearly"] and OPT["th"] < 0: vtouch(att)
    if OPT["spf"] == 1:
        P = 3072 if att else 3584; wp = 6 if att else 12
        I(f"s_lshl_b32 s{S_t0}, s{S_r}, 2"); I(f"s_add_u32 s{S_t0}, s{S_t0}, s{S_w}")
        I(f"s_mul_i32 s{S_t1}, s{S_t0}, {8*P}")
        I(f"s_mul_i32 s{S_t2}, s{S_q}, {256 if att else 896}"); I(f"s_add_u32 s{S_t1}, s{S_t1}, s{S_t2}")
        I(f"s_lshl_b32 s{S_t2}, s{S_j1}, 7"); I(f"s_add_u32 s{S_t2}, s{S_t2}, s{S_t1}")
        I(f"s_add_u32 s56, s{wp}, s{S_t2}"); I(f"s_addc_u32 s57, s{wp+1}, 0")
        for k in range(8): I(f"s_load_dword s{S_EV}, s[56:57], {k*P + (2048 if att else 512)}")
        if not att:
            I(f"s_mul_i32 s{S_t2}, s{S_j1}, {4*P}"); I(f"s_add_u32 s{S_t2}, s{S_t2}, s{S_t1}")
            I(f"s_add_u32 s56, s{wp}, s{S_t2}"); I(f"s_addc_u32 s57, s{wp+1}, 0")
            for k in range(4): I(f"s_load_dword s{S_EV}, s[56:57], {k*P + 768}")
        I(f"s_lshl_b32 s{S_t0}, s{S_t0}, 2"); I(f"s_add_u32 s{S_t0}, s{S_t0}, s{S_jj}")
        I(f"s_mul_i32 s{S_t1}, s{S_t0}, 1792"); I(f"s_mul_i32 s{S_t2}, s{S_q}, {448*1024}"); I(f"s_add_u32 s{S_t1}, s{S_t1}, s{S_t2}")
        I(f"s_add_u32 s56, s14, s{S_t1}"); I("s_addc_u32 s57, s15, 0")
        for k in range(14): I(f"s_load_dword s{S_EV}, s[56:57], {k*128}")
        I(f"s_lshl_b32 s{S_t1}, s{S_t0}, 9"); I(f"s_lshl_b32 s{S_t2}, s{S_q}, 17"); I(f"s_add_u32 s{S_t1}, s{S_t1}, s{S_t2}")
        I(f"s_add_u32 s56, s8, s{S_t1}"); I("s_addc_u32 s57, s9, 0")
        for k in range(4): I(f"s_load_dword s{S_EV}, s[56:57], {k*128}")
        I("s_waitcnt lgkmcnt(0)")
    if not OPT["hinit"]:
        l = U("ci")
        I(f"s_cmp_eq_u32 s{S_w}, 0"); I(f"s_cbranch_scc0 {l}")
        e.cond_begin()
        I(f"s_mov_b32 s{S_t1}, 1")
        I("s_waitcnt lgkmcnt(0)")
        I(f"s_atomic_add s{S_t1}, s[{S_DBG}:{S_DBG+1}], 0")
        e.cond_end(); e.label(l)
    if EG and not att:
        I("v_lshlrev_b32 v18, 4, v32"); I(f"v_add_u32 v18, {GW_LDS}, v18")
        assert not OPT["ev0"]
        I(f"s_lshr_b32 s{S_t0}, s{S_m0b}, 1"); I(f"v_add_u32 v21, s{S_t0}, v{V_L16}"); I(f"v_add_u32 v22, {8*SLOT}, v21")
    I("s_waitcnt vmcnt(0)")
    stamp("c_go")
    def xfr(p, s): return ar((p * 16 + s) * 4)
    def xf32(s16): return ar(s16 * 4)
    def acc(c, T, p=0):
        base = C_ACC + 32 * (c & 1)
        if att: return base + (T * 2 + p) * 4
        if M: return base + T * 16
        return base + (((T >> 1) * 2 + p) * 2 + (T & 1)) * 4
    def xread(dst, areg, slot, tmp, k):
        base = slot * SLOT
        if base >= 65536:
            I(f"v_add_u32 v{tmp}, {base & ~0xffff}, v{areg}"); areg = tmp
        I(f"ds_read_b128 {dst}, v{areg} offset:{base & 0xffff}", tag=f"w{k}")
    steps = []; nh = [0]
    for i, un in enumerate(subs):
        _, c, u = un; slot = slot_of[un]
        for j in range(16):
            h = j >> 3
            if n16:
                ks = (j >> 1) & 3; T = 2 * h + (j & 1); s = 4 * u + ks; zero = (u == 0 and ks == 0); ta = T
                if c == 3: s = 4 * (u + 2 * h) + ks; ta = j & 1; zero = (u == 0 and h == 0 and ks == 0)
                halo = att and T == 0 and c != 1
                st = dict(rd=(C_WR + (4 if slot >= 4 else 0) + T, (slot & 3) * SLOT + ks * 4096, 512))
                def mf(W, st, s=s, T=ta, zero=zero, c=c, halo=halo):
                    out = []
                    for p in range(2):
                        a, b = (xfr(p, s), W) if (att and c == 2) else (W, xfr(p, s))
                        d = vr(acc(c, T, p))
                        out.append(f"{MF} {d}, {a}, {b}, {'0' if zero else d}")
                    if "gate" in st:
                        gs, gp = st["gate"]
                        out.append(f"{MF} {vr(24+4*gp)}, {vr(56+4*(gs&1))}, {xfr(gp,gs)}, {'0' if gs == 0 else vr(24+4*gp)}")
                    if halo:
                        a, b = (vr(st["hreg"]), W) if c == 2 else (W, vr(st["hreg"]))
                        out.append(f"{MF} {vr(C_HACC)}, {a}, {b}, {'0' if zero else vr(C_HACC)}")
                    return out
                if EG and not att and c == 1 and j % 4 >= 2: st["gate"] = (4 * u + (j >> 2), j & 1)
                def post(k, st=st, s=s, halo=halo, j=j, c=c, u=u, ks=ks):
                    if EG and not att and c == 1 and j % 4 == 2:
                        if j == 2:
                            I(f"s_add_u32 s{S_t0}, s{S_rot}, {u}"); I(f"s_and_b32 s{S_t0}, s{S_t0}, 3"); I(f"s_lshl_b32 s{S_t0}, s{S_t0}, 8")
                            I(f"v_add_u32 v19, s{S_t0}, v18")
                        I(f"ds_read_b128 {vr(56+4*((j>>2)&1))}, v19 offset:{(j>>2)*64}", tag=f"w{k}")
                    if OPT["ev0"] and c == 0 and u == 0 and j == 12: I("ds_read_b32 v21, v20 offset:16", tag="se1")
                    if c == 0 and j < 8 and j % 2 == 0:
                        for p in range(2): xread(xfr(p, s), C_XR + 2 * p + (ks & 1), slot_of[("x", u, ks >> 1)], 1 + p, k)
                    if att and c == 2 and u == 2 and j == 11 and OPT["u19"]: d_read("Lv3", "chk11")
                    if halo:
                        st["hreg"] = C_HX[nh[0] % 3]; nh[0] += 1
                        I(f"ds_read_b128 {vr(st['hreg'])}, v{C_HA+(s&1)} offset:{(s>>1)*2048}", tag=f"w{k}")
            else:
                kk = j & 7
                if c < 3: s16 = 8 * u + kk; ta = h; zero = (u == 0 and kk == 0)
                else: s16 = 8 * (u + 2 * h) + kk; ta = 0; zero = (u == 0 and j == 0)
                st = dict(rd=(C_WR + (4 if slot >= 4 else 0) + h, (slot & 3) * SLOT + kk * 2048, 512))
                d = vr(acc(c, ta), 16)
                def mf(W, st, s16=s16, d=d, zero=zero): return [f"{M32} {d}, {W}, {xf32(s16)}, {'0' if zero else d}"]
                def post(k, s16=s16, j=j, c=c, u=u, kk=kk):
                    if c == 0 and j < 8: xread(xf32(s16), C_XR + (kk & 3), slot_of[("x", u, kk >> 2)], 1 + (kk & 1), k)
            st["mf"] = mf; st["post"] = post
            if j == 0:
                def pre(i=i):
                    stamp(f"t{i}")
                    if att and i == 8:
                        assert e.lgq[0][0].count("exw0") == 5 + OPT["n9"]
                        e.wait(lg="exw0")
                    if att and slot_of[subs[i]] >= 8:
                        for t in range(4): I(f"v_add_u32 v{C_WR+4+t}, 0x10000, v{C_WR+4+t}")
                    if att and i and slot_of[subs[i-1]] >= 8:
                        for t in range(4): I(f"v_subrev_u32 v{C_WR+4+t}, 0x10000, v{C_WR+4+t}")
                    if not att and OWN:
                        cc = {8: 0, 9: 1, 13: 2}.get(i)
                        if cc is not None:
                            assert e.lgq[0][0].count(f"exw{cc}") == 4, (i, e.lgq[0][0].count(f"exw{cc}"))
                            e.wait(lg=f"exw{cc}")
                        if i == 11: e.wait(vm="stg")
                    elif not att and i - OPT["ackb"] in (0, 1):
                        assert e.vmq[0][0].count(f"st{i-OPT['ackb']}") == 4
                        e.wait(vm=f"st{i-OPT['ackb']}")
                        if EG and i - OPT["ackb"] == 1: e.wait(vm="stg")
                    if i < 2 and OPT["ev0"]:
                        ok = U("ok"); lp = U("sp")
                        rd = f"ds_read_b32 v21, v20 offset:{16*i}"
                        if i == 0:
                            I(f"v_add_u32 v20, {(SEV(att) - EV_LDS) & 0xffffffff}, v{V_EVW}")
                            I(rd, tag="se0")
                        e.wait(lg=f"se{i}")
                        I("v_cmp_ne_u32 vcc, 0, v21")
                        I(f"s_cbranch_vccnz {lp}")
                        e.label(ok)
                        SLOW.extend([f"{lp}:", f"    {rd}", "    s_waitcnt lgkmcnt(0)", "    v_cmp_ne_u32 vcc, 0, v21", f"    s_cbranch_vccz {ok}", "    s_sleep 1"] + spin_tail(lp, ok))
                    elif i < (9 if att else 14): I("s_barrier")
                    if att and i == 11 and OPT["u19"]: d_check("Lv3", "chk11")
                    stamp(f"s{i}")
                    if att and M and i == 8:
                        for t in range(8): I(f"v_xor_b32 v{C_WR+t}, v19, v{C_WR+t}")
                st["pre"] = pre
            steps.append(st)
    if att: S = Stream(steps, OPT["D"], [32, 36, 40, 44, 48, 52])
    else: S = Stream(steps, OPT["DF"], [32, 36, 40, 44, 48, 52])
    DD = S.D
    line0 = len(e.lines)
    def chkbar(nb): assert sum(1 for l in e.lines[line0:] if l.strip() == "s_barrier") >= nb
    def packn(a, n_): return [lambda k=k: I(f"v_cvt_pk_bf16_f32 v{a+k}, v{a+2*k}, v{a+2*k+1}") for k in range(n_)]
    def epi(c, h):
        F = []
        if att:
            for t in (2 * h, 2 * h + 1):
                a = acc(c, t, 0)
                F += packn(a, 4)
                def wr(t=t, a=a):
                    I(f"v_xor_b32 v1, {t*1024}, v{C_EXW}")
                    if c == 1: I(f"v_add_u32 v1, {(QSLOT*SLOT - EXCH_LDS - 4096) & 0xffffffff}, v1")
                    I(f"ds_write_b128 v1, {vr(a)}", tag=f"exw{c}")
                F.append(wr)
            if h == 0 and c != 1:
                def hw():
                    I(f"v_cvt_pk_bf16_f32 v{C_HACC}, v{C_HACC}, v{C_HACC+1}")
                    I(f"v_cvt_pk_bf16_f32 v{C_HACC+1}, v{C_HACC+2}, v{C_HACC+3}")
                    I(f"s_add_u32 s{S_t0}, s{S_m0b}, 4096")
                    I(f"v_subrev_u32 v1, s{S_t0}, v{C_EXW}")
                    I(f"ds_write2_b64 v1, {vr(C_HACC,2)}, {vr(C_HACC,2)} offset0:0 offset1:1", tag=f"exw{c}")
                F.append(hw)
                if c == 0 and OPT["n9"]: F.append(ev_init)
        else:
            a = acc(c, h) if M else acc(c, 2 * h, 0)
            F += packn(a, 8)
            def so():
                I(f"s_lshr_b32 s{S_GIN}, s{S_J32}, {2 if c < 3 else 3}")
                I(f"s_add_u32 s{S_GIN}, s{S_GIN}, s{S_A2}"); I(f"s_add_u32 s{S_GIN}, s{S_GIN}, {(4*c+h)*8192}")
            if OWN and c < 3:
                for p in range(2):
                    F += [lambda k=k: I(f"v_pk_max_i16 v{k}, v{k}, 0") for k in range(a + 4 * p, a + 4 * p + 4)]
                    F.append(cost(0, lambda: chkbar((8, 9, 10)[c])))
                    F.append(cost(2, lambda p=p: I(f"ds_write_b128 v{21 if c == 1 else 22}, {vr(a+4*p)} offset:{h*8192+p*1024}", tag=f"exw{c}")))
                return F
            F.append(so)
            for p in range(2):
                F += [lambda k=k: I(f"v_pk_max_i16 v{k}, v{k}, 0") for k in range(a + 4 * p, a + 4 * p + 4)]
                F.append(cost(9, lambda p=p: I(f"buffer_store_dwordx4 {vr(a+4*p)}, v{V_L16}, {srd(S_WS)}, s{S_GIN} offen offset:{p*1024} sc1", tag=f"st{c}")))
        return F
    n = len(steps)
    for c, i, reuse in ((0, 6, 8), (1, 7, 12), (2, 11, 99)):
        for h in range(2):
            k = 16 * i + 8 * h + 7
            if k == n - 1: continue
            dl = min(16 * reuse + (8 * h if reuse == 8 else 0), n)
            if att and c < 2: dl = 16 * 8 - DD - 3 if c == 0 else OPT["kq"] - 1
            if OWN and not att: dl = 16 * (8, 9, 13)[c] - DD - 1
            S.aft(k, lambda k=k, c=c, h=h, dl=dl: S.add(max(k + (2 if n16 else 4), 16 * 7 - DD + 1 if att else (0, 16 * 8 - DD - 4, 0)[c] if OWN else 0), dl, epi(c, h)))
    if att:
        def qbar():
            assert e.lgq[0][0].count("exw1") == 4
            e.wait(lg="exw1"); I("s_barrier")
        assert OPT["kq"] < 16 * 9 - DD
        S.aft(OPT["kq"], qbar)
    if EG and not att:
        def gst():
            I(f"s_lshl_b32 s{S_t0}, s{S_r}, 2"); I(f"s_add_u32 s{S_t0}, s{S_t0}, s{S_q}"); I(f"s_lshl_b32 s{S_t0}, s{S_t0}, 12")
            I(f"s_lshr_b32 s{S_t1}, s{S_m0b}, 2"); I(f"s_add_u32 s{S_t0}, s{S_t0}, s{S_t1}"); I(f"s_add_u32 s{S_t0}, s{S_t0}, {GA_OFF}")
            I(f"s_lshl_b32 s{S_t1}, s{S_j1}, 28"); I(f"s_add_u32 s{S_t0}, s{S_t0}, s{S_t1}")
            I(f"buffer_store_dwordx4 {vr(56)}, v{V_L16}, {srd(S_WS)}, s{S_t0} offen sc1", tag="stg")
        S.aft(16 * 8, lambda: S.add(0, 16 * (OPT["ackb"] + 1) - 12, [lambda t=t: I(t) for t in gate_math(24, 28, 56, 3)] + [gst]))
    if STG:
        I(f"s_mov_b32 s{S_POLL}, 0")
        S.aft(n - 24, poll_load)
    S.run(OPT["side"] if att else OPT["sidef"])
    stamp("c_end")
    if not att: I("s_barrier")
    for f in (epi(2, 1) if att else epi(3, 0)): f()
    if att:
        e.wait(lg="exw2")
        I("s_barrier")
    if OPT["cprio"] != 2: I(f"s_setprio {OPT['cprio']}")
    if STG:
        I("s_setprio 3")
        def pair(lam, slot):
            I(f"s_add_u32 m0, s{S_m0b}, {slot*SLOT}")
            a2_soff(lam, S_SOFF)
            for i in range(4):
                if i == 2: I(f"s_add_u32 s{S_SOFF}, s{S_SOFF}, {8192-2048}")
                I(f"buffer_load_dwordx4 v{V_L16}, {srd(S_WS)}, s{S_SOFF} offen offset:{i*1024} sc1 lds")
        B = lambda g: b2_unit(g, 4, False)
        b2_voffs(4)
        if att: I("s_barrier")
        else:
            assert e.vmq[0][0].count("st2") == 4
            e.wait(vm="st2"); push_group(ownbit(2), (0, 1, 2, 3))
        poll_check(0x22)
        pair(4, 6); dsig("S1")
        B(3); pair(6, 7); dsig("S2")
        if not att:
            e.wait(vm="st3"); push_group(ownbit(3), (0, 1, 2, 3))
        poll_load()
        B(4); poll_check(0x44); pair(8, 8); dsig("S3"); poll_load()
        B(5)
        I(f"s_lshr_b32 s{S_t1}, s{S_m0b}, 2"); I(f"s_add_u32 m0, s{S_t1}, {GB_LDS}")
        I(f"s_lshl_b32 s{S_t0}, s{S_r}, 2"); I(f"s_add_u32 s{S_t0}, s{S_t0}, s{S_q}"); I(f"s_lshl_b32 s{S_t0}, s{S_t0}, 12")
        I(f"s_add_u32 s{S_t0}, s{S_t0}, s{S_t1}"); I(f"s_add_u32 s{S_t0}, s{S_t0}, {GA_OFF}")
        I(f"buffer_load_dwordx4 v{V_L16}, {srd(S_WS)}, s{S_t0} offen sc1 lds")
        stamp("c_pa")
        I("s_barrier")
        pair(10, 0); dsig("S4"); B(6)
        poll_check(0x88); pair(12, 1); dsig("S5"); poll_load()
        stamp("c_pb")
        I("s_barrier")
        poll_load()
        B(8); B(7)
        if att:
            I(f"s_xor_b32 s{S_THR}, s{S_jj}, 1"); I(f"s_lshl_b32 s{S_THR}, 64, s{S_THR}")
            poll_check(f"s{S_THR}")
        else:
            poll_check(0x300); pair(16, 2)
        pair(14, 3); dsig("S6")
    else:
        rest = [3, 4, 5, 6, 8, 7]
        def cunit():
            g = rest.pop(0)
            if att and g == 8 and not OPT["vb2"]:
                t = U("t"); d_read("VD", t); d_check("VD", t)
            b2_unit(g, 4, g in SIGG)
        if not att:
            if not OWN:
                assert e.vmq[0][0].count("st2") == 4
                e.wait(vm="st2"); push_group(ownbit(2), (0, 1, 2, 3))
            stamp("c_f2")
            b2_voffs(4)
            if OPT["lowp"]: I("s_setprio 0")
            cunit(); cunit()
        if EG:
            if att:
                b2_voffs(4)
                if OPT["vb2"]: I("s_barrier")
                if OPT["lowp"]: I("s_setprio 0")
                cunit(); cunit()
            else:
                e.wait(vm="st3"); push_group(ownbit(3), (0, 1, 2, 3))
        else:
            I("s_setprio 2")
            stamp("c_g0")
            I("v_lshrrev_b32 v9, 4, v0")
            if n16:
                I("v_lshlrev_b32 v8, 4, v9")
            else:
                I("v_lshrrev_b32 v8, 5, v0"); I("v_lshlrev_b32 v8, 4, v8")
                I("v_xor_b32 v9, v9, v0"); I("v_and_b32 v9, 1, v9")
                I("v_cmp_eq_u32 vcc, 0, v9")
            NG = 16 if n16 else 32; per = NG // 4
            RB = [32 + 4 * k for k in range(8)]
            def gread(s_):
                if s_ % per == 0:
                    I(f"s_add_u32 s{S_t0}, s{S_rot}, {s_//per}"); I(f"s_and_b32 s{S_t0}, s{S_t0}, 3"); I(f"s_lshl_b32 s{S_t0}, s{S_t0}, 8")
                    I(f"s_add_u32 s{S_t0}, s{S_t0}, {GW_LDS}")
                    I(f"v_add_u32 v10, s{S_t0}, v8")
                    if not n16:
                        I(f"v_mov_b32 v11, {ZERO_LDS}"); I("v_cndmask_b32 v10, v11, v10, vcc")
                I(f"ds_read_b128 {vr(RB[s_%8])}, v10 offset:{(s_%per)*(64 if n16 else 32)}", tag=f"g{s_}")
            for s_ in range(6): gread(s_)
            if att:
                b2_voffs(4)
                I("s_barrier")
                cunit()
            for s_ in range(NG):
                e.wait(lg=f"g{s_}")
                if n16:
                    for p in range(2): I(f"{MF} {vr(64+4*p)}, {vr(RB[s_%8])}, {xfr(p,s_)}, {'0' if s_ == 0 else vr(64+4*p)}")
                else:
                    I(f"{MF} {vr(64)}, {vr(RB[s_%8])}, {xf32(s_)}, {'0' if s_ == 0 else vr(64)}")
                if s_ + 6 < NG: gread(s_ + 6)
                if s_ == NG // 2 and rest: cunit()
            if not att:
                e.wait(vm="st3"); push_group(ownbit(3), (0, 1, 2, 3))
                stamp("c_f3")
            cunit()
            z1 = 68 if n16 else 65; G = 72
            T = gate_math(64, z1, G, 1)
            for t in T: I(t)
            I(f"s_lshl_b32 s{S_t0}, s{S_w}, 8"); I(f"s_add_u32 s{S_t0}, s{S_t0}, {GB_LDS}")
            I(f"v_lshl_add_u32 v1, v0, 3, s{S_t0}")
            I("s_mov_b64 exec, 0xffff")
            I(f"ds_write_b64 v1, {vr(G,2)}", tag="gz")
            I(f"ds_write_b64 v1, {vr(G+2,2)} offset:128", tag="gz")
            I("s_mov_b64 exec, -1")
            e.wait(lg="gz")
            if OPT["lowp"]: I("s_setprio 0")
            dsig("G")
        stamp("c_g1")
        while rest:
            throttle(); cunit()
    if OPT["crx"]:
        I("s_setprio 3")
        I(f"s_mov_b32 s{S_POLL}, 0")
        poll_check(2)
        I(f"s_lshl_b32 s{S_t0}, s{S_r}, 2"); I(f"s_add_u32 s{S_t0}, s{S_t0}, s{S_q}"); I(f"s_lshl_b32 s{S_t0}, s{S_t0}, 12")
        I(f"s_lshr_b32 s{S_t1}, s{S_m0b}, 2"); I(f"s_add_u32 s{S_t0}, s{S_t0}, s{S_t1}"); I(f"s_add_u32 s{S_t0}, s{S_t0}, {GA_OFF}")
        I(f"buffer_load_dwordx4 {vr(20)}, v{V_L16}, {srd(S_WS)}, s{S_t0} offen sc1", tag="gz")
        pb_setup(); out_addr()
        I(f"v_add_u32 v1, s{S_m0b}, v{V_L16}")
        I("s_barrier")
        O = 64
        for tau in range(3):
            poll_check(1024 << tau)
            stamp(f"c_r{tau}")
            for j in range(2):
                I(f"buffer_load_dwordx4 {vr(24+tau*8+j*4)}, v{V_L16}, {srd(S_WS)}, s{S_GIN} offen offset:{j*1024} sc1", tag=f"r{tau}")
            if tau < 2: I(f"s_add_u32 s{S_GIN}, s{S_GIN}, 8192")
        def unpack(tau, b):
            e.wait(vm=f"r{tau}")
            for k in range(8):
                I(f"v_lshlrev_b32 v{b+2*k}, 16, v{24+tau*8+k}")
                I(f"v_and_b32 v{b+2*k+1}, 0xffff0000, v{24+tau*8+k}")
        def addv(d, b):
            for k in range(16): I(f"v_add_f32 v{d+k}, v{d+k}, v{b+k}")
        unpack(0, 80); unpack(1, 96); addv(80, 96)
        I("s_barrier")
        for j in range(4): I(f"ds_read_b128 {vr(O+4*j)}, v1 offset:{j*1024}", tag="own")
        unpack(2, 96)
        for k in range(8): I(f"v_pk_add_f32 {vr(80+2*k,2)}, {vr(80+2*k,2)}, {vr(96+2*k,2)}")
        e.wait(lg="own")
        for k in range(8): I(f"v_pk_add_f32 {vr(O+2*k,2)}, {vr(O+2*k,2)}, {vr(80+2*k,2)}")
        for k in range(8): I(f"v_pk_mul_f32 {vr(O+2*k,2)}, {vr(O+2*k,2)}, {vr(20+2*(k>>2),2)} op_sel_hi:[1,0]")
        stamp("c_sum")
        for k in range(8): I(f"v_cvt_pk_bf16_f32 v{O+k}, v{O+2*k}, v{O+2*k+1}")
        for j in range(2):
            I(f"v_permlane16_swap_b32 v{O+4*j}, v{O+4*j+2}")
            I(f"v_permlane16_swap_b32 v{O+4*j+1}, v{O+4*j+3}")
            I(f"buffer_store_dwordx4 {vr(O+4*j)}, v{4+j}, {srd(S_OUT)}, s{S_COL} offen offset:{j*1024}")
        finish()
        return
    if OPT["dummy"]:
        I(f"s_lshl_b32 s{S_t0}, s2, 2"); I(f"s_add_u32 s{S_t0}, s{S_t0}, s{S_w}"); I(f"s_mul_i32 s{S_t0}, s{S_t0}, 9216"); I(f"s_add_u32 s{S_t0}, s{S_t0}, {20<<20}")
        for k in range(9):
            I(f"buffer_store_dwordx4 {vr(64)}, v{V_L16}, {srd(S_WS)}, s{S_t0 if OPT['dummy'] == 1 else S_WS+2} offen")
            I(f"s_add_u32 s{S_t0}, s{S_t0}, 1024")
    I("s_waitcnt vmcnt(0) lgkmcnt(0)")
    finish()

c_prog(False)
e.label("L_c_att")
c_prog(True)

e.label("L_end")
I("s_endpgm")
e.raw('.section .rodata,"a"')
e.raw(".p2align 6")
e.raw(f".amdhsa_kernel {NAME}_kernel")
e.raw("  .amdhsa_next_free_vgpr 256")
e.raw("  .amdhsa_next_free_sgpr 102")
e.raw("  .amdhsa_accum_offset 128")
e.raw("  .amdhsa_group_segment_fixed_size 0")
e.raw("  .amdhsa_kernarg_size 80")
e.raw("  .amdhsa_user_sgpr_count 2")
e.raw("  .amdhsa_user_sgpr_kernarg_segment_ptr 1")
e.raw("  .amdhsa_system_sgpr_workgroup_id_x 1")
e.raw(".end_amdhsa_kernel")
sys.stdout.write(e.text())
sys.stderr.write(f"instructions {e.nins} nop-states {e.nops}\n")
```

```python
import sys, struct
from emit import Em

NAME = "gated_mix__sliding_local_dilated__dense_activation_relu__prompt"
OPT = dict(padt=6000, padk=-1, padr=0, stamp=0, D=4, DF=4, D2=5, codepf=1, spin=400000, lround=0, side=2, sidef=2, side2=3,
           ld=2, thr=5, pre=5, pfd=18, ackb=10, cprio=2, dummy=0, sch=1, tm=0, qb=0, rotq=2, spf=2, tearly=0, tB=0, tfull=0, th=6, gap=1, kc=30, kh=52, ko=64, lowp=1, tatt=0, m32=0, fp=8, u19=0, tha=6, of=0, eg=1, pfe=2, hinit=0, pb=9, n9=1, kq=135, vb2=1, pkm=1, stg=0, a47=2, crx=0, tw=0, ev0=0, own=0, nt=0, wsb=0, tl=1, fpc=8, lead=8, pba=50, pbb=66)
CST = ["s0", "s2", "s4", "s6", "s8", "s10", "s12", "c_end"]
HST = ["h_b0", "h_b7", "h_p2", "h_late", "h_o", "h_own", "h_rcv", "h_sum"]
for a in sys.argv[1:]:
    k, v = a.split("=")
    if k == "cst": CST = v.split(",")
    elif k == "hst": HST = v.split(",")
    else:
        assert k in OPT, k
        OPT[k] = int(v)
STAMP = OPT["stamp"]; M = OPT["m32"]; EG = OPT["eg"]
assert EG and not M
assert not OPT["u19"] and OPT["th"] >= 0
STG = OPT["stg"]
if STG: OPT["ld"] = 8; assert OPT["vb2"]
OWN = OPT["own"]
GA_OFF = (9 << 20) + (512 << 10)
def f2u(x): return struct.unpack("<I", struct.pack("<f", x))[0]

PART_OFF = 10 << 20
INB_OFF = 32 << 20
STAMP_OFF = 33 << 20
WS_BYTES = 36 << 20
SLOT = 16384
HALO_LDS = 7 * SLOT
EXCH_LDS = 8 * SLOT
EV_LDS = EXCH_LDS + 20480
ZERO_LDS = EV_LDS + 256
GW_LDS = EV_LDS + 1024
GB_LDS = EV_LDS + 2048
NEG = f2u(-1e30)
def SEV(att): return HALO_LDS + 3 * 4096 if att else EV_LDS + 512

e = Em()
I = e.I
def vr(b, n=4): return f"v[{b}:{b+n-1}]"
def ar(b, n=4): return f"a[{b}:{b+n-1}]"
def srd(b): return f"s[{b}:{b+3}]"
MF = "v_mfma_f32_16x16x32_bf16"
M32 = "v_mfma_f32_32x32x16_bf16"

S_X, S_W, S_WS, S_OUT, S_W2, S_WO, S_GW = 24, 28, 32, 36, 40, 44, 48
S_INB = 52; S_DBG = 54
S_w, S_r, S_jj, S_rot, S_q, S_m0b, S_j1 = 60, 61, 62, 63, 64, 65, 66
S_t0, S_t1, S_t2 = 3, 67, 68
S_BUD = 69; S_EV = 70; S_SOFF = 71
S_POLL = 74; S_MYIN = 75; S_CEXP = 76; S_THR = 77; S_W4 = 79
S_KG = 80; S_WK = 84
S_COL = 88; S_A2 = 89; S_B2 = 90; S_BO = 91; S_PB = 92; S_J32 = 93; S_GIN = 94; S_P = 95
S_STAMP = 4
EVD = {}
def evd(name):
    if name not in EVD: EVD[name] = len(EVD)
    assert EVD[name] < 16
    return EVD[name] * 16
role = ["H"]
def stamp(name):
    L = CST if role[0] == "C" else HST
    if name == "end": idx = 8
    elif name in L: idx = L.index(name)
    else: return
    if STAMP == 2 and idx < 4:
        I(f"s_memtime s[{S_STAMP+2*idx}:{S_STAMP+2*idx+1}]"); I(f"s_memrealtime s[{S_STAMP+2*idx+8}:{S_STAMP+2*idx+9}]")
    elif STAMP == 3: I(f"s_memrealtime s[{S_STAMP+2*idx}:{S_STAMP+2*idx+1}]")
    elif STAMP: I(f"s_memtime s[{S_STAMP+2*idx}:{S_STAMP+2*idx+1}]")
uid = [0]
def U(p):
    uid[0] += 1
    return f"L_{p}{uid[0]}"
def reset():
    e.vmq = [[[], 0]]; e.lgq = [[[], 0]]; e.hist = []
V_L16 = 16; V_EVW = 17; V_CHK = 3
SLOW = []
def flush_slow():
    for l in SLOW: e.raw(l)
    SLOW.clear()
def spin_tail(lp, ok):
    return [f"    s_sub_u32 s{S_BUD}, s{S_BUD}, 1", f"    s_cbranch_scc0 {lp}", f"    s_mov_b32 s{S_BUD}, 0", f"    s_branch {ok}"]
def dsig(name):
    I(f"s_add_u32 m0, s{S_W4}, {EV_LDS + evd(name)}")
    I("s_mov_b64 exec, 1")
    I(f"buffer_load_dword v{V_L16}, {srd(S_WO)}, s{S_WO+2} offen lds", tag="dsig")
    I("s_mov_b64 exec, -1")
def d_read(name, tag): I(f"ds_read_b32 v{V_CHK}, v{V_EVW} offset:{evd(name)}", tag=tag)
def d_check(name, tag):
    ok = U("ok"); lp = U("sp")
    e.wait(lg=tag)
    I(f"v_cmp_ne_u32 vcc, 0, v{V_CHK}")
    I(f"s_cbranch_vccnz {lp}")
    e.label(ok)
    SLOW.extend([f"{lp}:", f"    ds_read_b32 v{V_CHK}, v{V_EVW} offset:{evd(name)}", "    s_waitcnt lgkmcnt(0)", f"    v_cmp_ne_u32 vcc, 0, v{V_CHK}",
                 f"    s_cbranch_vccz {ok}", "    s_sleep 1"] + spin_tail(lp, ok))
def throttle():
    n = OPT["thr"]
    I(f"s_waitcnt vmcnt({n})")
    for q in e.vmq: q[1] = max(q[1], len(q[0]) - n)
def poll_load():
    I(f"s_load_dword s{S_POLL}, s[{S_INB}:{S_INB+1}], s{S_MYIN} glc")
def poll_check(mask):
    ok = U("pk"); lp = U("pl")
    I(f"s_andn2_b32 s{S_EV}, {mask}, s{S_POLL}")
    I(f"s_cbranch_scc1 {lp}")
    e.label(ok)
    SLOW.extend([f"{lp}:", "    s_waitcnt lgkmcnt(0)", f"    s_andn2_b32 s{S_EV}, {mask}, s{S_POLL}", f"    s_cbranch_scc0 {ok}",
                 f"    s_load_dword s{S_POLL}, s[{S_INB}:{S_INB+1}], s{S_MYIN} glc"] + spin_tail(lp, ok))
def push_group(bit_fn, ds):
    bit_fn()
    for d in ds:
        I(f"s_xor_b32 s{S_t0}, s{S_MYIN}, {d*512}")
        I(f"s_atomic_or s{S_t2}, s[{S_INB}:{S_INB+1}], s{S_t0}")
def ownbit(b):
    def f():
        I(f"s_lshl_b32 s{S_t2}, s{S_jj}, 2"); I(f"s_lshl_b32 s{S_t2}, {1<<b}, s{S_t2}")
    return f
def mk_srd(b, p, nbytes):
    I(f"s_mov_b32 s{b}, s{p}")
    I(f"s_and_b32 s{b+1}, s{p+1}, 0xffff")
    I(f"s_mov_b32 s{b+2}, {nbytes}")
    I(f"s_mov_b32 s{b+3}, 0x20000")
def b2_voffs(dst):
    I("v_lshrrev_b32 v1, 3, v0")
    if M:
        I("v_bfe_u32 v2, v0, 4, 1")
        I("v_lshlrev_b32 v2, 2, v2")
    else:
        I("v_lshrrev_b32 v2, 4, v0")
        I("v_lshlrev_b32 v2, 1, v2")
    I(f"v_and_b32 v{dst}, 7, v0")
    I(f"v_xor_b32 v{dst}, v{dst}, v2")
    I(f"v_lshlrev_b32 v{dst}, 4, v{dst}")
    I(f"v_lshl_add_u32 v{dst}, v1, 10, v{dst}")
    for i in range(1, 4): I(f"v_add_u32 v{dst+i}, {i*7168}, v{dst}")
def late_scalars():
    I(f"s_lshl_b32 s{S_W4}, s{S_w}, 2")
    I(f"s_mov_b32 s{S_BUD}, {OPT['spin']}")
    I(f"s_and_b32 s{S_j1}, s{S_jj}, 1")
    I(f"s_lshl_b32 s{S_t0}, s{S_jj}, 8")
    I(f"s_lshr_b32 s{S_t1}, s{S_w}, 1")
    I(f"s_lshl_b32 s{S_t1}, s{S_t1}, 7")
    I(f"s_add_u32 s{S_t0}, s{S_t0}, s{S_t1}")
    I(f"s_and_b32 s{S_t1}, s{S_w}, 1")
    I(f"s_lshl_b32 s{S_t1}, s{S_t1}, 15")
    I(f"s_add_u32 s{S_t0}, s{S_t0}, s{S_t1}")
    I(f"s_mul_i32 s{S_B2}, s{S_q}, {14*32768}")
    I(f"s_add_u32 s{S_B2}, s{S_B2}, s{S_t0}")
    I(f"s_lshl_b32 s{S_BO}, s{S_q}, 17")
    I(f"s_add_u32 s{S_BO}, s{S_BO}, s{S_t0}")
    I(f"s_lshl_b32 s{S_J32}, s{S_j1}, 16")
    I(f"s_lshl_b32 s{S_t0}, s{S_r}, 2")
    I(f"s_add_u32 s{S_t0}, s{S_t0}, s{S_q}")
    I(f"s_mul_i32 s{S_A2}, s{S_t0}, {18*8192}")
    I(f"s_lshl_b32 s{S_t1}, s{S_w}, 11")
    I(f"s_add_u32 s{S_A2}, s{S_A2}, s{S_t1}")
    I(f"s_lshl_b32 s{S_MYIN}, s{S_t0}, 2")
    I(f"s_add_u32 s{S_MYIN}, s{S_MYIN}, s{S_jj}")
    I(f"s_lshl_b32 s{S_MYIN}, s{S_MYIN}, 2")
    I(f"s_add_u32 s{S_MYIN}, s{S_MYIN}, s{S_w}")
    I(f"s_lshl_b32 s{S_MYIN}, s{S_MYIN}, 7")
    I(f"v_lshlrev_b32 v{V_L16}, 4, v0")
    I(f"v_and_b32 v{V_EVW}, 3, v0")
    I(f"v_lshlrev_b32 v{V_EVW}, 2, v{V_EVW}")
    I(f"v_add_u32 v{V_EVW}, {EV_LDS}, v{V_EVW}")
def common_ptrs():
    if OPT["wsb"]:
        I(f"s_add_u32 s22, s22, {OPT['wsb'] << 20}")
        I("s_addc_u32 s23, s23, 0")
    I(f"s_add_u32 s{S_INB}, s22, {INB_OFF}")
    I(f"s_addc_u32 s{S_INB+1}, s23, 0")
    I(f"s_lshl_b32 s{S_t0}, s{S_r}, 4")
    I(f"s_add_u32 s{S_DBG}, s20, s{S_t0}")
    I(f"s_addc_u32 s{S_DBG+1}, s21, 0")
    mk_srd(S_WS, 22, WS_BYTES)
    mk_srd(S_W2, 14, 1792 * 1024)
    mk_srd(S_WO, 8, 512 * 1024)
def dma4(voff, srdb, tag):
    for i in range(4):
        nt = " nt" if ((OPT["nt"] & 1 and srdb == S_W) or (OPT["nt"] & 2 and srdb == S_X) or (OPT["nt"] & 4 and srdb in (S_W2, S_WO))) else ""
        I(f"buffer_load_dwordx4 v{voff+i}, {srd(srdb)}, s{S_SOFF} offen offset:{i*1024}{nt} lds", tag=tag)
def b2_unit(g, voff, sig=True):
    I(f"s_add_u32 m0, s{S_m0b}, {g*SLOT}")
    if g < 6 and OWN:
        I(f"s_xor_b32 s{S_SOFF}, s{S_J32}, {g*65536}"); I(f"s_add_u32 s{S_SOFF}, s{S_SOFF}, s{S_B2}")
    elif g < 7: I(f"s_add_u32 s{S_SOFF}, s{S_B2}, {g*65536}")
    else:
        I(f"s_xor_b32 s{S_SOFF}, s{S_J32}, {((g-7)^1)*65536}")
        I(f"s_add_u32 s{S_SOFF}, s{S_SOFF}, s{S_BO}")
    dma4(voff, S_W2 if g < 7 else S_WO, f"b{g}")
    if sig: dsig(f"Lb{g}")
def a2_soff(lam, dst):
    if lam < 12 and OWN:
        I(f"s_lshr_b32 s{dst}, s{S_J32}, 2"); I(f"s_xor_b32 s{dst}, s{dst}, {lam*8192}"); I(f"s_add_u32 s{dst}, s{dst}, s{S_A2}")
    elif lam < 14: I(f"s_add_u32 s{dst}, s{S_A2}, {lam*8192}")
    else:
        I(f"s_lshr_b32 s{dst}, s{S_J32}, 2"); I(f"s_xor_b32 s{dst}, s{dst}, {((lam-14)^2)*8192}")
        I(f"s_add_u32 s{dst}, s{dst}, s{S_A2}"); I(f"s_add_u32 s{dst}, s{dst}, {14*8192}")
def after_karg():
    I("s_waitcnt lgkmcnt(0)")
    if STAMP:
        I("s_memrealtime s[100:101]" if STAMP == 3 else "s_memtime s[100:101]")
        I("s_mov_b32 s72, s96")
        I("s_mov_b32 s73, s98")
def finish():
    if STAMP:
        I("s_waitcnt vmcnt(0)")
        stamp("end")
        I("s_memrealtime s[22:23]")
        I("s_waitcnt lgkmcnt(0)")
        I(f"s_lshl_b32 s{S_t0}, s2, 3")
        I(f"s_add_u32 s{S_t0}, s{S_t0}, s{S_w}")
        if role[0] == "H": I(f"s_add_u32 s{S_t0}, s{S_t0}, 4")
        I(f"s_lshl_b32 s{S_t0}, s{S_t0}, 6")
        I(f"s_add_u32 s{S_t0}, s{S_t0}, {STAMP_OFF}")
        I(f"v_mov_b32 v2, s{S_t0}")
        for k in range(9): I(f"v_mov_b32 v{32+k}, s{S_STAMP+2*k}")
        I("v_mov_b32 v41, s73"); I("v_mov_b32 v42, s22"); I("v_mov_b32 v43, s72"); I("v_mov_b32 v44, s100")
        I(f"v_mov_b32 v45, s{S_BUD}"); I(f"s_getreg_b32 s{S_t1}, hwreg(HW_REG_XCC_ID, 0, 4)"); I(f"v_mov_b32 v46, s{S_t1}")
        I("s_mov_b64 exec, 1")
        for k in range(4): I(f"buffer_store_dwordx4 {vr(32+4*k)}, v2, {srd(S_WS)}, 0 offen offset:{16*k}")
    if STAMP >= 3:
        if OPT["padk"] >= 0 and (OPT["padr"] == 1) == (role[0] == "H"):
            I(f"s_sub_u32 s24, s{100 if OPT['padk'] == 9 else S_STAMP+2*OPT['padk']}, s{73 if STAMP == 3 else 72}")
            if STAMP == 4: I("s_lshr_b32 s24, s24, 4")
        else: I("s_mov_b32 s24, 0")
        I(f"s_add_u32 s24, s24, {OPT['padt']}")
        l = U("pad")
        e.label(l)
        I("s_memrealtime s[26:27]"); I("s_waitcnt lgkmcnt(0)"); I("s_sub_u32 s25, s26, s73"); I("s_cmp_lt_u32 s25, s24"); I(f"s_cbranch_scc1 {l}")
    I("s_endpgm")
    flush_slow()
def units(att):
    L = []
    for u in range(4): L += [("x", u, 0), ("x", u, 1), ("g", 0, u), ("g", 1, u)]
    L += [("g", 2, u) for u in range(4)]
    if not att: L += [("g", 3, 0), ("g", 3, 1)]
    return L
def phys(att, k):
    if not att: return (k - 14) % 9
    if OPT["n9"]: return {2: 0, 3: 8, 4: 9, 5: 1, 6: 2, 7: 3, 8: 4, 0: 5, 1: 6}[k % 9]
    i = (k - 13) % 8
    return 8 if i == 7 else i
QSLOT = 0
SIGG = (2, 3, 4, 6, 7)
CHKG = {2: 2, 3: 3, 4: 4, 5: 6, 6: 6, 8: 7, 7: 7}

class Stream:
    def __init__(self, steps, depth, ring):
        self.steps = steps; self.side = []; self.after = {}; self.D = depth; self.ring = ring
        assert len(ring) >= depth + 2
    def add(self, ready, deadline, fns):
        for f in fns: self.side.append([ready, deadline, f])
    def aft(self, k, f):
        prev = self.after.get(k)
        self.after[k] = (lambda: (prev(), f())) if prev else f
    def issue(self, k, half):
        st = self.steps[k]
        b = self.ring[k % len(self.ring)]
        a, off, d2 = st["rd"]
        if half == 0:
            if "pre" in st: st["pre"]()
            I(f"ds_read_b64_tr_b16 {vr(b,2)}, v{a} offset:{off}", tag=f"w{k}")
        else:
            I(f"ds_read_b64_tr_b16 {vr(b+2,2)}, v{a} offset:{off+d2}", tag=f"w{k}")
            if "post" in st: st["post"](k)
    def pump(self, k, n):
        c = 0
        while self.side and c < n and self.side[0][0] <= k:
            r = self.side.pop(0)[2]()
            c += r if isinstance(r, int) else 1
    def run(self, rate):
        n = len(self.steps); D = self.D
        for k in range(min(D, n)):
            self.issue(k, 0); self.issue(k, 1)
        for k in range(n):
            st = self.steps[k]
            while any(s[1] <= k for s in self.side): self.side.pop(0)[2]()
            if "need" in st: st["need"]()
            if k % 2 == 0 and k + 1 < n: e.wait(lg=f"w{k+1}")
            e.wait(lg=f"w{k}")
            mfs = st["mf"](vr(self.ring[k % len(self.ring)]), st)
            I(mfs[0])
            if k + D < n: self.issue(k + D, 0)
            if len(mfs) > 1:
                self.pump(k, (rate + 1) // 2)
                I(mfs[1])
            if k + D < n: self.issue(k + D, 1)
            for m in mfs[2:]: I(m)
            self.pump(k, rate // 2 if len(mfs) > 1 else rate)
            if k in self.after: self.after[k]()
            stamp(f"k{k}")
        while self.side: self.side.pop(0)[2]()
def cost(n, f):
    def g():
        f(); return n
    return g

def vtouch(att, dst=22):
    P = 3072 if att else 3584; wp = 6 if att else 12
    if dst == 22: mk_srd(S_W, wp, 512 * P)
    I(f"s_lshl_b32 s{S_t0}, s{S_r}, 2"); I(f"s_add_u32 s{S_t0}, s{S_t0}, s{S_w}")
    I(f"s_mul_i32 s{S_t1}, s{S_t0}, {8*P}")
    I(f"s_mul_i32 s{S_t2}, s{S_q}, {256 if att else 896}"); I(f"s_add_u32 s{S_t1}, s{S_t1}, s{S_t2}")
    I("v_and_b32 v1, 7, v0"); I(f"v_mul_u32_u24 v1, {P}, v1")
    I(f"s_lshl_b32 s{S_t2}, s{S_j1}, 7"); I(f"s_add_u32 s{S_t2}, s{S_t2}, s{S_t1}")
    I("v_lshlrev_b32 v2, 7, v0")
    I("s_mov_b64 exec, 0xff")
    I(f"buffer_load_dword v{dst}, v1, {srd(S_W)}, s{S_t2} offen offset:{2048 if att else 512}")
    if OPT["tB"]: I(f"buffer_load_dword v{dst}, v1, {srd(S_W)}, s{S_t2} offen offset:{0 if att else 256}")
    if not att:
        I(f"s_mul_i32 s{S_t2}, s{S_j1}, {4*P}"); I(f"s_add_u32 s{S_t2}, s{S_t2}, s{S_t1}")
        I("s_mov_b64 exec, 0xf")
        I(f"buffer_load_dword v{dst}, v1, {srd(S_W)}, s{S_t2} offen offset:768")
    I(f"s_lshl_b32 s{S_t0}, s{S_t0}, 2"); I(f"s_add_u32 s{S_t0}, s{S_t0}, s{S_jj}")
    F_ = 2 if OPT["tfull"] else 1
    if OPT["tfull"]: I(f"s_and_b32 s{S_t0}, s{S_t0}, 127"); I(f"s_lshl_b32 s{S_t0}, s{S_t0}, 1")
    I(f"s_mul_i32 s{S_t1}, s{S_t0}, 1792"); I(f"s_mul_i32 s{S_t2}, s{S_q}, {448*1024}"); I(f"s_add_u32 s{S_t1}, s{S_t1}, s{S_t2}")
    I(f"s_mov_b64 exec, {(1 << (14*F_)) - 1}")
    I(f"buffer_load_dword v{dst}, v2, {srd(S_W2)}, s{S_t1} offen")
    I(f"s_lshl_b32 s{S_t1}, s{S_t0}, 9"); I(f"s_lshl_b32 s{S_t2}, s{S_q}, 17"); I(f"s_add_u32 s{S_t1}, s{S_t1}, s{S_t2}")
    I(f"s_mov_b64 exec, {(1 << (4*F_)) - 1}")
    I(f"buffer_load_dword v{dst}, v2, {srd(S_WO)}, s{S_t1} offen")
    I("s_mov_b64 exec, -1")
def gate_math(z0, z1, G, tmp):
    T = [f"v_cvt_pk_bf16_f32 v{tmp}, v{z0}, v{z1}", f"v_lshlrev_b32 v{G}, 16, v{tmp}", f"v_and_b32 v{G+2}, 0xffff0000, v{tmp}"]
    T += [f"v_mul_f32 v{G+2*p}, {f2u(-1.4426950408889634)}, v{G+2*p}" for p in range(2)]
    T += [f"v_exp_f32 v{G+2*p}, v{G+2*p}" for p in range(2)]
    T += [f"v_add_f32 v{G+2*p}, 1.0, v{G+2*p}" for p in range(2)]
    T += [f"v_rcp_f32 v{G+2*p}, v{G+2*p}" for p in range(2)]
    T += [f"v_cvt_pk_bf16_f32 v{tmp}, v{G}, v{G+2}", f"v_lshlrev_b32 v{G}, 16, v{tmp}", f"v_and_b32 v{G+2}, 0xffff0000, v{tmp}"]
    T += [f"v_sub_f32 v{G+1+2*p}, 1.0, v{G+2*p}" for p in range(2)]
    T += [f"v_cvt_pk_bf16_f32 v{tmp}, v{G+1}, v{G+3}", f"v_lshlrev_b32 v{G+1}, 16, v{tmp}", f"v_and_b32 v{G+3}, 0xffff0000, v{tmp}"]
    T += [f"v_max_f32 v{G+2*p}, {f2u(2.0**-60)}, v{G+2*p}" for p in range(2)]
    T += [f"v_rcp_f32 v{G+4+p}, v{G+2*p}" for p in range(2)]
    T += [f"v_mul_f32 v{G+1+2*p}, v{G+4+p}, v{G+1+2*p}" for p in range(2)]
    return T
def out_addr():
    I(f"s_mul_i32 s{S_GIN}, s{S_q}, {3*8192}")
    I(f"s_add_u32 s{S_GIN}, s{S_GIN}, s{S_PB}")
    if M:
        I("v_bfe_u32 v5, v0, 4, 1")
        I("v_lshlrev_b32 v6, 3, v5")
        I("v_xor_b32 v6, 8, v6")
        I("v_and_b32 v4, 15, v0")
        I("v_xor_b32 v4, v4, v6")
        I("v_lshl_add_u32 v4, v4, 1, v5")
        I("v_lshrrev_b32 v5, 5, v0")
        I("v_lshlrev_b32 v5, 4, v5")
        I("v_lshl_add_u32 v4, v4, 10, v5")
    else:
        I("v_and_b32 v4, 15, v0")
        I("v_bfe_u32 v6, v0, 4, 1")
        I("v_lshlrev_b32 v6, 5, v6")
        I("v_lshrrev_b32 v7, 5, v0")
        I("v_lshl_add_u32 v6, v7, 4, v6")
        I("v_lshl_add_u32 v5, v4, 11, v6")
        I("v_xor_b32 v4, 0x4000, v5")
    I(f"s_lshl_b32 s{S_COL}, s{S_r}, 17"); I(f"s_lshl_b32 s{S_t1}, s{S_w}, 15"); I(f"s_add_u32 s{S_COL}, s{S_COL}, s{S_t1}")
    I(f"s_lshl_b32 s{S_t1}, s{S_jj}, 8"); I(f"s_add_u32 s{S_COL}, s{S_COL}, s{S_t1}")
    I(f"s_lshl_b32 s{S_t1}, s{S_q}, 6"); I(f"s_add_u32 s{S_COL}, s{S_COL}, s{S_t1}")
def pb_setup():
    I(f"s_lshl_b32 s{S_PB}, s{S_r}, 2"); I(f"s_add_u32 s{S_PB}, s{S_PB}, s{S_jj}")
    I(f"s_mul_i32 s{S_PB}, s{S_PB}, {12*8192}")
    I(f"s_lshl_b32 s{S_t0}, s{S_w}, 11"); I(f"s_add_u32 s{S_PB}, s{S_PB}, s{S_t0}"); I(f"s_add_u32 s{S_PB}, s{S_PB}, {PART_OFF}")
def vtouch2():
    I(f"s_lshl_b32 s{S_t0}, s{S_r}, 2"); I(f"s_add_u32 s{S_t0}, s{S_t0}, s{S_w}")
    I(f"s_lshl_b32 s{S_t0}, s{S_t0}, 1"); I(f"s_add_u32 s{S_t0}, s{S_t0}, s{S_j1}")
    I("v_lshlrev_b32 v2, 7, v0")
    I(f"s_mul_i32 s{S_t1}, s{S_t0}, 3584"); I(f"s_mul_i32 s{S_t2}, s{S_q}, {448*1024}"); I(f"s_add_u32 s{S_t1}, s{S_t1}, s{S_t2}")
    I(f"s_mov_b64 exec, {(1 << 28) - 1}")
    I(f"buffer_load_dword v{30 if M else 18}, v2, {srd(S_W2)}, s{S_t1} offen")
    I(f"s_lshl_b32 s{S_t1}, s{S_t0}, 10"); I(f"s_lshl_b32 s{S_t2}, s{S_q}, 17"); I(f"s_add_u32 s{S_t1}, s{S_t1}, s{S_t2}")
    I("s_mov_b64 exec, 0xff")
    I(f"buffer_load_dword v{30 if M else 18}, v2, {srd(S_WO)}, s{S_t1} offen")
    I("s_mov_b64 exec, -1")
HDR = """; gated_mix: out = g * (attn(x) @ wo) + (1 - g) * (relu(x @ w1) @ w2),  g = sigmoid(x . gate_w)
; Kernarg (ptrs): 0 A_x, 8 A_wqkv, 16 A_wo, 24 B_x (unused), 32 B_w1, 40 B_w2, 48 gate_w, 56 out, 64 debug, 72 ws
; One persistent launch, 256 workgroups (one per CU) x 8 waves.  Workgroup = (row block r of 128 rows, q, jj):
;            waves 0-3 run the MFMA stream, waves 4-7 feed LDS by DMA (and do the softmax).
;   phase 2: waves 4-7 multiply the K-quarter q of [h | o] with [w2 ; wo][:, 128 cols]; the four q partial sums are
;            exchanged through ws (write-through stores, flag bits in per-wave inbox words reset at launch start,
;            arrival counter in debug).  Every spin is bounded; s_sleep appears only as back-off inside those spins.
; Generated by a script (straight-line schedule, wait states and counters tracked by the generator).
"""
e.raw(HDR + "; @launch grid=(256,1,1) block=(512,1,1) lds=163840")
e.raw('.amdgcn_target "amdgcn-amd-amdhsa--gfx950"')
e.raw(".text")
e.raw(f".globl {NAME}_kernel")
e.raw(".p2align 8")
e.raw(f".type {NAME}_kernel,@function")
e.label(f"{NAME}_kernel")
I("s_load_dwordx16 s[4:19], s[0:1], 0")
I("s_load_dwordx4 s[20:23], s[0:1], 64")
if STAMP:
    I("s_memrealtime s[98:99]")
    I("s_memtime s[96:97]")
if OPT["codepf"] and OPT["pfe"] == 2:
    I("s_getpc_b64 s[56:57]")
    e.label("L_pc")
    I("v_lshrrev_b32 v1, 5, v0")
    I("v_and_b32 v2, 1, v0")
    I("v_add_u32 v2, v2, v1")
    I(f"s_bfe_u32 s{S_t0}, s2, 0x50003")
    I(f"s_lshl_b32 s{S_t0}, s{S_t0}, 4")
    I(f"v_add_lshl_u32 v2, v2, s{S_t0}, 7")
    I("v_min_u32 v2, L_end-L_pc, v2")
    I("s_mov_b64 exec, 3")
    I("global_load_dword v127, v2, s[56:57]")
    I("s_mov_b64 exec, -1")
if OPT["codepf"] and OPT["pfe"] == 1:
    I("s_cmp_lt_u32 s2, 8")
    I("s_cbranch_scc0 L_nopf")
    e.cond_begin()
    I("s_getpc_b64 s[56:57]")
    e.label("L_pc")
    I("v_lshlrev_b32 v2, 7, v0")
    I("v_min_u32 v2, L_end-L_pc, v2")
    I("global_load_dword v127, v2, s[56:57]")
    e.cond_end()
    e.label("L_nopf")
I("v_lshrrev_b32 v1, 6, v0")
I("s_cmp_ge_u32 s2, 256")
I("s_cbranch_scc1 L_end")
I(f"v_readfirstlane_b32 s{S_t2}, v1")
I("v_and_b32 v0, 63, v0")
I(f"s_bfe_u32 s{S_q}, s2, 0x20001")
I(f"s_and_b32 s{S_t0}, s2, 1")
I(f"s_lshl_b32 s{S_t0}, s{S_t0}, 3")
I(f"s_bfe_u32 s{S_r}, s2, 0x30003")
I(f"s_or_b32 s{S_r}, s{S_r}, s{S_t0}")
I(f"s_lshr_b32 s{S_jj}, s2, 6")
if OPT["rotq"] == 2:
    I(f"s_lshr_b32 s{S_rot}, s{S_t0}, 2")
    I(f"s_add_u32 s{S_rot}, s{S_rot}, s{S_q}")
    I(f"s_and_b32 s{S_t0}, s{S_r}, 1")
    I(f"s_add_u32 s{S_rot}, s{S_rot}, s{S_t0}")
elif OPT["rotq"]: I(f"s_add_u32 s{S_rot}, s{S_r}, s{S_q}")
else: I(f"s_mov_b32 s{S_rot}, s{S_r}")
I(f"s_and_b32 s{S_w}, s{S_t2}, 3")
I(f"s_lshl_b32 s{S_m0b}, s{S_w}, 12")
I(f"s_cmp_lt_u32 s{S_t2}, 4")
I("s_cbranch_scc1 L_C")

H_XD = 4; H_WD = 8; H_BD = 12; H_ACC = 64
H_G = 18 if M else 20; H_BR = 20 if M else 24
H_RING = [32, 36, 40, 44, 48, 52, 24, 28] if M else [32, 36, 40, 44, 48, 52, 12]
def a2r(lam, p):
    if lam < 16: return ar(lam * 8 + p * 4)
    return vr((56 if lam == 16 else 4) + p * 4)
I("s_setprio 3")
I("v_lshrrev_b32 v32, 4, v0")
I("v_lshrrev_b32 v36, 3, v0")
I("v_and_b32 v37, 7, v0")
I("v_xor_b32 v39, v37, v32")
I("v_lshlrev_b32 v39, 4, v39")
I(f"v_lshl_add_u32 v{H_XD}, v36, 11, v39")
I(f"v_xor_b32 v{H_XD+1}, 64, v{H_XD}")
I(f"v_add_u32 v{H_XD+2}, {14*1024}, v{H_XD+1}")
I(f"v_add_u32 v{H_XD+3}, {14*1024}, v{H_XD}")
I(f"s_lshl_b32 s{S_t0}, s{S_r}, 17")
I(f"s_lshl_b32 s{S_t1}, s{S_w}, 15")
I(f"s_add_u32 s{S_t0}, s{S_t0}, s{S_t1}")
for g4 in range(4):
    I(f"s_add_u32 s{S_WK+g4}, s{S_rot}, {g4}")
    I(f"s_and_b32 s{S_WK+g4}, s{S_WK+g4}, 3")
    I(f"s_lshl_b32 s{S_KG+g4}, s{S_WK+g4}, 8")
    I(f"s_add_u32 s{S_KG+g4}, s{S_KG+g4}, s{S_t0}")
I(f"s_mov_b32 s{S_X+2}, {2048*1024}")
I(f"s_mov_b32 s{S_X+3}, 0x20000")
assert phys(False, 1) == phys(False, 0) + 1 and phys(True, 1) == phys(True, 0) + 1
I(f"s_cmp_ge_u32 s{S_jj}, 2")
I(f"s_cselect_b32 s{S_t2}, {phys(True,0)}, {phys(False,0)}")
I(f"s_cselect_b32 s{S_EV}, {phys(True,2)}, {phys(False,2)}")
I(f"s_mov_b32 s{S_W+2}, {512*3584}")
I(f"s_cmov_b32 s{S_W+2}, {512*3072}")
I(f"s_mov_b32 s{S_P}, 3584")
I(f"s_cmov_b32 s{S_P}, 3072")
if OPT["ev0"]:
    assert OPT["n9"]
    I(f"s_mov_b32 s{S_W4}, {SEV(False)}")
    I(f"s_cmov_b32 s{S_W4}, {SEV(True)}")
    I(f"v_lshl_add_u32 v1, v37, 2, s{S_W4}")
    I("ds_write_b32 v1, v1")
I(f"s_lshl_b32 s{S_t2}, s{S_t2}, 14")
I(f"s_add_u32 s{S_t2}, s{S_t2}, s{S_m0b}")
I(f"s_mov_b32 m0, s{S_t2}")
I(f"s_add_u32 s{S_SOFF}, s{S_KG}, 128")
after_karg()
if OPT["tw"] & 1:
    I(f"s_load_dword s{S_BUD}, s[6:7], 0")
    I(f"s_load_dword s{S_BUD}, s[12:13], 0")
I(f"s_mov_b32 s{S_X}, s4")
I(f"s_and_b32 s{S_X+1}, s5, 0xffff")
for i in range(4): I(f"buffer_load_dwordx4 v{H_XD+i}, {srd(S_X)}, s{S_KG} offen offset:{i*1024}{' nt' if OPT['nt'] & 2 else ''} lds", tag="u0")
I(f"s_add_u32 m0, s{S_t2}, {SLOT}")
I(f"s_mov_b32 s{S_W+3}, 0x20000")
dma4(H_XD, S_X, "u1")
I(f"s_lshl_b32 s{S_t0}, s{S_w}, 5")
I(f"v_add_u32 v38, s{S_t0}, v36")
I(f"v_mul_lo_u32 v38, v38, s{S_P}")
I(f"s_mul_i32 s{S_COL}, s{S_q}, 896")
I(f"s_lshl_b32 s{S_t0}, s{S_q}, 8")
I(f"s_add_u32 s{S_t0}, s{S_t0}, {1024-256}")
I(f"s_cmp_ge_u32 s{S_jj}, 2")
I(f"s_cselect_b32 s{S_W}, s6, s12")
I(f"s_cselect_b32 s{S_W+1}, s7, s13")
I(f"s_cselect_b32 s{S_COL}, s{S_t0}, s{S_COL}")
I(f"s_cselect_b32 s{S_t0}, 1, {2 if M else 1}")
I(f"s_cselect_b32 s{S_t1}, 64, {0 if M else 64}")
I(f"s_and_b32 s{S_W+1}, s{S_W+1}, 0xffff")
I("v_and_b32 v39, 1, v32")
I(f"v_lshlrev_b32 v39, s{S_t0}, v39")
I("v_xor_b32 v39, v39, v37")
I("v_lshlrev_b32 v39, 4, v39")
I(f"v_add_u32 v{H_WD}, v38, v39")
I(f"v_xor_b32 v39, s{S_t1}, v39")
I(f"s_lshl_b32 s{S_t0}, s{S_P}, 3")
I(f"s_sub_u32 s{S_t0}, s{S_t0}, 1024")
I(f"v_add3_u32 v{H_WD+1}, v38, v39, s{S_t0}")
I(f"s_lshl_b32 s{S_t0}, s{S_t0}, 1")
I(f"v_add_u32 v{H_WD+2}, s{S_t0}, v{H_WD}")
I(f"v_add_u32 v{H_WD+3}, s{S_t0}, v{H_WD+1}")
I(f"s_lshl_b32 s{S_t0}, s{S_jj}, 7")
I(f"s_add_u32 s{S_COL}, s{S_COL}, s{S_t0}")
I(f"s_lshl_b32 s{S_t1}, s{S_P}, 7")
for g4 in range(4): I(f"s_mul_i32 s{S_WK+g4}, s{S_WK+g4}, s{S_t1}")
I(f"s_lshl_b32 s{S_EV}, s{S_EV}, 14")
I(f"s_add_u32 m0, s{S_EV}, s{S_m0b}")
I(f"s_add_u32 s{S_SOFF}, s{S_WK}, s{S_COL}")
dma4(H_WD, S_W, "u2")
common_ptrs()
mk_srd(S_OUT, 18, 2048 * 1024)
mk_srd(S_GW, 16, 1024)
I(f"s_cmp_ge_u32 s{S_jj}, 2")
I("s_cbranch_scc1 L_h_att")
snapH = e.snapshot()

def h_prog(att):
    e.restore(snapH); e.hist = []
    UL = units(att)
    CH = [0, -1024, 1024] if att else [0, 256, 512]
    def issue(k):
        un = UL[k]
        I(f"s_add_u32 m0, s{S_m0b}, {phys(att,k)*SLOT}")
        if un[0] == "x":
            I(f"s_add_u32 s{S_SOFF}, s{S_KG+un[1]}, {un[2]*128}")
            dma4(H_XD, S_X, f"u{k}")
            if att and un[2] == 1: halo(un[1], f"u{k}")
            return
        _, c, u = un
        if c < 3:
            I(f"s_add_u32 s{S_SOFF}, s{S_WK+u}, s{S_COL}")
            if CH[c]: I(f"s_add_i32 s{S_SOFF}, s{S_SOFF}, {CH[c]}")
        else:
            KH = 256 * 3584
            if u == 0:
                I("v_lshrrev_b32 v2, 2, v0")
                if M:
                    I("v_lshrrev_b32 v1, 4, v0")
                    I("v_xor_b32 v2, v2, v1")
                I("v_and_b32 v2, 1, v2")
                I(f"v_mul_u32_u24 v1, {KH-64}, v2")
                for i in (0, 2): I(f"v_add_u32 v{H_WD+i}, v{H_WD+i}, v1")
                if not M: I(f"v_sub_u32 v1, {KH-64}, v1")
                for i in (1, 3): I(f"v_add_u32 v{H_WD+i}, v{H_WD+i}, v1")
                I(f"v_mul_u32_u24 v2, {2*KH}, v2")
                I(f"v_sub_u32 v{H_XD}, {KH}, v2")
                I(f"s_cmp_ge_u32 s{S_WK}, {KH}")
                I(f"s_cselect_b32 s{S_t0}, 1, 0")
            else:
                I(f"s_cmp_ge_u32 s{S_WK}, {KH}")
                I(f"s_cselect_b32 s{S_t1}, 1, 0")
                I(f"s_cmp_ge_u32 s{S_WK+1}, {KH}")
                I(f"s_cselect_b32 s{S_t0}, 1, 0")
                I(f"s_sub_u32 s{S_t0}, s{S_t0}, s{S_t1}")
            I(f"s_sub_u32 s{S_t1}, 0, s{S_t0}")
            for i in range(4): I(f"v_mad_i32_i24 v{H_WD+i}, v{H_XD}, s{S_t0 if (M or i % 2 == 0) else S_t1}, v{H_WD+i}")
            I(f"s_min_u32 s{S_SOFF}, s{S_WK+u}, s{S_WK+u+2}")
            I(f"s_add_u32 s{S_SOFF}, s{S_SOFF}, s{S_COL}")
            I(f"s_lshl_b32 s{S_t0}, s{S_jj}, 6")
            I(f"s_sub_u32 s{S_SOFF}, s{S_SOFF}, s{S_t0}")
            I(f"s_add_u32 s{S_SOFF}, s{S_SOFF}, 768")
        dma4(H_WD, S_W, f"u{k}")
    def w0(f):
        l = U("w0")
        I(f"s_cmp_eq_u32 s{S_w}, 0"); I(f"s_cbranch_scc0 {l}")
        e.cond_begin(); f(); e.cond_end(); e.label(l)
    def peer_issue(): w0(lambda: I(f"s_load_dword s{S_POLL}, s[{S_DBG}:{S_DBG+1}], 0 glc"))
    def peer():
        def f():
            lp = U("pp"); ok = U("po")
            I("s_waitcnt lgkmcnt(0)")
            I(f"s_cmp_ge_u32 s{S_POLL}, 16")
            I(f"s_cbranch_scc0 {lp}")
            e.label(ok)
            SLOW.extend([f"{lp}:", "    s_sleep 8", f"    s_load_dword s{S_POLL}, s[{S_DBG}:{S_DBG+1}], 0 glc", "    s_waitcnt lgkmcnt(0)",
                         f"    s_cmp_ge_u32 s{S_POLL}, 16", f"    s_cbranch_scc1 {ok}"] + spin_tail(lp, ok))
        w0(f)
        I(f"s_mov_b32 s{S_POLL}, 0")
    V_Q = 64; V_S = 96; V_BIAS = 32; V_RINV = 40; V_T = 48; A_KV = 64; A_ONES = 96; V_AD = 24 if M else 56
    def att_setup(part):
        if part == 0:
            I(f"s_add_u32 s{S_t0}, s{S_m0b}, {EXCH_LDS+4096}")
            I(f"v_add_u32 v{V_AD}, s{S_t0}, v{V_L16}")
            I("v_bfe_u32 v1, v0, 3, 1")
            I("v_lshlrev_b32 v1, 12, v1")
            I(f"v_sub_u32 v{V_AD+2}, v{V_AD}, v1")
            I("v_xor_b32 v1, 4096, v1")
            I(f"v_sub_u32 v{V_AD+1}, v{V_AD}, v1")
            I("v_lshrrev_b32 v1, 5, v0")
            I("v_lshlrev_b32 v1, 12, v1")
            I(f"v_sub_u32 v{V_AD+4}, v{V_AD}, v1")
            I("v_xor_b32 v1, 4096, v1")
            I(f"v_sub_u32 v{V_AD+3}, v{V_AD}, v1")
            I(f"v_add_u32 v{V_AD+5}, {(QSLOT*SLOT - EXCH_LDS - 4096) & 0xffffffff}, v{V_AD}")
            I(f"s_mov_b32 s{S_CEXP}, {f2u(0.25*1.4426950408889634)}")
            I(f"s_or_b32 s{S_t0}, s{S_r}, s{S_w}")
            I(f"s_cmp_eq_u32 s{S_t0}, 0")
            I(f"s_cselect_b32 s{S_THR}, -16, -9")
            I(f"v_mov_b32 v{V_T}, 0x3f803f80")
            for k in range(4): I(f"v_accvgpr_write_b32 a{A_ONES+k}, v{V_T}")
            I(f"v_mov_b32 v{V_T}, {NEG}")
            I(f"v_and_b32 v{V_T+1}, 15, v0")
            I(f"v_lshrrev_b32 v{V_T+2}, 4, v0")
            I(f"v_lshlrev_b32 v{V_T+2}, 2, v{V_T+2}")
        elif part in (1, 2):
            p = part - 1; x8 = 8 if p == 0 else 0
            I(f"v_xor_b32 v{V_T+3}, {x8}, v{V_T+1}")
            I(f"v_xor_b32 v{V_T+4}, {x8}, v{V_T+2}")
            I(f"v_sub_u32 v{V_T+3}, v{V_T+3}, v{V_T+4}")
            for r in range(4):
                I(f"v_subrev_u32 v{V_T+4}, {r}, v{V_T+3}")
                I(f"v_cmp_lt_u32 vcc, 7, v{V_T+4}")
                I(f"v_cmp_lt_i32 s[56:57], s{S_THR}, v{V_T+4}")
                I("s_and_b64 vcc, vcc, s[56:57]")
                I(f"v_cndmask_b32 v{V_BIAS+p*4+r}, 0, v{V_T}, vcc")
        else:
            for k in range(16): I(f"v_mov_b32 v{V_Q+16*(part-3)+k}, 0")
            I("s_mov_b32 s56, 0xff00ff00"); I("s_mov_b32 s57, 0xff00ff00")
            I("s_not_b64 s[58:59], s[56:57]")
    def br_setup():
        if M:
            I("v_bfe_u32 v1, v0, 2, 2")
            I("v_lshrrev_b32 v2, 5, v0")
            I("v_lshl_add_u32 v1, v2, 2, v1")
            I("v_lshlrev_b32 v1, 7, v1")
            I("v_bfe_u32 v2, v0, 4, 1")
            I("v_lshl_add_u32 v1, v2, 5, v1")
            I("v_bfe_u32 v2, v0, 3, 1")
            I("v_lshl_add_u32 v1, v2, 6, v1")
        else:
            I("v_lshrrev_b32 v1, 2, v0")
            I("v_bfe_u32 v2, v0, 3, 2")
            I("v_lshlrev_b32 v1, 7, v1")
            I("v_lshl_add_u32 v1, v2, 5, v1")
        I("v_and_b32 v2, 3, v0")
        I("v_lshl_add_u32 v1, v2, 3, v1")
        I(f"s_lshr_b32 s{S_t0}, s{S_q}, 1")
        I(f"s_lshl_b32 s{S_t0}, s{S_t0}, 13")
        I(f"s_and_b32 s{S_t1}, s{S_q}, 1")
        I(f"s_lshl_b32 s{S_t1}, s{S_t1}, 6")
        I(f"s_or_b32 s{S_t0}, s{S_t0}, s{S_t1}")
        I(f"v_xor_b32 v1, s{S_t0}, v1")
        for tau in range(4):
            cb = 3 - tau
            if M: I(f"v_xor_b32 v{H_BR+tau}, {(cb>>1)*8192 + (cb&1)*64}, v1")
            else:
                for tt in range(2): I(f"v_xor_b32 v{H_BR+2*tau+tt}, {(cb>>1)*8192 + (cb&1)*64 + tt*32}, v1")
        I(f"s_lshl_b32 s{S_PB}, s{S_r}, 2"); I(f"s_add_u32 s{S_PB}, s{S_PB}, s{S_jj}")
        I(f"s_mul_i32 s{S_PB}, s{S_PB}, {12*8192}")
        I(f"s_lshl_b32 s{S_t0}, s{S_w}, 11"); I(f"s_add_u32 s{S_PB}, s{S_PB}, s{S_t0}"); I(f"s_add_u32 s{S_PB}, s{S_PB}, {PART_OFF}")
    V_HV = 31 if M else 19
    def halo(u, tag):
        I(f"s_lshr_b32 s{S_t0}, s{S_m0b}, 2")
        I(f"s_add_u32 m0, s{S_t0}, {HALO_LDS + u*4096}")
        I(f"s_and_b32 s{S_t0}, s{S_KG+u}, 0x300")
        I(f"buffer_load_dwordx4 v{V_HV}, {srd(S_X)}, s{S_t0} offen lds", tag=tag)
    if att:
        I(f"s_and_b32 s{S_t1}, s{S_w}, 1")
        I(f"s_mul_i32 s{S_t1}, s{S_t1}, {1024+64}")
        I(f"v_xor_b32 v{V_HV}, s{S_t1}, v{H_XD}")
        I(f"s_lshl_b32 s{S_t0}, s{S_r}, 17")
        I(f"s_sub_u32 s{S_t0}, s{S_t0}, 16384")
        I(f"s_lshr_b32 s{S_t1}, s{S_w}, 1")
        I(f"s_lshl_b32 s{S_t1}, s{S_t1}, 7")
        I(f"s_add_u32 s{S_t0}, s{S_t0}, s{S_t1}")
        I(f"v_add_u32 v{V_HV}, s{S_t0}, v{V_HV}")
        I(f"v_max_i32 v{V_HV}, 0, v{V_HV}")
        halo(0, "u2")
    if EG and not att:
        I(f"s_lshl_b32 s{S_t0}, s{S_w}, 8")
        I(f"s_add_u32 m0, s{S_t0}, {GW_LDS}")
        I("v_lshlrev_b32 v1, 2, v0")
        I(f"buffer_load_dword v1, {srd(S_GW)}, s{S_t0} offen lds", tag="u2")
    stamp("h_i2")
    if "h_w0" in HST: e.wait(vm="u0"); stamp("h_w0"); e.wait(vm="u1"); stamp("h_w1"); e.wait(vm="u2"); stamp("h_w2")
    def ssig(i):
        I(f"s_lshl_b32 s{S_t0}, s{S_w}, 2")
        I(f"s_add_u32 m0, s{S_t0}, {SEV(att) + 16*i}")
        I("s_mov_b64 exec, 1")
        I(f"buffer_load_dword v0, {srd(S_X)}, s{S_X+2} offen lds", tag="dsig")
        I("s_mov_b64 exec, -1")
    if OPT["ev0"]:
        I("s_barrier")
        ssig(0); issue(3); ssig(1)
        for k in range(4, 9): issue(k)
    PRE = OPT["pre"] if not OPT["ev0"] else 2
    for k in range(3, PRE + 1): issue(k)
    first = list(range(PRE + 1, 8))
    if att and not OPT["n9"]: sched = [first, [8, 9], [10], [11, 12, 13], [14], [15, 16, 17], [18], [] if OPT["u19"] else [19]]
    else: sched = [first, [8, 9], [10, 11], [12, 13], [14, 15], [16, 17], [18, 19], []]
    def gw_dma():
        I(f"s_mov_b32 m0, {GW_LDS}")
        w0(lambda: I(f"buffer_load_dwordx4 v{V_L16}, {srd(S_GW)}, 0 offen lds"))
    def inb_reset():
        for k in range(4):
            I(f"s_mov_b32 s{56+k}, 0")
            I(f"s_add_u32 s{S_t0}, s{S_MYIN}, {k*128}")
            I(f"s_atomic_swap s{56+k}, s[{S_INB}:{S_INB+1}], s{S_t0} glc")
    def count_in():
        I(f"s_mov_b32 s{S_EV}, 1")
        I("s_waitcnt lgkmcnt(0)")
        I(f"s_atomic_add s{S_EV}, s[{S_DBG}:{S_DBG+1}], 0")
    if OPT["hinit"]:
        late_scalars(); w0(inb_reset)
    if OPT["tw"] & 1: I("s_waitcnt lgkmcnt(0)")
    extra = {1: lambda: ((w0(count_in) if OPT["hinit"] else late_scalars()), b2_voffs(H_BD)), 3: (gw_dma if not EG else lambda: None), 7: (br_setup if att or OPT["sch"] else lambda: (b2_unit(8, H_BD), br_setup()))}
    if att: extra.update({2: lambda: (att_setup(0), att_setup(1)), 4: lambda: (att_setup(2), att_setup(3)), 6: lambda: att_setup(4)})
    gk = [k for k, un in enumerate(UL) if un[0] == "g"]
    if OPT["ev0"]: sched = [[], [], [9, 10, 11]] + sched[3:]
    def bar(i, need=None):
        stamp(f"h_a{i}")
        if need is None and i < len(gk): need = gk[i]
        if need is not None: e.wait(vm=f"u{need}")
        if i == OPT["pb"]: peer()
        I("s_barrier"); stamp(f"h_b{i}")
    for i in range(8):
        if i >= 2 or not OPT["ev0"]: bar(i)
        if i == OPT["pb"] - 2: peer_issue()
        for k in sched[i]: issue(k)
        if i in extra: extra[i]()
        if i == (OPT["tha"] if att else OPT["th"]) and not OPT["tatt"]: vtouch(att, 30 if M else 18)
        if i == OPT["th"] and OPT["tatt"] and att: vtouch2()
    def a2_load(lam):
        a2_soff(lam, S_t1)
        for p in range(2):
            I(f"buffer_load_dwordx4 {a2r(lam,p)}, v{V_L16}, {srd(S_WS)}, s{S_t1} offen offset:{p*1024} sc1", tag=f"a{lam}")
    def a2_items(lams, gap=None):
        gap = OPT['gap']
        F = []
        for lam in lams:
            F.append(cost(9, lambda lam=lam: (a2_soff(lam, S_COL), I(f"buffer_load_dwordx4 {a2r(lam,0)}, v{V_L16}, {srd(S_WS)}, s{S_COL} offen sc1", tag=f"a{lam}x"))))
            F += [cost(9, lambda: None)] * (gap - 1)
            F.append(cost(9, lambda lam=lam: I(f"buffer_load_dwordx4 {a2r(lam,1)}, v{V_L16}, {srd(S_WS)}, s{S_COL} offen offset:1024 sc1", tag=f"a{lam}")))
            F += [cost(9, lambda: None)] * (gap - 1)
        return F
    Bu = lambda g: b2_unit(g, H_BD, False)
    SS = []
    ALL = (0, 1, 2, 3)
    side = {}
    if not att:
        if OPT["sch"] == 0:
            bar(8); Bu(0)
            bar(9); issue(20); Bu(1)
            bar(10); push_group(ownbit(0), ALL); issue(21); Bu(2)
            bar(11); push_group(ownbit(1), ALL); Bu(3); poll_load()
            bar(12); poll_check(0x11)
            for lam in range(4): a2_load(lam)
            Bu(4); poll_load()
            bar(13); poll_check(0x22)
            for lam in range(4, 8): a2_load(lam)
            Bu(5)
            bar(14)
        elif OWN:
            XB = [8 * SLOT, 0, 8 * SLOT]
            def take(c):
                I(f"s_lshr_b32 s{S_t0}, s{S_m0b}, 1"); I(f"s_add_u32 s{S_t0}, s{S_t0}, {XB[c]}"); I(f"v_add_u32 v1, s{S_t0}, v{V_L16}")
                for h in range(2):
                    for p in range(2): I(f"ds_read_b128 {a2r(4*c+h,p)}, v1 offset:{h*8192+p*1024}", tag=f"t{c}{h}")
                for h in range(2):
                    a2_soff(4 * c + h, S_t1); e.wait(lg=f"t{c}{h}")
                    for p in range(2): I(f"buffer_store_dwordx4 {a2r(4*c+h,p)}, v{V_L16}, {srd(S_WS)}, s{S_t1} offen offset:{p*1024} sc1", tag=f"s{c}")
            bar(8); take(0)
            bar(9); take(1); issue(20)
            bar(10); e.wait(vm="s0"); push_group(ownbit(0), ALL); issue(21)
            bar(11); e.wait(vm="s1"); push_group(ownbit(1), ALL); Bu(0); Bu(1); poll_load()
            bar(12); poll_check(0x11); a2_load(2); a2_load(3); poll_load()
            bar(13); take(2); b2_unit(2, H_BD); poll_check(0x22); a2_load(6); a2_load(7)
            e.wait(vm="b1")
            bar(14)
            side[(0, OPT["fpc"])] = lambda: (e.wait(vm="s2"), push_group(ownbit(2), ALL))
        else:
            bar(8)
            bar(9); issue(20)
            bar(10); push_group(ownbit(0), ALL); issue(21)
            bar(11); push_group(ownbit(1), ALL); Bu(0); Bu(1); poll_load()
            bar(12); poll_check(0x11); a2_load(0); a2_load(1); (None if STG else poll_load())
            bar(13); a2_load(2); a2_load(3); b2_unit(2, H_BD)
            e.wait(vm="b1")
            bar(14)
            if not STG:
                poll_check(0x22)
                side[(0, 0)] = lambda: SS[0].add(0, 999, a2_items((4, 5, 6, 7), 2))
        def f_o(): poll_check(0x300); SS[0].add(0, 999, a2_items((16, 17, 14, 15)))
    else:
        def kv_reads(m0, tag):
            for t in range(4):
                I(f"ds_read_b64 {ar(A_KV+8*t,2)}, v{m0} offset:{t*1024}", tag=f"{tag}{t}")
                I(f"ds_read_b128 {ar(A_KV+8*t+2)}, v{V_AD} offset:{t*1024}", tag=f"{tag}{t}")
                I(f"ds_read_b64 {ar(A_KV+8*t+6,2)}, v{m0+1} offset:{t*1024+8}", tag=f"{tag}{t}")
        bar(8)
        kv_reads(V_AD + 1, "k")
        e.wait(lg="k3")
        bar(9, 18 if OPT["u19"] else 19)
        def Preg(t, p): return V_Q + 8 * t + 4 * p
        for half, m in enumerate(("s[56:57]", "s[58:59]")):
            I(f"s_mov_b64 exec, {m}")
            for t in range(4):
                for p in range(2):
                    I(f"ds_read_b64 {vr(Preg(t,p)+2*half,2)}, v{V_AD+5} offset:{t*1024+p*8}", tag="q")
        I("s_mov_b64 exec, -1")
        stamp("h_q")
        e.wait(lg="q")
        un = [(i >> 1, i & 1) for i in range(8)]
        Sc = lambda i: V_S + 4 * i
        for i, (t, p) in enumerate(un): I(f"{MF} {vr(Sc(i))}, {ar(A_KV+8*t+4*p)}, {vr(Preg(t,p))}, {vr(V_BIAS+4*p)}")
        poll_load()
        if OPT["u19"]: issue(19); dsig("Lv3")
        Bu(0)
        stamp("m1")
        m = [V_T + i for i in range(8)]
        for i in range(8):
            if OPT["lround"]:
                I(f"v_cvt_pk_bf16_f32 v1, v{Sc(i)}, v{Sc(i)+1}")
                I(f"v_cvt_pk_bf16_f32 v2, v{Sc(i)+2}, v{Sc(i)+3}")
                I(f"v_lshlrev_b32 v{Sc(i)}, 16, v1")
                I(f"v_and_b32 v{Sc(i)+1}, 0xffff0000, v1")
                I(f"v_lshlrev_b32 v{Sc(i)+2}, 16, v2")
                I(f"v_and_b32 v{Sc(i)+3}, 0xffff0000, v2")
            I(f"v_max3_f32 v{m[i]}, v{Sc(i)}, v{Sc(i)+1}, v{Sc(i)+2}")
            I(f"v_max_f32 v{m[i]}, v{m[i]}, v{Sc(i)+3}")
        for k in range(4): I(f"v_permlane32_swap_b32 v{m[2*k]}, v{m[2*k+1]}")
        for k in range(4): I(f"v_max_f32 v{m[2*k]}, v{m[2*k]}, v{m[2*k+1]}")
        for k in range(2): I(f"v_permlane16_swap_b32 v{m[4*k]}, v{m[4*k+2]}")
        for k in range(2): I(f"v_max_f32 v{m[4*k]}, v{m[4*k]}, v{m[4*k+2]}")
        for k in range(2): I(f"v_mul_f32 v{m[4*k+2]}, s{S_CEXP}, v{m[4*k]}")
        for k in range(2): I(f"v_mul_f32 v{m[4*k]}, s{S_CEXP}, v{m[4*k]}")
        for k in range(2): I(f"v_permlane16_swap_b32 v{m[4*k]}, v{m[4*k+2]}")
        for k in range(4): I(f"v_mov_b32 v{m[2*k+1]}, v{m[2*k]}")
        for k in range(4): I(f"v_permlane32_swap_b32 v{m[2*k]}, v{m[2*k+1]}")
        stamp("m2")
        Bu(1)
        stamp("m3")
        for i in range(8):
            for r in range(4): I(f"v_fma_f32 v{Sc(i)+r}, v{Sc(i)+r}, s{S_CEXP}, -v{m[i]}")
            for r in range(4): I(f"v_exp_f32 v{Sc(i)+r}, v{Sc(i)+r}")
            if i == 4: stamp("m4"); poll_check(0x11); (None if STG else poll_load()); stamp("m5")
            if i >= 4: a2_load(i - 4)
        stamp("m6")
        b2_unit(2, H_BD)
        stamp("m7")
        for half, mk in enumerate(("s[56:57]", "s[58:59]")):
            I(f"s_mov_b64 exec, {mk}")
            for i, (t, p) in enumerate(un):
                I(f"v_cvt_pk_bf16_f32 v{Preg(t,p)+2*half}, v{Sc(i)}, v{Sc(i)+1}")
                I(f"v_cvt_pk_bf16_f32 v{Preg(t,p)+2*half+1}, v{Sc(i)+2}, v{Sc(i)+3}")
        I("s_mov_b64 exec, -1")
        for i, (t, p) in enumerate(un): I(f"{MF} {vr(Sc(i))}, {ar(A_ONES)}, {vr(Preg(t,p))}, 0")
        for i in range(8): I(f"v_rcp_f32 v{V_RINV+i}, v{Sc(i)}")
        e.wait(vm="b1")
        if OPT["a47"] and not STG:
            poll_check(0x22)
            for lam in range(4, 4 + 2 * OPT["a47"]): a2_load(lam)
        stamp("h_sm")
        I("s_barrier")
        stamp("v1")
        kv_reads(V_AD + 3, "v")
        e.wait(lg="v3")
        stamp("v2")
        if OPT["vb2"] == 1: I("s_barrier")
        for i, (t, p) in enumerate(un): I(f"{MF} {vr(Sc(i))}, {ar(A_KV+8*t+4*p)}, {vr(Preg(t,p))}, 0")
        for b in range(2):
            for t in (2 * b, 2 * b + 1):
                ob = (56 if b == 0 else 4) + (t & 1) * 4
                for p in range(2):
                    o = Sc(2 * t + p)
                    if OPT["pkm"]:
                        for r in (0, 2): I(f"v_pk_mul_f32 {vr(o+r,2)}, {vr(o+r,2)}, {vr(V_RINV+2*t,2)} op_sel:[0,{p}] op_sel_hi:[1,{p}]")
                    else:
                        for r in range(4): I(f"v_mul_f32 v{o+r}, v{V_RINV+2*t+p}, v{o+r}")
                    od = ob + 2 * p if M else (56 if b == 0 else 4) + p * 4 + (t & 1) * 2
                    I(f"v_cvt_pk_bf16_f32 v{od}, v{o}, v{o+1}")
                    I(f"v_cvt_pk_bf16_f32 v{od+1}, v{o+2}, v{o+3}")
            stamp(f"v{3+b}")
            a2_soff(16 + b, S_t1)
            for t1 in range(2 if M else 0):
                ob = (56 if b == 0 else 4) + t1 * 4
                I(f"v_permlane16_swap_b32 v{ob}, v{ob+2}")
                I(f"v_permlane16_swap_b32 v{ob+1}, v{ob+3}")
            for p in range(2):
                I(f"buffer_store_dwordx4 {a2r(16+b,p)}, v{V_L16}, {srd(S_WS)}, s{S_t1} offen offset:{p*1024} sc1", tag="so")
        if OPT["vb2"] == 2: I("s_barrier")
        if not OPT["vb2"]: dsig("VD")
        stamp("h_so")
        def f_push():
            e.wait(vm="so")
            push_group(lambda: I(f"s_lshl_b32 s{S_t2}, 64, s{S_jj}"), (1, 2, 3))
        side[(0, OPT["fp"])] = f_push
        if not STG and OPT["a47"] < 2: side[(0, OPT["fp"] + 2)] = lambda: (poll_check(0x22), SS[0].add(0, 999, a2_items(range(4 + 2 * OPT["a47"], 8), 1)))
        def f_o():
            I(f"s_xor_b32 s{S_THR}, s{S_jj}, 1"); I(f"s_lshl_b32 s{S_THR}, 64, s{S_THR}")
            poll_check(f"s{S_THR}"); SS[0].add(0, 999, a2_items((14, 15)))
    def f_c(): poll_check(0x44); SS[0].add(0, 999, a2_items((10, 11) if (OWN and not att) else (8, 9, 10, 11)))
    def f_h(): poll_check(0x88); SS[0].add(0, 999, a2_items((12, 13)))
    if not STG: side.update({(0, OPT["kc"] - 15): poll_load, (0, OPT["kc"]): f_c, (0, OPT["kh"] - 15): poll_load, (0, OPT["kh"]): f_h, (0, OPT["ko"] - 11): poll_load, (0, OPT["ko"]): f_o})
    I("s_setprio 1")
    stamp("h_p2")
    own = [16, 17] if att else ([0, 1, 4, 5, 8, 9] if OWN else [])
    LD = OPT["ld"]
    oo = [16, 17, 14, 15]
    TM = 14 - OPT["tm"]
    seq = [(lam, tau) for lam in range(TM) for tau in range(4 if lam < LD else 3)]
    seq += [(lam, tau) for tau in range(3) for lam in list(range(TM, 14)) + oo]
    seq += [(lam, 3) for lam in list(range(LD, 14)) + oo]
    steps = []; rng = {}; seen_g = set(); seen_l = set(); first_ = set()
    for (lam, tau) in seq:
        g = lam >> 1
        for kh in range(2):
            a = H_BR + tau if M else H_BR + 2 * tau + kh
            off = g * SLOT + (lam & 1) * 4096 + (kh * 2048 if M else 0)
            hi = off >> 16
            st = dict(rd=(a, off & 0xffff, 1024 if M else 2048))
            pres = []
            cg = CHKG.get(g) if not STG else {2: 2}.get(g)
            if cg is not None and cg not in seen_g:
                seen_g.add(cg); t = U("t")
                steps[-3]["post"] = lambda k, g=cg, t=t: d_read(f"Lb{g}", t)
                pres.append(lambda g=cg, t=t: d_check(f"Lb{g}", t))
            if rng.get(a, 0) != hi:
                dlt = (hi - rng.get(a, 0)) * 65536; rng[a] = hi
                pres.append(lambda a=a, dlt=dlt: I(f"v_add_u32 v{a}, {dlt & 0xffffffff}, v{a}"))
            if pres: st["pre"] = lambda pres=pres: [f() for f in pres]
            at = 4 if (tau == 3 and lam >= 14) else tau
            key = at if M else (at, kh)
            zero = key not in first_; first_.add(key)
            db = H_ACC + 16 * (at if at < 4 else 0)
            if M: st["mf"] = lambda W, st, lam=lam, kh=kh, d=vr(db, 16), zero=zero: [f"{M32} {d}, {W}, {a2r(lam,kh)}, {'0' if zero else d}"]
            else: st["mf"] = lambda W, st, lam=lam, db=db + 4 * kh, zero=zero: [f"{MF} {vr(db+8*p)}, {W}, {a2r(lam,p)}, {'0' if zero else vr(db+8*p)}" for p in range(2)]
            if lam not in seen_l:
                seen_l.add(lam)
                if STG and lam >= 4 and lam not in own: st["need"] = lambda lam=lam: e.wait(lg=f"a{lam}")
                elif lam not in own: st["need"] = lambda lam=lam: e.wait(vm=f"a{lam}")
            st["id"] = (lam, tau, kh)
            steps.append(st)
    S = Stream(steps, OPT["D2"], H_RING)
    SS.append(S)
    idx = {st["id"]: k for k, st in enumerate(steps)}
    n = len(steps)
    for (lam, d), f in side.items(): S.aft(idx[(lam, 0, 0)] + d, f)
    def scale(tau, greg): return [lambda k=k: I(f"v_mul_f32 v{H_ACC+16*tau+k}, v{greg + (0 if M else 2*(k>>3))}, v{H_ACC+16*tau+k}") for k in range(16)]
    def pack(tau):
        b = H_ACC + tau * 16
        return [lambda k=k: I(f"v_cvt_pk_bf16_f32 v{b+k}, v{b+2*k}, v{b+2*k+1}") for k in range(8)]
    def send(tau):
        def so():
            I(f"s_xor_b32 s{S_GIN}, s{S_q}, {3-tau}"); I(f"s_mul_i32 s{S_GIN}, s{S_GIN}, {3*8192}")
            I(f"s_add_u32 s{S_GIN}, s{S_GIN}, s{S_PB}"); I(f"s_add_u32 s{S_GIN}, s{S_GIN}, {tau*8192}")
        return [so] + pack(tau) + [cost(3, lambda j=j: I(f"buffer_store_dwordx4 {vr(H_ACC+tau*16+j*4)}, v{V_L16}, {srd(S_WS)}, s{S_GIN} offen offset:{j*1024} sc1", tag=f"p{tau}")) for j in range(2)]
    def pflag(tau):
        assert e.vmq[0][0].count(f"p{tau}") == 2
        stamp(f"h_pa{tau}")
        e.wait(vm=f"p{tau}")
        stamp(f"h_pb{tau}")
        I(f"s_xor_b32 s{S_t0}, s{S_MYIN}, {(3-tau)*2048}")
        I(f"s_mov_b32 s{S_KG+tau}, {1024<<tau}")
        I(f"s_atomic_or s{S_KG+tau}, s[{S_INB}:{S_INB+1}], s{S_t0}")
    if STG:
        I(f"v_add_u32 v18, s{S_m0b}, v{V_L16}")
        I(f"v_add_u32 v19, 0x10000, v18")
        def stage_rd(lam, slot):
            a = (18, 19, 2)[slot >> 2]
            return [lambda j=j: I(f"ds_read_b128 {a2r(lam+(j>>1), j&1)}, v{a} offset:{(slot&3)*SLOT+j*1024}", tag=f"a{lam+(j>>1)}") for j in range(4)]
        def g_rd():
            I(f"s_lshr_b32 s{S_t0}, s{S_m0b}, 2"); I(f"s_add_u32 s{S_t0}, s{S_t0}, {GB_LDS}"); I(f"v_add_u32 v1, s{S_t0}, v{V_L16}")
            I(f"ds_read_b128 {vr(H_G)}, v1", tag="gz")
        I(f"v_add_u32 v2, 0x20000, v18")
        plan = [("S1", 4, stage_rd(4, 6)), ("S2", 6, stage_rd(6, 7)), ("S3", 8, stage_rd(8, 8)), ("S4", 10, stage_rd(10, 0)),
                ("S5", 12, stage_rd(12, 1) + [g_rd]), ("S6", 16, ([] if att else stage_rd(16, 2)) + stage_rd(14, 3))]
        for evn, lam, rds in plan:
            k = idx[(lam, 0, 0)] - OPT["lead"]; t = U("t")
            S.aft(k - 3 - (6 if lam == 4 else 0), lambda evn=evn, t=t: d_read(evn, t))
            S.aft(k - (6 if lam == 4 else 0), lambda evn=evn, t=t, rds=rds, k=k: (d_check(evn, t), S.add(0, k + OPT["lead"] - 3, rds)))
        for k, tg in ((OPT["pba"], "a7"), (OPT["pbb"], "a9")):
            S.aft(k, lambda tg=tg: ((e.wait(lg=tg) if tg else None), I("s_barrier")))
        S.aft(idx[(13, 0, 1)], lambda: e.wait(lg="gz"))
    elif EG:
        def gget():
            I(f"s_lshl_b32 s{S_t0}, s{S_r}, 2"); I(f"s_add_u32 s{S_t0}, s{S_t0}, s{S_q}"); I(f"s_lshl_b32 s{S_t0}, s{S_t0}, 12")
            I(f"s_lshr_b32 s{S_t1}, s{S_m0b}, 2"); I(f"s_add_u32 s{S_t0}, s{S_t0}, s{S_t1}"); I(f"s_add_u32 s{S_t0}, s{S_t0}, {GA_OFF}")
            I(f"buffer_load_dwordx4 {vr(H_G)}, v{V_L16}, {srd(S_WS)}, s{S_t0} offen sc1", tag="gz")
        S.aft(24, gget)
        S.aft(idx[(13, 0, 1)], lambda: e.wait(vm="gz"))
    else:
        def gget():
            t = U("t"); d_read("G", t); d_check("G", t)
            I(f"s_lshl_b32 s{S_t0}, s{S_w}, 8"); I(f"s_add_u32 s{S_t0}, s{S_t0}, {GB_LDS}")
            I(f"v_and_b32 v1, {31 if M else 15}, v0")
            I(f"v_lshl_add_u32 v1, v1, 3, s{S_t0}")
            I(f"ds_read_b64 {vr(H_G,2)}, v1", tag="gz")
            if not M: I(f"ds_read_b64 {vr(H_G+2,2)}, v1 offset:128", tag="gz")
        S.aft(idx[(12, 0, 1)], gget)
        S.aft(idx[(13, 0, 1)], lambda: e.wait(lg="gz"))
    for tau in range(4):
        k = idx[(13, tau, 1)]
        S.aft(k, lambda k=k, tau=tau: S.add(k + 3, idx[(oo[0], tau, 0)] if tau < 3 else n, scale(tau, H_G + 1)))
    late_flags = []
    for tau in range(3):
        k = idx[(oo[-1], tau, 1)]
        S.aft(k, lambda k=k, tau=tau: S.add(k + 3, k + 8, send(tau)))
        kf = k + 7 + OPT["pfd"]
        if kf <= n - (1 if OPT["crx"] else OPT["D2"] + 14): S.aft(kf, lambda tau=tau: pflag(tau))
        else: late_flags.append(tau)
    if OPT["crx"]:
        assert LD >= 2
        S.aft(idx[(oo[0], 0, 0)], lambda: I("s_barrier"))
    elif OPT["tl"]:
        S.aft(n - 26, poll_load)
        lf = list(late_flags); late_flags.clear()
        S.aft(n - OPT["D2"], lambda: (e.wait(lg=f"w{n-1}"), [pflag(t) for t in lf], poll_load()))
    else: S.aft(n - OPT["D2"], lambda: (e.wait(lg=f"w{n-1}"), [pflag(t) for t in late_flags[:-1]], poll_load()))
    S.aft(idx[(8, 0, 0)], lambda: stamp("h_late"))
    S.aft(idx[(oo[0], 0, 0)], lambda: stamp("h_o"))
    S.aft(idx[(LD, 3, 0)], lambda: stamp("h_own"))
    S.run(OPT["side2"])
    if OPT["crx"]:
        for t in late_flags: pflag(t)
        O = H_ACC + 48
        I(f"v_add_u32 v1, s{S_m0b}, v{V_L16}")
        for k in range(8): I(f"v_pk_add_f32 {vr(O+2*k,2)}, {vr(O+2*k,2)}, {vr(H_ACC+2*k,2)}")
        for j in range(4): I(f"ds_write_b128 v1, {vr(O+4*j)} offset:{j*1024}")
        I("s_waitcnt lgkmcnt(0)")
        stamp("h_sum")
        I("s_barrier")
        finish()
        return
    out_addr()
    for t in late_flags[-1:]: pflag(t)
    O = H_ACC + 48
    for k in range(8): I(f"v_pk_add_f32 {vr(O+2*k,2)}, {vr(O+2*k,2)}, {vr(H_ACC+2*k,2)}")
    for tau in range(3):
        poll_check(1024 << tau)
        stamp(f"h_r{tau}")
        if tau == 2: stamp("h_rcv")
        for j in range(2):
            I(f"buffer_load_dwordx4 {vr(24+tau*8+j*4)}, v{V_L16}, {srd(S_WS)}, s{S_GIN} offen offset:{j*1024} sc1", tag=f"r{tau}")
        if tau < 2: I(f"s_add_u32 s{S_GIN}, s{S_GIN}, 8192")
    for tau in range(3):
        e.wait(vm=f"r{tau}")
        b = H_ACC + 16
        for k in range(8):
            I(f"v_lshlrev_b32 v{b+2*k}, 16, v{24+tau*8+k}")
            I(f"v_and_b32 v{b+2*k+1}, 0xffff0000, v{24+tau*8+k}")
        for k in range(8): I(f"v_pk_add_f32 {vr(O+2*k,2)}, {vr(O+2*k,2)}, {vr(b+2*k,2)}")
    for k in range(8): I(f"v_pk_mul_f32 {vr(O+2*k,2)}, {vr(O+2*k,2)}, {vr(H_G + (0 if M else 2*(k>>2)),2)} op_sel_hi:[1,0]")
    stamp("h_sum")
    for f in pack(3): f()
    for j in range(2):
        sw = "v_permlane32_swap_b32" if M else "v_permlane16_swap_b32"
        I(f"{sw} v{O+4*j}, v{O+4*j+2}")
        I(f"{sw} v{O+4*j+1}, v{O+4*j+3}")
        I(f"buffer_store_dwordx4 {vr(O+4*j)}, v{4 if M else 4+j}, {srd(S_OUT)}, s{S_COL} offen offset:{j*(32 if M else 1024)}" + ["", " nt", " sc0", " sc1"][OPT["of"]])
    finish()

h_prog(False)
e.label("L_h_att")
h_prog(True)

e.label("L_C")
role[0] = "C"
reset()
C_WR = 4; C_XR = 12; C_EXW = 3; C_HA = 18; C_HX = (24, 56, 60); C_HACC = 28; C_ACC = 64
I("s_setprio 2")
if OPT["codepf"] and not OPT["pfe"]:
    I("s_cmp_lt_u32 s2, 16")
    I("s_cbranch_scc0 L_nopf")
    e.cond_begin()
    I("s_getpc_b64 s[56:57]")
    e.label("L_pc")
    I(f"s_sub_u32 s56, s56, L_pc-{NAME}_kernel")
    I("s_subb_u32 s57, s57, 0")
    I(f"s_lshr_b32 s{S_t0}, s2, 3")
    I(f"s_lshl_b32 s{S_t0}, s{S_t0}, 15")
    I(f"v_lshlrev_b32 v2, 7, v0")
    I(f"v_lshl_add_u32 v2, v1, 13, v2")
    I(f"v_add_u32 v2, s{S_t0}, v2")
    I(f"v_min_u32 v2, L_end-{NAME}_kernel, v2")
    I(f"global_load_dword v127, v2, s[56:57]")
    e.cond_end()
    e.label("L_nopf")
late_scalars()
def ev_init():
    I("v_lshlrev_b32 v2, 2, v0")
    I(f"v_add_u32 v2, {EV_LDS}, v2")
    I("v_mov_b32 v1, 1")
    I("ds_write_b32 v2, v1", tag="exw0")
I("v_lshrrev_b32 v32, 4, v0")
I("v_and_b32 v33, 15, v0")
I("v_bfe_u32 v34, v0, 2, 2")
I("v_and_b32 v35, 3, v0")
after_karg()
common_ptrs()
mk_srd(S_OUT, 18, 2048 * 1024)
if OPT["tw"] & 2:
    I(f"s_cmp_eq_u32 s{S_w}, 1")
    I("s_cbranch_scc0 L_notw")
    e.cond_begin()
    I(f"s_lshl_b32 s{S_t0}, s2, 12")
    I(f"s_load_dword s{S_EV}, s[14:15], 0")
    I(f"s_load_dword s{S_EV}, s[8:9], 0")
    I(f"s_load_dword s{S_EV}, s[18:19], s{S_t0} glc")
    I(f"s_load_dword s{S_EV}, s[22:23], s{S_A2} glc")
    I(f"s_add_u32 s{S_t0}, s{S_t0}, {PART_OFF}")
    I(f"s_load_dword s{S_EV}, s[22:23], s{S_t0} glc")
    I("s_waitcnt lgkmcnt(0)")
    e.cond_end()
    e.label("L_notw")
if not OPT["hinit"]:
    I(f"s_cmp_eq_u32 s{S_w}, 0")
    I("s_cbranch_scc0 L_c_noinit")
    e.cond_begin()
    for k in range(4):
        I(f"s_mov_b32 s{S_KG+k}, 0")
        I(f"s_add_u32 s{S_t0}, s{S_MYIN}, {k*128}")
        I(f"s_atomic_swap s{S_KG+k}, s[{S_INB}:{S_INB+1}], s{S_t0} glc")
    e.cond_end()
    e.label("L_c_noinit")
if OPT["ev0"]: I("s_barrier")
I(f"s_cmp_ge_u32 s{S_jj}, 2")
I("s_cbranch_scc1 L_c_att")

def c_prog(att):
    reset()
    UL = units(att)
    slot_of = {un: phys(att, k) for k, un in enumerate(UL)}
    subs = [un for un in UL if un[0] == "g"]
    if OPT["spf"] == 2 and OPT["tearly"] and OPT["th"] < 0: vtouch(att)
    n16 = att or not M
    if not (att and OPT["n9"]):
        ev_init(); I("s_waitcnt lgkmcnt(0)"); reset()
    if n16:
        for p in range(2):
            I(f"v_xor_b32 v38, {8 if p == 0 else 0}, v33")
            I("v_and_b32 v39, 8, v38")
            I("v_add_u32 v39, v39, v38")
            I("v_lshlrev_b32 v39, 7, v39")
            I("v_lshrrev_b32 v38, 1, v38")
            I("v_xor_b32 v38, v38, v32")
            I("v_lshl_add_u32 v39, v38, 4, v39")
            I(f"v_add_u32 v39, s{S_m0b}, v39")
            I(f"v_add_u32 v{C_XR+2*p+p}, {p*1024}, v39")
            I(f"v_xor_b32 v{C_XR+2*p+1-p}, 64, v{C_XR+2*p+p}")
        I("v_lshl_add_u32 v38, v32, 3, v34")
        I("v_lshlrev_b32 v38, 7, v38")
        I("v_lshl_add_u32 v38, v35, 3, v38")
        I("v_lshrrev_b32 v39, 1, v34")
        I("v_and_b32 v40, 1, v32")
        I("v_lshl_or_b32 v39, v40, 1, v39")
        I(f"v_xor_b32 v41, {'s'+str(S_w) if att else 0}, v39")
        for t in range(4):
            I(f"v_xor_b32 v40, {t}, v41")
            I(f"v_lshl_add_u32 v{C_WR+t}, v40, 5, v38")
            I(f"v_add_u32 v{C_WR+4+t}, 0x10000, v{C_WR+t}")
        if att:
            I("v_lshrrev_b32 v38, 1, v33")
            I("v_xor_b32 v38, v38, v32")
            I("v_lshlrev_b32 v38, 4, v38")
            I("v_lshl_add_u32 v38, v33, 7, v38")
            I(f"v_add_u32 v{C_HA}, {HALO_LDS}, v38")
            I(f"v_xor_b32 v{C_HA+1}, 64, v{C_HA}")
            I(f"s_mul_i32 s{S_t0}, s{S_w}, 5120")
            I(f"s_add_u32 s{S_t0}, s{S_t0}, {EXCH_LDS+4096}")
            I(f"v_add_u32 v{C_EXW}, s{S_t0}, v{V_L16}")
    else:
        I("v_and_b32 v40, 1, v32")
        I("v_lshlrev_b32 v38, 3, v40")
        I("v_xor_b32 v38, 8, v38")
        I("v_xor_b32 v38, v38, v33")
        I("v_and_b32 v39, 8, v38")
        I("v_add_u32 v39, v39, v38")
        I("v_lshl_add_u32 v39, v40, 3, v39")
        I("v_lshlrev_b32 v39, 7, v39")
        I("v_lshrrev_b32 v38, 1, v38")
        I("v_lshlrev_b32 v41, 2, v40")
        I("v_xor_b32 v38, v38, v41")
        I("v_lshrrev_b32 v41, 1, v32")
        I("v_xor_b32 v38, v38, v41")
        I("v_lshl_add_u32 v39, v38, 4, v39")
        I(f"v_add_u32 v{C_XR}, s{S_m0b}, v39")
        for k in range(1, 4): I(f"v_xor_b32 v{C_XR+k}, {32*k}, v{C_XR}")
        I("v_lshl_add_u32 v38, v41, 3, v34")
        I("v_lshlrev_b32 v38, 7, v38")
        I("v_lshl_add_u32 v38, v35, 3, v38")
        I("v_lshl_add_u32 v38, v40, 5, v38")
        I("v_lshrrev_b32 v39, 1, v34")
        I(f"v_lshl_add_u32 v{C_WR}, v39, 6, v38")
        I(f"v_xor_b32 v{C_WR+1}, 64, v{C_WR}")
        for t in range(2): I(f"v_add_u32 v{C_WR+4+t}, 0x10000, v{C_WR+t}")
    if OPT["spf"] == 2 and not OPT["tearly"] and OPT["th"] < 0: vtouch(att)
    if OPT["spf"] == 1:
        P = 3072 if att else 3584; wp = 6 if att else 12
        I(f"s_lshl_b32 s{S_t0}, s{S_r}, 2"); I(f"s_add_u32 s{S_t0}, s{S_t0}, s{S_w}")
        I(f"s_mul_i32 s{S_t1}, s{S_t0}, {8*P}")
        I(f"s_mul_i32 s{S_t2}, s{S_q}, {256 if att else 896}"); I(f"s_add_u32 s{S_t1}, s{S_t1}, s{S_t2}")
        I(f"s_lshl_b32 s{S_t2}, s{S_j1}, 7"); I(f"s_add_u32 s{S_t2}, s{S_t2}, s{S_t1}")
        I(f"s_add_u32 s56, s{wp}, s{S_t2}"); I(f"s_addc_u32 s57, s{wp+1}, 0")
        for k in range(8): I(f"s_load_dword s{S_EV}, s[56:57], {k*P + (2048 if att else 512)}")
        if not att:
            I(f"s_mul_i32 s{S_t2}, s{S_j1}, {4*P}"); I(f"s_add_u32 s{S_t2}, s{S_t2}, s{S_t1}")
            I(f"s_add_u32 s56, s{wp}, s{S_t2}"); I(f"s_addc_u32 s57, s{wp+1}, 0")
            for k in range(4): I(f"s_load_dword s{S_EV}, s[56:57], {k*P + 768}")
        I(f"s_lshl_b32 s{S_t0}, s{S_t0}, 2"); I(f"s_add_u32 s{S_t0}, s{S_t0}, s{S_jj}")
        I(f"s_mul_i32 s{S_t1}, s{S_t0}, 1792"); I(f"s_mul_i32 s{S_t2}, s{S_q}, {448*1024}"); I(f"s_add_u32 s{S_t1}, s{S_t1}, s{S_t2}")
        I(f"s_add_u32 s56, s14, s{S_t1}"); I("s_addc_u32 s57, s15, 0")
        for k in range(14): I(f"s_load_dword s{S_EV}, s[56:57], {k*128}")
        I(f"s_lshl_b32 s{S_t1}, s{S_t0}, 9"); I(f"s_lshl_b32 s{S_t2}, s{S_q}, 17"); I(f"s_add_u32 s{S_t1}, s{S_t1}, s{S_t2}")
        I(f"s_add_u32 s56, s8, s{S_t1}"); I("s_addc_u32 s57, s9, 0")
        for k in range(4): I(f"s_load_dword s{S_EV}, s[56:57], {k*128}")
        I("s_waitcnt lgkmcnt(0)")
    if not OPT["hinit"]:
        l = U("ci")
        I(f"s_cmp_eq_u32 s{S_w}, 0"); I(f"s_cbranch_scc0 {l}")
        e.cond_begin()
        I(f"s_mov_b32 s{S_t1}, 1")
        I("s_waitcnt lgkmcnt(0)")
        I(f"s_atomic_add s{S_t1}, s[{S_DBG}:{S_DBG+1}], 0")
        e.cond_end(); e.label(l)
    if EG and not att:
        I("v_lshlrev_b32 v18, 4, v32"); I(f"v_add_u32 v18, {GW_LDS}, v18")
        assert not OPT["ev0"]
        I(f"s_lshr_b32 s{S_t0}, s{S_m0b}, 1"); I(f"v_add_u32 v21, s{S_t0}, v{V_L16}"); I(f"v_add_u32 v22, {8*SLOT}, v21")
    I("s_waitcnt vmcnt(0)")
    stamp("c_go")
    def xfr(p, s): return ar((p * 16 + s) * 4)
    def xf32(s16): return ar(s16 * 4)
    def acc(c, T, p=0):
        base = C_ACC + 32 * (c & 1)
        if att: return base + (T * 2 + p) * 4
        if M: return base + T * 16
        return base + (((T >> 1) * 2 + p) * 2 + (T & 1)) * 4
    def xread(dst, areg, slot, tmp, k):
        base = slot * SLOT
        if base >= 65536:
            I(f"v_add_u32 v{tmp}, {base & ~0xffff}, v{areg}"); areg = tmp
        I(f"ds_read_b128 {dst}, v{areg} offset:{base & 0xffff}", tag=f"w{k}")
    steps = []; nh = [0]
    for i, un in enumerate(subs):
        _, c, u = un; slot = slot_of[un]
        for j in range(16):
            h = j >> 3
            if n16:
                ks = (j >> 1) & 3; T = 2 * h + (j & 1); s = 4 * u + ks; zero = (u == 0 and ks == 0); ta = T
                if c == 3: s = 4 * (u + 2 * h) + ks; ta = j & 1; zero = (u == 0 and h == 0 and ks == 0)
                halo = att and T == 0 and c != 1
                st = dict(rd=(C_WR + (4 if slot >= 4 else 0) + T, (slot & 3) * SLOT + ks * 4096, 512))
                def mf(W, st, s=s, T=ta, zero=zero, c=c, halo=halo):
                    out = []
                    for p in range(2):
                        a, b = (xfr(p, s), W) if (att and c == 2) else (W, xfr(p, s))
                        d = vr(acc(c, T, p))
                        out.append(f"{MF} {d}, {a}, {b}, {'0' if zero else d}")
                    if "gate" in st:
                        gs, gp = st["gate"]
                        out.append(f"{MF} {vr(24+4*gp)}, {vr(56+4*(gs&1))}, {xfr(gp,gs)}, {'0' if gs == 0 else vr(24+4*gp)}")
                    if halo:
                        a, b = (vr(st["hreg"]), W) if c == 2 else (W, vr(st["hreg"]))
                        out.append(f"{MF} {vr(C_HACC)}, {a}, {b}, {'0' if zero else vr(C_HACC)}")
                    return out
                if EG and not att and c == 1 and j % 4 >= 2: st["gate"] = (4 * u + (j >> 2), j & 1)
                def post(k, st=st, s=s, halo=halo, j=j, c=c, u=u, ks=ks):
                    if EG and not att and c == 1 and j % 4 == 2:
                        if j == 2:
                            I(f"s_add_u32 s{S_t0}, s{S_rot}, {u}"); I(f"s_and_b32 s{S_t0}, s{S_t0}, 3"); I(f"s_lshl_b32 s{S_t0}, s{S_t0}, 8")
                            I(f"v_add_u32 v19, s{S_t0}, v18")
                        I(f"ds_read_b128 {vr(56+4*((j>>2)&1))}, v19 offset:{(j>>2)*64}", tag=f"w{k}")
                    if OPT["ev0"] and c == 0 and u == 0 and j == 12: I("ds_read_b32 v21, v20 offset:16", tag="se1")
                    if c == 0 and j < 8 and j % 2 == 0:
                        for p in range(2): xread(xfr(p, s), C_XR + 2 * p + (ks & 1), slot_of[("x", u, ks >> 1)], 1 + p, k)
                    if att and c == 2 and u == 2 and j == 11 and OPT["u19"]: d_read("Lv3", "chk11")
                    if halo:
                        st["hreg"] = C_HX[nh[0] % 3]; nh[0] += 1
                        I(f"ds_read_b128 {vr(st['hreg'])}, v{C_HA+(s&1)} offset:{(s>>1)*2048}", tag=f"w{k}")
            else:
                kk = j & 7
                if c < 3: s16 = 8 * u + kk; ta = h; zero = (u == 0 and kk == 0)
                else: s16 = 8 * (u + 2 * h) + kk; ta = 0; zero = (u == 0 and j == 0)
                st = dict(rd=(C_WR + (4 if slot >= 4 else 0) + h, (slot & 3) * SLOT + kk * 2048, 512))
                d = vr(acc(c, ta), 16)
                def mf(W, st, s16=s16, d=d, zero=zero): return [f"{M32} {d}, {W}, {xf32(s16)}, {'0' if zero else d}"]
                def post(k, s16=s16, j=j, c=c, u=u, kk=kk):
                    if c == 0 and j < 8: xread(xf32(s16), C_XR + (kk & 3), slot_of[("x", u, kk >> 2)], 1 + (kk & 1), k)
            st["mf"] = mf; st["post"] = post
            if j == 0:
                def pre(i=i):
                    stamp(f"t{i}")
                    if att and i == 8:
                        assert e.lgq[0][0].count("exw0") == 5 + OPT["n9"]
                        e.wait(lg="exw0")
                    if att and slot_of[subs[i]] >= 8:
                        for t in range(4): I(f"v_add_u32 v{C_WR+4+t}, 0x10000, v{C_WR+4+t}")
                    if att and i and slot_of[subs[i-1]] >= 8:
                        for t in range(4): I(f"v_subrev_u32 v{C_WR+4+t}, 0x10000, v{C_WR+4+t}")
                    if not att and OWN:
                        cc = {8: 0, 9: 1, 13: 2}.get(i)
                        if cc is not None:
                            assert e.lgq[0][0].count(f"exw{cc}") == 4, (i, e.lgq[0][0].count(f"exw{cc}"))
                            e.wait(lg=f"exw{cc}")
                        if i == 11: e.wait(vm="stg")
                    elif not att and i - OPT["ackb"] in (0, 1):
                        assert e.vmq[0][0].count(f"st{i-OPT['ackb']}") == 4
                        e.wait(vm=f"st{i-OPT['ackb']}")
                        if EG and i - OPT["ackb"] == 1: e.wait(vm="stg")
                    if i < 2 and OPT["ev0"]:
                        ok = U("ok"); lp = U("sp")
                        rd = f"ds_read_b32 v21, v20 offset:{16*i}"
                        if i == 0:
                            I(f"v_add_u32 v20, {(SEV(att) - EV_LDS) & 0xffffffff}, v{V_EVW}")
                            I(rd, tag="se0")
                        e.wait(lg=f"se{i}")
                        I("v_cmp_ne_u32 vcc, 0, v21")
                        I(f"s_cbranch_vccnz {lp}")
                        e.label(ok)
                        SLOW.extend([f"{lp}:", f"    {rd}", "    s_waitcnt lgkmcnt(0)", "    v_cmp_ne_u32 vcc, 0, v21", f"    s_cbranch_vccz {ok}", "    s_sleep 1"] + spin_tail(lp, ok))
                    elif i < (9 if att else 14): I("s_barrier")
                    if att and i == 11 and OPT["u19"]: d_check("Lv3", "chk11")
                    stamp(f"s{i}")
                    if att and M and i == 8:
                        for t in range(8): I(f"v_xor_b32 v{C_WR+t}, v19, v{C_WR+t}")
                st["pre"] = pre
            steps.append(st)
    if att: S = Stream(steps, OPT["D"], [32, 36, 40, 44, 48, 52])
    else: S = Stream(steps, OPT["DF"], [32, 36, 40, 44, 48, 52])
    DD = S.D
    line0 = len(e.lines)
    def chkbar(nb): assert sum(1 for l in e.lines[line0:] if l.strip() == "s_barrier") >= nb
    def packn(a, n_): return [lambda k=k: I(f"v_cvt_pk_bf16_f32 v{a+k}, v{a+2*k}, v{a+2*k+1}") for k in range(n_)]
    def epi(c, h):
        F = []
        if att:
            for t in (2 * h, 2 * h + 1):
                a = acc(c, t, 0)
                F += packn(a, 4)
                def wr(t=t, a=a):
                    I(f"v_xor_b32 v1, {t*1024}, v{C_EXW}")
                    if c == 1: I(f"v_add_u32 v1, {(QSLOT*SLOT - EXCH_LDS - 4096) & 0xffffffff}, v1")
                    I(f"ds_write_b128 v1, {vr(a)}", tag=f"exw{c}")
                F.append(wr)
            if h == 0 and c != 1:
                def hw():
                    I(f"v_cvt_pk_bf16_f32 v{C_HACC}, v{C_HACC}, v{C_HACC+1}")
                    I(f"v_cvt_pk_bf16_f32 v{C_HACC+1}, v{C_HACC+2}, v{C_HACC+3}")
                    I(f"s_add_u32 s{S_t0}, s{S_m0b}, 4096")
                    I(f"v_subrev_u32 v1, s{S_t0}, v{C_EXW}")
                    I(f"ds_write2_b64 v1, {vr(C_HACC,2)}, {vr(C_HACC,2)} offset0:0 offset1:1", tag=f"exw{c}")
                F.append(hw)
                if c == 0 and OPT["n9"]: F.append(ev_init)
        else:
            a = acc(c, h) if M else acc(c, 2 * h, 0)
            F += packn(a, 8)
            def so():
                I(f"s_lshr_b32 s{S_GIN}, s{S_J32}, {2 if c < 3 else 3}")
                I(f"s_add_u32 s{S_GIN}, s{S_GIN}, s{S_A2}"); I(f"s_add_u32 s{S_GIN}, s{S_GIN}, {(4*c+h)*8192}")
            if OWN and c < 3:
                for p in range(2):
                    F += [lambda k=k: I(f"v_pk_max_i16 v{k}, v{k}, 0") for k in range(a + 4 * p, a + 4 * p + 4)]
                    F.append(cost(0, lambda: chkbar((8, 9, 10)[c])))
                    F.append(cost(2, lambda p=p: I(f"ds_write_b128 v{21 if c == 1 else 22}, {vr(a+4*p)} offset:{h*8192+p*1024}", tag=f"exw{c}")))
                return F
            F.append(so)
            for p in range(2):
                F += [lambda k=k: I(f"v_pk_max_i16 v{k}, v{k}, 0") for k in range(a + 4 * p, a + 4 * p + 4)]
                F.append(cost(9, lambda p=p: I(f"buffer_store_dwordx4 {vr(a+4*p)}, v{V_L16}, {srd(S_WS)}, s{S_GIN} offen offset:{p*1024} sc1", tag=f"st{c}")))
        return F
    n = len(steps)
    for c, i, reuse in ((0, 6, 8), (1, 7, 12), (2, 11, 99)):
        for h in range(2):
            k = 16 * i + 8 * h + 7
            if k == n - 1: continue
            dl = min(16 * reuse + (8 * h if reuse == 8 else 0), n)
            if att and c < 2: dl = 16 * 8 - DD - 3 if c == 0 else OPT["kq"] - 1
            if OWN and not att: dl = 16 * (8, 9, 13)[c] - DD - 1
            S.aft(k, lambda k=k, c=c, h=h, dl=dl: S.add(max(k + (2 if n16 else 4), 16 * 7 - DD + 1 if att else (0, 16 * 8 - DD - 4, 0)[c] if OWN else 0), dl, epi(c, h)))
    if att:
        def qbar():
            assert e.lgq[0][0].count("exw1") == 4
            e.wait(lg="exw1"); I("s_barrier")
        assert OPT["kq"] < 16 * 9 - DD
        S.aft(OPT["kq"], qbar)
    if EG and not att:
        def gst():
            I(f"s_lshl_b32 s{S_t0}, s{S_r}, 2"); I(f"s_add_u32 s{S_t0}, s{S_t0}, s{S_q}"); I(f"s_lshl_b32 s{S_t0}, s{S_t0}, 12")
            I(f"s_lshr_b32 s{S_t1}, s{S_m0b}, 2"); I(f"s_add_u32 s{S_t0}, s{S_t0}, s{S_t1}"); I(f"s_add_u32 s{S_t0}, s{S_t0}, {GA_OFF}")
            I(f"s_lshl_b32 s{S_t1}, s{S_j1}, 28"); I(f"s_add_u32 s{S_t0}, s{S_t0}, s{S_t1}")
            I(f"buffer_store_dwordx4 {vr(56)}, v{V_L16}, {srd(S_WS)}, s{S_t0} offen sc1", tag="stg")
        S.aft(16 * 8, lambda: S.add(0, 16 * (OPT["ackb"] + 1) - 12, [lambda t=t: I(t) for t in gate_math(24, 28, 56, 3)] + [gst]))
    if STG:
        I(f"s_mov_b32 s{S_POLL}, 0")
        S.aft(n - 24, poll_load)
    S.run(OPT["side"] if att else OPT["sidef"])
    stamp("c_end")
    if not att: I("s_barrier")
    for f in (epi(2, 1) if att else epi(3, 0)): f()
    if att:
        e.wait(lg="exw2")
        I("s_barrier")
    if OPT["cprio"] != 2: I(f"s_setprio {OPT['cprio']}")
    if STG:
        I("s_setprio 3")
        def pair(lam, slot):
            I(f"s_add_u32 m0, s{S_m0b}, {slot*SLOT}")
            a2_soff(lam, S_SOFF)
            for i in range(4):
                if i == 2: I(f"s_add_u32 s{S_SOFF}, s{S_SOFF}, {8192-2048}")
                I(f"buffer_load_dwordx4 v{V_L16}, {srd(S_WS)}, s{S_SOFF} offen offset:{i*1024} sc1 lds")
        B = lambda g: b2_unit(g, 4, False)
        b2_voffs(4)
        if att: I("s_barrier")
        else:
            assert e.vmq[0][0].count("st2") == 4
            e.wait(vm="st2"); push_group(ownbit(2), (0, 1, 2, 3))
        poll_check(0x22)
        pair(4, 6); dsig("S1")
        B(3); pair(6, 7); dsig("S2")
        if not att:
            e.wait(vm="st3"); push_group(ownbit(3), (0, 1, 2, 3))
        poll_load()
        B(4); poll_check(0x44); pair(8, 8); dsig("S3"); poll_load()
        B(5)
        I(f"s_lshr_b32 s{S_t1}, s{S_m0b}, 2"); I(f"s_add_u32 m0, s{S_t1}, {GB_LDS}")
        I(f"s_lshl_b32 s{S_t0}, s{S_r}, 2"); I(f"s_add_u32 s{S_t0}, s{S_t0}, s{S_q}"); I(f"s_lshl_b32 s{S_t0}, s{S_t0}, 12")
        I(f"s_add_u32 s{S_t0}, s{S_t0}, s{S_t1}"); I(f"s_add_u32 s{S_t0}, s{S_t0}, {GA_OFF}")
        I(f"buffer_load_dwordx4 v{V_L16}, {srd(S_WS)}, s{S_t0} offen sc1 lds")
        stamp("c_pa")
        I("s_barrier")
        pair(10, 0); dsig("S4"); B(6)
        poll_check(0x88); pair(12, 1); dsig("S5"); poll_load()
        stamp("c_pb")
        I("s_barrier")
        poll_load()
        B(8); B(7)
        if att:
            I(f"s_xor_b32 s{S_THR}, s{S_jj}, 1"); I(f"s_lshl_b32 s{S_THR}, 64, s{S_THR}")
            poll_check(f"s{S_THR}")
        else:
            poll_check(0x300); pair(16, 2)
        pair(14, 3); dsig("S6")
    else:
        rest = [3, 4, 5, 6, 8, 7]
        def cunit():
            g = rest.pop(0)
            if att and g == 8 and not OPT["vb2"]:
                t = U("t"); d_read("VD", t); d_check("VD", t)
            b2_unit(g, 4, g in SIGG)
        if not att:
            if not OWN:
                assert e.vmq[0][0].count("st2") == 4
                e.wait(vm="st2"); push_group(ownbit(2), (0, 1, 2, 3))
            stamp("c_f2")
            b2_voffs(4)
            if OPT["lowp"]: I("s_setprio 0")
            cunit(); cunit()
        if EG:
            if att:
                b2_voffs(4)
                if OPT["vb2"]: I("s_barrier")
                if OPT["lowp"]: I("s_setprio 0")
                cunit(); cunit()
            else:
                e.wait(vm="st3"); push_group(ownbit(3), (0, 1, 2, 3))
        else:
            I("s_setprio 2")
            stamp("c_g0")
            I("v_lshrrev_b32 v9, 4, v0")
            if n16:
                I("v_lshlrev_b32 v8, 4, v9")
            else:
                I("v_lshrrev_b32 v8, 5, v0"); I("v_lshlrev_b32 v8, 4, v8")
                I("v_xor_b32 v9, v9, v0"); I("v_and_b32 v9, 1, v9")
                I("v_cmp_eq_u32 vcc, 0, v9")
            NG = 16 if n16 else 32; per = NG // 4
            RB = [32 + 4 * k for k in range(8)]
            def gread(s_):
                if s_ % per == 0:
                    I(f"s_add_u32 s{S_t0}, s{S_rot}, {s_//per}"); I(f"s_and_b32 s{S_t0}, s{S_t0}, 3"); I(f"s_lshl_b32 s{S_t0}, s{S_t0}, 8")
                    I(f"s_add_u32 s{S_t0}, s{S_t0}, {GW_LDS}")
                    I(f"v_add_u32 v10, s{S_t0}, v8")
                    if not n16:
                        I(f"v_mov_b32 v11, {ZERO_LDS}"); I("v_cndmask_b32 v10, v11, v10, vcc")
                I(f"ds_read_b128 {vr(RB[s_%8])}, v10 offset:{(s_%per)*(64 if n16 else 32)}", tag=f"g{s_}")
            for s_ in range(6): gread(s_)
            if att:
                b2_voffs(4)
                I("s_barrier")
                cunit()
            for s_ in range(NG):
                e.wait(lg=f"g{s_}")
                if n16:
                    for p in range(2): I(f"{MF} {vr(64+4*p)}, {vr(RB[s_%8])}, {xfr(p,s_)}, {'0' if s_ == 0 else vr(64+4*p)}")
                else:
                    I(f"{MF} {vr(64)}, {vr(RB[s_%8])}, {xf32(s_)}, {'0' if s_ == 0 else vr(64)}")
                if s_ + 6 < NG: gread(s_ + 6)
                if s_ == NG // 2 and rest: cunit()
            if not att:
                e.wait(vm="st3"); push_group(ownbit(3), (0, 1, 2, 3))
                stamp("c_f3")
            cunit()
            z1 = 68 if n16 else 65; G = 72
            T = gate_math(64, z1, G, 1)
            for t in T: I(t)
            I(f"s_lshl_b32 s{S_t0}, s{S_w}, 8"); I(f"s_add_u32 s{S_t0}, s{S_t0}, {GB_LDS}")
            I(f"v_lshl_add_u32 v1, v0, 3, s{S_t0}")
            I("s_mov_b64 exec, 0xffff")
            I(f"ds_write_b64 v1, {vr(G,2)}", tag="gz")
            I(f"ds_write_b64 v1, {vr(G+2,2)} offset:128", tag="gz")
            I("s_mov_b64 exec, -1")
            e.wait(lg="gz")
            if OPT["lowp"]: I("s_setprio 0")
            dsig("G")
        stamp("c_g1")
        while rest:
            throttle(); cunit()
    if OPT["crx"]:
        I("s_setprio 3")
        I(f"s_mov_b32 s{S_POLL}, 0")
        poll_check(2)
        I(f"s_lshl_b32 s{S_t0}, s{S_r}, 2"); I(f"s_add_u32 s{S_t0}, s{S_t0}, s{S_q}"); I(f"s_lshl_b32 s{S_t0}, s{S_t0}, 12")
        I(f"s_lshr_b32 s{S_t1}, s{S_m0b}, 2"); I(f"s_add_u32 s{S_t0}, s{S_t0}, s{S_t1}"); I(f"s_add_u32 s{S_t0}, s{S_t0}, {GA_OFF}")
        I(f"buffer_load_dwordx4 {vr(20)}, v{V_L16}, {srd(S_WS)}, s{S_t0} offen sc1", tag="gz")
        pb_setup(); out_addr()
        I(f"v_add_u32 v1, s{S_m0b}, v{V_L16}")
        I("s_barrier")
        O = 64
        for tau in range(3):
            poll_check(1024 << tau)
            stamp(f"c_r{tau}")
            for j in range(2):
                I(f"buffer_load_dwordx4 {vr(24+tau*8+j*4)}, v{V_L16}, {srd(S_WS)}, s{S_GIN} offen offset:{j*1024} sc1", tag=f"r{tau}")
            if tau < 2: I(f"s_add_u32 s{S_GIN}, s{S_GIN}, 8192")
        def unpack(tau, b):
            e.wait(vm=f"r{tau}")
            for k in range(8):
                I(f"v_lshlrev_b32 v{b+2*k}, 16, v{24+tau*8+k}")
                I(f"v_and_b32 v{b+2*k+1}, 0xffff0000, v{24+tau*8+k}")
        def addv(d, b):
            for k in range(16): I(f"v_add_f32 v{d+k}, v{d+k}, v{b+k}")
        unpack(0, 80); unpack(1, 96); addv(80, 96)
        I("s_barrier")
        for j in range(4): I(f"ds_read_b128 {vr(O+4*j)}, v1 offset:{j*1024}", tag="own")
        unpack(2, 96)
        for k in range(8): I(f"v_pk_add_f32 {vr(80+2*k,2)}, {vr(80+2*k,2)}, {vr(96+2*k,2)}")
        e.wait(lg="own")
        for k in range(8): I(f"v_pk_add_f32 {vr(O+2*k,2)}, {vr(O+2*k,2)}, {vr(80+2*k,2)}")
        for k in range(8): I(f"v_pk_mul_f32 {vr(O+2*k,2)}, {vr(O+2*k,2)}, {vr(20+2*(k>>2),2)} op_sel_hi:[1,0]")
        stamp("c_sum")
        for k in range(8): I(f"v_cvt_pk_bf16_f32 v{O+k}, v{O+2*k}, v{O+2*k+1}")
        for j in range(2):
            I(f"v_permlane16_swap_b32 v{O+4*j}, v{O+4*j+2}")
            I(f"v_permlane16_swap_b32 v{O+4*j+1}, v{O+4*j+3}")
            I(f"buffer_store_dwordx4 {vr(O+4*j)}, v{4+j}, {srd(S_OUT)}, s{S_COL} offen offset:{j*1024}")
        finish()
        return
    if OPT["dummy"]:
        I(f"s_lshl_b32 s{S_t0}, s2, 2"); I(f"s_add_u32 s{S_t0}, s{S_t0}, s{S_w}"); I(f"s_mul_i32 s{S_t0}, s{S_t0}, 9216"); I(f"s_add_u32 s{S_t0}, s{S_t0}, {20<<20}")
        for k in range(9):
            I(f"buffer_store_dwordx4 {vr(64)}, v{V_L16}, {srd(S_WS)}, s{S_t0 if OPT['dummy'] == 1 else S_WS+2} offen")
            I(f"s_add_u32 s{S_t0}, s{S_t0}, 1024")
    I("s_waitcnt vmcnt(0) lgkmcnt(0)")
    finish()

c_prog(False)
e.label("L_c_att")
c_prog(True)

e.label("L_end")
I("s_endpgm")
e.raw('.section .rodata,"a"')
e.raw(".p2align 6")
e.raw(f".amdhsa_kernel {NAME}_kernel")
e.raw("  .amdhsa_next_free_vgpr 256")
e.raw("  .amdhsa_next_free_sgpr 102")
e.raw("  .amdhsa_accum_offset 128")
e.raw("  .amdhsa_group_segment_fixed_size 0")
e.raw("  .amdhsa_kernarg_size 80")
e.raw("  .amdhsa_user_sgpr_count 2")
e.raw("  .amdhsa_user_sgpr_kernarg_segment_ptr 1")
e.raw("  .amdhsa_system_sgpr_workgroup_id_x 1")
e.raw(".end_amdhsa_kernel")
sys.stdout.write(e.text())
sys.stderr.write(f"instructions {e.nins} nop-states {e.nops}\n")
```
